```python
import torch

def _softmax(x, axis=-1):
    return torch.softmax(x, dim=axis)

def _gelu(x):
    return torch.nn.functional.gelu(x, approximate='tanh')

def _silu(x):
    return torch.nn.functional.silu(x)

def _sigmoid(x):
    return torch.sigmoid(x)

def _layernorm(x, axis=-1, eps=1e-05):
    m = x.mean(dim=axis, keepdim=True)
    v = x.var(dim=axis, keepdim=True, unbiased=False)
    return (x - m) / torch.sqrt(v + eps)

def _scatter_add(tgt, idx, src, axis=0):
    return tgt.clone().index_add_(axis, idx, src)

def _segment_sum(src, seg, n):
    out = torch.zeros((n,) + src.shape[1:], dtype=src.dtype)
    return out.index_add_(0, seg, src)

def _pad(x, pw):
    flat = tuple((v for pair in reversed(pw) for v in pair))
    return torch.nn.functional.pad(x, flat)
kernel_name = 'adaLN_cond__sliding_block_cached__mixer_s_mlp__prompt'

def setup_inputs():

    _w = lambda a: (lambda t: t.to(torch.bfloat16) if t.is_floating_point() else t)(torch.as_tensor(a))

    def _A_setup():
        B, Sq, D = (1, 2048, 512)
        Hq, Hkv, Sk, Dh = (32, 8, 2048, 128)
        assert Hq % Hkv == 0, (Hq, Hkv)
        return {'x': _w((lambda *s: torch.randn(*s, dtype=torch.bfloat16) * 0.05)(B, Sq, D)), 'k_cache': _w((lambda *s: torch.randn(*s, dtype=torch.bfloat16) * 3.2)(B, Hkv, Sk, Dh)), 'v_cache': _w((lambda *s: torch.randn(*s, dtype=torch.bfloat16) * 0.4)(B, Hkv, Sk, Dh)), 'wq': _w((lambda *s: torch.randn(*s, dtype=torch.bfloat16) * 3.2)(D, Hq * Dh) * D ** (-0.5)), 'wo': _w((lambda *s: torch.randn(*s, dtype=torch.bfloat16) * 0.4)(Hq * Dh, D) * (Hq * Dh) ** (-0.5))}
    _A_in = _A_setup()

    def _B_setup():
        B, S, D, F = (1, 2048, 512, 1792)
        return {'x': _w((lambda *s: torch.randn(*s, dtype=torch.bfloat16) * 0.05)(B, S, D)), 'w1': _w((lambda *s: torch.randn(*s, dtype=torch.bfloat16) * 3.2)(D, D) * D ** (-0.5)), 'w2': _w((lambda *s: torch.randn(*s, dtype=torch.bfloat16) * 3.2)(D, D) * D ** (-0.5)), 'w3': _w((lambda *s: torch.randn(*s, dtype=torch.bfloat16) * 3.2)(D, F) * D ** (-0.5)), 'w4': _w((lambda *s: torch.randn(*s, dtype=torch.bfloat16) * 3.2)(F, D) * F ** (-0.5))}
    _B_in = _B_setup()
    return {'A_x': _A_in['x'], 'A_k_cache': _A_in['k_cache'], 'A_v_cache': _A_in['v_cache'], 'A_wq': _A_in['wq'], 'A_wo': _A_in['wo'], 'B_x': _B_in['x'], 'B_w1': _B_in['w1'], 'B_w2': _B_in['w2'], 'B_w3': _B_in['w3'], 'B_w4': _B_in['w4'], 'c': _w((lambda *s: torch.randn(*s, dtype=torch.bfloat16) * 0.1)(1, 512) * 8.0), 'w_mod': _w((lambda *s: torch.randn(*s, dtype=torch.bfloat16) * 0.1)(512, 6 * 512) * 512 ** (-0.5) * 8.0)}

def reference(A_x, A_k_cache, A_v_cache, A_wq, A_wo, B_x, B_w1, B_w2, B_w3, B_w4, c, w_mod):

    def _A_ref(x, k_cache, v_cache, wq, wo):
        B, Sq, D = x.shape
        Hq, Dh = (32, 128)
        Hkv, Sk = (k_cache.shape[1], k_cache.shape[2])
        W = min(4096, max(256, Sk // 4))
        rep = Hq // Hkv
        q = (lambda x, *d: x.permute(*d))((x @ wq).reshape(B, Sq, Hq, Dh), 0, 2, 1, 3)
        k = (lambda x, n, axis: torch.repeat_interleave(x, n, dim=axis))(k_cache[:, :, Sk - W:, :], rep, axis=1)
        v = (lambda x, n, axis: torch.repeat_interleave(x, n, dim=axis))(v_cache[:, :, Sk - W:, :], rep, axis=1)
        scores = torch.einsum('bhqd,bhkd->bhqk', q, k) * Dh ** (-0.5)
        p = _softmax(scores, axis=-1)
        o = torch.einsum('bhqk,bhkd->bhqd', p, v)
        return (lambda x, *d: x.permute(*d))(o, 0, 2, 1, 3).reshape(B, Sq, Hq * Dh) @ wo

    def _B_ref(x, w1, w2, w3, w4):
        B, S, D = x.shape
        h = _gelu(_layernorm(x, axis=-1) @ w1)
        c = D // 4
        g0 = _pad(h[:, :, 0 * c:1 * c], ((0, 0), (1, 0), (0, 0)))[:, :S, :]
        g1 = _pad(h[:, :, 1 * c:2 * c], ((0, 0), (0, 1), (0, 0)))[:, 1:, :]
        g2 = _pad(h[:, :, 2 * c:3 * c], ((0, 0), (2, 0), (0, 0)))[:, :S, :]
        g3 = _pad(h[:, :, 3 * c:], ((0, 0), (0, 2), (0, 0)))[:, 2:, :]
        hs = torch.concatenate([g0, g1, g2, g3], axis=-1) @ w2
        x1 = x + hs
        h2 = _gelu(_layernorm(x1, axis=-1) @ w3) @ w4
        return x1 + h2
    x = A_x
    mod = (_silu(c) @ w_mod).reshape(c.shape[0], 6, 1, -1)
    sa, ca, ga, sb, cb, gb = (mod[:, 0].clone(), mod[:, 1].clone(), mod[:, 2].clone(), mod[:, 3].clone(), mod[:, 4].clone(), mod[:, 5].clone())
    h = _layernorm(x, axis=-1) * (1 + ca) + sa
    x = x + ga * _A_ref(h, A_k_cache, A_v_cache, A_wq, A_wo)
    h = _layernorm(x, axis=-1) * (1 + cb) + sb
    x = x + gb * _B_ref(h, B_w1, B_w2, B_w3, B_w4)
    return x
```

```python
class Asm:
    def __init__(self):
        self.lines = []
        self._lbl = 0
    def __call__(self, s):
        for ln in s.strip("\n").split("\n"):
            ln = ln.strip()
            if ln:
                self.lines.append("    " + ln)
    def raw(self, s):
        self.lines.append(s)
    def label(self, l):
        self.lines.append(l + ":")
    def newlabel(self, p="L"):
        self._lbl += 1
        return f".{p}_{self._lbl}"
    def comment(self, s):
        self.lines.append("    ; " + s)
    def text(self):
        return "\n".join(self.lines) + "\n"

def vr(a, n=1):
    return f"v{a}" if n == 1 else f"v[{a}:{a+n-1}]"
def sr(a, n=1):
    return f"s{a}" if n == 1 else f"s[{a}:{a+n-1}]"
def ar(a, n=1):
    return f"a{a}" if n == 1 else f"a[{a}:{a+n-1}]"

import struct
def f2u(x):
    return struct.unpack("<I", struct.pack("<f", x))[0]
def fhex(x):
    return "0x%08x" % f2u(x)

def kernel_header(A, name):
    A.raw(f".globl {name}")
    A.raw(".p2align 8")
    A.raw(f".type {name},@function")
    A.label(name)

def kernel_desc(name, vgpr, sgpr, accum=None):
    if accum is None:
        accum = (vgpr + 3) // 4 * 4
    return f""".section .rodata,"a"
.p2align 6
.amdhsa_kernel {name}
  .amdhsa_next_free_vgpr {vgpr}
  .amdhsa_next_free_sgpr {sgpr}
  .amdhsa_accum_offset {accum}
  .amdhsa_group_segment_fixed_size 0
  .amdhsa_kernarg_size 120
  .amdhsa_user_sgpr_count 2
  .amdhsa_user_sgpr_kernarg_segment_ptr 1
  .amdhsa_system_sgpr_workgroup_id_x 1
  .amdhsa_float_denorm_mode_32 3
.end_amdhsa_kernel
.text
"""

def make_srd(A, d, base, off, size):
    if isinstance(off, int) and off == 0:
        A(f"s_mov_b32 s{d}, s{base}")
        A(f"s_mov_b32 s{d+1}, s{base+1}")
    else:
        o = off if isinstance(off, str) else hex(off)
        A(f"s_add_u32 s{d}, s{base}, {o}")
        A(f"s_addc_u32 s{d+1}, s{base+1}, 0")
    A(f"s_mov_b32 s{d+2}, {hex(size)}")
    A(f"s_mov_b32 s{d+3}, 0x00020000")

def wave_allreduce(A, op, vals, tmps, tmps2):
    A("s_nop 1")
    for dpp in ("quad_perm:[1,0,3,2]", "quad_perm:[2,3,0,1]", "row_half_mirror", "row_mirror"):
        for v in vals:
            A(f"{op}_dpp v{v}, v{v}, v{v} {dpp} row_mask:0xf bank_mask:0xf")
        if len(vals) < 3:
            A("s_nop 1")
    for sw in ("v_permlane16_swap_b32", "v_permlane32_swap_b32"):
        for v, t, u in zip(vals, tmps, tmps2):
            A(f"v_mov_b32 v{t}, v{v}")
            A(f"v_mov_b32 v{u}, v{v}")
        A("s_nop 1")
        for v, t, u in zip(vals, tmps, tmps2):
            A(f"{sw} v{t}, v{u}")
        A("s_nop 1")
        for v, t, u in zip(vals, tmps, tmps2):
            A(f"{op} v{v}, v{t}, v{u}")
```

```python
from asmlib import *
MB = 1 << 20
WS_MOD = 0
WS_XN = 1 * MB
WS_X2 = 4 * MB
WS_X1 = 6 * MB
WS_XN4 = 8 * MB
WS_G = 10 * MB
WS_H = 18 * MB
WS_HN = 20 * MB
WS_H1 = 22 * MB
WS_PART = 32 * MB
WS_DBG = 64 * MB
LOG2E = 1.4426950408889634
import os
PREFETCH = int(os.environ.get("PREFETCH", "1"))
NPF = 8 if PREFETCH else 0

def round_bf16_1(A, v, t):
    A(f"v_cvt_pk_bf16_f32 v{t}, v{v}, v{v}")
    A(f"v_lshlrev_b32 v{v}, 16, v{t}")

def round_bf16_2(A, a, b, t, smask):
    A(f"v_cvt_pk_bf16_f32 v{t}, v{a}, v{b}")
    A(f"v_lshlrev_b32 v{a}, 16, v{t}")
    A(f"v_and_b32 v{b}, {smask}, v{t}")

def ln_stats_finish(A, vsum_sq, vden, vrinv, t):
    round_bf16_1(A, vsum_sq, t)
    A(f"v_add_f32 v{vsum_sq}, {fhex(1e-5)}, v{vsum_sq}")
    round_bf16_1(A, vsum_sq, t)
    A(f"v_sqrt_f32 v{vden}, v{vsum_sq}")
    A("s_nop 0")
    round_bf16_1(A, vden, t)
    A(f"v_rcp_f32 v{vrinv}, v{vden}")
    A("s_nop 0")

def gen_k0(A):
    name = "k0_kernel"
    kernel_header(A, name)
    A("s_cmp_ge_u32 s2, 256")
    A("s_cbranch_scc1 .Lk0_end")
    A("s_load_dwordx2 s[4:5], s[0:1], 0")
    A("s_load_dwordx4 s[8:11], s[0:1], 80")
    A("s_load_dwordx2 s[6:7], s[0:1], 112")
    A("v_and_b32 v1, 63, v0")
    A("v_lshrrev_b32 v2, 6, v0")
    A("s_mov_b32 s40, 0xffff0000")
    A("s_waitcnt lgkmcnt(0)")
    make_srd(A, 12, 4, 0, 2 * MB)
    make_srd(A, 16, 6, WS_XN, 2 * MB)
    make_srd(A, 20, 8, 0, 1024)
    make_srd(A, 24, 10, 0, 512 * 6144)
    make_srd(A, 28, 6, WS_MOD, 3072 * 4)
    A("s_lshl_b32 s3, s2, 13")
    A("v_lshlrev_b32 v3, 11, v2")
    A("v_lshl_add_u32 v3, v1, 4, v3")
    A("v_add_u32 v3, s3, v3")
    A("buffer_load_dwordx4 v[4:7], v3, s[12:15], 0 offen")
    A("buffer_load_dwordx4 v[8:11], v3, s[12:15], 0 offen offset:1024")
    A("s_cmp_ge_u32 s2, 96")
    A("s_cbranch_scc1 .Lk0_noB1")
    A("v_and_b32 v12, 3, v0")
    A("v_lshrrev_b32 v13, 2, v0")
    A("s_movk_i32 s41, 6144")
    A("v_mul_lo_u32 v14, v13, s41")
    A("v_lshl_add_u32 v14, v12, 4, v14")
    A("s_lshl_b32 s42, s2, 6")
    for i in range(8):
        A(f"s_add_u32 s{44+i}, s42, {i*64*6144}")
    A("v_lshlrev_b32 v15, 1, v13")
    for i in range(8):
        A(f"buffer_load_ushort v{16+i}, v15, s[20:23], 0 offen offset:{i*128}")
    for i in range(8):
        A(f"buffer_load_dwordx4 v[{24+4*i}:{27+4*i}], v14, s[24:27], s{44+i} offen")
    A.label(".Lk0_noB1")
    if PREFETCH:
        A("s_load_dwordx8 s[64:71], s[0:1], 8")
        A("s_load_dwordx8 s[72:79], s[0:1], 48")
        A("s_and_b32 s52, s2, 7")
        A("s_lshr_b32 s53, s2, 3")
        A("v_lshlrev_b32 v97, 6, v0")
        A("v_lshrrev_b32 v98, 4, v0")
        A("v_and_b32 v99, 15, v0")
        A("v_lshlrev_b32 v99, 6, v99")
        A("v_lshl_add_u32 v98, v98, 13, v99")
        A("v_lshlrev_b32 v99, 6, v1")
        A("s_waitcnt lgkmcnt(0)")
        make_srd(A, 80, 68, 0, 4 * MB)
        A("s_lshl_b32 s54, s53, 17")
        A("s_lshl_b32 s55, s52, 10")
        A("s_add_u32 s54, s54, s55")
        A("buffer_load_dword v100, v98, s[80:83], s54 offen")
        make_srd(A, 84, 70, 0, 4 * MB)
        A("s_lshl_b32 s54, s52, 19")
        A("s_lshl_b32 s55, s53, 14")
        A("s_add_u32 s54, s54, s55")
        A("buffer_load_dword v101, v97, s[84:87], s54 offen")
        make_srd(A, 88, 64, 0, 4 * MB)
        make_srd(A, 92, 66, 0, 4 * MB)
        A("s_lshl_b32 s54, s52, 19")
        A("s_lshl_b32 s55, s53, 12")
        A("s_add_u32 s54, s54, s55")
        A(f"s_add_u32 s54, s54, {1536*256}")
        A("buffer_load_dword v102, v99, s[88:91], s54 offen")
        A("buffer_load_dword v103, v99, s[92:95], s54 offen")
        for (i, (p, sz)) in enumerate(((72, 512*1024), (74, 512*1024), (76, 1792*1024), (78, 1792*1024))):
            per = sz // 256
            A(f"s_mul_i32 s54, s2, {per}")
            make_srd(A, 96, p, "s54", per)
            A(f"buffer_load_dword v{104+i}, v97, s[96:99], 0 offen")
    A("s_cmp_ge_u32 s2, 96")
    A("s_cbranch_scc1 .Lk0_w0")
    A(f"s_waitcnt vmcnt({16 + NPF})")
    A("s_branch .Lk0_w1")
    A.label(".Lk0_w0")
    A(f"s_waitcnt vmcnt({NPF})")
    A.label(".Lk0_w1")
    X = [64, 72]
    for r in range(2):
        for j in range(4):
            A(f"v_lshlrev_b32 v{X[r]+2*j}, 16, v{4+4*r+j}")
            A(f"v_and_b32 v{X[r]+2*j+1}, s40, v{4+4*r+j}")
    S = [80, 81]
    for r in range(2):
        A(f"v_add_f32 v{S[r]}, v{X[r]}, v{X[r]+1}")
        for j in range(2, 8):
            A(f"v_add_f32 v{S[r]}, v{S[r]}, v{X[r]+j}")
    wave_allreduce(A, "v_add_f32", S, [82, 83], [84, 85])
    M = [86, 87]; MBF = [88, 89]
    for r in range(2):
        A(f"v_mul_f32 v{M[r]}, {fhex(1/512)}, v{S[r]}")
        A(f"v_mov_b32 v{MBF[r]}, v{M[r]}")
        round_bf16_1(A, MBF[r], 90)
    for r in range(2):
        for j in range(8):
            A(f"v_sub_f32 v90, v{X[r]+j}, v{M[r]}")
            if j == 0:
                A(f"v_mul_f32 v{S[r]}, v90, v90")
            else:
                A(f"v_fmac_f32 v{S[r]}, v90, v90")
    wave_allreduce(A, "v_add_f32", S, [82, 83], [84, 85])
    DEN = [91, 92]; RINV = [93, 94]
    for r in range(2):
        A(f"v_mul_f32 v{S[r]}, {fhex(1/512)}, v{S[r]}")
        ln_stats_finish(A, S[r], DEN[r], RINV[r], 90)
    for r in range(2):
        for j in range(0, 8, 2):
            a, b = X[r] + j, X[r] + j + 1
            A(f"v_sub_f32 v{a}, v{a}, v{MBF[r]}")
            A(f"v_sub_f32 v{b}, v{b}, v{MBF[r]}")
            round_bf16_2(A, a, b, 90, "s40")
            for e in (a, b):
                A(f"v_mul_f32 v95, v{e}, v{RINV[r]}")
                A(f"v_fma_f32 v96, -v95, v{DEN[r]}, v{e}")
                A(f"v_fma_f32 v{e}, v96, v{RINV[r]}, v95")
            A(f"v_cvt_pk_bf16_f32 v{4+4*r+j//2}, v{a}, v{b}")
    A("buffer_store_dwordx4 v[4:7], v3, s[16:19], 0 offen")
    A("buffer_store_dwordx4 v[8:11], v3, s[16:19], 0 offen offset:1024")
    A("s_cmp_ge_u32 s2, 96")
    A("s_cbranch_scc1 .Lk0_end")
    A(f"s_waitcnt vmcnt({10 + NPF})")
    for i in range(8):
        c = 16 + i
        A(f"v_lshlrev_b32 v{c}, 16, v{c}")
        A(f"v_mul_f32 v90, {fhex(-LOG2E)}, v{c}")
        A("v_exp_f32 v90, v90")
        A("s_nop 0")
        A("v_add_f32 v90, 1.0, v90")
        A("v_rcp_f32 v91, v90")
        A("s_nop 0")
        A(f"v_mul_f32 v92, v{c}, v91")
        A(f"v_fma_f32 v93, -v92, v90, v{c}")
        A(f"v_fma_f32 v{c}, v93, v91, v92")
        round_bf16_1(A, c, 90)
    ACC = list(range(64, 72))
    for i in range(8):
        A(f"s_waitcnt vmcnt({7-i+2+NPF})")
        for j in range(4):
            w = 24 + 4 * i + j
            A(f"v_lshlrev_b32 v90, 16, v{w}")
            A(f"v_and_b32 v91, s40, v{w}")
            if i == 0:
                A(f"v_mul_f32 v{ACC[2*j]}, v90, v{16+i}")
                A(f"v_mul_f32 v{ACC[2*j+1]}, v91, v{16+i}")
            else:
                A(f"v_fmac_f32 v{ACC[2*j]}, v90, v{16+i}")
                A(f"v_fmac_f32 v{ACC[2*j+1]}, v91, v{16+i}")
    A("s_nop 1")
    for dpp in ("row_ror:8", "row_ror:4"):
        for v in ACC:
            A(f"v_add_f32_dpp v{v}, v{v}, v{v} {dpp} row_mask:0xf bank_mask:0xf")
    for sw in ("v_permlane16_swap_b32", "v_permlane32_swap_b32"):
        for k, v in enumerate(ACC):
            A(f"v_mov_b32 v{72+k}, v{v}")
            A(f"v_mov_b32 v{80+k}, v{v}")
        A("s_nop 1")
        for k, v in enumerate(ACC):
            A(f"{sw} v{72+k}, v{80+k}")
        A("s_nop 1")
        for k, v in enumerate(ACC):
            A(f"v_add_f32 v{v}, v{72+k}, v{80+k}")
    A("v_lshlrev_b32 v90, 7, v2")
    A("v_lshl_add_u32 v90, v12, 5, v90")
    A("v_cmp_gt_u32 vcc, 4, v1")
    A("s_and_saveexec_b64 s[60:61], vcc")
    A("ds_write_b128 v90, v[64:67]")
    A("ds_write_b128 v90, v[68:71] offset:16")
    A("s_mov_b64 exec, s[60:61]")
    A("s_waitcnt lgkmcnt(0)")
    A("s_barrier")
    A("v_cmp_gt_u32 vcc, 32, v0")
    A("s_and_saveexec_b64 s[60:61], vcc")
    A("s_cbranch_execz .Lk0_end")
    A("v_lshlrev_b32 v90, 2, v0")
    A("ds_read_b32 v64, v90")
    A("ds_read_b32 v65, v90 offset:128")
    A("ds_read_b32 v66, v90 offset:256")
    A("ds_read_b32 v67, v90 offset:384")
    A("s_waitcnt lgkmcnt(0)")
    A("v_add_f32 v64, v64, v65")
    A("v_add_f32 v66, v66, v67")
    A("v_add_f32 v64, v64, v66")
    round_bf16_1(A, 64, 65)
    A("s_lshl_b32 s42, s2, 7")
    A("buffer_store_dword v64, v90, s[28:31], s42 offen")
    A.label(".Lk0_end")
    A("s_endpgm")
    A.raw(kernel_desc(name, 112, 102))
    return (name, (256, 1, 1), (256, 1, 1), 512)
```

```python
import sys, os
from asmlib import *
from gen_k0 import *
import importlib

HEADER = open("adaLN_cond__sliding_block_cached__mixer_s_mlp__prompt.s.ref").read().split("; Override launch geometry")[0]

def build(kernels, out):
    A = Asm()
    launches = []
    for k in kernels:
        launches.append(k(A))
    txt = HEADER
    for (name, g, b, lds) in launches:
        txt += f"; @launch kernel={name} grid=({g[0]},{g[1]},{g[2]}) block=({b[0]},{b[1]},{b[2]}) lds={lds}\n"
    txt += '.amdgcn_target "amdgcn-amd-amdhsa--gfx950"\n.text\n'
    txt += A.text()
    txt += '.Lcode_end:\n'
    open(out, "w").write(txt)

if __name__ == "__main__":
    ks = [gen_k0]
    for mod, fn in (("gen_k1", "gen_k1"), *((("gen_kq", "gen_kq"),) if int(os.environ.get("USEKQ","0")) else (("gen_kr", "gen_kr"), ("gen_g64", "gen_k3"))), ("gen_g64", "gen_k4"), *((("gen_k56", "gen_k56"), ("gen_k56", "gen_kf")) if int(os.environ.get("USE56","0")) else (("gen_k5", "gen_k5"), ("gen_g64", "gen_k6")))):
        try:
            m = importlib.import_module(mod)
        except ModuleNotFoundError:
            continue
        ks.append(getattr(m, fn))
    out = sys.argv[1] if len(sys.argv) > 1 else "adaLN_cond__sliding_block_cached__mixer_s_mlp__prompt.s"
    build(ks, out)
    print("wrote", out)
```

```python
from asmlib import *
MB = 1 << 20
WS_MOD = 0
WS_XN = 1 * MB
WS_X2 = 4 * MB
WS_X1 = 6 * MB
WS_XN4 = 8 * MB
WS_G = 10 * MB
WS_H = 18 * MB
WS_HN = 20 * MB
WS_H1 = 22 * MB
WS_PART = 32 * MB
WS_DBG = 64 * MB
LOG2E = 1.4426950408889634
import os
PREFETCH = int(os.environ.get("PREFETCH", "1"))
CODEPF = int(os.environ.get('CODEPF','0'))
NPF = (1 + CODEPF) if PREFETCH else 0

def round_bf16_1(A, v, t):
    A(f"v_cvt_pk_bf16_f32 v{t}, v{v}, v{v}")
    A(f"v_lshlrev_b32 v{v}, 16, v{t}")

def round_bf16_2(A, a, b, t, smask):
    A(f"v_cvt_pk_bf16_f32 v{t}, v{a}, v{b}")
    A(f"v_lshlrev_b32 v{a}, 16, v{t}")
    A(f"v_and_b32 v{b}, {smask}, v{t}")

def ln_stats_finish(A, vsum_sq, vden, vrinv, t):
    round_bf16_1(A, vsum_sq, t)
    A(f"v_add_f32 v{vsum_sq}, {fhex(1e-5)}, v{vsum_sq}")
    round_bf16_1(A, vsum_sq, t)
    A(f"v_sqrt_f32 v{vden}, v{vsum_sq}")
    A("s_nop 0")
    round_bf16_1(A, vden, t)
    A(f"v_rcp_f32 v{vrinv}, v{vden}")
    A("s_nop 0")

def gen_k0(A):
    name = "k0_kernel"
    kernel_header(A, name)
    A("s_cmp_ge_u32 s2, 256")
    A("s_cbranch_scc1 .Lk0_end")
    A("s_load_dwordx2 s[4:5], s[0:1], 0")
    A("s_load_dwordx4 s[8:11], s[0:1], 80")
    A("s_load_dwordx2 s[6:7], s[0:1], 112")
    A("v_and_b32 v1, 63, v0")
    A("v_lshrrev_b32 v2, 6, v0")
    A("s_mov_b32 s40, 0xffff0000")
    A("s_waitcnt lgkmcnt(0)")
    make_srd(A, 12, 4, 0, 2 * MB)
    make_srd(A, 16, 6, WS_XN, 2 * MB)
    make_srd(A, 20, 8, 0, 1024)
    make_srd(A, 24, 10, 0, 512 * 6144)
    make_srd(A, 28, 6, WS_MOD, 3072 * 4)
    A("s_lshl_b32 s3, s2, 13")
    A("v_lshlrev_b32 v3, 11, v2")
    A("v_lshl_add_u32 v3, v1, 4, v3")
    A("v_add_u32 v3, s3, v3")
    A("buffer_load_dwordx4 v[4:7], v3, s[12:15], 0 offen")
    A("buffer_load_dwordx4 v[8:11], v3, s[12:15], 0 offen offset:1024")
    A("s_cmp_ge_u32 s2, 96")
    A("s_cbranch_scc1 .Lk0_noB1")
    A("v_and_b32 v12, 3, v0")
    A("v_lshrrev_b32 v13, 2, v0")
    A("s_movk_i32 s41, 6144")
    A("v_mul_lo_u32 v14, v13, s41")
    A("v_lshl_add_u32 v14, v12, 4, v14")
    A("s_lshl_b32 s42, s2, 6")
    for i in range(8):
        A(f"s_add_u32 s{44+i}, s42, {i*64*6144}")
    A("v_lshlrev_b32 v15, 1, v13")
    for i in range(8):
        A(f"buffer_load_ushort v{16+i}, v15, s[20:23], 0 offen offset:{i*128}")
    for i in range(8):
        A(f"buffer_load_dwordx4 v[{24+4*i}:{27+4*i}], v14, s[24:27], s{44+i} offen")
    A.label(".Lk0_noB1")
    if PREFETCH:
        A("s_load_dwordx8 s[64:71], s[0:1], 8")
        A("s_load_dwordx8 s[72:79], s[0:1], 48")
        A("s_and_b32 s52, s2, 7")
        A("s_lshr_b32 s53, s2, 3")
        A("v_lshlrev_b32 v97, 6, v0")
        A("v_lshrrev_b32 v98, 4, v0")
        A("v_and_b32 v99, 15, v0")
        A("v_lshlrev_b32 v99, 6, v99")
        A("v_lshl_add_u32 v98, v98, 13, v99")
        A("v_lshlrev_b32 v99, 6, v1")
        A("s_waitcnt lgkmcnt(0)")
        make_srd(A, 80, 68, 0, 4 * MB)
        A("s_lshl_b32 s54, s53, 17")
        A("s_lshl_b32 s55, s52, 10")
        A("s_add_u32 s54, s54, s55")
        A("buffer_load_dword v100, v98, s[80:83], s54 offen")
        if CODEPF:
            A("s_getpc_b64 s[84:85]")
            A("s_and_b32 s84, s84, 0xffffff00")
            A("s_mov_b32 s86, 0x14000")
            A("s_mov_b32 s87, 0x00020000")
            A("s_lshl_b32 s54, s53, 12")
            A("buffer_load_dword v101, v99, s[84:87], s54 offen")
    A("s_cmp_ge_u32 s2, 96")
    A("s_cbranch_scc1 .Lk0_w0")
    A(f"s_waitcnt vmcnt({16 + NPF})")
    A("s_branch .Lk0_w1")
    A.label(".Lk0_w0")
    A(f"s_waitcnt vmcnt({NPF})")
    A.label(".Lk0_w1")
    X = [64, 72]
    for r in range(2):
        for j in range(4):
            A(f"v_lshlrev_b32 v{X[r]+2*j}, 16, v{4+4*r+j}")
            A(f"v_and_b32 v{X[r]+2*j+1}, s40, v{4+4*r+j}")
    S = [80, 81]
    for r in range(2):
        A(f"v_add_f32 v{S[r]}, v{X[r]}, v{X[r]+1}")
        for j in range(2, 8):
            A(f"v_add_f32 v{S[r]}, v{S[r]}, v{X[r]+j}")
    wave_allreduce(A, "v_add_f32", S, [82, 83], [84, 85])
    M = [86, 87]; MBF = [88, 89]
    for r in range(2):
        A(f"v_mul_f32 v{M[r]}, {fhex(1/512)}, v{S[r]}")
        A(f"v_mov_b32 v{MBF[r]}, v{M[r]}")
        round_bf16_1(A, MBF[r], 90)
    for r in range(2):
        for j in range(8):
            A(f"v_sub_f32 v90, v{X[r]+j}, v{M[r]}")
            if j == 0:
                A(f"v_mul_f32 v{S[r]}, v90, v90")
            else:
                A(f"v_fmac_f32 v{S[r]}, v90, v90")
    wave_allreduce(A, "v_add_f32", S, [82, 83], [84, 85])
    DEN = [91, 92]; RINV = [93, 94]
    for r in range(2):
        A(f"v_mul_f32 v{S[r]}, {fhex(1/512)}, v{S[r]}")
        ln_stats_finish(A, S[r], DEN[r], RINV[r], 90)
    for r in range(2):
        for j in range(0, 8, 2):
            a, b = X[r] + j, X[r] + j + 1
            A(f"v_sub_f32 v{a}, v{a}, v{MBF[r]}")
            A(f"v_sub_f32 v{b}, v{b}, v{MBF[r]}")
            round_bf16_2(A, a, b, 90, "s40")
            for e in (a, b):
                A(f"v_mul_f32 v95, v{e}, v{RINV[r]}")
                A(f"v_fma_f32 v96, -v95, v{DEN[r]}, v{e}")
                A(f"v_fma_f32 v{e}, v96, v{RINV[r]}, v95")
            A(f"v_cvt_pk_bf16_f32 v{4+4*r+j//2}, v{a}, v{b}")
    A("buffer_store_dwordx4 v[4:7], v3, s[16:19], 0 offen")
    A("buffer_store_dwordx4 v[8:11], v3, s[16:19], 0 offen offset:1024")
    A("s_cmp_ge_u32 s2, 96")
    A("s_cbranch_scc1 .Lk0_end")
    A(f"s_waitcnt vmcnt({10 + NPF})")
    for i in range(8):
        c = 16 + i
        A(f"v_lshlrev_b32 v{c}, 16, v{c}")
        A(f"v_mul_f32 v90, {fhex(-LOG2E)}, v{c}")
        A("v_exp_f32 v90, v90")
        A("s_nop 0")
        A("v_add_f32 v90, 1.0, v90")
        A("v_rcp_f32 v91, v90")
        A("s_nop 0")
        A(f"v_mul_f32 v92, v{c}, v91")
        A(f"v_fma_f32 v93, -v92, v90, v{c}")
        A(f"v_fma_f32 v{c}, v93, v91, v92")
        round_bf16_1(A, c, 90)
    ACC = list(range(64, 72))
    for i in range(8):
        A(f"s_waitcnt vmcnt({7-i+2+NPF})")
        for j in range(4):
            w = 24 + 4 * i + j
            A(f"v_lshlrev_b32 v90, 16, v{w}")
            A(f"v_and_b32 v91, s40, v{w}")
            if i == 0:
                A(f"v_mul_f32 v{ACC[2*j]}, v90, v{16+i}")
                A(f"v_mul_f32 v{ACC[2*j+1]}, v91, v{16+i}")
            else:
                A(f"v_fmac_f32 v{ACC[2*j]}, v90, v{16+i}")
                A(f"v_fmac_f32 v{ACC[2*j+1]}, v91, v{16+i}")
    A("s_nop 1")
    for dpp in ("row_ror:8", "row_ror:4"):
        for v in ACC:
            A(f"v_add_f32_dpp v{v}, v{v}, v{v} {dpp} row_mask:0xf bank_mask:0xf")
    for sw in ("v_permlane16_swap_b32", "v_permlane32_swap_b32"):
        for k, v in enumerate(ACC):
            A(f"v_mov_b32 v{72+k}, v{v}")
            A(f"v_mov_b32 v{80+k}, v{v}")
        A("s_nop 1")
        for k, v in enumerate(ACC):
            A(f"{sw} v{72+k}, v{80+k}")
        A("s_nop 1")
        for k, v in enumerate(ACC):
            A(f"v_add_f32 v{v}, v{72+k}, v{80+k}")
    A("v_lshlrev_b32 v90, 7, v2")
    A("v_lshl_add_u32 v90, v12, 5, v90")
    A("v_cmp_gt_u32 vcc, 4, v1")
    A("s_and_saveexec_b64 s[60:61], vcc")
    A("ds_write_b128 v90, v[64:67]")
    A("ds_write_b128 v90, v[68:71] offset:16")
    A("s_mov_b64 exec, s[60:61]")
    A("s_waitcnt lgkmcnt(0)")
    A("s_barrier")
    A("v_cmp_gt_u32 vcc, 32, v0")
    A("s_and_saveexec_b64 s[60:61], vcc")
    A("s_cbranch_execz .Lk0_end")
    A("v_lshlrev_b32 v90, 2, v0")
    A("ds_read_b32 v64, v90")
    A("ds_read_b32 v65, v90 offset:128")
    A("ds_read_b32 v66, v90 offset:256")
    A("ds_read_b32 v67, v90 offset:384")
    A("s_waitcnt lgkmcnt(0)")
    A("v_add_f32 v64, v64, v65")
    A("v_add_f32 v66, v66, v67")
    A("v_add_f32 v64, v64, v66")
    round_bf16_1(A, 64, 65)
    A("s_lshl_b32 s42, s2, 7")
    A("buffer_store_dword v64, v90, s[28:31], s42 offen")
    A.label(".Lk0_end")
    A("s_endpgm")
    A.raw(kernel_desc(name, 112, 102))
    return (name, (256, 1, 1), (256, 1, 1), 512)
```

```python
from asmlib import *
MB = 1 << 20
WS_MOD = 0
WS_XN = 1 * MB
WS_X2 = 4 * MB
WS_X1 = 6 * MB
WS_XN4 = 8 * MB
WS_G = 10 * MB
WS_H = 18 * MB
WS_HN = 20 * MB
WS_H1 = 22 * MB
WS_PART = 32 * MB
WS_DBG = 64 * MB
LOG2E = 1.4426950408889634
import os
PREFETCH = int(os.environ.get("PREFETCH", "1"))
CODEPF = int(os.environ.get('CODEPF','1'))
NPF = (1 + CODEPF) if PREFETCH else 0

def round_bf16_1(A, v, t):
    A(f"v_cvt_pk_bf16_f32 v{t}, v{v}, v{v}")
    A(f"v_lshlrev_b32 v{v}, 16, v{t}")

def round_bf16_2(A, a, b, t, smask):
    A(f"v_cvt_pk_bf16_f32 v{t}, v{a}, v{b}")
    A(f"v_lshlrev_b32 v{a}, 16, v{t}")
    A(f"v_and_b32 v{b}, {smask}, v{t}")

def ln_stats_finish(A, vsum_sq, vden, vrinv, t):
    round_bf16_1(A, vsum_sq, t)
    A(f"v_add_f32 v{vsum_sq}, {fhex(1e-5)}, v{vsum_sq}")
    round_bf16_1(A, vsum_sq, t)
    A(f"v_sqrt_f32 v{vden}, v{vsum_sq}")
    A("s_nop 0")
    round_bf16_1(A, vden, t)
    A(f"v_rcp_f32 v{vrinv}, v{vden}")
    A("s_nop 0")

def gen_k0(A):
    name = "k0_kernel"
    kernel_header(A, name)
    A("s_cmp_ge_u32 s2, 256")
    A("s_cbranch_scc1 .Lk0_end")
    A("s_load_dwordx2 s[4:5], s[0:1], 0")
    A("s_load_dwordx4 s[8:11], s[0:1], 80")
    A("s_load_dwordx2 s[6:7], s[0:1], 112")
    A("s_load_dwordx2 s[56:57], s[0:1], 64")
    A("v_and_b32 v1, 63, v0")
    A("v_lshrrev_b32 v2, 6, v0")
    A("s_mov_b32 s40, 0xffff0000")
    A("s_waitcnt lgkmcnt(0)")
    make_srd(A, 12, 4, 0, 2 * MB)
    make_srd(A, 16, 6, WS_XN, 2 * MB)
    make_srd(A, 20, 8, 0, 1024)
    make_srd(A, 24, 10, 0, 512 * 6144)
    make_srd(A, 28, 6, WS_MOD, 3072 * 4)
    A("s_movk_i32 s41, 6144")
    A("s_mov_b32 s43, s2")
    A("s_cmp_lt_u32 s2, 96")
    A("s_cbranch_scc1 .Lk0_ismod")
    make_srd(A, 24, 56, 0, 512 * 3584)
    make_srd(A, 28, 6, 64 * 1024, 1792 * 4)
    A("s_movk_i32 s41, 3584")
    A("s_sub_u32 s43, s2, 96")
    A.label(".Lk0_ismod")
    A("s_lshl_b32 s3, s2, 13")
    A("v_lshlrev_b32 v3, 11, v2")
    A("v_lshl_add_u32 v3, v1, 4, v3")
    A("v_add_u32 v3, s3, v3")
    A("buffer_load_dwordx4 v[4:7], v3, s[12:15], 0 offen")
    A("buffer_load_dwordx4 v[8:11], v3, s[12:15], 0 offen offset:1024")
    A("s_cmp_ge_u32 s2, 152")
    A("s_cbranch_scc1 .Lk0_noB1")
    A("v_and_b32 v12, 3, v0")
    A("v_lshrrev_b32 v13, 2, v0")
    A("v_mul_lo_u32 v14, v13, s41")
    A("v_lshl_add_u32 v14, v12, 4, v14")
    A("s_lshl_b32 s44, s43, 6")
    A("s_lshl_b32 s42, s41, 6")
    for i in range(1, 8):
        A(f"s_add_u32 s{44+i}, s{43+i}, s42")
    A("v_lshlrev_b32 v15, 1, v13")
    for i in range(8):
        A(f"buffer_load_ushort v{16+i}, v15, s[20:23], 0 offen offset:{i*128}")
    for i in range(8):
        A(f"buffer_load_dwordx4 v[{24+4*i}:{27+4*i}], v14, s[24:27], s{44+i} offen")
    A.label(".Lk0_noB1")
    if PREFETCH:
        A("s_load_dwordx8 s[64:71], s[0:1], 8")
        A("s_load_dwordx8 s[72:79], s[0:1], 48")
        A("s_and_b32 s52, s2, 7")
        A("s_lshr_b32 s53, s2, 3")
        A("v_lshlrev_b32 v97, 6, v0")
        A("v_lshrrev_b32 v98, 4, v0")
        A("v_and_b32 v99, 15, v0")
        A("v_lshlrev_b32 v99, 6, v99")
        A("v_lshl_add_u32 v98, v98, 13, v99")
        A("v_lshlrev_b32 v99, 6, v1")
        A("s_waitcnt lgkmcnt(0)")
        make_srd(A, 80, 68, 0, 4 * MB)
        A("s_lshl_b32 s54, s53, 17")
        A("s_lshl_b32 s55, s52, 10")
        A("s_add_u32 s54, s54, s55")
        A("buffer_load_dword v100, v98, s[80:83], s54 offen")
        if CODEPF:
            A("s_getpc_b64 s[84:85]")
            A.label(".Lk0_pc")
            A("s_mov_b32 s86, .Lcode_end-.Lk0_pc")
            A("s_mov_b32 s87, 0x00020000")
            A("s_lshl_b32 s54, s53, 12")
            A("buffer_load_dword v101, v99, s[84:87], s54 offen")
    A("s_cmp_ge_u32 s2, 152")
    A("s_cbranch_scc1 .Lk0_w0")
    A(f"s_waitcnt vmcnt({16 + NPF})")
    A("s_branch .Lk0_w1")
    A.label(".Lk0_w0")
    A(f"s_waitcnt vmcnt({NPF})")
    A.label(".Lk0_w1")
    X = [64, 72]
    for r in range(2):
        for j in range(4):
            A(f"v_lshlrev_b32 v{X[r]+2*j}, 16, v{4+4*r+j}")
            A(f"v_and_b32 v{X[r]+2*j+1}, s40, v{4+4*r+j}")
    S = [80, 81]
    for r in range(2):
        A(f"v_add_f32 v{S[r]}, v{X[r]}, v{X[r]+1}")
        for j in range(2, 8):
            A(f"v_add_f32 v{S[r]}, v{S[r]}, v{X[r]+j}")
    wave_allreduce(A, "v_add_f32", S, [82, 83], [84, 85])
    M = [86, 87]; MBF = [88, 89]
    for r in range(2):
        A(f"v_mul_f32 v{M[r]}, {fhex(1/512)}, v{S[r]}")
        A(f"v_mov_b32 v{MBF[r]}, v{M[r]}")
        round_bf16_1(A, MBF[r], 90)
    for r in range(2):
        for j in range(8):
            A(f"v_sub_f32 v90, v{X[r]+j}, v{M[r]}")
            if j == 0:
                A(f"v_mul_f32 v{S[r]}, v90, v90")
            else:
                A(f"v_fmac_f32 v{S[r]}, v90, v90")
    wave_allreduce(A, "v_add_f32", S, [82, 83], [84, 85])
    DEN = [91, 92]; RINV = [93, 94]
    for r in range(2):
        A(f"v_mul_f32 v{S[r]}, {fhex(1/512)}, v{S[r]}")
        ln_stats_finish(A, S[r], DEN[r], RINV[r], 90)
    for r in range(2):
        for j in range(0, 8, 2):
            a, b = X[r] + j, X[r] + j + 1
            A(f"v_sub_f32 v{a}, v{a}, v{MBF[r]}")
            A(f"v_sub_f32 v{b}, v{b}, v{MBF[r]}")
            round_bf16_2(A, a, b, 90, "s40")
            for e in (a, b):
                A(f"v_mul_f32 v95, v{e}, v{RINV[r]}")
                A(f"v_fma_f32 v96, -v95, v{DEN[r]}, v{e}")
                A(f"v_fma_f32 v{e}, v96, v{RINV[r]}, v95")
            A(f"v_cvt_pk_bf16_f32 v{4+4*r+j//2}, v{a}, v{b}")
    A("buffer_store_dwordx4 v[4:7], v3, s[16:19], 0 offen")
    A("buffer_store_dwordx4 v[8:11], v3, s[16:19], 0 offen offset:1024")
    A("s_cmp_ge_u32 s2, 152")
    A("s_cbranch_scc1 .Lk0_end")
    A(f"s_waitcnt vmcnt({10 + NPF})")
    for i in range(8):
        c = 16 + i
        A(f"v_lshlrev_b32 v{c}, 16, v{c}")
        A(f"v_mul_f32 v90, {fhex(-LOG2E)}, v{c}")
        A("v_exp_f32 v90, v90")
        A("s_nop 0")
        A("v_add_f32 v90, 1.0, v90")
        A("v_rcp_f32 v91, v90")
        A("s_nop 0")
        A(f"v_mul_f32 v92, v{c}, v91")
        A(f"v_fma_f32 v93, -v92, v90, v{c}")
        A(f"v_fma_f32 v{c}, v93, v91, v92")
        round_bf16_1(A, c, 90)
    A("s_cmp_lt_u32 s2, 96")
    A("s_cbranch_scc1 .Lk0_ismod2")
    for i in range(8):
        A(f"v_mov_b32 v{16+i}, 1.0")
    A.label(".Lk0_ismod2")
    ACC = list(range(64, 72))
    for i in range(8):
        A(f"s_waitcnt vmcnt({7-i+2+NPF})")
        for j in range(4):
            w = 24 + 4 * i + j
            A(f"v_lshlrev_b32 v90, 16, v{w}")
            A(f"v_and_b32 v91, s40, v{w}")
            if i == 0:
                A(f"v_mul_f32 v{ACC[2*j]}, v90, v{16+i}")
                A(f"v_mul_f32 v{ACC[2*j+1]}, v91, v{16+i}")
            else:
                A(f"v_fmac_f32 v{ACC[2*j]}, v90, v{16+i}")
                A(f"v_fmac_f32 v{ACC[2*j+1]}, v91, v{16+i}")
    A("s_nop 1")
    for dpp in ("row_ror:8", "row_ror:4"):
        for v in ACC:
            A(f"v_add_f32_dpp v{v}, v{v}, v{v} {dpp} row_mask:0xf bank_mask:0xf")
    for sw in ("v_permlane16_swap_b32", "v_permlane32_swap_b32"):
        for k, v in enumerate(ACC):
            A(f"v_mov_b32 v{72+k}, v{v}")
            A(f"v_mov_b32 v{80+k}, v{v}")
        A("s_nop 1")
        for k, v in enumerate(ACC):
            A(f"{sw} v{72+k}, v{80+k}")
        A("s_nop 1")
        for k, v in enumerate(ACC):
            A(f"v_add_f32 v{v}, v{72+k}, v{80+k}")
    A("v_lshlrev_b32 v90, 7, v2")
    A("v_lshl_add_u32 v90, v12, 5, v90")
    A("v_cmp_gt_u32 vcc, 4, v1")
    A("s_and_saveexec_b64 s[60:61], vcc")
    A("ds_write_b128 v90, v[64:67]")
    A("ds_write_b128 v90, v[68:71] offset:16")
    A("s_mov_b64 exec, s[60:61]")
    A("s_waitcnt lgkmcnt(0)")
    A("s_barrier")
    A("v_cmp_gt_u32 vcc, 32, v0")
    A("s_and_saveexec_b64 s[60:61], vcc")
    A("s_cbranch_execz .Lk0_end")
    A("v_lshlrev_b32 v90, 2, v0")
    A("ds_read_b32 v64, v90")
    A("ds_read_b32 v65, v90 offset:128")
    A("ds_read_b32 v66, v90 offset:256")
    A("ds_read_b32 v67, v90 offset:384")
    A("s_waitcnt lgkmcnt(0)")
    A("v_add_f32 v64, v64, v65")
    A("v_add_f32 v66, v66, v67")
    A("v_add_f32 v64, v64, v66")
    A("s_cmp_ge_u32 s2, 96")
    A("s_cbranch_scc1 .Lk0_nornd")
    round_bf16_1(A, 64, 65)
    A.label(".Lk0_nornd")
    A("s_lshl_b32 s42, s43, 7")
    A("buffer_store_dword v64, v90, s[28:31], s42 offen")
    A.label(".Lk0_end")
    A("s_endpgm")
    A.raw(kernel_desc(name, 112, 102))
    return (name, (256, 1, 1), (256, 1, 1), 512)
```

```python
from asmlib import *
MB = 1 << 20
WS_MOD = 0
WS_XN = 1 * MB
WS_X2 = 4 * MB
WS_X1 = 6 * MB
WS_XN4 = 8 * MB
WS_G = 10 * MB
WS_H = 18 * MB
WS_HN = 20 * MB
WS_H1 = 22 * MB
WS_PART = 32 * MB
WS_DBG = 64 * MB
LOG2E = 1.4426950408889634
import os
PREFETCH = int(os.environ.get("PREFETCH", "1"))
CODEPF = int(os.environ.get('CODEPF','1'))
NPF = (1 + CODEPF) if PREFETCH else 0

def round_bf16_1(A, v, t):
    A(f"v_cvt_pk_bf16_f32 v{t}, v{v}, v{v}")
    A(f"v_lshlrev_b32 v{v}, 16, v{t}")

def round_bf16_2(A, a, b, t, smask):
    A(f"v_cvt_pk_bf16_f32 v{t}, v{a}, v{b}")
    A(f"v_lshlrev_b32 v{a}, 16, v{t}")
    A(f"v_and_b32 v{b}, {smask}, v{t}")

def ln_stats_finish(A, vsum_sq, vden, vrinv, t):
    round_bf16_1(A, vsum_sq, t)
    A(f"v_add_f32 v{vsum_sq}, {fhex(1e-5)}, v{vsum_sq}")
    round_bf16_1(A, vsum_sq, t)
    A(f"v_sqrt_f32 v{vden}, v{vsum_sq}")
    A("s_nop 0")
    round_bf16_1(A, vden, t)
    A(f"v_rcp_f32 v{vrinv}, v{vden}")
    A("s_nop 0")

def gen_k0(A):
    name = "k0_kernel"
    K0T = int(os.environ.get("K0TIMING", "0"))
    cnt = [0]
    def stamp(real=False):
        if not K0T: return
        A("s_waitcnt lgkmcnt(0)")
        A("s_memrealtime s[100:101]" if real else "s_memtime s[100:101]")
        A("s_waitcnt lgkmcnt(0)")
        A(f"v_mov_b32 v{112+cnt[0]}, s100")
        cnt[0] += 1
    kernel_header(A, name)
    stamp(True); stamp()
    A("s_cmp_ge_u32 s2, 256")
    A("s_cbranch_scc1 .Lk0_end")
    A("s_load_dwordx2 s[4:5], s[0:1], 0")
    A("s_load_dwordx4 s[8:11], s[0:1], 80")
    A("s_load_dwordx2 s[6:7], s[0:1], 112")
    A("s_load_dwordx2 s[56:57], s[0:1], 64")
    A("v_and_b32 v1, 63, v0")
    A("v_lshrrev_b32 v2, 6, v0")
    A("s_mov_b32 s40, 0xffff0000")
    A("s_waitcnt lgkmcnt(0)")
    stamp()
    make_srd(A, 12, 4, 0, 2 * MB)
    make_srd(A, 16, 6, WS_XN, 2 * MB)
    make_srd(A, 20, 8, 0, 1024)
    make_srd(A, 24, 10, 0, 512 * 6144)
    make_srd(A, 28, 6, WS_MOD, 3072 * 4)
    A("s_movk_i32 s41, 6144")
    A("s_mov_b32 s43, s2")
    A("s_cmp_lt_u32 s2, 96")
    A("s_cbranch_scc1 .Lk0_ismod")
    make_srd(A, 24, 56, 0, 512 * 3584)
    make_srd(A, 28, 6, 64 * 1024, 1792 * 4)
    A("s_movk_i32 s41, 3584")
    A("s_sub_u32 s43, s2, 96")
    A.label(".Lk0_ismod")
    A("s_lshl_b32 s3, s2, 13")
    A("v_lshlrev_b32 v3, 11, v2")
    A("v_lshl_add_u32 v3, v1, 4, v3")
    A("v_add_u32 v3, s3, v3")
    A("buffer_load_dwordx4 v[4:7], v3, s[12:15], 0 offen")
    A("buffer_load_dwordx4 v[8:11], v3, s[12:15], 0 offen offset:1024")
    A("s_cmp_ge_u32 s2, 152")
    A("s_cbranch_scc1 .Lk0_noB1")
    A("v_and_b32 v12, 3, v0")
    A("v_lshrrev_b32 v13, 2, v0")
    A("v_mul_lo_u32 v14, v13, s41")
    A("v_lshl_add_u32 v14, v12, 4, v14")
    A("s_lshl_b32 s44, s43, 6")
    A("s_lshl_b32 s42, s41, 6")
    for i in range(1, 8):
        A(f"s_add_u32 s{44+i}, s{43+i}, s42")
    A("v_lshlrev_b32 v15, 1, v13")
    for i in range(8):
        A(f"buffer_load_ushort v{16+i}, v15, s[20:23], 0 offen offset:{i*128}")
    for i in range(8):
        A(f"buffer_load_dwordx4 v[{24+4*i}:{27+4*i}], v14, s[24:27], s{44+i} offen")
    A.label(".Lk0_noB1")
    if PREFETCH:
        A("s_load_dwordx8 s[64:71], s[0:1], 8")
        A("s_load_dwordx8 s[72:79], s[0:1], 48")
        A("s_and_b32 s52, s2, 7")
        A("s_lshr_b32 s53, s2, 3")
        A("v_lshlrev_b32 v97, 6, v0")
        A("v_lshrrev_b32 v98, 4, v0")
        A("v_and_b32 v99, 15, v0")
        A("v_lshlrev_b32 v99, 6, v99")
        A("v_lshl_add_u32 v98, v98, 13, v99")
        A("v_lshlrev_b32 v99, 6, v1")
        A("s_waitcnt lgkmcnt(0)")
        make_srd(A, 80, 68, 0, 4 * MB if int(os.environ.get("WQPF","1")) else 0)
        A("s_lshl_b32 s54, s53, 17")
        A("s_lshl_b32 s55, s52, 10")
        A("s_add_u32 s54, s54, s55")
        A("buffer_load_dword v100, v98, s[80:83], s54 offen")
        if CODEPF:
            A("s_getpc_b64 s[84:85]")
            A.label(".Lk0_pc")
            A("s_mov_b32 s86, .Lcode_end-.Lk0_pc")
            A("s_mov_b32 s87, 0x00020000")
            A("s_lshl_b32 s54, s53, 12")
            A("buffer_load_dword v101, v99, s[84:87], s54 offen")
    A("s_cmp_ge_u32 s2, 152")
    A("s_cbranch_scc1 .Lk0_w0")
    A(f"s_waitcnt vmcnt({16 + NPF})")
    A("s_branch .Lk0_w1")
    A.label(".Lk0_w0")
    A(f"s_waitcnt vmcnt({NPF})")
    A.label(".Lk0_w1")
    stamp()
    X = [64, 72]
    for r in range(2):
        for j in range(4):
            A(f"v_lshlrev_b32 v{X[r]+2*j}, 16, v{4+4*r+j}")
            A(f"v_and_b32 v{X[r]+2*j+1}, s40, v{4+4*r+j}")
    S = [80, 81]
    for r in range(2):
        A(f"v_add_f32 v{S[r]}, v{X[r]}, v{X[r]+1}")
        for j in range(2, 8):
            A(f"v_add_f32 v{S[r]}, v{S[r]}, v{X[r]+j}")
    wave_allreduce(A, "v_add_f32", S, [82, 83], [84, 85])
    M = [86, 87]; MBF = [88, 89]
    for r in range(2):
        A(f"v_mul_f32 v{M[r]}, {fhex(1/512)}, v{S[r]}")
        A(f"v_mov_b32 v{MBF[r]}, v{M[r]}")
        round_bf16_1(A, MBF[r], 90)
    for r in range(2):
        for j in range(8):
            A(f"v_sub_f32 v90, v{X[r]+j}, v{M[r]}")
            if j == 0:
                A(f"v_mul_f32 v{S[r]}, v90, v90")
            else:
                A(f"v_fmac_f32 v{S[r]}, v90, v90")
    wave_allreduce(A, "v_add_f32", S, [82, 83], [84, 85])
    DEN = [91, 92]; RINV = [93, 94]
    for r in range(2):
        A(f"v_mul_f32 v{S[r]}, {fhex(1/512)}, v{S[r]}")
        ln_stats_finish(A, S[r], DEN[r], RINV[r], 90)
    for r in range(2):
        for j in range(0, 8, 2):
            a, b = X[r] + j, X[r] + j + 1
            A(f"v_sub_f32 v{a}, v{a}, v{MBF[r]}")
            A(f"v_sub_f32 v{b}, v{b}, v{MBF[r]}")
            round_bf16_2(A, a, b, 90, "s40")
            for e in (a, b):
                A(f"v_mul_f32 v95, v{e}, v{RINV[r]}")
                A(f"v_fma_f32 v96, -v95, v{DEN[r]}, v{e}")
                A(f"v_fma_f32 v{e}, v96, v{RINV[r]}, v95")
            A(f"v_cvt_pk_bf16_f32 v{4+4*r+j//2}, v{a}, v{b}")
    A("buffer_store_dwordx4 v[4:7], v3, s[16:19], 0 offen")
    A("buffer_store_dwordx4 v[8:11], v3, s[16:19], 0 offen offset:1024")
    stamp()
    A("s_cmp_ge_u32 s2, 152")
    A("s_cbranch_scc1 .Lk0_end")
    A(f"s_waitcnt vmcnt({10 + NPF})")
    for i in range(8):
        c = 16 + i
        A(f"v_lshlrev_b32 v{c}, 16, v{c}")
        A(f"v_mul_f32 v90, {fhex(-LOG2E)}, v{c}")
        A("v_exp_f32 v90, v90")
        A("s_nop 0")
        A("v_add_f32 v90, 1.0, v90")
        A("v_rcp_f32 v91, v90")
        A("s_nop 0")
        A(f"v_mul_f32 v92, v{c}, v91")
        A(f"v_fma_f32 v93, -v92, v90, v{c}")
        A(f"v_fma_f32 v{c}, v93, v91, v92")
        round_bf16_1(A, c, 90)
    A("s_cmp_lt_u32 s2, 96")
    A("s_cbranch_scc1 .Lk0_ismod2")
    for i in range(8):
        A(f"v_mov_b32 v{16+i}, 1.0")
    A.label(".Lk0_ismod2")
    ACC = list(range(64, 72))
    for i in range(8):
        A(f"s_waitcnt vmcnt({7-i+2+NPF})")
        for j in range(4):
            w = 24 + 4 * i + j
            A(f"v_lshlrev_b32 v90, 16, v{w}")
            A(f"v_and_b32 v91, s40, v{w}")
            if i == 0:
                A(f"v_mul_f32 v{ACC[2*j]}, v90, v{16+i}")
                A(f"v_mul_f32 v{ACC[2*j+1]}, v91, v{16+i}")
            else:
                A(f"v_fmac_f32 v{ACC[2*j]}, v90, v{16+i}")
                A(f"v_fmac_f32 v{ACC[2*j+1]}, v91, v{16+i}")
    stamp()
    A("s_nop 1")
    for dpp in ("row_ror:8", "row_ror:4"):
        for v in ACC:
            A(f"v_add_f32_dpp v{v}, v{v}, v{v} {dpp} row_mask:0xf bank_mask:0xf")
    for sw in ("v_permlane16_swap_b32", "v_permlane32_swap_b32"):
        for k, v in enumerate(ACC):
            A(f"v_mov_b32 v{72+k}, v{v}")
            A(f"v_mov_b32 v{80+k}, v{v}")
        A("s_nop 1")
        for k, v in enumerate(ACC):
            A(f"{sw} v{72+k}, v{80+k}")
        A("s_nop 1")
        for k, v in enumerate(ACC):
            A(f"v_add_f32 v{v}, v{72+k}, v{80+k}")
    A("v_lshlrev_b32 v90, 7, v2")
    A("v_lshl_add_u32 v90, v12, 5, v90")
    A("v_cmp_gt_u32 vcc, 4, v1")
    A("s_and_saveexec_b64 s[60:61], vcc")
    A("ds_write_b128 v90, v[64:67]")
    A("ds_write_b128 v90, v[68:71] offset:16")
    A("s_mov_b64 exec, s[60:61]")
    A("s_waitcnt lgkmcnt(0)")
    A("s_barrier")
    if K0T:
        stamp(); stamp(True)
        make_srd(A, 88, 6, WS_DBG, 32 * MB)
        A("v_readfirstlane_b32 s92, v2")
        A("s_lshl_b32 s93, s2, 3")
        A("s_add_u32 s93, s93, s92")
        A("s_lshl_b32 s93, s93, 7")
        A("v_mov_b32 v111, 0")
        for i in range(cnt[0]):
            A(f"buffer_store_dword v{112+i}, v111, s[88:91], s93 offen offset:{4*i}")
    A("v_cmp_gt_u32 vcc, 32, v0")
    A("s_and_saveexec_b64 s[60:61], vcc")
    A("s_cbranch_execz .Lk0_end")
    A("v_lshlrev_b32 v90, 2, v0")
    A("ds_read_b32 v64, v90")
    A("ds_read_b32 v65, v90 offset:128")
    A("ds_read_b32 v66, v90 offset:256")
    A("ds_read_b32 v67, v90 offset:384")
    A("s_waitcnt lgkmcnt(0)")
    A("v_add_f32 v64, v64, v65")
    A("v_add_f32 v66, v66, v67")
    A("v_add_f32 v64, v64, v66")
    A("s_cmp_ge_u32 s2, 96")
    A("s_cbranch_scc1 .Lk0_nornd")
    round_bf16_1(A, 64, 65)
    A.label(".Lk0_nornd")
    A("s_lshl_b32 s42, s43, 7")
    A("buffer_store_dword v64, v90, s[28:31], s42 offen")
    A.label(".Lk0_end")
    A("s_endpgm")
    A.raw(kernel_desc(name, 128, 102))
    return (name, (256, 1, 1), (256, 1, 1), 512)
```

```python
from asmlib import *
MB = 1 << 20
WS_MOD = 0
WS_XN = 1 * MB
WS_X2 = 4 * MB
WS_X1 = 6 * MB
WS_XN4 = 8 * MB
WS_G = 10 * MB
WS_H = 18 * MB
WS_HN = 20 * MB
WS_H1 = 22 * MB
WS_PART = 32 * MB
WS_DBG = 64 * MB
LOG2E = 1.4426950408889634
import os
PREFETCH = int(os.environ.get("PREFETCH", "1"))
CODEPF = int(os.environ.get('CODEPF','1'))
WQ2 = int(os.environ.get('WQ2','0'))
NPF = (1 + CODEPF + WQ2) if PREFETCH else 0

def round_bf16_1(A, v, t):
    A(f"v_cvt_pk_bf16_f32 v{t}, v{v}, v{v}")
    A(f"v_lshlrev_b32 v{v}, 16, v{t}")

def round_bf16_2(A, a, b, t, smask):
    A(f"v_cvt_pk_bf16_f32 v{t}, v{a}, v{b}")
    A(f"v_lshlrev_b32 v{a}, 16, v{t}")
    A(f"v_and_b32 v{b}, {smask}, v{t}")

def ln_stats_finish(A, vsum_sq, vden, vrinv, t):
    round_bf16_1(A, vsum_sq, t)
    A(f"v_add_f32 v{vsum_sq}, {fhex(1e-5)}, v{vsum_sq}")
    round_bf16_1(A, vsum_sq, t)
    A(f"v_sqrt_f32 v{vden}, v{vsum_sq}")
    A("s_nop 0")
    round_bf16_1(A, vden, t)
    A(f"v_rcp_f32 v{vrinv}, v{vden}")
    A("s_nop 0")

def gen_k0(A):
    name = "k0_kernel"
    K0T = int(os.environ.get("K0TIMING", "0"))
    cnt = [0]
    def stamp(real=False):
        if not K0T: return
        A("s_waitcnt lgkmcnt(0)")
        A("s_memrealtime s[100:101]" if real else "s_memtime s[100:101]")
        A("s_waitcnt lgkmcnt(0)")
        A(f"v_mov_b32 v{112+cnt[0]}, s100")
        cnt[0] += 1
    kernel_header(A, name)
    stamp(True); stamp()
    A("s_cmp_ge_u32 s2, 256")
    A("s_cbranch_scc1 .Lk0_end")
    A("s_load_dwordx2 s[4:5], s[0:1], 0")
    A("s_load_dwordx4 s[8:11], s[0:1], 80")
    A("s_load_dwordx2 s[6:7], s[0:1], 112")
    A("s_load_dwordx2 s[56:57], s[0:1], 64")
    A("v_and_b32 v1, 63, v0")
    A("v_lshrrev_b32 v2, 6, v0")
    A("s_mov_b32 s40, 0xffff0000")
    A("s_waitcnt lgkmcnt(0)")
    stamp()
    make_srd(A, 12, 4, 0, 2 * MB)
    make_srd(A, 16, 6, WS_XN, 2 * MB)
    make_srd(A, 20, 8, 0, 1024)
    make_srd(A, 24, 10, 0, 512 * 6144)
    make_srd(A, 28, 6, WS_MOD, 3072 * 4)
    A("s_movk_i32 s41, 6144")
    A("s_mov_b32 s43, s2")
    A("s_cmp_lt_u32 s2, 96")
    A("s_cbranch_scc1 .Lk0_ismod")
    make_srd(A, 24, 56, 0, 512 * 3584)
    make_srd(A, 28, 6, 64 * 1024, 1792 * 4)
    A("s_movk_i32 s41, 3584")
    A("s_sub_u32 s43, s2, 96")
    A.label(".Lk0_ismod")
    A("s_lshl_b32 s3, s2, 13")
    A("v_lshlrev_b32 v3, 11, v2")
    A("v_lshl_add_u32 v3, v1, 4, v3")
    A("v_add_u32 v3, s3, v3")
    A("buffer_load_dwordx4 v[4:7], v3, s[12:15], 0 offen")
    A("buffer_load_dwordx4 v[8:11], v3, s[12:15], 0 offen offset:1024")
    A("s_cmp_ge_u32 s2, 152")
    A("s_cbranch_scc1 .Lk0_noB1")
    A("v_and_b32 v12, 3, v0")
    A("v_lshrrev_b32 v13, 2, v0")
    A("v_mul_lo_u32 v14, v13, s41")
    A("v_lshl_add_u32 v14, v12, 4, v14")
    A("s_lshl_b32 s44, s43, 6")
    A("s_lshl_b32 s42, s41, 6")
    for i in range(1, 8):
        A(f"s_add_u32 s{44+i}, s{43+i}, s42")
    A("v_lshlrev_b32 v15, 1, v13")
    for i in range(8):
        A(f"buffer_load_ushort v{16+i}, v15, s[20:23], 0 offen offset:{i*128}")
    for i in range(8):
        A(f"buffer_load_dwordx4 v[{24+4*i}:{27+4*i}], v14, s[24:27], s{44+i} offen")
    A.label(".Lk0_noB1")
    if PREFETCH:
        A("s_load_dwordx8 s[64:71], s[0:1], 8")
        A("s_load_dwordx8 s[72:79], s[0:1], 48")
        A("s_and_b32 s52, s2, 7")
        A("s_lshr_b32 s53, s2, 3")
        A("v_lshlrev_b32 v97, 6, v0")
        A("v_lshrrev_b32 v98, 4, v0")
        A("v_and_b32 v99, 15, v0")
        A("v_lshlrev_b32 v99, 6, v99")
        A("v_lshl_add_u32 v98, v98, 13, v99")
        A("v_lshlrev_b32 v99, 6, v1")
        A("s_waitcnt lgkmcnt(0)")
        make_srd(A, 80, 68, 0, 4 * MB if int(os.environ.get("WQPF","1")) else 0)
        A("s_lshl_b32 s54, s53, 17")
        A("s_lshl_b32 s55, s52, 10")
        A("s_add_u32 s54, s54, s55")
        A("buffer_load_dword v100, v98, s[80:83], s54 offen")
        if WQ2:
            A("s_xor_b32 s54, s54, 1024")
            A("buffer_load_dword v102, v98, s[80:83], s54 offen")
        if CODEPF:
            A("s_getpc_b64 s[84:85]")
            A.label(".Lk0_pc")
            A("s_mov_b32 s86, .Lcode_end-.Lk0_pc")
            A("s_mov_b32 s87, 0x00020000")
            A("s_lshl_b32 s54, s53, 12")
            A("buffer_load_dword v101, v99, s[84:87], s54 offen")
    A("s_cmp_ge_u32 s2, 152")
    A("s_cbranch_scc1 .Lk0_w0")
    A(f"s_waitcnt vmcnt({16 + NPF})")
    A("s_branch .Lk0_w1")
    A.label(".Lk0_w0")
    A(f"s_waitcnt vmcnt({NPF})")
    A.label(".Lk0_w1")
    stamp()
    X = [64, 72]
    for r in range(2):
        for j in range(4):
            A(f"v_lshlrev_b32 v{X[r]+2*j}, 16, v{4+4*r+j}")
            A(f"v_and_b32 v{X[r]+2*j+1}, s40, v{4+4*r+j}")
    S = [80, 81]
    for r in range(2):
        A(f"v_add_f32 v{S[r]}, v{X[r]}, v{X[r]+1}")
        for j in range(2, 8):
            A(f"v_add_f32 v{S[r]}, v{S[r]}, v{X[r]+j}")
    wave_allreduce(A, "v_add_f32", S, [82, 83], [84, 85])
    M = [86, 87]; MBF = [88, 89]
    for r in range(2):
        A(f"v_mul_f32 v{M[r]}, {fhex(1/512)}, v{S[r]}")
        A(f"v_mov_b32 v{MBF[r]}, v{M[r]}")
        round_bf16_1(A, MBF[r], 90)
    for r in range(2):
        for j in range(8):
            A(f"v_sub_f32 v90, v{X[r]+j}, v{M[r]}")
            if j == 0:
                A(f"v_mul_f32 v{S[r]}, v90, v90")
            else:
                A(f"v_fmac_f32 v{S[r]}, v90, v90")
    wave_allreduce(A, "v_add_f32", S, [82, 83], [84, 85])
    DEN = [91, 92]; RINV = [93, 94]
    for r in range(2):
        A(f"v_mul_f32 v{S[r]}, {fhex(1/512)}, v{S[r]}")
        ln_stats_finish(A, S[r], DEN[r], RINV[r], 90)
    for r in range(2):
        for j in range(0, 8, 2):
            a, b = X[r] + j, X[r] + j + 1
            A(f"v_sub_f32 v{a}, v{a}, v{MBF[r]}")
            A(f"v_sub_f32 v{b}, v{b}, v{MBF[r]}")
            round_bf16_2(A, a, b, 90, "s40")
            for e in (a, b):
                A(f"v_mul_f32 v95, v{e}, v{RINV[r]}")
                A(f"v_fma_f32 v96, -v95, v{DEN[r]}, v{e}")
                A(f"v_fma_f32 v{e}, v96, v{RINV[r]}, v95")
            A(f"v_cvt_pk_bf16_f32 v{4+4*r+j//2}, v{a}, v{b}")
    A("buffer_store_dwordx4 v[4:7], v3, s[16:19], 0 offen " + os.environ.get("XNF","sc1"))
    A("buffer_store_dwordx4 v[8:11], v3, s[16:19], 0 offen offset:1024 " + os.environ.get("XNF","sc1"))
    stamp()
    A("s_cmp_ge_u32 s2, 152")
    A("s_cbranch_scc1 .Lk0_end")
    A(f"s_waitcnt vmcnt({10 + NPF})")
    for i in range(8):
        c = 16 + i
        A(f"v_lshlrev_b32 v{c}, 16, v{c}")
        A(f"v_mul_f32 v90, {fhex(-LOG2E)}, v{c}")
        A("v_exp_f32 v90, v90")
        A("s_nop 0")
        A("v_add_f32 v90, 1.0, v90")
        A("v_rcp_f32 v91, v90")
        A("s_nop 0")
        A(f"v_mul_f32 v92, v{c}, v91")
        A(f"v_fma_f32 v93, -v92, v90, v{c}")
        A(f"v_fma_f32 v{c}, v93, v91, v92")
        round_bf16_1(A, c, 90)
    A("s_cmp_lt_u32 s2, 96")
    A("s_cbranch_scc1 .Lk0_ismod2")
    for i in range(8):
        A(f"v_mov_b32 v{16+i}, 1.0")
    A.label(".Lk0_ismod2")
    ACC = list(range(64, 72))
    for i in range(8):
        A(f"s_waitcnt vmcnt({7-i+2+NPF})")
        for j in range(4):
            w = 24 + 4 * i + j
            A(f"v_lshlrev_b32 v90, 16, v{w}")
            A(f"v_and_b32 v91, s40, v{w}")
            if i == 0:
                A(f"v_mul_f32 v{ACC[2*j]}, v90, v{16+i}")
                A(f"v_mul_f32 v{ACC[2*j+1]}, v91, v{16+i}")
            else:
                A(f"v_fmac_f32 v{ACC[2*j]}, v90, v{16+i}")
                A(f"v_fmac_f32 v{ACC[2*j+1]}, v91, v{16+i}")
    stamp()
    A("s_nop 1")
    for dpp in ("row_ror:8", "row_ror:4"):
        for v in ACC:
            A(f"v_add_f32_dpp v{v}, v{v}, v{v} {dpp} row_mask:0xf bank_mask:0xf")
    for sw in ("v_permlane16_swap_b32", "v_permlane32_swap_b32"):
        for k, v in enumerate(ACC):
            A(f"v_mov_b32 v{72+k}, v{v}")
            A(f"v_mov_b32 v{80+k}, v{v}")
        A("s_nop 1")
        for k, v in enumerate(ACC):
            A(f"{sw} v{72+k}, v{80+k}")
        A("s_nop 1")
        for k, v in enumerate(ACC):
            A(f"v_add_f32 v{v}, v{72+k}, v{80+k}")
    A("v_lshlrev_b32 v90, 7, v2")
    A("v_lshl_add_u32 v90, v12, 5, v90")
    A("v_cmp_gt_u32 vcc, 4, v1")
    A("s_and_saveexec_b64 s[60:61], vcc")
    A("ds_write_b128 v90, v[64:67]")
    A("ds_write_b128 v90, v[68:71] offset:16")
    A("s_mov_b64 exec, s[60:61]")
    A("s_waitcnt lgkmcnt(0)")
    A("s_barrier")
    if K0T:
        stamp(); stamp(True)
        make_srd(A, 88, 6, WS_DBG, 32 * MB)
        A("v_readfirstlane_b32 s92, v2")
        A("s_lshl_b32 s93, s2, 3")
        A("s_add_u32 s93, s93, s92")
        A("s_lshl_b32 s93, s93, 7")
        A("v_mov_b32 v111, 0")
        for i in range(cnt[0]):
            A(f"buffer_store_dword v{112+i}, v111, s[88:91], s93 offen offset:{4*i}")
    A("v_cmp_gt_u32 vcc, 32, v0")
    A("s_and_saveexec_b64 s[60:61], vcc")
    A("s_cbranch_execz .Lk0_end")
    A("v_lshlrev_b32 v90, 2, v0")
    A("ds_read_b32 v64, v90")
    A("ds_read_b32 v65, v90 offset:128")
    A("ds_read_b32 v66, v90 offset:256")
    A("ds_read_b32 v67, v90 offset:384")
    A("s_waitcnt lgkmcnt(0)")
    A("v_add_f32 v64, v64, v65")
    A("v_add_f32 v66, v66, v67")
    A("v_add_f32 v64, v64, v66")
    A("s_cmp_ge_u32 s2, 96")
    A("s_cbranch_scc1 .Lk0_nornd")
    round_bf16_1(A, 64, 65)
    A.label(".Lk0_nornd")
    A("s_lshl_b32 s42, s43, 7")
    A("buffer_store_dword v64, v90, s[28:31], s42 offen")
    A.label(".Lk0_end")
    A("s_endpgm")
    A.raw(kernel_desc(name, 128, 102))
    return (name, (256, 1, 1), (256, 1, 1), 512)
```

```python
from asmlib import *
MB = 1 << 20
WS_MOD = 0
WS_XN = 1 * MB
WS_X2 = 4 * MB
WS_X1 = 6 * MB
WS_XN4 = 8 * MB
WS_G = 10 * MB
WS_H = 18 * MB
WS_HN = 20 * MB
WS_H1 = 22 * MB
WS_PART = 32 * MB
WS_DBG = 64 * MB
LOG2E = 1.4426950408889634
import os
PREFETCH = int(os.environ.get("PREFETCH", "1"))
CODEPF = int(os.environ.get('CODEPF','1'))
WQ2 = int(os.environ.get('WQ2','0'))
K0KV = int(os.environ.get('K0KV','0'))
TLBW = int(os.environ.get('TLBW','0'))
TLBS = int(os.environ.get('TLBS','16'))
NPF = (1 + CODEPF + WQ2 + (2 if K0KV else 0) + (1 if K0KV >= 2 else 0) + (10 if TLBW else 0)) if PREFETCH else 0

def round_bf16_1(A, v, t):
    A(f"v_cvt_pk_bf16_f32 v{t}, v{v}, v{v}")
    A(f"v_lshlrev_b32 v{v}, 16, v{t}")

def round_bf16_2(A, a, b, t, smask):
    A(f"v_cvt_pk_bf16_f32 v{t}, v{a}, v{b}")
    A(f"v_lshlrev_b32 v{a}, 16, v{t}")
    A(f"v_and_b32 v{b}, {smask}, v{t}")

def ln_stats_finish(A, vsum_sq, vden, vrinv, t):
    round_bf16_1(A, vsum_sq, t)
    A(f"v_add_f32 v{vsum_sq}, {fhex(1e-5)}, v{vsum_sq}")
    round_bf16_1(A, vsum_sq, t)
    A(f"v_sqrt_f32 v{vden}, v{vsum_sq}")
    A("s_nop 0")
    round_bf16_1(A, vden, t)
    A(f"v_rcp_f32 v{vrinv}, v{vden}")
    A("s_nop 0")

def gen_k0(A):
    name = "k0_kernel"
    K0T = int(os.environ.get("K0TIMING", "0"))
    cnt = [0]
    def stamp(real=False):
        if not K0T: return
        A("s_waitcnt lgkmcnt(0)")
        A("s_memrealtime s[100:101]" if real else "s_memtime s[100:101]")
        A("s_waitcnt lgkmcnt(0)")
        A(f"v_mov_b32 v{112+cnt[0]}, s100")
        cnt[0] += 1
    kernel_header(A, name)
    stamp(True); stamp()
    A("s_cmp_ge_u32 s2, 256")
    A("s_cbranch_scc1 .Lk0_end")
    A("s_load_dwordx2 s[4:5], s[0:1], 0")
    A("s_load_dwordx4 s[8:11], s[0:1], 80")
    A("s_load_dwordx2 s[6:7], s[0:1], 112")
    A("s_load_dwordx2 s[56:57], s[0:1], 64")
    A("v_and_b32 v1, 63, v0")
    A("v_lshrrev_b32 v2, 6, v0")
    A("s_mov_b32 s40, 0xffff0000")
    A("s_waitcnt lgkmcnt(0)")
    stamp()
    make_srd(A, 12, 4, 0, 2 * MB)
    make_srd(A, 16, 6, WS_XN, 2 * MB)
    make_srd(A, 20, 8, 0, 1024)
    make_srd(A, 24, 10, 0, 512 * 6144)
    make_srd(A, 28, 6, WS_MOD, 3072 * 4)
    A("s_movk_i32 s41, 6144")
    A("s_mov_b32 s43, s2")
    A("s_cmp_lt_u32 s2, 96")
    A("s_cbranch_scc1 .Lk0_ismod")
    make_srd(A, 24, 56, 0, 512 * 3584)
    make_srd(A, 28, 6, 64 * 1024, 1792 * 4)
    A("s_movk_i32 s41, 3584")
    A("s_sub_u32 s43, s2, 96")
    A.label(".Lk0_ismod")
    A("s_lshl_b32 s3, s2, 13")
    A("v_lshlrev_b32 v3, 11, v2")
    A("v_lshl_add_u32 v3, v1, 4, v3")
    A("v_add_u32 v3, s3, v3")
    A("buffer_load_dwordx4 v[4:7], v3, s[12:15], 0 offen")
    A("buffer_load_dwordx4 v[8:11], v3, s[12:15], 0 offen offset:1024")
    A("s_cmp_ge_u32 s2, 152")
    A("s_cbranch_scc1 .Lk0_noB1")
    A("v_and_b32 v12, 3, v0")
    A("v_lshrrev_b32 v13, 2, v0")
    A("v_mul_lo_u32 v14, v13, s41")
    A("v_lshl_add_u32 v14, v12, 4, v14")
    A("s_lshl_b32 s44, s43, 6")
    A("s_lshl_b32 s42, s41, 6")
    for i in range(1, 8):
        A(f"s_add_u32 s{44+i}, s{43+i}, s42")
    A("v_lshlrev_b32 v15, 1, v13")
    for i in range(8):
        A(f"buffer_load_ushort v{16+i}, v15, s[20:23], 0 offen offset:{i*128}")
    for i in range(8):
        A(f"buffer_load_dwordx4 v[{24+4*i}:{27+4*i}], v14, s[24:27], s{44+i} offen")
    A.label(".Lk0_noB1")
    if PREFETCH:
        A("s_load_dwordx8 s[64:71], s[0:1], 8")
        A("s_load_dwordx8 s[72:79], s[0:1], 48")
        A("s_and_b32 s52, s2, 7")
        A("s_lshr_b32 s53, s2, 3")
        A("v_lshlrev_b32 v97, 6, v0")
        A("v_lshrrev_b32 v98, 4, v0")
        A("v_and_b32 v99, 15, v0")
        A("v_lshlrev_b32 v99, 6, v99")
        A("v_lshl_add_u32 v98, v98, 13, v99")
        A("v_lshlrev_b32 v99, 6, v1")
        A("s_waitcnt lgkmcnt(0)")
        make_srd(A, 80, 68, 0, 4 * MB if int(os.environ.get("WQPF","1")) else 0)
        A("s_lshl_b32 s54, s53, 17")
        A("s_lshl_b32 s55, s52, 10")
        A("s_add_u32 s54, s54, s55")
        A("buffer_load_dword v100, v98, s[80:83], s54 offen")
        if WQ2:
            A("s_xor_b32 s54, s54, 1024")
            A("buffer_load_dword v102, v98, s[80:83], s54 offen")
        if CODEPF:
            A("s_getpc_b64 s[84:85]")
            A.label(".Lk0_pc")
            A("s_mov_b32 s86, .Lcode_end-.Lk0_pc")
            A("s_mov_b32 s87, 0x00020000")
            A("s_lshl_b32 s54, s53, 12")
            A("buffer_load_dword v101, v99, s[84:87], s54 offen")
        if K0KV:
            A("s_lshl_b32 s54, s52, 19")
            A("s_lshl_b32 s55, s53, 12")
            A("s_add_u32 s54, s54, s55")
            A(f"s_add_u32 s54, s54, {1536*256}")
            make_srd(A, 88, 64, 0, 4 * MB)
            A("buffer_load_dword v103, v99, s[88:91], s54 offen")
            make_srd(A, 92, 66, 0, 4 * MB)
            A("buffer_load_dword v104, v99, s[92:95], s54 offen")
        if K0KV >= 2:
            make_srd(A, 84, 70, 0, 4 * MB)
            A("s_lshl_b32 s54, s2, 14")
            A("buffer_load_dword v105, v97, s[84:87], s54 offen")
        if TLBW:
            A("s_lshl_b32 s54, s53, 8")
            A("v_add_u32 v106, s54, v0")
            A(f"v_lshlrev_b32 v106, {TLBS}, v106")
            A("s_load_dwordx2 s[58:59], s[0:1], 96")
            A("s_waitcnt lgkmcnt(0)")
            for (p, sz) in ((6, 64 * MB), (64, 4 * MB), (66, 4 * MB), (70, 4 * MB), (72, 512*1024), (74, 512*1024), (76, 1792*1024), (78, 1792*1024), (58, 2 * MB), (68, 4 * MB)):
                make_srd(A, 96, p, 0, sz)
                A("buffer_load_dword v107, v106, s[96:99], 0 offen")
    A("s_cmp_ge_u32 s2, 152")
    A("s_cbranch_scc1 .Lk0_w0")
    A(f"s_waitcnt vmcnt({16 + NPF})")
    A("s_branch .Lk0_w1")
    A.label(".Lk0_w0")
    A(f"s_waitcnt vmcnt({NPF})")
    A.label(".Lk0_w1")
    stamp()
    X = [64, 72]
    for r in range(2):
        for j in range(4):
            A(f"v_lshlrev_b32 v{X[r]+2*j}, 16, v{4+4*r+j}")
            A(f"v_and_b32 v{X[r]+2*j+1}, s40, v{4+4*r+j}")
    S = [80, 81]
    for r in range(2):
        A(f"v_add_f32 v{S[r]}, v{X[r]}, v{X[r]+1}")
        for j in range(2, 8):
            A(f"v_add_f32 v{S[r]}, v{S[r]}, v{X[r]+j}")
    wave_allreduce(A, "v_add_f32", S, [82, 83], [84, 85])
    M = [86, 87]; MBF = [88, 89]
    for r in range(2):
        A(f"v_mul_f32 v{M[r]}, {fhex(1/512)}, v{S[r]}")
        A(f"v_mov_b32 v{MBF[r]}, v{M[r]}")
        round_bf16_1(A, MBF[r], 90)
    for r in range(2):
        for j in range(8):
            A(f"v_sub_f32 v90, v{X[r]+j}, v{M[r]}")
            if j == 0:
                A(f"v_mul_f32 v{S[r]}, v90, v90")
            else:
                A(f"v_fmac_f32 v{S[r]}, v90, v90")
    wave_allreduce(A, "v_add_f32", S, [82, 83], [84, 85])
    DEN = [91, 92]; RINV = [93, 94]
    for r in range(2):
        A(f"v_mul_f32 v{S[r]}, {fhex(1/512)}, v{S[r]}")
        ln_stats_finish(A, S[r], DEN[r], RINV[r], 90)
    for r in range(2):
        for j in range(0, 8, 2):
            a, b = X[r] + j, X[r] + j + 1
            A(f"v_sub_f32 v{a}, v{a}, v{MBF[r]}")
            A(f"v_sub_f32 v{b}, v{b}, v{MBF[r]}")
            round_bf16_2(A, a, b, 90, "s40")
            for e in (a, b):
                A(f"v_mul_f32 v95, v{e}, v{RINV[r]}")
                A(f"v_fma_f32 v96, -v95, v{DEN[r]}, v{e}")
                A(f"v_fma_f32 v{e}, v96, v{RINV[r]}, v95")
            A(f"v_cvt_pk_bf16_f32 v{4+4*r+j//2}, v{a}, v{b}")
    A("buffer_store_dwordx4 v[4:7], v3, s[16:19], 0 offen " + os.environ.get("XNF","sc1"))
    A("buffer_store_dwordx4 v[8:11], v3, s[16:19], 0 offen offset:1024 " + os.environ.get("XNF","sc1"))
    stamp()
    A("s_cmp_ge_u32 s2, 152")
    A("s_cbranch_scc1 .Lk0_end")
    A(f"s_waitcnt vmcnt({10 + NPF})")
    for i in range(8):
        c = 16 + i
        A(f"v_lshlrev_b32 v{c}, 16, v{c}")
        A(f"v_mul_f32 v90, {fhex(-LOG2E)}, v{c}")
        A("v_exp_f32 v90, v90")
        A("s_nop 0")
        A("v_add_f32 v90, 1.0, v90")
        A("v_rcp_f32 v91, v90")
        A("s_nop 0")
        A(f"v_mul_f32 v92, v{c}, v91")
        A(f"v_fma_f32 v93, -v92, v90, v{c}")
        A(f"v_fma_f32 v{c}, v93, v91, v92")
        round_bf16_1(A, c, 90)
    A("s_cmp_lt_u32 s2, 96")
    A("s_cbranch_scc1 .Lk0_ismod2")
    for i in range(8):
        A(f"v_mov_b32 v{16+i}, 1.0")
    A.label(".Lk0_ismod2")
    ACC = list(range(64, 72))
    for i in range(8):
        A(f"s_waitcnt vmcnt({7-i+2+NPF})")
        for j in range(4):
            w = 24 + 4 * i + j
            A(f"v_lshlrev_b32 v90, 16, v{w}")
            A(f"v_and_b32 v91, s40, v{w}")
            if i == 0:
                A(f"v_mul_f32 v{ACC[2*j]}, v90, v{16+i}")
                A(f"v_mul_f32 v{ACC[2*j+1]}, v91, v{16+i}")
            else:
                A(f"v_fmac_f32 v{ACC[2*j]}, v90, v{16+i}")
                A(f"v_fmac_f32 v{ACC[2*j+1]}, v91, v{16+i}")
    stamp()
    A("s_nop 1")
    for dpp in ("row_ror:8", "row_ror:4"):
        for v in ACC:
            A(f"v_add_f32_dpp v{v}, v{v}, v{v} {dpp} row_mask:0xf bank_mask:0xf")
    for sw in ("v_permlane16_swap_b32", "v_permlane32_swap_b32"):
        for k, v in enumerate(ACC):
            A(f"v_mov_b32 v{72+k}, v{v}")
            A(f"v_mov_b32 v{80+k}, v{v}")
        A("s_nop 1")
        for k, v in enumerate(ACC):
            A(f"{sw} v{72+k}, v{80+k}")
        A("s_nop 1")
        for k, v in enumerate(ACC):
            A(f"v_add_f32 v{v}, v{72+k}, v{80+k}")
    A("v_lshlrev_b32 v90, 7, v2")
    A("v_lshl_add_u32 v90, v12, 5, v90")
    A("v_cmp_gt_u32 vcc, 4, v1")
    A("s_and_saveexec_b64 s[60:61], vcc")
    A("ds_write_b128 v90, v[64:67]")
    A("ds_write_b128 v90, v[68:71] offset:16")
    A("s_mov_b64 exec, s[60:61]")
    A("s_waitcnt lgkmcnt(0)")
    A("s_barrier")
    if K0T:
        stamp(); stamp(True)
        make_srd(A, 88, 6, WS_DBG, 32 * MB)
        A("v_readfirstlane_b32 s92, v2")
        A("s_lshl_b32 s93, s2, 3")
        A("s_add_u32 s93, s93, s92")
        A("s_lshl_b32 s93, s93, 7")
        A("v_mov_b32 v111, 0")
        for i in range(cnt[0]):
            A(f"buffer_store_dword v{112+i}, v111, s[88:91], s93 offen offset:{4*i}")
    A("v_cmp_gt_u32 vcc, 32, v0")
    A("s_and_saveexec_b64 s[60:61], vcc")
    A("s_cbranch_execz .Lk0_end")
    A("v_lshlrev_b32 v90, 2, v0")
    A("ds_read_b32 v64, v90")
    A("ds_read_b32 v65, v90 offset:128")
    A("ds_read_b32 v66, v90 offset:256")
    A("ds_read_b32 v67, v90 offset:384")
    A("s_waitcnt lgkmcnt(0)")
    A("v_add_f32 v64, v64, v65")
    A("v_add_f32 v66, v66, v67")
    A("v_add_f32 v64, v64, v66")
    A("s_cmp_ge_u32 s2, 96")
    A("s_cbranch_scc1 .Lk0_nornd")
    round_bf16_1(A, 64, 65)
    A.label(".Lk0_nornd")
    A("s_lshl_b32 s42, s43, 7")
    A("buffer_store_dword v64, v90, s[28:31], s42 offen")
    A.label(".Lk0_end")
    A("s_endpgm")
    A.raw(kernel_desc(name, 128, 102))
    return (name, (256, 1, 1), (256, 1, 1), 512)
```

```python
from asmlib import *
from gen_k0 import *
import os
WS_W3P = 28 * MB
W3S = int(os.environ.get('W3S', '32768'))
RPK = int(os.environ.get('K5N', '0'))
NB = 152
def gen_k0(A):
    name = "k0_kernel"
    kernel_header(A, name)
    A(f"s_cmp_ge_u32 s2, {NB + 256}")
    A("s_cbranch_scc1 .Lk0_end")
    A("s_load_dwordx2 s[6:7], s[0:1], 112")
    A("v_and_b32 v1, 63, v0")
    A("v_lshrrev_b32 v2, 6, v0")
    A("s_mov_b32 s40, 0xffff0000")
    A(f"s_cmp_ge_u32 s2, {NB}")
    A("s_cbranch_scc1 .Lk0_ln")
    A("s_load_dwordx4 s[8:11], s[0:1], 80")
    A("s_load_dwordx2 s[56:57], s[0:1], 64")
    A("s_movk_i32 s41, 6144")
    A("s_mov_b32 s43, s2")
    A("s_cmp_lt_u32 s2, 96")
    A("s_cbranch_scc1 .Lk0_ismod0")
    A("s_movk_i32 s41, 3584")
    A("s_sub_u32 s43, s2, 96")
    A.label(".Lk0_ismod0")
    A("v_and_b32 v12, 3, v0")
    A("v_lshrrev_b32 v13, 2, v0")
    A("v_mul_lo_u32 v14, v13, s41")
    A("v_lshl_add_u32 v14, v12, 4, v14")
    A("s_lshl_b32 s44, s43, 6")
    A("s_lshl_b32 s42, s41, 6")
    for i in range(1, 8):
        A(f"s_add_u32 s{44+i}, s{43+i}, s42")
    A("v_lshlrev_b32 v15, 1, v13")
    A("s_waitcnt lgkmcnt(0)")
    make_srd(A, 20, 8, 0, 1024)
    make_srd(A, 24, 10, 0, 512 * 6144)
    make_srd(A, 28, 6, WS_MOD, 3072 * 4)
    A("s_cmp_lt_u32 s2, 96")
    A("s_cbranch_scc1 .Lk0_ismod")
    make_srd(A, 24, 56, 0, 512 * 3584)
    make_srd(A, 28, 6, 64 * 1024, 1792 * 4)
    A.label(".Lk0_ismod")
    for i in range(8):
        A(f"buffer_load_dwordx4 v[{24+4*i}:{27+4*i}], v14, s[24:27], s{44+i} offen")
    for i in range(8):
        A(f"buffer_load_ushort v{16+i}, v15, s[20:23], 0 offen offset:{i*128}")
    ACC = list(range(64, 72))
    A("s_cmp_lt_u32 s2, 96")
    A("s_cbranch_scc0 .Lk0_w3")
    A("s_waitcnt vmcnt(0)")
    T = list(range(72, 80)); U = list(range(80, 88)); W_ = list(range(88, 96))
    for i in range(8): A(f"v_lshlrev_b32 v{16+i}, 16, v{16+i}")
    for i in range(8): A(f"v_mul_f32 v{T[i]}, {fhex(-LOG2E)}, v{16+i}")
    for i in range(8): A(f"v_exp_f32 v{T[i]}, v{T[i]}")
    for i in range(8): A(f"v_add_f32 v{T[i]}, 1.0, v{T[i]}")
    for i in range(8): A(f"v_rcp_f32 v{U[i]}, v{T[i]}")
    for i in range(8): A(f"v_mul_f32 v{W_[i]}, v{16+i}, v{U[i]}")
    for i in range(8): A(f"v_fma_f32 v{T[i]}, -v{W_[i]}, v{T[i]}, v{16+i}")
    for i in range(8): A(f"v_fma_f32 v{16+i}, v{T[i]}, v{U[i]}, v{W_[i]}")
    for i in range(8): A(f"v_cvt_pk_bf16_f32 v{T[i]}, v{16+i}, v{16+i}")
    for i in range(8): A(f"v_lshlrev_b32 v{16+i}, 16, v{T[i]}")
    for i in range(8):
        for j in range(4):
            w = 24 + 4 * i + j
            A(f"v_lshlrev_b32 v{T[2*j]}, 16, v{w}")
            A(f"v_and_b32 v{T[2*j+1]}, s40, v{w}")
        for j in range(8):
            A(f"v_mul_f32 v{ACC[j]}, v{T[j]}, v{16+i}" if i == 0 else f"v_fmac_f32 v{ACC[j]}, v{T[j]}, v{16+i}")
    A("s_branch .Lk0_red")
    A.label(".Lk0_w3")
    A("v_lshlrev_b32 v96, 4, v0")
    A("v_add_u32 v96, 1024, v96")
    A("v_lshrrev_b32 v5, 5, v1")
    A("v_bfe_u32 v6, v1, 4, 1")
    A("v_bfe_u32 v7, v1, 2, 2")
    A("v_and_b32 v8, 1, v1")
    A("v_bfe_u32 v9, v1, 1, 1")
    A("v_lshl_or_b32 v8, v8, 1, v9")
    A("v_lshlrev_b32 v8, 3, v8")
    A("v_lshl_add_u32 v8, v6, 5, v8")
    A("v_lshl_add_u32 v10, v5, 3, v7")
    A("v_lshl_add_u32 v97, v10, 6, v8")
    A("v_lshl_add_u32 v97, v2, 13, v97")
    A("v_add_u32 v97, 1024, v97")
    A("v_lshlrev_b32 v98, 4, v1")
    A("v_lshl_add_u32 v98, v2, 13, v98")
    make_srd(A, 32, 6, WS_W3P, 56 * W3S)
    A(f"s_mul_i32 s52, s43, {W3S}")
    for i in range(8):
        A(f"s_waitcnt vmcnt({15-i})")
        if RPK: A(f"ds_write_b128 v96, v[{24+4*i}:{27+4*i}] offset:{i*4096}")
        for j in range(4):
            w = 24 + 4 * i + j
            if i == 0:
                A(f"v_lshlrev_b32 v{ACC[2*j]}, 16, v{w}")
                A(f"v_and_b32 v{ACC[2*j+1]}, s40, v{w}")
            else:
                A(f"v_lshlrev_b32 v{T[2*j]}, 16, v{w}")
                A(f"v_and_b32 v{T[2*j+1]}, s40, v{w}")
        if i > 0:
            for j in range(8): A(f"v_add_f32 v{ACC[j]}, v{ACC[j]}, v{T[j]}")
    if RPK:
        A("s_waitcnt lgkmcnt(0)")
        A("s_barrier")
    for half in range(2 if RPK else 0):
        for s4 in range(4):
            s = half * 4 + s4
            for q in range(2):
                A(f"ds_read_b64_tr_b16 v[{24+4*s+2*q}:{25+4*s+2*q}], v97 offset:{s*1024 + q*256}")
    for s in range(8 if RPK else 0):
        A(f"s_waitcnt lgkmcnt({14-2*s})")
        A(f"buffer_store_dwordx4 v[{24+4*s}:{27+4*s}], v98, s[32:35], s52 offen offset:{s*1024} sc1") if s < 4 else None
        if s == 3: A("s_add_u32 s52, s52, 4096")
        if s >= 4: A(f"buffer_store_dwordx4 v[{24+4*s}:{27+4*s}], v98, s[32:35], s52 offen offset:{(s-4)*1024} sc1")
    A.label(".Lk0_red")
    A("s_nop 1")
    for dpp in ("row_ror:8", "row_ror:4"):
        for v in ACC:
            A(f"v_add_f32_dpp v{v}, v{v}, v{v} {dpp} row_mask:0xf bank_mask:0xf")
    for sw in ("v_permlane16_swap_b32", "v_permlane32_swap_b32"):
        for k, v in enumerate(ACC):
            A(f"v_mov_b32 v{72+k}, v{v}")
            A(f"v_mov_b32 v{80+k}, v{v}")
        A("s_nop 1")
        for k, v in enumerate(ACC):
            A(f"{sw} v{72+k}, v{80+k}")
        A("s_nop 1")
        for k, v in enumerate(ACC):
            A(f"v_add_f32 v{v}, v{72+k}, v{80+k}")
    A("v_lshlrev_b32 v90, 7, v2")
    A("v_lshl_add_u32 v90, v12, 5, v90")
    A("v_cmp_gt_u32 vcc, 4, v1")
    A("s_and_saveexec_b64 s[60:61], vcc")
    A("ds_write_b128 v90, v[64:67]")
    A("ds_write_b128 v90, v[68:71] offset:16")
    A("s_mov_b64 exec, s[60:61]")
    A("s_waitcnt lgkmcnt(0)")
    A("s_barrier")
    A("v_cmp_gt_u32 vcc, 32, v0")
    A("s_and_saveexec_b64 s[60:61], vcc")
    A("s_cbranch_execz .Lk0_end")
    A("v_lshlrev_b32 v90, 2, v0")
    A("ds_read_b32 v64, v90")
    A("ds_read_b32 v65, v90 offset:128")
    A("ds_read_b32 v66, v90 offset:256")
    A("ds_read_b32 v67, v90 offset:384")
    A("s_waitcnt lgkmcnt(0)")
    A("v_add_f32 v64, v64, v65")
    A("v_add_f32 v66, v66, v67")
    A("v_add_f32 v64, v64, v66")
    A("s_cmp_ge_u32 s2, 96")
    A("s_cbranch_scc1 .Lk0_nornd")
    round_bf16_1(A, 64, 65)
    A.label(".Lk0_nornd")
    A("s_lshl_b32 s42, s43, 7")
    A("buffer_store_dword v64, v90, s[28:31], s42 offen " + os.environ.get("MODF", ""))
    A("s_endpgm")
    A.label(".Lk0_ln")
    A("s_load_dwordx2 s[4:5], s[0:1], 0")
    A("s_load_dwordx2 s[68:69], s[0:1], 24")
    A(f"s_sub_u32 s2, s2, {NB}")
    A("s_lshl_b32 s3, s2, 13")
    A("v_lshlrev_b32 v3, 11, v2")
    A("v_lshl_add_u32 v3, v1, 4, v3")
    A("v_add_u32 v3, s3, v3")
    A("s_and_b32 s52, s2, 7")
    A("s_lshr_b32 s53, s2, 3")
    A("v_lshrrev_b32 v98, 4, v0")
    A("v_and_b32 v99, 15, v0")
    A("v_lshlrev_b32 v99, 6, v99")
    A("v_lshl_add_u32 v98, v98, 13, v99")
    A("v_lshlrev_b32 v99, 6, v1")
    A("s_waitcnt lgkmcnt(0)")
    make_srd(A, 12, 4, 0, 2 * MB)
    A("buffer_load_dwordx4 v[4:7], v3, s[12:15], 0 offen")
    A("buffer_load_dwordx4 v[8:11], v3, s[12:15], 0 offen offset:1024")
    make_srd(A, 80, 68, 0, 4 * MB)
    A("s_lshl_b32 s54, s53, 17")
    A("s_lshl_b32 s55, s52, 10")
    A("s_add_u32 s54, s54, s55")
    A("buffer_load_dword v100, v98, s[80:83], s54 offen")
    A("s_getpc_b64 s[84:85]")
    A.label(".Lk0_pc")
    A("s_mov_b32 s86, .Lcode_end-.Lk0_pc")
    A("s_mov_b32 s87, 0x00020000")
    A("s_lshl_b32 s54, s53, 12")
    A("buffer_load_dword v101, v99, s[84:87], s54 offen")
    make_srd(A, 16, 6, WS_XN, 2 * MB)
    A("s_waitcnt vmcnt(2)")
    X = [64, 72]
    for r in range(2):
        for j in range(4):
            A(f"v_lshlrev_b32 v{X[r]+2*j}, 16, v{4+4*r+j}")
            A(f"v_and_b32 v{X[r]+2*j+1}, s40, v{4+4*r+j}")
    S = [80, 81]
    for r in range(2):
        A(f"v_add_f32 v{S[r]}, v{X[r]}, v{X[r]+1}")
        for j in range(2, 8):
            A(f"v_add_f32 v{S[r]}, v{S[r]}, v{X[r]+j}")
    wave_allreduce(A, "v_add_f32", S, [82, 83], [84, 85])
    M = [86, 87]; MBF = [88, 89]
    for r in range(2):
        A(f"v_mul_f32 v{M[r]}, {fhex(1/512)}, v{S[r]}")
        A(f"v_mov_b32 v{MBF[r]}, v{M[r]}")
        round_bf16_1(A, MBF[r], 90)
    for r in range(2):
        for j in range(8):
            A(f"v_sub_f32 v90, v{X[r]+j}, v{M[r]}")
            A(f"v_mul_f32 v{S[r]}, v90, v90" if j == 0 else f"v_fmac_f32 v{S[r]}, v90, v90")
    wave_allreduce(A, "v_add_f32", S, [82, 83], [84, 85])
    DEN = [91, 92]; RINV = [93, 94]
    for r in range(2):
        A(f"v_mul_f32 v{S[r]}, {fhex(1/512)}, v{S[r]}")
        ln_stats_finish(A, S[r], DEN[r], RINV[r], 90)
    for r in range(2):
        for j in range(0, 8, 2):
            a, b = X[r] + j, X[r] + j + 1
            A(f"v_sub_f32 v{a}, v{a}, v{MBF[r]}")
            A(f"v_sub_f32 v{b}, v{b}, v{MBF[r]}")
            round_bf16_2(A, a, b, 90, "s40")
            for e in (a, b):
                A(f"v_mul_f32 v95, v{e}, v{RINV[r]}")
                A(f"v_fma_f32 v96, -v95, v{DEN[r]}, v{e}")
                A(f"v_fma_f32 v{e}, v96, v{RINV[r]}, v95")
            A(f"v_cvt_pk_bf16_f32 v{4+4*r+j//2}, v{a}, v{b}")
    A("buffer_store_dwordx4 v[4:7], v3, s[16:19], 0 offen sc1")
    A("buffer_store_dwordx4 v[8:11], v3, s[16:19], 0 offen offset:1024 sc1")
    A.label(".Lk0_end")
    A("s_endpgm")
    A.raw(kernel_desc(name, 128, 102))
    return (name, (NB + 256, 1, 1), (256, 1, 1), 1024 + 32768 if RPK else 512)
```

```python
import sys, os
from asmlib import *
from gen_k0 import *
import importlib

HEADER = open("adaLN_cond__sliding_block_cached__mixer_s_mlp__prompt.s.ref").read().split("; Override launch geometry")[0]

def build(kernels, out):
    A = Asm()
    launches = []
    for k in kernels:
        launches.append(k(A))
    txt = HEADER
    for (name, g, b, lds) in launches:
        txt += f"; @launch kernel={name} grid=({g[0]},{g[1]},{g[2]}) block=({b[0]},{b[1]},{b[2]}) lds={lds}\n"
    txt += '.amdgcn_target "amdgcn-amd-amdhsa--gfx950"\n.text\n'
    txt += A.text()
    txt += '.Lcode_end:\n'
    open(out, "w").write(txt)

if __name__ == "__main__":
    ks = [gen_k0]
    if int(os.environ.get('K0N','0')):
        import gen_k0n
        ks = [gen_k0n.gen_k0]
    for mod, fn in (("gen_k1x" if int(os.environ.get("K1X","0")) else "gen_k1", "gen_k1"), *((("gen_kq", "gen_kq"),) if int(os.environ.get("USEKQ","0")) else (("gen_kr", "gen_kr"), ("gen_g64", "gen_k3"))), ("gen_g64", "gen_k4"), *((("gen_k56", "gen_k56"), ("gen_k56", "gen_kf")) if int(os.environ.get("USE56","0")) else (("gen_k5n" if int(os.environ.get("K5N","0")) else "gen_k5", "gen_k5"), ("gen_g64", "gen_k6")))):
        try:
            m = importlib.import_module(mod)
        except ModuleNotFoundError:
            continue
        ks.append(getattr(m, fn))
    out = sys.argv[1] if len(sys.argv) > 1 else "adaLN_cond__sliding_block_cached__mixer_s_mlp__prompt.s"
    build(ks, out)
    print("wrote", out)
```

```python
from asmlib import *
from gen_k0 import *
from gen_k1 import Cnt, Stamper
import gen_k1 as K1
from gen_ka import gelu_multi, round_multi, GK1, GK0
import os
WS_STAT = 25 * MB
WS_CS = 64 * 1024

def gen_g64(A, name, K, a_off, a_size, a_rb, w_arg, epi, tenv, pf=None, emb=False):
    TM = int(os.environ.get(tenv, '0'))
    vm = Cnt(A, "vmcnt", 63); lg = Cnt(A, "lgkmcnt", 15)
    S_G = 8; S_W = 12; S_X1 = 16; S_X2 = 20; S_MOD = 24; S_O = 28; S_ST = 36
    S_WAVE = 40; S_M = 41; S_N = 42; S_RB = 43; S_GOFF = 44; S_WOFF = 45; S_MASK = 46; S_TMP = 48
    DWE = int(os.environ.get("G64DW", "4"))
    RT = int(os.environ.get("RT", "1"))
    RG = 24576 + DWE * 2048
    KW = K // 4
    NCH = KW // 64
    lab = name.replace("_kernel", "")
    if not emb:
        kernel_header(A, name)
        A("s_cmp_ge_u32 s2, 256")
        A(f"s_cbranch_scc1 .L{lab}_end")
    A(f"s_load_dwordx2 s[64:65], s[0:1], {w_arg}")
    A("s_load_dwordx2 s[66:67], s[0:1], 96")
    A("s_load_dwordx2 s[68:69], s[0:1], 112")
    if pf: A(f"s_load_dwordx2 s[70:71], s[0:1], {pf[0]}")
    A("v_and_b32 v1, 63, v0")
    A("v_lshrrev_b32 v2, 6, v0")
    A("s_nop 0")
    A(f"v_readfirstlane_b32 s{S_WAVE}, v2")
    if int(os.environ.get("GMAP","0")):
        A(f"s_and_b32 s{S_N}, s2, 7")
        A(f"s_lshr_b32 s{S_M}, s2, 3")
    else:
        A(f"s_and_b32 s{S_M}, s2, 31")
        A(f"s_lshr_b32 s{S_N}, s2, 5")
    A(f"s_mov_b32 s{S_MASK}, 0xffff0000")
    L = 1
    SM = f"s{S_MASK}"
    if int(os.environ.get("HWV", "1")) and RT:
        A(f"s_cmp_ge_u32 s{S_WAVE}, 4")
        A(f"s_cbranch_scc1 .L{lab}_help")
    VG = [4, 5]; VW = 6
    A(f"v_lshrrev_b32 v7, 3, v{L}")
    A(f"v_and_b32 v8, 7, v{L}")
    A("v_lshrrev_b32 v9, 1, v7")
    A("v_xor_b32 v9, v8, v9")
    A(f"s_movk_i32 s{S_TMP}, {a_rb}")
    A(f"v_mul_lo_u32 v10, v7, s{S_TMP}")
    A(f"v_lshl_add_u32 v{VG[0]}, v9, 4, v10")
    A("v_xor_b32 v9, 4, v9")
    A(f"v_lshl_add_u32 v{VG[1]}, v9, 4, v10")
    A("v_lshlrev_b32 v9, 1, v7")
    A("v_and_b32 v9, 4, v9")
    A("v_xor_b32 v9, v8, v9")
    A("v_lshlrev_b32 v9, 4, v9")
    A(f"v_lshl_add_u32 v{VW}, v7, 10, v9")
    A(f"s_mul_i32 s{S_RB}, s{S_WAVE}, {RG}")
    A(f"s_mul_i32 s{S_GOFF}, s{S_M}, {64*a_rb}")
    A(f"s_mul_i32 s{S_TMP}, s{S_WAVE}, {KW*2}")
    A(f"s_add_u32 s{S_GOFF}, s{S_GOFF}, s{S_TMP}")
    if epi == "res":
        A(f"s_lshl_b32 s{S_TMP}, s{S_WAVE}, 2")
        A(f"s_lshr_b32 s{S_TMP+1}, 0x4031, s{S_TMP}")
        A(f"s_and_b32 s{S_TMP+1}, s{S_TMP+1}, 15")
        A(f"s_lshl_b32 s{S_TMP+1}, s{S_TMP+1}, 10")
        A(f"s_add_u32 s{S_GOFF}, s{S_GOFF}, s{S_TMP+1}")
    A(f"s_mul_i32 s{S_WOFF}, s{S_WAVE}, {KW*1024}")
    A(f"s_lshl_b32 s{S_TMP}, s{S_N}, 7")
    A(f"s_add_u32 s{S_WOFF}, s{S_WOFF}, s{S_TMP}")
    A("s_waitcnt lgkmcnt(0)")
    make_srd(A, S_G, 68, a_off, a_size)
    make_srd(A, S_W, 64, 0, K * 1024)
    old_t = K1.TIMING; K1.TIMING = TM
    stamp = Stamper(A, lg, 32, S_WAVE, base=76)
    if TM: make_srd(A, 32, 68, WS_DBG, 32 * MB)
    stamp(True); stamp()
    DG = 3; DW = DWE; WB = 24576
    def dmaG(ch):
        base = (ch % DG) * 8192
        for i in range(8):
            A(f"s_add_u32 m0, s{S_RB}, {base + i * 1024}")
            A(f"s_add_u32 s{S_TMP}, s{S_GOFF}, {i * 8 * a_rb + ch * 128}")
            A(f"buffer_load_dwordx4 v{VG[i & 1]}, s[{S_G}:{S_G+3}], s{S_TMP} offen lds")
            vm.issue(("g", ch))
    def dmaW(st):
        for i in range(2):
            A(f"s_add_u32 m0, s{S_RB}, {WB + (st % DW) * 2048 + i * 1024}")
            A(f"s_add_u32 s{S_TMP}, s{S_WOFF}, {(st * 16 + i * 8) * 1024}")
            A(f"buffer_load_dwordx4 v{VW}, s[{S_W}:{S_W+3}], s{S_TMP} offen lds")
            vm.issue(("w", st))
    NS = NCH * 4
    dmaW(0); dmaG(0)
    for st in range(1, min(4, DW)): dmaW(st)
    for ch in range(1, min(DG, NCH)):
        dmaG(ch)
        for st in range(4 * ch, min(4 * ch + 4, DW)): dmaW(st)
    AA = 16; BA = 18
    A(f"v_lshrrev_b32 v7, 5, v{L}")
    A(f"v_bfe_u32 v8, v{L}, 4, 1")
    A(f"v_bfe_u32 v9, v{L}, 2, 2")
    A(f"v_and_b32 v10, 1, v{L}")
    A(f"v_bfe_u32 v11, v{L}, 1, 1")
    A("v_lshl_or_b32 v10, v10, 1, v11")
    A("v_lshlrev_b32 v10, 3, v10")
    A("v_lshl_add_u32 v10, v8, 5, v10")
    A("v_lshl_add_u32 v11, v7, 3, v9")
    A("v_lshrrev_b32 v12, 1, v9")
    for nb in range(2):
        A(f"v_xor_b32 v13, {nb}, v12")
        A("v_lshl_add_u32 v13, v13, 6, v10")
        A("v_lshl_add_u32 v13, v11, 7, v13")
        A(f"v_add_u32 v13, s{S_RB}, v13")
        A(f"v_add_u32 v{AA+nb}, {24576}, v13")
    A(f"v_and_b32 v8, 31, v{L}")
    A("v_bfe_u32 v9, v8, 1, 3")
    for ks in range(4):
        A(f"v_or_b32 v10, {2*ks}, v7")
        A("v_xor_b32 v10, v10, v9")
        A("v_lshlrev_b32 v10, 4, v10")
        A("v_lshl_add_u32 v10, v8, 7, v10")
        A(f"v_add_u32 v{BA+ks}, s{S_RB}, v10")
    A(f"s_and_b32 s{S_TMP+8}, s{S_WAVE}, 1")
    A(f"s_lshr_b32 s{S_TMP+9}, s{S_WAVE}, 1")
    A("v_lshlrev_b32 v9, 10, v8")
    A("v_lshl_add_u32 v9, v7, 4, v9")
    A(f"s_lshl_b32 s{S_TMP+2}, s{S_M}, 16")
    A(f"s_lshl_b32 s{S_TMP+3}, s{S_TMP+9}, 15")
    A(f"s_add_u32 s{S_TMP+2}, s{S_TMP+2}, s{S_TMP+3}")
    A(f"s_lshl_b32 s{S_TMP+3}, s{S_N}, 7")
    A(f"s_add_u32 s{S_TMP+2}, s{S_TMP+2}, s{S_TMP+3}")
    A(f"s_lshl_b32 s{S_TMP+3}, s{S_TMP+8}, 6")
    A(f"s_add_u32 s{S_TMP+2}, s{S_TMP+2}, s{S_TMP+3}")
    X1 = 24; X2 = 32; GB = 40
    RS = 272
    V_PW = 48; V_PR = 49; V_GA = 51; V_SA = 52; VC = (12, 14, 54)
    assert not (RT and pf)
    HWV = int(os.environ.get("HWV", "1")) and RT
    NI = 1 if HWV else 2
    def rt_setup(main):
        if main:
            A(f"v_mul_u32_u24 v{V_PW}, {RS}, v8")
            A(f"v_lshl_add_u32 v{V_PW}, v7, 5, v{V_PW}")
            A(f"v_add_u32 v{V_PW}, s{S_RB}, v{V_PW}")
        A(f"v_lshrrev_b32 v10, 3, v{L}")
        A(f"v_and_b32 v11, 7, v{L}")
        A(f"v_mul_u32_u24 v{V_PR}, {RS}, v10")
        A(f"v_lshl_add_u32 v{V_PR}, v11, 5, v{V_PR}")
        A(f"s_mul_i32 s{S_TMP+3}, s{S_WAVE}, {8*NI*RS}")
        A(f"v_add_u32 v{V_PR}, s{S_TMP+3}, v{V_PR}")
        A(f"v_add_u32 v{V_PR+1}, {2*RG}, v{V_PR}")
        A(f"v_lshlrev_b32 v{V_GA}, 4, v11")
        A(f"v_lshl_add_u32 v{V_GA}, v10, 10, v{V_GA}")
        A(f"s_lshl_b32 s{S_TMP+2}, s{S_M}, 16")
        A(f"s_lshl_b32 s{S_TMP+3}, s{S_WAVE}, {12 + NI}")
        A(f"s_add_u32 s{S_TMP+2}, s{S_TMP+2}, s{S_TMP+3}")
        A(f"s_lshl_b32 s{S_TMP+3}, s{S_N}, 7")
        A(f"s_add_u32 s{S_TMP+2}, s{S_TMP+2}, s{S_TMP+3}")
        A(f"s_add_u32 s{S_TMP+5}, s{S_TMP+2}, 8192")
        if epi == "final":
            A(f"v_lshlrev_b32 v{V_SA}, 5, v11")
        if epi == "res":
            A(f"v_and_b32 v{V_SA}, 1, v{L}")
            A(f"v_lshl_add_u32 v{V_SA}, v{V_SA}, 3, v10")
            A(f"v_lshlrev_b32 v{V_SA}, 3, v{V_SA}")
            A(f"s_lshl_b32 s{S_TMP+6}, s{S_M}, 9")
            A(f"s_lshl_b32 s{S_TMP+3}, s{S_WAVE}, {5 + NI}")
            A(f"s_add_u32 s{S_TMP+6}, s{S_TMP+6}, s{S_TMP+3}")
            A(f"s_lshl_b32 s{S_TMP+3}, s{S_N}, 14")
            A(f"s_add_u32 s{S_TMP+6}, s{S_TMP+6}, s{S_TMP+3}")
        if epi == "gelu":
            A(f"v_mov_b32 v{VC[0]}, {fhex(GK1)}")
            A(f"v_mov_b32 v{VC[1]}, {fhex(GK0)}")
            A(f"v_mov_b32 v{VC[2]}, 1.0")
    if RT: rt_setup(True)
    def epi_loads_rt():
        if epi == "final":
            make_srd(A, S_X1, 68, WS_X1, 2 * MB)
            make_srd(A, S_X2, 68, WS_X2, 2 * MB)
            make_srd(A, S_MOD, 68, WS_MOD, 3072 * 4)
            make_srd(A, S_O, 66, 0, 2 * MB)
            for i in range(NI):
                A(f"buffer_load_dwordx4 v[{X1+4*i}:{X1+4*i+3}], v{V_GA}, s[{S_X1}:{S_X1+3}], s{S_TMP+2+3*i} offen"); vm.issue("e")
                A(f"buffer_load_dwordx4 v[{X2+4*i}:{X2+4*i+3}], v{V_GA}, s[{S_X2}:{S_X2+3}], s{S_TMP+2+3*i} offen"); vm.issue("e")
            A(f"s_lshl_b32 s{S_TMP+3}, s{S_N}, 8")
            A(f"s_add_u32 s{S_TMP+3}, s{S_TMP+3}, {5*2048}")
            for h4 in range(2):
                A(f"buffer_load_dwordx4 v[{GB+4*h4}:{GB+4*h4+3}], v{V_SA}, s[{S_MOD}:{S_MOD+3}], s{S_TMP+3} offen offset:{h4*16}"); vm.issue("e")
        elif epi == "res":
            make_srd(A, S_X1, 68, WS_H, 2 * MB)
            make_srd(A, S_O, 68, WS_X1, 2 * MB)
            make_srd(A, S_ST, 68, WS_STAT, 2048 * 128)
            for i in range(NI):
                A(f"buffer_load_dwordx4 v[{X1+4*i}:{X1+4*i+3}], v{V_GA}, s[{S_X1}:{S_X1+3}], s{S_TMP+2+3*i} offen"); vm.issue("e")
        else:
            make_srd(A, S_O, 68, WS_H1 + 2048, 2 * MB)
    def epi_loads():
        if RT: return epi_loads_rt()
        if epi == "final":
            make_srd(A, S_X1, 68, WS_X1, 2 * MB)
            make_srd(A, S_X2, 68, WS_X2, 2 * MB)
            make_srd(A, S_MOD, 68, WS_MOD, 3072 * 4)
            make_srd(A, S_O, 66, 0, 2 * MB)
            for mp in range(2):
                A(f"buffer_load_dwordx4 v[{X1+4*mp}:{X1+4*mp+3}], v9, s[{S_X1}:{S_X1+3}], s{S_TMP+2} offen offset:{mp*32}"); vm.issue("e")
                A(f"buffer_load_dwordx4 v[{X2+4*mp}:{X2+4*mp+3}], v9, s[{S_X2}:{S_X2+3}], s{S_TMP+2} offen offset:{mp*32}"); vm.issue("e")
            A("v_lshlrev_b32 v10, 5, v7")
            A(f"s_lshl_b32 s{S_TMP+3}, s{S_N}, 8")
            A(f"s_lshl_b32 s{S_TMP+4}, s{S_TMP+8}, 7")
            A(f"s_add_u32 s{S_TMP+3}, s{S_TMP+3}, s{S_TMP+4}")
            A(f"s_add_u32 s{S_TMP+3}, s{S_TMP+3}, {5*2048}")
            for mp in range(2):
                for h4 in range(2):
                    A(f"buffer_load_dwordx4 v[{GB+8*mp+4*h4}:{GB+8*mp+4*h4+3}], v10, s[{S_MOD}:{S_MOD+3}], s{S_TMP+3} offen offset:{mp*64+h4*16}"); vm.issue("e")
        elif epi == "res":
            make_srd(A, S_X1, 68, WS_H, 2 * MB)
            make_srd(A, S_O, 68, WS_X1, 2 * MB)
            make_srd(A, S_ST, 68, WS_STAT, 2048 * 128)
            for mp in range(2):
                A(f"buffer_load_dwordx4 v[{X1+4*mp}:{X1+4*mp+3}], v9, s[{S_X1}:{S_X1+3}], s{S_TMP+2} offen offset:{mp*32}"); vm.issue("e")
        else:
            make_srd(A, S_O, 68, WS_H1 + 2048, 2 * MB)
    if pf:
        per = pf[1] // 32
        A("s_lshr_b32 s74, s2, 3")
        A(f"s_mul_i32 s74, s74, {per}")
        make_srd(A, 60, 70, "s74", per)
        A("v_lshlrev_b32 v14, 6, v0")
        for i in range((per + 16383) // 16384):
            A(f"s_mov_b32 s75, {i*16384}")
            A(f"buffer_load_dword v15, v14, s[60:63], s75 offen"); vm.issue("pf")
    ACC = 64; FR = 128
    def reads(step):
        ch, ks = step // 4, step % 4
        buf = FR + (step & 1) * 16
        for nb in range(2):
            for q in range(2):
                A(f"ds_read_b64_tr_b16 v[{buf+nb*4+q*2}:{buf+nb*4+q*2+1}], v{AA+nb} offset:{(step % DW) * 2048 + q * 512}")
                lg.issue(("f", step))
        for rb in range(2):
            A(f"ds_read_b128 v[{buf+8+rb*4}:{buf+8+rb*4+3}], v{BA+ks} offset:{(ch % DG) * 8192 + rb * 4096}")
            lg.issue(("f", step))
    def need(step):
        vm.wait(("w", step)); vm.wait(("g", step // 4))
    stamp()
    need(0)
    stamp()
    reads(0)
    for st in range(NS):
        if st + 1 < NS:
            need(st + 1)
            reads(st + 1)
        lg.wait(("f", st))
        if st + DW < NS:
            dmaW(st + DW)
        if st % 4 == 3 and st // 4 + DG < NCH:
            dmaG(st // 4 + DG)
        if st == max(NS - DW - 1, 0):
            epi_loads()
        buf = FR + (st & 1) * 16
        for nb in range(2):
            for rb in range(2):
                acc = ACC + (nb * 2 + rb) * 16
                c = "0" if st == 0 else f"v[{acc}:{acc+15}]"
                A(f"v_mfma_f32_32x32x16_bf16 v[{acc}:{acc+15}], v[{buf+nb*4}:{buf+nb*4+3}], v[{buf+8+rb*4}:{buf+8+rb*4+3}], {c}")
    stamp()
    if RT:
        def pk(op, d, a, b, c=None, sel=""):
            ops = ", ".join(f"v[{x}:{x+1}]" for x in ((d, a, b) if c is None else (d, a, b, c)))
            A(f"{op} {ops} {sel}".rstrip())
        A("s_nop 7")
        A("s_nop 1")
        for tl in range(4):
            nb, rb = tl >> 1, tl & 1
            for r4 in range(4):
                A(f"ds_write_b128 v{V_PW}, v[{ACC+tl*16+r4*4}:{ACC+tl*16+r4*4+3}] offset:{rb*32*RS + (nb*8 + (r4 >> 1)*4 + (r4 & 1))*16}")
            if tl == 1: A("s_waitcnt lgkmcnt(0)")
        A("s_waitcnt lgkmcnt(0)")
        if HWV:
            A(f"s_branch .L{lab}_join")
            A.label(f".L{lab}_help")
            rt_setup(False)
            A("s_waitcnt lgkmcnt(0)")
            if TM: make_srd(A, 32, 68, WS_DBG, 32 * MB)
            epi_loads_rt()
            A.label(f".L{lab}_join")
        A("s_barrier")
        NX = 8 * NI
        for i in range(NI):
            for p in range(4):
                for h in range(2):
                    d = ACC + p * 16 + i * 8 + h * 4
                    A(f"ds_read_b128 v[{d}:{d+3}], v{V_PR + (p >> 1)} offset:{(p & 1)*RG + i*8*RS + h*16}")
        xs = list(range(ACC, ACC + NX)); tp = list(range(96, 112)); t8 = list(range(112, 120))
        for i in range(NI):
            b = ACC + 8 * i
            A(f"s_waitcnt lgkmcnt({8*NI - 4 - 8*i})")
            for e in range(0, 8, 2): pk("v_pk_add_f32", b + e, b + e, b + 16 + e)
            A(f"s_waitcnt lgkmcnt({8*NI - 8 - 8*i})")
            for e in range(0, 8, 2): pk("v_pk_add_f32", b + 32 + e, b + 32 + e, b + 48 + e)
            for e in range(0, 8, 2): pk("v_pk_add_f32", b + e, b + e, b + 32 + e)
            round_multi(A, xs[8*i:8*i+8], [128, 129, 130, 131], SM)
        stamp()
        A("s_waitcnt vmcnt(0)")
        def unpack(src, dst):
            for k in range(NX // 2):
                A(f"v_lshlrev_b32 v{dst[2*k]}, 16, v{src+k}")
                A(f"v_and_b32 v{dst[2*k+1]}, {SM}, v{src+k}")
        def store(i):
            if i >= NI: return
            for k in range(4 * i, 4 * i + 4):
                A(f"v_cvt_pk_bf16_f32 v{56+k}, v{xs[2*k]}, v{xs[2*k+1]}")
            A(f"buffer_store_dwordx4 v[{56+4*i}:{56+4*i+3}], v{V_GA}, s[{S_O}:{S_O+3}], s{S_TMP+2+3*i} offen sc1")
        if epi == "gelu":
            for i in range(NI):
                X = xs[8*i:8*i+8]; T = tp[8*i:8*i+8]
                for e in range(0, 8, 2): pk("v_pk_mul_f32", T[e], X[e], X[e])
                for e in range(0, 8, 2): pk("v_pk_fma_f32", T[e], T[e], VC[0], VC[1], "op_sel_hi:[1,0,0]")
                for e in range(0, 8, 2): pk("v_pk_mul_f32", T[e], T[e], X[e])
                for e in range(8): A(f"v_exp_f32 v{T[e]}, v{T[e]}")
                for e in range(0, 8, 2): pk("v_pk_add_f32", T[e], T[e], VC[2], None, "op_sel_hi:[1,0]")
                for e in range(8): A(f"v_rcp_f32 v{T[e]}, v{T[e]}")
                A("s_nop 0")
                for e in range(0, 8, 2): pk("v_pk_mul_f32", X[e], X[e], T[e])
                store(i)
        elif epi == "res":
            unpack(X1, tp)
            for k in range(0, NX, 2): pk("v_pk_add_f32", xs[k], xs[k], tp[k])
            store(0); store(1)
            unpack(56, xs)
            for i in range(NI):
                X = xs[8*i:8*i+8]
                pk("v_pk_mul_f32", tp[4*i], X[0], X[0])
                pk("v_pk_add_f32", tp[4*i+2], X[0], X[2])
            for e in range(2, 8, 2):
                for i in range(NI):
                    X = xs[8*i:8*i+8]
                    pk("v_pk_fma_f32", tp[4*i], X[e], X[e], tp[4*i])
                    if e >= 4: pk("v_pk_add_f32", tp[4*i+2], tp[4*i+2], X[e])
            for i in range(NI):
                A(f"v_add_f32 v{20+2*i}, v{tp[4*i+2]}, v{tp[4*i+3]}")
                A(f"v_add_f32 v{21+2*i}, v{tp[4*i]}, v{tp[4*i+1]}")
            A("s_nop 1")
            for dpp in ("quad_perm:[1,0,3,2]", "quad_perm:[2,3,0,1]", "row_half_mirror"):
                for v in range(20, 20 + 2 * NI):
                    A(f"v_add_f32_dpp v{v}, v{v}, v{v} {dpp} row_mask:0xf bank_mask:0xf")
                if NI == 1: A("s_nop 1")
            A("v_and_b32 v10, 7, v1")
            if NI == 2:
                A("v_cmp_eq_u32 vcc, 1, v10")
                A("v_cndmask_b32 v20, v20, v22, vcc")
                A("v_cndmask_b32 v21, v21, v23, vcc")
            A(f"v_cmp_gt_u32 vcc, {NI}, v10")
            A("s_and_saveexec_b64 s[72:73], vcc")
            A(f"buffer_store_dwordx2 v[20:21], v{V_SA}, s[{S_ST}:{S_ST+3}], s{S_TMP+6} offen sc1")
            A("s_mov_b64 exec, s[72:73]")
        else:
            unpack(X1, tp)
            for k in range(0, NX, 2): pk("v_pk_add_f32", xs[k], xs[k], tp[k])
            round_multi(A, xs, t8, SM)
            for k in range(0, NX, 2): pk("v_pk_mul_f32", xs[k], xs[k], GB + (k & 7))
            round_multi(A, xs, t8, SM)
            unpack(X2, tp)
            for k in range(0, NX, 2): pk("v_pk_add_f32", xs[k], xs[k], tp[k])
            store(0); store(1)
        if TM:
            stamp()
            A("s_waitcnt vmcnt(0)")
            stamp(); stamp(True); stamp.flush()
        K1.TIMING = old_t
        if emb: return
        A.label(f".L{lab}_end")
        A("s_endpgm")
        A.raw(kernel_desc(name, 160, 100, 160))
        return (name, (256, 1, 1), (512 if HWV else 256, 1, 1), 4 * RG)
    A(f"v_lshlrev_b32 v11, 4, v{L}")
    A(f"v_add_u32 v12, s{S_RB}, v11")
    A(f"s_lshl_b32 s{S_TMP+4}, s{S_TMP+8}, 1")
    A(f"s_add_u32 s{S_TMP+4}, s{S_TMP+4}, s{S_TMP+9}")
    A("s_nop 7")
    A("s_nop 1")
    for tl in range(4):
        for r4 in range(4):
            A(f"ds_write_b128 v12, v[{ACC+tl*16+r4*4}:{ACC+tl*16+r4*4+3}] offset:{tl*4096 + r4*1024}")
        if tl == 1: A("s_waitcnt lgkmcnt(0)")
    A("s_waitcnt lgkmcnt(0)")
    A("s_barrier")
    A(f"s_lshl_b32 s{S_TMP+4}, s{S_TMP+4}, 12")
    A(f"v_add_u32 v12, s{S_TMP+4}, v11")
    for w in range(4):
        A(f"v_add_u32 v13, {w * RG}, v12") if w * RG + 4096 * 4 > 65535 else None
        for r4 in range(4):
            if w * RG + 4096 * 4 > 65535:
                A(f"ds_read_b128 v[{ACC+w*16+r4*4}:{ACC+w*16+r4*4+3}], v13 offset:{r4*1024}")
            else:
                A(f"ds_read_b128 v[{ACC+w*16+r4*4}:{ACC+w*16+r4*4+3}], v12 offset:{w*RG + r4*1024}")
        if w == 1:
            A("s_waitcnt lgkmcnt(4)")
            for e in range(16): pass
    A("s_waitcnt lgkmcnt(8)")
    for e in range(16):
        A(f"v_add_f32 v{ACC+e}, v{ACC+e}, v{ACC+16+e}")
    A("s_waitcnt lgkmcnt(0)")
    for e in range(16):
        A(f"v_add_f32 v{ACC+32+e}, v{ACC+32+e}, v{ACC+48+e}")
    for e in range(16):
        A(f"v_add_f32 v{ACC+e}, v{ACC+e}, v{ACC+32+e}")
    stamp()
    vm.wait("e")
    xs = list(range(ACC, ACC + 16)); tp = list(range(96, 112)); t8 = list(range(112, 120))
    def unpack(src, dst):
        for k in range(8):
            A(f"v_lshlrev_b32 v{dst[2*k]}, 16, v{src+k}")
            A(f"v_and_b32 v{dst[2*k+1]}, {SM}, v{src+k}")
    round_multi(A, xs, t8, SM)
    if epi == "gelu":
        A(f"v_mov_b32 v13, {fhex(GK1)}")
        gelu_multi(A, xs[:8], t8, 13)
        gelu_multi(A, xs[8:], t8, 13)
    elif epi == "res":
        unpack(X1, tp)
        for k in range(16): A(f"v_add_f32 v{xs[k]}, v{xs[k]}, v{tp[k]}")
    else:
        unpack(X1, tp)
        for k in range(16): A(f"v_add_f32 v{xs[k]}, v{xs[k]}, v{tp[k]}")
        round_multi(A, xs, t8, SM)
        for k in range(16): A(f"v_mul_f32 v{xs[k]}, v{xs[k]}, v{GB+k}")
        round_multi(A, xs, t8, SM)
        unpack(X2, tp)
        for k in range(16): A(f"v_add_f32 v{xs[k]}, v{xs[k]}, v{tp[k]}")
    for k in range(8):
        A(f"v_cvt_pk_bf16_f32 v{56+k}, v{xs[2*k]}, v{xs[2*k+1]}")
    if int(os.environ.get("TSG", "1")):
        OT = 16384
        A("v_and_b32 v10, 7, v8")
        A(f"s_lshl_b32 s{S_TMP+3}, s{S_TMP+8}, 2")
        A(f"s_lshl_b32 s{S_TMP+4}, s{S_TMP+9}, 12")
        A(f"s_add_u32 s{S_TMP+4}, s{S_TMP+4}, {OT}")
        for mp in range(2):
            A(f"v_or_b32 v12, s{S_TMP+3}, v7")
            A(f"v_or_b32 v12, {2*mp}, v12")
            A("v_xor_b32 v12, v12, v10")
            A("v_lshlrev_b32 v12, 4, v12")
            A("v_lshl_add_u32 v12, v8, 7, v12")
            A(f"v_add_u32 v12, s{S_TMP+4}, v12")
            A(f"ds_write_b128 v12, v[{56+4*mp}:{56+4*mp+3}]")
        A(f"v_lshrrev_b32 v10, 3, v{L}")
        A(f"v_and_b32 v12, 7, v{L}")
        A("v_xor_b32 v13, v12, v10")
        A("v_lshlrev_b32 v13, 4, v13")
        A("v_lshl_add_u32 v13, v10, 7, v13")
        A(f"s_lshl_b32 s{S_TMP+3}, s{S_WAVE}, 11")
        A(f"s_add_u32 s{S_TMP+3}, s{S_TMP+3}, {OT}")
        A(f"v_add_u32 v13, s{S_TMP+3}, v13")
        A("v_lshlrev_b32 v12, 4, v12")
        A("v_lshl_add_u32 v12, v10, 10, v12")
        A(f"s_lshl_b32 s{S_TMP+3}, s{S_M}, 16")
        A(f"s_lshl_b32 s{S_TMP+4}, s{S_WAVE}, 14")
        A(f"s_add_u32 s{S_TMP+3}, s{S_TMP+3}, s{S_TMP+4}")
        A(f"s_lshl_b32 s{S_TMP+4}, s{S_N}, 7")
        A(f"s_add_u32 s{S_TMP+3}, s{S_TMP+3}, s{S_TMP+4}")
        A(f"s_add_u32 s{S_TMP+4}, s{S_TMP+3}, 8192")
        A("s_waitcnt lgkmcnt(0)")
        A("s_barrier")
        A("ds_read_b128 v[120:123], v13")
        A("ds_read_b128 v[124:127], v13 offset:1024")
        A("s_waitcnt lgkmcnt(1)")
        A(f"buffer_store_dwordx4 v[120:123], v12, s[{S_O}:{S_O+3}], s{S_TMP+3} offen sc1")
        A("s_waitcnt lgkmcnt(0)")
        A(f"buffer_store_dwordx4 v[124:127], v12, s[{S_O}:{S_O+3}], s{S_TMP+4} offen sc1")
    else:
        for mp in range(2):
            A(f"buffer_store_dwordx4 v[{56+4*mp}:{56+4*mp+3}], v9, s[{S_O}:{S_O+3}], s{S_TMP+2} offen offset:{mp*32} {os.environ.get('G64F','sc1')}")
    if epi == "res":
        unpack(56, xs)
        A(f"v_add_f32 v20, v{xs[0]}, v{xs[1]}")
        A(f"v_mul_f32 v21, v{xs[0]}, v{xs[0]}")
        A(f"v_mul_f32 v22, v{xs[1]}, v{xs[1]}")
        for k in range(2, 16, 2):
            A(f"v_add_f32 v20, v20, v{xs[k]}")
            A(f"v_fmac_f32 v21, v{xs[k]}, v{xs[k]}")
            A(f"v_add_f32 v20, v20, v{xs[k+1]}")
            A(f"v_fmac_f32 v22, v{xs[k+1]}, v{xs[k+1]}")
        A("v_add_f32 v21, v21, v22")
        A("v_mov_b32 v22, v20")
        A("v_mov_b32 v23, v21")
        A("s_nop 1")
        A("v_permlane32_swap_b32 v20, v22")
        A("v_permlane32_swap_b32 v21, v23")
        A("s_nop 1")
        A("v_add_f32 v20, v20, v22")
        A("v_add_f32 v21, v21, v23")
        A("v_lshlrev_b32 v22, 3, v8")
        A(f"s_lshl_b32 s{S_TMP+3}, s{S_M}, 9")
        A(f"s_lshl_b32 s{S_TMP+4}, s{S_TMP+9}, 8")
        A(f"s_add_u32 s{S_TMP+3}, s{S_TMP+3}, s{S_TMP+4}")
        A(f"s_lshl_b32 s{S_TMP+4}, s{S_N}, 15")
        A(f"s_add_u32 s{S_TMP+3}, s{S_TMP+3}, s{S_TMP+4}")
        A(f"s_lshl_b32 s{S_TMP+4}, s{S_TMP+8}, 14")
        A(f"s_add_u32 s{S_TMP+3}, s{S_TMP+3}, s{S_TMP+4}")
        A("v_cmp_gt_u32 vcc, 32, v1")
        A("s_and_saveexec_b64 s[72:73], vcc")
        A(f"buffer_store_dwordx2 v[20:21], v22, s[{S_ST}:{S_ST+3}], s{S_TMP+3} offen {os.environ.get('G64F','sc1')}")
        A("s_mov_b64 exec, s[72:73]")
    if TM:
        stamp()
        A("s_waitcnt vmcnt(0)")
        stamp(); stamp(True); stamp.flush()
    K1.TIMING = old_t
    A.label(f".L{lab}_end")
    A("s_endpgm")
    A.raw(kernel_desc(name, 160, 100, 160))
    return (name, (256, 1, 1), (256, 1, 1), 4 * RG)

def gen_k3(A, emb=False): return gen_g64(A, "k3_kernel", 512, WS_HN, 2 * MB, 1024, 48, "gelu", "K3TIMING", None, emb)
def gen_k4(A, emb=False): return gen_g64(A, "k4_kernel", 512, WS_H1, 2052 * 1024, 1024, 56, "res", "K4TIMING", None, emb)
def gen_k6(A, emb=False): return gen_g64(A, "k6_kernel", 1792, WS_G, 2048 * 3584, 3584, 72, "final", "K6TIMING", None, emb)
```

```python
from asmlib import *
MB = 1 << 20
WS_MOD = 0
WS_XN = 1 * MB
WS_X2 = 4 * MB
WS_X1 = 6 * MB
WS_XN4 = 8 * MB
WS_G = 10 * MB
WS_H = 18 * MB
WS_HN = 20 * MB
WS_H1 = 22 * MB
WS_PART = 32 * MB
WS_FLAG = 26 * MB
WS_DBG = 64 * MB
LOG2E = 1.4426950408889634
import os
PREFETCH = int(os.environ.get("PREFETCH", "1"))
CODEPF = int(os.environ.get('CODEPF','1'))
WQ2 = int(os.environ.get('WQ2','0'))
K0KV = int(os.environ.get('K0KV','0'))
TLBW = int(os.environ.get('TLBW','0'))
TLBS = int(os.environ.get('TLBS','16'))
NPF = (1 + CODEPF + WQ2 + (2 if K0KV else 0) + (1 if K0KV >= 2 else 0) + (10 if TLBW else 0)) if PREFETCH else 0

def round_bf16_1(A, v, t):
    A(f"v_cvt_pk_bf16_f32 v{t}, v{v}, v{v}")
    A(f"v_lshlrev_b32 v{v}, 16, v{t}")

def round_bf16_2(A, a, b, t, smask):
    A(f"v_cvt_pk_bf16_f32 v{t}, v{a}, v{b}")
    A(f"v_lshlrev_b32 v{a}, 16, v{t}")
    A(f"v_and_b32 v{b}, {smask}, v{t}")

def ln_stats_finish(A, vsum_sq, vden, vrinv, t):
    round_bf16_1(A, vsum_sq, t)
    A(f"v_add_f32 v{vsum_sq}, {fhex(1e-5)}, v{vsum_sq}")
    round_bf16_1(A, vsum_sq, t)
    A(f"v_sqrt_f32 v{vden}, v{vsum_sq}")
    A("s_nop 0")
    round_bf16_1(A, vden, t)
    A(f"v_rcp_f32 v{vrinv}, v{vden}")
    A("s_nop 0")

def gen_k0(A):
    name = "k0_kernel"
    K0T = int(os.environ.get("K0TIMING", "0"))
    cnt = [0]
    def stamp(real=False):
        if not K0T: return
        A("s_waitcnt lgkmcnt(0)")
        A("s_memrealtime s[100:101]" if real else "s_memtime s[100:101]")
        A("s_waitcnt lgkmcnt(0)")
        A(f"v_mov_b32 v{112+cnt[0]}, s100")
        cnt[0] += 1
    kernel_header(A, name)
    stamp(True); stamp()
    A("s_cmp_ge_u32 s2, 256")
    A("s_cbranch_scc1 .Lk0_end")
    A("s_load_dwordx2 s[4:5], s[0:1], 0")
    A("s_load_dwordx4 s[8:11], s[0:1], 80")
    A("s_load_dwordx2 s[6:7], s[0:1], 112")
    A("s_load_dwordx2 s[56:57], s[0:1], 64")
    A("v_and_b32 v1, 63, v0")
    A("v_lshrrev_b32 v2, 6, v0")
    A("s_mov_b32 s40, 0xffff0000")
    A("s_waitcnt lgkmcnt(0)")
    stamp()
    make_srd(A, 12, 4, 0, 2 * MB)
    make_srd(A, 16, 6, WS_XN, 2 * MB)
    make_srd(A, 20, 8, 0, 1024)
    make_srd(A, 24, 10, 0, 512 * 6144)
    make_srd(A, 28, 6, WS_MOD, 3072 * 4)
    A("s_movk_i32 s41, 6144")
    A("s_mov_b32 s43, s2")
    A("s_cmp_lt_u32 s2, 96")
    A("s_cbranch_scc1 .Lk0_ismod")
    make_srd(A, 24, 56, 0, 512 * 3584)
    make_srd(A, 28, 6, 64 * 1024, 1792 * 4)
    A("s_movk_i32 s41, 3584")
    A("s_sub_u32 s43, s2, 96")
    A.label(".Lk0_ismod")
    A("s_lshl_b32 s3, s2, 13")
    A("v_lshlrev_b32 v3, 11, v2")
    A("v_lshl_add_u32 v3, v1, 4, v3")
    A("v_add_u32 v3, s3, v3")
    A("buffer_load_dwordx4 v[4:7], v3, s[12:15], 0 offen")
    A("buffer_load_dwordx4 v[8:11], v3, s[12:15], 0 offen offset:1024")
    A("s_cmp_ge_u32 s2, 152")
    A("s_cbranch_scc1 .Lk0_noB1")
    A("v_and_b32 v12, 3, v0")
    A("v_lshrrev_b32 v13, 2, v0")
    A("v_mul_lo_u32 v14, v13, s41")
    A("v_lshl_add_u32 v14, v12, 4, v14")
    A("s_lshl_b32 s44, s43, 6")
    A("s_lshl_b32 s42, s41, 6")
    for i in range(1, 8):
        A(f"s_add_u32 s{44+i}, s{43+i}, s42")
    A("v_lshlrev_b32 v15, 1, v13")
    for i in range(8):
        A(f"buffer_load_ushort v{16+i}, v15, s[20:23], 0 offen offset:{i*128}")
    for i in range(8):
        A(f"buffer_load_dwordx4 v[{24+4*i}:{27+4*i}], v14, s[24:27], s{44+i} offen")
    A.label(".Lk0_noB1")
    if PREFETCH:
        A("s_load_dwordx8 s[64:71], s[0:1], 8")
        A("s_load_dwordx8 s[72:79], s[0:1], 48")
        A("s_and_b32 s52, s2, 7")
        A("s_lshr_b32 s53, s2, 3")
        A("v_lshlrev_b32 v97, 6, v0")
        A("v_lshrrev_b32 v98, 4, v0")
        A("v_and_b32 v99, 15, v0")
        A("v_lshlrev_b32 v99, 6, v99")
        A("v_lshl_add_u32 v98, v98, 13, v99")
        A("v_lshlrev_b32 v99, 6, v1")
        A("s_waitcnt lgkmcnt(0)")
        make_srd(A, 80, 68, 0, 4 * MB if int(os.environ.get("WQPF","1")) else 0)
        A("s_lshl_b32 s54, s53, 17")
        A("s_lshl_b32 s55, s52, 10")
        A("s_add_u32 s54, s54, s55")
        A("buffer_load_dword v100, v98, s[80:83], s54 offen")
        if WQ2:
            A("s_xor_b32 s54, s54, 1024")
            A("buffer_load_dword v102, v98, s[80:83], s54 offen")
        if CODEPF:
            A("s_getpc_b64 s[84:85]")
            A.label(".Lk0_pc")
            A("s_mov_b32 s86, .Lcode_end-.Lk0_pc")
            A("s_mov_b32 s87, 0x00020000")
            A("s_lshl_b32 s54, s53, 12")
            A("buffer_load_dword v101, v99, s[84:87], s54 offen")
        if K0KV:
            A("s_lshl_b32 s54, s52, 19")
            A("s_lshl_b32 s55, s53, 12")
            A("s_add_u32 s54, s54, s55")
            A(f"s_add_u32 s54, s54, {1536*256}")
            make_srd(A, 88, 64, 0, 4 * MB)
            A("buffer_load_dword v103, v99, s[88:91], s54 offen")
            make_srd(A, 92, 66, 0, 4 * MB)
            A("buffer_load_dword v104, v99, s[92:95], s54 offen")
        if K0KV >= 2:
            make_srd(A, 84, 70, 0, 4 * MB)
            A("s_lshl_b32 s54, s2, 14")
            A("buffer_load_dword v105, v97, s[84:87], s54 offen")
        if TLBW:
            A("s_lshl_b32 s54, s53, 8")
            A("v_add_u32 v106, s54, v0")
            A(f"v_lshlrev_b32 v106, {TLBS}, v106")
            A("s_load_dwordx2 s[58:59], s[0:1], 96")
            A("s_waitcnt lgkmcnt(0)")
            for (p, sz) in ((6, 64 * MB), (64, 4 * MB), (66, 4 * MB), (70, 4 * MB), (72, 512*1024), (74, 512*1024), (76, 1792*1024), (78, 1792*1024), (58, 2 * MB), (68, 4 * MB)):
                make_srd(A, 96, p, 0, sz)
                A("buffer_load_dword v107, v106, s[96:99], 0 offen")
    A("s_cmp_ge_u32 s2, 152")
    A("s_cbranch_scc1 .Lk0_w0")
    A(f"s_waitcnt vmcnt({16 + NPF})")
    A("s_branch .Lk0_w1")
    A.label(".Lk0_w0")
    A(f"s_waitcnt vmcnt({NPF})")
    A.label(".Lk0_w1")
    stamp()
    X = [64, 72]
    for r in range(2):
        for j in range(4):
            A(f"v_lshlrev_b32 v{X[r]+2*j}, 16, v{4+4*r+j}")
            A(f"v_and_b32 v{X[r]+2*j+1}, s40, v{4+4*r+j}")
    S = [80, 81]
    for r in range(2):
        A(f"v_add_f32 v{S[r]}, v{X[r]}, v{X[r]+1}")
        for j in range(2, 8):
            A(f"v_add_f32 v{S[r]}, v{S[r]}, v{X[r]+j}")
    wave_allreduce(A, "v_add_f32", S, [82, 83], [84, 85])
    M = [86, 87]; MBF = [88, 89]
    for r in range(2):
        A(f"v_mul_f32 v{M[r]}, {fhex(1/512)}, v{S[r]}")
        A(f"v_mov_b32 v{MBF[r]}, v{M[r]}")
        round_bf16_1(A, MBF[r], 90)
    for r in range(2):
        for j in range(8):
            A(f"v_sub_f32 v90, v{X[r]+j}, v{M[r]}")
            if j == 0:
                A(f"v_mul_f32 v{S[r]}, v90, v90")
            else:
                A(f"v_fmac_f32 v{S[r]}, v90, v90")
    wave_allreduce(A, "v_add_f32", S, [82, 83], [84, 85])
    DEN = [91, 92]; RINV = [93, 94]
    for r in range(2):
        A(f"v_mul_f32 v{S[r]}, {fhex(1/512)}, v{S[r]}")
        ln_stats_finish(A, S[r], DEN[r], RINV[r], 90)
    for r in range(2):
        for j in range(0, 8, 2):
            a, b = X[r] + j, X[r] + j + 1
            A(f"v_sub_f32 v{a}, v{a}, v{MBF[r]}")
            A(f"v_sub_f32 v{b}, v{b}, v{MBF[r]}")
            round_bf16_2(A, a, b, 90, "s40")
            for e in (a, b):
                A(f"v_mul_f32 v95, v{e}, v{RINV[r]}")
                A(f"v_fma_f32 v96, -v95, v{DEN[r]}, v{e}")
                A(f"v_fma_f32 v{e}, v96, v{RINV[r]}, v95")
            A(f"v_cvt_pk_bf16_f32 v{4+4*r+j//2}, v{a}, v{b}")
    A("buffer_store_dwordx4 v[4:7], v3, s[16:19], 0 offen " + os.environ.get("XNF","sc1"))
    A("buffer_store_dwordx4 v[8:11], v3, s[16:19], 0 offen offset:1024 " + os.environ.get("XNF","sc1"))
    if int(os.environ.get("MEGA", "3")):
        make_srd(A, 96, 6, WS_FLAG, 256 * 256)
        A("s_lshl_b32 s3, s2, 8")
        A("v_lshlrev_b32 v95, 2, v0")
        A("v_mov_b32 v96, 0")
        A("v_cmp_gt_u32 vcc, 64, v0")
        A("s_and_saveexec_b64 s[60:61], vcc")
        A("buffer_store_dword v96, v95, s[96:99], s3 offen sc1")
        A("s_mov_b64 exec, s[60:61]")
    stamp()
    A("s_cmp_ge_u32 s2, 152")
    A("s_cbranch_scc1 .Lk0_end")
    A(f"s_waitcnt vmcnt({10 + NPF})")
    for i in range(8):
        c = 16 + i
        A(f"v_lshlrev_b32 v{c}, 16, v{c}")
        A(f"v_mul_f32 v90, {fhex(-LOG2E)}, v{c}")
        A("v_exp_f32 v90, v90")
        A("s_nop 0")
        A("v_add_f32 v90, 1.0, v90")
        A("v_rcp_f32 v91, v90")
        A("s_nop 0")
        A(f"v_mul_f32 v92, v{c}, v91")
        A(f"v_fma_f32 v93, -v92, v90, v{c}")
        A(f"v_fma_f32 v{c}, v93, v91, v92")
        round_bf16_1(A, c, 90)
    A("s_cmp_lt_u32 s2, 96")
    A("s_cbranch_scc1 .Lk0_ismod2")
    for i in range(8):
        A(f"v_mov_b32 v{16+i}, 1.0")
    A.label(".Lk0_ismod2")
    ACC = list(range(64, 72))
    for i in range(8):
        A(f"s_waitcnt vmcnt({7-i+2+NPF})")
        for j in range(4):
            w = 24 + 4 * i + j
            A(f"v_lshlrev_b32 v90, 16, v{w}")
            A(f"v_and_b32 v91, s40, v{w}")
            if i == 0:
                A(f"v_mul_f32 v{ACC[2*j]}, v90, v{16+i}")
                A(f"v_mul_f32 v{ACC[2*j+1]}, v91, v{16+i}")
            else:
                A(f"v_fmac_f32 v{ACC[2*j]}, v90, v{16+i}")
                A(f"v_fmac_f32 v{ACC[2*j+1]}, v91, v{16+i}")
    stamp()
    A("s_nop 1")
    for dpp in ("row_ror:8", "row_ror:4"):
        for v in ACC:
            A(f"v_add_f32_dpp v{v}, v{v}, v{v} {dpp} row_mask:0xf bank_mask:0xf")
    for sw in ("v_permlane16_swap_b32", "v_permlane32_swap_b32"):
        for k, v in enumerate(ACC):
            A(f"v_mov_b32 v{72+k}, v{v}")
            A(f"v_mov_b32 v{80+k}, v{v}")
        A("s_nop 1")
        for k, v in enumerate(ACC):
            A(f"{sw} v{72+k}, v{80+k}")
        A("s_nop 1")
        for k, v in enumerate(ACC):
            A(f"v_add_f32 v{v}, v{72+k}, v{80+k}")
    A("v_lshlrev_b32 v90, 7, v2")
    A("v_lshl_add_u32 v90, v12, 5, v90")
    A("v_cmp_gt_u32 vcc, 4, v1")
    A("s_and_saveexec_b64 s[60:61], vcc")
    A("ds_write_b128 v90, v[64:67]")
    A("ds_write_b128 v90, v[68:71] offset:16")
    A("s_mov_b64 exec, s[60:61]")
    A("s_waitcnt lgkmcnt(0)")
    A("s_barrier")
    if K0T:
        stamp(); stamp(True)
        make_srd(A, 88, 6, WS_DBG, 32 * MB)
        A("v_readfirstlane_b32 s92, v2")
        A("s_lshl_b32 s93, s2, 3")
        A("s_add_u32 s93, s93, s92")
        A("s_lshl_b32 s93, s93, 7")
        A("v_mov_b32 v111, 0")
        for i in range(cnt[0]):
            A(f"buffer_store_dword v{112+i}, v111, s[88:91], s93 offen offset:{4*i}")
    A("v_cmp_gt_u32 vcc, 32, v0")
    A("s_and_saveexec_b64 s[60:61], vcc")
    A("s_cbranch_execz .Lk0_end")
    A("v_lshlrev_b32 v90, 2, v0")
    A("ds_read_b32 v64, v90")
    A("ds_read_b32 v65, v90 offset:128")
    A("ds_read_b32 v66, v90 offset:256")
    A("ds_read_b32 v67, v90 offset:384")
    A("s_waitcnt lgkmcnt(0)")
    A("v_add_f32 v64, v64, v65")
    A("v_add_f32 v66, v66, v67")
    A("v_add_f32 v64, v64, v66")
    A("s_cmp_ge_u32 s2, 96")
    A("s_cbranch_scc1 .Lk0_nornd")
    round_bf16_1(A, 64, 65)
    A.label(".Lk0_nornd")
    A("s_lshl_b32 s42, s43, 7")
    A("buffer_store_dword v64, v90, s[28:31], s42 offen")
    A.label(".Lk0_end")
    A("s_endpgm")
    A.raw(kernel_desc(name, 128, 102))
    return (name, (256, 1, 1), (256, 1, 1), 512)
```

```python
from asmlib import *
from gen_k0 import *
import os
DEBUG = int(os.environ.get("K1DEBUG", "0"))
PART_BF16 = int(os.environ.get("PARTBF16", "1"))
MIMIC = int(os.environ.get("MIMIC", "0"))
LAZY = int(os.environ.get("LAZY", "1"))
THR = float(os.environ.get("THR","30.0"))
TIMING = int(os.environ.get("TIMING", "0"))
USEPK = int(os.environ.get("USEPK", "0"))
EXPT = int(os.environ.get("EXPT", "0"))

class Cnt:
    def __init__(self, A, name, maxv):
        self.A = A; self.name = name; self.maxv = maxv; self.ops = []
    def issue(self, tag):
        self.ops.append(tag)
        assert len(self.ops) <= self.maxv + 1 or self.name == "vmcnt", (self.name, len(self.ops))
    def wait(self, tag):
        idx = None
        for i, t in enumerate(self.ops):
            if t == tag: idx = i
        if idx is None:
            return
        n = len(self.ops) - 1 - idx
        assert n <= self.maxv, (self.name, n)
        self.A(f"s_waitcnt {self.name}({n})")
        self.ops = self.ops[idx+1:]
    def waitall(self):
        self.A(f"s_waitcnt {self.name}(0)")
        self.ops = []

class Stamper:
    def __init__(self, A, lg, srd, swave, base=72):
        self.A = A; self.lg = lg; self.n = 0; self.srd = srd; self.swave = swave; self.base = base
    def __call__(self, real=False):
        if not TIMING: return
        A = self.A
        self.lg.waitall()
        A("s_memrealtime s[70:71]" if (real or TIMING == 2) else "s_memtime s[70:71]")
        A("s_waitcnt lgkmcnt(0)")
        A(f"s_mov_b32 s{self.base+self.n}, s70")
        self.n += 1
    def flush(self):
        if not TIMING: return
        A = self.A
        A(f"s_lshl_b32 s70, s2, 3")
        A(f"s_add_u32 s70, s70, s{self.swave}")
        A(f"s_lshl_b32 s70, s70, 7")
        A("v_mov_b32 v5, 0")
        for i in range(self.n):
            A(f"v_mov_b32 v6, s{self.base+i}")
            A(f"buffer_store_dword v6, v5, s[{self.srd}:{self.srd+3}], s70 offen offset:{4*i}")

ACT = 0
STG = 65536
KRING = STG + 3 * 16384
VRING = STG
V_LANE = 1
V_BADDR = 16; V_AADDR = 24; V_WQOFF = 26; V_WOOFF = 27
V_KADDR = 28; V_VADDR = 36; V_KOFF = 40; V_VOFF = 42
V_M = 43; V_L = 44; V_ALPHA = 46; V_NEGC = 48
V_QADDR = 50
V_T = 58
V_ACC = 64
V_Q = 128
V_S = 160
V_F = 224
NF = 8
RA = int(os.environ.get('RA','6'))
PRIO = int(os.environ.get('PRIO','0'))
CT = int(os.environ.get('CT','1'))
V_NB = 48
S_XN = 8; S_MOD = 12; S_WQ = 16; S_K = 20; S_V = 24; S_WO = 28; S_P = 32; S_DBG = 36
S_WAVE = 40; S_G = 41; S_M = 42; S_RB = 43; S_OFF = 44; S_MASK = 45; S_KVOFF = 46; S_KVM0 = 47
S_C1 = 48; S_K2 = 50; S_SC = 52; S_L2E = 54
S_TMP = 56
S_SL = 66
S_FLAG = 64
S_QOFF = 67
SCALE = 128 ** -0.5

def gemm_dma(A, vm, step, srd, voff, rowstride, D):
    for half in range(2):
        A(f"s_add_u32 m0, s{S_RB}, {(step % D) * 2048 + half * 1024}")
        A("s_nop 0")
        A(f"buffer_load_dwordx4 v{voff}, s[{srd}:{srd+3}], s{S_OFF} offen lds")
        vm.issue(("w", step))
        A(f"s_add_u32 s{S_OFF}, s{S_OFF}, {8 * rowstride}")

def gemm_reads(A, lg, step, D):
    buf = V_Q + (step & 1) * 16
    if (EXPT & 128) and step > 1: return
    for nb in range(2):
        for q in range(2):
            A(f"ds_read_b64_tr_b16 v[{buf+nb*4+q*2}:{buf+nb*4+q*2+1}], v{V_AADDR+nb} offset:{(step % D) * 2048 + q * 512}")
            lg.issue(("f", step))
    for rb in range(2):
        A(f"ds_read_b128 v[{buf+8+rb*4}:{buf+8+rb*4+3}], v{V_BADDR + (step & 7)} offset:{(step >> 3) * 256 + rb * 32768}")
        lg.issue(("f", step))

def gemm_core(A, vm, lg, srd, voff, rowstride, D=4, NS=32):
    vm.wait(("w", 0))
    gemm_reads(A, lg, 0, D)
    for ks in range(NS):
        if ks + 1 < NS:
            vm.wait(("w", ks + 1))
            gemm_reads(A, lg, ks + 1, D)
        lg.wait(("f", ks))
        if ks + D < NS and not (EXPT & 32):
            gemm_dma(A, vm, ks + D, srd, voff, rowstride, D)
        buf = V_Q + (ks & 1) * 16
        for nb in range(2):
            for rb in range(2):
                acc = V_ACC + (nb * 2 + rb) * 16
                c = "0" if ks == 0 else f"v[{acc}:{acc+15}]"
                if (EXPT & 64) and ks > 0: continue
                A(f"v_mfma_f32_32x32x16_bf16 v[{acc}:{acc+15}], v[{buf+nb*4}:{buf+nb*4+3}], v[{buf+8+rb*4}:{buf+8+rb*4+3}], {c}")

D6 = int(os.environ.get("D6", "1"))
V_AADDR2 = (43, 45)
def slot6(step): return (step + 2) % 6
def gemm_dma6(A, vm, step, srd, voff, rowstride):
    for half in range(2):
        A(f"s_add_u32 m0, s{S_RB}, {slot6(step) * 16384 + half * 1024}")
        A("s_nop 0")
        A(f"buffer_load_dwordx4 v{voff}, s[{srd}:{srd+3}], s{S_OFF} offen lds")
        vm.issue(("w", step))
        A(f"s_add_u32 s{S_OFF}, s{S_OFF}, {8 * rowstride}")
def gemm_reads6(A, lg, step):
    buf = V_Q + (step & 1) * 16
    sl = slot6(step)
    for nb in range(2):
        for q in range(2):
            a = V_AADDR + nb if sl < 4 else V_AADDR2[nb]
            A(f"ds_read_b64_tr_b16 v[{buf+nb*4+q*2}:{buf+nb*4+q*2+1}], v{a} offset:{(sl & 3) * 16384 + q * 512}")
            lg.issue(("f", step))
    for rb in range(2):
        A(f"ds_read_b128 v[{buf+8+rb*4}:{buf+8+rb*4+3}], v{V_BADDR + (step & 7)} offset:{(step >> 3) * 256 + rb * 32768}")
        lg.issue(("f", step))
def gemm_core6(A, vm, lg, srd, voff, rowstride, pre, tail=None, NS=32):
    for st in range(pre, 6): gemm_dma6(A, vm, st, srd, voff, rowstride)
    vm.wait(("w", 0))
    gemm_reads6(A, lg, 0)
    for ks in range(NS):
        if ks + 1 < NS:
            vm.wait(("w", ks + 1))
            gemm_reads6(A, lg, ks + 1)
        lg.wait(("f", ks))
        if ks + 6 < NS:
            gemm_dma6(A, vm, ks + 6, srd, voff, rowstride)
        elif tail: tail(ks)
        buf = V_Q + (ks & 1) * 16
        for nb in range(2):
            for rb in range(2):
                acc = V_ACC + (nb * 2 + rb) * 16
                c = "0" if ks == 0 else f"v[{acc}:{acc+15}]"
                A(f"v_mfma_f32_32x32x16_bf16 v[{acc}:{acc+15}], v[{buf+nb*4}:{buf+nb*4+3}], v[{buf+8+rb*4}:{buf+8+rb*4+3}], {c}")

def k_dma(A, vm, t):
    A(f"s_mov_b32 s{S_KVOFF}, {t * 16384}")
    A(f"s_add_u32 m0, s{S_KVM0}, {KRING + ((t + 1) % 3) * 16384}")
    A("s_nop 0")
    A(f"buffer_load_dwordx4 v{V_KOFF}, s[{S_K}:{S_K+3}], s{S_KVOFF} offen lds")
    vm.issue(("k", t))
    A(f"buffer_load_dwordx4 v{V_KOFF+1}, s[{S_K}:{S_K+3}], s{S_KVOFF} offen offset:1024 lds")
    vm.issue(("k", t))
def v_dma(A, vm, t):
    A(f"s_mov_b32 s{S_KVOFF}, {t * 16384}")
    A(f"s_add_u32 m0, s{S_KVM0}, {VRING + (t % 3) * 16384}")
    A("s_nop 0")
    A(f"buffer_load_dwordx4 v{V_VOFF}, s[{S_V}:{S_V+3}], s{S_KVOFF} offen lds")
    vm.issue(("v", t))
    A(f"buffer_load_dwordx4 v{V_VOFF}, s[{S_V}:{S_V+3}], s{S_KVOFF} offen offset:1024 lds")
    vm.issue(("v", t))

def sm_max(t):
    S = V_S + (t & 1) * 32
    mx = 2 if CT else V_T
    L = []
    L.append(f"v_max3_f32 v{mx}, v{S}, v{S+1}, v{S+2}")
    L.append(f"v_max3_f32 v{mx+1}, v{S+3}, v{S+4}, v{S+5}")
    for i in range(6, 30, 4):
        L.append(f"v_max3_f32 v{mx}, v{mx}, v{S+i}, v{S+i+1}")
        L.append(f"v_max3_f32 v{mx+1}, v{mx+1}, v{S+i+2}, v{S+i+3}")
    L.append(f"v_max3_f32 v{mx}, v{mx}, v{S+30}, v{S+31}")
    L.append(f"v_max_f32 v{mx}, v{mx}, v{mx+1}")
    L.append(f"v_mov_b32 v{mx+1}, v{mx}")
    L.append("s_nop 1")
    L.append(f"v_permlane32_swap_b32 v{mx}, v{mx+1}")
    L.append("s_nop 1")
    L.append(f"v_max_f32 v{mx}, v{mx}, v{mx+1}")
    g, d = mx + 1, mx + 2
    if CT:
        if t == 0:
            for i in range(16): L.append(f"v_sub_f32 v{V_NB+i}, 0, v{mx}")
            for i in range(32): L.append(f"v_sub_f32 v{S+i}, v{S+i}, v{mx}")
            return L
        lbl = f".Lk1_nors_{t}"
        L.append(f"v_cmp_lt_f32 vcc, {fhex(THR)}, v{mx}")
        L.append(f"s_mov_b64 s[{S_FLAG}:{S_FLAG+1}], vcc")
        L.append([f"s_cbranch_vccz {lbl}",
                  f"v_max_f32 v{mx}, 0, v{mx}",
                  f"v_sub_f32 v{V_ALPHA}, 0, v{mx}",
                  f"v_exp_f32 v{V_ALPHA}, v{V_ALPHA}"]
                 + [f"v_sub_f32 v{V_NB+i}, v{V_NB+i}, v{mx}" for i in range(16)]
                 + [f"v_sub_f32 v{S+i}, v{S+i}, v{mx}" for i in range(32)]
                 + [f"v_mul_f32 v{V_L}, v{V_L}, v{V_ALPHA}", f"{lbl}:"])
        return L
    if MIMIC:
        L.append(f"v_mul_f32 v{g}, s{S_C1}, v{mx}")
        L.append(f"v_sub_f32 v{d}, v{mx}, v{g}")
        L.append(f"v_add_f32 v{mx}, v{g}, v{d}")
        L.append(f"v_mul_f32 v{g}, s{S_K2}, v{mx}")
        L.append(f"v_fma_f32 v{d}, v{mx}, s{S_SC}, -v{g}")
        L.append(f"v_add_f32 v{mx}, v{g}, v{d}")
    else:
        L.append(f"v_mul_f32 v{mx}, s{S_SC}, v{mx}")
    if LAZY and t > 0:
        lbl = f".Lk1_nors_{t}"
        L.append(f"v_sub_f32 v{V_ALPHA}, v{V_M}, v{mx}")
        L.append(f"v_cmp_gt_f32 vcc, {fhex(-THR / LOG2E)}, v{V_ALPHA}")
        L.append(f"s_mov_b64 s[{S_FLAG}:{S_FLAG+1}], vcc")
        L.append([f"s_cbranch_vccz {lbl}",
                  f"v_max_f32 v{mx}, v{mx}, v{V_M}",
                  f"v_sub_f32 v{V_ALPHA}, v{V_M}, v{mx}",
                  f"v_mul_f32 v{V_ALPHA}, s{S_L2E}, v{V_ALPHA}",
                  f"v_exp_f32 v{V_ALPHA}, v{V_ALPHA}",
                  f"v_mov_b32 v{V_M}, v{mx}",
                  f"v_mul_f32 v{V_NEGC}, s{S_L2E}, v{mx}",
                  f"v_sub_f32 v{V_NEGC}, 0, v{V_NEGC}",
                  f"v_mul_f32 v{V_L}, v{V_L}, v{V_ALPHA}",
                  f"{lbl}:"])
        return L
    if t > 0:
        L.append(f"v_max_f32 v{mx}, v{mx}, v{V_M}")
        L.append(f"v_sub_f32 v{V_ALPHA}, v{V_M}, v{mx}")
        L.append(f"v_mul_f32 v{V_ALPHA}, s{S_L2E}, v{V_ALPHA}")
        L.append(f"v_exp_f32 v{V_ALPHA}, v{V_ALPHA}")
    L.append(f"v_mov_b32 v{V_M}, v{mx}")
    L.append(f"v_mul_f32 v{V_NEGC}, s{S_L2E}, v{mx}")
    L.append(f"v_sub_f32 v{V_NEGC}, 0, v{V_NEGC}")
    return L

PSUM = 10
def sm_quarter(t, q):
    S = V_S + (t & 1) * 32
    L = []
    pairs = list(range(8 * q, 8 * q + 8, 2))
    def pre(i):
        x = f"v[{S+i}:{S+i+1}]"
        k = (i >> 1) & 1
        g = f"v[{2+4*k}:{3+4*k}]"; d = f"v[{4+4*k}:{5+4*k}]"
        if CT:
            return []
        if not USEPK:
            out = []
            xs = [S + i, S + i + 1]; gs = [2 + 4 * k, 3 + 4 * k]; ds = [4 + 4 * k, 5 + 4 * k]
            if MIMIC:
                for op in range(7):
                    for e in range(2):
                        x_, g_, d_ = xs[e], gs[e], ds[e]
                        out.append([f"v_mul_f32 v{g_}, s{S_C1}, v{x_}",
                                    f"v_sub_f32 v{d_}, v{x_}, v{g_}",
                                    f"v_add_f32 v{x_}, v{g_}, v{d_}",
                                    f"v_mul_f32 v{g_}, s{S_K2}, v{x_}",
                                    f"v_fma_f32 v{d_}, v{x_}, s{S_SC}, -v{g_}",
                                    f"v_add_f32 v{x_}, v{g_}, v{d_}",
                                    f"v_fma_f32 v{x_}, v{x_}, s{S_L2E}, v{V_NEGC}"][op])
            else:
                for e in range(2):
                    out.append(f"v_fma_f32 v{xs[e]}, v{xs[e]}, s{S_SL}, v{V_NEGC}")
            return out
        if MIMIC:
            return [f"v_pk_mul_f32 {g}, {x}, s[{S_C1}:{S_C1+1}]",
                    f"v_pk_add_f32 {d}, {x}, {g} neg_lo:[0,1] neg_hi:[0,1]",
                    f"v_pk_add_f32 {x}, {g}, {d}",
                    f"v_pk_mul_f32 {g}, {x}, s[{S_K2}:{S_K2+1}]",
                    f"v_pk_fma_f32 {d}, {x}, s[{S_SC}:{S_SC+1}], {g} neg_lo:[0,0,1] neg_hi:[0,0,1]",
                    f"v_pk_add_f32 {x}, {g}, {d}",
                    f"v_pk_fma_f32 {x}, {x}, s[{S_L2E}:{S_L2E+1}], v[{V_NEGC}:{V_NEGC+1}] op_sel_hi:[1,1,0]"]
        return [f"v_pk_mul_f32 {x}, {x}, s[{S_SC}:{S_SC+1}]",
                f"v_pk_fma_f32 {x}, {x}, s[{S_L2E}:{S_L2E+1}], v[{V_NEGC}:{V_NEGC+1}] op_sel_hi:[1,1,0]"]
    for a in range(0, 4, 2):
        p0, p1 = pre(pairs[a]), pre(pairs[a + 1])
        for x, y in zip(p0, p1):
            L += [x, y]
        for i in (pairs[a], pairs[a + 1]):
            L.append(f"v_exp_f32 v{S+i}, v{S+i}")
            L.append(f"v_exp_f32 v{S+i+1}, v{S+i+1}")
    L.append("s_nop 0")
    for i in pairs:
        if i == 0:
            L.append(f"v_mov_b32 v{PSUM}, v{S}")
            L.append(f"v_mov_b32 v{PSUM+1}, v{S+1}")
        elif USEPK:
            L.append(f"v_pk_add_f32 v[{PSUM}:{PSUM+1}], v[{PSUM}:{PSUM+1}], v[{S+i}:{S+i+1}]")
        else:
            L.append(f"v_add_f32 v{PSUM}, v{PSUM}, v{S+i}")
            L.append(f"v_add_f32 v{PSUM+1}, v{PSUM+1}, v{S+i+1}")
        L.append(f"v_cvt_pk_bf16_f32 v{S + i // 2}, v{S+i}, v{S+i+1}")
    if EXPT & 1: L = [x for x in L if not x.startswith("v_exp")]
    if EXPT & 2: L = [x for x in L if x.startswith("v_exp") or x.startswith("s_nop")]
    return L

def sm_rescale(t):
    if t == 0: return []
    if LAZY:
        lbl = f".Lk1_nors2_{t}"
        return [[f"s_cmp_eq_u64 s[{S_FLAG}:{S_FLAG+1}], 0", f"s_cbranch_scc1 {lbl}"] + [f"v_mul_f32 v{V_ACC+i}, v{V_ALPHA}, v{V_ACC+i}" for i in range(64)] + [f"{lbl}:"]]
    if not USEPK:
        return [f"v_mul_f32 v{V_ACC+i}, v{V_ALPHA}, v{V_ACC+i}" for i in range(64)]
    return [f"v_pk_mul_f32 v[{V_ACC+i}:{V_ACC+i+1}], v[{V_ACC+i}:{V_ACC+i+1}], v[{V_ALPHA}:{V_ALPHA+1}] op_sel_hi:[1,0]" for i in range(0, 64, 2)]

def sm_lupd(t):
    L = [f"v_add_f32 v{PSUM}, v{PSUM}, v{PSUM+1}"]
    if t == 0:
        L.append(f"v_mov_b32 v{V_L}, v{PSUM}")
    elif LAZY:
        L.append(f"v_add_f32 v{V_L}, v{V_L}, v{PSUM}")
    else:
        L.append(f"v_fma_f32 v{V_L}, v{V_L}, v{V_ALPHA}, v{PSUM}")
    return L

def gen_k1(A, emb=False, pre=None):
    name = "k1_kernel"
    vm = Cnt(A, "vmcnt", 63); lg = Cnt(A, "lgkmcnt", 15)
    stamp = Stamper(A, lg, S_DBG, S_WAVE)
    kernel_header(A, name)
    A("s_cmp_lt_u32 s2, 256")
    A("s_cbranch_scc1 .Lk1_go")
    A("s_endpgm")
    A.label(".Lk1_go")
    if pre: pre()
    A("s_load_dwordx4 s[60:63], s[0:1], 8")
    A("s_load_dwordx4 s[64:67], s[0:1], 24")
    A("s_load_dwordx2 s[68:69], s[0:1], 112")
    A("s_load_dwordx8 s[92:99], s[0:1], 48")
    A(f"v_and_b32 v{V_LANE}, 63, v0")
    A("v_lshrrev_b32 v2, 6, v0")
    A("s_nop 0")
    A(f"v_readfirstlane_b32 s{S_WAVE}, v2")
    KM = int(os.environ.get("K1MAP","1"))
    if KM == 1:
        A(f"s_lshr_b32 s{S_G}, s2, 5")
        A(f"s_and_b32 s{S_M}, s2, 31")
    elif KM == 4:
        A(f"s_and_b32 s{S_G}, s2, 6")
        A(f"s_lshr_b32 s{S_M}, s2, 7")
        A(f"s_or_b32 s{S_G}, s{S_G}, s{S_M}")
        A(f"s_bfe_u32 s{S_M}, s2, 0x40003")
        A(f"s_lshl_b32 s{S_M}, s{S_M}, 1")
        A(f"s_and_b32 s{S_TMP}, s2, 1")
        A(f"s_or_b32 s{S_M}, s{S_M}, s{S_TMP}")
    elif KM == 5:
        A(f"s_and_b32 s{S_G}, s2, 4")
        A(f"s_lshr_b32 s{S_M}, s2, 6")
        A(f"s_or_b32 s{S_G}, s{S_G}, s{S_M}")
        A(f"s_bfe_u32 s{S_M}, s2, 0x30003")
        A(f"s_lshl_b32 s{S_M}, s{S_M}, 2")
        A(f"s_and_b32 s{S_TMP}, s2, 3")
        A(f"s_or_b32 s{S_M}, s{S_M}, s{S_TMP}")
    elif KM == 0:
        A(f"s_and_b32 s{S_G}, s2, 7")
        A(f"s_lshr_b32 s{S_M}, s2, 3")
    else:
        nb_ = KM - 1
        A(f"s_and_b32 s{S_G}, s2, {(1 << nb_) - 1}")
        A(f"s_lshr_b32 s{S_M}, s2, {5 + nb_}")
        A(f"s_lshl_b32 s{S_M}, s{S_M}, {nb_}")
        A(f"s_or_b32 s{S_G}, s{S_G}, s{S_M}")
        A(f"s_bfe_u32 s{S_M}, s2, {hex((5 << 16) | nb_)}")
    A(f"s_mov_b32 s{S_MASK}, 0xffff0000")
    for (s, val) in ((S_C1, 65537.0), (S_K2, 65537.0 * SCALE), (S_SC, SCALE), (S_L2E, LOG2E)):
        A(f"s_mov_b32 s{s}, {fhex(val)}")
        A(f"s_mov_b32 s{s+1}, {fhex(val)}")
    L = V_LANE
    SM = f"s{S_MASK}"
    D = 4
    A(f"v_lshrrev_b32 v5, 3, v{L}")
    A(f"v_and_b32 v6, 7, v{L}")
    A("v_lshlrev_b32 v7, 1, v5")
    A("v_and_b32 v7, 4, v7")
    A("v_xor_b32 v6, v6, v7")
    A("v_lshlrev_b32 v6, 4, v6")
    A(f"v_lshl_add_u32 v{V_WQOFF}, v5, 13, v6")
    A(f"v_lshl_add_u32 v{V_WOOFF}, v5, 10, v6")
    A(f"s_lshl_b32 s{S_RB}, s{S_WAVE}, {11 if D6 else 13}")
    A(f"s_add_u32 s{S_RB}, s{S_RB}, {STG}")
    A(f"s_lshl_b32 s{S_OFF}, s{S_G}, 10")
    A(f"s_lshl_b32 s{S_TMP}, s{S_WAVE}, 7")
    A(f"s_add_u32 s{S_OFF}, s{S_OFF}, s{S_TMP}")
    A(f"v_lshrrev_b32 v5, 4, v{L}")
    A(f"v_and_b32 v6, 15, v{L}")
    A(f"s_lshl_b32 s{S_TMP}, s{S_WAVE}, 3")
    A(f"v_add_u32 v7, s{S_TMP}, v5")
    for j in range(2):
        A(f"v_add_u32 v8, {4*j}, v7")
        A("v_and_b32 v9, 15, v8")
        A("v_xor_b32 v9, v6, v9")
        A("v_lshlrev_b32 v9, 4, v9")
        A(f"v_lshl_add_u32 v{V_KOFF+j}, v7, 8, v9")
    A("v_lshlrev_b32 v9, 2, v5")
    A("v_xor_b32 v9, v6, v9")
    A("v_lshlrev_b32 v9, 4, v9")
    A(f"v_lshl_add_u32 v{V_VOFF}, v7, 8, v9")
    A(f"s_lshl_b32 s{S_KVM0}, s{S_WAVE}, 11")
    A(f"v_lshrrev_b32 v5, 5, v{L}")
    A(f"v_bfe_u32 v6, v{L}, 4, 1")
    A(f"v_bfe_u32 v7, v{L}, 2, 2")
    A(f"v_and_b32 v8, 1, v{L}")
    A(f"v_bfe_u32 v9, v{L}, 1, 1")
    A("v_lshl_or_b32 v8, v8, 1, v9")
    A("v_lshlrev_b32 v8, 3, v8")
    A("v_lshl_add_u32 v8, v6, 5, v8")
    A("v_lshl_add_u32 v10, v5, 3, v7")
    A("v_lshrrev_b32 v11, 1, v7")
    for nb in range(2):
        A(f"v_xor_b32 v12, {nb}, v11")
        A("v_lshl_add_u32 v12, v12, 6, v8")
        A("v_lshl_add_u32 v12, v10, 7, v12")
        A(f"v_add_u32 v{V_AADDR+nb}, s{S_RB}, v12")
        if D6: A(f"v_add_u32 v{V_AADDR2[nb]}, 65536, v{V_AADDR+nb}")
    for db in range(4):
        A(f"v_xor_b32 v12, {db}, v7")
        A("v_lshl_add_u32 v12, v12, 6, v8")
        A(f"v_lshl_add_u32 v12, v10, 8, v12")
        A(f"v_add_u32 v{V_VADDR+db}, {VRING}, v12")
    A(f"v_and_b32 v6, 31, v{L}")
    for j in range(8):
        A(f"v_or_b32 v7, {2*j}, v5")
        A("v_xor_b32 v7, v7, v6")
        A("v_and_b32 v7, 15, v7")
        A("v_lshlrev_b32 v7, 4, v7")
        A(f"v_lshl_add_u32 v{V_BADDR+j}, v6, 10, v7")
    A("v_and_b32 v7, 0x13, v6")
    A("v_bfe_u32 v8, v6, 2, 1")
    A("v_lshl_or_b32 v7, v8, 3, v7")
    A("v_bfe_u32 v8, v6, 3, 1")
    A("v_lshl_or_b32 v7, v8, 2, v7")
    for j in range(8):
        A(f"v_or_b32 v8, {2*j}, v5")
        A("v_xor_b32 v8, v8, v7")
        A("v_and_b32 v8, 15, v8")
        A("v_lshlrev_b32 v8, 4, v8")
        A(f"v_lshl_add_u32 v8, v7, 8, v8")
        A(f"v_add_u32 v{V_KADDR+j}, {KRING}, v8")
    A(f"s_lshl_b32 s{S_TMP}, s{S_WAVE}, 3")
    A(f"v_and_b32 v14, 48, v{L}")
    for i in range(8):
        A(f"s_add_u32 s{S_TMP+1}, s{S_TMP}, {i}")
        A(f"v_xor_b32 v15, s{S_TMP+1}, v{L}")
        A("v_and_or_b32 v15, v15, 15, v14")
        A("v_lshlrev_b32 v15, 4, v15")
        A(f"s_lshl_b32 s{S_TMP+1}, s{S_TMP+1}, 10")
        A(f"v_add_u32 v{V_QADDR+i}, s{S_TMP+1}, v15")
    A(f"s_lshl_b32 s{S_TMP}, s{S_M}, 16")
    A(f"s_lshl_b32 s{S_TMP+1}, s{S_WAVE}, 13")
    A(f"s_add_u32 s{S_TMP}, s{S_TMP}, s{S_TMP+1}")
    A(f"s_add_u32 s{S_TMP+1}, s{S_TMP}, 4096")
    A(f"v_lshlrev_b32 v12, 4, v{L}")
    A(f"v_lshlrev_b32 v13, 5, v{L}")
    A("s_waitcnt lgkmcnt(0)")
    make_srd(A, S_XN, 68, WS_XN, 2 * MB)
    make_srd(A, S_MOD, 68, WS_MOD, 3072 * 4)
    XR = V_S
    SA = V_S + 32; CA = V_S + 40
    A(f"buffer_load_dwordx4 v[{CA}:{CA+3}], v13, s[{S_MOD}:{S_MOD+3}], 0 offen offset:2048"); vm.issue("mod")
    A(f"buffer_load_dwordx4 v[{CA+4}:{CA+7}], v13, s[{S_MOD}:{S_MOD+3}], 0 offen offset:2064"); vm.issue("mod")
    A(f"buffer_load_dwordx4 v[{SA}:{SA+3}], v13, s[{S_MOD}:{S_MOD+3}], 0 offen"); vm.issue("mod")
    A(f"buffer_load_dwordx4 v[{SA+4}:{SA+7}], v13, s[{S_MOD}:{S_MOD+3}], 0 offen offset:16"); vm.issue("mod")
    for i in range(8):
        A(f"buffer_load_dwordx4 v[{XR+4*i}:{XR+4*i+3}], v12, s[{S_XN}:{S_XN+3}], s{S_TMP + (i >> 2)} offen offset:{(i & 3) * 1024}")
        vm.issue(("x", i))
    make_srd(A, S_WQ, 64, 0, 4 * MB)
    if D6: gemm_dma6(A, vm, 0, S_WQ, V_WQOFF, 8192)
    else: gemm_dma(A, vm, 0, S_WQ, V_WQOFF, 8192, D)
    A(f"s_lshl_b32 s{S_TMP}, s{S_G}, 19")
    A(f"s_add_u32 s{S_TMP+1}, s{S_TMP}, {1536 * 256}")
    make_srd(A, S_K, 60, f"s{S_TMP+1}", 512 * 256)
    make_srd(A, S_V, 62, f"s{S_TMP+1}", 512 * 256)
    make_srd(A, S_WO, 66, f"s{S_TMP}", 512 * 1024)
    psz = 2 if PART_BF16 else 4
    A(f"s_mov_b32 s{S_SL}, {fhex(SCALE*LOG2E)}")
    A(f"s_mul_i32 s{S_TMP+2}, s{S_G}, {2048 * 512 * psz}")
    A(f"s_add_u32 s{S_TMP+2}, s{S_TMP+2}, {WS_PART}")
    make_srd(A, S_P, 68, f"s{S_TMP+2}", 2048 * 512 * psz)
    if DEBUG or TIMING:
        make_srd(A, S_DBG, 68, WS_DBG, 32 * MB)
    stamp(True); stamp()
    vm.wait("mod")
    for j in range(0, 8, 2):
        A(f"v_add_f32 v{CA+j}, 1.0, v{CA+j}")
        A(f"v_add_f32 v{CA+j+1}, 1.0, v{CA+j+1}")
        round_bf16_2(A, CA + j, CA + j + 1, V_T, SM)
    for i in range(8):
        x = XR + 4 * i
        vm.wait(("x", i))
        for j in range(4):
            a = 2 + 2 * j
            A(f"v_lshlrev_b32 v{a}, 16, v{x+j}")
            A(f"v_and_b32 v{a+1}, {SM}, v{x+j}")
        for j in range(8):
            A(f"v_mul_f32 v{2+j}, v{2+j}, v{CA+j}")
        for j in range(4):
            a = 2 + 2 * j
            A(f"v_cvt_pk_bf16_f32 v{x+j}, v{a}, v{a+1}")
        for j in range(4):
            a = 2 + 2 * j
            A(f"v_lshlrev_b32 v{a}, 16, v{x+j}")
            A(f"v_and_b32 v{a+1}, {SM}, v{x+j}")
        for j in range(8):
            A(f"v_add_f32 v{2+j}, v{2+j}, v{SA+j}")
        for j in range(4):
            a = 2 + 2 * j
            A(f"v_cvt_pk_bf16_f32 v{x+j}, v{a}, v{a+1}")
        A(f"ds_write_b128 v{V_QADDR+i}, v[{x}:{x+3}]")
        lg.issue("hw")
        if D6:
            if i in (1, 3, 5, 6, 7): gemm_dma6(A, vm, {1: 1, 3: 2, 5: 3, 6: 4, 7: 5}[i], S_WQ, V_WQOFF, 8192)
        elif i in (1, 3, 5):
            gemm_dma(A, vm, (i + 1) // 2, S_WQ, V_WQOFF, 8192, D)
    if not D6:
        k_dma(A, vm, 0)
        k_dma(A, vm, 1)
    if PREFETCH:
        A(f"v_lshlrev_b32 v5, 6, v{L}")
        A(f"s_lshl_b32 s{S_TMP}, s{S_M}, 12")
        A(f"buffer_load_dword v15, v5, s[{S_K}:{S_K+3}], s{S_TMP} offen"); vm.issue("pf")
        A(f"buffer_load_dword v15, v5, s[{S_V}:{S_V+3}], s{S_TMP} offen"); vm.issue("pf")
    lg.waitall()
    stamp()
    A("s_barrier")
    stamp()
    if D6:
        def tail1(ks):
            if ks == 26: k_dma(A, vm, 0)
            if ks == 27: k_dma(A, vm, 1)
            if ks == 28: v_dma(A, vm, 0)
            if ks == 29: v_dma(A, vm, 1)
            if ks == 31: k_dma(A, vm, 2)
        gemm_core6(A, vm, lg, S_WQ, V_WQOFF, 8192, 6, tail1)
    else:
        gemm_core(A, vm, lg, S_WQ, V_WQOFF, 8192, D)
    stamp()
    A("s_barrier")
    if not D6:
        v_dma(A, vm, 0)
        k_dma(A, vm, 2)
        v_dma(A, vm, 1)
    A(f"s_and_b32 s{S_TMP}, s{S_WAVE}, 1")
    A(f"s_lshr_b32 s{S_TMP+1}, s{S_WAVE}, 1")
    A(f"s_lshl_b32 s{S_TMP+1}, s{S_TMP+1}, 8")
    A(f"s_cmp_eq_u32 s{S_TMP}, 1")
    A(f"s_cselect_b64 vcc, -1, 0")
    A(f"v_mov_b32 v{V_ALPHA}, s{S_SL}")
    for j in range(4):
        A(f"v_cndmask_b32 v{2+j}, v{V_BADDR+j}, v{V_BADDR+4+j}, vcc")
        A(f"v_add_u32 v{2+j}, s{S_TMP+1}, v{2+j}")
    for nb in range(2):
        for rb in range(2):
            acc = V_ACC + (nb * 2 + rb) * 16
            for mp in range(2):
                d = V_S + (nb * 4 + rb * 2 + mp) * 4
                if CT:
                    for e in range(8):
                        A(f"v_mul_f32 v{acc+8*mp+e}, v{V_ALPHA}, v{acc+8*mp+e}")
                for e in range(4):
                    A(f"v_cvt_pk_bf16_f32 v{d+e}, v{acc+8*mp+2*e}, v{acc+8*mp+2*e+1}")
                A(f"ds_write_b128 v{2+2*nb+mp}, v[{d}:{d+3}] offset:{rb*32768}")
                lg.issue("qw")
                if DEBUG:
                    A(f"v_and_b32 v8, 31, v{L}")
                    A(f"v_lshrrev_b32 v9, 5, v{L}")
                    A("v_lshlrev_b32 v8, 13, v8")
                    A("v_lshl_add_u32 v8, v9, 4, v8")
                    A(f"s_lshl_b32 s{S_TMP+2}, s{S_M}, 19")
                    A(f"s_lshl_b32 s{S_TMP+3}, s{S_G}, 10")
                    A(f"s_add_u32 s{S_TMP+2}, s{S_TMP+2}, s{S_TMP+3}")
                    A(f"s_lshl_b32 s{S_TMP+3}, s{S_WAVE}, 7")
                    A(f"s_add_u32 s{S_TMP+2}, s{S_TMP+2}, s{S_TMP+3}")
                    A(f"s_add_u32 s{S_TMP+2}, s{S_TMP+2}, {rb*32*8192 + nb*64 + mp*32}")
                    A(f"buffer_store_dwordx4 v[{d}:{d+3}], v8, s[{S_DBG}:{S_DBG+3}], s{S_TMP+2} offen")
                    vm.issue("dbg")
    A(f"s_and_b32 s{S_TMP}, s{S_WAVE}, 3")
    A(f"s_lshl_b32 s{S_TMP}, s{S_TMP}, 8")
    A(f"s_lshr_b32 s{S_TMP+1}, s{S_WAVE}, 2")
    A(f"s_lshl_b32 s{S_TMP+1}, s{S_TMP+1}, 15")
    A(f"s_add_u32 s{S_QOFF}, s{S_TMP}, s{S_TMP+1}")
    for j in range(8):
        A(f"v_add_u32 v{V_QADDR+j}, s{S_QOFF}, v{V_BADDR+j}")
    lg.waitall()
    vm.wait(("k", 0))
    A("s_barrier")
    stamp()
    if PRIO:
        A(f"s_cmp_lt_u32 s{S_WAVE}, 4")
        A("s_cbranch_scc1 .Lk1_noprio" if PRIO == 1 else "s_cbranch_scc0 .Lk1_noprio")
        A("s_setprio 1")
        A.label(".Lk1_noprio")
    for j in range(8):
        A(f"ds_read_b128 v[{V_Q+4*j}:{V_Q+4*j+3}], v{V_QADDR+j}")
        lg.issue("q")
    seq = []
    for kb in range(2):
        for j in range(8):
            seq.append(("k", 0, kb, j))
    for t in range(8):
        if t > 0:
            for db in range(4): seq.append(("v", t - 1, 3, db))
        if t + 1 < 8:
            for kb in range(2):
                for j in range(8): seq.append(("k", t + 1, kb, j))
        for ks in range(3):
            for db in range(4): seq.append(("v", t, ks, db))
    for db in range(4): seq.append(("v", 7, 3, db))
    state = {"issued": 0, "limit": 0}
    def issue_frag(i):
        kind, t, a, b = seq[i]
        f = V_F + (i % NF) * 4
        if (EXPT & 4) and i >= 8: return
        if (EXPT & 16) and (i & 1): return
        if kind == "k":
            A(f"ds_read_b128 v[{f}:{f+3}], v{V_KADDR+b} offset:{((t + 1) % 3) * 16384 + a * 8192}")
            lg.issue(("fr", i))
        else:
            o = (t % 3) * 16384 + a * 4096
            A(f"ds_read_b64_tr_b16 v[{f}:{f+1}], v{V_VADDR+b} offset:{o}")
            lg.issue(("fr", i))
            A(f"ds_read_b64_tr_b16 v[{f+2}:{f+3}], v{V_VADDR+b} offset:{o + 1024}")
            lg.issue(("fr", i))
    def avail(i, epoch):
        kind, t, a, b = seq[i]
        return (t - 1 <= epoch) if kind == "k" else (t <= epoch)
    def runahead(cur, epoch):
        while state["issued"] < len(seq) and state["issued"] <= cur + RA and avail(state["issued"], epoch):
            issue_frag(state["issued"]); state["issued"] += 1
    def mfma(i, epoch):
        kind, t, a, b = seq[i]
        runahead(i - 1, epoch)
        assert state["issued"] > i
        f = V_F + (i % NF) * 4
        lg.wait(("fr", i))
        if kind == "k":
            s = V_S + (t & 1) * 32 + a * 16
            c = ("0" if (t == 0 or not CT) else f"v[{V_NB}:{V_NB+15}]") if b == 0 else f"v[{s}:{s+15}]"
            A(f"v_mfma_f32_32x32x16_bf16 v[{s}:{s+15}], v[{f}:{f+3}], v[{V_Q+4*b}:{V_Q+4*b+3}], {c}")
        else:
            o = V_ACC + b * 16
            p = V_S + (t & 1) * 32 + 4 * a
            c = "0" if (t == 0 and a == 0) else f"v[{o}:{o+15}]"
            A(f"v_mfma_f32_32x32x16_bf16 v[{o}:{o+15}], v[{f}:{f+3}], v[{p}:{p+3}], {c}")
        runahead(i, epoch)
    def seg(idx, n, valu, epoch):
        nv = len(valu); k = 0
        def em(x):
            if isinstance(x, list):
                for y in x:
                    if y.endswith(":"): A.label(y[:-1])
                    else: A(y)
            else: A(x)
        if n == 0:
            for x in valu: em(x)
            return idx
        for m_ in range(n):
            mfma(idx + m_, epoch)
            upto = (nv * (m_ + 1) + n - 1) // n
            while k < upto:
                em(valu[k]); k += 1
        return idx + n
    idx = seg(0, 16, [], -1)
    for t in range(8):
        if t + 1 < 8: vm.wait(("k", t + 1))
        vm.wait(("v", t))
        if not (EXPT & 8): A("s_barrier")
        if t >= 0 and t + 3 < 8: k_dma(A, vm, t + 3)
        if t >= 1 and t + 1 < 8: v_dma(A, vm, t + 1)
        PFMODE = int(os.environ.get("PFMODE", "1"))
        if PREFETCH and t == 1:
            A("v_lshlrev_b32 v12, 6, v0")
            A(f"s_lshl_b32 s{S_TMP}, s{S_M}, 14")
            A(f"s_add_u32 s{S_TMP+1}, s{S_TMP}, 16384")
            A(f"s_mov_b32 s{S_XN}, s{S_WO}")
            A(f"s_mov_b32 s{S_XN+1}, s{S_WO+1}")
            A(f"s_mov_b32 s{S_XN+2}, s{S_TMP+1}")
            A(f"buffer_load_dword v15, v12, s[{S_XN}:{S_XN+3}], s{S_TMP} offen"); vm.issue("pf")
        if PREFETCH and PFMODE < 2:
            for (tt, p, sz) in ((2, 92, 512*1024), (2, 94, 512*1024), (3, 96, 1792*1024), (4, 98, 1792*1024)):
                if t != (1 if PFMODE == 0 else tt): continue
                per = sz // 256
                if p == 96 and int(os.environ.get("K5N", "0")): per = (56 * int(os.environ.get('W3S', '32768')) // 256 + 63) // 64 * 64
                A(f"s_mul_i32 s{S_TMP}, s2, {per}")
                if p == 96 and int(os.environ.get("K5N", "0")):
                    A(f"s_add_u32 s{S_TMP}, s{S_TMP}, {28 * MB}")
                    p = 68
                make_srd(A, S_XN, p, f"s{S_TMP}", per)
                A(f"buffer_load_dword v15, v12, s[{S_XN}:{S_XN+3}], 0 offen"); vm.issue("pf")
        if t == 7 and D6:
            A(f"s_lshl_b32 s{S_OFF}, s{S_WAVE}, 7")
            for st in range(4):
                gemm_dma6(A, vm, st, S_WO, V_WOOFF, 1024)
        elif t == 7:
            A(f"s_add_u32 s{S_RB}, s{S_RB}, 32768")
            A(f"s_lshl_b32 s{S_OFF}, s{S_WAVE}, 7")
            for nb in range(2):
                A(f"v_add_u32 v{V_AADDR+nb}, 32768, v{V_AADDR+nb}")
            for st in range(D):
                gemm_dma(A, vm, st, S_WO, V_WOOFF, 1024, D)
        mxl = sm_max(t)
        if t == 0:
            mxl = ["s_nop 7", "s_nop 3"] + mxl
        idx = seg(idx, 4 if t > 0 else 0, mxl, t)
        b = sm_quarter(t, 0) + sm_rescale(t) + sm_quarter(t, 1) + ["s_nop 1"]
        idx = seg(idx, 16 if t + 1 < 8 else 0, b, t)
        q3 = sm_quarter(t, 3)
        h = len(q3) // 3
        idx = seg(idx, 8, sm_quarter(t, 2) + ["s_nop 1"] + q3[:h], t)
        idx = seg(idx, 4, q3[h:] + sm_lupd(t) + ["s_nop 1"], t)
        stamp()
    idx = seg(idx, 4, [], 7)
    assert idx == len(seq)
    A(f"v_mov_b32 v2, v{V_L}")
    A(f"v_mov_b32 v3, v{V_L}")
    A("s_nop 1")
    A(f"v_permlane32_swap_b32 v2, v3")
    A("s_nop 1")
    A(f"v_add_f32 v{V_L}, v2, v3")
    for j in range(8):
        A(f"v_add_u32 v{V_QADDR+j}, s{S_QOFF}, v{V_BADDR+j}")
    A(f"v_rcp_f32 v{V_ALPHA}, v{V_L}")
    A("s_nop 7")
    A("s_nop 3")
    for db in range(4):
        o = V_ACC + db * 16
        for mp in range(2):
            d = V_S + (db * 2 + mp) * 4
            for e in range(0, 8, 2):
                A(f"v_pk_mul_f32 v[{o+8*mp+e}:{o+8*mp+e+1}], v[{o+8*mp+e}:{o+8*mp+e+1}], v[{V_ALPHA}:{V_ALPHA+1}] op_sel_hi:[1,0]")
            for e in range(4):
                A(f"v_cvt_pk_bf16_f32 v{d+e}, v{o+8*mp+2*e}, v{o+8*mp+2*e+1}")
            A(f"ds_write_b128 v{V_QADDR+2*db+mp}, v[{d}:{d+3}]")
            lg.issue("ow")
            if DEBUG:
                A(f"v_and_b32 v5, 31, v{L}")
                A(f"v_lshrrev_b32 v6, 5, v{L}")
                A("v_lshlrev_b32 v5, 13, v5")
                A("v_lshl_add_u32 v5, v6, 4, v5")
                A(f"s_lshl_b32 s{S_TMP+2}, s{S_M}, 19")
                A(f"s_lshl_b32 s{S_TMP+3}, s{S_G}, 10")
                A(f"s_add_u32 s{S_TMP+2}, s{S_TMP+2}, s{S_TMP+3}")
                A(f"s_and_b32 s{S_TMP+3}, s{S_WAVE}, 3")
                A(f"s_lshl_b32 s{S_TMP+3}, s{S_TMP+3}, 8")
                A(f"s_add_u32 s{S_TMP+2}, s{S_TMP+2}, s{S_TMP+3}")
                A(f"s_lshr_b32 s{S_TMP+3}, s{S_WAVE}, 2")
                A(f"s_lshl_b32 s{S_TMP+3}, s{S_TMP+3}, 18")
                A(f"s_add_u32 s{S_TMP+2}, s{S_TMP+2}, s{S_TMP+3}")
                A(f"s_add_u32 s{S_TMP+2}, s{S_TMP+2}, {16*MB + db*64 + mp*32}")
                A(f"buffer_store_dwordx4 v[{d}:{d+3}], v5, s[{S_DBG}:{S_DBG+3}], s{S_TMP+2} offen")
                vm.issue("dbg")
    lg.waitall()
    A("s_barrier")
    stamp()
    if D6: gemm_core6(A, vm, lg, S_WO, V_WOOFF, 1024, 4)
    else: gemm_core(A, vm, lg, S_WO, V_WOOFF, 1024, D)
    stamp()
    if int(os.environ.get("TSTORE", "1")) and PART_BF16:
        A(f"v_and_b32 v5, 31, v{L}")
        A(f"v_lshrrev_b32 v6, 5, v{L}")
        A("v_and_b32 v7, 7, v5")
        if D6:
            A("v_lshrrev_b32 v8, 4, v5")
            A("v_and_b32 v5, 15, v5")
            A("v_lshl_add_u32 v5, v8, 7, v5")
        for j in range(4):
            A(f"v_or_b32 v8, {2*j}, v6")
            A("v_xor_b32 v8, v8, v7")
            A("v_lshlrev_b32 v8, 4, v8")
            A("v_lshl_add_u32 v8, v5, 7, v8")
            A(f"v_add_u32 v{10+j}, s{S_RB}, v8")
        A(f"v_lshrrev_b32 v7, 3, v{L}")
        A(f"v_and_b32 v8, 7, v{L}")
        A("v_xor_b32 v9, v8, v7")
        A("v_lshlrev_b32 v9, 4, v9")
        A("v_lshl_add_u32 v9, v7, 7, v9")
        A(f"v_add_u32 v9, s{S_RB}, v9")
        A("v_lshlrev_b32 v8, 4, v8")
        A("v_lshl_add_u32 v8, v7, 10, v8")
        A(f"s_lshl_b32 s{S_TMP}, s{S_M}, 16")
        A(f"s_lshl_b32 s{S_TMP+1}, s{S_WAVE}, 7")
        A(f"s_add_u32 s{S_TMP}, s{S_TMP}, s{S_TMP+1}")
        for nb in range(2):
            for rb in range(2):
                acc = V_ACC + (nb * 2 + rb) * 16
                for mp in range(2):
                    d = V_S + (nb * 4 + rb * 2 + mp) * 4
                    for e in range(4):
                        A(f"v_cvt_pk_bf16_f32 v{d+e}, v{acc+8*mp+2*e}, v{acc+8*mp+2*e+1}")
                    A(f"ds_write_b128 v{10+2*nb+mp}, v[{d}:{d+3}] offset:{rb*(32768 if D6 else 4096)}")
        A("s_waitcnt lgkmcnt(0)")
        for i in range(8):
            A(f"ds_read_b128 v[{V_S+32+4*i}:{V_S+32+4*i+3}], v9 offset:{((i >> 1) * 16384 + (i & 1) * 1024) if D6 else i*1024}")
        for i in range(8):
            A(f"s_waitcnt lgkmcnt({7-i})")
            A(f"buffer_store_dwordx4 v[{V_S+32+4*i}:{V_S+32+4*i+3}], v8, s[{S_P}:{S_P+3}], s{S_TMP} offen {os.environ.get('PSTF','sc1')}")
            if i < 7: A(f"s_add_u32 s{S_TMP}, s{S_TMP}, 8192")
    else:
        A(f"v_and_b32 v5, 31, v{L}")
        A(f"v_lshrrev_b32 v6, 5, v{L}")
        sh = 10 if PART_BF16 else 11
        A(f"v_lshlrev_b32 v5, {sh}, v5")
        A(f"v_lshl_add_u32 v5, v6, {4 if PART_BF16 else 5}, v5")
        A(f"s_lshl_b32 s{S_TMP}, s{S_M}, {sh + 6}")
        A(f"s_lshl_b32 s{S_TMP+1}, s{S_WAVE}, {7 if PART_BF16 else 8}")
        A(f"s_add_u32 s{S_TMP}, s{S_TMP}, s{S_TMP+1}")
        A(f"s_add_u32 s{S_TMP+1}, s{S_TMP}, {32 << sh}")
        A("s_nop 7")
        A("s_nop 3")
        for nb in range(2):
            for rb in range(2):
                acc = V_ACC + (nb * 2 + rb) * 16
                for mp in range(2):
                    if PART_BF16:
                        d = V_S + (nb * 4 + rb * 2 + mp) * 4
                        for e in range(4):
                            A(f"v_cvt_pk_bf16_f32 v{d+e}, v{acc+8*mp+2*e}, v{acc+8*mp+2*e+1}")
                        A(f"buffer_store_dwordx4 v[{d}:{d+3}], v5, s[{S_P}:{S_P+3}], s{S_TMP+rb} offen offset:{(32*nb+16*mp)*2} {os.environ.get('PSTF','sc1')}")
                    else:
                        for h4 in range(2):
                            A(f"buffer_store_dwordx4 v[{acc+8*mp+4*h4}:{acc+8*mp+4*h4+3}], v5, s[{S_P}:{S_P+3}], s{S_TMP+rb} offen offset:{(32*nb+16*mp+4*h4)*4}")
    if TIMING:
        A("s_waitcnt vmcnt(0)")
        stamp(); stamp(True)
        stamp.flush()
    if emb: return
    A("s_endpgm")
    A.raw(kernel_desc(name, 256, 102, 256))
    return (name, (256, 1, 1), (512, 1, 1), 163840)
```

```python
from asmlib import *
from gen_k0 import *
import gen_k1 as K1
from gen_k1 import Cnt, Stamper
import os
K5T = int(os.environ.get('K5TIMING','0'))
from gen_ka import gelu_multi, round_multi, GK1, GK0
from gen_g64 import WS_STAT, WS_CS

def gen_k5(A, emb=False):
    name = "k5_kernel"
    vm = Cnt(A, "vmcnt", 63); lg = Cnt(A, "lgkmcnt", 15)
    S_A = 8; S_W = 16; S_O = 20
    S_WAVE = K1.S_WAVE; S_RB = K1.S_RB; S_OFF = K1.S_OFF; S_MASK = K1.S_MASK; S_TMP = K1.S_TMP
    S_M = 42; S_N = 41
    if not emb: kernel_header(A, name)
    A("s_cmp_ge_u32 s2, 224")
    A("s_cbranch_scc1 .Lk5_end")
    A("s_load_dwordx2 s[64:65], s[0:1], 64")
    A("s_load_dwordx2 s[68:69], s[0:1], 112")
    A("s_load_dwordx2 s[66:67], s[0:1], 72")
    A("v_and_b32 v1, 63, v0")
    A("v_lshrrev_b32 v2, 6, v0")
    A("s_nop 0")
    A(f"v_readfirstlane_b32 s{S_WAVE}, v2")
    if emb:
        A(f"s_cmp_lt_u32 s{S_WAVE}, 4")
        A("s_cbranch_scc1 .Lk5_main")
        A("s_waitcnt lgkmcnt(0)")
        A("s_barrier")
        A("s_branch .Lk5_end")
        A.label(".Lk5_main")
    A(f"s_and_b32 s{S_M}, s2, 31")
    A(f"s_lshr_b32 s{S_N}, s2, 5")
    A(f"s_mov_b32 s{S_MASK}, 0xffff0000")
    A("s_waitcnt lgkmcnt(0)")
    make_srd(A, S_A, 68, WS_X1, 2 * MB)
    make_srd(A, 28, 68, WS_STAT, 2048 * 128)
    make_srd(A, 32, 68, WS_CS, 1792 * 4)
    make_srd(A, S_W, 64, 0, 512 * 3584)
    make_srd(A, S_O, 68, WS_G, 2048 * 3584)
    old_t = K1.TIMING; K1.TIMING = K5T
    stamp = Stamper(A, lg, 24, S_WAVE, base=76)
    if K5T: make_srd(A, 24, 68, WS_DBG, 32 * MB)
    stamp(True); stamp()
    L = 1
    A(f"v_and_b32 v4, 48, v{L}")
    A(f"s_lshl_b32 s{S_TMP}, s{S_M}, 16")
    A(f"s_lshl_b32 s{S_TMP+1}, s{S_WAVE}, 14")
    A(f"s_add_u32 s{S_TMP}, s{S_TMP}, s{S_TMP+1}")
    for i in range(16):
        A(f"v_xor_b32 v5, {i}, v{L}")
        A("v_and_or_b32 v5, v5, 15, v4")
        A("v_lshlrev_b32 v5, 4, v5")
        A(f"s_add_u32 m0, s{S_TMP+1}, {i * 1024}")
        A(f"s_add_u32 s{S_TMP+2}, s{S_TMP}, {i * 1024}")
        A(f"buffer_load_dwordx4 v5, s[{S_A}:{S_A+3}], s{S_TMP+2} offen lds")
        vm.issue("act")
    A(f"v_lshrrev_b32 v5, 3, v{L}")
    A(f"v_and_b32 v6, 7, v{L}")
    A("v_lshlrev_b32 v7, 1, v5")
    A("v_and_b32 v7, 4, v7")
    A("v_xor_b32 v6, v6, v7")
    A("v_lshlrev_b32 v6, 4, v6")
    A(f"s_movk_i32 s{S_TMP+2}, 3584")
    A(f"v_mul_lo_u32 v5, v5, s{S_TMP+2}")
    A(f"v_add_u32 v{K1.V_WQOFF}, v5, v6")
    D = int(os.environ.get('K5D', '8'))
    A(f"s_mul_i32 s{S_RB}, s{S_WAVE}, {D*2048}")
    A(f"s_add_u32 s{S_RB}, s{S_RB}, 65536")
    A(f"s_lshl_b32 s{S_OFF}, s{S_N}, 9")
    A(f"s_lshl_b32 s{S_TMP+2}, s{S_WAVE}, 7")
    A(f"s_add_u32 s{S_OFF}, s{S_OFF}, s{S_TMP+2}")
    A(f"s_mov_b32 s{S_TMP+6}, s{S_OFF}")
    for st in range(D):
        K1.gemm_dma(A, vm, st, S_W, K1.V_WQOFF, 3584, D)
    A(f"v_lshrrev_b32 v5, 5, v{L}")
    A(f"v_bfe_u32 v6, v{L}, 4, 1")
    A(f"v_bfe_u32 v7, v{L}, 2, 2")
    A(f"v_and_b32 v8, 1, v{L}")
    A(f"v_bfe_u32 v9, v{L}, 1, 1")
    A("v_lshl_or_b32 v8, v8, 1, v9")
    A("v_lshlrev_b32 v8, 3, v8")
    A("v_lshl_add_u32 v8, v6, 5, v8")
    A("v_lshl_add_u32 v10, v5, 3, v7")
    A("v_lshrrev_b32 v11, 1, v7")
    for nb in range(2):
        A(f"v_xor_b32 v12, {nb}, v11")
        A("v_lshl_add_u32 v12, v12, 6, v8")
        A("v_lshl_add_u32 v12, v10, 7, v12")
        A(f"v_add_u32 v{K1.V_AADDR+nb}, s{S_RB}, v12")
    A(f"v_and_b32 v6, 31, v{L}")
    for j in range(8):
        A(f"v_or_b32 v7, {2*j}, v5")
        A("v_xor_b32 v7, v7, v6")
        A("v_and_b32 v7, 15, v7")
        A("v_lshlrev_b32 v7, 4, v7")
        A(f"v_lshl_add_u32 v{K1.V_BADDR+j}, v6, 10, v7")
    A("v_lshlrev_b32 v7, 3, v6")
    RT = int(os.environ.get("RT", "1"))
    NQ = 4 if RT else 8
    A(f"v_lshl_add_u32 v7, v5, {16 if RT else 17}, v7")
    A(f"s_lshl_b32 s{S_TMP+2}, s{S_M}, 9")
    ST = 192
    for q in range(NQ):
        A(f"s_add_u32 s{S_TMP+3}, s{S_TMP+2}, {q*16384}")
        for rb in range(2):
            A(f"buffer_load_dwordx2 v[{ST+16*rb+2*q}:{ST+16*rb+2*q+1}], v7, s[28:31], s{S_TMP+3} offen offset:{rb*256}"); vm.issue("st")
    CS = 224
    A("v_lshlrev_b32 v7, 5, v5")
    A(f"s_lshl_b32 s{S_TMP+2}, s{S_TMP+6}, 1")
    for nb in range(2):
        for mp in range(2):
            for h4 in range(2):
                A(f"buffer_load_dwordx4 v[{CS+(nb*2+mp)*8+4*h4}:{CS+(nb*2+mp)*8+4*h4+3}], v7, s[32:35], s{S_TMP+2} offen offset:{(32*nb+16*mp+4*h4)*4}"); vm.issue("st")
    if PREFETCH and int(os.environ.get("K5PF","0")):
        A("s_lshr_b32 s74, s2, 3")
        A("s_lshl_b32 s74, s74, 16")
        make_srd(A, 36, 66, "s74", 64 * 1024)
        A("v_lshlrev_b32 v7, 6, v0")
        for i in range(4):
            A(f"s_movk_i32 s75, {i*16384}") if i < 2 else A(f"s_mov_b32 s75, {i*16384}")
            A(f"buffer_load_dword v{14+0}, v7, s[36:39], s75 offen"); vm.issue("pf")
    stamp()
    vm.wait("act")
    stamp()
    A("s_barrier")
    stamp()
    K1.gemm_core(A, vm, lg, S_W, K1.V_WQOFF, 3584, D)
    stamp()
    TS5 = int(os.environ.get("TS5", "1")); K5F = os.environ.get("K5F", "sc1")
    A(f"s_movk_i32 s{S_TMP+2}, 3584")
    if TS5:
        A("v_and_b32 v7, 7, v6")
        for j in range(4):
            A(f"v_or_b32 v14, {2*j}, v5")
            A("v_xor_b32 v14, v14, v7")
            A("v_lshlrev_b32 v14, 4, v14")
            A("v_lshl_add_u32 v14, v6, 7, v14")
            A(f"v_add_u32 v{144+j}, s{S_RB}, v14")
        A(f"v_lshrrev_b32 v7, 3, v{L}")
        A(f"v_and_b32 v14, 7, v{L}")
        A("v_xor_b32 v148, v14, v7")
        A("v_lshlrev_b32 v148, 4, v148")
        A("v_lshl_add_u32 v148, v7, 7, v148")
        A(f"v_add_u32 v148, s{S_RB}, v148")
        A(f"v_mul_lo_u32 v7, v7, s{S_TMP+2}")
        A("v_lshl_add_u32 v149, v14, 4, v7")
    A(f"v_mul_lo_u32 v6, v6, s{S_TMP+2}")
    A("v_lshl_add_u32 v6, v5, 4, v6")
    A(f"s_mul_i32 s{S_TMP}, s{S_M}, {64*3584}")
    A(f"s_add_u32 s{S_TMP}, s{S_TMP}, s{S_TMP+6}")
    A(f"s_add_u32 s{S_TMP+1}, s{S_TMP}, {32*3584}")
    A(f"v_mov_b32 v15, {fhex(GK1)}")
    SM = f"s{S_MASK}"
    vm.wait("st")
    MU = [8, 9]; RI = [10, 11]; SD = [12, 13]; K0R = [140, 141]; K1R = [142, 143]
    FASTEPI = int(os.environ.get('FASTEPI','1'))
    PKC = [[28, 30, 32, 34], [36, 38, 40, 42]]
    for rb in range(2):
        b = ST + 16 * rb
        for k in range(2, 2 * NQ, 2):
            A(f"v_add_f32 v{b}, v{b}, v{b+k}")
            A(f"v_add_f32 v{b+1}, v{b+1}, v{b+k+1}")
        A(f"v_mov_b32 v{b+2}, v{b}")
        A(f"v_mov_b32 v{b+3}, v{b+1}")
        A("s_nop 1")
        A(f"v_permlane32_swap_b32 v{b}, v{b+2}")
        A(f"v_permlane32_swap_b32 v{b+1}, v{b+3}")
        A("s_nop 1")
        A(f"v_add_f32 v{b}, v{b}, v{b+2}")
        A(f"v_add_f32 v{b+1}, v{b+1}, v{b+3}")
        A(f"v_mul_f32 v{MU[rb]}, {fhex(1/512)}, v{b}")
        A(f"v_mul_f32 v{b+1}, {fhex(1/512)}, v{b+1}")
        A(f"v_fma_f32 v{b+1}, -v{MU[rb]}, v{MU[rb]}, v{b+1}")
        A(f"v_max_f32 v{b+1}, 0, v{b+1}")
        A(f"v_add_f32 v{b+1}, {fhex(1e-5)}, v{b+1}")
        A(f"v_rsq_f32 v{RI[rb]}, v{b+1}")
        A(f"v_sqrt_f32 v{SD[rb]}, v{b+1}")
        A("s_nop 0")
        A(f"v_mul_f32 v{K0R[rb]}, {fhex(GK0)}, v{RI[rb]}")
        A(f"v_mul_f32 v{K1R[rb]}, v{RI[rb]}, v{RI[rb]}")
        A(f"v_mul_f32 v{K1R[rb]}, v{K1R[rb]}, v{RI[rb]}")
        A(f"v_mul_f32 v{K1R[rb]}, {fhex(GK1)}, v{K1R[rb]}")
        A(f"v_sub_f32 v{PKC[rb][0]}, 0, v{MU[rb]}")
        A(f"v_mov_b32 v{PKC[rb][1]}, v{K1R[rb]}")
        A(f"v_mov_b32 v{PKC[rb][2]}, v{K0R[rb]}")
        A(f"v_mov_b32 v{PKC[rb][3]}, v{SD[rb]}")
    def flush5(rb):
        A("s_waitcnt lgkmcnt(0)")
        for i in range(4):
            A(f"ds_read_b128 v[{192+16*rb+4*i}:{192+16*rb+4*i+3}], v148 offset:{rb*4096 + i*1024}")
    def store5(rb):
        for i in range(4):
            A(f"s_waitcnt lgkmcnt({3-i})") if rb == 1 else None
            A(f"s_add_u32 s{S_TMP+3}, s{S_TMP+rb}, {i*8*3584}")
            A(f"buffer_store_dwordx4 v[{192+16*rb+4*i}:{192+16*rb+4*i+3}], v149, s[{S_O}:{S_O+3}], s{S_TMP+3} offen {K5F}")
    for rb in range(2):
        for nb in range(2):
            acc = K1.V_ACC + (nb * 2 + rb) * 16
            if TS5 and rb == 1 and nb == 1:
                A("s_waitcnt lgkmcnt(2)")
                store5(0)
            for mp in range(2):
                d = 160 + (nb * 4 + rb * 2 + mp) * 4
                xs = [acc + 8 * mp + e for e in range(8)]
                PK5 = int(os.environ.get("PK5", "1"))
                def pk(op, d_, a, b, c=None, sel=""):
                    ops = ", ".join(f"v[{x}:{x+1}]" for x in ((d_, a, b) if c is None else (d_, a, b, c)))
                    A(f"{op} {ops} {sel}".rstrip())
                if PK5:
                    ts = list(range(128, 136))
                    cs = CS + (nb * 2 + mp) * 8
                    for e in range(0, 8, 2): pk("v_pk_fma_f32", xs[e], cs + e, PKC[rb][0], xs[e], "op_sel_hi:[1,0,1]")
                    for e in range(0, 8, 2): pk("v_pk_mul_f32", ts[e], xs[e], xs[e])
                    for e in range(0, 8, 2): pk("v_pk_fma_f32", ts[e], ts[e], PKC[rb][1], PKC[rb][2], "op_sel_hi:[1,0,0]")
                    for e in range(0, 8, 2): pk("v_pk_mul_f32", ts[e], ts[e], xs[e])
                    for t in ts: A(f"v_exp_f32 v{t}, v{t}")
                    for e in range(0, 8, 2): pk("v_pk_fma_f32", ts[e], ts[e], PKC[rb][3], PKC[rb][3], "op_sel_hi:[1,0,0]")
                    for t in ts: A(f"v_rcp_f32 v{t}, v{t}")
                    A("s_nop 0")
                    for e in range(0, 8, 2): pk("v_pk_mul_f32", xs[e], xs[e], ts[e])
                elif FASTEPI:
                    for e in range(8):
                        A(f"v_fma_f32 v{xs[e]}, -v{MU[rb]}, v{CS+(nb*2+mp)*8+e}, v{xs[e]}")
                    ts = list(range(132, 140))
                    for x, t in zip(xs, ts): A(f"v_mul_f32 v{t}, v{x}, v{x}")
                    for x, t in zip(xs, ts): A(f"v_fma_f32 v{t}, v{t}, v{K1R[rb]}, v{K0R[rb]}")
                    for x, t in zip(xs, ts): A(f"v_mul_f32 v{t}, v{t}, v{x}")
                    for x, t in zip(xs, ts): A(f"v_exp_f32 v{t}, v{t}")
                    for x, t in zip(xs, ts): A(f"v_fma_f32 v{t}, v{t}, v{SD[rb]}, v{SD[rb]}")
                    for x, t in zip(xs, ts): A(f"v_rcp_f32 v{t}, v{t}")
                    for x, t in zip(xs, ts): A(f"v_mul_f32 v{x}, v{x}, v{t}")
                else:
                    for e in range(8):
                        A(f"v_mul_f32 v{xs[e]}, v{xs[e]}, v{RI[rb]}")
                    round_multi(A, xs, [128, 129, 130, 131], SM)
                    gelu_multi(A, xs, list(range(132, 140)), 15)
                for e in range(0, 8, 2):
                    A(f"v_cvt_pk_bf16_f32 v{d+e//2}, v{xs[e]}, v{xs[e+1]}")
                if TS5:
                    A(f"ds_write_b128 v{144+2*nb+mp}, v[{d}:{d+3}] offset:{rb*4096}")
                else:
                    A(f"buffer_store_dwordx4 v[{d}:{d+3}], v6, s[{S_O}:{S_O+3}], s{S_TMP+rb} offen offset:{(32*nb+16*mp)*2}")
        if TS5:
            flush5(rb)
    if TS5:
        store5(1)
    if K5T:
        stamp()
        A("s_waitcnt vmcnt(0)")
        stamp(); stamp(True); stamp.flush()
    K1.TIMING = old_t
    A.label(".Lk5_end")
    if emb: return
    A("s_endpgm")
    A.raw(kernel_desc(name, 256, 100, 256))
    return (name, (224, 1, 1), (256, 1, 1), 65536 + 4 * D * 2048)
```

```python
from asmlib import *
from gen_k0 import *
from gen_k1 import Cnt, PART_BF16, Stamper
import gen_k1
import os, math
KATIMING = int(os.environ.get("KATIMING", "0"))
KAPF3 = int(os.environ.get("KAPF3", "0"))
assert PART_BF16

RS = 1040
T_HN = 0
T_H = 16640
T_H1 = 33280
T_X1 = 49920
RING = 58240
RD = 3
RF = 8

GK0 = -2.0 * math.sqrt(2.0 / math.pi) * LOG2E
GK1 = GK0 * 0.044715
def gelu_multi(A, xs, ts, vk1):
    for x, t in zip(xs, ts): A(f"v_mul_f32 v{t}, v{x}, v{x}")
    for x, t in zip(xs, ts): A(f"v_fmaak_f32 v{t}, v{t}, v{vk1}, {fhex(GK0)}")
    for x, t in zip(xs, ts): A(f"v_mul_f32 v{t}, v{t}, v{x}")
    for x, t in zip(xs, ts): A(f"v_exp_f32 v{t}, v{t}")
    for x, t in zip(xs, ts): A(f"v_add_f32 v{t}, 1.0, v{t}")
    for x, t in zip(xs, ts): A(f"v_rcp_f32 v{t}, v{t}")
    for x, t in zip(xs, ts): A(f"v_mul_f32 v{x}, v{x}, v{t}")

def round_multi(A, xs, ts, smask):
    n = len(xs) // 2
    for i in range(n): A(f"v_cvt_pk_bf16_f32 v{ts[i]}, v{xs[2*i]}, v{xs[2*i+1]}")
    for i in range(n):
        A(f"v_lshlrev_b32 v{xs[2*i]}, 16, v{ts[i]}")
        A(f"v_and_b32 v{xs[2*i+1]}, {smask}, v{ts[i]}")

def ln_rows(A, R, smask):
    for X, T in R:
        A(f"v_add_f32 v{T[0]}, v{X[0]}, v{X[1]}")
        A(f"v_add_f32 v{T[5]}, v{X[2]}, v{X[3]}")
        A(f"v_add_f32 v{T[6]}, v{X[4]}, v{X[5]}")
        A(f"v_add_f32 v{T[7]}, v{X[6]}, v{X[7]}")
    for X, T in R:
        A(f"v_add_f32 v{T[0]}, v{T[0]}, v{T[5]}")
        A(f"v_add_f32 v{T[6]}, v{T[6]}, v{T[7]}")
    for X, T in R:
        A(f"v_add_f32 v{T[0]}, v{T[0]}, v{T[6]}")
    wave_allreduce(A, "v_add_f32", [T[0] for X, T in R], [T[5] for X, T in R], [T[6] for X, T in R])
    for X, T in R:
        A(f"v_mul_f32 v{T[1]}, {fhex(1/512)}, v{T[0]}")
    for X, T in R:
        A(f"v_cvt_pk_bf16_f32 v{T[2]}, v{T[1]}, v{T[1]}")
    for X, T in R:
        A(f"v_lshlrev_b32 v{T[2]}, 16, v{T[2]}")
    for j in range(0, 8, 2):
        for X, T in R:
            A(f"v_sub_f32 v{T[5]}, v{X[j]}, v{T[1]}")
            A(f"v_sub_f32 v{T[6]}, v{X[j+1]}, v{T[1]}")
        for X, T in R:
            if j == 0:
                A(f"v_mul_f32 v{T[0]}, v{T[5]}, v{T[5]}")
                A(f"v_mul_f32 v{T[7]}, v{T[6]}, v{T[6]}")
            else:
                A(f"v_fmac_f32 v{T[0]}, v{T[5]}, v{T[5]}")
                A(f"v_fmac_f32 v{T[7]}, v{T[6]}, v{T[6]}")
    for X, T in R:
        A(f"v_add_f32 v{T[0]}, v{T[0]}, v{T[7]}")
    for X, T in R:
        for j in range(8):
            A(f"v_sub_f32 v{X[j]}, v{X[j]}, v{T[2]}")
    wave_allreduce(A, "v_add_f32", [T[0] for X, T in R], [T[5] for X, T in R], [T[6] for X, T in R])
    for X, T in R:
        A(f"v_mul_f32 v{T[0]}, {fhex(1/512)}, v{T[0]}")
    def r1(idx):
        for X, T in R: A(f"v_cvt_pk_bf16_f32 v{T[idx]}, v{T[idx]}, v{T[idx]}")
        for X, T in R: A(f"v_lshlrev_b32 v{T[idx]}, 16, v{T[idx]}")
    r1(0)
    for X, T in R: A(f"v_add_f32 v{T[0]}, {fhex(1e-5)}, v{T[0]}")
    r1(0)
    for X, T in R: A(f"v_sqrt_f32 v{T[3]}, v{T[0]}")
    for X, T in R:
        round_multi(A, X, T[5:9], smask)
    r1(3)
    for X, T in R: A(f"v_rcp_f32 v{T[4]}, v{T[3]}")
    A("s_nop 0")
    for X, T in R:
        for j0 in range(0, 8, 2):
            for j, (a, b) in ((j0, (5, 6)), (j0 + 1, (7, 8))):
                A(f"v_mul_f32 v{T[a]}, v{X[j]}, v{T[4]}")
            for j, (a, b) in ((j0, (5, 6)), (j0 + 1, (7, 8))):
                A(f"v_fma_f32 v{T[b]}, -v{T[a]}, v{T[3]}, v{X[j]}")
            for j, (a, b) in ((j0, (5, 6)), (j0 + 1, (7, 8))):
                A(f"v_fma_f32 v{X[j]}, v{T[b]}, v{T[4]}, v{T[a]}")
    for X, T in R:
        round_multi(A, X, T[5:9], smask)

def pack8(A, X, D):
    for j in range(4):
        A(f"v_cvt_pk_bf16_f32 v{D+j}, v{X[2*j]}, v{X[2*j+1]}")

def gen_ka(A):
    name = "ka_kernel"
    vm = Cnt(A, "vmcnt", 63); lg = Cnt(A, "lgkmcnt", 15)
    S_X = 8; S_MOD = 12; S_W1 = 16; S_W2 = 20; S_PT = 24; S_X2 = 28; S_X1 = 32; S_XN4 = 36
    S_WAVE = 40; S_RB = 41; S_OFF = 42; S_MASK = 43; S_TMP = 44; S_R0 = 52; S_RSC = 53; S_DB = 56
    kernel_header(A, name)
    A("s_cmp_ge_u32 s2, 256")
    A("s_cbranch_scc1 .Lka_end")
    A("s_load_dwordx2 s[60:61], s[0:1], 0")
    A("s_load_dwordx4 s[64:67], s[0:1], 48")
    A("s_load_dwordx2 s[68:69], s[0:1], 112")
    A("s_load_dwordx2 s[62:63], s[0:1], 64")
    A("v_and_b32 v1, 63, v0")
    A("v_lshrrev_b32 v2, 6, v0")
    A("s_nop 0")
    A(f"v_readfirstlane_b32 s{S_WAVE}, v2")
    A(f"s_mov_b32 s{S_MASK}, 0xffff0000")
    A(f"s_movk_i32 s{S_RSC}, {RS}")
    VW = [4, 5]
    A("v_lshrrev_b32 v6, 3, v1")
    A("v_and_b32 v7, 7, v1")
    A("v_and_b32 v8, 2, v6")
    A("v_xor_b32 v7, v7, v8")
    A("v_lshlrev_b32 v8, 4, v7")
    A(f"v_lshl_add_u32 v{VW[0]}, v6, 10, v8")
    A("v_xor_b32 v7, 4, v7")
    A("v_lshlrev_b32 v8, 4, v7")
    A(f"v_lshl_add_u32 v{VW[1]}, v6, 10, v8")
    A(f"s_mul_i32 s{S_RB}, s{S_WAVE}, {RD*4096}")
    A(f"s_add_u32 s{S_RB}, s{S_RB}, {RING}")
    A(f"s_lshl_b32 s{S_OFF}, s{S_WAVE}, 7")
    A(f"v_lshlrev_b32 v9, 4, v1")
    A(f"v_lshlrev_b32 v10, 5, v1")
    A("s_waitcnt lgkmcnt(0)")
    make_srd(A, S_W1, 64, 0, 512 * 1024)
    make_srd(A, S_W2, 66, 0, 512 * 1024)
    make_srd(A, S_X, 60, 0, 2 * MB)
    make_srd(A, S_MOD, 68, WS_MOD, 3072 * 4)
    make_srd(A, S_PT, 68, WS_PART, 8 * 2048 * 512 * 2)
    make_srd(A, S_X2, 68, WS_X2, 2 * MB)
    make_srd(A, S_X1, 68, WS_X1, 2 * MB)
    make_srd(A, S_XN4, 68, WS_XN4, 2 * MB)
    old_t = gen_k1.TIMING
    gen_k1.TIMING = KATIMING
    stamp = Stamper(A, lg, S_DB, S_WAVE, base=76)
    if KATIMING:
        make_srd(A, S_DB, 68, WS_DBG, 32 * MB)
    stamp(True); stamp()
    SM = f"s{S_MASK}"
    AA = 11
    FIFO = 128
    P = {"issued": 0, "read": 0, "used": 0}
    def wdma(step):
        srd = S_W1 if step < 16 else S_W2
        if step == 16:
            A(f"s_lshl_b32 s{S_OFF}, s{S_WAVE}, 7")
        for q in range(4):
            A(f"s_add_u32 m0, s{S_RB}, {(step % RD) * 4096 + q * 1024}")
            A("s_nop 0")
            A(f"buffer_load_dwordx4 v{VW[q & 1]}, s[{srd}:{srd+3}], s{S_OFF} offen lds")
            vm.issue(("w", step))
            A(f"s_add_u32 s{S_OFF}, s{S_OFF}, 8192")
    def pump_issue():
        s = P["issued"]
        if s >= 32 or s - RD >= P["read"]:
            return False
        if s >= RD:
            lg.wait(("f", s - RD))
        wdma(s); P["issued"] += 1
        return True
    def pump_read():
        s = P["read"]
        if s >= 32 or s >= P["issued"] or s - RF >= P["used"]:
            return False
        vm.wait(("w", s))
        while len(lg.ops) > 7:
            lg.wait(lg.ops[0])
        buf = FIFO + (s % RF) * 16
        for nb in range(4):
            for q in range(2):
                A(f"ds_read_b64_tr_b16 v[{buf+nb*4+q*2}:{buf+nb*4+q*2+1}], v{AA+nb} offset:{(s % RD) * 4096 + q * 512}")
                lg.issue(("f", s))
        P["read"] += 1
        return True
    def pump(n=1):
        for _ in range(n):
            pump_read()
            pump_issue()
    if PREFETCH:
        A("s_lshr_b32 s3, s2, 3")
        A("s_lshl_b32 s3, s3, 14")
        A("v_and_b32 v6, 255, v0")
        A("v_lshlrev_b32 v6, 6, v6")
        A(f"s_cmp_ge_u32 s{S_WAVE}, 4")
        A("s_cbranch_scc1 .Lka_pf2")
        A(f"buffer_load_dword v3, v6, s[{S_W1}:{S_W1+3}], s3 offen")
        A("s_branch .Lka_pf3")
        A.label(".Lka_pf2")
        A(f"buffer_load_dword v3, v6, s[{S_W2}:{S_W2+3}], s3 offen")
        A.label(".Lka_pf3")
        vm.issue("pf")
    A("v_and_b32 v6, 15, v1")
    A("v_lshrrev_b32 v7, 4, v1")
    A("v_bfe_u32 v8, v1, 2, 2")
    A("v_and_b32 v15, 3, v1")
    A("v_lshl_add_u32 v16, v7, 3, v8")
    A("v_lshrrev_b32 v17, 1, v8")
    A("v_and_b32 v18, 1, v7")
    A("v_lshl_or_b32 v17, v18, 1, v17")
    for nb in range(4):
        A(f"v_xor_b32 v18, {nb}, v17")
        A("v_lshlrev_b32 v18, 5, v18")
        A("v_lshl_add_u32 v18, v15, 3, v18")
        A("v_lshl_add_u32 v18, v16, 7, v18")
        A(f"v_add_u32 v{AA+nb}, s{S_RB}, v18")
    A("s_lshl_b32 s3, s2, 3")
    A(f"s_sub_u32 s{S_R0}, s3, 2")
    A(f"s_add_u32 s{S_TMP}, s{S_R0}, s{S_WAVE}")
    A(f"s_add_u32 s{S_TMP+1}, s{S_TMP}, 8")
    for i in range(2):
        A(f"s_max_i32 s{S_TMP+2+i}, s{S_TMP+i}, 0")
        A(f"s_min_i32 s{S_TMP+2+i}, s{S_TMP+2+i}, 2047")
    PR = [64, 96]
    XR = [16, 20]
    GA = 24; CB = 32; SB = 40
    Xs = [list(range(48, 56)), list(range(56, 64))]
    def row_loads(i):
        A(f"s_lshl_b32 s{S_TMP+4}, s{S_TMP+2+i}, 10")
        A(f"buffer_load_dwordx4 v[{XR[i]}:{XR[i]+3}], v9, s[{S_X}:{S_X+3}], s{S_TMP+4} offen")
        vm.issue(("r", i))
        for g in range(8):
            A(f"buffer_load_dwordx4 v[{PR[i]+4*g}:{PR[i]+4*g+3}], v9, s[{S_PT}:{S_PT+3}], s{S_TMP+4} offen")
            vm.issue(("r", i))
            if g < 7 and not int(os.environ.get("KAEXP","0")):
                A(f"s_add_u32 s{S_TMP+4}, s{S_TMP+4}, {2048*512*2}")
    for (dst, idx) in ((GA, 2), (SB, 3), (CB, 4)):
        A(f"s_movk_i32 s{S_TMP+4}, {idx*2048}")
        A(f"buffer_load_dwordx4 v[{dst}:{dst+3}], v10, s[{S_MOD}:{S_MOD+3}], s{S_TMP+4} offen"); vm.issue("mod")
        A(f"buffer_load_dwordx4 v[{dst+4}:{dst+7}], v10, s[{S_MOD}:{S_MOD+3}], s{S_TMP+4} offen offset:16"); vm.issue("mod")
    import copy
    def stage1(nrows, tagl):
        for i in range(nrows):
            row_loads(i)
        for st in range(RD):
            pump_issue()
        vm.wait(("r", nrows - 1))
        stamp()
        pump(3)
        for j in range(0, 8, 2):
            A(f"v_add_f32 v{CB+j}, 1.0, v{CB+j}")
            A(f"v_add_f32 v{CB+j+1}, 1.0, v{CB+j+1}")
        round_multi(A, list(range(CB, CB + 8)), [56, 57, 58, 59], SM)
        rows = list(range(nrows))
        for i in rows:
            X = Xs[i]
            for j in range(4):
                A(f"v_lshlrev_b32 v{X[2*j]}, 16, v{PR[i]+j}")
                A(f"v_and_b32 v{X[2*j+1]}, {SM}, v{PR[i]+j}")
        for g in range(1, 8):
            for i in rows:
                X = Xs[i]
                for j in range(4):
                    p = PR[i] + 4 * g + j
                    A(f"v_lshlrev_b32 v{PR[i]+j}, 16, v{p}")
                    A(f"v_and_b32 v{p}, {SM}, v{p}")
                for j in range(4):
                    p = PR[i] + 4 * g + j
                    A(f"v_add_f32 v{X[2*j]}, v{X[2*j]}, v{PR[i]+j}")
                    A(f"v_add_f32 v{X[2*j+1]}, v{X[2*j+1]}, v{p}")
        Ts = [list(range(PR[i], PR[i] + 12)) for i in range(2)]
        for i in rows: round_multi(A, Xs[i], Ts[i][5:9], SM)
        for i in rows:
            for j in range(8): A(f"v_mul_f32 v{Xs[i][j]}, v{Xs[i][j]}, v{GA+j}")
        for i in rows: round_multi(A, Xs[i], Ts[i][5:9], SM)
        for i in rows:
            X = Xs[i]; T = Ts[i]
            for j in range(4):
                A(f"v_lshlrev_b32 v{T[2*j]}, 16, v{XR[i]+j}")
                A(f"v_and_b32 v{T[2*j+1]}, {SM}, v{XR[i]+j}")
            for j in range(8): A(f"v_add_f32 v{X[j]}, v{X[j]}, v{T[j]}")
            pack8(A, X, XR[i])
            for j in range(4):
                A(f"v_lshlrev_b32 v{X[2*j]}, 16, v{XR[i]+j}")
                A(f"v_and_b32 v{X[2*j+1]}, {SM}, v{XR[i]+j}")
        for i in rows:
            A(f"s_lshl_b32 s{S_TMP+4}, s{S_TMP+i}, 10")
            A(f"s_cmp_lt_u32 s{S_WAVE}, 2" if i == 0 else f"s_cmp_ge_u32 s{S_WAVE}, 2")
            A(f"s_cselect_b32 s{S_TMP+4}, 0x400000, s{S_TMP+4}")
            A(f"buffer_store_dwordx4 v[{XR[i]}:{XR[i]+3}], v9, s[{S_X2}:{S_X2+3}], s{S_TMP+4} offen")
            vm.issue("st")
        R = [(Xs[i], Ts[i]) for i in rows]
        ln_rows(A, R, SM)
        pump(3)
        for i in rows:
            for j in range(8): A(f"v_mul_f32 v{Xs[i][j]}, v{Xs[i][j]}, v{CB+j}")
        for i in rows: round_multi(A, Xs[i], Ts[i][5:9], SM)
        for i in rows:
            for j in range(8): A(f"v_add_f32 v{Xs[i][j]}, v{Xs[i][j]}, v{SB+j}")
        for i in rows:
            pack8(A, Xs[i], Ts[i][12 - 4] if False else PR[i] + 12)
        for i in rows:
            X = Xs[i]
            for j in range(4):
                A(f"v_lshlrev_b32 v{X[2*j]}, 16, v{PR[i]+12+j}")
                A(f"v_and_b32 v{X[2*j+1]}, {SM}, v{PR[i]+12+j}")
            A(f"s_add_u32 s{S_TMP+4}, s{S_WAVE}, {8*i}")
            A(f"s_mul_i32 s{S_TMP+4}, s{S_TMP+4}, {RS}")
            A(f"v_add_u32 v{PR[i]+20}, s{S_TMP+4}, v9")
            A(f"ds_write_b128 v{PR[i]+20}, v[{PR[i]+12}:{PR[i]+15}] offset:{T_H}")
            lg.issue("hw")
        ln_rows(A, R, SM)
        for i in rows:
            pack8(A, Xs[i], PR[i] + 16)
            A(f"ds_write_b128 v{PR[i]+20}, v[{PR[i]+16}:{PR[i]+19}] offset:{T_HN}")
            lg.issue("hw")
        pump(2)
        lg.waitall()
        stamp()
    st0 = (list(vm.ops), list(lg.ops), dict(P), stamp.n)
    A(f"s_cmp_ge_u32 s{S_WAVE}, 4")
    A("s_cbranch_scc1 .Lka_one")
    stage1(2, "a")
    endA = (list(vm.ops), dict(P))
    A("s_branch .Lka_join")
    A.label(".Lka_one")
    vm.ops, lg.ops = list(st0[0]), list(st0[1]); P.update(st0[2]); stamp.n = st0[3]
    stage1(1, "b")
    assert P == endA[1], (P, endA[1])
    wa = [o for o in endA[0] if o != "st"]; wb = [o for o in vm.ops if o != "st"]
    assert wa == wb, (wa, wb)
    vm.ops = wb
    A.label(".Lka_join")
    A("s_barrier")
    stamp()
    BF = 64
    A(f"v_mul_lo_u32 v8, v6, s{S_RSC}")
    A("v_lshl_add_u32 v20, v7, 4, v8")
    def bfrags(addr, offs):
        for ks in range(16):
            if len(lg.ops) > 12: lg.wait(lg.ops[3])
            A(f"ds_read_b128 v[{BF+4*ks}:{BF+4*ks+3}], v{addr} offset:{offs[ks]}")
            lg.issue(("b", ks))
    bfrags(20, [T_HN + ks * 64 for ks in range(16)])
    ACC = 24
    def gemm(first):
        for ks in range(16):
            step = first + ks
            while P["read"] <= step:
                assert pump_read() or pump_issue()
            lg.wait(("f", step)); lg.wait(("b", ks))
            buf = FIFO + (step % RF) * 16
            for nb in range(4):
                c = "0" if ks == 0 else f"v[{ACC+4*nb}:{ACC+4*nb+3}]"
                A(f"v_mfma_f32_16x16x32_bf16 v[{ACC+4*nb}:{ACC+4*nb+3}], v[{buf+nb*4}:{buf+nb*4+3}], v[{BF+4*ks}:{BF+4*ks+3}], {c}")
            P["used"] = step + 1
            pump(1)
    stamp()
    gemm(0)
    stamp()
    A(f"v_add_u32 v21, s{S_R0}, v6")
    A("v_cmp_gt_u32 vcc, 2048, v21")
    A("v_lshl_add_u32 v21, v7, 3, v8")
    A(f"s_lshl_b32 s{S_TMP+5}, s{S_WAVE}, 7")
    A(f"v_add_u32 v21, s{S_TMP+5}, v21")
    A(f"v_mov_b32 v15, {fhex(GK1)}")
    A("s_nop 4")
    xs = list(range(ACC, ACC + 16))
    round_multi(A, xs, list(range(40, 48)), SM)
    gelu_multi(A, xs[:8], list(range(40, 48)), 15)
    pump(1)
    gelu_multi(A, xs[8:], list(range(40, 48)), 15)
    for x in xs: A(f"v_cndmask_b32 v{x}, 0, v{x}, vcc")
    for nb in range(4):
        a = ACC + 4 * nb
        A(f"v_cvt_pk_bf16_f32 v{40+2*nb}, v{a}, v{a+1}")
        A(f"v_cvt_pk_bf16_f32 v{41+2*nb}, v{a+2}, v{a+3}")
        A(f"ds_write_b64 v21, v[{40+2*nb}:{41+2*nb}] offset:{T_H1 + nb*32}")
        lg.issue("h1w")
    lg.wait("h1w")
    A("s_barrier")
    A("v_and_b32 v22, 7, v6")
    A(f"v_mul_lo_u32 v8, v22, s{S_RSC}")
    A("v_lshl_add_u32 v22, v7, 4, v8")
    shifts = [-1, 1, -2, 2]
    bfrags(22, [T_H1 + (2 + shifts[ks // 4]) * RS + ks * 64 for ks in range(16)])
    A("v_lshl_add_u32 v23, v7, 3, v8")
    A(f"v_add_u32 v23, s{S_TMP+5}, v23")
    stamp()
    gemm(16)
    stamp()
    for nb in range(4):
        A(f"ds_read_b64 v[{40+2*nb}:{41+2*nb}], v23 offset:{T_H + 2*RS + nb*32}")
        lg.issue("hr")
    A("s_nop 4")
    round_multi(A, xs, list(range(48, 56)), SM)
    lg.waitall()
    for k in range(8):
        A(f"v_lshlrev_b32 v{48+2*k if k < 4 else 64+2*k}, 16, v{40+k}") if False else None
    for k in range(8):
        A(f"v_lshlrev_b32 v{64+2*k}, 16, v{40+k}")
        A(f"v_and_b32 v{65+2*k}, {SM}, v{40+k}")
    for k in range(16):
        A(f"v_add_f32 v{xs[k]}, v{xs[k]}, v{64+k}")
    for k in range(8):
        A(f"v_cvt_pk_bf16_f32 v{40+k}, v{xs[2*k]}, v{xs[2*k+1]}")
    A("v_cmp_gt_u32 vcc, 8, v6")
    A("s_and_saveexec_b64 s[72:73], vcc")
    for nb in range(4):
        A(f"ds_write_b64 v23, v[{40+2*nb}:{41+2*nb}] offset:{T_X1 + nb*32}")
    A("s_mov_b64 exec, s[72:73]")
    A("s_waitcnt lgkmcnt(0)")
    A("s_barrier")
    if PREFETCH and KAPF3:
        A("s_lshr_b32 s74, s2, 3")
        A(f"s_mul_i32 s74, s74, {56*1024}")
        make_srd(A, S_W1, 62, "s74", 56 * 1024)
        A("v_lshlrev_b32 v6, 6, v0")
        A(f"buffer_load_dword v250, v6, s[{S_W1}:{S_W1+3}], 0 offen")
        A("v_add_u32 v6, 0x8000, v6")
        A(f"buffer_load_dword v251, v6, s[{S_W1}:{S_W1+3}], 0 offen")
    A(f"s_mul_i32 s{S_TMP+6}, s{S_WAVE}, {RS}")
    A(f"v_add_u32 v11, s{S_TMP+6}, v9")
    A(f"ds_read_b128 v[12:15], v11 offset:{T_X1}")
    A("s_add_u32 s3, s3, s40")
    A("s_lshl_b32 s3, s3, 10")
    A("s_waitcnt lgkmcnt(0)")
    A(f"buffer_store_dwordx4 v[12:15], v9, s[{S_X1}:{S_X1+3}], s3 offen")
    X = Xs[0]
    for j in range(4):
        A(f"v_lshlrev_b32 v{X[2*j]}, 16, v{12+j}")
        A(f"v_and_b32 v{X[2*j+1]}, {SM}, v{12+j}")
    ln_rows(A, [(X, list(range(64, 76)))], SM)
    pack8(A, X, 16)
    A(f"buffer_store_dwordx4 v[16:19], v9, s[{S_XN4}:{S_XN4+3}], s3 offen")
    if KATIMING:
        A("s_waitcnt vmcnt(0)")
        stamp(); stamp(True)
        stamp.flush()
    gen_k1.TIMING = old_t
    A.label(".Lka_end")
    A("s_endpgm")
    A.raw(kernel_desc(name, 256, 100, 256))
    return (name, (256, 1, 1), (512, 1, 1), RING + 8 * RD * 4096)
```

```python
from asmlib import *
from gen_k0 import *
from gen_k1 import Cnt, PART_BF16, Stamper
import gen_k1, os
KRT = int(os.environ.get('KRTIMING','0'))
from gen_ka import ln_rows, round_multi, pack8

def gen_kr(A, emb=False):
    name = "kr_kernel"
    S_X = 8; S_MOD = 12; S_PT = 16; S_X2 = 20; S_H = 24; S_HN = 28; S_H1 = 32
    S_WAVE = 40; S_MASK = 43; S_TMP = 44
    if not emb:
        kernel_header(A, name)
        A("s_cmp_ge_u32 s2, 256")
        A("s_cbranch_scc1 .Lkr_end")
    A("s_load_dwordx2 s[60:61], s[0:1], 0")
    A("s_load_dwordx2 s[68:69], s[0:1], 112")
    A("s_load_dwordx8 s[84:91], s[0:1], 48")
    A("v_and_b32 v1, 63, v0")
    A("v_lshrrev_b32 v2, 6, v0")
    A("s_nop 0")
    A(f"v_readfirstlane_b32 s{S_WAVE}, v2")
    A(f"s_mov_b32 s{S_MASK}, 0xffff0000")
    A("v_lshlrev_b32 v9, 4, v1")
    A("v_lshlrev_b32 v10, 5, v1")
    A("s_and_b32 s3, s2, 31")
    A("s_lshl_b32 s3, s3, 3")
    A("s_lshr_b32 s4, s2, 5")
    A("s_add_u32 s3, s3, s4")
    A("s_lshl_b32 s3, s3, 3")
    A(f"s_add_u32 s3, s3, s{S_WAVE}")
    A("s_lshl_b32 s3, s3, 10")
    A("s_waitcnt lgkmcnt(0)")
    lg = Cnt(A, "lgkmcnt", 15)
    old_t = gen_k1.TIMING; gen_k1.TIMING = KRT
    stamp = Stamper(A, lg, 56, S_WAVE, base=76)
    if KRT: make_srd(A, 56, 68, WS_DBG, 32 * MB)
    stamp(True); stamp()
    make_srd(A, S_PT, 68, WS_PART, 8 * 2048 * 512 * 2)
    PR = 64; XR = 16; GA = 24; CB = 32; SB = 40
    A(f"s_mov_b32 s{S_TMP}, s3")
    for g in range(8):
        A(f"buffer_load_dwordx4 v[{PR+4*g}:{PR+4*g+3}], v9, s[{S_PT}:{S_PT+3}], s{S_TMP} offen")
        if g < 7:
            A(f"s_add_u32 s{S_TMP}, s{S_TMP}, {2048*512*2}")
    make_srd(A, S_X, 60, 0, 2 * MB)
    make_srd(A, S_MOD, 68, WS_MOD, 3072 * 4)
    A(f"buffer_load_dwordx4 v[{XR}:{XR+3}], v9, s[{S_X}:{S_X+3}], s3 offen")
    for (dst, idx) in ((GA, 2), (SB, 3), (CB, 4)):
        A(f"s_movk_i32 s{S_TMP}, {idx*2048}")
        A(f"buffer_load_dwordx4 v[{dst}:{dst+3}], v10, s[{S_MOD}:{S_MOD+3}], s{S_TMP} offen")
        A(f"buffer_load_dwordx4 v[{dst+4}:{dst+7}], v10, s[{S_MOD}:{S_MOD+3}], s{S_TMP} offen offset:16")
    make_srd(A, S_X2, 68, WS_X2, 2 * MB)
    make_srd(A, S_H, 68, WS_H, 2 * MB)
    make_srd(A, S_HN, 68, WS_HN, 2 * MB)
    make_srd(A, S_H1, 68, WS_H1, 2052 * 1024)
    SM = f"s{S_MASK}"
    A(f"s_lshr_b32 s{S_TMP}, s{S_WAVE}, 1")
    A(f"s_mul_i32 s{S_TMP}, s{S_TMP}, 31")
    A(f"s_cmp_lg_u32 s2, s{S_TMP}")
    A("s_cbranch_scc1 .Lkr_nz")
    A(f"s_cmp_ge_u32 s{S_WAVE}, 4")
    A("s_cbranch_scc1 .Lkr_nz")
    A(f"s_lshl_b32 s{S_TMP}, s{S_WAVE}, 10")
    A(f"s_add_u32 s{S_TMP+1}, s{S_TMP}, {2048*1024}")
    A(f"s_cmp_lt_u32 s{S_WAVE}, 2")
    A(f"s_cselect_b32 s{S_TMP}, s{S_TMP}, s{S_TMP+1}")
    for j in range(4): A(f"v_mov_b32 v{4+j}, 0")
    A(f"buffer_store_dwordx4 v[4:7], v9, s[{S_H1}:{S_H1+3}], s{S_TMP} offen")
    A.label(".Lkr_nz")
    import os
    PFR = int(os.environ.get("PFR","0"))
    if PFR:
        PFR = 4
        A("v_lshlrev_b32 v14, 6, v0")
        for (p, sz) in ((84, 512*1024), (86, 512*1024), (88, 1792*1024), (90, 1792*1024)):
            per = sz // 256
            A(f"s_mul_i32 s74, s2, {per}")
            make_srd(A, 36, p, "s74", per)
            A("buffer_load_dword v15, v14, s[36:39], 0 offen")
    X = list(range(48, 56)); T = list(range(PR, PR + 12))
    stamp()
    for g in range(8):
        A(f"s_waitcnt vmcnt({7 - g + 7 + PFR})")
        if g == 0:
            for j in range(4):
                A(f"v_lshlrev_b32 v{X[2*j]}, 16, v{PR+j}")
                A(f"v_and_b32 v{X[2*j+1]}, {SM}, v{PR+j}")
        else:
            for j in range(4):
                p = PR + 4 * g + j
                A(f"v_lshlrev_b32 v{PR+j}, 16, v{p}")
                A(f"v_and_b32 v{p}, {SM}, v{p}")
            for j in range(4):
                p = PR + 4 * g + j
                A(f"v_add_f32 v{X[2*j]}, v{X[2*j]}, v{PR+j}")
                A(f"v_add_f32 v{X[2*j+1]}, v{X[2*j+1]}, v{p}")
    A(f"s_waitcnt vmcnt({PFR})")
    stamp()
    round_multi(A, X, T[5:9], SM)
    for j in range(8): A(f"v_mul_f32 v{X[j]}, v{X[j]}, v{GA+j}")
    round_multi(A, X, T[5:9], SM)
    for j in range(4):
        A(f"v_lshlrev_b32 v{T[2*j]}, 16, v{XR+j}")
        A(f"v_and_b32 v{T[2*j+1]}, {SM}, v{XR+j}")
    for j in range(8): A(f"v_add_f32 v{X[j]}, v{X[j]}, v{T[j]}")
    pack8(A, X, XR)
    A(f"buffer_store_dwordx4 v[{XR}:{XR+3}], v9, s[{S_X2}:{S_X2+3}], s3 offen " + os.environ.get('KRF','sc1'))
    for j in range(4):
        A(f"v_lshlrev_b32 v{X[2*j]}, 16, v{XR+j}")
        A(f"v_and_b32 v{X[2*j+1]}, {SM}, v{XR+j}")
    for j in range(8): A(f"v_add_f32 v{CB+j}, 1.0, v{CB+j}")
    round_multi(A, list(range(CB, CB + 8)), [56, 57, 58, 59], SM)
    ln_rows(A, [(X, T)], SM)
    for j in range(8): A(f"v_mul_f32 v{X[j]}, v{X[j]}, v{CB+j}")
    round_multi(A, X, T[5:9], SM)
    for j in range(8): A(f"v_add_f32 v{X[j]}, v{X[j]}, v{SB+j}")
    pack8(A, X, 80)
    A(f"buffer_store_dwordx4 v[80:83], v9, s[{S_H}:{S_H+3}], s3 offen " + os.environ.get('KRF','sc1'))
    for j in range(4):
        A(f"v_lshlrev_b32 v{X[2*j]}, 16, v{80+j}")
        A(f"v_and_b32 v{X[2*j+1]}, {SM}, v{80+j}")
    ln_rows(A, [(X, T)], SM)
    pack8(A, X, 84)
    A(f"buffer_store_dwordx4 v[84:87], v9, s[{S_HN}:{S_HN+3}], s3 offen " + os.environ.get('KRF','sc1'))
    if KRT:
        stamp()
        A("s_waitcnt vmcnt(0)")
        stamp(); stamp(True); stamp.flush()
    gen_k1.TIMING = old_t
    if emb: return
    A.label(".Lkr_end")
    A("s_endpgm")
    A.raw(kernel_desc(name, 96, 100, 96))
    return (name, (256, 1, 1), (512, 1, 1), 0)
```

```python
from asmlib import *
from gen_k0 import *
import gen_k1, gen_kr, gen_g64, gen_k5
import os
MEGA = int(os.environ.get("MEGA", "6"))

MT = int(os.environ.get("MT", "0"))
def mstamp(A, idx, setup=False):
    if not MT: return
    if setup:
        A("s_load_dwordx2 s[68:69], s[0:1], 112")
        A("v_lshrrev_b32 v2, 6, v0")
        A("s_nop 0")
        A("v_readfirstlane_b32 s40, v2")
        A("s_waitcnt lgkmcnt(0)")
    A("s_memrealtime s[46:47]")
    make_srd(A, 12, 68, WS_DBG, 32 * MB)
    A("s_lshl_b32 s48, s2, 3")
    A("s_add_u32 s48, s48, s40")
    A("s_lshl_b32 s48, s48, 7")
    A("s_waitcnt lgkmcnt(0)")
    A("v_mov_b32 v6, s46")
    A("v_mov_b32 v7, 0")
    A(f"buffer_store_dword v6, v7, s[12:15], s48 offen offset:{4*idx}")

def sync(A, stage, nbr=False):
    lab = f".Lsy{stage}"
    A("s_load_dwordx2 s[68:69], s[0:1], 112")
    A("v_lshrrev_b32 v2, 6, v0")
    A("s_nop 0")
    A("v_readfirstlane_b32 s40, v2")
    if MT:
        A("s_waitcnt lgkmcnt(0)")
        A("s_memrealtime s[50:51]")
    A("s_waitcnt vmcnt(0) lgkmcnt(0)")
    if MT: A("s_memrealtime s[52:53]")
    A("s_barrier")
    if MT: A("s_memrealtime s[54:55]")
    A("s_cmp_lg_u32 s40, 7")
    A(f"s_cbranch_scc1 {lab}_done")
    make_srd(A, 8, 68, WS_FLAG + stage * 32 * 256, 32 * 256)
    A("s_and_b32 s41, s2, 31")
    A("s_lshr_b32 s42, s2, 5")
    A("s_lshl_b32 s43, s41, 8")
    A("s_lshl_b32 s44, s42, 2")
    A("s_add_u32 s44, s44, s43")
    A("v_and_b32 v1, 63, v0")
    A("v_mov_b32 v3, 1")
    A("v_mov_b32 v4, s44")
    A("s_mov_b64 exec, 1")
    A("buffer_store_dword v3, v4, s[8:11], 0 offen sc1")
    A("s_mov_b64 exec, -1")
    A("v_and_b32 v4, 7, v1")
    A("v_lshlrev_b32 v4, 2, v4")
    if nbr:
        A("v_bfe_u32 v5, v1, 3, 2")
        A("v_min_u32 v5, 2, v5")
        A("v_add_u32 v5, s41, v5")
        A("v_max_u32 v5, 1, v5")
        A("v_min_u32 v5, 32, v5")
        A("v_subrev_u32 v5, 1, v5")
        A("v_lshl_add_u32 v4, v5, 8, v4")
    else:
        A("v_add_u32 v4, s43, v4")
    A("s_mov_b32 s45, 0")
    A.label(f"{lab}_poll")
    A("buffer_load_dword v5, v4, s[8:11], 0 offen sc1")
    A("s_add_u32 s45, s45, 1")
    A("s_waitcnt vmcnt(0)")
    A("v_cmp_ne_u32 vcc, 1, v5")
    A("s_cmp_lt_u32 s45, 0x40000")
    A(f"s_cbranch_scc0 {lab}_done")
    A(f"s_cbranch_vccnz {lab}_poll")
    A.label(f"{lab}_done")
    A("s_barrier")
    if MT:
        mstamp(A, 1 + 4 * stage + 3)
        for k in range(3):
            A(f"v_mov_b32 v6, s{50+2*k}")
            A(f"buffer_store_dword v6, v7, s[12:15], s48 offen offset:{4*(1 + 4 * stage + k)}")

def gen_km(A):
    name = "km_kernel" if MEGA == 1 else "k1_kernel"
    if MEGA == 1:
        kernel_header(A, name)
        A("s_cmp_lt_u32 s2, 256")
        A("s_cbranch_scc1 .Lkm_go")
        A("s_endpgm")
        A.label(".Lkm_go")
    else:
        gen_k1.gen_k1(A, emb=True, pre=lambda: mstamp(A, 0, True))
        sync(A, 0)
    gen_kr.gen_kr(A, emb=True)
    sync(A, 1)
    gen_g64.gen_k3(A, emb=True)
    sync(A, 2, nbr=True)
    gen_g64.gen_k4(A, emb=True)
    sync(A, 3)
    gen_k5.gen_k5(A, emb=True)
    sync(A, 4)
    gen_g64.gen_k6(A, emb=True)
    mstamp(A, 21, True)
    if MT: A("s_waitcnt vmcnt(0)")
    mstamp(A, 22)
    A("s_endpgm")
    A.raw(kernel_desc(name, 256, 102, 256))
    return (name, (256, 1, 1), (512, 1, 1), 163840)
```

```python
from asmlib import *
from gen_k0 import *
import gen_k1 as K1
from gen_k1 import Cnt
from gen_ka import ln_rows, round_multi, pack8, GK0, GK1
from gen_g64 import WS_STAT, WS_CS
import os
MT = int(os.environ.get("MT", "0"))
S_WAVE = 40; S_M = 41; S_J = 42; S_MASK = 43; S_RB = 44; S_GOFF = 45; S_TMP = 48; S_WOFF = 58
S_W = 32; V_W = 6
P_X = 60; P_OUT = 62; P_WS = 68; P_W = 84
SM = f"s{S_MASK}"
L = 1
RG = 40960; RS = 272
K5RB = 18432; K5D = 11
PFE = int(os.environ.get('PFE', '2'))
NE = int(os.environ.get('NE', '3')) if PFE == 2 else 0

def pk(A, op, d, a, b, c=None, sel=""):
    ops = ", ".join(f"v[{x}:{x+1}]" for x in ((d, a, b) if c is None else (d, a, b, c)))
    A(f"{op} {ops} {sel}".rstrip())

class Mega:
    def __init__(self, A):
        self.A = A
        self.vm = Cnt(A, "vmcnt", 63); self.lg = Cnt(A, "lgkmcnt", 15)
    def stamp(self, idx):
        if not MT: return
        A = self.A
        A("s_waitcnt lgkmcnt(0)")
        A("s_memrealtime s[70:71]")
        make_srd(A, 72, P_WS, WS_DBG, 32 * MB)
        A("s_lshl_b32 s76, s2, 3")
        A(f"s_add_u32 s76, s76, s{S_WAVE}")
        A("s_lshl_b32 s76, s76, 7")
        A("s_waitcnt lgkmcnt(0)")
        A("v_mov_b32 v2, s70")
        A("v_mov_b32 v3, 0")
        A(f"buffer_store_dword v2, v3, s[72:75], s76 offen offset:{4*idx}")
        self.vm.issue("stamp"); self.lg.ops = []
    def flag_srd(self, stage):
        make_srd(self.A, 92, P_WS, WS_FLAG + stage * 32 * 256, 32 * 256)
    def transition(self, stage, early=None):
        A = self.A
        self.stamp(1 + 4 * stage)
        self.vm.ops = []
        if early and NE:
            A(f"s_cmp_ge_u32 s{S_WAVE}, 4")
            A(f"s_cbranch_scc1 .Ltr{stage}_h")
            early(0, NE)
            A(f"s_waitcnt vmcnt({len(self.vm.ops)})")
            A(f"s_branch .Ltr{stage}_j")
            A.label(f".Ltr{stage}_h")
            A("s_waitcnt vmcnt(0)")
            A.label(f".Ltr{stage}_j")
        else:
            A("s_waitcnt vmcnt(0)")
        self.flag_srd(stage)
        A(f"s_lshl_b32 s96, s{S_M}, 8")
        A(f"s_lshl_b32 s97, s{S_J}, 2")
        A("s_add_u32 s97, s97, s96")
        A("v_mov_b32 v2, 1")
        A("v_mov_b32 v3, s97")
        A("s_waitcnt lgkmcnt(0)")
        self.lg.ops = []
        A("s_barrier")
        A(f"s_cmp_lg_u32 s{S_WAVE}, 7")
        A(f"s_cbranch_scc1 .Lpub{stage}")
        A("s_mov_b64 exec, 1")
        A("buffer_store_dword v2, v3, s[92:95], 0 offen sc1")
        A("s_mov_b64 exec, -1")
        A.label(f".Lpub{stage}")
        self.stamp(1 + 4 * stage + 2)
    def poll(self, stage, nbr=False, check=True):
        A = self.A
        lab = f".Lpl{stage}"
        if check:
            A(f"s_cmp_lg_u32 s{S_WAVE}, 7")
            A(f"s_cbranch_scc1 {lab}_done")
        A("v_and_b32 v3, 7, v1")
        A("v_lshlrev_b32 v3, 2, v3")
        if nbr:
            A("v_bfe_u32 v2, v1, 3, 2")
            A("v_min_u32 v2, 2, v2")
            A(f"v_add_u32 v2, s{S_M}, v2")
            A("v_max_u32 v2, 1, v2")
            A("v_min_u32 v2, 32, v2")
            A("v_subrev_u32 v2, 1, v2")
            A("v_lshl_add_u32 v3, v2, 8, v3")
        else:
            A("v_add_u32 v3, s96, v3")
        A("s_mov_b32 s98, 0")
        A.label(f"{lab}_poll")
        A("buffer_load_dword v2, v3, s[92:95], 0 offen sc1")
        A("s_add_u32 s98, s98, 1")
        A("s_waitcnt vmcnt(0)")
        A("v_cmp_ne_u32 vcc, 1, v2")
        A("s_cmp_lt_u32 s98, 0x40000")
        A(f"s_cbranch_scc0 {lab}_done")
        A(f"s_cbranch_vccnz {lab}_poll")
        A.label(f"{lab}_done")
    def w_setup(self, widx, K, rowbytes, woff_code):
        A = self.A
        make_srd(A, S_W, P_W + 2 * widx, 0, K * rowbytes)
        A(f"v_lshrrev_b32 v2, 3, v{L}")
        A(f"v_and_b32 v3, 7, v{L}")
        A(f"v_lshlrev_b32 v{V_W}, 1, v2")
        A(f"v_and_b32 v{V_W}, 4, v{V_W}")
        A(f"v_xor_b32 v3, v3, v{V_W}")
        A("v_lshlrev_b32 v3, 4, v3")
        A(f"v_mul_u32_u24 v2, {rowbytes}, v2") if rowbytes < 64 else None
        A(f"s_movk_i32 s{S_WOFF}, {rowbytes}")
        A(f"v_mul_lo_u32 v2, v2, s{S_WOFF}")
        A(f"v_add_u32 v{V_W}, v2, v3")
        woff_code()
        self.wrb = rowbytes
    def dmaW(self, st, ldsoff):
        A = self.A
        for i in range(2):
            A(f"s_add_u32 m0, s{S_RB}, {ldsoff + i * 1024}")
            A("s_nop 0")
            A(f"buffer_load_dwordx4 v{V_W}, s[{S_W}:{S_W+3}], s{S_WOFF} offen lds")
            self.vm.issue(("w", st))
            A(f"s_add_u32 s{S_WOFF}, s{S_WOFF}, {8 * self.wrb}")
    def pf_g64(self, widx, K, WB, DW, lo=0, hi=99):
        A = self.A
        def woff():
            A(f"s_mul_i32 s{S_WOFF}, s{S_WAVE}, {(K // 4) * 1024}")
            A(f"s_lshl_b32 s{S_TMP+11}, s{S_J}, 7")
            A(f"s_add_u32 s{S_WOFF}, s{S_WOFF}, s{S_TMP+11}")
        if lo == 0: self.w_setup(widx, K, 1024, woff)
        self.wrb = 1024
        for st in range(lo, min(DW, hi)): self.dmaW(st, WB + st * 2048)
    def pf_k5(self, lo=0, hi=99):
        A = self.A
        def woff():
            A(f"s_min_u32 s{S_WOFF}, s{S_J}, 6")
            A(f"s_lshl_b32 s{S_WOFF}, s{S_WOFF}, 9")
            A(f"s_lshl_b32 s{S_TMP+11}, s{S_WAVE}, 7")
            A(f"s_add_u32 s{S_WOFF}, s{S_WOFF}, s{S_TMP+11}")
        if lo == 0: self.w_setup(2, 512, 3584, woff)
        self.wrb = 3584
        for st in range(lo, min(K5D, hi)): self.dmaW(st, K5RB + st * 2048)
    def persist(self):
        A = self.A
        A(f"s_load_dwordx2 s[{P_X}:{P_X+1}], s[0:1], 0")
        A(f"s_load_dwordx2 s[{P_OUT}:{P_OUT+1}], s[0:1], 96")
        A(f"s_load_dwordx2 s[{P_WS}:{P_WS+1}], s[0:1], 112")
        A(f"s_load_dwordx8 s[{P_W}:{P_W+7}], s[0:1], 48")
        A("v_and_b32 v1, 63, v0")
        A("v_lshrrev_b32 v2, 6, v0")
        A("s_nop 0")
        A(f"v_readfirstlane_b32 s{S_WAVE}, v2")
        A(f"s_and_b32 s{S_M}, s2, 31")
        A(f"s_lshr_b32 s{S_J}, s2, 5")
        A(f"s_mov_b32 s{S_MASK}, 0xffff0000")
        A(f"s_mul_i32 s{S_RB}, s{S_WAVE}, {RG}")
        A("s_waitcnt lgkmcnt(0)")
    def kr(self):
        A = self.A; vm = self.vm
        S_X = 8; S_MOD = 12; S_PT = 16; S_X2 = 20; S_H = 24; S_HN = 28; S_H1 = 36
        PR = 64; XR = 16; GA = 24; CB = 32; SB = 40
        A("v_lshlrev_b32 v9, 4, v1")
        A("v_lshlrev_b32 v10, 5, v1")
        A(f"s_lshl_b32 s3, s{S_M}, 3")
        A(f"s_add_u32 s3, s3, s{S_J}")
        A("s_lshl_b32 s3, s3, 3")
        A(f"s_add_u32 s3, s3, s{S_WAVE}")
        A("s_lshl_b32 s3, s3, 10")
        make_srd(A, S_X, P_X, 0, 2 * MB)
        make_srd(A, S_MOD, P_WS, WS_MOD, 3072 * 4)
        A(f"buffer_load_dwordx4 v[{XR}:{XR+3}], v9, s[{S_X}:{S_X+3}], s3 offen"); vm.issue("x")
        for (dst, idx) in ((CB, 4), (GA, 2), (SB, 3)):
            A(f"s_movk_i32 s{S_TMP}, {idx*2048}")
            A(f"buffer_load_dwordx4 v[{dst}:{dst+3}], v10, s[{S_MOD}:{S_MOD+3}], s{S_TMP} offen"); vm.issue("x")
            A(f"buffer_load_dwordx4 v[{dst+4}:{dst+7}], v10, s[{S_MOD}:{S_MOD+3}], s{S_TMP} offen offset:16"); vm.issue("x")
        make_srd(A, S_PT, P_WS, WS_PART, 8 * 2048 * 512 * 2)
        make_srd(A, S_X2, P_WS, WS_X2, 2 * MB)
        make_srd(A, S_H, P_WS, WS_H, 2 * MB)
        make_srd(A, S_HN, P_WS, WS_HN, 2 * MB)
        make_srd(A, S_H1, P_WS, WS_H1, 2052 * 1024)
        A(f"s_cmp_ge_u32 s{S_WAVE}, 4")
        A("s_cbranch_scc1 .Lkr_nz2")
        A(f"s_lshr_b32 s{S_TMP}, s{S_WAVE}, 1")
        A(f"s_mul_i32 s{S_TMP}, s{S_TMP}, 31")
        A(f"s_cmp_lg_u32 s2, s{S_TMP}")
        A("s_cbranch_scc1 .Lkr_nz")
        A(f"s_lshl_b32 s{S_TMP}, s{S_WAVE}, 10")
        A(f"s_add_u32 s{S_TMP+1}, s{S_TMP}, {2048*1024}")
        A(f"s_cmp_lt_u32 s{S_WAVE}, 2")
        A(f"s_cselect_b32 s{S_TMP}, s{S_TMP}, s{S_TMP+1}")
        for j in range(4): A(f"v_mov_b32 v{12+j}, 0")
        A(f"buffer_store_dwordx4 v[12:15], v9, s[{S_H1}:{S_H1+3}], s{S_TMP} offen sc1")
        A.label(".Lkr_nz")
        sv = list(vm.ops)
        if int(os.environ.get("PFW1", "1")) == 1: self.pf_g64(0, 512, 24576, 8)
        vm.ops = sv
        A.label(".Lkr_nz2")
        self.poll(0)
        A("s_barrier")
        self.stamp(4)
        A(f"s_mov_b32 s{S_TMP}, s3")
        for g in range(8):
            A(f"buffer_load_dwordx4 v[{PR+4*g}:{PR+4*g+3}], v9, s[{S_PT}:{S_PT+3}], s{S_TMP} offen"); vm.issue(("p", g))
            if g < 7: A(f"s_add_u32 s{S_TMP}, s{S_TMP}, {2048*512*2}")
        X = list(range(48, 56)); T = list(range(PR, PR + 12)); XU = list(range(96, 104))
        vm.wait("x")
        for j in range(8): A(f"v_add_f32 v{CB+j}, 1.0, v{CB+j}")
        round_multi(A, list(range(CB, CB + 8)), [56, 57, 58, 59], SM)
        for j in range(4):
            A(f"v_lshlrev_b32 v{XU[2*j]}, 16, v{XR+j}")
            A(f"v_and_b32 v{XU[2*j+1]}, {SM}, v{XR+j}")
        for g in range(8):
            vm.wait(("p", g))
            if g == 0:
                for j in range(4):
                    A(f"v_lshlrev_b32 v{X[2*j]}, 16, v{PR+j}")
                    A(f"v_and_b32 v{X[2*j+1]}, {SM}, v{PR+j}")
            else:
                for j in range(4):
                    p = PR + 4 * g + j
                    A(f"v_lshlrev_b32 v{PR+j}, 16, v{p}")
                    A(f"v_and_b32 v{p}, {SM}, v{p}")
                for j in range(4):
                    p = PR + 4 * g + j
                    A(f"v_add_f32 v{X[2*j]}, v{X[2*j]}, v{PR+j}")
                    A(f"v_add_f32 v{X[2*j+1]}, v{X[2*j+1]}, v{p}")
        round_multi(A, X, T[5:9], SM)
        for j in range(8): A(f"v_mul_f32 v{X[j]}, v{X[j]}, v{GA+j}")
        round_multi(A, X, T[5:9], SM)
        for j in range(8): A(f"v_add_f32 v{X[j]}, v{X[j]}, v{XU[j]}")
        pack8(A, X, XR)
        A(f"buffer_store_dwordx4 v[{XR}:{XR+3}], v9, s[{S_X2}:{S_X2+3}], s3 offen sc1")
        for j in range(4):
            A(f"v_lshlrev_b32 v{X[2*j]}, 16, v{XR+j}")
            A(f"v_and_b32 v{X[2*j+1]}, {SM}, v{XR+j}")
        ln_rows(A, [(X, T)], SM)
        for j in range(8): A(f"v_mul_f32 v{X[j]}, v{X[j]}, v{CB+j}")
        round_multi(A, X, T[5:9], SM)
        for j in range(8): A(f"v_add_f32 v{X[j]}, v{X[j]}, v{SB+j}")
        pack8(A, X, 80)
        A(f"buffer_store_dwordx4 v[80:83], v9, s[{S_H}:{S_H+3}], s3 offen sc1")
        for j in range(4):
            A(f"v_lshlrev_b32 v{X[2*j]}, 16, v{80+j}")
            A(f"v_and_b32 v{X[2*j+1]}, {SM}, v{80+j}")
        ln_rows(A, [(X, T)], SM)
        pack8(A, X, 84)
        A(f"buffer_store_dwordx4 v[84:87], v9, s[{S_HN}:{S_HN+3}], s3 offen sc1")
    def g64(self, lab, stage, K, a_off, a_size, a_rb, epi, WB, DW, nbr, next_pf, own_pf=None):
        A = self.A; vm = self.vm; lg = self.lg
        S_G = 8; S_X1 = 16; S_X2 = 20; S_MOD = 24; S_O = 28; S_ST = 36
        KW = K // 4; NCH = KW // 64; NS = NCH * 4; DG = 3
        VG = [4, 5]; AA = 16; BA = 18
        X1 = 24; X2 = 32; GB = 40
        V_PW = 48; V_PR = 49; V_GA = 51; V_SA = 52; VC = (12, 14, 54)
        ACC = 64; FR = 128
        def tail_setup():
            A(f"v_lshrrev_b32 v10, 3, v{L}")
            A(f"v_and_b32 v11, 7, v{L}")
            A(f"v_mul_u32_u24 v{V_PR}, {RS}, v10")
            A(f"v_lshl_add_u32 v{V_PR}, v11, 5, v{V_PR}")
            A(f"s_mul_i32 s{S_TMP+3}, s{S_WAVE}, {8*RS}")
            A(f"v_add_u32 v{V_PR}, s{S_TMP+3}, v{V_PR}")
            A(f"v_add_u32 v{V_PR+1}, {2*RG}, v{V_PR}")
            A(f"v_lshlrev_b32 v{V_GA}, 4, v11")
            A(f"v_lshl_add_u32 v{V_GA}, v10, 10, v{V_GA}")
            A(f"s_lshl_b32 s{S_TMP+2}, s{S_M}, 16")
            A(f"s_lshl_b32 s{S_TMP+3}, s{S_WAVE}, 13")
            A(f"s_add_u32 s{S_TMP+2}, s{S_TMP+2}, s{S_TMP+3}")
            A(f"s_lshl_b32 s{S_TMP+3}, s{S_J}, 7")
            A(f"s_add_u32 s{S_TMP+2}, s{S_TMP+2}, s{S_TMP+3}")
            if epi == "final":
                A(f"v_lshlrev_b32 v{V_SA}, 5, v11")
                make_srd(A, S_X1, P_WS, WS_X1, 2 * MB)
                make_srd(A, S_X2, P_WS, WS_X2, 2 * MB)
                make_srd(A, S_MOD, P_WS, WS_MOD, 3072 * 4)
                make_srd(A, S_O, P_OUT, 0, 2 * MB)
                A(f"buffer_load_dwordx4 v[{X1}:{X1+3}], v{V_GA}, s[{S_X1}:{S_X1+3}], s{S_TMP+2} offen"); vm.issue("e")
                A(f"buffer_load_dwordx4 v[{X2}:{X2+3}], v{V_GA}, s[{S_X2}:{S_X2+3}], s{S_TMP+2} offen"); vm.issue("e")
                A(f"s_lshl_b32 s{S_TMP+3}, s{S_J}, 8")
                A(f"s_add_u32 s{S_TMP+3}, s{S_TMP+3}, {5*2048}")
                for h4 in range(2):
                    A(f"buffer_load_dwordx4 v[{GB+4*h4}:{GB+4*h4+3}], v{V_SA}, s[{S_MOD}:{S_MOD+3}], s{S_TMP+3} offen offset:{h4*16}"); vm.issue("e")
            elif epi == "res":
                A(f"v_lshlrev_b32 v{V_SA}, 3, v10")
                A(f"s_lshl_b32 s{S_TMP+6}, s{S_M}, 9")
                A(f"s_lshl_b32 s{S_TMP+3}, s{S_WAVE}, 6")
                A(f"s_add_u32 s{S_TMP+6}, s{S_TMP+6}, s{S_TMP+3}")
                A(f"s_lshl_b32 s{S_TMP+3}, s{S_J}, 14")
                A(f"s_add_u32 s{S_TMP+6}, s{S_TMP+6}, s{S_TMP+3}")
                make_srd(A, S_X1, P_WS, WS_H, 2 * MB)
                make_srd(A, S_O, P_WS, WS_X1, 2 * MB)
                make_srd(A, S_ST, P_WS, WS_STAT, 2048 * 128)
                A(f"buffer_load_dwordx4 v[{X1}:{X1+3}], v{V_GA}, s[{S_X1}:{S_X1+3}], s{S_TMP+2} offen"); vm.issue("e")
            else:
                A(f"v_mov_b32 v{VC[0]}, {fhex(GK1)}")
                A(f"v_mov_b32 v{VC[1]}, {fhex(GK0)}")
                A(f"v_mov_b32 v{VC[2]}, 1.0")
                make_srd(A, S_O, P_WS, WS_H1 + 2048, 2 * MB)
        A(f"s_cmp_ge_u32 s{S_WAVE}, 4")
        A(f"s_cbranch_scc1 .L{lab}_help")
        if own_pf and PFE == 2: own_pf(NE, 99)
        A(f"v_lshrrev_b32 v7, 3, v{L}")
        A(f"v_and_b32 v8, 7, v{L}")
        A("v_lshrrev_b32 v9, 1, v7")
        A("v_xor_b32 v9, v8, v9")
        A(f"s_movk_i32 s{S_TMP}, {a_rb}")
        A(f"v_mul_lo_u32 v10, v7, s{S_TMP}")
        A(f"v_lshl_add_u32 v{VG[0]}, v9, 4, v10")
        A("v_xor_b32 v9, 4, v9")
        A(f"v_lshl_add_u32 v{VG[1]}, v9, 4, v10")
        A(f"s_mul_i32 s{S_GOFF}, s{S_M}, {64*a_rb}")
        A(f"s_mul_i32 s{S_TMP}, s{S_WAVE}, {KW*2}")
        A(f"s_add_u32 s{S_GOFF}, s{S_GOFF}, s{S_TMP}")
        if epi == "res":
            A(f"s_lshl_b32 s{S_TMP}, s{S_WAVE}, 2")
            A(f"s_lshr_b32 s{S_TMP+1}, 0x4031, s{S_TMP}")
            A(f"s_and_b32 s{S_TMP+1}, s{S_TMP+1}, 15")
            A(f"s_lshl_b32 s{S_TMP+1}, s{S_TMP+1}, 10")
            A(f"s_add_u32 s{S_GOFF}, s{S_GOFF}, s{S_TMP+1}")
        make_srd(A, S_G, P_WS, a_off, a_size)
        A(f"v_lshrrev_b32 v7, 5, v{L}")
        A(f"v_bfe_u32 v8, v{L}, 4, 1")
        A(f"v_bfe_u32 v9, v{L}, 2, 2")
        A(f"v_and_b32 v10, 1, v{L}")
        A(f"v_bfe_u32 v11, v{L}, 1, 1")
        A("v_lshl_or_b32 v10, v10, 1, v11")
        A("v_lshlrev_b32 v10, 3, v10")
        A("v_lshl_add_u32 v10, v8, 5, v10")
        A("v_lshl_add_u32 v11, v7, 3, v9")
        A("v_lshrrev_b32 v12, 1, v9")
        for nb in range(2):
            A(f"v_xor_b32 v13, {nb}, v12")
            A("v_lshl_add_u32 v13, v13, 6, v10")
            A("v_lshl_add_u32 v13, v11, 7, v13")
            A(f"v_add_u32 v{AA+nb}, s{S_RB}, v13")
        A(f"v_and_b32 v8, 31, v{L}")
        A("v_bfe_u32 v9, v8, 1, 3")
        for ks in range(4):
            A(f"v_or_b32 v10, {2*ks}, v7")
            A("v_xor_b32 v10, v10, v9")
            A("v_lshlrev_b32 v10, 4, v10")
            A("v_lshl_add_u32 v10, v8, 7, v10")
            A(f"v_add_u32 v{BA+ks}, s{S_RB}, v10")
        A(f"v_mul_u32_u24 v{V_PW}, {RS}, v8")
        A(f"v_lshl_add_u32 v{V_PW}, v7, 5, v{V_PW}")
        A(f"v_add_u32 v{V_PW}, s{S_RB}, v{V_PW}")
        tail_setup()
        A("s_barrier")
        self.stamp(1 + 4 * stage + 3)
        def dmaG(ch):
            base = (ch % DG) * 8192
            for i in range(8):
                A(f"s_add_u32 m0, s{S_RB}, {base + i * 1024}")
                A(f"s_add_u32 s{S_TMP}, s{S_GOFF}, {i * 8 * a_rb + ch * 128}")
                A(f"buffer_load_dwordx4 v{VG[i & 1]}, s[{S_G}:{S_G+3}], s{S_TMP} offen lds")
                vm.issue(("g", ch))
        for ch in range(min(DG, NCH)): dmaG(ch)
        def reads(step):
            ch, ks = step // 4, step % 4
            buf = FR + (step & 1) * 16
            for nb in range(2):
                for q in range(2):
                    A(f"ds_read_b64_tr_b16 v[{buf+nb*4+q*2}:{buf+nb*4+q*2+1}], v{AA+nb} offset:{WB + (step % DW) * 2048 + q * 512}")
                    lg.issue(("f", step))
            for rb in range(2):
                A(f"ds_read_b128 v[{buf+8+rb*4}:{buf+8+rb*4+3}], v{BA+ks} offset:{(ch % DG) * 8192 + rb * 4096}")
                lg.issue(("f", step))
        def need(step):
            vm.wait(("w", step)); vm.wait(("g", step // 4))
        need(0); reads(0)
        for st in range(NS):
            if st + 1 < NS:
                need(st + 1); reads(st + 1)
            lg.wait(("f", st))
            if st + DW < NS: self.dmaW(st + DW, WB + (st % DW) * 2048)
            if st % 4 == 3 and st // 4 + DG < NCH: dmaG(st // 4 + DG)
            buf = FR + (st & 1) * 16
            for nb in range(2):
                for rb in range(2):
                    acc = ACC + (nb * 2 + rb) * 16
                    c = "0" if st == 0 else f"v[{acc}:{acc+15}]"
                    A(f"v_mfma_f32_32x32x16_bf16 v[{acc}:{acc+15}], v[{buf+nb*4}:{buf+nb*4+3}], v[{buf+8+rb*4}:{buf+8+rb*4+3}], {c}")
        vm.wait("e")
        A("s_nop 7")
        A("s_nop 1")
        for tl in range(4):
            nb, rb = tl >> 1, tl & 1
            for r4 in range(4):
                A(f"ds_write_b128 v{V_PW}, v[{ACC+tl*16+r4*4}:{ACC+tl*16+r4*4+3}] offset:{rb*32*RS + (nb*8 + (r4 >> 1)*4 + (r4 & 1))*16}")
            if tl == 1: A("s_waitcnt lgkmcnt(0)")
        if next_pf and PFE == 1: next_pf()
        A("s_waitcnt lgkmcnt(0)")
        A(f"s_branch .L{lab}_join")
        A.label(f".L{lab}_help")
        sv = list(vm.ops)
        tail_setup()
        vm.ops = sv
        self.poll(stage, nbr)
        A("s_barrier")
        self.stamp(1 + 4 * stage + 3)
        A("s_waitcnt vmcnt(0)")
        A.label(f".L{lab}_join")
        A("s_barrier")
        for p in range(4):
            for h in range(2):
                d = ACC + p * 16 + h * 4
                A(f"ds_read_b128 v[{d}:{d+3}], v{V_PR + (p >> 1)} offset:{(p & 1)*RG + h*16}")
        xs = list(range(ACC, ACC + 8)); tp = list(range(72, 80)); t8 = list(range(88, 96))
        b = ACC
        def unpack(src, dst):
            for k in range(4):
                A(f"v_lshlrev_b32 v{dst[2*k]}, 16, v{src+k}")
                A(f"v_and_b32 v{dst[2*k+1]}, {SM}, v{src+k}")
        if epi != "gelu": unpack(X1, tp)
        if epi == "final": unpack(X2, list(range(104, 112)))
        A("s_waitcnt lgkmcnt(4)")
        for e in range(0, 8, 2): pk(A, "v_pk_add_f32", b + e, b + e, b + 16 + e)
        A("s_waitcnt lgkmcnt(0)")
        for e in range(0, 8, 2): pk(A, "v_pk_add_f32", b + 32 + e, b + 32 + e, b + 48 + e)
        for e in range(0, 8, 2): pk(A, "v_pk_add_f32", b + e, b + e, b + 32 + e)
        round_multi(A, xs, t8, SM)
        def store():
            for k in range(4): A(f"v_cvt_pk_bf16_f32 v{56+k}, v{xs[2*k]}, v{xs[2*k+1]}")
            A(f"buffer_store_dwordx4 v[56:59], v{V_GA}, s[{S_O}:{S_O+3}], s{S_TMP+2} offen sc1")
        if epi == "gelu":
            X = xs; T = tp
            for e in range(0, 8, 2): pk(A, "v_pk_mul_f32", T[e], X[e], X[e])
            for e in range(0, 8, 2): pk(A, "v_pk_fma_f32", T[e], T[e], VC[0], VC[1], "op_sel_hi:[1,0,0]")
            for e in range(0, 8, 2): pk(A, "v_pk_mul_f32", T[e], T[e], X[e])
            for e in range(8): A(f"v_exp_f32 v{T[e]}, v{T[e]}")
            for e in range(0, 8, 2): pk(A, "v_pk_add_f32", T[e], T[e], VC[2], None, "op_sel_hi:[1,0]")
            for e in range(8): A(f"v_rcp_f32 v{T[e]}, v{T[e]}")
            A("s_nop 0")
            for e in range(0, 8, 2): pk(A, "v_pk_mul_f32", X[e], X[e], T[e])
            store()
        elif epi == "res":
            for k in range(0, 8, 2): pk(A, "v_pk_add_f32", xs[k], xs[k], tp[k])
            store()
            unpack(56, xs)
            X = xs
            pk(A, "v_pk_mul_f32", tp[0], X[0], X[0])
            pk(A, "v_pk_add_f32", tp[2], X[0], X[2])
            for e in range(2, 8, 2):
                pk(A, "v_pk_fma_f32", tp[0], X[e], X[e], tp[0])
                if e >= 4: pk(A, "v_pk_add_f32", tp[2], tp[2], X[e])
            A(f"v_add_f32 v20, v{tp[2]}, v{tp[3]}")
            A(f"v_add_f32 v21, v{tp[0]}, v{tp[1]}")
            A("s_nop 1")
            for dpp in ("quad_perm:[1,0,3,2]", "quad_perm:[2,3,0,1]", "row_half_mirror"):
                for v in (20, 21):
                    A(f"v_add_f32_dpp v{v}, v{v}, v{v} {dpp} row_mask:0xf bank_mask:0xf")
                A("s_nop 1")
            A("v_and_b32 v10, 7, v1")
            A("v_cmp_eq_u32 vcc, 0, v10")
            A("s_and_saveexec_b64 s[78:79], vcc")
            A(f"buffer_store_dwordx2 v[20:21], v{V_SA}, s[{S_ST}:{S_ST+3}], s{S_TMP+6} offen sc1")
            A("s_mov_b64 exec, s[78:79]")
        else:
            for k in range(0, 8, 2): pk(A, "v_pk_add_f32", xs[k], xs[k], tp[k])
            round_multi(A, xs, t8, SM)
            for k in range(0, 8, 2): pk(A, "v_pk_mul_f32", xs[k], xs[k], GB + k)
            round_multi(A, xs, t8, SM)
            for k in range(0, 8, 2): pk(A, "v_pk_add_f32", xs[k], xs[k], 104 + k)
            store()
    def k5(self, stage, next_pf, own_pf=None):
        A = self.A; vm = self.vm; lg = self.lg
        S_A = 8; S_O = 20; S_ST = 24; S_CS = 28
        VB = [16, 28]; AA = 24; ACC = 64; FQ = 128
        D = K5D
        A(f"s_cmp_lt_u32 s{S_WAVE}, 4")
        A("s_cbranch_scc1 .Lk5_main")
        A(f"s_cmp_eq_u32 s{S_J}, 7")
        A("s_cbranch_scc1 .Lk5_end")
        self.poll(stage)
        A("s_barrier")
        A("s_barrier")
        A("s_branch .Lk5_end")
        A.label(".Lk5_main")
        A(f"s_cmp_eq_u32 s{S_J}, 7")
        A("s_cbranch_scc1 .Lk5_pf")
        if own_pf and PFE == 2: own_pf(NE, 99)
        make_srd(A, S_A, P_WS, WS_X1, 2 * MB)
        make_srd(A, S_ST, P_WS, WS_STAT, 2048 * 128)
        make_srd(A, S_CS, P_WS, WS_CS, 1792 * 4)
        make_srd(A, S_O, P_WS, WS_G, 2048 * 3584)
        A(f"v_lshlrev_b32 v4, 4, v{L}")
        A(f"s_lshl_b32 s{S_TMP}, s{S_M}, 16")
        A(f"s_lshl_b32 s{S_TMP+1}, s{S_WAVE}, 14")
        A(f"s_add_u32 s{S_TMP}, s{S_TMP}, s{S_TMP+1}")
        A(f"s_lshl_b32 s{S_TMP+6}, s{S_J}, 9")
        A(f"s_lshl_b32 s{S_TMP+2}, s{S_WAVE}, 7")
        A(f"s_add_u32 s{S_TMP+6}, s{S_TMP+6}, s{S_TMP+2}")
        A(f"v_lshrrev_b32 v5, 5, v{L}")
        A(f"v_bfe_u32 v7, v{L}, 4, 1")
        A(f"v_bfe_u32 v8, v{L}, 2, 2")
        A(f"v_and_b32 v9, 1, v{L}")
        A(f"v_bfe_u32 v10, v{L}, 1, 1")
        A("v_lshl_or_b32 v9, v9, 1, v10")
        A("v_lshlrev_b32 v9, 3, v9")
        A("v_lshl_add_u32 v9, v7, 5, v9")
        A("v_lshl_add_u32 v10, v5, 3, v8")
        A("v_lshrrev_b32 v11, 1, v8")
        for nb in range(2):
            A(f"v_xor_b32 v12, {nb}, v11")
            A("v_lshl_add_u32 v12, v12, 6, v9")
            A("v_lshl_add_u32 v12, v10, 7, v12")
            A(f"v_add_u32 v{AA+nb}, s{S_RB}, v12")
        A(f"v_and_b32 v13, 31, v{L}")
        A("v_lshrrev_b32 v7, 4, v13")
        A(f"v_mul_u32_u24 v7, {RG // 1024}, v7")
        A("v_and_b32 v8, 15, v13")
        A("v_add_u32 v7, v7, v8")
        for j in range(8):
            A(f"v_or_b32 v8, {2*j}, v5")
            A("v_xor_b32 v8, v8, v13")
            A("v_and_b32 v8, 15, v8")
            A("v_lshlrev_b32 v8, 4, v8")
            A(f"v_lshl_add_u32 v{VB[0]+j}, v7, 10, v8")
            A(f"v_add_u32 v{VB[1]+j}, {2*RG}, v{VB[0]+j}")
        ST = 192; CS = 224
        A("v_lshlrev_b32 v7, 5, v5")
        A(f"s_lshl_b32 s{S_TMP+2}, s{S_TMP+6}, 1")
        for nb in range(2):
            for mp in range(2):
                for h4 in range(2):
                    A(f"buffer_load_dwordx4 v[{CS+(nb*2+mp)*8+4*h4}:{CS+(nb*2+mp)*8+4*h4+3}], v7, s[{S_CS}:{S_CS+3}], s{S_TMP+2} offen offset:{(32*nb+16*mp+4*h4)*4}"); vm.issue("st")
        VS = 36
        A("v_and_b32 v7, 7, v13")
        A(f"s_add_u32 s{S_TMP+3}, s{S_RB}, {K5RB}")
        for j in range(4):
            A(f"v_or_b32 v14, {2*j}, v5")
            A("v_xor_b32 v14, v14, v7")
            A("v_lshlrev_b32 v14, 4, v14")
            A("v_lshl_add_u32 v14, v13, 7, v14")
            A(f"v_add_u32 v{VS+j}, s{S_TMP+3}, v14")
        A(f"v_lshrrev_b32 v7, 3, v{L}")
        A(f"v_and_b32 v14, 7, v{L}")
        A(f"v_xor_b32 v{VS+4}, v14, v7")
        A(f"v_lshlrev_b32 v{VS+4}, 4, v{VS+4}")
        A(f"v_lshl_add_u32 v{VS+4}, v7, 7, v{VS+4}")
        A(f"v_add_u32 v{VS+4}, s{S_TMP+3}, v{VS+4}")
        A(f"s_movk_i32 s{S_TMP+2}, 3584")
        A(f"v_mul_lo_u32 v7, v7, s{S_TMP+2}")
        A(f"v_lshl_add_u32 v{VS+5}, v14, 4, v7")
        A(f"s_mul_i32 s{S_TMP+4}, s{S_M}, {64*3584}")
        A(f"s_add_u32 s{S_TMP+4}, s{S_TMP+4}, s{S_TMP+6}")
        A(f"s_add_u32 s{S_TMP+5}, s{S_TMP+4}, {32*3584}")
        A("v_lshlrev_b32 v7, 3, v13")
        A("v_lshl_add_u32 v7, v5, 16, v7")
        A(f"s_lshl_b32 s{S_TMP+7}, s{S_M}, 9")
        A("s_barrier")
        self.stamp(1 + 4 * stage + 3)
        for i in range(16):
            t = 8 + (i & 1)
            A(f"v_xor_b32 v{t}, {i << 4}, v4")
            A(f"s_add_u32 m0, s{S_RB}, {i * 1024}")
            A(f"s_add_u32 s{S_TMP+2}, s{S_TMP}, {i * 1024}")
            A(f"buffer_load_dwordx4 v{t}, s[{S_A}:{S_A+3}], s{S_TMP+2} offen lds")
            vm.issue("act")
        for q in range(4):
            A(f"s_add_u32 s{S_TMP+3}, s{S_TMP+7}, {q*16384}")
            for rb in range(2):
                A(f"buffer_load_dwordx2 v[{ST+16*rb+2*q}:{ST+16*rb+2*q+1}], v7, s[{S_ST}:{S_ST+3}], s{S_TMP+3} offen offset:{rb*256}"); vm.issue("st")
        vm.wait("act")
        A("s_barrier")
        def reads(step):
            buf = FQ + (step & 1) * 16
            for nb in range(2):
                for q in range(2):
                    A(f"ds_read_b64_tr_b16 v[{buf+nb*4+q*2}:{buf+nb*4+q*2+1}], v{AA+nb} offset:{K5RB + (step % D) * 2048 + q * 512}")
                    lg.issue(("f", step))
            for rb in range(2):
                A(f"ds_read_b128 v[{buf+8+rb*4}:{buf+8+rb*4+3}], v{VB[rb] + (step & 7)} offset:{(step >> 3) * 256}")
                lg.issue(("f", step))
        PKC = [[44, 46, 48, 50], [52, 54, 56, 58]]
        E = []
        for stg in range(17):
            for rb in range(2):
                b = ST + 16 * rb; c = PKC[rb]
                E.append([f"v_add_f32 v{b}, v{b}, v{b+2}", f"v_add_f32 v{b+1}, v{b+1}, v{b+3}",
                          f"v_add_f32 v{b+4}, v{b+4}, v{b+6}", f"v_add_f32 v{b+5}, v{b+5}, v{b+7}",
                          f"v_add_f32 v{b}, v{b}, v{b+4}", f"v_add_f32 v{b+1}, v{b+1}, v{b+5}",
                          f"v_mov_b32 v{b+2}, v{b}", f"v_mov_b32 v{b+3}, v{b+1}", "s_nop 1",
                          f"v_permlane32_swap_b32 v{b}, v{b+2}", f"v_permlane32_swap_b32 v{b+1}, v{b+3}", "s_nop 1",
                          f"v_add_f32 v{b}, v{b}, v{b+2}", f"v_add_f32 v{b+1}, v{b+1}, v{b+3}",
                          f"v_mul_f32 v{c[0]}, {fhex(-1/512)}, v{b}", f"v_mul_f32 v{b+1}, {fhex(1/512)}, v{b+1}",
                          f"v_fma_f32 v{b+1}, -v{c[0]}, v{c[0]}, v{b+1}"][stg])
        for stg in range(9):
            for rb in range(2):
                b = ST + 16 * rb; c = PKC[rb]
                E.append([f"v_max_f32 v{b+1}, 0, v{b+1}", f"v_add_f32 v{b+1}, {fhex(1e-5)}, v{b+1}",
                          f"v_rsq_f32 v{b+2}, v{b+1}", f"v_sqrt_f32 v{c[3]}, v{b+1}", "s_nop 0",
                          f"v_mul_f32 v{c[2]}, {fhex(GK0)}, v{b+2}", f"v_mul_f32 v{c[1]}, v{b+2}, v{b+2}",
                          f"v_mul_f32 v{c[1]}, v{c[1]}, v{b+2}", f"v_mul_f32 v{c[1]}, {fhex(GK1)}, v{c[1]}"][stg])
        vm.wait(("w", 0)); reads(0)
        k = 0
        for ks in range(32):
            if ks + 1 < 32:
                vm.wait(("w", ks + 1)); reads(ks + 1)
            lg.wait(("f", ks))
            if ks + D < 32: self.dmaW(ks + D, K5RB + (ks % D) * 2048)
            buf = FQ + (ks & 1) * 16
            for nb in range(2):
                for rb in range(2):
                    acc = ACC + (nb * 2 + rb) * 16
                    c = "0" if ks == 0 else f"v[{acc}:{acc+15}]"
                    A(f"v_mfma_f32_32x32x16_bf16 v[{acc}:{acc+15}], v[{buf+nb*4}:{buf+nb*4+3}], v[{buf+8+rb*4}:{buf+8+rb*4+3}], {c}")
            if 14 <= ks < 28:
                if ks == 14: vm.wait("st")
                upto = len(E) * (ks - 13) // 14
                while k < upto: A(E[k]); k += 1
        if PFE == 1: next_pf()
        else:
            A("s_nop 7"); A("s_nop 3")
        def flush5(rb):
            A("s_waitcnt lgkmcnt(0)")
            for i in range(4):
                A(f"ds_read_b128 v[{192+16*rb+4*i}:{192+16*rb+4*i+3}], v{VS+4} offset:{rb*4096 + i*1024}")
        def store5(rb):
            for i in range(4):
                if rb == 1: A(f"s_waitcnt lgkmcnt({3-i})")
                A(f"s_add_u32 s{S_TMP+3}, s{S_TMP+4+rb}, {i*8*3584}")
                A(f"buffer_store_dwordx4 v[{192+16*rb+4*i}:{192+16*rb+4*i+3}], v{VS+5}, s[{S_O}:{S_O+3}], s{S_TMP+3} offen sc1")
        for rb in range(2):
            for nb in range(2):
                acc = ACC + (nb * 2 + rb) * 16
                if rb == 1 and nb == 1:
                    A("s_waitcnt lgkmcnt(2)")
                    store5(0)
                for mp in range(2):
                    d = 160 + (nb * 4 + rb * 2 + mp) * 4
                    xs = [acc + 8 * mp + e for e in range(8)]
                    ts = list(range(128, 136)); cs = CS + (nb * 2 + mp) * 8; c = PKC[rb]
                    for e in range(0, 8, 2): pk(A, "v_pk_fma_f32", xs[e], cs + e, c[0], xs[e], "op_sel_hi:[1,0,1]")
                    for e in range(0, 8, 2): pk(A, "v_pk_mul_f32", ts[e], xs[e], xs[e])
                    for e in range(0, 8, 2): pk(A, "v_pk_fma_f32", ts[e], ts[e], c[1], c[2], "op_sel_hi:[1,0,0]")
                    for e in range(0, 8, 2): pk(A, "v_pk_mul_f32", ts[e], ts[e], xs[e])
                    for t in ts: A(f"v_exp_f32 v{t}, v{t}")
                    for e in range(0, 8, 2): pk(A, "v_pk_fma_f32", ts[e], ts[e], c[3], c[3], "op_sel_hi:[1,0,0]")
                    for t in ts: A(f"v_rcp_f32 v{t}, v{t}")
                    A("s_nop 0")
                    for e in range(0, 8, 2): pk(A, "v_pk_mul_f32", xs[e], xs[e], ts[e])
                    for e in range(0, 8, 2): A(f"v_cvt_pk_bf16_f32 v{d+e//2}, v{xs[e]}, v{xs[e+1]}")
                    A(f"ds_write_b128 v{VS+2*nb+mp}, v[{d}:{d+3}] offset:{rb*4096}")
            flush5(rb)
        store5(1)
        A("s_branch .Lk5_end")
        A.label(".Lk5_pf")
        if PFE == 1: next_pf(alt=True)
        A.label(".Lk5_end")

def gen_km(A):
    name = "k1_kernel"
    M = Mega(A)
    def pre():
        if MT:
            M.persist(); M.stamp(0); M.vm.ops = []
    K1.gen_k1(A, emb=True, pre=pre)
    M.persist()
    M.transition(0)
    M.kr()
    M.transition(1)
    pf4 = lambda lo=0, hi=99: M.pf_g64(1, 512, 24576, 8, lo, hi)
    pf6 = lambda lo=0, hi=99, alt=False: M.pf_g64(3, 1792, 26624, 7, lo, hi)
    M.g64("k3", 1, 512, WS_HN, 2 * MB, 1024, "gelu", 24576, 8, False, pf4)
    M.transition(2, pf4)
    M.g64("k4", 2, 512, WS_H1, 2052 * 1024, 1024, "res", 24576, 8, True, M.pf_k5, pf4)
    M.transition(3, M.pf_k5)
    M.k5(3, pf6, M.pf_k5)
    M.transition(4, pf6)
    M.g64("k6", 4, 1792, WS_G, 2048 * 3584, 3584, "final", 26624, 7, False, None, pf6)
    M.stamp(21)
    if MT: A("s_waitcnt vmcnt(0)")
    M.stamp(22)
    A("s_endpgm")
    A.raw(kernel_desc(name, 256, 102, 256))
    return (name, (256, 1, 1), (512, 1, 1), 163840)
```

```python
import sys, os
from asmlib import *
from gen_k0 import *
import importlib

HEADER = open("adaLN_cond__sliding_block_cached__mixer_s_mlp__prompt.s.ref").read().split("; Override launch geometry")[0]

def build(kernels, out):
    A = Asm()
    launches = []
    for k in kernels:
        launches.append(k(A))
    txt = HEADER
    for (name, g, b, lds) in launches:
        txt += f"; @launch kernel={name} grid=({g[0]},{g[1]},{g[2]}) block=({b[0]},{b[1]},{b[2]}) lds={lds}\n"
    txt += '.amdgcn_target "amdgcn-amd-amdhsa--gfx950"\n.text\n'
    txt += A.text()
    txt += '.Lcode_end:\n'
    open(out, "w").write(txt)

if __name__ == "__main__":
    ks = [gen_k0]
    if int(os.environ.get('K0N','0')):
        import gen_k0n
        ks = [gen_k0n.gen_k0]
    for mod, fn in (("gen_k1x" if int(os.environ.get("K1X","0")) else "gen_k1", "gen_k1"), *((("gen_kq", "gen_kq"),) if int(os.environ.get("USEKQ","0")) else (("gen_kr", "gen_kr"), ("gen_g64", "gen_k3"))), ("gen_g64", "gen_k4"), *((("gen_k56", "gen_k56"), ("gen_k56", "gen_kf")) if int(os.environ.get("USE56","0")) else (("gen_k5n" if int(os.environ.get("K5N","0")) else "gen_k5", "gen_k5"), ("gen_g64", "gen_k6")))):
        try:
            m = importlib.import_module(mod)
        except ModuleNotFoundError:
            continue
        ks.append(getattr(m, fn))
    MG = int(os.environ.get("MEGA", "7"))
    if MG:
        import gen_mega
        import gen_mega2
        ks = ks[:2 if MG == 1 else (0 if MG >= 4 else 1)] + [gen_mega2.gen_km if MG >= 3 else gen_mega.gen_km]
    out = sys.argv[1] if len(sys.argv) > 1 else "adaLN_cond__sliding_block_cached__mixer_s_mlp__prompt.s"
    build(ks, out)
    print("wrote", out)
```

```python
from asmlib import *
from gen_k0 import *
import os
DEBUG = int(os.environ.get("K1DEBUG", "0"))
PART_BF16 = int(os.environ.get("PARTBF16", "1"))
MIMIC = int(os.environ.get("MIMIC", "0"))
LAZY = int(os.environ.get("LAZY", "1"))
THR = float(os.environ.get("THR","30.0"))
TIMING = int(os.environ.get("TIMING", "0"))
USEPK = int(os.environ.get("USEPK", "0"))
EXPT = int(os.environ.get("EXPT", "0"))
NOMAX = int(os.environ.get("NOMAX", "0"))
DOT2 = int(os.environ.get("DOT2", "0"))

class Cnt:
    def __init__(self, A, name, maxv):
        self.A = A; self.name = name; self.maxv = maxv; self.ops = []
    def issue(self, tag):
        self.ops.append(tag)
        assert len(self.ops) <= self.maxv + 1 or self.name == "vmcnt", (self.name, len(self.ops))
    def wait(self, tag):
        idx = None
        for i, t in enumerate(self.ops):
            if t == tag: idx = i
        if idx is None:
            return
        n = len(self.ops) - 1 - idx
        assert n <= self.maxv, (self.name, n)
        self.A(f"s_waitcnt {self.name}({n})")
        self.ops = self.ops[idx+1:]
    def waitall(self):
        self.A(f"s_waitcnt {self.name}(0)")
        self.ops = []

class Stamper:
    def __init__(self, A, lg, srd, swave, base=72):
        self.A = A; self.lg = lg; self.n = 0; self.srd = srd; self.swave = swave; self.base = base
    def __call__(self, real=False):
        if not TIMING: return
        A = self.A
        self.lg.waitall()
        A("s_memrealtime s[70:71]" if (real or TIMING == 2) else "s_memtime s[70:71]")
        A("s_waitcnt lgkmcnt(0)")
        A(f"s_mov_b32 s{self.base+self.n}, s70")
        self.n += 1
    def flush(self):
        if not TIMING: return
        A = self.A
        A(f"s_lshl_b32 s70, s2, 3")
        A(f"s_add_u32 s70, s70, s{self.swave}")
        A(f"s_lshl_b32 s70, s70, 7")
        A("v_mov_b32 v5, 0")
        for i in range(self.n):
            A(f"v_mov_b32 v6, s{self.base+i}")
            A(f"buffer_store_dword v6, v5, s[{self.srd}:{self.srd+3}], s70 offen offset:{4*i}")

ACT = 0
STG = 65536
KRING = STG + 3 * 16384
VRING = STG
V_LANE = 1
V_BADDR = 16; V_AADDR = 24; V_WQOFF = 26; V_WOOFF = 27
V_KADDR = 28; V_VADDR = 36; V_KOFF = 40; V_VOFF = 42
V_M = 43; V_L = 44; V_ALPHA = 46; V_NEGC = 48
V_QADDR = 50
V_T = 58
V_ACC = 64
V_Q = 128
V_S = 160
V_F = 224
NF = 8
RA = int(os.environ.get('RA','6'))
PRIO = int(os.environ.get('PRIO','0'))
CT = int(os.environ.get('CT','1'))
V_NB = 48
S_XN = 8; S_MOD = 12; S_WQ = 16; S_K = 20; S_V = 24; S_WO = 28; S_P = 32; S_DBG = 36
S_WAVE = 40; S_G = 41; S_M = 42; S_RB = 43; S_OFF = 44; S_MASK = 45; S_KVOFF = 46; S_KVM0 = 47
S_C1 = 48; S_K2 = 50; S_SC = 52; S_L2E = 54
S_TMP = 56
S_SL = 66
S_FLAG = 64
S_QOFF = 67
SCALE = 128 ** -0.5

def gemm_dma(A, vm, step, srd, voff, rowstride, D):
    for half in range(2):
        A(f"s_add_u32 m0, s{S_RB}, {(step % D) * 2048 + half * 1024}")
        A("s_nop 0")
        A(f"buffer_load_dwordx4 v{voff}, s[{srd}:{srd+3}], s{S_OFF} offen lds")
        vm.issue(("w", step))
        A(f"s_add_u32 s{S_OFF}, s{S_OFF}, {8 * rowstride}")

def gemm_reads(A, lg, step, D):
    buf = V_Q + (step & 1) * 16
    if (EXPT & 128) and step > 1: return
    for nb in range(2):
        for q in range(2):
            A(f"ds_read_b64_tr_b16 v[{buf+nb*4+q*2}:{buf+nb*4+q*2+1}], v{V_AADDR+nb} offset:{(step % D) * 2048 + q * 512}")
            lg.issue(("f", step))
    for rb in range(2):
        A(f"ds_read_b128 v[{buf+8+rb*4}:{buf+8+rb*4+3}], v{V_BADDR + (step & 7)} offset:{(step >> 3) * 256 + rb * 32768}")
        lg.issue(("f", step))

def gemm_core(A, vm, lg, srd, voff, rowstride, D=4, NS=32):
    vm.wait(("w", 0))
    gemm_reads(A, lg, 0, D)
    for ks in range(NS):
        if ks + 1 < NS:
            vm.wait(("w", ks + 1))
            gemm_reads(A, lg, ks + 1, D)
        lg.wait(("f", ks))
        if ks + D < NS and not (EXPT & 32):
            gemm_dma(A, vm, ks + D, srd, voff, rowstride, D)
        buf = V_Q + (ks & 1) * 16
        for nb in range(2):
            for rb in range(2):
                acc = V_ACC + (nb * 2 + rb) * 16
                c = "0" if ks == 0 else f"v[{acc}:{acc+15}]"
                if (EXPT & 64) and ks > 0: continue
                A(f"v_mfma_f32_32x32x16_bf16 v[{acc}:{acc+15}], v[{buf+nb*4}:{buf+nb*4+3}], v[{buf+8+rb*4}:{buf+8+rb*4+3}], {c}")

D6 = int(os.environ.get("D6", "1"))
V_AADDR2 = (43, 45)
def slot6(step): return (step + 2) % 6
def gemm_dma6(A, vm, step, srd, voff, rowstride):
    for half in range(2):
        A(f"s_add_u32 m0, s{S_RB}, {slot6(step) * 16384 + half * 1024}")
        A("s_nop 0")
        A(f"buffer_load_dwordx4 v{voff}, s[{srd}:{srd+3}], s{S_OFF} offen {os.environ.get('WONT', '') if srd == S_WO else ''} lds")
        vm.issue(("w", step))
        A(f"s_add_u32 s{S_OFF}, s{S_OFF}, {8 * rowstride}")
IL6 = int(os.environ.get("IL6", "0"))
def gemm_reads6(A, lg, step):
    buf = V_Q + ((step % 3) if IL6 else (step & 1)) * 16
    sl = slot6(step)
    for nb in range(2):
        for q in range(2):
            a = V_AADDR + nb if sl < 4 else V_AADDR2[nb]
            A(f"ds_read_b64_tr_b16 v[{buf+nb*4+q*2}:{buf+nb*4+q*2+1}], v{a} offset:{(sl & 3) * 16384 + q * 512}")
            lg.issue(("f", step))
    for rb in range(2):
        A(f"ds_read_b128 v[{buf+8+rb*4}:{buf+8+rb*4+3}], v{V_BADDR + (step & 7)} offset:{(step >> 3) * 256 + rb * 32768}")
        lg.issue(("f", step))
def gemm_core6(A, vm, lg, srd, voff, rowstride, pre, tail=None, NS=32, bars=()):
    for st in range(pre, 6): gemm_dma6(A, vm, st, srd, voff, rowstride)
    if IL6:
        for s0 in range(2):
            vm.wait(("w", s0)); gemm_reads6(A, lg, s0)
        for ks in range(NS):
            lg.wait(("f", ks))
            sv = A.lines; A.lines = []
            if IL6 == 2:
                if ks + 6 < NS: gemm_dma6(A, vm, ks + 6, srd, voff, rowstride)
                elif tail: tail(ks)
            if ks + 2 < NS:
                vm.wait(("w", ks + 2)); gemm_reads6(A, lg, ks + 2)
            if IL6 == 1:
                if ks + 6 < NS: gemm_dma6(A, vm, ks + 6, srd, voff, rowstride)
                elif tail: tail(ks)
            fill = A.lines; A.lines = sv
            buf = V_Q + (ks % 3) * 16
            k = 0
            for i in range(4):
                nb, rb = i >> 1, i & 1
                acc = V_ACC + (nb * 2 + rb) * 16
                c = "0" if ks == 0 else f"v[{acc}:{acc+15}]"
                A(f"v_mfma_f32_32x32x16_bf16 v[{acc}:{acc+15}], v[{buf+nb*4}:{buf+nb*4+3}], v[{buf+8+rb*4}:{buf+8+rb*4+3}], {c}")
                upto = (len(fill) * (i + 1) + 3) // 4
                A.lines.extend(fill[k:upto]); k = upto
        return
    vm.wait(("w", 0))
    gemm_reads6(A, lg, 0)
    for ks in range(NS):
        if ks + 1 < NS:
            vm.wait(("w", ks + 1))
            gemm_reads6(A, lg, ks + 1)
        lg.wait(("f", ks))
        if ks + 6 < NS:
            gemm_dma6(A, vm, ks + 6, srd, voff, rowstride)
        elif tail: tail(ks)
        if ks in bars: A("s_barrier")
        buf = V_Q + (ks & 1) * 16
        for nb in range(2):
            for rb in range(2):
                acc = V_ACC + (nb * 2 + rb) * 16
                c = "0" if ks == 0 else f"v[{acc}:{acc+15}]"
                A(f"v_mfma_f32_32x32x16_bf16 v[{acc}:{acc+15}], v[{buf+nb*4}:{buf+nb*4+3}], v[{buf+8+rb*4}:{buf+8+rb*4+3}], {c}")

def k_dma(A, vm, t):
    A(f"s_mov_b32 s{S_KVOFF}, {t * 16384}")
    A(f"s_add_u32 m0, s{S_KVM0}, {KRING + ((t + 1) % 3) * 16384}")
    A("s_nop 0")
    A(f"buffer_load_dwordx4 v{V_KOFF}, s[{S_K}:{S_K+3}], s{S_KVOFF} offen lds")
    vm.issue(("k", t))
    A(f"buffer_load_dwordx4 v{V_KOFF+1}, s[{S_K}:{S_K+3}], s{S_KVOFF} offen offset:1024 lds")
    vm.issue(("k", t))
def v_dma(A, vm, t):
    A(f"s_mov_b32 s{S_KVOFF}, {t * 16384}")
    A(f"s_add_u32 m0, s{S_KVM0}, {VRING + (t % 3) * 16384}")
    A("s_nop 0")
    A(f"buffer_load_dwordx4 v{V_VOFF}, s[{S_V}:{S_V+3}], s{S_KVOFF} offen lds")
    vm.issue(("v", t))
    A(f"buffer_load_dwordx4 v{V_VOFF}, s[{S_V}:{S_V+3}], s{S_KVOFF} offen offset:1024 lds")
    vm.issue(("v", t))

def sm_max(t):
    S = V_S + (t & 1) * 32
    mx = 2 if CT else V_T
    L = []
    if NOMAX and t > 0: return []
    L.append(f"v_max3_f32 v{mx}, v{S}, v{S+1}, v{S+2}")
    L.append(f"v_max3_f32 v{mx+1}, v{S+3}, v{S+4}, v{S+5}")
    for i in range(6, 30, 4):
        L.append(f"v_max3_f32 v{mx}, v{mx}, v{S+i}, v{S+i+1}")
        L.append(f"v_max3_f32 v{mx+1}, v{mx+1}, v{S+i+2}, v{S+i+3}")
    L.append(f"v_max3_f32 v{mx}, v{mx}, v{S+30}, v{S+31}")
    L.append(f"v_max_f32 v{mx}, v{mx}, v{mx+1}")
    L.append(f"v_mov_b32 v{mx+1}, v{mx}")
    L.append("s_nop 1")
    L.append(f"v_permlane32_swap_b32 v{mx}, v{mx+1}")
    L.append("s_nop 1")
    L.append(f"v_max_f32 v{mx}, v{mx}, v{mx+1}")
    g, d = mx + 1, mx + 2
    if CT:
        if t == 0:
            for i in range(16): L.append(f"v_sub_f32 v{V_NB+i}, 0, v{mx}")
            for i in range(32): L.append(f"v_sub_f32 v{S+i}, v{S+i}, v{mx}")
            return L
        lbl = f".Lk1_nors_{t}"
        L.append(f"v_cmp_lt_f32 vcc, {fhex(THR)}, v{mx}")
        L.append(f"s_mov_b64 s[{S_FLAG}:{S_FLAG+1}], vcc")
        L.append([f"s_cbranch_vccz {lbl}",
                  f"v_max_f32 v{mx}, 0, v{mx}",
                  f"v_sub_f32 v{V_ALPHA}, 0, v{mx}",
                  f"v_exp_f32 v{V_ALPHA}, v{V_ALPHA}"]
                 + [f"v_sub_f32 v{V_NB+i}, v{V_NB+i}, v{mx}" for i in range(16)]
                 + [f"v_sub_f32 v{S+i}, v{S+i}, v{mx}" for i in range(32)]
                 + [f"v_mul_f32 v{V_L}, v{V_L}, v{V_ALPHA}", f"{lbl}:"])
        return L
    if MIMIC:
        L.append(f"v_mul_f32 v{g}, s{S_C1}, v{mx}")
        L.append(f"v_sub_f32 v{d}, v{mx}, v{g}")
        L.append(f"v_add_f32 v{mx}, v{g}, v{d}")
        L.append(f"v_mul_f32 v{g}, s{S_K2}, v{mx}")
        L.append(f"v_fma_f32 v{d}, v{mx}, s{S_SC}, -v{g}")
        L.append(f"v_add_f32 v{mx}, v{g}, v{d}")
    else:
        L.append(f"v_mul_f32 v{mx}, s{S_SC}, v{mx}")
    if LAZY and t > 0:
        lbl = f".Lk1_nors_{t}"
        L.append(f"v_sub_f32 v{V_ALPHA}, v{V_M}, v{mx}")
        L.append(f"v_cmp_gt_f32 vcc, {fhex(-THR / LOG2E)}, v{V_ALPHA}")
        L.append(f"s_mov_b64 s[{S_FLAG}:{S_FLAG+1}], vcc")
        L.append([f"s_cbranch_vccz {lbl}",
                  f"v_max_f32 v{mx}, v{mx}, v{V_M}",
                  f"v_sub_f32 v{V_ALPHA}, v{V_M}, v{mx}",
                  f"v_mul_f32 v{V_ALPHA}, s{S_L2E}, v{V_ALPHA}",
                  f"v_exp_f32 v{V_ALPHA}, v{V_ALPHA}",
                  f"v_mov_b32 v{V_M}, v{mx}",
                  f"v_mul_f32 v{V_NEGC}, s{S_L2E}, v{mx}",
                  f"v_sub_f32 v{V_NEGC}, 0, v{V_NEGC}",
                  f"v_mul_f32 v{V_L}, v{V_L}, v{V_ALPHA}",
                  f"{lbl}:"])
        return L
    if t > 0:
        L.append(f"v_max_f32 v{mx}, v{mx}, v{V_M}")
        L.append(f"v_sub_f32 v{V_ALPHA}, v{V_M}, v{mx}")
        L.append(f"v_mul_f32 v{V_ALPHA}, s{S_L2E}, v{V_ALPHA}")
        L.append(f"v_exp_f32 v{V_ALPHA}, v{V_ALPHA}")
    L.append(f"v_mov_b32 v{V_M}, v{mx}")
    L.append(f"v_mul_f32 v{V_NEGC}, s{S_L2E}, v{mx}")
    L.append(f"v_sub_f32 v{V_NEGC}, 0, v{V_NEGC}")
    return L

PSUM = 10
def sm_quarter(t, q):
    S = V_S + (t & 1) * 32
    L = []
    pairs = list(range(8 * q, 8 * q + 8, 2))
    def pre(i):
        x = f"v[{S+i}:{S+i+1}]"
        k = (i >> 1) & 1
        g = f"v[{2+4*k}:{3+4*k}]"; d = f"v[{4+4*k}:{5+4*k}]"
        if CT:
            return []
        if not USEPK:
            out = []
            xs = [S + i, S + i + 1]; gs = [2 + 4 * k, 3 + 4 * k]; ds = [4 + 4 * k, 5 + 4 * k]
            if MIMIC:
                for op in range(7):
                    for e in range(2):
                        x_, g_, d_ = xs[e], gs[e], ds[e]
                        out.append([f"v_mul_f32 v{g_}, s{S_C1}, v{x_}",
                                    f"v_sub_f32 v{d_}, v{x_}, v{g_}",
                                    f"v_add_f32 v{x_}, v{g_}, v{d_}",
                                    f"v_mul_f32 v{g_}, s{S_K2}, v{x_}",
                                    f"v_fma_f32 v{d_}, v{x_}, s{S_SC}, -v{g_}",
                                    f"v_add_f32 v{x_}, v{g_}, v{d_}",
                                    f"v_fma_f32 v{x_}, v{x_}, s{S_L2E}, v{V_NEGC}"][op])
            else:
                for e in range(2):
                    out.append(f"v_fma_f32 v{xs[e]}, v{xs[e]}, s{S_SL}, v{V_NEGC}")
            return out
        if MIMIC:
            return [f"v_pk_mul_f32 {g}, {x}, s[{S_C1}:{S_C1+1}]",
                    f"v_pk_add_f32 {d}, {x}, {g} neg_lo:[0,1] neg_hi:[0,1]",
                    f"v_pk_add_f32 {x}, {g}, {d}",
                    f"v_pk_mul_f32 {g}, {x}, s[{S_K2}:{S_K2+1}]",
                    f"v_pk_fma_f32 {d}, {x}, s[{S_SC}:{S_SC+1}], {g} neg_lo:[0,0,1] neg_hi:[0,0,1]",
                    f"v_pk_add_f32 {x}, {g}, {d}",
                    f"v_pk_fma_f32 {x}, {x}, s[{S_L2E}:{S_L2E+1}], v[{V_NEGC}:{V_NEGC+1}] op_sel_hi:[1,1,0]"]
        return [f"v_pk_mul_f32 {x}, {x}, s[{S_SC}:{S_SC+1}]",
                f"v_pk_fma_f32 {x}, {x}, s[{S_L2E}:{S_L2E+1}], v[{V_NEGC}:{V_NEGC+1}] op_sel_hi:[1,1,0]"]
    for a in range(0, 4, 2):
        p0, p1 = pre(pairs[a]), pre(pairs[a + 1])
        for x, y in zip(p0, p1):
            L += [x, y]
        for i in (pairs[a], pairs[a + 1]):
            L.append(f"v_exp_f32 v{S+i}, v{S+i}")
            L.append(f"v_exp_f32 v{S+i+1}, v{S+i+1}")
    L.append("s_nop 0")
    for i in pairs:
        if DOT2:
            L.append(f"v_cvt_pk_bf16_f32 v{S + i // 2}, v{S+i}, v{S+i+1}")
            continue
        if i == 0:
            L.append(f"v_mov_b32 v{PSUM}, v{S}")
            L.append(f"v_mov_b32 v{PSUM+1}, v{S+1}")
        elif USEPK:
            L.append(f"v_pk_add_f32 v[{PSUM}:{PSUM+1}], v[{PSUM}:{PSUM+1}], v[{S+i}:{S+i+1}]")
        else:
            L.append(f"v_add_f32 v{PSUM}, v{PSUM}, v{S+i}")
            L.append(f"v_add_f32 v{PSUM+1}, v{PSUM+1}, v{S+i+1}")
        L.append(f"v_cvt_pk_bf16_f32 v{S + i // 2}, v{S+i}, v{S+i+1}")
    if DOT2:
        for i in pairs:
            a = PSUM + ((i >> 1) & 1)
            if DOT2 == 1: L.append(f"v_dot2c_f32_bf16 v{a}, v{S + i // 2}, v14")
            else: L.append(f"v_dot2_f32_bf16 v{a}, v{S + i // 2}, v14, v{a}")
    if EXPT & 1: L = [x for x in L if not x.startswith("v_exp")]
    if EXPT & 2: L = [x for x in L if x.startswith("v_exp") or x.startswith("s_nop")]
    return L

def sm_rescale(t):
    if t == 0 or NOMAX: return []
    if LAZY:
        lbl = f".Lk1_nors2_{t}"
        return [[f"s_cmp_eq_u64 s[{S_FLAG}:{S_FLAG+1}], 0", f"s_cbranch_scc1 {lbl}"] + [f"v_mul_f32 v{V_ACC+i}, v{V_ALPHA}, v{V_ACC+i}" for i in range(64)] + [f"{lbl}:"]]
    if not USEPK:
        return [f"v_mul_f32 v{V_ACC+i}, v{V_ALPHA}, v{V_ACC+i}" for i in range(64)]
    return [f"v_pk_mul_f32 v[{V_ACC+i}:{V_ACC+i+1}], v[{V_ACC+i}:{V_ACC+i+1}], v[{V_ALPHA}:{V_ALPHA+1}] op_sel_hi:[1,0]" for i in range(0, 64, 2)]

def sm_lupd(t):
    if DOT2: return []
    L = [f"v_add_f32 v{PSUM}, v{PSUM}, v{PSUM+1}"]
    if t == 0:
        L.append(f"v_mov_b32 v{V_L}, v{PSUM}")
    elif LAZY:
        L.append(f"v_add_f32 v{V_L}, v{V_L}, v{PSUM}")
    else:
        L.append(f"v_fma_f32 v{V_L}, v{V_L}, v{V_ALPHA}, v{PSUM}")
    return L

def gen_k1(A, emb=False, pre=None):
    name = "k1_kernel"
    vm = Cnt(A, "vmcnt", 63); lg = Cnt(A, "lgkmcnt", 15)
    stamp = Stamper(A, lg, S_DBG, S_WAVE)
    kernel_header(A, name)
    A("s_cmp_lt_u32 s2, 256")
    A("s_cbranch_scc1 .Lk1_go")
    A("s_endpgm")
    A.label(".Lk1_go")
    if pre: pre()
    A("s_load_dwordx4 s[60:63], s[0:1], 8")
    A("s_load_dwordx4 s[64:67], s[0:1], 24")
    A("s_load_dwordx2 s[68:69], s[0:1], 112")
    A("s_load_dwordx8 s[92:99], s[0:1], 48")
    A(f"v_and_b32 v{V_LANE}, 63, v0")
    A("v_lshrrev_b32 v2, 6, v0")
    A("s_nop 0")
    A(f"v_readfirstlane_b32 s{S_WAVE}, v2")
    KM = int(os.environ.get("K1MAP","1"))
    if KM == 1:
        A(f"s_lshr_b32 s{S_G}, s2, 5")
        A(f"s_and_b32 s{S_M}, s2, 31")
    elif KM == 4:
        A(f"s_and_b32 s{S_G}, s2, 6")
        A(f"s_lshr_b32 s{S_M}, s2, 7")
        A(f"s_or_b32 s{S_G}, s{S_G}, s{S_M}")
        A(f"s_bfe_u32 s{S_M}, s2, 0x40003")
        A(f"s_lshl_b32 s{S_M}, s{S_M}, 1")
        A(f"s_and_b32 s{S_TMP}, s2, 1")
        A(f"s_or_b32 s{S_M}, s{S_M}, s{S_TMP}")
    elif KM == 5:
        A(f"s_and_b32 s{S_G}, s2, 4")
        A(f"s_lshr_b32 s{S_M}, s2, 6")
        A(f"s_or_b32 s{S_G}, s{S_G}, s{S_M}")
        A(f"s_bfe_u32 s{S_M}, s2, 0x30003")
        A(f"s_lshl_b32 s{S_M}, s{S_M}, 2")
        A(f"s_and_b32 s{S_TMP}, s2, 3")
        A(f"s_or_b32 s{S_M}, s{S_M}, s{S_TMP}")
    elif KM == 0:
        A(f"s_and_b32 s{S_G}, s2, 7")
        A(f"s_lshr_b32 s{S_M}, s2, 3")
    else:
        nb_ = KM - 1
        A(f"s_and_b32 s{S_G}, s2, {(1 << nb_) - 1}")
        A(f"s_lshr_b32 s{S_M}, s2, {5 + nb_}")
        A(f"s_lshl_b32 s{S_M}, s{S_M}, {nb_}")
        A(f"s_or_b32 s{S_G}, s{S_G}, s{S_M}")
        A(f"s_bfe_u32 s{S_M}, s2, {hex((5 << 16) | nb_)}")
    A(f"s_mov_b32 s{S_MASK}, 0xffff0000")
    for (s, val) in ((S_C1, 65537.0), (S_K2, 65537.0 * SCALE), (S_SC, SCALE), (S_L2E, LOG2E)):
        A(f"s_mov_b32 s{s}, {fhex(val)}")
        A(f"s_mov_b32 s{s+1}, {fhex(val)}")
    L = V_LANE
    SM = f"s{S_MASK}"
    D = 4
    A(f"v_lshrrev_b32 v5, 3, v{L}")
    A(f"v_and_b32 v6, 7, v{L}")
    A("v_lshlrev_b32 v7, 1, v5")
    A("v_and_b32 v7, 4, v7")
    A("v_xor_b32 v6, v6, v7")
    A("v_lshlrev_b32 v6, 4, v6")
    A(f"v_lshl_add_u32 v{V_WQOFF}, v5, 13, v6")
    A(f"v_lshl_add_u32 v{V_WOOFF}, v5, 10, v6")
    A(f"s_lshl_b32 s{S_RB}, s{S_WAVE}, {11 if D6 else 13}")
    A(f"s_add_u32 s{S_RB}, s{S_RB}, {STG}")
    A(f"s_lshl_b32 s{S_OFF}, s{S_G}, 10")
    A(f"s_lshl_b32 s{S_TMP}, s{S_WAVE}, 7")
    A(f"s_add_u32 s{S_OFF}, s{S_OFF}, s{S_TMP}")
    A(f"v_lshrrev_b32 v5, 4, v{L}")
    A(f"v_and_b32 v6, 15, v{L}")
    A(f"s_lshl_b32 s{S_TMP}, s{S_WAVE}, 3")
    A(f"v_add_u32 v7, s{S_TMP}, v5")
    for j in range(2):
        A(f"v_add_u32 v8, {4*j}, v7")
        A("v_and_b32 v9, 15, v8")
        A("v_xor_b32 v9, v6, v9")
        A("v_lshlrev_b32 v9, 4, v9")
        A(f"v_lshl_add_u32 v{V_KOFF+j}, v7, 8, v9")
    A("v_lshlrev_b32 v9, 2, v5")
    A("v_xor_b32 v9, v6, v9")
    A("v_lshlrev_b32 v9, 4, v9")
    A(f"v_lshl_add_u32 v{V_VOFF}, v7, 8, v9")
    A(f"s_lshl_b32 s{S_KVM0}, s{S_WAVE}, 11")
    A(f"v_lshrrev_b32 v5, 5, v{L}")
    A(f"v_bfe_u32 v6, v{L}, 4, 1")
    A(f"v_bfe_u32 v7, v{L}, 2, 2")
    A(f"v_and_b32 v8, 1, v{L}")
    A(f"v_bfe_u32 v9, v{L}, 1, 1")
    A("v_lshl_or_b32 v8, v8, 1, v9")
    A("v_lshlrev_b32 v8, 3, v8")
    A("v_lshl_add_u32 v8, v6, 5, v8")
    A("v_lshl_add_u32 v10, v5, 3, v7")
    A("v_lshrrev_b32 v11, 1, v7")
    for nb in range(2):
        A(f"v_xor_b32 v12, {nb}, v11")
        A("v_lshl_add_u32 v12, v12, 6, v8")
        A("v_lshl_add_u32 v12, v10, 7, v12")
        A(f"v_add_u32 v{V_AADDR+nb}, s{S_RB}, v12")
        if D6: A(f"v_add_u32 v{V_AADDR2[nb]}, 65536, v{V_AADDR+nb}")
    for db in range(4):
        A(f"v_xor_b32 v12, {db}, v7")
        A("v_lshl_add_u32 v12, v12, 6, v8")
        A(f"v_lshl_add_u32 v12, v10, 8, v12")
        A(f"v_add_u32 v{V_VADDR+db}, {VRING}, v12")
    A(f"v_and_b32 v6, 31, v{L}")
    for j in range(8):
        A(f"v_or_b32 v7, {2*j}, v5")
        A("v_xor_b32 v7, v7, v6")
        A("v_and_b32 v7, 15, v7")
        A("v_lshlrev_b32 v7, 4, v7")
        A(f"v_lshl_add_u32 v{V_BADDR+j}, v6, 10, v7")
    A("v_and_b32 v7, 0x13, v6")
    A("v_bfe_u32 v8, v6, 2, 1")
    A("v_lshl_or_b32 v7, v8, 3, v7")
    A("v_bfe_u32 v8, v6, 3, 1")
    A("v_lshl_or_b32 v7, v8, 2, v7")
    for j in range(8):
        A(f"v_or_b32 v8, {2*j}, v5")
        A("v_xor_b32 v8, v8, v7")
        A("v_and_b32 v8, 15, v8")
        A("v_lshlrev_b32 v8, 4, v8")
        A(f"v_lshl_add_u32 v8, v7, 8, v8")
        A(f"v_add_u32 v{V_KADDR+j}, {KRING}, v8")
    A(f"s_lshl_b32 s{S_TMP}, s{S_WAVE}, 3")
    A(f"v_and_b32 v14, 48, v{L}")
    for i in range(8):
        A(f"s_add_u32 s{S_TMP+1}, s{S_TMP}, {i}")
        A(f"v_xor_b32 v15, s{S_TMP+1}, v{L}")
        A("v_and_or_b32 v15, v15, 15, v14")
        A("v_lshlrev_b32 v15, 4, v15")
        A(f"s_lshl_b32 s{S_TMP+1}, s{S_TMP+1}, 10")
        A(f"v_add_u32 v{V_QADDR+i}, s{S_TMP+1}, v15")
    A(f"s_lshl_b32 s{S_TMP}, s{S_M}, 16")
    A(f"s_lshl_b32 s{S_TMP+1}, s{S_WAVE}, 13")
    A(f"s_add_u32 s{S_TMP}, s{S_TMP}, s{S_TMP+1}")
    A(f"s_add_u32 s{S_TMP+1}, s{S_TMP}, 4096")
    A(f"v_lshlrev_b32 v12, 4, v{L}")
    A(f"v_lshlrev_b32 v13, 5, v{L}")
    A("s_waitcnt lgkmcnt(0)")
    make_srd(A, S_XN, 68, WS_XN, 2 * MB)
    make_srd(A, S_MOD, 68, WS_MOD, 3072 * 4)
    XR = V_S
    SA = V_S + 32; CA = V_S + 40
    A(f"buffer_load_dwordx4 v[{CA}:{CA+3}], v13, s[{S_MOD}:{S_MOD+3}], 0 offen offset:2048"); vm.issue("mod")
    A(f"buffer_load_dwordx4 v[{CA+4}:{CA+7}], v13, s[{S_MOD}:{S_MOD+3}], 0 offen offset:2064"); vm.issue("mod")
    A(f"buffer_load_dwordx4 v[{SA}:{SA+3}], v13, s[{S_MOD}:{S_MOD+3}], 0 offen"); vm.issue("mod")
    A(f"buffer_load_dwordx4 v[{SA+4}:{SA+7}], v13, s[{S_MOD}:{S_MOD+3}], 0 offen offset:16"); vm.issue("mod")
    for i in range(8):
        A(f"buffer_load_dwordx4 v[{XR+4*i}:{XR+4*i+3}], v12, s[{S_XN}:{S_XN+3}], s{S_TMP + (i >> 2)} offen offset:{(i & 3) * 1024}")
        vm.issue(("x", i))
    make_srd(A, S_WQ, 64, 0, 4 * MB)
    if D6: gemm_dma6(A, vm, 0, S_WQ, V_WQOFF, 8192)
    else: gemm_dma(A, vm, 0, S_WQ, V_WQOFF, 8192, D)
    A(f"s_lshl_b32 s{S_TMP}, s{S_G}, 19")
    A(f"s_add_u32 s{S_TMP+1}, s{S_TMP}, {1536 * 256}")
    make_srd(A, S_K, 60, f"s{S_TMP+1}", 512 * 256)
    make_srd(A, S_V, 62, f"s{S_TMP+1}", 512 * 256)
    make_srd(A, S_WO, 66, f"s{S_TMP}", 512 * 1024)
    psz = 2 if PART_BF16 else 4
    A(f"s_mov_b32 s{S_SL}, {fhex(SCALE*LOG2E)}")
    PL = int(os.environ.get("PL", "1")) and emb
    if PL:
        A(f"s_lshl_b32 s{S_TMP+2}, s{S_M}, 3")
        A(f"s_add_u32 s{S_TMP+2}, s{S_TMP+2}, s{S_G}")
        A(f"s_lshl_b32 s{S_TMP+2}, s{S_TMP+2}, 16")
        A(f"s_add_u32 s{S_TMP+2}, s{S_TMP+2}, {WS_PART}")
        make_srd(A, S_P, 68, f"s{S_TMP+2}", 65536)
    else:
        A(f"s_mul_i32 s{S_TMP+2}, s{S_G}, {2048 * 512 * psz}")
        A(f"s_add_u32 s{S_TMP+2}, s{S_TMP+2}, {WS_PART}")
        make_srd(A, S_P, 68, f"s{S_TMP+2}", 2048 * 512 * psz)
    if DEBUG or TIMING:
        make_srd(A, S_DBG, 68, WS_DBG, 32 * MB)
    stamp(True); stamp()
    vm.wait("mod")
    for j in range(0, 8, 2):
        A(f"v_add_f32 v{CA+j}, 1.0, v{CA+j}")
        A(f"v_add_f32 v{CA+j+1}, 1.0, v{CA+j+1}")
        round_bf16_2(A, CA + j, CA + j + 1, V_T, SM)
    for i in range(8):
        x = XR + 4 * i
        vm.wait(("x", i))
        for j in range(4):
            a = 2 + 2 * j
            A(f"v_lshlrev_b32 v{a}, 16, v{x+j}")
            A(f"v_and_b32 v{a+1}, {SM}, v{x+j}")
        for j in range(8):
            A(f"v_mul_f32 v{2+j}, v{2+j}, v{CA+j}")
        for j in range(4):
            a = 2 + 2 * j
            A(f"v_cvt_pk_bf16_f32 v{x+j}, v{a}, v{a+1}")
        for j in range(4):
            a = 2 + 2 * j
            A(f"v_lshlrev_b32 v{a}, 16, v{x+j}")
            A(f"v_and_b32 v{a+1}, {SM}, v{x+j}")
        for j in range(8):
            A(f"v_add_f32 v{2+j}, v{2+j}, v{SA+j}")
        for j in range(4):
            a = 2 + 2 * j
            A(f"v_cvt_pk_bf16_f32 v{x+j}, v{a}, v{a+1}")
        A(f"ds_write_b128 v{V_QADDR+i}, v[{x}:{x+3}]")
        lg.issue("hw")
        if D6:
            if i in (1, 3, 5, 6, 7): gemm_dma6(A, vm, {1: 1, 3: 2, 5: 3, 6: 4, 7: 5}[i], S_WQ, V_WQOFF, 8192)
        elif i in (1, 3, 5):
            gemm_dma(A, vm, (i + 1) // 2, S_WQ, V_WQOFF, 8192, D)
    if not D6:
        k_dma(A, vm, 0)
        k_dma(A, vm, 1)
    if PREFETCH:
        A(f"v_lshlrev_b32 v5, 6, v{L}")
        A(f"s_lshl_b32 s{S_TMP}, s{S_M}, 12")
        A(f"buffer_load_dword v15, v5, s[{S_K}:{S_K+3}], s{S_TMP} offen"); vm.issue("pf")
        A(f"buffer_load_dword v15, v5, s[{S_V}:{S_V+3}], s{S_TMP} offen"); vm.issue("pf")
    lg.waitall()
    stamp()
    A("s_barrier")
    stamp()
    if D6:
        def tail1(ks):
            if ks == 26: k_dma(A, vm, 0)
            if ks == 27: k_dma(A, vm, 1)
            if ks == 28: v_dma(A, vm, 0)
            if ks == 29: v_dma(A, vm, 1)
            if ks == 31: k_dma(A, vm, 2)
        gemm_core6(A, vm, lg, S_WQ, V_WQOFF, 8192, 6, tail1, bars=eval(os.environ.get('B1', '()')))
    else:
        gemm_core(A, vm, lg, S_WQ, V_WQOFF, 8192, D)
    stamp()
    A("s_barrier")
    if not D6:
        v_dma(A, vm, 0)
        k_dma(A, vm, 2)
        v_dma(A, vm, 1)
    A(f"s_and_b32 s{S_TMP}, s{S_WAVE}, 1")
    A(f"s_lshr_b32 s{S_TMP+1}, s{S_WAVE}, 1")
    A(f"s_lshl_b32 s{S_TMP+1}, s{S_TMP+1}, 8")
    A(f"s_cmp_eq_u32 s{S_TMP}, 1")
    A(f"s_cselect_b64 vcc, -1, 0")
    A(f"v_mov_b32 v{V_ALPHA}, s{S_SL}")
    for j in range(4):
        A(f"v_cndmask_b32 v{2+j}, v{V_BADDR+j}, v{V_BADDR+4+j}, vcc")
        A(f"v_add_u32 v{2+j}, s{S_TMP+1}, v{2+j}")
    for nb in range(2):
        for rb in range(2):
            acc = V_ACC + (nb * 2 + rb) * 16
            for mp in range(2):
                d = V_S + (nb * 4 + rb * 2 + mp) * 4
                if CT:
                    for e in range(8):
                        A(f"v_mul_f32 v{acc+8*mp+e}, v{V_ALPHA}, v{acc+8*mp+e}")
                for e in range(4):
                    A(f"v_cvt_pk_bf16_f32 v{d+e}, v{acc+8*mp+2*e}, v{acc+8*mp+2*e+1}")
                A(f"ds_write_b128 v{2+2*nb+mp}, v[{d}:{d+3}] offset:{rb*32768}")
                lg.issue("qw")
                if DEBUG:
                    A(f"v_and_b32 v8, 31, v{L}")
                    A(f"v_lshrrev_b32 v9, 5, v{L}")
                    A("v_lshlrev_b32 v8, 13, v8")
                    A("v_lshl_add_u32 v8, v9, 4, v8")
                    A(f"s_lshl_b32 s{S_TMP+2}, s{S_M}, 19")
                    A(f"s_lshl_b32 s{S_TMP+3}, s{S_G}, 10")
                    A(f"s_add_u32 s{S_TMP+2}, s{S_TMP+2}, s{S_TMP+3}")
                    A(f"s_lshl_b32 s{S_TMP+3}, s{S_WAVE}, 7")
                    A(f"s_add_u32 s{S_TMP+2}, s{S_TMP+2}, s{S_TMP+3}")
                    A(f"s_add_u32 s{S_TMP+2}, s{S_TMP+2}, {rb*32*8192 + nb*64 + mp*32}")
                    A(f"buffer_store_dwordx4 v[{d}:{d+3}], v8, s[{S_DBG}:{S_DBG+3}], s{S_TMP+2} offen")
                    vm.issue("dbg")
    A(f"s_and_b32 s{S_TMP}, s{S_WAVE}, 3")
    A(f"s_lshl_b32 s{S_TMP}, s{S_TMP}, 8")
    A(f"s_lshr_b32 s{S_TMP+1}, s{S_WAVE}, 2")
    A(f"s_lshl_b32 s{S_TMP+1}, s{S_TMP+1}, 15")
    A(f"s_add_u32 s{S_QOFF}, s{S_TMP}, s{S_TMP+1}")
    for j in range(8):
        A(f"v_add_u32 v{V_QADDR+j}, s{S_QOFF}, v{V_BADDR+j}")
    lg.waitall()
    vm.wait(("k", 0))
    A("s_barrier")
    stamp()
    if PRIO:
        A(f"s_cmp_lt_u32 s{S_WAVE}, 4")
        A("s_cbranch_scc1 .Lk1_noprio" if PRIO == 1 else "s_cbranch_scc0 .Lk1_noprio")
        A("s_setprio 1")
        A.label(".Lk1_noprio")
    for j in range(8):
        A(f"ds_read_b128 v[{V_Q+4*j}:{V_Q+4*j+3}], v{V_QADDR+j}")
        lg.issue("q")
    seq = []
    for kb in range(2):
        for j in range(8):
            seq.append(("k", 0, kb, j))
    for t in range(8):
        if t > 0:
            for db in range(4): seq.append(("v", t - 1, 3, db))
        if t + 1 < 8:
            for kb in range(2):
                for j in range(8): seq.append(("k", t + 1, kb, j))
        for ks in range(3):
            for db in range(4): seq.append(("v", t, ks, db))
    for db in range(4): seq.append(("v", 7, 3, db))
    state = {"issued": 0, "limit": 0}
    def issue_frag(i):
        kind, t, a, b = seq[i]
        f = V_F + (i % NF) * 4
        if (EXPT & 4) and i >= 8: return
        if (EXPT & 16) and (i & 1): return
        if kind == "k":
            A(f"ds_read_b128 v[{f}:{f+3}], v{V_KADDR+b} offset:{((t + 1) % 3) * 16384 + a * 8192}")
            lg.issue(("fr", i))
        else:
            o = (t % 3) * 16384 + a * 4096
            A(f"ds_read_b64_tr_b16 v[{f}:{f+1}], v{V_VADDR+b} offset:{o}")
            lg.issue(("fr", i))
            A(f"ds_read_b64_tr_b16 v[{f+2}:{f+3}], v{V_VADDR+b} offset:{o + 1024}")
            lg.issue(("fr", i))
    def avail(i, epoch):
        kind, t, a, b = seq[i]
        return (t - 1 <= epoch) if kind == "k" else (t <= epoch)
    def runahead(cur, epoch):
        while state["issued"] < len(seq) and state["issued"] <= cur + RA and avail(state["issued"], epoch):
            issue_frag(state["issued"]); state["issued"] += 1
    def mfma(i, epoch):
        kind, t, a, b = seq[i]
        runahead(i - 1, epoch)
        assert state["issued"] > i
        f = V_F + (i % NF) * 4
        lg.wait(("fr", i))
        if kind == "k":
            s = V_S + (t & 1) * 32 + a * 16
            c = ("0" if (t == 0 or not CT) else f"v[{V_NB}:{V_NB+15}]") if b == 0 else f"v[{s}:{s+15}]"
            A(f"v_mfma_f32_32x32x16_bf16 v[{s}:{s+15}], v[{f}:{f+3}], v[{V_Q+4*b}:{V_Q+4*b+3}], {c}")
        else:
            o = V_ACC + b * 16
            p = V_S + (t & 1) * 32 + 4 * a
            c = "0" if (t == 0 and a == 0) else f"v[{o}:{o+15}]"
            A(f"v_mfma_f32_32x32x16_bf16 v[{o}:{o+15}], v[{f}:{f+3}], v[{p}:{p+3}], {c}")
        runahead(i, epoch)
    def seg(idx, n, valu, epoch):
        nv = len(valu); k = 0
        def em(x):
            if isinstance(x, list):
                for y in x:
                    if y.endswith(":"): A.label(y[:-1])
                    else: A(y)
            else: A(x)
        if n == 0:
            for x in valu: em(x)
            return idx
        for m_ in range(n):
            mfma(idx + m_, epoch)
            upto = (nv * (m_ + 1) + n - 1) // n
            while k < upto:
                em(valu[k]); k += 1
        return idx + n
    if DOT2:
        assert NOMAX
        A(f"v_mov_b32 v{PSUM}, 0"); A(f"v_mov_b32 v{PSUM+1}, 0"); A("v_mov_b32 v14, 0x3f803f80")
    idx = seg(0, 16, [], -1)
    for t in range(8):
        if t + 1 < 8: vm.wait(("k", t + 1))
        vm.wait(("v", t))
        if not (EXPT & 8): A("s_barrier")
        if t >= 0 and t + 3 < 8: k_dma(A, vm, t + 3)
        if t >= 1 and t + 1 < 8: v_dma(A, vm, t + 1)
        PFMODE = int(os.environ.get("PFMODE", "1"))
        if PREFETCH and t == 1:
            A("v_lshlrev_b32 v12, 6, v0")
            A(f"s_lshl_b32 s{S_TMP}, s{S_M}, 14")
            A(f"s_add_u32 s{S_TMP+1}, s{S_TMP}, 16384")
            A(f"s_mov_b32 s{S_XN}, s{S_WO}")
            A(f"s_mov_b32 s{S_XN+1}, s{S_WO+1}")
            A(f"s_mov_b32 s{S_XN+2}, s{S_TMP+1}")
            A(f"buffer_load_dword v15, v12, s[{S_XN}:{S_XN+3}], s{S_TMP} offen"); vm.issue("pf")
        if PREFETCH and PFMODE < 2:
            for (tt, p, sz) in ((2, 92, 512*1024), (2, 94, 512*1024), (3, 96, 1792*1024), (4, 98, 1792*1024)):
                if t != (1 if PFMODE == 0 else tt): continue
                per = sz // 256
                if p == 96 and int(os.environ.get("K5N", "0")): per = (56 * int(os.environ.get('W3S', '32768')) // 256 + 63) // 64 * 64
                A(f"s_mul_i32 s{S_TMP}, s2, {per}")
                if p == 96 and int(os.environ.get("K5N", "0")):
                    A(f"s_add_u32 s{S_TMP}, s{S_TMP}, {28 * MB}")
                    p = 68
                make_srd(A, S_XN, p, f"s{S_TMP}", per)
                A(f"buffer_load_dword v15, v12, s[{S_XN}:{S_XN+3}], 0 offen"); vm.issue("pf")
        XPF = int(os.environ.get("XPF", "0"))
        if XPF and t in (5, 6):
            for (tt, p, sz, bit) in ((5, 96, 1792*1024, 1), (6, 98, 1792*1024, 2), (5, 92, 512*1024, 4), (6, 94, 512*1024, 4)):
                if t != tt or not (XPF & bit): continue
                per = sz // 32
                A(f"s_lshr_b32 s{S_TMP}, s2, 3")
                A(f"s_mul_i32 s{S_TMP}, s{S_TMP}, {per}")
                make_srd(A, S_XN, p, f"s{S_TMP}", per)
                A("v_lshlrev_b32 v13, 7, v0")
                A(f"buffer_load_dword v15, v13, s[{S_XN}:{S_XN+3}], 0 offen"); vm.issue("pf")
        if t == 7 and D6:
            A(f"s_lshl_b32 s{S_OFF}, s{S_WAVE}, 7")
            for st in range(4):
                gemm_dma6(A, vm, st, S_WO, V_WOOFF, 1024)
        elif t == 7:
            A(f"s_add_u32 s{S_RB}, s{S_RB}, 32768")
            A(f"s_lshl_b32 s{S_OFF}, s{S_WAVE}, 7")
            for nb in range(2):
                A(f"v_add_u32 v{V_AADDR+nb}, 32768, v{V_AADDR+nb}")
            for st in range(D):
                gemm_dma(A, vm, st, S_WO, V_WOOFF, 1024, D)
        mxl = sm_max(t)
        if t == 0:
            mxl = ["s_nop 7", "s_nop 3"] + mxl
        idx = seg(idx, 4 if t > 0 else 0, mxl, t)
        b = sm_quarter(t, 0) + sm_rescale(t) + sm_quarter(t, 1) + ["s_nop 1"]
        idx = seg(idx, 16 if t + 1 < 8 else 0, b, t)
        q3 = sm_quarter(t, 3)
        h = len(q3) // 3
        idx = seg(idx, 8, sm_quarter(t, 2) + ["s_nop 1"] + q3[:h], t)
        idx = seg(idx, 4, q3[h:] + sm_lupd(t) + ["s_nop 1"], t)
        stamp()
    idx = seg(idx, 4, [], 7)
    assert idx == len(seq)
    if DOT2: A(f"v_add_f32 v{V_L}, v{PSUM}, v{PSUM+1}")
    A(f"v_mov_b32 v2, v{V_L}")
    A(f"v_mov_b32 v3, v{V_L}")
    A("s_nop 1")
    A(f"v_permlane32_swap_b32 v2, v3")
    A("s_nop 1")
    A(f"v_add_f32 v{V_L}, v2, v3")
    for j in range(8):
        A(f"v_add_u32 v{V_QADDR+j}, s{S_QOFF}, v{V_BADDR+j}")
    A(f"v_rcp_f32 v{V_ALPHA}, v{V_L}")
    A("s_nop 7")
    A("s_nop 3")
    for db in range(4):
        o = V_ACC + db * 16
        for mp in range(2):
            d = V_S + (db * 2 + mp) * 4
            for e in range(0, 8, 2):
                A(f"v_pk_mul_f32 v[{o+8*mp+e}:{o+8*mp+e+1}], v[{o+8*mp+e}:{o+8*mp+e+1}], v[{V_ALPHA}:{V_ALPHA+1}] op_sel_hi:[1,0]")
            for e in range(4):
                A(f"v_cvt_pk_bf16_f32 v{d+e}, v{o+8*mp+2*e}, v{o+8*mp+2*e+1}")
            A(f"ds_write_b128 v{V_QADDR+2*db+mp}, v[{d}:{d+3}]")
            lg.issue("ow")
            if DEBUG:
                A(f"v_and_b32 v5, 31, v{L}")
                A(f"v_lshrrev_b32 v6, 5, v{L}")
                A("v_lshlrev_b32 v5, 13, v5")
                A("v_lshl_add_u32 v5, v6, 4, v5")
                A(f"s_lshl_b32 s{S_TMP+2}, s{S_M}, 19")
                A(f"s_lshl_b32 s{S_TMP+3}, s{S_G}, 10")
                A(f"s_add_u32 s{S_TMP+2}, s{S_TMP+2}, s{S_TMP+3}")
                A(f"s_and_b32 s{S_TMP+3}, s{S_WAVE}, 3")
                A(f"s_lshl_b32 s{S_TMP+3}, s{S_TMP+3}, 8")
                A(f"s_add_u32 s{S_TMP+2}, s{S_TMP+2}, s{S_TMP+3}")
                A(f"s_lshr_b32 s{S_TMP+3}, s{S_WAVE}, 2")
                A(f"s_lshl_b32 s{S_TMP+3}, s{S_TMP+3}, 18")
                A(f"s_add_u32 s{S_TMP+2}, s{S_TMP+2}, s{S_TMP+3}")
                A(f"s_add_u32 s{S_TMP+2}, s{S_TMP+2}, {16*MB + db*64 + mp*32}")
                A(f"buffer_store_dwordx4 v[{d}:{d+3}], v5, s[{S_DBG}:{S_DBG+3}], s{S_TMP+2} offen")
                vm.issue("dbg")
    lg.waitall()
    A("s_barrier")
    stamp()
    if D6: gemm_core6(A, vm, lg, S_WO, V_WOOFF, 1024, 4, bars=eval(os.environ.get('B3', '()')))
    else: gemm_core(A, vm, lg, S_WO, V_WOOFF, 1024, D)
    stamp()
    if int(os.environ.get("TSTORE", "1")) and PART_BF16:
        A(f"v_and_b32 v5, 31, v{L}")
        A(f"v_lshrrev_b32 v6, 5, v{L}")
        A("v_and_b32 v7, 7, v5")
        if D6:
            A("v_lshrrev_b32 v8, 4, v5")
            A("v_and_b32 v5, 15, v5")
            A("v_lshl_add_u32 v5, v8, 7, v5")
        for j in range(4):
            A(f"v_or_b32 v8, {2*j}, v6")
            A("v_xor_b32 v8, v8, v7")
            A("v_lshlrev_b32 v8, 4, v8")
            A("v_lshl_add_u32 v8, v5, 7, v8")
            A(f"v_add_u32 v{10+j}, s{S_RB}, v8")
        A(f"v_lshrrev_b32 v7, 3, v{L}")
        A(f"v_and_b32 v8, 7, v{L}")
        A("v_xor_b32 v9, v8, v7")
        A("v_lshlrev_b32 v9, 4, v9")
        A("v_lshl_add_u32 v9, v7, 7, v9")
        A(f"v_add_u32 v9, s{S_RB}, v9")
        A("v_lshlrev_b32 v8, 4, v8")
        A("v_lshl_add_u32 v8, v7, 10, v8")
        if PL:
            A(f"s_lshl_b32 s{S_TMP}, s{S_WAVE}, 7")
        else:
            A(f"s_lshl_b32 s{S_TMP}, s{S_M}, 16")
            A(f"s_lshl_b32 s{S_TMP+1}, s{S_WAVE}, 7")
            A(f"s_add_u32 s{S_TMP}, s{S_TMP}, s{S_TMP+1}")
        for nb in range(2):
            for rb in range(2):
                acc = V_ACC + (nb * 2 + rb) * 16
                for mp in range(2):
                    d = V_S + (nb * 4 + rb * 2 + mp) * 4
                    for e in range(4):
                        A(f"v_cvt_pk_bf16_f32 v{d+e}, v{acc+8*mp+2*e}, v{acc+8*mp+2*e+1}")
                    A(f"ds_write_b128 v{10+2*nb+mp}, v[{d}:{d+3}] offset:{rb*(32768 if D6 else 4096)}")
        A("s_waitcnt lgkmcnt(0)")
        for i in range(8):
            A(f"ds_read_b128 v[{V_S+32+4*i}:{V_S+32+4*i+3}], v9 offset:{((i >> 1) * 16384 + (i & 1) * 1024) if D6 else i*1024}")
        for i in range(8):
            A(f"s_waitcnt lgkmcnt({7-i})")
            A(f"buffer_store_dwordx4 v[{V_S+32+4*i}:{V_S+32+4*i+3}], v8, s[{S_P}:{S_P+3}], s{S_TMP} offen {os.environ.get('PSTF','sc1')}")
            if i < 7: A(f"s_add_u32 s{S_TMP}, s{S_TMP}, 8192")
    else:
        A(f"v_and_b32 v5, 31, v{L}")
        A(f"v_lshrrev_b32 v6, 5, v{L}")
        sh = 10 if PART_BF16 else 11
        A(f"v_lshlrev_b32 v5, {sh}, v5")
        A(f"v_lshl_add_u32 v5, v6, {4 if PART_BF16 else 5}, v5")
        A(f"s_lshl_b32 s{S_TMP}, s{S_M}, {sh + 6}")
        A(f"s_lshl_b32 s{S_TMP+1}, s{S_WAVE}, {7 if PART_BF16 else 8}")
        A(f"s_add_u32 s{S_TMP}, s{S_TMP}, s{S_TMP+1}")
        A(f"s_add_u32 s{S_TMP+1}, s{S_TMP}, {32 << sh}")
        A("s_nop 7")
        A("s_nop 3")
        for nb in range(2):
            for rb in range(2):
                acc = V_ACC + (nb * 2 + rb) * 16
                for mp in range(2):
                    if PART_BF16:
                        d = V_S + (nb * 4 + rb * 2 + mp) * 4
                        for e in range(4):
                            A(f"v_cvt_pk_bf16_f32 v{d+e}, v{acc+8*mp+2*e}, v{acc+8*mp+2*e+1}")
                        A(f"buffer_store_dwordx4 v[{d}:{d+3}], v5, s[{S_P}:{S_P+3}], s{S_TMP+rb} offen offset:{(32*nb+16*mp)*2} {os.environ.get('PSTF','sc1')}")
                    else:
                        for h4 in range(2):
                            A(f"buffer_store_dwordx4 v[{acc+8*mp+4*h4}:{acc+8*mp+4*h4+3}], v5, s[{S_P}:{S_P+3}], s{S_TMP+rb} offen offset:{(32*nb+16*mp+4*h4)*4}")
    if TIMING:
        A("s_waitcnt vmcnt(0)")
        stamp(); stamp(True)
        stamp.flush()
    if emb: return
    A("s_endpgm")
    A.raw(kernel_desc(name, 256, 102, 256))
    return (name, (256, 1, 1), (512, 1, 1), 163840)
```

```python
from asmlib import *
from gen_k0 import *
import gen_k1 as K1
from gen_k1 import Cnt
from gen_ka import ln_rows, round_multi, pack8, GK0, GK1
from gen_g64 import WS_STAT, WS_CS
import os
MT = int(os.environ.get("MT", "0"))
S_WAVE = 40; S_M = 41; S_J = 42; S_MASK = 43; S_RB = 44; S_GOFF = 45; S_TMP = 48; S_WOFF = 58
S_W = 32; V_W = 6
P_X = 60; P_OUT = 62; P_WS = 68; P_W = 84
SM = f"s{S_MASK}"
L = 1
RG = 40960; RS = 272
K5RB = 18432; K5D = 11
L2PF = int(os.environ.get('L2PF', '0'))
PFE = int(os.environ.get('PFE', '3'))
NE = int(os.environ.get('NE', '3')) if PFE == 2 else 0

def pk(A, op, d, a, b, c=None, sel=""):
    ops = ", ".join(f"v[{x}:{x+1}]" for x in ((d, a, b) if c is None else (d, a, b, c)))
    A(f"{op} {ops} {sel}".rstrip())

class Cap:
    def __init__(self, A): self.A = A
    def __enter__(self):
        self.sv = self.A.lines; self.A.lines = []; return self
    def __exit__(self, *a):
        self.out = self.A.lines; self.A.lines = self.sv

def interleave(A, mf, fill):
    n = len(mf); k = 0
    for i, m in enumerate(mf):
        A(m)
        upto = (len(fill) * (i + 1) + n - 1) // n
        while upto < len(fill) and upto > 0 and not (fill[upto - 1].lstrip().startswith(("buffer_", "ds_", "v_", "s_waitcnt")) or fill[upto - 1].lstrip().startswith(f"s_add_u32 s{S_WOFF}")): upto += 1
        A.lines.extend(fill[k:upto]); k = max(k, upto)

class Mega:
    def __init__(self, A):
        self.A = A
        self.vm = Cnt(A, "vmcnt", 63); self.lg = Cnt(A, "lgkmcnt", 15)
    def stamp(self, idx):
        if not MT: return
        A = self.A
        A("s_waitcnt lgkmcnt(0)")
        A("s_memrealtime s[70:71]")
        make_srd(A, 72, P_WS, WS_DBG, 32 * MB)
        A("s_lshl_b32 s76, s2, 3")
        A(f"s_add_u32 s76, s76, s{S_WAVE}")
        A("s_lshl_b32 s76, s76, 7")
        A("s_waitcnt lgkmcnt(0)")
        A("v_mov_b32 v2, s70")
        A("v_mov_b32 v3, 0")
        A(f"buffer_store_dword v2, v3, s[72:75], s76 offen offset:{4*idx}")
        self.vm.issue("stamp"); self.lg.ops = []
    def flag_srd(self, stage):
        make_srd(self.A, 92, P_WS, WS_FLAG + stage * 32 * 256, 32 * 256)
    def transition(self, stage, early=None):
        A = self.A
        self.stamp(1 + 4 * stage)
        self.vm.ops = []
        if early and NE:
            A(f"s_cmp_ge_u32 s{S_WAVE}, 4")
            A(f"s_cbranch_scc1 .Ltr{stage}_h")
            early(0, NE)
            A(f"s_waitcnt vmcnt({len(self.vm.ops)})")
            A(f"s_branch .Ltr{stage}_j")
            A.label(f".Ltr{stage}_h")
            A("s_waitcnt vmcnt(0)")
            A.label(f".Ltr{stage}_j")
        else:
            A("s_waitcnt vmcnt(0)")
        self.flag_srd(stage)
        A(f"s_lshl_b32 s96, s{S_M}, 8")
        A(f"s_lshl_b32 s97, s{S_J}, 2")
        A("s_add_u32 s97, s97, s96")
        A("v_mov_b32 v2, 1")
        A("v_mov_b32 v3, s97")
        A("s_waitcnt lgkmcnt(0)")
        self.lg.ops = []
        A("s_barrier")
        A(f"s_cmp_lg_u32 s{S_WAVE}, 7")
        A(f"s_cbranch_scc1 .Lpub{stage}")
        A("s_mov_b64 exec, 1")
        A("buffer_store_dword v2, v3, s[92:95], 0 offen sc1")
        A("s_mov_b64 exec, -1")
        A.label(f".Lpub{stage}")
        self.stamp(1 + 4 * stage + 2)
    def poll(self, stage, nbr=False, check=True):
        A = self.A
        lab = f".Lpl{stage}"
        if check:
            A(f"s_cmp_lg_u32 s{S_WAVE}, 7")
            A(f"s_cbranch_scc1 {lab}_done")
        A("v_and_b32 v3, 7, v1")
        A("v_lshlrev_b32 v3, 2, v3")
        if nbr:
            A("v_bfe_u32 v2, v1, 3, 2")
            A("v_min_u32 v2, 2, v2")
            A(f"v_add_u32 v2, s{S_M}, v2")
            A("v_max_u32 v2, 1, v2")
            A("v_min_u32 v2, 32, v2")
            A("v_subrev_u32 v2, 1, v2")
            A("v_lshl_add_u32 v3, v2, 8, v3")
        else:
            A("v_add_u32 v3, s96, v3")
        A("s_mov_b32 s98, 0")
        NP = int(os.environ.get("NPOLL", "1")); PSL = int(os.environ.get("PSL", "1"))
        if NP == 1:
            A.label(f"{lab}_poll")
            A("buffer_load_dword v2, v3, s[92:95], 0 offen sc1")
            A("s_add_u32 s98, s98, 1")
            A("s_waitcnt vmcnt(0)")
            A("v_cmp_ne_u32 vcc, 1, v2")
            A("s_cmp_lt_u32 s98, 0x40000")
            A(f"s_cbranch_scc0 {lab}_done")
            A(f"s_cbranch_vccnz {lab}_poll")
        else:
            for i in range(NP):
                A(f"buffer_load_dword v{248+i}, v3, s[92:95], 0 offen sc1")
                if PSL and i < NP - 1: A(f"s_sleep {PSL}")
            A.label(f"{lab}_poll")
            for i in range(NP):
                A(f"s_waitcnt vmcnt({NP-1})")
                A(f"v_cmp_ne_u32 vcc, 1, v{248+i}")
                A(f"s_cbranch_vccz {lab}_done")
                A(f"buffer_load_dword v{248+i}, v3, s[92:95], 0 offen sc1")
            A("s_add_u32 s98, s98, 1")
            A("s_cmp_lt_u32 s98, 0x40000")
            A(f"s_cbranch_scc1 {lab}_poll")
        A.label(f"{lab}_done")
    def w_setup(self, widx, K, rowbytes, woff_code):
        A = self.A
        make_srd(A, S_W, P_W + 2 * widx, 0, K * rowbytes)
        A(f"v_lshrrev_b32 v2, 3, v{L}")
        A(f"v_and_b32 v3, 7, v{L}")
        A(f"v_lshlrev_b32 v{V_W}, 1, v2")
        A(f"v_and_b32 v{V_W}, 4, v{V_W}")
        A(f"v_xor_b32 v3, v3, v{V_W}")
        A("v_lshlrev_b32 v3, 4, v3")
        A(f"v_mul_u32_u24 v2, {rowbytes}, v2") if rowbytes < 64 else None
        A(f"s_movk_i32 s{S_WOFF}, {rowbytes}")
        A(f"v_mul_lo_u32 v2, v2, s{S_WOFF}")
        A(f"v_add_u32 v{V_W}, v2, v3")
        woff_code()
        self.wrb = rowbytes
    def dmaW(self, st, ldsoff, tag="w"):
        A = self.A
        for i in range(2):
            A(f"s_add_u32 m0, s{S_RB}, {ldsoff + i * 1024}")
            A("s_nop 0")
            A(f"buffer_load_dwordx4 v{V_W}, s[{S_W}:{S_W+3}], s{S_WOFF} offen lds")
            self.vm.issue((tag, st))
            A(f"s_add_u32 s{S_WOFF}, s{S_WOFF}, {8 * self.wrb}")
    def pf_g64(self, widx, K, WB, DW, lo=0, hi=99, rot=0):
        A = self.A
        def woff():
            A(f"s_mul_i32 s{S_WOFF}, s{S_WAVE}, {(K // 4) * 1024}")
            A(f"s_lshl_b32 s{S_TMP+11}, s{S_J}, 7")
            A(f"s_add_u32 s{S_WOFF}, s{S_WOFF}, s{S_TMP+11}")
        if lo == 0: self.w_setup(widx, K, 1024, woff)
        self.wrb = 1024
        for st in range(lo, min(DW, hi)): self.dmaW(st, WB + ((st + rot) % DW) * 2048, "wn" if PFE == 3 else "w")
    def pf_k5(self, lo=0, hi=99):
        A = self.A
        def woff():
            A(f"s_min_u32 s{S_WOFF}, s{S_J}, 6")
            A(f"s_lshl_b32 s{S_WOFF}, s{S_WOFF}, 9")
            A(f"s_lshl_b32 s{S_TMP+11}, s{S_WAVE}, 7")
            A(f"s_add_u32 s{S_WOFF}, s{S_WOFF}, s{S_TMP+11}")
        if lo == 0: self.w_setup(2, 512, 3584, woff)
        self.wrb = 3584
        for st in range(lo, min(K5D, hi)): self.dmaW(st, K5RB + st * 2048, "wn" if PFE == 3 else "w")
    def l2pf(self, widx, size):
        A = self.A
        per = size // 32
        A("s_lshr_b32 s78, s2, 3")
        A(f"s_mul_i32 s78, s78, {per}")
        make_srd(A, 80, P_W + 2 * widx, "s78", per)
        A("v_and_b32 v2, 255, v0")
        A("v_lshlrev_b32 v2, 7, v2")
        n = (per + 32767) // 32768
        for i in range(n):
            A(f"s_mov_b32 s78, {i * 32768}")
            A("buffer_load_dword v3, v2, s[80:83], s78 offen")
        return n
    def persist(self):
        A = self.A
        A(f"s_load_dwordx2 s[{P_X}:{P_X+1}], s[0:1], 0")
        A(f"s_load_dwordx2 s[{P_OUT}:{P_OUT+1}], s[0:1], 96")
        A(f"s_load_dwordx2 s[{P_WS}:{P_WS+1}], s[0:1], 112")
        A(f"s_load_dwordx8 s[{P_W}:{P_W+7}], s[0:1], 48")
        A("v_and_b32 v1, 63, v0")
        A("v_lshrrev_b32 v2, 6, v0")
        A("s_nop 0")
        A(f"v_readfirstlane_b32 s{S_WAVE}, v2")
        A(f"s_and_b32 s{S_M}, s2, 31")
        A(f"s_lshr_b32 s{S_J}, s2, 5")
        A(f"s_mov_b32 s{S_MASK}, 0xffff0000")
        A(f"s_mul_i32 s{S_RB}, s{S_WAVE}, {RG}")
        A("s_waitcnt lgkmcnt(0)")
    def kr(self):
        A = self.A; vm = self.vm
        S_X = 8; S_MOD = 12; S_PT = 16; S_X2 = 20; S_H = 24; S_HN = 28; S_H1 = 36
        PR = 64; XR = 16; GA = 24; CB = 32; SB = 40
        A("v_lshlrev_b32 v9, 4, v1")
        A("v_lshlrev_b32 v10, 5, v1")
        A(f"s_lshl_b32 s3, s{S_M}, 3")
        A(f"s_add_u32 s3, s3, s{S_J}")
        A("s_lshl_b32 s3, s3, 3")
        A(f"s_add_u32 s3, s3, s{S_WAVE}")
        A("s_lshl_b32 s3, s3, 10")
        make_srd(A, S_X, P_X, 0, 2 * MB)
        make_srd(A, S_MOD, P_WS, WS_MOD, 3072 * 4)
        A(f"buffer_load_dwordx4 v[{XR}:{XR+3}], v9, s[{S_X}:{S_X+3}], s3 offen"); vm.issue("x")
        for (dst, idx) in ((CB, 4), (GA, 2), (SB, 3)):
            A(f"s_movk_i32 s{S_TMP}, {idx*2048}")
            A(f"buffer_load_dwordx4 v[{dst}:{dst+3}], v10, s[{S_MOD}:{S_MOD+3}], s{S_TMP} offen"); vm.issue("x")
            A(f"buffer_load_dwordx4 v[{dst+4}:{dst+7}], v10, s[{S_MOD}:{S_MOD+3}], s{S_TMP} offen offset:16"); vm.issue("x")
        make_srd(A, S_PT, P_WS, WS_PART, 8 * 2048 * 512 * 2)
        make_srd(A, S_X2, P_WS, WS_X2, 2 * MB)
        make_srd(A, S_H, P_WS, WS_H, 2 * MB)
        make_srd(A, S_HN, P_WS, WS_HN, 2 * MB)
        make_srd(A, S_H1, P_WS, WS_H1, 2052 * 1024)
        A(f"s_cmp_ge_u32 s{S_WAVE}, 4")
        A("s_cbranch_scc1 .Lkr_nz2")
        A(f"s_lshr_b32 s{S_TMP}, s{S_WAVE}, 1")
        A(f"s_mul_i32 s{S_TMP}, s{S_TMP}, 31")
        A(f"s_cmp_lg_u32 s2, s{S_TMP}")
        A("s_cbranch_scc1 .Lkr_nz")
        A(f"s_lshl_b32 s{S_TMP}, s{S_WAVE}, 10")
        A(f"s_add_u32 s{S_TMP+1}, s{S_TMP}, {2048*1024}")
        A(f"s_cmp_lt_u32 s{S_WAVE}, 2")
        A(f"s_cselect_b32 s{S_TMP}, s{S_TMP}, s{S_TMP+1}")
        for j in range(4): A(f"v_mov_b32 v{12+j}, 0")
        A(f"buffer_store_dwordx4 v[12:15], v9, s[{S_H1}:{S_H1+3}], s{S_TMP} offen sc1")
        A.label(".Lkr_nz")
        PFW1 = int(os.environ.get("PFW1", "1"))
        sv = list(vm.ops)
        if PFW1 == 1: self.pf_g64(0, 512, 24576, 8)
        vm.ops = sv
        A.label(".Lkr_nz2")
        self.poll(0)
        A("s_barrier")
        self.stamp(4)
        PL = int(os.environ.get("PL", "1"))
        if PL:
            A(f"s_mul_i32 s{S_TMP}, s{S_M}, {7 * 65536}")
            A(f"s_add_u32 s{S_TMP}, s{S_TMP}, s3")
        else: A(f"s_mov_b32 s{S_TMP}, s3")
        for g in range(8):
            A(f"buffer_load_dwordx4 v[{PR+4*g}:{PR+4*g+3}], v9, s[{S_PT}:{S_PT+3}], s{S_TMP} offen"); vm.issue(("p", g))
            if g < 7: A(f"s_add_u32 s{S_TMP}, s{S_TMP}, {65536 if PL else 2048*512*2}")
        X = list(range(48, 56)); T = list(range(PR, PR + 12)); XU = list(range(96, 104))
        if PFW1 == 3:
            def woff():
                A(f"s_and_b32 s{S_TMP+9}, s{S_WAVE}, 3")
                A(f"s_lshr_b32 s{S_TMP+8}, s{S_WAVE}, 2")
                A(f"s_lshl_b32 s{S_WOFF}, s{S_TMP+9}, 17")
                A(f"s_lshl_b32 s{S_TMP+11}, s{S_TMP+8}, 16")
                A(f"s_add_u32 s{S_WOFF}, s{S_WOFF}, s{S_TMP+11}")
                A(f"s_lshl_b32 s{S_TMP+11}, s{S_J}, 7")
                A(f"s_add_u32 s{S_WOFF}, s{S_WOFF}, s{S_TMP+11}")
                A(f"s_mov_b32 s{S_TMP+7}, s{S_RB}")
                A(f"s_mul_i32 s{S_RB}, s{S_TMP+9}, {RG}")
                A(f"s_lshl_b32 s{S_TMP+8}, s{S_TMP+8}, 13")
                A(f"s_add_u32 s{S_RB}, s{S_RB}, s{S_TMP+8}")
            self.w_setup(0, 512, 1024, woff)
            for st in range(4): self.dmaW(st, 24576 + st * 2048, "wn")
            A(f"s_mov_b32 s{S_RB}, s{S_TMP+7}")
        if int(os.environ.get("KRX", "0")):
            vm.wait(("p", 0)); self.stamp(25)
            vm.wait(("p", 7)); self.stamp(26)
        vm.wait("x")
        for j in range(8): A(f"v_add_f32 v{CB+j}, 1.0, v{CB+j}")
        round_multi(A, list(range(CB, CB + 8)), [56, 57, 58, 59], SM)
        for j in range(4):
            A(f"v_lshlrev_b32 v{XU[2*j]}, 16, v{XR+j}")
            A(f"v_and_b32 v{XU[2*j+1]}, {SM}, v{XR+j}")
        for g in range(8):
            vm.wait(("p", g))
            if g == 0:
                for j in range(4):
                    A(f"v_lshlrev_b32 v{X[2*j]}, 16, v{PR+j}")
                    A(f"v_and_b32 v{X[2*j+1]}, {SM}, v{PR+j}")
            else:
                for j in range(4):
                    p = PR + 4 * g + j
                    A(f"v_lshlrev_b32 v{PR+j}, 16, v{p}")
                    A(f"v_and_b32 v{p}, {SM}, v{p}")
                for j in range(4):
                    p = PR + 4 * g + j
                    A(f"v_add_f32 v{X[2*j]}, v{X[2*j]}, v{PR+j}")
                    A(f"v_add_f32 v{X[2*j+1]}, v{X[2*j+1]}, v{p}")
        self.stamp(23)
        if PFW1 == 2:
            A(f"s_cmp_ge_u32 s{S_WAVE}, 4")
            A("s_cbranch_scc1 .Lkr_nz3")
            self.pf_g64(0, 512, 24576, 8)
            A.label(".Lkr_nz3")
        round_multi(A, X, T[5:9], SM)
        for j in range(8): A(f"v_mul_f32 v{X[j]}, v{X[j]}, v{GA+j}")
        round_multi(A, X, T[5:9], SM)
        for j in range(8): A(f"v_add_f32 v{X[j]}, v{X[j]}, v{XU[j]}")
        pack8(A, X, XR)
        A(f"buffer_store_dwordx4 v[{XR}:{XR+3}], v9, s[{S_X2}:{S_X2+3}], s3 offen sc1")
        for j in range(4):
            A(f"v_lshlrev_b32 v{X[2*j]}, 16, v{XR+j}")
            A(f"v_and_b32 v{X[2*j+1]}, {SM}, v{XR+j}")
        ln_rows(A, [(X, T)], SM)
        for j in range(8): A(f"v_mul_f32 v{X[j]}, v{X[j]}, v{CB+j}")
        round_multi(A, X, T[5:9], SM)
        for j in range(8): A(f"v_add_f32 v{X[j]}, v{X[j]}, v{SB+j}")
        pack8(A, X, 80)
        A(f"buffer_store_dwordx4 v[80:83], v9, s[{S_H}:{S_H+3}], s3 offen sc1")
        self.stamp(24)
        for j in range(4):
            A(f"v_lshlrev_b32 v{X[2*j]}, 16, v{80+j}")
            A(f"v_and_b32 v{X[2*j+1]}, {SM}, v{80+j}")
        ln_rows(A, [(X, T)], SM)
        pack8(A, X, 84)
        A(f"buffer_store_dwordx4 v[84:87], v9, s[{S_HN}:{S_HN+3}], s3 offen sc1")
    def g64(self, lab, stage, K, a_off, a_size, a_rb, epi, WB, DW, nbr, next_pf, own_pf=None, rot=0, nsched=None, l2=None):
        A = self.A; vm = self.vm; lg = self.lg
        S_G = 8; S_X1 = 16; S_X2 = 20; S_MOD = 24; S_O = 28; S_ST = 36
        KW = K // 4; NCH = KW // 64; NS = NCH * 4; DG = 3
        VG = [4, 5]; AA = 16; BA = 18
        X1 = 24; X2 = 32; GB = 40
        V_PW = 48; V_PR = 49; V_GA = 51; V_SA = 52; VC = (12, 14, 54)
        ACC = 64; FR = 128
        NBG = int(os.environ.get('NBG', '3'))
        def tail_setup():
            A(f"v_lshrrev_b32 v10, 3, v{L}")
            A(f"v_and_b32 v11, 7, v{L}")
            A(f"v_mul_u32_u24 v{V_PR}, {RS}, v10")
            A(f"v_lshl_add_u32 v{V_PR}, v11, 5, v{V_PR}")
            A(f"s_mul_i32 s{S_TMP+3}, s{S_WAVE}, {8*RS}")
            A(f"v_add_u32 v{V_PR}, s{S_TMP+3}, v{V_PR}")
            A(f"v_add_u32 v{V_PR+1}, {2*RG}, v{V_PR}")
            A(f"v_lshlrev_b32 v{V_GA}, 4, v11")
            A(f"v_lshl_add_u32 v{V_GA}, v10, 10, v{V_GA}")
            A(f"s_lshl_b32 s{S_TMP+2}, s{S_M}, 16")
            A(f"s_lshl_b32 s{S_TMP+3}, s{S_WAVE}, 13")
            A(f"s_add_u32 s{S_TMP+2}, s{S_TMP+2}, s{S_TMP+3}")
            A(f"s_lshl_b32 s{S_TMP+3}, s{S_J}, 7")
            A(f"s_add_u32 s{S_TMP+2}, s{S_TMP+2}, s{S_TMP+3}")
            if epi == "final":
                A(f"v_lshlrev_b32 v{V_SA}, 5, v11")
                make_srd(A, S_X1, P_WS, WS_X1, 2 * MB)
                make_srd(A, S_X2, P_WS, WS_X2, 2 * MB)
                make_srd(A, S_MOD, P_WS, WS_MOD, 3072 * 4)
                make_srd(A, S_O, P_OUT, 0, 2 * MB)
                A(f"buffer_load_dwordx4 v[{X1}:{X1+3}], v{V_GA}, s[{S_X1}:{S_X1+3}], s{S_TMP+2} offen"); vm.issue("e")
                A(f"buffer_load_dwordx4 v[{X2}:{X2+3}], v{V_GA}, s[{S_X2}:{S_X2+3}], s{S_TMP+2} offen"); vm.issue("e")
                A(f"s_lshl_b32 s{S_TMP+3}, s{S_J}, 8")
                A(f"s_add_u32 s{S_TMP+3}, s{S_TMP+3}, {5*2048}")
                for h4 in range(2):
                    A(f"buffer_load_dwordx4 v[{GB+4*h4}:{GB+4*h4+3}], v{V_SA}, s[{S_MOD}:{S_MOD+3}], s{S_TMP+3} offen offset:{h4*16}"); vm.issue("e")
            elif epi == "res":
                A(f"v_lshlrev_b32 v{V_SA}, 3, v10")
                A(f"s_lshl_b32 s{S_TMP+6}, s{S_M}, 9")
                A(f"s_lshl_b32 s{S_TMP+3}, s{S_WAVE}, 6")
                A(f"s_add_u32 s{S_TMP+6}, s{S_TMP+6}, s{S_TMP+3}")
                A(f"s_lshl_b32 s{S_TMP+3}, s{S_J}, 14")
                A(f"s_add_u32 s{S_TMP+6}, s{S_TMP+6}, s{S_TMP+3}")
                make_srd(A, S_X1, P_WS, WS_H, 2 * MB)
                make_srd(A, S_O, P_WS, WS_X1, 2 * MB)
                make_srd(A, S_ST, P_WS, WS_STAT, 2048 * 128)
                A(f"buffer_load_dwordx4 v[{X1}:{X1+3}], v{V_GA}, s[{S_X1}:{S_X1+3}], s{S_TMP+2} offen"); vm.issue("e")
            else:
                A(f"v_mov_b32 v{VC[0]}, {fhex(GK1)}")
                A(f"v_mov_b32 v{VC[1]}, {fhex(GK0)}")
                A(f"v_mov_b32 v{VC[2]}, 1.0")
                make_srd(A, S_O, P_WS, WS_H1 + 2048, 2 * MB)
        A(f"s_cmp_ge_u32 s{S_WAVE}, 4")
        A(f"s_cbranch_scc1 .L{lab}_help")
        if own_pf and PFE == 2: own_pf(NE, 99)
        A(f"v_lshrrev_b32 v7, 3, v{L}")
        A(f"v_and_b32 v8, 7, v{L}")
        A("v_lshrrev_b32 v9, 1, v7")
        A("v_xor_b32 v9, v8, v9")
        A(f"s_movk_i32 s{S_TMP}, {a_rb}")
        A(f"v_mul_lo_u32 v10, v7, s{S_TMP}")
        A(f"v_lshl_add_u32 v{VG[0]}, v9, 4, v10")
        A("v_xor_b32 v9, 4, v9")
        A(f"v_lshl_add_u32 v{VG[1]}, v9, 4, v10")
        A(f"s_mul_i32 s{S_GOFF}, s{S_M}, {64*a_rb}")
        A(f"s_mul_i32 s{S_TMP}, s{S_WAVE}, {KW*2}")
        A(f"s_add_u32 s{S_GOFF}, s{S_GOFF}, s{S_TMP}")
        if epi == "res":
            A(f"s_lshl_b32 s{S_TMP}, s{S_WAVE}, 2")
            A(f"s_lshr_b32 s{S_TMP+1}, 0x4031, s{S_TMP}")
            A(f"s_and_b32 s{S_TMP+1}, s{S_TMP+1}, 15")
            A(f"s_lshl_b32 s{S_TMP+1}, s{S_TMP+1}, 10")
            A(f"s_add_u32 s{S_GOFF}, s{S_GOFF}, s{S_TMP+1}")
        make_srd(A, S_G, P_WS, a_off, a_size)
        A(f"v_lshrrev_b32 v7, 5, v{L}")
        A(f"v_bfe_u32 v8, v{L}, 4, 1")
        A(f"v_bfe_u32 v9, v{L}, 2, 2")
        A(f"v_and_b32 v10, 1, v{L}")
        A(f"v_bfe_u32 v11, v{L}, 1, 1")
        A("v_lshl_or_b32 v10, v10, 1, v11")
        A("v_lshlrev_b32 v10, 3, v10")
        A("v_lshl_add_u32 v10, v8, 5, v10")
        A("v_lshl_add_u32 v11, v7, 3, v9")
        A("v_lshrrev_b32 v12, 1, v9")
        for nb in range(2):
            A(f"v_xor_b32 v13, {nb}, v12")
            A("v_lshl_add_u32 v13, v13, 6, v10")
            A("v_lshl_add_u32 v13, v11, 7, v13")
            A(f"v_add_u32 v{AA+nb}, s{S_RB}, v13")
        A(f"v_and_b32 v8, 31, v{L}")
        A("v_bfe_u32 v9, v8, 1, 3")
        for ks in range(4):
            A(f"v_or_b32 v10, {2*ks}, v7")
            A("v_xor_b32 v10, v10, v9")
            A("v_lshlrev_b32 v10, 4, v10")
            A("v_lshl_add_u32 v10, v8, 7, v10")
            A(f"v_add_u32 v{BA+ks}, s{S_RB}, v10")
        A(f"v_mul_u32_u24 v{V_PW}, {RS}, v8")
        A(f"v_lshl_add_u32 v{V_PW}, v7, 5, v{V_PW}")
        A(f"v_add_u32 v{V_PW}, s{S_RB}, v{V_PW}")
        tail_setup()
        A("s_barrier")
        self.stamp(1 + 4 * stage + 3)
        def dmaG(ch):
            base = (ch % DG) * 8192
            for i in range(8):
                A(f"s_add_u32 m0, s{S_RB}, {base + i * 1024}")
                A(f"s_add_u32 s{S_TMP}, s{S_GOFF}, {i * 8 * a_rb + ch * 128}")
                A(f"buffer_load_dwordx4 v{VG[i & 1]}, s[{S_G}:{S_G+3}], s{S_TMP} offen lds")
                vm.issue(("g", ch))
        for ch in range(min(DG, NCH)): dmaG(ch)
        def reads(step):
            ch, ks = step // 4, step % 4
            buf = FR + (step % NBG) * 16
            for nb in range(2):
                for q in range(2):
                    A(f"ds_read_b64_tr_b16 v[{buf+nb*4+q*2}:{buf+nb*4+q*2+1}], v{AA+nb} offset:{WB + ((step + rot) % DW) * 2048 + q * 512}")
                    lg.issue(("f", step))
            for rb in range(2):
                A(f"ds_read_b128 v[{buf+8+rb*4}:{buf+8+rb*4+3}], v{BA+ks} offset:{(ch % DG) * 8192 + rb * 4096}")
                lg.issue(("f", step))
        def need(step):
            vm.wait(("w", step)); vm.wait(("g", step // 4))
        for s0 in range(NBG - 1):
            need(s0); reads(s0)
        for st in range(NS):
            lg.wait(("f", st))
            with Cap(A) as cp:
                if st + DW < NS: self.dmaW(st + DW, WB + ((st + rot) % DW) * 2048)
                if st % 4 == 3 and st // 4 + DG < NCH: dmaG(st // 4 + DG)
                if st + NBG - 1 < NS:
                    need(st + NBG - 1); reads(st + NBG - 1)
                if st + DW >= NS and PFE == 3 and nsched and st in nsched: next_pf(*nsched[st])
            buf = FR + (st % NBG) * 16
            mf = []
            for nb in range(2):
                for rb in range(2):
                    acc = ACC + (nb * 2 + rb) * 16
                    c = "0" if st == 0 else f"v[{acc}:{acc+15}]"
                    mf.append(f"v_mfma_f32_32x32x16_bf16 v[{acc}:{acc+15}], v[{buf+nb*4}:{buf+nb*4+3}], v[{buf+8+rb*4}:{buf+8+rb*4+3}], {c}")
            interleave(A, mf, cp.out)
        vm.wait("e")
        if not int(os.environ.get("KRX", "0")): self.stamp({1: 25, 2: 26, 4: 27}[stage])
        A("s_nop 7")
        A("s_nop 1")
        for tl in range(4):
            nb, rb = tl >> 1, tl & 1
            for r4 in range(4):
                A(f"ds_write_b128 v{V_PW}, v[{ACC+tl*16+r4*4}:{ACC+tl*16+r4*4+3}] offset:{rb*32*RS + (nb*8 + (r4 >> 1)*4 + (r4 & 1))*16}")
            if tl == 1: A("s_waitcnt lgkmcnt(0)")
        if next_pf and PFE == 1: next_pf()
        A("s_waitcnt lgkmcnt(0)")
        A(f"s_branch .L{lab}_join")
        A.label(f".L{lab}_help")
        sv = list(vm.ops)
        tail_setup()
        vm.ops = sv
        self.poll(stage, nbr)
        A("s_barrier")
        self.stamp(1 + 4 * stage + 3)
        n = sum(self.l2pf(*x) for x in l2) if l2 else 0
        A(f"s_waitcnt vmcnt({n})")
        A.label(f".L{lab}_join")
        A("s_barrier")
        for p in range(4):
            for h in range(2):
                d = ACC + p * 16 + h * 4
                A(f"ds_read_b128 v[{d}:{d+3}], v{V_PR + (p >> 1)} offset:{(p & 1)*RG + h*16}")
        xs = list(range(ACC, ACC + 8)); tp = list(range(72, 80)); t8 = list(range(88, 96))
        b = ACC
        def unpack(src, dst):
            for k in range(4):
                A(f"v_lshlrev_b32 v{dst[2*k]}, 16, v{src+k}")
                A(f"v_and_b32 v{dst[2*k+1]}, {SM}, v{src+k}")
        if epi != "gelu": unpack(X1, tp)
        if epi == "final": unpack(X2, list(range(104, 112)))
        A("s_waitcnt lgkmcnt(4)")
        for e in range(0, 8, 2): pk(A, "v_pk_add_f32", b + e, b + e, b + 16 + e)
        A("s_waitcnt lgkmcnt(0)")
        for e in range(0, 8, 2): pk(A, "v_pk_add_f32", b + 32 + e, b + 32 + e, b + 48 + e)
        for e in range(0, 8, 2): pk(A, "v_pk_add_f32", b + e, b + e, b + 32 + e)
        round_multi(A, xs, t8, SM)
        def store():
            for k in range(4): A(f"v_cvt_pk_bf16_f32 v{56+k}, v{xs[2*k]}, v{xs[2*k+1]}")
            A(f"buffer_store_dwordx4 v[56:59], v{V_GA}, s[{S_O}:{S_O+3}], s{S_TMP+2} offen sc1")
        if epi == "gelu":
            X = xs; T = tp
            for e in range(0, 8, 2): pk(A, "v_pk_mul_f32", T[e], X[e], X[e])
            for e in range(0, 8, 2): pk(A, "v_pk_fma_f32", T[e], T[e], VC[0], VC[1], "op_sel_hi:[1,0,0]")
            for e in range(0, 8, 2): pk(A, "v_pk_mul_f32", T[e], T[e], X[e])
            for e in range(8): A(f"v_exp_f32 v{T[e]}, v{T[e]}")
            for e in range(0, 8, 2): pk(A, "v_pk_add_f32", T[e], T[e], VC[2], None, "op_sel_hi:[1,0]")
            for e in range(8): A(f"v_rcp_f32 v{T[e]}, v{T[e]}")
            A("s_nop 0")
            for e in range(0, 8, 2): pk(A, "v_pk_mul_f32", X[e], X[e], T[e])
            store()
        elif epi == "res":
            for k in range(0, 8, 2): pk(A, "v_pk_add_f32", xs[k], xs[k], tp[k])
            store()
            unpack(56, xs)
            X = xs
            pk(A, "v_pk_mul_f32", tp[0], X[0], X[0])
            pk(A, "v_pk_add_f32", tp[2], X[0], X[2])
            for e in range(2, 8, 2):
                pk(A, "v_pk_fma_f32", tp[0], X[e], X[e], tp[0])
                if e >= 4: pk(A, "v_pk_add_f32", tp[2], tp[2], X[e])
            A(f"v_add_f32 v20, v{tp[2]}, v{tp[3]}")
            A(f"v_add_f32 v21, v{tp[0]}, v{tp[1]}")
            A("s_nop 1")
            for dpp in ("quad_perm:[1,0,3,2]", "quad_perm:[2,3,0,1]", "row_half_mirror"):
                for v in (20, 21):
                    A(f"v_add_f32_dpp v{v}, v{v}, v{v} {dpp} row_mask:0xf bank_mask:0xf")
                A("s_nop 1")
            A("v_and_b32 v10, 7, v1")
            A("v_cmp_eq_u32 vcc, 0, v10")
            A("s_and_saveexec_b64 s[78:79], vcc")
            A(f"buffer_store_dwordx2 v[20:21], v{V_SA}, s[{S_ST}:{S_ST+3}], s{S_TMP+6} offen sc1")
            A("s_mov_b64 exec, s[78:79]")
        else:
            for k in range(0, 8, 2): pk(A, "v_pk_add_f32", xs[k], xs[k], tp[k])
            round_multi(A, xs, t8, SM)
            for k in range(0, 8, 2): pk(A, "v_pk_mul_f32", xs[k], xs[k], GB + k)
            round_multi(A, xs, t8, SM)
            for k in range(0, 8, 2): pk(A, "v_pk_add_f32", xs[k], xs[k], 104 + k)
            store()
    def k5(self, stage, next_pf, own_pf=None):
        A = self.A; vm = self.vm; lg = self.lg
        S_A = 8; S_O = 20; S_ST = 24; S_CS = 28
        VB = [16, 28]; AA = 24; ACC = 64; FQ = 128
        D = K5D
        NB5 = int(os.environ.get('NB5', '3'))
        A(f"s_cmp_lt_u32 s{S_WAVE}, 4")
        A("s_cbranch_scc1 .Lk5_main")
        A(f"s_cmp_eq_u32 s{S_J}, 7")
        A("s_cbranch_scc1 .Lk5_h7")
        self.poll(stage)
        A("s_barrier")
        A("s_barrier")
        A.label(".Lk5_h7")
        if L2PF & 4: self.l2pf(3, 1792 * 1024)
        A("s_branch .Lk5_end")
        A.label(".Lk5_main")
        A(f"s_cmp_eq_u32 s{S_J}, 7")
        A("s_cbranch_scc1 .Lk5_pf")
        if own_pf and PFE == 2: own_pf(NE, 99)
        make_srd(A, S_A, P_WS, WS_X1, 2 * MB)
        make_srd(A, S_ST, P_WS, WS_STAT, 2048 * 128)
        make_srd(A, S_CS, P_WS, WS_CS, 1792 * 4)
        make_srd(A, S_O, P_WS, WS_G, 2048 * 3584)
        A(f"v_lshlrev_b32 v4, 4, v{L}")
        A(f"s_lshl_b32 s{S_TMP}, s{S_M}, 16")
        A(f"s_lshl_b32 s{S_TMP+1}, s{S_WAVE}, 14")
        A(f"s_add_u32 s{S_TMP}, s{S_TMP}, s{S_TMP+1}")
        A(f"s_lshl_b32 s{S_TMP+6}, s{S_J}, 9")
        A(f"s_lshl_b32 s{S_TMP+2}, s{S_WAVE}, 7")
        A(f"s_add_u32 s{S_TMP+6}, s{S_TMP+6}, s{S_TMP+2}")
        A(f"v_lshrrev_b32 v5, 5, v{L}")
        A(f"v_bfe_u32 v7, v{L}, 4, 1")
        A(f"v_bfe_u32 v8, v{L}, 2, 2")
        A(f"v_and_b32 v9, 1, v{L}")
        A(f"v_bfe_u32 v10, v{L}, 1, 1")
        A("v_lshl_or_b32 v9, v9, 1, v10")
        A("v_lshlrev_b32 v9, 3, v9")
        A("v_lshl_add_u32 v9, v7, 5, v9")
        A("v_lshl_add_u32 v10, v5, 3, v8")
        A("v_lshrrev_b32 v11, 1, v8")
        for nb in range(2):
            A(f"v_xor_b32 v12, {nb}, v11")
            A("v_lshl_add_u32 v12, v12, 6, v9")
            A("v_lshl_add_u32 v12, v10, 7, v12")
            A(f"v_add_u32 v{AA+nb}, s{S_RB}, v12")
        A(f"v_and_b32 v13, 31, v{L}")
        A("v_lshrrev_b32 v7, 4, v13")
        A(f"v_mul_u32_u24 v7, {RG // 1024}, v7")
        A("v_and_b32 v8, 15, v13")
        A("v_add_u32 v7, v7, v8")
        for j in range(8):
            A(f"v_or_b32 v8, {2*j}, v5")
            A("v_xor_b32 v8, v8, v13")
            A("v_and_b32 v8, 15, v8")
            A("v_lshlrev_b32 v8, 4, v8")
            A(f"v_lshl_add_u32 v{VB[0]+j}, v7, 10, v8")
            A(f"v_add_u32 v{VB[1]+j}, {2*RG}, v{VB[0]+j}")
        ST = 192; CS = 224
        A("v_lshlrev_b32 v7, 5, v5")
        A(f"s_lshl_b32 s{S_TMP+2}, s{S_TMP+6}, 1")
        for nb in range(2):
            for mp in range(2):
                for h4 in range(2):
                    A(f"buffer_load_dwordx4 v[{CS+(nb*2+mp)*8+4*h4}:{CS+(nb*2+mp)*8+4*h4+3}], v7, s[{S_CS}:{S_CS+3}], s{S_TMP+2} offen offset:{(32*nb+16*mp+4*h4)*4}"); vm.issue("st")
        VS = 36
        A("v_and_b32 v7, 7, v13")
        A(f"s_add_u32 s{S_TMP+3}, s{S_RB}, {K5RB}")
        for j in range(4):
            A(f"v_or_b32 v14, {2*j}, v5")
            A("v_xor_b32 v14, v14, v7")
            A("v_lshlrev_b32 v14, 4, v14")
            A("v_lshl_add_u32 v14, v13, 7, v14")
            A(f"v_add_u32 v{VS+j}, s{S_TMP+3}, v14")
        A(f"v_lshrrev_b32 v7, 3, v{L}")
        A(f"v_and_b32 v14, 7, v{L}")
        A(f"v_xor_b32 v{VS+4}, v14, v7")
        A(f"v_lshlrev_b32 v{VS+4}, 4, v{VS+4}")
        A(f"v_lshl_add_u32 v{VS+4}, v7, 7, v{VS+4}")
        A(f"v_add_u32 v{VS+4}, s{S_TMP+3}, v{VS+4}")
        A(f"s_movk_i32 s{S_TMP+2}, 3584")
        A(f"v_mul_lo_u32 v7, v7, s{S_TMP+2}")
        A(f"v_lshl_add_u32 v{VS+5}, v14, 4, v7")
        A(f"s_mul_i32 s{S_TMP+4}, s{S_M}, {64*3584}")
        A(f"s_add_u32 s{S_TMP+4}, s{S_TMP+4}, s{S_TMP+6}")
        A(f"s_add_u32 s{S_TMP+5}, s{S_TMP+4}, {32*3584}")
        A("v_lshlrev_b32 v7, 3, v13")
        A("v_lshl_add_u32 v7, v5, 16, v7")
        A(f"s_lshl_b32 s{S_TMP+7}, s{S_M}, 9")
        A("s_barrier")
        self.stamp(1 + 4 * stage + 3)
        for i in range(16):
            t = 8 + (i & 1)
            A(f"v_xor_b32 v{t}, {i << 4}, v4")
            A(f"s_add_u32 m0, s{S_RB}, {i * 1024}")
            A(f"s_add_u32 s{S_TMP+2}, s{S_TMP}, {i * 1024}")
            A(f"buffer_load_dwordx4 v{t}, s[{S_A}:{S_A+3}], s{S_TMP+2} offen lds")
            vm.issue("act")
        for q in range(4):
            A(f"s_add_u32 s{S_TMP+3}, s{S_TMP+7}, {q*16384}")
            for rb in range(2):
                A(f"buffer_load_dwordx2 v[{ST+16*rb+2*q}:{ST+16*rb+2*q+1}], v7, s[{S_ST}:{S_ST+3}], s{S_TMP+3} offen offset:{rb*256}"); vm.issue("st")
        vm.wait("act")
        A("s_barrier")
        self.stamp(29)
        def reads(step):
            buf = FQ + (step % NB5) * 16
            for nb in range(2):
                for q in range(2):
                    A(f"ds_read_b64_tr_b16 v[{buf+nb*4+q*2}:{buf+nb*4+q*2+1}], v{AA+nb} offset:{K5RB + (step % D) * 2048 + q * 512}")
                    lg.issue(("f", step))
            for rb in range(2):
                A(f"ds_read_b128 v[{buf+8+rb*4}:{buf+8+rb*4+3}], v{VB[rb] + (step & 7)} offset:{(step >> 3) * 256}")
                lg.issue(("f", step))
        PKC = [[44, 46, 48, 50], [52, 54, 56, 58]]
        E = []
        for stg in range(17):
            for rb in range(2):
                b = ST + 16 * rb; c = PKC[rb]
                E.append([f"v_add_f32 v{b}, v{b}, v{b+2}", f"v_add_f32 v{b+1}, v{b+1}, v{b+3}",
                          f"v_add_f32 v{b+4}, v{b+4}, v{b+6}", f"v_add_f32 v{b+5}, v{b+5}, v{b+7}",
                          f"v_add_f32 v{b}, v{b}, v{b+4}", f"v_add_f32 v{b+1}, v{b+1}, v{b+5}",
                          f"v_mov_b32 v{b+2}, v{b}", f"v_mov_b32 v{b+3}, v{b+1}", "s_nop 1",
                          f"v_permlane32_swap_b32 v{b}, v{b+2}", f"v_permlane32_swap_b32 v{b+1}, v{b+3}", "s_nop 1",
                          f"v_add_f32 v{b}, v{b}, v{b+2}", f"v_add_f32 v{b+1}, v{b+1}, v{b+3}",
                          f"v_mul_f32 v{c[0]}, {fhex(-1/512)}, v{b}", f"v_mul_f32 v{b+1}, {fhex(1/512)}, v{b+1}",
                          f"v_fma_f32 v{b+1}, -v{c[0]}, v{c[0]}, v{b+1}"][stg])
        for stg in range(9):
            for rb in range(2):
                b = ST + 16 * rb; c = PKC[rb]
                E.append([f"v_max_f32 v{b+1}, 0, v{b+1}", f"v_add_f32 v{b+1}, {fhex(1e-5)}, v{b+1}",
                          f"v_rsq_f32 v{b+2}, v{b+1}", f"v_sqrt_f32 v{c[3]}, v{b+1}", "s_nop 0",
                          f"v_mul_f32 v{c[2]}, {fhex(GK0)}, v{b+2}", f"v_mul_f32 v{c[1]}, v{b+2}, v{b+2}",
                          f"v_mul_f32 v{c[1]}, v{c[1]}, v{b+2}", f"v_mul_f32 v{c[1]}, {fhex(GK1)}, v{c[1]}"][stg])
        for s0 in range(NB5 - 1):
            vm.wait(("w", s0)); reads(s0)
        k = 0
        for ks in range(32):
            lg.wait(("f", ks))
            with Cap(A) as cp:
                if ks + NB5 - 1 < 32:
                    vm.wait(("w", ks + NB5 - 1)); reads(ks + NB5 - 1)
                if ks + D < 32: self.dmaW(ks + D, K5RB + (ks % D) * 2048)
                elif PFE == 3 and ks == 21: next_pf(0, 1)
                elif PFE == 3 and ks >= 26: next_pf(ks - 25, ks - 24)
                if 14 <= ks < 28:
                    if ks == 14: vm.wait("st")
                    upto = len(E) * (ks - 13) // 14
                    while k < upto: A(E[k]); k += 1
            buf = FQ + (ks % NB5) * 16
            mf = []
            for nb in range(2):
                for rb in range(2):
                    acc = ACC + (nb * 2 + rb) * 16
                    c = "0" if ks == 0 else f"v[{acc}:{acc+15}]"
                    mf.append(f"v_mfma_f32_32x32x16_bf16 v[{acc}:{acc+15}], v[{buf+nb*4}:{buf+nb*4+3}], v[{buf+8+rb*4}:{buf+8+rb*4+3}], {c}")
            interleave(A, mf, cp.out)
        self.stamp(28)
        if PFE == 1: next_pf()
        else:
            A("s_nop 7"); A("s_nop 3")
        def flush5(rb):
            A("s_waitcnt lgkmcnt(0)")
            for i in range(4):
                A(f"ds_read_b128 v[{192+16*rb+4*i}:{192+16*rb+4*i+3}], v{VS+4} offset:{rb*4096 + i*1024}")
        def store5(rb):
            for i in range(4):
                if rb == 1: A(f"s_waitcnt lgkmcnt({3-i})")
                A(f"s_add_u32 s{S_TMP+3}, s{S_TMP+4+rb}, {i*8*3584}")
                A(f"buffer_store_dwordx4 v[{192+16*rb+4*i}:{192+16*rb+4*i+3}], v{VS+5}, s[{S_O}:{S_O+3}], s{S_TMP+3} offen sc1")
        for rb in range(2):
            for nb in range(2):
                acc = ACC + (nb * 2 + rb) * 16
                if rb == 1 and nb == 1:
                    A("s_waitcnt lgkmcnt(2)")
                    store5(0)
                for mp in range(2):
                    d = 160 + (nb * 4 + rb * 2 + mp) * 4
                    xs = [acc + 8 * mp + e for e in range(8)]
                    ts = list(range(128, 136)); cs = CS + (nb * 2 + mp) * 8; c = PKC[rb]
                    for e in range(0, 8, 2): pk(A, "v_pk_fma_f32", xs[e], cs + e, c[0], xs[e], "op_sel_hi:[1,0,1]")
                    for e in range(0, 8, 2): pk(A, "v_pk_mul_f32", ts[e], xs[e], xs[e])
                    for e in range(0, 8, 2): pk(A, "v_pk_fma_f32", ts[e], ts[e], c[1], c[2], "op_sel_hi:[1,0,0]")
                    for e in range(0, 8, 2): pk(A, "v_pk_mul_f32", ts[e], ts[e], xs[e])
                    for t in ts: A(f"v_exp_f32 v{t}, v{t}")
                    for e in range(0, 8, 2): pk(A, "v_pk_fma_f32", ts[e], ts[e], c[3], c[3], "op_sel_hi:[1,0,0]")
                    for t in ts: A(f"v_rcp_f32 v{t}, v{t}")
                    A("s_nop 0")
                    for e in range(0, 8, 2): pk(A, "v_pk_mul_f32", xs[e], xs[e], ts[e])
                    for e in range(0, 8, 2): A(f"v_cvt_pk_bf16_f32 v{d+e//2}, v{xs[e]}, v{xs[e+1]}")
                    A(f"ds_write_b128 v{VS+2*nb+mp}, v[{d}:{d+3}] offset:{rb*4096}")
            flush5(rb)
        store5(1)
        A("s_branch .Lk5_end")
        A.label(".Lk5_pf")
        if PFE in (1, 3): next_pf(alt=True)
        A.label(".Lk5_end")

def gen_km(A):
    name = "k1_kernel"
    M = Mega(A)
    def pre():
        if MT:
            M.persist(); M.stamp(0); M.vm.ops = []
    K1.gen_k1(A, emb=True, pre=pre)
    M.persist()
    M.transition(0)
    M.kr()
    M.transition(1)
    pf4 = lambda lo=0, hi=99: M.pf_g64(1, 512, 24576, 8, lo, hi)
    pf6 = lambda lo=0, hi=99, alt=False: M.pf_g64(3, 1792, 26624, 7, lo, hi, 6)
    M.g64("k3", 1, 512, WS_HN, 2 * MB, 1024, "gelu", 24576, 8, False, pf4, None, 0, {st: (st, st + 1) for st in range(8)}, [(2, 1792 * 1024)] if L2PF & 1 else None)
    M.transition(2, pf4)
    M.g64("k4", 2, 512, WS_H1, 2052 * 1024, 1024, "res", 24576, 8, True, M.pf_k5, pf4, 0, {st: ((0, 4) if st == 0 else (st + 3, st + 4)) for st in range(8)}, [(3, 1792 * 1024)] if L2PF & 2 else None)
    M.transition(3, M.pf_k5)
    M.k5(3, pf6, M.pf_k5)
    M.transition(4, pf6)
    M.g64("k6", 4, 1792, WS_G, 2048 * 3584, 3584, "final", 26624, 7, False, None, pf6, 6)
    M.stamp(21)
    if MT: A("s_waitcnt vmcnt(0)")
    M.stamp(22)
    A("s_endpgm")
    A.raw(kernel_desc(name, 256, 102, 256))
    return (name, (256, 1, 1), (512, 1, 1), 163840)
```

```python
from asmlib import *
MB = 1 << 20
WS_MOD = 0
WS_XN = 1 * MB
WS_X2 = 4 * MB
WS_X1 = 6 * MB
WS_XN4 = 8 * MB
WS_G = 10 * MB
WS_H = 18 * MB
WS_HN = 20 * MB
WS_H1 = 22 * MB
WS_PART = 32 * MB
WS_FLAG = 26 * MB
WS_DBG = 64 * MB
LOG2E = 1.4426950408889634
import os
PREFETCH = int(os.environ.get("PREFETCH", "1"))
CODEPF = int(os.environ.get('CODEPF','1'))
WQ2 = int(os.environ.get('WQ2','0'))
K0KV = int(os.environ.get('K0KV','0'))
TLBW = int(os.environ.get('TLBW','0'))
TLBS = int(os.environ.get('TLBS','16'))
NPF = (1 + CODEPF + WQ2 + (2 if K0KV else 0) + (1 if K0KV >= 2 else 0) + (10 if TLBW else 0)) if PREFETCH else 0

def round_bf16_1(A, v, t):
    A(f"v_cvt_pk_bf16_f32 v{t}, v{v}, v{v}")
    A(f"v_lshlrev_b32 v{v}, 16, v{t}")

def round_bf16_2(A, a, b, t, smask):
    A(f"v_cvt_pk_bf16_f32 v{t}, v{a}, v{b}")
    A(f"v_lshlrev_b32 v{a}, 16, v{t}")
    A(f"v_and_b32 v{b}, {smask}, v{t}")

def ln_stats_finish(A, vsum_sq, vden, vrinv, t):
    round_bf16_1(A, vsum_sq, t)
    A(f"v_add_f32 v{vsum_sq}, {fhex(1e-5)}, v{vsum_sq}")
    round_bf16_1(A, vsum_sq, t)
    A(f"v_sqrt_f32 v{vden}, v{vsum_sq}")
    A("s_nop 0")
    round_bf16_1(A, vden, t)
    A(f"v_rcp_f32 v{vrinv}, v{vden}")
    A("s_nop 0")

def gen_k0(A):
    name = "k0_kernel"
    K0T = int(os.environ.get("K0TIMING", "0"))
    cnt = [0]
    def stamp(real=False):
        if not K0T: return
        A("s_waitcnt lgkmcnt(0)")
        A("s_memrealtime s[100:101]" if real else "s_memtime s[100:101]")
        A("s_waitcnt lgkmcnt(0)")
        A(f"v_mov_b32 v{112+cnt[0]}, s100")
        cnt[0] += 1
    kernel_header(A, name)
    stamp(True); stamp()
    A("s_cmp_ge_u32 s2, 256")
    A("s_cbranch_scc1 .Lk0_end")
    HD = int(os.environ.get("HD", "0"))
    if HD:
        A("s_load_dwordx2 s[96:97], s[0:1], 104")
        A("s_memrealtime s[100:101]")
        A("s_waitcnt lgkmcnt(0)")
        A("s_add_u32 s96, s96, 512")
        A("s_addc_u32 s97, s97, 0")
        A("s_mov_b32 s98, 256")
        A("s_mov_b32 s99, 0x00020000")
        A(f"s_cmp_lg_u32 s2, {HD}")
        A("s_cbranch_scc1 .Lk0_hd")
        A("v_mov_b32 v2, s100")
        A("v_mov_b32 v3, 0")
        A("buffer_store_dword v2, v3, s[96:99], 0 offen")
        A("s_waitcnt vmcnt(0)")
        A.label(".Lk0_hd")
    A("s_load_dwordx2 s[4:5], s[0:1], 0")
    A("s_load_dwordx4 s[8:11], s[0:1], 80")
    A("s_load_dwordx2 s[6:7], s[0:1], 112")
    A("s_load_dwordx2 s[56:57], s[0:1], 64")
    A("v_and_b32 v1, 63, v0")
    A("v_lshrrev_b32 v2, 6, v0")
    A("s_mov_b32 s40, 0xffff0000")
    A("s_waitcnt lgkmcnt(0)")
    stamp()
    make_srd(A, 12, 4, 0, 2 * MB)
    make_srd(A, 16, 6, WS_XN, 2 * MB)
    make_srd(A, 20, 8, 0, 1024)
    make_srd(A, 24, 10, 0, 512 * 6144)
    make_srd(A, 28, 6, WS_MOD, 3072 * 4)
    A("s_movk_i32 s41, 6144")
    A("s_mov_b32 s43, s2")
    A("s_cmp_lt_u32 s2, 96")
    A("s_cbranch_scc1 .Lk0_ismod")
    make_srd(A, 24, 56, 0, 512 * 3584)
    make_srd(A, 28, 6, 64 * 1024, 1792 * 4)
    A("s_movk_i32 s41, 3584")
    A("s_sub_u32 s43, s2, 96")
    A.label(".Lk0_ismod")
    A("s_lshl_b32 s3, s2, 13")
    A("v_lshlrev_b32 v3, 11, v2")
    A("v_lshl_add_u32 v3, v1, 4, v3")
    A("v_add_u32 v3, s3, v3")
    A("buffer_load_dwordx4 v[4:7], v3, s[12:15], 0 offen")
    A("buffer_load_dwordx4 v[8:11], v3, s[12:15], 0 offen offset:1024")
    A("s_cmp_ge_u32 s2, 152")
    A("s_cbranch_scc1 .Lk0_noB1")
    A("v_and_b32 v12, 3, v0")
    A("v_lshrrev_b32 v13, 2, v0")
    A("v_mul_lo_u32 v14, v13, s41")
    A("v_lshl_add_u32 v14, v12, 4, v14")
    A("s_lshl_b32 s44, s43, 6")
    A("s_lshl_b32 s42, s41, 6")
    for i in range(1, 8):
        A(f"s_add_u32 s{44+i}, s{43+i}, s42")
    A("v_lshlrev_b32 v15, 1, v13")
    for i in range(8):
        A(f"buffer_load_ushort v{16+i}, v15, s[20:23], 0 offen offset:{i*128}")
    for i in range(8):
        A(f"buffer_load_dwordx4 v[{24+4*i}:{27+4*i}], v14, s[24:27], s{44+i} offen")
    A.label(".Lk0_noB1")
    if PREFETCH:
        A("s_load_dwordx8 s[64:71], s[0:1], 8")
        A("s_load_dwordx8 s[72:79], s[0:1], 48")
        A("s_and_b32 s52, s2, 7")
        A("s_lshr_b32 s53, s2, 3")
        A("v_lshlrev_b32 v97, 6, v0")
        A("v_lshrrev_b32 v98, 4, v0")
        A("v_and_b32 v99, 15, v0")
        A("v_lshlrev_b32 v99, 6, v99")
        A("v_lshl_add_u32 v98, v98, 13, v99")
        A("v_lshlrev_b32 v99, 6, v1")
        A("s_waitcnt lgkmcnt(0)")
        make_srd(A, 80, 68, 0, 4 * MB if int(os.environ.get("WQPF","1")) else 0)
        A("s_lshl_b32 s54, s53, 17")
        A("s_lshl_b32 s55, s52, 10")
        A("s_add_u32 s54, s54, s55")
        A("buffer_load_dword v100, v98, s[80:83], s54 offen")
        if WQ2:
            A("s_xor_b32 s54, s54, 1024")
            A("buffer_load_dword v102, v98, s[80:83], s54 offen")
        if CODEPF:
            A("s_getpc_b64 s[84:85]")
            A.label(".Lk0_pc")
            A("s_mov_b32 s86, .Lcode_end-.Lk0_pc")
            A("s_mov_b32 s87, 0x00020000")
            A("s_lshl_b32 s54, s53, 12")
            A("buffer_load_dword v101, v99, s[84:87], s54 offen")
        if K0KV:
            A("s_lshl_b32 s54, s52, 19")
            A("s_lshl_b32 s55, s53, 12")
            A("s_add_u32 s54, s54, s55")
            A(f"s_add_u32 s54, s54, {1536*256}")
            make_srd(A, 88, 64, 0, 4 * MB)
            A("buffer_load_dword v103, v99, s[88:91], s54 offen")
            make_srd(A, 92, 66, 0, 4 * MB)
            A("buffer_load_dword v104, v99, s[92:95], s54 offen")
        if K0KV >= 2:
            make_srd(A, 84, 70, 0, 4 * MB)
            A("s_lshl_b32 s54, s2, 14")
            A("buffer_load_dword v105, v97, s[84:87], s54 offen")
        if TLBW:
            A("s_lshl_b32 s54, s53, 8")
            A("v_add_u32 v106, s54, v0")
            A(f"v_lshlrev_b32 v106, {TLBS}, v106")
            A("s_load_dwordx2 s[58:59], s[0:1], 96")
            A("s_waitcnt lgkmcnt(0)")
            for (p, sz) in ((6, 64 * MB), (64, 4 * MB), (66, 4 * MB), (70, 4 * MB), (72, 512*1024), (74, 512*1024), (76, 1792*1024), (78, 1792*1024), (58, 2 * MB), (68, 4 * MB)):
                make_srd(A, 96, p, 0, sz)
                A("buffer_load_dword v107, v106, s[96:99], 0 offen")
    A("s_cmp_ge_u32 s2, 152")
    A("s_cbranch_scc1 .Lk0_w0")
    A(f"s_waitcnt vmcnt({16 + NPF})")
    A("s_branch .Lk0_w1")
    A.label(".Lk0_w0")
    A(f"s_waitcnt vmcnt({NPF})")
    A.label(".Lk0_w1")
    stamp()
    X = [64, 72]
    for r in range(2):
        for j in range(4):
            A(f"v_lshlrev_b32 v{X[r]+2*j}, 16, v{4+4*r+j}")
            A(f"v_and_b32 v{X[r]+2*j+1}, s40, v{4+4*r+j}")
    S = [80, 81]
    for r in range(2):
        A(f"v_add_f32 v{S[r]}, v{X[r]}, v{X[r]+1}")
        for j in range(2, 8):
            A(f"v_add_f32 v{S[r]}, v{S[r]}, v{X[r]+j}")
    wave_allreduce(A, "v_add_f32", S, [82, 83], [84, 85])
    M = [86, 87]; MBF = [88, 89]
    for r in range(2):
        A(f"v_mul_f32 v{M[r]}, {fhex(1/512)}, v{S[r]}")
        A(f"v_mov_b32 v{MBF[r]}, v{M[r]}")
        round_bf16_1(A, MBF[r], 90)
    for r in range(2):
        for j in range(8):
            A(f"v_sub_f32 v90, v{X[r]+j}, v{M[r]}")
            if j == 0:
                A(f"v_mul_f32 v{S[r]}, v90, v90")
            else:
                A(f"v_fmac_f32 v{S[r]}, v90, v90")
    wave_allreduce(A, "v_add_f32", S, [82, 83], [84, 85])
    DEN = [91, 92]; RINV = [93, 94]
    for r in range(2):
        A(f"v_mul_f32 v{S[r]}, {fhex(1/512)}, v{S[r]}")
        ln_stats_finish(A, S[r], DEN[r], RINV[r], 90)
    for r in range(2):
        for j in range(0, 8, 2):
            a, b = X[r] + j, X[r] + j + 1
            A(f"v_sub_f32 v{a}, v{a}, v{MBF[r]}")
            A(f"v_sub_f32 v{b}, v{b}, v{MBF[r]}")
            round_bf16_2(A, a, b, 90, "s40")
            for e in (a, b):
                A(f"v_mul_f32 v95, v{e}, v{RINV[r]}")
                A(f"v_fma_f32 v96, -v95, v{DEN[r]}, v{e}")
                A(f"v_fma_f32 v{e}, v96, v{RINV[r]}, v95")
            A(f"v_cvt_pk_bf16_f32 v{4+4*r+j//2}, v{a}, v{b}")
    A("buffer_store_dwordx4 v[4:7], v3, s[16:19], 0 offen " + os.environ.get("XNF","sc1"))
    A("buffer_store_dwordx4 v[8:11], v3, s[16:19], 0 offen offset:1024 " + os.environ.get("XNF","sc1"))
    if int(os.environ.get("MEGA", "3")):
        make_srd(A, 96, 6, WS_FLAG, 256 * 256)
        A("s_lshl_b32 s3, s2, 8")
        A("v_lshlrev_b32 v95, 2, v0")
        A("v_mov_b32 v96, 0")
        A("v_cmp_gt_u32 vcc, 64, v0")
        A("s_and_saveexec_b64 s[60:61], vcc")
        A("buffer_store_dword v96, v95, s[96:99], s3 offen sc1")
        A("s_mov_b64 exec, s[60:61]")
    stamp()
    A("s_cmp_ge_u32 s2, 152")
    A("s_cbranch_scc1 .Lk0_end")
    A(f"s_waitcnt vmcnt({10 + NPF})")
    for i in range(8):
        c = 16 + i
        A(f"v_lshlrev_b32 v{c}, 16, v{c}")
        A(f"v_mul_f32 v90, {fhex(-LOG2E)}, v{c}")
        A("v_exp_f32 v90, v90")
        A("s_nop 0")
        A("v_add_f32 v90, 1.0, v90")
        A("v_rcp_f32 v91, v90")
        A("s_nop 0")
        A(f"v_mul_f32 v92, v{c}, v91")
        A(f"v_fma_f32 v93, -v92, v90, v{c}")
        A(f"v_fma_f32 v{c}, v93, v91, v92")
        round_bf16_1(A, c, 90)
    A("s_cmp_lt_u32 s2, 96")
    A("s_cbranch_scc1 .Lk0_ismod2")
    for i in range(8):
        A(f"v_mov_b32 v{16+i}, 1.0")
    A.label(".Lk0_ismod2")
    ACC = list(range(64, 72))
    for i in range(8):
        A(f"s_waitcnt vmcnt({7-i+2+NPF})")
        for j in range(4):
            w = 24 + 4 * i + j
            A(f"v_lshlrev_b32 v90, 16, v{w}")
            A(f"v_and_b32 v91, s40, v{w}")
            if i == 0:
                A(f"v_mul_f32 v{ACC[2*j]}, v90, v{16+i}")
                A(f"v_mul_f32 v{ACC[2*j+1]}, v91, v{16+i}")
            else:
                A(f"v_fmac_f32 v{ACC[2*j]}, v90, v{16+i}")
                A(f"v_fmac_f32 v{ACC[2*j+1]}, v91, v{16+i}")
    stamp()
    A("s_nop 1")
    for dpp in ("row_ror:8", "row_ror:4"):
        for v in ACC:
            A(f"v_add_f32_dpp v{v}, v{v}, v{v} {dpp} row_mask:0xf bank_mask:0xf")
    for sw in ("v_permlane16_swap_b32", "v_permlane32_swap_b32"):
        for k, v in enumerate(ACC):
            A(f"v_mov_b32 v{72+k}, v{v}")
            A(f"v_mov_b32 v{80+k}, v{v}")
        A("s_nop 1")
        for k, v in enumerate(ACC):
            A(f"{sw} v{72+k}, v{80+k}")
        A("s_nop 1")
        for k, v in enumerate(ACC):
            A(f"v_add_f32 v{v}, v{72+k}, v{80+k}")
    A("v_lshlrev_b32 v90, 7, v2")
    A("v_lshl_add_u32 v90, v12, 5, v90")
    A("v_cmp_gt_u32 vcc, 4, v1")
    A("s_and_saveexec_b64 s[60:61], vcc")
    A("ds_write_b128 v90, v[64:67]")
    A("ds_write_b128 v90, v[68:71] offset:16")
    A("s_mov_b64 exec, s[60:61]")
    A("s_waitcnt lgkmcnt(0)")
    A("s_barrier")
    if K0T:
        stamp(); stamp(True)
        make_srd(A, 88, 6, WS_DBG, 32 * MB)
        A("v_readfirstlane_b32 s92, v2")
        A("s_lshl_b32 s93, s2, 3")
        A("s_add_u32 s93, s93, s92")
        A("s_lshl_b32 s93, s93, 7")
        A("v_mov_b32 v111, 0")
        for i in range(cnt[0]):
            A(f"buffer_store_dword v{112+i}, v111, s[88:91], s93 offen offset:{4*i}")
    A("v_cmp_gt_u32 vcc, 32, v0")
    A("s_and_saveexec_b64 s[60:61], vcc")
    A("s_cbranch_execz .Lk0_end")
    A("v_lshlrev_b32 v90, 2, v0")
    A("ds_read_b32 v64, v90")
    A("ds_read_b32 v65, v90 offset:128")
    A("ds_read_b32 v66, v90 offset:256")
    A("ds_read_b32 v67, v90 offset:384")
    A("s_waitcnt lgkmcnt(0)")
    A("v_add_f32 v64, v64, v65")
    A("v_add_f32 v66, v66, v67")
    A("v_add_f32 v64, v64, v66")
    A("s_cmp_ge_u32 s2, 96")
    A("s_cbranch_scc1 .Lk0_nornd")
    round_bf16_1(A, 64, 65)
    A.label(".Lk0_nornd")
    A("s_lshl_b32 s42, s43, 7")
    A("buffer_store_dword v64, v90, s[28:31], s42 offen")
    A.label(".Lk0_end")
    A("s_endpgm")
    A.raw(kernel_desc(name, 128, 102))
    return (name, (256, 1, 1), (256, 1, 1), 512)
```

```python
from asmlib import *
from gen_k0 import *
import gen_k1 as K1
from gen_k1 import Cnt
from gen_ka import ln_rows, round_multi, pack8, GK0, GK1
from gen_g64 import WS_STAT, WS_CS
import os
MT = int(os.environ.get("MT", "0"))
HD = int(os.environ.get("HD", "0"))
S_WAVE = 40; S_M = 41; S_J = 42; S_MASK = 43; S_RB = 44; S_GOFF = 45; S_TMP = 48; S_WOFF = 58
S_W = 32; V_W = 6
P_X = 60; P_OUT = 62; P_WS = 68; P_W = 84
SM = f"s{S_MASK}"
L = 1
RG = 40960; RS = 272
K5RB = 18432; K5D = 11
L2PF = int(os.environ.get('L2PF', '0'))
PFE = int(os.environ.get('PFE', '3'))
NE = int(os.environ.get('NE', '3')) if PFE == 2 else 0

def pk(A, op, d, a, b, c=None, sel=""):
    ops = ", ".join(f"v[{x}:{x+1}]" for x in ((d, a, b) if c is None else (d, a, b, c)))
    A(f"{op} {ops} {sel}".rstrip())

class Cap:
    def __init__(self, A): self.A = A
    def __enter__(self):
        self.sv = self.A.lines; self.A.lines = []; return self
    def __exit__(self, *a):
        self.out = self.A.lines; self.A.lines = self.sv

def interleave(A, mf, fill):
    n = len(mf); k = 0
    for i, m in enumerate(mf):
        A(m)
        upto = (len(fill) * (i + 1) + n - 1) // n
        while upto < len(fill) and upto > 0 and not (fill[upto - 1].lstrip().startswith(("buffer_", "ds_", "v_", "s_waitcnt")) or fill[upto - 1].lstrip().startswith(f"s_add_u32 s{S_WOFF}")): upto += 1
        A.lines.extend(fill[k:upto]); k = max(k, upto)

class Mega:
    def __init__(self, A):
        self.A = A
        self.vm = Cnt(A, "vmcnt", 63); self.lg = Cnt(A, "lgkmcnt", 15)
    def stamp(self, idx):
        if HD:
            hmap = {0: 2, 3: 3, 4: 4, 7: 5, 8: 6, 11: 7, 12: 8, 15: 9, 16: 10, 19: 11, 20: 12, 21: 13, 22: 14}
            if int(os.environ.get('HK', '0')): hmap = {0: 2, 22: 14}
            if idx not in hmap: return
            A = self.A
            lab = A.newlabel("hd")
            A("s_waitcnt lgkmcnt(0)")
            A("s_load_dwordx2 s[76:77], s[0:1], 104")
            A("s_memrealtime s[70:71]")
            A("s_waitcnt lgkmcnt(0)")
            A("s_mov_b32 s72, s76")
            A("s_mov_b32 s73, s77")
            A("s_mov_b32 s74, 256")
            A("s_mov_b32 s75, 0x00020000")
            A(f"s_lshl_b32 s76, s{S_WAVE}, 8")
            A("s_or_b32 s76, s76, s2")
            A(f"s_cmp_lg_u32 s76, {HD}")
            A(f"s_cbranch_scc1 {lab}")
            A("v_mov_b32 v2, s70")
            A("v_mov_b32 v3, 0")
            A(f"buffer_store_dword v2, v3, s[72:75], 0 offen offset:{4*hmap[idx]}")
            A.label(lab)
            self.lg.ops = []
            return
        if not MT: return
        A = self.A
        A("s_waitcnt lgkmcnt(0)")
        A("s_memrealtime s[70:71]")
        make_srd(A, 72, P_WS, WS_DBG, 32 * MB)
        A("s_lshl_b32 s76, s2, 3")
        A(f"s_add_u32 s76, s76, s{S_WAVE}")
        A("s_lshl_b32 s76, s76, 7")
        A("s_waitcnt lgkmcnt(0)")
        A("v_mov_b32 v2, s70")
        A("v_mov_b32 v3, 0")
        A(f"buffer_store_dword v2, v3, s[72:75], s76 offen offset:{4*idx}")
        self.vm.issue("stamp"); self.lg.ops = []
    def flag_srd(self, stage):
        make_srd(self.A, 92, P_WS, WS_FLAG + stage * 32 * 256, 32 * 256)
    def transition(self, stage, early=None):
        A = self.A
        self.stamp(1 + 4 * stage)
        self.vm.ops = []
        if early and NE:
            A(f"s_cmp_ge_u32 s{S_WAVE}, 4")
            A(f"s_cbranch_scc1 .Ltr{stage}_h")
            early(0, NE)
            A(f"s_waitcnt vmcnt({len(self.vm.ops)})")
            A(f"s_branch .Ltr{stage}_j")
            A.label(f".Ltr{stage}_h")
            A("s_waitcnt vmcnt(0)")
            A.label(f".Ltr{stage}_j")
        else:
            A("s_waitcnt vmcnt(0)")
        self.flag_srd(stage)
        A(f"s_lshl_b32 s96, s{S_M}, 8")
        A(f"s_lshl_b32 s97, s{S_J}, 2")
        A("s_add_u32 s97, s97, s96")
        A("v_mov_b32 v2, 1")
        A("v_mov_b32 v3, s97")
        A("s_waitcnt lgkmcnt(0)")
        self.lg.ops = []
        A("s_barrier")
        A(f"s_cmp_lg_u32 s{S_WAVE}, 7")
        A(f"s_cbranch_scc1 .Lpub{stage}")
        A("s_mov_b64 exec, 1")
        A("buffer_store_dword v2, v3, s[92:95], 0 offen sc1")
        A("s_mov_b64 exec, -1")
        A.label(f".Lpub{stage}")
        self.stamp(1 + 4 * stage + 2)
    def poll(self, stage, nbr=False, check=True):
        A = self.A
        lab = f".Lpl{stage}"
        if check:
            A(f"s_cmp_lg_u32 s{S_WAVE}, 7")
            A(f"s_cbranch_scc1 {lab}_done")
        A("v_and_b32 v3, 7, v1")
        A("v_lshlrev_b32 v3, 2, v3")
        if nbr:
            A("v_bfe_u32 v2, v1, 3, 2")
            A("v_min_u32 v2, 2, v2")
            A(f"v_add_u32 v2, s{S_M}, v2")
            A("v_max_u32 v2, 1, v2")
            A("v_min_u32 v2, 32, v2")
            A("v_subrev_u32 v2, 1, v2")
            A("v_lshl_add_u32 v3, v2, 8, v3")
        else:
            A("v_add_u32 v3, s96, v3")
        A("s_mov_b32 s98, 0")
        NP = int(os.environ.get("NPOLL", "1")); PSL = int(os.environ.get("PSL", "1"))
        if NP == 1:
            A.label(f"{lab}_poll")
            A("buffer_load_dword v2, v3, s[92:95], 0 offen sc1")
            A("s_add_u32 s98, s98, 1")
            A("s_waitcnt vmcnt(0)")
            A("v_cmp_ne_u32 vcc, 1, v2")
            A("s_cmp_lt_u32 s98, 0x40000")
            A(f"s_cbranch_scc0 {lab}_done")
            A(f"s_cbranch_vccnz {lab}_poll")
        else:
            for i in range(NP):
                A(f"buffer_load_dword v{248+i}, v3, s[92:95], 0 offen sc1")
                if PSL and i < NP - 1: A(f"s_sleep {PSL}")
            A.label(f"{lab}_poll")
            for i in range(NP):
                A(f"s_waitcnt vmcnt({NP-1})")
                A(f"v_cmp_ne_u32 vcc, 1, v{248+i}")
                A(f"s_cbranch_vccz {lab}_done")
                A(f"buffer_load_dword v{248+i}, v3, s[92:95], 0 offen sc1")
            A("s_add_u32 s98, s98, 1")
            A("s_cmp_lt_u32 s98, 0x40000")
            A(f"s_cbranch_scc1 {lab}_poll")
        A.label(f"{lab}_done")
    def w_setup(self, widx, K, rowbytes, woff_code):
        A = self.A
        make_srd(A, S_W, P_W + 2 * widx, 0, K * rowbytes)
        A(f"v_lshrrev_b32 v2, 3, v{L}")
        A(f"v_and_b32 v3, 7, v{L}")
        A(f"v_lshlrev_b32 v{V_W}, 1, v2")
        A(f"v_and_b32 v{V_W}, 4, v{V_W}")
        A(f"v_xor_b32 v3, v3, v{V_W}")
        A("v_lshlrev_b32 v3, 4, v3")
        A(f"v_mul_u32_u24 v2, {rowbytes}, v2") if rowbytes < 64 else None
        A(f"s_movk_i32 s{S_WOFF}, {rowbytes}")
        A(f"v_mul_lo_u32 v2, v2, s{S_WOFF}")
        A(f"v_add_u32 v{V_W}, v2, v3")
        woff_code()
        self.wrb = rowbytes
    def dmaW(self, st, ldsoff, tag="w"):
        A = self.A
        for i in range(2):
            A(f"s_add_u32 m0, s{S_RB}, {ldsoff + i * 1024}")
            A("s_nop 0")
            A(f"buffer_load_dwordx4 v{V_W}, s[{S_W}:{S_W+3}], s{S_WOFF} offen lds")
            self.vm.issue((tag, st))
            A(f"s_add_u32 s{S_WOFF}, s{S_WOFF}, {8 * self.wrb}")
    def pf_g64(self, widx, K, WB, DW, lo=0, hi=99, rot=0):
        A = self.A
        def woff():
            A(f"s_mul_i32 s{S_WOFF}, s{S_WAVE}, {(K // 4) * 1024}")
            A(f"s_lshl_b32 s{S_TMP+11}, s{S_J}, 7")
            A(f"s_add_u32 s{S_WOFF}, s{S_WOFF}, s{S_TMP+11}")
        if lo == 0: self.w_setup(widx, K, 1024, woff)
        self.wrb = 1024
        for st in range(lo, min(DW, hi)): self.dmaW(st, WB + ((st + rot) % DW) * 2048, "wn" if PFE == 3 else "w")
    def pf_k5(self, lo=0, hi=99):
        A = self.A
        def woff():
            A(f"s_min_u32 s{S_WOFF}, s{S_J}, 6")
            A(f"s_lshl_b32 s{S_WOFF}, s{S_WOFF}, 9")
            A(f"s_lshl_b32 s{S_TMP+11}, s{S_WAVE}, 7")
            A(f"s_add_u32 s{S_WOFF}, s{S_WOFF}, s{S_TMP+11}")
        if lo == 0: self.w_setup(2, 512, 3584, woff)
        self.wrb = 3584
        for st in range(lo, min(K5D, hi)): self.dmaW(st, K5RB + st * 2048, "wn" if PFE == 3 else "w")
    def l2pf(self, widx, size):
        A = self.A
        per = size // 32
        A("s_lshr_b32 s78, s2, 3")
        A(f"s_mul_i32 s78, s78, {per}")
        make_srd(A, 80, P_W + 2 * widx, "s78", per)
        A("v_and_b32 v2, 255, v0")
        A("v_lshlrev_b32 v2, 7, v2")
        n = (per + 32767) // 32768
        for i in range(n):
            A(f"s_mov_b32 s78, {i * 32768}")
            A("buffer_load_dword v3, v2, s[80:83], s78 offen")
        return n
    def persist(self):
        A = self.A
        A(f"s_load_dwordx2 s[{P_X}:{P_X+1}], s[0:1], 0")
        A(f"s_load_dwordx2 s[{P_OUT}:{P_OUT+1}], s[0:1], 96")
        A(f"s_load_dwordx2 s[{P_WS}:{P_WS+1}], s[0:1], 112")
        A(f"s_load_dwordx8 s[{P_W}:{P_W+7}], s[0:1], 48")
        A("v_and_b32 v1, 63, v0")
        A("v_lshrrev_b32 v2, 6, v0")
        A("s_nop 0")
        A(f"v_readfirstlane_b32 s{S_WAVE}, v2")
        A(f"s_and_b32 s{S_M}, s2, 31")
        A(f"s_lshr_b32 s{S_J}, s2, 5")
        A(f"s_mov_b32 s{S_MASK}, 0xffff0000")
        A(f"s_mul_i32 s{S_RB}, s{S_WAVE}, {RG}")
        A("s_waitcnt lgkmcnt(0)")
    def kr(self):
        A = self.A; vm = self.vm
        S_X = 8; S_MOD = 12; S_PT = 16; S_X2 = 20; S_H = 24; S_HN = 28; S_H1 = 36
        PR = 64; XR = 16; GA = 24; CB = 32; SB = 40
        A("v_lshlrev_b32 v9, 4, v1")
        A("v_lshlrev_b32 v10, 5, v1")
        A(f"s_lshl_b32 s3, s{S_M}, 3")
        A(f"s_add_u32 s3, s3, s{S_J}")
        A("s_lshl_b32 s3, s3, 3")
        A(f"s_add_u32 s3, s3, s{S_WAVE}")
        A("s_lshl_b32 s3, s3, 10")
        make_srd(A, S_X, P_X, 0, 2 * MB)
        make_srd(A, S_MOD, P_WS, WS_MOD, 3072 * 4)
        A(f"buffer_load_dwordx4 v[{XR}:{XR+3}], v9, s[{S_X}:{S_X+3}], s3 offen"); vm.issue("x")
        for (dst, idx) in ((CB, 4), (GA, 2), (SB, 3)):
            A(f"s_movk_i32 s{S_TMP}, {idx*2048}")
            A(f"buffer_load_dwordx4 v[{dst}:{dst+3}], v10, s[{S_MOD}:{S_MOD+3}], s{S_TMP} offen"); vm.issue("x")
            A(f"buffer_load_dwordx4 v[{dst+4}:{dst+7}], v10, s[{S_MOD}:{S_MOD+3}], s{S_TMP} offen offset:16"); vm.issue("x")
        make_srd(A, S_PT, P_WS, WS_PART, 8 * 2048 * 512 * 2)
        make_srd(A, S_X2, P_WS, WS_X2, 2 * MB)
        make_srd(A, S_H, P_WS, WS_H, 2 * MB)
        make_srd(A, S_HN, P_WS, WS_HN, 2 * MB)
        make_srd(A, S_H1, P_WS, WS_H1, 2052 * 1024)
        A(f"s_cmp_ge_u32 s{S_WAVE}, 4")
        A("s_cbranch_scc1 .Lkr_nz2")
        A(f"s_lshr_b32 s{S_TMP}, s{S_WAVE}, 1")
        A(f"s_mul_i32 s{S_TMP}, s{S_TMP}, 31")
        A(f"s_cmp_lg_u32 s2, s{S_TMP}")
        A("s_cbranch_scc1 .Lkr_nz")
        A(f"s_lshl_b32 s{S_TMP}, s{S_WAVE}, 10")
        A(f"s_add_u32 s{S_TMP+1}, s{S_TMP}, {2048*1024}")
        A(f"s_cmp_lt_u32 s{S_WAVE}, 2")
        A(f"s_cselect_b32 s{S_TMP}, s{S_TMP}, s{S_TMP+1}")
        for j in range(4): A(f"v_mov_b32 v{12+j}, 0")
        A(f"buffer_store_dwordx4 v[12:15], v9, s[{S_H1}:{S_H1+3}], s{S_TMP} offen sc1")
        A.label(".Lkr_nz")
        PFW1 = int(os.environ.get("PFW1", "1"))
        sv = list(vm.ops)
        if PFW1 == 1: self.pf_g64(0, 512, 24576, 8)
        vm.ops = sv
        A.label(".Lkr_nz2")
        self.poll(0)
        A("s_barrier")
        self.stamp(4)
        PL = int(os.environ.get("PL", "1"))
        if PL:
            A(f"s_mul_i32 s{S_TMP}, s{S_M}, {7 * 65536}")
            A(f"s_add_u32 s{S_TMP}, s{S_TMP}, s3")
        else: A(f"s_mov_b32 s{S_TMP}, s3")
        for g in range(8):
            A(f"buffer_load_dwordx4 v[{PR+4*g}:{PR+4*g+3}], v9, s[{S_PT}:{S_PT+3}], s{S_TMP} offen"); vm.issue(("p", g))
            if g < 7: A(f"s_add_u32 s{S_TMP}, s{S_TMP}, {65536 if PL else 2048*512*2}")
        X = list(range(48, 56)); T = list(range(PR, PR + 12)); XU = list(range(96, 104))
        if PFW1 == 3:
            def woff():
                A(f"s_and_b32 s{S_TMP+9}, s{S_WAVE}, 3")
                A(f"s_lshr_b32 s{S_TMP+8}, s{S_WAVE}, 2")
                A(f"s_lshl_b32 s{S_WOFF}, s{S_TMP+9}, 17")
                A(f"s_lshl_b32 s{S_TMP+11}, s{S_TMP+8}, 16")
                A(f"s_add_u32 s{S_WOFF}, s{S_WOFF}, s{S_TMP+11}")
                A(f"s_lshl_b32 s{S_TMP+11}, s{S_J}, 7")
                A(f"s_add_u32 s{S_WOFF}, s{S_WOFF}, s{S_TMP+11}")
                A(f"s_mov_b32 s{S_TMP+7}, s{S_RB}")
                A(f"s_mul_i32 s{S_RB}, s{S_TMP+9}, {RG}")
                A(f"s_lshl_b32 s{S_TMP+8}, s{S_TMP+8}, 13")
                A(f"s_add_u32 s{S_RB}, s{S_RB}, s{S_TMP+8}")
            self.w_setup(0, 512, 1024, woff)
            for st in range(4): self.dmaW(st, 24576 + st * 2048, "wn")
            A(f"s_mov_b32 s{S_RB}, s{S_TMP+7}")
        if int(os.environ.get("KRX", "0")):
            vm.wait(("p", 0)); self.stamp(25)
            vm.wait(("p", 7)); self.stamp(26)
        vm.wait("x")
        for j in range(8): A(f"v_add_f32 v{CB+j}, 1.0, v{CB+j}")
        round_multi(A, list(range(CB, CB + 8)), [56, 57, 58, 59], SM)
        for j in range(4):
            A(f"v_lshlrev_b32 v{XU[2*j]}, 16, v{XR+j}")
            A(f"v_and_b32 v{XU[2*j+1]}, {SM}, v{XR+j}")
        for g in range(8):
            vm.wait(("p", g))
            if g == 0:
                for j in range(4):
                    A(f"v_lshlrev_b32 v{X[2*j]}, 16, v{PR+j}")
                    A(f"v_and_b32 v{X[2*j+1]}, {SM}, v{PR+j}")
            else:
                for j in range(4):
                    p = PR + 4 * g + j
                    A(f"v_lshlrev_b32 v{PR+j}, 16, v{p}")
                    A(f"v_and_b32 v{p}, {SM}, v{p}")
                for j in range(4):
                    p = PR + 4 * g + j
                    A(f"v_add_f32 v{X[2*j]}, v{X[2*j]}, v{PR+j}")
                    A(f"v_add_f32 v{X[2*j+1]}, v{X[2*j+1]}, v{p}")
        self.stamp(23)
        if PFW1 == 2:
            A(f"s_cmp_ge_u32 s{S_WAVE}, 4")
            A("s_cbranch_scc1 .Lkr_nz3")
            self.pf_g64(0, 512, 24576, 8)
            A.label(".Lkr_nz3")
        round_multi(A, X, T[5:9], SM)
        for j in range(8): A(f"v_mul_f32 v{X[j]}, v{X[j]}, v{GA+j}")
        round_multi(A, X, T[5:9], SM)
        for j in range(8): A(f"v_add_f32 v{X[j]}, v{X[j]}, v{XU[j]}")
        pack8(A, X, XR)
        A(f"buffer_store_dwordx4 v[{XR}:{XR+3}], v9, s[{S_X2}:{S_X2+3}], s3 offen sc1")
        for j in range(4):
            A(f"v_lshlrev_b32 v{X[2*j]}, 16, v{XR+j}")
            A(f"v_and_b32 v{X[2*j+1]}, {SM}, v{XR+j}")
        ln_rows(A, [(X, T)], SM)
        for j in range(8): A(f"v_mul_f32 v{X[j]}, v{X[j]}, v{CB+j}")
        round_multi(A, X, T[5:9], SM)
        for j in range(8): A(f"v_add_f32 v{X[j]}, v{X[j]}, v{SB+j}")
        pack8(A, X, 80)
        A(f"buffer_store_dwordx4 v[80:83], v9, s[{S_H}:{S_H+3}], s3 offen sc1")
        self.stamp(24)
        for j in range(4):
            A(f"v_lshlrev_b32 v{X[2*j]}, 16, v{80+j}")
            A(f"v_and_b32 v{X[2*j+1]}, {SM}, v{80+j}")
        ln_rows(A, [(X, T)], SM)
        pack8(A, X, 84)
        A(f"buffer_store_dwordx4 v[84:87], v9, s[{S_HN}:{S_HN+3}], s3 offen sc1")
    def g64(self, lab, stage, K, a_off, a_size, a_rb, epi, WB, DW, nbr, next_pf, own_pf=None, rot=0, nsched=None, l2=None):
        A = self.A; vm = self.vm; lg = self.lg
        S_G = 8; S_X1 = 16; S_X2 = 20; S_MOD = 24; S_O = 28; S_ST = 36
        KW = K // 4; NCH = KW // 64; NS = NCH * 4; DG = 3
        VG = [4, 5]; AA = 16; BA = 18
        X1 = 24; X2 = 32; GB = 40
        V_PW = 48; V_PR = 49; V_GA = 51; V_SA = 52; VC = (12, 14, 54)
        ACC = 64; FR = 128
        NBG = int(os.environ.get('NBG', '3'))
        def tail_setup():
            A(f"v_lshrrev_b32 v10, 3, v{L}")
            A(f"v_and_b32 v11, 7, v{L}")
            A(f"v_mul_u32_u24 v{V_PR}, {RS}, v10")
            A(f"v_lshl_add_u32 v{V_PR}, v11, 5, v{V_PR}")
            A(f"s_mul_i32 s{S_TMP+3}, s{S_WAVE}, {8*RS}")
            A(f"v_add_u32 v{V_PR}, s{S_TMP+3}, v{V_PR}")
            A(f"v_add_u32 v{V_PR+1}, {2*RG}, v{V_PR}")
            A(f"v_lshlrev_b32 v{V_GA}, 4, v11")
            A(f"v_lshl_add_u32 v{V_GA}, v10, 10, v{V_GA}")
            A(f"s_lshl_b32 s{S_TMP+2}, s{S_M}, 16")
            A(f"s_lshl_b32 s{S_TMP+3}, s{S_WAVE}, 13")
            A(f"s_add_u32 s{S_TMP+2}, s{S_TMP+2}, s{S_TMP+3}")
            A(f"s_lshl_b32 s{S_TMP+3}, s{S_J}, 7")
            A(f"s_add_u32 s{S_TMP+2}, s{S_TMP+2}, s{S_TMP+3}")
            if epi == "final":
                A(f"v_lshlrev_b32 v{V_SA}, 5, v11")
                make_srd(A, S_X1, P_WS, WS_X1, 2 * MB)
                make_srd(A, S_X2, P_WS, WS_X2, 2 * MB)
                make_srd(A, S_MOD, P_WS, WS_MOD, 3072 * 4)
                make_srd(A, S_O, P_OUT, 0, 2 * MB)
                A(f"buffer_load_dwordx4 v[{X1}:{X1+3}], v{V_GA}, s[{S_X1}:{S_X1+3}], s{S_TMP+2} offen"); vm.issue("e")
                A(f"buffer_load_dwordx4 v[{X2}:{X2+3}], v{V_GA}, s[{S_X2}:{S_X2+3}], s{S_TMP+2} offen"); vm.issue("e")
                A(f"s_lshl_b32 s{S_TMP+3}, s{S_J}, 8")
                A(f"s_add_u32 s{S_TMP+3}, s{S_TMP+3}, {5*2048}")
                for h4 in range(2):
                    A(f"buffer_load_dwordx4 v[{GB+4*h4}:{GB+4*h4+3}], v{V_SA}, s[{S_MOD}:{S_MOD+3}], s{S_TMP+3} offen offset:{h4*16}"); vm.issue("e")
            elif epi == "res":
                A(f"v_lshlrev_b32 v{V_SA}, 3, v10")
                A(f"s_lshl_b32 s{S_TMP+6}, s{S_M}, 9")
                A(f"s_lshl_b32 s{S_TMP+3}, s{S_WAVE}, 6")
                A(f"s_add_u32 s{S_TMP+6}, s{S_TMP+6}, s{S_TMP+3}")
                A(f"s_lshl_b32 s{S_TMP+3}, s{S_J}, 14")
                A(f"s_add_u32 s{S_TMP+6}, s{S_TMP+6}, s{S_TMP+3}")
                make_srd(A, S_X1, P_WS, WS_H, 2 * MB)
                make_srd(A, S_O, P_WS, WS_X1, 2 * MB)
                make_srd(A, S_ST, P_WS, WS_STAT, 2048 * 128)
                A(f"buffer_load_dwordx4 v[{X1}:{X1+3}], v{V_GA}, s[{S_X1}:{S_X1+3}], s{S_TMP+2} offen"); vm.issue("e")
            else:
                A(f"v_mov_b32 v{VC[0]}, {fhex(GK1)}")
                A(f"v_mov_b32 v{VC[1]}, {fhex(GK0)}")
                A(f"v_mov_b32 v{VC[2]}, 1.0")
                make_srd(A, S_O, P_WS, WS_H1 + 2048, 2 * MB)
        A(f"s_cmp_ge_u32 s{S_WAVE}, 4")
        A(f"s_cbranch_scc1 .L{lab}_help")
        if own_pf and PFE == 2: own_pf(NE, 99)
        A(f"v_lshrrev_b32 v7, 3, v{L}")
        A(f"v_and_b32 v8, 7, v{L}")
        A("v_lshrrev_b32 v9, 1, v7")
        A("v_xor_b32 v9, v8, v9")
        A(f"s_movk_i32 s{S_TMP}, {a_rb}")
        A(f"v_mul_lo_u32 v10, v7, s{S_TMP}")
        A(f"v_lshl_add_u32 v{VG[0]}, v9, 4, v10")
        A("v_xor_b32 v9, 4, v9")
        A(f"v_lshl_add_u32 v{VG[1]}, v9, 4, v10")
        A(f"s_mul_i32 s{S_GOFF}, s{S_M}, {64*a_rb}")
        A(f"s_mul_i32 s{S_TMP}, s{S_WAVE}, {KW*2}")
        A(f"s_add_u32 s{S_GOFF}, s{S_GOFF}, s{S_TMP}")
        if epi == "res":
            A(f"s_lshl_b32 s{S_TMP}, s{S_WAVE}, 2")
            A(f"s_lshr_b32 s{S_TMP+1}, 0x4031, s{S_TMP}")
            A(f"s_and_b32 s{S_TMP+1}, s{S_TMP+1}, 15")
            A(f"s_lshl_b32 s{S_TMP+1}, s{S_TMP+1}, 10")
            A(f"s_add_u32 s{S_GOFF}, s{S_GOFF}, s{S_TMP+1}")
        make_srd(A, S_G, P_WS, a_off, a_size)
        A(f"v_lshrrev_b32 v7, 5, v{L}")
        A(f"v_bfe_u32 v8, v{L}, 4, 1")
        A(f"v_bfe_u32 v9, v{L}, 2, 2")
        A(f"v_and_b32 v10, 1, v{L}")
        A(f"v_bfe_u32 v11, v{L}, 1, 1")
        A("v_lshl_or_b32 v10, v10, 1, v11")
        A("v_lshlrev_b32 v10, 3, v10")
        A("v_lshl_add_u32 v10, v8, 5, v10")
        A("v_lshl_add_u32 v11, v7, 3, v9")
        A("v_lshrrev_b32 v12, 1, v9")
        for nb in range(2):
            A(f"v_xor_b32 v13, {nb}, v12")
            A("v_lshl_add_u32 v13, v13, 6, v10")
            A("v_lshl_add_u32 v13, v11, 7, v13")
            A(f"v_add_u32 v{AA+nb}, s{S_RB}, v13")
        A(f"v_and_b32 v8, 31, v{L}")
        A("v_bfe_u32 v9, v8, 1, 3")
        for ks in range(4):
            A(f"v_or_b32 v10, {2*ks}, v7")
            A("v_xor_b32 v10, v10, v9")
            A("v_lshlrev_b32 v10, 4, v10")
            A("v_lshl_add_u32 v10, v8, 7, v10")
            A(f"v_add_u32 v{BA+ks}, s{S_RB}, v10")
        A(f"v_mul_u32_u24 v{V_PW}, {RS}, v8")
        A(f"v_lshl_add_u32 v{V_PW}, v7, 5, v{V_PW}")
        A(f"v_add_u32 v{V_PW}, s{S_RB}, v{V_PW}")
        tail_setup()
        A("s_barrier")
        self.stamp(1 + 4 * stage + 3)
        def dmaG(ch):
            base = (ch % DG) * 8192
            for i in range(8):
                A(f"s_add_u32 m0, s{S_RB}, {base + i * 1024}")
                A(f"s_add_u32 s{S_TMP}, s{S_GOFF}, {i * 8 * a_rb + ch * 128}")
                A(f"buffer_load_dwordx4 v{VG[i & 1]}, s[{S_G}:{S_G+3}], s{S_TMP} offen lds")
                vm.issue(("g", ch))
        for ch in range(min(DG, NCH)): dmaG(ch)
        def reads(step):
            ch, ks = step // 4, step % 4
            buf = FR + (step % NBG) * 16
            for nb in range(2):
                for q in range(2):
                    A(f"ds_read_b64_tr_b16 v[{buf+nb*4+q*2}:{buf+nb*4+q*2+1}], v{AA+nb} offset:{WB + ((step + rot) % DW) * 2048 + q * 512}")
                    lg.issue(("f", step))
            for rb in range(2):
                A(f"ds_read_b128 v[{buf+8+rb*4}:{buf+8+rb*4+3}], v{BA+ks} offset:{(ch % DG) * 8192 + rb * 4096}")
                lg.issue(("f", step))
        def need(step):
            vm.wait(("w", step)); vm.wait(("g", step // 4))
        for s0 in range(NBG - 1):
            need(s0); reads(s0)
        for st in range(NS):
            lg.wait(("f", st))
            with Cap(A) as cp:
                if st + DW < NS: self.dmaW(st + DW, WB + ((st + rot) % DW) * 2048)
                if st % 4 == 3 and st // 4 + DG < NCH: dmaG(st // 4 + DG)
                if st + NBG - 1 < NS:
                    need(st + NBG - 1); reads(st + NBG - 1)
                if st + DW >= NS and PFE == 3 and nsched and st in nsched: next_pf(*nsched[st])
            buf = FR + (st % NBG) * 16
            mf = []
            for nb in range(2):
                for rb in range(2):
                    acc = ACC + (nb * 2 + rb) * 16
                    c = "0" if st == 0 else f"v[{acc}:{acc+15}]"
                    mf.append(f"v_mfma_f32_32x32x16_bf16 v[{acc}:{acc+15}], v[{buf+nb*4}:{buf+nb*4+3}], v[{buf+8+rb*4}:{buf+8+rb*4+3}], {c}")
            interleave(A, mf, cp.out)
        vm.wait("e")
        if not int(os.environ.get("KRX", "0")): self.stamp({1: 25, 2: 26, 4: 27}[stage])
        A("s_nop 7")
        A("s_nop 1")
        for tl in range(4):
            nb, rb = tl >> 1, tl & 1
            for r4 in range(4):
                A(f"ds_write_b128 v{V_PW}, v[{ACC+tl*16+r4*4}:{ACC+tl*16+r4*4+3}] offset:{rb*32*RS + (nb*8 + (r4 >> 1)*4 + (r4 & 1))*16}")
            if tl == 1: A("s_waitcnt lgkmcnt(0)")
        if next_pf and PFE == 1: next_pf()
        A("s_waitcnt lgkmcnt(0)")
        A(f"s_branch .L{lab}_join")
        A.label(f".L{lab}_help")
        sv = list(vm.ops)
        tail_setup()
        vm.ops = sv
        self.poll(stage, nbr)
        A("s_barrier")
        self.stamp(1 + 4 * stage + 3)
        n = sum(self.l2pf(*x) for x in l2) if l2 else 0
        A(f"s_waitcnt vmcnt({n})")
        A.label(f".L{lab}_join")
        A("s_barrier")
        for p in range(4):
            for h in range(2):
                d = ACC + p * 16 + h * 4
                A(f"ds_read_b128 v[{d}:{d+3}], v{V_PR + (p >> 1)} offset:{(p & 1)*RG + h*16}")
        xs = list(range(ACC, ACC + 8)); tp = list(range(72, 80)); t8 = list(range(88, 96))
        b = ACC
        def unpack(src, dst):
            for k in range(4):
                A(f"v_lshlrev_b32 v{dst[2*k]}, 16, v{src+k}")
                A(f"v_and_b32 v{dst[2*k+1]}, {SM}, v{src+k}")
        if epi != "gelu": unpack(X1, tp)
        if epi == "final": unpack(X2, list(range(104, 112)))
        A("s_waitcnt lgkmcnt(4)")
        for e in range(0, 8, 2): pk(A, "v_pk_add_f32", b + e, b + e, b + 16 + e)
        A("s_waitcnt lgkmcnt(0)")
        for e in range(0, 8, 2): pk(A, "v_pk_add_f32", b + 32 + e, b + 32 + e, b + 48 + e)
        for e in range(0, 8, 2): pk(A, "v_pk_add_f32", b + e, b + e, b + 32 + e)
        round_multi(A, xs, t8, SM)
        def store():
            for k in range(4): A(f"v_cvt_pk_bf16_f32 v{56+k}, v{xs[2*k]}, v{xs[2*k+1]}")
            A(f"buffer_store_dwordx4 v[56:59], v{V_GA}, s[{S_O}:{S_O+3}], s{S_TMP+2} offen sc1")
        if epi == "gelu":
            X = xs; T = tp
            for e in range(0, 8, 2): pk(A, "v_pk_mul_f32", T[e], X[e], X[e])
            for e in range(0, 8, 2): pk(A, "v_pk_fma_f32", T[e], T[e], VC[0], VC[1], "op_sel_hi:[1,0,0]")
            for e in range(0, 8, 2): pk(A, "v_pk_mul_f32", T[e], T[e], X[e])
            for e in range(8): A(f"v_exp_f32 v{T[e]}, v{T[e]}")
            for e in range(0, 8, 2): pk(A, "v_pk_add_f32", T[e], T[e], VC[2], None, "op_sel_hi:[1,0]")
            for e in range(8): A(f"v_rcp_f32 v{T[e]}, v{T[e]}")
            A("s_nop 0")
            for e in range(0, 8, 2): pk(A, "v_pk_mul_f32", X[e], X[e], T[e])
            store()
        elif epi == "res":
            for k in range(0, 8, 2): pk(A, "v_pk_add_f32", xs[k], xs[k], tp[k])
            store()
            unpack(56, xs)
            X = xs
            pk(A, "v_pk_mul_f32", tp[0], X[0], X[0])
            pk(A, "v_pk_add_f32", tp[2], X[0], X[2])
            for e in range(2, 8, 2):
                pk(A, "v_pk_fma_f32", tp[0], X[e], X[e], tp[0])
                if e >= 4: pk(A, "v_pk_add_f32", tp[2], tp[2], X[e])
            A(f"v_add_f32 v20, v{tp[2]}, v{tp[3]}")
            A(f"v_add_f32 v21, v{tp[0]}, v{tp[1]}")
            A("s_nop 1")
            for dpp in ("quad_perm:[1,0,3,2]", "quad_perm:[2,3,0,1]", "row_half_mirror"):
                for v in (20, 21):
                    A(f"v_add_f32_dpp v{v}, v{v}, v{v} {dpp} row_mask:0xf bank_mask:0xf")
                A("s_nop 1")
            A("v_and_b32 v10, 7, v1")
            A("v_cmp_eq_u32 vcc, 0, v10")
            A("s_and_saveexec_b64 s[78:79], vcc")
            A(f"buffer_store_dwordx2 v[20:21], v{V_SA}, s[{S_ST}:{S_ST+3}], s{S_TMP+6} offen sc1")
            A("s_mov_b64 exec, s[78:79]")
        else:
            for k in range(0, 8, 2): pk(A, "v_pk_add_f32", xs[k], xs[k], tp[k])
            round_multi(A, xs, t8, SM)
            for k in range(0, 8, 2): pk(A, "v_pk_mul_f32", xs[k], xs[k], GB + k)
            round_multi(A, xs, t8, SM)
            for k in range(0, 8, 2): pk(A, "v_pk_add_f32", xs[k], xs[k], 104 + k)
            store()
    def k5(self, stage, next_pf, own_pf=None):
        A = self.A; vm = self.vm; lg = self.lg
        S_A = 8; S_O = 20; S_ST = 24; S_CS = 28
        VB = [16, 28]; AA = 24; ACC = 64; FQ = 128
        D = K5D
        NB5 = int(os.environ.get('NB5', '3'))
        A(f"s_cmp_lt_u32 s{S_WAVE}, 4")
        A("s_cbranch_scc1 .Lk5_main")
        A(f"s_cmp_eq_u32 s{S_J}, 7")
        A("s_cbranch_scc1 .Lk5_h7")
        self.poll(stage)
        A("s_barrier")
        A("s_barrier")
        A.label(".Lk5_h7")
        if L2PF & 4: self.l2pf(3, 1792 * 1024)
        A("s_branch .Lk5_end")
        A.label(".Lk5_main")
        A(f"s_cmp_eq_u32 s{S_J}, 7")
        A("s_cbranch_scc1 .Lk5_pf")
        if own_pf and PFE == 2: own_pf(NE, 99)
        make_srd(A, S_A, P_WS, WS_X1, 2 * MB)
        make_srd(A, S_ST, P_WS, WS_STAT, 2048 * 128)
        make_srd(A, S_CS, P_WS, WS_CS, 1792 * 4)
        make_srd(A, S_O, P_WS, WS_G, 2048 * 3584)
        A(f"v_lshlrev_b32 v4, 4, v{L}")
        A(f"s_lshl_b32 s{S_TMP}, s{S_M}, 16")
        A(f"s_lshl_b32 s{S_TMP+1}, s{S_WAVE}, 14")
        A(f"s_add_u32 s{S_TMP}, s{S_TMP}, s{S_TMP+1}")
        A(f"s_lshl_b32 s{S_TMP+6}, s{S_J}, 9")
        A(f"s_lshl_b32 s{S_TMP+2}, s{S_WAVE}, 7")
        A(f"s_add_u32 s{S_TMP+6}, s{S_TMP+6}, s{S_TMP+2}")
        A(f"v_lshrrev_b32 v5, 5, v{L}")
        A(f"v_bfe_u32 v7, v{L}, 4, 1")
        A(f"v_bfe_u32 v8, v{L}, 2, 2")
        A(f"v_and_b32 v9, 1, v{L}")
        A(f"v_bfe_u32 v10, v{L}, 1, 1")
        A("v_lshl_or_b32 v9, v9, 1, v10")
        A("v_lshlrev_b32 v9, 3, v9")
        A("v_lshl_add_u32 v9, v7, 5, v9")
        A("v_lshl_add_u32 v10, v5, 3, v8")
        A("v_lshrrev_b32 v11, 1, v8")
        for nb in range(2):
            A(f"v_xor_b32 v12, {nb}, v11")
            A("v_lshl_add_u32 v12, v12, 6, v9")
            A("v_lshl_add_u32 v12, v10, 7, v12")
            A(f"v_add_u32 v{AA+nb}, s{S_RB}, v12")
        A(f"v_and_b32 v13, 31, v{L}")
        A("v_lshrrev_b32 v7, 4, v13")
        A(f"v_mul_u32_u24 v7, {RG // 1024}, v7")
        A("v_and_b32 v8, 15, v13")
        A("v_add_u32 v7, v7, v8")
        for j in range(8):
            A(f"v_or_b32 v8, {2*j}, v5")
            A("v_xor_b32 v8, v8, v13")
            A("v_and_b32 v8, 15, v8")
            A("v_lshlrev_b32 v8, 4, v8")
            A(f"v_lshl_add_u32 v{VB[0]+j}, v7, 10, v8")
            A(f"v_add_u32 v{VB[1]+j}, {2*RG}, v{VB[0]+j}")
        ST = 192; CS = 224
        A("v_lshlrev_b32 v7, 5, v5")
        A(f"s_lshl_b32 s{S_TMP+2}, s{S_TMP+6}, 1")
        for nb in range(2):
            for mp in range(2):
                for h4 in range(2):
                    A(f"buffer_load_dwordx4 v[{CS+(nb*2+mp)*8+4*h4}:{CS+(nb*2+mp)*8+4*h4+3}], v7, s[{S_CS}:{S_CS+3}], s{S_TMP+2} offen offset:{(32*nb+16*mp+4*h4)*4}"); vm.issue("st")
        VS = 36
        A("v_and_b32 v7, 7, v13")
        A(f"s_add_u32 s{S_TMP+3}, s{S_RB}, {K5RB}")
        for j in range(4):
            A(f"v_or_b32 v14, {2*j}, v5")
            A("v_xor_b32 v14, v14, v7")
            A("v_lshlrev_b32 v14, 4, v14")
            A("v_lshl_add_u32 v14, v13, 7, v14")
            A(f"v_add_u32 v{VS+j}, s{S_TMP+3}, v14")
        A(f"v_lshrrev_b32 v7, 3, v{L}")
        A(f"v_and_b32 v14, 7, v{L}")
        A(f"v_xor_b32 v{VS+4}, v14, v7")
        A(f"v_lshlrev_b32 v{VS+4}, 4, v{VS+4}")
        A(f"v_lshl_add_u32 v{VS+4}, v7, 7, v{VS+4}")
        A(f"v_add_u32 v{VS+4}, s{S_TMP+3}, v{VS+4}")
        A(f"s_movk_i32 s{S_TMP+2}, 3584")
        A(f"v_mul_lo_u32 v7, v7, s{S_TMP+2}")
        A(f"v_lshl_add_u32 v{VS+5}, v14, 4, v7")
        A(f"s_mul_i32 s{S_TMP+4}, s{S_M}, {64*3584}")
        A(f"s_add_u32 s{S_TMP+4}, s{S_TMP+4}, s{S_TMP+6}")
        A(f"s_add_u32 s{S_TMP+5}, s{S_TMP+4}, {32*3584}")
        A("v_lshlrev_b32 v7, 3, v13")
        A("v_lshl_add_u32 v7, v5, 16, v7")
        A(f"s_lshl_b32 s{S_TMP+7}, s{S_M}, 9")
        A("s_barrier")
        self.stamp(1 + 4 * stage + 3)
        for i in range(16):
            t = 8 + (i & 1)
            A(f"v_xor_b32 v{t}, {i << 4}, v4")
            A(f"s_add_u32 m0, s{S_RB}, {i * 1024}")
            A(f"s_add_u32 s{S_TMP+2}, s{S_TMP}, {i * 1024}")
            A(f"buffer_load_dwordx4 v{t}, s[{S_A}:{S_A+3}], s{S_TMP+2} offen lds")
            vm.issue("act")
        for q in range(4):
            A(f"s_add_u32 s{S_TMP+3}, s{S_TMP+7}, {q*16384}")
            for rb in range(2):
                A(f"buffer_load_dwordx2 v[{ST+16*rb+2*q}:{ST+16*rb+2*q+1}], v7, s[{S_ST}:{S_ST+3}], s{S_TMP+3} offen offset:{rb*256}"); vm.issue("st")
        vm.wait("act")
        A("s_barrier")
        self.stamp(29)
        def reads(step):
            buf = FQ + (step % NB5) * 16
            for nb in range(2):
                for q in range(2):
                    A(f"ds_read_b64_tr_b16 v[{buf+nb*4+q*2}:{buf+nb*4+q*2+1}], v{AA+nb} offset:{K5RB + (step % D) * 2048 + q * 512}")
                    lg.issue(("f", step))
            for rb in range(2):
                A(f"ds_read_b128 v[{buf+8+rb*4}:{buf+8+rb*4+3}], v{VB[rb] + (step & 7)} offset:{(step >> 3) * 256}")
                lg.issue(("f", step))
        PKC = [[44, 46, 48, 50], [52, 54, 56, 58]]
        E = []
        for stg in range(17):
            for rb in range(2):
                b = ST + 16 * rb; c = PKC[rb]
                E.append([f"v_add_f32 v{b}, v{b}, v{b+2}", f"v_add_f32 v{b+1}, v{b+1}, v{b+3}",
                          f"v_add_f32 v{b+4}, v{b+4}, v{b+6}", f"v_add_f32 v{b+5}, v{b+5}, v{b+7}",
                          f"v_add_f32 v{b}, v{b}, v{b+4}", f"v_add_f32 v{b+1}, v{b+1}, v{b+5}",
                          f"v_mov_b32 v{b+2}, v{b}", f"v_mov_b32 v{b+3}, v{b+1}", "s_nop 1",
                          f"v_permlane32_swap_b32 v{b}, v{b+2}", f"v_permlane32_swap_b32 v{b+1}, v{b+3}", "s_nop 1",
                          f"v_add_f32 v{b}, v{b}, v{b+2}", f"v_add_f32 v{b+1}, v{b+1}, v{b+3}",
                          f"v_mul_f32 v{c[0]}, {fhex(-1/512)}, v{b}", f"v_mul_f32 v{b+1}, {fhex(1/512)}, v{b+1}",
                          f"v_fma_f32 v{b+1}, -v{c[0]}, v{c[0]}, v{b+1}"][stg])
        for stg in range(9):
            for rb in range(2):
                b = ST + 16 * rb; c = PKC[rb]
                E.append([f"v_max_f32 v{b+1}, 0, v{b+1}", f"v_add_f32 v{b+1}, {fhex(1e-5)}, v{b+1}",
                          f"v_rsq_f32 v{b+2}, v{b+1}", f"v_sqrt_f32 v{c[3]}, v{b+1}", "s_nop 0",
                          f"v_mul_f32 v{c[2]}, {fhex(GK0)}, v{b+2}", f"v_mul_f32 v{c[1]}, v{b+2}, v{b+2}",
                          f"v_mul_f32 v{c[1]}, v{c[1]}, v{b+2}", f"v_mul_f32 v{c[1]}, {fhex(GK1)}, v{c[1]}"][stg])
        for s0 in range(NB5 - 1):
            vm.wait(("w", s0)); reads(s0)
        k = 0
        for ks in range(32):
            lg.wait(("f", ks))
            with Cap(A) as cp:
                if ks + NB5 - 1 < 32:
                    vm.wait(("w", ks + NB5 - 1)); reads(ks + NB5 - 1)
                if ks + D < 32: self.dmaW(ks + D, K5RB + (ks % D) * 2048)
                elif PFE == 3 and ks == 21: next_pf(0, 1)
                elif PFE == 3 and ks >= 26: next_pf(ks - 25, ks - 24)
                if 14 <= ks < 28:
                    if ks == 14: vm.wait("st")
                    upto = len(E) * (ks - 13) // 14
                    while k < upto: A(E[k]); k += 1
            buf = FQ + (ks % NB5) * 16
            mf = []
            for nb in range(2):
                for rb in range(2):
                    acc = ACC + (nb * 2 + rb) * 16
                    c = "0" if ks == 0 else f"v[{acc}:{acc+15}]"
                    mf.append(f"v_mfma_f32_32x32x16_bf16 v[{acc}:{acc+15}], v[{buf+nb*4}:{buf+nb*4+3}], v[{buf+8+rb*4}:{buf+8+rb*4+3}], {c}")
            interleave(A, mf, cp.out)
        self.stamp(28)
        if PFE == 1: next_pf()
        else:
            A("s_nop 7"); A("s_nop 3")
        def flush5(rb):
            A("s_waitcnt lgkmcnt(0)")
            for i in range(4):
                A(f"ds_read_b128 v[{192+16*rb+4*i}:{192+16*rb+4*i+3}], v{VS+4} offset:{rb*4096 + i*1024}")
        def store5(rb):
            for i in range(4):
                if rb == 1: A(f"s_waitcnt lgkmcnt({3-i})")
                A(f"s_add_u32 s{S_TMP+3}, s{S_TMP+4+rb}, {i*8*3584}")
                A(f"buffer_store_dwordx4 v[{192+16*rb+4*i}:{192+16*rb+4*i+3}], v{VS+5}, s[{S_O}:{S_O+3}], s{S_TMP+3} offen sc1")
        for rb in range(2):
            for nb in range(2):
                acc = ACC + (nb * 2 + rb) * 16
                if rb == 1 and nb == 1:
                    A("s_waitcnt lgkmcnt(2)")
                    store5(0)
                for mp in range(2):
                    d = 160 + (nb * 4 + rb * 2 + mp) * 4
                    xs = [acc + 8 * mp + e for e in range(8)]
                    ts = list(range(128, 136)); cs = CS + (nb * 2 + mp) * 8; c = PKC[rb]
                    for e in range(0, 8, 2): pk(A, "v_pk_fma_f32", xs[e], cs + e, c[0], xs[e], "op_sel_hi:[1,0,1]")
                    for e in range(0, 8, 2): pk(A, "v_pk_mul_f32", ts[e], xs[e], xs[e])
                    for e in range(0, 8, 2): pk(A, "v_pk_fma_f32", ts[e], ts[e], c[1], c[2], "op_sel_hi:[1,0,0]")
                    for e in range(0, 8, 2): pk(A, "v_pk_mul_f32", ts[e], ts[e], xs[e])
                    for t in ts: A(f"v_exp_f32 v{t}, v{t}")
                    for e in range(0, 8, 2): pk(A, "v_pk_fma_f32", ts[e], ts[e], c[3], c[3], "op_sel_hi:[1,0,0]")
                    for t in ts: A(f"v_rcp_f32 v{t}, v{t}")
                    A("s_nop 0")
                    for e in range(0, 8, 2): pk(A, "v_pk_mul_f32", xs[e], xs[e], ts[e])
                    for e in range(0, 8, 2): A(f"v_cvt_pk_bf16_f32 v{d+e//2}, v{xs[e]}, v{xs[e+1]}")
                    A(f"ds_write_b128 v{VS+2*nb+mp}, v[{d}:{d+3}] offset:{rb*4096}")
            flush5(rb)
        store5(1)
        A("s_branch .Lk5_end")
        A.label(".Lk5_pf")
        if PFE in (1, 3): next_pf(alt=True)
        A.label(".Lk5_end")

def gen_km(A):
    name = "k1_kernel"
    M = Mega(A)
    def pre():
        if MT or HD:
            M.persist(); M.stamp(0); M.vm.ops = []
    K1.gen_k1(A, emb=True, pre=pre)
    M.persist()
    M.transition(0)
    M.kr()
    M.transition(1)
    pf4 = lambda lo=0, hi=99: M.pf_g64(1, 512, 24576, 8, lo, hi)
    pf6 = lambda lo=0, hi=99, alt=False: M.pf_g64(3, 1792, 26624, 7, lo, hi, 6)
    M.g64("k3", 1, 512, WS_HN, 2 * MB, 1024, "gelu", 24576, 8, False, pf4, None, 0, {st: (st, st + 1) for st in range(8)}, [(2, 1792 * 1024)] if L2PF & 1 else None)
    M.transition(2, pf4)
    M.g64("k4", 2, 512, WS_H1, 2052 * 1024, 1024, "res", 24576, 8, True, M.pf_k5, pf4, 0, {st: ((0, 4) if st == 0 else (st + 3, st + 4)) for st in range(8)}, [(3, 1792 * 1024)] if L2PF & 2 else None)
    M.transition(3, M.pf_k5)
    M.k5(3, pf6, M.pf_k5)
    M.transition(4, pf6)
    M.g64("k6", 4, 1792, WS_G, 2048 * 3584, 3584, "final", 26624, 7, False, None, pf6, 6)
    M.stamp(21)
    if MT or HD: A("s_waitcnt vmcnt(0)")
    M.stamp(22)
    A("s_endpgm")
    A.raw(kernel_desc(name, 256, 102, 256))
    return (name, (256, 1, 1), (512, 1, 1), 163840)
```

```python
from asmlib import *
MB = 1 << 20
WS_MOD = 0
WS_XN = 1 * MB
WS_X2 = 4 * MB
WS_X1 = 6 * MB
WS_XN4 = 8 * MB
WS_G = 10 * MB
WS_H = 18 * MB
WS_HN = 20 * MB
WS_H1 = 22 * MB
WS_PART = 32 * MB
WS_FLAG = 26 * MB
WS_DBG = 64 * MB
LOG2E = 1.4426950408889634
import os
PREFETCH = int(os.environ.get("PREFETCH", "1"))
CODEPF = int(os.environ.get('CODEPF','1'))
WQ2 = int(os.environ.get('WQ2','0'))
K0KV = int(os.environ.get('K0KV','0'))
TLBW = int(os.environ.get('TLBW','0'))
TLBS = int(os.environ.get('TLBS','16'))
NPF = (1 + CODEPF + WQ2 + (2 if K0KV else 0) + (1 if K0KV >= 2 else 0) + (10 if TLBW else 0)) if PREFETCH else 0

def round_bf16_1(A, v, t):
    A(f"v_cvt_pk_bf16_f32 v{t}, v{v}, v{v}")
    A(f"v_lshlrev_b32 v{v}, 16, v{t}")

def round_bf16_2(A, a, b, t, smask):
    A(f"v_cvt_pk_bf16_f32 v{t}, v{a}, v{b}")
    A(f"v_lshlrev_b32 v{a}, 16, v{t}")
    A(f"v_and_b32 v{b}, {smask}, v{t}")

def ln_stats_finish(A, vsum_sq, vden, vrinv, t):
    round_bf16_1(A, vsum_sq, t)
    A(f"v_add_f32 v{vsum_sq}, {fhex(1e-5)}, v{vsum_sq}")
    round_bf16_1(A, vsum_sq, t)
    A(f"v_sqrt_f32 v{vden}, v{vsum_sq}")
    A("s_nop 0")
    round_bf16_1(A, vden, t)
    A(f"v_rcp_f32 v{vrinv}, v{vden}")
    A("s_nop 0")

def gen_k0(A):
    name = "k0_kernel"
    K0T = int(os.environ.get("K0TIMING", "0"))
    cnt = [0]
    def stamp(real=False):
        if not K0T: return
        A("s_waitcnt lgkmcnt(0)")
        A("s_memrealtime s[100:101]" if real else "s_memtime s[100:101]")
        A("s_waitcnt lgkmcnt(0)")
        A(f"v_mov_b32 v{112+cnt[0]}, s100")
        cnt[0] += 1
    kernel_header(A, name)
    stamp(True); stamp()
    A("s_cmp_ge_u32 s2, 256")
    A("s_cbranch_scc1 .Lk0_end")
    HD = int(os.environ.get("HD", "0"))
    if HD:
        A("s_load_dwordx2 s[96:97], s[0:1], 104")
        A("s_memrealtime s[100:101]")
        A("s_waitcnt lgkmcnt(0)")
        A("s_add_u32 s96, s96, 512")
        A("s_addc_u32 s97, s97, 0")
        A("s_mov_b32 s98, 256")
        A("s_mov_b32 s99, 0x00020000")
        A(f"s_cmp_lg_u32 s2, {HD}")
        A("s_cbranch_scc1 .Lk0_hd")
        A("v_mov_b32 v2, s100")
        A("v_mov_b32 v3, 0")
        A("buffer_store_dword v2, v3, s[96:99], 0 offen")
        A("s_waitcnt vmcnt(0)")
        A.label(".Lk0_hd")
    A("s_load_dwordx2 s[4:5], s[0:1], 0")
    A("s_load_dwordx4 s[8:11], s[0:1], 80")
    A("s_load_dwordx2 s[6:7], s[0:1], 112")
    A("s_load_dwordx2 s[56:57], s[0:1], 64")
    A("v_and_b32 v1, 63, v0")
    A("v_lshrrev_b32 v2, 6, v0")
    A("s_mov_b32 s40, 0xffff0000")
    A("s_waitcnt lgkmcnt(0)")
    stamp()
    make_srd(A, 12, 4, 0, 2 * MB)
    make_srd(A, 16, 6, WS_XN, 2 * MB)
    make_srd(A, 20, 8, 0, 1024)
    make_srd(A, 24, 10, 0, 512 * 6144)
    make_srd(A, 28, 6, WS_MOD, 3072 * 4)
    A("s_movk_i32 s41, 6144")
    A("s_mov_b32 s43, s2")
    A("s_cmp_lt_u32 s2, 96")
    A("s_cbranch_scc1 .Lk0_ismod")
    make_srd(A, 24, 56, 0, 512 * 3584)
    make_srd(A, 28, 6, 64 * 1024, 1792 * 4)
    A("s_movk_i32 s41, 3584")
    A("s_sub_u32 s43, s2, 96")
    A.label(".Lk0_ismod")
    A("s_lshl_b32 s3, s2, 13")
    A("v_lshlrev_b32 v3, 11, v2")
    A("v_lshl_add_u32 v3, v1, 4, v3")
    A("v_add_u32 v3, s3, v3")
    A("buffer_load_dwordx4 v[4:7], v3, s[12:15], 0 offen")
    A("buffer_load_dwordx4 v[8:11], v3, s[12:15], 0 offen offset:1024")
    A("s_cmp_ge_u32 s2, 152")
    A("s_cbranch_scc1 .Lk0_noB1")
    A("v_and_b32 v12, 3, v0")
    A("v_lshrrev_b32 v13, 2, v0")
    A("v_mul_lo_u32 v14, v13, s41")
    A("v_lshl_add_u32 v14, v12, 4, v14")
    A("s_lshl_b32 s44, s43, 6")
    A("s_lshl_b32 s42, s41, 6")
    for i in range(1, 8):
        A(f"s_add_u32 s{44+i}, s{43+i}, s42")
    A("v_lshlrev_b32 v15, 1, v13")
    for i in range(8):
        A(f"buffer_load_ushort v{16+i}, v15, s[20:23], 0 offen offset:{i*128}")
    for i in range(8):
        A(f"buffer_load_dwordx4 v[{24+4*i}:{27+4*i}], v14, s[24:27], s{44+i} offen")
    A.label(".Lk0_noB1")
    if PREFETCH:
        A("s_load_dwordx8 s[64:71], s[0:1], 8")
        A("s_load_dwordx8 s[72:79], s[0:1], 48")
        A("s_and_b32 s52, s2, 7")
        A("s_lshr_b32 s53, s2, 3")
        A("v_lshlrev_b32 v97, 6, v0")
        A("v_lshrrev_b32 v98, 4, v0")
        A("v_and_b32 v99, 15, v0")
        A("v_lshlrev_b32 v99, 6, v99")
        A("v_lshl_add_u32 v98, v98, 13, v99")
        A("v_lshlrev_b32 v99, 6, v1")
        A("s_waitcnt lgkmcnt(0)")
        make_srd(A, 80, 68, 0, 4 * MB if int(os.environ.get("WQPF","1")) else 0)
        A("s_lshl_b32 s54, s53, 17")
        A("s_lshl_b32 s55, s52, 10")
        A("s_add_u32 s54, s54, s55")
        A("buffer_load_dword v100, v98, s[80:83], s54 offen")
        if WQ2:
            A("s_xor_b32 s54, s54, 1024")
            A("buffer_load_dword v102, v98, s[80:83], s54 offen")
        if CODEPF:
            A("s_getpc_b64 s[84:85]")
            A.label(".Lk0_pc")
            A("s_mov_b32 s86, .Lcode_end-.Lk0_pc")
            A("s_mov_b32 s87, 0x00020000")
            A("s_lshl_b32 s54, s53, 12")
            A("buffer_load_dword v101, v99, s[84:87], s54 offen")
        if K0KV:
            A("s_lshl_b32 s54, s52, 19")
            A("s_lshl_b32 s55, s53, 12")
            A("s_add_u32 s54, s54, s55")
            A(f"s_add_u32 s54, s54, {1536*256}")
            make_srd(A, 88, 64, 0, 4 * MB)
            A("buffer_load_dword v103, v99, s[88:91], s54 offen")
            make_srd(A, 92, 66, 0, 4 * MB)
            A("buffer_load_dword v104, v99, s[92:95], s54 offen")
        if K0KV >= 2:
            make_srd(A, 84, 70, 0, 4 * MB)
            A("s_lshl_b32 s54, s2, 14")
            A("buffer_load_dword v105, v97, s[84:87], s54 offen")
        if TLBW:
            A("s_lshl_b32 s54, s53, 8")
            A("v_add_u32 v106, s54, v0")
            A(f"v_lshlrev_b32 v106, {TLBS}, v106")
            A("s_load_dwordx2 s[58:59], s[0:1], 96")
            A("s_waitcnt lgkmcnt(0)")
            for (p, sz) in ((6, 64 * MB), (64, 4 * MB), (66, 4 * MB), (70, 4 * MB), (72, 512*1024), (74, 512*1024), (76, 1792*1024), (78, 1792*1024), (58, 2 * MB), (68, 4 * MB)):
                make_srd(A, 96, p, 0, sz)
                A("buffer_load_dword v107, v106, s[96:99], 0 offen")
    A("s_cmp_ge_u32 s2, 152")
    A("s_cbranch_scc1 .Lk0_w0")
    A(f"s_waitcnt vmcnt({16 + NPF})")
    A("s_branch .Lk0_w1")
    A.label(".Lk0_w0")
    A(f"s_waitcnt vmcnt({NPF})")
    A.label(".Lk0_w1")
    stamp()
    X = [64, 72]
    for r in range(2):
        for j in range(4):
            A(f"v_lshlrev_b32 v{X[r]+2*j}, 16, v{4+4*r+j}")
            A(f"v_and_b32 v{X[r]+2*j+1}, s40, v{4+4*r+j}")
    S = [80, 81]
    for r in range(2):
        A(f"v_add_f32 v{S[r]}, v{X[r]}, v{X[r]+1}")
        for j in range(2, 8):
            A(f"v_add_f32 v{S[r]}, v{S[r]}, v{X[r]+j}")
    wave_allreduce(A, "v_add_f32", S, [82, 83], [84, 85])
    M = [86, 87]; MBF = [88, 89]
    for r in range(2):
        A(f"v_mul_f32 v{M[r]}, {fhex(1/512)}, v{S[r]}")
        A(f"v_mov_b32 v{MBF[r]}, v{M[r]}")
        round_bf16_1(A, MBF[r], 90)
    for r in range(2):
        for j in range(8):
            A(f"v_sub_f32 v90, v{X[r]+j}, v{M[r]}")
            if j == 0:
                A(f"v_mul_f32 v{S[r]}, v90, v90")
            else:
                A(f"v_fmac_f32 v{S[r]}, v90, v90")
    wave_allreduce(A, "v_add_f32", S, [82, 83], [84, 85])
    DEN = [91, 92]; RINV = [93, 94]
    for r in range(2):
        A(f"v_mul_f32 v{S[r]}, {fhex(1/512)}, v{S[r]}")
        ln_stats_finish(A, S[r], DEN[r], RINV[r], 90)
    for r in range(2):
        for j in range(0, 8, 2):
            a, b = X[r] + j, X[r] + j + 1
            A(f"v_sub_f32 v{a}, v{a}, v{MBF[r]}")
            A(f"v_sub_f32 v{b}, v{b}, v{MBF[r]}")
            round_bf16_2(A, a, b, 90, "s40")
            for e in (a, b):
                A(f"v_mul_f32 v95, v{e}, v{RINV[r]}")
                A(f"v_fma_f32 v96, -v95, v{DEN[r]}, v{e}")
                A(f"v_fma_f32 v{e}, v96, v{RINV[r]}, v95")
            A(f"v_cvt_pk_bf16_f32 v{4+4*r+j//2}, v{a}, v{b}")
    A("buffer_store_dwordx4 v[4:7], v3, s[16:19], 0 offen " + os.environ.get("XNF","sc1"))
    A("buffer_store_dwordx4 v[8:11], v3, s[16:19], 0 offen offset:1024 " + os.environ.get("XNF","sc1"))
    if int(os.environ.get("MEGA", "3")):
        make_srd(A, 96, 6, WS_FLAG, 256 * 256)
        A("s_lshl_b32 s3, s2, 8")
        A("v_lshlrev_b32 v95, 2, v0")
        A("v_mov_b32 v96, 0")
        A("v_cmp_gt_u32 vcc, 64, v0")
        A("s_and_saveexec_b64 s[60:61], vcc")
        A("buffer_store_dword v96, v95, s[96:99], s3 offen sc1")
        A("s_mov_b64 exec, s[60:61]")
    stamp()
    A("s_cmp_ge_u32 s2, 152")
    A("s_cbranch_scc1 .Lk0_end")
    A(f"s_waitcnt vmcnt({10 + NPF})")
    for i in range(8):
        c = 16 + i
        A(f"v_lshlrev_b32 v{c}, 16, v{c}")
        A(f"v_mul_f32 v90, {fhex(-LOG2E)}, v{c}")
        A("v_exp_f32 v90, v90")
        A("s_nop 0")
        A("v_add_f32 v90, 1.0, v90")
        A("v_rcp_f32 v91, v90")
        A("s_nop 0")
        A(f"v_mul_f32 v92, v{c}, v91")
        A(f"v_fma_f32 v93, -v92, v90, v{c}")
        A(f"v_fma_f32 v{c}, v93, v91, v92")
        round_bf16_1(A, c, 90)
    A("s_cmp_lt_u32 s2, 96")
    A("s_cbranch_scc1 .Lk0_ismod2")
    for i in range(8):
        A(f"v_mov_b32 v{16+i}, 1.0")
    A.label(".Lk0_ismod2")
    ACC = list(range(64, 72))
    for i in range(8):
        A(f"s_waitcnt vmcnt({7-i+2+NPF})")
        for j in range(4):
            w = 24 + 4 * i + j
            A(f"v_lshlrev_b32 v90, 16, v{w}")
            A(f"v_and_b32 v91, s40, v{w}")
            if i == 0:
                A(f"v_mul_f32 v{ACC[2*j]}, v90, v{16+i}")
                A(f"v_mul_f32 v{ACC[2*j+1]}, v91, v{16+i}")
            else:
                A(f"v_fmac_f32 v{ACC[2*j]}, v90, v{16+i}")
                A(f"v_fmac_f32 v{ACC[2*j+1]}, v91, v{16+i}")
    stamp()
    A("s_nop 1")
    for dpp in ("row_ror:8", "row_ror:4"):
        for v in ACC:
            A(f"v_add_f32_dpp v{v}, v{v}, v{v} {dpp} row_mask:0xf bank_mask:0xf")
    for sw in ("v_permlane16_swap_b32", "v_permlane32_swap_b32"):
        for k, v in enumerate(ACC):
            A(f"v_mov_b32 v{72+k}, v{v}")
            A(f"v_mov_b32 v{80+k}, v{v}")
        A("s_nop 1")
        for k, v in enumerate(ACC):
            A(f"{sw} v{72+k}, v{80+k}")
        A("s_nop 1")
        for k, v in enumerate(ACC):
            A(f"v_add_f32 v{v}, v{72+k}, v{80+k}")
    A("v_lshlrev_b32 v90, 7, v2")
    A("v_lshl_add_u32 v90, v12, 5, v90")
    A("v_cmp_gt_u32 vcc, 4, v1")
    A("s_and_saveexec_b64 s[60:61], vcc")
    A("ds_write_b128 v90, v[64:67]")
    A("ds_write_b128 v90, v[68:71] offset:16")
    A("s_mov_b64 exec, s[60:61]")
    A("s_waitcnt lgkmcnt(0)")
    A("s_barrier")
    if K0T:
        stamp(); stamp(True)
        make_srd(A, 88, 6, WS_DBG, 32 * MB)
        A("v_readfirstlane_b32 s92, v2")
        A("s_lshl_b32 s93, s2, 3")
        A("s_add_u32 s93, s93, s92")
        A("s_lshl_b32 s93, s93, 7")
        A("v_mov_b32 v111, 0")
        for i in range(cnt[0]):
            A(f"buffer_store_dword v{112+i}, v111, s[88:91], s93 offen offset:{4*i}")
    A("v_cmp_gt_u32 vcc, 32, v0")
    A("s_and_saveexec_b64 s[60:61], vcc")
    A("s_cbranch_execz .Lk0_end")
    A("v_lshlrev_b32 v90, 2, v0")
    A("ds_read_b32 v64, v90")
    A("ds_read_b32 v65, v90 offset:128")
    A("ds_read_b32 v66, v90 offset:256")
    A("ds_read_b32 v67, v90 offset:384")
    A("s_waitcnt lgkmcnt(0)")
    A("v_add_f32 v64, v64, v65")
    A("v_add_f32 v66, v66, v67")
    A("v_add_f32 v64, v64, v66")
    A("s_cmp_ge_u32 s2, 96")
    A("s_cbranch_scc1 .Lk0_nornd")
    round_bf16_1(A, 64, 65)
    A.label(".Lk0_nornd")
    A("s_lshl_b32 s42, s43, 7")
    A("buffer_store_dword v64, v90, s[28:31], s42 offen")
    A.label(".Lk0_end")
    if HD:
        A("s_mov_b64 exec, -1")
        A("s_waitcnt vmcnt(0)")
        A("s_load_dwordx2 s[96:97], s[0:1], 104")
        A("s_memrealtime s[100:101]")
        A("s_waitcnt lgkmcnt(0)")
        A("s_add_u32 s96, s96, 512")
        A("s_addc_u32 s97, s97, 0")
        A("s_mov_b32 s98, 256")
        A("s_mov_b32 s99, 0x00020000")
        A("v_mov_b32 v2, s100")
        A("v_mov_b32 v3, 4")
        A("s_mov_b64 exec, 1")
        A("buffer_atomic_umax v2, v3, s[96:99], 0 offen sc1")
    A("s_endpgm")
    A.raw(kernel_desc(name, 128, 102))
    return (name, (256, 1, 1), (256, 1, 1), 512)
```

```python
from asmlib import *
MB = 1 << 20
WS_MOD = 0
WS_XN = 1 * MB
WS_X2 = 4 * MB
WS_X1 = 6 * MB
WS_XN4 = 8 * MB
WS_G = 10 * MB
WS_H = 18 * MB
WS_HN = 20 * MB
WS_H1 = 22 * MB
WS_PART = 32 * MB
WS_FLAG = 26 * MB
WS_DBG = 64 * MB
LOG2E = 1.4426950408889634
import os
PREFETCH = int(os.environ.get("PREFETCH", "1"))
CODEPF = int(os.environ.get('CODEPF','1'))
WQ2 = int(os.environ.get('WQ2','0'))
K0KV = int(os.environ.get('K0KV','0'))
TLBW = int(os.environ.get('TLBW','0'))
TLBS = int(os.environ.get('TLBS','16'))
NPF = (1 + CODEPF + WQ2 + (2 if K0KV else 0) + (1 if K0KV >= 2 else 0) + (10 if TLBW else 0)) if PREFETCH else 0

def round_bf16_1(A, v, t):
    A(f"v_cvt_pk_bf16_f32 v{t}, v{v}, v{v}")
    A(f"v_lshlrev_b32 v{v}, 16, v{t}")

def round_bf16_2(A, a, b, t, smask):
    A(f"v_cvt_pk_bf16_f32 v{t}, v{a}, v{b}")
    A(f"v_lshlrev_b32 v{a}, 16, v{t}")
    A(f"v_and_b32 v{b}, {smask}, v{t}")

def ln_stats_finish(A, vsum_sq, vden, vrinv, t):
    round_bf16_1(A, vsum_sq, t)
    A(f"v_add_f32 v{vsum_sq}, {fhex(1e-5)}, v{vsum_sq}")
    round_bf16_1(A, vsum_sq, t)
    A(f"v_sqrt_f32 v{vden}, v{vsum_sq}")
    A("s_nop 0")
    round_bf16_1(A, vden, t)
    A(f"v_rcp_f32 v{vrinv}, v{vden}")
    A("s_nop 0")

def gen_k0(A):
    name = "k0_kernel"
    K0T = int(os.environ.get("K0TIMING", "0"))
    cnt = [0]
    HK = int(os.environ.get("HK", "0"))
    def stamp(real=False):
        if not (K0T or HK): return
        if HK and real: return
        A("s_waitcnt lgkmcnt(0)")
        A("s_memrealtime s[100:101]" if (real or HK) else "s_memtime s[100:101]")
        A("s_waitcnt lgkmcnt(0)")
        A(f"v_mov_b32 v{112+cnt[0]}, s100")
        cnt[0] += 1
    kernel_header(A, name)
    stamp(True); stamp()
    A("s_cmp_ge_u32 s2, 256")
    A("s_cbranch_scc1 .Lk0_end")
    HD = int(os.environ.get("HD", "0"))
    A("s_load_dwordx2 s[4:5], s[0:1], 0")
    A("s_load_dwordx4 s[8:11], s[0:1], 80")
    A("s_load_dwordx2 s[6:7], s[0:1], 112")
    A("s_load_dwordx2 s[56:57], s[0:1], 64")
    A("v_and_b32 v1, 63, v0")
    A("v_lshrrev_b32 v2, 6, v0")
    A("s_mov_b32 s40, 0xffff0000")
    A("s_waitcnt lgkmcnt(0)")
    stamp()
    make_srd(A, 12, 4, 0, 2 * MB)
    make_srd(A, 16, 6, WS_XN, 2 * MB)
    make_srd(A, 20, 8, 0, 1024)
    make_srd(A, 24, 10, 0, 512 * 6144)
    make_srd(A, 28, 6, WS_MOD, 3072 * 4)
    A("s_movk_i32 s41, 6144")
    A("s_mov_b32 s43, s2")
    A("s_cmp_lt_u32 s2, 96")
    A("s_cbranch_scc1 .Lk0_ismod")
    make_srd(A, 24, 56, 0, 512 * 3584)
    make_srd(A, 28, 6, 64 * 1024, 1792 * 4)
    A("s_movk_i32 s41, 3584")
    A("s_sub_u32 s43, s2, 96")
    A.label(".Lk0_ismod")
    A("s_lshl_b32 s3, s2, 13")
    A("v_lshlrev_b32 v3, 11, v2")
    A("v_lshl_add_u32 v3, v1, 4, v3")
    A("v_add_u32 v3, s3, v3")
    A("buffer_load_dwordx4 v[4:7], v3, s[12:15], 0 offen")
    A("buffer_load_dwordx4 v[8:11], v3, s[12:15], 0 offen offset:1024")
    A("s_cmp_ge_u32 s2, 152")
    A("s_cbranch_scc1 .Lk0_noB1")
    A("v_and_b32 v12, 3, v0")
    A("v_lshrrev_b32 v13, 2, v0")
    A("v_mul_lo_u32 v14, v13, s41")
    A("v_lshl_add_u32 v14, v12, 4, v14")
    A("s_lshl_b32 s44, s43, 6")
    A("s_lshl_b32 s42, s41, 6")
    for i in range(1, 8):
        A(f"s_add_u32 s{44+i}, s{43+i}, s42")
    A("v_lshlrev_b32 v15, 1, v13")
    for i in range(8):
        A(f"buffer_load_ushort v{16+i}, v15, s[20:23], 0 offen offset:{i*128}")
    for i in range(8):
        A(f"buffer_load_dwordx4 v[{24+4*i}:{27+4*i}], v14, s[24:27], s{44+i} offen")
    A.label(".Lk0_noB1")
    if PREFETCH:
        A("s_load_dwordx8 s[64:71], s[0:1], 8")
        A("s_load_dwordx8 s[72:79], s[0:1], 48")
        A("s_and_b32 s52, s2, 7")
        A("s_lshr_b32 s53, s2, 3")
        A("v_lshlrev_b32 v97, 6, v0")
        A("v_lshrrev_b32 v98, 4, v0")
        A("v_and_b32 v99, 15, v0")
        A("v_lshlrev_b32 v99, 6, v99")
        A("v_lshl_add_u32 v98, v98, 13, v99")
        A("v_lshlrev_b32 v99, 6, v1")
        A("s_waitcnt lgkmcnt(0)")
        make_srd(A, 80, 68, 0, 4 * MB if int(os.environ.get("WQPF","1")) else 0)
        A("s_lshl_b32 s54, s53, 17")
        A("s_lshl_b32 s55, s52, 10")
        A("s_add_u32 s54, s54, s55")
        A("buffer_load_dword v100, v98, s[80:83], s54 offen")
        if WQ2:
            A("s_xor_b32 s54, s54, 1024")
            A("buffer_load_dword v102, v98, s[80:83], s54 offen")
        if CODEPF:
            A("s_getpc_b64 s[84:85]")
            A.label(".Lk0_pc")
            A("s_mov_b32 s86, .Lcode_end-.Lk0_pc")
            A("s_mov_b32 s87, 0x00020000")
            A("s_lshl_b32 s54, s53, 12")
            A("buffer_load_dword v101, v99, s[84:87], s54 offen")
        if K0KV:
            A("s_lshl_b32 s54, s52, 19")
            A("s_lshl_b32 s55, s53, 12")
            A("s_add_u32 s54, s54, s55")
            A(f"s_add_u32 s54, s54, {1536*256}")
            make_srd(A, 88, 64, 0, 4 * MB)
            A("buffer_load_dword v103, v99, s[88:91], s54 offen")
            make_srd(A, 92, 66, 0, 4 * MB)
            A("buffer_load_dword v104, v99, s[92:95], s54 offen")
        if K0KV >= 2:
            make_srd(A, 84, 70, 0, 4 * MB)
            A("s_lshl_b32 s54, s2, 14")
            A("buffer_load_dword v105, v97, s[84:87], s54 offen")
        if TLBW:
            A("s_lshl_b32 s54, s53, 8")
            A("v_add_u32 v106, s54, v0")
            A(f"v_lshlrev_b32 v106, {TLBS}, v106")
            A("s_load_dwordx2 s[58:59], s[0:1], 96")
            A("s_waitcnt lgkmcnt(0)")
            for (p, sz) in ((6, 64 * MB), (64, 4 * MB), (66, 4 * MB), (70, 4 * MB), (72, 512*1024), (74, 512*1024), (76, 1792*1024), (78, 1792*1024), (58, 2 * MB), (68, 4 * MB)):
                make_srd(A, 96, p, 0, sz)
                A("buffer_load_dword v107, v106, s[96:99], 0 offen")
    A("s_cmp_ge_u32 s2, 152")
    A("s_cbranch_scc1 .Lk0_w0")
    A(f"s_waitcnt vmcnt({16 + NPF})")
    A("s_branch .Lk0_w1")
    A.label(".Lk0_w0")
    A(f"s_waitcnt vmcnt({NPF})")
    A.label(".Lk0_w1")
    stamp()
    X = [64, 72]
    for r in range(2):
        for j in range(4):
            A(f"v_lshlrev_b32 v{X[r]+2*j}, 16, v{4+4*r+j}")
            A(f"v_and_b32 v{X[r]+2*j+1}, s40, v{4+4*r+j}")
    S = [80, 81]
    for r in range(2):
        A(f"v_add_f32 v{S[r]}, v{X[r]}, v{X[r]+1}")
        for j in range(2, 8):
            A(f"v_add_f32 v{S[r]}, v{S[r]}, v{X[r]+j}")
    wave_allreduce(A, "v_add_f32", S, [82, 83], [84, 85])
    M = [86, 87]; MBF = [88, 89]
    for r in range(2):
        A(f"v_mul_f32 v{M[r]}, {fhex(1/512)}, v{S[r]}")
        A(f"v_mov_b32 v{MBF[r]}, v{M[r]}")
        round_bf16_1(A, MBF[r], 90)
    for r in range(2):
        for j in range(8):
            A(f"v_sub_f32 v90, v{X[r]+j}, v{M[r]}")
            if j == 0:
                A(f"v_mul_f32 v{S[r]}, v90, v90")
            else:
                A(f"v_fmac_f32 v{S[r]}, v90, v90")
    wave_allreduce(A, "v_add_f32", S, [82, 83], [84, 85])
    DEN = [91, 92]; RINV = [93, 94]
    for r in range(2):
        A(f"v_mul_f32 v{S[r]}, {fhex(1/512)}, v{S[r]}")
        ln_stats_finish(A, S[r], DEN[r], RINV[r], 90)
    for r in range(2):
        for j in range(0, 8, 2):
            a, b = X[r] + j, X[r] + j + 1
            A(f"v_sub_f32 v{a}, v{a}, v{MBF[r]}")
            A(f"v_sub_f32 v{b}, v{b}, v{MBF[r]}")
            round_bf16_2(A, a, b, 90, "s40")
            for e in (a, b):
                A(f"v_mul_f32 v95, v{e}, v{RINV[r]}")
                A(f"v_fma_f32 v96, -v95, v{DEN[r]}, v{e}")
                A(f"v_fma_f32 v{e}, v96, v{RINV[r]}, v95")
            A(f"v_cvt_pk_bf16_f32 v{4+4*r+j//2}, v{a}, v{b}")
    A("buffer_store_dwordx4 v[4:7], v3, s[16:19], 0 offen " + os.environ.get("XNF","sc1"))
    A("buffer_store_dwordx4 v[8:11], v3, s[16:19], 0 offen offset:1024 " + os.environ.get("XNF","sc1"))
    if int(os.environ.get("MEGA", "3")):
        make_srd(A, 96, 6, WS_FLAG, 256 * 256)
        A("s_lshl_b32 s3, s2, 8")
        A("v_lshlrev_b32 v95, 2, v0")
        A("v_mov_b32 v96, 0")
        A("v_cmp_gt_u32 vcc, 64, v0")
        A("s_and_saveexec_b64 s[60:61], vcc")
        A("buffer_store_dword v96, v95, s[96:99], s3 offen sc1")
        A("s_mov_b64 exec, s[60:61]")
    stamp()
    A("s_cmp_ge_u32 s2, 152")
    A("s_cbranch_scc1 .Lk0_end")
    A(f"s_waitcnt vmcnt({10 + NPF})")
    for i in range(8):
        c = 16 + i
        A(f"v_lshlrev_b32 v{c}, 16, v{c}")
        A(f"v_mul_f32 v90, {fhex(-LOG2E)}, v{c}")
        A("v_exp_f32 v90, v90")
        A("s_nop 0")
        A("v_add_f32 v90, 1.0, v90")
        A("v_rcp_f32 v91, v90")
        A("s_nop 0")
        A(f"v_mul_f32 v92, v{c}, v91")
        A(f"v_fma_f32 v93, -v92, v90, v{c}")
        A(f"v_fma_f32 v{c}, v93, v91, v92")
        round_bf16_1(A, c, 90)
    A("s_cmp_lt_u32 s2, 96")
    A("s_cbranch_scc1 .Lk0_ismod2")
    for i in range(8):
        A(f"v_mov_b32 v{16+i}, 1.0")
    A.label(".Lk0_ismod2")
    ACC = list(range(64, 72))
    for i in range(8):
        A(f"s_waitcnt vmcnt({7-i+2+NPF})")
        for j in range(4):
            w = 24 + 4 * i + j
            A(f"v_lshlrev_b32 v90, 16, v{w}")
            A(f"v_and_b32 v91, s40, v{w}")
            if i == 0:
                A(f"v_mul_f32 v{ACC[2*j]}, v90, v{16+i}")
                A(f"v_mul_f32 v{ACC[2*j+1]}, v91, v{16+i}")
            else:
                A(f"v_fmac_f32 v{ACC[2*j]}, v90, v{16+i}")
                A(f"v_fmac_f32 v{ACC[2*j+1]}, v91, v{16+i}")
    stamp()
    A("s_nop 1")
    for dpp in ("row_ror:8", "row_ror:4"):
        for v in ACC:
            A(f"v_add_f32_dpp v{v}, v{v}, v{v} {dpp} row_mask:0xf bank_mask:0xf")
    for sw in ("v_permlane16_swap_b32", "v_permlane32_swap_b32"):
        for k, v in enumerate(ACC):
            A(f"v_mov_b32 v{72+k}, v{v}")
            A(f"v_mov_b32 v{80+k}, v{v}")
        A("s_nop 1")
        for k, v in enumerate(ACC):
            A(f"{sw} v{72+k}, v{80+k}")
        A("s_nop 1")
        for k, v in enumerate(ACC):
            A(f"v_add_f32 v{v}, v{72+k}, v{80+k}")
    A("v_lshlrev_b32 v90, 7, v2")
    A("v_lshl_add_u32 v90, v12, 5, v90")
    A("v_cmp_gt_u32 vcc, 4, v1")
    A("s_and_saveexec_b64 s[60:61], vcc")
    A("ds_write_b128 v90, v[64:67]")
    A("ds_write_b128 v90, v[68:71] offset:16")
    A("s_mov_b64 exec, s[60:61]")
    A("s_waitcnt lgkmcnt(0)")
    A("s_barrier")
    if K0T:
        stamp(); stamp(True)
        make_srd(A, 88, 6, WS_DBG, 32 * MB)
        A("v_readfirstlane_b32 s92, v2")
        A("s_lshl_b32 s93, s2, 3")
        A("s_add_u32 s93, s93, s92")
        A("s_lshl_b32 s93, s93, 7")
        A("v_mov_b32 v111, 0")
        for i in range(cnt[0]):
            A(f"buffer_store_dword v{112+i}, v111, s[88:91], s93 offen offset:{4*i}")
    A("v_cmp_gt_u32 vcc, 32, v0")
    A("s_and_saveexec_b64 s[60:61], vcc")
    A("s_cbranch_execz .Lk0_end")
    A("v_lshlrev_b32 v90, 2, v0")
    A("ds_read_b32 v64, v90")
    A("ds_read_b32 v65, v90 offset:128")
    A("ds_read_b32 v66, v90 offset:256")
    A("ds_read_b32 v67, v90 offset:384")
    A("s_waitcnt lgkmcnt(0)")
    A("v_add_f32 v64, v64, v65")
    A("v_add_f32 v66, v66, v67")
    A("v_add_f32 v64, v64, v66")
    A("s_cmp_ge_u32 s2, 96")
    A("s_cbranch_scc1 .Lk0_nornd")
    round_bf16_1(A, 64, 65)
    A.label(".Lk0_nornd")
    A("s_lshl_b32 s42, s43, 7")
    A("buffer_store_dword v64, v90, s[28:31], s42 offen")
    A.label(".Lk0_end")
    if HK:
        A("s_mov_b64 exec, -1")
        stamp()
        A("s_waitcnt vmcnt(0)")
        stamp()
        A("s_load_dwordx2 s[96:97], s[0:1], 104")
        A("s_waitcnt lgkmcnt(0)")
        A("s_add_u32 s96, s96, 512")
        A("s_addc_u32 s97, s97, 0")
        A("s_mov_b32 s98, 256")
        A("s_mov_b32 s99, 0x00020000")
        for wi, wg in enumerate((5, 200)):
            A(f"s_cmp_lg_u32 s2, {wg}")
            A(f"s_cbranch_scc1 .Lk0_hk{wi}")
            A("v_mov_b32 v3, 0")
            A("v_cmp_eq_u32 vcc, 0, v0")
            A("s_and_saveexec_b64 s[60:61], vcc")
            for i in range(8):
                A(f"buffer_store_dword v{112+i}, v3, s[96:99], 0 offen offset:{4*(8*wi+i)}")
            A.label(f".Lk0_hk{wi}")
    A("s_endpgm")
    A.raw(kernel_desc(name, 128, 102))
    return (name, (256, 1, 1), (256, 1, 1), 512)
```

```python
from asmlib import *
MB = 1 << 20
WS_MOD = 0
WS_XN = 1 * MB
WS_X2 = 4 * MB
WS_X1 = 6 * MB
WS_XN4 = 8 * MB
WS_G = 10 * MB
WS_H = 18 * MB
WS_HN = 20 * MB
WS_H1 = 22 * MB
WS_PART = 32 * MB
WS_FLAG = 26 * MB
WS_DBG = 64 * MB
LOG2E = 1.4426950408889634
import os
PREFETCH = int(os.environ.get("PREFETCH", "1"))
CODEPF = int(os.environ.get('CODEPF','1'))
WQ2 = int(os.environ.get('WQ2','0'))
K0KV = int(os.environ.get('K0KV','0'))
TLBW = int(os.environ.get('TLBW','0'))
TLBS = int(os.environ.get('TLBS','16'))
NPF = (1 + CODEPF + WQ2 + (2 if K0KV else 0) + (1 if K0KV >= 2 else 0) + (10 if TLBW else 0)) if PREFETCH else 0

def round_bf16_1(A, v, t):
    A(f"v_cvt_pk_bf16_f32 v{t}, v{v}, v{v}")
    A(f"v_lshlrev_b32 v{v}, 16, v{t}")

def round_bf16_2(A, a, b, t, smask):
    A(f"v_cvt_pk_bf16_f32 v{t}, v{a}, v{b}")
    A(f"v_lshlrev_b32 v{a}, 16, v{t}")
    A(f"v_and_b32 v{b}, {smask}, v{t}")

def ln_stats_finish(A, vsum_sq, vden, vrinv, t):
    round_bf16_1(A, vsum_sq, t)
    A(f"v_add_f32 v{vsum_sq}, {fhex(1e-5)}, v{vsum_sq}")
    round_bf16_1(A, vsum_sq, t)
    A(f"v_sqrt_f32 v{vden}, v{vsum_sq}")
    A("s_nop 0")
    round_bf16_1(A, vden, t)
    A(f"v_rcp_f32 v{vrinv}, v{vden}")
    A("s_nop 0")

def gen_k0(A):
    name = "k0_kernel"
    K0T = int(os.environ.get("K0TIMING", "0"))
    cnt = [0]
    HK = int(os.environ.get("HK", "0"))
    def stamp(real=False):
        if not (K0T or HK): return
        if HK and real: return
        A("s_waitcnt lgkmcnt(0)")
        A("s_memrealtime s[100:101]" if (real or HK) else "s_memtime s[100:101]")
        A("s_waitcnt lgkmcnt(0)")
        A(f"v_mov_b32 v{112+cnt[0]}, s100")
        cnt[0] += 1
    kernel_header(A, name)
    stamp(True); stamp()
    A("s_cmp_ge_u32 s2, 256")
    A("s_cbranch_scc1 .Lk0_end")
    HD = int(os.environ.get("HD", "0"))
    A("s_load_dwordx2 s[4:5], s[0:1], 0")
    A("s_load_dwordx4 s[8:11], s[0:1], 80")
    A("s_load_dwordx2 s[6:7], s[0:1], 112")
    A("s_load_dwordx2 s[56:57], s[0:1], 64")
    A("v_and_b32 v1, 63, v0")
    A("v_lshrrev_b32 v2, 6, v0")
    A("s_mov_b32 s40, 0xffff0000")
    A("s_waitcnt lgkmcnt(0)")
    stamp()
    make_srd(A, 12, 4, 0, 2 * MB)
    make_srd(A, 16, 6, WS_XN, 2 * MB)
    make_srd(A, 20, 8, 0, 1024)
    make_srd(A, 24, 10, 0, 512 * 6144)
    make_srd(A, 28, 6, WS_MOD, 3072 * 4)
    A("s_movk_i32 s41, 6144")
    A("s_mov_b32 s43, s2")
    A("s_cmp_lt_u32 s2, 96")
    A("s_cbranch_scc1 .Lk0_ismod")
    make_srd(A, 24, 56, 0, 512 * 3584)
    make_srd(A, 28, 6, 64 * 1024, 1792 * 4)
    A("s_movk_i32 s41, 3584")
    A("s_sub_u32 s43, s2, 96")
    A.label(".Lk0_ismod")
    A("s_lshl_b32 s3, s2, 13")
    A("v_lshlrev_b32 v3, 11, v2")
    A("v_lshl_add_u32 v3, v1, 4, v3")
    A("v_add_u32 v3, s3, v3")
    A("buffer_load_dwordx4 v[4:7], v3, s[12:15], 0 offen")
    A("buffer_load_dwordx4 v[8:11], v3, s[12:15], 0 offen offset:1024")
    A("s_cmp_ge_u32 s2, 152")
    A("s_cbranch_scc1 .Lk0_noB1")
    A("v_and_b32 v12, 3, v0")
    A("v_lshrrev_b32 v13, 2, v0")
    A("v_mul_lo_u32 v14, v13, s41")
    A("v_lshl_add_u32 v14, v12, 4, v14")
    A("s_lshl_b32 s44, s43, 6")
    A("s_lshl_b32 s42, s41, 6")
    for i in range(1, 8):
        A(f"s_add_u32 s{44+i}, s{43+i}, s42")
    A("v_lshlrev_b32 v15, 1, v13")
    for i in range(8):
        A(f"buffer_load_ushort v{16+i}, v15, s[20:23], 0 offen offset:{i*128}")
    for i in range(8):
        A(f"buffer_load_dwordx4 v[{24+4*i}:{27+4*i}], v14, s[24:27], s{44+i} offen")
    A.label(".Lk0_noB1")
    if PREFETCH:
        A("s_load_dwordx8 s[64:71], s[0:1], 8")
        A("s_load_dwordx8 s[72:79], s[0:1], 48")
        A("s_and_b32 s52, s2, 7")
        A("s_lshr_b32 s53, s2, 3")
        A("v_lshlrev_b32 v97, 6, v0")
        A("v_lshrrev_b32 v98, 4, v0")
        A("v_and_b32 v99, 15, v0")
        A("v_lshlrev_b32 v99, 6, v99")
        A("v_lshl_add_u32 v98, v98, 13, v99")
        A("v_lshlrev_b32 v99, 6, v1")
        A("s_waitcnt lgkmcnt(0)")
        make_srd(A, 80, 68, 0, 4 * MB if int(os.environ.get("WQPF","1")) else 0)
        A("s_lshl_b32 s54, s53, 17")
        A("s_lshl_b32 s55, s52, 10")
        A("s_add_u32 s54, s54, s55")
        A("buffer_load_dword v100, v98, s[80:83], s54 offen")
        if WQ2:
            A("s_xor_b32 s54, s54, 1024")
            A("buffer_load_dword v102, v98, s[80:83], s54 offen")
        if CODEPF:
            A("s_getpc_b64 s[84:85]")
            A.label(".Lk0_pc")
            A("s_mov_b32 s86, .Lcode_end-.Lk0_pc")
            A("s_mov_b32 s87, 0x00020000")
            A("s_lshl_b32 s54, s53, 12")
            A("buffer_load_dword v101, v99, s[84:87], s54 offen")
        if K0KV:
            A("s_lshl_b32 s54, s52, 19")
            A("s_lshl_b32 s55, s53, 12")
            A("s_add_u32 s54, s54, s55")
            A(f"s_add_u32 s54, s54, {1536*256}")
            make_srd(A, 88, 64, 0, 4 * MB)
            A("buffer_load_dword v103, v99, s[88:91], s54 offen")
            make_srd(A, 92, 66, 0, 4 * MB)
            A("buffer_load_dword v104, v99, s[92:95], s54 offen")
        if K0KV >= 2:
            make_srd(A, 84, 70, 0, 4 * MB)
            A("s_lshl_b32 s54, s2, 14")
            A("buffer_load_dword v105, v97, s[84:87], s54 offen")
        if TLBW:
            A("s_lshl_b32 s54, s53, 8")
            A("v_add_u32 v106, s54, v0")
            A(f"v_lshlrev_b32 v106, {TLBS}, v106")
            A("s_load_dwordx2 s[58:59], s[0:1], 96")
            A("s_waitcnt lgkmcnt(0)")
            for (p, sz) in ((6, 64 * MB), (64, 4 * MB), (66, 4 * MB), (70, 4 * MB), (72, 512*1024), (74, 512*1024), (76, 1792*1024), (78, 1792*1024), (58, 2 * MB), (68, 4 * MB)):
                make_srd(A, 96, p, 0, sz)
                A("buffer_load_dword v107, v106, s[96:99], 0 offen")
    A("s_cmp_ge_u32 s2, 152")
    A("s_cbranch_scc1 .Lk0_w0")
    A(f"s_waitcnt vmcnt({16 + NPF})")
    A("s_branch .Lk0_w1")
    A.label(".Lk0_w0")
    A(f"s_waitcnt vmcnt({NPF})")
    A.label(".Lk0_w1")
    stamp()
    X = [64, 72]
    for r in range(2):
        for j in range(4):
            A(f"v_lshlrev_b32 v{X[r]+2*j}, 16, v{4+4*r+j}")
            A(f"v_and_b32 v{X[r]+2*j+1}, s40, v{4+4*r+j}")
    S = [80, 81]
    for r in range(2):
        A(f"v_add_f32 v{S[r]}, v{X[r]}, v{X[r]+1}")
        for j in range(2, 8):
            A(f"v_add_f32 v{S[r]}, v{S[r]}, v{X[r]+j}")
    wave_allreduce(A, "v_add_f32", S, [82, 83], [84, 85])
    M = [86, 87]; MBF = [88, 89]
    for r in range(2):
        A(f"v_mul_f32 v{M[r]}, {fhex(1/512)}, v{S[r]}")
        A(f"v_mov_b32 v{MBF[r]}, v{M[r]}")
        round_bf16_1(A, MBF[r], 90)
    for r in range(2):
        for j in range(8):
            A(f"v_sub_f32 v90, v{X[r]+j}, v{M[r]}")
            if j == 0:
                A(f"v_mul_f32 v{S[r]}, v90, v90")
            else:
                A(f"v_fmac_f32 v{S[r]}, v90, v90")
    wave_allreduce(A, "v_add_f32", S, [82, 83], [84, 85])
    DEN = [91, 92]; RINV = [93, 94]
    for r in range(2):
        A(f"v_mul_f32 v{S[r]}, {fhex(1/512)}, v{S[r]}")
        ln_stats_finish(A, S[r], DEN[r], RINV[r], 90)
    for r in range(2):
        for j in range(0, 8, 2):
            a, b = X[r] + j, X[r] + j + 1
            A(f"v_sub_f32 v{a}, v{a}, v{MBF[r]}")
            A(f"v_sub_f32 v{b}, v{b}, v{MBF[r]}")
            round_bf16_2(A, a, b, 90, "s40")
            for e in (a, b):
                A(f"v_mul_f32 v95, v{e}, v{RINV[r]}")
                A(f"v_fma_f32 v96, -v95, v{DEN[r]}, v{e}")
                A(f"v_fma_f32 v{e}, v96, v{RINV[r]}, v95")
            A(f"v_cvt_pk_bf16_f32 v{4+4*r+j//2}, v{a}, v{b}")
    A("buffer_store_dwordx4 v[4:7], v3, s[16:19], 0 offen " + os.environ.get("XNF","sc1"))
    A("buffer_store_dwordx4 v[8:11], v3, s[16:19], 0 offen offset:1024 " + os.environ.get("XNF","sc1"))
    if int(os.environ.get("MEGA", "6")):
        make_srd(A, 96, 6, WS_FLAG, 256 * 256)
        A("s_lshl_b32 s3, s2, 8")
        A("v_lshlrev_b32 v95, 2, v0")
        A("v_mov_b32 v96, 0")
        A("v_cmp_gt_u32 vcc, 64, v0")
        A("s_and_saveexec_b64 s[60:61], vcc")
        A("buffer_store_dword v96, v95, s[96:99], s3 offen sc1")
        A("s_mov_b64 exec, s[60:61]")
    stamp()
    A("s_cmp_ge_u32 s2, 152")
    A("s_cbranch_scc1 .Lk0_end")
    A(f"s_waitcnt vmcnt({10 + NPF})")
    for i in range(8):
        c = 16 + i
        A(f"v_lshlrev_b32 v{c}, 16, v{c}")
        A(f"v_mul_f32 v90, {fhex(-LOG2E)}, v{c}")
        A("v_exp_f32 v90, v90")
        A("s_nop 0")
        A("v_add_f32 v90, 1.0, v90")
        A("v_rcp_f32 v91, v90")
        A("s_nop 0")
        A(f"v_mul_f32 v92, v{c}, v91")
        A(f"v_fma_f32 v93, -v92, v90, v{c}")
        A(f"v_fma_f32 v{c}, v93, v91, v92")
        round_bf16_1(A, c, 90)
    A("s_cmp_lt_u32 s2, 96")
    A("s_cbranch_scc1 .Lk0_ismod2")
    for i in range(8):
        A(f"v_mov_b32 v{16+i}, 1.0")
    A.label(".Lk0_ismod2")
    ACC = list(range(64, 72))
    for i in range(8):
        A(f"s_waitcnt vmcnt({7-i+2+NPF})")
        for j in range(4):
            w = 24 + 4 * i + j
            A(f"v_lshlrev_b32 v90, 16, v{w}")
            A(f"v_and_b32 v91, s40, v{w}")
            if i == 0:
                A(f"v_mul_f32 v{ACC[2*j]}, v90, v{16+i}")
                A(f"v_mul_f32 v{ACC[2*j+1]}, v91, v{16+i}")
            else:
                A(f"v_fmac_f32 v{ACC[2*j]}, v90, v{16+i}")
                A(f"v_fmac_f32 v{ACC[2*j+1]}, v91, v{16+i}")
    stamp()
    A("s_nop 1")
    for dpp in ("row_ror:8", "row_ror:4"):
        for v in ACC:
            A(f"v_add_f32_dpp v{v}, v{v}, v{v} {dpp} row_mask:0xf bank_mask:0xf")
    for sw in ("v_permlane16_swap_b32", "v_permlane32_swap_b32"):
        for k, v in enumerate(ACC):
            A(f"v_mov_b32 v{72+k}, v{v}")
            A(f"v_mov_b32 v{80+k}, v{v}")
        A("s_nop 1")
        for k, v in enumerate(ACC):
            A(f"{sw} v{72+k}, v{80+k}")
        A("s_nop 1")
        for k, v in enumerate(ACC):
            A(f"v_add_f32 v{v}, v{72+k}, v{80+k}")
    A("v_lshlrev_b32 v90, 7, v2")
    A("v_lshl_add_u32 v90, v12, 5, v90")
    A("v_cmp_gt_u32 vcc, 4, v1")
    A("s_and_saveexec_b64 s[60:61], vcc")
    A("ds_write_b128 v90, v[64:67]")
    A("ds_write_b128 v90, v[68:71] offset:16")
    A("s_mov_b64 exec, s[60:61]")
    A("s_waitcnt lgkmcnt(0)")
    A("s_barrier")
    if K0T:
        stamp(); stamp(True)
        make_srd(A, 88, 6, WS_DBG, 32 * MB)
        A("v_readfirstlane_b32 s92, v2")
        A("s_lshl_b32 s93, s2, 3")
        A("s_add_u32 s93, s93, s92")
        A("s_lshl_b32 s93, s93, 7")
        A("v_mov_b32 v111, 0")
        for i in range(cnt[0]):
            A(f"buffer_store_dword v{112+i}, v111, s[88:91], s93 offen offset:{4*i}")
    A("v_cmp_gt_u32 vcc, 32, v0")
    A("s_and_saveexec_b64 s[60:61], vcc")
    A("s_cbranch_execz .Lk0_end")
    A("v_lshlrev_b32 v90, 2, v0")
    A("ds_read_b32 v64, v90")
    A("ds_read_b32 v65, v90 offset:128")
    A("ds_read_b32 v66, v90 offset:256")
    A("ds_read_b32 v67, v90 offset:384")
    A("s_waitcnt lgkmcnt(0)")
    A("v_add_f32 v64, v64, v65")
    A("v_add_f32 v66, v66, v67")
    A("v_add_f32 v64, v64, v66")
    A("s_cmp_ge_u32 s2, 96")
    A("s_cbranch_scc1 .Lk0_nornd")
    round_bf16_1(A, 64, 65)
    A.label(".Lk0_nornd")
    A("s_lshl_b32 s42, s43, 7")
    A("buffer_store_dword v64, v90, s[28:31], s42 offen")
    A.label(".Lk0_end")
    if HK:
        A("s_mov_b64 exec, -1")
        stamp()
        A("s_waitcnt vmcnt(0)")
        stamp()
        A("s_load_dwordx2 s[96:97], s[0:1], 104")
        A("s_waitcnt lgkmcnt(0)")
        A("s_add_u32 s96, s96, 512")
        A("s_addc_u32 s97, s97, 0")
        A("s_mov_b32 s98, 256")
        A("s_mov_b32 s99, 0x00020000")
        if HK == 2:
            A("s_and_b32 s3, s2, 3")
            A("s_lshl_b32 s3, s3, 2")
            A("v_mov_b32 v3, s3")
            A("v_cmp_eq_u32 vcc, 0, v0")
            A("s_and_saveexec_b64 s[60:61], vcc")
            A("buffer_atomic_umax v118, v3, s[96:99], 0 offen offset:16 sc1")
            A("buffer_atomic_umax v112, v3, s[96:99], 0 offen offset:32 sc1")
            A("s_cmp_lg_u32 s2, 5")
            A("s_cbranch_scc1 .Lk0_hk9")
            A("v_mov_b32 v3, 0")
            A("buffer_store_dword v112, v3, s[96:99], 0 offen")
            A.label(".Lk0_hk9")
        for wi, wg in enumerate((5, 200) if HK == 1 else ()):
            A(f"s_cmp_lg_u32 s2, {wg}")
            A(f"s_cbranch_scc1 .Lk0_hk{wi}")
            A("v_mov_b32 v3, 0")
            A("v_cmp_eq_u32 vcc, 0, v0")
            A("s_and_saveexec_b64 s[60:61], vcc")
            for i in range(8):
                A(f"buffer_store_dword v{112+i}, v3, s[96:99], 0 offen offset:{4*(8*wi+i)}")
            A.label(f".Lk0_hk{wi}")
    A("s_endpgm")
    A.raw(kernel_desc(name, 128, 102))
    return (name, (256, 1, 1), (256, 1, 1), 512)
```

```python
from asmlib import *
from gen_k0 import *
import os
DEBUG = int(os.environ.get("K1DEBUG", "0"))
PART_BF16 = int(os.environ.get("PARTBF16", "1"))
MIMIC = int(os.environ.get("MIMIC", "0"))
LAZY = int(os.environ.get("LAZY", "1"))
THR = float(os.environ.get("THR","30.0"))
TIMING = int(os.environ.get("TIMING", "0"))
USEPK = int(os.environ.get("USEPK", "0"))
EXPT = int(os.environ.get("EXPT", "0"))
NOMAX = int(os.environ.get("NOMAX", "0"))
DOT2 = int(os.environ.get("DOT2", "0"))

class Cnt:
    def __init__(self, A, name, maxv):
        self.A = A; self.name = name; self.maxv = maxv; self.ops = []
    def issue(self, tag):
        self.ops.append(tag)
        assert len(self.ops) <= self.maxv + 1 or self.name == "vmcnt", (self.name, len(self.ops))
    def wait(self, tag):
        idx = None
        for i, t in enumerate(self.ops):
            if t == tag: idx = i
        if idx is None:
            return
        n = len(self.ops) - 1 - idx
        assert n <= self.maxv, (self.name, n)
        self.A(f"s_waitcnt {self.name}({n})")
        self.ops = self.ops[idx+1:]
    def waitall(self):
        self.A(f"s_waitcnt {self.name}(0)")
        self.ops = []

class Stamper:
    def __init__(self, A, lg, srd, swave, base=72):
        self.A = A; self.lg = lg; self.n = 0; self.srd = srd; self.swave = swave; self.base = base
    def __call__(self, real=False):
        if not TIMING: return
        A = self.A
        self.lg.waitall()
        A("s_memrealtime s[70:71]" if (real or TIMING == 2) else "s_memtime s[70:71]")
        A("s_waitcnt lgkmcnt(0)")
        A(f"s_mov_b32 s{self.base+self.n}, s70")
        self.n += 1
    def flush(self):
        if not TIMING: return
        A = self.A
        A(f"s_lshl_b32 s70, s2, 3")
        A(f"s_add_u32 s70, s70, s{self.swave}")
        A(f"s_lshl_b32 s70, s70, 7")
        A("v_mov_b32 v5, 0")
        for i in range(self.n):
            A(f"v_mov_b32 v6, s{self.base+i}")
            A(f"buffer_store_dword v6, v5, s[{self.srd}:{self.srd+3}], s70 offen offset:{4*i}")

ACT = 0
STG = 65536
KRING = STG + 3 * 16384
VRING = STG
V_LANE = 1
V_BADDR = 16; V_AADDR = 24; V_WQOFF = 26; V_WOOFF = 27
V_KADDR = 28; V_VADDR = 36; V_KOFF = 40; V_VOFF = 42
V_M = 43; V_L = 44; V_ALPHA = 46; V_NEGC = 48
V_QADDR = 50
V_T = 58
V_ACC = 64
V_Q = 128
V_S = 160
V_F = 224
NF = 8
RA = int(os.environ.get('RA','6'))
PRIO = int(os.environ.get('PRIO','0'))
CT = int(os.environ.get('CT','1'))
V_NB = 48
S_XN = 8; S_MOD = 12; S_WQ = 16; S_K = 20; S_V = 24; S_WO = 28; S_P = 32; S_DBG = 36
S_WAVE = 40; S_G = 41; S_M = 42; S_RB = 43; S_OFF = 44; S_MASK = 45; S_KVOFF = 46; S_KVM0 = 47
S_C1 = 48; S_K2 = 50; S_SC = 52; S_L2E = 54
S_TMP = 56
S_SL = 66
S_FLAG = 64
S_QOFF = 67
SCALE = 128 ** -0.5

def gemm_dma(A, vm, step, srd, voff, rowstride, D):
    for half in range(2):
        A(f"s_add_u32 m0, s{S_RB}, {(step % D) * 2048 + half * 1024}")
        A("s_nop 0")
        A(f"buffer_load_dwordx4 v{voff}, s[{srd}:{srd+3}], s{S_OFF} offen lds")
        vm.issue(("w", step))
        A(f"s_add_u32 s{S_OFF}, s{S_OFF}, {8 * rowstride}")

def gemm_reads(A, lg, step, D):
    buf = V_Q + (step & 1) * 16
    if (EXPT & 128) and step > 1: return
    for nb in range(2):
        for q in range(2):
            A(f"ds_read_b64_tr_b16 v[{buf+nb*4+q*2}:{buf+nb*4+q*2+1}], v{V_AADDR+nb} offset:{(step % D) * 2048 + q * 512}")
            lg.issue(("f", step))
    for rb in range(2):
        A(f"ds_read_b128 v[{buf+8+rb*4}:{buf+8+rb*4+3}], v{V_BADDR + (step & 7)} offset:{(step >> 3) * 256 + rb * 32768}")
        lg.issue(("f", step))

def gemm_core(A, vm, lg, srd, voff, rowstride, D=4, NS=32):
    vm.wait(("w", 0))
    gemm_reads(A, lg, 0, D)
    for ks in range(NS):
        if ks + 1 < NS:
            vm.wait(("w", ks + 1))
            gemm_reads(A, lg, ks + 1, D)
        lg.wait(("f", ks))
        if ks + D < NS and not (EXPT & 32):
            gemm_dma(A, vm, ks + D, srd, voff, rowstride, D)
        buf = V_Q + (ks & 1) * 16
        for nb in range(2):
            for rb in range(2):
                acc = V_ACC + (nb * 2 + rb) * 16
                c = "0" if ks == 0 else f"v[{acc}:{acc+15}]"
                if (EXPT & 64) and ks > 0: continue
                A(f"v_mfma_f32_32x32x16_bf16 v[{acc}:{acc+15}], v[{buf+nb*4}:{buf+nb*4+3}], v[{buf+8+rb*4}:{buf+8+rb*4+3}], {c}")

D6 = int(os.environ.get("D6", "1"))
V_AADDR2 = (43, 45)
def slot6(step): return (step + 2) % 6
def gemm_dma6(A, vm, step, srd, voff, rowstride):
    for half in range(2):
        A(f"s_add_u32 m0, s{S_RB}, {slot6(step) * 16384 + half * 1024}")
        A("s_nop 0")
        A(f"buffer_load_dwordx4 v{voff}, s[{srd}:{srd+3}], s{S_OFF} offen {os.environ.get('WONT', '') if srd == S_WO else ''} lds")
        vm.issue(("w", step))
        A(f"s_add_u32 s{S_OFF}, s{S_OFF}, {8 * rowstride}")
IL6 = int(os.environ.get("IL6", "0"))
def gemm_reads6(A, lg, step):
    buf = V_Q + ((step % 3) if IL6 else (step & 1)) * 16
    sl = slot6(step)
    for nb in range(2):
        for q in range(2):
            a = V_AADDR + nb if sl < 4 else V_AADDR2[nb]
            A(f"ds_read_b64_tr_b16 v[{buf+nb*4+q*2}:{buf+nb*4+q*2+1}], v{a} offset:{(sl & 3) * 16384 + q * 512}")
            lg.issue(("f", step))
    for rb in range(2):
        A(f"ds_read_b128 v[{buf+8+rb*4}:{buf+8+rb*4+3}], v{V_BADDR + (step & 7)} offset:{(step >> 3) * 256 + rb * 32768}")
        lg.issue(("f", step))
def gemm_core6(A, vm, lg, srd, voff, rowstride, pre, tail=None, NS=32, bars=()):
    for st in range(pre, 6): gemm_dma6(A, vm, st, srd, voff, rowstride)
    if IL6:
        for s0 in range(2):
            vm.wait(("w", s0)); gemm_reads6(A, lg, s0)
        for ks in range(NS):
            lg.wait(("f", ks))
            sv = A.lines; A.lines = []
            if IL6 == 2:
                if ks + 6 < NS: gemm_dma6(A, vm, ks + 6, srd, voff, rowstride)
                elif tail: tail(ks)
            if ks + 2 < NS:
                vm.wait(("w", ks + 2)); gemm_reads6(A, lg, ks + 2)
            if IL6 == 1:
                if ks + 6 < NS: gemm_dma6(A, vm, ks + 6, srd, voff, rowstride)
                elif tail: tail(ks)
            fill = A.lines; A.lines = sv
            buf = V_Q + (ks % 3) * 16
            k = 0
            for i in range(4):
                nb, rb = i >> 1, i & 1
                acc = V_ACC + (nb * 2 + rb) * 16
                c = "0" if ks == 0 else f"v[{acc}:{acc+15}]"
                A(f"v_mfma_f32_32x32x16_bf16 v[{acc}:{acc+15}], v[{buf+nb*4}:{buf+nb*4+3}], v[{buf+8+rb*4}:{buf+8+rb*4+3}], {c}")
                upto = (len(fill) * (i + 1) + 3) // 4
                A.lines.extend(fill[k:upto]); k = upto
        return
    vm.wait(("w", 0))
    gemm_reads6(A, lg, 0)
    for ks in range(NS):
        if ks + 1 < NS:
            vm.wait(("w", ks + 1))
            gemm_reads6(A, lg, ks + 1)
        lg.wait(("f", ks))
        if ks + 6 < NS:
            gemm_dma6(A, vm, ks + 6, srd, voff, rowstride)
        elif tail: tail(ks)
        if ks in bars: A("s_barrier")
        buf = V_Q + (ks & 1) * 16
        for nb in range(2):
            for rb in range(2):
                acc = V_ACC + (nb * 2 + rb) * 16
                c = "0" if ks == 0 else f"v[{acc}:{acc+15}]"
                A(f"v_mfma_f32_32x32x16_bf16 v[{acc}:{acc+15}], v[{buf+nb*4}:{buf+nb*4+3}], v[{buf+8+rb*4}:{buf+8+rb*4+3}], {c}")

def k_dma(A, vm, t):
    A(f"s_mov_b32 s{S_KVOFF}, {t * 16384}")
    A(f"s_add_u32 m0, s{S_KVM0}, {KRING + ((t + 1) % 3) * 16384}")
    A("s_nop 0")
    A(f"buffer_load_dwordx4 v{V_KOFF}, s[{S_K}:{S_K+3}], s{S_KVOFF} offen lds")
    vm.issue(("k", t))
    A(f"buffer_load_dwordx4 v{V_KOFF+1}, s[{S_K}:{S_K+3}], s{S_KVOFF} offen offset:1024 lds")
    vm.issue(("k", t))
def v_dma(A, vm, t):
    A(f"s_mov_b32 s{S_KVOFF}, {t * 16384}")
    A(f"s_add_u32 m0, s{S_KVM0}, {VRING + (t % 3) * 16384}")
    A("s_nop 0")
    A(f"buffer_load_dwordx4 v{V_VOFF}, s[{S_V}:{S_V+3}], s{S_KVOFF} offen lds")
    vm.issue(("v", t))
    A(f"buffer_load_dwordx4 v{V_VOFF}, s[{S_V}:{S_V+3}], s{S_KVOFF} offen offset:1024 lds")
    vm.issue(("v", t))

def sm_max(t):
    S = V_S + (t & 1) * 32
    mx = 2 if CT else V_T
    L = []
    if NOMAX and t > 0: return []
    L.append(f"v_max3_f32 v{mx}, v{S}, v{S+1}, v{S+2}")
    L.append(f"v_max3_f32 v{mx+1}, v{S+3}, v{S+4}, v{S+5}")
    for i in range(6, 30, 4):
        L.append(f"v_max3_f32 v{mx}, v{mx}, v{S+i}, v{S+i+1}")
        L.append(f"v_max3_f32 v{mx+1}, v{mx+1}, v{S+i+2}, v{S+i+3}")
    L.append(f"v_max3_f32 v{mx}, v{mx}, v{S+30}, v{S+31}")
    L.append(f"v_max_f32 v{mx}, v{mx}, v{mx+1}")
    L.append(f"v_mov_b32 v{mx+1}, v{mx}")
    L.append("s_nop 1")
    L.append(f"v_permlane32_swap_b32 v{mx}, v{mx+1}")
    L.append("s_nop 1")
    L.append(f"v_max_f32 v{mx}, v{mx}, v{mx+1}")
    g, d = mx + 1, mx + 2
    if CT:
        if t == 0:
            for i in range(16): L.append(f"v_sub_f32 v{V_NB+i}, 0, v{mx}")
            for i in range(32): L.append(f"v_sub_f32 v{S+i}, v{S+i}, v{mx}")
            return L
        lbl = f".Lk1_nors_{t}"
        L.append(f"v_cmp_lt_f32 vcc, {fhex(THR)}, v{mx}")
        L.append(f"s_mov_b64 s[{S_FLAG}:{S_FLAG+1}], vcc")
        L.append([f"s_cbranch_vccz {lbl}",
                  f"v_max_f32 v{mx}, 0, v{mx}",
                  f"v_sub_f32 v{V_ALPHA}, 0, v{mx}",
                  f"v_exp_f32 v{V_ALPHA}, v{V_ALPHA}"]
                 + [f"v_sub_f32 v{V_NB+i}, v{V_NB+i}, v{mx}" for i in range(16)]
                 + [f"v_sub_f32 v{S+i}, v{S+i}, v{mx}" for i in range(32)]
                 + [f"v_mul_f32 v{V_L}, v{V_L}, v{V_ALPHA}", f"{lbl}:"])
        return L
    if MIMIC:
        L.append(f"v_mul_f32 v{g}, s{S_C1}, v{mx}")
        L.append(f"v_sub_f32 v{d}, v{mx}, v{g}")
        L.append(f"v_add_f32 v{mx}, v{g}, v{d}")
        L.append(f"v_mul_f32 v{g}, s{S_K2}, v{mx}")
        L.append(f"v_fma_f32 v{d}, v{mx}, s{S_SC}, -v{g}")
        L.append(f"v_add_f32 v{mx}, v{g}, v{d}")
    else:
        L.append(f"v_mul_f32 v{mx}, s{S_SC}, v{mx}")
    if LAZY and t > 0:
        lbl = f".Lk1_nors_{t}"
        L.append(f"v_sub_f32 v{V_ALPHA}, v{V_M}, v{mx}")
        L.append(f"v_cmp_gt_f32 vcc, {fhex(-THR / LOG2E)}, v{V_ALPHA}")
        L.append(f"s_mov_b64 s[{S_FLAG}:{S_FLAG+1}], vcc")
        L.append([f"s_cbranch_vccz {lbl}",
                  f"v_max_f32 v{mx}, v{mx}, v{V_M}",
                  f"v_sub_f32 v{V_ALPHA}, v{V_M}, v{mx}",
                  f"v_mul_f32 v{V_ALPHA}, s{S_L2E}, v{V_ALPHA}",
                  f"v_exp_f32 v{V_ALPHA}, v{V_ALPHA}",
                  f"v_mov_b32 v{V_M}, v{mx}",
                  f"v_mul_f32 v{V_NEGC}, s{S_L2E}, v{mx}",
                  f"v_sub_f32 v{V_NEGC}, 0, v{V_NEGC}",
                  f"v_mul_f32 v{V_L}, v{V_L}, v{V_ALPHA}",
                  f"{lbl}:"])
        return L
    if t > 0:
        L.append(f"v_max_f32 v{mx}, v{mx}, v{V_M}")
        L.append(f"v_sub_f32 v{V_ALPHA}, v{V_M}, v{mx}")
        L.append(f"v_mul_f32 v{V_ALPHA}, s{S_L2E}, v{V_ALPHA}")
        L.append(f"v_exp_f32 v{V_ALPHA}, v{V_ALPHA}")
    L.append(f"v_mov_b32 v{V_M}, v{mx}")
    L.append(f"v_mul_f32 v{V_NEGC}, s{S_L2E}, v{mx}")
    L.append(f"v_sub_f32 v{V_NEGC}, 0, v{V_NEGC}")
    return L

PSUM = 10
def sm_quarter(t, q):
    S = V_S + (t & 1) * 32
    L = []
    pairs = list(range(8 * q, 8 * q + 8, 2))
    def pre(i):
        x = f"v[{S+i}:{S+i+1}]"
        k = (i >> 1) & 1
        g = f"v[{2+4*k}:{3+4*k}]"; d = f"v[{4+4*k}:{5+4*k}]"
        if CT:
            return []
        if not USEPK:
            out = []
            xs = [S + i, S + i + 1]; gs = [2 + 4 * k, 3 + 4 * k]; ds = [4 + 4 * k, 5 + 4 * k]
            if MIMIC:
                for op in range(7):
                    for e in range(2):
                        x_, g_, d_ = xs[e], gs[e], ds[e]
                        out.append([f"v_mul_f32 v{g_}, s{S_C1}, v{x_}",
                                    f"v_sub_f32 v{d_}, v{x_}, v{g_}",
                                    f"v_add_f32 v{x_}, v{g_}, v{d_}",
                                    f"v_mul_f32 v{g_}, s{S_K2}, v{x_}",
                                    f"v_fma_f32 v{d_}, v{x_}, s{S_SC}, -v{g_}",
                                    f"v_add_f32 v{x_}, v{g_}, v{d_}",
                                    f"v_fma_f32 v{x_}, v{x_}, s{S_L2E}, v{V_NEGC}"][op])
            else:
                for e in range(2):
                    out.append(f"v_fma_f32 v{xs[e]}, v{xs[e]}, s{S_SL}, v{V_NEGC}")
            return out
        if MIMIC:
            return [f"v_pk_mul_f32 {g}, {x}, s[{S_C1}:{S_C1+1}]",
                    f"v_pk_add_f32 {d}, {x}, {g} neg_lo:[0,1] neg_hi:[0,1]",
                    f"v_pk_add_f32 {x}, {g}, {d}",
                    f"v_pk_mul_f32 {g}, {x}, s[{S_K2}:{S_K2+1}]",
                    f"v_pk_fma_f32 {d}, {x}, s[{S_SC}:{S_SC+1}], {g} neg_lo:[0,0,1] neg_hi:[0,0,1]",
                    f"v_pk_add_f32 {x}, {g}, {d}",
                    f"v_pk_fma_f32 {x}, {x}, s[{S_L2E}:{S_L2E+1}], v[{V_NEGC}:{V_NEGC+1}] op_sel_hi:[1,1,0]"]
        return [f"v_pk_mul_f32 {x}, {x}, s[{S_SC}:{S_SC+1}]",
                f"v_pk_fma_f32 {x}, {x}, s[{S_L2E}:{S_L2E+1}], v[{V_NEGC}:{V_NEGC+1}] op_sel_hi:[1,1,0]"]
    for a in range(0, 4, 2):
        p0, p1 = pre(pairs[a]), pre(pairs[a + 1])
        for x, y in zip(p0, p1):
            L += [x, y]
        for i in (pairs[a], pairs[a + 1]):
            L.append(f"v_exp_f32 v{S+i}, v{S+i}")
            L.append(f"v_exp_f32 v{S+i+1}, v{S+i+1}")
    L.append("s_nop 0")
    for i in pairs:
        if DOT2:
            L.append(f"v_cvt_pk_bf16_f32 v{S + i // 2}, v{S+i}, v{S+i+1}")
            continue
        if i == 0:
            L.append(f"v_mov_b32 v{PSUM}, v{S}")
            L.append(f"v_mov_b32 v{PSUM+1}, v{S+1}")
        elif USEPK:
            L.append(f"v_pk_add_f32 v[{PSUM}:{PSUM+1}], v[{PSUM}:{PSUM+1}], v[{S+i}:{S+i+1}]")
        else:
            L.append(f"v_add_f32 v{PSUM}, v{PSUM}, v{S+i}")
            L.append(f"v_add_f32 v{PSUM+1}, v{PSUM+1}, v{S+i+1}")
        L.append(f"v_cvt_pk_bf16_f32 v{S + i // 2}, v{S+i}, v{S+i+1}")
    if DOT2:
        for i in pairs:
            a = PSUM + ((i >> 1) & 1)
            if DOT2 == 1: L.append(f"v_dot2c_f32_bf16 v{a}, v{S + i // 2}, v14")
            else: L.append(f"v_dot2_f32_bf16 v{a}, v{S + i // 2}, v14, v{a}")
    if EXPT & 1: L = [x for x in L if not x.startswith("v_exp")]
    if EXPT & 2: L = [x for x in L if x.startswith("v_exp") or x.startswith("s_nop")]
    return L

def sm_rescale(t):
    if t == 0 or NOMAX: return []
    if LAZY:
        lbl = f".Lk1_nors2_{t}"
        return [[f"s_cmp_eq_u64 s[{S_FLAG}:{S_FLAG+1}], 0", f"s_cbranch_scc1 {lbl}"] + [f"v_mul_f32 v{V_ACC+i}, v{V_ALPHA}, v{V_ACC+i}" for i in range(64)] + [f"{lbl}:"]]
    if not USEPK:
        return [f"v_mul_f32 v{V_ACC+i}, v{V_ALPHA}, v{V_ACC+i}" for i in range(64)]
    return [f"v_pk_mul_f32 v[{V_ACC+i}:{V_ACC+i+1}], v[{V_ACC+i}:{V_ACC+i+1}], v[{V_ALPHA}:{V_ALPHA+1}] op_sel_hi:[1,0]" for i in range(0, 64, 2)]

def sm_lupd(t):
    if DOT2: return []
    L = [f"v_add_f32 v{PSUM}, v{PSUM}, v{PSUM+1}"]
    if t == 0:
        L.append(f"v_mov_b32 v{V_L}, v{PSUM}")
    elif LAZY:
        L.append(f"v_add_f32 v{V_L}, v{V_L}, v{PSUM}")
    else:
        L.append(f"v_fma_f32 v{V_L}, v{V_L}, v{V_ALPHA}, v{PSUM}")
    return L

def gen_k1(A, emb=False, pre=None, hookA=None, hookB=None, kname="k1_kernel", v2=False, hookC=None):
    name = kname
    vm = Cnt(A, "vmcnt", 63); lg = Cnt(A, "lgkmcnt", 15)
    stamp = Stamper(A, lg, S_DBG, S_WAVE)
    kernel_header(A, name)
    A("s_cmp_lt_u32 s2, 256")
    A("s_cbranch_scc1 .Lk1_go")
    A("s_endpgm")
    A.label(".Lk1_go")
    if pre: pre()
    A("s_load_dwordx4 s[60:63], s[0:1], 8")
    A("s_load_dwordx4 s[64:67], s[0:1], 24")
    A("s_load_dwordx2 s[68:69], s[0:1], 112")
    A("s_load_dwordx8 s[92:99], s[0:1], 48")
    A(f"v_and_b32 v{V_LANE}, 63, v0")
    A("v_lshrrev_b32 v2, 6, v0")
    A("s_nop 0")
    A(f"v_readfirstlane_b32 s{S_WAVE}, v2")
    KM = int(os.environ.get("K1MAP","1"))
    if KM == 1:
        A(f"s_lshr_b32 s{S_G}, s2, 5")
        A(f"s_and_b32 s{S_M}, s2, 31")
    elif KM == 4:
        A(f"s_and_b32 s{S_G}, s2, 6")
        A(f"s_lshr_b32 s{S_M}, s2, 7")
        A(f"s_or_b32 s{S_G}, s{S_G}, s{S_M}")
        A(f"s_bfe_u32 s{S_M}, s2, 0x40003")
        A(f"s_lshl_b32 s{S_M}, s{S_M}, 1")
        A(f"s_and_b32 s{S_TMP}, s2, 1")
        A(f"s_or_b32 s{S_M}, s{S_M}, s{S_TMP}")
    elif KM == 5:
        A(f"s_and_b32 s{S_G}, s2, 4")
        A(f"s_lshr_b32 s{S_M}, s2, 6")
        A(f"s_or_b32 s{S_G}, s{S_G}, s{S_M}")
        A(f"s_bfe_u32 s{S_M}, s2, 0x30003")
        A(f"s_lshl_b32 s{S_M}, s{S_M}, 2")
        A(f"s_and_b32 s{S_TMP}, s2, 3")
        A(f"s_or_b32 s{S_M}, s{S_M}, s{S_TMP}")
    elif KM == 0:
        A(f"s_and_b32 s{S_G}, s2, 7")
        A(f"s_lshr_b32 s{S_M}, s2, 3")
    else:
        nb_ = KM - 1
        A(f"s_and_b32 s{S_G}, s2, {(1 << nb_) - 1}")
        A(f"s_lshr_b32 s{S_M}, s2, {5 + nb_}")
        A(f"s_lshl_b32 s{S_M}, s{S_M}, {nb_}")
        A(f"s_or_b32 s{S_G}, s{S_G}, s{S_M}")
        A(f"s_bfe_u32 s{S_M}, s2, {hex((5 << 16) | nb_)}")
    A(f"s_mov_b32 s{S_MASK}, 0xffff0000")
    for (s, val) in ((S_C1, 65537.0), (S_K2, 65537.0 * SCALE), (S_SC, SCALE), (S_L2E, LOG2E)):
        A(f"s_mov_b32 s{s}, {fhex(val)}")
        A(f"s_mov_b32 s{s+1}, {fhex(val)}")
    L = V_LANE
    SM = f"s{S_MASK}"
    D = 4
    A(f"v_lshrrev_b32 v5, 3, v{L}")
    A(f"v_and_b32 v6, 7, v{L}")
    A("v_lshlrev_b32 v7, 1, v5")
    A("v_and_b32 v7, 4, v7")
    A("v_xor_b32 v6, v6, v7")
    A("v_lshlrev_b32 v6, 4, v6")
    A(f"v_lshl_add_u32 v{V_WQOFF}, v5, 13, v6")
    A(f"v_lshl_add_u32 v{V_WOOFF}, v5, 10, v6")
    A(f"s_lshl_b32 s{S_RB}, s{S_WAVE}, {11 if D6 else 13}")
    A(f"s_add_u32 s{S_RB}, s{S_RB}, {STG}")
    A(f"s_lshl_b32 s{S_OFF}, s{S_G}, 10")
    A(f"s_lshl_b32 s{S_TMP}, s{S_WAVE}, 7")
    A(f"s_add_u32 s{S_OFF}, s{S_OFF}, s{S_TMP}")
    A(f"v_lshrrev_b32 v5, 4, v{L}")
    A(f"v_and_b32 v6, 15, v{L}")
    A(f"s_lshl_b32 s{S_TMP}, s{S_WAVE}, 3")
    A(f"v_add_u32 v7, s{S_TMP}, v5")
    for j in range(2):
        A(f"v_add_u32 v8, {4*j}, v7")
        A("v_and_b32 v9, 15, v8")
        A("v_xor_b32 v9, v6, v9")
        A("v_lshlrev_b32 v9, 4, v9")
        A(f"v_lshl_add_u32 v{V_KOFF+j}, v7, 8, v9")
    A("v_lshlrev_b32 v9, 2, v5")
    A("v_xor_b32 v9, v6, v9")
    A("v_lshlrev_b32 v9, 4, v9")
    A(f"v_lshl_add_u32 v{V_VOFF}, v7, 8, v9")
    A(f"s_lshl_b32 s{S_KVM0}, s{S_WAVE}, 11")
    A(f"v_lshrrev_b32 v5, 5, v{L}")
    A(f"v_bfe_u32 v6, v{L}, 4, 1")
    A(f"v_bfe_u32 v7, v{L}, 2, 2")
    A(f"v_and_b32 v8, 1, v{L}")
    A(f"v_bfe_u32 v9, v{L}, 1, 1")
    A("v_lshl_or_b32 v8, v8, 1, v9")
    A("v_lshlrev_b32 v8, 3, v8")
    A("v_lshl_add_u32 v8, v6, 5, v8")
    A("v_lshl_add_u32 v10, v5, 3, v7")
    A("v_lshrrev_b32 v11, 1, v7")
    for nb in range(2):
        A(f"v_xor_b32 v12, {nb}, v11")
        A("v_lshl_add_u32 v12, v12, 6, v8")
        A("v_lshl_add_u32 v12, v10, 7, v12")
        A(f"v_add_u32 v{V_AADDR+nb}, s{S_RB}, v12")
        if D6: A(f"v_add_u32 v{V_AADDR2[nb]}, 65536, v{V_AADDR+nb}")
    for db in range(4):
        A(f"v_xor_b32 v12, {db}, v7")
        A("v_lshl_add_u32 v12, v12, 6, v8")
        A(f"v_lshl_add_u32 v12, v10, 8, v12")
        A(f"v_add_u32 v{V_VADDR+db}, {VRING}, v12")
    A(f"v_and_b32 v6, 31, v{L}")
    for j in range(8):
        A(f"v_or_b32 v7, {2*j}, v5")
        A("v_xor_b32 v7, v7, v6")
        A("v_and_b32 v7, 15, v7")
        A("v_lshlrev_b32 v7, 4, v7")
        A(f"v_lshl_add_u32 v{V_BADDR+j}, v6, 10, v7")
    A("v_and_b32 v7, 0x13, v6")
    A("v_bfe_u32 v8, v6, 2, 1")
    A("v_lshl_or_b32 v7, v8, 3, v7")
    A("v_bfe_u32 v8, v6, 3, 1")
    A("v_lshl_or_b32 v7, v8, 2, v7")
    for j in range(8):
        A(f"v_or_b32 v8, {2*j}, v5")
        A("v_xor_b32 v8, v8, v7")
        A("v_and_b32 v8, 15, v8")
        A("v_lshlrev_b32 v8, 4, v8")
        A(f"v_lshl_add_u32 v8, v7, 8, v8")
        A(f"v_add_u32 v{V_KADDR+j}, {KRING}, v8")
    A(f"s_lshl_b32 s{S_TMP}, s{S_WAVE}, 3")
    A(f"v_and_b32 v14, 48, v{L}")
    for i in range(8):
        A(f"s_add_u32 s{S_TMP+1}, s{S_TMP}, {i}")
        A(f"v_xor_b32 v15, s{S_TMP+1}, v{L}")
        A("v_and_or_b32 v15, v15, 15, v14")
        A("v_lshlrev_b32 v15, 4, v15")
        A(f"s_lshl_b32 s{S_TMP+1}, s{S_TMP+1}, 10")
        A(f"v_add_u32 v{V_QADDR+i}, s{S_TMP+1}, v15")
    A(f"s_lshl_b32 s{S_TMP}, s{S_M}, 16")
    A(f"s_lshl_b32 s{S_TMP+1}, s{S_WAVE}, 13")
    A(f"s_add_u32 s{S_TMP}, s{S_TMP}, s{S_TMP+1}")
    A(f"s_add_u32 s{S_TMP+1}, s{S_TMP}, 4096")
    A(f"v_lshlrev_b32 v12, 4, v{L}")
    A(f"v_lshlrev_b32 v13, 5, v{L}")
    A("s_waitcnt lgkmcnt(0)")
    make_srd(A, S_XN, 68, WS_XN, 2 * MB)
    make_srd(A, S_MOD, 68, WS_MOD, 3072 * 4)
    XR = V_S
    SA = V_S + 32; CA = V_S + 40
    def p0_loads():
        A(f"buffer_load_dwordx4 v[{CA}:{CA+3}], v13, s[{S_MOD}:{S_MOD+3}], 0 offen offset:2048"); vm.issue("mod")
        A(f"buffer_load_dwordx4 v[{CA+4}:{CA+7}], v13, s[{S_MOD}:{S_MOD+3}], 0 offen offset:2064"); vm.issue("mod")
        A(f"buffer_load_dwordx4 v[{SA}:{SA+3}], v13, s[{S_MOD}:{S_MOD+3}], 0 offen"); vm.issue("mod")
        A(f"buffer_load_dwordx4 v[{SA+4}:{SA+7}], v13, s[{S_MOD}:{S_MOD+3}], 0 offen offset:16"); vm.issue("mod")
        for i in range(8):
            A(f"buffer_load_dwordx4 v[{XR+4*i}:{XR+4*i+3}], v12, s[{S_XN}:{S_XN+3}], s{S_TMP + (i >> 2)} offen offset:{(i & 3) * 1024}")
            vm.issue(("x", i))
    if hookA: hookA()
    else: p0_loads()
    make_srd(A, S_WQ, 64, 0, 4 * MB)
    if hookB: pass
    elif D6: gemm_dma6(A, vm, 0, S_WQ, V_WQOFF, 8192)
    else: gemm_dma(A, vm, 0, S_WQ, V_WQOFF, 8192, D)
    A(f"s_lshl_b32 s{S_TMP}, s{S_G}, 19")
    A(f"s_add_u32 s{S_TMP+1}, s{S_TMP}, {1536 * 256}")
    make_srd(A, S_K, 60, f"s{S_TMP+1}", 512 * 256)
    make_srd(A, S_V, 62, f"s{S_TMP+1}", 512 * 256)
    make_srd(A, S_WO, 66, f"s{S_TMP}", 512 * 1024)
    psz = 2 if PART_BF16 else 4
    A(f"s_mov_b32 s{S_SL}, {fhex(SCALE*LOG2E)}")
    PL = int(os.environ.get("PL", "1")) and emb
    if PL:
        A(f"s_lshl_b32 s{S_TMP+2}, s{S_M}, 3")
        A(f"s_add_u32 s{S_TMP+2}, s{S_TMP+2}, s{S_G}")
        A(f"s_lshl_b32 s{S_TMP+2}, s{S_TMP+2}, 16")
        A(f"s_add_u32 s{S_TMP+2}, s{S_TMP+2}, {WS_PART}")
        make_srd(A, S_P, 68, f"s{S_TMP+2}", 65536)
    else:
        A(f"s_mul_i32 s{S_TMP+2}, s{S_G}, {2048 * 512 * psz}")
        A(f"s_add_u32 s{S_TMP+2}, s{S_TMP+2}, {WS_PART}")
        make_srd(A, S_P, 68, f"s{S_TMP+2}", 2048 * 512 * psz)
    if DEBUG or TIMING:
        make_srd(A, S_DBG, 68, WS_DBG, 32 * MB)
    stamp(True); stamp()
    SCR = STG + 16384
    if hookB and v2:
        LDE = int(os.environ.get("LDE", "2"))
        KVL = int(os.environ.get("KVL", "0"))
        def kvpf():
            A(f"v_lshlrev_b32 v5, 7, v{L}")
            A(f"s_lshl_b32 s{S_TMP}, s{S_M}, 12")
            A(f"s_add_u32 s{S_TMP+1}, s{S_TMP}, 4096")
            A(f"s_cmp_lg_u32 s{S_WAVE}, 4")
            A("s_cbranch_scc1 .Lk1_nkv")
            A("s_mov_b32 exec_hi, 0")
            A(f"buffer_load_dword v15, v5, s[{S_K}:{S_K+3}], s{S_TMP} offen")
            A(f"buffer_load_dword v15, v5, s[{S_V}:{S_V+3}], s{S_TMP} offen")
            A("s_mov_b64 exec, -1")
            A.label(".Lk1_nkv")
        def loader():
            for st in range(LDE): gemm_dma6(A, vm, st, S_WQ, V_WQOFF, 8192)
            A(f"s_sub_u32 s{S_RB}, s{S_RB}, 8192")
            A(f"s_sub_u32 s{S_OFF}, s{S_OFF}, {LDE * 16 * 8192 + 512}")
            for st in range(LDE): gemm_dma6(A, vm, st, S_WQ, V_WQOFF, 8192)
            A(f"s_add_u32 s{S_RB}, s{S_RB}, 8192")
            A(f"s_add_u32 s{S_OFF}, s{S_OFF}, 512")
            if not KVL: kvpf()
        def cfix():
            A(f"s_add_u32 s{S_OFF}, s{S_OFF}, {LDE * 16 * 8192}")
        def xn_loads():
            vm.ops = []
            A(f"s_lshl_b32 s{S_TMP}, s{S_M}, 16")
            A(f"s_lshl_b32 s{S_TMP+1}, s{S_WAVE}, 13")
            A(f"s_add_u32 s{S_TMP}, s{S_TMP}, s{S_TMP+1}")
            A(f"s_add_u32 s{S_TMP+1}, s{S_TMP}, 4096")
            for i in range(8):
                A(f"buffer_load_dwordx4 v[{XR+4*i}:{XR+4*i+3}], v12, s[{S_XN}:{S_XN+3}], s{S_TMP + (i >> 2)} offen offset:{(i & 3) * 1024}")
                vm.issue(("x", i))
        hookB(loader, cfix, xn_loads)
        lg.ops = []
        A(f"v_add_u32 v2, {SCR + 4096}, v13")
        A(f"ds_read_b128 v[{CA}:{CA+3}], v2 offset:2048")
        A(f"ds_read_b128 v[{CA+4}:{CA+7}], v2 offset:2064")
        A(f"ds_read_b128 v[{SA}:{SA+3}], v2")
        A(f"ds_read_b128 v[{SA+4}:{SA+7}], v2 offset:16")
        A("s_waitcnt lgkmcnt(0)")
    elif hookB:
        def early():
            for st in range(6): gemm_dma6(A, vm, st, S_WQ, V_WQOFF, 8192)
            A(f"s_cmp_lg_u32 s{S_WAVE}, 6")
            A("s_cbranch_scc1 .Lk1_e6")
            A(f"s_add_u32 s{S_RB}, s{S_RB}, 2048")
            A(f"s_sub_u32 s{S_OFF}, s{S_OFF}, {6 * 16 * 8192 - 128}")
            for st in range(6): gemm_dma6(A, vm, st, S_WQ, V_WQOFF, 8192)
            A(f"s_sub_u32 s{S_RB}, s{S_RB}, 2048")
            A(f"s_sub_u32 s{S_OFF}, s{S_OFF}, 128")
            A.label(".Lk1_e6")
            A(f"v_lshlrev_b32 v5, 6, v{L}")
            A(f"s_lshl_b32 s{S_TMP}, s{S_M}, 12")
            A(f"buffer_load_dword v15, v5, s[{S_K}:{S_K+3}], s{S_TMP} offen")
            A(f"buffer_load_dword v15, v5, s[{S_V}:{S_V+3}], s{S_TMP} offen")
        def w7():
            A(f"s_add_u32 s{S_OFF}, s{S_OFF}, {6 * 16 * 8192}")
        hookB(0, early, w7)
        vm.ops = []; lg.ops = []
        A(f"s_lshl_b32 s{S_TMP}, s{S_M}, 16")
        A(f"s_lshl_b32 s{S_TMP+1}, s{S_WAVE}, 13")
        A(f"s_add_u32 s{S_TMP}, s{S_TMP}, s{S_TMP+1}")
        A(f"s_add_u32 s{S_TMP+1}, s{S_TMP}, 4096")
        p0_loads()
    vm.wait("mod")
    for j in range(0, 8 if not v2 else 0, 2):
        A(f"v_add_f32 v{CA+j}, 1.0, v{CA+j}")
        A(f"v_add_f32 v{CA+j+1}, 1.0, v{CA+j+1}")
        round_bf16_2(A, CA + j, CA + j + 1, V_T, SM)
    for i in range(8):
        x = XR + 4 * i
        vm.wait(("x", i))
        for j in range(4):
            a = 2 + 2 * j
            A(f"v_lshlrev_b32 v{a}, 16, v{x+j}")
            A(f"v_and_b32 v{a+1}, {SM}, v{x+j}")
        for j in range(8):
            A(f"v_mul_f32 v{2+j}, v{2+j}, v{CA+j}")
        for j in range(4):
            a = 2 + 2 * j
            A(f"v_cvt_pk_bf16_f32 v{x+j}, v{a}, v{a+1}")
        for j in range(4):
            a = 2 + 2 * j
            A(f"v_lshlrev_b32 v{a}, 16, v{x+j}")
            A(f"v_and_b32 v{a+1}, {SM}, v{x+j}")
        for j in range(8):
            A(f"v_add_f32 v{2+j}, v{2+j}, v{SA+j}")
        for j in range(4):
            a = 2 + 2 * j
            A(f"v_cvt_pk_bf16_f32 v{x+j}, v{a}, v{a+1}")
        A(f"ds_write_b128 v{V_QADDR+i}, v[{x}:{x+3}]")
        lg.issue("hw")
        if hookB and v2:
            if LDE + i < 5: gemm_dma6(A, vm, LDE + i, S_WQ, V_WQOFF, 8192)
        elif hookB: pass
        elif D6:
            if i in (1, 3, 5, 6, 7): gemm_dma6(A, vm, {1: 1, 3: 2, 5: 3, 6: 4, 7: 5}[i], S_WQ, V_WQOFF, 8192)
        elif i in (1, 3, 5):
            gemm_dma(A, vm, (i + 1) // 2, S_WQ, V_WQOFF, 8192, D)
    if not D6:
        k_dma(A, vm, 0)
        k_dma(A, vm, 1)
    if PREFETCH and not hookB:
        A(f"v_lshlrev_b32 v5, 6, v{L}")
        A(f"s_lshl_b32 s{S_TMP}, s{S_M}, 12")
        A(f"buffer_load_dword v15, v5, s[{S_K}:{S_K+3}], s{S_TMP} offen"); vm.issue("pf")
        A(f"buffer_load_dword v15, v5, s[{S_V}:{S_V+3}], s{S_TMP} offen"); vm.issue("pf")
    if hookC:
        if KVL: kvpf()
        hookC()
    lg.waitall()
    stamp()
    A("s_barrier")
    stamp()
    if D6:
        def tail1(ks):
            if ks == 26: k_dma(A, vm, 0)
            if ks == 27: k_dma(A, vm, 1)
            if ks == 28: v_dma(A, vm, 0)
            if ks == 29: v_dma(A, vm, 1)
            if ks == 31: k_dma(A, vm, 2)
        gemm_core6(A, vm, lg, S_WQ, V_WQOFF, 8192, 5 if v2 else 6, tail1, bars=eval(os.environ.get('B1', '()')))
    else:
        gemm_core(A, vm, lg, S_WQ, V_WQOFF, 8192, D)
    stamp()
    A("s_barrier")
    if not D6:
        v_dma(A, vm, 0)
        k_dma(A, vm, 2)
        v_dma(A, vm, 1)
    A(f"s_and_b32 s{S_TMP}, s{S_WAVE}, 1")
    A(f"s_lshr_b32 s{S_TMP+1}, s{S_WAVE}, 1")
    A(f"s_lshl_b32 s{S_TMP+1}, s{S_TMP+1}, 8")
    A(f"s_cmp_eq_u32 s{S_TMP}, 1")
    A(f"s_cselect_b64 vcc, -1, 0")
    A(f"v_mov_b32 v{V_ALPHA}, s{S_SL}")
    for j in range(4):
        A(f"v_cndmask_b32 v{2+j}, v{V_BADDR+j}, v{V_BADDR+4+j}, vcc")
        A(f"v_add_u32 v{2+j}, s{S_TMP+1}, v{2+j}")
    for nb in range(2):
        for rb in range(2):
            acc = V_ACC + (nb * 2 + rb) * 16
            for mp in range(2):
                d = V_S + (nb * 4 + rb * 2 + mp) * 4
                if CT:
                    for e in range(8):
                        A(f"v_mul_f32 v{acc+8*mp+e}, v{V_ALPHA}, v{acc+8*mp+e}")
                for e in range(4):
                    A(f"v_cvt_pk_bf16_f32 v{d+e}, v{acc+8*mp+2*e}, v{acc+8*mp+2*e+1}")
                A(f"ds_write_b128 v{2+2*nb+mp}, v[{d}:{d+3}] offset:{rb*32768}")
                lg.issue("qw")
                if DEBUG:
                    A(f"v_and_b32 v8, 31, v{L}")
                    A(f"v_lshrrev_b32 v9, 5, v{L}")
                    A("v_lshlrev_b32 v8, 13, v8")
                    A("v_lshl_add_u32 v8, v9, 4, v8")
                    A(f"s_lshl_b32 s{S_TMP+2}, s{S_M}, 19")
                    A(f"s_lshl_b32 s{S_TMP+3}, s{S_G}, 10")
                    A(f"s_add_u32 s{S_TMP+2}, s{S_TMP+2}, s{S_TMP+3}")
                    A(f"s_lshl_b32 s{S_TMP+3}, s{S_WAVE}, 7")
                    A(f"s_add_u32 s{S_TMP+2}, s{S_TMP+2}, s{S_TMP+3}")
                    A(f"s_add_u32 s{S_TMP+2}, s{S_TMP+2}, {rb*32*8192 + nb*64 + mp*32}")
                    A(f"buffer_store_dwordx4 v[{d}:{d+3}], v8, s[{S_DBG}:{S_DBG+3}], s{S_TMP+2} offen")
                    vm.issue("dbg")
    A(f"s_and_b32 s{S_TMP}, s{S_WAVE}, 3")
    A(f"s_lshl_b32 s{S_TMP}, s{S_TMP}, 8")
    A(f"s_lshr_b32 s{S_TMP+1}, s{S_WAVE}, 2")
    A(f"s_lshl_b32 s{S_TMP+1}, s{S_TMP+1}, 15")
    A(f"s_add_u32 s{S_QOFF}, s{S_TMP}, s{S_TMP+1}")
    for j in range(8):
        A(f"v_add_u32 v{V_QADDR+j}, s{S_QOFF}, v{V_BADDR+j}")
    lg.waitall()
    vm.wait(("k", 0))
    A("s_barrier")
    stamp()
    if PRIO:
        A(f"s_cmp_lt_u32 s{S_WAVE}, 4")
        A("s_cbranch_scc1 .Lk1_noprio" if PRIO == 1 else "s_cbranch_scc0 .Lk1_noprio")
        A("s_setprio 1")
        A.label(".Lk1_noprio")
    for j in range(8):
        A(f"ds_read_b128 v[{V_Q+4*j}:{V_Q+4*j+3}], v{V_QADDR+j}")
        lg.issue("q")
    seq = []
    for kb in range(2):
        for j in range(8):
            seq.append(("k", 0, kb, j))
    for t in range(8):
        if t > 0:
            for db in range(4): seq.append(("v", t - 1, 3, db))
        if t + 1 < 8:
            for kb in range(2):
                for j in range(8): seq.append(("k", t + 1, kb, j))
        for ks in range(3):
            for db in range(4): seq.append(("v", t, ks, db))
    for db in range(4): seq.append(("v", 7, 3, db))
    state = {"issued": 0, "limit": 0}
    def issue_frag(i):
        kind, t, a, b = seq[i]
        f = V_F + (i % NF) * 4
        if (EXPT & 4) and i >= 8: return
        if (EXPT & 16) and (i & 1): return
        if kind == "k":
            A(f"ds_read_b128 v[{f}:{f+3}], v{V_KADDR+b} offset:{((t + 1) % 3) * 16384 + a * 8192}")
            lg.issue(("fr", i))
        else:
            o = (t % 3) * 16384 + a * 4096
            A(f"ds_read_b64_tr_b16 v[{f}:{f+1}], v{V_VADDR+b} offset:{o}")
            lg.issue(("fr", i))
            A(f"ds_read_b64_tr_b16 v[{f+2}:{f+3}], v{V_VADDR+b} offset:{o + 1024}")
            lg.issue(("fr", i))
    def avail(i, epoch):
        kind, t, a, b = seq[i]
        return (t - 1 <= epoch) if kind == "k" else (t <= epoch)
    def runahead(cur, epoch):
        while state["issued"] < len(seq) and state["issued"] <= cur + RA and avail(state["issued"], epoch):
            issue_frag(state["issued"]); state["issued"] += 1
    def mfma(i, epoch):
        kind, t, a, b = seq[i]
        runahead(i - 1, epoch)
        assert state["issued"] > i
        f = V_F + (i % NF) * 4
        lg.wait(("fr", i))
        if kind == "k":
            s = V_S + (t & 1) * 32 + a * 16
            c = ("0" if (t == 0 or not CT) else f"v[{V_NB}:{V_NB+15}]") if b == 0 else f"v[{s}:{s+15}]"
            A(f"v_mfma_f32_32x32x16_bf16 v[{s}:{s+15}], v[{f}:{f+3}], v[{V_Q+4*b}:{V_Q+4*b+3}], {c}")
        else:
            o = V_ACC + b * 16
            p = V_S + (t & 1) * 32 + 4 * a
            c = "0" if (t == 0 and a == 0) else f"v[{o}:{o+15}]"
            A(f"v_mfma_f32_32x32x16_bf16 v[{o}:{o+15}], v[{f}:{f+3}], v[{p}:{p+3}], {c}")
        runahead(i, epoch)
    def seg(idx, n, valu, epoch):
        nv = len(valu); k = 0
        def em(x):
            if isinstance(x, list):
                for y in x:
                    if y.endswith(":"): A.label(y[:-1])
                    else: A(y)
            else: A(x)
        if n == 0:
            for x in valu: em(x)
            return idx
        for m_ in range(n):
            mfma(idx + m_, epoch)
            upto = (nv * (m_ + 1) + n - 1) // n
            while k < upto:
                em(valu[k]); k += 1
        return idx + n
    if DOT2:
        assert NOMAX
        A(f"v_mov_b32 v{PSUM}, 0"); A(f"v_mov_b32 v{PSUM+1}, 0"); A("v_mov_b32 v14, 0x3f803f80")
    idx = seg(0, 16, [], -1)
    for t in range(8):
        if t + 1 < 8: vm.wait(("k", t + 1))
        vm.wait(("v", t))
        if not (EXPT & 8): A("s_barrier")
        if t >= 0 and t + 3 < 8: k_dma(A, vm, t + 3)
        if t >= 1 and t + 1 < 8: v_dma(A, vm, t + 1)
        PFMODE = int(os.environ.get("PFMODE", "1"))
        if PREFETCH and t == 1:
            A("v_lshlrev_b32 v12, 6, v0")
            A(f"s_lshl_b32 s{S_TMP}, s{S_M}, 14")
            A(f"s_add_u32 s{S_TMP+1}, s{S_TMP}, 16384")
            A(f"s_mov_b32 s{S_XN}, s{S_WO}")
            A(f"s_mov_b32 s{S_XN+1}, s{S_WO+1}")
            A(f"s_mov_b32 s{S_XN+2}, s{S_TMP+1}")
            A(f"buffer_load_dword v15, v12, s[{S_XN}:{S_XN+3}], s{S_TMP} offen"); vm.issue("pf")
        if PREFETCH and PFMODE < 2:
            for (tt, p, sz) in ((2, 92, 512*1024), (2, 94, 512*1024), (3, 96, 1792*1024), (4, 98, 1792*1024)):
                if t != (1 if PFMODE == 0 else tt): continue
                per = sz // 256
                if p == 96 and int(os.environ.get("K5N", "0")): per = (56 * int(os.environ.get('W3S', '32768')) // 256 + 63) // 64 * 64
                A(f"s_mul_i32 s{S_TMP}, s2, {per}")
                if p == 96 and int(os.environ.get("K5N", "0")):
                    A(f"s_add_u32 s{S_TMP}, s{S_TMP}, {28 * MB}")
                    p = 68
                make_srd(A, S_XN, p, f"s{S_TMP}", per)
                A(f"buffer_load_dword v15, v12, s[{S_XN}:{S_XN+3}], 0 offen"); vm.issue("pf")
        XPF = int(os.environ.get("XPF", "0"))
        if XPF and t in (5, 6):
            for (tt, p, sz, bit) in ((5, 96, 1792*1024, 1), (6, 98, 1792*1024, 2), (5, 92, 512*1024, 4), (6, 94, 512*1024, 4)):
                if t != tt or not (XPF & bit): continue
                per = sz // 32
                A(f"s_lshr_b32 s{S_TMP}, s2, 3")
                A(f"s_mul_i32 s{S_TMP}, s{S_TMP}, {per}")
                make_srd(A, S_XN, p, f"s{S_TMP}", per)
                A("v_lshlrev_b32 v13, 7, v0")
                A(f"buffer_load_dword v15, v13, s[{S_XN}:{S_XN+3}], 0 offen"); vm.issue("pf")
        if t == 7 and D6:
            A(f"s_lshl_b32 s{S_OFF}, s{S_WAVE}, 7")
            for st in range(4):
                gemm_dma6(A, vm, st, S_WO, V_WOOFF, 1024)
        elif t == 7:
            A(f"s_add_u32 s{S_RB}, s{S_RB}, 32768")
            A(f"s_lshl_b32 s{S_OFF}, s{S_WAVE}, 7")
            for nb in range(2):
                A(f"v_add_u32 v{V_AADDR+nb}, 32768, v{V_AADDR+nb}")
            for st in range(D):
                gemm_dma(A, vm, st, S_WO, V_WOOFF, 1024, D)
        mxl = sm_max(t)
        if t == 0:
            mxl = ["s_nop 7", "s_nop 3"] + mxl
        idx = seg(idx, 4 if t > 0 else 0, mxl, t)
        b = sm_quarter(t, 0) + sm_rescale(t) + sm_quarter(t, 1) + ["s_nop 1"]
        idx = seg(idx, 16 if t + 1 < 8 else 0, b, t)
        q3 = sm_quarter(t, 3)
        h = len(q3) // 3
        idx = seg(idx, 8, sm_quarter(t, 2) + ["s_nop 1"] + q3[:h], t)
        idx = seg(idx, 4, q3[h:] + sm_lupd(t) + ["s_nop 1"], t)
        stamp()
    idx = seg(idx, 4, [], 7)
    assert idx == len(seq)
    if DOT2: A(f"v_add_f32 v{V_L}, v{PSUM}, v{PSUM+1}")
    A(f"v_mov_b32 v2, v{V_L}")
    A(f"v_mov_b32 v3, v{V_L}")
    A("s_nop 1")
    A(f"v_permlane32_swap_b32 v2, v3")
    A("s_nop 1")
    A(f"v_add_f32 v{V_L}, v2, v3")
    for j in range(8):
        A(f"v_add_u32 v{V_QADDR+j}, s{S_QOFF}, v{V_BADDR+j}")
    A(f"v_rcp_f32 v{V_ALPHA}, v{V_L}")
    A("s_nop 7")
    A("s_nop 3")
    for db in range(4):
        o = V_ACC + db * 16
        for mp in range(2):
            d = V_S + (db * 2 + mp) * 4
            for e in range(0, 8, 2):
                A(f"v_pk_mul_f32 v[{o+8*mp+e}:{o+8*mp+e+1}], v[{o+8*mp+e}:{o+8*mp+e+1}], v[{V_ALPHA}:{V_ALPHA+1}] op_sel_hi:[1,0]")
            for e in range(4):
                A(f"v_cvt_pk_bf16_f32 v{d+e}, v{o+8*mp+2*e}, v{o+8*mp+2*e+1}")
            A(f"ds_write_b128 v{V_QADDR+2*db+mp}, v[{d}:{d+3}]")
            lg.issue("ow")
            if DEBUG:
                A(f"v_and_b32 v5, 31, v{L}")
                A(f"v_lshrrev_b32 v6, 5, v{L}")
                A("v_lshlrev_b32 v5, 13, v5")
                A("v_lshl_add_u32 v5, v6, 4, v5")
                A(f"s_lshl_b32 s{S_TMP+2}, s{S_M}, 19")
                A(f"s_lshl_b32 s{S_TMP+3}, s{S_G}, 10")
                A(f"s_add_u32 s{S_TMP+2}, s{S_TMP+2}, s{S_TMP+3}")
                A(f"s_and_b32 s{S_TMP+3}, s{S_WAVE}, 3")
                A(f"s_lshl_b32 s{S_TMP+3}, s{S_TMP+3}, 8")
                A(f"s_add_u32 s{S_TMP+2}, s{S_TMP+2}, s{S_TMP+3}")
                A(f"s_lshr_b32 s{S_TMP+3}, s{S_WAVE}, 2")
                A(f"s_lshl_b32 s{S_TMP+3}, s{S_TMP+3}, 18")
                A(f"s_add_u32 s{S_TMP+2}, s{S_TMP+2}, s{S_TMP+3}")
                A(f"s_add_u32 s{S_TMP+2}, s{S_TMP+2}, {16*MB + db*64 + mp*32}")
                A(f"buffer_store_dwordx4 v[{d}:{d+3}], v5, s[{S_DBG}:{S_DBG+3}], s{S_TMP+2} offen")
                vm.issue("dbg")
    lg.waitall()
    A("s_barrier")
    stamp()
    if D6: gemm_core6(A, vm, lg, S_WO, V_WOOFF, 1024, 4, bars=eval(os.environ.get('B3', '()')))
    else: gemm_core(A, vm, lg, S_WO, V_WOOFF, 1024, D)
    stamp()
    if int(os.environ.get("TSTORE", "1")) and PART_BF16:
        A(f"v_and_b32 v5, 31, v{L}")
        A(f"v_lshrrev_b32 v6, 5, v{L}")
        A("v_and_b32 v7, 7, v5")
        if D6:
            A("v_lshrrev_b32 v8, 4, v5")
            A("v_and_b32 v5, 15, v5")
            A("v_lshl_add_u32 v5, v8, 7, v5")
        for j in range(4):
            A(f"v_or_b32 v8, {2*j}, v6")
            A("v_xor_b32 v8, v8, v7")
            A("v_lshlrev_b32 v8, 4, v8")
            A("v_lshl_add_u32 v8, v5, 7, v8")
            A(f"v_add_u32 v{10+j}, s{S_RB}, v8")
        A(f"v_lshrrev_b32 v7, 3, v{L}")
        A(f"v_and_b32 v8, 7, v{L}")
        A("v_xor_b32 v9, v8, v7")
        A("v_lshlrev_b32 v9, 4, v9")
        A("v_lshl_add_u32 v9, v7, 7, v9")
        A(f"v_add_u32 v9, s{S_RB}, v9")
        A("v_lshlrev_b32 v8, 4, v8")
        A("v_lshl_add_u32 v8, v7, 10, v8")
        if PL:
            A(f"s_lshl_b32 s{S_TMP}, s{S_WAVE}, 7")
        else:
            A(f"s_lshl_b32 s{S_TMP}, s{S_M}, 16")
            A(f"s_lshl_b32 s{S_TMP+1}, s{S_WAVE}, 7")
            A(f"s_add_u32 s{S_TMP}, s{S_TMP}, s{S_TMP+1}")
        for nb in range(2):
            for rb in range(2):
                acc = V_ACC + (nb * 2 + rb) * 16
                for mp in range(2):
                    d = V_S + (nb * 4 + rb * 2 + mp) * 4
                    for e in range(4):
                        A(f"v_cvt_pk_bf16_f32 v{d+e}, v{acc+8*mp+2*e}, v{acc+8*mp+2*e+1}")
                    A(f"ds_write_b128 v{10+2*nb+mp}, v[{d}:{d+3}] offset:{rb*(32768 if D6 else 4096)}")
        A("s_waitcnt lgkmcnt(0)")
        for i in range(8):
            A(f"ds_read_b128 v[{V_S+32+4*i}:{V_S+32+4*i+3}], v9 offset:{((i >> 1) * 16384 + (i & 1) * 1024) if D6 else i*1024}")
        for i in range(8):
            A(f"s_waitcnt lgkmcnt({7-i})")
            A(f"buffer_store_dwordx4 v[{V_S+32+4*i}:{V_S+32+4*i+3}], v8, s[{S_P}:{S_P+3}], s{S_TMP} offen {os.environ.get('PSTF','sc1')}")
            if i < 7: A(f"s_add_u32 s{S_TMP}, s{S_TMP}, 8192")
    else:
        A(f"v_and_b32 v5, 31, v{L}")
        A(f"v_lshrrev_b32 v6, 5, v{L}")
        sh = 10 if PART_BF16 else 11
        A(f"v_lshlrev_b32 v5, {sh}, v5")
        A(f"v_lshl_add_u32 v5, v6, {4 if PART_BF16 else 5}, v5")
        A(f"s_lshl_b32 s{S_TMP}, s{S_M}, {sh + 6}")
        A(f"s_lshl_b32 s{S_TMP+1}, s{S_WAVE}, {7 if PART_BF16 else 8}")
        A(f"s_add_u32 s{S_TMP}, s{S_TMP}, s{S_TMP+1}")
        A(f"s_add_u32 s{S_TMP+1}, s{S_TMP}, {32 << sh}")
        A("s_nop 7")
        A("s_nop 3")
        for nb in range(2):
            for rb in range(2):
                acc = V_ACC + (nb * 2 + rb) * 16
                for mp in range(2):
                    if PART_BF16:
                        d = V_S + (nb * 4 + rb * 2 + mp) * 4
                        for e in range(4):
                            A(f"v_cvt_pk_bf16_f32 v{d+e}, v{acc+8*mp+2*e}, v{acc+8*mp+2*e+1}")
                        A(f"buffer_store_dwordx4 v[{d}:{d+3}], v5, s[{S_P}:{S_P+3}], s{S_TMP+rb} offen offset:{(32*nb+16*mp)*2} {os.environ.get('PSTF','sc1')}")
                    else:
                        for h4 in range(2):
                            A(f"buffer_store_dwordx4 v[{acc+8*mp+4*h4}:{acc+8*mp+4*h4+3}], v5, s[{S_P}:{S_P+3}], s{S_TMP+rb} offen offset:{(32*nb+16*mp+4*h4)*4}")
    if TIMING:
        A("s_waitcnt vmcnt(0)")
        stamp(); stamp(True)
        stamp.flush()
    if emb: return
    A("s_endpgm")
    A.raw(kernel_desc(name, 256, 102, 256))
    return (name, (256, 1, 1), (512, 1, 1), 163840)
```

```python
from asmlib import *
from gen_k0 import *
import gen_k1 as K1
from gen_k1 import Cnt
from gen_ka import ln_rows, round_multi, pack8, GK0, GK1
from gen_g64 import WS_STAT, WS_CS
import os
MT = int(os.environ.get("MT", "0"))
HD = int(os.environ.get("HD", "0"))
PT = int(os.environ.get("PT", "0"))
TLW = int(os.environ.get("TLW", "0"))
MP = int(os.environ.get("MP", "1"))
WQE = int(os.environ.get("WQE", "0"))
ONE = int(os.environ.get("MEGA", "5")) >= 4
V2 = int(os.environ.get("MEGA", "5")) == 5
MODP = 12288; CSP = 8192
FP = WS_FLAG + 0x20000; FQ_ = WS_FLAG + 0x30000
S_WAVE = 40; S_M = 41; S_J = 42; S_MASK = 43; S_RB = 44; S_GOFF = 45; S_TMP = 48; S_WOFF = 58
S_W = 32; V_W = 6
P_X = 60; P_OUT = 62; P_WS = 68; P_W = 84
SM = f"s{S_MASK}"
L = 1
RG = 40960; RS = 272
K5RB = 18432; K5D = 11
L2PF = int(os.environ.get('L2PF', '0'))
PFE = int(os.environ.get('PFE', '3'))
NE = int(os.environ.get('NE', '3')) if PFE == 2 else 0

def pk(A, op, d, a, b, c=None, sel=""):
    ops = ", ".join(f"v[{x}:{x+1}]" for x in ((d, a, b) if c is None else (d, a, b, c)))
    A(f"{op} {ops} {sel}".rstrip())

class Cap:
    def __init__(self, A): self.A = A
    def __enter__(self):
        self.sv = self.A.lines; self.A.lines = []; return self
    def __exit__(self, *a):
        self.out = self.A.lines; self.A.lines = self.sv

def interleave(A, mf, fill):
    n = len(mf); k = 0
    for i, m in enumerate(mf):
        A(m)
        upto = (len(fill) * (i + 1) + n - 1) // n
        while upto < len(fill) and upto > 0 and not (fill[upto - 1].lstrip().startswith(("buffer_", "ds_", "v_", "s_waitcnt")) or fill[upto - 1].lstrip().startswith(f"s_add_u32 s{S_WOFF}")): upto += 1
        A.lines.extend(fill[k:upto]); k = max(k, upto)

class Mega:
    def __init__(self, A):
        self.A = A
        self.vm = Cnt(A, "vmcnt", 63); self.lg = Cnt(A, "lgkmcnt", 15)
    def stamp(self, idx):
        if HD:
            hmap = {0: 2, 3: 3, 4: 4, 7: 5, 8: 6, 11: 7, 12: 8, 15: 9, 16: 10, 19: 11, 20: 12, 21: 13, 22: 14}
            if int(os.environ.get('HK', '0')): hmap = {0: 2, 22: 14}
            if idx not in hmap: return
            A = self.A
            lab = A.newlabel("hd")
            A("s_waitcnt lgkmcnt(0)")
            A("s_load_dwordx2 s[76:77], s[0:1], 104")
            A("s_memrealtime s[70:71]")
            A("s_waitcnt lgkmcnt(0)")
            A("s_mov_b32 s72, s76")
            A("s_mov_b32 s73, s77")
            A("s_mov_b32 s74, 256")
            A("s_mov_b32 s75, 0x00020000")
            A(f"s_lshl_b32 s76, s{S_WAVE}, 8")
            A("s_or_b32 s76, s76, s2")
            A(f"s_cmp_lg_u32 s76, {HD}")
            A(f"s_cbranch_scc1 {lab}")
            A("v_mov_b32 v2, s70")
            A("v_mov_b32 v3, 0")
            A(f"buffer_store_dword v2, v3, s[72:75], 0 offen offset:{4*hmap[idx]}")
            A.label(lab)
            self.lg.ops = []
            return
        if not MT: return
        A = self.A
        A("s_waitcnt lgkmcnt(0)")
        A("s_memrealtime s[70:71]")
        make_srd(A, 72, P_WS, WS_DBG, 32 * MB)
        A("s_lshl_b32 s76, s2, 3")
        A(f"s_add_u32 s76, s76, s{S_WAVE}")
        A("s_lshl_b32 s76, s76, 7")
        A("s_waitcnt lgkmcnt(0)")
        A("v_mov_b32 v2, s70")
        A("v_mov_b32 v3, 0")
        A(f"buffer_store_dword v2, v3, s[72:75], s76 offen offset:{4*idx}")
        self.vm.issue("stamp"); self.lg.ops = []
    def flag_srd(self, stage):
        make_srd(self.A, 92, P_WS, WS_FLAG + stage * 32 * 256, 32 * 256)
    def transition(self, stage, early=None):
        A = self.A
        self.stamp(1 + 4 * stage)
        self.vm.ops = []
        if ONE and stage == 0:
            make_srd(A, 80, P_WS, FQ_, 32 * 1024)
            A(f"s_cmp_lg_u32 s{S_WAVE}, 7")
            A("s_cbranch_scc1 .Lplq_done")
            A(f"s_lshl_b32 s98, s{S_M}, 10")
            A("v_add_u32 v2, 64, v1")
            A("v_min_u32 v2, 119, v2")
            A("v_lshlrev_b32 v2, 3, v2")
            A("v_lshlrev_b32 v3, 3, v1")
            self.poll64(".Lplq", [(3, 80, "s98"), (2, 80, "s98")])
        if early and NE:
            A(f"s_cmp_ge_u32 s{S_WAVE}, 4")
            A(f"s_cbranch_scc1 .Ltr{stage}_h")
            early(0, NE)
            A(f"s_waitcnt vmcnt({len(self.vm.ops)})")
            A(f"s_branch .Ltr{stage}_j")
            A.label(f".Ltr{stage}_h")
            A("s_waitcnt vmcnt(0)")
            A.label(f".Ltr{stage}_j")
        else:
            A("s_waitcnt vmcnt(0)")
        self.flag_srd(stage)
        A(f"s_lshl_b32 s96, s{S_M}, 8")
        A(f"s_lshl_b32 s97, s{S_J}, {3 if ONE else 2}")
        A("s_add_u32 s97, s97, s96")
        if ONE:
            A("v_mov_b32 v246, s100")
            A("v_mov_b32 v247, s101")
        A("v_mov_b32 v2, 1")
        A("v_mov_b32 v3, s97")
        A("s_waitcnt lgkmcnt(0)")
        self.lg.ops = []
        A("s_barrier")
        A(f"s_cmp_lg_u32 s{S_WAVE}, 7")
        A(f"s_cbranch_scc1 .Lpub{stage}")
        A("s_mov_b64 exec, 1")
        A("buffer_store_dwordx2 v[246:247], v3, s[92:95], 0 offen sc1" if ONE else "buffer_store_dword v2, v3, s[92:95], 0 offen sc1")
        A("s_mov_b64 exec, -1")
        A.label(f".Lpub{stage}")
        self.stamp(1 + 4 * stage + 2)
    def poll(self, stage, nbr=False, check=True):
        A = self.A
        lab = f".Lpl{stage}"
        if check:
            A(f"s_cmp_lg_u32 s{S_WAVE}, 7")
            A(f"s_cbranch_scc1 {lab}_done")
        A("v_and_b32 v3, 7, v1")
        A(f"v_lshlrev_b32 v3, {3 if ONE else 2}, v3")
        if nbr:
            A("v_bfe_u32 v2, v1, 3, 2")
            A("v_min_u32 v2, 2, v2")
            A(f"v_add_u32 v2, s{S_M}, v2")
            A("v_max_u32 v2, 1, v2")
            A("v_min_u32 v2, 32, v2")
            A("v_subrev_u32 v2, 1, v2")
            A("v_lshl_add_u32 v3, v2, 8, v3")
        else:
            A("v_add_u32 v3, s96, v3")
        A("s_mov_b32 s98, 0")
        NP = int(os.environ.get("NPOLL", "1")); PSL = int(os.environ.get("PSL", "1"))
        if ONE:
            self.poll64(lab + "x", [(3, 92, "0")])
        elif NP == 1:
            A.label(f"{lab}_poll")
            A("buffer_load_dword v2, v3, s[92:95], 0 offen sc1")
            A("s_add_u32 s98, s98, 1")
            A("s_waitcnt vmcnt(0)")
            A("v_cmp_ne_u32 vcc, 1, v2")
            A("s_cmp_lt_u32 s98, 0x40000")
            A(f"s_cbranch_scc0 {lab}_done")
            A(f"s_cbranch_vccnz {lab}_poll")
        else:
            for i in range(NP):
                A(f"buffer_load_dword v{248+i}, v3, s[92:95], 0 offen sc1")
                if PSL and i < NP - 1: A(f"s_sleep {PSL}")
            A.label(f"{lab}_poll")
            for i in range(NP):
                A(f"s_waitcnt vmcnt({NP-1})")
                A(f"v_cmp_ne_u32 vcc, 1, v{248+i}")
                A(f"s_cbranch_vccz {lab}_done")
                A(f"buffer_load_dword v{248+i}, v3, s[92:95], 0 offen sc1")
            A("s_add_u32 s98, s98, 1")
            A("s_cmp_lt_u32 s98, 0x40000")
            A(f"s_cbranch_scc1 {lab}_poll")
        A.label(f"{lab}_done")
    def poll64(self, lab, srcs, cnt=99):
        A = self.A
        A(f"s_mov_b32 s{cnt}, 0")
        A.label(f"{lab}_poll")
        for i, (va, srd, so) in enumerate(srcs):
            A(f"buffer_load_dwordx2 v[{248+2*i}:{249+2*i}], v{va}, s[{srd}:{srd+3}], {so} offen sc1")
        A(f"s_add_u32 s{cnt}, s{cnt}, 1")
        A("s_waitcnt vmcnt(0)")
        for i in range(len(srcs)):
            A(f"v_xor_b32 v{248+2*i}, s100, v{248+2*i}")
            A(f"v_xor_b32 v{249+2*i}, s101, v{249+2*i}")
        A("v_or_b32 v248, v248, v249")
        for i in range(1, len(srcs)):
            A(f"v_or3_b32 v248, v248, v{248+2*i}, v{249+2*i}")
        A("v_cmp_ne_u32 vcc, 0, v248")
        A(f"s_cmp_lt_u32 s{cnt}, 0x40000")
        A(f"s_cbranch_scc0 {lab}_done")
        A(f"s_cbranch_vccnz {lab}_poll")
        A.label(f"{lab}_done")
    def pst(self, idx):
        if not PT: return
        A = self.A
        A("s_waitcnt lgkmcnt(0)")
        A("s_memrealtime s[38:39]")
        A("s_waitcnt lgkmcnt(0)")
        A(f"v_writelane_b32 v253, s38, {idx}")
    def pst_flush(self):
        if not PT: return
        A = self.A
        make_srd(A, 36, 68, WS_DBG + 16 * MB, 1 * MB)
        A("s_lshl_b32 s57, s2, 3")
        A("s_add_u32 s57, s57, s40")
        A("s_lshl_b32 s57, s57, 6")
        A("v_lshlrev_b32 v2, 2, v1")
        A("s_mov_b64 exec, 0xffff")
        A("buffer_store_dword v253, v2, s[36:39], s57 offen")
        A("s_mov_b64 exec, -1")
    def pro_pre(self):
        A = self.A
        self.pst(0)
        A("s_load_dwordx2 s[4:5], s[0:1], 0")
        A("s_load_dwordx4 s[72:75], s[0:1], 80")
        A("s_load_dwordx2 s[6:7], s[0:1], 104")
        A("s_memrealtime s[70:71]")
        if int(os.environ.get("CPF", "1")):
            A("s_getpc_b64 s[76:77]")
            A.label(".Lpc0")
            A("s_mov_b32 s78, .Lcode_end-.Lpc0")
            A("s_mov_b32 s79, 0x00020000")
            A("s_lshr_b32 s3, s2, 3")
            A("s_mul_i32 s3, s3, 2304")
            A("v_lshlrev_b32 v2, 6, v0")
            A("v_cmp_gt_u32 vcc, 36, v0")
            A("s_and_b64 exec, exec, vcc")
            A("buffer_load_dword v254, v2, s[76:79], s3 offen")
            A("s_mov_b64 exec, -1")
    def pro_a(self):
        A = self.A
        W = K1.S_WAVE; M_ = K1.S_M; G_ = K1.S_G
        self.pst(1)
        make_srd(A, 76, 72, 0, 1024)
        make_srd(A, 80, 74, 0, 512 * 6144)
        make_srd(A, 84, 68, WS_MOD, 3072 * 4)
        A("s_movk_i32 s3, 6144")
        A("s_mov_b32 s59, s2")
        A("s_cmp_lt_u32 s2, 96")
        A("s_cbranch_scc1 .Lpa_mod")
        make_srd(A, 80, 96, 0, 512 * 3584)
        make_srd(A, 84, 68, WS_CS, 1792 * 4)
        A("s_movk_i32 s3, 3584")
        A("s_sub_u32 s59, s2, 96")
        A.label(".Lpa_mod")
        A("s_cmp_ge_u32 s2, 152")
        A("s_cbranch_scc1 .Lpa_nob")
        A("v_and_b32 v2, 3, v0")
        A("v_lshrrev_b32 v3, 2, v0")
        A("v_mul_lo_u32 v4, v3, s3")
        A("v_lshl_add_u32 v4, v2, 4, v4")
        A("v_lshlrev_b32 v5, 1, v3")
        A("s_lshl_b32 s58, s59, 6")
        A("s_lshl_b32 s3, s3, 7")
        for i in range(4):
            A(f"buffer_load_dwordx4 v[{72+4*i}:{75+4*i}], v4, s[80:83], s58 offen")
            if i < 3: A("s_add_u32 s58, s58, s3")
        for i in range(4):
            A(f"buffer_load_ushort v{64+i}, v5, s[76:79], 0 offen offset:{i*256}")
        A.label(".Lpa_nob")
        make_srd(A, 88, 4, 0, 2 * MB)
        A(f"s_lshl_b32 s3, s{M_}, 3")
        A(f"s_add_u32 s3, s3, s{G_}")
        A("s_lshl_b32 s3, s3, 3")
        A(f"s_add_u32 s3, s3, s{W}")
        A("s_lshl_b32 s3, s3, 10")
        A("buffer_load_dwordx4 v[68:71], v12, s[88:91], s3 offen")
        make_srd(A, 76, 6, 0, 256)
        A(f"s_or_b32 s58, s2, s{W}")
        A("s_cmp_lg_u32 s58, 0")
        A("s_cbranch_scc1 .Lpa_non")
        A("s_or_b32 s70, s70, 1")
        A("v_mov_b32 v2, s70")
        A("v_mov_b32 v3, s71")
        A("v_mov_b32 v4, 0")
        A("s_mov_b64 exec, 1")
        A("buffer_store_dwordx2 v[2:3], v4, s[76:79], 0 offen sc1")
        A("s_mov_b64 exec, -1")
        A.label(".Lpa_non")
        if WQE: self.wqpf()
    def wqpf(self):
        A = self.A; W = K1.S_WAVE
        SQ = 88 if WQE else K1.S_WQ
        if WQE: make_srd(A, 88, 64, 0, 4 * MB)
        A("v_lshrrev_b32 v2, 4, v0")
        A("v_and_b32 v3, 15, v0")
        A("v_lshlrev_b32 v3, 6, v3")
        A("v_lshl_add_u32 v2, v2, 13, v3")
        A("s_lshr_b32 s58, s2, 3")
        A("s_lshl_b32 s58, s58, 17")
        A("s_and_b32 s57, s2, 7")
        A("s_lshl_b32 s57, s57, 10")
        A("s_add_u32 s58, s58, s57")
        A(f"s_cmp_ge_u32 s{W}, 4")
        A("s_cbranch_scc1 .Lpa_nopf")
        A(f"buffer_load_dword v255, v2, s[{SQ}:{SQ+3}], s58 offen")
        A.label(".Lpa_nopf")
    def pro_b(self, nyoung, early, w7):
        A = self.A
        W = K1.S_WAVE; M_ = K1.S_M; G_ = K1.S_G; KM = f"s{K1.S_MASK}"
        NY = nyoung
        ACC = list(range(96, 104)); T = list(range(104, 112)); U = list(range(112, 120)); C = [64, 65, 66, 67]
        make_srd(A, 88, 68, WS_XN, 2 * MB)
        self.pst(2)
        A("s_waitcnt vmcnt(0)")
        self.pst(3)
        if not WQE: self.wqpf()
        A("s_cmp_ge_u32 s2, 152")
        A("s_cbranch_scc1 .Lpb_ln")
        A("s_cmp_lt_u32 s2, 96")
        A("s_cbranch_scc1 .Lpb_silu")
        for c in C: A(f"v_mov_b32 v{c}, 1.0")
        A("s_branch .Lpb_fma")
        A.label(".Lpb_silu")
        for i, c in enumerate(C): A(f"v_lshlrev_b32 v{c}, 16, v{c}")
        for i, c in enumerate(C): A(f"v_mul_f32 v{T[i]}, {fhex(-LOG2E)}, v{c}")
        for i, c in enumerate(C): A(f"v_exp_f32 v{T[i]}, v{T[i]}")
        for i, c in enumerate(C): A(f"v_add_f32 v{T[i]}, 1.0, v{T[i]}")
        for i, c in enumerate(C): A(f"v_rcp_f32 v{U[i]}, v{T[i]}")
        for i, c in enumerate(C): A(f"v_mul_f32 v{U[4+i]}, v{c}, v{U[i]}")
        for i, c in enumerate(C): A(f"v_fma_f32 v{T[i]}, -v{U[4+i]}, v{T[i]}, v{c}")
        for i, c in enumerate(C): A(f"v_fma_f32 v{c}, v{T[i]}, v{U[i]}, v{U[4+i]}")
        for i, c in enumerate(C): A(f"v_cvt_pk_bf16_f32 v{T[i]}, v{c}, v{c}")
        for i, c in enumerate(C): A(f"v_lshlrev_b32 v{c}, 16, v{T[i]}")
        A.label(".Lpb_fma")
        for i in range(4):
            for j in range(4):
                w = 72 + 4 * i + j
                A(f"v_lshlrev_b32 v{T[2*j]}, 16, v{w}")
                A(f"v_and_b32 v{T[2*j+1]}, {KM}, v{w}")
            for j in range(8):
                A(f"v_mul_f32 v{ACC[j]}, v{T[j]}, v{C[i]}" if i == 0 else f"v_fmac_f32 v{ACC[j]}, v{T[j]}, v{C[i]}")
        A("s_nop 1")
        for dpp in ("row_ror:8", "row_ror:4"):
            for v in ACC: A(f"v_add_f32_dpp v{v}, v{v}, v{v} {dpp} row_mask:0xf bank_mask:0xf")
        A("v_and_b32 v2, 3, v1")
        A("v_lshrrev_b32 v3, 4, v0")
        A("v_lshlrev_b32 v3, 7, v3")
        A("v_lshl_add_u32 v3, v2, 5, v3")
        A("v_and_b32 v2, 12, v1")
        A("v_cmp_eq_u32 vcc, 0, v2")
        A("s_and_saveexec_b64 s[58:59], vcc") if False else None
        A("s_mov_b64 s[4:5], exec")
        A("s_and_b64 exec, exec, vcc")
        A(f"ds_write_b128 v3, v[{ACC[0]}:{ACC[3]}]")
        A(f"ds_write_b128 v3, v[{ACC[4]}:{ACC[7]}] offset:16")
        A("s_mov_b64 exec, -1")
        A("s_waitcnt lgkmcnt(0)")
        A("s_barrier")
        self.pst(4)
        A(f"s_cmp_lg_u32 s{W}, 7")
        A("s_cbranch_scc1 .Lpb_ln")
        A("v_and_b32 v2, 31, v1")
        A("v_lshlrev_b32 v2, 2, v2")
        A("v_lshrrev_b32 v3, 5, v1")
        A("v_lshl_add_u32 v3, v3, 11, v2")
        for k in range(16): A(f"ds_read_b32 v{120+k}, v3 offset:{k*128}")
        for k in range(8):
            A(f"s_waitcnt lgkmcnt({14-2*k})")
            A(f"v_add_f32 v{120+2*k}, v{120+2*k}, v{121+2*k}")
        for k in range(4): A(f"v_add_f32 v{120+4*k}, v{120+4*k}, v{122+4*k}")
        A("v_add_f32 v120, v120, v124")
        A("v_add_f32 v128, v128, v132")
        A("v_add_f32 v120, v120, v128")
        A("v_mov_b32 v121, v120")
        A("s_nop 1")
        A("v_permlane32_swap_b32 v120, v121")
        A("s_nop 1")
        A("v_add_f32 v120, v120, v121")
        A("s_cmp_ge_u32 s2, 96")
        A("s_cbranch_scc1 .Lpb_nornd")
        round_bf16_1(A, 120, 121)
        A.label(".Lpb_nornd")
        A("s_lshl_b32 s58, s59, 7")
        A("s_mov_b32 exec_hi, 0")
        A("buffer_store_dword v120, v2, s[84:87], s58 offen sc1")
        A("s_mov_b64 exec, -1")
        A.label(".Lpb_ln")
        A("v_mov_b32 v2, 0")
        A(f"s_cmp_lg_u32 s{W}, 7")
        A("s_cbranch_scc1 .Lpb_ln2")
        A("s_mov_b64 exec, 1")
        A("buffer_load_dwordx2 v[136:137], v2, s[76:79], 0 offen sc1")
        A("s_mov_b64 exec, -1")
        A.label(".Lpb_ln2")
        self.pst(5)
        X = list(range(96, 104)); TT = list(range(104, 116))
        for j in range(4):
            A(f"v_lshlrev_b32 v{X[2*j]}, 16, v{68+j}")
            A(f"v_and_b32 v{X[2*j+1]}, {KM}, v{68+j}")
        ln_rows(A, [(X, TT)], KM)
        pack8(A, X, 68)
        A("buffer_store_dwordx4 v[68:71], v12, s[88:91], s3 offen sc1")
        make_srd(A, 80, 68, FP, 32 * 512)
        self.pst(6)
        A(f"s_cmp_lg_u32 s{W}, 7")
        A("s_cbranch_scc1 .Lpb_w")
        A("s_waitcnt vmcnt(1)")
        A("s_mov_b32 s57, 0")
        A.label(".Lpb_nl")
        A("v_readfirstlane_b32 s100, v136")
        A("v_readfirstlane_b32 s101, v137")
        A("s_add_u32 s57, s57, 1")
        A("s_cmp_lg_u32 s100, 0")
        A("s_cbranch_scc1 .Lpb_nd")
        A("s_cmp_lt_u32 s57, 0x40000")
        A("s_cbranch_scc0 .Lpb_nd")
        A("s_mov_b64 exec, 1")
        A("buffer_load_dwordx2 v[136:137], v2, s[76:79], 0 offen sc1")
        A("s_mov_b64 exec, -1")
        A("s_waitcnt vmcnt(0)")
        A("s_branch .Lpb_nl")
        A.label(".Lpb_nd")
        A("v_mov_b32 v136, s100")
        A("v_mov_b32 v137, s101")
        self.pst(7)
        A("s_cmp_ge_u32 s2, 152")
        A("s_cbranch_scc1 .Lpb_w")
        A("v_lshlrev_b32 v3, 9, v1")
        A("s_lshl_b32 s58, s2, 3")
        A("s_cmp_lt_u32 s2, 32")
        A("s_cbranch_scc1 .Lpb_crit")
        make_srd(A, 80, 68, FQ_, 32 * 1024)
        A("v_lshlrev_b32 v3, 10, v1")
        A("s_sub_u32 s58, s58, 256")
        A.label(".Lpb_crit")
        A("s_mov_b32 exec_hi, 0")
        A("buffer_store_dwordx2 v[136:137], v3, s[80:83], s58 offen sc1")
        A("s_mov_b64 exec, -1")
        make_srd(A, 80, 68, FP, 32 * 512)
        A.label(".Lpb_w")
        A("s_waitcnt vmcnt(1)") if False else None
        A("s_waitcnt vmcnt(0)")
        self.pst(8)
        A("s_barrier")
        self.pst(9)
        A(f"s_cmp_lg_u32 s{W}, 7")
        A("s_cbranch_scc1 .Lpb_early")
        A(f"s_lshl_b32 s58, s{M_}, 9")
        A(f"s_lshl_b32 s57, s{G_}, 3")
        A("s_add_u32 s57, s57, 256")
        A("v_mov_b32 v3, s57")
        A("s_mov_b64 exec, 1")
        A("buffer_store_dwordx2 v[136:137], v3, s[80:83], s58 offen sc1")
        A("s_mov_b64 exec, -1")
        A("v_min_u32 v3, 39, v1")
        A("v_lshlrev_b32 v3, 3, v3")
        sv99 = None
        w7()
        self.poll64(".Lplp", [(3, 80, "s58")], cnt=57)
        A("s_branch .Lpb_done")
        A.label(".Lpb_early")
        early()
        A.label(".Lpb_done")
        A("s_barrier")
        self.pst(10)
        self.pst_flush()
    def p2_a(self):
        A = self.A
        W = K1.S_WAVE; M_ = K1.S_M; G_ = K1.S_G
        SCR = K1.STG + 16384
        self.pst(1)
        make_srd(A, 76, 72, 0, 1024)
        make_srd(A, 80, 74, 0, 512 * 6144)
        make_srd(A, 84, 68, WS_MOD, 4 * MODP)
        make_srd(A, 88, 4, 0, 2 * MB)
        A("s_movk_i32 s3, 6144")
        A("s_and_b32 s4, s2, 15")
        A("s_lshr_b32 s5, s2, 4")
        A("s_lshl_b32 s57, s5, 8")
        A("s_cmp_lt_u32 s2, 64")
        A("s_cbranch_scc1 .Lp2a_dec")
        A("s_sub_u32 s4, s2, 64")
        A("s_and_b32 s5, s4, 1")
        A("s_lshr_b32 s4, s4, 1")
        A("s_lshl_b32 s57, s5, 9")
        A("s_add_u32 s4, s4, 16")
        A("s_cmp_lt_u32 s4, 48")
        A("s_cbranch_scc1 .Lp2a_dec")
        A("s_sub_u32 s4, s4, 48")
        make_srd(A, 80, 96, 0, 512 * 3584)
        make_srd(A, 84, 68, WS_CS, 2 * CSP)
        A("s_movk_i32 s3, 3584")
        A.label(".Lp2a_dec")
        A("s_lshr_b32 s58, s57, 1")
        A("s_mul_i32 s58, s58, s3")
        A("s_lshl_b32 s59, s4, 7")
        A("s_add_u32 s58, s58, s59")
        A("s_lshl_b32 s59, s4, 8")
        A(f"s_movk_i32 s4, {MODP}")
        A("s_cmp_eq_u32 s3, 3584")
        A(f"s_cselect_b32 s4, {CSP}, s4")
        A("s_mul_i32 s4, s4, s5")
        A("s_add_u32 s59, s59, s4")
        A("v_and_b32 v2, 7, v0")
        A("v_bfe_u32 v3, v0, 3, 5")
        A("v_mul_lo_u32 v10, v3, s3")
        A("v_lshl_add_u32 v10, v2, 4, v10")
        A("v_lshlrev_b32 v11, 1, v3")
        A("s_lshl_b32 s70, s3, 5") if False else None
        A("s_lshl_b32 s5, s3, 5")
        A(f"s_cmp_ge_u32 s{W}, 4")
        A("s_cbranch_scc1 .Lp2a_end")
        A("s_cmp_ge_u32 s2, 64")
        A("s_cbranch_scc1 .Lp2a_x")
        self.p2_tload(0)
        A.label(".Lp2a_x")
        A(f"s_lshl_b32 s3, s{M_}, 3")
        A(f"s_add_u32 s3, s3, s{G_}")
        A("s_lshl_b32 s3, s3, 2")
        A(f"s_add_u32 s3, s3, s{W}")
        A("s_lshl_b32 s3, s3, 11")
        A("buffer_load_dwordx4 v[88:91], v12, s[88:91], s3 offen")
        A("buffer_load_dwordx4 v[92:95], v12, s[88:91], s3 offen offset:1024")
        make_srd(A, 88, 6, 0, 256)
        A(f"s_or_b32 s4, s2, s{W}")
        A("s_cmp_lg_u32 s4, 0")
        A("s_cbranch_scc1 .Lp2a_non")
        A("s_or_b32 s70, s70, 1")
        A("v_mov_b32 v2, s70")
        A("v_mov_b32 v3, s71")
        A("v_mov_b32 v4, 0")
        A("s_mov_b64 exec, 1")
        A("buffer_store_dwordx2 v[2:3], v4, s[88:91], 0 offen sc1")
        A("s_mov_b64 exec, -1")
        A.label(".Lp2a_non")
        A(f"v_mov_b32 v2, {SCR + 8192}")
        A("v_mov_b32 v4, 0")
        A("v_mov_b32 v5, 0")
        A("ds_write_b64 v2, v[4:5]")
        A("s_branch .Lp2a_e2")
        A.label(".Lp2a_end")
        if TLW:
            A("v_lshlrev_b32 v2, 21, v1")
            A(f"v_add_u32 v2, {(2 << 20) - 128}, v2")
            make_srd(A, 88, 68, 0, 48 * MB if TLW >= 2 else 4 * MB)
            A(f"s_cmp_lg_u32 s{W}, 4")
            A("s_cbranch_scc1 .Lp2a_e2")
            A("buffer_load_dword v252, v2, s[88:91], 0 offen sc1")
            if TLW == 1:
                A(f"s_mov_b32 s4, {WS_FLAG}")
                make_srd(A, 88, 68, 0, WS_FLAG + 2 * MB)
                A("buffer_load_dword v252, v2, s[88:91], s4 offen sc1")
        A.label(".Lp2a_e2")
        A("s_mov_b32 s70, s57")
        A("s_mov_b32 s71, s58")
    def p2_tload(self, b):
        A = self.A
        wd = (72, 140)[b]; cd = (64, 156)[b]
        for i in range(4):
            A(f"buffer_load_dwordx4 v[{wd+4*i}:{wd+4*i+3}], v10, s[80:83], s58 offen")
            A("s_add_u32 s58, s58, s5")
        for i in range(4):
            A(f"buffer_load_ushort v{cd+i}, v11, s[76:79], s57 offen offset:{b*256 + i*64}")
    def lds_spin(self, lab, off, target):
        A = self.A
        A.label(lab)
        A(f"ds_read_b32 v3, v9 offset:{off}")
        A("s_waitcnt lgkmcnt(0)")
        A("v_readfirstlane_b32 s4, v3")
        A(f"s_cmp_lt_u32 s4, {target}")
        A(f"s_cbranch_scc1 {lab}")
    def lds_inc(self, off):
        A = self.A
        A("v_mov_b32 v3, 1")
        A("s_mov_b64 exec, 1")
        A(f"ds_add_u32 v9, v3 offset:{off}")
        A("s_mov_b64 exec, -1")
    def p2_gemv(self, sfx, nb, maybe_ones, col=3):
        A = self.A
        W = K1.S_WAVE; KM = f"s{K1.S_MASK}"; SCR = K1.STG + 16384
        ACC = list(range(96, 104)); T = list(range(104, 112)); U = list(range(112, 128))
        C = [64, 65, 66, 67] + ([156, 157, 158, 159] if nb == 2 else [])
        n = len(C)
        if maybe_ones:
            A("s_cmp_lt_u32 s2, 128")
            A(f"s_cbranch_scc1 .Lp2_silu{sfx}")
            for c in C: A(f"v_mov_b32 v{c}, 1.0")
            A(f"s_branch .Lp2_fma{sfx}")
            A.label(f".Lp2_silu{sfx}")
        for i, c in enumerate(C): A(f"v_lshlrev_b32 v{c}, 16, v{c}")
        for i, c in enumerate(C): A(f"v_mul_f32 v{T[i]}, {fhex(-LOG2E)}, v{c}")
        for i, c in enumerate(C): A(f"v_exp_f32 v{T[i]}, v{T[i]}")
        for i, c in enumerate(C): A(f"v_add_f32 v{T[i]}, 1.0, v{T[i]}")
        for i, c in enumerate(C): A(f"v_rcp_f32 v{U[i]}, v{T[i]}")
        for i, c in enumerate(C): A(f"v_mul_f32 v{U[8+i]}, v{c}, v{U[i]}")
        for i, c in enumerate(C): A(f"v_fma_f32 v{T[i]}, -v{U[8+i]}, v{T[i]}, v{c}")
        for i, c in enumerate(C): A(f"v_fma_f32 v{c}, v{T[i]}, v{U[i]}, v{U[8+i]}")
        for i, c in enumerate(C): A(f"v_cvt_pk_bf16_f32 v{T[i]}, v{c}, v{c}")
        for i, c in enumerate(C): A(f"v_lshlrev_b32 v{c}, 16, v{T[i]}")
        if maybe_ones: A.label(f".Lp2_fma{sfx}")
        for i in range(n):
            for j in range(4):
                w = (72, 140)[i >> 2] + 4 * (i & 3) + j
                A(f"v_lshlrev_b32 v{T[2*j]}, 16, v{w}")
                A(f"v_and_b32 v{T[2*j+1]}, {KM}, v{w}")
            for j in range(8):
                A(f"v_mul_f32 v{ACC[j]}, v{T[j]}, v{C[i]}" if i == 0 else f"v_fmac_f32 v{ACC[j]}, v{T[j]}, v{C[i]}")
        A("v_and_b32 v2, 7, v1")
        A("v_bfe_u32 v3, v0, 4, 4")
        for v in ACC: A(f"v_add_f32_dpp v{v}, v{v}, v{v} row_ror:8 row_mask:0xf bank_mask:0xf")
        A("v_lshlrev_b32 v3, 8, v3")
        A("v_lshl_add_u32 v3, v2, 5, v3")
        A(f"v_add_u32 v3, {SCR}, v3")
        A("v_and_b32 v2, 8, v1")
        A("v_cmp_eq_u32 vcc, 0, v2")
        A("s_and_b64 exec, exec, vcc")
        A(f"ds_write_b128 v3, v[{ACC[0]}:{ACC[3]}]")
        A(f"ds_write_b128 v3, v[{ACC[4]}:{ACC[7]}] offset:16")
        A("s_mov_b64 exec, -1")
        A("s_waitcnt lgkmcnt(0)")
        self.lds_inc(0)
        A(f"s_cmp_lg_u32 s{W}, {col}")
        A(f"s_cbranch_scc1 .Lp2_gd{sfx}")
        self.lds_spin(f".Lp2_sp{sfx}", 0, 4)
        A("v_lshlrev_b32 v2, 2, v1")
        A(f"v_add_u32 v3, {SCR}, v2")
        for k in range(16): A(f"ds_read_b32 v{104+k}, v3 offset:{k*256}")
        for k in range(8):
            A(f"s_waitcnt lgkmcnt({14-2*k})")
            A(f"v_add_f32 v{104+2*k}, v{104+2*k}, v{105+2*k}")
        for k in range(4): A(f"v_add_f32 v{104+4*k}, v{104+4*k}, v{106+4*k}")
        A("v_add_f32 v104, v104, v108")
        A("v_add_f32 v112, v112, v116")
        A("v_add_f32 v68, v104, v112")
        A("buffer_store_dword v68, v2, s[84:87], s59 offen sc1")
        A.label(f".Lp2_gd{sfx}")
    def p2_ln(self):
        A = self.A; KM = f"s{K1.S_MASK}"
        X0 = list(range(96, 104)); X1 = list(range(120, 128)); T0 = list(range(104, 116)); T1 = list(range(128, 140))
        for r, X in enumerate((X0, X1)):
            for j in range(4):
                A(f"v_lshlrev_b32 v{X[2*j]}, 16, v{88+4*r+j}")
                A(f"v_and_b32 v{X[2*j+1]}, {KM}, v{88+4*r+j}")
        ln_rows(A, [(X0, T0), (X1, T1)], KM)
        pack8(A, X0, 88); pack8(A, X1, 92)
        A(f"buffer_store_dwordx4 v[88:91], v12, s[{K1.S_XN}:{K1.S_XN+3}], s3 offen sc1")
        A(f"buffer_store_dwordx4 v[92:95], v12, s[{K1.S_XN}:{K1.S_XN+3}], s3 offen offset:1024 sc1")
    def p2_nonce(self, sfx):
        A = self.A
        A("s_mov_b32 s4, 0")
        A.label(f".Lp2_nl{sfx}")
        A("v_readfirstlane_b32 s100, v70")
        A("v_readfirstlane_b32 s101, v71")
        A("s_add_u32 s4, s4, 1")
        A("s_cmp_lg_u32 s100, 0")
        A(f"s_cbranch_scc1 .Lp2_nd{sfx}")
        A("s_cmp_lt_u32 s4, 0x40000")
        A(f"s_cbranch_scc0 .Lp2_nd{sfx}")
        self.p2_nload()
        A("s_waitcnt vmcnt(0)")
        A(f"s_branch .Lp2_nl{sfx}")
        A.label(f".Lp2_nd{sfx}")
        A("v_mov_b32 v70, s100")
        A("v_mov_b32 v71, s101")
    def p2_nload(self):
        A = self.A
        A("v_mov_b32 v2, 0")
        A("s_mov_b64 exec, 1")
        A("buffer_load_dwordx2 v[70:71], v2, s[88:91], 0 offen sc1")
        A("s_mov_b64 exec, -1")
    def p2_pubtask(self, region, base):
        A = self.A
        make_srd(A, 76, 68, region, 32 * 1024)
        A("v_lshlrev_b32 v3, 10, v1")
        A(f"s_sub_u32 s4, s2, {base}")
        A("s_lshl_b32 s4, s4, 3")
        A("s_mov_b32 exec_hi, 0")
        A("buffer_store_dwordx2 v[70:71], v3, s[76:79], s4 offen sc1")
        A("s_mov_b64 exec, -1")
    def p2_pubxn(self, sfx):
        A = self.A
        self.lds_spin(f".Lp2_sx{sfx}", 4, 3)
        make_srd(A, 76, 68, FP, 32 * 1024)
        A(f"s_lshl_b32 s4, s{K1.S_M}, 10")
        A(f"s_lshl_b32 s5, s{K1.S_G}, 3")
        A("s_add_u32 s5, s5, 512")
        A("v_mov_b32 v3, s5")
        A("s_mov_b64 exec, 1")
        A("buffer_store_dwordx2 v[70:71], v3, s[76:79], s4 offen sc1")
        A("s_mov_b64 exec, -1")
    def p2_b(self, loader, cfix, xn_loads):
        A = self.A
        W = K1.S_WAVE; M_ = K1.S_M; KM = f"s{K1.S_MASK}"; SCR = K1.STG + 16384
        A(f"v_mov_b32 v9, {SCR + 8192}")
        A("s_waitcnt lgkmcnt(0)")
        A("s_barrier")
        self.pst(2)
        A(f"s_cmp_lt_u32 s{W}, 4")
        A("s_cbranch_scc1 .Lp2_c")
        A("s_mov_b32 s57, s70")
        A("s_mov_b32 s58, s71")
        A("s_sub_u32 s4, s2, 64")
        A("s_cmp_ge_u32 s4, 120")
        A("s_cbranch_scc1 .Lp2_l1")
        self.p2_tload(0); self.p2_tload(1)
        A.label(".Lp2_l1")
        W128 = int(os.environ.get("W128", "0"))
        A("v_and_b32 v4, 255, v0")
        A(f"v_lshrrev_b32 v2, {3 if W128 else 4}, v4")
        A(f"v_and_b32 v3, {7 if W128 else 15}, v4")
        A(f"v_lshlrev_b32 v3, {7 if W128 else 6}, v3")
        A("v_lshl_add_u32 v2, v2, 13, v3")
        A("s_lshr_b32 s58, s2, 3")
        A("s_lshl_b32 s58, s58, 17")
        A("s_and_b32 s57, s2, 7")
        A("s_lshl_b32 s57, s57, 10")
        A("s_add_u32 s58, s58, s57")
        if W128:
            A(f"s_cmp_ge_u32 s{W}, 6")
            A("s_cbranch_scc1 .Lp2_l2")
        A(f"buffer_load_dword v255, v2, s[{K1.S_WQ}:{K1.S_WQ+3}], s58 offen")
        if W128: A.label(".Lp2_l2")
        loader()
        A("s_sub_u32 s4, s2, 64")
        A("s_cmp_ge_u32 s4, 120")
        A("s_cbranch_scc1 .Lp2_X")
        A(f"s_waitcnt vmcnt({4 * int(os.environ.get('LDE', '2'))})")
        self.p2_gemv("b", 2, True, 7)
        A("s_branch .Lp2_X")
        A.label(".Lp2_c")
        cfix()
        A("s_waitcnt vmcnt(0)")
        self.pst(3)
        A("s_cmp_ge_u32 s2, 64")
        A("s_cbranch_scc1 .Lp2_a0")
        self.p2_gemv("a", 1, False)
        A.label(".Lp2_a0")
        self.pst(4)
        A(f"s_cmp_lg_u32 s{W}, 3")
        A("s_cbranch_scc1 .Lp2_a1")
        self.p2_nload()
        A.label(".Lp2_a1")
        self.p2_ln()
        self.pst(6)
        A(f"s_cmp_lg_u32 s{W}, 3")
        A("s_cbranch_scc1 .Lp2_ack")
        A("s_waitcnt vmcnt(2)")
        self.p2_nonce("a")
        A("s_cmp_ge_u32 s2, 64")
        A("s_cbranch_scc1 .Lp2_a2")
        self.p2_pubtask(FP, 0)
        self.pst(7)
        A("s_waitcnt vmcnt(1)")
        A("s_branch .Lp2_a3")
        A.label(".Lp2_a2")
        A("s_waitcnt vmcnt(0)")
        A.label(".Lp2_a3")
        self.p2_pubxn("a")
        A("s_branch .Lp2_col")
        A.label(".Lp2_ack")
        A("s_waitcnt vmcnt(0)")
        self.lds_inc(4)
        A("s_branch .Lp2_X")
        A.label(".Lp2_col")
        make_srd(A, 76, 68, FP, 32 * 1024)
        A(f"s_lshl_b32 s5, s{M_}, 10")
        A("v_and_b32 v3, 7, v1")
        A("v_lshlrev_b32 v3, 3, v3")
        A("v_add_u32 v3, 512, v3")
        A("ds_write_b64 v9, v[70:71] offset:16")
        def parts():
            make_srd(A, 84, 68, WS_MOD, 4 * MODP)
            for i in range(4):
                for p in range(4):
                    A(f"s_movk_i32 s4, {p * MODP}") if p * MODP < 32768 else A(f"s_mov_b32 s4, {p * MODP}")
                    A(f"buffer_load_dwordx4 v[{72+16*i+4*p}:{75+16*i+4*p}], v12, s[84:87], s4 offen offset:{i*1024}")
        if MP:
            A("v_lshlrev_b32 v4, 3, v1")
            self.poll64(".Lplx", [(3, 76, "s5"), (4, 76, "s5")], cnt=4)
            parts()
        else:
            self.poll64(".Lplx", [(3, 76, "s5")], cnt=4)
        A.label(".Lp2_X")
        self.pst(8)
        A("s_waitcnt lgkmcnt(0)")
        A("s_barrier")
        self.pst(9)
        xn_loads()
        A(f"s_cmp_lg_u32 s{W}, 3")
        A("s_cbranch_scc1 .Lp2_Y")
        if not MP:
            make_srd(A, 76, 68, FP, 32 * 1024)
            A(f"s_lshl_b32 s5, s{M_}, 10")
            A("v_lshlrev_b32 v3, 3, v1")
            self.poll64(".Lplm", [(3, 76, "s5")], cnt=4)
            parts()
        A(f"v_add_u32 v3, {SCR + 4096}, v12")
        for i in range(4):
            b = 72 + 16 * i
            A(f"s_waitcnt vmcnt({12 - 4*i + (8 if MP else 0)})")
            pk(A, "v_pk_add_f32", b, b, b + 4); pk(A, "v_pk_add_f32", b + 2, b + 2, b + 6)
            pk(A, "v_pk_add_f32", b + 8, b + 8, b + 12); pk(A, "v_pk_add_f32", b + 10, b + 10, b + 14)
            pk(A, "v_pk_add_f32", b, b, b + 8); pk(A, "v_pk_add_f32", b + 2, b + 2, b + 10)
            round_multi(A, [b, b + 1, b + 2, b + 3], [b + 4, b + 5], KM)
            if i >= 2:
                for e in range(4): A(f"v_add_f32 v{b+e}, 1.0, v{b+e}")
                round_multi(A, [b, b + 1, b + 2, b + 3], [b + 4, b + 5], KM)
            A(f"ds_write_b128 v3, v[{b}:{b+3}] offset:{i*1024}")
        A("s_waitcnt lgkmcnt(0)")
        A.label(".Lp2_Y")
        A("s_barrier")
        self.pst(10)
        self.pst_flush()
        A("ds_read_b64 v[2:3], v9 offset:16")
        A("s_waitcnt lgkmcnt(0)")
        A("v_readfirstlane_b32 s100, v2")
        A("v_readfirstlane_b32 s101, v3")
    def p2_c(self):
        A = self.A
        A(f"s_cmp_lg_u32 s{K1.S_WAVE}, 7")
        A("s_cbranch_scc1 .Lp2c_end")
        A("s_sub_u32 s4, s2, 64")
        A("s_cmp_ge_u32 s4, 120")
        A("s_cbranch_scc1 .Lp2c_end")
        A("v_mov_b32 v70, s100")
        A("v_mov_b32 v71, s101")
        A("s_waitcnt vmcnt(0)")
        self.p2_pubtask(FQ_, 64)
        A.label(".Lp2c_end")
    def w_setup(self, widx, K, rowbytes, woff_code):
        A = self.A
        make_srd(A, S_W, P_W + 2 * widx, 0, K * rowbytes)
        A(f"v_lshrrev_b32 v2, 3, v{L}")
        A(f"v_and_b32 v3, 7, v{L}")
        A(f"v_lshlrev_b32 v{V_W}, 1, v2")
        A(f"v_and_b32 v{V_W}, 4, v{V_W}")
        A(f"v_xor_b32 v3, v3, v{V_W}")
        A("v_lshlrev_b32 v3, 4, v3")
        A(f"v_mul_u32_u24 v2, {rowbytes}, v2") if rowbytes < 64 else None
        A(f"s_movk_i32 s{S_WOFF}, {rowbytes}")
        A(f"v_mul_lo_u32 v2, v2, s{S_WOFF}")
        A(f"v_add_u32 v{V_W}, v2, v3")
        woff_code()
        self.wrb = rowbytes
    def dmaW(self, st, ldsoff, tag="w"):
        A = self.A
        for i in range(2):
            A(f"s_add_u32 m0, s{S_RB}, {ldsoff + i * 1024}")
            A("s_nop 0")
            A(f"buffer_load_dwordx4 v{V_W}, s[{S_W}:{S_W+3}], s{S_WOFF} offen lds")
            self.vm.issue((tag, st))
            A(f"s_add_u32 s{S_WOFF}, s{S_WOFF}, {8 * self.wrb}")
    def pf_g64(self, widx, K, WB, DW, lo=0, hi=99, rot=0):
        A = self.A
        def woff():
            A(f"s_mul_i32 s{S_WOFF}, s{S_WAVE}, {(K // 4) * 1024}")
            A(f"s_lshl_b32 s{S_TMP+11}, s{S_J}, 7")
            A(f"s_add_u32 s{S_WOFF}, s{S_WOFF}, s{S_TMP+11}")
        if lo == 0: self.w_setup(widx, K, 1024, woff)
        self.wrb = 1024
        for st in range(lo, min(DW, hi)): self.dmaW(st, WB + ((st + rot) % DW) * 2048, "wn" if PFE == 3 else "w")
    def pf_k5(self, lo=0, hi=99):
        A = self.A
        def woff():
            A(f"s_min_u32 s{S_WOFF}, s{S_J}, 6")
            A(f"s_lshl_b32 s{S_WOFF}, s{S_WOFF}, 9")
            A(f"s_lshl_b32 s{S_TMP+11}, s{S_WAVE}, 7")
            A(f"s_add_u32 s{S_WOFF}, s{S_WOFF}, s{S_TMP+11}")
        if lo == 0: self.w_setup(2, 512, 3584, woff)
        self.wrb = 3584
        for st in range(lo, min(K5D, hi)): self.dmaW(st, K5RB + st * 2048, "wn" if PFE == 3 else "w")
    def l2pf(self, widx, size):
        A = self.A
        per = size // 32
        A("s_lshr_b32 s78, s2, 3")
        A(f"s_mul_i32 s78, s78, {per}")
        make_srd(A, 80, P_W + 2 * widx, "s78", per)
        A("v_and_b32 v2, 255, v0")
        A("v_lshlrev_b32 v2, 7, v2")
        n = (per + 32767) // 32768
        for i in range(n):
            A(f"s_mov_b32 s78, {i * 32768}")
            A("buffer_load_dword v3, v2, s[80:83], s78 offen")
        return n
    def persist(self):
        A = self.A
        A(f"s_load_dwordx2 s[{P_X}:{P_X+1}], s[0:1], 0")
        A(f"s_load_dwordx2 s[{P_OUT}:{P_OUT+1}], s[0:1], 96")
        A(f"s_load_dwordx2 s[{P_WS}:{P_WS+1}], s[0:1], 112")
        A(f"s_load_dwordx8 s[{P_W}:{P_W+7}], s[0:1], 48")
        A("v_and_b32 v1, 63, v0")
        A("v_lshrrev_b32 v2, 6, v0")
        A("s_nop 0")
        A(f"v_readfirstlane_b32 s{S_WAVE}, v2")
        A(f"s_and_b32 s{S_M}, s2, 31")
        A(f"s_lshr_b32 s{S_J}, s2, 5")
        A(f"s_mov_b32 s{S_MASK}, 0xffff0000")
        A(f"s_mul_i32 s{S_RB}, s{S_WAVE}, {RG}")
        A("s_waitcnt lgkmcnt(0)")
    def kr(self):
        A = self.A; vm = self.vm
        S_X = 8; S_MOD = 12; S_PT = 16; S_X2 = 20; S_H = 24; S_HN = 28; S_H1 = 36
        PR = 64; XR = 16; GA = 24; CB = 32; SB = 40
        A("v_lshlrev_b32 v9, 4, v1")
        A("v_lshlrev_b32 v10, 5, v1")
        A(f"s_lshl_b32 s3, s{S_M}, 3")
        A(f"s_add_u32 s3, s3, s{S_J}")
        A("s_lshl_b32 s3, s3, 3")
        A(f"s_add_u32 s3, s3, s{S_WAVE}")
        A("s_lshl_b32 s3, s3, 10")
        make_srd(A, S_X, P_X, 0, 2 * MB)
        make_srd(A, S_MOD, P_WS, WS_MOD, 4 * MODP)
        A(f"buffer_load_dwordx4 v[{XR}:{XR+3}], v9, s[{S_X}:{S_X+3}], s3 offen"); vm.issue("x")
        def modloads():
            for part in range(2 if V2 else 1):
                for (dst, idx) in ((CB, 4), (GA, 2), (SB, 3)):
                    d = dst + 88 * part
                    A(f"s_movk_i32 s{S_TMP}, {idx*2048 + part*MODP}")
                    A(f"buffer_load_dwordx4 v[{d}:{d+3}], v10, s[{S_MOD}:{S_MOD+3}], s{S_TMP} offen"); vm.issue("x")
                    A(f"buffer_load_dwordx4 v[{d+4}:{d+7}], v10, s[{S_MOD}:{S_MOD+3}], s{S_TMP} offen offset:16"); vm.issue("x")
        modloads()
        make_srd(A, S_PT, P_WS, WS_PART, 8 * 2048 * 512 * 2)
        make_srd(A, S_X2, P_WS, WS_X2, 2 * MB)
        make_srd(A, S_H, P_WS, WS_H, 2 * MB)
        make_srd(A, S_HN, P_WS, WS_HN, 2 * MB)
        make_srd(A, S_H1, P_WS, WS_H1, 2052 * 1024)
        A(f"s_cmp_ge_u32 s{S_WAVE}, 4")
        A("s_cbranch_scc1 .Lkr_nz2")
        A(f"s_lshr_b32 s{S_TMP}, s{S_WAVE}, 1")
        A(f"s_mul_i32 s{S_TMP}, s{S_TMP}, 31")
        A(f"s_cmp_lg_u32 s2, s{S_TMP}")
        A("s_cbranch_scc1 .Lkr_nz")
        A(f"s_lshl_b32 s{S_TMP}, s{S_WAVE}, 10")
        A(f"s_add_u32 s{S_TMP+1}, s{S_TMP}, {2048*1024}")
        A(f"s_cmp_lt_u32 s{S_WAVE}, 2")
        A(f"s_cselect_b32 s{S_TMP}, s{S_TMP}, s{S_TMP+1}")
        for j in range(4): A(f"v_mov_b32 v{12+j}, 0")
        A(f"buffer_store_dwordx4 v[12:15], v9, s[{S_H1}:{S_H1+3}], s{S_TMP} offen sc1")
        A.label(".Lkr_nz")
        PFW1 = int(os.environ.get("PFW1", "1"))
        sv = list(vm.ops)
        if PFW1 == 1: self.pf_g64(0, 512, 24576, 8)
        vm.ops = sv
        A.label(".Lkr_nz2")
        self.poll(0)
        A("s_barrier")
        self.stamp(4)
        PL = int(os.environ.get("PL", "1"))
        if PL:
            A(f"s_mul_i32 s{S_TMP}, s{S_M}, {7 * 65536}")
            A(f"s_add_u32 s{S_TMP}, s{S_TMP}, s3")
        else: A(f"s_mov_b32 s{S_TMP}, s3")
        for g in range(8):
            A(f"buffer_load_dwordx4 v[{PR+4*g}:{PR+4*g+3}], v9, s[{S_PT}:{S_PT+3}], s{S_TMP} offen"); vm.issue(("p", g))
            if g < 7: A(f"s_add_u32 s{S_TMP}, s{S_TMP}, {65536 if PL else 2048*512*2}")
        X = list(range(48, 56)); T = list(range(PR, PR + 12)); XU = list(range(96, 104))
        if PFW1 == 3:
            def woff():
                A(f"s_and_b32 s{S_TMP+9}, s{S_WAVE}, 3")
                A(f"s_lshr_b32 s{S_TMP+8}, s{S_WAVE}, 2")
                A(f"s_lshl_b32 s{S_WOFF}, s{S_TMP+9}, 17")
                A(f"s_lshl_b32 s{S_TMP+11}, s{S_TMP+8}, 16")
                A(f"s_add_u32 s{S_WOFF}, s{S_WOFF}, s{S_TMP+11}")
                A(f"s_lshl_b32 s{S_TMP+11}, s{S_J}, 7")
                A(f"s_add_u32 s{S_WOFF}, s{S_WOFF}, s{S_TMP+11}")
                A(f"s_mov_b32 s{S_TMP+7}, s{S_RB}")
                A(f"s_mul_i32 s{S_RB}, s{S_TMP+9}, {RG}")
                A(f"s_lshl_b32 s{S_TMP+8}, s{S_TMP+8}, 13")
                A(f"s_add_u32 s{S_RB}, s{S_RB}, s{S_TMP+8}")
            self.w_setup(0, 512, 1024, woff)
            for st in range(4): self.dmaW(st, 24576 + st * 2048, "wn")
            A(f"s_mov_b32 s{S_RB}, s{S_TMP+7}")
        if int(os.environ.get("KRX", "0")):
            vm.wait(("p", 0)); self.stamp(25)
            vm.wait(("p", 7)); self.stamp(26)
        vm.wait("x")
        if V2:
            for j in range(0, 24, 2): pk(A, "v_pk_add_f32", GA + j, GA + j, GA + 88 + j)
            for q in range(3): round_multi(A, list(range(GA + 8*q, GA + 8*q + 8)), [56, 57, 58, 59], SM)
        for j in range(8): A(f"v_add_f32 v{CB+j}, 1.0, v{CB+j}")
        round_multi(A, list(range(CB, CB + 8)), [56, 57, 58, 59], SM)
        for j in range(4):
            A(f"v_lshlrev_b32 v{XU[2*j]}, 16, v{XR+j}")
            A(f"v_and_b32 v{XU[2*j+1]}, {SM}, v{XR+j}")
        for g in range(8):
            vm.wait(("p", g))
            if g == 0:
                for j in range(4):
                    A(f"v_lshlrev_b32 v{X[2*j]}, 16, v{PR+j}")
                    A(f"v_and_b32 v{X[2*j+1]}, {SM}, v{PR+j}")
            else:
                for j in range(4):
                    p = PR + 4 * g + j
                    A(f"v_lshlrev_b32 v{PR+j}, 16, v{p}")
                    A(f"v_and_b32 v{p}, {SM}, v{p}")
                for j in range(4):
                    p = PR + 4 * g + j
                    A(f"v_add_f32 v{X[2*j]}, v{X[2*j]}, v{PR+j}")
                    A(f"v_add_f32 v{X[2*j+1]}, v{X[2*j+1]}, v{p}")
        self.stamp(23)
        if PFW1 == 2:
            A(f"s_cmp_ge_u32 s{S_WAVE}, 4")
            A("s_cbranch_scc1 .Lkr_nz3")
            self.pf_g64(0, 512, 24576, 8)
            A.label(".Lkr_nz3")
        round_multi(A, X, T[5:9], SM)
        for j in range(8): A(f"v_mul_f32 v{X[j]}, v{X[j]}, v{GA+j}")
        round_multi(A, X, T[5:9], SM)
        for j in range(8): A(f"v_add_f32 v{X[j]}, v{X[j]}, v{XU[j]}")
        pack8(A, X, XR)
        A(f"buffer_store_dwordx4 v[{XR}:{XR+3}], v9, s[{S_X2}:{S_X2+3}], s3 offen sc1")
        for j in range(4):
            A(f"v_lshlrev_b32 v{X[2*j]}, 16, v{XR+j}")
            A(f"v_and_b32 v{X[2*j+1]}, {SM}, v{XR+j}")
        ln_rows(A, [(X, T)], SM)
        for j in range(8): A(f"v_mul_f32 v{X[j]}, v{X[j]}, v{CB+j}")
        round_multi(A, X, T[5:9], SM)
        for j in range(8): A(f"v_add_f32 v{X[j]}, v{X[j]}, v{SB+j}")
        pack8(A, X, 80)
        A(f"buffer_store_dwordx4 v[80:83], v9, s[{S_H}:{S_H+3}], s3 offen sc1")
        self.stamp(24)
        for j in range(4):
            A(f"v_lshlrev_b32 v{X[2*j]}, 16, v{80+j}")
            A(f"v_and_b32 v{X[2*j+1]}, {SM}, v{80+j}")
        ln_rows(A, [(X, T)], SM)
        pack8(A, X, 84)
        A(f"buffer_store_dwordx4 v[84:87], v9, s[{S_HN}:{S_HN+3}], s3 offen sc1")
    def g64(self, lab, stage, K, a_off, a_size, a_rb, epi, WB, DW, nbr, next_pf, own_pf=None, rot=0, nsched=None, l2=None):
        A = self.A; vm = self.vm; lg = self.lg
        S_G = 8; S_X1 = 16; S_X2 = 20; S_MOD = 24; S_O = 28; S_ST = 36
        KW = K // 4; NCH = KW // 64; NS = NCH * 4; DG = 3
        VG = [4, 5]; AA = 16; BA = 18
        X1 = 24; X2 = 32; GB = 40
        V_PW = 48; V_PR = 49; V_GA = 51; V_SA = 52; VC = (12, 14, 54)
        ACC = 64; FR = 128
        NBG = int(os.environ.get('NBG', '3'))
        def tail_setup():
            A(f"v_lshrrev_b32 v10, 3, v{L}")
            A(f"v_and_b32 v11, 7, v{L}")
            A(f"v_mul_u32_u24 v{V_PR}, {RS}, v10")
            A(f"v_lshl_add_u32 v{V_PR}, v11, 5, v{V_PR}")
            A(f"s_mul_i32 s{S_TMP+3}, s{S_WAVE}, {8*RS}")
            A(f"v_add_u32 v{V_PR}, s{S_TMP+3}, v{V_PR}")
            A(f"v_add_u32 v{V_PR+1}, {2*RG}, v{V_PR}")
            A(f"v_lshlrev_b32 v{V_GA}, 4, v11")
            A(f"v_lshl_add_u32 v{V_GA}, v10, 10, v{V_GA}")
            A(f"s_lshl_b32 s{S_TMP+2}, s{S_M}, 16")
            A(f"s_lshl_b32 s{S_TMP+3}, s{S_WAVE}, 13")
            A(f"s_add_u32 s{S_TMP+2}, s{S_TMP+2}, s{S_TMP+3}")
            A(f"s_lshl_b32 s{S_TMP+3}, s{S_J}, 7")
            A(f"s_add_u32 s{S_TMP+2}, s{S_TMP+2}, s{S_TMP+3}")
            if epi == "final":
                A(f"v_lshlrev_b32 v{V_SA}, 5, v11")
                make_srd(A, S_X1, P_WS, WS_X1, 2 * MB)
                make_srd(A, S_X2, P_WS, WS_X2, 2 * MB)
                make_srd(A, S_MOD, P_WS, WS_MOD, 4 * MODP)
                make_srd(A, S_O, P_OUT, 0, 2 * MB)
                A(f"buffer_load_dwordx4 v[{X1}:{X1+3}], v{V_GA}, s[{S_X1}:{S_X1+3}], s{S_TMP+2} offen"); vm.issue("e")
                A(f"buffer_load_dwordx4 v[{X2}:{X2+3}], v{V_GA}, s[{S_X2}:{S_X2+3}], s{S_TMP+2} offen"); vm.issue("e")
                A(f"s_lshl_b32 s{S_TMP+3}, s{S_J}, 8")
                A(f"s_add_u32 s{S_TMP+3}, s{S_TMP+3}, {5*2048}")
                for h4 in range(2):
                    A(f"buffer_load_dwordx4 v[{GB+4*h4}:{GB+4*h4+3}], v{V_SA}, s[{S_MOD}:{S_MOD+3}], s{S_TMP+3} offen offset:{h4*16}"); vm.issue("e")
                if V2:
                    A(f"s_add_u32 s{S_TMP+3}, s{S_TMP+3}, {MODP}")
                    for h4 in range(2):
                        A(f"buffer_load_dwordx4 v[{180+4*h4}:{183+4*h4}], v{V_SA}, s[{S_MOD}:{S_MOD+3}], s{S_TMP+3} offen offset:{h4*16}"); vm.issue("e")
            elif epi == "res":
                A(f"v_lshlrev_b32 v{V_SA}, 3, v10")
                A(f"s_lshl_b32 s{S_TMP+6}, s{S_M}, 9")
                A(f"s_lshl_b32 s{S_TMP+3}, s{S_WAVE}, 6")
                A(f"s_add_u32 s{S_TMP+6}, s{S_TMP+6}, s{S_TMP+3}")
                A(f"s_lshl_b32 s{S_TMP+3}, s{S_J}, 14")
                A(f"s_add_u32 s{S_TMP+6}, s{S_TMP+6}, s{S_TMP+3}")
                make_srd(A, S_X1, P_WS, WS_H, 2 * MB)
                make_srd(A, S_O, P_WS, WS_X1, 2 * MB)
                make_srd(A, S_ST, P_WS, WS_STAT, 2048 * 128)
                A(f"buffer_load_dwordx4 v[{X1}:{X1+3}], v{V_GA}, s[{S_X1}:{S_X1+3}], s{S_TMP+2} offen"); vm.issue("e")
            else:
                A(f"v_mov_b32 v{VC[0]}, {fhex(GK1)}")
                A(f"v_mov_b32 v{VC[1]}, {fhex(GK0)}")
                A(f"v_mov_b32 v{VC[2]}, 1.0")
                make_srd(A, S_O, P_WS, WS_H1 + 2048, 2 * MB)
        A(f"s_cmp_ge_u32 s{S_WAVE}, 4")
        A(f"s_cbranch_scc1 .L{lab}_help")
        if own_pf and PFE == 2: own_pf(NE, 99)
        A(f"v_lshrrev_b32 v7, 3, v{L}")
        A(f"v_and_b32 v8, 7, v{L}")
        A("v_lshrrev_b32 v9, 1, v7")
        A("v_xor_b32 v9, v8, v9")
        A(f"s_movk_i32 s{S_TMP}, {a_rb}")
        A(f"v_mul_lo_u32 v10, v7, s{S_TMP}")
        A(f"v_lshl_add_u32 v{VG[0]}, v9, 4, v10")
        A("v_xor_b32 v9, 4, v9")
        A(f"v_lshl_add_u32 v{VG[1]}, v9, 4, v10")
        A(f"s_mul_i32 s{S_GOFF}, s{S_M}, {64*a_rb}")
        A(f"s_mul_i32 s{S_TMP}, s{S_WAVE}, {KW*2}")
        A(f"s_add_u32 s{S_GOFF}, s{S_GOFF}, s{S_TMP}")
        if epi == "res":
            A(f"s_lshl_b32 s{S_TMP}, s{S_WAVE}, 2")
            A(f"s_lshr_b32 s{S_TMP+1}, 0x4031, s{S_TMP}")
            A(f"s_and_b32 s{S_TMP+1}, s{S_TMP+1}, 15")
            A(f"s_lshl_b32 s{S_TMP+1}, s{S_TMP+1}, 10")
            A(f"s_add_u32 s{S_GOFF}, s{S_GOFF}, s{S_TMP+1}")
        make_srd(A, S_G, P_WS, a_off, a_size)
        A(f"v_lshrrev_b32 v7, 5, v{L}")
        A(f"v_bfe_u32 v8, v{L}, 4, 1")
        A(f"v_bfe_u32 v9, v{L}, 2, 2")
        A(f"v_and_b32 v10, 1, v{L}")
        A(f"v_bfe_u32 v11, v{L}, 1, 1")
        A("v_lshl_or_b32 v10, v10, 1, v11")
        A("v_lshlrev_b32 v10, 3, v10")
        A("v_lshl_add_u32 v10, v8, 5, v10")
        A("v_lshl_add_u32 v11, v7, 3, v9")
        A("v_lshrrev_b32 v12, 1, v9")
        for nb in range(2):
            A(f"v_xor_b32 v13, {nb}, v12")
            A("v_lshl_add_u32 v13, v13, 6, v10")
            A("v_lshl_add_u32 v13, v11, 7, v13")
            A(f"v_add_u32 v{AA+nb}, s{S_RB}, v13")
        A(f"v_and_b32 v8, 31, v{L}")
        A("v_bfe_u32 v9, v8, 1, 3")
        for ks in range(4):
            A(f"v_or_b32 v10, {2*ks}, v7")
            A("v_xor_b32 v10, v10, v9")
            A("v_lshlrev_b32 v10, 4, v10")
            A("v_lshl_add_u32 v10, v8, 7, v10")
            A(f"v_add_u32 v{BA+ks}, s{S_RB}, v10")
        A(f"v_mul_u32_u24 v{V_PW}, {RS}, v8")
        A(f"v_lshl_add_u32 v{V_PW}, v7, 5, v{V_PW}")
        A(f"v_add_u32 v{V_PW}, s{S_RB}, v{V_PW}")
        tail_setup()
        A("s_barrier")
        self.stamp(1 + 4 * stage + 3)
        def dmaG(ch):
            base = (ch % DG) * 8192
            for i in range(8):
                A(f"s_add_u32 m0, s{S_RB}, {base + i * 1024}")
                A(f"s_add_u32 s{S_TMP}, s{S_GOFF}, {i * 8 * a_rb + ch * 128}")
                A(f"buffer_load_dwordx4 v{VG[i & 1]}, s[{S_G}:{S_G+3}], s{S_TMP} offen lds")
                vm.issue(("g", ch))
        for ch in range(min(DG, NCH)): dmaG(ch)
        def reads(step):
            ch, ks = step // 4, step % 4
            buf = FR + (step % NBG) * 16
            for nb in range(2):
                for q in range(2):
                    A(f"ds_read_b64_tr_b16 v[{buf+nb*4+q*2}:{buf+nb*4+q*2+1}], v{AA+nb} offset:{WB + ((step + rot) % DW) * 2048 + q * 512}")
                    lg.issue(("f", step))
            for rb in range(2):
                A(f"ds_read_b128 v[{buf+8+rb*4}:{buf+8+rb*4+3}], v{BA+ks} offset:{(ch % DG) * 8192 + rb * 4096}")
                lg.issue(("f", step))
        def need(step):
            vm.wait(("w", step)); vm.wait(("g", step // 4))
        for s0 in range(NBG - 1):
            need(s0); reads(s0)
        for st in range(NS):
            lg.wait(("f", st))
            with Cap(A) as cp:
                if st + DW < NS: self.dmaW(st + DW, WB + ((st + rot) % DW) * 2048)
                if st % 4 == 3 and st // 4 + DG < NCH: dmaG(st // 4 + DG)
                if st + NBG - 1 < NS:
                    need(st + NBG - 1); reads(st + NBG - 1)
                if st + DW >= NS and PFE == 3 and nsched and st in nsched: next_pf(*nsched[st])
            buf = FR + (st % NBG) * 16
            mf = []
            for nb in range(2):
                for rb in range(2):
                    acc = ACC + (nb * 2 + rb) * 16
                    c = "0" if st == 0 else f"v[{acc}:{acc+15}]"
                    mf.append(f"v_mfma_f32_32x32x16_bf16 v[{acc}:{acc+15}], v[{buf+nb*4}:{buf+nb*4+3}], v[{buf+8+rb*4}:{buf+8+rb*4+3}], {c}")
            interleave(A, mf, cp.out)
        vm.wait("e")
        if not int(os.environ.get("KRX", "0")): self.stamp({1: 25, 2: 26, 4: 27}[stage])
        A("s_nop 7")
        A("s_nop 1")
        for tl in range(4):
            nb, rb = tl >> 1, tl & 1
            for r4 in range(4):
                A(f"ds_write_b128 v{V_PW}, v[{ACC+tl*16+r4*4}:{ACC+tl*16+r4*4+3}] offset:{rb*32*RS + (nb*8 + (r4 >> 1)*4 + (r4 & 1))*16}")
            if tl == 1: A("s_waitcnt lgkmcnt(0)")
        if next_pf and PFE == 1: next_pf()
        A("s_waitcnt lgkmcnt(0)")
        A(f"s_branch .L{lab}_join")
        A.label(f".L{lab}_help")
        sv = list(vm.ops)
        tail_setup()
        vm.ops = sv
        self.poll(stage, nbr)
        A("s_barrier")
        self.stamp(1 + 4 * stage + 3)
        n = sum(self.l2pf(*x) for x in l2) if l2 else 0
        A(f"s_waitcnt vmcnt({n})")
        A.label(f".L{lab}_join")
        A("s_barrier")
        for p in range(4):
            for h in range(2):
                d = ACC + p * 16 + h * 4
                A(f"ds_read_b128 v[{d}:{d+3}], v{V_PR + (p >> 1)} offset:{(p & 1)*RG + h*16}")
        xs = list(range(ACC, ACC + 8)); tp = list(range(72, 80)); t8 = list(range(88, 96))
        b = ACC
        def unpack(src, dst):
            for k in range(4):
                A(f"v_lshlrev_b32 v{dst[2*k]}, 16, v{src+k}")
                A(f"v_and_b32 v{dst[2*k+1]}, {SM}, v{src+k}")
        if epi != "gelu": unpack(X1, tp)
        if epi == "final":
            unpack(X2, list(range(104, 112)))
            if V2:
                for k in range(0, 8, 2): pk(A, "v_pk_add_f32", GB + k, GB + k, 180 + k)
                round_multi(A, list(range(GB, GB + 8)), t8, SM)
        A("s_waitcnt lgkmcnt(4)")
        for e in range(0, 8, 2): pk(A, "v_pk_add_f32", b + e, b + e, b + 16 + e)
        A("s_waitcnt lgkmcnt(0)")
        for e in range(0, 8, 2): pk(A, "v_pk_add_f32", b + 32 + e, b + 32 + e, b + 48 + e)
        for e in range(0, 8, 2): pk(A, "v_pk_add_f32", b + e, b + e, b + 32 + e)
        round_multi(A, xs, t8, SM)
        def store():
            for k in range(4): A(f"v_cvt_pk_bf16_f32 v{56+k}, v{xs[2*k]}, v{xs[2*k+1]}")
            A(f"buffer_store_dwordx4 v[56:59], v{V_GA}, s[{S_O}:{S_O+3}], s{S_TMP+2} offen sc1")
        if epi == "gelu":
            X = xs; T = tp
            for e in range(0, 8, 2): pk(A, "v_pk_mul_f32", T[e], X[e], X[e])
            for e in range(0, 8, 2): pk(A, "v_pk_fma_f32", T[e], T[e], VC[0], VC[1], "op_sel_hi:[1,0,0]")
            for e in range(0, 8, 2): pk(A, "v_pk_mul_f32", T[e], T[e], X[e])
            for e in range(8): A(f"v_exp_f32 v{T[e]}, v{T[e]}")
            for e in range(0, 8, 2): pk(A, "v_pk_add_f32", T[e], T[e], VC[2], None, "op_sel_hi:[1,0]")
            for e in range(8): A(f"v_rcp_f32 v{T[e]}, v{T[e]}")
            A("s_nop 0")
            for e in range(0, 8, 2): pk(A, "v_pk_mul_f32", X[e], X[e], T[e])
            store()
        elif epi == "res":
            for k in range(0, 8, 2): pk(A, "v_pk_add_f32", xs[k], xs[k], tp[k])
            store()
            unpack(56, xs)
            X = xs
            pk(A, "v_pk_mul_f32", tp[0], X[0], X[0])
            pk(A, "v_pk_add_f32", tp[2], X[0], X[2])
            for e in range(2, 8, 2):
                pk(A, "v_pk_fma_f32", tp[0], X[e], X[e], tp[0])
                if e >= 4: pk(A, "v_pk_add_f32", tp[2], tp[2], X[e])
            A(f"v_add_f32 v20, v{tp[2]}, v{tp[3]}")
            A(f"v_add_f32 v21, v{tp[0]}, v{tp[1]}")
            A("s_nop 1")
            for dpp in ("quad_perm:[1,0,3,2]", "quad_perm:[2,3,0,1]", "row_half_mirror"):
                for v in (20, 21):
                    A(f"v_add_f32_dpp v{v}, v{v}, v{v} {dpp} row_mask:0xf bank_mask:0xf")
                A("s_nop 1")
            A("v_and_b32 v10, 7, v1")
            A("v_cmp_eq_u32 vcc, 0, v10")
            A("s_and_saveexec_b64 s[78:79], vcc")
            A(f"buffer_store_dwordx2 v[20:21], v{V_SA}, s[{S_ST}:{S_ST+3}], s{S_TMP+6} offen sc1")
            A("s_mov_b64 exec, s[78:79]")
        else:
            for k in range(0, 8, 2): pk(A, "v_pk_add_f32", xs[k], xs[k], tp[k])
            round_multi(A, xs, t8, SM)
            for k in range(0, 8, 2): pk(A, "v_pk_mul_f32", xs[k], xs[k], GB + k)
            round_multi(A, xs, t8, SM)
            for k in range(0, 8, 2): pk(A, "v_pk_add_f32", xs[k], xs[k], 104 + k)
            store()
    def k5(self, stage, next_pf, own_pf=None):
        A = self.A; vm = self.vm; lg = self.lg
        S_A = 8; S_O = 20; S_ST = 24; S_CS = 28
        VB = [16, 28]; AA = 24; ACC = 64; FQ = 128
        D = K5D
        NB5 = int(os.environ.get('NB5', '3'))
        A(f"s_cmp_lt_u32 s{S_WAVE}, 4")
        A("s_cbranch_scc1 .Lk5_main")
        A(f"s_cmp_eq_u32 s{S_J}, 7")
        A("s_cbranch_scc1 .Lk5_h7")
        self.poll(stage)
        A("s_barrier")
        A("s_barrier")
        A.label(".Lk5_h7")
        if L2PF & 4: self.l2pf(3, 1792 * 1024)
        A("s_branch .Lk5_end")
        A.label(".Lk5_main")
        A(f"s_cmp_eq_u32 s{S_J}, 7")
        A("s_cbranch_scc1 .Lk5_pf")
        if own_pf and PFE == 2: own_pf(NE, 99)
        make_srd(A, S_A, P_WS, WS_X1, 2 * MB)
        make_srd(A, S_ST, P_WS, WS_STAT, 2048 * 128)
        make_srd(A, S_CS, P_WS, WS_CS, 2 * CSP)
        make_srd(A, S_O, P_WS, WS_G, 2048 * 3584)
        A(f"v_lshlrev_b32 v4, 4, v{L}")
        A(f"s_lshl_b32 s{S_TMP}, s{S_M}, 16")
        A(f"s_lshl_b32 s{S_TMP+1}, s{S_WAVE}, 14")
        A(f"s_add_u32 s{S_TMP}, s{S_TMP}, s{S_TMP+1}")
        A(f"s_lshl_b32 s{S_TMP+6}, s{S_J}, 9")
        A(f"s_lshl_b32 s{S_TMP+2}, s{S_WAVE}, 7")
        A(f"s_add_u32 s{S_TMP+6}, s{S_TMP+6}, s{S_TMP+2}")
        A(f"v_lshrrev_b32 v5, 5, v{L}")
        A(f"v_bfe_u32 v7, v{L}, 4, 1")
        A(f"v_bfe_u32 v8, v{L}, 2, 2")
        A(f"v_and_b32 v9, 1, v{L}")
        A(f"v_bfe_u32 v10, v{L}, 1, 1")
        A("v_lshl_or_b32 v9, v9, 1, v10")
        A("v_lshlrev_b32 v9, 3, v9")
        A("v_lshl_add_u32 v9, v7, 5, v9")
        A("v_lshl_add_u32 v10, v5, 3, v8")
        A("v_lshrrev_b32 v11, 1, v8")
        for nb in range(2):
            A(f"v_xor_b32 v12, {nb}, v11")
            A("v_lshl_add_u32 v12, v12, 6, v9")
            A("v_lshl_add_u32 v12, v10, 7, v12")
            A(f"v_add_u32 v{AA+nb}, s{S_RB}, v12")
        A(f"v_and_b32 v13, 31, v{L}")
        A("v_lshrrev_b32 v7, 4, v13")
        A(f"v_mul_u32_u24 v7, {RG // 1024}, v7")
        A("v_and_b32 v8, 15, v13")
        A("v_add_u32 v7, v7, v8")
        for j in range(8):
            A(f"v_or_b32 v8, {2*j}, v5")
            A("v_xor_b32 v8, v8, v13")
            A("v_and_b32 v8, 15, v8")
            A("v_lshlrev_b32 v8, 4, v8")
            A(f"v_lshl_add_u32 v{VB[0]+j}, v7, 10, v8")
            A(f"v_add_u32 v{VB[1]+j}, {2*RG}, v{VB[0]+j}")
        ST = 192; CS = 224
        A("v_lshlrev_b32 v7, 5, v5")
        A(f"s_lshl_b32 s{S_TMP+2}, s{S_TMP+6}, 1")
        for nb in range(2):
            for mp in range(2):
                for h4 in range(2):
                    A(f"buffer_load_dwordx4 v[{CS+(nb*2+mp)*8+4*h4}:{CS+(nb*2+mp)*8+4*h4+3}], v7, s[{S_CS}:{S_CS+3}], s{S_TMP+2} offen offset:{(32*nb+16*mp+4*h4)*4}"); vm.issue("st")
        if V2:
            A(f"s_add_u32 s{S_TMP+2}, s{S_TMP+2}, {CSP}")
            for nb in range(2):
                for mp in range(2):
                    for h4 in range(2):
                        A(f"buffer_load_dwordx4 v[{64+(nb*2+mp)*8+4*h4}:{64+(nb*2+mp)*8+4*h4+3}], v7, s[{S_CS}:{S_CS+3}], s{S_TMP+2} offen offset:{(32*nb+16*mp+4*h4)*4}"); vm.issue("cs2")
        VS = 36
        A("v_and_b32 v7, 7, v13")
        A(f"s_add_u32 s{S_TMP+3}, s{S_RB}, {K5RB}")
        for j in range(4):
            A(f"v_or_b32 v14, {2*j}, v5")
            A("v_xor_b32 v14, v14, v7")
            A("v_lshlrev_b32 v14, 4, v14")
            A("v_lshl_add_u32 v14, v13, 7, v14")
            A(f"v_add_u32 v{VS+j}, s{S_TMP+3}, v14")
        A(f"v_lshrrev_b32 v7, 3, v{L}")
        A(f"v_and_b32 v14, 7, v{L}")
        A(f"v_xor_b32 v{VS+4}, v14, v7")
        A(f"v_lshlrev_b32 v{VS+4}, 4, v{VS+4}")
        A(f"v_lshl_add_u32 v{VS+4}, v7, 7, v{VS+4}")
        A(f"v_add_u32 v{VS+4}, s{S_TMP+3}, v{VS+4}")
        A(f"s_movk_i32 s{S_TMP+2}, 3584")
        A(f"v_mul_lo_u32 v7, v7, s{S_TMP+2}")
        A(f"v_lshl_add_u32 v{VS+5}, v14, 4, v7")
        A(f"s_mul_i32 s{S_TMP+4}, s{S_M}, {64*3584}")
        A(f"s_add_u32 s{S_TMP+4}, s{S_TMP+4}, s{S_TMP+6}")
        A(f"s_add_u32 s{S_TMP+5}, s{S_TMP+4}, {32*3584}")
        A("v_lshlrev_b32 v7, 3, v13")
        A("v_lshl_add_u32 v7, v5, 16, v7")
        A(f"s_lshl_b32 s{S_TMP+7}, s{S_M}, 9")
        A("s_barrier")
        self.stamp(1 + 4 * stage + 3)
        for i in range(16):
            t = 8 + (i & 1)
            A(f"v_xor_b32 v{t}, {i << 4}, v4")
            A(f"s_add_u32 m0, s{S_RB}, {i * 1024}")
            A(f"s_add_u32 s{S_TMP+2}, s{S_TMP}, {i * 1024}")
            A(f"buffer_load_dwordx4 v{t}, s[{S_A}:{S_A+3}], s{S_TMP+2} offen lds")
            vm.issue("act")
        for q in range(4):
            A(f"s_add_u32 s{S_TMP+3}, s{S_TMP+7}, {q*16384}")
            for rb in range(2):
                A(f"buffer_load_dwordx2 v[{ST+16*rb+2*q}:{ST+16*rb+2*q+1}], v7, s[{S_ST}:{S_ST+3}], s{S_TMP+3} offen offset:{rb*256}"); vm.issue("st")
        if V2:
            vm.wait("cs2")
            for k in range(0, 32, 2): pk(A, "v_pk_add_f32", CS + k, CS + k, 64 + k)
        vm.wait("act")
        A("s_barrier")
        self.stamp(29)
        def reads(step):
            buf = FQ + (step % NB5) * 16
            for nb in range(2):
                for q in range(2):
                    A(f"ds_read_b64_tr_b16 v[{buf+nb*4+q*2}:{buf+nb*4+q*2+1}], v{AA+nb} offset:{K5RB + (step % D) * 2048 + q * 512}")
                    lg.issue(("f", step))
            for rb in range(2):
                A(f"ds_read_b128 v[{buf+8+rb*4}:{buf+8+rb*4+3}], v{VB[rb] + (step & 7)} offset:{(step >> 3) * 256}")
                lg.issue(("f", step))
        PKC = [[44, 46, 48, 50], [52, 54, 56, 58]]
        E = []
        for stg in range(17):
            for rb in range(2):
                b = ST + 16 * rb; c = PKC[rb]
                E.append([f"v_add_f32 v{b}, v{b}, v{b+2}", f"v_add_f32 v{b+1}, v{b+1}, v{b+3}",
                          f"v_add_f32 v{b+4}, v{b+4}, v{b+6}", f"v_add_f32 v{b+5}, v{b+5}, v{b+7}",
                          f"v_add_f32 v{b}, v{b}, v{b+4}", f"v_add_f32 v{b+1}, v{b+1}, v{b+5}",
                          f"v_mov_b32 v{b+2}, v{b}", f"v_mov_b32 v{b+3}, v{b+1}", "s_nop 1",
                          f"v_permlane32_swap_b32 v{b}, v{b+2}", f"v_permlane32_swap_b32 v{b+1}, v{b+3}", "s_nop 1",
                          f"v_add_f32 v{b}, v{b}, v{b+2}", f"v_add_f32 v{b+1}, v{b+1}, v{b+3}",
                          f"v_mul_f32 v{c[0]}, {fhex(-1/512)}, v{b}", f"v_mul_f32 v{b+1}, {fhex(1/512)}, v{b+1}",
                          f"v_fma_f32 v{b+1}, -v{c[0]}, v{c[0]}, v{b+1}"][stg])
        for stg in range(9):
            for rb in range(2):
                b = ST + 16 * rb; c = PKC[rb]
                E.append([f"v_max_f32 v{b+1}, 0, v{b+1}", f"v_add_f32 v{b+1}, {fhex(1e-5)}, v{b+1}",
                          f"v_rsq_f32 v{b+2}, v{b+1}", f"v_sqrt_f32 v{c[3]}, v{b+1}", "s_nop 0",
                          f"v_mul_f32 v{c[2]}, {fhex(GK0)}, v{b+2}", f"v_mul_f32 v{c[1]}, v{b+2}, v{b+2}",
                          f"v_mul_f32 v{c[1]}, v{c[1]}, v{b+2}", f"v_mul_f32 v{c[1]}, {fhex(GK1)}, v{c[1]}"][stg])
        for s0 in range(NB5 - 1):
            vm.wait(("w", s0)); reads(s0)
        k = 0
        for ks in range(32):
            lg.wait(("f", ks))
            with Cap(A) as cp:
                if ks + NB5 - 1 < 32:
                    vm.wait(("w", ks + NB5 - 1)); reads(ks + NB5 - 1)
                if ks + D < 32: self.dmaW(ks + D, K5RB + (ks % D) * 2048)
                elif PFE == 3 and ks == 21: next_pf(0, 1)
                elif PFE == 3 and ks >= 26: next_pf(ks - 25, ks - 24)
                if 14 <= ks < 28:
                    if ks == 14: vm.wait("st")
                    upto = len(E) * (ks - 13) // 14
                    while k < upto: A(E[k]); k += 1
            buf = FQ + (ks % NB5) * 16
            mf = []
            for nb in range(2):
                for rb in range(2):
                    acc = ACC + (nb * 2 + rb) * 16
                    c = "0" if ks == 0 else f"v[{acc}:{acc+15}]"
                    mf.append(f"v_mfma_f32_32x32x16_bf16 v[{acc}:{acc+15}], v[{buf+nb*4}:{buf+nb*4+3}], v[{buf+8+rb*4}:{buf+8+rb*4+3}], {c}")
            interleave(A, mf, cp.out)
        self.stamp(28)
        if PFE == 1: next_pf()
        else:
            A("s_nop 7"); A("s_nop 3")
        def flush5(rb):
            A("s_waitcnt lgkmcnt(0)")
            for i in range(4):
                A(f"ds_read_b128 v[{192+16*rb+4*i}:{192+16*rb+4*i+3}], v{VS+4} offset:{rb*4096 + i*1024}")
        def store5(rb):
            for i in range(4):
                if rb == 1: A(f"s_waitcnt lgkmcnt({3-i})")
                A(f"s_add_u32 s{S_TMP+3}, s{S_TMP+4+rb}, {i*8*3584}")
                A(f"buffer_store_dwordx4 v[{192+16*rb+4*i}:{192+16*rb+4*i+3}], v{VS+5}, s[{S_O}:{S_O+3}], s{S_TMP+3} offen sc1")
        for rb in range(2):
            for nb in range(2):
                acc = ACC + (nb * 2 + rb) * 16
                if rb == 1 and nb == 1:
                    A("s_waitcnt lgkmcnt(2)")
                    store5(0)
                for mp in range(2):
                    d = 160 + (nb * 4 + rb * 2 + mp) * 4
                    xs = [acc + 8 * mp + e for e in range(8)]
                    ts = list(range(128, 136)); cs = CS + (nb * 2 + mp) * 8; c = PKC[rb]
                    for e in range(0, 8, 2): pk(A, "v_pk_fma_f32", xs[e], cs + e, c[0], xs[e], "op_sel_hi:[1,0,1]")
                    for e in range(0, 8, 2): pk(A, "v_pk_mul_f32", ts[e], xs[e], xs[e])
                    for e in range(0, 8, 2): pk(A, "v_pk_fma_f32", ts[e], ts[e], c[1], c[2], "op_sel_hi:[1,0,0]")
                    for e in range(0, 8, 2): pk(A, "v_pk_mul_f32", ts[e], ts[e], xs[e])
                    for t in ts: A(f"v_exp_f32 v{t}, v{t}")
                    for e in range(0, 8, 2): pk(A, "v_pk_fma_f32", ts[e], ts[e], c[3], c[3], "op_sel_hi:[1,0,0]")
                    for t in ts: A(f"v_rcp_f32 v{t}, v{t}")
                    A("s_nop 0")
                    for e in range(0, 8, 2): pk(A, "v_pk_mul_f32", xs[e], xs[e], ts[e])
                    for e in range(0, 8, 2): A(f"v_cvt_pk_bf16_f32 v{d+e//2}, v{xs[e]}, v{xs[e+1]}")
                    A(f"ds_write_b128 v{VS+2*nb+mp}, v[{d}:{d+3}] offset:{rb*4096}")
            flush5(rb)
        store5(1)
        A("s_branch .Lk5_end")
        A.label(".Lk5_pf")
        if PFE in (1, 3): next_pf(alt=True)
        A.label(".Lk5_end")

def gen_km(A):
    name = "k1_kernel"
    M = Mega(A)
    def pre():
        if MT or HD:
            M.persist(); M.stamp(0); M.vm.ops = []
        if ONE: M.pro_pre()
    if V2: K1.gen_k1(A, emb=True, pre=pre, hookA=M.p2_a, hookB=M.p2_b, v2=True, hookC=M.p2_c)
    elif ONE: K1.gen_k1(A, emb=True, pre=pre, hookA=M.pro_a, hookB=M.pro_b)
    else: K1.gen_k1(A, emb=True, pre=pre)
    M.persist()
    M.transition(0)
    M.kr()
    M.transition(1)
    pf4 = lambda lo=0, hi=99: M.pf_g64(1, 512, 24576, 8, lo, hi)
    pf6 = lambda lo=0, hi=99, alt=False: M.pf_g64(3, 1792, 26624, 7, lo, hi, 6)
    M.g64("k3", 1, 512, WS_HN, 2 * MB, 1024, "gelu", 24576, 8, False, pf4, None, 0, {st: (st, st + 1) for st in range(8)}, [(2, 1792 * 1024)] if L2PF & 1 else None)
    M.transition(2, pf4)
    M.g64("k4", 2, 512, WS_H1, 2052 * 1024, 1024, "res", 24576, 8, True, M.pf_k5, pf4, 0, {st: ((0, 4) if st == 0 else (st + 3, st + 4)) for st in range(8)}, [(3, 1792 * 1024)] if L2PF & 2 else None)
    M.transition(3, M.pf_k5)
    M.k5(3, pf6, M.pf_k5)
    M.transition(4, pf6)
    M.g64("k6", 4, 1792, WS_G, 2048 * 3584, 3584, "final", 26624, 7, False, None, pf6, 6)
    M.stamp(21)
    if MT or HD: A("s_waitcnt vmcnt(0)")
    M.stamp(22)
    A("s_endpgm")
    A.raw(kernel_desc(name, 256, 102, 256))
    return (name, (256, 1, 1), (512, 1, 1), 163840)
```

```python
from asmlib import *
from gen_k0 import *
import os
DEBUG = int(os.environ.get("K1DEBUG", "0"))
PART_BF16 = int(os.environ.get("PARTBF16", "1"))
MIMIC = int(os.environ.get("MIMIC", "0"))
LAZY = int(os.environ.get("LAZY", "1"))
THR = float(os.environ.get("THR","30.0"))
TIMING = int(os.environ.get("TIMING", "0"))
USEPK = int(os.environ.get("USEPK", "0"))
EXPT = int(os.environ.get("EXPT", "0"))
NOMAX = int(os.environ.get("NOMAX", "0"))
DOT2 = int(os.environ.get("DOT2", "0"))

class Cnt:
    def __init__(self, A, name, maxv):
        self.A = A; self.name = name; self.maxv = maxv; self.ops = []
    def issue(self, tag):
        self.ops.append(tag)
        assert len(self.ops) <= self.maxv + 1 or self.name == "vmcnt", (self.name, len(self.ops))
    def wait(self, tag):
        idx = None
        for i, t in enumerate(self.ops):
            if t == tag: idx = i
        if idx is None:
            return
        n = len(self.ops) - 1 - idx
        assert n <= self.maxv, (self.name, n)
        self.A(f"s_waitcnt {self.name}({n})")
        self.ops = self.ops[idx+1:]
    def waitall(self):
        self.A(f"s_waitcnt {self.name}(0)")
        self.ops = []

class Stamper:
    def __init__(self, A, lg, srd, swave, base=72):
        self.A = A; self.lg = lg; self.n = 0; self.srd = srd; self.swave = swave; self.base = base
    def __call__(self, real=False):
        if not TIMING: return
        A = self.A
        self.lg.waitall()
        A("s_memrealtime s[70:71]" if (real or TIMING == 2) else "s_memtime s[70:71]")
        A("s_waitcnt lgkmcnt(0)")
        A(f"s_mov_b32 s{self.base+self.n}, s70")
        self.n += 1
    def flush(self):
        if not TIMING: return
        A = self.A
        A(f"s_lshl_b32 s70, s2, 3")
        A(f"s_add_u32 s70, s70, s{self.swave}")
        A(f"s_lshl_b32 s70, s70, 7")
        A("v_mov_b32 v5, 0")
        for i in range(self.n):
            A(f"v_mov_b32 v6, s{self.base+i}")
            A(f"buffer_store_dword v6, v5, s[{self.srd}:{self.srd+3}], s70 offen offset:{4*i}")

ACT = 0
STG = 65536
KRING = STG + 3 * 16384
VRING = STG
V_LANE = 1
V_BADDR = 16; V_AADDR = 24; V_WQOFF = 26; V_WOOFF = 27
V_KADDR = 28; V_VADDR = 36; V_KOFF = 40; V_VOFF = 42
V_M = 43; V_L = 44; V_ALPHA = 46; V_NEGC = 48
V_QADDR = 50
V_T = 58
V_ACC = 64
V_Q = 128
V_S = 160
V_F = 224
NF = 8
RA = int(os.environ.get('RA','6'))
PRIO = int(os.environ.get('PRIO','0'))
CT = int(os.environ.get('CT','1'))
V_NB = 48
S_XN = 8; S_MOD = 12; S_WQ = 16; S_K = 20; S_V = 24; S_WO = 28; S_P = 32; S_DBG = 36
S_WAVE = 40; S_G = 41; S_M = 42; S_RB = 43; S_OFF = 44; S_MASK = 45; S_KVOFF = 46; S_KVM0 = 47
S_C1 = 48; S_K2 = 50; S_SC = 52; S_L2E = 54
S_TMP = 56
S_SL = 66
S_FLAG = 64
S_QOFF = 67
SCALE = 128 ** -0.5

def gemm_dma(A, vm, step, srd, voff, rowstride, D):
    for half in range(2):
        A(f"s_add_u32 m0, s{S_RB}, {(step % D) * 2048 + half * 1024}")
        A("s_nop 0")
        A(f"buffer_load_dwordx4 v{voff}, s[{srd}:{srd+3}], s{S_OFF} offen lds")
        vm.issue(("w", step))
        A(f"s_add_u32 s{S_OFF}, s{S_OFF}, {8 * rowstride}")

def gemm_reads(A, lg, step, D):
    buf = V_Q + (step & 1) * 16
    if (EXPT & 128) and step > 1: return
    for nb in range(2):
        for q in range(2):
            A(f"ds_read_b64_tr_b16 v[{buf+nb*4+q*2}:{buf+nb*4+q*2+1}], v{V_AADDR+nb} offset:{(step % D) * 2048 + q * 512}")
            lg.issue(("f", step))
    for rb in range(2):
        A(f"ds_read_b128 v[{buf+8+rb*4}:{buf+8+rb*4+3}], v{V_BADDR + (step & 7)} offset:{(step >> 3) * 256 + rb * 32768}")
        lg.issue(("f", step))

def gemm_core(A, vm, lg, srd, voff, rowstride, D=4, NS=32):
    vm.wait(("w", 0))
    gemm_reads(A, lg, 0, D)
    for ks in range(NS):
        if ks + 1 < NS:
            vm.wait(("w", ks + 1))
            gemm_reads(A, lg, ks + 1, D)
        lg.wait(("f", ks))
        if ks + D < NS and not (EXPT & 32):
            gemm_dma(A, vm, ks + D, srd, voff, rowstride, D)
        buf = V_Q + (ks & 1) * 16
        for nb in range(2):
            for rb in range(2):
                acc = V_ACC + (nb * 2 + rb) * 16
                c = "0" if ks == 0 else f"v[{acc}:{acc+15}]"
                if (EXPT & 64) and ks > 0: continue
                A(f"v_mfma_f32_32x32x16_bf16 v[{acc}:{acc+15}], v[{buf+nb*4}:{buf+nb*4+3}], v[{buf+8+rb*4}:{buf+8+rb*4+3}], {c}")

D6 = int(os.environ.get("D6", "1"))
V_AADDR2 = (43, 45)
def slot6(step): return (step + 2) % 6
def gemm_dma6(A, vm, step, srd, voff, rowstride):
    for half in range(2):
        A(f"s_add_u32 m0, s{S_RB}, {slot6(step) * 16384 + half * 1024}")
        A("s_nop 0")
        A(f"buffer_load_dwordx4 v{voff}, s[{srd}:{srd+3}], s{S_OFF} offen {os.environ.get('WONT', '') if srd == S_WO else ''} lds")
        vm.issue(("w", step))
        A(f"s_add_u32 s{S_OFF}, s{S_OFF}, {8 * rowstride}")
IL6 = int(os.environ.get("IL6", "0"))
def gemm_reads6(A, lg, step):
    buf = V_Q + ((step % 3) if IL6 else (step & 1)) * 16
    sl = slot6(step)
    for nb in range(2):
        for q in range(2):
            a = V_AADDR + nb if sl < 4 else V_AADDR2[nb]
            A(f"ds_read_b64_tr_b16 v[{buf+nb*4+q*2}:{buf+nb*4+q*2+1}], v{a} offset:{(sl & 3) * 16384 + q * 512}")
            lg.issue(("f", step))
    for rb in range(2):
        A(f"ds_read_b128 v[{buf+8+rb*4}:{buf+8+rb*4+3}], v{V_BADDR + (step & 7)} offset:{(step >> 3) * 256 + rb * 32768}")
        lg.issue(("f", step))
def gemm_core6(A, vm, lg, srd, voff, rowstride, pre, tail=None, NS=32, bars=()):
    for st in range(pre, 6): gemm_dma6(A, vm, st, srd, voff, rowstride)
    if IL6:
        for s0 in range(2):
            vm.wait(("w", s0)); gemm_reads6(A, lg, s0)
        for ks in range(NS):
            lg.wait(("f", ks))
            sv = A.lines; A.lines = []
            if IL6 == 2:
                if ks + 6 < NS: gemm_dma6(A, vm, ks + 6, srd, voff, rowstride)
                elif tail: tail(ks)
            if ks + 2 < NS:
                vm.wait(("w", ks + 2)); gemm_reads6(A, lg, ks + 2)
            if IL6 == 1:
                if ks + 6 < NS: gemm_dma6(A, vm, ks + 6, srd, voff, rowstride)
                elif tail: tail(ks)
            fill = A.lines; A.lines = sv
            buf = V_Q + (ks % 3) * 16
            k = 0
            for i in range(4):
                nb, rb = i >> 1, i & 1
                acc = V_ACC + (nb * 2 + rb) * 16
                c = "0" if ks == 0 else f"v[{acc}:{acc+15}]"
                A(f"v_mfma_f32_32x32x16_bf16 v[{acc}:{acc+15}], v[{buf+nb*4}:{buf+nb*4+3}], v[{buf+8+rb*4}:{buf+8+rb*4+3}], {c}")
                upto = (len(fill) * (i + 1) + 3) // 4
                A.lines.extend(fill[k:upto]); k = upto
        return
    vm.wait(("w", 0))
    gemm_reads6(A, lg, 0)
    for ks in range(NS):
        if ks + 1 < NS:
            vm.wait(("w", ks + 1))
            gemm_reads6(A, lg, ks + 1)
        lg.wait(("f", ks))
        if ks + 6 < NS:
            gemm_dma6(A, vm, ks + 6, srd, voff, rowstride)
        elif tail: tail(ks)
        if ks in bars: A("s_barrier")
        buf = V_Q + (ks & 1) * 16
        for nb in range(2):
            for rb in range(2):
                acc = V_ACC + (nb * 2 + rb) * 16
                c = "0" if ks == 0 else f"v[{acc}:{acc+15}]"
                A(f"v_mfma_f32_32x32x16_bf16 v[{acc}:{acc+15}], v[{buf+nb*4}:{buf+nb*4+3}], v[{buf+8+rb*4}:{buf+8+rb*4+3}], {c}")

def k_dma(A, vm, t):
    A(f"s_mov_b32 s{S_KVOFF}, {t * 16384}")
    A(f"s_add_u32 m0, s{S_KVM0}, {KRING + ((t + 1) % 3) * 16384}")
    A("s_nop 0")
    A(f"buffer_load_dwordx4 v{V_KOFF}, s[{S_K}:{S_K+3}], s{S_KVOFF} offen lds")
    vm.issue(("k", t))
    A(f"buffer_load_dwordx4 v{V_KOFF+1}, s[{S_K}:{S_K+3}], s{S_KVOFF} offen offset:1024 lds")
    vm.issue(("k", t))
def v_dma(A, vm, t):
    A(f"s_mov_b32 s{S_KVOFF}, {t * 16384}")
    A(f"s_add_u32 m0, s{S_KVM0}, {VRING + (t % 3) * 16384}")
    A("s_nop 0")
    A(f"buffer_load_dwordx4 v{V_VOFF}, s[{S_V}:{S_V+3}], s{S_KVOFF} offen lds")
    vm.issue(("v", t))
    A(f"buffer_load_dwordx4 v{V_VOFF}, s[{S_V}:{S_V+3}], s{S_KVOFF} offen offset:1024 lds")
    vm.issue(("v", t))

def sm_max(t):
    S = V_S + (t & 1) * 32
    mx = 2 if CT else V_T
    L = []
    if NOMAX and t > 0: return []
    L.append(f"v_max3_f32 v{mx}, v{S}, v{S+1}, v{S+2}")
    L.append(f"v_max3_f32 v{mx+1}, v{S+3}, v{S+4}, v{S+5}")
    for i in range(6, 30, 4):
        L.append(f"v_max3_f32 v{mx}, v{mx}, v{S+i}, v{S+i+1}")
        L.append(f"v_max3_f32 v{mx+1}, v{mx+1}, v{S+i+2}, v{S+i+3}")
    L.append(f"v_max3_f32 v{mx}, v{mx}, v{S+30}, v{S+31}")
    L.append(f"v_max_f32 v{mx}, v{mx}, v{mx+1}")
    L.append(f"v_mov_b32 v{mx+1}, v{mx}")
    L.append("s_nop 1")
    L.append(f"v_permlane32_swap_b32 v{mx}, v{mx+1}")
    L.append("s_nop 1")
    L.append(f"v_max_f32 v{mx}, v{mx}, v{mx+1}")
    g, d = mx + 1, mx + 2
    if CT:
        if t == 0:
            for i in range(16): L.append(f"v_sub_f32 v{V_NB+i}, 0, v{mx}")
            for i in range(32): L.append(f"v_sub_f32 v{S+i}, v{S+i}, v{mx}")
            return L
        lbl = f".Lk1_nors_{t}"
        L.append(f"v_cmp_lt_f32 vcc, {fhex(THR)}, v{mx}")
        L.append(f"s_mov_b64 s[{S_FLAG}:{S_FLAG+1}], vcc")
        L.append([f"s_cbranch_vccz {lbl}",
                  f"v_max_f32 v{mx}, 0, v{mx}",
                  f"v_sub_f32 v{V_ALPHA}, 0, v{mx}",
                  f"v_exp_f32 v{V_ALPHA}, v{V_ALPHA}"]
                 + [f"v_sub_f32 v{V_NB+i}, v{V_NB+i}, v{mx}" for i in range(16)]
                 + [f"v_sub_f32 v{S+i}, v{S+i}, v{mx}" for i in range(32)]
                 + [f"v_mul_f32 v{V_L}, v{V_L}, v{V_ALPHA}", f"{lbl}:"])
        return L
    if MIMIC:
        L.append(f"v_mul_f32 v{g}, s{S_C1}, v{mx}")
        L.append(f"v_sub_f32 v{d}, v{mx}, v{g}")
        L.append(f"v_add_f32 v{mx}, v{g}, v{d}")
        L.append(f"v_mul_f32 v{g}, s{S_K2}, v{mx}")
        L.append(f"v_fma_f32 v{d}, v{mx}, s{S_SC}, -v{g}")
        L.append(f"v_add_f32 v{mx}, v{g}, v{d}")
    else:
        L.append(f"v_mul_f32 v{mx}, s{S_SC}, v{mx}")
    if LAZY and t > 0:
        lbl = f".Lk1_nors_{t}"
        L.append(f"v_sub_f32 v{V_ALPHA}, v{V_M}, v{mx}")
        L.append(f"v_cmp_gt_f32 vcc, {fhex(-THR / LOG2E)}, v{V_ALPHA}")
        L.append(f"s_mov_b64 s[{S_FLAG}:{S_FLAG+1}], vcc")
        L.append([f"s_cbranch_vccz {lbl}",
                  f"v_max_f32 v{mx}, v{mx}, v{V_M}",
                  f"v_sub_f32 v{V_ALPHA}, v{V_M}, v{mx}",
                  f"v_mul_f32 v{V_ALPHA}, s{S_L2E}, v{V_ALPHA}",
                  f"v_exp_f32 v{V_ALPHA}, v{V_ALPHA}",
                  f"v_mov_b32 v{V_M}, v{mx}",
                  f"v_mul_f32 v{V_NEGC}, s{S_L2E}, v{mx}",
                  f"v_sub_f32 v{V_NEGC}, 0, v{V_NEGC}",
                  f"v_mul_f32 v{V_L}, v{V_L}, v{V_ALPHA}",
                  f"{lbl}:"])
        return L
    if t > 0:
        L.append(f"v_max_f32 v{mx}, v{mx}, v{V_M}")
        L.append(f"v_sub_f32 v{V_ALPHA}, v{V_M}, v{mx}")
        L.append(f"v_mul_f32 v{V_ALPHA}, s{S_L2E}, v{V_ALPHA}")
        L.append(f"v_exp_f32 v{V_ALPHA}, v{V_ALPHA}")
    L.append(f"v_mov_b32 v{V_M}, v{mx}")
    L.append(f"v_mul_f32 v{V_NEGC}, s{S_L2E}, v{mx}")
    L.append(f"v_sub_f32 v{V_NEGC}, 0, v{V_NEGC}")
    return L

PSUM = 10
def sm_quarter(t, q):
    S = V_S + (t & 1) * 32
    L = []
    pairs = list(range(8 * q, 8 * q + 8, 2))
    def pre(i):
        x = f"v[{S+i}:{S+i+1}]"
        k = (i >> 1) & 1
        g = f"v[{2+4*k}:{3+4*k}]"; d = f"v[{4+4*k}:{5+4*k}]"
        if CT:
            return []
        if not USEPK:
            out = []
            xs = [S + i, S + i + 1]; gs = [2 + 4 * k, 3 + 4 * k]; ds = [4 + 4 * k, 5 + 4 * k]
            if MIMIC:
                for op in range(7):
                    for e in range(2):
                        x_, g_, d_ = xs[e], gs[e], ds[e]
                        out.append([f"v_mul_f32 v{g_}, s{S_C1}, v{x_}",
                                    f"v_sub_f32 v{d_}, v{x_}, v{g_}",
                                    f"v_add_f32 v{x_}, v{g_}, v{d_}",
                                    f"v_mul_f32 v{g_}, s{S_K2}, v{x_}",
                                    f"v_fma_f32 v{d_}, v{x_}, s{S_SC}, -v{g_}",
                                    f"v_add_f32 v{x_}, v{g_}, v{d_}",
                                    f"v_fma_f32 v{x_}, v{x_}, s{S_L2E}, v{V_NEGC}"][op])
            else:
                for e in range(2):
                    out.append(f"v_fma_f32 v{xs[e]}, v{xs[e]}, s{S_SL}, v{V_NEGC}")
            return out
        if MIMIC:
            return [f"v_pk_mul_f32 {g}, {x}, s[{S_C1}:{S_C1+1}]",
                    f"v_pk_add_f32 {d}, {x}, {g} neg_lo:[0,1] neg_hi:[0,1]",
                    f"v_pk_add_f32 {x}, {g}, {d}",
                    f"v_pk_mul_f32 {g}, {x}, s[{S_K2}:{S_K2+1}]",
                    f"v_pk_fma_f32 {d}, {x}, s[{S_SC}:{S_SC+1}], {g} neg_lo:[0,0,1] neg_hi:[0,0,1]",
                    f"v_pk_add_f32 {x}, {g}, {d}",
                    f"v_pk_fma_f32 {x}, {x}, s[{S_L2E}:{S_L2E+1}], v[{V_NEGC}:{V_NEGC+1}] op_sel_hi:[1,1,0]"]
        return [f"v_pk_mul_f32 {x}, {x}, s[{S_SC}:{S_SC+1}]",
                f"v_pk_fma_f32 {x}, {x}, s[{S_L2E}:{S_L2E+1}], v[{V_NEGC}:{V_NEGC+1}] op_sel_hi:[1,1,0]"]
    for a in range(0, 4, 2):
        p0, p1 = pre(pairs[a]), pre(pairs[a + 1])
        for x, y in zip(p0, p1):
            L += [x, y]
        for i in (pairs[a], pairs[a + 1]):
            L.append(f"v_exp_f32 v{S+i}, v{S+i}")
            L.append(f"v_exp_f32 v{S+i+1}, v{S+i+1}")
    L.append("s_nop 0")
    for i in pairs:
        if DOT2:
            L.append(f"v_cvt_pk_bf16_f32 v{S + i // 2}, v{S+i}, v{S+i+1}")
            continue
        if i == 0:
            L.append(f"v_mov_b32 v{PSUM}, v{S}")
            L.append(f"v_mov_b32 v{PSUM+1}, v{S+1}")
        elif USEPK:
            L.append(f"v_pk_add_f32 v[{PSUM}:{PSUM+1}], v[{PSUM}:{PSUM+1}], v[{S+i}:{S+i+1}]")
        else:
            L.append(f"v_add_f32 v{PSUM}, v{PSUM}, v{S+i}")
            L.append(f"v_add_f32 v{PSUM+1}, v{PSUM+1}, v{S+i+1}")
        L.append(f"v_cvt_pk_bf16_f32 v{S + i // 2}, v{S+i}, v{S+i+1}")
    if DOT2:
        for i in pairs:
            a = PSUM + ((i >> 1) & 1)
            if DOT2 == 1: L.append(f"v_dot2c_f32_bf16 v{a}, v{S + i // 2}, v14")
            else: L.append(f"v_dot2_f32_bf16 v{a}, v{S + i // 2}, v14, v{a}")
    if EXPT & 1: L = [x for x in L if not x.startswith("v_exp")]
    if EXPT & 2: L = [x for x in L if x.startswith("v_exp") or x.startswith("s_nop")]
    return L

def sm_rescale(t):
    if t == 0 or NOMAX: return []
    if LAZY:
        lbl = f".Lk1_nors2_{t}"
        return [[f"s_cmp_eq_u64 s[{S_FLAG}:{S_FLAG+1}], 0", f"s_cbranch_scc1 {lbl}"] + [f"v_mul_f32 v{V_ACC+i}, v{V_ALPHA}, v{V_ACC+i}" for i in range(64)] + [f"{lbl}:"]]
    if not USEPK:
        return [f"v_mul_f32 v{V_ACC+i}, v{V_ALPHA}, v{V_ACC+i}" for i in range(64)]
    return [f"v_pk_mul_f32 v[{V_ACC+i}:{V_ACC+i+1}], v[{V_ACC+i}:{V_ACC+i+1}], v[{V_ALPHA}:{V_ALPHA+1}] op_sel_hi:[1,0]" for i in range(0, 64, 2)]

def sm_lupd(t):
    if DOT2: return []
    L = [f"v_add_f32 v{PSUM}, v{PSUM}, v{PSUM+1}"]
    if t == 0:
        L.append(f"v_mov_b32 v{V_L}, v{PSUM}")
    elif LAZY:
        L.append(f"v_add_f32 v{V_L}, v{V_L}, v{PSUM}")
    else:
        L.append(f"v_fma_f32 v{V_L}, v{V_L}, v{V_ALPHA}, v{PSUM}")
    return L

def gen_k1(A, emb=False, pre=None, hookA=None, hookB=None, kname="k1_kernel", v2=False, hookC=None):
    name = kname
    vm = Cnt(A, "vmcnt", 63); lg = Cnt(A, "lgkmcnt", 15)
    stamp = Stamper(A, lg, S_DBG, S_WAVE)
    kernel_header(A, name)
    A("s_cmp_lt_u32 s2, 256")
    A("s_cbranch_scc1 .Lk1_go")
    A("s_endpgm")
    A.label(".Lk1_go")
    if pre: pre()
    A("s_load_dwordx4 s[60:63], s[0:1], 8")
    A("s_load_dwordx4 s[64:67], s[0:1], 24")
    A("s_load_dwordx2 s[68:69], s[0:1], 112")
    A("s_load_dwordx8 s[92:99], s[0:1], 48")
    A(f"v_and_b32 v{V_LANE}, 63, v0")
    A("v_lshrrev_b32 v2, 6, v0")
    A("s_nop 0")
    A(f"v_readfirstlane_b32 s{S_WAVE}, v2")
    KM = int(os.environ.get("K1MAP","1"))
    if KM == 1:
        A(f"s_lshr_b32 s{S_G}, s2, 5")
        A(f"s_and_b32 s{S_M}, s2, 31")
    elif KM == 4:
        A(f"s_and_b32 s{S_G}, s2, 6")
        A(f"s_lshr_b32 s{S_M}, s2, 7")
        A(f"s_or_b32 s{S_G}, s{S_G}, s{S_M}")
        A(f"s_bfe_u32 s{S_M}, s2, 0x40003")
        A(f"s_lshl_b32 s{S_M}, s{S_M}, 1")
        A(f"s_and_b32 s{S_TMP}, s2, 1")
        A(f"s_or_b32 s{S_M}, s{S_M}, s{S_TMP}")
    elif KM == 5:
        A(f"s_and_b32 s{S_G}, s2, 4")
        A(f"s_lshr_b32 s{S_M}, s2, 6")
        A(f"s_or_b32 s{S_G}, s{S_G}, s{S_M}")
        A(f"s_bfe_u32 s{S_M}, s2, 0x30003")
        A(f"s_lshl_b32 s{S_M}, s{S_M}, 2")
        A(f"s_and_b32 s{S_TMP}, s2, 3")
        A(f"s_or_b32 s{S_M}, s{S_M}, s{S_TMP}")
    elif KM == 0:
        A(f"s_and_b32 s{S_G}, s2, 7")
        A(f"s_lshr_b32 s{S_M}, s2, 3")
    else:
        nb_ = KM - 1
        A(f"s_and_b32 s{S_G}, s2, {(1 << nb_) - 1}")
        A(f"s_lshr_b32 s{S_M}, s2, {5 + nb_}")
        A(f"s_lshl_b32 s{S_M}, s{S_M}, {nb_}")
        A(f"s_or_b32 s{S_G}, s{S_G}, s{S_M}")
        A(f"s_bfe_u32 s{S_M}, s2, {hex((5 << 16) | nb_)}")
    A(f"s_mov_b32 s{S_MASK}, 0xffff0000")
    for (s, val) in ((S_C1, 65537.0), (S_K2, 65537.0 * SCALE), (S_SC, SCALE), (S_L2E, LOG2E)):
        A(f"s_mov_b32 s{s}, {fhex(val)}")
        A(f"s_mov_b32 s{s+1}, {fhex(val)}")
    L = V_LANE
    SM = f"s{S_MASK}"
    D = 4
    EARLYA = v2 and int(os.environ.get("EARLYA", "1"))
    if EARLYA:
        A(f"v_lshlrev_b32 v12, 4, v{L}")
        hookA()
    A(f"v_lshrrev_b32 v5, 3, v{L}")
    A(f"v_and_b32 v6, 7, v{L}")
    A("v_lshlrev_b32 v7, 1, v5")
    A("v_and_b32 v7, 4, v7")
    A("v_xor_b32 v6, v6, v7")
    A("v_lshlrev_b32 v6, 4, v6")
    A(f"v_lshl_add_u32 v{V_WQOFF}, v5, 13, v6")
    A(f"v_lshl_add_u32 v{V_WOOFF}, v5, 10, v6")
    A(f"s_lshl_b32 s{S_RB}, s{S_WAVE}, {11 if D6 else 13}")
    A(f"s_add_u32 s{S_RB}, s{S_RB}, {STG}")
    A(f"s_lshl_b32 s{S_OFF}, s{S_G}, 10")
    A(f"s_lshl_b32 s{S_TMP}, s{S_WAVE}, 7")
    A(f"s_add_u32 s{S_OFF}, s{S_OFF}, s{S_TMP}")
    A(f"v_lshrrev_b32 v5, 4, v{L}")
    A(f"v_and_b32 v6, 15, v{L}")
    A(f"s_lshl_b32 s{S_TMP}, s{S_WAVE}, 3")
    A(f"v_add_u32 v7, s{S_TMP}, v5")
    for j in range(2):
        A(f"v_add_u32 v8, {4*j}, v7")
        A("v_and_b32 v9, 15, v8")
        A("v_xor_b32 v9, v6, v9")
        A("v_lshlrev_b32 v9, 4, v9")
        A(f"v_lshl_add_u32 v{V_KOFF+j}, v7, 8, v9")
    A("v_lshlrev_b32 v9, 2, v5")
    A("v_xor_b32 v9, v6, v9")
    A("v_lshlrev_b32 v9, 4, v9")
    A(f"v_lshl_add_u32 v{V_VOFF}, v7, 8, v9")
    A(f"s_lshl_b32 s{S_KVM0}, s{S_WAVE}, 11")
    A(f"v_lshrrev_b32 v5, 5, v{L}")
    A(f"v_bfe_u32 v6, v{L}, 4, 1")
    A(f"v_bfe_u32 v7, v{L}, 2, 2")
    A(f"v_and_b32 v8, 1, v{L}")
    A(f"v_bfe_u32 v9, v{L}, 1, 1")
    A("v_lshl_or_b32 v8, v8, 1, v9")
    A("v_lshlrev_b32 v8, 3, v8")
    A("v_lshl_add_u32 v8, v6, 5, v8")
    A("v_lshl_add_u32 v10, v5, 3, v7")
    A("v_lshrrev_b32 v11, 1, v7")
    for nb in range(2):
        A(f"v_xor_b32 v12, {nb}, v11")
        A("v_lshl_add_u32 v12, v12, 6, v8")
        A("v_lshl_add_u32 v12, v10, 7, v12")
        A(f"v_add_u32 v{V_AADDR+nb}, s{S_RB}, v12")
        if D6: A(f"v_add_u32 v{V_AADDR2[nb]}, 65536, v{V_AADDR+nb}")
    for db in range(4):
        A(f"v_xor_b32 v12, {db}, v7")
        A("v_lshl_add_u32 v12, v12, 6, v8")
        A(f"v_lshl_add_u32 v12, v10, 8, v12")
        A(f"v_add_u32 v{V_VADDR+db}, {VRING}, v12")
    A(f"v_and_b32 v6, 31, v{L}")
    for j in range(8):
        A(f"v_or_b32 v7, {2*j}, v5")
        A("v_xor_b32 v7, v7, v6")
        A("v_and_b32 v7, 15, v7")
        A("v_lshlrev_b32 v7, 4, v7")
        A(f"v_lshl_add_u32 v{V_BADDR+j}, v6, 10, v7")
    A("v_and_b32 v7, 0x13, v6")
    A("v_bfe_u32 v8, v6, 2, 1")
    A("v_lshl_or_b32 v7, v8, 3, v7")
    A("v_bfe_u32 v8, v6, 3, 1")
    A("v_lshl_or_b32 v7, v8, 2, v7")
    for j in range(8):
        A(f"v_or_b32 v8, {2*j}, v5")
        A("v_xor_b32 v8, v8, v7")
        A("v_and_b32 v8, 15, v8")
        A("v_lshlrev_b32 v8, 4, v8")
        A(f"v_lshl_add_u32 v8, v7, 8, v8")
        A(f"v_add_u32 v{V_KADDR+j}, {KRING}, v8")
    A(f"s_lshl_b32 s{S_TMP}, s{S_WAVE}, 3")
    A(f"v_and_b32 v14, 48, v{L}")
    for i in range(8):
        A(f"s_add_u32 s{S_TMP+1}, s{S_TMP}, {i}")
        A(f"v_xor_b32 v15, s{S_TMP+1}, v{L}")
        A("v_and_or_b32 v15, v15, 15, v14")
        A("v_lshlrev_b32 v15, 4, v15")
        A(f"s_lshl_b32 s{S_TMP+1}, s{S_TMP+1}, 10")
        A(f"v_add_u32 v{V_QADDR+i}, s{S_TMP+1}, v15")
    A(f"s_lshl_b32 s{S_TMP}, s{S_M}, 16")
    A(f"s_lshl_b32 s{S_TMP+1}, s{S_WAVE}, 13")
    A(f"s_add_u32 s{S_TMP}, s{S_TMP}, s{S_TMP+1}")
    A(f"s_add_u32 s{S_TMP+1}, s{S_TMP}, 4096")
    A(f"v_lshlrev_b32 v12, 4, v{L}")
    A(f"v_lshlrev_b32 v13, 5, v{L}")
    A("s_waitcnt lgkmcnt(0)")
    make_srd(A, S_XN, 68, WS_XN, 2 * MB)
    make_srd(A, S_MOD, 68, WS_MOD, 3072 * 4)
    XR = V_S
    SA = V_S + 32; CA = V_S + 40
    def p0_loads():
        A(f"buffer_load_dwordx4 v[{CA}:{CA+3}], v13, s[{S_MOD}:{S_MOD+3}], 0 offen offset:2048"); vm.issue("mod")
        A(f"buffer_load_dwordx4 v[{CA+4}:{CA+7}], v13, s[{S_MOD}:{S_MOD+3}], 0 offen offset:2064"); vm.issue("mod")
        A(f"buffer_load_dwordx4 v[{SA}:{SA+3}], v13, s[{S_MOD}:{S_MOD+3}], 0 offen"); vm.issue("mod")
        A(f"buffer_load_dwordx4 v[{SA+4}:{SA+7}], v13, s[{S_MOD}:{S_MOD+3}], 0 offen offset:16"); vm.issue("mod")
        for i in range(8):
            A(f"buffer_load_dwordx4 v[{XR+4*i}:{XR+4*i+3}], v12, s[{S_XN}:{S_XN+3}], s{S_TMP + (i >> 2)} offen offset:{(i & 3) * 1024}")
            vm.issue(("x", i))
    if EARLYA: pass
    elif hookA: hookA()
    else: p0_loads()
    make_srd(A, S_WQ, 64, 0, 4 * MB)
    if hookB: pass
    elif D6: gemm_dma6(A, vm, 0, S_WQ, V_WQOFF, 8192)
    else: gemm_dma(A, vm, 0, S_WQ, V_WQOFF, 8192, D)
    A(f"s_lshl_b32 s{S_TMP}, s{S_G}, 19")
    A(f"s_add_u32 s{S_TMP+1}, s{S_TMP}, {1536 * 256}")
    make_srd(A, S_K, 60, f"s{S_TMP+1}", 512 * 256)
    make_srd(A, S_V, 62, f"s{S_TMP+1}", 512 * 256)
    make_srd(A, S_WO, 66, f"s{S_TMP}", 512 * 1024)
    psz = 2 if PART_BF16 else 4
    A(f"s_mov_b32 s{S_SL}, {fhex(SCALE*LOG2E)}")
    PL = int(os.environ.get("PL", "1")) and emb
    if PL:
        A(f"s_lshl_b32 s{S_TMP+2}, s{S_M}, 3")
        A(f"s_add_u32 s{S_TMP+2}, s{S_TMP+2}, s{S_G}")
        A(f"s_lshl_b32 s{S_TMP+2}, s{S_TMP+2}, 16")
        A(f"s_add_u32 s{S_TMP+2}, s{S_TMP+2}, {WS_PART}")
        make_srd(A, S_P, 68, f"s{S_TMP+2}", 65536)
    else:
        A(f"s_mul_i32 s{S_TMP+2}, s{S_G}, {2048 * 512 * psz}")
        A(f"s_add_u32 s{S_TMP+2}, s{S_TMP+2}, {WS_PART}")
        make_srd(A, S_P, 68, f"s{S_TMP+2}", 2048 * 512 * psz)
    if DEBUG or TIMING:
        make_srd(A, S_DBG, 68, WS_DBG, 32 * MB)
    stamp(True); stamp()
    SCR = STG + 16384
    if hookB and v2:
        LDE = int(os.environ.get("LDE", "0"))
        KVL = int(os.environ.get("KVL", "1"))
        def kvpf():
            A(f"v_lshlrev_b32 v5, 7, v{L}")
            A(f"s_lshl_b32 s{S_TMP}, s{S_M}, 12")
            A(f"s_add_u32 s{S_TMP+1}, s{S_TMP}, 4096")
            A(f"s_cmp_lg_u32 s{S_WAVE}, 4")
            A("s_cbranch_scc1 .Lk1_nkv")
            A("s_mov_b32 exec_hi, 0")
            A(f"buffer_load_dword v15, v5, s[{S_K}:{S_K+3}], s{S_TMP} offen")
            A(f"buffer_load_dword v15, v5, s[{S_V}:{S_V+3}], s{S_TMP} offen")
            A("s_mov_b64 exec, -1")
            A.label(".Lk1_nkv")
        def loader():
            for st in range(LDE): gemm_dma6(A, vm, st, S_WQ, V_WQOFF, 8192)
            A(f"s_sub_u32 s{S_RB}, s{S_RB}, 8192")
            A(f"s_sub_u32 s{S_OFF}, s{S_OFF}, {LDE * 16 * 8192 + 512}")
            for st in range(LDE): gemm_dma6(A, vm, st, S_WQ, V_WQOFF, 8192)
            A(f"s_add_u32 s{S_RB}, s{S_RB}, 8192")
            A(f"s_add_u32 s{S_OFF}, s{S_OFF}, 512")
            if not KVL: kvpf()
        def cfix():
            A(f"s_add_u32 s{S_OFF}, s{S_OFF}, {LDE * 16 * 8192}")
        def xn_loads():
            vm.ops = []
            A(f"s_lshl_b32 s{S_TMP}, s{S_M}, 16")
            A(f"s_lshl_b32 s{S_TMP+1}, s{S_WAVE}, 13")
            A(f"s_add_u32 s{S_TMP}, s{S_TMP}, s{S_TMP+1}")
            A(f"s_add_u32 s{S_TMP+1}, s{S_TMP}, 4096")
            for i in range(8):
                A(f"buffer_load_dwordx4 v[{XR+4*i}:{XR+4*i+3}], v12, s[{S_XN}:{S_XN+3}], s{S_TMP + (i >> 2)} offen offset:{(i & 3) * 1024}")
                vm.issue(("x", i))
        def ownfill():
            for st in range(LDE): gemm_dma6(A, vm, st, S_WQ, V_WQOFF, 8192)
        hookB(ownfill if int(os.environ.get("MEGA", "6")) == 6 else loader, cfix, xn_loads)
        lg.ops = []
        A(f"v_add_u32 v2, {SCR + 4096}, v13")
        A(f"ds_read_b128 v[{CA}:{CA+3}], v2 offset:2048")
        A(f"ds_read_b128 v[{CA+4}:{CA+7}], v2 offset:2064")
        A(f"ds_read_b128 v[{SA}:{SA+3}], v2")
        A(f"ds_read_b128 v[{SA+4}:{SA+7}], v2 offset:16")
        A("s_waitcnt lgkmcnt(0)")
    elif hookB:
        def early():
            for st in range(6): gemm_dma6(A, vm, st, S_WQ, V_WQOFF, 8192)
            A(f"s_cmp_lg_u32 s{S_WAVE}, 6")
            A("s_cbranch_scc1 .Lk1_e6")
            A(f"s_add_u32 s{S_RB}, s{S_RB}, 2048")
            A(f"s_sub_u32 s{S_OFF}, s{S_OFF}, {6 * 16 * 8192 - 128}")
            for st in range(6): gemm_dma6(A, vm, st, S_WQ, V_WQOFF, 8192)
            A(f"s_sub_u32 s{S_RB}, s{S_RB}, 2048")
            A(f"s_sub_u32 s{S_OFF}, s{S_OFF}, 128")
            A.label(".Lk1_e6")
            A(f"v_lshlrev_b32 v5, 6, v{L}")
            A(f"s_lshl_b32 s{S_TMP}, s{S_M}, 12")
            A(f"buffer_load_dword v15, v5, s[{S_K}:{S_K+3}], s{S_TMP} offen")
            A(f"buffer_load_dword v15, v5, s[{S_V}:{S_V+3}], s{S_TMP} offen")
        def w7():
            A(f"s_add_u32 s{S_OFF}, s{S_OFF}, {6 * 16 * 8192}")
        hookB(0, early, w7)
        vm.ops = []; lg.ops = []
        A(f"s_lshl_b32 s{S_TMP}, s{S_M}, 16")
        A(f"s_lshl_b32 s{S_TMP+1}, s{S_WAVE}, 13")
        A(f"s_add_u32 s{S_TMP}, s{S_TMP}, s{S_TMP+1}")
        A(f"s_add_u32 s{S_TMP+1}, s{S_TMP}, 4096")
        p0_loads()
    vm.wait("mod")
    for j in range(0, 8 if not v2 else 0, 2):
        A(f"v_add_f32 v{CA+j}, 1.0, v{CA+j}")
        A(f"v_add_f32 v{CA+j+1}, 1.0, v{CA+j+1}")
        round_bf16_2(A, CA + j, CA + j + 1, V_T, SM)
    for i in range(8):
        x = XR + 4 * i
        vm.wait(("x", i))
        for j in range(4):
            a = 2 + 2 * j
            A(f"v_lshlrev_b32 v{a}, 16, v{x+j}")
            A(f"v_and_b32 v{a+1}, {SM}, v{x+j}")
        for j in range(0, 8, 2):
            A(f"v_pk_mul_f32 v[{2+j}:{3+j}], v[{2+j}:{3+j}], v[{CA+j}:{CA+j+1}]")
        for j in range(4):
            a = 2 + 2 * j
            A(f"v_cvt_pk_bf16_f32 v{x+j}, v{a}, v{a+1}")
        for j in range(4):
            a = 2 + 2 * j
            A(f"v_lshlrev_b32 v{a}, 16, v{x+j}")
            A(f"v_and_b32 v{a+1}, {SM}, v{x+j}")
        for j in range(0, 8, 2):
            A(f"v_pk_add_f32 v[{2+j}:{3+j}], v[{2+j}:{3+j}], v[{SA+j}:{SA+j+1}]")
        for j in range(4):
            a = 2 + 2 * j
            A(f"v_cvt_pk_bf16_f32 v{x+j}, v{a}, v{a+1}")
        A(f"ds_write_b128 v{V_QADDR+i}, v[{x}:{x+3}]")
        lg.issue("hw")
        if hookB and v2:
            if LDE + i < 5: gemm_dma6(A, vm, LDE + i, S_WQ, V_WQOFF, 8192)
        elif hookB: pass
        elif D6:
            if i in (1, 3, 5, 6, 7): gemm_dma6(A, vm, {1: 1, 3: 2, 5: 3, 6: 4, 7: 5}[i], S_WQ, V_WQOFF, 8192)
        elif i in (1, 3, 5):
            gemm_dma(A, vm, (i + 1) // 2, S_WQ, V_WQOFF, 8192, D)
    if not D6:
        k_dma(A, vm, 0)
        k_dma(A, vm, 1)
    if PREFETCH and not hookB:
        A(f"v_lshlrev_b32 v5, 6, v{L}")
        A(f"s_lshl_b32 s{S_TMP}, s{S_M}, 12")
        A(f"buffer_load_dword v15, v5, s[{S_K}:{S_K+3}], s{S_TMP} offen"); vm.issue("pf")
        A(f"buffer_load_dword v15, v5, s[{S_V}:{S_V+3}], s{S_TMP} offen"); vm.issue("pf")
    if hookC:
        if KVL: kvpf()
        hookC()
    lg.waitall()
    stamp()
    A("s_barrier")
    stamp()
    if D6:
        def tail1(ks):
            if ks == 26: k_dma(A, vm, 0)
            if ks == 27: k_dma(A, vm, 1)
            if ks == 28: v_dma(A, vm, 0)
            if ks == 29: v_dma(A, vm, 1)
            if ks == 31: k_dma(A, vm, 2)
        gemm_core6(A, vm, lg, S_WQ, V_WQOFF, 8192, 5 if v2 else 6, tail1, bars=eval(os.environ.get('B1', '()')))
    else:
        gemm_core(A, vm, lg, S_WQ, V_WQOFF, 8192, D)
    stamp()
    A("s_barrier")
    if not D6:
        v_dma(A, vm, 0)
        k_dma(A, vm, 2)
        v_dma(A, vm, 1)
    A(f"s_and_b32 s{S_TMP}, s{S_WAVE}, 1")
    A(f"s_lshr_b32 s{S_TMP+1}, s{S_WAVE}, 1")
    A(f"s_lshl_b32 s{S_TMP+1}, s{S_TMP+1}, 8")
    A(f"s_cmp_eq_u32 s{S_TMP}, 1")
    A(f"s_cselect_b64 vcc, -1, 0")
    A(f"v_mov_b32 v{V_ALPHA}, s{S_SL}")
    for j in range(4):
        A(f"v_cndmask_b32 v{2+j}, v{V_BADDR+j}, v{V_BADDR+4+j}, vcc")
        A(f"v_add_u32 v{2+j}, s{S_TMP+1}, v{2+j}")
    for nb in range(2):
        for rb in range(2):
            acc = V_ACC + (nb * 2 + rb) * 16
            for mp in range(2):
                d = V_S + (nb * 4 + rb * 2 + mp) * 4
                if CT:
                    for e in range(0, 8, 2):
                        A(f"v_pk_mul_f32 v[{acc+8*mp+e}:{acc+8*mp+e+1}], v[{acc+8*mp+e}:{acc+8*mp+e+1}], v[{V_ALPHA}:{V_ALPHA+1}] op_sel_hi:[1,0]")
                for e in range(4):
                    A(f"v_cvt_pk_bf16_f32 v{d+e}, v{acc+8*mp+2*e}, v{acc+8*mp+2*e+1}")
                A(f"ds_write_b128 v{2+2*nb+mp}, v[{d}:{d+3}] offset:{rb*32768}")
                lg.issue("qw")
                if DEBUG:
                    A(f"v_and_b32 v8, 31, v{L}")
                    A(f"v_lshrrev_b32 v9, 5, v{L}")
                    A("v_lshlrev_b32 v8, 13, v8")
                    A("v_lshl_add_u32 v8, v9, 4, v8")
                    A(f"s_lshl_b32 s{S_TMP+2}, s{S_M}, 19")
                    A(f"s_lshl_b32 s{S_TMP+3}, s{S_G}, 10")
                    A(f"s_add_u32 s{S_TMP+2}, s{S_TMP+2}, s{S_TMP+3}")
                    A(f"s_lshl_b32 s{S_TMP+3}, s{S_WAVE}, 7")
                    A(f"s_add_u32 s{S_TMP+2}, s{S_TMP+2}, s{S_TMP+3}")
                    A(f"s_add_u32 s{S_TMP+2}, s{S_TMP+2}, {rb*32*8192 + nb*64 + mp*32}")
                    A(f"buffer_store_dwordx4 v[{d}:{d+3}], v8, s[{S_DBG}:{S_DBG+3}], s{S_TMP+2} offen")
                    vm.issue("dbg")
    A(f"s_and_b32 s{S_TMP}, s{S_WAVE}, 3")
    A(f"s_lshl_b32 s{S_TMP}, s{S_TMP}, 8")
    A(f"s_lshr_b32 s{S_TMP+1}, s{S_WAVE}, 2")
    A(f"s_lshl_b32 s{S_TMP+1}, s{S_TMP+1}, 15")
    A(f"s_add_u32 s{S_QOFF}, s{S_TMP}, s{S_TMP+1}")
    for j in range(8):
        A(f"v_add_u32 v{V_QADDR+j}, s{S_QOFF}, v{V_BADDR+j}")
    lg.waitall()
    vm.wait(("k", 0))
    A("s_barrier")
    stamp()
    if PRIO:
        A(f"s_cmp_lt_u32 s{S_WAVE}, 4")
        A("s_cbranch_scc1 .Lk1_noprio" if PRIO == 1 else "s_cbranch_scc0 .Lk1_noprio")
        A("s_setprio 1")
        A.label(".Lk1_noprio")
    for j in range(8):
        A(f"ds_read_b128 v[{V_Q+4*j}:{V_Q+4*j+3}], v{V_QADDR+j}")
        lg.issue("q")
    seq = []
    for kb in range(2):
        for j in range(8):
            seq.append(("k", 0, kb, j))
    for t in range(8):
        if t > 0:
            for db in range(4): seq.append(("v", t - 1, 3, db))
        if t + 1 < 8:
            for kb in range(2):
                for j in range(8): seq.append(("k", t + 1, kb, j))
        for ks in range(3):
            for db in range(4): seq.append(("v", t, ks, db))
    for db in range(4): seq.append(("v", 7, 3, db))
    state = {"issued": 0, "limit": 0}
    def issue_frag(i):
        kind, t, a, b = seq[i]
        f = V_F + (i % NF) * 4
        if (EXPT & 4) and i >= 8: return
        if (EXPT & 16) and (i & 1): return
        if kind == "k":
            A(f"ds_read_b128 v[{f}:{f+3}], v{V_KADDR+b} offset:{((t + 1) % 3) * 16384 + a * 8192}")
            lg.issue(("fr", i))
        else:
            o = (t % 3) * 16384 + a * 4096
            A(f"ds_read_b64_tr_b16 v[{f}:{f+1}], v{V_VADDR+b} offset:{o}")
            lg.issue(("fr", i))
            A(f"ds_read_b64_tr_b16 v[{f+2}:{f+3}], v{V_VADDR+b} offset:{o + 1024}")
            lg.issue(("fr", i))
    def avail(i, epoch):
        kind, t, a, b = seq[i]
        return (t - 1 <= epoch) if kind == "k" else (t <= epoch)
    def runahead(cur, epoch):
        while state["issued"] < len(seq) and state["issued"] <= cur + RA and avail(state["issued"], epoch):
            issue_frag(state["issued"]); state["issued"] += 1
    def mfma(i, epoch):
        kind, t, a, b = seq[i]
        runahead(i - 1, epoch)
        assert state["issued"] > i
        f = V_F + (i % NF) * 4
        lg.wait(("fr", i))
        if kind == "k":
            s = V_S + (t & 1) * 32 + a * 16
            c = ("0" if (t == 0 or not CT) else f"v[{V_NB}:{V_NB+15}]") if b == 0 else f"v[{s}:{s+15}]"
            A(f"v_mfma_f32_32x32x16_bf16 v[{s}:{s+15}], v[{f}:{f+3}], v[{V_Q+4*b}:{V_Q+4*b+3}], {c}")
        else:
            o = V_ACC + b * 16
            p = V_S + (t & 1) * 32 + 4 * a
            c = "0" if (t == 0 and a == 0) else f"v[{o}:{o+15}]"
            A(f"v_mfma_f32_32x32x16_bf16 v[{o}:{o+15}], v[{f}:{f+3}], v[{p}:{p+3}], {c}")
        runahead(i, epoch)
    def seg(idx, n, valu, epoch):
        nv = len(valu); k = 0
        def em(x):
            if isinstance(x, list):
                for y in x:
                    if y.endswith(":"): A.label(y[:-1])
                    else: A(y)
            else: A(x)
        if n == 0:
            for x in valu: em(x)
            return idx
        for m_ in range(n):
            mfma(idx + m_, epoch)
            upto = (nv * (m_ + 1) + n - 1) // n
            while k < upto:
                em(valu[k]); k += 1
        return idx + n
    if DOT2:
        assert NOMAX
        A(f"v_mov_b32 v{PSUM}, 0"); A(f"v_mov_b32 v{PSUM+1}, 0"); A("v_mov_b32 v14, 0x3f803f80")
    idx = seg(0, 16, [], -1)
    for t in range(8):
        if t + 1 < 8: vm.wait(("k", t + 1))
        vm.wait(("v", t))
        if not (EXPT & 8): A("s_barrier")
        if t >= 0 and t + 3 < 8: k_dma(A, vm, t + 3)
        if t >= 1 and t + 1 < 8: v_dma(A, vm, t + 1)
        PFMODE = int(os.environ.get("PFMODE", "1"))
        if PREFETCH and t == 1:
            A("v_lshlrev_b32 v12, 6, v0")
            A(f"s_lshl_b32 s{S_TMP}, s{S_M}, 14")
            A(f"s_add_u32 s{S_TMP+1}, s{S_TMP}, 16384")
            A(f"s_mov_b32 s{S_XN}, s{S_WO}")
            A(f"s_mov_b32 s{S_XN+1}, s{S_WO+1}")
            A(f"s_mov_b32 s{S_XN+2}, s{S_TMP+1}")
            A(f"buffer_load_dword v15, v12, s[{S_XN}:{S_XN+3}], s{S_TMP} offen"); vm.issue("pf")
        if PREFETCH and PFMODE < 2:
            for (tt, p, sz) in ((2, 92, 512*1024), (2, 94, 512*1024), (3, 96, 1792*1024), (4, 98, 1792*1024)):
                if t != (1 if PFMODE == 0 else tt): continue
                per = sz // 256
                if p == 96 and int(os.environ.get("K5N", "0")): per = (56 * int(os.environ.get('W3S', '32768')) // 256 + 63) // 64 * 64
                A(f"s_mul_i32 s{S_TMP}, s2, {per}")
                if p == 96 and int(os.environ.get("K5N", "0")):
                    A(f"s_add_u32 s{S_TMP}, s{S_TMP}, {28 * MB}")
                    p = 68
                make_srd(A, S_XN, p, f"s{S_TMP}", per)
                A(f"buffer_load_dword v15, v12, s[{S_XN}:{S_XN+3}], 0 offen"); vm.issue("pf")
        XPF = int(os.environ.get("XPF", "0"))
        if XPF and t in (5, 6):
            for (tt, p, sz, bit) in ((5, 96, 1792*1024, 1), (6, 98, 1792*1024, 2), (5, 92, 512*1024, 4), (6, 94, 512*1024, 4)):
                if t != tt or not (XPF & bit): continue
                per = sz // 32
                A(f"s_lshr_b32 s{S_TMP}, s2, 3")
                A(f"s_mul_i32 s{S_TMP}, s{S_TMP}, {per}")
                make_srd(A, S_XN, p, f"s{S_TMP}", per)
                A("v_lshlrev_b32 v13, 7, v0")
                A(f"buffer_load_dword v15, v13, s[{S_XN}:{S_XN+3}], 0 offen"); vm.issue("pf")
        if t == 7 and D6:
            A(f"s_lshl_b32 s{S_OFF}, s{S_WAVE}, 7")
            for st in range(4):
                gemm_dma6(A, vm, st, S_WO, V_WOOFF, 1024)
        elif t == 7:
            A(f"s_add_u32 s{S_RB}, s{S_RB}, 32768")
            A(f"s_lshl_b32 s{S_OFF}, s{S_WAVE}, 7")
            for nb in range(2):
                A(f"v_add_u32 v{V_AADDR+nb}, 32768, v{V_AADDR+nb}")
            for st in range(D):
                gemm_dma(A, vm, st, S_WO, V_WOOFF, 1024, D)
        mxl = sm_max(t)
        if t == 0:
            mxl = ["s_nop 7", "s_nop 3"] + mxl
        idx = seg(idx, 4 if t > 0 else 0, mxl, t)
        b = sm_quarter(t, 0) + sm_rescale(t) + sm_quarter(t, 1) + ["s_nop 1"]
        idx = seg(idx, 16 if t + 1 < 8 else 0, b, t)
        q3 = sm_quarter(t, 3)
        h = len(q3) // 3
        idx = seg(idx, 8, sm_quarter(t, 2) + ["s_nop 1"] + q3[:h], t)
        idx = seg(idx, 4, q3[h:] + sm_lupd(t) + ["s_nop 1"], t)
        stamp()
    idx = seg(idx, 4, [], 7)
    assert idx == len(seq)
    if DOT2: A(f"v_add_f32 v{V_L}, v{PSUM}, v{PSUM+1}")
    A(f"v_mov_b32 v2, v{V_L}")
    A(f"v_mov_b32 v3, v{V_L}")
    A("s_nop 1")
    A(f"v_permlane32_swap_b32 v2, v3")
    A("s_nop 1")
    A(f"v_add_f32 v{V_L}, v2, v3")
    for j in range(8):
        A(f"v_add_u32 v{V_QADDR+j}, s{S_QOFF}, v{V_BADDR+j}")
    A(f"v_rcp_f32 v{V_ALPHA}, v{V_L}")
    A("s_nop 7")
    A("s_nop 3")
    for db in range(4):
        o = V_ACC + db * 16
        for mp in range(2):
            d = V_S + (db * 2 + mp) * 4
            for e in range(0, 8, 2):
                A(f"v_pk_mul_f32 v[{o+8*mp+e}:{o+8*mp+e+1}], v[{o+8*mp+e}:{o+8*mp+e+1}], v[{V_ALPHA}:{V_ALPHA+1}] op_sel_hi:[1,0]")
            for e in range(4):
                A(f"v_cvt_pk_bf16_f32 v{d+e}, v{o+8*mp+2*e}, v{o+8*mp+2*e+1}")
            A(f"ds_write_b128 v{V_QADDR+2*db+mp}, v[{d}:{d+3}]")
            lg.issue("ow")
            if DEBUG:
                A(f"v_and_b32 v5, 31, v{L}")
                A(f"v_lshrrev_b32 v6, 5, v{L}")
                A("v_lshlrev_b32 v5, 13, v5")
                A("v_lshl_add_u32 v5, v6, 4, v5")
                A(f"s_lshl_b32 s{S_TMP+2}, s{S_M}, 19")
                A(f"s_lshl_b32 s{S_TMP+3}, s{S_G}, 10")
                A(f"s_add_u32 s{S_TMP+2}, s{S_TMP+2}, s{S_TMP+3}")
                A(f"s_and_b32 s{S_TMP+3}, s{S_WAVE}, 3")
                A(f"s_lshl_b32 s{S_TMP+3}, s{S_TMP+3}, 8")
                A(f"s_add_u32 s{S_TMP+2}, s{S_TMP+2}, s{S_TMP+3}")
                A(f"s_lshr_b32 s{S_TMP+3}, s{S_WAVE}, 2")
                A(f"s_lshl_b32 s{S_TMP+3}, s{S_TMP+3}, 18")
                A(f"s_add_u32 s{S_TMP+2}, s{S_TMP+2}, s{S_TMP+3}")
                A(f"s_add_u32 s{S_TMP+2}, s{S_TMP+2}, {16*MB + db*64 + mp*32}")
                A(f"buffer_store_dwordx4 v[{d}:{d+3}], v5, s[{S_DBG}:{S_DBG+3}], s{S_TMP+2} offen")
                vm.issue("dbg")
    lg.waitall()
    A("s_barrier")
    stamp()
    if D6: gemm_core6(A, vm, lg, S_WO, V_WOOFF, 1024, 4, bars=eval(os.environ.get('B3', '()')))
    else: gemm_core(A, vm, lg, S_WO, V_WOOFF, 1024, D)
    stamp()
    if int(os.environ.get("TSTORE", "1")) and PART_BF16:
        A(f"v_and_b32 v5, 31, v{L}")
        A(f"v_lshrrev_b32 v6, 5, v{L}")
        A("v_and_b32 v7, 7, v5")
        if D6:
            A("v_lshrrev_b32 v8, 4, v5")
            A("v_and_b32 v5, 15, v5")
            A("v_lshl_add_u32 v5, v8, 7, v5")
        for j in range(4):
            A(f"v_or_b32 v8, {2*j}, v6")
            A("v_xor_b32 v8, v8, v7")
            A("v_lshlrev_b32 v8, 4, v8")
            A("v_lshl_add_u32 v8, v5, 7, v8")
            A(f"v_add_u32 v{10+j}, s{S_RB}, v8")
        A(f"v_lshrrev_b32 v7, 3, v{L}")
        A(f"v_and_b32 v8, 7, v{L}")
        A("v_xor_b32 v9, v8, v7")
        A("v_lshlrev_b32 v9, 4, v9")
        A("v_lshl_add_u32 v9, v7, 7, v9")
        A(f"v_add_u32 v9, s{S_RB}, v9")
        A("v_lshlrev_b32 v8, 4, v8")
        A("v_lshl_add_u32 v8, v7, 10, v8")
        if PL:
            A(f"s_lshl_b32 s{S_TMP}, s{S_WAVE}, 7")
        else:
            A(f"s_lshl_b32 s{S_TMP}, s{S_M}, 16")
            A(f"s_lshl_b32 s{S_TMP+1}, s{S_WAVE}, 7")
            A(f"s_add_u32 s{S_TMP}, s{S_TMP}, s{S_TMP+1}")
        for nb in range(2):
            for rb in range(2):
                acc = V_ACC + (nb * 2 + rb) * 16
                for mp in range(2):
                    d = V_S + (nb * 4 + rb * 2 + mp) * 4
                    for e in range(4):
                        A(f"v_cvt_pk_bf16_f32 v{d+e}, v{acc+8*mp+2*e}, v{acc+8*mp+2*e+1}")
                    A(f"ds_write_b128 v{10+2*nb+mp}, v[{d}:{d+3}] offset:{rb*(32768 if D6 else 4096)}")
        A("s_waitcnt lgkmcnt(0)")
        for i in range(8):
            A(f"ds_read_b128 v[{V_S+32+4*i}:{V_S+32+4*i+3}], v9 offset:{((i >> 1) * 16384 + (i & 1) * 1024) if D6 else i*1024}")
        for i in range(8):
            A(f"s_waitcnt lgkmcnt({7-i})")
            A(f"buffer_store_dwordx4 v[{V_S+32+4*i}:{V_S+32+4*i+3}], v8, s[{S_P}:{S_P+3}], s{S_TMP} offen {os.environ.get('PSTF','sc1')}")
            if i < 7: A(f"s_add_u32 s{S_TMP}, s{S_TMP}, 8192")
    else:
        A(f"v_and_b32 v5, 31, v{L}")
        A(f"v_lshrrev_b32 v6, 5, v{L}")
        sh = 10 if PART_BF16 else 11
        A(f"v_lshlrev_b32 v5, {sh}, v5")
        A(f"v_lshl_add_u32 v5, v6, {4 if PART_BF16 else 5}, v5")
        A(f"s_lshl_b32 s{S_TMP}, s{S_M}, {sh + 6}")
        A(f"s_lshl_b32 s{S_TMP+1}, s{S_WAVE}, {7 if PART_BF16 else 8}")
        A(f"s_add_u32 s{S_TMP}, s{S_TMP}, s{S_TMP+1}")
        A(f"s_add_u32 s{S_TMP+1}, s{S_TMP}, {32 << sh}")
        A("s_nop 7")
        A("s_nop 3")
        for nb in range(2):
            for rb in range(2):
                acc = V_ACC + (nb * 2 + rb) * 16
                for mp in range(2):
                    if PART_BF16:
                        d = V_S + (nb * 4 + rb * 2 + mp) * 4
                        for e in range(4):
                            A(f"v_cvt_pk_bf16_f32 v{d+e}, v{acc+8*mp+2*e}, v{acc+8*mp+2*e+1}")
                        A(f"buffer_store_dwordx4 v[{d}:{d+3}], v5, s[{S_P}:{S_P+3}], s{S_TMP+rb} offen offset:{(32*nb+16*mp)*2} {os.environ.get('PSTF','sc1')}")
                    else:
                        for h4 in range(2):
                            A(f"buffer_store_dwordx4 v[{acc+8*mp+4*h4}:{acc+8*mp+4*h4+3}], v5, s[{S_P}:{S_P+3}], s{S_TMP+rb} offen offset:{(32*nb+16*mp+4*h4)*4}")
    if TIMING:
        A("s_waitcnt vmcnt(0)")
        stamp(); stamp(True)
        stamp.flush()
    if emb: return
    A("s_endpgm")
    A.raw(kernel_desc(name, 256, 102, 256))
    return (name, (256, 1, 1), (512, 1, 1), 163840)
```

```python
from asmlib import *
from gen_k0 import *
import gen_k1 as K1
from gen_k1 import Cnt
from gen_ka import ln_rows, round_multi, pack8, GK0, GK1
from gen_g64 import WS_STAT, WS_CS
import os
MT = int(os.environ.get("MT", "0"))
HD = int(os.environ.get("HD", "0"))
PT = int(os.environ.get("PT", "0"))
TLW = int(os.environ.get("TLW", "0"))
MP = int(os.environ.get("MP", "1"))
W0M = int(os.environ.get("MEGA", "5")) == 5 and int(os.environ.get("W0M", "1"))
EB = int(os.environ.get("EB", "0"))
DLY = int(os.environ.get("DLY", "1"))
WQE = int(os.environ.get("WQE", "0"))
ONE = int(os.environ.get("MEGA", "5")) >= 4
V2 = int(os.environ.get("MEGA", "5")) == 5
MODP = 12288; CSP = 8192
FP = WS_FLAG + 0x20000; FQ_ = WS_FLAG + 0x30000
S_WAVE = 40; S_M = 41; S_J = 42; S_MASK = 43; S_RB = 44; S_GOFF = 45; S_TMP = 48; S_WOFF = 58
S_W = 32; V_W = 6
P_X = 60; P_OUT = 62; P_WS = 68; P_W = 84
SM = f"s{S_MASK}"
L = 1
RG = 40960; RS = 272
K5RB = 18432; K5D = 11
L2PF = int(os.environ.get('L2PF', '0'))
PFE = int(os.environ.get('PFE', '3'))
NE = int(os.environ.get('NE', '3')) if PFE == 2 else 0

def pk(A, op, d, a, b, c=None, sel=""):
    ops = ", ".join(f"v[{x}:{x+1}]" for x in ((d, a, b) if c is None else (d, a, b, c)))
    A(f"{op} {ops} {sel}".rstrip())

FLN = int(os.environ.get("FLN", "1"))
_ln_slow = ln_rows
def ln_fast(A, R, smask, final_round=True):
    for X, T in R:
        assert X[0] % 2 == 0 and T[0] % 2 == 0
        pk(A, "v_pk_add_f32", T[0], X[0], X[2]); pk(A, "v_pk_mul_f32", T[2], X[0], X[0])
        pk(A, "v_pk_add_f32", T[4], X[4], X[6]); pk(A, "v_pk_mul_f32", T[6], X[2], X[2])
    for X, T in R:
        pk(A, "v_pk_fma_f32", T[2], X[4], X[4], T[2]); pk(A, "v_pk_fma_f32", T[6], X[6], X[6], T[6])
        pk(A, "v_pk_add_f32", T[0], T[0], T[4])
    for X, T in R:
        pk(A, "v_pk_add_f32", T[2], T[2], T[6])
        A(f"v_add_f32 v{T[0]}, v{T[0]}, v{T[1]}")
    for X, T in R:
        A(f"v_add_f32 v{T[1]}, v{T[2]}, v{T[3]}")
    wave_allreduce(A, "v_add_f32", [t for X, T in R for t in (T[0], T[1])], [t for X, T in R for t in (T[2], T[3])], [t for X, T in R for t in (T[4], T[5])])
    for X, T in R:
        A(f"v_mul_f32 v{T[0]}, {fhex(1/512)}, v{T[0]}")
        A(f"v_mul_f32 v{T[1]}, {fhex(1/512)}, v{T[1]}")
    for X, T in R:
        A(f"v_fma_f32 v{T[1]}, -v{T[0]}, v{T[0]}, v{T[1]}")
    for X, T in R:
        A(f"v_max_f32 v{T[1]}, 0, v{T[1]}")
    for X, T in R:
        A(f"v_cvt_pk_bf16_f32 v{T[3]}, v{T[0]}, v{T[1]}")
    for X, T in R:
        A(f"v_and_b32 v{T[1]}, {smask}, v{T[3]}")
        A(f"v_lshlrev_b32 v{T[2]}, 16, v{T[3]}")
    for X, T in R:
        A(f"v_add_f32 v{T[1]}, {fhex(1e-5)}, v{T[1]}")
        for j in range(0, 4, 2): pk(A, "v_pk_add_f32", X[j], X[j], T[2], None, "op_sel_hi:[1,0] neg_lo:[0,1] neg_hi:[0,1]")
    for X, T in R:
        A(f"v_cvt_pk_bf16_f32 v{T[1]}, v{T[1]}, v{T[1]}")
        for j in range(4, 8, 2): pk(A, "v_pk_add_f32", X[j], X[j], T[2], None, "op_sel_hi:[1,0] neg_lo:[0,1] neg_hi:[0,1]")
    for X, T in R:
        A(f"v_lshlrev_b32 v{T[1]}, 16, v{T[1]}")
    for X, T in R:
        A(f"v_sqrt_f32 v{T[0]}, v{T[1]}")
        round_multi(A, X[:4], T[4:6], smask)
    for X, T in R:
        A(f"v_cvt_pk_bf16_f32 v{T[0]}, v{T[0]}, v{T[0]}")
    for X, T in R:
        A(f"v_lshlrev_b32 v{T[0]}, 16, v{T[0]}")
    for X, T in R:
        A(f"v_rcp_f32 v{T[2]}, v{T[0]}")
        round_multi(A, X[4:], T[4:6], smask)
    if FLN == 2:
        for X, T in R:
            for j in range(0, 8, 2): pk(A, "v_pk_mul_f32", X[j], X[j], T[2], None, "op_sel_hi:[1,0]")
    else:
        for X, T in R:
            for h in range(2):
                js = (4 * h, 4 * h + 2)
                for k, j in enumerate(js): pk(A, "v_pk_mul_f32", T[4+2*k], X[j], T[2], None, "op_sel_hi:[1,0]")
                for k, j in enumerate(js): pk(A, "v_pk_fma_f32", X[j], T[4+2*k], T[0], X[j], "op_sel_hi:[1,0,1] neg_lo:[1,0,0] neg_hi:[1,0,0]")
                for k, j in enumerate(js): pk(A, "v_pk_fma_f32", X[j], X[j], T[2], T[4+2*k], "op_sel_hi:[1,0,1]")
    if final_round:
        for X, T in R: round_multi(A, X, T[4:8], smask)
def ln_rows(A, R, smask, final_round=True):
    return ln_fast(A, R, smask, final_round) if FLN else _ln_slow(A, R, smask)

class Cap:
    def __init__(self, A): self.A = A
    def __enter__(self):
        self.sv = self.A.lines; self.A.lines = []; return self
    def __exit__(self, *a):
        self.out = self.A.lines; self.A.lines = self.sv

def interleave(A, mf, fill):
    n = len(mf); k = 0
    for i, m in enumerate(mf):
        A(m)
        upto = (len(fill) * (i + 1) + n - 1) // n
        while upto < len(fill) and upto > 0 and not (fill[upto - 1].lstrip().startswith(("buffer_", "ds_", "v_", "s_waitcnt")) or fill[upto - 1].lstrip().startswith(f"s_add_u32 s{S_WOFF}")): upto += 1
        A.lines.extend(fill[k:upto]); k = max(k, upto)

class Mega:
    def __init__(self, A):
        self.A = A
        self.vm = Cnt(A, "vmcnt", 63); self.lg = Cnt(A, "lgkmcnt", 15)
    def stamp(self, idx):
        if HD:
            hmap = {0: 2, 3: 3, 4: 4, 7: 5, 8: 6, 11: 7, 12: 8, 15: 9, 16: 10, 19: 11, 20: 12, 21: 13, 22: 14}
            if int(os.environ.get('HK', '0')): hmap = {0: 2, 22: 14}
            if idx not in hmap: return
            A = self.A
            lab = A.newlabel("hd")
            A("s_waitcnt lgkmcnt(0)")
            A("s_load_dwordx2 s[76:77], s[0:1], 104")
            A("s_memrealtime s[70:71]")
            A("s_waitcnt lgkmcnt(0)")
            A("s_mov_b32 s72, s76")
            A("s_mov_b32 s73, s77")
            A("s_mov_b32 s74, 256")
            A("s_mov_b32 s75, 0x00020000")
            A(f"s_lshl_b32 s76, s{S_WAVE}, 8")
            A("s_or_b32 s76, s76, s2")
            A(f"s_cmp_lg_u32 s76, {HD}")
            A(f"s_cbranch_scc1 {lab}")
            A("v_mov_b32 v2, s70")
            A("v_mov_b32 v3, 0")
            A(f"buffer_store_dword v2, v3, s[72:75], 0 offen offset:{4*hmap[idx]}")
            A.label(lab)
            self.lg.ops = []
            return
        if not MT: return
        A = self.A
        A("s_waitcnt lgkmcnt(0)")
        A("s_memrealtime s[70:71]")
        make_srd(A, 72, P_WS, WS_DBG, 32 * MB)
        A("s_lshl_b32 s76, s2, 3")
        A(f"s_add_u32 s76, s76, s{S_WAVE}")
        A("s_lshl_b32 s76, s76, 7")
        A("s_waitcnt lgkmcnt(0)")
        A("v_mov_b32 v2, s70")
        A("v_mov_b32 v3, 0")
        A(f"buffer_store_dword v2, v3, s[72:75], s76 offen offset:{4*idx}")
        self.vm.issue("stamp"); self.lg.ops = []
    def flag_srd(self, stage):
        make_srd(self.A, 92, P_WS, WS_FLAG + stage * 32 * 256, 32 * 256)
    def transition(self, stage, early=None):
        A = self.A
        self.stamp(1 + 4 * stage)
        self.vm.ops = []
        if ONE and stage == 0:
            make_srd(A, 80, P_WS, FQ_, 32 * 1024)
            make_srd(A, 12, P_WS, WS_MOD, 4 * MODP)
            A(f"s_cmp_lg_u32 s{S_WAVE}, {0 if W0M else 7}")
            A("s_cbranch_scc1 .Lw0m_end")
            A(f"s_lshl_b32 s98, s{S_M}, 10")
            A("v_add_u32 v2, 64, v1")
            A("v_min_u32 v2, 119, v2")
            A("v_lshlrev_b32 v2, 3, v2")
            A("v_lshlrev_b32 v3, 3, v1")
            self.poll64(".Lplq", [(3, 80, "s98"), (2, 80, "s98")])
            if W0M:
                A("v_lshlrev_b32 v10, 5, v1")
                for part in range(2):
                    for q, idx in enumerate((2, 4, 3)):
                        d = 24 + 8 * q + 88 * part
                        A(f"s_movk_i32 s{S_TMP}, {idx*2048 + part*MODP}")
                        A(f"buffer_load_dwordx4 v[{d}:{d+3}], v10, s[12:15], s{S_TMP} offen")
                        A(f"buffer_load_dwordx4 v[{d+4}:{d+7}], v10, s[12:15], s{S_TMP} offen offset:16")
                A("v_add_u32 v10, 81920, v10")
                A("s_waitcnt vmcnt(0)")
                for j in range(0, 24, 2): pk(A, "v_pk_add_f32", 24 + j, 24 + j, 112 + j)
                for q in range(3): round_multi(A, list(range(24 + 8*q, 32 + 8*q)), [56, 57, 58, 59], SM)
                for j in range(8): A(f"v_add_f32 v{32+j}, 1.0, v{32+j}")
                round_multi(A, list(range(32, 40)), [56, 57, 58, 59], SM)
                for q, off in enumerate((0, 16384, 49152)):
                    A(f"ds_write_b128 v10, v[{24+8*q}:{27+8*q}] offset:{off}")
                    A(f"ds_write_b128 v10, v[{28+8*q}:{31+8*q}] offset:{off+16}")
            A.label(".Lw0m_end")
        if early and NE:
            A(f"s_cmp_ge_u32 s{S_WAVE}, 4")
            A(f"s_cbranch_scc1 .Ltr{stage}_h")
            early(0, NE)
            A(f"s_waitcnt vmcnt({len(self.vm.ops)})")
            A(f"s_branch .Ltr{stage}_j")
            A.label(f".Ltr{stage}_h")
            A("s_waitcnt vmcnt(0)")
            A.label(f".Ltr{stage}_j")
        else:
            A("s_waitcnt vmcnt(0)")
        self.flag_srd(stage)
        A(f"s_lshl_b32 s96, s{S_M}, 8")
        A(f"s_lshl_b32 s97, s{S_J}, {3 if ONE else 2}")
        A("s_add_u32 s97, s97, s96")
        if ONE:
            A("v_mov_b32 v246, s100")
            A("v_mov_b32 v247, s101")
        A("v_mov_b32 v2, 1")
        A("v_mov_b32 v3, s97")
        A("s_waitcnt lgkmcnt(0)")
        self.lg.ops = []
        A("s_barrier")
        A(f"s_cmp_lg_u32 s{S_WAVE}, 7")
        A(f"s_cbranch_scc1 .Lpub{stage}")
        A("s_mov_b64 exec, 1")
        A("buffer_store_dwordx2 v[246:247], v3, s[92:95], 0 offen sc1" if ONE else "buffer_store_dword v2, v3, s[92:95], 0 offen sc1")
        A("s_mov_b64 exec, -1")
        A.label(f".Lpub{stage}")
        self.stamp(1 + 4 * stage + 2)
    def poll(self, stage, nbr=False, check=True):
        A = self.A
        lab = f".Lpl{stage}"
        if check:
            A(f"s_cmp_lg_u32 s{S_WAVE}, 7")
            A(f"s_cbranch_scc1 {lab}_done")
        A("v_and_b32 v3, 7, v1")
        A(f"v_lshlrev_b32 v3, {3 if ONE else 2}, v3")
        if nbr:
            A("v_bfe_u32 v2, v1, 3, 2")
            A("v_min_u32 v2, 2, v2")
            A(f"v_add_u32 v2, s{S_M}, v2")
            A("v_max_u32 v2, 1, v2")
            A("v_min_u32 v2, 32, v2")
            A("v_subrev_u32 v2, 1, v2")
            A("v_lshl_add_u32 v3, v2, 8, v3")
        else:
            A("v_add_u32 v3, s96, v3")
        A("s_mov_b32 s98, 0")
        NP = int(os.environ.get("NPOLL", "1")); PSL = int(os.environ.get("PSL", "1"))
        if ONE:
            self.poll64(lab + "x", [(3, 92, "0")])
        elif NP == 1:
            A.label(f"{lab}_poll")
            A("buffer_load_dword v2, v3, s[92:95], 0 offen sc1")
            A("s_add_u32 s98, s98, 1")
            A("s_waitcnt vmcnt(0)")
            A("v_cmp_ne_u32 vcc, 1, v2")
            A("s_cmp_lt_u32 s98, 0x40000")
            A(f"s_cbranch_scc0 {lab}_done")
            A(f"s_cbranch_vccnz {lab}_poll")
        else:
            for i in range(NP):
                A(f"buffer_load_dword v{248+i}, v3, s[92:95], 0 offen sc1")
                if PSL and i < NP - 1: A(f"s_sleep {PSL}")
            A.label(f"{lab}_poll")
            for i in range(NP):
                A(f"s_waitcnt vmcnt({NP-1})")
                A(f"v_cmp_ne_u32 vcc, 1, v{248+i}")
                A(f"s_cbranch_vccz {lab}_done")
                A(f"buffer_load_dword v{248+i}, v3, s[92:95], 0 offen sc1")
            A("s_add_u32 s98, s98, 1")
            A("s_cmp_lt_u32 s98, 0x40000")
            A(f"s_cbranch_scc1 {lab}_poll")
        A.label(f"{lab}_done")
    def poll64(self, lab, srcs, cnt=99):
        A = self.A
        A(f"s_mov_b32 s{cnt}, 0")
        A.label(f"{lab}_poll")
        for i, (va, srd, so) in enumerate(srcs):
            A(f"buffer_load_dwordx2 v[{248+2*i}:{249+2*i}], v{va}, s[{srd}:{srd+3}], {so} offen sc1")
        A(f"s_add_u32 s{cnt}, s{cnt}, 1")
        A("s_waitcnt vmcnt(0)")
        for i in range(len(srcs)):
            A(f"v_xor_b32 v{248+2*i}, s100, v{248+2*i}")
            A(f"v_xor_b32 v{249+2*i}, s101, v{249+2*i}")
        A("v_or_b32 v248, v248, v249")
        for i in range(1, len(srcs)):
            A(f"v_or3_b32 v248, v248, v{248+2*i}, v{249+2*i}")
        A("v_cmp_ne_u32 vcc, 0, v248")
        A(f"s_cmp_lt_u32 s{cnt}, 0x40000")
        A(f"s_cbranch_scc0 {lab}_done")
        A(f"s_cbranch_vccnz {lab}_poll")
        A.label(f"{lab}_done")
    def pst(self, idx):
        if not PT: return
        A = self.A
        A("s_waitcnt lgkmcnt(0)")
        A("s_memrealtime s[38:39]")
        A("s_waitcnt lgkmcnt(0)")
        A(f"v_writelane_b32 v253, s38, {idx}")
    def pst_flush(self):
        if not PT: return
        A = self.A
        make_srd(A, 36, 68, WS_DBG + 16 * MB, 1 * MB)
        A("s_lshl_b32 s57, s2, 3")
        A("s_add_u32 s57, s57, s40")
        A("s_lshl_b32 s57, s57, 6")
        A("v_lshlrev_b32 v2, 2, v1")
        A("s_mov_b64 exec, 0xffff")
        A("buffer_store_dword v253, v2, s[36:39], s57 offen")
        A("s_mov_b64 exec, -1")
    def pro_pre(self):
        A = self.A
        self.pst(0)
        A("s_load_dwordx2 s[4:5], s[0:1], 0")
        A("s_load_dwordx4 s[72:75], s[0:1], 80")
        A("s_load_dwordx2 s[6:7], s[0:1], 104")
        A("s_memrealtime s[70:71]")
        if int(os.environ.get("CPF", "1")):
            A("s_getpc_b64 s[76:77]")
            A.label(".Lpc0")
            A("s_mov_b32 s78, .Lcode_end-.Lpc0")
            A("s_mov_b32 s79, 0x00020000")
            A("s_lshr_b32 s3, s2, 3")
            A("s_mul_i32 s3, s3, 2304")
            A("v_lshlrev_b32 v2, 6, v0")
            A("v_cmp_gt_u32 vcc, 36, v0")
            A("s_and_b64 exec, exec, vcc")
            A("buffer_load_dword v254, v2, s[76:79], s3 offen")
            A("s_mov_b64 exec, -1")
    def pro_a(self):
        A = self.A
        W = K1.S_WAVE; M_ = K1.S_M; G_ = K1.S_G
        self.pst(1)
        make_srd(A, 76, 72, 0, 1024)
        make_srd(A, 80, 74, 0, 512 * 6144)
        make_srd(A, 84, 68, WS_MOD, 3072 * 4)
        A("s_movk_i32 s3, 6144")
        A("s_mov_b32 s59, s2")
        A("s_cmp_lt_u32 s2, 96")
        A("s_cbranch_scc1 .Lpa_mod")
        make_srd(A, 80, 96, 0, 512 * 3584)
        make_srd(A, 84, 68, WS_CS, 1792 * 4)
        A("s_movk_i32 s3, 3584")
        A("s_sub_u32 s59, s2, 96")
        A.label(".Lpa_mod")
        A("s_cmp_ge_u32 s2, 152")
        A("s_cbranch_scc1 .Lpa_nob")
        A("v_and_b32 v2, 3, v0")
        A("v_lshrrev_b32 v3, 2, v0")
        A("v_mul_lo_u32 v4, v3, s3")
        A("v_lshl_add_u32 v4, v2, 4, v4")
        A("v_lshlrev_b32 v5, 1, v3")
        A("s_lshl_b32 s58, s59, 6")
        A("s_lshl_b32 s3, s3, 7")
        for i in range(4):
            A(f"buffer_load_dwordx4 v[{72+4*i}:{75+4*i}], v4, s[80:83], s58 offen")
            if i < 3: A("s_add_u32 s58, s58, s3")
        for i in range(4):
            A(f"buffer_load_ushort v{64+i}, v5, s[76:79], 0 offen offset:{i*256}")
        A.label(".Lpa_nob")
        make_srd(A, 88, 4, 0, 2 * MB)
        A(f"s_lshl_b32 s3, s{M_}, 3")
        A(f"s_add_u32 s3, s3, s{G_}")
        A("s_lshl_b32 s3, s3, 3")
        A(f"s_add_u32 s3, s3, s{W}")
        A("s_lshl_b32 s3, s3, 10")
        A("buffer_load_dwordx4 v[68:71], v12, s[88:91], s3 offen")
        make_srd(A, 76, 6, 0, 256)
        A(f"s_or_b32 s58, s2, s{W}")
        A("s_cmp_lg_u32 s58, 0")
        A("s_cbranch_scc1 .Lpa_non")
        A("s_or_b32 s70, s70, 1")
        A("v_mov_b32 v2, s70")
        A("v_mov_b32 v3, s71")
        A("v_mov_b32 v4, 0")
        A("s_mov_b64 exec, 1")
        A("buffer_store_dwordx2 v[2:3], v4, s[76:79], 0 offen sc1")
        A("s_mov_b64 exec, -1")
        A.label(".Lpa_non")
        if WQE: self.wqpf()
    def wqpf(self):
        A = self.A; W = K1.S_WAVE
        SQ = 88 if WQE else K1.S_WQ
        if WQE: make_srd(A, 88, 64, 0, 4 * MB)
        A("v_lshrrev_b32 v2, 4, v0")
        A("v_and_b32 v3, 15, v0")
        A("v_lshlrev_b32 v3, 6, v3")
        A("v_lshl_add_u32 v2, v2, 13, v3")
        A("s_lshr_b32 s58, s2, 3")
        A("s_lshl_b32 s58, s58, 17")
        A("s_and_b32 s57, s2, 7")
        A("s_lshl_b32 s57, s57, 10")
        A("s_add_u32 s58, s58, s57")
        A(f"s_cmp_ge_u32 s{W}, 4")
        A("s_cbranch_scc1 .Lpa_nopf")
        A(f"buffer_load_dword v255, v2, s[{SQ}:{SQ+3}], s58 offen")
        A.label(".Lpa_nopf")
    def pro_b(self, nyoung, early, w7):
        A = self.A
        W = K1.S_WAVE; M_ = K1.S_M; G_ = K1.S_G; KM = f"s{K1.S_MASK}"
        NY = nyoung
        ACC = list(range(96, 104)); T = list(range(104, 112)); U = list(range(112, 120)); C = [64, 65, 66, 67]
        make_srd(A, 88, 68, WS_XN, 2 * MB)
        self.pst(2)
        A("s_waitcnt vmcnt(0)")
        self.pst(3)
        if not WQE: self.wqpf()
        A("s_cmp_ge_u32 s2, 152")
        A("s_cbranch_scc1 .Lpb_ln")
        A("s_cmp_lt_u32 s2, 96")
        A("s_cbranch_scc1 .Lpb_silu")
        for c in C: A(f"v_mov_b32 v{c}, 1.0")
        A("s_branch .Lpb_fma")
        A.label(".Lpb_silu")
        for i, c in enumerate(C): A(f"v_lshlrev_b32 v{c}, 16, v{c}")
        for i, c in enumerate(C): A(f"v_mul_f32 v{T[i]}, {fhex(-LOG2E)}, v{c}")
        for i, c in enumerate(C): A(f"v_exp_f32 v{T[i]}, v{T[i]}")
        for i, c in enumerate(C): A(f"v_add_f32 v{T[i]}, 1.0, v{T[i]}")
        for i, c in enumerate(C): A(f"v_rcp_f32 v{U[i]}, v{T[i]}")
        for i, c in enumerate(C): A(f"v_mul_f32 v{U[4+i]}, v{c}, v{U[i]}")
        for i, c in enumerate(C): A(f"v_fma_f32 v{T[i]}, -v{U[4+i]}, v{T[i]}, v{c}")
        for i, c in enumerate(C): A(f"v_fma_f32 v{c}, v{T[i]}, v{U[i]}, v{U[4+i]}")
        for i, c in enumerate(C): A(f"v_cvt_pk_bf16_f32 v{T[i]}, v{c}, v{c}")
        for i, c in enumerate(C): A(f"v_lshlrev_b32 v{c}, 16, v{T[i]}")
        A.label(".Lpb_fma")
        for i in range(4):
            for j in range(4):
                w = 72 + 4 * i + j
                A(f"v_lshlrev_b32 v{T[2*j]}, 16, v{w}")
                A(f"v_and_b32 v{T[2*j+1]}, {KM}, v{w}")
            for j in range(8):
                A(f"v_mul_f32 v{ACC[j]}, v{T[j]}, v{C[i]}" if i == 0 else f"v_fmac_f32 v{ACC[j]}, v{T[j]}, v{C[i]}")
        A("s_nop 1")
        for dpp in ("row_ror:8", "row_ror:4"):
            for v in ACC: A(f"v_add_f32_dpp v{v}, v{v}, v{v} {dpp} row_mask:0xf bank_mask:0xf")
        A("v_and_b32 v2, 3, v1")
        A("v_lshrrev_b32 v3, 4, v0")
        A("v_lshlrev_b32 v3, 7, v3")
        A("v_lshl_add_u32 v3, v2, 5, v3")
        A("v_and_b32 v2, 12, v1")
        A("v_cmp_eq_u32 vcc, 0, v2")
        A("s_and_saveexec_b64 s[58:59], vcc") if False else None
        A("s_mov_b64 s[4:5], exec")
        A("s_and_b64 exec, exec, vcc")
        A(f"ds_write_b128 v3, v[{ACC[0]}:{ACC[3]}]")
        A(f"ds_write_b128 v3, v[{ACC[4]}:{ACC[7]}] offset:16")
        A("s_mov_b64 exec, -1")
        A("s_waitcnt lgkmcnt(0)")
        A("s_barrier")
        self.pst(4)
        A(f"s_cmp_lg_u32 s{W}, 7")
        A("s_cbranch_scc1 .Lpb_ln")
        A("v_and_b32 v2, 31, v1")
        A("v_lshlrev_b32 v2, 2, v2")
        A("v_lshrrev_b32 v3, 5, v1")
        A("v_lshl_add_u32 v3, v3, 11, v2")
        for k in range(16): A(f"ds_read_b32 v{120+k}, v3 offset:{k*128}")
        for k in range(8):
            A(f"s_waitcnt lgkmcnt({14-2*k})")
            A(f"v_add_f32 v{120+2*k}, v{120+2*k}, v{121+2*k}")
        for k in range(4): A(f"v_add_f32 v{120+4*k}, v{120+4*k}, v{122+4*k}")
        A("v_add_f32 v120, v120, v124")
        A("v_add_f32 v128, v128, v132")
        A("v_add_f32 v120, v120, v128")
        A("v_mov_b32 v121, v120")
        A("s_nop 1")
        A("v_permlane32_swap_b32 v120, v121")
        A("s_nop 1")
        A("v_add_f32 v120, v120, v121")
        A("s_cmp_ge_u32 s2, 96")
        A("s_cbranch_scc1 .Lpb_nornd")
        round_bf16_1(A, 120, 121)
        A.label(".Lpb_nornd")
        A("s_lshl_b32 s58, s59, 7")
        A("s_mov_b32 exec_hi, 0")
        A("buffer_store_dword v120, v2, s[84:87], s58 offen sc1")
        A("s_mov_b64 exec, -1")
        A.label(".Lpb_ln")
        A("v_mov_b32 v2, 0")
        A(f"s_cmp_lg_u32 s{W}, 7")
        A("s_cbranch_scc1 .Lpb_ln2")
        A("s_mov_b64 exec, 1")
        A("buffer_load_dwordx2 v[136:137], v2, s[76:79], 0 offen sc1")
        A("s_mov_b64 exec, -1")
        A.label(".Lpb_ln2")
        self.pst(5)
        X = list(range(96, 104)); TT = list(range(104, 116))
        for j in range(4):
            A(f"v_lshlrev_b32 v{X[2*j]}, 16, v{68+j}")
            A(f"v_and_b32 v{X[2*j+1]}, {KM}, v{68+j}")
        ln_rows(A, [(X, TT)], KM)
        pack8(A, X, 68)
        A("buffer_store_dwordx4 v[68:71], v12, s[88:91], s3 offen sc1")
        make_srd(A, 80, 68, FP, 32 * 512)
        self.pst(6)
        A(f"s_cmp_lg_u32 s{W}, 7")
        A("s_cbranch_scc1 .Lpb_w")
        A("s_waitcnt vmcnt(1)")
        A("s_mov_b32 s57, 0")
        A.label(".Lpb_nl")
        A("v_readfirstlane_b32 s100, v136")
        A("v_readfirstlane_b32 s101, v137")
        A("s_add_u32 s57, s57, 1")
        A("s_cmp_lg_u32 s100, 0")
        A("s_cbranch_scc1 .Lpb_nd")
        A("s_cmp_lt_u32 s57, 0x40000")
        A("s_cbranch_scc0 .Lpb_nd")
        A("s_mov_b64 exec, 1")
        A("buffer_load_dwordx2 v[136:137], v2, s[76:79], 0 offen sc1")
        A("s_mov_b64 exec, -1")
        A("s_waitcnt vmcnt(0)")
        A("s_branch .Lpb_nl")
        A.label(".Lpb_nd")
        A("v_mov_b32 v136, s100")
        A("v_mov_b32 v137, s101")
        self.pst(7)
        A("s_cmp_ge_u32 s2, 152")
        A("s_cbranch_scc1 .Lpb_w")
        A("v_lshlrev_b32 v3, 9, v1")
        A("s_lshl_b32 s58, s2, 3")
        A("s_cmp_lt_u32 s2, 32")
        A("s_cbranch_scc1 .Lpb_crit")
        make_srd(A, 80, 68, FQ_, 32 * 1024)
        A("v_lshlrev_b32 v3, 10, v1")
        A("s_sub_u32 s58, s58, 256")
        A.label(".Lpb_crit")
        A("s_mov_b32 exec_hi, 0")
        A("buffer_store_dwordx2 v[136:137], v3, s[80:83], s58 offen sc1")
        A("s_mov_b64 exec, -1")
        make_srd(A, 80, 68, FP, 32 * 512)
        A.label(".Lpb_w")
        A("s_waitcnt vmcnt(1)") if False else None
        A("s_waitcnt vmcnt(0)")
        self.pst(8)
        A("s_barrier")
        self.pst(9)
        A(f"s_cmp_lg_u32 s{W}, 7")
        A("s_cbranch_scc1 .Lpb_early")
        A(f"s_lshl_b32 s58, s{M_}, 9")
        A(f"s_lshl_b32 s57, s{G_}, 3")
        A("s_add_u32 s57, s57, 256")
        A("v_mov_b32 v3, s57")
        A("s_mov_b64 exec, 1")
        A("buffer_store_dwordx2 v[136:137], v3, s[80:83], s58 offen sc1")
        A("s_mov_b64 exec, -1")
        A("v_min_u32 v3, 39, v1")
        A("v_lshlrev_b32 v3, 3, v3")
        sv99 = None
        w7()
        self.poll64(".Lplp", [(3, 80, "s58")], cnt=57)
        A("s_branch .Lpb_done")
        A.label(".Lpb_early")
        early()
        A.label(".Lpb_done")
        A("s_barrier")
        self.pst(10)
        self.pst_flush()
    def p2_a(self):
        A = self.A
        W = K1.S_WAVE; M_ = K1.S_M; G_ = K1.S_G
        SCR = K1.STG + 16384
        A("s_waitcnt lgkmcnt(0)")
        self.pst(1)
        make_srd(A, 76, 72, 0, 1024)
        make_srd(A, 80, 74, 0, 512 * 6144)
        make_srd(A, 84, 68, WS_MOD, 4 * MODP)
        make_srd(A, 88, 4, 0, 2 * MB)
        A("s_movk_i32 s3, 6144")
        A("s_and_b32 s4, s2, 15")
        A("s_lshr_b32 s5, s2, 4")
        A("s_lshl_b32 s57, s5, 8")
        A("s_cmp_lt_u32 s2, 64")
        A("s_cbranch_scc1 .Lp2a_dec")
        A("s_sub_u32 s4, s2, 64")
        A("s_and_b32 s5, s4, 1")
        A("s_lshr_b32 s4, s4, 1")
        A("s_lshl_b32 s57, s5, 9")
        A("s_add_u32 s4, s4, 16")
        A("s_cmp_lt_u32 s4, 48")
        A("s_cbranch_scc1 .Lp2a_dec")
        A("s_sub_u32 s4, s4, 48")
        make_srd(A, 80, 96, 0, 512 * 3584)
        make_srd(A, 84, 68, WS_CS, 2 * CSP)
        A("s_movk_i32 s3, 3584")
        A.label(".Lp2a_dec")
        A("s_lshr_b32 s58, s57, 1")
        A("s_mul_i32 s58, s58, s3")
        A("s_lshl_b32 s59, s4, 7")
        A("s_add_u32 s58, s58, s59")
        A("s_lshl_b32 s59, s4, 8")
        A(f"s_movk_i32 s4, {MODP}")
        A("s_cmp_eq_u32 s3, 3584")
        A(f"s_cselect_b32 s4, {CSP}, s4")
        A("s_mul_i32 s4, s4, s5")
        A("s_add_u32 s59, s59, s4")
        A("v_and_b32 v2, 7, v0")
        A("v_bfe_u32 v3, v0, 3, 5")
        A("v_mul_lo_u32 v60, v3, s3")
        A("v_lshl_add_u32 v60, v2, 4, v60")
        A("v_lshlrev_b32 v61, 1, v3")
        A("s_lshl_b32 s70, s3, 5") if False else None
        A("s_lshl_b32 s5, s3, 5")
        A(f"s_cmp_ge_u32 s{W}, 4")
        A("s_cbranch_scc1 .Lp2a_end")
        A("s_cmp_ge_u32 s2, 64")
        A("s_cbranch_scc1 .Lp2a_x")
        self.p2_tload(0)
        A.label(".Lp2a_x")
        A(f"s_lshl_b32 s3, s{M_}, 3")
        A(f"s_add_u32 s3, s3, s{G_}")
        A("s_lshl_b32 s3, s3, 2")
        A(f"s_add_u32 s3, s3, s{W}")
        A("s_lshl_b32 s3, s3, 11")
        A("buffer_load_dwordx4 v[88:91], v12, s[88:91], s3 offen")
        A("buffer_load_dwordx4 v[92:95], v12, s[88:91], s3 offen offset:1024")
        make_srd(A, 88, 6, 0, 256)
        A(f"s_or_b32 s4, s2, s{W}")
        A("s_cmp_lg_u32 s4, 0")
        A("s_cbranch_scc1 .Lp2a_non")
        A("s_or_b32 s70, s70, 1")
        A("v_mov_b32 v2, s70")
        A("v_mov_b32 v3, s71")
        A("v_mov_b32 v4, 0")
        A("s_mov_b64 exec, 1")
        A("buffer_store_dwordx2 v[2:3], v4, s[88:91], 0 offen sc1")
        A("s_mov_b64 exec, -1")
        A.label(".Lp2a_non")
        A(f"v_mov_b32 v2, {SCR + 8192}")
        A("v_mov_b32 v4, 0")
        A("v_mov_b32 v5, 0")
        A("ds_write_b64 v2, v[4:5]")
        A("s_branch .Lp2a_e2")
        A.label(".Lp2a_end")
        if TLW:
            A("v_lshlrev_b32 v2, 21, v1")
            A(f"v_add_u32 v2, {(2 << 20) - 128}, v2")
            make_srd(A, 88, 68, 0, 48 * MB if TLW >= 2 else 4 * MB)
            A(f"s_cmp_lg_u32 s{W}, 4")
            A("s_cbranch_scc1 .Lp2a_e2")
            A("buffer_load_dword v252, v2, s[88:91], 0 offen sc1")
            if TLW == 1:
                A(f"s_mov_b32 s4, {WS_FLAG}")
                make_srd(A, 88, 68, 0, WS_FLAG + 2 * MB)
                A("buffer_load_dword v252, v2, s[88:91], s4 offen sc1")
        A.label(".Lp2a_e2")
        if EB:
            A("s_waitcnt lgkmcnt(0)")
            A("s_barrier")
            A(f"s_cmp_lt_u32 s{W}, 4")
            A("s_cbranch_scc1 .Lp2a_e3")
            self.p2_bulk1()
            A.label(".Lp2a_e3")
        A("s_mov_b32 s70, s57")
        A("s_mov_b32 s71, s58")
    def p2_bulk1(self):
        A = self.A; W = K1.S_WAVE
        A("s_sub_u32 s4, s2, 64")
        A("s_cmp_ge_u32 s4, 120")
        A("s_cbranch_scc1 .Lp2_l1")
        self.p2_tload(0); self.p2_tload(1)
        A.label(".Lp2_l1")
        if EB: make_srd(A, K1.S_WQ, 64, 0, 4 * MB)
        if DLY == 1 and not EB:
            A("s_cmp_ge_u32 s2, 64")
            A("s_cbranch_scc1 .Lp2_l3")
        if DLY and not EB:
            self.lds_spin(".Lp2_sd", 4, 4, True)
            A.label(".Lp2_l3")
        W128 = int(os.environ.get("W128", "0"))
        A("v_and_b32 v4, 255, v0")
        A(f"v_lshrrev_b32 v2, {3 if W128 else 4}, v4")
        A(f"v_and_b32 v3, {7 if W128 else 15}, v4")
        A(f"v_lshlrev_b32 v3, {7 if W128 else 6}, v3")
        A("v_lshl_add_u32 v2, v2, 13, v3")
        A("s_lshr_b32 s58, s2, 3")
        A("s_lshl_b32 s58, s58, 17")
        A("s_and_b32 s57, s2, 7")
        A("s_lshl_b32 s57, s57, 10")
        A("s_add_u32 s58, s58, s57")
        if W128:
            A(f"s_cmp_ge_u32 s{W}, 6")
            A("s_cbranch_scc1 .Lp2_l2")
        A(f"buffer_load_dword v255, v2, s[{K1.S_WQ}:{K1.S_WQ+3}], s58 offen")
        if W128: A.label(".Lp2_l2")
    def p2_tload(self, b):
        A = self.A
        wd = (72, 140)[b]; cd = (64, 156)[b]
        for i in range(4):
            A(f"buffer_load_dwordx4 v[{wd+4*i}:{wd+4*i+3}], v60, s[80:83], s58 offen")
            A("s_add_u32 s58, s58, s5")
        for i in range(4):
            A(f"buffer_load_ushort v{cd+i}, v61, s[76:79], s57 offen offset:{b*256 + i*64}")
    def lds_spin(self, lab, off, target, sleep=False):
        A = self.A
        A.label(lab)
        if sleep: A("s_sleep 2")
        A(f"ds_read_b32 v3, v9 offset:{off}")
        A("s_waitcnt lgkmcnt(0)")
        A("v_readfirstlane_b32 s4, v3")
        A(f"s_cmp_lt_u32 s4, {target}")
        A(f"s_cbranch_scc1 {lab}")
    def lds_inc(self, off):
        A = self.A
        A("v_mov_b32 v3, 1")
        A("s_mov_b64 exec, 1")
        A(f"ds_add_u32 v9, v3 offset:{off}")
        A("s_mov_b64 exec, -1")
    def p2_gemv(self, sfx, nb, maybe_ones, col=3):
        A = self.A
        W = K1.S_WAVE; KM = f"s{K1.S_MASK}"; SCR = K1.STG + 16384
        ACC = list(range(96, 104)); T = list(range(104, 112)); U = list(range(112, 128))
        C = [64, 65, 66, 67] + ([156, 157, 158, 159] if nb == 2 else [])
        n = len(C)
        if maybe_ones:
            A("s_cmp_lt_u32 s2, 128")
            A(f"s_cbranch_scc1 .Lp2_silu{sfx}")
            for c in C: A(f"v_mov_b32 v{c}, 1.0")
            A(f"s_branch .Lp2_fma{sfx}")
            A.label(f".Lp2_silu{sfx}")
        for i, c in enumerate(C): A(f"v_lshlrev_b32 v{c}, 16, v{c}")
        for i, c in enumerate(C): A(f"v_mul_f32 v{T[i]}, {fhex(-LOG2E)}, v{c}")
        for i, c in enumerate(C): A(f"v_exp_f32 v{T[i]}, v{T[i]}")
        for i, c in enumerate(C): A(f"v_add_f32 v{T[i]}, 1.0, v{T[i]}")
        for i, c in enumerate(C): A(f"v_rcp_f32 v{U[i]}, v{T[i]}")
        for i, c in enumerate(C): A(f"v_mul_f32 v{U[8+i]}, v{c}, v{U[i]}")
        for i, c in enumerate(C): A(f"v_fma_f32 v{T[i]}, -v{U[8+i]}, v{T[i]}, v{c}")
        for i, c in enumerate(C): A(f"v_fma_f32 v{c}, v{T[i]}, v{U[i]}, v{U[8+i]}")
        for i, c in enumerate(C): A(f"v_cvt_pk_bf16_f32 v{T[i]}, v{c}, v{c}")
        for i, c in enumerate(C): A(f"v_lshlrev_b32 v{c}, 16, v{T[i]}")
        if maybe_ones: A.label(f".Lp2_fma{sfx}")
        for i in range(n):
            for j in range(4):
                w = (72, 140)[i >> 2] + 4 * (i & 3) + j
                A(f"v_lshlrev_b32 v{T[2*j]}, 16, v{w}")
                A(f"v_and_b32 v{T[2*j+1]}, {KM}, v{w}")
            for j in range(8):
                A(f"v_mul_f32 v{ACC[j]}, v{T[j]}, v{C[i]}" if i == 0 else f"v_fmac_f32 v{ACC[j]}, v{T[j]}, v{C[i]}")
        A("v_and_b32 v2, 7, v1")
        A("v_bfe_u32 v3, v0, 4, 4")
        for v in ACC: A(f"v_add_f32_dpp v{v}, v{v}, v{v} row_ror:8 row_mask:0xf bank_mask:0xf")
        A("v_lshlrev_b32 v3, 8, v3")
        A("v_lshl_add_u32 v3, v2, 5, v3")
        A(f"v_add_u32 v3, {SCR}, v3")
        A("v_and_b32 v2, 8, v1")
        A("v_cmp_eq_u32 vcc, 0, v2")
        A("s_and_b64 exec, exec, vcc")
        A(f"ds_write_b128 v3, v[{ACC[0]}:{ACC[3]}]")
        A(f"ds_write_b128 v3, v[{ACC[4]}:{ACC[7]}] offset:16")
        A("s_mov_b64 exec, -1")
        A("s_waitcnt lgkmcnt(0)")
        self.lds_inc(0)
        A(f"s_cmp_lg_u32 s{W}, {col}")
        A(f"s_cbranch_scc1 .Lp2_gd{sfx}")
        self.lds_spin(f".Lp2_sp{sfx}", 0, 4)
        A("v_lshlrev_b32 v2, 2, v1")
        A(f"v_add_u32 v3, {SCR}, v2")
        for k in range(16): A(f"ds_read_b32 v{104+k}, v3 offset:{k*256}")
        for k in range(8):
            A(f"s_waitcnt lgkmcnt({14-2*k})")
            A(f"v_add_f32 v{104+2*k}, v{104+2*k}, v{105+2*k}")
        for k in range(4): A(f"v_add_f32 v{104+4*k}, v{104+4*k}, v{106+4*k}")
        A("v_add_f32 v104, v104, v108")
        A("v_add_f32 v112, v112, v116")
        A("v_add_f32 v68, v104, v112")
        A("buffer_store_dword v68, v2, s[84:87], s59 offen sc1")
        A.label(f".Lp2_gd{sfx}")
    def p2_ln(self):
        A = self.A; KM = f"s{K1.S_MASK}"
        X0 = list(range(96, 104)); X1 = list(range(120, 128)); T0 = list(range(104, 116)); T1 = list(range(128, 140))
        for r, X in enumerate((X0, X1)):
            for j in range(4):
                A(f"v_lshlrev_b32 v{X[2*j]}, 16, v{88+4*r+j}")
                A(f"v_and_b32 v{X[2*j+1]}, {KM}, v{88+4*r+j}")
        ln_rows(A, [(X0, T0), (X1, T1)], KM, False)
        pack8(A, X0, 88); pack8(A, X1, 92)
        A(f"buffer_store_dwordx4 v[88:91], v12, s[{K1.S_XN}:{K1.S_XN+3}], s3 offen sc1")
        A(f"buffer_store_dwordx4 v[92:95], v12, s[{K1.S_XN}:{K1.S_XN+3}], s3 offen offset:1024 sc1")
    def p2_nonce(self, sfx):
        A = self.A
        A("s_mov_b32 s4, 0")
        A.label(f".Lp2_nl{sfx}")
        A("v_readfirstlane_b32 s100, v70")
        A("v_readfirstlane_b32 s101, v71")
        A("s_add_u32 s4, s4, 1")
        A("s_cmp_lg_u32 s100, 0")
        A(f"s_cbranch_scc1 .Lp2_nd{sfx}")
        A("s_cmp_lt_u32 s4, 0x40000")
        A(f"s_cbranch_scc0 .Lp2_nd{sfx}")
        self.p2_nload()
        A("s_waitcnt vmcnt(0)")
        A(f"s_branch .Lp2_nl{sfx}")
        A.label(f".Lp2_nd{sfx}")
        A("v_mov_b32 v70, s100")
        A("v_mov_b32 v71, s101")
    def p2_nload(self):
        A = self.A
        A("v_mov_b32 v2, 0")
        A("s_mov_b64 exec, 1")
        A("buffer_load_dwordx2 v[70:71], v2, s[88:91], 0 offen sc1")
        A("s_mov_b64 exec, -1")
    def p2_pubtask(self, region, base):
        A = self.A
        make_srd(A, 76, 68, region, 32 * 1024)
        A("v_lshlrev_b32 v3, 10, v1")
        A(f"s_sub_u32 s4, s2, {base}")
        A("s_lshl_b32 s4, s4, 3")
        A("s_mov_b32 exec_hi, 0")
        A("buffer_store_dwordx2 v[70:71], v3, s[76:79], s4 offen sc1")
        A("s_mov_b64 exec, -1")
    def p2_pubxn(self, sfx):
        A = self.A
        self.lds_spin(f".Lp2_sx{sfx}", 4, 3)
        make_srd(A, 76, 68, FP, 32 * 1024)
        A(f"s_lshl_b32 s4, s{K1.S_M}, 10")
        A(f"s_lshl_b32 s5, s{K1.S_G}, 3")
        A("s_add_u32 s5, s5, 512")
        A("v_mov_b32 v3, s5")
        A("s_mov_b64 exec, 1")
        A("buffer_store_dwordx2 v[70:71], v3, s[76:79], s4 offen sc1")
        A("s_mov_b64 exec, -1")
    def p2_b(self, loader, cfix, xn_loads):
        A = self.A
        W = K1.S_WAVE; M_ = K1.S_M; KM = f"s{K1.S_MASK}"; SCR = K1.STG + 16384
        A(f"v_mov_b32 v9, {SCR + 8192}")
        if not EB:
            A("s_waitcnt lgkmcnt(0)")
            A("s_barrier")
        self.pst(2)
        A(f"s_cmp_lt_u32 s{W}, 4")
        A("s_cbranch_scc1 .Lp2_c")
        if not EB:
            A("s_mov_b32 s57, s70")
            A("s_mov_b32 s58, s71")
            self.p2_bulk1()
        elif DLY == 1:
            A("s_cmp_ge_u32 s2, 64")
            A("s_cbranch_scc1 .Lp2_l4")
            self.lds_spin(".Lp2_sd2", 4, 4, True)
            A.label(".Lp2_l4")
        loader()
        A("s_sub_u32 s4, s2, 64")
        A("s_cmp_ge_u32 s4, 120")
        A("s_cbranch_scc1 .Lp2_X")
        A(f"s_waitcnt vmcnt({4 * int(os.environ.get('LDE', '2'))})")
        self.p2_gemv("b", 2, True, 7)
        A("s_branch .Lp2_X")
        A.label(".Lp2_c")
        cfix()
        A("s_waitcnt vmcnt(0)")
        self.pst(3)
        A("s_cmp_ge_u32 s2, 64")
        A("s_cbranch_scc1 .Lp2_a0")
        self.p2_gemv("a", 1, False)
        A.label(".Lp2_a0")
        self.pst(4)
        A(f"s_cmp_lg_u32 s{W}, 3")
        A("s_cbranch_scc1 .Lp2_a1")
        self.p2_nload()
        A.label(".Lp2_a1")
        self.p2_ln()
        self.pst(6)
        A(f"s_cmp_lg_u32 s{W}, 3")
        A("s_cbranch_scc1 .Lp2_ack")
        A("s_waitcnt vmcnt(2)")
        self.p2_nonce("a")
        A("s_cmp_ge_u32 s2, 64")
        A("s_cbranch_scc1 .Lp2_a2")
        self.p2_pubtask(FP, 0)
        self.pst(7)
        A("s_waitcnt vmcnt(1)")
        A("s_branch .Lp2_a3")
        A.label(".Lp2_a2")
        A("s_waitcnt vmcnt(0)")
        A.label(".Lp2_a3")
        self.p2_pubxn("a")
        self.lds_inc(4)
        A("s_branch .Lp2_col")
        A.label(".Lp2_ack")
        A("s_waitcnt vmcnt(0)")
        self.lds_inc(4)
        A("s_branch .Lp2_X")
        A.label(".Lp2_col")
        make_srd(A, 76, 68, FP, 32 * 1024)
        A(f"s_lshl_b32 s5, s{M_}, 10")
        A("v_and_b32 v3, 7, v1")
        A("v_lshlrev_b32 v3, 3, v3")
        A("v_add_u32 v3, 512, v3")
        A("ds_write_b64 v9, v[70:71] offset:16")
        def parts():
            make_srd(A, 84, 68, WS_MOD, 4 * MODP)
            for i in range(4):
                for p in range(4):
                    A(f"s_movk_i32 s4, {p * MODP}") if p * MODP < 32768 else A(f"s_mov_b32 s4, {p * MODP}")
                    A(f"buffer_load_dwordx4 v[{72+16*i+4*p}:{75+16*i+4*p}], v12, s[84:87], s4 offen offset:{i*1024}")
        if MP:
            A("v_lshlrev_b32 v4, 3, v1")
            self.poll64(".Lplx", [(3, 76, "s5"), (4, 76, "s5")], cnt=4)
            parts()
        else:
            self.poll64(".Lplx", [(3, 76, "s5")], cnt=4)
        A.label(".Lp2_X")
        self.pst(8)
        A("s_waitcnt lgkmcnt(0)")
        A("s_barrier")
        self.pst(9)
        xn_loads()
        A(f"s_cmp_lg_u32 s{W}, 3")
        A("s_cbranch_scc1 .Lp2_Y")
        if not MP:
            make_srd(A, 76, 68, FP, 32 * 1024)
            A(f"s_lshl_b32 s5, s{M_}, 10")
            A("v_lshlrev_b32 v3, 3, v1")
            self.poll64(".Lplm", [(3, 76, "s5")], cnt=4)
            parts()
        A(f"v_add_u32 v3, {SCR + 4096}, v12")
        for i in range(4):
            b = 72 + 16 * i
            A(f"s_waitcnt vmcnt({12 - 4*i + (8 if MP else 0)})")
            pk(A, "v_pk_add_f32", b, b, b + 4); pk(A, "v_pk_add_f32", b + 2, b + 2, b + 6)
            pk(A, "v_pk_add_f32", b + 8, b + 8, b + 12); pk(A, "v_pk_add_f32", b + 10, b + 10, b + 14)
            pk(A, "v_pk_add_f32", b, b, b + 8); pk(A, "v_pk_add_f32", b + 2, b + 2, b + 10)
            round_multi(A, [b, b + 1, b + 2, b + 3], [b + 4, b + 5], KM)
            if i >= 2:
                for e in range(4): A(f"v_add_f32 v{b+e}, 1.0, v{b+e}")
                round_multi(A, [b, b + 1, b + 2, b + 3], [b + 4, b + 5], KM)
            A(f"ds_write_b128 v3, v[{b}:{b+3}] offset:{i*1024}")
        A("s_waitcnt lgkmcnt(0)")
        A.label(".Lp2_Y")
        A("s_barrier")
        self.pst(10)
        self.pst_flush()
        A("ds_read_b64 v[2:3], v9 offset:16")
        A("s_waitcnt lgkmcnt(0)")
        A("v_readfirstlane_b32 s100, v2")
        A("v_readfirstlane_b32 s101, v3")
    def p2_c(self):
        A = self.A
        A(f"s_cmp_lg_u32 s{K1.S_WAVE}, 7")
        A("s_cbranch_scc1 .Lp2c_end")
        A("s_sub_u32 s4, s2, 64")
        A("s_cmp_ge_u32 s4, 120")
        A("s_cbranch_scc1 .Lp2c_end")
        A("v_mov_b32 v70, s100")
        A("v_mov_b32 v71, s101")
        A("s_waitcnt vmcnt(0)")
        self.p2_pubtask(FQ_, 64)
        A.label(".Lp2c_end")
    def w_setup(self, widx, K, rowbytes, woff_code):
        A = self.A
        make_srd(A, S_W, P_W + 2 * widx, 0, K * rowbytes)
        A(f"v_lshrrev_b32 v2, 3, v{L}")
        A(f"v_and_b32 v3, 7, v{L}")
        A(f"v_lshlrev_b32 v{V_W}, 1, v2")
        A(f"v_and_b32 v{V_W}, 4, v{V_W}")
        A(f"v_xor_b32 v3, v3, v{V_W}")
        A("v_lshlrev_b32 v3, 4, v3")
        A(f"v_mul_u32_u24 v2, {rowbytes}, v2") if rowbytes < 64 else None
        A(f"s_movk_i32 s{S_WOFF}, {rowbytes}")
        A(f"v_mul_lo_u32 v2, v2, s{S_WOFF}")
        A(f"v_add_u32 v{V_W}, v2, v3")
        woff_code()
        self.wrb = rowbytes
    def dmaW(self, st, ldsoff, tag="w"):
        A = self.A
        for i in range(2):
            A(f"s_add_u32 m0, s{S_RB}, {ldsoff + i * 1024}")
            A("s_nop 0")
            A(f"buffer_load_dwordx4 v{V_W}, s[{S_W}:{S_W+3}], s{S_WOFF} offen lds")
            self.vm.issue((tag, st))
            A(f"s_add_u32 s{S_WOFF}, s{S_WOFF}, {8 * self.wrb}")
    def pf_g64(self, widx, K, WB, DW, lo=0, hi=99, rot=0):
        A = self.A
        def woff():
            A(f"s_mul_i32 s{S_WOFF}, s{S_WAVE}, {(K // 4) * 1024}")
            A(f"s_lshl_b32 s{S_TMP+11}, s{S_J}, 7")
            A(f"s_add_u32 s{S_WOFF}, s{S_WOFF}, s{S_TMP+11}")
        if lo == 0: self.w_setup(widx, K, 1024, woff)
        self.wrb = 1024
        for st in range(lo, min(DW, hi)): self.dmaW(st, WB + ((st + rot) % DW) * 2048, "wn" if PFE == 3 else "w")
    def pf_k5(self, lo=0, hi=99):
        A = self.A
        def woff():
            A(f"s_min_u32 s{S_WOFF}, s{S_J}, 6")
            A(f"s_lshl_b32 s{S_WOFF}, s{S_WOFF}, 9")
            A(f"s_lshl_b32 s{S_TMP+11}, s{S_WAVE}, 7")
            A(f"s_add_u32 s{S_WOFF}, s{S_WOFF}, s{S_TMP+11}")
        if lo == 0: self.w_setup(2, 512, 3584, woff)
        self.wrb = 3584
        for st in range(lo, min(K5D, hi)): self.dmaW(st, K5RB + st * 2048, "wn" if PFE == 3 else "w")
    def l2pf(self, widx, size):
        A = self.A
        per = size // 32
        A("s_lshr_b32 s78, s2, 3")
        A(f"s_mul_i32 s78, s78, {per}")
        make_srd(A, 80, P_W + 2 * widx, "s78", per)
        A("v_and_b32 v2, 255, v0")
        A("v_lshlrev_b32 v2, 7, v2")
        n = (per + 32767) // 32768
        for i in range(n):
            A(f"s_mov_b32 s78, {i * 32768}")
            A("buffer_load_dword v3, v2, s[80:83], s78 offen")
        return n
    def persist(self):
        A = self.A
        A(f"s_load_dwordx2 s[{P_X}:{P_X+1}], s[0:1], 0")
        A(f"s_load_dwordx2 s[{P_OUT}:{P_OUT+1}], s[0:1], 96")
        A(f"s_load_dwordx2 s[{P_WS}:{P_WS+1}], s[0:1], 112")
        A(f"s_load_dwordx8 s[{P_W}:{P_W+7}], s[0:1], 48")
        A("v_and_b32 v1, 63, v0")
        A("v_lshrrev_b32 v2, 6, v0")
        A("s_nop 0")
        A(f"v_readfirstlane_b32 s{S_WAVE}, v2")
        A(f"s_and_b32 s{S_M}, s2, 31")
        A(f"s_lshr_b32 s{S_J}, s2, 5")
        A(f"s_mov_b32 s{S_MASK}, 0xffff0000")
        A(f"s_mul_i32 s{S_RB}, s{S_WAVE}, {RG}")
        A("s_waitcnt lgkmcnt(0)")
    def kr(self):
        A = self.A; vm = self.vm
        S_X = 8; S_MOD = 12; S_PT = 16; S_X2 = 20; S_H = 24; S_HN = 28; S_H1 = 36
        PR = 64; XR = 16; GA = 24; CB = 32; SB = 40
        A("v_lshlrev_b32 v9, 4, v1")
        A("v_lshlrev_b32 v10, 5, v1")
        A(f"s_lshl_b32 s3, s{S_M}, 3")
        A(f"s_add_u32 s3, s3, s{S_J}")
        A("s_lshl_b32 s3, s3, 3")
        A(f"s_add_u32 s3, s3, s{S_WAVE}")
        A("s_lshl_b32 s3, s3, 10")
        make_srd(A, S_X, P_X, 0, 2 * MB)
        make_srd(A, S_MOD, P_WS, WS_MOD, 4 * MODP)
        A(f"buffer_load_dwordx4 v[{XR}:{XR+3}], v9, s[{S_X}:{S_X+3}], s3 offen"); vm.issue("x")
        def modloads():
            for part in range(2 if V2 else 1):
                for (dst, idx) in ((CB, 4), (GA, 2), (SB, 3)):
                    d = dst + 88 * part
                    A(f"s_movk_i32 s{S_TMP}, {idx*2048 + part*MODP}")
                    A(f"buffer_load_dwordx4 v[{d}:{d+3}], v10, s[{S_MOD}:{S_MOD+3}], s{S_TMP} offen"); vm.issue("x")
                    A(f"buffer_load_dwordx4 v[{d+4}:{d+7}], v10, s[{S_MOD}:{S_MOD+3}], s{S_TMP} offen offset:16"); vm.issue("x")
        if W0M:
            A("v_add_u32 v2, 81920, v10")
            for q, off in enumerate((0, 16384, 49152)):
                A(f"ds_read_b128 v[{24+8*q}:{27+8*q}], v2 offset:{off}")
                A(f"ds_read_b128 v[{28+8*q}:{31+8*q}], v2 offset:{off+16}")
            A("s_waitcnt lgkmcnt(0)")
        else: modloads()
        make_srd(A, S_PT, P_WS, WS_PART, 8 * 2048 * 512 * 2)
        make_srd(A, S_X2, P_WS, WS_X2, 2 * MB)
        make_srd(A, S_H, P_WS, WS_H, 2 * MB)
        make_srd(A, S_HN, P_WS, WS_HN, 2 * MB)
        make_srd(A, S_H1, P_WS, WS_H1, 2052 * 1024)
        A(f"s_cmp_ge_u32 s{S_WAVE}, 4")
        A("s_cbranch_scc1 .Lkr_nz2")
        A(f"s_lshr_b32 s{S_TMP}, s{S_WAVE}, 1")
        A(f"s_mul_i32 s{S_TMP}, s{S_TMP}, 31")
        A(f"s_cmp_lg_u32 s2, s{S_TMP}")
        A("s_cbranch_scc1 .Lkr_nz")
        A(f"s_lshl_b32 s{S_TMP}, s{S_WAVE}, 10")
        A(f"s_add_u32 s{S_TMP+1}, s{S_TMP}, {2048*1024}")
        A(f"s_cmp_lt_u32 s{S_WAVE}, 2")
        A(f"s_cselect_b32 s{S_TMP}, s{S_TMP}, s{S_TMP+1}")
        for j in range(4): A(f"v_mov_b32 v{12+j}, 0")
        A(f"buffer_store_dwordx4 v[12:15], v9, s[{S_H1}:{S_H1+3}], s{S_TMP} offen sc1")
        A.label(".Lkr_nz")
        PFW1 = int(os.environ.get("PFW1", "1"))
        sv = list(vm.ops)
        if PFW1 == 1: self.pf_g64(0, 512, 24576, 8)
        vm.ops = sv
        A.label(".Lkr_nz2")
        self.poll(0)
        A("s_barrier")
        self.stamp(4)
        PL = int(os.environ.get("PL", "1"))
        if PL:
            A(f"s_mul_i32 s{S_TMP}, s{S_M}, {7 * 65536}")
            A(f"s_add_u32 s{S_TMP}, s{S_TMP}, s3")
        else: A(f"s_mov_b32 s{S_TMP}, s3")
        for g in range(8):
            A(f"buffer_load_dwordx4 v[{PR+4*g}:{PR+4*g+3}], v9, s[{S_PT}:{S_PT+3}], s{S_TMP} offen"); vm.issue(("p", g))
            if g < 7: A(f"s_add_u32 s{S_TMP}, s{S_TMP}, {65536 if PL else 2048*512*2}")
        X = list(range(48, 56)); T = list(range(PR, PR + 12)); XU = list(range(96, 104))
        if PFW1 == 3:
            def woff():
                A(f"s_and_b32 s{S_TMP+9}, s{S_WAVE}, 3")
                A(f"s_lshr_b32 s{S_TMP+8}, s{S_WAVE}, 2")
                A(f"s_lshl_b32 s{S_WOFF}, s{S_TMP+9}, 17")
                A(f"s_lshl_b32 s{S_TMP+11}, s{S_TMP+8}, 16")
                A(f"s_add_u32 s{S_WOFF}, s{S_WOFF}, s{S_TMP+11}")
                A(f"s_lshl_b32 s{S_TMP+11}, s{S_J}, 7")
                A(f"s_add_u32 s{S_WOFF}, s{S_WOFF}, s{S_TMP+11}")
                A(f"s_mov_b32 s{S_TMP+7}, s{S_RB}")
                A(f"s_mul_i32 s{S_RB}, s{S_TMP+9}, {RG}")
                A(f"s_lshl_b32 s{S_TMP+8}, s{S_TMP+8}, 13")
                A(f"s_add_u32 s{S_RB}, s{S_RB}, s{S_TMP+8}")
            self.w_setup(0, 512, 1024, woff)
            for st in range(4): self.dmaW(st, 24576 + st * 2048, "wn")
            A(f"s_mov_b32 s{S_RB}, s{S_TMP+7}")
        if int(os.environ.get("KRX", "0")):
            vm.wait(("p", 0)); self.stamp(25)
            vm.wait(("p", 7)); self.stamp(26)
        vm.wait("x")
        if V2 and not W0M:
            for j in range(0, 24, 2): pk(A, "v_pk_add_f32", GA + j, GA + j, GA + 88 + j)
            for q in range(3): round_multi(A, list(range(GA + 8*q, GA + 8*q + 8)), [56, 57, 58, 59], SM)
        if not W0M:
            for j in range(8): A(f"v_add_f32 v{CB+j}, 1.0, v{CB+j}")
            round_multi(A, list(range(CB, CB + 8)), [56, 57, 58, 59], SM)
        for j in range(4):
            A(f"v_lshlrev_b32 v{XU[2*j]}, 16, v{XR+j}")
            A(f"v_and_b32 v{XU[2*j+1]}, {SM}, v{XR+j}")
        for g in range(8):
            vm.wait(("p", g))
            if g == 0:
                for j in range(4):
                    A(f"v_lshlrev_b32 v{X[2*j]}, 16, v{PR+j}")
                    A(f"v_and_b32 v{X[2*j+1]}, {SM}, v{PR+j}")
            else:
                U = 136 + 8 * (g & 1)
                for j in range(4):
                    p = PR + 4 * g + j
                    A(f"v_lshlrev_b32 v{U+2*j}, 16, v{p}")
                    A(f"v_and_b32 v{U+2*j+1}, {SM}, v{p}")
                for j in range(0, 8, 2): pk(A, "v_pk_add_f32", X[j], X[j], U + j)
        self.stamp(23)
        if PFW1 == 2:
            A(f"s_cmp_ge_u32 s{S_WAVE}, 4")
            A("s_cbranch_scc1 .Lkr_nz3")
            self.pf_g64(0, 512, 24576, 8)
            A.label(".Lkr_nz3")
        round_multi(A, X, T[5:9], SM)
        for j in range(0, 8, 2): pk(A, "v_pk_mul_f32", X[j], X[j], GA + j)
        round_multi(A, X, T[5:9], SM)
        for j in range(0, 8, 2): pk(A, "v_pk_add_f32", X[j], X[j], XU[j])
        pack8(A, X, XR)
        A(f"buffer_store_dwordx4 v[{XR}:{XR+3}], v9, s[{S_X2}:{S_X2+3}], s3 offen sc1")
        for j in range(4):
            A(f"v_lshlrev_b32 v{X[2*j]}, 16, v{XR+j}")
            A(f"v_and_b32 v{X[2*j+1]}, {SM}, v{XR+j}")
        ln_rows(A, [(X, T)], SM)
        for j in range(0, 8, 2): pk(A, "v_pk_mul_f32", X[j], X[j], CB + j)
        round_multi(A, X, T[5:9], SM)
        for j in range(0, 8, 2): pk(A, "v_pk_add_f32", X[j], X[j], SB + j)
        pack8(A, X, 80)
        A(f"buffer_store_dwordx4 v[80:83], v9, s[{S_H}:{S_H+3}], s3 offen sc1")
        self.stamp(24)
        for j in range(4):
            A(f"v_lshlrev_b32 v{X[2*j]}, 16, v{80+j}")
            A(f"v_and_b32 v{X[2*j+1]}, {SM}, v{80+j}")
        ln_rows(A, [(X, T)], SM, False)
        pack8(A, X, 84)
        A(f"buffer_store_dwordx4 v[84:87], v9, s[{S_HN}:{S_HN+3}], s3 offen sc1")
    def g64(self, lab, stage, K, a_off, a_size, a_rb, epi, WB, DW, nbr, next_pf, own_pf=None, rot=0, nsched=None, l2=None):
        A = self.A; vm = self.vm; lg = self.lg
        S_G = 8; S_X1 = 16; S_X2 = 20; S_MOD = 24; S_O = 28; S_ST = 36
        KW = K // 4; NCH = KW // 64; NS = NCH * 4; DG = 3
        VG = [4, 5]; AA = 16; BA = 18
        X1 = 24; X2 = 32; GB = 40
        V_PW = 48; V_PR = 49; V_GA = 51; V_SA = 52; VC = (12, 14, 54)
        ACC = 64; FR = 128
        NBG = int(os.environ.get('NBG', '3'))
        def tail_setup():
            A(f"v_lshrrev_b32 v10, 3, v{L}")
            A(f"v_and_b32 v11, 7, v{L}")
            A(f"v_mul_u32_u24 v{V_PR}, {RS}, v10")
            A(f"v_lshl_add_u32 v{V_PR}, v11, 5, v{V_PR}")
            A(f"s_mul_i32 s{S_TMP+3}, s{S_WAVE}, {8*RS}")
            A(f"v_add_u32 v{V_PR}, s{S_TMP+3}, v{V_PR}")
            A(f"v_add_u32 v{V_PR+1}, {2*RG}, v{V_PR}")
            A(f"v_lshlrev_b32 v{V_GA}, 4, v11")
            A(f"v_lshl_add_u32 v{V_GA}, v10, 10, v{V_GA}")
            A(f"s_lshl_b32 s{S_TMP+2}, s{S_M}, 16")
            A(f"s_lshl_b32 s{S_TMP+3}, s{S_WAVE}, 13")
            A(f"s_add_u32 s{S_TMP+2}, s{S_TMP+2}, s{S_TMP+3}")
            A(f"s_lshl_b32 s{S_TMP+3}, s{S_J}, 7")
            A(f"s_add_u32 s{S_TMP+2}, s{S_TMP+2}, s{S_TMP+3}")
            if epi == "final":
                A(f"v_lshlrev_b32 v{V_SA}, 5, v11")
                make_srd(A, S_X1, P_WS, WS_X1, 2 * MB)
                make_srd(A, S_X2, P_WS, WS_X2, 2 * MB)
                make_srd(A, S_MOD, P_WS, WS_MOD, 4 * MODP)
                make_srd(A, S_O, P_OUT, 0, 2 * MB)
                A(f"buffer_load_dwordx4 v[{X1}:{X1+3}], v{V_GA}, s[{S_X1}:{S_X1+3}], s{S_TMP+2} offen"); vm.issue("e")
                A(f"buffer_load_dwordx4 v[{X2}:{X2+3}], v{V_GA}, s[{S_X2}:{S_X2+3}], s{S_TMP+2} offen"); vm.issue("e")
                A(f"s_lshl_b32 s{S_TMP+3}, s{S_J}, 8")
                A(f"s_add_u32 s{S_TMP+3}, s{S_TMP+3}, {5*2048}")
                for h4 in range(2):
                    A(f"buffer_load_dwordx4 v[{GB+4*h4}:{GB+4*h4+3}], v{V_SA}, s[{S_MOD}:{S_MOD+3}], s{S_TMP+3} offen offset:{h4*16}"); vm.issue("e")
                if V2:
                    A(f"s_add_u32 s{S_TMP+3}, s{S_TMP+3}, {MODP}")
                    for h4 in range(2):
                        A(f"buffer_load_dwordx4 v[{180+4*h4}:{183+4*h4}], v{V_SA}, s[{S_MOD}:{S_MOD+3}], s{S_TMP+3} offen offset:{h4*16}"); vm.issue("e")
            elif epi == "res":
                A(f"v_lshlrev_b32 v{V_SA}, 3, v10")
                A(f"s_lshl_b32 s{S_TMP+6}, s{S_M}, 9")
                A(f"s_lshl_b32 s{S_TMP+3}, s{S_WAVE}, 6")
                A(f"s_add_u32 s{S_TMP+6}, s{S_TMP+6}, s{S_TMP+3}")
                A(f"s_lshl_b32 s{S_TMP+3}, s{S_J}, 14")
                A(f"s_add_u32 s{S_TMP+6}, s{S_TMP+6}, s{S_TMP+3}")
                make_srd(A, S_X1, P_WS, WS_H, 2 * MB)
                make_srd(A, S_O, P_WS, WS_X1, 2 * MB)
                make_srd(A, S_ST, P_WS, WS_STAT, 2048 * 128)
                A(f"buffer_load_dwordx4 v[{X1}:{X1+3}], v{V_GA}, s[{S_X1}:{S_X1+3}], s{S_TMP+2} offen"); vm.issue("e")
            else:
                A(f"v_mov_b32 v{VC[0]}, {fhex(GK1)}")
                A(f"v_mov_b32 v{VC[1]}, {fhex(GK0)}")
                A(f"v_mov_b32 v{VC[2]}, 1.0")
                make_srd(A, S_O, P_WS, WS_H1 + 2048, 2 * MB)
        A(f"s_cmp_ge_u32 s{S_WAVE}, 4")
        A(f"s_cbranch_scc1 .L{lab}_help")
        if own_pf and PFE == 2: own_pf(NE, 99)
        A(f"v_lshrrev_b32 v7, 3, v{L}")
        A(f"v_and_b32 v8, 7, v{L}")
        A("v_lshrrev_b32 v9, 1, v7")
        A("v_xor_b32 v9, v8, v9")
        A(f"s_movk_i32 s{S_TMP}, {a_rb}")
        A(f"v_mul_lo_u32 v10, v7, s{S_TMP}")
        A(f"v_lshl_add_u32 v{VG[0]}, v9, 4, v10")
        A("v_xor_b32 v9, 4, v9")
        A(f"v_lshl_add_u32 v{VG[1]}, v9, 4, v10")
        A(f"s_mul_i32 s{S_GOFF}, s{S_M}, {64*a_rb}")
        A(f"s_mul_i32 s{S_TMP}, s{S_WAVE}, {KW*2}")
        A(f"s_add_u32 s{S_GOFF}, s{S_GOFF}, s{S_TMP}")
        if epi == "res":
            A(f"s_lshl_b32 s{S_TMP}, s{S_WAVE}, 2")
            A(f"s_lshr_b32 s{S_TMP+1}, 0x4031, s{S_TMP}")
            A(f"s_and_b32 s{S_TMP+1}, s{S_TMP+1}, 15")
            A(f"s_lshl_b32 s{S_TMP+1}, s{S_TMP+1}, 10")
            A(f"s_add_u32 s{S_GOFF}, s{S_GOFF}, s{S_TMP+1}")
        make_srd(A, S_G, P_WS, a_off, a_size)
        A(f"v_lshrrev_b32 v7, 5, v{L}")
        A(f"v_bfe_u32 v8, v{L}, 4, 1")
        A(f"v_bfe_u32 v9, v{L}, 2, 2")
        A(f"v_and_b32 v10, 1, v{L}")
        A(f"v_bfe_u32 v11, v{L}, 1, 1")
        A("v_lshl_or_b32 v10, v10, 1, v11")
        A("v_lshlrev_b32 v10, 3, v10")
        A("v_lshl_add_u32 v10, v8, 5, v10")
        A("v_lshl_add_u32 v11, v7, 3, v9")
        A("v_lshrrev_b32 v12, 1, v9")
        for nb in range(2):
            A(f"v_xor_b32 v13, {nb}, v12")
            A("v_lshl_add_u32 v13, v13, 6, v10")
            A("v_lshl_add_u32 v13, v11, 7, v13")
            A(f"v_add_u32 v{AA+nb}, s{S_RB}, v13")
        A(f"v_and_b32 v8, 31, v{L}")
        A("v_bfe_u32 v9, v8, 1, 3")
        for ks in range(4):
            A(f"v_or_b32 v10, {2*ks}, v7")
            A("v_xor_b32 v10, v10, v9")
            A("v_lshlrev_b32 v10, 4, v10")
            A("v_lshl_add_u32 v10, v8, 7, v10")
            A(f"v_add_u32 v{BA+ks}, s{S_RB}, v10")
        A(f"v_mul_u32_u24 v{V_PW}, {RS}, v8")
        A(f"v_lshl_add_u32 v{V_PW}, v7, 5, v{V_PW}")
        A(f"v_add_u32 v{V_PW}, s{S_RB}, v{V_PW}")
        tail_setup()
        A("s_barrier")
        self.stamp(1 + 4 * stage + 3)
        def dmaG(ch):
            base = (ch % DG) * 8192
            for i in range(8):
                A(f"s_add_u32 m0, s{S_RB}, {base + i * 1024}")
                A(f"s_add_u32 s{S_TMP}, s{S_GOFF}, {i * 8 * a_rb + ch * 128}")
                A(f"buffer_load_dwordx4 v{VG[i & 1]}, s[{S_G}:{S_G+3}], s{S_TMP} offen lds")
                vm.issue(("g", ch))
        for ch in range(min(DG, NCH)): dmaG(ch)
        def reads(step):
            ch, ks = step // 4, step % 4
            buf = FR + (step % NBG) * 16
            for nb in range(2):
                for q in range(2):
                    A(f"ds_read_b64_tr_b16 v[{buf+nb*4+q*2}:{buf+nb*4+q*2+1}], v{AA+nb} offset:{WB + ((step + rot) % DW) * 2048 + q * 512}")
                    lg.issue(("f", step))
            for rb in range(2):
                A(f"ds_read_b128 v[{buf+8+rb*4}:{buf+8+rb*4+3}], v{BA+ks} offset:{(ch % DG) * 8192 + rb * 4096}")
                lg.issue(("f", step))
        def need(step):
            vm.wait(("w", step)); vm.wait(("g", step // 4))
        for s0 in range(NBG - 1):
            need(s0); reads(s0)
        for st in range(NS):
            lg.wait(("f", st))
            with Cap(A) as cp:
                if st + DW < NS: self.dmaW(st + DW, WB + ((st + rot) % DW) * 2048)
                if st % 4 == 3 and st // 4 + DG < NCH: dmaG(st // 4 + DG)
                if st + NBG - 1 < NS:
                    need(st + NBG - 1); reads(st + NBG - 1)
                if st + DW >= NS and PFE == 3 and nsched and st in nsched: next_pf(*nsched[st])
            buf = FR + (st % NBG) * 16
            mf = []
            for nb in range(2):
                for rb in range(2):
                    acc = ACC + (nb * 2 + rb) * 16
                    c = "0" if st == 0 else f"v[{acc}:{acc+15}]"
                    mf.append(f"v_mfma_f32_32x32x16_bf16 v[{acc}:{acc+15}], v[{buf+nb*4}:{buf+nb*4+3}], v[{buf+8+rb*4}:{buf+8+rb*4+3}], {c}")
            interleave(A, mf, cp.out)
        vm.wait("e")
        if not int(os.environ.get("KRX", "0")): self.stamp({1: 25, 2: 26, 4: 27}[stage])
        A("s_nop 7")
        A("s_nop 1")
        for tl in range(4):
            nb, rb = tl >> 1, tl & 1
            for r4 in range(4):
                A(f"ds_write_b128 v{V_PW}, v[{ACC+tl*16+r4*4}:{ACC+tl*16+r4*4+3}] offset:{rb*32*RS + (nb*8 + (r4 >> 1)*4 + (r4 & 1))*16}")
            if tl == 1: A("s_waitcnt lgkmcnt(0)")
        if next_pf and PFE == 1: next_pf()
        A("s_waitcnt lgkmcnt(0)")
        A(f"s_branch .L{lab}_join")
        A.label(f".L{lab}_help")
        sv = list(vm.ops)
        tail_setup()
        vm.ops = sv
        self.poll(stage, nbr)
        A("s_barrier")
        self.stamp(1 + 4 * stage + 3)
        n = sum(self.l2pf(*x) for x in l2) if l2 else 0
        A(f"s_waitcnt vmcnt({n})")
        A.label(f".L{lab}_join")
        A("s_barrier")
        for p in range(4):
            for h in range(2):
                d = ACC + p * 16 + h * 4
                A(f"ds_read_b128 v[{d}:{d+3}], v{V_PR + (p >> 1)} offset:{(p & 1)*RG + h*16}")
        xs = list(range(ACC, ACC + 8)); tp = list(range(72, 80)); t8 = list(range(88, 96))
        b = ACC
        def unpack(src, dst):
            for k in range(4):
                A(f"v_lshlrev_b32 v{dst[2*k]}, 16, v{src+k}")
                A(f"v_and_b32 v{dst[2*k+1]}, {SM}, v{src+k}")
        if epi != "gelu": unpack(X1, tp)
        if epi == "final":
            unpack(X2, list(range(104, 112)))
            if V2:
                for k in range(0, 8, 2): pk(A, "v_pk_add_f32", GB + k, GB + k, 180 + k)
                round_multi(A, list(range(GB, GB + 8)), t8, SM)
        A("s_waitcnt lgkmcnt(4)")
        for e in range(0, 8, 2): pk(A, "v_pk_add_f32", b + e, b + e, b + 16 + e)
        A("s_waitcnt lgkmcnt(0)")
        for e in range(0, 8, 2): pk(A, "v_pk_add_f32", b + 32 + e, b + 32 + e, b + 48 + e)
        for e in range(0, 8, 2): pk(A, "v_pk_add_f32", b + e, b + e, b + 32 + e)
        round_multi(A, xs, t8, SM)
        def store():
            for k in range(4): A(f"v_cvt_pk_bf16_f32 v{56+k}, v{xs[2*k]}, v{xs[2*k+1]}")
            A(f"buffer_store_dwordx4 v[56:59], v{V_GA}, s[{S_O}:{S_O+3}], s{S_TMP+2} offen sc1")
        if epi == "gelu":
            X = xs; T = tp
            for e in range(0, 8, 2): pk(A, "v_pk_mul_f32", T[e], X[e], X[e])
            for e in range(0, 8, 2): pk(A, "v_pk_fma_f32", T[e], T[e], VC[0], VC[1], "op_sel_hi:[1,0,0]")
            for e in range(0, 8, 2): pk(A, "v_pk_mul_f32", T[e], T[e], X[e])
            for e in range(8): A(f"v_exp_f32 v{T[e]}, v{T[e]}")
            for e in range(0, 8, 2): pk(A, "v_pk_add_f32", T[e], T[e], VC[2], None, "op_sel_hi:[1,0]")
            for e in range(8): A(f"v_rcp_f32 v{T[e]}, v{T[e]}")
            A("s_nop 0")
            for e in range(0, 8, 2): pk(A, "v_pk_mul_f32", X[e], X[e], T[e])
            store()
        elif epi == "res":
            for k in range(0, 8, 2): pk(A, "v_pk_add_f32", xs[k], xs[k], tp[k])
            store()
            unpack(56, xs)
            X = xs
            pk(A, "v_pk_mul_f32", tp[0], X[0], X[0])
            pk(A, "v_pk_add_f32", tp[2], X[0], X[2])
            for e in range(2, 8, 2):
                pk(A, "v_pk_fma_f32", tp[0], X[e], X[e], tp[0])
                if e >= 4: pk(A, "v_pk_add_f32", tp[2], tp[2], X[e])
            A(f"v_add_f32 v20, v{tp[2]}, v{tp[3]}")
            A(f"v_add_f32 v21, v{tp[0]}, v{tp[1]}")
            A("s_nop 1")
            for dpp in ("quad_perm:[1,0,3,2]", "quad_perm:[2,3,0,1]", "row_half_mirror"):
                for v in (20, 21):
                    A(f"v_add_f32_dpp v{v}, v{v}, v{v} {dpp} row_mask:0xf bank_mask:0xf")
                A("s_nop 1")
            A("v_and_b32 v10, 7, v1")
            A("v_cmp_eq_u32 vcc, 0, v10")
            A("s_and_saveexec_b64 s[78:79], vcc")
            A(f"buffer_store_dwordx2 v[20:21], v{V_SA}, s[{S_ST}:{S_ST+3}], s{S_TMP+6} offen sc1")
            A("s_mov_b64 exec, s[78:79]")
        else:
            for k in range(0, 8, 2): pk(A, "v_pk_add_f32", xs[k], xs[k], tp[k])
            round_multi(A, xs, t8, SM)
            for k in range(0, 8, 2): pk(A, "v_pk_mul_f32", xs[k], xs[k], GB + k)
            round_multi(A, xs, t8, SM)
            for k in range(0, 8, 2): pk(A, "v_pk_add_f32", xs[k], xs[k], 104 + k)
            store()
    def k5(self, stage, next_pf, own_pf=None):
        A = self.A; vm = self.vm; lg = self.lg
        S_A = 8; S_O = 20; S_ST = 24; S_CS = 28
        VB = [16, 28]; AA = 24; ACC = 64; FQ = 128
        D = K5D
        NB5 = int(os.environ.get('NB5', '3'))
        A(f"s_cmp_lt_u32 s{S_WAVE}, 4")
        A("s_cbranch_scc1 .Lk5_main")
        A(f"s_cmp_eq_u32 s{S_J}, 7")
        A("s_cbranch_scc1 .Lk5_h7")
        self.poll(stage)
        A("s_barrier")
        A("s_barrier")
        A.label(".Lk5_h7")
        if L2PF & 4: self.l2pf(3, 1792 * 1024)
        A("s_branch .Lk5_end")
        A.label(".Lk5_main")
        A(f"s_cmp_eq_u32 s{S_J}, 7")
        A("s_cbranch_scc1 .Lk5_pf")
        if own_pf and PFE == 2: own_pf(NE, 99)
        make_srd(A, S_A, P_WS, WS_X1, 2 * MB)
        make_srd(A, S_ST, P_WS, WS_STAT, 2048 * 128)
        make_srd(A, S_CS, P_WS, WS_CS, 2 * CSP)
        make_srd(A, S_O, P_WS, WS_G, 2048 * 3584)
        A(f"v_lshlrev_b32 v4, 4, v{L}")
        A(f"s_lshl_b32 s{S_TMP}, s{S_M}, 16")
        A(f"s_lshl_b32 s{S_TMP+1}, s{S_WAVE}, 14")
        A(f"s_add_u32 s{S_TMP}, s{S_TMP}, s{S_TMP+1}")
        A(f"s_lshl_b32 s{S_TMP+6}, s{S_J}, 9")
        A(f"s_lshl_b32 s{S_TMP+2}, s{S_WAVE}, 7")
        A(f"s_add_u32 s{S_TMP+6}, s{S_TMP+6}, s{S_TMP+2}")
        A(f"v_lshrrev_b32 v5, 5, v{L}")
        A(f"v_bfe_u32 v7, v{L}, 4, 1")
        A(f"v_bfe_u32 v8, v{L}, 2, 2")
        A(f"v_and_b32 v9, 1, v{L}")
        A(f"v_bfe_u32 v10, v{L}, 1, 1")
        A("v_lshl_or_b32 v9, v9, 1, v10")
        A("v_lshlrev_b32 v9, 3, v9")
        A("v_lshl_add_u32 v9, v7, 5, v9")
        A("v_lshl_add_u32 v10, v5, 3, v8")
        A("v_lshrrev_b32 v11, 1, v8")
        for nb in range(2):
            A(f"v_xor_b32 v12, {nb}, v11")
            A("v_lshl_add_u32 v12, v12, 6, v9")
            A("v_lshl_add_u32 v12, v10, 7, v12")
            A(f"v_add_u32 v{AA+nb}, s{S_RB}, v12")
        A(f"v_and_b32 v13, 31, v{L}")
        A("v_lshrrev_b32 v7, 4, v13")
        A(f"v_mul_u32_u24 v7, {RG // 1024}, v7")
        A("v_and_b32 v8, 15, v13")
        A("v_add_u32 v7, v7, v8")
        for j in range(8):
            A(f"v_or_b32 v8, {2*j}, v5")
            A("v_xor_b32 v8, v8, v13")
            A("v_and_b32 v8, 15, v8")
            A("v_lshlrev_b32 v8, 4, v8")
            A(f"v_lshl_add_u32 v{VB[0]+j}, v7, 10, v8")
            A(f"v_add_u32 v{VB[1]+j}, {2*RG}, v{VB[0]+j}")
        ST = 192; CS = 224
        A("v_lshlrev_b32 v42, 5, v5")
        C2 = [176, 184, 200, 216]
        def csloads():
            A(f"s_lshl_b32 s{S_TMP+2}, s{S_TMP+6}, 1")
            for part in range(2 if V2 else 1):
                for q in range(4):
                    for h4 in range(2):
                        d = (CS + q * 8 if part == 0 else C2[q]) + 4 * h4
                        A(f"buffer_load_dwordx4 v[{d}:{d+3}], v42, s[{S_CS}:{S_CS+3}], s{S_TMP+2} offen offset:{(16*q+4*h4)*4}"); vm.issue("st")
                A(f"s_add_u32 s{S_TMP+2}, s{S_TMP+2}, {CSP}")
        VS = 36
        A("v_and_b32 v7, 7, v13")
        A(f"s_add_u32 s{S_TMP+3}, s{S_RB}, {K5RB}")
        for j in range(4):
            A(f"v_or_b32 v14, {2*j}, v5")
            A("v_xor_b32 v14, v14, v7")
            A("v_lshlrev_b32 v14, 4, v14")
            A("v_lshl_add_u32 v14, v13, 7, v14")
            A(f"v_add_u32 v{VS+j}, s{S_TMP+3}, v14")
        A(f"v_lshrrev_b32 v7, 3, v{L}")
        A(f"v_and_b32 v14, 7, v{L}")
        A(f"v_xor_b32 v{VS+4}, v14, v7")
        A(f"v_lshlrev_b32 v{VS+4}, 4, v{VS+4}")
        A(f"v_lshl_add_u32 v{VS+4}, v7, 7, v{VS+4}")
        A(f"v_add_u32 v{VS+4}, s{S_TMP+3}, v{VS+4}")
        A(f"s_movk_i32 s{S_TMP+2}, 3584")
        A(f"v_mul_lo_u32 v7, v7, s{S_TMP+2}")
        A(f"v_lshl_add_u32 v{VS+5}, v14, 4, v7")
        A(f"s_mul_i32 s{S_TMP+4}, s{S_M}, {64*3584}")
        A(f"s_add_u32 s{S_TMP+4}, s{S_TMP+4}, s{S_TMP+6}")
        A(f"s_add_u32 s{S_TMP+5}, s{S_TMP+4}, {32*3584}")
        A("v_lshlrev_b32 v7, 3, v13")
        A("v_lshl_add_u32 v7, v5, 16, v7")
        A(f"s_lshl_b32 s{S_TMP+7}, s{S_M}, 9")
        A("s_barrier")
        self.stamp(1 + 4 * stage + 3)
        for i in range(16):
            t = 8 + (i & 1)
            A(f"v_xor_b32 v{t}, {i << 4}, v4")
            A(f"s_add_u32 m0, s{S_RB}, {i * 1024}")
            A(f"s_add_u32 s{S_TMP+2}, s{S_TMP}, {i * 1024}")
            A(f"buffer_load_dwordx4 v{t}, s[{S_A}:{S_A+3}], s{S_TMP+2} offen lds")
            vm.issue("act")
        for q in range(4):
            A(f"s_add_u32 s{S_TMP+3}, s{S_TMP+7}, {q*16384}")
            for rb in range(2):
                A(f"buffer_load_dwordx2 v[{ST+16*rb+2*q}:{ST+16*rb+2*q+1}], v7, s[{S_ST}:{S_ST+3}], s{S_TMP+3} offen offset:{rb*256}"); vm.issue("st")
        vm.wait("act")
        A("s_barrier")
        self.stamp(29)
        def reads(step):
            buf = FQ + (step % NB5) * 16
            for nb in range(2):
                for q in range(2):
                    A(f"ds_read_b64_tr_b16 v[{buf+nb*4+q*2}:{buf+nb*4+q*2+1}], v{AA+nb} offset:{K5RB + (step % D) * 2048 + q * 512}")
                    lg.issue(("f", step))
            for rb in range(2):
                A(f"ds_read_b128 v[{buf+8+rb*4}:{buf+8+rb*4+3}], v{VB[rb] + (step & 7)} offset:{(step >> 3) * 256}")
                lg.issue(("f", step))
        PKC = [[44, 46, 48, 50], [52, 54, 56, 58]]
        E = []
        for stg in range(17):
            for rb in range(2):
                b = ST + 16 * rb; c = PKC[rb]
                E.append([f"v_add_f32 v{b}, v{b}, v{b+2}", f"v_add_f32 v{b+1}, v{b+1}, v{b+3}",
                          f"v_add_f32 v{b+4}, v{b+4}, v{b+6}", f"v_add_f32 v{b+5}, v{b+5}, v{b+7}",
                          f"v_add_f32 v{b}, v{b}, v{b+4}", f"v_add_f32 v{b+1}, v{b+1}, v{b+5}",
                          f"v_mov_b32 v{b+2}, v{b}", f"v_mov_b32 v{b+3}, v{b+1}", "s_nop 1",
                          f"v_permlane32_swap_b32 v{b}, v{b+2}", f"v_permlane32_swap_b32 v{b+1}, v{b+3}", "s_nop 1",
                          f"v_add_f32 v{b}, v{b}, v{b+2}", f"v_add_f32 v{b+1}, v{b+1}, v{b+3}",
                          f"v_mul_f32 v{c[0]}, {fhex(-1/512)}, v{b}", f"v_mul_f32 v{b+1}, {fhex(1/512)}, v{b+1}",
                          f"v_fma_f32 v{b+1}, -v{c[0]}, v{c[0]}, v{b+1}"][stg])
        for stg in range(9):
            for rb in range(2):
                b = ST + 16 * rb; c = PKC[rb]
                E.append([f"v_max_f32 v{b+1}, 0, v{b+1}", f"v_add_f32 v{b+1}, {fhex(1e-5)}, v{b+1}",
                          f"v_rsq_f32 v{b+2}, v{b+1}", f"v_sqrt_f32 v{c[3]}, v{b+1}", "s_nop 0",
                          f"v_mul_f32 v{c[2]}, {fhex(GK0)}, v{b+2}", f"v_mul_f32 v{c[1]}, v{b+2}, v{b+2}",
                          f"v_mul_f32 v{c[1]}, v{c[1]}, v{b+2}", f"v_mul_f32 v{c[1]}, {fhex(GK1)}, v{c[1]}"][stg])
        if V2:
            for q in range(4):
                for e in range(8): E.append(f"v_add_f32 v{CS+8*q+e}, v{CS+8*q+e}, v{C2[q]+e}")
        for s0 in range(NB5 - 1):
            vm.wait(("w", s0)); reads(s0)
        k = 0
        for ks in range(32):
            lg.wait(("f", ks))
            with Cap(A) as cp:
                if ks + NB5 - 1 < 32:
                    vm.wait(("w", ks + NB5 - 1)); reads(ks + NB5 - 1)
                if ks + D < 32: self.dmaW(ks + D, K5RB + (ks % D) * 2048)
                elif PFE == 3 and ks == 21: next_pf(0, 1)
                elif PFE == 3 and ks >= 26: next_pf(ks - 25, ks - 24)
                if ks == 1: csloads()
                if 14 <= ks < 28:
                    if ks == 14: vm.wait("st")
                    upto = len(E) * (ks - 13) // 14
                    while k < upto: A(E[k]); k += 1
            buf = FQ + (ks % NB5) * 16
            mf = []
            for nb in range(2):
                for rb in range(2):
                    acc = ACC + (nb * 2 + rb) * 16
                    c = "0" if ks == 0 else f"v[{acc}:{acc+15}]"
                    mf.append(f"v_mfma_f32_32x32x16_bf16 v[{acc}:{acc+15}], v[{buf+nb*4}:{buf+nb*4+3}], v[{buf+8+rb*4}:{buf+8+rb*4+3}], {c}")
            interleave(A, mf, cp.out)
        self.stamp(28)
        if PFE == 1: next_pf()
        else:
            A("s_nop 7"); A("s_nop 3")
        def flush5(rb):
            A("s_waitcnt lgkmcnt(0)")
            for i in range(4):
                A(f"ds_read_b128 v[{192+16*rb+4*i}:{192+16*rb+4*i+3}], v{VS+4} offset:{rb*4096 + i*1024}")
        def store5(rb):
            for i in range(4):
                if rb == 1: A(f"s_waitcnt lgkmcnt({3-i})")
                A(f"s_add_u32 s{S_TMP+3}, s{S_TMP+4+rb}, {i*8*3584}")
                A(f"buffer_store_dwordx4 v[{192+16*rb+4*i}:{192+16*rb+4*i+3}], v{VS+5}, s[{S_O}:{S_O+3}], s{S_TMP+3} offen sc1")
        for rb in range(2):
            for nb in range(2):
                acc = ACC + (nb * 2 + rb) * 16
                if rb == 1 and nb == 1:
                    A("s_waitcnt lgkmcnt(2)")
                    store5(0)
                for mp in range(2):
                    d = 160 + (nb * 4 + rb * 2 + mp) * 4
                    xs = [acc + 8 * mp + e for e in range(8)]
                    ts = list(range(128, 136)); cs = CS + (nb * 2 + mp) * 8; c = PKC[rb]
                    for e in range(0, 8, 2): pk(A, "v_pk_fma_f32", xs[e], cs + e, c[0], xs[e], "op_sel_hi:[1,0,1]")
                    for e in range(0, 8, 2): pk(A, "v_pk_mul_f32", ts[e], xs[e], xs[e])
                    for e in range(0, 8, 2): pk(A, "v_pk_fma_f32", ts[e], ts[e], c[1], c[2], "op_sel_hi:[1,0,0]")
                    for e in range(0, 8, 2): pk(A, "v_pk_mul_f32", ts[e], ts[e], xs[e])
                    for t in ts: A(f"v_exp_f32 v{t}, v{t}")
                    for e in range(0, 8, 2): pk(A, "v_pk_fma_f32", ts[e], ts[e], c[3], c[3], "op_sel_hi:[1,0,0]")
                    for t in ts: A(f"v_rcp_f32 v{t}, v{t}")
                    A("s_nop 0")
                    for e in range(0, 8, 2): pk(A, "v_pk_mul_f32", xs[e], xs[e], ts[e])
                    for e in range(0, 8, 2): A(f"v_cvt_pk_bf16_f32 v{d+e//2}, v{xs[e]}, v{xs[e+1]}")
                    A(f"ds_write_b128 v{VS+2*nb+mp}, v[{d}:{d+3}] offset:{rb*4096}")
            flush5(rb)
        store5(1)
        A("s_branch .Lk5_end")
        A.label(".Lk5_pf")
        if PFE in (1, 3): next_pf(alt=True)
        A.label(".Lk5_end")

def gen_km(A):
    name = "k1_kernel"
    M = Mega(A)
    def pre():
        if MT or HD:
            M.persist(); M.stamp(0); M.vm.ops = []
        if ONE: M.pro_pre()
    if V2: K1.gen_k1(A, emb=True, pre=pre, hookA=M.p2_a, hookB=M.p2_b, v2=True, hookC=M.p2_c)
    elif ONE: K1.gen_k1(A, emb=True, pre=pre, hookA=M.pro_a, hookB=M.pro_b)
    else: K1.gen_k1(A, emb=True, pre=pre)
    M.persist()
    M.transition(0)
    M.kr()
    M.transition(1)
    pf4 = lambda lo=0, hi=99: M.pf_g64(1, 512, 24576, 8, lo, hi)
    pf6 = lambda lo=0, hi=99, alt=False: M.pf_g64(3, 1792, 26624, 7, lo, hi, 6)
    M.g64("k3", 1, 512, WS_HN, 2 * MB, 1024, "gelu", 24576, 8, False, pf4, None, 0, {st: (st, st + 1) for st in range(8)}, [(2, 1792 * 1024)] if L2PF & 1 else None)
    M.transition(2, pf4)
    M.g64("k4", 2, 512, WS_H1, 2052 * 1024, 1024, "res", 24576, 8, True, M.pf_k5, pf4, 0, {st: ((0, 4) if st == 0 else (st + 3, st + 4)) for st in range(8)}, [(3, 1792 * 1024)] if L2PF & 2 else None)
    M.transition(3, M.pf_k5)
    M.k5(3, pf6, M.pf_k5)
    M.transition(4, pf6)
    M.g64("k6", 4, 1792, WS_G, 2048 * 3584, 3584, "final", 26624, 7, False, None, pf6, 6)
    M.stamp(21)
    if MT or HD: A("s_waitcnt vmcnt(0)")
    M.stamp(22)
    A("s_endpgm")
    A.raw(kernel_desc(name, 256, 102, 256))
    return (name, (256, 1, 1), (512, 1, 1), 163840)
```

```python
from asmlib import *
from gen_k0 import *
import gen_k1 as K1
from gen_k1 import Cnt
from gen_ka import ln_rows, round_multi, pack8, GK0, GK1
from gen_g64 import WS_STAT, WS_CS
import os
MT = int(os.environ.get("MT", "0"))
HD = int(os.environ.get("HD", "0"))
PT = int(os.environ.get("PT", "0"))
TLW = int(os.environ.get("TLW", "0"))
MP = int(os.environ.get("MP", "1"))
WQF = int(os.environ.get("WQF", "0"))
W0M = int(os.environ.get("MEGA", "5")) == 5 and int(os.environ.get("W0M", "1"))
EB = int(os.environ.get("EB", "0"))
DLY = int(os.environ.get("DLY", "1"))
WQE = int(os.environ.get("WQE", "0"))
ONE = int(os.environ.get("MEGA", "5")) >= 4
V2 = int(os.environ.get("MEGA", "5")) == 5
MODP = 12288; CSP = 8192
FP = WS_FLAG + 0x20000; FQ_ = WS_FLAG + 0x30000
S_WAVE = 40; S_M = 41; S_J = 42; S_MASK = 43; S_RB = 44; S_GOFF = 45; S_TMP = 48; S_WOFF = 58
S_W = 32; V_W = 6
P_X = 60; P_OUT = 62; P_WS = 68; P_W = 84
SM = f"s{S_MASK}"
L = 1
RG = 40960; RS = 272
K5RB = 18432; K5D = 11
L2PF = int(os.environ.get('L2PF', '0'))
PFE = int(os.environ.get('PFE', '3'))
NE = int(os.environ.get('NE', '3')) if PFE == 2 else 0

def pk(A, op, d, a, b, c=None, sel=""):
    ops = ", ".join(f"v[{x}:{x+1}]" for x in ((d, a, b) if c is None else (d, a, b, c)))
    A(f"{op} {ops} {sel}".rstrip())

FLN = int(os.environ.get("FLN", "1"))
_ln_slow = ln_rows
def ln_fast(A, R, smask, final_round=True):
    for X, T in R:
        assert X[0] % 2 == 0 and T[0] % 2 == 0
        pk(A, "v_pk_add_f32", T[0], X[0], X[2]); pk(A, "v_pk_mul_f32", T[2], X[0], X[0])
        pk(A, "v_pk_add_f32", T[4], X[4], X[6]); pk(A, "v_pk_mul_f32", T[6], X[2], X[2])
    for X, T in R:
        pk(A, "v_pk_fma_f32", T[2], X[4], X[4], T[2]); pk(A, "v_pk_fma_f32", T[6], X[6], X[6], T[6])
        pk(A, "v_pk_add_f32", T[0], T[0], T[4])
    for X, T in R:
        pk(A, "v_pk_add_f32", T[2], T[2], T[6])
        A(f"v_add_f32 v{T[0]}, v{T[0]}, v{T[1]}")
    for X, T in R:
        A(f"v_add_f32 v{T[1]}, v{T[2]}, v{T[3]}")
    wave_allreduce(A, "v_add_f32", [t for X, T in R for t in (T[0], T[1])], [t for X, T in R for t in (T[2], T[3])], [t for X, T in R for t in (T[4], T[5])])
    for X, T in R:
        A(f"v_mul_f32 v{T[0]}, {fhex(1/512)}, v{T[0]}")
        A(f"v_mul_f32 v{T[1]}, {fhex(1/512)}, v{T[1]}")
    for X, T in R:
        A(f"v_fma_f32 v{T[1]}, -v{T[0]}, v{T[0]}, v{T[1]}")
    for X, T in R:
        A(f"v_max_f32 v{T[1]}, 0, v{T[1]}")
    for X, T in R:
        A(f"v_cvt_pk_bf16_f32 v{T[3]}, v{T[0]}, v{T[1]}")
    for X, T in R:
        A(f"v_and_b32 v{T[1]}, {smask}, v{T[3]}")
        A(f"v_lshlrev_b32 v{T[2]}, 16, v{T[3]}")
    for X, T in R:
        A(f"v_add_f32 v{T[1]}, {fhex(1e-5)}, v{T[1]}")
        for j in range(0, 4, 2): pk(A, "v_pk_add_f32", X[j], X[j], T[2], None, "op_sel_hi:[1,0] neg_lo:[0,1] neg_hi:[0,1]")
    for X, T in R:
        A(f"v_cvt_pk_bf16_f32 v{T[1]}, v{T[1]}, v{T[1]}")
        for j in range(4, 8, 2): pk(A, "v_pk_add_f32", X[j], X[j], T[2], None, "op_sel_hi:[1,0] neg_lo:[0,1] neg_hi:[0,1]")
    for X, T in R:
        A(f"v_lshlrev_b32 v{T[1]}, 16, v{T[1]}")
    for X, T in R:
        A(f"v_sqrt_f32 v{T[0]}, v{T[1]}")
        round_multi(A, X[:4], T[4:6], smask)
    for X, T in R:
        A(f"v_cvt_pk_bf16_f32 v{T[0]}, v{T[0]}, v{T[0]}")
    for X, T in R:
        A(f"v_lshlrev_b32 v{T[0]}, 16, v{T[0]}")
    for X, T in R:
        A(f"v_rcp_f32 v{T[2]}, v{T[0]}")
        round_multi(A, X[4:], T[4:6], smask)
    if FLN == 2:
        for X, T in R:
            for j in range(0, 8, 2): pk(A, "v_pk_mul_f32", X[j], X[j], T[2], None, "op_sel_hi:[1,0]")
    else:
        for X, T in R:
            for h in range(2):
                js = (4 * h, 4 * h + 2)
                for k, j in enumerate(js): pk(A, "v_pk_mul_f32", T[4+2*k], X[j], T[2], None, "op_sel_hi:[1,0]")
                for k, j in enumerate(js): pk(A, "v_pk_fma_f32", X[j], T[4+2*k], T[0], X[j], "op_sel_hi:[1,0,1] neg_lo:[1,0,0] neg_hi:[1,0,0]")
                for k, j in enumerate(js): pk(A, "v_pk_fma_f32", X[j], X[j], T[2], T[4+2*k], "op_sel_hi:[1,0,1]")
    if final_round:
        for X, T in R: round_multi(A, X, T[4:8], smask)
def ln_rows(A, R, smask, final_round=True):
    return ln_fast(A, R, smask, final_round) if FLN else _ln_slow(A, R, smask)

class Cap:
    def __init__(self, A): self.A = A
    def __enter__(self):
        self.sv = self.A.lines; self.A.lines = []; return self
    def __exit__(self, *a):
        self.out = self.A.lines; self.A.lines = self.sv

def interleave(A, mf, fill):
    n = len(mf); k = 0
    for i, m in enumerate(mf):
        A(m)
        upto = (len(fill) * (i + 1) + n - 1) // n
        while upto < len(fill) and upto > 0 and not (fill[upto - 1].lstrip().startswith(("buffer_", "ds_", "v_", "s_waitcnt")) or fill[upto - 1].lstrip().startswith(f"s_add_u32 s{S_WOFF}")): upto += 1
        A.lines.extend(fill[k:upto]); k = max(k, upto)

class Mega:
    def __init__(self, A):
        self.A = A
        self.vm = Cnt(A, "vmcnt", 63); self.lg = Cnt(A, "lgkmcnt", 15)
    def stamp(self, idx):
        if HD:
            hmap = {0: 2, 3: 3, 4: 4, 7: 5, 8: 6, 11: 7, 12: 8, 15: 9, 16: 10, 19: 11, 20: 12, 21: 13, 22: 14}
            if int(os.environ.get('HK', '0')): hmap = {0: 2, 22: 14}
            if idx not in hmap: return
            A = self.A
            lab = A.newlabel("hd")
            A("s_waitcnt lgkmcnt(0)")
            A("s_load_dwordx2 s[76:77], s[0:1], 104")
            A("s_memrealtime s[70:71]")
            A("s_waitcnt lgkmcnt(0)")
            A("s_mov_b32 s72, s76")
            A("s_mov_b32 s73, s77")
            A("s_mov_b32 s74, 256")
            A("s_mov_b32 s75, 0x00020000")
            A(f"s_lshl_b32 s76, s{S_WAVE}, 8")
            A("s_or_b32 s76, s76, s2")
            A(f"s_cmp_lg_u32 s76, {HD}")
            A(f"s_cbranch_scc1 {lab}")
            A("v_mov_b32 v2, s70")
            A("v_mov_b32 v3, 0")
            A(f"buffer_store_dword v2, v3, s[72:75], 0 offen offset:{4*hmap[idx]}")
            A.label(lab)
            self.lg.ops = []
            return
        if not MT: return
        A = self.A
        A("s_waitcnt lgkmcnt(0)")
        A("s_memrealtime s[70:71]")
        make_srd(A, 72, P_WS, WS_DBG, 32 * MB)
        A("s_lshl_b32 s76, s2, 3")
        A(f"s_add_u32 s76, s76, s{S_WAVE}")
        A("s_lshl_b32 s76, s76, 7")
        A("s_waitcnt lgkmcnt(0)")
        A("v_mov_b32 v2, s70")
        A("v_mov_b32 v3, 0")
        A(f"buffer_store_dword v2, v3, s[72:75], s76 offen offset:{4*idx}")
        self.vm.issue("stamp"); self.lg.ops = []
    def flag_srd(self, stage):
        make_srd(self.A, 92, P_WS, WS_FLAG + stage * 32 * 256, 32 * 256)
    def transition(self, stage, early=None):
        A = self.A
        self.stamp(1 + 4 * stage)
        self.vm.ops = []
        if ONE and stage == 0:
            make_srd(A, 80, P_WS, FQ_, 32 * 1024)
            make_srd(A, 12, P_WS, WS_MOD, 4 * MODP)
            A(f"s_cmp_lg_u32 s{S_WAVE}, {0 if W0M else 7}")
            A("s_cbranch_scc1 .Lw0m_end")
            A(f"s_lshl_b32 s98, s{S_M}, 10")
            A("v_add_u32 v2, 64, v1")
            A("v_min_u32 v2, 119, v2")
            A("v_lshlrev_b32 v2, 3, v2")
            A("v_lshlrev_b32 v3, 3, v1")
            self.poll64(".Lplq", [(3, 80, "s98"), (2, 80, "s98")])
            if W0M:
                A("v_lshlrev_b32 v10, 5, v1")
                for part in range(2):
                    for q, idx in enumerate((2, 4, 3)):
                        d = 24 + 8 * q + 88 * part
                        A(f"s_movk_i32 s{S_TMP}, {idx*2048 + part*MODP}")
                        A(f"buffer_load_dwordx4 v[{d}:{d+3}], v10, s[12:15], s{S_TMP} offen")
                        A(f"buffer_load_dwordx4 v[{d+4}:{d+7}], v10, s[12:15], s{S_TMP} offen offset:16")
                A("v_add_u32 v10, 81920, v10")
                A("s_waitcnt vmcnt(0)")
                for j in range(0, 24, 2): pk(A, "v_pk_add_f32", 24 + j, 24 + j, 112 + j)
                for q in range(3): round_multi(A, list(range(24 + 8*q, 32 + 8*q)), [56, 57, 58, 59], SM)
                for j in range(8): A(f"v_add_f32 v{32+j}, 1.0, v{32+j}")
                round_multi(A, list(range(32, 40)), [56, 57, 58, 59], SM)
                for q, off in enumerate((0, 16384, 49152)):
                    A(f"ds_write_b128 v10, v[{24+8*q}:{27+8*q}] offset:{off}")
                    A(f"ds_write_b128 v10, v[{28+8*q}:{31+8*q}] offset:{off+16}")
            A.label(".Lw0m_end")
        if early and NE:
            A(f"s_cmp_ge_u32 s{S_WAVE}, 4")
            A(f"s_cbranch_scc1 .Ltr{stage}_h")
            early(0, NE)
            A(f"s_waitcnt vmcnt({len(self.vm.ops)})")
            A(f"s_branch .Ltr{stage}_j")
            A.label(f".Ltr{stage}_h")
            A("s_waitcnt vmcnt(0)")
            A.label(f".Ltr{stage}_j")
        else:
            A("s_waitcnt vmcnt(0)")
        self.flag_srd(stage)
        A(f"s_lshl_b32 s96, s{S_M}, 8")
        A(f"s_lshl_b32 s97, s{S_J}, {3 if ONE else 2}")
        A("s_add_u32 s97, s97, s96")
        if ONE:
            A("v_mov_b32 v246, s100")
            A("v_mov_b32 v247, s101")
        A("v_mov_b32 v2, 1")
        A("v_mov_b32 v3, s97")
        A("s_waitcnt lgkmcnt(0)")
        self.lg.ops = []
        A("s_barrier")
        A(f"s_cmp_lg_u32 s{S_WAVE}, 7")
        A(f"s_cbranch_scc1 .Lpub{stage}")
        A("s_mov_b64 exec, 1")
        A("buffer_store_dwordx2 v[246:247], v3, s[92:95], 0 offen sc1" if ONE else "buffer_store_dword v2, v3, s[92:95], 0 offen sc1")
        A("s_mov_b64 exec, -1")
        A.label(f".Lpub{stage}")
        self.stamp(1 + 4 * stage + 2)
    def poll(self, stage, nbr=False, check=True):
        A = self.A
        lab = f".Lpl{stage}"
        if check:
            A(f"s_cmp_lg_u32 s{S_WAVE}, 7")
            A(f"s_cbranch_scc1 {lab}_done")
        A("v_and_b32 v3, 7, v1")
        A(f"v_lshlrev_b32 v3, {3 if ONE else 2}, v3")
        if nbr:
            A("v_bfe_u32 v2, v1, 3, 2")
            A("v_min_u32 v2, 2, v2")
            A(f"v_add_u32 v2, s{S_M}, v2")
            A("v_max_u32 v2, 1, v2")
            A("v_min_u32 v2, 32, v2")
            A("v_subrev_u32 v2, 1, v2")
            A("v_lshl_add_u32 v3, v2, 8, v3")
        else:
            A("v_add_u32 v3, s96, v3")
        A("s_mov_b32 s98, 0")
        NP = int(os.environ.get("NPOLL", "1")); PSL = int(os.environ.get("PSL", "1"))
        if ONE:
            self.poll64(lab + "x", [(3, 92, "0")])
        elif NP == 1:
            A.label(f"{lab}_poll")
            A("buffer_load_dword v2, v3, s[92:95], 0 offen sc1")
            A("s_add_u32 s98, s98, 1")
            A("s_waitcnt vmcnt(0)")
            A("v_cmp_ne_u32 vcc, 1, v2")
            A("s_cmp_lt_u32 s98, 0x40000")
            A(f"s_cbranch_scc0 {lab}_done")
            A(f"s_cbranch_vccnz {lab}_poll")
        else:
            for i in range(NP):
                A(f"buffer_load_dword v{248+i}, v3, s[92:95], 0 offen sc1")
                if PSL and i < NP - 1: A(f"s_sleep {PSL}")
            A.label(f"{lab}_poll")
            for i in range(NP):
                A(f"s_waitcnt vmcnt({NP-1})")
                A(f"v_cmp_ne_u32 vcc, 1, v{248+i}")
                A(f"s_cbranch_vccz {lab}_done")
                A(f"buffer_load_dword v{248+i}, v3, s[92:95], 0 offen sc1")
            A("s_add_u32 s98, s98, 1")
            A("s_cmp_lt_u32 s98, 0x40000")
            A(f"s_cbranch_scc1 {lab}_poll")
        A.label(f"{lab}_done")
    def poll64(self, lab, srcs, cnt=99):
        A = self.A
        A(f"s_mov_b32 s{cnt}, 0")
        A.label(f"{lab}_poll")
        for i, (va, srd, so) in enumerate(srcs):
            A(f"buffer_load_dwordx2 v[{248+2*i}:{249+2*i}], v{va}, s[{srd}:{srd+3}], {so} offen sc1")
        A(f"s_add_u32 s{cnt}, s{cnt}, 1")
        A("s_waitcnt vmcnt(0)")
        for i in range(len(srcs)):
            A(f"v_xor_b32 v{248+2*i}, s100, v{248+2*i}")
            A(f"v_xor_b32 v{249+2*i}, s101, v{249+2*i}")
        A("v_or_b32 v248, v248, v249")
        for i in range(1, len(srcs)):
            A(f"v_or3_b32 v248, v248, v{248+2*i}, v{249+2*i}")
        A("v_cmp_ne_u32 vcc, 0, v248")
        A(f"s_cmp_lt_u32 s{cnt}, 0x40000")
        A(f"s_cbranch_scc0 {lab}_done")
        A(f"s_cbranch_vccnz {lab}_poll")
        A.label(f"{lab}_done")
    def pst(self, idx):
        if not PT: return
        A = self.A
        A("s_waitcnt lgkmcnt(0)")
        A("s_memrealtime s[38:39]")
        A("s_waitcnt lgkmcnt(0)")
        A(f"v_writelane_b32 v253, s38, {idx}")
    def pst_flush(self):
        if not PT: return
        A = self.A
        make_srd(A, 36, 68, WS_DBG + 16 * MB, 1 * MB)
        A("s_lshl_b32 s57, s2, 3")
        A("s_add_u32 s57, s57, s40")
        A("s_lshl_b32 s57, s57, 6")
        A("v_lshlrev_b32 v2, 2, v1")
        A("s_mov_b64 exec, 0xffff")
        A("buffer_store_dword v253, v2, s[36:39], s57 offen")
        A("s_mov_b64 exec, -1")
    def pro_pre(self):
        A = self.A
        self.pst(0)
        A("s_load_dwordx2 s[4:5], s[0:1], 0")
        A("s_load_dwordx4 s[72:75], s[0:1], 80")
        A("s_load_dwordx2 s[6:7], s[0:1], 104")
        A("s_memrealtime s[70:71]")
        if int(os.environ.get("CPF", "1")):
            A("s_getpc_b64 s[76:77]")
            A.label(".Lpc0")
            A("s_mov_b32 s78, .Lcode_end-.Lpc0")
            A("s_mov_b32 s79, 0x00020000")
            A("s_lshr_b32 s3, s2, 3")
            A("s_mul_i32 s3, s3, 2304")
            A("v_lshlrev_b32 v2, 6, v0")
            A("v_cmp_gt_u32 vcc, 36, v0")
            A("s_and_b64 exec, exec, vcc")
            A("buffer_load_dword v254, v2, s[76:79], s3 offen")
            A("s_mov_b64 exec, -1")
    def pro_a(self):
        A = self.A
        W = K1.S_WAVE; M_ = K1.S_M; G_ = K1.S_G
        self.pst(1)
        make_srd(A, 76, 72, 0, 1024)
        make_srd(A, 80, 74, 0, 512 * 6144)
        make_srd(A, 84, 68, WS_MOD, 3072 * 4)
        A("s_movk_i32 s3, 6144")
        A("s_mov_b32 s59, s2")
        A("s_cmp_lt_u32 s2, 96")
        A("s_cbranch_scc1 .Lpa_mod")
        make_srd(A, 80, 96, 0, 512 * 3584)
        make_srd(A, 84, 68, WS_CS, 1792 * 4)
        A("s_movk_i32 s3, 3584")
        A("s_sub_u32 s59, s2, 96")
        A.label(".Lpa_mod")
        A("s_cmp_ge_u32 s2, 152")
        A("s_cbranch_scc1 .Lpa_nob")
        A("v_and_b32 v2, 3, v0")
        A("v_lshrrev_b32 v3, 2, v0")
        A("v_mul_lo_u32 v4, v3, s3")
        A("v_lshl_add_u32 v4, v2, 4, v4")
        A("v_lshlrev_b32 v5, 1, v3")
        A("s_lshl_b32 s58, s59, 6")
        A("s_lshl_b32 s3, s3, 7")
        for i in range(4):
            A(f"buffer_load_dwordx4 v[{72+4*i}:{75+4*i}], v4, s[80:83], s58 offen")
            if i < 3: A("s_add_u32 s58, s58, s3")
        for i in range(4):
            A(f"buffer_load_ushort v{64+i}, v5, s[76:79], 0 offen offset:{i*256}")
        A.label(".Lpa_nob")
        make_srd(A, 88, 4, 0, 2 * MB)
        A(f"s_lshl_b32 s3, s{M_}, 3")
        A(f"s_add_u32 s3, s3, s{G_}")
        A("s_lshl_b32 s3, s3, 3")
        A(f"s_add_u32 s3, s3, s{W}")
        A("s_lshl_b32 s3, s3, 10")
        A("buffer_load_dwordx4 v[68:71], v12, s[88:91], s3 offen")
        make_srd(A, 76, 6, 0, 256)
        A(f"s_or_b32 s58, s2, s{W}")
        A("s_cmp_lg_u32 s58, 0")
        A("s_cbranch_scc1 .Lpa_non")
        A("s_or_b32 s70, s70, 1")
        A("v_mov_b32 v2, s70")
        A("v_mov_b32 v3, s71")
        A("v_mov_b32 v4, 0")
        A("s_mov_b64 exec, 1")
        A("buffer_store_dwordx2 v[2:3], v4, s[76:79], 0 offen sc1")
        A("s_mov_b64 exec, -1")
        A.label(".Lpa_non")
        if WQE: self.wqpf()
    def wqpf(self):
        A = self.A; W = K1.S_WAVE
        SQ = 88 if WQE else K1.S_WQ
        if WQE: make_srd(A, 88, 64, 0, 4 * MB)
        A("v_lshrrev_b32 v2, 4, v0")
        A("v_and_b32 v3, 15, v0")
        A("v_lshlrev_b32 v3, 6, v3")
        A("v_lshl_add_u32 v2, v2, 13, v3")
        A("s_lshr_b32 s58, s2, 3")
        A("s_lshl_b32 s58, s58, 17")
        A("s_and_b32 s57, s2, 7")
        A("s_lshl_b32 s57, s57, 10")
        A("s_add_u32 s58, s58, s57")
        A(f"s_cmp_ge_u32 s{W}, 4")
        A("s_cbranch_scc1 .Lpa_nopf")
        A(f"buffer_load_dword v255, v2, s[{SQ}:{SQ+3}], s58 offen")
        A.label(".Lpa_nopf")
    def pro_b(self, nyoung, early, w7):
        A = self.A
        W = K1.S_WAVE; M_ = K1.S_M; G_ = K1.S_G; KM = f"s{K1.S_MASK}"
        NY = nyoung
        ACC = list(range(96, 104)); T = list(range(104, 112)); U = list(range(112, 120)); C = [64, 65, 66, 67]
        make_srd(A, 88, 68, WS_XN, 2 * MB)
        self.pst(2)
        A("s_waitcnt vmcnt(0)")
        self.pst(3)
        if not WQE: self.wqpf()
        A("s_cmp_ge_u32 s2, 152")
        A("s_cbranch_scc1 .Lpb_ln")
        A("s_cmp_lt_u32 s2, 96")
        A("s_cbranch_scc1 .Lpb_silu")
        for c in C: A(f"v_mov_b32 v{c}, 1.0")
        A("s_branch .Lpb_fma")
        A.label(".Lpb_silu")
        for i, c in enumerate(C): A(f"v_lshlrev_b32 v{c}, 16, v{c}")
        for i, c in enumerate(C): A(f"v_mul_f32 v{T[i]}, {fhex(-LOG2E)}, v{c}")
        for i, c in enumerate(C): A(f"v_exp_f32 v{T[i]}, v{T[i]}")
        for i, c in enumerate(C): A(f"v_add_f32 v{T[i]}, 1.0, v{T[i]}")
        for i, c in enumerate(C): A(f"v_rcp_f32 v{U[i]}, v{T[i]}")
        for i, c in enumerate(C): A(f"v_mul_f32 v{U[4+i]}, v{c}, v{U[i]}")
        for i, c in enumerate(C): A(f"v_fma_f32 v{T[i]}, -v{U[4+i]}, v{T[i]}, v{c}")
        for i, c in enumerate(C): A(f"v_fma_f32 v{c}, v{T[i]}, v{U[i]}, v{U[4+i]}")
        for i, c in enumerate(C): A(f"v_cvt_pk_bf16_f32 v{T[i]}, v{c}, v{c}")
        for i, c in enumerate(C): A(f"v_lshlrev_b32 v{c}, 16, v{T[i]}")
        A.label(".Lpb_fma")
        for i in range(4):
            for j in range(4):
                w = 72 + 4 * i + j
                A(f"v_lshlrev_b32 v{T[2*j]}, 16, v{w}")
                A(f"v_and_b32 v{T[2*j+1]}, {KM}, v{w}")
            for j in range(8):
                A(f"v_mul_f32 v{ACC[j]}, v{T[j]}, v{C[i]}" if i == 0 else f"v_fmac_f32 v{ACC[j]}, v{T[j]}, v{C[i]}")
        A("s_nop 1")
        for dpp in ("row_ror:8", "row_ror:4"):
            for v in ACC: A(f"v_add_f32_dpp v{v}, v{v}, v{v} {dpp} row_mask:0xf bank_mask:0xf")
        A("v_and_b32 v2, 3, v1")
        A("v_lshrrev_b32 v3, 4, v0")
        A("v_lshlrev_b32 v3, 7, v3")
        A("v_lshl_add_u32 v3, v2, 5, v3")
        A("v_and_b32 v2, 12, v1")
        A("v_cmp_eq_u32 vcc, 0, v2")
        A("s_and_saveexec_b64 s[58:59], vcc") if False else None
        A("s_mov_b64 s[4:5], exec")
        A("s_and_b64 exec, exec, vcc")
        A(f"ds_write_b128 v3, v[{ACC[0]}:{ACC[3]}]")
        A(f"ds_write_b128 v3, v[{ACC[4]}:{ACC[7]}] offset:16")
        A("s_mov_b64 exec, -1")
        A("s_waitcnt lgkmcnt(0)")
        A("s_barrier")
        self.pst(4)
        A(f"s_cmp_lg_u32 s{W}, 7")
        A("s_cbranch_scc1 .Lpb_ln")
        A("v_and_b32 v2, 31, v1")
        A("v_lshlrev_b32 v2, 2, v2")
        A("v_lshrrev_b32 v3, 5, v1")
        A("v_lshl_add_u32 v3, v3, 11, v2")
        for k in range(16): A(f"ds_read_b32 v{120+k}, v3 offset:{k*128}")
        for k in range(8):
            A(f"s_waitcnt lgkmcnt({14-2*k})")
            A(f"v_add_f32 v{120+2*k}, v{120+2*k}, v{121+2*k}")
        for k in range(4): A(f"v_add_f32 v{120+4*k}, v{120+4*k}, v{122+4*k}")
        A("v_add_f32 v120, v120, v124")
        A("v_add_f32 v128, v128, v132")
        A("v_add_f32 v120, v120, v128")
        A("v_mov_b32 v121, v120")
        A("s_nop 1")
        A("v_permlane32_swap_b32 v120, v121")
        A("s_nop 1")
        A("v_add_f32 v120, v120, v121")
        A("s_cmp_ge_u32 s2, 96")
        A("s_cbranch_scc1 .Lpb_nornd")
        round_bf16_1(A, 120, 121)
        A.label(".Lpb_nornd")
        A("s_lshl_b32 s58, s59, 7")
        A("s_mov_b32 exec_hi, 0")
        A("buffer_store_dword v120, v2, s[84:87], s58 offen sc1")
        A("s_mov_b64 exec, -1")
        A.label(".Lpb_ln")
        A("v_mov_b32 v2, 0")
        A(f"s_cmp_lg_u32 s{W}, 7")
        A("s_cbranch_scc1 .Lpb_ln2")
        A("s_mov_b64 exec, 1")
        A("buffer_load_dwordx2 v[136:137], v2, s[76:79], 0 offen sc1")
        A("s_mov_b64 exec, -1")
        A.label(".Lpb_ln2")
        self.pst(5)
        X = list(range(96, 104)); TT = list(range(104, 116))
        for j in range(4):
            A(f"v_lshlrev_b32 v{X[2*j]}, 16, v{68+j}")
            A(f"v_and_b32 v{X[2*j+1]}, {KM}, v{68+j}")
        ln_rows(A, [(X, TT)], KM)
        pack8(A, X, 68)
        A("buffer_store_dwordx4 v[68:71], v12, s[88:91], s3 offen sc1")
        make_srd(A, 80, 68, FP, 32 * 512)
        self.pst(6)
        A(f"s_cmp_lg_u32 s{W}, 7")
        A("s_cbranch_scc1 .Lpb_w")
        A("s_waitcnt vmcnt(1)")
        A("s_mov_b32 s57, 0")
        A.label(".Lpb_nl")
        A("v_readfirstlane_b32 s100, v136")
        A("v_readfirstlane_b32 s101, v137")
        A("s_add_u32 s57, s57, 1")
        A("s_cmp_lg_u32 s100, 0")
        A("s_cbranch_scc1 .Lpb_nd")
        A("s_cmp_lt_u32 s57, 0x40000")
        A("s_cbranch_scc0 .Lpb_nd")
        A("s_mov_b64 exec, 1")
        A("buffer_load_dwordx2 v[136:137], v2, s[76:79], 0 offen sc1")
        A("s_mov_b64 exec, -1")
        A("s_waitcnt vmcnt(0)")
        A("s_branch .Lpb_nl")
        A.label(".Lpb_nd")
        A("v_mov_b32 v136, s100")
        A("v_mov_b32 v137, s101")
        self.pst(7)
        A("s_cmp_ge_u32 s2, 152")
        A("s_cbranch_scc1 .Lpb_w")
        A("v_lshlrev_b32 v3, 9, v1")
        A("s_lshl_b32 s58, s2, 3")
        A("s_cmp_lt_u32 s2, 32")
        A("s_cbranch_scc1 .Lpb_crit")
        make_srd(A, 80, 68, FQ_, 32 * 1024)
        A("v_lshlrev_b32 v3, 10, v1")
        A("s_sub_u32 s58, s58, 256")
        A.label(".Lpb_crit")
        A("s_mov_b32 exec_hi, 0")
        A("buffer_store_dwordx2 v[136:137], v3, s[80:83], s58 offen sc1")
        A("s_mov_b64 exec, -1")
        make_srd(A, 80, 68, FP, 32 * 512)
        A.label(".Lpb_w")
        A("s_waitcnt vmcnt(1)") if False else None
        A("s_waitcnt vmcnt(0)")
        self.pst(8)
        A("s_barrier")
        self.pst(9)
        A(f"s_cmp_lg_u32 s{W}, 7")
        A("s_cbranch_scc1 .Lpb_early")
        A(f"s_lshl_b32 s58, s{M_}, 9")
        A(f"s_lshl_b32 s57, s{G_}, 3")
        A("s_add_u32 s57, s57, 256")
        A("v_mov_b32 v3, s57")
        A("s_mov_b64 exec, 1")
        A("buffer_store_dwordx2 v[136:137], v3, s[80:83], s58 offen sc1")
        A("s_mov_b64 exec, -1")
        A("v_min_u32 v3, 39, v1")
        A("v_lshlrev_b32 v3, 3, v3")
        sv99 = None
        w7()
        self.poll64(".Lplp", [(3, 80, "s58")], cnt=57)
        A("s_branch .Lpb_done")
        A.label(".Lpb_early")
        early()
        A.label(".Lpb_done")
        A("s_barrier")
        self.pst(10)
        self.pst_flush()
    def p2_a(self):
        A = self.A
        W = K1.S_WAVE; M_ = K1.S_M; G_ = K1.S_G
        SCR = K1.STG + 16384
        A("s_waitcnt lgkmcnt(0)")
        self.pst(1)
        make_srd(A, 76, 72, 0, 1024)
        make_srd(A, 80, 74, 0, 512 * 6144)
        make_srd(A, 84, 68, WS_MOD, 4 * MODP)
        make_srd(A, 88, 4, 0, 2 * MB)
        A("s_movk_i32 s3, 6144")
        A("s_and_b32 s4, s2, 15")
        A("s_lshr_b32 s5, s2, 4")
        A("s_lshl_b32 s57, s5, 8")
        A("s_cmp_lt_u32 s2, 64")
        A("s_cbranch_scc1 .Lp2a_dec")
        A("s_sub_u32 s4, s2, 64")
        A("s_and_b32 s5, s4, 1")
        A("s_lshr_b32 s4, s4, 1")
        A("s_lshl_b32 s57, s5, 9")
        A("s_add_u32 s4, s4, 16")
        A("s_cmp_lt_u32 s4, 48")
        A("s_cbranch_scc1 .Lp2a_dec")
        A("s_sub_u32 s4, s4, 48")
        make_srd(A, 80, 96, 0, 512 * 3584)
        make_srd(A, 84, 68, WS_CS, 2 * CSP)
        A("s_movk_i32 s3, 3584")
        A.label(".Lp2a_dec")
        A("s_lshr_b32 s58, s57, 1")
        A("s_mul_i32 s58, s58, s3")
        A("s_lshl_b32 s59, s4, 7")
        A("s_add_u32 s58, s58, s59")
        A("s_lshl_b32 s59, s4, 8")
        A(f"s_movk_i32 s4, {MODP}")
        A("s_cmp_eq_u32 s3, 3584")
        A(f"s_cselect_b32 s4, {CSP}, s4")
        A("s_mul_i32 s4, s4, s5")
        A("s_add_u32 s59, s59, s4")
        A("v_and_b32 v2, 7, v0")
        A("v_bfe_u32 v3, v0, 3, 5")
        A("v_mul_lo_u32 v60, v3, s3")
        A("v_lshl_add_u32 v60, v2, 4, v60")
        A("v_lshlrev_b32 v61, 1, v3")
        A("s_lshl_b32 s70, s3, 5") if False else None
        A("s_lshl_b32 s5, s3, 5")
        A(f"s_cmp_ge_u32 s{W}, 4")
        A("s_cbranch_scc1 .Lp2a_end")
        A("s_cmp_ge_u32 s2, 64")
        A("s_cbranch_scc1 .Lp2a_x")
        self.p2_tload(0)
        A.label(".Lp2a_x")
        A(f"s_lshl_b32 s3, s{M_}, 3")
        A(f"s_add_u32 s3, s3, s{G_}")
        A("s_lshl_b32 s3, s3, 2")
        A(f"s_add_u32 s3, s3, s{W}")
        A("s_lshl_b32 s3, s3, 11")
        A("buffer_load_dwordx4 v[88:91], v12, s[88:91], s3 offen")
        A("buffer_load_dwordx4 v[92:95], v12, s[88:91], s3 offen offset:1024")
        make_srd(A, 88, 6, 0, 256)
        A(f"s_or_b32 s4, s2, s{W}")
        A("s_cmp_lg_u32 s4, 0")
        A("s_cbranch_scc1 .Lp2a_non")
        A("s_or_b32 s70, s70, 1")
        A("v_mov_b32 v2, s70")
        A("v_mov_b32 v3, s71")
        A("v_mov_b32 v4, 0")
        A("s_mov_b64 exec, 1")
        A("buffer_store_dwordx2 v[2:3], v4, s[88:91], 0 offen sc1")
        A("s_mov_b64 exec, -1")
        A.label(".Lp2a_non")
        A(f"v_mov_b32 v2, {SCR + 8192}")
        A("v_mov_b32 v4, 0")
        A("v_mov_b32 v5, 0")
        A("ds_write_b64 v2, v[4:5]")
        A("s_branch .Lp2a_e2")
        A.label(".Lp2a_end")
        if WQF == 1: self.p2_wq()
        if WQF == 2:
            A("s_cmp_lt_u32 s2, 64")
            A("s_cbranch_scc1 .Lp2a_e2") if False else None
            A("s_sleep 4")
            self.p2_wq()
        if TLW:
            A("v_lshlrev_b32 v2, 21, v1")
            A(f"v_add_u32 v2, {(2 << 20) - 128}, v2")
            make_srd(A, 88, 68, 0, 48 * MB if TLW >= 2 else 4 * MB)
            A(f"s_cmp_lg_u32 s{W}, 4")
            A("s_cbranch_scc1 .Lp2a_e2")
            A("buffer_load_dword v252, v2, s[88:91], 0 offen sc1")
            if TLW == 1:
                A(f"s_mov_b32 s4, {WS_FLAG}")
                make_srd(A, 88, 68, 0, WS_FLAG + 2 * MB)
                A("buffer_load_dword v252, v2, s[88:91], s4 offen sc1")
        A.label(".Lp2a_e2")
        if EB:
            A("s_waitcnt lgkmcnt(0)")
            A("s_barrier")
            A(f"s_cmp_lt_u32 s{W}, 4")
            A("s_cbranch_scc1 .Lp2a_e3")
            self.p2_bulk1()
            A.label(".Lp2a_e3")
        A("s_mov_b32 s70, s57")
        A("s_mov_b32 s71, s58")
    def p2_bulk1(self):
        A = self.A; W = K1.S_WAVE
        A("s_sub_u32 s4, s2, 64")
        A("s_cmp_ge_u32 s4, 120")
        A("s_cbranch_scc1 .Lp2_l1")
        self.p2_tload(0); self.p2_tload(1)
        A.label(".Lp2_l1")
        if EB: make_srd(A, K1.S_WQ, 64, 0, 4 * MB)
        if DLY == 1 and not EB:
            A("s_cmp_ge_u32 s2, 64")
            A("s_cbranch_scc1 .Lp2_l3")
        if DLY and not EB:
            self.lds_spin(".Lp2_sd", 4, 4, True)
            A.label(".Lp2_l3")
        if not WQF: self.p2_wq()
    def p2_wq(self):
        A = self.A; W = K1.S_WAVE
        if WQF: make_srd(A, K1.S_WQ, 64, 0, 4 * MB)
        W128 = int(os.environ.get("W128", "0"))
        A("v_and_b32 v4, 255, v0")
        A(f"v_lshrrev_b32 v2, {3 if W128 else 4}, v4")
        A(f"v_and_b32 v3, {7 if W128 else 15}, v4")
        A(f"v_lshlrev_b32 v3, {7 if W128 else 6}, v3")
        A("v_lshl_add_u32 v2, v2, 13, v3")
        A("s_lshr_b32 s36, s2, 3")
        A("s_lshl_b32 s36, s36, 17")
        A("s_and_b32 s37, s2, 7")
        A("s_lshl_b32 s37, s37, 10")
        A("s_add_u32 s36, s36, s37")
        if W128:
            A(f"s_cmp_ge_u32 s{W}, 6")
            A("s_cbranch_scc1 .Lp2_l2")
        A(f"buffer_load_dword v255, v2, s[{K1.S_WQ}:{K1.S_WQ+3}], s36 offen")
        if W128: A.label(".Lp2_l2")
    def p2_tload(self, b):
        A = self.A
        wd = (72, 140)[b]; cd = (64, 156)[b]
        for i in range(4):
            A(f"buffer_load_dwordx4 v[{wd+4*i}:{wd+4*i+3}], v60, s[80:83], s58 offen")
            A("s_add_u32 s58, s58, s5")
        for i in range(4):
            A(f"buffer_load_ushort v{cd+i}, v61, s[76:79], s57 offen offset:{b*256 + i*64}")
    def lds_spin(self, lab, off, target, sleep=False):
        A = self.A
        A.label(lab)
        if sleep: A("s_sleep 2")
        A(f"ds_read_b32 v3, v9 offset:{off}")
        A("s_waitcnt lgkmcnt(0)")
        A("v_readfirstlane_b32 s4, v3")
        A(f"s_cmp_lt_u32 s4, {target}")
        A(f"s_cbranch_scc1 {lab}")
    def lds_inc(self, off):
        A = self.A
        A("v_mov_b32 v3, 1")
        A("s_mov_b64 exec, 1")
        A(f"ds_add_u32 v9, v3 offset:{off}")
        A("s_mov_b64 exec, -1")
    def p2_gemv(self, sfx, nb, maybe_ones, col=3):
        A = self.A
        W = K1.S_WAVE; KM = f"s{K1.S_MASK}"; SCR = K1.STG + 16384
        ACC = list(range(96, 104)); T = list(range(104, 112)); U = list(range(112, 128))
        C = [64, 65, 66, 67] + ([156, 157, 158, 159] if nb == 2 else [])
        n = len(C)
        if maybe_ones:
            A("s_cmp_lt_u32 s2, 128")
            A(f"s_cbranch_scc1 .Lp2_silu{sfx}")
            for c in C: A(f"v_mov_b32 v{c}, 1.0")
            A(f"s_branch .Lp2_fma{sfx}")
            A.label(f".Lp2_silu{sfx}")
        for i, c in enumerate(C): A(f"v_lshlrev_b32 v{c}, 16, v{c}")
        for i, c in enumerate(C): A(f"v_mul_f32 v{T[i]}, {fhex(-LOG2E)}, v{c}")
        for i, c in enumerate(C): A(f"v_exp_f32 v{T[i]}, v{T[i]}")
        for i, c in enumerate(C): A(f"v_add_f32 v{T[i]}, 1.0, v{T[i]}")
        for i, c in enumerate(C): A(f"v_rcp_f32 v{U[i]}, v{T[i]}")
        for i, c in enumerate(C): A(f"v_mul_f32 v{U[8+i]}, v{c}, v{U[i]}")
        for i, c in enumerate(C): A(f"v_fma_f32 v{T[i]}, -v{U[8+i]}, v{T[i]}, v{c}")
        for i, c in enumerate(C): A(f"v_fma_f32 v{c}, v{T[i]}, v{U[i]}, v{U[8+i]}")
        for i, c in enumerate(C): A(f"v_cvt_pk_bf16_f32 v{T[i]}, v{c}, v{c}")
        for i, c in enumerate(C): A(f"v_lshlrev_b32 v{c}, 16, v{T[i]}")
        if maybe_ones: A.label(f".Lp2_fma{sfx}")
        for i in range(n):
            for j in range(4):
                w = (72, 140)[i >> 2] + 4 * (i & 3) + j
                A(f"v_lshlrev_b32 v{T[2*j]}, 16, v{w}")
                A(f"v_and_b32 v{T[2*j+1]}, {KM}, v{w}")
            for j in range(8):
                A(f"v_mul_f32 v{ACC[j]}, v{T[j]}, v{C[i]}" if i == 0 else f"v_fmac_f32 v{ACC[j]}, v{T[j]}, v{C[i]}")
        A("v_and_b32 v2, 7, v1")
        A("v_bfe_u32 v3, v0, 4, 4")
        for v in ACC: A(f"v_add_f32_dpp v{v}, v{v}, v{v} row_ror:8 row_mask:0xf bank_mask:0xf")
        A("v_lshlrev_b32 v3, 8, v3")
        A("v_lshl_add_u32 v3, v2, 5, v3")
        A(f"v_add_u32 v3, {SCR}, v3")
        A("v_and_b32 v2, 8, v1")
        A("v_cmp_eq_u32 vcc, 0, v2")
        A("s_and_b64 exec, exec, vcc")
        A(f"ds_write_b128 v3, v[{ACC[0]}:{ACC[3]}]")
        A(f"ds_write_b128 v3, v[{ACC[4]}:{ACC[7]}] offset:16")
        A("s_mov_b64 exec, -1")
        A("s_waitcnt lgkmcnt(0)")
        self.lds_inc(0)
        A(f"s_cmp_lg_u32 s{W}, {col}")
        A(f"s_cbranch_scc1 .Lp2_gd{sfx}")
        self.lds_spin(f".Lp2_sp{sfx}", 0, 4)
        A("v_lshlrev_b32 v2, 2, v1")
        A(f"v_add_u32 v3, {SCR}, v2")
        for k in range(16): A(f"ds_read_b32 v{104+k}, v3 offset:{k*256}")
        for k in range(8):
            A(f"s_waitcnt lgkmcnt({14-2*k})")
            A(f"v_add_f32 v{104+2*k}, v{104+2*k}, v{105+2*k}")
        for k in range(4): A(f"v_add_f32 v{104+4*k}, v{104+4*k}, v{106+4*k}")
        A("v_add_f32 v104, v104, v108")
        A("v_add_f32 v112, v112, v116")
        A("v_add_f32 v68, v104, v112")
        A("buffer_store_dword v68, v2, s[84:87], s59 offen sc1")
        A.label(f".Lp2_gd{sfx}")
    def p2_ln(self):
        A = self.A; KM = f"s{K1.S_MASK}"
        X0 = list(range(96, 104)); X1 = list(range(120, 128)); T0 = list(range(104, 116)); T1 = list(range(128, 140))
        for r, X in enumerate((X0, X1)):
            for j in range(4):
                A(f"v_lshlrev_b32 v{X[2*j]}, 16, v{88+4*r+j}")
                A(f"v_and_b32 v{X[2*j+1]}, {KM}, v{88+4*r+j}")
        ln_rows(A, [(X0, T0), (X1, T1)], KM, False)
        pack8(A, X0, 88); pack8(A, X1, 92)
        A(f"buffer_store_dwordx4 v[88:91], v12, s[{K1.S_XN}:{K1.S_XN+3}], s3 offen sc1")
        A(f"buffer_store_dwordx4 v[92:95], v12, s[{K1.S_XN}:{K1.S_XN+3}], s3 offen offset:1024 sc1")
    def p2_nonce(self, sfx):
        A = self.A
        A("s_mov_b32 s4, 0")
        A.label(f".Lp2_nl{sfx}")
        A("v_readfirstlane_b32 s100, v70")
        A("v_readfirstlane_b32 s101, v71")
        A("s_add_u32 s4, s4, 1")
        A("s_cmp_lg_u32 s100, 0")
        A(f"s_cbranch_scc1 .Lp2_nd{sfx}")
        A("s_cmp_lt_u32 s4, 0x40000")
        A(f"s_cbranch_scc0 .Lp2_nd{sfx}")
        self.p2_nload()
        A("s_waitcnt vmcnt(0)")
        A(f"s_branch .Lp2_nl{sfx}")
        A.label(f".Lp2_nd{sfx}")
        A("v_mov_b32 v70, s100")
        A("v_mov_b32 v71, s101")
    def p2_nload(self):
        A = self.A
        A("v_mov_b32 v2, 0")
        A("s_mov_b64 exec, 1")
        A("buffer_load_dwordx2 v[70:71], v2, s[88:91], 0 offen sc1")
        A("s_mov_b64 exec, -1")
    def p2_pubtask(self, region, base):
        A = self.A
        make_srd(A, 76, 68, region, 32 * 1024)
        A("v_lshlrev_b32 v3, 10, v1")
        A(f"s_sub_u32 s4, s2, {base}")
        A("s_lshl_b32 s4, s4, 3")
        A("s_mov_b32 exec_hi, 0")
        A("buffer_store_dwordx2 v[70:71], v3, s[76:79], s4 offen sc1")
        A("s_mov_b64 exec, -1")
    def p2_pubxn(self, sfx):
        A = self.A
        self.lds_spin(f".Lp2_sx{sfx}", 4, 3)
        make_srd(A, 76, 68, FP, 32 * 1024)
        A(f"s_lshl_b32 s4, s{K1.S_M}, 10")
        A(f"s_lshl_b32 s5, s{K1.S_G}, 3")
        A("s_add_u32 s5, s5, 512")
        A("v_mov_b32 v3, s5")
        A("s_mov_b64 exec, 1")
        A("buffer_store_dwordx2 v[70:71], v3, s[76:79], s4 offen sc1")
        A("s_mov_b64 exec, -1")
    def p2_b(self, loader, cfix, xn_loads):
        A = self.A
        W = K1.S_WAVE; M_ = K1.S_M; KM = f"s{K1.S_MASK}"; SCR = K1.STG + 16384
        A(f"v_mov_b32 v9, {SCR + 8192}")
        if not EB:
            A("s_waitcnt lgkmcnt(0)")
            A("s_barrier")
        self.pst(2)
        A(f"s_cmp_lt_u32 s{W}, 4")
        A("s_cbranch_scc1 .Lp2_c")
        if not EB:
            A("s_mov_b32 s57, s70")
            A("s_mov_b32 s58, s71")
            self.p2_bulk1()
        elif DLY == 1:
            A("s_cmp_ge_u32 s2, 64")
            A("s_cbranch_scc1 .Lp2_l4")
            self.lds_spin(".Lp2_sd2", 4, 4, True)
            A.label(".Lp2_l4")
        loader()
        A("s_sub_u32 s4, s2, 64")
        A("s_cmp_ge_u32 s4, 120")
        A("s_cbranch_scc1 .Lp2_X")
        A(f"s_waitcnt vmcnt({4 * int(os.environ.get('LDE', '2'))})")
        self.p2_gemv("b", 2, True, 7)
        A("s_branch .Lp2_X")
        A.label(".Lp2_c")
        cfix()
        A("s_waitcnt vmcnt(0)")
        self.pst(3)
        A("s_cmp_ge_u32 s2, 64")
        A("s_cbranch_scc1 .Lp2_a0")
        self.p2_gemv("a", 1, False)
        A.label(".Lp2_a0")
        self.pst(4)
        A(f"s_cmp_lg_u32 s{W}, 3")
        A("s_cbranch_scc1 .Lp2_a1")
        self.p2_nload()
        A.label(".Lp2_a1")
        self.p2_ln()
        self.pst(6)
        A(f"s_cmp_lg_u32 s{W}, 3")
        A("s_cbranch_scc1 .Lp2_ack")
        A("s_waitcnt vmcnt(2)")
        self.p2_nonce("a")
        A("s_cmp_ge_u32 s2, 64")
        A("s_cbranch_scc1 .Lp2_a2")
        self.p2_pubtask(FP, 0)
        self.pst(7)
        A("s_waitcnt vmcnt(1)")
        A("s_branch .Lp2_a3")
        A.label(".Lp2_a2")
        A("s_waitcnt vmcnt(0)")
        A.label(".Lp2_a3")
        self.p2_pubxn("a")
        self.lds_inc(4)
        A("s_branch .Lp2_col")
        A.label(".Lp2_ack")
        A("s_waitcnt vmcnt(0)")
        self.lds_inc(4)
        A("s_branch .Lp2_X")
        A.label(".Lp2_col")
        make_srd(A, 76, 68, FP, 32 * 1024)
        A(f"s_lshl_b32 s5, s{M_}, 10")
        A("v_and_b32 v3, 7, v1")
        A("v_lshlrev_b32 v3, 3, v3")
        A("v_add_u32 v3, 512, v3")
        A("ds_write_b64 v9, v[70:71] offset:16")
        def parts():
            make_srd(A, 84, 68, WS_MOD, 4 * MODP)
            for i in range(4):
                for p in range(4):
                    A(f"s_movk_i32 s4, {p * MODP}") if p * MODP < 32768 else A(f"s_mov_b32 s4, {p * MODP}")
                    A(f"buffer_load_dwordx4 v[{72+16*i+4*p}:{75+16*i+4*p}], v12, s[84:87], s4 offen offset:{i*1024}")
        if MP:
            A("v_lshlrev_b32 v4, 3, v1")
            self.poll64(".Lplx", [(3, 76, "s5"), (4, 76, "s5")], cnt=4)
            parts()
        else:
            self.poll64(".Lplx", [(3, 76, "s5")], cnt=4)
        A.label(".Lp2_X")
        self.pst(8)
        A("s_waitcnt lgkmcnt(0)")
        A("s_barrier")
        self.pst(9)
        xn_loads()
        A(f"s_cmp_lg_u32 s{W}, 3")
        A("s_cbranch_scc1 .Lp2_Y")
        if not MP:
            make_srd(A, 76, 68, FP, 32 * 1024)
            A(f"s_lshl_b32 s5, s{M_}, 10")
            A("v_lshlrev_b32 v3, 3, v1")
            self.poll64(".Lplm", [(3, 76, "s5")], cnt=4)
            parts()
        A(f"v_add_u32 v3, {SCR + 4096}, v12")
        for i in range(4):
            b = 72 + 16 * i
            A(f"s_waitcnt vmcnt({12 - 4*i + (8 if MP else 0)})")
            pk(A, "v_pk_add_f32", b, b, b + 4); pk(A, "v_pk_add_f32", b + 2, b + 2, b + 6)
            pk(A, "v_pk_add_f32", b + 8, b + 8, b + 12); pk(A, "v_pk_add_f32", b + 10, b + 10, b + 14)
            pk(A, "v_pk_add_f32", b, b, b + 8); pk(A, "v_pk_add_f32", b + 2, b + 2, b + 10)
            round_multi(A, [b, b + 1, b + 2, b + 3], [b + 4, b + 5], KM)
            if i >= 2:
                for e in range(4): A(f"v_add_f32 v{b+e}, 1.0, v{b+e}")
                round_multi(A, [b, b + 1, b + 2, b + 3], [b + 4, b + 5], KM)
            A(f"ds_write_b128 v3, v[{b}:{b+3}] offset:{i*1024}")
        A("s_waitcnt lgkmcnt(0)")
        A.label(".Lp2_Y")
        A("s_barrier")
        self.pst(10)
        self.pst_flush()
        A("ds_read_b64 v[2:3], v9 offset:16")
        A("s_waitcnt lgkmcnt(0)")
        A("v_readfirstlane_b32 s100, v2")
        A("v_readfirstlane_b32 s101, v3")
    def p2_c(self):
        A = self.A
        A(f"s_cmp_lg_u32 s{K1.S_WAVE}, 7")
        A("s_cbranch_scc1 .Lp2c_end")
        A("s_sub_u32 s4, s2, 64")
        A("s_cmp_ge_u32 s4, 120")
        A("s_cbranch_scc1 .Lp2c_end")
        A("v_mov_b32 v70, s100")
        A("v_mov_b32 v71, s101")
        A("s_waitcnt vmcnt(0)")
        self.p2_pubtask(FQ_, 64)
        A.label(".Lp2c_end")
    def w_setup(self, widx, K, rowbytes, woff_code):
        A = self.A
        make_srd(A, S_W, P_W + 2 * widx, 0, K * rowbytes)
        A(f"v_lshrrev_b32 v2, 3, v{L}")
        A(f"v_and_b32 v3, 7, v{L}")
        A(f"v_lshlrev_b32 v{V_W}, 1, v2")
        A(f"v_and_b32 v{V_W}, 4, v{V_W}")
        A(f"v_xor_b32 v3, v3, v{V_W}")
        A("v_lshlrev_b32 v3, 4, v3")
        A(f"v_mul_u32_u24 v2, {rowbytes}, v2") if rowbytes < 64 else None
        A(f"s_movk_i32 s{S_WOFF}, {rowbytes}")
        A(f"v_mul_lo_u32 v2, v2, s{S_WOFF}")
        A(f"v_add_u32 v{V_W}, v2, v3")
        woff_code()
        self.wrb = rowbytes
    def dmaW(self, st, ldsoff, tag="w"):
        A = self.A
        for i in range(2):
            A(f"s_add_u32 m0, s{S_RB}, {ldsoff + i * 1024}")
            A("s_nop 0")
            A(f"buffer_load_dwordx4 v{V_W}, s[{S_W}:{S_W+3}], s{S_WOFF} offen lds")
            self.vm.issue((tag, st))
            A(f"s_add_u32 s{S_WOFF}, s{S_WOFF}, {8 * self.wrb}")
    def pf_g64(self, widx, K, WB, DW, lo=0, hi=99, rot=0):
        A = self.A
        def woff():
            A(f"s_mul_i32 s{S_WOFF}, s{S_WAVE}, {(K // 4) * 1024}")
            A(f"s_lshl_b32 s{S_TMP+11}, s{S_J}, 7")
            A(f"s_add_u32 s{S_WOFF}, s{S_WOFF}, s{S_TMP+11}")
        if lo == 0: self.w_setup(widx, K, 1024, woff)
        self.wrb = 1024
        for st in range(lo, min(DW, hi)): self.dmaW(st, WB + ((st + rot) % DW) * 2048, "wn" if PFE == 3 else "w")
    def pf_k5(self, lo=0, hi=99):
        A = self.A
        def woff():
            A(f"s_min_u32 s{S_WOFF}, s{S_J}, 6")
            A(f"s_lshl_b32 s{S_WOFF}, s{S_WOFF}, 9")
            A(f"s_lshl_b32 s{S_TMP+11}, s{S_WAVE}, 7")
            A(f"s_add_u32 s{S_WOFF}, s{S_WOFF}, s{S_TMP+11}")
        if lo == 0: self.w_setup(2, 512, 3584, woff)
        self.wrb = 3584
        for st in range(lo, min(K5D, hi)): self.dmaW(st, K5RB + st * 2048, "wn" if PFE == 3 else "w")
    def l2pf(self, widx, size):
        A = self.A
        per = size // 32
        A("s_lshr_b32 s78, s2, 3")
        A(f"s_mul_i32 s78, s78, {per}")
        make_srd(A, 80, P_W + 2 * widx, "s78", per)
        A("v_and_b32 v2, 255, v0")
        A("v_lshlrev_b32 v2, 7, v2")
        n = (per + 32767) // 32768
        for i in range(n):
            A(f"s_mov_b32 s78, {i * 32768}")
            A("buffer_load_dword v3, v2, s[80:83], s78 offen")
        return n
    def persist(self):
        A = self.A
        A(f"s_load_dwordx2 s[{P_X}:{P_X+1}], s[0:1], 0")
        A(f"s_load_dwordx2 s[{P_OUT}:{P_OUT+1}], s[0:1], 96")
        A(f"s_load_dwordx2 s[{P_WS}:{P_WS+1}], s[0:1], 112")
        A(f"s_load_dwordx8 s[{P_W}:{P_W+7}], s[0:1], 48")
        A("v_and_b32 v1, 63, v0")
        A("v_lshrrev_b32 v2, 6, v0")
        A("s_nop 0")
        A(f"v_readfirstlane_b32 s{S_WAVE}, v2")
        A(f"s_and_b32 s{S_M}, s2, 31")
        A(f"s_lshr_b32 s{S_J}, s2, 5")
        A(f"s_mov_b32 s{S_MASK}, 0xffff0000")
        A(f"s_mul_i32 s{S_RB}, s{S_WAVE}, {RG}")
        A("s_waitcnt lgkmcnt(0)")
    def kr(self):
        A = self.A; vm = self.vm
        S_X = 8; S_MOD = 12; S_PT = 16; S_X2 = 20; S_H = 24; S_HN = 28; S_H1 = 36
        PR = 64; XR = 16; GA = 24; CB = 32; SB = 40
        A("v_lshlrev_b32 v9, 4, v1")
        A("v_lshlrev_b32 v10, 5, v1")
        A(f"s_lshl_b32 s3, s{S_M}, 3")
        A(f"s_add_u32 s3, s3, s{S_J}")
        A("s_lshl_b32 s3, s3, 3")
        A(f"s_add_u32 s3, s3, s{S_WAVE}")
        A("s_lshl_b32 s3, s3, 10")
        make_srd(A, S_X, P_X, 0, 2 * MB)
        make_srd(A, S_MOD, P_WS, WS_MOD, 4 * MODP)
        A(f"buffer_load_dwordx4 v[{XR}:{XR+3}], v9, s[{S_X}:{S_X+3}], s3 offen"); vm.issue("x")
        def modloads():
            for part in range(2 if V2 else 1):
                for (dst, idx) in ((CB, 4), (GA, 2), (SB, 3)):
                    d = dst + 88 * part
                    A(f"s_movk_i32 s{S_TMP}, {idx*2048 + part*MODP}")
                    A(f"buffer_load_dwordx4 v[{d}:{d+3}], v10, s[{S_MOD}:{S_MOD+3}], s{S_TMP} offen"); vm.issue("x")
                    A(f"buffer_load_dwordx4 v[{d+4}:{d+7}], v10, s[{S_MOD}:{S_MOD+3}], s{S_TMP} offen offset:16"); vm.issue("x")
        if W0M:
            A("v_add_u32 v2, 81920, v10")
            for q, off in enumerate((0, 16384, 49152)):
                A(f"ds_read_b128 v[{24+8*q}:{27+8*q}], v2 offset:{off}")
                A(f"ds_read_b128 v[{28+8*q}:{31+8*q}], v2 offset:{off+16}")
            A("s_waitcnt lgkmcnt(0)")
        else: modloads()
        make_srd(A, S_PT, P_WS, WS_PART, 8 * 2048 * 512 * 2)
        make_srd(A, S_X2, P_WS, WS_X2, 2 * MB)
        make_srd(A, S_H, P_WS, WS_H, 2 * MB)
        make_srd(A, S_HN, P_WS, WS_HN, 2 * MB)
        make_srd(A, S_H1, P_WS, WS_H1, 2052 * 1024)
        A(f"s_cmp_ge_u32 s{S_WAVE}, 4")
        A("s_cbranch_scc1 .Lkr_nz2")
        A(f"s_lshr_b32 s{S_TMP}, s{S_WAVE}, 1")
        A(f"s_mul_i32 s{S_TMP}, s{S_TMP}, 31")
        A(f"s_cmp_lg_u32 s2, s{S_TMP}")
        A("s_cbranch_scc1 .Lkr_nz")
        A(f"s_lshl_b32 s{S_TMP}, s{S_WAVE}, 10")
        A(f"s_add_u32 s{S_TMP+1}, s{S_TMP}, {2048*1024}")
        A(f"s_cmp_lt_u32 s{S_WAVE}, 2")
        A(f"s_cselect_b32 s{S_TMP}, s{S_TMP}, s{S_TMP+1}")
        for j in range(4): A(f"v_mov_b32 v{12+j}, 0")
        A(f"buffer_store_dwordx4 v[12:15], v9, s[{S_H1}:{S_H1+3}], s{S_TMP} offen sc1")
        A.label(".Lkr_nz")
        PFW1 = int(os.environ.get("PFW1", "1"))
        sv = list(vm.ops)
        if PFW1 == 1: self.pf_g64(0, 512, 24576, 8)
        vm.ops = sv
        A.label(".Lkr_nz2")
        self.poll(0)
        A("s_barrier")
        self.stamp(4)
        PL = int(os.environ.get("PL", "1"))
        if PL:
            A(f"s_mul_i32 s{S_TMP}, s{S_M}, {7 * 65536}")
            A(f"s_add_u32 s{S_TMP}, s{S_TMP}, s3")
        else: A(f"s_mov_b32 s{S_TMP}, s3")
        for g in range(8):
            A(f"buffer_load_dwordx4 v[{PR+4*g}:{PR+4*g+3}], v9, s[{S_PT}:{S_PT+3}], s{S_TMP} offen"); vm.issue(("p", g))
            if g < 7: A(f"s_add_u32 s{S_TMP}, s{S_TMP}, {65536 if PL else 2048*512*2}")
        X = list(range(48, 56)); T = list(range(PR, PR + 12)); XU = list(range(96, 104))
        if PFW1 == 3:
            def woff():
                A(f"s_and_b32 s{S_TMP+9}, s{S_WAVE}, 3")
                A(f"s_lshr_b32 s{S_TMP+8}, s{S_WAVE}, 2")
                A(f"s_lshl_b32 s{S_WOFF}, s{S_TMP+9}, 17")
                A(f"s_lshl_b32 s{S_TMP+11}, s{S_TMP+8}, 16")
                A(f"s_add_u32 s{S_WOFF}, s{S_WOFF}, s{S_TMP+11}")
                A(f"s_lshl_b32 s{S_TMP+11}, s{S_J}, 7")
                A(f"s_add_u32 s{S_WOFF}, s{S_WOFF}, s{S_TMP+11}")
                A(f"s_mov_b32 s{S_TMP+7}, s{S_RB}")
                A(f"s_mul_i32 s{S_RB}, s{S_TMP+9}, {RG}")
                A(f"s_lshl_b32 s{S_TMP+8}, s{S_TMP+8}, 13")
                A(f"s_add_u32 s{S_RB}, s{S_RB}, s{S_TMP+8}")
            self.w_setup(0, 512, 1024, woff)
            for st in range(4): self.dmaW(st, 24576 + st * 2048, "wn")
            A(f"s_mov_b32 s{S_RB}, s{S_TMP+7}")
        if int(os.environ.get("KRX", "0")):
            vm.wait(("p", 0)); self.stamp(25)
            vm.wait(("p", 7)); self.stamp(26)
        vm.wait("x")
        if V2 and not W0M:
            for j in range(0, 24, 2): pk(A, "v_pk_add_f32", GA + j, GA + j, GA + 88 + j)
            for q in range(3): round_multi(A, list(range(GA + 8*q, GA + 8*q + 8)), [56, 57, 58, 59], SM)
        if not W0M:
            for j in range(8): A(f"v_add_f32 v{CB+j}, 1.0, v{CB+j}")
            round_multi(A, list(range(CB, CB + 8)), [56, 57, 58, 59], SM)
        for j in range(4):
            A(f"v_lshlrev_b32 v{XU[2*j]}, 16, v{XR+j}")
            A(f"v_and_b32 v{XU[2*j+1]}, {SM}, v{XR+j}")
        for g in range(8):
            vm.wait(("p", g))
            if g == 0:
                for j in range(4):
                    A(f"v_lshlrev_b32 v{X[2*j]}, 16, v{PR+j}")
                    A(f"v_and_b32 v{X[2*j+1]}, {SM}, v{PR+j}")
            else:
                U = 136 + 8 * (g & 1)
                for j in range(4):
                    p = PR + 4 * g + j
                    A(f"v_lshlrev_b32 v{U+2*j}, 16, v{p}")
                    A(f"v_and_b32 v{U+2*j+1}, {SM}, v{p}")
                for j in range(0, 8, 2): pk(A, "v_pk_add_f32", X[j], X[j], U + j)
        self.stamp(23)
        if PFW1 == 2:
            A(f"s_cmp_ge_u32 s{S_WAVE}, 4")
            A("s_cbranch_scc1 .Lkr_nz3")
            self.pf_g64(0, 512, 24576, 8)
            A.label(".Lkr_nz3")
        round_multi(A, X, T[5:9], SM)
        for j in range(0, 8, 2): pk(A, "v_pk_mul_f32", X[j], X[j], GA + j)
        round_multi(A, X, T[5:9], SM)
        for j in range(0, 8, 2): pk(A, "v_pk_add_f32", X[j], X[j], XU[j])
        pack8(A, X, XR)
        A(f"buffer_store_dwordx4 v[{XR}:{XR+3}], v9, s[{S_X2}:{S_X2+3}], s3 offen sc1")
        for j in range(4):
            A(f"v_lshlrev_b32 v{X[2*j]}, 16, v{XR+j}")
            A(f"v_and_b32 v{X[2*j+1]}, {SM}, v{XR+j}")
        ln_rows(A, [(X, T)], SM)
        for j in range(0, 8, 2): pk(A, "v_pk_mul_f32", X[j], X[j], CB + j)
        round_multi(A, X, T[5:9], SM)
        for j in range(0, 8, 2): pk(A, "v_pk_add_f32", X[j], X[j], SB + j)
        pack8(A, X, 80)
        A(f"buffer_store_dwordx4 v[80:83], v9, s[{S_H}:{S_H+3}], s3 offen sc1")
        self.stamp(24)
        for j in range(4):
            A(f"v_lshlrev_b32 v{X[2*j]}, 16, v{80+j}")
            A(f"v_and_b32 v{X[2*j+1]}, {SM}, v{80+j}")
        ln_rows(A, [(X, T)], SM, False)
        pack8(A, X, 84)
        A(f"buffer_store_dwordx4 v[84:87], v9, s[{S_HN}:{S_HN+3}], s3 offen sc1")
    def g64(self, lab, stage, K, a_off, a_size, a_rb, epi, WB, DW, nbr, next_pf, own_pf=None, rot=0, nsched=None, l2=None):
        A = self.A; vm = self.vm; lg = self.lg
        S_G = 8; S_X1 = 16; S_X2 = 20; S_MOD = 24; S_O = 28; S_ST = 36
        KW = K // 4; NCH = KW // 64; NS = NCH * 4; DG = 3
        VG = [4, 5]; AA = 16; BA = 18
        X1 = 24; X2 = 32; GB = 40
        V_PW = 48; V_PR = 49; V_GA = 51; V_SA = 52; VC = (12, 14, 54)
        ACC = 64; FR = 128
        NBG = int(os.environ.get('NBG', '3'))
        def tail_setup():
            A(f"v_lshrrev_b32 v10, 3, v{L}")
            A(f"v_and_b32 v11, 7, v{L}")
            A(f"v_mul_u32_u24 v{V_PR}, {RS}, v10")
            A(f"v_lshl_add_u32 v{V_PR}, v11, 5, v{V_PR}")
            A(f"s_mul_i32 s{S_TMP+3}, s{S_WAVE}, {8*RS}")
            A(f"v_add_u32 v{V_PR}, s{S_TMP+3}, v{V_PR}")
            A(f"v_add_u32 v{V_PR+1}, {2*RG}, v{V_PR}")
            A(f"v_lshlrev_b32 v{V_GA}, 4, v11")
            A(f"v_lshl_add_u32 v{V_GA}, v10, 10, v{V_GA}")
            A(f"s_lshl_b32 s{S_TMP+2}, s{S_M}, 16")
            A(f"s_lshl_b32 s{S_TMP+3}, s{S_WAVE}, 13")
            A(f"s_add_u32 s{S_TMP+2}, s{S_TMP+2}, s{S_TMP+3}")
            A(f"s_lshl_b32 s{S_TMP+3}, s{S_J}, 7")
            A(f"s_add_u32 s{S_TMP+2}, s{S_TMP+2}, s{S_TMP+3}")
            if epi == "final":
                A(f"v_lshlrev_b32 v{V_SA}, 5, v11")
                make_srd(A, S_X1, P_WS, WS_X1, 2 * MB)
                make_srd(A, S_X2, P_WS, WS_X2, 2 * MB)
                make_srd(A, S_MOD, P_WS, WS_MOD, 4 * MODP)
                make_srd(A, S_O, P_OUT, 0, 2 * MB)
                A(f"buffer_load_dwordx4 v[{X1}:{X1+3}], v{V_GA}, s[{S_X1}:{S_X1+3}], s{S_TMP+2} offen"); vm.issue("e")
                A(f"buffer_load_dwordx4 v[{X2}:{X2+3}], v{V_GA}, s[{S_X2}:{S_X2+3}], s{S_TMP+2} offen"); vm.issue("e")
                A(f"s_lshl_b32 s{S_TMP+3}, s{S_J}, 8")
                A(f"s_add_u32 s{S_TMP+3}, s{S_TMP+3}, {5*2048}")
                for h4 in range(2):
                    A(f"buffer_load_dwordx4 v[{GB+4*h4}:{GB+4*h4+3}], v{V_SA}, s[{S_MOD}:{S_MOD+3}], s{S_TMP+3} offen offset:{h4*16}"); vm.issue("e")
                if V2:
                    A(f"s_add_u32 s{S_TMP+3}, s{S_TMP+3}, {MODP}")
                    for h4 in range(2):
                        A(f"buffer_load_dwordx4 v[{180+4*h4}:{183+4*h4}], v{V_SA}, s[{S_MOD}:{S_MOD+3}], s{S_TMP+3} offen offset:{h4*16}"); vm.issue("e")
            elif epi == "res":
                A(f"v_lshlrev_b32 v{V_SA}, 3, v10")
                A(f"s_lshl_b32 s{S_TMP+6}, s{S_M}, 9")
                A(f"s_lshl_b32 s{S_TMP+3}, s{S_WAVE}, 6")
                A(f"s_add_u32 s{S_TMP+6}, s{S_TMP+6}, s{S_TMP+3}")
                A(f"s_lshl_b32 s{S_TMP+3}, s{S_J}, 14")
                A(f"s_add_u32 s{S_TMP+6}, s{S_TMP+6}, s{S_TMP+3}")
                make_srd(A, S_X1, P_WS, WS_H, 2 * MB)
                make_srd(A, S_O, P_WS, WS_X1, 2 * MB)
                make_srd(A, S_ST, P_WS, WS_STAT, 2048 * 128)
                A(f"buffer_load_dwordx4 v[{X1}:{X1+3}], v{V_GA}, s[{S_X1}:{S_X1+3}], s{S_TMP+2} offen"); vm.issue("e")
            else:
                A(f"v_mov_b32 v{VC[0]}, {fhex(GK1)}")
                A(f"v_mov_b32 v{VC[1]}, {fhex(GK0)}")
                A(f"v_mov_b32 v{VC[2]}, 1.0")
                make_srd(A, S_O, P_WS, WS_H1 + 2048, 2 * MB)
        A(f"s_cmp_ge_u32 s{S_WAVE}, 4")
        A(f"s_cbranch_scc1 .L{lab}_help")
        if own_pf and PFE == 2: own_pf(NE, 99)
        A(f"v_lshrrev_b32 v7, 3, v{L}")
        A(f"v_and_b32 v8, 7, v{L}")
        A("v_lshrrev_b32 v9, 1, v7")
        A("v_xor_b32 v9, v8, v9")
        A(f"s_movk_i32 s{S_TMP}, {a_rb}")
        A(f"v_mul_lo_u32 v10, v7, s{S_TMP}")
        A(f"v_lshl_add_u32 v{VG[0]}, v9, 4, v10")
        A("v_xor_b32 v9, 4, v9")
        A(f"v_lshl_add_u32 v{VG[1]}, v9, 4, v10")
        A(f"s_mul_i32 s{S_GOFF}, s{S_M}, {64*a_rb}")
        A(f"s_mul_i32 s{S_TMP}, s{S_WAVE}, {KW*2}")
        A(f"s_add_u32 s{S_GOFF}, s{S_GOFF}, s{S_TMP}")
        if epi == "res":
            A(f"s_lshl_b32 s{S_TMP}, s{S_WAVE}, 2")
            A(f"s_lshr_b32 s{S_TMP+1}, 0x4031, s{S_TMP}")
            A(f"s_and_b32 s{S_TMP+1}, s{S_TMP+1}, 15")
            A(f"s_lshl_b32 s{S_TMP+1}, s{S_TMP+1}, 10")
            A(f"s_add_u32 s{S_GOFF}, s{S_GOFF}, s{S_TMP+1}")
        make_srd(A, S_G, P_WS, a_off, a_size)
        A(f"v_lshrrev_b32 v7, 5, v{L}")
        A(f"v_bfe_u32 v8, v{L}, 4, 1")
        A(f"v_bfe_u32 v9, v{L}, 2, 2")
        A(f"v_and_b32 v10, 1, v{L}")
        A(f"v_bfe_u32 v11, v{L}, 1, 1")
        A("v_lshl_or_b32 v10, v10, 1, v11")
        A("v_lshlrev_b32 v10, 3, v10")
        A("v_lshl_add_u32 v10, v8, 5, v10")
        A("v_lshl_add_u32 v11, v7, 3, v9")
        A("v_lshrrev_b32 v12, 1, v9")
        for nb in range(2):
            A(f"v_xor_b32 v13, {nb}, v12")
            A("v_lshl_add_u32 v13, v13, 6, v10")
            A("v_lshl_add_u32 v13, v11, 7, v13")
            A(f"v_add_u32 v{AA+nb}, s{S_RB}, v13")
        A(f"v_and_b32 v8, 31, v{L}")
        A("v_bfe_u32 v9, v8, 1, 3")
        for ks in range(4):
            A(f"v_or_b32 v10, {2*ks}, v7")
            A("v_xor_b32 v10, v10, v9")
            A("v_lshlrev_b32 v10, 4, v10")
            A("v_lshl_add_u32 v10, v8, 7, v10")
            A(f"v_add_u32 v{BA+ks}, s{S_RB}, v10")
        A(f"v_mul_u32_u24 v{V_PW}, {RS}, v8")
        A(f"v_lshl_add_u32 v{V_PW}, v7, 5, v{V_PW}")
        A(f"v_add_u32 v{V_PW}, s{S_RB}, v{V_PW}")
        tail_setup()
        A("s_barrier")
        self.stamp(1 + 4 * stage + 3)
        def dmaG(ch):
            base = (ch % DG) * 8192
            for i in range(8):
                A(f"s_add_u32 m0, s{S_RB}, {base + i * 1024}")
                A(f"s_add_u32 s{S_TMP}, s{S_GOFF}, {i * 8 * a_rb + ch * 128}")
                A(f"buffer_load_dwordx4 v{VG[i & 1]}, s[{S_G}:{S_G+3}], s{S_TMP} offen lds")
                vm.issue(("g", ch))
        for ch in range(min(DG, NCH)): dmaG(ch)
        def reads(step):
            ch, ks = step // 4, step % 4
            buf = FR + (step % NBG) * 16
            for nb in range(2):
                for q in range(2):
                    A(f"ds_read_b64_tr_b16 v[{buf+nb*4+q*2}:{buf+nb*4+q*2+1}], v{AA+nb} offset:{WB + ((step + rot) % DW) * 2048 + q * 512}")
                    lg.issue(("f", step))
            for rb in range(2):
                A(f"ds_read_b128 v[{buf+8+rb*4}:{buf+8+rb*4+3}], v{BA+ks} offset:{(ch % DG) * 8192 + rb * 4096}")
                lg.issue(("f", step))
        def need(step):
            vm.wait(("w", step)); vm.wait(("g", step // 4))
        for s0 in range(NBG - 1):
            need(s0); reads(s0)
        for st in range(NS):
            lg.wait(("f", st))
            with Cap(A) as cp:
                if st + DW < NS: self.dmaW(st + DW, WB + ((st + rot) % DW) * 2048)
                if st % 4 == 3 and st // 4 + DG < NCH: dmaG(st // 4 + DG)
                if st + NBG - 1 < NS:
                    need(st + NBG - 1); reads(st + NBG - 1)
                if st + DW >= NS and PFE == 3 and nsched and st in nsched: next_pf(*nsched[st])
            buf = FR + (st % NBG) * 16
            mf = []
            for nb in range(2):
                for rb in range(2):
                    acc = ACC + (nb * 2 + rb) * 16
                    c = "0" if st == 0 else f"v[{acc}:{acc+15}]"
                    mf.append(f"v_mfma_f32_32x32x16_bf16 v[{acc}:{acc+15}], v[{buf+nb*4}:{buf+nb*4+3}], v[{buf+8+rb*4}:{buf+8+rb*4+3}], {c}")
            interleave(A, mf, cp.out)
        vm.wait("e")
        if not int(os.environ.get("KRX", "0")): self.stamp({1: 25, 2: 26, 4: 27}[stage])
        A("s_nop 7")
        A("s_nop 1")
        for tl in range(4):
            nb, rb = tl >> 1, tl & 1
            for r4 in range(4):
                A(f"ds_write_b128 v{V_PW}, v[{ACC+tl*16+r4*4}:{ACC+tl*16+r4*4+3}] offset:{rb*32*RS + (nb*8 + (r4 >> 1)*4 + (r4 & 1))*16}")
            if tl == 1: A("s_waitcnt lgkmcnt(0)")
        if next_pf and PFE == 1: next_pf()
        A("s_waitcnt lgkmcnt(0)")
        A(f"s_branch .L{lab}_join")
        A.label(f".L{lab}_help")
        sv = list(vm.ops)
        tail_setup()
        vm.ops = sv
        self.poll(stage, nbr)
        A("s_barrier")
        self.stamp(1 + 4 * stage + 3)
        n = sum(self.l2pf(*x) for x in l2) if l2 else 0
        A(f"s_waitcnt vmcnt({n})")
        A.label(f".L{lab}_join")
        A("s_barrier")
        for p in range(4):
            for h in range(2):
                d = ACC + p * 16 + h * 4
                A(f"ds_read_b128 v[{d}:{d+3}], v{V_PR + (p >> 1)} offset:{(p & 1)*RG + h*16}")
        xs = list(range(ACC, ACC + 8)); tp = list(range(72, 80)); t8 = list(range(88, 96))
        b = ACC
        def unpack(src, dst):
            for k in range(4):
                A(f"v_lshlrev_b32 v{dst[2*k]}, 16, v{src+k}")
                A(f"v_and_b32 v{dst[2*k+1]}, {SM}, v{src+k}")
        if epi != "gelu": unpack(X1, tp)
        if epi == "final":
            unpack(X2, list(range(104, 112)))
            if V2:
                for k in range(0, 8, 2): pk(A, "v_pk_add_f32", GB + k, GB + k, 180 + k)
                round_multi(A, list(range(GB, GB + 8)), t8, SM)
        A("s_waitcnt lgkmcnt(4)")
        for e in range(0, 8, 2): pk(A, "v_pk_add_f32", b + e, b + e, b + 16 + e)
        A("s_waitcnt lgkmcnt(0)")
        for e in range(0, 8, 2): pk(A, "v_pk_add_f32", b + 32 + e, b + 32 + e, b + 48 + e)
        for e in range(0, 8, 2): pk(A, "v_pk_add_f32", b + e, b + e, b + 32 + e)
        round_multi(A, xs, t8, SM)
        def store():
            for k in range(4): A(f"v_cvt_pk_bf16_f32 v{56+k}, v{xs[2*k]}, v{xs[2*k+1]}")
            A(f"buffer_store_dwordx4 v[56:59], v{V_GA}, s[{S_O}:{S_O+3}], s{S_TMP+2} offen sc1")
        if epi == "gelu":
            X = xs; T = tp
            for e in range(0, 8, 2): pk(A, "v_pk_mul_f32", T[e], X[e], X[e])
            for e in range(0, 8, 2): pk(A, "v_pk_fma_f32", T[e], T[e], VC[0], VC[1], "op_sel_hi:[1,0,0]")
            for e in range(0, 8, 2): pk(A, "v_pk_mul_f32", T[e], T[e], X[e])
            for e in range(8): A(f"v_exp_f32 v{T[e]}, v{T[e]}")
            for e in range(0, 8, 2): pk(A, "v_pk_add_f32", T[e], T[e], VC[2], None, "op_sel_hi:[1,0]")
            for e in range(8): A(f"v_rcp_f32 v{T[e]}, v{T[e]}")
            A("s_nop 0")
            for e in range(0, 8, 2): pk(A, "v_pk_mul_f32", X[e], X[e], T[e])
            store()
        elif epi == "res":
            for k in range(0, 8, 2): pk(A, "v_pk_add_f32", xs[k], xs[k], tp[k])
            store()
            unpack(56, xs)
            X = xs
            pk(A, "v_pk_mul_f32", tp[0], X[0], X[0])
            pk(A, "v_pk_add_f32", tp[2], X[0], X[2])
            for e in range(2, 8, 2):
                pk(A, "v_pk_fma_f32", tp[0], X[e], X[e], tp[0])
                if e >= 4: pk(A, "v_pk_add_f32", tp[2], tp[2], X[e])
            A(f"v_add_f32 v20, v{tp[2]}, v{tp[3]}")
            A(f"v_add_f32 v21, v{tp[0]}, v{tp[1]}")
            A("s_nop 1")
            for dpp in ("quad_perm:[1,0,3,2]", "quad_perm:[2,3,0,1]", "row_half_mirror"):
                for v in (20, 21):
                    A(f"v_add_f32_dpp v{v}, v{v}, v{v} {dpp} row_mask:0xf bank_mask:0xf")
                A("s_nop 1")
            A("v_and_b32 v10, 7, v1")
            A("v_cmp_eq_u32 vcc, 0, v10")
            A("s_and_saveexec_b64 s[78:79], vcc")
            A(f"buffer_store_dwordx2 v[20:21], v{V_SA}, s[{S_ST}:{S_ST+3}], s{S_TMP+6} offen sc1")
            A("s_mov_b64 exec, s[78:79]")
        else:
            for k in range(0, 8, 2): pk(A, "v_pk_add_f32", xs[k], xs[k], tp[k])
            round_multi(A, xs, t8, SM)
            for k in range(0, 8, 2): pk(A, "v_pk_mul_f32", xs[k], xs[k], GB + k)
            round_multi(A, xs, t8, SM)
            for k in range(0, 8, 2): pk(A, "v_pk_add_f32", xs[k], xs[k], 104 + k)
            store()
    def k5(self, stage, next_pf, own_pf=None):
        A = self.A; vm = self.vm; lg = self.lg
        S_A = 8; S_O = 20; S_ST = 24; S_CS = 28
        VB = [16, 28]; AA = 24; ACC = 64; FQ = 128
        D = K5D
        NB5 = int(os.environ.get('NB5', '3'))
        A(f"s_cmp_lt_u32 s{S_WAVE}, 4")
        A("s_cbranch_scc1 .Lk5_main")
        A(f"s_cmp_eq_u32 s{S_J}, 7")
        A("s_cbranch_scc1 .Lk5_h7")
        self.poll(stage)
        A("s_barrier")
        A("s_barrier")
        A.label(".Lk5_h7")
        if L2PF & 4: self.l2pf(3, 1792 * 1024)
        A("s_branch .Lk5_end")
        A.label(".Lk5_main")
        A(f"s_cmp_eq_u32 s{S_J}, 7")
        A("s_cbranch_scc1 .Lk5_pf")
        if own_pf and PFE == 2: own_pf(NE, 99)
        make_srd(A, S_A, P_WS, WS_X1, 2 * MB)
        make_srd(A, S_ST, P_WS, WS_STAT, 2048 * 128)
        make_srd(A, S_CS, P_WS, WS_CS, 2 * CSP)
        make_srd(A, S_O, P_WS, WS_G, 2048 * 3584)
        A(f"v_lshlrev_b32 v4, 4, v{L}")
        A(f"s_lshl_b32 s{S_TMP}, s{S_M}, 16")
        A(f"s_lshl_b32 s{S_TMP+1}, s{S_WAVE}, 14")
        A(f"s_add_u32 s{S_TMP}, s{S_TMP}, s{S_TMP+1}")
        A(f"s_lshl_b32 s{S_TMP+6}, s{S_J}, 9")
        A(f"s_lshl_b32 s{S_TMP+2}, s{S_WAVE}, 7")
        A(f"s_add_u32 s{S_TMP+6}, s{S_TMP+6}, s{S_TMP+2}")
        A(f"v_lshrrev_b32 v5, 5, v{L}")
        A(f"v_bfe_u32 v7, v{L}, 4, 1")
        A(f"v_bfe_u32 v8, v{L}, 2, 2")
        A(f"v_and_b32 v9, 1, v{L}")
        A(f"v_bfe_u32 v10, v{L}, 1, 1")
        A("v_lshl_or_b32 v9, v9, 1, v10")
        A("v_lshlrev_b32 v9, 3, v9")
        A("v_lshl_add_u32 v9, v7, 5, v9")
        A("v_lshl_add_u32 v10, v5, 3, v8")
        A("v_lshrrev_b32 v11, 1, v8")
        for nb in range(2):
            A(f"v_xor_b32 v12, {nb}, v11")
            A("v_lshl_add_u32 v12, v12, 6, v9")
            A("v_lshl_add_u32 v12, v10, 7, v12")
            A(f"v_add_u32 v{AA+nb}, s{S_RB}, v12")
        A(f"v_and_b32 v13, 31, v{L}")
        A("v_lshrrev_b32 v7, 4, v13")
        A(f"v_mul_u32_u24 v7, {RG // 1024}, v7")
        A("v_and_b32 v8, 15, v13")
        A("v_add_u32 v7, v7, v8")
        for j in range(8):
            A(f"v_or_b32 v8, {2*j}, v5")
            A("v_xor_b32 v8, v8, v13")
            A("v_and_b32 v8, 15, v8")
            A("v_lshlrev_b32 v8, 4, v8")
            A(f"v_lshl_add_u32 v{VB[0]+j}, v7, 10, v8")
            A(f"v_add_u32 v{VB[1]+j}, {2*RG}, v{VB[0]+j}")
        ST = 192; CS = 224
        A("v_lshlrev_b32 v42, 5, v5")
        C2 = [176, 184, 200, 216]
        def csloads():
            A(f"s_lshl_b32 s{S_TMP+2}, s{S_TMP+6}, 1")
            for part in range(2 if V2 else 1):
                for q in range(4):
                    for h4 in range(2):
                        d = (CS + q * 8 if part == 0 else C2[q]) + 4 * h4
                        A(f"buffer_load_dwordx4 v[{d}:{d+3}], v42, s[{S_CS}:{S_CS+3}], s{S_TMP+2} offen offset:{(16*q+4*h4)*4}"); vm.issue("st")
                A(f"s_add_u32 s{S_TMP+2}, s{S_TMP+2}, {CSP}")
        VS = 36
        A("v_and_b32 v7, 7, v13")
        A(f"s_add_u32 s{S_TMP+3}, s{S_RB}, {K5RB}")
        for j in range(4):
            A(f"v_or_b32 v14, {2*j}, v5")
            A("v_xor_b32 v14, v14, v7")
            A("v_lshlrev_b32 v14, 4, v14")
            A("v_lshl_add_u32 v14, v13, 7, v14")
            A(f"v_add_u32 v{VS+j}, s{S_TMP+3}, v14")
        A(f"v_lshrrev_b32 v7, 3, v{L}")
        A(f"v_and_b32 v14, 7, v{L}")
        A(f"v_xor_b32 v{VS+4}, v14, v7")
        A(f"v_lshlrev_b32 v{VS+4}, 4, v{VS+4}")
        A(f"v_lshl_add_u32 v{VS+4}, v7, 7, v{VS+4}")
        A(f"v_add_u32 v{VS+4}, s{S_TMP+3}, v{VS+4}")
        A(f"s_movk_i32 s{S_TMP+2}, 3584")
        A(f"v_mul_lo_u32 v7, v7, s{S_TMP+2}")
        A(f"v_lshl_add_u32 v{VS+5}, v14, 4, v7")
        A(f"s_mul_i32 s{S_TMP+4}, s{S_M}, {64*3584}")
        A(f"s_add_u32 s{S_TMP+4}, s{S_TMP+4}, s{S_TMP+6}")
        A(f"s_add_u32 s{S_TMP+5}, s{S_TMP+4}, {32*3584}")
        A("v_lshlrev_b32 v7, 3, v13")
        A("v_lshl_add_u32 v7, v5, 16, v7")
        A(f"s_lshl_b32 s{S_TMP+7}, s{S_M}, 9")
        A("s_barrier")
        self.stamp(1 + 4 * stage + 3)
        for i in range(16):
            t = 8 + (i & 1)
            A(f"v_xor_b32 v{t}, {i << 4}, v4")
            A(f"s_add_u32 m0, s{S_RB}, {i * 1024}")
            A(f"s_add_u32 s{S_TMP+2}, s{S_TMP}, {i * 1024}")
            A(f"buffer_load_dwordx4 v{t}, s[{S_A}:{S_A+3}], s{S_TMP+2} offen lds")
            vm.issue("act")
        for q in range(4):
            A(f"s_add_u32 s{S_TMP+3}, s{S_TMP+7}, {q*16384}")
            for rb in range(2):
                A(f"buffer_load_dwordx2 v[{ST+16*rb+2*q}:{ST+16*rb+2*q+1}], v7, s[{S_ST}:{S_ST+3}], s{S_TMP+3} offen offset:{rb*256}"); vm.issue("st")
        vm.wait("act")
        A("s_barrier")
        self.stamp(29)
        def reads(step):
            buf = FQ + (step % NB5) * 16
            for nb in range(2):
                for q in range(2):
                    A(f"ds_read_b64_tr_b16 v[{buf+nb*4+q*2}:{buf+nb*4+q*2+1}], v{AA+nb} offset:{K5RB + (step % D) * 2048 + q * 512}")
                    lg.issue(("f", step))
            for rb in range(2):
                A(f"ds_read_b128 v[{buf+8+rb*4}:{buf+8+rb*4+3}], v{VB[rb] + (step & 7)} offset:{(step >> 3) * 256}")
                lg.issue(("f", step))
        PKC = [[44, 46, 48, 50], [52, 54, 56, 58]]
        E = []
        for stg in range(17):
            for rb in range(2):
                b = ST + 16 * rb; c = PKC[rb]
                E.append([f"v_add_f32 v{b}, v{b}, v{b+2}", f"v_add_f32 v{b+1}, v{b+1}, v{b+3}",
                          f"v_add_f32 v{b+4}, v{b+4}, v{b+6}", f"v_add_f32 v{b+5}, v{b+5}, v{b+7}",
                          f"v_add_f32 v{b}, v{b}, v{b+4}", f"v_add_f32 v{b+1}, v{b+1}, v{b+5}",
                          f"v_mov_b32 v{b+2}, v{b}", f"v_mov_b32 v{b+3}, v{b+1}", "s_nop 1",
                          f"v_permlane32_swap_b32 v{b}, v{b+2}", f"v_permlane32_swap_b32 v{b+1}, v{b+3}", "s_nop 1",
                          f"v_add_f32 v{b}, v{b}, v{b+2}", f"v_add_f32 v{b+1}, v{b+1}, v{b+3}",
                          f"v_mul_f32 v{c[0]}, {fhex(-1/512)}, v{b}", f"v_mul_f32 v{b+1}, {fhex(1/512)}, v{b+1}",
                          f"v_fma_f32 v{b+1}, -v{c[0]}, v{c[0]}, v{b+1}"][stg])
        for stg in range(9):
            for rb in range(2):
                b = ST + 16 * rb; c = PKC[rb]
                E.append([f"v_max_f32 v{b+1}, 0, v{b+1}", f"v_add_f32 v{b+1}, {fhex(1e-5)}, v{b+1}",
                          f"v_rsq_f32 v{b+2}, v{b+1}", f"v_sqrt_f32 v{c[3]}, v{b+1}", "s_nop 0",
                          f"v_mul_f32 v{c[2]}, {fhex(GK0)}, v{b+2}", f"v_mul_f32 v{c[1]}, v{b+2}, v{b+2}",
                          f"v_mul_f32 v{c[1]}, v{c[1]}, v{b+2}", f"v_mul_f32 v{c[1]}, {fhex(GK1)}, v{c[1]}"][stg])
        if V2:
            for q in range(4):
                for e in range(8): E.append(f"v_add_f32 v{CS+8*q+e}, v{CS+8*q+e}, v{C2[q]+e}")
        for s0 in range(NB5 - 1):
            vm.wait(("w", s0)); reads(s0)
        k = 0
        for ks in range(32):
            lg.wait(("f", ks))
            with Cap(A) as cp:
                if ks + NB5 - 1 < 32:
                    vm.wait(("w", ks + NB5 - 1)); reads(ks + NB5 - 1)
                if ks + D < 32: self.dmaW(ks + D, K5RB + (ks % D) * 2048)
                elif PFE == 3 and ks == 21: next_pf(0, 1)
                elif PFE == 3 and ks >= 26: next_pf(ks - 25, ks - 24)
                if ks == 1: csloads()
                if 14 <= ks < 28:
                    if ks == 14: vm.wait("st")
                    upto = len(E) * (ks - 13) // 14
                    while k < upto: A(E[k]); k += 1
            buf = FQ + (ks % NB5) * 16
            mf = []
            for nb in range(2):
                for rb in range(2):
                    acc = ACC + (nb * 2 + rb) * 16
                    c = "0" if ks == 0 else f"v[{acc}:{acc+15}]"
                    mf.append(f"v_mfma_f32_32x32x16_bf16 v[{acc}:{acc+15}], v[{buf+nb*4}:{buf+nb*4+3}], v[{buf+8+rb*4}:{buf+8+rb*4+3}], {c}")
            interleave(A, mf, cp.out)
        self.stamp(28)
        if PFE == 1: next_pf()
        else:
            A("s_nop 7"); A("s_nop 3")
        def flush5(rb):
            A("s_waitcnt lgkmcnt(0)")
            for i in range(4):
                A(f"ds_read_b128 v[{192+16*rb+4*i}:{192+16*rb+4*i+3}], v{VS+4} offset:{rb*4096 + i*1024}")
        def store5(rb):
            for i in range(4):
                if rb == 1: A(f"s_waitcnt lgkmcnt({3-i})")
                A(f"s_add_u32 s{S_TMP+3}, s{S_TMP+4+rb}, {i*8*3584}")
                A(f"buffer_store_dwordx4 v[{192+16*rb+4*i}:{192+16*rb+4*i+3}], v{VS+5}, s[{S_O}:{S_O+3}], s{S_TMP+3} offen sc1")
        for rb in range(2):
            for nb in range(2):
                acc = ACC + (nb * 2 + rb) * 16
                if rb == 1 and nb == 1:
                    A("s_waitcnt lgkmcnt(2)")
                    store5(0)
                for mp in range(2):
                    d = 160 + (nb * 4 + rb * 2 + mp) * 4
                    xs = [acc + 8 * mp + e for e in range(8)]
                    ts = list(range(128, 136)); cs = CS + (nb * 2 + mp) * 8; c = PKC[rb]
                    for e in range(0, 8, 2): pk(A, "v_pk_fma_f32", xs[e], cs + e, c[0], xs[e], "op_sel_hi:[1,0,1]")
                    for e in range(0, 8, 2): pk(A, "v_pk_mul_f32", ts[e], xs[e], xs[e])
                    for e in range(0, 8, 2): pk(A, "v_pk_fma_f32", ts[e], ts[e], c[1], c[2], "op_sel_hi:[1,0,0]")
                    for e in range(0, 8, 2): pk(A, "v_pk_mul_f32", ts[e], ts[e], xs[e])
                    for t in ts: A(f"v_exp_f32 v{t}, v{t}")
                    for e in range(0, 8, 2): pk(A, "v_pk_fma_f32", ts[e], ts[e], c[3], c[3], "op_sel_hi:[1,0,0]")
                    for t in ts: A(f"v_rcp_f32 v{t}, v{t}")
                    A("s_nop 0")
                    for e in range(0, 8, 2): pk(A, "v_pk_mul_f32", xs[e], xs[e], ts[e])
                    for e in range(0, 8, 2): A(f"v_cvt_pk_bf16_f32 v{d+e//2}, v{xs[e]}, v{xs[e+1]}")
                    A(f"ds_write_b128 v{VS+2*nb+mp}, v[{d}:{d+3}] offset:{rb*4096}")
            flush5(rb)
        store5(1)
        A("s_branch .Lk5_end")
        A.label(".Lk5_pf")
        if PFE in (1, 3): next_pf(alt=True)
        A.label(".Lk5_end")

def gen_km(A):
    name = "k1_kernel"
    M = Mega(A)
    def pre():
        if MT or HD:
            M.persist(); M.stamp(0); M.vm.ops = []
        if ONE: M.pro_pre()
    if V2: K1.gen_k1(A, emb=True, pre=pre, hookA=M.p2_a, hookB=M.p2_b, v2=True, hookC=M.p2_c)
    elif ONE: K1.gen_k1(A, emb=True, pre=pre, hookA=M.pro_a, hookB=M.pro_b)
    else: K1.gen_k1(A, emb=True, pre=pre)
    M.persist()
    M.transition(0)
    M.kr()
    M.transition(1)
    pf4 = lambda lo=0, hi=99: M.pf_g64(1, 512, 24576, 8, lo, hi)
    pf6 = lambda lo=0, hi=99, alt=False: M.pf_g64(3, 1792, 26624, 7, lo, hi, 6)
    M.g64("k3", 1, 512, WS_HN, 2 * MB, 1024, "gelu", 24576, 8, False, pf4, None, 0, {st: (st, st + 1) for st in range(8)}, [(2, 1792 * 1024)] if L2PF & 1 else None)
    M.transition(2, pf4)
    M.g64("k4", 2, 512, WS_H1, 2052 * 1024, 1024, "res", 24576, 8, True, M.pf_k5, pf4, 0, {st: ((0, 4) if st == 0 else (st + 3, st + 4)) for st in range(8)}, [(3, 1792 * 1024)] if L2PF & 2 else None)
    M.transition(3, M.pf_k5)
    M.k5(3, pf6, M.pf_k5)
    M.transition(4, pf6)
    M.g64("k6", 4, 1792, WS_G, 2048 * 3584, 3584, "final", 26624, 7, False, None, pf6, 6)
    M.stamp(21)
    if MT or HD: A("s_waitcnt vmcnt(0)")
    M.stamp(22)
    A("s_endpgm")
    A.raw(kernel_desc(name, 256, 102, 256))
    return (name, (256, 1, 1), (512, 1, 1), 163840)
```

```python
from asmlib import *
from gen_k0 import *
import gen_k1 as K1
from gen_k1 import Cnt
from gen_ka import ln_rows, round_multi, pack8, GK0, GK1
from gen_g64 import WS_STAT, WS_CS
import os
MT = int(os.environ.get("MT", "0"))
HD = int(os.environ.get("HD", "0"))
PT = int(os.environ.get("PT", "0"))
TLW = int(os.environ.get("TLW", "0"))
MP = int(os.environ.get("MP", "1"))
PRG = int(os.environ.get("PRG", "0"))
MSK = 83968
WQF = int(os.environ.get("WQF", "0"))
W0M = int(os.environ.get("MEGA", "5")) == 5 and int(os.environ.get("W0M", "1"))
EB = int(os.environ.get("EB", "0"))
DLY = int(os.environ.get("DLY", "1"))
WQE = int(os.environ.get("WQE", "0"))
ONE = int(os.environ.get("MEGA", "5")) >= 4
V2 = int(os.environ.get("MEGA", "5")) == 5
MODP = 12288; CSP = 8192
FP = WS_FLAG + 0x20000; FQ_ = WS_FLAG + 0x30000
S_WAVE = 40; S_M = 41; S_J = 42; S_MASK = 43; S_RB = 44; S_GOFF = 45; S_TMP = 48; S_WOFF = 58
S_W = 32; V_W = 6
P_X = 60; P_OUT = 62; P_WS = 68; P_W = 84
SM = f"s{S_MASK}"
L = 1
RG = 40960; RS = 272
K5RB = 18432; K5D = 11
L2PF = int(os.environ.get('L2PF', '0'))
PFE = int(os.environ.get('PFE', '3'))
NE = int(os.environ.get('NE', '3')) if PFE == 2 else 0

def pk(A, op, d, a, b, c=None, sel=""):
    ops = ", ".join(f"v[{x}:{x+1}]" for x in ((d, a, b) if c is None else (d, a, b, c)))
    A(f"{op} {ops} {sel}".rstrip())

FLN = int(os.environ.get("FLN", "1"))
_ln_slow = ln_rows
def ln_fast(A, R, smask, final_round=True):
    for X, T in R:
        assert X[0] % 2 == 0 and T[0] % 2 == 0
        pk(A, "v_pk_add_f32", T[0], X[0], X[2]); pk(A, "v_pk_mul_f32", T[2], X[0], X[0])
        pk(A, "v_pk_add_f32", T[4], X[4], X[6]); pk(A, "v_pk_mul_f32", T[6], X[2], X[2])
    for X, T in R:
        pk(A, "v_pk_fma_f32", T[2], X[4], X[4], T[2]); pk(A, "v_pk_fma_f32", T[6], X[6], X[6], T[6])
        pk(A, "v_pk_add_f32", T[0], T[0], T[4])
    for X, T in R:
        pk(A, "v_pk_add_f32", T[2], T[2], T[6])
        A(f"v_add_f32 v{T[0]}, v{T[0]}, v{T[1]}")
    for X, T in R:
        A(f"v_add_f32 v{T[1]}, v{T[2]}, v{T[3]}")
    wave_allreduce(A, "v_add_f32", [t for X, T in R for t in (T[0], T[1])], [t for X, T in R for t in (T[2], T[3])], [t for X, T in R for t in (T[4], T[5])])
    for X, T in R:
        A(f"v_mul_f32 v{T[0]}, {fhex(1/512)}, v{T[0]}")
        A(f"v_mul_f32 v{T[1]}, {fhex(1/512)}, v{T[1]}")
    for X, T in R:
        A(f"v_fma_f32 v{T[1]}, -v{T[0]}, v{T[0]}, v{T[1]}")
    for X, T in R:
        A(f"v_max_f32 v{T[1]}, 0, v{T[1]}")
    for X, T in R:
        A(f"v_cvt_pk_bf16_f32 v{T[3]}, v{T[0]}, v{T[1]}")
    for X, T in R:
        A(f"v_and_b32 v{T[1]}, {smask}, v{T[3]}")
        A(f"v_lshlrev_b32 v{T[2]}, 16, v{T[3]}")
    for X, T in R:
        A(f"v_add_f32 v{T[1]}, {fhex(1e-5)}, v{T[1]}")
        for j in range(0, 4, 2): pk(A, "v_pk_add_f32", X[j], X[j], T[2], None, "op_sel_hi:[1,0] neg_lo:[0,1] neg_hi:[0,1]")
    for X, T in R:
        A(f"v_cvt_pk_bf16_f32 v{T[1]}, v{T[1]}, v{T[1]}")
        for j in range(4, 8, 2): pk(A, "v_pk_add_f32", X[j], X[j], T[2], None, "op_sel_hi:[1,0] neg_lo:[0,1] neg_hi:[0,1]")
    for X, T in R:
        A(f"v_lshlrev_b32 v{T[1]}, 16, v{T[1]}")
    for X, T in R:
        A(f"v_sqrt_f32 v{T[0]}, v{T[1]}")
        round_multi(A, X[:4], T[4:6], smask)
    for X, T in R:
        A(f"v_cvt_pk_bf16_f32 v{T[0]}, v{T[0]}, v{T[0]}")
    for X, T in R:
        A(f"v_lshlrev_b32 v{T[0]}, 16, v{T[0]}")
    for X, T in R:
        A(f"v_rcp_f32 v{T[2]}, v{T[0]}")
        round_multi(A, X[4:], T[4:6], smask)
    if FLN == 2:
        for X, T in R:
            for j in range(0, 8, 2): pk(A, "v_pk_mul_f32", X[j], X[j], T[2], None, "op_sel_hi:[1,0]")
    else:
        for X, T in R:
            for h in range(2):
                js = (4 * h, 4 * h + 2)
                for k, j in enumerate(js): pk(A, "v_pk_mul_f32", T[4+2*k], X[j], T[2], None, "op_sel_hi:[1,0]")
                for k, j in enumerate(js): pk(A, "v_pk_fma_f32", X[j], T[4+2*k], T[0], X[j], "op_sel_hi:[1,0,1] neg_lo:[1,0,0] neg_hi:[1,0,0]")
                for k, j in enumerate(js): pk(A, "v_pk_fma_f32", X[j], X[j], T[2], T[4+2*k], "op_sel_hi:[1,0,1]")
    if final_round:
        for X, T in R: round_multi(A, X, T[4:8], smask)
def ln_rows(A, R, smask, final_round=True):
    return ln_fast(A, R, smask, final_round) if FLN else _ln_slow(A, R, smask)

class Cap:
    def __init__(self, A): self.A = A
    def __enter__(self):
        self.sv = self.A.lines; self.A.lines = []; return self
    def __exit__(self, *a):
        self.out = self.A.lines; self.A.lines = self.sv

def interleave(A, mf, fill):
    n = len(mf); k = 0
    for i, m in enumerate(mf):
        A(m)
        upto = (len(fill) * (i + 1) + n - 1) // n
        while upto < len(fill) and upto > 0 and not (fill[upto - 1].lstrip().startswith(("buffer_", "ds_", "v_", "s_waitcnt")) or fill[upto - 1].lstrip().startswith(f"s_add_u32 s{S_WOFF}")): upto += 1
        A.lines.extend(fill[k:upto]); k = max(k, upto)

class Mega:
    def __init__(self, A):
        self.A = A
        self.vm = Cnt(A, "vmcnt", 63); self.lg = Cnt(A, "lgkmcnt", 15)
    def stamp(self, idx):
        if HD:
            hmap = {0: 2, 3: 3, 4: 4, 7: 5, 8: 6, 11: 7, 12: 8, 15: 9, 16: 10, 19: 11, 20: 12, 21: 13, 22: 14}
            if int(os.environ.get('HK', '0')): hmap = {0: 2, 22: 14}
            if idx not in hmap: return
            A = self.A
            lab = A.newlabel("hd")
            A("s_waitcnt lgkmcnt(0)")
            A("s_load_dwordx2 s[76:77], s[0:1], 104")
            A("s_memrealtime s[70:71]")
            A("s_waitcnt lgkmcnt(0)")
            A("s_mov_b32 s72, s76")
            A("s_mov_b32 s73, s77")
            A("s_mov_b32 s74, 256")
            A("s_mov_b32 s75, 0x00020000")
            A(f"s_lshl_b32 s76, s{S_WAVE}, 8")
            A("s_or_b32 s76, s76, s2")
            A(f"s_cmp_lg_u32 s76, {HD}")
            A(f"s_cbranch_scc1 {lab}")
            A("v_mov_b32 v2, s70")
            A("v_mov_b32 v3, 0")
            A(f"buffer_store_dword v2, v3, s[72:75], 0 offen offset:{4*hmap[idx]}")
            A.label(lab)
            self.lg.ops = []
            return
        if not MT: return
        A = self.A
        A("s_waitcnt lgkmcnt(0)")
        A("s_memrealtime s[70:71]")
        make_srd(A, 72, P_WS, WS_DBG, 32 * MB)
        A("s_lshl_b32 s76, s2, 3")
        A(f"s_add_u32 s76, s76, s{S_WAVE}")
        A("s_lshl_b32 s76, s76, 7")
        A("s_waitcnt lgkmcnt(0)")
        A("v_mov_b32 v2, s70")
        A("v_mov_b32 v3, 0")
        A(f"buffer_store_dword v2, v3, s[72:75], s76 offen offset:{4*idx}")
        self.vm.issue("stamp"); self.lg.ops = []
    def flag_srd(self, stage):
        make_srd(self.A, 92, P_WS, WS_FLAG + stage * 32 * 256, 32 * 256)
    def transition(self, stage, early=None):
        A = self.A
        self.stamp(1 + 4 * stage)
        self.vm.ops = []
        if ONE and stage == 0:
            make_srd(A, 80, P_WS, FQ_, 32 * 1024)
            make_srd(A, 12, P_WS, WS_MOD, 4 * MODP)
            A(f"s_cmp_lg_u32 s{S_WAVE}, {0 if W0M else 7}")
            A("s_cbranch_scc1 .Lw0m_end")
            A(f"s_lshl_b32 s98, s{S_M}, 10")
            A("v_add_u32 v2, 64, v1")
            A("v_min_u32 v2, 119, v2")
            A("v_lshlrev_b32 v2, 3, v2")
            A("v_lshlrev_b32 v3, 3, v1")
            self.poll64(".Lplq", [(3, 80, "s98"), (2, 80, "s98")])
            if W0M:
                A("v_lshlrev_b32 v10, 5, v1")
                for part in range(2):
                    for q, idx in enumerate((2, 4, 3)):
                        d = 24 + 8 * q + 88 * part
                        A(f"s_movk_i32 s{S_TMP}, {idx*2048 + part*MODP}")
                        A(f"buffer_load_dwordx4 v[{d}:{d+3}], v10, s[12:15], s{S_TMP} offen")
                        A(f"buffer_load_dwordx4 v[{d+4}:{d+7}], v10, s[12:15], s{S_TMP} offen offset:16")
                A("v_add_u32 v10, 81920, v10")
                A("s_waitcnt vmcnt(0)")
                for j in range(0, 24, 2): pk(A, "v_pk_add_f32", 24 + j, 24 + j, 112 + j)
                for q in range(3): round_multi(A, list(range(24 + 8*q, 32 + 8*q)), [56, 57, 58, 59], SM)
                for j in range(8): A(f"v_add_f32 v{32+j}, 1.0, v{32+j}")
                round_multi(A, list(range(32, 40)), [56, 57, 58, 59], SM)
                for q, off in enumerate((0, 16384, 49152)):
                    A(f"ds_write_b128 v10, v[{24+8*q}:{27+8*q}] offset:{off}")
                    A(f"ds_write_b128 v10, v[{28+8*q}:{31+8*q}] offset:{off+16}")
            A.label(".Lw0m_end")
            if PRG:
                A(f"s_cmp_lg_u32 s{S_WAVE}, 1")
                A("s_cbranch_scc1 .Lw1m_end")
                A(f"s_lshl_b32 s{S_TMP}, 1, s{S_J}")
                A(f"v_mov_b32 v2, {MSK}")
                A(f"v_mov_b32 v3, s{S_TMP}")
                A("ds_write_b32 v2, v3")
                A.label(".Lw1m_end")
        if early and NE:
            A(f"s_cmp_ge_u32 s{S_WAVE}, 4")
            A(f"s_cbranch_scc1 .Ltr{stage}_h")
            early(0, NE)
            A(f"s_waitcnt vmcnt({len(self.vm.ops)})")
            A(f"s_branch .Ltr{stage}_j")
            A.label(f".Ltr{stage}_h")
            A("s_waitcnt vmcnt(0)")
            A.label(f".Ltr{stage}_j")
        else:
            A("s_waitcnt vmcnt(0)")
        self.flag_srd(stage)
        A(f"s_lshl_b32 s96, s{S_M}, 8")
        A(f"s_lshl_b32 s97, s{S_J}, {3 if ONE else 2}")
        A("s_add_u32 s97, s97, s96")
        if ONE:
            A("v_mov_b32 v246, s100")
            A("v_mov_b32 v247, s101")
        A("v_mov_b32 v2, 1")
        A("v_mov_b32 v3, s97")
        A("s_waitcnt lgkmcnt(0)")
        self.lg.ops = []
        A("s_barrier")
        A(f"s_cmp_lg_u32 s{S_WAVE}, 7")
        A(f"s_cbranch_scc1 .Lpub{stage}")
        A("s_mov_b64 exec, 1")
        A("buffer_store_dwordx2 v[246:247], v3, s[92:95], 0 offen sc1" if ONE else "buffer_store_dword v2, v3, s[92:95], 0 offen sc1")
        A("s_mov_b64 exec, -1")
        A.label(f".Lpub{stage}")
        self.stamp(1 + 4 * stage + 2)
    def poll(self, stage, nbr=False, check=True):
        A = self.A
        lab = f".Lpl{stage}"
        if check:
            A(f"s_cmp_lg_u32 s{S_WAVE}, 7")
            A(f"s_cbranch_scc1 {lab}_done")
        A("v_and_b32 v3, 7, v1")
        A(f"v_lshlrev_b32 v3, {3 if ONE else 2}, v3")
        if nbr:
            A("v_bfe_u32 v2, v1, 3, 2")
            A("v_min_u32 v2, 2, v2")
            A(f"v_add_u32 v2, s{S_M}, v2")
            A("v_max_u32 v2, 1, v2")
            A("v_min_u32 v2, 32, v2")
            A("v_subrev_u32 v2, 1, v2")
            A("v_lshl_add_u32 v3, v2, 8, v3")
        else:
            A("v_add_u32 v3, s96, v3")
        A("s_mov_b32 s98, 0")
        NP = int(os.environ.get("NPOLL", "1")); PSL = int(os.environ.get("PSL", "1"))
        if ONE:
            self.poll64(lab + "x", [(3, 92, "0")])
        elif NP == 1:
            A.label(f"{lab}_poll")
            A("buffer_load_dword v2, v3, s[92:95], 0 offen sc1")
            A("s_add_u32 s98, s98, 1")
            A("s_waitcnt vmcnt(0)")
            A("v_cmp_ne_u32 vcc, 1, v2")
            A("s_cmp_lt_u32 s98, 0x40000")
            A(f"s_cbranch_scc0 {lab}_done")
            A(f"s_cbranch_vccnz {lab}_poll")
        else:
            for i in range(NP):
                A(f"buffer_load_dword v{248+i}, v3, s[92:95], 0 offen sc1")
                if PSL and i < NP - 1: A(f"s_sleep {PSL}")
            A.label(f"{lab}_poll")
            for i in range(NP):
                A(f"s_waitcnt vmcnt({NP-1})")
                A(f"v_cmp_ne_u32 vcc, 1, v{248+i}")
                A(f"s_cbranch_vccz {lab}_done")
                A(f"buffer_load_dword v{248+i}, v3, s[92:95], 0 offen sc1")
            A("s_add_u32 s98, s98, 1")
            A("s_cmp_lt_u32 s98, 0x40000")
            A(f"s_cbranch_scc1 {lab}_poll")
        A.label(f"{lab}_done")
    def poll64(self, lab, srcs, cnt=99):
        A = self.A
        A(f"s_mov_b32 s{cnt}, 0")
        A.label(f"{lab}_poll")
        for i, (va, srd, so) in enumerate(srcs):
            A(f"buffer_load_dwordx2 v[{248+2*i}:{249+2*i}], v{va}, s[{srd}:{srd+3}], {so} offen sc1")
        A(f"s_add_u32 s{cnt}, s{cnt}, 1")
        A("s_waitcnt vmcnt(0)")
        for i in range(len(srcs)):
            A(f"v_xor_b32 v{248+2*i}, s100, v{248+2*i}")
            A(f"v_xor_b32 v{249+2*i}, s101, v{249+2*i}")
        A("v_or_b32 v248, v248, v249")
        for i in range(1, len(srcs)):
            A(f"v_or3_b32 v248, v248, v{248+2*i}, v{249+2*i}")
        A("v_cmp_ne_u32 vcc, 0, v248")
        A(f"s_cmp_lt_u32 s{cnt}, 0x40000")
        A(f"s_cbranch_scc0 {lab}_done")
        A(f"s_cbranch_vccnz {lab}_poll")
        A.label(f"{lab}_done")
    def pst(self, idx):
        if not PT: return
        A = self.A
        A("s_waitcnt lgkmcnt(0)")
        A("s_memrealtime s[38:39]")
        A("s_waitcnt lgkmcnt(0)")
        A(f"v_writelane_b32 v253, s38, {idx}")
    def pst_flush(self):
        if not PT: return
        A = self.A
        make_srd(A, 36, 68, WS_DBG + 16 * MB, 1 * MB)
        A("s_lshl_b32 s57, s2, 3")
        A("s_add_u32 s57, s57, s40")
        A("s_lshl_b32 s57, s57, 6")
        A("v_lshlrev_b32 v2, 2, v1")
        A("s_mov_b64 exec, 0xffff")
        A("buffer_store_dword v253, v2, s[36:39], s57 offen")
        A("s_mov_b64 exec, -1")
    def pro_pre(self):
        A = self.A
        self.pst(0)
        A("s_load_dwordx2 s[4:5], s[0:1], 0")
        A("s_load_dwordx4 s[72:75], s[0:1], 80")
        A("s_load_dwordx2 s[6:7], s[0:1], 104")
        A("s_memrealtime s[70:71]")
        if int(os.environ.get("CPF", "1")):
            A("s_getpc_b64 s[76:77]")
            A.label(".Lpc0")
            A("s_mov_b32 s78, .Lcode_end-.Lpc0")
            A("s_mov_b32 s79, 0x00020000")
            A("s_lshr_b32 s3, s2, 3")
            A("s_mul_i32 s3, s3, 2304")
            A("v_lshlrev_b32 v2, 6, v0")
            A("v_cmp_gt_u32 vcc, 36, v0")
            A("s_and_b64 exec, exec, vcc")
            A("buffer_load_dword v254, v2, s[76:79], s3 offen")
            A("s_mov_b64 exec, -1")
    def pro_a(self):
        A = self.A
        W = K1.S_WAVE; M_ = K1.S_M; G_ = K1.S_G
        self.pst(1)
        make_srd(A, 76, 72, 0, 1024)
        make_srd(A, 80, 74, 0, 512 * 6144)
        make_srd(A, 84, 68, WS_MOD, 3072 * 4)
        A("s_movk_i32 s3, 6144")
        A("s_mov_b32 s59, s2")
        A("s_cmp_lt_u32 s2, 96")
        A("s_cbranch_scc1 .Lpa_mod")
        make_srd(A, 80, 96, 0, 512 * 3584)
        make_srd(A, 84, 68, WS_CS, 1792 * 4)
        A("s_movk_i32 s3, 3584")
        A("s_sub_u32 s59, s2, 96")
        A.label(".Lpa_mod")
        A("s_cmp_ge_u32 s2, 152")
        A("s_cbranch_scc1 .Lpa_nob")
        A("v_and_b32 v2, 3, v0")
        A("v_lshrrev_b32 v3, 2, v0")
        A("v_mul_lo_u32 v4, v3, s3")
        A("v_lshl_add_u32 v4, v2, 4, v4")
        A("v_lshlrev_b32 v5, 1, v3")
        A("s_lshl_b32 s58, s59, 6")
        A("s_lshl_b32 s3, s3, 7")
        for i in range(4):
            A(f"buffer_load_dwordx4 v[{72+4*i}:{75+4*i}], v4, s[80:83], s58 offen")
            if i < 3: A("s_add_u32 s58, s58, s3")
        for i in range(4):
            A(f"buffer_load_ushort v{64+i}, v5, s[76:79], 0 offen offset:{i*256}")
        A.label(".Lpa_nob")
        make_srd(A, 88, 4, 0, 2 * MB)
        A(f"s_lshl_b32 s3, s{M_}, 3")
        A(f"s_add_u32 s3, s3, s{G_}")
        A("s_lshl_b32 s3, s3, 3")
        A(f"s_add_u32 s3, s3, s{W}")
        A("s_lshl_b32 s3, s3, 10")
        A("buffer_load_dwordx4 v[68:71], v12, s[88:91], s3 offen")
        make_srd(A, 76, 6, 0, 256)
        A(f"s_or_b32 s58, s2, s{W}")
        A("s_cmp_lg_u32 s58, 0")
        A("s_cbranch_scc1 .Lpa_non")
        A("s_or_b32 s70, s70, 1")
        A("v_mov_b32 v2, s70")
        A("v_mov_b32 v3, s71")
        A("v_mov_b32 v4, 0")
        A("s_mov_b64 exec, 1")
        A("buffer_store_dwordx2 v[2:3], v4, s[76:79], 0 offen sc1")
        A("s_mov_b64 exec, -1")
        A.label(".Lpa_non")
        if WQE: self.wqpf()
    def wqpf(self):
        A = self.A; W = K1.S_WAVE
        SQ = 88 if WQE else K1.S_WQ
        if WQE: make_srd(A, 88, 64, 0, 4 * MB)
        A("v_lshrrev_b32 v2, 4, v0")
        A("v_and_b32 v3, 15, v0")
        A("v_lshlrev_b32 v3, 6, v3")
        A("v_lshl_add_u32 v2, v2, 13, v3")
        A("s_lshr_b32 s58, s2, 3")
        A("s_lshl_b32 s58, s58, 17")
        A("s_and_b32 s57, s2, 7")
        A("s_lshl_b32 s57, s57, 10")
        A("s_add_u32 s58, s58, s57")
        A(f"s_cmp_ge_u32 s{W}, 4")
        A("s_cbranch_scc1 .Lpa_nopf")
        A(f"buffer_load_dword v255, v2, s[{SQ}:{SQ+3}], s58 offen")
        A.label(".Lpa_nopf")
    def pro_b(self, nyoung, early, w7):
        A = self.A
        W = K1.S_WAVE; M_ = K1.S_M; G_ = K1.S_G; KM = f"s{K1.S_MASK}"
        NY = nyoung
        ACC = list(range(96, 104)); T = list(range(104, 112)); U = list(range(112, 120)); C = [64, 65, 66, 67]
        make_srd(A, 88, 68, WS_XN, 2 * MB)
        self.pst(2)
        A("s_waitcnt vmcnt(0)")
        self.pst(3)
        if not WQE: self.wqpf()
        A("s_cmp_ge_u32 s2, 152")
        A("s_cbranch_scc1 .Lpb_ln")
        A("s_cmp_lt_u32 s2, 96")
        A("s_cbranch_scc1 .Lpb_silu")
        for c in C: A(f"v_mov_b32 v{c}, 1.0")
        A("s_branch .Lpb_fma")
        A.label(".Lpb_silu")
        for i, c in enumerate(C): A(f"v_lshlrev_b32 v{c}, 16, v{c}")
        for i, c in enumerate(C): A(f"v_mul_f32 v{T[i]}, {fhex(-LOG2E)}, v{c}")
        for i, c in enumerate(C): A(f"v_exp_f32 v{T[i]}, v{T[i]}")
        for i, c in enumerate(C): A(f"v_add_f32 v{T[i]}, 1.0, v{T[i]}")
        for i, c in enumerate(C): A(f"v_rcp_f32 v{U[i]}, v{T[i]}")
        for i, c in enumerate(C): A(f"v_mul_f32 v{U[4+i]}, v{c}, v{U[i]}")
        for i, c in enumerate(C): A(f"v_fma_f32 v{T[i]}, -v{U[4+i]}, v{T[i]}, v{c}")
        for i, c in enumerate(C): A(f"v_fma_f32 v{c}, v{T[i]}, v{U[i]}, v{U[4+i]}")
        for i, c in enumerate(C): A(f"v_cvt_pk_bf16_f32 v{T[i]}, v{c}, v{c}")
        for i, c in enumerate(C): A(f"v_lshlrev_b32 v{c}, 16, v{T[i]}")
        A.label(".Lpb_fma")
        for i in range(4):
            for j in range(4):
                w = 72 + 4 * i + j
                A(f"v_lshlrev_b32 v{T[2*j]}, 16, v{w}")
                A(f"v_and_b32 v{T[2*j+1]}, {KM}, v{w}")
            for j in range(8):
                A(f"v_mul_f32 v{ACC[j]}, v{T[j]}, v{C[i]}" if i == 0 else f"v_fmac_f32 v{ACC[j]}, v{T[j]}, v{C[i]}")
        A("s_nop 1")
        for dpp in ("row_ror:8", "row_ror:4"):
            for v in ACC: A(f"v_add_f32_dpp v{v}, v{v}, v{v} {dpp} row_mask:0xf bank_mask:0xf")
        A("v_and_b32 v2, 3, v1")
        A("v_lshrrev_b32 v3, 4, v0")
        A("v_lshlrev_b32 v3, 7, v3")
        A("v_lshl_add_u32 v3, v2, 5, v3")
        A("v_and_b32 v2, 12, v1")
        A("v_cmp_eq_u32 vcc, 0, v2")
        A("s_and_saveexec_b64 s[58:59], vcc") if False else None
        A("s_mov_b64 s[4:5], exec")
        A("s_and_b64 exec, exec, vcc")
        A(f"ds_write_b128 v3, v[{ACC[0]}:{ACC[3]}]")
        A(f"ds_write_b128 v3, v[{ACC[4]}:{ACC[7]}] offset:16")
        A("s_mov_b64 exec, -1")
        A("s_waitcnt lgkmcnt(0)")
        A("s_barrier")
        self.pst(4)
        A(f"s_cmp_lg_u32 s{W}, 7")
        A("s_cbranch_scc1 .Lpb_ln")
        A("v_and_b32 v2, 31, v1")
        A("v_lshlrev_b32 v2, 2, v2")
        A("v_lshrrev_b32 v3, 5, v1")
        A("v_lshl_add_u32 v3, v3, 11, v2")
        for k in range(16): A(f"ds_read_b32 v{120+k}, v3 offset:{k*128}")
        for k in range(8):
            A(f"s_waitcnt lgkmcnt({14-2*k})")
            A(f"v_add_f32 v{120+2*k}, v{120+2*k}, v{121+2*k}")
        for k in range(4): A(f"v_add_f32 v{120+4*k}, v{120+4*k}, v{122+4*k}")
        A("v_add_f32 v120, v120, v124")
        A("v_add_f32 v128, v128, v132")
        A("v_add_f32 v120, v120, v128")
        A("v_mov_b32 v121, v120")
        A("s_nop 1")
        A("v_permlane32_swap_b32 v120, v121")
        A("s_nop 1")
        A("v_add_f32 v120, v120, v121")
        A("s_cmp_ge_u32 s2, 96")
        A("s_cbranch_scc1 .Lpb_nornd")
        round_bf16_1(A, 120, 121)
        A.label(".Lpb_nornd")
        A("s_lshl_b32 s58, s59, 7")
        A("s_mov_b32 exec_hi, 0")
        A("buffer_store_dword v120, v2, s[84:87], s58 offen sc1")
        A("s_mov_b64 exec, -1")
        A.label(".Lpb_ln")
        A("v_mov_b32 v2, 0")
        A(f"s_cmp_lg_u32 s{W}, 7")
        A("s_cbranch_scc1 .Lpb_ln2")
        A("s_mov_b64 exec, 1")
        A("buffer_load_dwordx2 v[136:137], v2, s[76:79], 0 offen sc1")
        A("s_mov_b64 exec, -1")
        A.label(".Lpb_ln2")
        self.pst(5)
        X = list(range(96, 104)); TT = list(range(104, 116))
        for j in range(4):
            A(f"v_lshlrev_b32 v{X[2*j]}, 16, v{68+j}")
            A(f"v_and_b32 v{X[2*j+1]}, {KM}, v{68+j}")
        ln_rows(A, [(X, TT)], KM)
        pack8(A, X, 68)
        A("buffer_store_dwordx4 v[68:71], v12, s[88:91], s3 offen sc1")
        make_srd(A, 80, 68, FP, 32 * 512)
        self.pst(6)
        A(f"s_cmp_lg_u32 s{W}, 7")
        A("s_cbranch_scc1 .Lpb_w")
        A("s_waitcnt vmcnt(1)")
        A("s_mov_b32 s57, 0")
        A.label(".Lpb_nl")
        A("v_readfirstlane_b32 s100, v136")
        A("v_readfirstlane_b32 s101, v137")
        A("s_add_u32 s57, s57, 1")
        A("s_cmp_lg_u32 s100, 0")
        A("s_cbranch_scc1 .Lpb_nd")
        A("s_cmp_lt_u32 s57, 0x40000")
        A("s_cbranch_scc0 .Lpb_nd")
        A("s_mov_b64 exec, 1")
        A("buffer_load_dwordx2 v[136:137], v2, s[76:79], 0 offen sc1")
        A("s_mov_b64 exec, -1")
        A("s_waitcnt vmcnt(0)")
        A("s_branch .Lpb_nl")
        A.label(".Lpb_nd")
        A("v_mov_b32 v136, s100")
        A("v_mov_b32 v137, s101")
        self.pst(7)
        A("s_cmp_ge_u32 s2, 152")
        A("s_cbranch_scc1 .Lpb_w")
        A("v_lshlrev_b32 v3, 9, v1")
        A("s_lshl_b32 s58, s2, 3")
        A("s_cmp_lt_u32 s2, 32")
        A("s_cbranch_scc1 .Lpb_crit")
        make_srd(A, 80, 68, FQ_, 32 * 1024)
        A("v_lshlrev_b32 v3, 10, v1")
        A("s_sub_u32 s58, s58, 256")
        A.label(".Lpb_crit")
        A("s_mov_b32 exec_hi, 0")
        A("buffer_store_dwordx2 v[136:137], v3, s[80:83], s58 offen sc1")
        A("s_mov_b64 exec, -1")
        make_srd(A, 80, 68, FP, 32 * 512)
        A.label(".Lpb_w")
        A("s_waitcnt vmcnt(1)") if False else None
        A("s_waitcnt vmcnt(0)")
        self.pst(8)
        A("s_barrier")
        self.pst(9)
        A(f"s_cmp_lg_u32 s{W}, 7")
        A("s_cbranch_scc1 .Lpb_early")
        A(f"s_lshl_b32 s58, s{M_}, 9")
        A(f"s_lshl_b32 s57, s{G_}, 3")
        A("s_add_u32 s57, s57, 256")
        A("v_mov_b32 v3, s57")
        A("s_mov_b64 exec, 1")
        A("buffer_store_dwordx2 v[136:137], v3, s[80:83], s58 offen sc1")
        A("s_mov_b64 exec, -1")
        A("v_min_u32 v3, 39, v1")
        A("v_lshlrev_b32 v3, 3, v3")
        sv99 = None
        w7()
        self.poll64(".Lplp", [(3, 80, "s58")], cnt=57)
        A("s_branch .Lpb_done")
        A.label(".Lpb_early")
        early()
        A.label(".Lpb_done")
        A("s_barrier")
        self.pst(10)
        self.pst_flush()
    def p2_a(self):
        A = self.A
        W = K1.S_WAVE; M_ = K1.S_M; G_ = K1.S_G
        SCR = K1.STG + 16384
        A("s_waitcnt lgkmcnt(0)")
        self.pst(1)
        make_srd(A, 76, 72, 0, 1024)
        make_srd(A, 80, 74, 0, 512 * 6144)
        make_srd(A, 84, 68, WS_MOD, 4 * MODP)
        make_srd(A, 88, 4, 0, 2 * MB)
        A("s_movk_i32 s3, 6144")
        A("s_and_b32 s4, s2, 15")
        A("s_lshr_b32 s5, s2, 4")
        A("s_lshl_b32 s57, s5, 8")
        A("s_cmp_lt_u32 s2, 64")
        A("s_cbranch_scc1 .Lp2a_dec")
        A("s_sub_u32 s4, s2, 64")
        A("s_and_b32 s5, s4, 1")
        A("s_lshr_b32 s4, s4, 1")
        A("s_lshl_b32 s57, s5, 9")
        A("s_add_u32 s4, s4, 16")
        A("s_cmp_lt_u32 s4, 48")
        A("s_cbranch_scc1 .Lp2a_dec")
        A("s_sub_u32 s4, s4, 48")
        make_srd(A, 80, 96, 0, 512 * 3584)
        make_srd(A, 84, 68, WS_CS, 2 * CSP)
        A("s_movk_i32 s3, 3584")
        A.label(".Lp2a_dec")
        A("s_lshr_b32 s58, s57, 1")
        A("s_mul_i32 s58, s58, s3")
        A("s_lshl_b32 s59, s4, 7")
        A("s_add_u32 s58, s58, s59")
        A("s_lshl_b32 s59, s4, 8")
        A(f"s_movk_i32 s4, {MODP}")
        A("s_cmp_eq_u32 s3, 3584")
        A(f"s_cselect_b32 s4, {CSP}, s4")
        A("s_mul_i32 s4, s4, s5")
        A("s_add_u32 s59, s59, s4")
        A("v_and_b32 v2, 7, v0")
        A("v_bfe_u32 v3, v0, 3, 5")
        A("v_mul_lo_u32 v60, v3, s3")
        A("v_lshl_add_u32 v60, v2, 4, v60")
        A("v_lshlrev_b32 v61, 1, v3")
        A("s_lshl_b32 s70, s3, 5") if False else None
        A("s_lshl_b32 s5, s3, 5")
        A(f"s_cmp_ge_u32 s{W}, 4")
        A("s_cbranch_scc1 .Lp2a_end")
        A("s_cmp_ge_u32 s2, 64")
        A("s_cbranch_scc1 .Lp2a_x")
        self.p2_tload(0)
        A.label(".Lp2a_x")
        A(f"s_lshl_b32 s3, s{M_}, 3")
        A(f"s_add_u32 s3, s3, s{G_}")
        A("s_lshl_b32 s3, s3, 2")
        A(f"s_add_u32 s3, s3, s{W}")
        A("s_lshl_b32 s3, s3, 11")
        A("buffer_load_dwordx4 v[88:91], v12, s[88:91], s3 offen")
        A("buffer_load_dwordx4 v[92:95], v12, s[88:91], s3 offen offset:1024")
        make_srd(A, 88, 6, 0, 256)
        A(f"s_or_b32 s4, s2, s{W}")
        A("s_cmp_lg_u32 s4, 0")
        A("s_cbranch_scc1 .Lp2a_non")
        A("s_or_b32 s70, s70, 1")
        A("v_mov_b32 v2, s70")
        A("v_mov_b32 v3, s71")
        A("v_mov_b32 v4, 0")
        A("s_mov_b64 exec, 1")
        A("buffer_store_dwordx2 v[2:3], v4, s[88:91], 0 offen sc1")
        A("s_mov_b64 exec, -1")
        A.label(".Lp2a_non")
        A(f"v_mov_b32 v2, {SCR + 8192}")
        A("v_mov_b32 v4, 0")
        A("v_mov_b32 v5, 0")
        A("ds_write_b64 v2, v[4:5]")
        A("s_branch .Lp2a_e2")
        A.label(".Lp2a_end")
        if WQF == 1: self.p2_wq()
        if WQF == 2:
            A("s_cmp_lt_u32 s2, 64")
            A("s_cbranch_scc1 .Lp2a_e2") if False else None
            A("s_sleep 4")
            self.p2_wq()
        if TLW:
            A("v_lshlrev_b32 v2, 21, v1")
            A(f"v_add_u32 v2, {(2 << 20) - 128}, v2")
            make_srd(A, 88, 68, 0, 48 * MB if TLW >= 2 else 4 * MB)
            A(f"s_cmp_lg_u32 s{W}, 4")
            A("s_cbranch_scc1 .Lp2a_e2")
            A("buffer_load_dword v252, v2, s[88:91], 0 offen sc1")
            if TLW == 1:
                A(f"s_mov_b32 s4, {WS_FLAG}")
                make_srd(A, 88, 68, 0, WS_FLAG + 2 * MB)
                A("buffer_load_dword v252, v2, s[88:91], s4 offen sc1")
        A.label(".Lp2a_e2")
        if EB:
            A("s_waitcnt lgkmcnt(0)")
            A("s_barrier")
            A(f"s_cmp_lt_u32 s{W}, 4")
            A("s_cbranch_scc1 .Lp2a_e3")
            self.p2_bulk1()
            A.label(".Lp2a_e3")
        A("s_mov_b32 s70, s57")
        A("s_mov_b32 s71, s58")
    def p2_bulk1(self):
        A = self.A; W = K1.S_WAVE
        A("s_sub_u32 s4, s2, 64")
        A("s_cmp_ge_u32 s4, 120")
        A("s_cbranch_scc1 .Lp2_l1")
        self.p2_tload(0); self.p2_tload(1)
        A.label(".Lp2_l1")
        if EB: make_srd(A, K1.S_WQ, 64, 0, 4 * MB)
        if DLY == 1 and not EB:
            A("s_cmp_ge_u32 s2, 64")
            A("s_cbranch_scc1 .Lp2_l3")
        if DLY and not EB:
            self.lds_spin(".Lp2_sd", 4, 4, True)
            A.label(".Lp2_l3")
        if not WQF: self.p2_wq()
    def p2_wq(self):
        A = self.A; W = K1.S_WAVE
        if WQF: make_srd(A, K1.S_WQ, 64, 0, 4 * MB)
        W128 = int(os.environ.get("W128", "0"))
        A("v_and_b32 v4, 255, v0")
        A(f"v_lshrrev_b32 v2, {3 if W128 else 4}, v4")
        A(f"v_and_b32 v3, {7 if W128 else 15}, v4")
        A(f"v_lshlrev_b32 v3, {7 if W128 else 6}, v3")
        A("v_lshl_add_u32 v2, v2, 13, v3")
        A("s_lshr_b32 s36, s2, 3")
        A("s_lshl_b32 s36, s36, 17")
        A("s_and_b32 s37, s2, 7")
        A("s_lshl_b32 s37, s37, 10")
        A("s_add_u32 s36, s36, s37")
        if W128:
            A(f"s_cmp_ge_u32 s{W}, 6")
            A("s_cbranch_scc1 .Lp2_l2")
        A(f"buffer_load_dword v255, v2, s[{K1.S_WQ}:{K1.S_WQ+3}], s36 offen")
        if W128: A.label(".Lp2_l2")
    def p2_tload(self, b):
        A = self.A
        wd = (72, 140)[b]; cd = (64, 156)[b]
        for i in range(4):
            A(f"buffer_load_dwordx4 v[{wd+4*i}:{wd+4*i+3}], v60, s[80:83], s58 offen")
            A("s_add_u32 s58, s58, s5")
        for i in range(4):
            A(f"buffer_load_ushort v{cd+i}, v61, s[76:79], s57 offen offset:{b*256 + i*64}")
    def lds_spin(self, lab, off, target, sleep=False):
        A = self.A
        A.label(lab)
        if sleep: A("s_sleep 2")
        A(f"ds_read_b32 v3, v9 offset:{off}")
        A("s_waitcnt lgkmcnt(0)")
        A("v_readfirstlane_b32 s4, v3")
        A(f"s_cmp_lt_u32 s4, {target}")
        A(f"s_cbranch_scc1 {lab}")
    def lds_inc(self, off):
        A = self.A
        A("v_mov_b32 v3, 1")
        A("s_mov_b64 exec, 1")
        A(f"ds_add_u32 v9, v3 offset:{off}")
        A("s_mov_b64 exec, -1")
    def p2_gemv(self, sfx, nb, maybe_ones, col=3):
        A = self.A
        W = K1.S_WAVE; KM = f"s{K1.S_MASK}"; SCR = K1.STG + 16384
        ACC = list(range(96, 104)); T = list(range(104, 112)); U = list(range(112, 128))
        C = [64, 65, 66, 67] + ([156, 157, 158, 159] if nb == 2 else [])
        n = len(C)
        if maybe_ones:
            A("s_cmp_lt_u32 s2, 128")
            A(f"s_cbranch_scc1 .Lp2_silu{sfx}")
            for c in C: A(f"v_mov_b32 v{c}, 1.0")
            A(f"s_branch .Lp2_fma{sfx}")
            A.label(f".Lp2_silu{sfx}")
        for i, c in enumerate(C): A(f"v_lshlrev_b32 v{c}, 16, v{c}")
        for i, c in enumerate(C): A(f"v_mul_f32 v{T[i]}, {fhex(-LOG2E)}, v{c}")
        for i, c in enumerate(C): A(f"v_exp_f32 v{T[i]}, v{T[i]}")
        for i, c in enumerate(C): A(f"v_add_f32 v{T[i]}, 1.0, v{T[i]}")
        for i, c in enumerate(C): A(f"v_rcp_f32 v{U[i]}, v{T[i]}")
        for i, c in enumerate(C): A(f"v_mul_f32 v{U[8+i]}, v{c}, v{U[i]}")
        for i, c in enumerate(C): A(f"v_fma_f32 v{T[i]}, -v{U[8+i]}, v{T[i]}, v{c}")
        for i, c in enumerate(C): A(f"v_fma_f32 v{c}, v{T[i]}, v{U[i]}, v{U[8+i]}")
        for i, c in enumerate(C): A(f"v_cvt_pk_bf16_f32 v{T[i]}, v{c}, v{c}")
        for i, c in enumerate(C): A(f"v_lshlrev_b32 v{c}, 16, v{T[i]}")
        if maybe_ones: A.label(f".Lp2_fma{sfx}")
        for i in range(n):
            for j in range(4):
                w = (72, 140)[i >> 2] + 4 * (i & 3) + j
                A(f"v_lshlrev_b32 v{T[2*j]}, 16, v{w}")
                A(f"v_and_b32 v{T[2*j+1]}, {KM}, v{w}")
            for j in range(8):
                A(f"v_mul_f32 v{ACC[j]}, v{T[j]}, v{C[i]}" if i == 0 else f"v_fmac_f32 v{ACC[j]}, v{T[j]}, v{C[i]}")
        A("v_and_b32 v2, 7, v1")
        A("v_bfe_u32 v3, v0, 4, 4")
        for v in ACC: A(f"v_add_f32_dpp v{v}, v{v}, v{v} row_ror:8 row_mask:0xf bank_mask:0xf")
        A("v_lshlrev_b32 v3, 8, v3")
        A("v_lshl_add_u32 v3, v2, 5, v3")
        A(f"v_add_u32 v3, {SCR}, v3")
        A("v_and_b32 v2, 8, v1")
        A("v_cmp_eq_u32 vcc, 0, v2")
        A("s_and_b64 exec, exec, vcc")
        A(f"ds_write_b128 v3, v[{ACC[0]}:{ACC[3]}]")
        A(f"ds_write_b128 v3, v[{ACC[4]}:{ACC[7]}] offset:16")
        A("s_mov_b64 exec, -1")
        A("s_waitcnt lgkmcnt(0)")
        self.lds_inc(0)
        A(f"s_cmp_lg_u32 s{W}, {col}")
        A(f"s_cbranch_scc1 .Lp2_gd{sfx}")
        self.lds_spin(f".Lp2_sp{sfx}", 0, 4)
        A("v_lshlrev_b32 v2, 2, v1")
        A(f"v_add_u32 v3, {SCR}, v2")
        for k in range(16): A(f"ds_read_b32 v{104+k}, v3 offset:{k*256}")
        for k in range(8):
            A(f"s_waitcnt lgkmcnt({14-2*k})")
            A(f"v_add_f32 v{104+2*k}, v{104+2*k}, v{105+2*k}")
        for k in range(4): A(f"v_add_f32 v{104+4*k}, v{104+4*k}, v{106+4*k}")
        A("v_add_f32 v104, v104, v108")
        A("v_add_f32 v112, v112, v116")
        A("v_add_f32 v68, v104, v112")
        A("buffer_store_dword v68, v2, s[84:87], s59 offen sc1")
        A.label(f".Lp2_gd{sfx}")
    def p2_ln(self):
        A = self.A; KM = f"s{K1.S_MASK}"
        X0 = list(range(96, 104)); X1 = list(range(120, 128)); T0 = list(range(104, 116)); T1 = list(range(128, 140))
        for r, X in enumerate((X0, X1)):
            for j in range(4):
                A(f"v_lshlrev_b32 v{X[2*j]}, 16, v{88+4*r+j}")
                A(f"v_and_b32 v{X[2*j+1]}, {KM}, v{88+4*r+j}")
        ln_rows(A, [(X0, T0), (X1, T1)], KM, False)
        pack8(A, X0, 88); pack8(A, X1, 92)
        A(f"buffer_store_dwordx4 v[88:91], v12, s[{K1.S_XN}:{K1.S_XN+3}], s3 offen sc1")
        A(f"buffer_store_dwordx4 v[92:95], v12, s[{K1.S_XN}:{K1.S_XN+3}], s3 offen offset:1024 sc1")
    def p2_nonce(self, sfx):
        A = self.A
        A("s_mov_b32 s4, 0")
        A.label(f".Lp2_nl{sfx}")
        A("v_readfirstlane_b32 s100, v70")
        A("v_readfirstlane_b32 s101, v71")
        A("s_add_u32 s4, s4, 1")
        A("s_cmp_lg_u32 s100, 0")
        A(f"s_cbranch_scc1 .Lp2_nd{sfx}")
        A("s_cmp_lt_u32 s4, 0x40000")
        A(f"s_cbranch_scc0 .Lp2_nd{sfx}")
        self.p2_nload()
        A("s_waitcnt vmcnt(0)")
        A(f"s_branch .Lp2_nl{sfx}")
        A.label(f".Lp2_nd{sfx}")
        A("v_mov_b32 v70, s100")
        A("v_mov_b32 v71, s101")
    def p2_nload(self):
        A = self.A
        A("v_mov_b32 v2, 0")
        A("s_mov_b64 exec, 1")
        A("buffer_load_dwordx2 v[70:71], v2, s[88:91], 0 offen sc1")
        A("s_mov_b64 exec, -1")
    def p2_pubtask(self, region, base):
        A = self.A
        make_srd(A, 76, 68, region, 32 * 1024)
        A("v_lshlrev_b32 v3, 10, v1")
        A(f"s_sub_u32 s4, s2, {base}")
        A("s_lshl_b32 s4, s4, 3")
        A("s_mov_b32 exec_hi, 0")
        A("buffer_store_dwordx2 v[70:71], v3, s[76:79], s4 offen sc1")
        A("s_mov_b64 exec, -1")
    def p2_pubxn(self, sfx):
        A = self.A
        self.lds_spin(f".Lp2_sx{sfx}", 4, 3)
        make_srd(A, 76, 68, FP, 32 * 1024)
        A(f"s_lshl_b32 s4, s{K1.S_M}, 10")
        A(f"s_lshl_b32 s5, s{K1.S_G}, 3")
        A("s_add_u32 s5, s5, 512")
        A("v_mov_b32 v3, s5")
        A("s_mov_b64 exec, 1")
        A("buffer_store_dwordx2 v[70:71], v3, s[76:79], s4 offen sc1")
        A("s_mov_b64 exec, -1")
    def p2_b(self, loader, cfix, xn_loads):
        A = self.A
        W = K1.S_WAVE; M_ = K1.S_M; KM = f"s{K1.S_MASK}"; SCR = K1.STG + 16384
        A(f"v_mov_b32 v9, {SCR + 8192}")
        if not EB:
            A("s_waitcnt lgkmcnt(0)")
            A("s_barrier")
        self.pst(2)
        A(f"s_cmp_lt_u32 s{W}, 4")
        A("s_cbranch_scc1 .Lp2_c")
        if not EB:
            A("s_mov_b32 s57, s70")
            A("s_mov_b32 s58, s71")
            self.p2_bulk1()
        elif DLY == 1:
            A("s_cmp_ge_u32 s2, 64")
            A("s_cbranch_scc1 .Lp2_l4")
            self.lds_spin(".Lp2_sd2", 4, 4, True)
            A.label(".Lp2_l4")
        loader()
        A("s_sub_u32 s4, s2, 64")
        A("s_cmp_ge_u32 s4, 120")
        A("s_cbranch_scc1 .Lp2_X")
        A(f"s_waitcnt vmcnt({4 * int(os.environ.get('LDE', '2'))})")
        self.p2_gemv("b", 2, True, 7)
        A("s_branch .Lp2_X")
        A.label(".Lp2_c")
        cfix()
        A("s_waitcnt vmcnt(0)")
        self.pst(3)
        A("s_cmp_ge_u32 s2, 64")
        A("s_cbranch_scc1 .Lp2_a0")
        self.p2_gemv("a", 1, False)
        A.label(".Lp2_a0")
        self.pst(4)
        A(f"s_cmp_lg_u32 s{W}, 3")
        A("s_cbranch_scc1 .Lp2_a1")
        self.p2_nload()
        A.label(".Lp2_a1")
        self.p2_ln()
        self.pst(6)
        A(f"s_cmp_lg_u32 s{W}, 3")
        A("s_cbranch_scc1 .Lp2_ack")
        A("s_waitcnt vmcnt(2)")
        self.p2_nonce("a")
        A("s_cmp_ge_u32 s2, 64")
        A("s_cbranch_scc1 .Lp2_a2")
        self.p2_pubtask(FP, 0)
        self.pst(7)
        A("s_waitcnt vmcnt(1)")
        A("s_branch .Lp2_a3")
        A.label(".Lp2_a2")
        A("s_waitcnt vmcnt(0)")
        A.label(".Lp2_a3")
        self.p2_pubxn("a")
        self.lds_inc(4)
        A("s_branch .Lp2_col")
        A.label(".Lp2_ack")
        A("s_waitcnt vmcnt(0)")
        self.lds_inc(4)
        A("s_branch .Lp2_X")
        A.label(".Lp2_col")
        make_srd(A, 76, 68, FP, 32 * 1024)
        A(f"s_lshl_b32 s5, s{M_}, 10")
        A("v_and_b32 v3, 7, v1")
        A("v_lshlrev_b32 v3, 3, v3")
        A("v_add_u32 v3, 512, v3")
        A("ds_write_b64 v9, v[70:71] offset:16")
        def parts():
            make_srd(A, 84, 68, WS_MOD, 4 * MODP)
            for i in range(4):
                for p in range(4):
                    A(f"s_movk_i32 s4, {p * MODP}") if p * MODP < 32768 else A(f"s_mov_b32 s4, {p * MODP}")
                    A(f"buffer_load_dwordx4 v[{72+16*i+4*p}:{75+16*i+4*p}], v12, s[84:87], s4 offen offset:{i*1024}")
        if MP:
            A("v_lshlrev_b32 v4, 3, v1")
            self.poll64(".Lplx", [(3, 76, "s5"), (4, 76, "s5")], cnt=4)
            parts()
        else:
            self.poll64(".Lplx", [(3, 76, "s5")], cnt=4)
        A.label(".Lp2_X")
        self.pst(8)
        A("s_waitcnt lgkmcnt(0)")
        A("s_barrier")
        self.pst(9)
        xn_loads()
        A(f"s_cmp_lg_u32 s{W}, 3")
        A("s_cbranch_scc1 .Lp2_Y")
        if not MP:
            make_srd(A, 76, 68, FP, 32 * 1024)
            A(f"s_lshl_b32 s5, s{M_}, 10")
            A("v_lshlrev_b32 v3, 3, v1")
            self.poll64(".Lplm", [(3, 76, "s5")], cnt=4)
            parts()
        A(f"v_add_u32 v3, {SCR + 4096}, v12")
        for i in range(4):
            b = 72 + 16 * i
            A(f"s_waitcnt vmcnt({12 - 4*i + (8 if MP else 0)})")
            pk(A, "v_pk_add_f32", b, b, b + 4); pk(A, "v_pk_add_f32", b + 2, b + 2, b + 6)
            pk(A, "v_pk_add_f32", b + 8, b + 8, b + 12); pk(A, "v_pk_add_f32", b + 10, b + 10, b + 14)
            pk(A, "v_pk_add_f32", b, b, b + 8); pk(A, "v_pk_add_f32", b + 2, b + 2, b + 10)
            round_multi(A, [b, b + 1, b + 2, b + 3], [b + 4, b + 5], KM)
            if i >= 2:
                for e in range(4): A(f"v_add_f32 v{b+e}, 1.0, v{b+e}")
                round_multi(A, [b, b + 1, b + 2, b + 3], [b + 4, b + 5], KM)
            A(f"ds_write_b128 v3, v[{b}:{b+3}] offset:{i*1024}")
        A("s_waitcnt lgkmcnt(0)")
        A.label(".Lp2_Y")
        A("s_barrier")
        self.pst(10)
        self.pst_flush()
        A("ds_read_b64 v[2:3], v9 offset:16")
        A("s_waitcnt lgkmcnt(0)")
        A("v_readfirstlane_b32 s100, v2")
        A("v_readfirstlane_b32 s101, v3")
    def p2_c(self):
        A = self.A
        A(f"s_cmp_lg_u32 s{K1.S_WAVE}, 7")
        A("s_cbranch_scc1 .Lp2c_end")
        A("s_sub_u32 s4, s2, 64")
        A("s_cmp_ge_u32 s4, 120")
        A("s_cbranch_scc1 .Lp2c_end")
        A("v_mov_b32 v70, s100")
        A("v_mov_b32 v71, s101")
        A("s_waitcnt vmcnt(0)")
        self.p2_pubtask(FQ_, 64)
        A.label(".Lp2c_end")
    def w_setup(self, widx, K, rowbytes, woff_code):
        A = self.A
        make_srd(A, S_W, P_W + 2 * widx, 0, K * rowbytes)
        A(f"v_lshrrev_b32 v2, 3, v{L}")
        A(f"v_and_b32 v3, 7, v{L}")
        A(f"v_lshlrev_b32 v{V_W}, 1, v2")
        A(f"v_and_b32 v{V_W}, 4, v{V_W}")
        A(f"v_xor_b32 v3, v3, v{V_W}")
        A("v_lshlrev_b32 v3, 4, v3")
        A(f"v_mul_u32_u24 v2, {rowbytes}, v2") if rowbytes < 64 else None
        A(f"s_movk_i32 s{S_WOFF}, {rowbytes}")
        A(f"v_mul_lo_u32 v2, v2, s{S_WOFF}")
        A(f"v_add_u32 v{V_W}, v2, v3")
        woff_code()
        self.wrb = rowbytes
    def dmaW(self, st, ldsoff, tag="w"):
        A = self.A
        for i in range(2):
            A(f"s_add_u32 m0, s{S_RB}, {ldsoff + i * 1024}")
            A("s_nop 0")
            A(f"buffer_load_dwordx4 v{V_W}, s[{S_W}:{S_W+3}], s{S_WOFF} offen lds")
            self.vm.issue((tag, st))
            A(f"s_add_u32 s{S_WOFF}, s{S_WOFF}, {8 * self.wrb}")
    def pf_g64(self, widx, K, WB, DW, lo=0, hi=99, rot=0):
        A = self.A
        def woff():
            A(f"s_mul_i32 s{S_WOFF}, s{S_WAVE}, {(K // 4) * 1024}")
            A(f"s_lshl_b32 s{S_TMP+11}, s{S_J}, 7")
            A(f"s_add_u32 s{S_WOFF}, s{S_WOFF}, s{S_TMP+11}")
        if lo == 0: self.w_setup(widx, K, 1024, woff)
        self.wrb = 1024
        for st in range(lo, min(DW, hi)): self.dmaW(st, WB + ((st + rot) % DW) * 2048, "wn" if PFE == 3 else "w")
    def pf_k5(self, lo=0, hi=99):
        A = self.A
        def woff():
            A(f"s_min_u32 s{S_WOFF}, s{S_J}, 6")
            A(f"s_lshl_b32 s{S_WOFF}, s{S_WOFF}, 9")
            A(f"s_lshl_b32 s{S_TMP+11}, s{S_WAVE}, 7")
            A(f"s_add_u32 s{S_WOFF}, s{S_WOFF}, s{S_TMP+11}")
        if lo == 0: self.w_setup(2, 512, 3584, woff)
        self.wrb = 3584
        for st in range(lo, min(K5D, hi)): self.dmaW(st, K5RB + st * 2048, "wn" if PFE == 3 else "w")
    def l2pf(self, widx, size):
        A = self.A
        per = size // 32
        A("s_lshr_b32 s78, s2, 3")
        A(f"s_mul_i32 s78, s78, {per}")
        make_srd(A, 80, P_W + 2 * widx, "s78", per)
        A("v_and_b32 v2, 255, v0")
        A("v_lshlrev_b32 v2, 7, v2")
        n = (per + 32767) // 32768
        for i in range(n):
            A(f"s_mov_b32 s78, {i * 32768}")
            A("buffer_load_dword v3, v2, s[80:83], s78 offen")
        return n
    def persist(self):
        A = self.A
        A(f"s_load_dwordx2 s[{P_X}:{P_X+1}], s[0:1], 0")
        A(f"s_load_dwordx2 s[{P_OUT}:{P_OUT+1}], s[0:1], 96")
        A(f"s_load_dwordx2 s[{P_WS}:{P_WS+1}], s[0:1], 112")
        A(f"s_load_dwordx8 s[{P_W}:{P_W+7}], s[0:1], 48")
        A("v_and_b32 v1, 63, v0")
        A("v_lshrrev_b32 v2, 6, v0")
        A("s_nop 0")
        A(f"v_readfirstlane_b32 s{S_WAVE}, v2")
        A(f"s_and_b32 s{S_M}, s2, 31")
        A(f"s_lshr_b32 s{S_J}, s2, 5")
        A(f"s_mov_b32 s{S_MASK}, 0xffff0000")
        A(f"s_mul_i32 s{S_RB}, s{S_WAVE}, {RG}")
        A("s_waitcnt lgkmcnt(0)")
    def kr(self):
        A = self.A; vm = self.vm
        S_X = 8; S_MOD = 12; S_PT = 16; S_X2 = 20; S_H = 24; S_HN = 28; S_H1 = 36
        PR = 64; XR = 16; GA = 24; CB = 32; SB = 40
        A("v_lshlrev_b32 v9, 4, v1")
        A("v_lshlrev_b32 v10, 5, v1")
        A(f"s_lshl_b32 s3, s{S_M}, 3")
        A(f"s_add_u32 s3, s3, s{S_J}")
        A("s_lshl_b32 s3, s3, 3")
        A(f"s_add_u32 s3, s3, s{S_WAVE}")
        A("s_lshl_b32 s3, s3, 10")
        make_srd(A, S_X, P_X, 0, 2 * MB)
        make_srd(A, S_MOD, P_WS, WS_MOD, 4 * MODP)
        A(f"buffer_load_dwordx4 v[{XR}:{XR+3}], v9, s[{S_X}:{S_X+3}], s3 offen"); vm.issue("x")
        def modloads():
            for part in range(2 if V2 else 1):
                for (dst, idx) in ((CB, 4), (GA, 2), (SB, 3)):
                    d = dst + 88 * part
                    A(f"s_movk_i32 s{S_TMP}, {idx*2048 + part*MODP}")
                    A(f"buffer_load_dwordx4 v[{d}:{d+3}], v10, s[{S_MOD}:{S_MOD+3}], s{S_TMP} offen"); vm.issue("x")
                    A(f"buffer_load_dwordx4 v[{d+4}:{d+7}], v10, s[{S_MOD}:{S_MOD+3}], s{S_TMP} offen offset:16"); vm.issue("x")
        if W0M:
            A("v_add_u32 v2, 81920, v10")
            for q, off in enumerate((0, 16384, 49152)):
                A(f"ds_read_b128 v[{24+8*q}:{27+8*q}], v2 offset:{off}")
                A(f"ds_read_b128 v[{28+8*q}:{31+8*q}], v2 offset:{off+16}")
            A("s_waitcnt lgkmcnt(0)")
        else: modloads()
        make_srd(A, S_PT, P_WS, WS_PART, 8 * 2048 * 512 * 2)
        make_srd(A, S_X2, P_WS, WS_X2, 2 * MB)
        make_srd(A, S_H, P_WS, WS_H, 2 * MB)
        make_srd(A, S_HN, P_WS, WS_HN, 2 * MB)
        make_srd(A, S_H1, P_WS, WS_H1, 2052 * 1024)
        A(f"s_cmp_ge_u32 s{S_WAVE}, 4")
        A("s_cbranch_scc1 .Lkr_nz2")
        A(f"s_lshr_b32 s{S_TMP}, s{S_WAVE}, 1")
        A(f"s_mul_i32 s{S_TMP}, s{S_TMP}, 31")
        A(f"s_cmp_lg_u32 s2, s{S_TMP}")
        A("s_cbranch_scc1 .Lkr_nz")
        A(f"s_lshl_b32 s{S_TMP}, s{S_WAVE}, 10")
        A(f"s_add_u32 s{S_TMP+1}, s{S_TMP}, {2048*1024}")
        A(f"s_cmp_lt_u32 s{S_WAVE}, 2")
        A(f"s_cselect_b32 s{S_TMP}, s{S_TMP}, s{S_TMP+1}")
        for j in range(4): A(f"v_mov_b32 v{12+j}, 0")
        A(f"buffer_store_dwordx4 v[12:15], v9, s[{S_H1}:{S_H1+3}], s{S_TMP} offen sc1")
        A.label(".Lkr_nz")
        PFW1 = int(os.environ.get("PFW1", "1"))
        if PRG:
            PFP = int(os.environ.get("PFP", "1"))
            if PFP == 0: self.pf_g64(0, 512, 24576, 8)
            PFW1 = 0
            A.label(".Lkr_nz2")
            A(f"s_mul_i32 s{S_TMP}, s{S_M}, {7 * 65536}")
            A(f"s_add_u32 s{S_TMP}, s{S_TMP}, s3")
            A(f"v_mov_b32 v4, {MSK}")
            A(f"s_mov_b32 s{S_TMP+1}, 0")
            A(f"s_cmp_lg_u32 s{S_WAVE}, 7")
            A("s_cbranch_scc1 .Lkr_lp")
            A("v_and_b32 v3, 7, v1")
            A("v_lshlrev_b32 v3, 3, v3")
            A("v_add_u32 v3, s96, v3")
            A("s_mov_b32 s99, 0")
            A.label(".Lkr_pp")
            A("buffer_load_dwordx2 v[248:249], v3, s[92:95], 0 offen sc1")
            A("s_add_u32 s99, s99, 1")
            A("s_waitcnt vmcnt(0)")
            A("v_xor_b32 v248, s100, v248")
            A("v_xor_b32 v249, s101, v249")
            A("v_or_b32 v248, v248, v249")
            A("v_cmp_eq_u32 vcc, 0, v248")
            A(f"s_and_b32 s{S_TMP+2}, vcc_lo, 0xff")
            A("s_cmp_lt_u32 s99, 0x40000")
            A(f"s_cselect_b32 s{S_TMP+2}, s{S_TMP+2}, 0xff")
            A(f"v_mov_b32 v5, s{S_TMP+2}")
            A("s_mov_b64 exec, 1")
            A("ds_or_b32 v4, v5")
            A("s_mov_b64 exec, -1")
            A(f"s_cmp_lg_u32 s{S_TMP+2}, 0xff")
            A("s_cbranch_scc1 .Lkr_pp")
            self.stamp(4)
            A.label(".Lkr_lp")
            A("ds_read_b32 v5, v4")
            A("s_waitcnt lgkmcnt(0)")
            A(f"v_readfirstlane_b32 s{S_TMP+2}, v5")
            A(f"s_andn2_b32 s{S_TMP+3}, s{S_TMP+2}, s{S_TMP+1}")
            A("s_cbranch_scc1 .Lkr_new")
            A("s_sleep 1")
            A("s_branch .Lkr_lp")
            A.label(".Lkr_new")
            for g in range(8):
                A(f"s_bitcmp1_b32 s{S_TMP+3}, {g}")
                A(f"s_cbranch_scc0 .Lkr_n{g}")
                A(f"s_add_u32 s{S_TMP+4}, s{S_TMP}, {g * 65536}")
                A(f"buffer_load_dwordx4 v[{PR+4*g}:{PR+4*g+3}], v9, s[{S_PT}:{S_PT+3}], s{S_TMP+4} offen")
                A.label(f".Lkr_n{g}")
            A(f"s_mov_b32 s{S_TMP+1}, s{S_TMP+2}")
            A(f"s_cmp_lg_u32 s{S_TMP+1}, 0xff")
            A("s_cbranch_scc1 .Lkr_lp")
            if PFP == 1:
                A(f"s_cmp_ge_u32 s{S_WAVE}, 4")
                A("s_cbranch_scc1 .Lkr_w0")
                self.pf_g64(0, 512, 24576, 8)
                A("s_waitcnt vmcnt(16)")
                A("s_branch .Lkr_w1")
                A.label(".Lkr_w0")
            A("s_waitcnt vmcnt(0)")
            if PFP == 1: A.label(".Lkr_w1")
            if PFP == 2: PFW1 = 2
            vm.ops = []
        else:
            sv = list(vm.ops)
            if PFW1 == 1: self.pf_g64(0, 512, 24576, 8)
            vm.ops = sv
            A.label(".Lkr_nz2")
            self.poll(0)
            A("s_barrier")
            self.stamp(4)
            PL = int(os.environ.get("PL", "1"))
            if PL:
                A(f"s_mul_i32 s{S_TMP}, s{S_M}, {7 * 65536}")
                A(f"s_add_u32 s{S_TMP}, s{S_TMP}, s3")
            else: A(f"s_mov_b32 s{S_TMP}, s3")
            for g in range(8):
                A(f"buffer_load_dwordx4 v[{PR+4*g}:{PR+4*g+3}], v9, s[{S_PT}:{S_PT+3}], s{S_TMP} offen"); vm.issue(("p", g))
                if g < 7: A(f"s_add_u32 s{S_TMP}, s{S_TMP}, {65536 if PL else 2048*512*2}")
        X = list(range(48, 56)); T = list(range(PR, PR + 12)); XU = list(range(96, 104))
        if PFW1 == 3:
            def woff():
                A(f"s_and_b32 s{S_TMP+9}, s{S_WAVE}, 3")
                A(f"s_lshr_b32 s{S_TMP+8}, s{S_WAVE}, 2")
                A(f"s_lshl_b32 s{S_WOFF}, s{S_TMP+9}, 17")
                A(f"s_lshl_b32 s{S_TMP+11}, s{S_TMP+8}, 16")
                A(f"s_add_u32 s{S_WOFF}, s{S_WOFF}, s{S_TMP+11}")
                A(f"s_lshl_b32 s{S_TMP+11}, s{S_J}, 7")
                A(f"s_add_u32 s{S_WOFF}, s{S_WOFF}, s{S_TMP+11}")
                A(f"s_mov_b32 s{S_TMP+7}, s{S_RB}")
                A(f"s_mul_i32 s{S_RB}, s{S_TMP+9}, {RG}")
                A(f"s_lshl_b32 s{S_TMP+8}, s{S_TMP+8}, 13")
                A(f"s_add_u32 s{S_RB}, s{S_RB}, s{S_TMP+8}")
            self.w_setup(0, 512, 1024, woff)
            for st in range(4): self.dmaW(st, 24576 + st * 2048, "wn")
            A(f"s_mov_b32 s{S_RB}, s{S_TMP+7}")
        if int(os.environ.get("KRX", "0")):
            vm.wait(("p", 0)); self.stamp(25)
            vm.wait(("p", 7)); self.stamp(26)
        vm.wait("x")
        if V2 and not W0M:
            for j in range(0, 24, 2): pk(A, "v_pk_add_f32", GA + j, GA + j, GA + 88 + j)
            for q in range(3): round_multi(A, list(range(GA + 8*q, GA + 8*q + 8)), [56, 57, 58, 59], SM)
        if not W0M:
            for j in range(8): A(f"v_add_f32 v{CB+j}, 1.0, v{CB+j}")
            round_multi(A, list(range(CB, CB + 8)), [56, 57, 58, 59], SM)
        for j in range(4):
            A(f"v_lshlrev_b32 v{XU[2*j]}, 16, v{XR+j}")
            A(f"v_and_b32 v{XU[2*j+1]}, {SM}, v{XR+j}")
        for g in range(8):
            vm.wait(("p", g))
            if g == 0:
                for j in range(4):
                    A(f"v_lshlrev_b32 v{X[2*j]}, 16, v{PR+j}")
                    A(f"v_and_b32 v{X[2*j+1]}, {SM}, v{PR+j}")
            else:
                U = 136 + 8 * (g & 1)
                for j in range(4):
                    p = PR + 4 * g + j
                    A(f"v_lshlrev_b32 v{U+2*j}, 16, v{p}")
                    A(f"v_and_b32 v{U+2*j+1}, {SM}, v{p}")
                for j in range(0, 8, 2): pk(A, "v_pk_add_f32", X[j], X[j], U + j)
        self.stamp(23)
        if PFW1 == 2:
            A(f"s_cmp_ge_u32 s{S_WAVE}, 4")
            A("s_cbranch_scc1 .Lkr_nz3")
            self.pf_g64(0, 512, 24576, 8)
            A.label(".Lkr_nz3")
        round_multi(A, X, T[5:9], SM)
        for j in range(0, 8, 2): pk(A, "v_pk_mul_f32", X[j], X[j], GA + j)
        round_multi(A, X, T[5:9], SM)
        for j in range(0, 8, 2): pk(A, "v_pk_add_f32", X[j], X[j], XU[j])
        pack8(A, X, XR)
        A(f"buffer_store_dwordx4 v[{XR}:{XR+3}], v9, s[{S_X2}:{S_X2+3}], s3 offen sc1")
        for j in range(4):
            A(f"v_lshlrev_b32 v{X[2*j]}, 16, v{XR+j}")
            A(f"v_and_b32 v{X[2*j+1]}, {SM}, v{XR+j}")
        ln_rows(A, [(X, T)], SM)
        for j in range(0, 8, 2): pk(A, "v_pk_mul_f32", X[j], X[j], CB + j)
        round_multi(A, X, T[5:9], SM)
        for j in range(0, 8, 2): pk(A, "v_pk_add_f32", X[j], X[j], SB + j)
        pack8(A, X, 80)
        A(f"buffer_store_dwordx4 v[80:83], v9, s[{S_H}:{S_H+3}], s3 offen sc1")
        self.stamp(24)
        for j in range(4):
            A(f"v_lshlrev_b32 v{X[2*j]}, 16, v{80+j}")
            A(f"v_and_b32 v{X[2*j+1]}, {SM}, v{80+j}")
        ln_rows(A, [(X, T)], SM, False)
        pack8(A, X, 84)
        A(f"buffer_store_dwordx4 v[84:87], v9, s[{S_HN}:{S_HN+3}], s3 offen sc1")
    def g64(self, lab, stage, K, a_off, a_size, a_rb, epi, WB, DW, nbr, next_pf, own_pf=None, rot=0, nsched=None, l2=None):
        A = self.A; vm = self.vm; lg = self.lg
        S_G = 8; S_X1 = 16; S_X2 = 20; S_MOD = 24; S_O = 28; S_ST = 36
        KW = K // 4; NCH = KW // 64; NS = NCH * 4; DG = 3
        VG = [4, 5]; AA = 16; BA = 18
        X1 = 24; X2 = 32; GB = 40
        V_PW = 48; V_PR = 49; V_GA = 51; V_SA = 52; VC = (12, 14, 54)
        ACC = 64; FR = 128
        NBG = int(os.environ.get('NBG', '3'))
        def tail_setup():
            A(f"v_lshrrev_b32 v10, 3, v{L}")
            A(f"v_and_b32 v11, 7, v{L}")
            A(f"v_mul_u32_u24 v{V_PR}, {RS}, v10")
            A(f"v_lshl_add_u32 v{V_PR}, v11, 5, v{V_PR}")
            A(f"s_mul_i32 s{S_TMP+3}, s{S_WAVE}, {8*RS}")
            A(f"v_add_u32 v{V_PR}, s{S_TMP+3}, v{V_PR}")
            A(f"v_add_u32 v{V_PR+1}, {2*RG}, v{V_PR}")
            A(f"v_lshlrev_b32 v{V_GA}, 4, v11")
            A(f"v_lshl_add_u32 v{V_GA}, v10, 10, v{V_GA}")
            A(f"s_lshl_b32 s{S_TMP+2}, s{S_M}, 16")
            A(f"s_lshl_b32 s{S_TMP+3}, s{S_WAVE}, 13")
            A(f"s_add_u32 s{S_TMP+2}, s{S_TMP+2}, s{S_TMP+3}")
            A(f"s_lshl_b32 s{S_TMP+3}, s{S_J}, 7")
            A(f"s_add_u32 s{S_TMP+2}, s{S_TMP+2}, s{S_TMP+3}")
            if epi == "final":
                A(f"v_lshlrev_b32 v{V_SA}, 5, v11")
                make_srd(A, S_X1, P_WS, WS_X1, 2 * MB)
                make_srd(A, S_X2, P_WS, WS_X2, 2 * MB)
                make_srd(A, S_MOD, P_WS, WS_MOD, 4 * MODP)
                make_srd(A, S_O, P_OUT, 0, 2 * MB)
                A(f"buffer_load_dwordx4 v[{X1}:{X1+3}], v{V_GA}, s[{S_X1}:{S_X1+3}], s{S_TMP+2} offen"); vm.issue("e")
                A(f"buffer_load_dwordx4 v[{X2}:{X2+3}], v{V_GA}, s[{S_X2}:{S_X2+3}], s{S_TMP+2} offen"); vm.issue("e")
                A(f"s_lshl_b32 s{S_TMP+3}, s{S_J}, 8")
                A(f"s_add_u32 s{S_TMP+3}, s{S_TMP+3}, {5*2048}")
                for h4 in range(2):
                    A(f"buffer_load_dwordx4 v[{GB+4*h4}:{GB+4*h4+3}], v{V_SA}, s[{S_MOD}:{S_MOD+3}], s{S_TMP+3} offen offset:{h4*16}"); vm.issue("e")
                if V2:
                    A(f"s_add_u32 s{S_TMP+3}, s{S_TMP+3}, {MODP}")
                    for h4 in range(2):
                        A(f"buffer_load_dwordx4 v[{180+4*h4}:{183+4*h4}], v{V_SA}, s[{S_MOD}:{S_MOD+3}], s{S_TMP+3} offen offset:{h4*16}"); vm.issue("e")
            elif epi == "res":
                A(f"v_lshlrev_b32 v{V_SA}, 3, v10")
                A(f"s_lshl_b32 s{S_TMP+6}, s{S_M}, 9")
                A(f"s_lshl_b32 s{S_TMP+3}, s{S_WAVE}, 6")
                A(f"s_add_u32 s{S_TMP+6}, s{S_TMP+6}, s{S_TMP+3}")
                A(f"s_lshl_b32 s{S_TMP+3}, s{S_J}, 14")
                A(f"s_add_u32 s{S_TMP+6}, s{S_TMP+6}, s{S_TMP+3}")
                make_srd(A, S_X1, P_WS, WS_H, 2 * MB)
                make_srd(A, S_O, P_WS, WS_X1, 2 * MB)
                make_srd(A, S_ST, P_WS, WS_STAT, 2048 * 128)
                A(f"buffer_load_dwordx4 v[{X1}:{X1+3}], v{V_GA}, s[{S_X1}:{S_X1+3}], s{S_TMP+2} offen"); vm.issue("e")
            else:
                A(f"v_mov_b32 v{VC[0]}, {fhex(GK1)}")
                A(f"v_mov_b32 v{VC[1]}, {fhex(GK0)}")
                A(f"v_mov_b32 v{VC[2]}, 1.0")
                make_srd(A, S_O, P_WS, WS_H1 + 2048, 2 * MB)
        A(f"s_cmp_ge_u32 s{S_WAVE}, 4")
        A(f"s_cbranch_scc1 .L{lab}_help")
        if own_pf and PFE == 2: own_pf(NE, 99)
        A(f"v_lshrrev_b32 v7, 3, v{L}")
        A(f"v_and_b32 v8, 7, v{L}")
        A("v_lshrrev_b32 v9, 1, v7")
        A("v_xor_b32 v9, v8, v9")
        A(f"s_movk_i32 s{S_TMP}, {a_rb}")
        A(f"v_mul_lo_u32 v10, v7, s{S_TMP}")
        A(f"v_lshl_add_u32 v{VG[0]}, v9, 4, v10")
        A("v_xor_b32 v9, 4, v9")
        A(f"v_lshl_add_u32 v{VG[1]}, v9, 4, v10")
        A(f"s_mul_i32 s{S_GOFF}, s{S_M}, {64*a_rb}")
        A(f"s_mul_i32 s{S_TMP}, s{S_WAVE}, {KW*2}")
        A(f"s_add_u32 s{S_GOFF}, s{S_GOFF}, s{S_TMP}")
        if epi == "res":
            A(f"s_lshl_b32 s{S_TMP}, s{S_WAVE}, 2")
            A(f"s_lshr_b32 s{S_TMP+1}, 0x4031, s{S_TMP}")
            A(f"s_and_b32 s{S_TMP+1}, s{S_TMP+1}, 15")
            A(f"s_lshl_b32 s{S_TMP+1}, s{S_TMP+1}, 10")
            A(f"s_add_u32 s{S_GOFF}, s{S_GOFF}, s{S_TMP+1}")
        make_srd(A, S_G, P_WS, a_off, a_size)
        A(f"v_lshrrev_b32 v7, 5, v{L}")
        A(f"v_bfe_u32 v8, v{L}, 4, 1")
        A(f"v_bfe_u32 v9, v{L}, 2, 2")
        A(f"v_and_b32 v10, 1, v{L}")
        A(f"v_bfe_u32 v11, v{L}, 1, 1")
        A("v_lshl_or_b32 v10, v10, 1, v11")
        A("v_lshlrev_b32 v10, 3, v10")
        A("v_lshl_add_u32 v10, v8, 5, v10")
        A("v_lshl_add_u32 v11, v7, 3, v9")
        A("v_lshrrev_b32 v12, 1, v9")
        for nb in range(2):
            A(f"v_xor_b32 v13, {nb}, v12")
            A("v_lshl_add_u32 v13, v13, 6, v10")
            A("v_lshl_add_u32 v13, v11, 7, v13")
            A(f"v_add_u32 v{AA+nb}, s{S_RB}, v13")
        A(f"v_and_b32 v8, 31, v{L}")
        A("v_bfe_u32 v9, v8, 1, 3")
        for ks in range(4):
            A(f"v_or_b32 v10, {2*ks}, v7")
            A("v_xor_b32 v10, v10, v9")
            A("v_lshlrev_b32 v10, 4, v10")
            A("v_lshl_add_u32 v10, v8, 7, v10")
            A(f"v_add_u32 v{BA+ks}, s{S_RB}, v10")
        A(f"v_mul_u32_u24 v{V_PW}, {RS}, v8")
        A(f"v_lshl_add_u32 v{V_PW}, v7, 5, v{V_PW}")
        A(f"v_add_u32 v{V_PW}, s{S_RB}, v{V_PW}")
        tail_setup()
        A("s_barrier")
        self.stamp(1 + 4 * stage + 3)
        def dmaG(ch):
            base = (ch % DG) * 8192
            for i in range(8):
                A(f"s_add_u32 m0, s{S_RB}, {base + i * 1024}")
                A(f"s_add_u32 s{S_TMP}, s{S_GOFF}, {i * 8 * a_rb + ch * 128}")
                A(f"buffer_load_dwordx4 v{VG[i & 1]}, s[{S_G}:{S_G+3}], s{S_TMP} offen lds")
                vm.issue(("g", ch))
        for ch in range(min(DG, NCH)): dmaG(ch)
        def reads(step):
            ch, ks = step // 4, step % 4
            buf = FR + (step % NBG) * 16
            for nb in range(2):
                for q in range(2):
                    A(f"ds_read_b64_tr_b16 v[{buf+nb*4+q*2}:{buf+nb*4+q*2+1}], v{AA+nb} offset:{WB + ((step + rot) % DW) * 2048 + q * 512}")
                    lg.issue(("f", step))
            for rb in range(2):
                A(f"ds_read_b128 v[{buf+8+rb*4}:{buf+8+rb*4+3}], v{BA+ks} offset:{(ch % DG) * 8192 + rb * 4096}")
                lg.issue(("f", step))
        def need(step):
            vm.wait(("w", step)); vm.wait(("g", step // 4))
        for s0 in range(NBG - 1):
            need(s0); reads(s0)
        for st in range(NS):
            lg.wait(("f", st))
            with Cap(A) as cp:
                if st + DW < NS: self.dmaW(st + DW, WB + ((st + rot) % DW) * 2048)
                if st % 4 == 3 and st // 4 + DG < NCH: dmaG(st // 4 + DG)
                if st + NBG - 1 < NS:
                    need(st + NBG - 1); reads(st + NBG - 1)
                if st + DW >= NS and PFE == 3 and nsched and st in nsched: next_pf(*nsched[st])
            buf = FR + (st % NBG) * 16
            mf = []
            for nb in range(2):
                for rb in range(2):
                    acc = ACC + (nb * 2 + rb) * 16
                    c = "0" if st == 0 else f"v[{acc}:{acc+15}]"
                    mf.append(f"v_mfma_f32_32x32x16_bf16 v[{acc}:{acc+15}], v[{buf+nb*4}:{buf+nb*4+3}], v[{buf+8+rb*4}:{buf+8+rb*4+3}], {c}")
            interleave(A, mf, cp.out)
        vm.wait("e")
        if not int(os.environ.get("KRX", "0")): self.stamp({1: 25, 2: 26, 4: 27}[stage])
        A("s_nop 7")
        A("s_nop 1")
        for tl in range(4):
            nb, rb = tl >> 1, tl & 1
            for r4 in range(4):
                A(f"ds_write_b128 v{V_PW}, v[{ACC+tl*16+r4*4}:{ACC+tl*16+r4*4+3}] offset:{rb*32*RS + (nb*8 + (r4 >> 1)*4 + (r4 & 1))*16}")
            if tl == 1: A("s_waitcnt lgkmcnt(0)")
        if next_pf and PFE == 1: next_pf()
        A("s_waitcnt lgkmcnt(0)")
        A(f"s_branch .L{lab}_join")
        A.label(f".L{lab}_help")
        sv = list(vm.ops)
        tail_setup()
        vm.ops = sv
        self.poll(stage, nbr)
        A("s_barrier")
        self.stamp(1 + 4 * stage + 3)
        n = sum(self.l2pf(*x) for x in l2) if l2 else 0
        A(f"s_waitcnt vmcnt({n})")
        A.label(f".L{lab}_join")
        A("s_barrier")
        for p in range(4):
            for h in range(2):
                d = ACC + p * 16 + h * 4
                A(f"ds_read_b128 v[{d}:{d+3}], v{V_PR + (p >> 1)} offset:{(p & 1)*RG + h*16}")
        xs = list(range(ACC, ACC + 8)); tp = list(range(72, 80)); t8 = list(range(88, 96))
        b = ACC
        def unpack(src, dst):
            for k in range(4):
                A(f"v_lshlrev_b32 v{dst[2*k]}, 16, v{src+k}")
                A(f"v_and_b32 v{dst[2*k+1]}, {SM}, v{src+k}")
        if epi != "gelu": unpack(X1, tp)
        if epi == "final":
            unpack(X2, list(range(104, 112)))
            if V2:
                for k in range(0, 8, 2): pk(A, "v_pk_add_f32", GB + k, GB + k, 180 + k)
                round_multi(A, list(range(GB, GB + 8)), t8, SM)
        A("s_waitcnt lgkmcnt(4)")
        for e in range(0, 8, 2): pk(A, "v_pk_add_f32", b + e, b + e, b + 16 + e)
        A("s_waitcnt lgkmcnt(0)")
        for e in range(0, 8, 2): pk(A, "v_pk_add_f32", b + 32 + e, b + 32 + e, b + 48 + e)
        for e in range(0, 8, 2): pk(A, "v_pk_add_f32", b + e, b + e, b + 32 + e)
        round_multi(A, xs, t8, SM)
        def store():
            for k in range(4): A(f"v_cvt_pk_bf16_f32 v{56+k}, v{xs[2*k]}, v{xs[2*k+1]}")
            A(f"buffer_store_dwordx4 v[56:59], v{V_GA}, s[{S_O}:{S_O+3}], s{S_TMP+2} offen sc1")
        if epi == "gelu":
            X = xs; T = tp
            for e in range(0, 8, 2): pk(A, "v_pk_mul_f32", T[e], X[e], X[e])
            for e in range(0, 8, 2): pk(A, "v_pk_fma_f32", T[e], T[e], VC[0], VC[1], "op_sel_hi:[1,0,0]")
            for e in range(0, 8, 2): pk(A, "v_pk_mul_f32", T[e], T[e], X[e])
            for e in range(8): A(f"v_exp_f32 v{T[e]}, v{T[e]}")
            for e in range(0, 8, 2): pk(A, "v_pk_add_f32", T[e], T[e], VC[2], None, "op_sel_hi:[1,0]")
            for e in range(8): A(f"v_rcp_f32 v{T[e]}, v{T[e]}")
            A("s_nop 0")
            for e in range(0, 8, 2): pk(A, "v_pk_mul_f32", X[e], X[e], T[e])
            store()
        elif epi == "res":
            for k in range(0, 8, 2): pk(A, "v_pk_add_f32", xs[k], xs[k], tp[k])
            store()
            unpack(56, xs)
            X = xs
            pk(A, "v_pk_mul_f32", tp[0], X[0], X[0])
            pk(A, "v_pk_add_f32", tp[2], X[0], X[2])
            for e in range(2, 8, 2):
                pk(A, "v_pk_fma_f32", tp[0], X[e], X[e], tp[0])
                if e >= 4: pk(A, "v_pk_add_f32", tp[2], tp[2], X[e])
            A(f"v_add_f32 v20, v{tp[2]}, v{tp[3]}")
            A(f"v_add_f32 v21, v{tp[0]}, v{tp[1]}")
            A("s_nop 1")
            for dpp in ("quad_perm:[1,0,3,2]", "quad_perm:[2,3,0,1]", "row_half_mirror"):
                for v in (20, 21):
                    A(f"v_add_f32_dpp v{v}, v{v}, v{v} {dpp} row_mask:0xf bank_mask:0xf")
                A("s_nop 1")
            A("v_and_b32 v10, 7, v1")
            A("v_cmp_eq_u32 vcc, 0, v10")
            A("s_and_saveexec_b64 s[78:79], vcc")
            A(f"buffer_store_dwordx2 v[20:21], v{V_SA}, s[{S_ST}:{S_ST+3}], s{S_TMP+6} offen sc1")
            A("s_mov_b64 exec, s[78:79]")
        else:
            for k in range(0, 8, 2): pk(A, "v_pk_add_f32", xs[k], xs[k], tp[k])
            round_multi(A, xs, t8, SM)
            for k in range(0, 8, 2): pk(A, "v_pk_mul_f32", xs[k], xs[k], GB + k)
            round_multi(A, xs, t8, SM)
            for k in range(0, 8, 2): pk(A, "v_pk_add_f32", xs[k], xs[k], 104 + k)
            store()
    def k5(self, stage, next_pf, own_pf=None):
        A = self.A; vm = self.vm; lg = self.lg
        S_A = 8; S_O = 20; S_ST = 24; S_CS = 28
        VB = [16, 28]; AA = 24; ACC = 64; FQ = 128
        D = K5D
        NB5 = int(os.environ.get('NB5', '3'))
        A(f"s_cmp_lt_u32 s{S_WAVE}, 4")
        A("s_cbranch_scc1 .Lk5_main")
        A(f"s_cmp_eq_u32 s{S_J}, 7")
        A("s_cbranch_scc1 .Lk5_h7")
        self.poll(stage)
        A("s_barrier")
        A("s_barrier")
        A.label(".Lk5_h7")
        if L2PF & 4: self.l2pf(3, 1792 * 1024)
        A("s_branch .Lk5_end")
        A.label(".Lk5_main")
        A(f"s_cmp_eq_u32 s{S_J}, 7")
        A("s_cbranch_scc1 .Lk5_pf")
        if own_pf and PFE == 2: own_pf(NE, 99)
        make_srd(A, S_A, P_WS, WS_X1, 2 * MB)
        make_srd(A, S_ST, P_WS, WS_STAT, 2048 * 128)
        make_srd(A, S_CS, P_WS, WS_CS, 2 * CSP)
        make_srd(A, S_O, P_WS, WS_G, 2048 * 3584)
        A(f"v_lshlrev_b32 v4, 4, v{L}")
        A(f"s_lshl_b32 s{S_TMP}, s{S_M}, 16")
        A(f"s_lshl_b32 s{S_TMP+1}, s{S_WAVE}, 14")
        A(f"s_add_u32 s{S_TMP}, s{S_TMP}, s{S_TMP+1}")
        A(f"s_lshl_b32 s{S_TMP+6}, s{S_J}, 9")
        A(f"s_lshl_b32 s{S_TMP+2}, s{S_WAVE}, 7")
        A(f"s_add_u32 s{S_TMP+6}, s{S_TMP+6}, s{S_TMP+2}")
        A(f"v_lshrrev_b32 v5, 5, v{L}")
        A(f"v_bfe_u32 v7, v{L}, 4, 1")
        A(f"v_bfe_u32 v8, v{L}, 2, 2")
        A(f"v_and_b32 v9, 1, v{L}")
        A(f"v_bfe_u32 v10, v{L}, 1, 1")
        A("v_lshl_or_b32 v9, v9, 1, v10")
        A("v_lshlrev_b32 v9, 3, v9")
        A("v_lshl_add_u32 v9, v7, 5, v9")
        A("v_lshl_add_u32 v10, v5, 3, v8")
        A("v_lshrrev_b32 v11, 1, v8")
        for nb in range(2):
            A(f"v_xor_b32 v12, {nb}, v11")
            A("v_lshl_add_u32 v12, v12, 6, v9")
            A("v_lshl_add_u32 v12, v10, 7, v12")
            A(f"v_add_u32 v{AA+nb}, s{S_RB}, v12")
        A(f"v_and_b32 v13, 31, v{L}")
        A("v_lshrrev_b32 v7, 4, v13")
        A(f"v_mul_u32_u24 v7, {RG // 1024}, v7")
        A("v_and_b32 v8, 15, v13")
        A("v_add_u32 v7, v7, v8")
        for j in range(8):
            A(f"v_or_b32 v8, {2*j}, v5")
            A("v_xor_b32 v8, v8, v13")
            A("v_and_b32 v8, 15, v8")
            A("v_lshlrev_b32 v8, 4, v8")
            A(f"v_lshl_add_u32 v{VB[0]+j}, v7, 10, v8")
            A(f"v_add_u32 v{VB[1]+j}, {2*RG}, v{VB[0]+j}")
        ST = 192; CS = 224
        A("v_lshlrev_b32 v42, 5, v5")
        C2 = [176, 184, 200, 216]
        def csloads():
            A(f"s_lshl_b32 s{S_TMP+2}, s{S_TMP+6}, 1")
            for part in range(2 if V2 else 1):
                for q in range(4):
                    for h4 in range(2):
                        d = (CS + q * 8 if part == 0 else C2[q]) + 4 * h4
                        A(f"buffer_load_dwordx4 v[{d}:{d+3}], v42, s[{S_CS}:{S_CS+3}], s{S_TMP+2} offen offset:{(16*q+4*h4)*4}"); vm.issue("st")
                A(f"s_add_u32 s{S_TMP+2}, s{S_TMP+2}, {CSP}")
        VS = 36
        A("v_and_b32 v7, 7, v13")
        A(f"s_add_u32 s{S_TMP+3}, s{S_RB}, {K5RB}")
        for j in range(4):
            A(f"v_or_b32 v14, {2*j}, v5")
            A("v_xor_b32 v14, v14, v7")
            A("v_lshlrev_b32 v14, 4, v14")
            A("v_lshl_add_u32 v14, v13, 7, v14")
            A(f"v_add_u32 v{VS+j}, s{S_TMP+3}, v14")
        A(f"v_lshrrev_b32 v7, 3, v{L}")
        A(f"v_and_b32 v14, 7, v{L}")
        A(f"v_xor_b32 v{VS+4}, v14, v7")
        A(f"v_lshlrev_b32 v{VS+4}, 4, v{VS+4}")
        A(f"v_lshl_add_u32 v{VS+4}, v7, 7, v{VS+4}")
        A(f"v_add_u32 v{VS+4}, s{S_TMP+3}, v{VS+4}")
        A(f"s_movk_i32 s{S_TMP+2}, 3584")
        A(f"v_mul_lo_u32 v7, v7, s{S_TMP+2}")
        A(f"v_lshl_add_u32 v{VS+5}, v14, 4, v7")
        A(f"s_mul_i32 s{S_TMP+4}, s{S_M}, {64*3584}")
        A(f"s_add_u32 s{S_TMP+4}, s{S_TMP+4}, s{S_TMP+6}")
        A(f"s_add_u32 s{S_TMP+5}, s{S_TMP+4}, {32*3584}")
        A("v_lshlrev_b32 v7, 3, v13")
        A("v_lshl_add_u32 v7, v5, 16, v7")
        A(f"s_lshl_b32 s{S_TMP+7}, s{S_M}, 9")
        A("s_barrier")
        self.stamp(1 + 4 * stage + 3)
        for i in range(16):
            t = 8 + (i & 1)
            A(f"v_xor_b32 v{t}, {i << 4}, v4")
            A(f"s_add_u32 m0, s{S_RB}, {i * 1024}")
            A(f"s_add_u32 s{S_TMP+2}, s{S_TMP}, {i * 1024}")
            A(f"buffer_load_dwordx4 v{t}, s[{S_A}:{S_A+3}], s{S_TMP+2} offen lds")
            vm.issue("act")
        for q in range(4):
            A(f"s_add_u32 s{S_TMP+3}, s{S_TMP+7}, {q*16384}")
            for rb in range(2):
                A(f"buffer_load_dwordx2 v[{ST+16*rb+2*q}:{ST+16*rb+2*q+1}], v7, s[{S_ST}:{S_ST+3}], s{S_TMP+3} offen offset:{rb*256}"); vm.issue("st")
        vm.wait("act")
        A("s_barrier")
        self.stamp(29)
        def reads(step):
            buf = FQ + (step % NB5) * 16
            for nb in range(2):
                for q in range(2):
                    A(f"ds_read_b64_tr_b16 v[{buf+nb*4+q*2}:{buf+nb*4+q*2+1}], v{AA+nb} offset:{K5RB + (step % D) * 2048 + q * 512}")
                    lg.issue(("f", step))
            for rb in range(2):
                A(f"ds_read_b128 v[{buf+8+rb*4}:{buf+8+rb*4+3}], v{VB[rb] + (step & 7)} offset:{(step >> 3) * 256}")
                lg.issue(("f", step))
        PKC = [[44, 46, 48, 50], [52, 54, 56, 58]]
        E = []
        for stg in range(17):
            for rb in range(2):
                b = ST + 16 * rb; c = PKC[rb]
                E.append([f"v_add_f32 v{b}, v{b}, v{b+2}", f"v_add_f32 v{b+1}, v{b+1}, v{b+3}",
                          f"v_add_f32 v{b+4}, v{b+4}, v{b+6}", f"v_add_f32 v{b+5}, v{b+5}, v{b+7}",
                          f"v_add_f32 v{b}, v{b}, v{b+4}", f"v_add_f32 v{b+1}, v{b+1}, v{b+5}",
                          f"v_mov_b32 v{b+2}, v{b}", f"v_mov_b32 v{b+3}, v{b+1}", "s_nop 1",
                          f"v_permlane32_swap_b32 v{b}, v{b+2}", f"v_permlane32_swap_b32 v{b+1}, v{b+3}", "s_nop 1",
                          f"v_add_f32 v{b}, v{b}, v{b+2}", f"v_add_f32 v{b+1}, v{b+1}, v{b+3}",
                          f"v_mul_f32 v{c[0]}, {fhex(-1/512)}, v{b}", f"v_mul_f32 v{b+1}, {fhex(1/512)}, v{b+1}",
                          f"v_fma_f32 v{b+1}, -v{c[0]}, v{c[0]}, v{b+1}"][stg])
        for stg in range(9):
            for rb in range(2):
                b = ST + 16 * rb; c = PKC[rb]
                E.append([f"v_max_f32 v{b+1}, 0, v{b+1}", f"v_add_f32 v{b+1}, {fhex(1e-5)}, v{b+1}",
                          f"v_rsq_f32 v{b+2}, v{b+1}", f"v_sqrt_f32 v{c[3]}, v{b+1}", "s_nop 0",
                          f"v_mul_f32 v{c[2]}, {fhex(GK0)}, v{b+2}", f"v_mul_f32 v{c[1]}, v{b+2}, v{b+2}",
                          f"v_mul_f32 v{c[1]}, v{c[1]}, v{b+2}", f"v_mul_f32 v{c[1]}, {fhex(GK1)}, v{c[1]}"][stg])
        if V2:
            for q in range(4):
                for e in range(8): E.append(f"v_add_f32 v{CS+8*q+e}, v{CS+8*q+e}, v{C2[q]+e}")
        for s0 in range(NB5 - 1):
            vm.wait(("w", s0)); reads(s0)
        k = 0
        for ks in range(32):
            lg.wait(("f", ks))
            with Cap(A) as cp:
                if ks + NB5 - 1 < 32:
                    vm.wait(("w", ks + NB5 - 1)); reads(ks + NB5 - 1)
                if ks + D < 32: self.dmaW(ks + D, K5RB + (ks % D) * 2048)
                elif PFE == 3 and ks == 21: next_pf(0, 1)
                elif PFE == 3 and ks >= 26: next_pf(ks - 25, ks - 24)
                if ks == 1: csloads()
                if 14 <= ks < 28:
                    if ks == 14: vm.wait("st")
                    upto = len(E) * (ks - 13) // 14
                    while k < upto: A(E[k]); k += 1
            buf = FQ + (ks % NB5) * 16
            mf = []
            for nb in range(2):
                for rb in range(2):
                    acc = ACC + (nb * 2 + rb) * 16
                    c = "0" if ks == 0 else f"v[{acc}:{acc+15}]"
                    mf.append(f"v_mfma_f32_32x32x16_bf16 v[{acc}:{acc+15}], v[{buf+nb*4}:{buf+nb*4+3}], v[{buf+8+rb*4}:{buf+8+rb*4+3}], {c}")
            interleave(A, mf, cp.out)
        self.stamp(28)
        if PFE == 1: next_pf()
        else:
            A("s_nop 7"); A("s_nop 3")
        def flush5(rb):
            A("s_waitcnt lgkmcnt(0)")
            for i in range(4):
                A(f"ds_read_b128 v[{192+16*rb+4*i}:{192+16*rb+4*i+3}], v{VS+4} offset:{rb*4096 + i*1024}")
        def store5(rb):
            for i in range(4):
                if rb == 1: A(f"s_waitcnt lgkmcnt({3-i})")
                A(f"s_add_u32 s{S_TMP+3}, s{S_TMP+4+rb}, {i*8*3584}")
                A(f"buffer_store_dwordx4 v[{192+16*rb+4*i}:{192+16*rb+4*i+3}], v{VS+5}, s[{S_O}:{S_O+3}], s{S_TMP+3} offen sc1")
        for rb in range(2):
            for nb in range(2):
                acc = ACC + (nb * 2 + rb) * 16
                if rb == 1 and nb == 1:
                    A("s_waitcnt lgkmcnt(2)")
                    store5(0)
                for mp in range(2):
                    d = 160 + (nb * 4 + rb * 2 + mp) * 4
                    xs = [acc + 8 * mp + e for e in range(8)]
                    ts = list(range(128, 136)); cs = CS + (nb * 2 + mp) * 8; c = PKC[rb]
                    for e in range(0, 8, 2): pk(A, "v_pk_fma_f32", xs[e], cs + e, c[0], xs[e], "op_sel_hi:[1,0,1]")
                    for e in range(0, 8, 2): pk(A, "v_pk_mul_f32", ts[e], xs[e], xs[e])
                    for e in range(0, 8, 2): pk(A, "v_pk_fma_f32", ts[e], ts[e], c[1], c[2], "op_sel_hi:[1,0,0]")
                    for e in range(0, 8, 2): pk(A, "v_pk_mul_f32", ts[e], ts[e], xs[e])
                    for t in ts: A(f"v_exp_f32 v{t}, v{t}")
                    for e in range(0, 8, 2): pk(A, "v_pk_fma_f32", ts[e], ts[e], c[3], c[3], "op_sel_hi:[1,0,0]")
                    for t in ts: A(f"v_rcp_f32 v{t}, v{t}")
                    A("s_nop 0")
                    for e in range(0, 8, 2): pk(A, "v_pk_mul_f32", xs[e], xs[e], ts[e])
                    for e in range(0, 8, 2): A(f"v_cvt_pk_bf16_f32 v{d+e//2}, v{xs[e]}, v{xs[e+1]}")
                    A(f"ds_write_b128 v{VS+2*nb+mp}, v[{d}:{d+3}] offset:{rb*4096}")
            flush5(rb)
        store5(1)
        A("s_branch .Lk5_end")
        A.label(".Lk5_pf")
        if PFE in (1, 3): next_pf(alt=True)
        A.label(".Lk5_end")

def gen_km(A):
    name = "k1_kernel"
    M = Mega(A)
    def pre():
        if MT or HD:
            M.persist(); M.stamp(0); M.vm.ops = []
        if ONE: M.pro_pre()
    if V2: K1.gen_k1(A, emb=True, pre=pre, hookA=M.p2_a, hookB=M.p2_b, v2=True, hookC=M.p2_c)
    elif ONE: K1.gen_k1(A, emb=True, pre=pre, hookA=M.pro_a, hookB=M.pro_b)
    else: K1.gen_k1(A, emb=True, pre=pre)
    M.persist()
    M.transition(0)
    M.kr()
    M.transition(1)
    pf4 = lambda lo=0, hi=99: M.pf_g64(1, 512, 24576, 8, lo, hi)
    pf6 = lambda lo=0, hi=99, alt=False: M.pf_g64(3, 1792, 26624, 7, lo, hi, 6)
    M.g64("k3", 1, 512, WS_HN, 2 * MB, 1024, "gelu", 24576, 8, False, pf4, None, 0, {st: (st, st + 1) for st in range(8)}, [(2, 1792 * 1024)] if L2PF & 1 else None)
    M.transition(2, pf4)
    M.g64("k4", 2, 512, WS_H1, 2052 * 1024, 1024, "res", 24576, 8, True, M.pf_k5, pf4, 0, {st: ((0, 4) if st == 0 else (st + 3, st + 4)) for st in range(8)}, [(3, 1792 * 1024)] if L2PF & 2 else None)
    M.transition(3, M.pf_k5)
    M.k5(3, pf6, M.pf_k5)
    M.transition(4, pf6)
    M.g64("k6", 4, 1792, WS_G, 2048 * 3584, 3584, "final", 26624, 7, False, None, pf6, 6)
    M.stamp(21)
    if MT or HD: A("s_waitcnt vmcnt(0)")
    M.stamp(22)
    A("s_endpgm")
    A.raw(kernel_desc(name, 256, 102, 256))
    return (name, (256, 1, 1), (512, 1, 1), 163840)
```

```python
from asmlib import *
from gen_k0 import *
import gen_k1 as K1
from gen_k1 import Cnt
from gen_ka import ln_rows, round_multi, pack8, GK0, GK1
from gen_g64 import WS_STAT, WS_CS
import os
MT = int(os.environ.get("MT", "0"))
HD = int(os.environ.get("HD", "0"))
PT = int(os.environ.get("PT", "0"))
TLW = int(os.environ.get("TLW", "0"))
MP = int(os.environ.get("MP", "1"))
HP = int(os.environ.get("HP", "0"))
SPOLL = int(os.environ.get("SPOLL", "1"))
HPH = int(os.environ.get("HPH", "0"))
CNT = 17408
S_R8 = 46; V_CT = 53
PRG = int(os.environ.get("PRG", "0"))
MSK = 83968
WQF = int(os.environ.get("WQF", "0"))
W0M = int(os.environ.get("MEGA", "5")) == 5 and int(os.environ.get("W0M", "1"))
EB = int(os.environ.get("EB", "0"))
DLY = int(os.environ.get("DLY", "1"))
WQE = int(os.environ.get("WQE", "0"))
ONE = int(os.environ.get("MEGA", "5")) >= 4
V2 = int(os.environ.get("MEGA", "5")) == 5
MODP = 12288; CSP = 8192
FP = WS_FLAG + 0x20000; FQ_ = WS_FLAG + 0x30000
S_WAVE = 40; S_M = 41; S_J = 42; S_MASK = 43; S_RB = 44; S_GOFF = 45; S_TMP = 48; S_WOFF = 58
S_W = 32; V_W = 6
P_X = 60; P_OUT = 62; P_WS = 68; P_W = 84
SM = f"s{S_MASK}"
L = 1
RG = 40960; RS = 272
K5RB = 18432; K5D = 11
L2PF = int(os.environ.get('L2PF', '0'))
PFE = int(os.environ.get('PFE', '3'))
NE = int(os.environ.get('NE', '3')) if PFE == 2 else 0

def pk(A, op, d, a, b, c=None, sel=""):
    ops = ", ".join(f"v[{x}:{x+1}]" for x in ((d, a, b) if c is None else (d, a, b, c)))
    A(f"{op} {ops} {sel}".rstrip())

FLN = int(os.environ.get("FLN", "1"))
_ln_slow = ln_rows
def ln_fast(A, R, smask, final_round=True):
    for X, T in R:
        assert X[0] % 2 == 0 and T[0] % 2 == 0
        pk(A, "v_pk_add_f32", T[0], X[0], X[2]); pk(A, "v_pk_mul_f32", T[2], X[0], X[0])
        pk(A, "v_pk_add_f32", T[4], X[4], X[6]); pk(A, "v_pk_mul_f32", T[6], X[2], X[2])
    for X, T in R:
        pk(A, "v_pk_fma_f32", T[2], X[4], X[4], T[2]); pk(A, "v_pk_fma_f32", T[6], X[6], X[6], T[6])
        pk(A, "v_pk_add_f32", T[0], T[0], T[4])
    for X, T in R:
        pk(A, "v_pk_add_f32", T[2], T[2], T[6])
        A(f"v_add_f32 v{T[0]}, v{T[0]}, v{T[1]}")
    for X, T in R:
        A(f"v_add_f32 v{T[1]}, v{T[2]}, v{T[3]}")
    wave_allreduce(A, "v_add_f32", [t for X, T in R for t in (T[0], T[1])], [t for X, T in R for t in (T[2], T[3])], [t for X, T in R for t in (T[4], T[5])])
    for X, T in R:
        A(f"v_mul_f32 v{T[0]}, {fhex(1/512)}, v{T[0]}")
        A(f"v_mul_f32 v{T[1]}, {fhex(1/512)}, v{T[1]}")
    for X, T in R:
        A(f"v_fma_f32 v{T[1]}, -v{T[0]}, v{T[0]}, v{T[1]}")
    for X, T in R:
        A(f"v_max_f32 v{T[1]}, 0, v{T[1]}")
    for X, T in R:
        A(f"v_cvt_pk_bf16_f32 v{T[3]}, v{T[0]}, v{T[1]}")
    for X, T in R:
        A(f"v_and_b32 v{T[1]}, {smask}, v{T[3]}")
        A(f"v_lshlrev_b32 v{T[2]}, 16, v{T[3]}")
    for X, T in R:
        A(f"v_add_f32 v{T[1]}, {fhex(1e-5)}, v{T[1]}")
        for j in range(0, 4, 2): pk(A, "v_pk_add_f32", X[j], X[j], T[2], None, "op_sel_hi:[1,0] neg_lo:[0,1] neg_hi:[0,1]")
    for X, T in R:
        A(f"v_cvt_pk_bf16_f32 v{T[1]}, v{T[1]}, v{T[1]}")
        for j in range(4, 8, 2): pk(A, "v_pk_add_f32", X[j], X[j], T[2], None, "op_sel_hi:[1,0] neg_lo:[0,1] neg_hi:[0,1]")
    for X, T in R:
        A(f"v_lshlrev_b32 v{T[1]}, 16, v{T[1]}")
    for X, T in R:
        A(f"v_sqrt_f32 v{T[0]}, v{T[1]}")
        round_multi(A, X[:4], T[4:6], smask)
    for X, T in R:
        A(f"v_cvt_pk_bf16_f32 v{T[0]}, v{T[0]}, v{T[0]}")
    for X, T in R:
        A(f"v_lshlrev_b32 v{T[0]}, 16, v{T[0]}")
    for X, T in R:
        A(f"v_rcp_f32 v{T[2]}, v{T[0]}")
        round_multi(A, X[4:], T[4:6], smask)
    if FLN == 2:
        for X, T in R:
            for j in range(0, 8, 2): pk(A, "v_pk_mul_f32", X[j], X[j], T[2], None, "op_sel_hi:[1,0]")
    else:
        for X, T in R:
            for h in range(2):
                js = (4 * h, 4 * h + 2)
                for k, j in enumerate(js): pk(A, "v_pk_mul_f32", T[4+2*k], X[j], T[2], None, "op_sel_hi:[1,0]")
                for k, j in enumerate(js): pk(A, "v_pk_fma_f32", X[j], T[4+2*k], T[0], X[j], "op_sel_hi:[1,0,1] neg_lo:[1,0,0] neg_hi:[1,0,0]")
                for k, j in enumerate(js): pk(A, "v_pk_fma_f32", X[j], X[j], T[2], T[4+2*k], "op_sel_hi:[1,0,1]")
    if final_round:
        for X, T in R: round_multi(A, X, T[4:8], smask)
def ln_rows(A, R, smask, final_round=True):
    return ln_fast(A, R, smask, final_round) if FLN else _ln_slow(A, R, smask)

class Cap:
    def __init__(self, A): self.A = A
    def __enter__(self):
        self.sv = self.A.lines; self.A.lines = []; return self
    def __exit__(self, *a):
        self.out = self.A.lines; self.A.lines = self.sv

def interleave(A, mf, fill):
    n = len(mf); k = 0
    for i, m in enumerate(mf):
        A(m)
        upto = (len(fill) * (i + 1) + n - 1) // n
        while upto < len(fill) and upto > 0 and not (fill[upto - 1].lstrip().startswith(("buffer_", "ds_", "v_", "s_waitcnt")) or fill[upto - 1].lstrip().startswith(f"s_add_u32 s{S_WOFF}")): upto += 1
        A.lines.extend(fill[k:upto]); k = max(k, upto)

class Mega:
    def __init__(self, A):
        self.A = A
        self.vm = Cnt(A, "vmcnt", 63); self.lg = Cnt(A, "lgkmcnt", 15)
    def stamp(self, idx):
        if HD:
            hmap = {0: 2, 3: 3, 4: 4, 7: 5, 8: 6, 11: 7, 12: 8, 15: 9, 16: 10, 19: 11, 20: 12, 21: 13, 22: 14}
            if int(os.environ.get('HK', '0')): hmap = {0: 2, 22: 14}
            if idx not in hmap: return
            A = self.A
            lab = A.newlabel("hd")
            A("s_waitcnt lgkmcnt(0)")
            A("s_load_dwordx2 s[76:77], s[0:1], 104")
            A("s_memrealtime s[70:71]")
            A("s_waitcnt lgkmcnt(0)")
            A("s_mov_b32 s72, s76")
            A("s_mov_b32 s73, s77")
            A("s_mov_b32 s74, 256")
            A("s_mov_b32 s75, 0x00020000")
            A(f"s_lshl_b32 s76, s{S_WAVE}, 8")
            A("s_or_b32 s76, s76, s2")
            A(f"s_cmp_lg_u32 s76, {HD}")
            A(f"s_cbranch_scc1 {lab}")
            A("v_mov_b32 v2, s70")
            A("v_mov_b32 v3, 0")
            A(f"buffer_store_dword v2, v3, s[72:75], 0 offen offset:{4*hmap[idx]}")
            A.label(lab)
            self.lg.ops = []
            return
        if not MT: return
        A = self.A
        A("s_waitcnt lgkmcnt(0)")
        A("s_memrealtime s[70:71]")
        make_srd(A, 72, P_WS, WS_DBG, 32 * MB)
        A("s_lshl_b32 s76, s2, 3")
        A(f"s_add_u32 s76, s76, s{S_WAVE}")
        A("s_lshl_b32 s76, s76, 7")
        A("s_waitcnt lgkmcnt(0)")
        A("v_mov_b32 v2, s70")
        A("v_mov_b32 v3, 0")
        A(f"buffer_store_dword v2, v3, s[72:75], s76 offen offset:{4*idx}")
        self.vm.issue("stamp"); self.lg.ops = []
    def flag_srd(self, stage):
        make_srd(self.A, 92, P_WS, WS_FLAG + stage * 32 * 256, 32 * 256)
    def transition(self, stage, early=None):
        A = self.A
        self.stamp(1 + 4 * stage)
        self.vm.ops = []
        if ONE and stage == 0:
            make_srd(A, 80, P_WS, FQ_, 32 * 1024)
            make_srd(A, 12, P_WS, WS_MOD, 4 * MODP)
            A(f"s_cmp_lg_u32 s{S_WAVE}, {0 if W0M else 7}")
            A("s_cbranch_scc1 .Lw0m_end")
            A(f"s_lshl_b32 s98, s{S_M}, 10")
            A("v_add_u32 v2, 64, v1")
            A("v_min_u32 v2, 119, v2")
            A("v_lshlrev_b32 v2, 3, v2")
            A("v_lshlrev_b32 v3, 3, v1")
            self.poll64(".Lplq", [(3, 80, "s98"), (2, 80, "s98")])
            if W0M:
                A("v_lshlrev_b32 v10, 5, v1")
                for part in range(2):
                    for q, idx in enumerate((2, 4, 3)):
                        d = 24 + 8 * q + 88 * part
                        A(f"s_movk_i32 s{S_TMP}, {idx*2048 + part*MODP}")
                        A(f"buffer_load_dwordx4 v[{d}:{d+3}], v10, s[12:15], s{S_TMP} offen")
                        A(f"buffer_load_dwordx4 v[{d+4}:{d+7}], v10, s[12:15], s{S_TMP} offen offset:16")
                A("v_add_u32 v10, 81920, v10")
                A("s_waitcnt vmcnt(0)")
                for j in range(0, 24, 2): pk(A, "v_pk_add_f32", 24 + j, 24 + j, 112 + j)
                for q in range(3): round_multi(A, list(range(24 + 8*q, 32 + 8*q)), [56, 57, 58, 59], SM)
                for j in range(8): A(f"v_add_f32 v{32+j}, 1.0, v{32+j}")
                round_multi(A, list(range(32, 40)), [56, 57, 58, 59], SM)
                for q, off in enumerate((0, 16384, 49152)):
                    A(f"ds_write_b128 v10, v[{24+8*q}:{27+8*q}] offset:{off}")
                    A(f"ds_write_b128 v10, v[{28+8*q}:{31+8*q}] offset:{off+16}")
            A.label(".Lw0m_end")
            if PRG:
                A(f"s_cmp_lg_u32 s{S_WAVE}, 1")
                A("s_cbranch_scc1 .Lw1m_end")
                A(f"s_lshl_b32 s{S_TMP}, 1, s{S_J}")
                A(f"v_mov_b32 v2, {MSK}")
                A(f"v_mov_b32 v3, s{S_TMP}")
                A("ds_write_b32 v2, v3")
                A.label(".Lw1m_end")
        if early and NE:
            A(f"s_cmp_ge_u32 s{S_WAVE}, 4")
            A(f"s_cbranch_scc1 .Ltr{stage}_h")
            early(0, NE)
            A(f"s_waitcnt vmcnt({len(self.vm.ops)})")
            A(f"s_branch .Ltr{stage}_j")
            A.label(f".Ltr{stage}_h")
            A("s_waitcnt vmcnt(0)")
            A.label(f".Ltr{stage}_j")
        else:
            A("s_waitcnt vmcnt(0)")
        self.flag_srd(stage)
        A(f"s_lshl_b32 s96, s{S_M}, 8")
        A(f"s_lshl_b32 s97, s{S_J}, {3 if ONE else 2}")
        A("s_add_u32 s97, s97, s96")
        if ONE:
            A("v_mov_b32 v246, s100")
            A("v_mov_b32 v247, s101")
        A("v_mov_b32 v2, 1")
        A("v_mov_b32 v3, s97")
        A("s_waitcnt lgkmcnt(0)")
        self.lg.ops = []
        A("s_barrier")
        A(f"s_cmp_lg_u32 s{S_WAVE}, 7")
        A(f"s_cbranch_scc1 .Lpub{stage}")
        A("s_mov_b64 exec, 1")
        A("buffer_store_dwordx2 v[246:247], v3, s[92:95], 0 offen sc1" if ONE else "buffer_store_dword v2, v3, s[92:95], 0 offen sc1")
        A("s_mov_b64 exec, -1")
        A.label(f".Lpub{stage}")
        self.stamp(1 + 4 * stage + 2)
    def poll(self, stage, nbr=False, check=True, after=None):
        A = self.A
        lab = f".Lpl{stage}"
        if check:
            A(f"s_cmp_lg_u32 s{S_WAVE}, 7")
            A(f"s_cbranch_scc1 {lab}_done")
        A("v_and_b32 v3, 7, v1")
        A(f"v_lshlrev_b32 v3, {3 if ONE else 2}, v3")
        if nbr:
            A("v_bfe_u32 v2, v1, 3, 2")
            A("v_min_u32 v2, 2, v2")
            A(f"v_add_u32 v2, s{S_M}, v2")
            A("v_max_u32 v2, 1, v2")
            A("v_min_u32 v2, 32, v2")
            A("v_subrev_u32 v2, 1, v2")
            A("v_lshl_add_u32 v3, v2, 8, v3")
        else:
            A("v_add_u32 v3, s96, v3")
        A("s_mov_b32 s98, 0")
        NP = int(os.environ.get("NPOLL", "1")); PSL = int(os.environ.get("PSL", "1"))
        if ONE and SPOLL and not nbr:
            A("s_mov_b32 s99, 0")
            A.label(f"{lab}_sp")
            A("s_buffer_load_dwordx16 s[8:23], s[92:95], s96 glc")
            A("s_add_u32 s99, s99, 1")
            A("s_waitcnt lgkmcnt(0)")
            for i in range(8): A(f"s_xor_b64 s[{8+2*i}:{9+2*i}], s[{8+2*i}:{9+2*i}], s[100:101]")
            for i in range(1, 8): A(f"s_or_b64 s[8:9], s[8:9], s[{8+2*i}:{9+2*i}]")
            A(f"s_cbranch_scc0 {lab}_sd")
            A(f"s_and_b32 s98, s99, {SPOLL * 4 - 1}")
            A(f"s_cbranch_scc1 {lab}_sp")
            A("buffer_load_dwordx2 v[248:249], v3, s[92:95], 0 offen sc1")
            A("s_waitcnt vmcnt(0)")
            A("v_xor_b32 v248, s100, v248")
            A("v_xor_b32 v249, s101, v249")
            A("v_or_b32 v248, v248, v249")
            A("v_cmp_ne_u32 vcc, 0, v248")
            A("s_cmp_lt_u32 s99, 0x80000")
            A(f"s_cbranch_scc0 {lab}_sd")
            A(f"s_cbranch_vccnz {lab}_sp")
            A.label(f"{lab}_sd")
            if after: after()
        elif ONE:
            self.poll64(lab + "x", [(3, 92, "0")])
        elif NP == 1:
            A.label(f"{lab}_poll")
            A("buffer_load_dword v2, v3, s[92:95], 0 offen sc1")
            A("s_add_u32 s98, s98, 1")
            A("s_waitcnt vmcnt(0)")
            A("v_cmp_ne_u32 vcc, 1, v2")
            A("s_cmp_lt_u32 s98, 0x40000")
            A(f"s_cbranch_scc0 {lab}_done")
            A(f"s_cbranch_vccnz {lab}_poll")
        else:
            for i in range(NP):
                A(f"buffer_load_dword v{248+i}, v3, s[92:95], 0 offen sc1")
                if PSL and i < NP - 1: A(f"s_sleep {PSL}")
            A.label(f"{lab}_poll")
            for i in range(NP):
                A(f"s_waitcnt vmcnt({NP-1})")
                A(f"v_cmp_ne_u32 vcc, 1, v{248+i}")
                A(f"s_cbranch_vccz {lab}_done")
                A(f"buffer_load_dword v{248+i}, v3, s[92:95], 0 offen sc1")
            A("s_add_u32 s98, s98, 1")
            A("s_cmp_lt_u32 s98, 0x40000")
            A(f"s_cbranch_scc1 {lab}_poll")
        A.label(f"{lab}_done")
    def poll64(self, lab, srcs, cnt=99):
        A = self.A
        A(f"s_mov_b32 s{cnt}, 0")
        A.label(f"{lab}_poll")
        for i, (va, srd, so) in enumerate(srcs):
            A(f"buffer_load_dwordx2 v[{248+2*i}:{249+2*i}], v{va}, s[{srd}:{srd+3}], {so} offen sc1")
        A(f"s_add_u32 s{cnt}, s{cnt}, 1")
        A("s_waitcnt vmcnt(0)")
        for i in range(len(srcs)):
            A(f"v_xor_b32 v{248+2*i}, s100, v{248+2*i}")
            A(f"v_xor_b32 v{249+2*i}, s101, v{249+2*i}")
        A("v_or_b32 v248, v248, v249")
        for i in range(1, len(srcs)):
            A(f"v_or3_b32 v248, v248, v{248+2*i}, v{249+2*i}")
        A("v_cmp_ne_u32 vcc, 0, v248")
        A(f"s_cmp_lt_u32 s{cnt}, 0x40000")
        A(f"s_cbranch_scc0 {lab}_done")
        A(f"s_cbranch_vccnz {lab}_poll")
        A.label(f"{lab}_done")
    def pst(self, idx):
        if not PT: return
        A = self.A
        A("s_waitcnt lgkmcnt(0)")
        A("s_memrealtime s[38:39]")
        A("s_waitcnt lgkmcnt(0)")
        A(f"v_writelane_b32 v253, s38, {idx}")
    def pst_flush(self):
        if not PT: return
        A = self.A
        make_srd(A, 36, 68, WS_DBG + 16 * MB, 1 * MB)
        A("s_lshl_b32 s57, s2, 3")
        A("s_add_u32 s57, s57, s40")
        A("s_lshl_b32 s57, s57, 6")
        A("v_lshlrev_b32 v2, 2, v1")
        A("s_mov_b64 exec, 0xffff")
        A("buffer_store_dword v253, v2, s[36:39], s57 offen")
        A("s_mov_b64 exec, -1")
    def pro_pre(self):
        A = self.A
        self.pst(0)
        A("s_load_dwordx2 s[4:5], s[0:1], 0")
        A("s_load_dwordx4 s[72:75], s[0:1], 80")
        A("s_load_dwordx2 s[6:7], s[0:1], 104")
        A("s_memrealtime s[70:71]")
        if int(os.environ.get("CPF", "1")):
            A("s_getpc_b64 s[76:77]")
            A.label(".Lpc0")
            A("s_mov_b32 s78, .Lcode_end-.Lpc0")
            A("s_mov_b32 s79, 0x00020000")
            A("s_lshr_b32 s3, s2, 3")
            A("s_mul_i32 s3, s3, 2304")
            A("v_lshlrev_b32 v2, 6, v0")
            A("v_cmp_gt_u32 vcc, 36, v0")
            A("s_and_b64 exec, exec, vcc")
            A("buffer_load_dword v254, v2, s[76:79], s3 offen")
            A("s_mov_b64 exec, -1")
    def pro_a(self):
        A = self.A
        W = K1.S_WAVE; M_ = K1.S_M; G_ = K1.S_G
        self.pst(1)
        make_srd(A, 76, 72, 0, 1024)
        make_srd(A, 80, 74, 0, 512 * 6144)
        make_srd(A, 84, 68, WS_MOD, 3072 * 4)
        A("s_movk_i32 s3, 6144")
        A("s_mov_b32 s59, s2")
        A("s_cmp_lt_u32 s2, 96")
        A("s_cbranch_scc1 .Lpa_mod")
        make_srd(A, 80, 96, 0, 512 * 3584)
        make_srd(A, 84, 68, WS_CS, 1792 * 4)
        A("s_movk_i32 s3, 3584")
        A("s_sub_u32 s59, s2, 96")
        A.label(".Lpa_mod")
        A("s_cmp_ge_u32 s2, 152")
        A("s_cbranch_scc1 .Lpa_nob")
        A("v_and_b32 v2, 3, v0")
        A("v_lshrrev_b32 v3, 2, v0")
        A("v_mul_lo_u32 v4, v3, s3")
        A("v_lshl_add_u32 v4, v2, 4, v4")
        A("v_lshlrev_b32 v5, 1, v3")
        A("s_lshl_b32 s58, s59, 6")
        A("s_lshl_b32 s3, s3, 7")
        for i in range(4):
            A(f"buffer_load_dwordx4 v[{72+4*i}:{75+4*i}], v4, s[80:83], s58 offen")
            if i < 3: A("s_add_u32 s58, s58, s3")
        for i in range(4):
            A(f"buffer_load_ushort v{64+i}, v5, s[76:79], 0 offen offset:{i*256}")
        A.label(".Lpa_nob")
        make_srd(A, 88, 4, 0, 2 * MB)
        A(f"s_lshl_b32 s3, s{M_}, 3")
        A(f"s_add_u32 s3, s3, s{G_}")
        A("s_lshl_b32 s3, s3, 3")
        A(f"s_add_u32 s3, s3, s{W}")
        A("s_lshl_b32 s3, s3, 10")
        A("buffer_load_dwordx4 v[68:71], v12, s[88:91], s3 offen")
        make_srd(A, 76, 6, 0, 256)
        A(f"s_or_b32 s58, s2, s{W}")
        A("s_cmp_lg_u32 s58, 0")
        A("s_cbranch_scc1 .Lpa_non")
        A("s_or_b32 s70, s70, 1")
        A("v_mov_b32 v2, s70")
        A("v_mov_b32 v3, s71")
        A("v_mov_b32 v4, 0")
        A("s_mov_b64 exec, 1")
        A("buffer_store_dwordx2 v[2:3], v4, s[76:79], 0 offen sc1")
        A("s_mov_b64 exec, -1")
        A.label(".Lpa_non")
        if WQE: self.wqpf()
    def wqpf(self):
        A = self.A; W = K1.S_WAVE
        SQ = 88 if WQE else K1.S_WQ
        if WQE: make_srd(A, 88, 64, 0, 4 * MB)
        A("v_lshrrev_b32 v2, 4, v0")
        A("v_and_b32 v3, 15, v0")
        A("v_lshlrev_b32 v3, 6, v3")
        A("v_lshl_add_u32 v2, v2, 13, v3")
        A("s_lshr_b32 s58, s2, 3")
        A("s_lshl_b32 s58, s58, 17")
        A("s_and_b32 s57, s2, 7")
        A("s_lshl_b32 s57, s57, 10")
        A("s_add_u32 s58, s58, s57")
        A(f"s_cmp_ge_u32 s{W}, 4")
        A("s_cbranch_scc1 .Lpa_nopf")
        A(f"buffer_load_dword v255, v2, s[{SQ}:{SQ+3}], s58 offen")
        A.label(".Lpa_nopf")
    def pro_b(self, nyoung, early, w7):
        A = self.A
        W = K1.S_WAVE; M_ = K1.S_M; G_ = K1.S_G; KM = f"s{K1.S_MASK}"
        NY = nyoung
        ACC = list(range(96, 104)); T = list(range(104, 112)); U = list(range(112, 120)); C = [64, 65, 66, 67]
        make_srd(A, 88, 68, WS_XN, 2 * MB)
        self.pst(2)
        A("s_waitcnt vmcnt(0)")
        self.pst(3)
        if not WQE: self.wqpf()
        A("s_cmp_ge_u32 s2, 152")
        A("s_cbranch_scc1 .Lpb_ln")
        A("s_cmp_lt_u32 s2, 96")
        A("s_cbranch_scc1 .Lpb_silu")
        for c in C: A(f"v_mov_b32 v{c}, 1.0")
        A("s_branch .Lpb_fma")
        A.label(".Lpb_silu")
        for i, c in enumerate(C): A(f"v_lshlrev_b32 v{c}, 16, v{c}")
        for i, c in enumerate(C): A(f"v_mul_f32 v{T[i]}, {fhex(-LOG2E)}, v{c}")
        for i, c in enumerate(C): A(f"v_exp_f32 v{T[i]}, v{T[i]}")
        for i, c in enumerate(C): A(f"v_add_f32 v{T[i]}, 1.0, v{T[i]}")
        for i, c in enumerate(C): A(f"v_rcp_f32 v{U[i]}, v{T[i]}")
        for i, c in enumerate(C): A(f"v_mul_f32 v{U[4+i]}, v{c}, v{U[i]}")
        for i, c in enumerate(C): A(f"v_fma_f32 v{T[i]}, -v{U[4+i]}, v{T[i]}, v{c}")
        for i, c in enumerate(C): A(f"v_fma_f32 v{c}, v{T[i]}, v{U[i]}, v{U[4+i]}")
        for i, c in enumerate(C): A(f"v_cvt_pk_bf16_f32 v{T[i]}, v{c}, v{c}")
        for i, c in enumerate(C): A(f"v_lshlrev_b32 v{c}, 16, v{T[i]}")
        A.label(".Lpb_fma")
        for i in range(4):
            for j in range(4):
                w = 72 + 4 * i + j
                A(f"v_lshlrev_b32 v{T[2*j]}, 16, v{w}")
                A(f"v_and_b32 v{T[2*j+1]}, {KM}, v{w}")
            for j in range(8):
                A(f"v_mul_f32 v{ACC[j]}, v{T[j]}, v{C[i]}" if i == 0 else f"v_fmac_f32 v{ACC[j]}, v{T[j]}, v{C[i]}")
        A("s_nop 1")
        for dpp in ("row_ror:8", "row_ror:4"):
            for v in ACC: A(f"v_add_f32_dpp v{v}, v{v}, v{v} {dpp} row_mask:0xf bank_mask:0xf")
        A("v_and_b32 v2, 3, v1")
        A("v_lshrrev_b32 v3, 4, v0")
        A("v_lshlrev_b32 v3, 7, v3")
        A("v_lshl_add_u32 v3, v2, 5, v3")
        A("v_and_b32 v2, 12, v1")
        A("v_cmp_eq_u32 vcc, 0, v2")
        A("s_and_saveexec_b64 s[58:59], vcc") if False else None
        A("s_mov_b64 s[4:5], exec")
        A("s_and_b64 exec, exec, vcc")
        A(f"ds_write_b128 v3, v[{ACC[0]}:{ACC[3]}]")
        A(f"ds_write_b128 v3, v[{ACC[4]}:{ACC[7]}] offset:16")
        A("s_mov_b64 exec, -1")
        A("s_waitcnt lgkmcnt(0)")
        A("s_barrier")
        self.pst(4)
        A(f"s_cmp_lg_u32 s{W}, 7")
        A("s_cbranch_scc1 .Lpb_ln")
        A("v_and_b32 v2, 31, v1")
        A("v_lshlrev_b32 v2, 2, v2")
        A("v_lshrrev_b32 v3, 5, v1")
        A("v_lshl_add_u32 v3, v3, 11, v2")
        for k in range(16): A(f"ds_read_b32 v{120+k}, v3 offset:{k*128}")
        for k in range(8):
            A(f"s_waitcnt lgkmcnt({14-2*k})")
            A(f"v_add_f32 v{120+2*k}, v{120+2*k}, v{121+2*k}")
        for k in range(4): A(f"v_add_f32 v{120+4*k}, v{120+4*k}, v{122+4*k}")
        A("v_add_f32 v120, v120, v124")
        A("v_add_f32 v128, v128, v132")
        A("v_add_f32 v120, v120, v128")
        A("v_mov_b32 v121, v120")
        A("s_nop 1")
        A("v_permlane32_swap_b32 v120, v121")
        A("s_nop 1")
        A("v_add_f32 v120, v120, v121")
        A("s_cmp_ge_u32 s2, 96")
        A("s_cbranch_scc1 .Lpb_nornd")
        round_bf16_1(A, 120, 121)
        A.label(".Lpb_nornd")
        A("s_lshl_b32 s58, s59, 7")
        A("s_mov_b32 exec_hi, 0")
        A("buffer_store_dword v120, v2, s[84:87], s58 offen sc1")
        A("s_mov_b64 exec, -1")
        A.label(".Lpb_ln")
        A("v_mov_b32 v2, 0")
        A(f"s_cmp_lg_u32 s{W}, 7")
        A("s_cbranch_scc1 .Lpb_ln2")
        A("s_mov_b64 exec, 1")
        A("buffer_load_dwordx2 v[136:137], v2, s[76:79], 0 offen sc1")
        A("s_mov_b64 exec, -1")
        A.label(".Lpb_ln2")
        self.pst(5)
        X = list(range(96, 104)); TT = list(range(104, 116))
        for j in range(4):
            A(f"v_lshlrev_b32 v{X[2*j]}, 16, v{68+j}")
            A(f"v_and_b32 v{X[2*j+1]}, {KM}, v{68+j}")
        ln_rows(A, [(X, TT)], KM)
        pack8(A, X, 68)
        A("buffer_store_dwordx4 v[68:71], v12, s[88:91], s3 offen sc1")
        make_srd(A, 80, 68, FP, 32 * 512)
        self.pst(6)
        A(f"s_cmp_lg_u32 s{W}, 7")
        A("s_cbranch_scc1 .Lpb_w")
        A("s_waitcnt vmcnt(1)")
        A("s_mov_b32 s57, 0")
        A.label(".Lpb_nl")
        A("v_readfirstlane_b32 s100, v136")
        A("v_readfirstlane_b32 s101, v137")
        A("s_add_u32 s57, s57, 1")
        A("s_cmp_lg_u32 s100, 0")
        A("s_cbranch_scc1 .Lpb_nd")
        A("s_cmp_lt_u32 s57, 0x40000")
        A("s_cbranch_scc0 .Lpb_nd")
        A("s_mov_b64 exec, 1")
        A("buffer_load_dwordx2 v[136:137], v2, s[76:79], 0 offen sc1")
        A("s_mov_b64 exec, -1")
        A("s_waitcnt vmcnt(0)")
        A("s_branch .Lpb_nl")
        A.label(".Lpb_nd")
        A("v_mov_b32 v136, s100")
        A("v_mov_b32 v137, s101")
        self.pst(7)
        A("s_cmp_ge_u32 s2, 152")
        A("s_cbranch_scc1 .Lpb_w")
        A("v_lshlrev_b32 v3, 9, v1")
        A("s_lshl_b32 s58, s2, 3")
        A("s_cmp_lt_u32 s2, 32")
        A("s_cbranch_scc1 .Lpb_crit")
        make_srd(A, 80, 68, FQ_, 32 * 1024)
        A("v_lshlrev_b32 v3, 10, v1")
        A("s_sub_u32 s58, s58, 256")
        A.label(".Lpb_crit")
        A("s_mov_b32 exec_hi, 0")
        A("buffer_store_dwordx2 v[136:137], v3, s[80:83], s58 offen sc1")
        A("s_mov_b64 exec, -1")
        make_srd(A, 80, 68, FP, 32 * 512)
        A.label(".Lpb_w")
        A("s_waitcnt vmcnt(1)") if False else None
        A("s_waitcnt vmcnt(0)")
        self.pst(8)
        A("s_barrier")
        self.pst(9)
        A(f"s_cmp_lg_u32 s{W}, 7")
        A("s_cbranch_scc1 .Lpb_early")
        A(f"s_lshl_b32 s58, s{M_}, 9")
        A(f"s_lshl_b32 s57, s{G_}, 3")
        A("s_add_u32 s57, s57, 256")
        A("v_mov_b32 v3, s57")
        A("s_mov_b64 exec, 1")
        A("buffer_store_dwordx2 v[136:137], v3, s[80:83], s58 offen sc1")
        A("s_mov_b64 exec, -1")
        A("v_min_u32 v3, 39, v1")
        A("v_lshlrev_b32 v3, 3, v3")
        sv99 = None
        w7()
        self.poll64(".Lplp", [(3, 80, "s58")], cnt=57)
        A("s_branch .Lpb_done")
        A.label(".Lpb_early")
        early()
        A.label(".Lpb_done")
        A("s_barrier")
        self.pst(10)
        self.pst_flush()
    def p2_a(self):
        A = self.A
        W = K1.S_WAVE; M_ = K1.S_M; G_ = K1.S_G
        SCR = K1.STG + 16384
        A("s_waitcnt lgkmcnt(0)")
        self.pst(1)
        make_srd(A, 76, 72, 0, 1024)
        make_srd(A, 80, 74, 0, 512 * 6144)
        make_srd(A, 84, 68, WS_MOD, 4 * MODP)
        make_srd(A, 88, 4, 0, 2 * MB)
        A("s_movk_i32 s3, 6144")
        A("s_and_b32 s4, s2, 15")
        A("s_lshr_b32 s5, s2, 4")
        A("s_lshl_b32 s57, s5, 8")
        A("s_cmp_lt_u32 s2, 64")
        A("s_cbranch_scc1 .Lp2a_dec")
        A("s_sub_u32 s4, s2, 64")
        A("s_and_b32 s5, s4, 1")
        A("s_lshr_b32 s4, s4, 1")
        A("s_lshl_b32 s57, s5, 9")
        A("s_add_u32 s4, s4, 16")
        A("s_cmp_lt_u32 s4, 48")
        A("s_cbranch_scc1 .Lp2a_dec")
        A("s_sub_u32 s4, s4, 48")
        make_srd(A, 80, 96, 0, 512 * 3584)
        make_srd(A, 84, 68, WS_CS, 2 * CSP)
        A("s_movk_i32 s3, 3584")
        A.label(".Lp2a_dec")
        A("s_lshr_b32 s58, s57, 1")
        A("s_mul_i32 s58, s58, s3")
        A("s_lshl_b32 s59, s4, 7")
        A("s_add_u32 s58, s58, s59")
        A("s_lshl_b32 s59, s4, 8")
        A(f"s_movk_i32 s4, {MODP}")
        A("s_cmp_eq_u32 s3, 3584")
        A(f"s_cselect_b32 s4, {CSP}, s4")
        A("s_mul_i32 s4, s4, s5")
        A("s_add_u32 s59, s59, s4")
        A("v_and_b32 v2, 7, v0")
        A("v_bfe_u32 v3, v0, 3, 5")
        A("v_mul_lo_u32 v60, v3, s3")
        A("v_lshl_add_u32 v60, v2, 4, v60")
        A("v_lshlrev_b32 v61, 1, v3")
        A("s_lshl_b32 s70, s3, 5") if False else None
        A("s_lshl_b32 s5, s3, 5")
        A(f"s_cmp_ge_u32 s{W}, 4")
        A("s_cbranch_scc1 .Lp2a_end")
        A("s_cmp_ge_u32 s2, 64")
        A("s_cbranch_scc1 .Lp2a_x")
        self.p2_tload(0)
        A.label(".Lp2a_x")
        A(f"s_lshl_b32 s3, s{M_}, 3")
        A(f"s_add_u32 s3, s3, s{G_}")
        A("s_lshl_b32 s3, s3, 2")
        A(f"s_add_u32 s3, s3, s{W}")
        A("s_lshl_b32 s3, s3, 11")
        A("buffer_load_dwordx4 v[88:91], v12, s[88:91], s3 offen")
        A("buffer_load_dwordx4 v[92:95], v12, s[88:91], s3 offen offset:1024")
        make_srd(A, 88, 6, 0, 256)
        A(f"s_or_b32 s4, s2, s{W}")
        A("s_cmp_lg_u32 s4, 0")
        A("s_cbranch_scc1 .Lp2a_non")
        A("s_or_b32 s70, s70, 1")
        A("v_mov_b32 v2, s70")
        A("v_mov_b32 v3, s71")
        A("v_mov_b32 v4, 0")
        A("s_mov_b64 exec, 1")
        A("buffer_store_dwordx2 v[2:3], v4, s[88:91], 0 offen sc1")
        A("s_mov_b64 exec, -1")
        A.label(".Lp2a_non")
        A(f"v_mov_b32 v2, {SCR + 8192}")
        A("v_mov_b32 v4, 0")
        A("v_mov_b32 v5, 0")
        A("ds_write_b64 v2, v[4:5]")
        A("s_branch .Lp2a_e2")
        A.label(".Lp2a_end")
        if WQF == 1: self.p2_wq()
        if WQF == 2:
            A("s_cmp_lt_u32 s2, 64")
            A("s_cbranch_scc1 .Lp2a_e2") if False else None
            A("s_sleep 4")
            self.p2_wq()
        if TLW:
            A("v_lshlrev_b32 v2, 21, v1")
            A(f"v_add_u32 v2, {(2 << 20) - 128}, v2")
            make_srd(A, 88, 68, 0, 48 * MB if TLW >= 2 else 4 * MB)
            A(f"s_cmp_lg_u32 s{W}, 4")
            A("s_cbranch_scc1 .Lp2a_e2")
            A("buffer_load_dword v252, v2, s[88:91], 0 offen sc1")
            if TLW == 1:
                A(f"s_mov_b32 s4, {WS_FLAG}")
                make_srd(A, 88, 68, 0, WS_FLAG + 2 * MB)
                A("buffer_load_dword v252, v2, s[88:91], s4 offen sc1")
        A.label(".Lp2a_e2")
        if EB:
            A("s_waitcnt lgkmcnt(0)")
            A("s_barrier")
            A(f"s_cmp_lt_u32 s{W}, 4")
            A("s_cbranch_scc1 .Lp2a_e3")
            self.p2_bulk1()
            A.label(".Lp2a_e3")
        A("s_mov_b32 s70, s57")
        A("s_mov_b32 s71, s58")
    def p2_bulk1(self):
        A = self.A; W = K1.S_WAVE
        A("s_sub_u32 s4, s2, 64")
        A("s_cmp_ge_u32 s4, 120")
        A("s_cbranch_scc1 .Lp2_l1")
        self.p2_tload(0); self.p2_tload(1)
        A.label(".Lp2_l1")
        if EB: make_srd(A, K1.S_WQ, 64, 0, 4 * MB)
        if DLY == 1 and not EB:
            A("s_cmp_ge_u32 s2, 64")
            A("s_cbranch_scc1 .Lp2_l3")
        if DLY and not EB:
            self.lds_spin(".Lp2_sd", 4, 4, True)
            A.label(".Lp2_l3")
        if not WQF: self.p2_wq()
    def p2_wq(self):
        A = self.A; W = K1.S_WAVE
        if WQF: make_srd(A, K1.S_WQ, 64, 0, 4 * MB)
        W128 = int(os.environ.get("W128", "0"))
        A("v_and_b32 v4, 255, v0")
        A(f"v_lshrrev_b32 v2, {3 if W128 else 4}, v4")
        A(f"v_and_b32 v3, {7 if W128 else 15}, v4")
        A(f"v_lshlrev_b32 v3, {7 if W128 else 6}, v3")
        A("v_lshl_add_u32 v2, v2, 13, v3")
        A("s_lshr_b32 s36, s2, 3")
        A("s_lshl_b32 s36, s36, 17")
        A("s_and_b32 s37, s2, 7")
        A("s_lshl_b32 s37, s37, 10")
        A("s_add_u32 s36, s36, s37")
        if W128:
            A(f"s_cmp_ge_u32 s{W}, 6")
            A("s_cbranch_scc1 .Lp2_l2")
        A(f"buffer_load_dword v255, v2, s[{K1.S_WQ}:{K1.S_WQ+3}], s36 offen")
        if W128: A.label(".Lp2_l2")
    def p2_tload(self, b):
        A = self.A
        wd = (72, 140)[b]; cd = (64, 156)[b]
        for i in range(4):
            A(f"buffer_load_dwordx4 v[{wd+4*i}:{wd+4*i+3}], v60, s[80:83], s58 offen")
            A("s_add_u32 s58, s58, s5")
        for i in range(4):
            A(f"buffer_load_ushort v{cd+i}, v61, s[76:79], s57 offen offset:{b*256 + i*64}")
    def lds_spin(self, lab, off, target, sleep=False, va=9):
        A = self.A
        A.label(lab)
        if sleep: A("s_sleep 2")
        A(f"ds_read_b32 v3, v{va} offset:{off}")
        A("s_waitcnt lgkmcnt(0)")
        A("v_readfirstlane_b32 s4, v3")
        A(f"s_cmp_lt_u32 s4, {target}")
        A(f"s_cbranch_scc1 {lab}")
    def lds_inc(self, off, va=9):
        A = self.A
        A("v_mov_b32 v3, 1")
        A("s_mov_b64 exec, 1")
        A(f"ds_add_u32 v{va}, v3 offset:{off}")
        A("s_mov_b64 exec, -1")
    def p2_gemv(self, sfx, nb, maybe_ones, col=3):
        A = self.A
        W = K1.S_WAVE; KM = f"s{K1.S_MASK}"; SCR = K1.STG + 16384
        ACC = list(range(96, 104)); T = list(range(104, 112)); U = list(range(112, 128))
        C = [64, 65, 66, 67] + ([156, 157, 158, 159] if nb == 2 else [])
        n = len(C)
        if maybe_ones:
            A("s_cmp_lt_u32 s2, 128")
            A(f"s_cbranch_scc1 .Lp2_silu{sfx}")
            for c in C: A(f"v_mov_b32 v{c}, 1.0")
            A(f"s_branch .Lp2_fma{sfx}")
            A.label(f".Lp2_silu{sfx}")
        for i, c in enumerate(C): A(f"v_lshlrev_b32 v{c}, 16, v{c}")
        for i, c in enumerate(C): A(f"v_mul_f32 v{T[i]}, {fhex(-LOG2E)}, v{c}")
        for i, c in enumerate(C): A(f"v_exp_f32 v{T[i]}, v{T[i]}")
        for i, c in enumerate(C): A(f"v_add_f32 v{T[i]}, 1.0, v{T[i]}")
        for i, c in enumerate(C): A(f"v_rcp_f32 v{U[i]}, v{T[i]}")
        for i, c in enumerate(C): A(f"v_mul_f32 v{U[8+i]}, v{c}, v{U[i]}")
        for i, c in enumerate(C): A(f"v_fma_f32 v{T[i]}, -v{U[8+i]}, v{T[i]}, v{c}")
        for i, c in enumerate(C): A(f"v_fma_f32 v{c}, v{T[i]}, v{U[i]}, v{U[8+i]}")
        for i, c in enumerate(C): A(f"v_cvt_pk_bf16_f32 v{T[i]}, v{c}, v{c}")
        for i, c in enumerate(C): A(f"v_lshlrev_b32 v{c}, 16, v{T[i]}")
        if maybe_ones: A.label(f".Lp2_fma{sfx}")
        for i in range(n):
            for j in range(4):
                w = (72, 140)[i >> 2] + 4 * (i & 3) + j
                A(f"v_lshlrev_b32 v{T[2*j]}, 16, v{w}")
                A(f"v_and_b32 v{T[2*j+1]}, {KM}, v{w}")
            for j in range(8):
                A(f"v_mul_f32 v{ACC[j]}, v{T[j]}, v{C[i]}" if i == 0 else f"v_fmac_f32 v{ACC[j]}, v{T[j]}, v{C[i]}")
        A("v_and_b32 v2, 7, v1")
        A("v_bfe_u32 v3, v0, 4, 4")
        for v in ACC: A(f"v_add_f32_dpp v{v}, v{v}, v{v} row_ror:8 row_mask:0xf bank_mask:0xf")
        A("v_lshlrev_b32 v3, 8, v3")
        A("v_lshl_add_u32 v3, v2, 5, v3")
        A(f"v_add_u32 v3, {SCR}, v3")
        A("v_and_b32 v2, 8, v1")
        A("v_cmp_eq_u32 vcc, 0, v2")
        A("s_and_b64 exec, exec, vcc")
        A(f"ds_write_b128 v3, v[{ACC[0]}:{ACC[3]}]")
        A(f"ds_write_b128 v3, v[{ACC[4]}:{ACC[7]}] offset:16")
        A("s_mov_b64 exec, -1")
        A("s_waitcnt lgkmcnt(0)")
        self.lds_inc(0)
        A(f"s_cmp_lg_u32 s{W}, {col}")
        A(f"s_cbranch_scc1 .Lp2_gd{sfx}")
        self.lds_spin(f".Lp2_sp{sfx}", 0, 4)
        A("v_lshlrev_b32 v2, 2, v1")
        A(f"v_add_u32 v3, {SCR}, v2")
        for k in range(16): A(f"ds_read_b32 v{104+k}, v3 offset:{k*256}")
        for k in range(8):
            A(f"s_waitcnt lgkmcnt({14-2*k})")
            A(f"v_add_f32 v{104+2*k}, v{104+2*k}, v{105+2*k}")
        for k in range(4): A(f"v_add_f32 v{104+4*k}, v{104+4*k}, v{106+4*k}")
        A("v_add_f32 v104, v104, v108")
        A("v_add_f32 v112, v112, v116")
        A("v_add_f32 v68, v104, v112")
        A("buffer_store_dword v68, v2, s[84:87], s59 offen sc1")
        A.label(f".Lp2_gd{sfx}")
    def p2_ln(self):
        A = self.A; KM = f"s{K1.S_MASK}"
        X0 = list(range(96, 104)); X1 = list(range(120, 128)); T0 = list(range(104, 116)); T1 = list(range(128, 140))
        for r, X in enumerate((X0, X1)):
            for j in range(4):
                A(f"v_lshlrev_b32 v{X[2*j]}, 16, v{88+4*r+j}")
                A(f"v_and_b32 v{X[2*j+1]}, {KM}, v{88+4*r+j}")
        ln_rows(A, [(X0, T0), (X1, T1)], KM, False)
        pack8(A, X0, 88); pack8(A, X1, 92)
        A(f"buffer_store_dwordx4 v[88:91], v12, s[{K1.S_XN}:{K1.S_XN+3}], s3 offen sc1")
        A(f"buffer_store_dwordx4 v[92:95], v12, s[{K1.S_XN}:{K1.S_XN+3}], s3 offen offset:1024 sc1")
    def p2_nonce(self, sfx):
        A = self.A
        A("s_mov_b32 s4, 0")
        A.label(f".Lp2_nl{sfx}")
        A("v_readfirstlane_b32 s100, v70")
        A("v_readfirstlane_b32 s101, v71")
        A("s_add_u32 s4, s4, 1")
        A("s_cmp_lg_u32 s100, 0")
        A(f"s_cbranch_scc1 .Lp2_nd{sfx}")
        A("s_cmp_lt_u32 s4, 0x40000")
        A(f"s_cbranch_scc0 .Lp2_nd{sfx}")
        self.p2_nload()
        A("s_waitcnt vmcnt(0)")
        A(f"s_branch .Lp2_nl{sfx}")
        A.label(f".Lp2_nd{sfx}")
        A("v_mov_b32 v70, s100")
        A("v_mov_b32 v71, s101")
    def p2_nload(self):
        A = self.A
        A("v_mov_b32 v2, 0")
        A("s_mov_b64 exec, 1")
        A("buffer_load_dwordx2 v[70:71], v2, s[88:91], 0 offen sc1")
        A("s_mov_b64 exec, -1")
    def p2_pubtask(self, region, base):
        A = self.A
        make_srd(A, 76, 68, region, 32 * 1024)
        A("v_lshlrev_b32 v3, 10, v1")
        A(f"s_sub_u32 s4, s2, {base}")
        A("s_lshl_b32 s4, s4, 3")
        A("s_mov_b32 exec_hi, 0")
        A("buffer_store_dwordx2 v[70:71], v3, s[76:79], s4 offen sc1")
        A("s_mov_b64 exec, -1")
    def p2_pubxn(self, sfx):
        A = self.A
        self.lds_spin(f".Lp2_sx{sfx}", 4, 3)
        make_srd(A, 76, 68, FP, 32 * 1024)
        A(f"s_lshl_b32 s4, s{K1.S_M}, 10")
        A(f"s_lshl_b32 s5, s{K1.S_G}, 3")
        A("s_add_u32 s5, s5, 512")
        A("v_mov_b32 v3, s5")
        A("s_mov_b64 exec, 1")
        A("buffer_store_dwordx2 v[70:71], v3, s[76:79], s4 offen sc1")
        A("s_mov_b64 exec, -1")
    def p2_b(self, loader, cfix, xn_loads):
        A = self.A
        W = K1.S_WAVE; M_ = K1.S_M; KM = f"s{K1.S_MASK}"; SCR = K1.STG + 16384
        A(f"v_mov_b32 v9, {SCR + 8192}")
        if not EB:
            A("s_waitcnt lgkmcnt(0)")
            A("s_barrier")
        self.pst(2)
        A(f"s_cmp_lt_u32 s{W}, 4")
        A("s_cbranch_scc1 .Lp2_c")
        if not EB:
            A("s_mov_b32 s57, s70")
            A("s_mov_b32 s58, s71")
            self.p2_bulk1()
        elif DLY == 1:
            A("s_cmp_ge_u32 s2, 64")
            A("s_cbranch_scc1 .Lp2_l4")
            self.lds_spin(".Lp2_sd2", 4, 4, True)
            A.label(".Lp2_l4")
        loader()
        A("s_sub_u32 s4, s2, 64")
        A("s_cmp_ge_u32 s4, 120")
        A("s_cbranch_scc1 .Lp2_X")
        A(f"s_waitcnt vmcnt({4 * int(os.environ.get('LDE', '2'))})")
        self.p2_gemv("b", 2, True, 7)
        A("s_branch .Lp2_X")
        A.label(".Lp2_c")
        cfix()
        A("s_waitcnt vmcnt(0)")
        self.pst(3)
        A("s_cmp_ge_u32 s2, 64")
        A("s_cbranch_scc1 .Lp2_a0")
        self.p2_gemv("a", 1, False)
        A.label(".Lp2_a0")
        self.pst(4)
        A(f"s_cmp_lg_u32 s{W}, 3")
        A("s_cbranch_scc1 .Lp2_a1")
        self.p2_nload()
        A.label(".Lp2_a1")
        self.p2_ln()
        self.pst(6)
        A(f"s_cmp_lg_u32 s{W}, 3")
        A("s_cbranch_scc1 .Lp2_ack")
        A("s_waitcnt vmcnt(2)")
        self.p2_nonce("a")
        A("s_cmp_ge_u32 s2, 64")
        A("s_cbranch_scc1 .Lp2_a2")
        self.p2_pubtask(FP, 0)
        self.pst(7)
        A("s_waitcnt vmcnt(1)")
        A("s_branch .Lp2_a3")
        A.label(".Lp2_a2")
        A("s_waitcnt vmcnt(0)")
        A.label(".Lp2_a3")
        self.p2_pubxn("a")
        self.lds_inc(4)
        A("s_branch .Lp2_col")
        A.label(".Lp2_ack")
        A("s_waitcnt vmcnt(0)")
        self.lds_inc(4)
        A("s_branch .Lp2_X")
        A.label(".Lp2_col")
        make_srd(A, 76, 68, FP, 32 * 1024)
        A(f"s_lshl_b32 s5, s{M_}, 10")
        A("v_and_b32 v3, 7, v1")
        A("v_lshlrev_b32 v3, 3, v3")
        A("v_add_u32 v3, 512, v3")
        A("ds_write_b64 v9, v[70:71] offset:16")
        def parts():
            make_srd(A, 84, 68, WS_MOD, 4 * MODP)
            for i in range(4):
                for p in range(4):
                    A(f"s_movk_i32 s4, {p * MODP}") if p * MODP < 32768 else A(f"s_mov_b32 s4, {p * MODP}")
                    A(f"buffer_load_dwordx4 v[{72+16*i+4*p}:{75+16*i+4*p}], v12, s[84:87], s4 offen offset:{i*1024}")
        if MP:
            A("v_lshlrev_b32 v4, 3, v1")
            self.poll64(".Lplx", [(3, 76, "s5"), (4, 76, "s5")], cnt=4)
            parts()
        else:
            self.poll64(".Lplx", [(3, 76, "s5")], cnt=4)
        A.label(".Lp2_X")
        self.pst(8)
        A("s_waitcnt lgkmcnt(0)")
        A("s_barrier")
        self.pst(9)
        xn_loads()
        A(f"s_cmp_lg_u32 s{W}, 3")
        A("s_cbranch_scc1 .Lp2_Y")
        if not MP:
            make_srd(A, 76, 68, FP, 32 * 1024)
            A(f"s_lshl_b32 s5, s{M_}, 10")
            A("v_lshlrev_b32 v3, 3, v1")
            self.poll64(".Lplm", [(3, 76, "s5")], cnt=4)
            parts()
        A(f"v_add_u32 v3, {SCR + 4096}, v12")
        for i in range(4):
            b = 72 + 16 * i
            A(f"s_waitcnt vmcnt({12 - 4*i + (8 if MP else 0)})")
            pk(A, "v_pk_add_f32", b, b, b + 4); pk(A, "v_pk_add_f32", b + 2, b + 2, b + 6)
            pk(A, "v_pk_add_f32", b + 8, b + 8, b + 12); pk(A, "v_pk_add_f32", b + 10, b + 10, b + 14)
            pk(A, "v_pk_add_f32", b, b, b + 8); pk(A, "v_pk_add_f32", b + 2, b + 2, b + 10)
            round_multi(A, [b, b + 1, b + 2, b + 3], [b + 4, b + 5], KM)
            if i >= 2:
                for e in range(4): A(f"v_add_f32 v{b+e}, 1.0, v{b+e}")
                round_multi(A, [b, b + 1, b + 2, b + 3], [b + 4, b + 5], KM)
            A(f"ds_write_b128 v3, v[{b}:{b+3}] offset:{i*1024}")
        A("s_waitcnt lgkmcnt(0)")
        A.label(".Lp2_Y")
        A("s_barrier")
        self.pst(10)
        self.pst_flush()
        A("ds_read_b64 v[2:3], v9 offset:16")
        A("s_waitcnt lgkmcnt(0)")
        A("v_readfirstlane_b32 s100, v2")
        A("v_readfirstlane_b32 s101, v3")
    def p2_c(self):
        A = self.A
        A(f"s_cmp_lg_u32 s{K1.S_WAVE}, 7")
        A("s_cbranch_scc1 .Lp2c_end")
        A("s_sub_u32 s4, s2, 64")
        A("s_cmp_ge_u32 s4, 120")
        A("s_cbranch_scc1 .Lp2c_end")
        A("v_mov_b32 v70, s100")
        A("v_mov_b32 v71, s101")
        A("s_waitcnt vmcnt(0)")
        self.p2_pubtask(FQ_, 64)
        A.label(".Lp2c_end")
    def w_setup(self, widx, K, rowbytes, woff_code):
        A = self.A
        make_srd(A, S_W, P_W + 2 * widx, 0, K * rowbytes)
        A(f"v_lshrrev_b32 v2, 3, v{L}")
        A(f"v_and_b32 v3, 7, v{L}")
        A(f"v_lshlrev_b32 v{V_W}, 1, v2")
        A(f"v_and_b32 v{V_W}, 4, v{V_W}")
        A(f"v_xor_b32 v3, v3, v{V_W}")
        A("v_lshlrev_b32 v3, 4, v3")
        A(f"v_mul_u32_u24 v2, {rowbytes}, v2") if rowbytes < 64 else None
        A(f"s_movk_i32 s{S_WOFF}, {rowbytes}")
        A(f"v_mul_lo_u32 v2, v2, s{S_WOFF}")
        A(f"v_add_u32 v{V_W}, v2, v3")
        woff_code()
        self.wrb = rowbytes
    def dmaW(self, st, ldsoff, tag="w"):
        A = self.A
        for i in range(2):
            A(f"s_add_u32 m0, s{S_RB}, {ldsoff + i * 1024}")
            A("s_nop 0")
            A(f"buffer_load_dwordx4 v{V_W}, s[{S_W}:{S_W+3}], s{S_WOFF} offen lds")
            self.vm.issue((tag, st))
            A(f"s_add_u32 s{S_WOFF}, s{S_WOFF}, {8 * self.wrb}")
    def pf_g64(self, widx, K, WB, DW, lo=0, hi=99, rot=0):
        A = self.A
        def woff():
            A(f"s_mul_i32 s{S_WOFF}, s{S_WAVE}, {(K // 4) * 1024}")
            A(f"s_lshl_b32 s{S_TMP+11}, s{S_J}, 7")
            A(f"s_add_u32 s{S_WOFF}, s{S_WOFF}, s{S_TMP+11}")
        if lo == 0: self.w_setup(widx, K, 1024, woff)
        self.wrb = 1024
        for st in range(lo, min(DW, hi)): self.dmaW(st, WB + ((st + rot) % DW) * 2048, "wn" if PFE == 3 else "w")
    def pf_k5(self, lo=0, hi=99):
        A = self.A
        def woff():
            A(f"s_min_u32 s{S_WOFF}, s{S_J}, 6")
            A(f"s_lshl_b32 s{S_WOFF}, s{S_WOFF}, 9")
            A(f"s_lshl_b32 s{S_TMP+11}, s{S_WAVE}, 7")
            A(f"s_add_u32 s{S_WOFF}, s{S_WOFF}, s{S_TMP+11}")
        if lo == 0: self.w_setup(2, 512, 3584, woff)
        self.wrb = 3584
        for st in range(lo, min(K5D, hi)): self.dmaW(st, K5RB + st * 2048, "wn" if PFE == 3 else "w")
    def l2pf(self, widx, size):
        A = self.A
        per = size // 32
        A("s_lshr_b32 s78, s2, 3")
        A(f"s_mul_i32 s78, s78, {per}")
        make_srd(A, 80, P_W + 2 * widx, "s78", per)
        A("v_and_b32 v2, 255, v0")
        A("v_lshlrev_b32 v2, 7, v2")
        n = (per + 32767) // 32768
        for i in range(n):
            A(f"s_mov_b32 s78, {i * 32768}")
            A("buffer_load_dword v3, v2, s[80:83], s78 offen")
        return n
    def persist(self):
        A = self.A
        A(f"s_load_dwordx2 s[{P_X}:{P_X+1}], s[0:1], 0")
        A(f"s_load_dwordx2 s[{P_OUT}:{P_OUT+1}], s[0:1], 96")
        A(f"s_load_dwordx2 s[{P_WS}:{P_WS+1}], s[0:1], 112")
        A(f"s_load_dwordx8 s[{P_W}:{P_W+7}], s[0:1], 48")
        A("v_and_b32 v1, 63, v0")
        A("v_lshrrev_b32 v2, 6, v0")
        A("s_nop 0")
        A(f"v_readfirstlane_b32 s{S_WAVE}, v2")
        A(f"s_and_b32 s{S_M}, s2, 31")
        A(f"s_lshr_b32 s{S_J}, s2, 5")
        A(f"s_mov_b32 s{S_MASK}, 0xffff0000")
        A(f"s_mul_i32 s{S_RB}, s{S_WAVE}, {RG}")
        A("s_waitcnt lgkmcnt(0)")
    def kr(self):
        A = self.A; vm = self.vm
        S_X = 8; S_MOD = 12; S_PT = 16; S_X2 = 20; S_H = 24; S_HN = 28; S_H1 = 36
        PR = 64; XR = 16; GA = 24; CB = 32; SB = 40
        A("v_lshlrev_b32 v9, 4, v1")
        A("v_lshlrev_b32 v10, 5, v1")
        A(f"s_lshl_b32 s3, s{S_M}, 3")
        A(f"s_add_u32 s3, s3, s{S_J}")
        A("s_lshl_b32 s3, s3, 3")
        A(f"s_add_u32 s3, s3, s{S_WAVE}")
        A("s_lshl_b32 s3, s3, 10")
        make_srd(A, S_X, P_X, 0, 2 * MB)
        make_srd(A, S_MOD, P_WS, WS_MOD, 4 * MODP)
        A(f"buffer_load_dwordx4 v[{XR}:{XR+3}], v9, s[{S_X}:{S_X+3}], s3 offen"); vm.issue("x")
        def modloads():
            for part in range(2 if V2 else 1):
                for (dst, idx) in ((CB, 4), (GA, 2), (SB, 3)):
                    d = dst + 88 * part
                    A(f"s_movk_i32 s{S_TMP}, {idx*2048 + part*MODP}")
                    A(f"buffer_load_dwordx4 v[{d}:{d+3}], v10, s[{S_MOD}:{S_MOD+3}], s{S_TMP} offen"); vm.issue("x")
                    A(f"buffer_load_dwordx4 v[{d+4}:{d+7}], v10, s[{S_MOD}:{S_MOD+3}], s{S_TMP} offen offset:16"); vm.issue("x")
        if W0M:
            A("v_add_u32 v2, 81920, v10")
            for q, off in enumerate((0, 16384, 49152)):
                A(f"ds_read_b128 v[{24+8*q}:{27+8*q}], v2 offset:{off}")
                A(f"ds_read_b128 v[{28+8*q}:{31+8*q}], v2 offset:{off+16}")
            A("s_waitcnt lgkmcnt(0)")
        else: modloads()
        make_srd(A, S_PT, P_WS, WS_PART, 8 * 2048 * 512 * 2)
        make_srd(A, S_X2, P_WS, WS_X2, 2 * MB)
        make_srd(A, S_H, P_WS, WS_H, 2 * MB)
        make_srd(A, S_HN, P_WS, WS_HN, 2 * MB)
        make_srd(A, S_H1, P_WS, WS_H1, 2052 * 1024)
        if HP:
            A(f"v_lshlrev_b32 v2, 2, v1")
            A(f"v_add_u32 v2, {CNT}, v2")
            A("v_mov_b32 v3, 0")
            A("ds_write_b32 v2, v3")
            A("s_waitcnt lgkmcnt(0)")
        A(f"s_cmp_ge_u32 s{S_WAVE}, 4")
        A("s_cbranch_scc1 .Lkr_nz2")
        A(f"s_lshr_b32 s{S_TMP}, s{S_WAVE}, 1")
        A(f"s_mul_i32 s{S_TMP}, s{S_TMP}, 31")
        A(f"s_cmp_lg_u32 s2, s{S_TMP}")
        A("s_cbranch_scc1 .Lkr_nz")
        A(f"s_lshl_b32 s{S_TMP}, s{S_WAVE}, 10")
        A(f"s_add_u32 s{S_TMP+1}, s{S_TMP}, {2048*1024}")
        A(f"s_cmp_lt_u32 s{S_WAVE}, 2")
        A(f"s_cselect_b32 s{S_TMP}, s{S_TMP}, s{S_TMP+1}")
        for j in range(4): A(f"v_mov_b32 v{12+j}, 0")
        A(f"buffer_store_dwordx4 v[12:15], v9, s[{S_H1}:{S_H1+3}], s{S_TMP} offen sc1")
        A.label(".Lkr_nz")
        PFW1 = int(os.environ.get("PFW1", "1"))
        if PRG:
            PFP = int(os.environ.get("PFP", "1"))
            if PFP == 0: self.pf_g64(0, 512, 24576, 8)
            PFW1 = 0
            A.label(".Lkr_nz2")
            A(f"s_mul_i32 s{S_TMP}, s{S_M}, {7 * 65536}")
            A(f"s_add_u32 s{S_TMP}, s{S_TMP}, s3")
            A(f"v_mov_b32 v4, {MSK}")
            A(f"s_mov_b32 s{S_TMP+1}, 0")
            A(f"s_cmp_lg_u32 s{S_WAVE}, 7")
            A("s_cbranch_scc1 .Lkr_lp")
            A("v_and_b32 v3, 7, v1")
            A("v_lshlrev_b32 v3, 3, v3")
            A("v_add_u32 v3, s96, v3")
            A("s_mov_b32 s99, 0")
            A.label(".Lkr_pp")
            A("buffer_load_dwordx2 v[248:249], v3, s[92:95], 0 offen sc1")
            A("s_add_u32 s99, s99, 1")
            A("s_waitcnt vmcnt(0)")
            A("v_xor_b32 v248, s100, v248")
            A("v_xor_b32 v249, s101, v249")
            A("v_or_b32 v248, v248, v249")
            A("v_cmp_eq_u32 vcc, 0, v248")
            A(f"s_and_b32 s{S_TMP+2}, vcc_lo, 0xff")
            A("s_cmp_lt_u32 s99, 0x40000")
            A(f"s_cselect_b32 s{S_TMP+2}, s{S_TMP+2}, 0xff")
            A(f"v_mov_b32 v5, s{S_TMP+2}")
            A("s_mov_b64 exec, 1")
            A("ds_or_b32 v4, v5")
            A("s_mov_b64 exec, -1")
            A(f"s_cmp_lg_u32 s{S_TMP+2}, 0xff")
            A("s_cbranch_scc1 .Lkr_pp")
            self.stamp(4)
            A.label(".Lkr_lp")
            A("ds_read_b32 v5, v4")
            A("s_waitcnt lgkmcnt(0)")
            A(f"v_readfirstlane_b32 s{S_TMP+2}, v5")
            A(f"s_andn2_b32 s{S_TMP+3}, s{S_TMP+2}, s{S_TMP+1}")
            A("s_cbranch_scc1 .Lkr_new")
            A("s_sleep 1")
            A("s_branch .Lkr_lp")
            A.label(".Lkr_new")
            for g in range(8):
                A(f"s_bitcmp1_b32 s{S_TMP+3}, {g}")
                A(f"s_cbranch_scc0 .Lkr_n{g}")
                A(f"s_add_u32 s{S_TMP+4}, s{S_TMP}, {g * 65536}")
                A(f"buffer_load_dwordx4 v[{PR+4*g}:{PR+4*g+3}], v9, s[{S_PT}:{S_PT+3}], s{S_TMP+4} offen")
                A.label(f".Lkr_n{g}")
            A(f"s_mov_b32 s{S_TMP+1}, s{S_TMP+2}")
            A(f"s_cmp_lg_u32 s{S_TMP+1}, 0xff")
            A("s_cbranch_scc1 .Lkr_lp")
            if PFP == 1:
                A(f"s_cmp_ge_u32 s{S_WAVE}, 4")
                A("s_cbranch_scc1 .Lkr_w0")
                self.pf_g64(0, 512, 24576, 8)
                A("s_waitcnt vmcnt(16)")
                A("s_branch .Lkr_w1")
                A.label(".Lkr_w0")
            A("s_waitcnt vmcnt(0)")
            if PFP == 1: A.label(".Lkr_w1")
            if PFP == 2: PFW1 = 2
            vm.ops = []
        else:
            sv = list(vm.ops)
            if PFW1 == 1: self.pf_g64(0, 512, 24576, 8)
            vm.ops = sv
            A.label(".Lkr_nz2")
            def rebuild():
                make_srd(A, S_PT, P_WS, WS_PART, 8 * 2048 * 512 * 2)
                make_srd(A, S_X2, P_WS, WS_X2, 2 * MB)
                make_srd(A, S_X, P_X, 0, 2 * MB)
                make_srd(A, S_MOD, P_WS, WS_MOD, 4 * MODP)
            self.poll(0, after=rebuild)
            A("s_barrier")
            self.stamp(4)
            PL = int(os.environ.get("PL", "1"))
            if PL:
                A(f"s_mul_i32 s{S_TMP}, s{S_M}, {7 * 65536}")
                A(f"s_add_u32 s{S_TMP}, s{S_TMP}, s3")
            else: A(f"s_mov_b32 s{S_TMP}, s3")
            for g in range(8):
                A(f"buffer_load_dwordx4 v[{PR+4*g}:{PR+4*g+3}], v9, s[{S_PT}:{S_PT+3}], s{S_TMP} offen {os.environ.get('PLF', '')}"); vm.issue(("p", g))
                if g < 7: A(f"s_add_u32 s{S_TMP}, s{S_TMP}, {65536 if PL else 2048*512*2}")
        X = list(range(48, 56)); T = list(range(PR, PR + 12)); XU = list(range(96, 104))
        if PFW1 == 3:
            def woff():
                A(f"s_and_b32 s{S_TMP+9}, s{S_WAVE}, 3")
                A(f"s_lshr_b32 s{S_TMP+8}, s{S_WAVE}, 2")
                A(f"s_lshl_b32 s{S_WOFF}, s{S_TMP+9}, 17")
                A(f"s_lshl_b32 s{S_TMP+11}, s{S_TMP+8}, 16")
                A(f"s_add_u32 s{S_WOFF}, s{S_WOFF}, s{S_TMP+11}")
                A(f"s_lshl_b32 s{S_TMP+11}, s{S_J}, 7")
                A(f"s_add_u32 s{S_WOFF}, s{S_WOFF}, s{S_TMP+11}")
                A(f"s_mov_b32 s{S_TMP+7}, s{S_RB}")
                A(f"s_mul_i32 s{S_RB}, s{S_TMP+9}, {RG}")
                A(f"s_lshl_b32 s{S_TMP+8}, s{S_TMP+8}, 13")
                A(f"s_add_u32 s{S_RB}, s{S_RB}, s{S_TMP+8}")
            self.w_setup(0, 512, 1024, woff)
            for st in range(4): self.dmaW(st, 24576 + st * 2048, "wn")
            A(f"s_mov_b32 s{S_RB}, s{S_TMP+7}")
        if int(os.environ.get("KRX", "0")):
            vm.wait(("p", 0)); self.stamp(25)
            vm.wait(("p", 7)); self.stamp(26)
        vm.wait("x")
        if V2 and not W0M:
            for j in range(0, 24, 2): pk(A, "v_pk_add_f32", GA + j, GA + j, GA + 88 + j)
            for q in range(3): round_multi(A, list(range(GA + 8*q, GA + 8*q + 8)), [56, 57, 58, 59], SM)
        if not W0M:
            for j in range(8): A(f"v_add_f32 v{CB+j}, 1.0, v{CB+j}")
            round_multi(A, list(range(CB, CB + 8)), [56, 57, 58, 59], SM)
        for j in range(4):
            A(f"v_lshlrev_b32 v{XU[2*j]}, 16, v{XR+j}")
            A(f"v_and_b32 v{XU[2*j+1]}, {SM}, v{XR+j}")
        for g in range(8):
            vm.wait(("p", g))
            if g == 0:
                for j in range(4):
                    A(f"v_lshlrev_b32 v{X[2*j]}, 16, v{PR+j}")
                    A(f"v_and_b32 v{X[2*j+1]}, {SM}, v{PR+j}")
            else:
                U = 136 + 8 * (g & 1)
                for j in range(4):
                    p = PR + 4 * g + j
                    A(f"v_lshlrev_b32 v{U+2*j}, 16, v{p}")
                    A(f"v_and_b32 v{U+2*j+1}, {SM}, v{p}")
                for j in range(0, 8, 2): pk(A, "v_pk_add_f32", X[j], X[j], U + j)
        self.stamp(23)
        if PFW1 == 2:
            A(f"s_cmp_ge_u32 s{S_WAVE}, 4")
            A("s_cbranch_scc1 .Lkr_nz3")
            self.pf_g64(0, 512, 24576, 8)
            A.label(".Lkr_nz3")
        round_multi(A, X, T[5:9], SM)
        for j in range(0, 8, 2): pk(A, "v_pk_mul_f32", X[j], X[j], GA + j)
        round_multi(A, X, T[5:9], SM)
        for j in range(0, 8, 2): pk(A, "v_pk_add_f32", X[j], X[j], XU[j])
        pack8(A, X, XR)
        A(f"buffer_store_dwordx4 v[{XR}:{XR+3}], v9, s[{S_X2}:{S_X2+3}], s3 offen sc1")
        for j in range(4):
            A(f"v_lshlrev_b32 v{X[2*j]}, 16, v{XR+j}")
            A(f"v_and_b32 v{X[2*j+1]}, {SM}, v{XR+j}")
        ln_rows(A, [(X, T)], SM)
        for j in range(0, 8, 2): pk(A, "v_pk_mul_f32", X[j], X[j], CB + j)
        round_multi(A, X, T[5:9], SM)
        for j in range(0, 8, 2): pk(A, "v_pk_add_f32", X[j], X[j], SB + j)
        pack8(A, X, 80)
        A(f"buffer_store_dwordx4 v[80:83], v9, s[{S_H}:{S_H+3}], s3 offen sc1")
        self.stamp(24)
        for j in range(4):
            A(f"v_lshlrev_b32 v{X[2*j]}, 16, v{80+j}")
            A(f"v_and_b32 v{X[2*j+1]}, {SM}, v{80+j}")
        ln_rows(A, [(X, T)], SM, False)
        pack8(A, X, 84)
        A(f"buffer_store_dwordx4 v[84:87], v9, s[{S_HN}:{S_HN+3}], s3 offen sc1")
    def g64(self, lab, stage, K, a_off, a_size, a_rb, epi, WB, DW, nbr, next_pf, own_pf=None, rot=0, nsched=None, l2=None, split=False):
        A = self.A; vm = self.vm; lg = self.lg
        S_G = 8; S_X1 = 16; S_X2 = 20; S_MOD = 24; S_O = 28; S_ST = 36
        KW = K // 4; NCH = KW // 64; NS = NCH * 4; DG = 3
        VG = [4, 5]; AA = 16; BA = 18
        X1 = 24; X2 = 32; GB = 40
        V_PW = 48; V_PR = 49; V_GA = 51; V_SA = 52; VC = (12, 14, 54)
        ACC = 64; FR = 128
        NBG = int(os.environ.get('NBG', '3'))
        half = HP and K == 512
        SW = S_R8 if half else S_WAVE
        CO = 16 * stage
        def tail_setup():
            if half:
                A(f"s_add_u32 s{S_R8}, s{S_WAVE}, 4")
                A(f"s_and_b32 s{S_R8}, s{S_R8}, 7")
                A(f"v_mov_b32 v{V_CT}, {CNT}")
            A(f"v_lshrrev_b32 v10, 3, v{L}")
            A(f"v_and_b32 v11, 7, v{L}")
            A(f"v_mul_u32_u24 v{V_PR}, {RS}, v10")
            A(f"v_lshl_add_u32 v{V_PR}, v11, 5, v{V_PR}")
            A(f"s_mul_i32 s{S_TMP+3}, s{SW}, {8*RS}")
            A(f"v_add_u32 v{V_PR}, s{S_TMP+3}, v{V_PR}")
            A(f"v_add_u32 v{V_PR+1}, {2*RG}, v{V_PR}")
            A(f"v_lshlrev_b32 v{V_GA}, 4, v11")
            A(f"v_lshl_add_u32 v{V_GA}, v10, 10, v{V_GA}")
            A(f"s_lshl_b32 s{S_TMP+2}, s{S_M}, 16")
            A(f"s_lshl_b32 s{S_TMP+3}, s{SW}, 13")
            A(f"s_add_u32 s{S_TMP+2}, s{S_TMP+2}, s{S_TMP+3}")
            A(f"s_lshl_b32 s{S_TMP+3}, s{S_J}, 7")
            A(f"s_add_u32 s{S_TMP+2}, s{S_TMP+2}, s{S_TMP+3}")
            if epi == "final":
                A(f"v_lshlrev_b32 v{V_SA}, 5, v11")
                make_srd(A, S_X1, P_WS, WS_X1, 2 * MB)
                make_srd(A, S_X2, P_WS, WS_X2, 2 * MB)
                make_srd(A, S_MOD, P_WS, WS_MOD, 4 * MODP)
                make_srd(A, S_O, P_OUT, 0, 2 * MB)
                A(f"buffer_load_dwordx4 v[{X1}:{X1+3}], v{V_GA}, s[{S_X1}:{S_X1+3}], s{S_TMP+2} offen"); vm.issue("e")
                A(f"buffer_load_dwordx4 v[{X2}:{X2+3}], v{V_GA}, s[{S_X2}:{S_X2+3}], s{S_TMP+2} offen"); vm.issue("e")
                A(f"s_lshl_b32 s{S_TMP+3}, s{S_J}, 8")
                A(f"s_add_u32 s{S_TMP+3}, s{S_TMP+3}, {5*2048}")
                for h4 in range(2):
                    A(f"buffer_load_dwordx4 v[{GB+4*h4}:{GB+4*h4+3}], v{V_SA}, s[{S_MOD}:{S_MOD+3}], s{S_TMP+3} offen offset:{h4*16}"); vm.issue("e")
                if V2:
                    A(f"s_add_u32 s{S_TMP+3}, s{S_TMP+3}, {MODP}")
                    for h4 in range(2):
                        A(f"buffer_load_dwordx4 v[{180+4*h4}:{183+4*h4}], v{V_SA}, s[{S_MOD}:{S_MOD+3}], s{S_TMP+3} offen offset:{h4*16}"); vm.issue("e")
            elif epi == "res":
                A(f"v_lshlrev_b32 v{V_SA}, 3, v10")
                A(f"s_lshl_b32 s{S_TMP+6}, s{S_M}, 9")
                A(f"s_lshl_b32 s{S_TMP+3}, s{SW}, 6")
                A(f"s_add_u32 s{S_TMP+6}, s{S_TMP+6}, s{S_TMP+3}")
                A(f"s_lshl_b32 s{S_TMP+3}, s{S_J}, 14")
                A(f"s_add_u32 s{S_TMP+6}, s{S_TMP+6}, s{S_TMP+3}")
                make_srd(A, S_X1, P_WS, WS_H, 2 * MB)
                make_srd(A, S_O, P_WS, WS_X1, 2 * MB)
                make_srd(A, S_ST, P_WS, WS_STAT, 2048 * 128)
                A(f"buffer_load_dwordx4 v[{X1}:{X1+3}], v{V_GA}, s[{S_X1}:{S_X1+3}], s{S_TMP+2} offen"); vm.issue("e")
            else:
                A(f"v_mov_b32 v{VC[0]}, {fhex(GK1)}")
                A(f"v_mov_b32 v{VC[1]}, {fhex(GK0)}")
                A(f"v_mov_b32 v{VC[2]}, 1.0")
                make_srd(A, S_O, P_WS, WS_H1 + 2048, 2 * MB)
        A(f"s_cmp_ge_u32 s{S_WAVE}, 4")
        A(f"s_cbranch_scc1 .L{lab}_help")
        if own_pf and PFE == 2: own_pf(NE, 99)
        A(f"v_lshrrev_b32 v7, 3, v{L}")
        A(f"v_and_b32 v8, 7, v{L}")
        A("v_lshrrev_b32 v9, 1, v7")
        A("v_xor_b32 v9, v8, v9")
        A(f"s_movk_i32 s{S_TMP}, {a_rb}")
        A(f"v_mul_lo_u32 v10, v7, s{S_TMP}")
        A(f"v_lshl_add_u32 v{VG[0]}, v9, 4, v10")
        A("v_xor_b32 v9, 4, v9")
        A(f"v_lshl_add_u32 v{VG[1]}, v9, 4, v10")
        A(f"s_mul_i32 s{S_GOFF}, s{S_M}, {64*a_rb}")
        A(f"s_mul_i32 s{S_TMP}, s{S_WAVE}, {KW*2}")
        A(f"s_add_u32 s{S_GOFF}, s{S_GOFF}, s{S_TMP}")
        if epi == "res":
            A(f"s_lshl_b32 s{S_TMP}, s{S_WAVE}, 2")
            A(f"s_lshr_b32 s{S_TMP+1}, 0x4031, s{S_TMP}")
            A(f"s_and_b32 s{S_TMP+1}, s{S_TMP+1}, 15")
            A(f"s_lshl_b32 s{S_TMP+1}, s{S_TMP+1}, 10")
            A(f"s_add_u32 s{S_GOFF}, s{S_GOFF}, s{S_TMP+1}")
        make_srd(A, S_G, P_WS, a_off, a_size)
        A(f"v_lshrrev_b32 v7, 5, v{L}")
        A(f"v_bfe_u32 v8, v{L}, 4, 1")
        A(f"v_bfe_u32 v9, v{L}, 2, 2")
        A(f"v_and_b32 v10, 1, v{L}")
        A(f"v_bfe_u32 v11, v{L}, 1, 1")
        A("v_lshl_or_b32 v10, v10, 1, v11")
        A("v_lshlrev_b32 v10, 3, v10")
        A("v_lshl_add_u32 v10, v8, 5, v10")
        A("v_lshl_add_u32 v11, v7, 3, v9")
        A("v_lshrrev_b32 v12, 1, v9")
        for nb in range(2):
            A(f"v_xor_b32 v13, {nb}, v12")
            A("v_lshl_add_u32 v13, v13, 6, v10")
            A("v_lshl_add_u32 v13, v11, 7, v13")
            A(f"v_add_u32 v{AA+nb}, s{S_RB}, v13")
        A(f"v_and_b32 v8, 31, v{L}")
        A("v_bfe_u32 v9, v8, 1, 3")
        for ks in range(4):
            A(f"v_or_b32 v10, {2*ks}, v7")
            A("v_xor_b32 v10, v10, v9")
            A("v_lshlrev_b32 v10, 4, v10")
            A("v_lshl_add_u32 v10, v8, 7, v10")
            A(f"v_add_u32 v{BA+ks}, s{S_RB}, v10")
        A(f"v_mul_u32_u24 v{V_PW}, {RS}, v8")
        A(f"v_lshl_add_u32 v{V_PW}, v7, 5, v{V_PW}")
        A(f"v_add_u32 v{V_PW}, s{S_RB}, v{V_PW}")
        tail_setup()
        A("s_barrier")
        self.stamp(1 + 4 * stage + 3)
        def dmaG(ch):
            base = (ch % DG) * 8192
            for i in range(8):
                A(f"s_add_u32 m0, s{S_RB}, {base + i * 1024}")
                A(f"s_add_u32 s{S_TMP}, s{S_GOFF}, {i * 8 * a_rb + ch * 128}")
                A(f"buffer_load_dwordx4 v{VG[i & 1]}, s[{S_G}:{S_G+3}], s{S_TMP} offen lds")
                vm.issue(("g", ch))
        if half:
            HB = 32 * RS
            def dmaGh(h, ch):
                for i in range(4):
                    A(f"s_add_u32 m0, s{S_RB}, {h * HB + ch * 4096 + i * 1024}")
                    A(f"s_add_u32 s{S_TMP}, s{S_GOFF}, {(4 * h + i) * 8 * a_rb + ch * 128}")
                    A(f"buffer_load_dwordx4 v{VG[i & 1]}, s[{S_G}:{S_G+3}], s{S_TMP} offen lds")
                    vm.issue(("g", h, ch))
            WF = 128; BFR = 192
            def readsh(h, step):
                ch, ks = step // 4, step % 4
                if h == 0:
                    for nb in range(2):
                        for q in range(2):
                            d = WF + step * 8 + nb * 4 + q * 2
                            A(f"ds_read_b64_tr_b16 v[{d}:{d+1}], v{AA+nb} offset:{WB + step * 2048 + q * 512}")
                            lg.issue(("f", step))
                d = BFR + step * 4
                A(f"ds_read_b128 v[{d}:{d+3}], v{BA+ks} offset:{h * HB + ch * 4096}")
                lg.issue(("f", step))
            dmaGh(0, 0); dmaGh(0, 1)
            if not split: dmaGh(1, 0); dmaGh(1, 1)
            for h in range(2):
                if h == 1 and split:
                    self.lds_spin(f".L{lab}_rb", 12, 1, False, V_CT)
                    dmaGh(1, 0); dmaGh(1, 1)
                PD = 2 if h == 0 else 4
                for s0 in range(PD):
                    vm.wait(("g", h, 0)); readsh(h, s0)
                for st in range(8):
                    lg.wait(("f", st))
                    with Cap(A) as cp:
                        if st + PD < 8:
                            vm.wait(("g", h, (st + PD) // 4)); readsh(h, st + PD)
                        if h == HPH and nsched and st in nsched: next_pf(*nsched[st])
                    mf = []
                    for nb in range(2):
                        acc = ACC + (nb * 2 + h) * 16
                        c = "0" if st == 0 else f"v[{acc}:{acc+15}]"
                        mf.append(f"v_mfma_f32_32x32x16_bf16 v[{acc}:{acc+15}], v[{WF+st*8+nb*4}:{WF+st*8+nb*4+3}], v[{BFR+st*4}:{BFR+st*4+3}], {c}")
                    interleave(A, mf, cp.out)
                A("s_nop 7")
                A("s_nop 3")
                for nb in range(2):
                    tl = nb * 2 + h
                    for r4 in range(4):
                        A(f"ds_write_b128 v{V_PW}, v[{ACC+tl*16+r4*4}:{ACC+tl*16+r4*4+3}] offset:{h*HB + (nb*8 + (r4 >> 1)*4 + (r4 & 1))*16}")
                A("s_waitcnt lgkmcnt(0)")
                self.lds_inc(CO + 4 * h, V_CT)
                if h == 0 and HPH == 2 and nsched:
                    for st in range(8): next_pf(*nsched[st])
            vm.wait("e")
            self.lds_spin(f".L{lab}_sb", CO + 4, 4, False, V_CT)
            A(f"s_branch .L{lab}_join")
        else:
            for ch in range(min(DG, NCH)): dmaG(ch)
            def reads(step):
                ch, ks = step // 4, step % 4
                buf = FR + (step % NBG) * 16
                for nb in range(2):
                    for q in range(2):
                        A(f"ds_read_b64_tr_b16 v[{buf+nb*4+q*2}:{buf+nb*4+q*2+1}], v{AA+nb} offset:{WB + ((step + rot) % DW) * 2048 + q * 512}")
                        lg.issue(("f", step))
                for rb in range(2):
                    A(f"ds_read_b128 v[{buf+8+rb*4}:{buf+8+rb*4+3}], v{BA+ks} offset:{(ch % DG) * 8192 + rb * 4096}")
                    lg.issue(("f", step))
            def need(step):
                vm.wait(("w", step)); vm.wait(("g", step // 4))
            for s0 in range(NBG - 1):
                need(s0); reads(s0)
            for st in range(NS):
                lg.wait(("f", st))
                with Cap(A) as cp:
                    if st + DW < NS: self.dmaW(st + DW, WB + ((st + rot) % DW) * 2048)
                    if st % 4 == 3 and st // 4 + DG < NCH: dmaG(st // 4 + DG)
                    if st + NBG - 1 < NS:
                        need(st + NBG - 1); reads(st + NBG - 1)
                    if st + DW >= NS and PFE == 3 and nsched and st in nsched: next_pf(*nsched[st])
                buf = FR + (st % NBG) * 16
                mf = []
                for nb in range(2):
                    for rb in range(2):
                        acc = ACC + (nb * 2 + rb) * 16
                        c = "0" if st == 0 else f"v[{acc}:{acc+15}]"
                        mf.append(f"v_mfma_f32_32x32x16_bf16 v[{acc}:{acc+15}], v[{buf+nb*4}:{buf+nb*4+3}], v[{buf+8+rb*4}:{buf+8+rb*4+3}], {c}")
                interleave(A, mf, cp.out)
            vm.wait("e")
            if not int(os.environ.get("KRX", "0")): self.stamp({1: 25, 2: 26, 4: 27}[stage])
            A("s_nop 7")
            A("s_nop 1")
            for tl in range(4):
                nb, rb = tl >> 1, tl & 1
                for r4 in range(4):
                    A(f"ds_write_b128 v{V_PW}, v[{ACC+tl*16+r4*4}:{ACC+tl*16+r4*4+3}] offset:{rb*32*RS + (nb*8 + (r4 >> 1)*4 + (r4 & 1))*16}")
                if tl == 1: A("s_waitcnt lgkmcnt(0)")
            if next_pf and PFE == 1: next_pf()
            A("s_waitcnt lgkmcnt(0)")
            A(f"s_branch .L{lab}_join")
        A.label(f".L{lab}_help")
        sv = list(vm.ops)
        tail_setup()
        vm.ops = sv
        self.poll(stage, nbr)
        A("s_barrier")
        self.stamp(1 + 4 * stage + 3)
        n = sum(self.l2pf(*x) for x in l2) if l2 else 0
        A(f"s_waitcnt vmcnt({n})")
        if half: self.lds_spin(f".L{lab}_sa", CO, 4, True, V_CT)
        A.label(f".L{lab}_join")
        if not half: A("s_barrier")
        for p in range(4):
            for h in range(2):
                d = ACC + p * 16 + h * 4
                A(f"ds_read_b128 v[{d}:{d+3}], v{V_PR + (p >> 1)} offset:{(p & 1)*RG + h*16}")
        xs = list(range(ACC, ACC + 8)); tp = list(range(72, 80)); t8 = list(range(88, 96))
        b = ACC
        def unpack(src, dst):
            for k in range(4):
                A(f"v_lshlrev_b32 v{dst[2*k]}, 16, v{src+k}")
                A(f"v_and_b32 v{dst[2*k+1]}, {SM}, v{src+k}")
        if epi != "gelu": unpack(X1, tp)
        if epi == "final":
            unpack(X2, list(range(104, 112)))
            if V2:
                for k in range(0, 8, 2): pk(A, "v_pk_add_f32", GB + k, GB + k, 180 + k)
                round_multi(A, list(range(GB, GB + 8)), t8, SM)
        A("s_waitcnt lgkmcnt(4)")
        for e in range(0, 8, 2): pk(A, "v_pk_add_f32", b + e, b + e, b + 16 + e)
        A("s_waitcnt lgkmcnt(0)")
        for e in range(0, 8, 2): pk(A, "v_pk_add_f32", b + 32 + e, b + 32 + e, b + 48 + e)
        for e in range(0, 8, 2): pk(A, "v_pk_add_f32", b + e, b + e, b + 32 + e)
        round_multi(A, xs, t8, SM)
        def store():
            for k in range(4): A(f"v_cvt_pk_bf16_f32 v{56+k}, v{xs[2*k]}, v{xs[2*k+1]}")
            A(f"buffer_store_dwordx4 v[56:59], v{V_GA}, s[{S_O}:{S_O+3}], s{S_TMP+2} offen sc1")
        if epi == "gelu":
            X = xs; T = tp
            for e in range(0, 8, 2): pk(A, "v_pk_mul_f32", T[e], X[e], X[e])
            for e in range(0, 8, 2): pk(A, "v_pk_fma_f32", T[e], T[e], VC[0], VC[1], "op_sel_hi:[1,0,0]")
            for e in range(0, 8, 2): pk(A, "v_pk_mul_f32", T[e], T[e], X[e])
            for e in range(8): A(f"v_exp_f32 v{T[e]}, v{T[e]}")
            for e in range(0, 8, 2): pk(A, "v_pk_add_f32", T[e], T[e], VC[2], None, "op_sel_hi:[1,0]")
            for e in range(8): A(f"v_rcp_f32 v{T[e]}, v{T[e]}")
            A("s_nop 0")
            for e in range(0, 8, 2): pk(A, "v_pk_mul_f32", X[e], X[e], T[e])
            store()
        elif epi == "res":
            for k in range(0, 8, 2): pk(A, "v_pk_add_f32", xs[k], xs[k], tp[k])
            store()
            unpack(56, xs)
            X = xs
            pk(A, "v_pk_mul_f32", tp[0], X[0], X[0])
            pk(A, "v_pk_add_f32", tp[2], X[0], X[2])
            for e in range(2, 8, 2):
                pk(A, "v_pk_fma_f32", tp[0], X[e], X[e], tp[0])
                if e >= 4: pk(A, "v_pk_add_f32", tp[2], tp[2], X[e])
            A(f"v_add_f32 v20, v{tp[2]}, v{tp[3]}")
            A(f"v_add_f32 v21, v{tp[0]}, v{tp[1]}")
            A("s_nop 1")
            for dpp in ("quad_perm:[1,0,3,2]", "quad_perm:[2,3,0,1]", "row_half_mirror"):
                for v in (20, 21):
                    A(f"v_add_f32_dpp v{v}, v{v}, v{v} {dpp} row_mask:0xf bank_mask:0xf")
                A("s_nop 1")
            A("v_and_b32 v10, 7, v1")
            A("v_cmp_eq_u32 vcc, 0, v10")
            A("s_and_saveexec_b64 s[78:79], vcc")
            A(f"buffer_store_dwordx2 v[20:21], v{V_SA}, s[{S_ST}:{S_ST+3}], s{S_TMP+6} offen sc1")
            A("s_mov_b64 exec, s[78:79]")
        else:
            for k in range(0, 8, 2): pk(A, "v_pk_add_f32", xs[k], xs[k], tp[k])
            round_multi(A, xs, t8, SM)
            for k in range(0, 8, 2): pk(A, "v_pk_mul_f32", xs[k], xs[k], GB + k)
            round_multi(A, xs, t8, SM)
            for k in range(0, 8, 2): pk(A, "v_pk_add_f32", xs[k], xs[k], 104 + k)
            store()
    def k5(self, stage, next_pf, own_pf=None):
        A = self.A; vm = self.vm; lg = self.lg
        S_A = 8; S_O = 20; S_ST = 24; S_CS = 28
        VB = [16, 28]; AA = 24; ACC = 64; FQ = 128
        D = K5D
        NB5 = int(os.environ.get('NB5', '3'))
        A(f"s_cmp_lt_u32 s{S_WAVE}, 4")
        A("s_cbranch_scc1 .Lk5_main")
        A(f"s_cmp_eq_u32 s{S_J}, 7")
        A("s_cbranch_scc1 .Lk5_h7")
        self.poll(stage)
        A("s_barrier")
        A("s_barrier")
        A.label(".Lk5_h7")
        if L2PF & 4: self.l2pf(3, 1792 * 1024)
        A("s_branch .Lk5_end")
        A.label(".Lk5_main")
        A(f"s_cmp_eq_u32 s{S_J}, 7")
        A("s_cbranch_scc1 .Lk5_pf")
        if own_pf and PFE == 2: own_pf(NE, 99)
        make_srd(A, S_A, P_WS, WS_X1, 2 * MB)
        make_srd(A, S_ST, P_WS, WS_STAT, 2048 * 128)
        make_srd(A, S_CS, P_WS, WS_CS, 2 * CSP)
        make_srd(A, S_O, P_WS, WS_G, 2048 * 3584)
        A(f"v_lshlrev_b32 v4, 4, v{L}")
        A(f"s_lshl_b32 s{S_TMP}, s{S_M}, 16")
        A(f"s_lshl_b32 s{S_TMP+1}, s{S_WAVE}, 14")
        A(f"s_add_u32 s{S_TMP}, s{S_TMP}, s{S_TMP+1}")
        A(f"s_lshl_b32 s{S_TMP+6}, s{S_J}, 9")
        A(f"s_lshl_b32 s{S_TMP+2}, s{S_WAVE}, 7")
        A(f"s_add_u32 s{S_TMP+6}, s{S_TMP+6}, s{S_TMP+2}")
        A(f"v_lshrrev_b32 v5, 5, v{L}")
        A(f"v_bfe_u32 v7, v{L}, 4, 1")
        A(f"v_bfe_u32 v8, v{L}, 2, 2")
        A(f"v_and_b32 v9, 1, v{L}")
        A(f"v_bfe_u32 v10, v{L}, 1, 1")
        A("v_lshl_or_b32 v9, v9, 1, v10")
        A("v_lshlrev_b32 v9, 3, v9")
        A("v_lshl_add_u32 v9, v7, 5, v9")
        A("v_lshl_add_u32 v10, v5, 3, v8")
        A("v_lshrrev_b32 v11, 1, v8")
        for nb in range(2):
            A(f"v_xor_b32 v12, {nb}, v11")
            A("v_lshl_add_u32 v12, v12, 6, v9")
            A("v_lshl_add_u32 v12, v10, 7, v12")
            A(f"v_add_u32 v{AA+nb}, s{S_RB}, v12")
        A(f"v_and_b32 v13, 31, v{L}")
        A("v_lshrrev_b32 v7, 4, v13")
        A(f"v_mul_u32_u24 v7, {RG // 1024}, v7")
        A("v_and_b32 v8, 15, v13")
        A("v_add_u32 v7, v7, v8")
        for j in range(8):
            A(f"v_or_b32 v8, {2*j}, v5")
            A("v_xor_b32 v8, v8, v13")
            A("v_and_b32 v8, 15, v8")
            A("v_lshlrev_b32 v8, 4, v8")
            A(f"v_lshl_add_u32 v{VB[0]+j}, v7, 10, v8")
            A(f"v_add_u32 v{VB[1]+j}, {2*RG}, v{VB[0]+j}")
        ST = 192; CS = 224
        A("v_lshlrev_b32 v42, 5, v5")
        C2 = [176, 184, 200, 216]
        def csloads():
            A(f"s_lshl_b32 s{S_TMP+2}, s{S_TMP+6}, 1")
            for part in range(2 if V2 else 1):
                for q in range(4):
                    for h4 in range(2):
                        d = (CS + q * 8 if part == 0 else C2[q]) + 4 * h4
                        A(f"buffer_load_dwordx4 v[{d}:{d+3}], v42, s[{S_CS}:{S_CS+3}], s{S_TMP+2} offen offset:{(16*q+4*h4)*4}"); vm.issue("st")
                A(f"s_add_u32 s{S_TMP+2}, s{S_TMP+2}, {CSP}")
        VS = 36
        A("v_and_b32 v7, 7, v13")
        A(f"s_add_u32 s{S_TMP+3}, s{S_RB}, {K5RB}")
        for j in range(4):
            A(f"v_or_b32 v14, {2*j}, v5")
            A("v_xor_b32 v14, v14, v7")
            A("v_lshlrev_b32 v14, 4, v14")
            A("v_lshl_add_u32 v14, v13, 7, v14")
            A(f"v_add_u32 v{VS+j}, s{S_TMP+3}, v14")
        A(f"v_lshrrev_b32 v7, 3, v{L}")
        A(f"v_and_b32 v14, 7, v{L}")
        A(f"v_xor_b32 v{VS+4}, v14, v7")
        A(f"v_lshlrev_b32 v{VS+4}, 4, v{VS+4}")
        A(f"v_lshl_add_u32 v{VS+4}, v7, 7, v{VS+4}")
        A(f"v_add_u32 v{VS+4}, s{S_TMP+3}, v{VS+4}")
        A(f"s_movk_i32 s{S_TMP+2}, 3584")
        A(f"v_mul_lo_u32 v7, v7, s{S_TMP+2}")
        A(f"v_lshl_add_u32 v{VS+5}, v14, 4, v7")
        A(f"s_mul_i32 s{S_TMP+4}, s{S_M}, {64*3584}")
        A(f"s_add_u32 s{S_TMP+4}, s{S_TMP+4}, s{S_TMP+6}")
        A(f"s_add_u32 s{S_TMP+5}, s{S_TMP+4}, {32*3584}")
        A("v_lshlrev_b32 v7, 3, v13")
        A("v_lshl_add_u32 v7, v5, 16, v7")
        A(f"s_lshl_b32 s{S_TMP+7}, s{S_M}, 9")
        A("s_barrier")
        self.stamp(1 + 4 * stage + 3)
        for i in range(16):
            t = 8 + (i & 1)
            A(f"v_xor_b32 v{t}, {i << 4}, v4")
            A(f"s_add_u32 m0, s{S_RB}, {i * 1024}")
            A(f"s_add_u32 s{S_TMP+2}, s{S_TMP}, {i * 1024}")
            A(f"buffer_load_dwordx4 v{t}, s[{S_A}:{S_A+3}], s{S_TMP+2} offen lds")
            vm.issue("act")
        for q in range(4):
            A(f"s_add_u32 s{S_TMP+3}, s{S_TMP+7}, {q*16384}")
            for rb in range(2):
                A(f"buffer_load_dwordx2 v[{ST+16*rb+2*q}:{ST+16*rb+2*q+1}], v7, s[{S_ST}:{S_ST+3}], s{S_TMP+3} offen offset:{rb*256}"); vm.issue("st")
        vm.wait("act")
        A("s_barrier")
        self.stamp(29)
        def reads(step):
            buf = FQ + (step % NB5) * 16
            for nb in range(2):
                for q in range(2):
                    A(f"ds_read_b64_tr_b16 v[{buf+nb*4+q*2}:{buf+nb*4+q*2+1}], v{AA+nb} offset:{K5RB + (step % D) * 2048 + q * 512}")
                    lg.issue(("f", step))
            for rb in range(2):
                A(f"ds_read_b128 v[{buf+8+rb*4}:{buf+8+rb*4+3}], v{VB[rb] + (step & 7)} offset:{(step >> 3) * 256}")
                lg.issue(("f", step))
        PKC = [[44, 46, 48, 50], [52, 54, 56, 58]]
        E = []
        for stg in range(17):
            for rb in range(2):
                b = ST + 16 * rb; c = PKC[rb]
                E.append([f"v_add_f32 v{b}, v{b}, v{b+2}", f"v_add_f32 v{b+1}, v{b+1}, v{b+3}",
                          f"v_add_f32 v{b+4}, v{b+4}, v{b+6}", f"v_add_f32 v{b+5}, v{b+5}, v{b+7}",
                          f"v_add_f32 v{b}, v{b}, v{b+4}", f"v_add_f32 v{b+1}, v{b+1}, v{b+5}",
                          f"v_mov_b32 v{b+2}, v{b}", f"v_mov_b32 v{b+3}, v{b+1}", "s_nop 1",
                          f"v_permlane32_swap_b32 v{b}, v{b+2}", f"v_permlane32_swap_b32 v{b+1}, v{b+3}", "s_nop 1",
                          f"v_add_f32 v{b}, v{b}, v{b+2}", f"v_add_f32 v{b+1}, v{b+1}, v{b+3}",
                          f"v_mul_f32 v{c[0]}, {fhex(-1/512)}, v{b}", f"v_mul_f32 v{b+1}, {fhex(1/512)}, v{b+1}",
                          f"v_fma_f32 v{b+1}, -v{c[0]}, v{c[0]}, v{b+1}"][stg])
        for stg in range(9):
            for rb in range(2):
                b = ST + 16 * rb; c = PKC[rb]
                E.append([f"v_max_f32 v{b+1}, 0, v{b+1}", f"v_add_f32 v{b+1}, {fhex(1e-5)}, v{b+1}",
                          f"v_rsq_f32 v{b+2}, v{b+1}", f"v_sqrt_f32 v{c[3]}, v{b+1}", "s_nop 0",
                          f"v_mul_f32 v{c[2]}, {fhex(GK0)}, v{b+2}", f"v_mul_f32 v{c[1]}, v{b+2}, v{b+2}",
                          f"v_mul_f32 v{c[1]}, v{c[1]}, v{b+2}", f"v_mul_f32 v{c[1]}, {fhex(GK1)}, v{c[1]}"][stg])
        if V2:
            for q in range(4):
                for e in range(8): E.append(f"v_add_f32 v{CS+8*q+e}, v{CS+8*q+e}, v{C2[q]+e}")
        for s0 in range(NB5 - 1):
            vm.wait(("w", s0)); reads(s0)
        k = 0
        for ks in range(32):
            lg.wait(("f", ks))
            with Cap(A) as cp:
                if ks + NB5 - 1 < 32:
                    vm.wait(("w", ks + NB5 - 1)); reads(ks + NB5 - 1)
                if ks + D < 32: self.dmaW(ks + D, K5RB + (ks % D) * 2048)
                elif PFE == 3 and ks == 21: next_pf(0, 1)
                elif PFE == 3 and ks >= 26: next_pf(ks - 25, ks - 24)
                if ks == 1: csloads()
                if 14 <= ks < 28:
                    if ks == 14: vm.wait("st")
                    upto = len(E) * (ks - 13) // 14
                    while k < upto: A(E[k]); k += 1
            buf = FQ + (ks % NB5) * 16
            mf = []
            for nb in range(2):
                for rb in range(2):
                    acc = ACC + (nb * 2 + rb) * 16
                    c = "0" if ks == 0 else f"v[{acc}:{acc+15}]"
                    mf.append(f"v_mfma_f32_32x32x16_bf16 v[{acc}:{acc+15}], v[{buf+nb*4}:{buf+nb*4+3}], v[{buf+8+rb*4}:{buf+8+rb*4+3}], {c}")
            interleave(A, mf, cp.out)
        self.stamp(28)
        if PFE == 1: next_pf()
        else:
            A("s_nop 7"); A("s_nop 3")
        def flush5(rb):
            A("s_waitcnt lgkmcnt(0)")
            for i in range(4):
                A(f"ds_read_b128 v[{192+16*rb+4*i}:{192+16*rb+4*i+3}], v{VS+4} offset:{rb*4096 + i*1024}")
        def store5(rb):
            for i in range(4):
                if rb == 1: A(f"s_waitcnt lgkmcnt({3-i})")
                A(f"s_add_u32 s{S_TMP+3}, s{S_TMP+4+rb}, {i*8*3584}")
                A(f"buffer_store_dwordx4 v[{192+16*rb+4*i}:{192+16*rb+4*i+3}], v{VS+5}, s[{S_O}:{S_O+3}], s{S_TMP+3} offen sc1")
        for rb in range(2):
            for nb in range(2):
                acc = ACC + (nb * 2 + rb) * 16
                if rb == 1 and nb == 1:
                    A("s_waitcnt lgkmcnt(2)")
                    store5(0)
                for mp in range(2):
                    d = 160 + (nb * 4 + rb * 2 + mp) * 4
                    xs = [acc + 8 * mp + e for e in range(8)]
                    ts = list(range(128, 136)); cs = CS + (nb * 2 + mp) * 8; c = PKC[rb]
                    for e in range(0, 8, 2): pk(A, "v_pk_fma_f32", xs[e], cs + e, c[0], xs[e], "op_sel_hi:[1,0,1]")
                    for e in range(0, 8, 2): pk(A, "v_pk_mul_f32", ts[e], xs[e], xs[e])
                    for e in range(0, 8, 2): pk(A, "v_pk_fma_f32", ts[e], ts[e], c[1], c[2], "op_sel_hi:[1,0,0]")
                    for e in range(0, 8, 2): pk(A, "v_pk_mul_f32", ts[e], ts[e], xs[e])
                    for t in ts: A(f"v_exp_f32 v{t}, v{t}")
                    for e in range(0, 8, 2): pk(A, "v_pk_fma_f32", ts[e], ts[e], c[3], c[3], "op_sel_hi:[1,0,0]")
                    for t in ts: A(f"v_rcp_f32 v{t}, v{t}")
                    A("s_nop 0")
                    for e in range(0, 8, 2): pk(A, "v_pk_mul_f32", xs[e], xs[e], ts[e])
                    for e in range(0, 8, 2): A(f"v_cvt_pk_bf16_f32 v{d+e//2}, v{xs[e]}, v{xs[e+1]}")
                    A(f"ds_write_b128 v{VS+2*nb+mp}, v[{d}:{d+3}] offset:{rb*4096}")
            flush5(rb)
        store5(1)
        A("s_branch .Lk5_end")
        A.label(".Lk5_pf")
        if PFE in (1, 3): next_pf(alt=True)
        A.label(".Lk5_end")

def gen_km(A):
    name = "k1_kernel"
    M = Mega(A)
    def pre():
        if MT or HD:
            M.persist(); M.stamp(0); M.vm.ops = []
        if ONE: M.pro_pre()
    if V2: K1.gen_k1(A, emb=True, pre=pre, hookA=M.p2_a, hookB=M.p2_b, v2=True, hookC=M.p2_c)
    elif ONE: K1.gen_k1(A, emb=True, pre=pre, hookA=M.pro_a, hookB=M.pro_b)
    else: K1.gen_k1(A, emb=True, pre=pre)
    M.persist()
    M.transition(0)
    M.kr()
    M.transition(1)
    pf4 = lambda lo=0, hi=99: M.pf_g64(1, 512, 24576, 8, lo, hi)
    pf6 = lambda lo=0, hi=99, alt=False: M.pf_g64(3, 1792, 26624, 7, lo, hi, 6)
    M.g64("k3", 1, 512, WS_HN, 2 * MB, 1024, "gelu", 24576, 8, False, pf4, None, 0, {st: (st, st + 1) for st in range(8)}, [(2, 1792 * 1024)] if L2PF & 1 else None)
    M.transition(2, pf4)
    M.g64("k4", 2, 512, WS_H1, 2052 * 1024, 1024, "res", 24576, 8, True, M.pf_k5, pf4, 0, {st: ((0, 4) if st == 0 else (st + 3, st + 4)) for st in range(8)}, [(3, 1792 * 1024)] if L2PF & 2 else None)
    M.transition(3, M.pf_k5)
    M.k5(3, pf6, M.pf_k5)
    M.transition(4, pf6)
    M.g64("k6", 4, 1792, WS_G, 2048 * 3584, 3584, "final", 26624, 7, False, None, pf6, 6)
    M.stamp(21)
    if MT or HD: A("s_waitcnt vmcnt(0)")
    M.stamp(22)
    A("s_endpgm")
    A.raw(kernel_desc(name, 256, 102, 256))
    return (name, (256, 1, 1), (512, 1, 1), 163840)
```

```python
from asmlib import *
from gen_k0 import *
import gen_k1 as K1
from gen_k1 import Cnt
from gen_ka import ln_rows, round_multi, pack8, GK0, GK1
from gen_g64 import WS_STAT, WS_CS
import os
MT = int(os.environ.get("MT", "0"))
HD = int(os.environ.get("HD", "0"))
PT = int(os.environ.get("PT", "0"))
TLW = int(os.environ.get("TLW", "0"))
MP = int(os.environ.get("MP", "1"))
XS = int(os.environ.get("XS", "1"))
HP = int(os.environ.get("HP", "0"))
SPOLL = int(os.environ.get("SPOLL", "1"))
HPH = int(os.environ.get("HPH", "0"))
CNT = 17408
S_R8 = 46; V_CT = 53
PRG = int(os.environ.get("PRG", "0"))
MSK = 83968
WQF = int(os.environ.get("WQF", "0"))
W0M = int(os.environ.get("MEGA", "5")) >= 5 and int(os.environ.get("W0M", "1"))
EB = int(os.environ.get("EB", "0"))
DLY = int(os.environ.get("DLY", "1"))
WQE = int(os.environ.get("WQE", "0"))
ONE = int(os.environ.get("MEGA", "5")) >= 4
V2 = int(os.environ.get("MEGA", "5")) >= 5
V3 = int(os.environ.get("MEGA", "5")) == 6
MODP = 12288; CSP = 8192
FP = WS_FLAG + 0x20000; FQ_ = WS_FLAG + 0x30000
S_WAVE = 40; S_M = 41; S_J = 42; S_MASK = 43; S_RB = 44; S_GOFF = 45; S_TMP = 48; S_WOFF = 58
S_W = 32; V_W = 6
P_X = 60; P_OUT = 62; P_WS = 68; P_W = 84
SM = f"s{S_MASK}"
L = 1
RG = 40960; RS = 272
K5RB = 18432; K5D = 11
L2PF = int(os.environ.get('L2PF', '0'))
PFE = int(os.environ.get('PFE', '3'))
NE = int(os.environ.get('NE', '3')) if PFE == 2 else 0

def pk(A, op, d, a, b, c=None, sel=""):
    ops = ", ".join(f"v[{x}:{x+1}]" for x in ((d, a, b) if c is None else (d, a, b, c)))
    A(f"{op} {ops} {sel}".rstrip())

FLN = int(os.environ.get("FLN", "1"))
_ln_slow = ln_rows
def ln_fast(A, R, smask, final_round=True):
    for X, T in R:
        assert X[0] % 2 == 0 and T[0] % 2 == 0
        pk(A, "v_pk_add_f32", T[0], X[0], X[2]); pk(A, "v_pk_mul_f32", T[2], X[0], X[0])
        pk(A, "v_pk_add_f32", T[4], X[4], X[6]); pk(A, "v_pk_mul_f32", T[6], X[2], X[2])
    for X, T in R:
        pk(A, "v_pk_fma_f32", T[2], X[4], X[4], T[2]); pk(A, "v_pk_fma_f32", T[6], X[6], X[6], T[6])
        pk(A, "v_pk_add_f32", T[0], T[0], T[4])
    for X, T in R:
        pk(A, "v_pk_add_f32", T[2], T[2], T[6])
        A(f"v_add_f32 v{T[0]}, v{T[0]}, v{T[1]}")
    for X, T in R:
        A(f"v_add_f32 v{T[1]}, v{T[2]}, v{T[3]}")
    wave_allreduce(A, "v_add_f32", [t for X, T in R for t in (T[0], T[1])], [t for X, T in R for t in (T[2], T[3])], [t for X, T in R for t in (T[4], T[5])])
    for X, T in R:
        A(f"v_mul_f32 v{T[0]}, {fhex(1/512)}, v{T[0]}")
        A(f"v_mul_f32 v{T[1]}, {fhex(1/512)}, v{T[1]}")
    for X, T in R:
        A(f"v_fma_f32 v{T[1]}, -v{T[0]}, v{T[0]}, v{T[1]}")
    for X, T in R:
        A(f"v_max_f32 v{T[1]}, 0, v{T[1]}")
    for X, T in R:
        A(f"v_cvt_pk_bf16_f32 v{T[3]}, v{T[0]}, v{T[1]}")
    for X, T in R:
        A(f"v_and_b32 v{T[1]}, {smask}, v{T[3]}")
        A(f"v_lshlrev_b32 v{T[2]}, 16, v{T[3]}")
    for X, T in R:
        A(f"v_add_f32 v{T[1]}, {fhex(1e-5)}, v{T[1]}")
        for j in range(0, 4, 2): pk(A, "v_pk_add_f32", X[j], X[j], T[2], None, "op_sel_hi:[1,0] neg_lo:[0,1] neg_hi:[0,1]")
    for X, T in R:
        A(f"v_cvt_pk_bf16_f32 v{T[1]}, v{T[1]}, v{T[1]}")
        for j in range(4, 8, 2): pk(A, "v_pk_add_f32", X[j], X[j], T[2], None, "op_sel_hi:[1,0] neg_lo:[0,1] neg_hi:[0,1]")
    for X, T in R:
        A(f"v_lshlrev_b32 v{T[1]}, 16, v{T[1]}")
    for X, T in R:
        A(f"v_sqrt_f32 v{T[0]}, v{T[1]}")
        round_multi(A, X[:4], T[4:6], smask)
    for X, T in R:
        A(f"v_cvt_pk_bf16_f32 v{T[0]}, v{T[0]}, v{T[0]}")
    for X, T in R:
        A(f"v_lshlrev_b32 v{T[0]}, 16, v{T[0]}")
    for X, T in R:
        A(f"v_rcp_f32 v{T[2]}, v{T[0]}")
        round_multi(A, X[4:], T[4:6], smask)
    if FLN == 2:
        for X, T in R:
            for j in range(0, 8, 2): pk(A, "v_pk_mul_f32", X[j], X[j], T[2], None, "op_sel_hi:[1,0]")
    else:
        for X, T in R:
            for h in range(2):
                js = (4 * h, 4 * h + 2)
                for k, j in enumerate(js): pk(A, "v_pk_mul_f32", T[4+2*k], X[j], T[2], None, "op_sel_hi:[1,0]")
                for k, j in enumerate(js): pk(A, "v_pk_fma_f32", X[j], T[4+2*k], T[0], X[j], "op_sel_hi:[1,0,1] neg_lo:[1,0,0] neg_hi:[1,0,0]")
                for k, j in enumerate(js): pk(A, "v_pk_fma_f32", X[j], X[j], T[2], T[4+2*k], "op_sel_hi:[1,0,1]")
    if final_round:
        for X, T in R: round_multi(A, X, T[4:8], smask)
def ln_rows(A, R, smask, final_round=True):
    return ln_fast(A, R, smask, final_round) if FLN else _ln_slow(A, R, smask)

class Cap:
    def __init__(self, A): self.A = A
    def __enter__(self):
        self.sv = self.A.lines; self.A.lines = []; return self
    def __exit__(self, *a):
        self.out = self.A.lines; self.A.lines = self.sv

def interleave(A, mf, fill):
    n = len(mf); k = 0
    for i, m in enumerate(mf):
        A(m)
        upto = (len(fill) * (i + 1) + n - 1) // n
        while upto < len(fill) and upto > 0 and not (fill[upto - 1].lstrip().startswith(("buffer_", "ds_", "v_", "s_waitcnt")) or fill[upto - 1].lstrip().startswith(f"s_add_u32 s{S_WOFF}")): upto += 1
        A.lines.extend(fill[k:upto]); k = max(k, upto)

class Mega:
    def __init__(self, A):
        self.A = A
        self.vm = Cnt(A, "vmcnt", 63); self.lg = Cnt(A, "lgkmcnt", 15)
    def stamp(self, idx):
        if HD:
            hmap = {0: 2, 3: 3, 4: 4, 7: 5, 8: 6, 11: 7, 12: 8, 15: 9, 16: 10, 19: 11, 20: 12, 21: 13, 22: 14}
            if int(os.environ.get('HK', '0')): hmap = {0: 2, 22: 14}
            if idx not in hmap: return
            A = self.A
            lab = A.newlabel("hd")
            A("s_waitcnt lgkmcnt(0)")
            A("s_load_dwordx2 s[76:77], s[0:1], 104")
            A("s_memrealtime s[70:71]")
            A("s_waitcnt lgkmcnt(0)")
            A("s_mov_b32 s72, s76")
            A("s_mov_b32 s73, s77")
            A("s_mov_b32 s74, 256")
            A("s_mov_b32 s75, 0x00020000")
            A(f"s_lshl_b32 s76, s{S_WAVE}, 8")
            A("s_or_b32 s76, s76, s2")
            A(f"s_cmp_lg_u32 s76, {HD}")
            A(f"s_cbranch_scc1 {lab}")
            A("v_mov_b32 v2, s70")
            A("v_mov_b32 v3, 0")
            A(f"buffer_store_dword v2, v3, s[72:75], 0 offen offset:{4*hmap[idx]}")
            A.label(lab)
            self.lg.ops = []
            return
        if not MT: return
        A = self.A
        A("s_waitcnt lgkmcnt(0)")
        A("s_memrealtime s[70:71]")
        make_srd(A, 72, P_WS, WS_DBG, 32 * MB)
        A("s_lshl_b32 s76, s2, 3")
        A(f"s_add_u32 s76, s76, s{S_WAVE}")
        A("s_lshl_b32 s76, s76, 7")
        A("s_waitcnt lgkmcnt(0)")
        A("v_mov_b32 v2, s70")
        A("v_mov_b32 v3, 0")
        A(f"buffer_store_dword v2, v3, s[72:75], s76 offen offset:{4*idx}")
        self.vm.issue("stamp"); self.lg.ops = []
    def flag_srd(self, stage):
        make_srd(self.A, 92, P_WS, WS_FLAG + stage * 32 * 256, 32 * 256)
    def transition(self, stage, early=None):
        A = self.A
        self.stamp(1 + 4 * stage)
        self.vm.ops = []
        if ONE and stage == 0:
            make_srd(A, 80, P_WS, FQ_, 32 * 1024)
            make_srd(A, 12, P_WS, WS_MOD, 4 * MODP)
            A(f"s_cmp_lg_u32 s{S_WAVE}, {0 if W0M else 7}")
            A("s_cbranch_scc1 .Lw0m_end")
            A(f"s_lshl_b32 s98, s{S_M}, 10")
            A("v_add_u32 v2, 64, v1")
            A("v_min_u32 v2, 119, v2")
            A("v_lshlrev_b32 v2, 3, v2")
            A("v_lshlrev_b32 v3, 3, v1")
            self.poll64(".Lplq", [(3, 80, "s98"), (2, 80, "s98")])
            if W0M:
                A("v_lshlrev_b32 v10, 5, v1")
                for part in range(2):
                    for q, idx in enumerate((2, 4, 3)):
                        d = 24 + 8 * q + 88 * part
                        A(f"s_movk_i32 s{S_TMP}, {idx*2048 + part*MODP}")
                        A(f"buffer_load_dwordx4 v[{d}:{d+3}], v10, s[12:15], s{S_TMP} offen")
                        A(f"buffer_load_dwordx4 v[{d+4}:{d+7}], v10, s[12:15], s{S_TMP} offen offset:16")
                A("v_add_u32 v10, 81920, v10")
                A("s_waitcnt vmcnt(0)")
                for j in range(0, 24, 2): pk(A, "v_pk_add_f32", 24 + j, 24 + j, 112 + j)
                for q in range(3): round_multi(A, list(range(24 + 8*q, 32 + 8*q)), [56, 57, 58, 59], SM)
                for j in range(8): A(f"v_add_f32 v{32+j}, 1.0, v{32+j}")
                round_multi(A, list(range(32, 40)), [56, 57, 58, 59], SM)
                for q, off in enumerate((0, 16384, 49152)):
                    A(f"ds_write_b128 v10, v[{24+8*q}:{27+8*q}] offset:{off}")
                    A(f"ds_write_b128 v10, v[{28+8*q}:{31+8*q}] offset:{off+16}")
            A.label(".Lw0m_end")
            if PRG:
                A(f"s_cmp_lg_u32 s{S_WAVE}, 1")
                A("s_cbranch_scc1 .Lw1m_end")
                A(f"s_lshl_b32 s{S_TMP}, 1, s{S_J}")
                A(f"v_mov_b32 v2, {MSK}")
                A(f"v_mov_b32 v3, s{S_TMP}")
                A("ds_write_b32 v2, v3")
                A.label(".Lw1m_end")
        if early and NE:
            A(f"s_cmp_ge_u32 s{S_WAVE}, 4")
            A(f"s_cbranch_scc1 .Ltr{stage}_h")
            early(0, NE)
            A(f"s_waitcnt vmcnt({len(self.vm.ops)})")
            A(f"s_branch .Ltr{stage}_j")
            A.label(f".Ltr{stage}_h")
            A("s_waitcnt vmcnt(0)")
            A.label(f".Ltr{stage}_j")
        else:
            A("s_waitcnt vmcnt(0)")
        self.flag_srd(stage)
        A(f"s_lshl_b32 s96, s{S_M}, 8")
        A(f"s_lshl_b32 s97, s{S_J}, {3 if ONE else 2}")
        A("s_add_u32 s97, s97, s96")
        if ONE:
            A("v_mov_b32 v246, s100")
            A("v_mov_b32 v247, s101")
        A("v_mov_b32 v2, 1")
        A("v_mov_b32 v3, s97")
        A("s_waitcnt lgkmcnt(0)")
        self.lg.ops = []
        A("s_barrier")
        A(f"s_cmp_lg_u32 s{S_WAVE}, 7")
        A(f"s_cbranch_scc1 .Lpub{stage}")
        A("s_mov_b64 exec, 1")
        A("buffer_store_dwordx2 v[246:247], v3, s[92:95], 0 offen sc1" if ONE else "buffer_store_dword v2, v3, s[92:95], 0 offen sc1")
        A("s_mov_b64 exec, -1")
        A.label(f".Lpub{stage}")
        self.stamp(1 + 4 * stage + 2)
    def poll(self, stage, nbr=False, check=True, after=None):
        A = self.A
        lab = f".Lpl{stage}"
        if check:
            A(f"s_cmp_lg_u32 s{S_WAVE}, 7")
            A(f"s_cbranch_scc1 {lab}_done")
        A("v_and_b32 v3, 7, v1")
        A(f"v_lshlrev_b32 v3, {3 if ONE else 2}, v3")
        if nbr:
            A("v_bfe_u32 v2, v1, 3, 2")
            A("v_min_u32 v2, 2, v2")
            A(f"v_add_u32 v2, s{S_M}, v2")
            A("v_max_u32 v2, 1, v2")
            A("v_min_u32 v2, 32, v2")
            A("v_subrev_u32 v2, 1, v2")
            A("v_lshl_add_u32 v3, v2, 8, v3")
        else:
            A("v_add_u32 v3, s96, v3")
        A("s_mov_b32 s98, 0")
        NP = int(os.environ.get("NPOLL", "1")); PSL = int(os.environ.get("PSL", "1"))
        if ONE and SPOLL and not nbr:
            A("s_mov_b32 s99, 0")
            A.label(f"{lab}_sp")
            A("s_buffer_load_dwordx16 s[8:23], s[92:95], s96 glc")
            A("s_add_u32 s99, s99, 1")
            A("s_waitcnt lgkmcnt(0)")
            for i in range(8): A(f"s_xor_b64 s[{8+2*i}:{9+2*i}], s[{8+2*i}:{9+2*i}], s[100:101]")
            for i in range(1, 8): A(f"s_or_b64 s[8:9], s[8:9], s[{8+2*i}:{9+2*i}]")
            A(f"s_cbranch_scc0 {lab}_sd")
            A(f"s_and_b32 s98, s99, {SPOLL * 4 - 1}")
            A(f"s_cbranch_scc1 {lab}_sp")
            A("buffer_load_dwordx2 v[248:249], v3, s[92:95], 0 offen sc1")
            A("s_waitcnt vmcnt(0)")
            A("v_xor_b32 v248, s100, v248")
            A("v_xor_b32 v249, s101, v249")
            A("v_or_b32 v248, v248, v249")
            A("v_cmp_ne_u32 vcc, 0, v248")
            A("s_cmp_lt_u32 s99, 0x80000")
            A(f"s_cbranch_scc0 {lab}_sd")
            A(f"s_cbranch_vccnz {lab}_sp")
            A.label(f"{lab}_sd")
            if after: after()
        elif ONE:
            self.poll64(lab + "x", [(3, 92, "0")])
        elif NP == 1:
            A.label(f"{lab}_poll")
            A("buffer_load_dword v2, v3, s[92:95], 0 offen sc1")
            A("s_add_u32 s98, s98, 1")
            A("s_waitcnt vmcnt(0)")
            A("v_cmp_ne_u32 vcc, 1, v2")
            A("s_cmp_lt_u32 s98, 0x40000")
            A(f"s_cbranch_scc0 {lab}_done")
            A(f"s_cbranch_vccnz {lab}_poll")
        else:
            for i in range(NP):
                A(f"buffer_load_dword v{248+i}, v3, s[92:95], 0 offen sc1")
                if PSL and i < NP - 1: A(f"s_sleep {PSL}")
            A.label(f"{lab}_poll")
            for i in range(NP):
                A(f"s_waitcnt vmcnt({NP-1})")
                A(f"v_cmp_ne_u32 vcc, 1, v{248+i}")
                A(f"s_cbranch_vccz {lab}_done")
                A(f"buffer_load_dword v{248+i}, v3, s[92:95], 0 offen sc1")
            A("s_add_u32 s98, s98, 1")
            A("s_cmp_lt_u32 s98, 0x40000")
            A(f"s_cbranch_scc1 {lab}_poll")
        A.label(f"{lab}_done")
    def poll64(self, lab, srcs, cnt=99):
        A = self.A
        A(f"s_mov_b32 s{cnt}, 0")
        A.label(f"{lab}_poll")
        for i, (va, srd, so) in enumerate(srcs):
            A(f"buffer_load_dwordx2 v[{248+2*i}:{249+2*i}], v{va}, s[{srd}:{srd+3}], {so} offen sc1")
        A(f"s_add_u32 s{cnt}, s{cnt}, 1")
        A("s_waitcnt vmcnt(0)")
        for i in range(len(srcs)):
            A(f"v_xor_b32 v{248+2*i}, s100, v{248+2*i}")
            A(f"v_xor_b32 v{249+2*i}, s101, v{249+2*i}")
        A("v_or_b32 v248, v248, v249")
        for i in range(1, len(srcs)):
            A(f"v_or3_b32 v248, v248, v{248+2*i}, v{249+2*i}")
        A("v_cmp_ne_u32 vcc, 0, v248")
        A(f"s_cmp_lt_u32 s{cnt}, 0x40000")
        A(f"s_cbranch_scc0 {lab}_done")
        A(f"s_cbranch_vccnz {lab}_poll")
        A.label(f"{lab}_done")
    def pst(self, idx):
        if not PT: return
        A = self.A
        A("s_waitcnt lgkmcnt(0)")
        A("s_memrealtime s[38:39]")
        A("s_waitcnt lgkmcnt(0)")
        A(f"v_writelane_b32 v59, s38, {idx}")
    def pst_flush(self):
        if not PT: return
        A = self.A
        make_srd(A, 36, 68, WS_DBG + 16 * MB, 1 * MB)
        A("s_lshl_b32 s57, s2, 3")
        A("s_add_u32 s57, s57, s40")
        A("s_lshl_b32 s57, s57, 6")
        A("v_lshlrev_b32 v2, 2, v1")
        A("s_mov_b64 exec, 0xffff")
        A("buffer_store_dword v59, v2, s[36:39], s57 offen")
        A("s_mov_b64 exec, -1")
    def pro_pre(self):
        A = self.A
        self.pst(0)
        A("s_load_dwordx2 s[4:5], s[0:1], 0")
        A("s_load_dwordx4 s[72:75], s[0:1], 80")
        A("s_load_dwordx2 s[6:7], s[0:1], 104")
        A("s_memrealtime s[70:71]")
        if int(os.environ.get("CPF", "1")):
            A("s_getpc_b64 s[76:77]")
            A.label(".Lpc0")
            A("s_mov_b32 s78, .Lcode_end-.Lpc0")
            A("s_mov_b32 s79, 0x00020000")
            A("s_lshr_b32 s3, s2, 3")
            A("s_mul_i32 s3, s3, 2304")
            A("v_lshlrev_b32 v2, 6, v0")
            A("v_cmp_gt_u32 vcc, 36, v0")
            A("s_and_b64 exec, exec, vcc")
            A("buffer_load_dword v62, v2, s[76:79], s3 offen")
            A("s_mov_b64 exec, -1")
    def pro_a(self):
        A = self.A
        W = K1.S_WAVE; M_ = K1.S_M; G_ = K1.S_G
        self.pst(1)
        make_srd(A, 76, 72, 0, 1024)
        make_srd(A, 80, 74, 0, 512 * 6144)
        make_srd(A, 84, 68, WS_MOD, 3072 * 4)
        A("s_movk_i32 s3, 6144")
        A("s_mov_b32 s59, s2")
        A("s_cmp_lt_u32 s2, 96")
        A("s_cbranch_scc1 .Lpa_mod")
        make_srd(A, 80, 96, 0, 512 * 3584)
        make_srd(A, 84, 68, WS_CS, 1792 * 4)
        A("s_movk_i32 s3, 3584")
        A("s_sub_u32 s59, s2, 96")
        A.label(".Lpa_mod")
        A("s_cmp_ge_u32 s2, 152")
        A("s_cbranch_scc1 .Lpa_nob")
        A("v_and_b32 v2, 3, v0")
        A("v_lshrrev_b32 v3, 2, v0")
        A("v_mul_lo_u32 v4, v3, s3")
        A("v_lshl_add_u32 v4, v2, 4, v4")
        A("v_lshlrev_b32 v5, 1, v3")
        A("s_lshl_b32 s58, s59, 6")
        A("s_lshl_b32 s3, s3, 7")
        for i in range(4):
            A(f"buffer_load_dwordx4 v[{72+4*i}:{75+4*i}], v4, s[80:83], s58 offen")
            if i < 3: A("s_add_u32 s58, s58, s3")
        for i in range(4):
            A(f"buffer_load_ushort v{64+i}, v5, s[76:79], 0 offen offset:{i*256}")
        A.label(".Lpa_nob")
        make_srd(A, 88, 4, 0, 2 * MB)
        A(f"s_lshl_b32 s3, s{M_}, 3")
        A(f"s_add_u32 s3, s3, s{G_}")
        A("s_lshl_b32 s3, s3, 3")
        A(f"s_add_u32 s3, s3, s{W}")
        A("s_lshl_b32 s3, s3, 10")
        A("buffer_load_dwordx4 v[68:71], v12, s[88:91], s3 offen")
        make_srd(A, 76, 6, 0, 256)
        A(f"s_or_b32 s58, s2, s{W}")
        A("s_cmp_lg_u32 s58, 0")
        A("s_cbranch_scc1 .Lpa_non")
        A("s_or_b32 s70, s70, 1")
        A("v_mov_b32 v2, s70")
        A("v_mov_b32 v3, s71")
        A("v_mov_b32 v4, 0")
        A("s_mov_b64 exec, 1")
        A("buffer_store_dwordx2 v[2:3], v4, s[76:79], 0 offen sc1")
        A("s_mov_b64 exec, -1")
        A.label(".Lpa_non")
        if WQE: self.wqpf()
    def wqpf(self):
        A = self.A; W = K1.S_WAVE
        SQ = 88 if WQE else K1.S_WQ
        if WQE: make_srd(A, 88, 64, 0, 4 * MB)
        A("v_lshrrev_b32 v2, 4, v0")
        A("v_and_b32 v3, 15, v0")
        A("v_lshlrev_b32 v3, 6, v3")
        A("v_lshl_add_u32 v2, v2, 13, v3")
        A("s_lshr_b32 s58, s2, 3")
        A("s_lshl_b32 s58, s58, 17")
        A("s_and_b32 s57, s2, 7")
        A("s_lshl_b32 s57, s57, 10")
        A("s_add_u32 s58, s58, s57")
        A(f"s_cmp_ge_u32 s{W}, 4")
        A("s_cbranch_scc1 .Lpa_nopf")
        A(f"buffer_load_dword v255, v2, s[{SQ}:{SQ+3}], s58 offen")
        A.label(".Lpa_nopf")
    def pro_b(self, nyoung, early, w7):
        A = self.A
        W = K1.S_WAVE; M_ = K1.S_M; G_ = K1.S_G; KM = f"s{K1.S_MASK}"
        NY = nyoung
        ACC = list(range(96, 104)); T = list(range(104, 112)); U = list(range(112, 120)); C = [64, 65, 66, 67]
        make_srd(A, 88, 68, WS_XN, 2 * MB)
        self.pst(2)
        A("s_waitcnt vmcnt(0)")
        self.pst(3)
        if not WQE: self.wqpf()
        A("s_cmp_ge_u32 s2, 152")
        A("s_cbranch_scc1 .Lpb_ln")
        A("s_cmp_lt_u32 s2, 96")
        A("s_cbranch_scc1 .Lpb_silu")
        for c in C: A(f"v_mov_b32 v{c}, 1.0")
        A("s_branch .Lpb_fma")
        A.label(".Lpb_silu")
        for i, c in enumerate(C): A(f"v_lshlrev_b32 v{c}, 16, v{c}")
        for i, c in enumerate(C): A(f"v_mul_f32 v{T[i]}, {fhex(-LOG2E)}, v{c}")
        for i, c in enumerate(C): A(f"v_exp_f32 v{T[i]}, v{T[i]}")
        for i, c in enumerate(C): A(f"v_add_f32 v{T[i]}, 1.0, v{T[i]}")
        for i, c in enumerate(C): A(f"v_rcp_f32 v{U[i]}, v{T[i]}")
        for i, c in enumerate(C): A(f"v_mul_f32 v{U[4+i]}, v{c}, v{U[i]}")
        for i, c in enumerate(C): A(f"v_fma_f32 v{T[i]}, -v{U[4+i]}, v{T[i]}, v{c}")
        for i, c in enumerate(C): A(f"v_fma_f32 v{c}, v{T[i]}, v{U[i]}, v{U[4+i]}")
        for i, c in enumerate(C): A(f"v_cvt_pk_bf16_f32 v{T[i]}, v{c}, v{c}")
        for i, c in enumerate(C): A(f"v_lshlrev_b32 v{c}, 16, v{T[i]}")
        A.label(".Lpb_fma")
        for i in range(4):
            for j in range(4):
                w = 72 + 4 * i + j
                A(f"v_lshlrev_b32 v{T[2*j]}, 16, v{w}")
                A(f"v_and_b32 v{T[2*j+1]}, {KM}, v{w}")
            for j in range(8):
                A(f"v_mul_f32 v{ACC[j]}, v{T[j]}, v{C[i]}" if i == 0 else f"v_fmac_f32 v{ACC[j]}, v{T[j]}, v{C[i]}")
        A("s_nop 1")
        for dpp in ("row_ror:8", "row_ror:4"):
            for v in ACC: A(f"v_add_f32_dpp v{v}, v{v}, v{v} {dpp} row_mask:0xf bank_mask:0xf")
        A("v_and_b32 v2, 3, v1")
        A("v_lshrrev_b32 v3, 4, v0")
        A("v_lshlrev_b32 v3, 7, v3")
        A("v_lshl_add_u32 v3, v2, 5, v3")
        A("v_and_b32 v2, 12, v1")
        A("v_cmp_eq_u32 vcc, 0, v2")
        A("s_and_saveexec_b64 s[58:59], vcc") if False else None
        A("s_mov_b64 s[4:5], exec")
        A("s_and_b64 exec, exec, vcc")
        A(f"ds_write_b128 v3, v[{ACC[0]}:{ACC[3]}]")
        A(f"ds_write_b128 v3, v[{ACC[4]}:{ACC[7]}] offset:16")
        A("s_mov_b64 exec, -1")
        A("s_waitcnt lgkmcnt(0)")
        A("s_barrier")
        self.pst(4)
        A(f"s_cmp_lg_u32 s{W}, 7")
        A("s_cbranch_scc1 .Lpb_ln")
        A("v_and_b32 v2, 31, v1")
        A("v_lshlrev_b32 v2, 2, v2")
        A("v_lshrrev_b32 v3, 5, v1")
        A("v_lshl_add_u32 v3, v3, 11, v2")
        for k in range(16): A(f"ds_read_b32 v{120+k}, v3 offset:{k*128}")
        for k in range(8):
            A(f"s_waitcnt lgkmcnt({14-2*k})")
            A(f"v_add_f32 v{120+2*k}, v{120+2*k}, v{121+2*k}")
        for k in range(4): A(f"v_add_f32 v{120+4*k}, v{120+4*k}, v{122+4*k}")
        A("v_add_f32 v120, v120, v124")
        A("v_add_f32 v128, v128, v132")
        A("v_add_f32 v120, v120, v128")
        A("v_mov_b32 v121, v120")
        A("s_nop 1")
        A("v_permlane32_swap_b32 v120, v121")
        A("s_nop 1")
        A("v_add_f32 v120, v120, v121")
        A("s_cmp_ge_u32 s2, 96")
        A("s_cbranch_scc1 .Lpb_nornd")
        round_bf16_1(A, 120, 121)
        A.label(".Lpb_nornd")
        A("s_lshl_b32 s58, s59, 7")
        A("s_mov_b32 exec_hi, 0")
        A("buffer_store_dword v120, v2, s[84:87], s58 offen sc1")
        A("s_mov_b64 exec, -1")
        A.label(".Lpb_ln")
        A("v_mov_b32 v2, 0")
        A(f"s_cmp_lg_u32 s{W}, 7")
        A("s_cbranch_scc1 .Lpb_ln2")
        A("s_mov_b64 exec, 1")
        A("buffer_load_dwordx2 v[136:137], v2, s[76:79], 0 offen sc1")
        A("s_mov_b64 exec, -1")
        A.label(".Lpb_ln2")
        self.pst(5)
        X = list(range(96, 104)); TT = list(range(104, 116))
        for j in range(4):
            A(f"v_lshlrev_b32 v{X[2*j]}, 16, v{68+j}")
            A(f"v_and_b32 v{X[2*j+1]}, {KM}, v{68+j}")
        ln_rows(A, [(X, TT)], KM)
        pack8(A, X, 68)
        A("buffer_store_dwordx4 v[68:71], v12, s[88:91], s3 offen sc1")
        make_srd(A, 80, 68, FP, 32 * 512)
        self.pst(6)
        A(f"s_cmp_lg_u32 s{W}, 7")
        A("s_cbranch_scc1 .Lpb_w")
        A("s_waitcnt vmcnt(1)")
        A("s_mov_b32 s57, 0")
        A.label(".Lpb_nl")
        A("v_readfirstlane_b32 s100, v136")
        A("v_readfirstlane_b32 s101, v137")
        A("s_add_u32 s57, s57, 1")
        A("s_cmp_lg_u32 s100, 0")
        A("s_cbranch_scc1 .Lpb_nd")
        A("s_cmp_lt_u32 s57, 0x40000")
        A("s_cbranch_scc0 .Lpb_nd")
        A("s_mov_b64 exec, 1")
        A("buffer_load_dwordx2 v[136:137], v2, s[76:79], 0 offen sc1")
        A("s_mov_b64 exec, -1")
        A("s_waitcnt vmcnt(0)")
        A("s_branch .Lpb_nl")
        A.label(".Lpb_nd")
        A("v_mov_b32 v136, s100")
        A("v_mov_b32 v137, s101")
        self.pst(7)
        A("s_cmp_ge_u32 s2, 152")
        A("s_cbranch_scc1 .Lpb_w")
        A("v_lshlrev_b32 v3, 9, v1")
        A("s_lshl_b32 s58, s2, 3")
        A("s_cmp_lt_u32 s2, 32")
        A("s_cbranch_scc1 .Lpb_crit")
        make_srd(A, 80, 68, FQ_, 32 * 1024)
        A("v_lshlrev_b32 v3, 10, v1")
        A("s_sub_u32 s58, s58, 256")
        A.label(".Lpb_crit")
        A("s_mov_b32 exec_hi, 0")
        A("buffer_store_dwordx2 v[136:137], v3, s[80:83], s58 offen sc1")
        A("s_mov_b64 exec, -1")
        make_srd(A, 80, 68, FP, 32 * 512)
        A.label(".Lpb_w")
        A("s_waitcnt vmcnt(1)") if False else None
        A("s_waitcnt vmcnt(0)")
        self.pst(8)
        A("s_barrier")
        self.pst(9)
        A(f"s_cmp_lg_u32 s{W}, 7")
        A("s_cbranch_scc1 .Lpb_early")
        A(f"s_lshl_b32 s58, s{M_}, 9")
        A(f"s_lshl_b32 s57, s{G_}, 3")
        A("s_add_u32 s57, s57, 256")
        A("v_mov_b32 v3, s57")
        A("s_mov_b64 exec, 1")
        A("buffer_store_dwordx2 v[136:137], v3, s[80:83], s58 offen sc1")
        A("s_mov_b64 exec, -1")
        A("v_min_u32 v3, 39, v1")
        A("v_lshlrev_b32 v3, 3, v3")
        sv99 = None
        w7()
        self.poll64(".Lplp", [(3, 80, "s58")], cnt=57)
        A("s_branch .Lpb_done")
        A.label(".Lpb_early")
        early()
        A.label(".Lpb_done")
        A("s_barrier")
        self.pst(10)
        self.pst_flush()
    def p2_a(self):
        A = self.A
        W = K1.S_WAVE; M_ = K1.S_M; G_ = K1.S_G
        SCR = K1.STG + 16384
        A("s_waitcnt lgkmcnt(0)")
        self.pst(1)
        make_srd(A, 76, 72, 0, 1024)
        make_srd(A, 80, 74, 0, 512 * 6144)
        make_srd(A, 84, 68, WS_MOD, 4 * MODP)
        make_srd(A, 88, 4, 0, 2 * MB)
        A("s_movk_i32 s3, 6144")
        A("s_and_b32 s4, s2, 15")
        A("s_lshr_b32 s5, s2, 4")
        A("s_lshl_b32 s57, s5, 8")
        A("s_cmp_lt_u32 s2, 64")
        A("s_cbranch_scc1 .Lp2a_dec")
        A("s_sub_u32 s4, s2, 64")
        A("s_and_b32 s5, s4, 1")
        A("s_lshr_b32 s4, s4, 1")
        A("s_lshl_b32 s57, s5, 9")
        A("s_add_u32 s4, s4, 16")
        A("s_cmp_lt_u32 s4, 48")
        A("s_cbranch_scc1 .Lp2a_dec")
        A("s_sub_u32 s4, s4, 48")
        make_srd(A, 80, 96, 0, 512 * 3584)
        make_srd(A, 84, 68, WS_CS, 2 * CSP)
        A("s_movk_i32 s3, 3584")
        A.label(".Lp2a_dec")
        A("s_lshr_b32 s58, s57, 1")
        A("s_mul_i32 s58, s58, s3")
        A("s_lshl_b32 s59, s4, 7")
        A("s_add_u32 s58, s58, s59")
        A("s_lshl_b32 s59, s4, 8")
        A(f"s_movk_i32 s4, {MODP}")
        A("s_cmp_eq_u32 s3, 3584")
        A(f"s_cselect_b32 s4, {CSP}, s4")
        A("s_mul_i32 s4, s4, s5")
        A("s_add_u32 s59, s59, s4")
        A("v_and_b32 v2, 7, v0")
        A("v_bfe_u32 v3, v0, 3, 5")
        A("v_mul_lo_u32 v60, v3, s3")
        A("v_lshl_add_u32 v60, v2, 4, v60")
        A("v_lshlrev_b32 v61, 1, v3")
        A("s_lshl_b32 s70, s3, 5") if False else None
        A("s_lshl_b32 s5, s3, 5")
        A(f"s_cmp_ge_u32 s{W}, 4")
        A("s_cbranch_scc1 .Lp2a_end")
        A("s_cmp_ge_u32 s2, 64")
        A("s_cbranch_scc1 .Lp2a_x")
        self.p2_tload(0)
        A.label(".Lp2a_x")
        A(f"s_lshl_b32 s3, s{M_}, 3")
        A(f"s_add_u32 s3, s3, s{G_}")
        A("s_lshl_b32 s3, s3, 2")
        A(f"s_add_u32 s3, s3, s{W}")
        A("s_lshl_b32 s3, s3, 11")
        A("buffer_load_dwordx4 v[88:91], v12, s[88:91], s3 offen")
        A("buffer_load_dwordx4 v[92:95], v12, s[88:91], s3 offen offset:1024")
        make_srd(A, 88, 6, 0, 256)
        A(f"s_or_b32 s4, s2, s{W}")
        A("s_cmp_lg_u32 s4, 0")
        A("s_cbranch_scc1 .Lp2a_non")
        A("s_or_b32 s70, s70, 1")
        A("v_mov_b32 v2, s70")
        A("v_mov_b32 v3, s71")
        A("v_mov_b32 v4, 0")
        A("s_mov_b64 exec, 1")
        A("buffer_store_dwordx2 v[2:3], v4, s[88:91], 0 offen sc1")
        A("s_mov_b64 exec, -1")
        A.label(".Lp2a_non")
        A(f"v_mov_b32 v2, {SCR + 8192}")
        A("v_mov_b32 v4, 0")
        A("v_mov_b32 v5, 0")
        A("ds_write_b64 v2, v[4:5]")
        A("s_branch .Lp2a_e2")
        A.label(".Lp2a_end")
        if WQF == 1: self.p2_wq()
        if WQF == 2:
            A("s_cmp_lt_u32 s2, 64")
            A("s_cbranch_scc1 .Lp2a_e2") if False else None
            A("s_sleep 4")
            self.p2_wq()
        if TLW:
            A("v_lshlrev_b32 v2, 21, v1")
            A(f"v_add_u32 v2, {(2 << 20) - 128}, v2")
            make_srd(A, 88, 68, 0, 48 * MB if TLW >= 2 else 4 * MB)
            A(f"s_cmp_lg_u32 s{W}, 4")
            A("s_cbranch_scc1 .Lp2a_e2")
            A("buffer_load_dword v252, v2, s[88:91], 0 offen sc1")
            if TLW == 1:
                A(f"s_mov_b32 s4, {WS_FLAG}")
                make_srd(A, 88, 68, 0, WS_FLAG + 2 * MB)
                A("buffer_load_dword v252, v2, s[88:91], s4 offen sc1")
        A.label(".Lp2a_e2")
        if EB:
            A("s_waitcnt lgkmcnt(0)")
            A("s_barrier")
            A(f"s_cmp_lt_u32 s{W}, 4")
            A("s_cbranch_scc1 .Lp2a_e3")
            self.p2_bulk1()
            A.label(".Lp2a_e3")
        A("s_mov_b32 s70, s57")
        A("s_mov_b32 s71, s58")
    def p2_bulk1(self):
        A = self.A; W = K1.S_WAVE
        A("s_sub_u32 s4, s2, 64")
        A("s_cmp_ge_u32 s4, 120")
        A("s_cbranch_scc1 .Lp2_l1")
        self.p2_tload(0); self.p2_tload(1)
        A.label(".Lp2_l1")
        if EB: make_srd(A, K1.S_WQ, 64, 0, 4 * MB)
        if DLY == 1 and not EB:
            A("s_cmp_ge_u32 s2, 64")
            A("s_cbranch_scc1 .Lp2_l3")
        if DLY and not EB:
            self.lds_spin(".Lp2_sd", 4, 4, True)
            A.label(".Lp2_l3")
        if not WQF: self.p2_wq()
    def p2_wq(self):
        A = self.A; W = K1.S_WAVE
        if WQF: make_srd(A, K1.S_WQ, 64, 0, 4 * MB)
        W128 = int(os.environ.get("W128", "0"))
        A("v_and_b32 v4, 255, v0")
        A(f"v_lshrrev_b32 v2, {3 if W128 else 4}, v4")
        A(f"v_and_b32 v3, {7 if W128 else 15}, v4")
        A(f"v_lshlrev_b32 v3, {7 if W128 else 6}, v3")
        A("v_lshl_add_u32 v2, v2, 13, v3")
        A("s_lshr_b32 s36, s2, 3")
        A("s_lshl_b32 s36, s36, 17")
        A("s_and_b32 s37, s2, 7")
        A("s_lshl_b32 s37, s37, 10")
        A("s_add_u32 s36, s36, s37")
        if W128:
            A(f"s_cmp_ge_u32 s{W}, 6")
            A("s_cbranch_scc1 .Lp2_l2")
        A(f"buffer_load_dword v63, v2, s[{K1.S_WQ}:{K1.S_WQ+3}], s36 offen")
        if W128: A.label(".Lp2_l2")
    def p2_tload(self, b):
        A = self.A
        wd = (72, 140)[b]; cd = (64, 156)[b]
        for i in range(4):
            A(f"buffer_load_dwordx4 v[{wd+4*i}:{wd+4*i+3}], v60, s[80:83], s58 offen")
            A("s_add_u32 s58, s58, s5")
        for i in range(4):
            A(f"buffer_load_ushort v{cd+i}, v61, s[76:79], s57 offen offset:{b*256 + i*64}")
    def lds_spin(self, lab, off, target, sleep=False, va=9):
        A = self.A
        A.label(lab)
        if sleep: A("s_sleep 2")
        A(f"ds_read_b32 v3, v{va} offset:{off}")
        A("s_waitcnt lgkmcnt(0)")
        A("v_readfirstlane_b32 s4, v3")
        A(f"s_cmp_lt_u32 s4, {target}")
        A(f"s_cbranch_scc1 {lab}")
    def lds_inc(self, off, va=9):
        A = self.A
        A("v_mov_b32 v3, 1")
        A("s_mov_b64 exec, 1")
        A(f"ds_add_u32 v{va}, v3 offset:{off}")
        A("s_mov_b64 exec, -1")
    def p2_gemv(self, sfx, nb, maybe_ones, col=3):
        A = self.A
        W = K1.S_WAVE; KM = f"s{K1.S_MASK}"; SCR = K1.STG + 16384
        ACC = list(range(96, 104)); T = list(range(104, 112)); U = list(range(112, 128))
        C = [64, 65, 66, 67] + ([156, 157, 158, 159] if nb == 2 else [])
        n = len(C)
        if maybe_ones:
            A("s_cmp_lt_u32 s2, 128")
            A(f"s_cbranch_scc1 .Lp2_silu{sfx}")
            for c in C: A(f"v_mov_b32 v{c}, 1.0")
            A(f"s_branch .Lp2_fma{sfx}")
            A.label(f".Lp2_silu{sfx}")
        for i, c in enumerate(C): A(f"v_lshlrev_b32 v{c}, 16, v{c}")
        for i, c in enumerate(C): A(f"v_mul_f32 v{T[i]}, {fhex(-LOG2E)}, v{c}")
        for i, c in enumerate(C): A(f"v_exp_f32 v{T[i]}, v{T[i]}")
        for i, c in enumerate(C): A(f"v_add_f32 v{T[i]}, 1.0, v{T[i]}")
        for i, c in enumerate(C): A(f"v_rcp_f32 v{U[i]}, v{T[i]}")
        for i, c in enumerate(C): A(f"v_mul_f32 v{U[8+i]}, v{c}, v{U[i]}")
        for i, c in enumerate(C): A(f"v_fma_f32 v{T[i]}, -v{U[8+i]}, v{T[i]}, v{c}")
        for i, c in enumerate(C): A(f"v_fma_f32 v{c}, v{T[i]}, v{U[i]}, v{U[8+i]}")
        for i, c in enumerate(C): A(f"v_cvt_pk_bf16_f32 v{T[i]}, v{c}, v{c}")
        for i, c in enumerate(C): A(f"v_lshlrev_b32 v{c}, 16, v{T[i]}")
        if maybe_ones: A.label(f".Lp2_fma{sfx}")
        for i in range(n):
            for j in range(4):
                w = (72, 140)[i >> 2] + 4 * (i & 3) + j
                A(f"v_lshlrev_b32 v{T[2*j]}, 16, v{w}")
                A(f"v_and_b32 v{T[2*j+1]}, {KM}, v{w}")
            for j in range(8):
                A(f"v_mul_f32 v{ACC[j]}, v{T[j]}, v{C[i]}" if i == 0 else f"v_fmac_f32 v{ACC[j]}, v{T[j]}, v{C[i]}")
        A("v_and_b32 v2, 7, v1")
        A("v_bfe_u32 v3, v0, 4, 4")
        for v in ACC: A(f"v_add_f32_dpp v{v}, v{v}, v{v} row_ror:8 row_mask:0xf bank_mask:0xf")
        A("v_lshlrev_b32 v3, 8, v3")
        A("v_lshl_add_u32 v3, v2, 5, v3")
        A(f"v_add_u32 v3, {SCR}, v3")
        A("v_and_b32 v2, 8, v1")
        A("v_cmp_eq_u32 vcc, 0, v2")
        A("s_and_b64 exec, exec, vcc")
        A(f"ds_write_b128 v3, v[{ACC[0]}:{ACC[3]}]")
        A(f"ds_write_b128 v3, v[{ACC[4]}:{ACC[7]}] offset:16")
        A("s_mov_b64 exec, -1")
        A("s_waitcnt lgkmcnt(0)")
        self.lds_inc(0)
        A(f"s_cmp_lg_u32 s{W}, {col}")
        A(f"s_cbranch_scc1 .Lp2_gd{sfx}")
        self.lds_spin(f".Lp2_sp{sfx}", 0, 4)
        A("v_lshlrev_b32 v2, 2, v1")
        A(f"v_add_u32 v3, {SCR}, v2")
        for k in range(16): A(f"ds_read_b32 v{104+k}, v3 offset:{k*256}")
        for k in range(8):
            A(f"s_waitcnt lgkmcnt({14-2*k})")
            A(f"v_add_f32 v{104+2*k}, v{104+2*k}, v{105+2*k}")
        for k in range(4): A(f"v_add_f32 v{104+4*k}, v{104+4*k}, v{106+4*k}")
        A("v_add_f32 v104, v104, v108")
        A("v_add_f32 v112, v112, v116")
        A("v_add_f32 v68, v104, v112")
        A("buffer_store_dword v68, v2, s[84:87], s59 offen sc1")
        A.label(f".Lp2_gd{sfx}")
    def p2_ln(self):
        A = self.A; KM = f"s{K1.S_MASK}"
        X0 = list(range(96, 104)); X1 = list(range(120, 128)); T0 = list(range(104, 116)); T1 = list(range(128, 140))
        for r, X in enumerate((X0, X1)):
            for j in range(4):
                A(f"v_lshlrev_b32 v{X[2*j]}, 16, v{88+4*r+j}")
                A(f"v_and_b32 v{X[2*j+1]}, {KM}, v{88+4*r+j}")
        ln_rows(A, [(X0, T0), (X1, T1)], KM, False)
        pack8(A, X0, 88); pack8(A, X1, 92)
        A(f"buffer_store_dwordx4 v[88:91], v12, s[{K1.S_XN}:{K1.S_XN+3}], s3 offen sc1")
        A(f"buffer_store_dwordx4 v[92:95], v12, s[{K1.S_XN}:{K1.S_XN+3}], s3 offen offset:1024 sc1")
    def p2_nonce(self, sfx):
        A = self.A
        A("s_mov_b32 s4, 0")
        A.label(f".Lp2_nl{sfx}")
        A("v_readfirstlane_b32 s100, v70")
        A("v_readfirstlane_b32 s101, v71")
        A("s_add_u32 s4, s4, 1")
        A("s_cmp_lg_u32 s100, 0")
        A(f"s_cbranch_scc1 .Lp2_nd{sfx}")
        A("s_cmp_lt_u32 s4, 0x40000")
        A(f"s_cbranch_scc0 .Lp2_nd{sfx}")
        self.p2_nload()
        A("s_waitcnt vmcnt(0)")
        A(f"s_branch .Lp2_nl{sfx}")
        A.label(f".Lp2_nd{sfx}")
        A("v_mov_b32 v70, s100")
        A("v_mov_b32 v71, s101")
    def p2_nload(self):
        A = self.A
        A("v_mov_b32 v2, 0")
        A("s_mov_b64 exec, 1")
        A("buffer_load_dwordx2 v[70:71], v2, s[88:91], 0 offen sc1")
        A("s_mov_b64 exec, -1")
    def p2_pubtask(self, region, base):
        A = self.A
        make_srd(A, 76, 68, region, 32 * 1024)
        A("v_lshlrev_b32 v3, 10, v1")
        A(f"s_sub_u32 s4, s2, {base}")
        A("s_lshl_b32 s4, s4, 3")
        A("s_mov_b32 exec_hi, 0")
        A("buffer_store_dwordx2 v[70:71], v3, s[76:79], s4 offen sc1")
        A("s_mov_b64 exec, -1")
    def p2_pubxn(self, sfx):
        A = self.A
        self.lds_spin(f".Lp2_sx{sfx}", 4, 3)
        make_srd(A, 76, 68, FP, 32 * 1024)
        A(f"s_lshl_b32 s4, s{K1.S_M}, 10")
        A(f"s_lshl_b32 s5, s{K1.S_G}, 3")
        A("s_add_u32 s5, s5, 512")
        A("v_mov_b32 v3, s5")
        A("s_mov_b64 exec, 1")
        A("buffer_store_dwordx2 v[70:71], v3, s[76:79], s4 offen sc1")
        A("s_mov_b64 exec, -1")
    def p2_b(self, loader, cfix, xn_loads):
        A = self.A
        W = K1.S_WAVE; M_ = K1.S_M; KM = f"s{K1.S_MASK}"; SCR = K1.STG + 16384
        A(f"v_mov_b32 v9, {SCR + 8192}")
        if not EB:
            A("s_waitcnt lgkmcnt(0)")
            A("s_barrier")
        self.pst(2)
        A(f"s_cmp_lt_u32 s{W}, 4")
        A("s_cbranch_scc1 .Lp2_c")
        if not EB:
            A("s_mov_b32 s57, s70")
            A("s_mov_b32 s58, s71")
            self.p2_bulk1()
        elif DLY == 1:
            A("s_cmp_ge_u32 s2, 64")
            A("s_cbranch_scc1 .Lp2_l4")
            self.lds_spin(".Lp2_sd2", 4, 4, True)
            A.label(".Lp2_l4")
        loader()
        A("s_sub_u32 s4, s2, 64")
        A("s_cmp_ge_u32 s4, 120")
        A("s_cbranch_scc1 .Lp2_X")
        A(f"s_waitcnt vmcnt({4 * int(os.environ.get('LDE', '2'))})")
        self.p2_gemv("b", 2, True, 7)
        A("s_branch .Lp2_X")
        A.label(".Lp2_c")
        cfix()
        A("s_waitcnt vmcnt(0)")
        self.pst(3)
        A("s_cmp_ge_u32 s2, 64")
        A("s_cbranch_scc1 .Lp2_a0")
        self.p2_gemv("a", 1, False)
        A.label(".Lp2_a0")
        self.pst(4)
        A(f"s_cmp_lg_u32 s{W}, 3")
        A("s_cbranch_scc1 .Lp2_a1")
        self.p2_nload()
        A.label(".Lp2_a1")
        self.p2_ln()
        self.pst(6)
        A(f"s_cmp_lg_u32 s{W}, 3")
        A("s_cbranch_scc1 .Lp2_ack")
        A("s_waitcnt vmcnt(2)")
        self.p2_nonce("a")
        A("s_cmp_ge_u32 s2, 64")
        A("s_cbranch_scc1 .Lp2_a2")
        self.p2_pubtask(FP, 0)
        self.pst(7)
        A("s_waitcnt vmcnt(1)")
        A("s_branch .Lp2_a3")
        A.label(".Lp2_a2")
        A("s_waitcnt vmcnt(0)")
        A.label(".Lp2_a3")
        self.p2_pubxn("a")
        self.lds_inc(4)
        A("s_branch .Lp2_col")
        A.label(".Lp2_ack")
        A("s_waitcnt vmcnt(0)")
        self.lds_inc(4)
        A("s_branch .Lp2_X")
        A.label(".Lp2_col")
        make_srd(A, 76, 68, FP, 32 * 1024)
        A(f"s_lshl_b32 s5, s{M_}, 10")
        A("v_and_b32 v3, 7, v1")
        A("v_lshlrev_b32 v3, 3, v3")
        A("v_add_u32 v3, 512, v3")
        A("ds_write_b64 v9, v[70:71] offset:16")
        def parts():
            make_srd(A, 84, 68, WS_MOD, 4 * MODP)
            for i in range(4):
                for p in range(4):
                    A(f"s_movk_i32 s4, {p * MODP}") if p * MODP < 32768 else A(f"s_mov_b32 s4, {p * MODP}")
                    A(f"buffer_load_dwordx4 v[{72+16*i+4*p}:{75+16*i+4*p}], v12, s[84:87], s4 offen offset:{i*1024}")
        if MP:
            A("v_lshlrev_b32 v4, 3, v1")
            self.poll64(".Lplx", [(3, 76, "s5"), (4, 76, "s5")], cnt=4)
            parts()
        else:
            self.poll64(".Lplx", [(3, 76, "s5")], cnt=4)
        A.label(".Lp2_X")
        self.pst(8)
        A("s_waitcnt lgkmcnt(0)")
        A("s_barrier")
        self.pst(9)
        xn_loads()
        A(f"s_cmp_lg_u32 s{W}, 3")
        A("s_cbranch_scc1 .Lp2_Y")
        if not MP:
            make_srd(A, 76, 68, FP, 32 * 1024)
            A(f"s_lshl_b32 s5, s{M_}, 10")
            A("v_lshlrev_b32 v3, 3, v1")
            self.poll64(".Lplm", [(3, 76, "s5")], cnt=4)
            parts()
        A(f"v_add_u32 v3, {SCR + 4096}, v12")
        for i in range(4):
            b = 72 + 16 * i
            A(f"s_waitcnt vmcnt({12 - 4*i + (8 if MP else 0)})")
            pk(A, "v_pk_add_f32", b, b, b + 4); pk(A, "v_pk_add_f32", b + 2, b + 2, b + 6)
            pk(A, "v_pk_add_f32", b + 8, b + 8, b + 12); pk(A, "v_pk_add_f32", b + 10, b + 10, b + 14)
            pk(A, "v_pk_add_f32", b, b, b + 8); pk(A, "v_pk_add_f32", b + 2, b + 2, b + 10)
            round_multi(A, [b, b + 1, b + 2, b + 3], [b + 4, b + 5], KM)
            if i >= 2:
                for e in range(4): A(f"v_add_f32 v{b+e}, 1.0, v{b+e}")
                round_multi(A, [b, b + 1, b + 2, b + 3], [b + 4, b + 5], KM)
            A(f"ds_write_b128 v3, v[{b}:{b+3}] offset:{i*1024}")
        A("s_waitcnt lgkmcnt(0)")
        A.label(".Lp2_Y")
        A("s_barrier")
        self.pst(10)
        self.pst_flush()
        A("ds_read_b64 v[2:3], v9 offset:16")
        A("s_waitcnt lgkmcnt(0)")
        A("v_readfirstlane_b32 s100, v2")
        A("v_readfirstlane_b32 s101, v3")
    def p2_c(self):
        A = self.A
        A(f"s_cmp_lg_u32 s{K1.S_WAVE}, {1 if V3 else 7}")
        A("s_cbranch_scc1 .Lp2c_end")
        A("s_sub_u32 s4, s2, 64")
        A("s_cmp_ge_u32 s4, 120")
        A("s_cbranch_scc1 .Lp2c_end")
        A("v_mov_b32 v70, s100")
        A("v_mov_b32 v71, s101")
        A("s_waitcnt vmcnt(0)")
        self.p2_pubtask(FQ_, 64)
        A.label(".Lp2c_end")
    def p3_tload(self, n):
        A = self.A
        for i in range(n):
            A(f"buffer_load_dwordx4 v[{128+4*i}:{131+4*i}], v60, s[80:83], s58 offen")
            A("s_add_u32 s58, s58, s5")
        for i in range(n):
            A(f"buffer_load_ushort v{224+i}, v61, s[76:79], s57 offen offset:{i*64}")
    def p3_wq(self, sfx):
        A = self.A; W = K1.S_WAVE
        make_srd(A, K1.S_WQ, 64, 0, 4 * MB)
        A("v_and_b32 v4, 255, v0")
        A("v_lshrrev_b32 v2, 4, v4")
        A("v_and_b32 v3, 15, v4")
        A("v_lshlrev_b32 v3, 6, v3")
        A("v_lshl_add_u32 v2, v2, 13, v3")
        A("s_lshr_b32 s36, s2, 3")
        A("s_lshl_b32 s36, s36, 17")
        A("s_and_b32 s37, s2, 7")
        A("s_lshl_b32 s37, s37, 10")
        A("s_add_u32 s36, s36, s37")
        A(f"s_cmp_lt_u32 s{W}, 4")
        A(f"s_cbranch_scc1 .Lp3_wq{sfx}")
        A(f"buffer_load_dword v63, v2, s[{K1.S_WQ}:{K1.S_WQ+3}], s36 offen")
        A.label(f".Lp3_wq{sfx}")
    def p3_a(self):
        A = self.A
        W = K1.S_WAVE; M_ = K1.S_M; XR = K1.V_S
        A("s_waitcnt lgkmcnt(0)")
        self.pst(1)
        make_srd(A, 88, 6, 0, 256)
        A(f"s_or_b32 s3, s2, s{W}")
        A("s_cmp_lg_u32 s3, 0")
        A("s_cbranch_scc1 .Lp3a_non")
        A("s_or_b32 s70, s70, 1")
        A("v_mov_b32 v2, s70")
        A("v_mov_b32 v3, s71")
        A("v_mov_b32 v5, 0")
        A("s_mov_b64 exec, 1")
        A("buffer_store_dwordx2 v[2:3], v5, s[88:91], 0 offen sc1")
        A("s_mov_b64 exec, -1")
        A.label(".Lp3a_non")
        make_srd(A, 76, 72, 0, 1024)
        make_srd(A, 80, 74, 0, 512 * 6144)
        make_srd(A, 84, 68, WS_MOD, 4 * MODP)
        make_srd(A, 88, 4, 0, 2 * MB)
        A("s_movk_i32 s3, 6144")
        A("s_and_b32 s4, s2, 15")
        A("s_lshr_b32 s5, s2, 4")
        A("s_lshl_b32 s57, s5, 8")
        A("s_cmp_lt_u32 s2, 64")
        A("s_cbranch_scc1 .Lp3a_dec")
        A("s_sub_u32 s4, s2, 64")
        A("s_and_b32 s5, s4, 1")
        A("s_lshr_b32 s4, s4, 1")
        A("s_lshl_b32 s57, s5, 9")
        A("s_add_u32 s4, s4, 16")
        A("s_cmp_lt_u32 s4, 48")
        A("s_cbranch_scc1 .Lp3a_dec")
        A("s_sub_u32 s4, s4, 48")
        make_srd(A, 80, 96, 0, 512 * 3584)
        make_srd(A, 84, 68, WS_CS, 2 * CSP)
        A("s_movk_i32 s3, 3584")
        A.label(".Lp3a_dec")
        A("s_lshr_b32 s58, s57, 1")
        A("s_mul_i32 s58, s58, s3")
        A("s_lshl_b32 s59, s4, 7")
        A("s_add_u32 s58, s58, s59")
        A("s_lshl_b32 s59, s4, 8")
        A(f"s_movk_i32 s4, {MODP}")
        A("s_cmp_eq_u32 s3, 3584")
        A(f"s_cselect_b32 s4, {CSP}, s4")
        A("s_mul_i32 s4, s4, s5")
        A("s_add_u32 s59, s59, s4")
        A("v_and_b32 v2, 7, v0")
        A("v_bfe_u32 v3, v0, 3, 5")
        A("v_mul_lo_u32 v60, v3, s3")
        A("v_lshl_add_u32 v60, v2, 4, v60")
        A("v_lshlrev_b32 v61, 1, v3")
        A("s_lshl_b32 s5, s3, 5")
        A(f"v_mov_b32 v58, {K1.STG + 16384}")
        A("v_mov_b32 v3, 0")
        A("ds_write_b32 v58, v3 offset:16")
        A("s_cmp_ge_u32 s2, 64")
        A("s_cbranch_scc1 .Lp3a_x")
        A(f"s_cmp_ge_u32 s{W}, 4")
        A("s_cbranch_scc1 .Lp3a_x")
        self.p3_tload(4)
        A.label(".Lp3a_x")
        A("s_waitcnt lgkmcnt(0)")
        A("s_barrier")
        A(f"s_lshl_b32 s3, s{M_}, 16")
        A(f"s_lshl_b32 s4, s{W}, 13")
        A("s_add_u32 s3, s3, s4")
        A("s_add_u32 s4, s3, 4096")
        for i in range(4 if XS else 8):
            A(f"buffer_load_dwordx4 v[{XR+4*i}:{XR+4*i+3}], v12, s[88:91], s{3 + (i >> 2)} offen offset:{(i & 3) * 1024}")
        if not XS: make_srd(A, 88, 6, 0, 256)
        if not XS:
            A("s_cmp_lt_u32 s2, 64")
            A("s_cbranch_scc1 .Lp3a_end")
            self.p3_wq("a")
            A.label(".Lp3a_end")
        A("s_mov_b32 s70, s57")
        A("s_mov_b32 s71, s58")
    def p3_gemv(self, sfx, n, maybe_ones, col):
        A = self.A
        W = K1.S_WAVE; KM = f"s{K1.S_MASK}"; SCR = K1.STG + 16384
        ACC = list(range(64, 72)); T = list(range(72, 80)); U = list(range(80, 96))
        C = list(range(224, 224 + n))
        if maybe_ones:
            A("s_cmp_lt_u32 s2, 128")
            A(f"s_cbranch_scc1 .Lp3_silu{sfx}")
            for c in C: A(f"v_mov_b32 v{c}, 1.0")
            A(f"s_branch .Lp3_fma{sfx}")
            A.label(f".Lp3_silu{sfx}")
        seq = [lambda i, c: f"v_lshlrev_b32 v{c}, 16, v{c}", lambda i, c: f"v_mul_f32 v{T[i]}, {fhex(-LOG2E)}, v{c}",
               lambda i, c: f"v_exp_f32 v{T[i]}, v{T[i]}", None, lambda i, c: f"v_add_f32 v{T[i]}, 1.0, v{T[i]}",
               lambda i, c: f"v_rcp_f32 v{U[i]}, v{T[i]}", None, lambda i, c: f"v_mul_f32 v{U[8+i]}, v{c}, v{U[i]}",
               lambda i, c: f"v_fma_f32 v{T[i]}, -v{U[8+i]}, v{T[i]}, v{c}", lambda i, c: f"v_fma_f32 v{c}, v{T[i]}, v{U[i]}, v{U[8+i]}",
               lambda i, c: f"v_cvt_pk_bf16_f32 v{T[i]}, v{c}, v{c}", lambda i, c: f"v_lshlrev_b32 v{c}, 16, v{T[i]}"]
        for f in seq:
            if f is None: A("s_nop 0"); continue
            for i, c in enumerate(C): A(f(i, c))
        if maybe_ones: A.label(f".Lp3_fma{sfx}")
        for i in range(n):
            for j in range(4):
                w = 128 + 4 * i + j
                A(f"v_lshlrev_b32 v{T[2*j]}, 16, v{w}")
                A(f"v_and_b32 v{T[2*j+1]}, {KM}, v{w}")
            for j in range(8):
                A(f"v_mul_f32 v{ACC[j]}, v{T[j]}, v{C[i]}" if i == 0 else f"v_fmac_f32 v{ACC[j]}, v{T[j]}, v{C[i]}")
        A("v_and_b32 v2, 7, v1")
        A("v_lshrrev_b32 v3, 4, v0")
        for v in ACC: A(f"v_add_f32_dpp v{v}, v{v}, v{v} row_ror:8 row_mask:0xf bank_mask:0xf")
        A("v_lshlrev_b32 v3, 8, v3")
        A("v_lshl_add_u32 v3, v2, 5, v3")
        A(f"v_add_u32 v3, {SCR + 8192}, v3")
        A("v_and_b32 v2, 8, v1")
        A("v_cmp_eq_u32 vcc, 0, v2")
        A("s_and_b64 exec, exec, vcc")
        A(f"ds_write_b128 v3, v[{ACC[0]}:{ACC[3]}]")
        A(f"ds_write_b128 v3, v[{ACC[4]}:{ACC[7]}] offset:16")
        A("s_mov_b64 exec, -1")
        A("s_waitcnt lgkmcnt(0)")
        self.lds_inc(16, 58)
        A(f"s_cmp_lg_u32 s{W}, {col}")
        A(f"s_cbranch_scc1 .Lp3_gd{sfx}")
        self.lds_spin(f".Lp3_sp{sfx}", 16, 4, False, 58)
        A("v_lshlrev_b32 v2, 2, v1")
        A(f"v_add_u32 v3, {SCR + 8192}, v2")
        for k in range(16): A(f"ds_read_b32 v{64+k}, v3 offset:{k*256}")
        for k in range(8):
            A(f"s_waitcnt lgkmcnt({14-2*k})")
            A(f"v_add_f32 v{64+2*k}, v{64+2*k}, v{65+2*k}")
        for k in range(4): A(f"v_add_f32 v{64+4*k}, v{64+4*k}, v{66+4*k}")
        A("v_add_f32 v64, v64, v68")
        A("v_add_f32 v72, v72, v76")
        A("v_add_f32 v234, v64, v72")
        A("buffer_store_dword v234, v2, s[84:87], s59 offen sc1")
        A.label(f".Lp3_gd{sfx}")
    def p3_ln(self, b):
        A = self.A; KM = f"s{K1.S_MASK}"; XR = K1.V_S
        R = [(list(range(64 + 8 * r, 72 + 8 * r)), list(range(96 + 8 * r, 104 + 8 * r))) for r in range(4)]
        for r, (X, T) in enumerate(R):
            for j in range(4):
                A(f"v_lshlrev_b32 v{X[2*j]}, 16, v{XR+16*b+4*r+j}")
                A(f"v_and_b32 v{X[2*j+1]}, {KM}, v{XR+16*b+4*r+j}")
        ln_fast(A, R, KM, False)
        for r, (X, T) in enumerate(R): pack8(A, X, XR + 16 * b + 4 * r)
    def p3_nload(self):
        A = self.A
        A("v_mov_b32 v2, 0")
        A("s_mov_b64 exec, 1")
        A("buffer_load_dwordx2 v[232:233], v2, s[88:91], 0 offen sc1")
        A("s_mov_b64 exec, -1")
    def p3_xwait(self, sfx, n):
        A = self.A
        A("s_sub_u32 s4, s2, 64")
        A("s_cmp_lt_u32 s4, 120")
        A(f"s_cbranch_scc1 .Lp3_xw{sfx}")
        A(f"s_waitcnt vmcnt({n})")
        A.label(f".Lp3_xw{sfx}")
        A(f"s_waitcnt vmcnt({n + 8})")
    def p3_b(self, loader, cfix, xn_loads):
        A = self.A
        W = K1.S_WAVE; M_ = K1.S_M; KM = f"s{K1.S_MASK}"; SCR = K1.STG + 16384
        CW = 0; PW = 1
        WQL = int(os.environ.get('WQL', '0'))
        def nonce(sfx):
            A("s_mov_b32 s4, 0")
            A.label(f".Lp3_nl{sfx}")
            A("v_readfirstlane_b32 s100, v232")
            A("v_readfirstlane_b32 s101, v233")
            A("s_add_u32 s4, s4, 1")
            A("s_cmp_lg_u32 s100, 0")
            A(f"s_cbranch_scc1 .Lp3_nd{sfx}")
            A("s_cmp_lt_u32 s4, 0x40000")
            A(f"s_cbranch_scc0 .Lp3_nd{sfx}")
            self.p3_nload()
            A("s_waitcnt vmcnt(0)")
            A(f"s_branch .Lp3_nl{sfx}")
            A.label(f".Lp3_nd{sfx}")
            A("v_mov_b32 v232, s100")
            A("v_mov_b32 v233, s101")
            A(f"v_mov_b32 v2, {SCR}")
            A("ds_write_b64 v2, v[232:233]")
        if XS:
            A("s_add_u32 s4, s3, 4096")
            for i in range(4, 8):
                A(f"buffer_load_dwordx4 v[{K1.V_S+4*i}:{K1.V_S+4*i+3}], v12, s[88:91], s4 offen offset:{(i & 3) * 1024}")
            make_srd(A, 88, 6, 0, 256)
            A("s_mov_b32 s6, 0")
            A("s_mov_b32 s7, 0")
            A(f"s_cmp_gt_u32 s{W}, 1")
            A("s_cbranch_scc1 .Lp3_e1")
            self.p3_nload()
            A("s_mov_b32 s6, 1")
            A.label(".Lp3_e1")
            A("s_cmp_lt_u32 s2, 64")
            A("s_cbranch_scc1 .Lp3a_end")
            self.p3_wq("a")
            A(f"s_lshr_b32 s7, s{W}, 2")
            A("s_or_b32 s6, s6, s7")
            A.label(".Lp3a_end")
        self.pst(2)
        A("s_cmp_ge_u32 s2, 64")
        A("s_cbranch_scc1 .Lp3_nc")
        A(f"s_cmp_ge_u32 s{W}, 4")
        A("s_cbranch_scc1 .Lp3_ln0")
        A("s_waitcnt vmcnt(8)")
        self.pst(3)
        self.p3_gemv("a", 4, False, PW)
        self.pst(4)
        A.label(".Lp3_nc")
        A.label(".Lp3_ln0")
        assert XS
        A("s_cmp_lg_u32 s6, 0")
        A("s_cbranch_scc1 .Lp3_ln0a")
        A("s_waitcnt vmcnt(4)")
        A.label(".Lp3_ln0a")
        A("s_waitcnt vmcnt(5)")
        self.pst(5)
        self.p3_ln(0)
        self.pst(6)
        make_srd(A, 36, 68, FP, 32 * 1024)
        A("s_cmp_lg_u32 s7, 0")
        A("s_cbranch_scc1 .Lp3_ln1a")
        A("s_waitcnt vmcnt(0)")
        A.label(".Lp3_ln1a")
        A("s_waitcnt vmcnt(1)")
        A(f"s_cmp_gt_u32 s{W}, 1")
        A("s_cbranch_scc1 .Lp3_n1")
        nonce("a")
        A.label(".Lp3_n1")
        A("s_cmp_ge_u32 s2, 64")
        A("s_cbranch_scc1 .Lp3_n3")
        A(f"s_cmp_lg_u32 s{W}, {PW}")
        A("s_cbranch_scc1 .Lp3_n2")
        A("v_lshlrev_b32 v3, 10, v1")
        A("s_lshl_b32 s4, s2, 3")
        A("s_mov_b32 exec_hi, 0")
        A("buffer_store_dwordx2 v[232:233], v3, s[36:39], s4 offen sc1")
        A("s_mov_b64 exec, -1")
        self.pst(7)
        A.label(".Lp3_n2")
        if WQL == 0: self.p3_wq("b")
        A("s_branch .Lp3_n4")
        A.label(".Lp3_n3")
        A("s_cmp_ge_u32 s2, 184")
        A("s_cbranch_scc1 .Lp3_n4")
        A(f"s_cmp_ge_u32 s{W}, 4")
        A("s_cbranch_scc1 .Lp3_n4")
        A("s_mov_b32 s57, s70")
        A("s_mov_b32 s58, s71")
        self.p3_tload(8)
        A.label(".Lp3_n4")
        make_srd(A, 76, 68, FP, 32 * 1024)
        self.p3_ln(1)
        self.pst(8)
        if WQL:
            A("s_cmp_ge_u32 s2, 64")
            A("s_cbranch_scc1 .Lp3_n9")
            A(f"s_cmp_eq_u32 s{W}, {CW}")
            A("s_cbranch_scc1 .Lp3_n9")
            self.p3_wq("b")
            A.label(".Lp3_n9")
        A("s_sub_u32 s4, s2, 64")
        A("s_cmp_ge_u32 s4, 120")
        A("s_cbranch_scc1 .Lp3_n6")
        A(f"s_cmp_ge_u32 s{W}, 4")
        A("s_cbranch_scc1 .Lp3_n6")
        A("s_waitcnt vmcnt(0)")
        self.p3_gemv("b", 8, True, 1)
        A.label(".Lp3_n6")
        A(f"s_cmp_lg_u32 s{W}, {CW}")
        A("s_cbranch_scc1 .Lp3_n5")
        A(f"s_lshl_b32 s5, s{M_}, 10")
        A("v_lshlrev_b32 v3, 3, v1")
        self.poll64(".Lplm", [(3, 76, "s5")], cnt=4)
        make_srd(A, 76, 68, WS_MOD, 4 * MODP)
        for i in range(4):
            for p in range(4):
                A(f"s_movk_i32 s4, {p * MODP}") if p * MODP < 32768 else A(f"s_mov_b32 s4, {p * MODP}")
                A(f"buffer_load_dwordx4 v[{64+16*i+4*p}:{67+16*i+4*p}], v12, s[76:79], s4 offen offset:{i*1024}")
        A.label(".Lp3_n5")
        self.pst(9)
        A(f"s_cmp_lg_u32 s{W}, {CW}")
        A("s_cbranch_scc1 .Lp3_n8")
        A(f"v_add_u32 v3, {SCR + 4096}, v12")
        for i in range(4):
            b = 64 + 16 * i
            A(f"s_waitcnt vmcnt({12 - 4*i})")
            pk(A, "v_pk_add_f32", b, b, b + 4); pk(A, "v_pk_add_f32", b + 2, b + 2, b + 6)
            pk(A, "v_pk_add_f32", b + 8, b + 8, b + 12); pk(A, "v_pk_add_f32", b + 10, b + 10, b + 14)
            pk(A, "v_pk_add_f32", b, b, b + 8); pk(A, "v_pk_add_f32", b + 2, b + 2, b + 10)
            round_multi(A, [b, b + 1, b + 2, b + 3], [b + 4, b + 5], KM)
            if i >= 2:
                for e in range(4): A(f"v_add_f32 v{b+e}, 1.0, v{b+e}")
                round_multi(A, [b, b + 1, b + 2, b + 3], [b + 4, b + 5], KM)
            A(f"ds_write_b128 v3, v[{b}:{b+3}] offset:{i*1024}")
        A("s_waitcnt lgkmcnt(0)")
        A.label(".Lp3_n8")
        A.label(".Lp3_Y")
        loader()
        A("s_barrier")
        self.pst(10)
        self.pst_flush()
        A(f"v_mov_b32 v2, {SCR}")
        A("ds_read_b64 v[2:3], v2")
        A("s_waitcnt lgkmcnt(0)")
        A("v_readfirstlane_b32 s100, v2")
        A("v_readfirstlane_b32 s101, v3")
    def w_setup(self, widx, K, rowbytes, woff_code):
        A = self.A
        make_srd(A, S_W, P_W + 2 * widx, 0, K * rowbytes)
        A(f"v_lshrrev_b32 v2, 3, v{L}")
        A(f"v_and_b32 v3, 7, v{L}")
        A(f"v_lshlrev_b32 v{V_W}, 1, v2")
        A(f"v_and_b32 v{V_W}, 4, v{V_W}")
        A(f"v_xor_b32 v3, v3, v{V_W}")
        A("v_lshlrev_b32 v3, 4, v3")
        A(f"v_mul_u32_u24 v2, {rowbytes}, v2") if rowbytes < 64 else None
        A(f"s_movk_i32 s{S_WOFF}, {rowbytes}")
        A(f"v_mul_lo_u32 v2, v2, s{S_WOFF}")
        A(f"v_add_u32 v{V_W}, v2, v3")
        woff_code()
        self.wrb = rowbytes
    def dmaW(self, st, ldsoff, tag="w"):
        A = self.A
        for i in range(2):
            A(f"s_add_u32 m0, s{S_RB}, {ldsoff + i * 1024}")
            A("s_nop 0")
            A(f"buffer_load_dwordx4 v{V_W}, s[{S_W}:{S_W+3}], s{S_WOFF} offen lds")
            self.vm.issue((tag, st))
            A(f"s_add_u32 s{S_WOFF}, s{S_WOFF}, {8 * self.wrb}")
    def pf_g64(self, widx, K, WB, DW, lo=0, hi=99, rot=0):
        A = self.A
        def woff():
            A(f"s_mul_i32 s{S_WOFF}, s{S_WAVE}, {(K // 4) * 1024}")
            A(f"s_lshl_b32 s{S_TMP+11}, s{S_J}, 7")
            A(f"s_add_u32 s{S_WOFF}, s{S_WOFF}, s{S_TMP+11}")
        if lo == 0: self.w_setup(widx, K, 1024, woff)
        self.wrb = 1024
        for st in range(lo, min(DW, hi)): self.dmaW(st, WB + ((st + rot) % DW) * 2048, "wn" if PFE == 3 else "w")
    def pf_k5(self, lo=0, hi=99):
        A = self.A
        def woff():
            A(f"s_min_u32 s{S_WOFF}, s{S_J}, 6")
            A(f"s_lshl_b32 s{S_WOFF}, s{S_WOFF}, 9")
            A(f"s_lshl_b32 s{S_TMP+11}, s{S_WAVE}, 7")
            A(f"s_add_u32 s{S_WOFF}, s{S_WOFF}, s{S_TMP+11}")
        if lo == 0: self.w_setup(2, 512, 3584, woff)
        self.wrb = 3584
        for st in range(lo, min(K5D, hi)): self.dmaW(st, K5RB + st * 2048, "wn" if PFE == 3 else "w")
    def l2pf(self, widx, size):
        A = self.A
        per = size // 32
        A("s_lshr_b32 s78, s2, 3")
        A(f"s_mul_i32 s78, s78, {per}")
        make_srd(A, 80, P_W + 2 * widx, "s78", per)
        A("v_and_b32 v2, 255, v0")
        A("v_lshlrev_b32 v2, 7, v2")
        n = (per + 32767) // 32768
        for i in range(n):
            A(f"s_mov_b32 s78, {i * 32768}")
            A("buffer_load_dword v3, v2, s[80:83], s78 offen")
        return n
    def persist(self):
        A = self.A
        A(f"s_load_dwordx2 s[{P_X}:{P_X+1}], s[0:1], 0")
        A(f"s_load_dwordx2 s[{P_OUT}:{P_OUT+1}], s[0:1], 96")
        A(f"s_load_dwordx2 s[{P_WS}:{P_WS+1}], s[0:1], 112")
        A(f"s_load_dwordx8 s[{P_W}:{P_W+7}], s[0:1], 48")
        A("v_and_b32 v1, 63, v0")
        A("v_lshrrev_b32 v2, 6, v0")
        A("s_nop 0")
        A(f"v_readfirstlane_b32 s{S_WAVE}, v2")
        A(f"s_and_b32 s{S_M}, s2, 31")
        A(f"s_lshr_b32 s{S_J}, s2, 5")
        A(f"s_mov_b32 s{S_MASK}, 0xffff0000")
        A(f"s_mul_i32 s{S_RB}, s{S_WAVE}, {RG}")
        A("s_waitcnt lgkmcnt(0)")
    def kr(self):
        A = self.A; vm = self.vm
        S_X = 8; S_MOD = 12; S_PT = 16; S_X2 = 20; S_H = 24; S_HN = 28; S_H1 = 36
        PR = 64; XR = 16; GA = 24; CB = 32; SB = 40
        A("v_lshlrev_b32 v9, 4, v1")
        A("v_lshlrev_b32 v10, 5, v1")
        A(f"s_lshl_b32 s3, s{S_M}, 3")
        A(f"s_add_u32 s3, s3, s{S_J}")
        A("s_lshl_b32 s3, s3, 3")
        A(f"s_add_u32 s3, s3, s{S_WAVE}")
        A("s_lshl_b32 s3, s3, 10")
        make_srd(A, S_X, P_X, 0, 2 * MB)
        make_srd(A, S_MOD, P_WS, WS_MOD, 4 * MODP)
        A(f"buffer_load_dwordx4 v[{XR}:{XR+3}], v9, s[{S_X}:{S_X+3}], s3 offen"); vm.issue("x")
        def modloads():
            for part in range(2 if V2 else 1):
                for (dst, idx) in ((CB, 4), (GA, 2), (SB, 3)):
                    d = dst + 88 * part
                    A(f"s_movk_i32 s{S_TMP}, {idx*2048 + part*MODP}")
                    A(f"buffer_load_dwordx4 v[{d}:{d+3}], v10, s[{S_MOD}:{S_MOD+3}], s{S_TMP} offen"); vm.issue("x")
                    A(f"buffer_load_dwordx4 v[{d+4}:{d+7}], v10, s[{S_MOD}:{S_MOD+3}], s{S_TMP} offen offset:16"); vm.issue("x")
        if W0M:
            A("v_add_u32 v2, 81920, v10")
            for q, off in enumerate((0, 16384, 49152)):
                A(f"ds_read_b128 v[{24+8*q}:{27+8*q}], v2 offset:{off}")
                A(f"ds_read_b128 v[{28+8*q}:{31+8*q}], v2 offset:{off+16}")
            A("s_waitcnt lgkmcnt(0)")
        else: modloads()
        make_srd(A, S_PT, P_WS, WS_PART, 8 * 2048 * 512 * 2)
        make_srd(A, S_X2, P_WS, WS_X2, 2 * MB)
        make_srd(A, S_H, P_WS, WS_H, 2 * MB)
        make_srd(A, S_HN, P_WS, WS_HN, 2 * MB)
        make_srd(A, S_H1, P_WS, WS_H1, 2052 * 1024)
        if HP:
            A(f"v_lshlrev_b32 v2, 2, v1")
            A(f"v_add_u32 v2, {CNT}, v2")
            A("v_mov_b32 v3, 0")
            A("ds_write_b32 v2, v3")
            A("s_waitcnt lgkmcnt(0)")
        A(f"s_cmp_ge_u32 s{S_WAVE}, 4")
        A("s_cbranch_scc1 .Lkr_nz2")
        A(f"s_lshr_b32 s{S_TMP}, s{S_WAVE}, 1")
        A(f"s_mul_i32 s{S_TMP}, s{S_TMP}, 31")
        A(f"s_cmp_lg_u32 s2, s{S_TMP}")
        A("s_cbranch_scc1 .Lkr_nz")
        A(f"s_lshl_b32 s{S_TMP}, s{S_WAVE}, 10")
        A(f"s_add_u32 s{S_TMP+1}, s{S_TMP}, {2048*1024}")
        A(f"s_cmp_lt_u32 s{S_WAVE}, 2")
        A(f"s_cselect_b32 s{S_TMP}, s{S_TMP}, s{S_TMP+1}")
        for j in range(4): A(f"v_mov_b32 v{12+j}, 0")
        A(f"buffer_store_dwordx4 v[12:15], v9, s[{S_H1}:{S_H1+3}], s{S_TMP} offen sc1")
        A.label(".Lkr_nz")
        PFW1 = int(os.environ.get("PFW1", "1"))
        if PRG:
            PFP = int(os.environ.get("PFP", "1"))
            if PFP == 0: self.pf_g64(0, 512, 24576, 8)
            PFW1 = 0
            A.label(".Lkr_nz2")
            A(f"s_mul_i32 s{S_TMP}, s{S_M}, {7 * 65536}")
            A(f"s_add_u32 s{S_TMP}, s{S_TMP}, s3")
            A(f"v_mov_b32 v4, {MSK}")
            A(f"s_mov_b32 s{S_TMP+1}, 0")
            A(f"s_cmp_lg_u32 s{S_WAVE}, 7")
            A("s_cbranch_scc1 .Lkr_lp")
            A("v_and_b32 v3, 7, v1")
            A("v_lshlrev_b32 v3, 3, v3")
            A("v_add_u32 v3, s96, v3")
            A("s_mov_b32 s99, 0")
            A.label(".Lkr_pp")
            A("buffer_load_dwordx2 v[248:249], v3, s[92:95], 0 offen sc1")
            A("s_add_u32 s99, s99, 1")
            A("s_waitcnt vmcnt(0)")
            A("v_xor_b32 v248, s100, v248")
            A("v_xor_b32 v249, s101, v249")
            A("v_or_b32 v248, v248, v249")
            A("v_cmp_eq_u32 vcc, 0, v248")
            A(f"s_and_b32 s{S_TMP+2}, vcc_lo, 0xff")
            A("s_cmp_lt_u32 s99, 0x40000")
            A(f"s_cselect_b32 s{S_TMP+2}, s{S_TMP+2}, 0xff")
            A(f"v_mov_b32 v5, s{S_TMP+2}")
            A("s_mov_b64 exec, 1")
            A("ds_or_b32 v4, v5")
            A("s_mov_b64 exec, -1")
            A(f"s_cmp_lg_u32 s{S_TMP+2}, 0xff")
            A("s_cbranch_scc1 .Lkr_pp")
            self.stamp(4)
            A.label(".Lkr_lp")
            A("ds_read_b32 v5, v4")
            A("s_waitcnt lgkmcnt(0)")
            A(f"v_readfirstlane_b32 s{S_TMP+2}, v5")
            A(f"s_andn2_b32 s{S_TMP+3}, s{S_TMP+2}, s{S_TMP+1}")
            A("s_cbranch_scc1 .Lkr_new")
            A("s_sleep 1")
            A("s_branch .Lkr_lp")
            A.label(".Lkr_new")
            for g in range(8):
                A(f"s_bitcmp1_b32 s{S_TMP+3}, {g}")
                A(f"s_cbranch_scc0 .Lkr_n{g}")
                A(f"s_add_u32 s{S_TMP+4}, s{S_TMP}, {g * 65536}")
                A(f"buffer_load_dwordx4 v[{PR+4*g}:{PR+4*g+3}], v9, s[{S_PT}:{S_PT+3}], s{S_TMP+4} offen")
                A.label(f".Lkr_n{g}")
            A(f"s_mov_b32 s{S_TMP+1}, s{S_TMP+2}")
            A(f"s_cmp_lg_u32 s{S_TMP+1}, 0xff")
            A("s_cbranch_scc1 .Lkr_lp")
            if PFP == 1:
                A(f"s_cmp_ge_u32 s{S_WAVE}, 4")
                A("s_cbranch_scc1 .Lkr_w0")
                self.pf_g64(0, 512, 24576, 8)
                A("s_waitcnt vmcnt(16)")
                A("s_branch .Lkr_w1")
                A.label(".Lkr_w0")
            A("s_waitcnt vmcnt(0)")
            if PFP == 1: A.label(".Lkr_w1")
            if PFP == 2: PFW1 = 2
            vm.ops = []
        else:
            sv = list(vm.ops)
            if PFW1 == 1: self.pf_g64(0, 512, 24576, 8)
            vm.ops = sv
            A.label(".Lkr_nz2")
            def rebuild():
                make_srd(A, S_PT, P_WS, WS_PART, 8 * 2048 * 512 * 2)
                make_srd(A, S_X2, P_WS, WS_X2, 2 * MB)
                make_srd(A, S_X, P_X, 0, 2 * MB)
                make_srd(A, S_MOD, P_WS, WS_MOD, 4 * MODP)
            self.poll(0, after=rebuild)
            A("s_barrier")
            self.stamp(4)
            PL = int(os.environ.get("PL", "1"))
            if PL:
                A(f"s_mul_i32 s{S_TMP}, s{S_M}, {7 * 65536}")
                A(f"s_add_u32 s{S_TMP}, s{S_TMP}, s3")
            else: A(f"s_mov_b32 s{S_TMP}, s3")
            for g in range(8):
                A(f"buffer_load_dwordx4 v[{PR+4*g}:{PR+4*g+3}], v9, s[{S_PT}:{S_PT+3}], s{S_TMP} offen {os.environ.get('PLF', '')}"); vm.issue(("p", g))
                if g < 7: A(f"s_add_u32 s{S_TMP}, s{S_TMP}, {65536 if PL else 2048*512*2}")
        X = list(range(48, 56)); T = list(range(PR, PR + 12)); XU = list(range(96, 104))
        if PFW1 == 3:
            def woff():
                A(f"s_and_b32 s{S_TMP+9}, s{S_WAVE}, 3")
                A(f"s_lshr_b32 s{S_TMP+8}, s{S_WAVE}, 2")
                A(f"s_lshl_b32 s{S_WOFF}, s{S_TMP+9}, 17")
                A(f"s_lshl_b32 s{S_TMP+11}, s{S_TMP+8}, 16")
                A(f"s_add_u32 s{S_WOFF}, s{S_WOFF}, s{S_TMP+11}")
                A(f"s_lshl_b32 s{S_TMP+11}, s{S_J}, 7")
                A(f"s_add_u32 s{S_WOFF}, s{S_WOFF}, s{S_TMP+11}")
                A(f"s_mov_b32 s{S_TMP+7}, s{S_RB}")
                A(f"s_mul_i32 s{S_RB}, s{S_TMP+9}, {RG}")
                A(f"s_lshl_b32 s{S_TMP+8}, s{S_TMP+8}, 13")
                A(f"s_add_u32 s{S_RB}, s{S_RB}, s{S_TMP+8}")
            self.w_setup(0, 512, 1024, woff)
            for st in range(4): self.dmaW(st, 24576 + st * 2048, "wn")
            A(f"s_mov_b32 s{S_RB}, s{S_TMP+7}")
        if int(os.environ.get("KRX", "0")):
            vm.wait(("p", 0)); self.stamp(25)
            vm.wait(("p", 7)); self.stamp(26)
        vm.wait("x")
        if V2 and not W0M:
            for j in range(0, 24, 2): pk(A, "v_pk_add_f32", GA + j, GA + j, GA + 88 + j)
            for q in range(3): round_multi(A, list(range(GA + 8*q, GA + 8*q + 8)), [56, 57, 58, 59], SM)
        if not W0M:
            for j in range(8): A(f"v_add_f32 v{CB+j}, 1.0, v{CB+j}")
            round_multi(A, list(range(CB, CB + 8)), [56, 57, 58, 59], SM)
        for j in range(4):
            A(f"v_lshlrev_b32 v{XU[2*j]}, 16, v{XR+j}")
            A(f"v_and_b32 v{XU[2*j+1]}, {SM}, v{XR+j}")
        for g in range(8):
            vm.wait(("p", g))
            if g == 0:
                for j in range(4):
                    A(f"v_lshlrev_b32 v{X[2*j]}, 16, v{PR+j}")
                    A(f"v_and_b32 v{X[2*j+1]}, {SM}, v{PR+j}")
            else:
                U = 136 + 8 * (g & 1)
                for j in range(4):
                    p = PR + 4 * g + j
                    A(f"v_lshlrev_b32 v{U+2*j}, 16, v{p}")
                    A(f"v_and_b32 v{U+2*j+1}, {SM}, v{p}")
                for j in range(0, 8, 2): pk(A, "v_pk_add_f32", X[j], X[j], U + j)
        self.stamp(23)
        if PFW1 == 2:
            A(f"s_cmp_ge_u32 s{S_WAVE}, 4")
            A("s_cbranch_scc1 .Lkr_nz3")
            self.pf_g64(0, 512, 24576, 8)
            A.label(".Lkr_nz3")
        round_multi(A, X, T[5:9], SM)
        for j in range(0, 8, 2): pk(A, "v_pk_mul_f32", X[j], X[j], GA + j)
        round_multi(A, X, T[5:9], SM)
        for j in range(0, 8, 2): pk(A, "v_pk_add_f32", X[j], X[j], XU[j])
        pack8(A, X, XR)
        A(f"buffer_store_dwordx4 v[{XR}:{XR+3}], v9, s[{S_X2}:{S_X2+3}], s3 offen sc1")
        for j in range(4):
            A(f"v_lshlrev_b32 v{X[2*j]}, 16, v{XR+j}")
            A(f"v_and_b32 v{X[2*j+1]}, {SM}, v{XR+j}")
        ln_rows(A, [(X, T)], SM)
        for j in range(0, 8, 2): pk(A, "v_pk_mul_f32", X[j], X[j], CB + j)
        round_multi(A, X, T[5:9], SM)
        for j in range(0, 8, 2): pk(A, "v_pk_add_f32", X[j], X[j], SB + j)
        pack8(A, X, 80)
        A(f"buffer_store_dwordx4 v[80:83], v9, s[{S_H}:{S_H+3}], s3 offen sc1")
        self.stamp(24)
        for j in range(4):
            A(f"v_lshlrev_b32 v{X[2*j]}, 16, v{80+j}")
            A(f"v_and_b32 v{X[2*j+1]}, {SM}, v{80+j}")
        ln_rows(A, [(X, T)], SM, False)
        pack8(A, X, 84)
        A(f"buffer_store_dwordx4 v[84:87], v9, s[{S_HN}:{S_HN+3}], s3 offen sc1")
    def g64(self, lab, stage, K, a_off, a_size, a_rb, epi, WB, DW, nbr, next_pf, own_pf=None, rot=0, nsched=None, l2=None, split=False):
        A = self.A; vm = self.vm; lg = self.lg
        S_G = 8; S_X1 = 16; S_X2 = 20; S_MOD = 24; S_O = 28; S_ST = 36
        KW = K // 4; NCH = KW // 64; NS = NCH * 4; DG = 3
        VG = [4, 5]; AA = 16; BA = 18
        X1 = 24; X2 = 32; GB = 40
        V_PW = 48; V_PR = 49; V_GA = 51; V_SA = 52; VC = (12, 14, 54)
        ACC = 64; FR = 128
        NBG = int(os.environ.get('NBG', '3'))
        half = HP and K == 512
        SW = S_R8 if half else S_WAVE
        CO = 16 * stage
        def tail_setup():
            if half:
                A(f"s_add_u32 s{S_R8}, s{S_WAVE}, 4")
                A(f"s_and_b32 s{S_R8}, s{S_R8}, 7")
                A(f"v_mov_b32 v{V_CT}, {CNT}")
            A(f"v_lshrrev_b32 v10, 3, v{L}")
            A(f"v_and_b32 v11, 7, v{L}")
            A(f"v_mul_u32_u24 v{V_PR}, {RS}, v10")
            A(f"v_lshl_add_u32 v{V_PR}, v11, 5, v{V_PR}")
            A(f"s_mul_i32 s{S_TMP+3}, s{SW}, {8*RS}")
            A(f"v_add_u32 v{V_PR}, s{S_TMP+3}, v{V_PR}")
            A(f"v_add_u32 v{V_PR+1}, {2*RG}, v{V_PR}")
            A(f"v_lshlrev_b32 v{V_GA}, 4, v11")
            A(f"v_lshl_add_u32 v{V_GA}, v10, 10, v{V_GA}")
            A(f"s_lshl_b32 s{S_TMP+2}, s{S_M}, 16")
            A(f"s_lshl_b32 s{S_TMP+3}, s{SW}, 13")
            A(f"s_add_u32 s{S_TMP+2}, s{S_TMP+2}, s{S_TMP+3}")
            A(f"s_lshl_b32 s{S_TMP+3}, s{S_J}, 7")
            A(f"s_add_u32 s{S_TMP+2}, s{S_TMP+2}, s{S_TMP+3}")
            if epi == "final":
                A(f"v_lshlrev_b32 v{V_SA}, 5, v11")
                make_srd(A, S_X1, P_WS, WS_X1, 2 * MB)
                make_srd(A, S_X2, P_WS, WS_X2, 2 * MB)
                make_srd(A, S_MOD, P_WS, WS_MOD, 4 * MODP)
                make_srd(A, S_O, P_OUT, 0, 2 * MB)
                A(f"buffer_load_dwordx4 v[{X1}:{X1+3}], v{V_GA}, s[{S_X1}:{S_X1+3}], s{S_TMP+2} offen"); vm.issue("e")
                A(f"buffer_load_dwordx4 v[{X2}:{X2+3}], v{V_GA}, s[{S_X2}:{S_X2+3}], s{S_TMP+2} offen"); vm.issue("e")
                A(f"s_lshl_b32 s{S_TMP+3}, s{S_J}, 8")
                A(f"s_add_u32 s{S_TMP+3}, s{S_TMP+3}, {5*2048}")
                for h4 in range(2):
                    A(f"buffer_load_dwordx4 v[{GB+4*h4}:{GB+4*h4+3}], v{V_SA}, s[{S_MOD}:{S_MOD+3}], s{S_TMP+3} offen offset:{h4*16}"); vm.issue("e")
                if V2:
                    A(f"s_add_u32 s{S_TMP+3}, s{S_TMP+3}, {MODP}")
                    for h4 in range(2):
                        A(f"buffer_load_dwordx4 v[{180+4*h4}:{183+4*h4}], v{V_SA}, s[{S_MOD}:{S_MOD+3}], s{S_TMP+3} offen offset:{h4*16}"); vm.issue("e")
            elif epi == "res":
                A(f"v_lshlrev_b32 v{V_SA}, 3, v10")
                A(f"s_lshl_b32 s{S_TMP+6}, s{S_M}, 9")
                A(f"s_lshl_b32 s{S_TMP+3}, s{SW}, 6")
                A(f"s_add_u32 s{S_TMP+6}, s{S_TMP+6}, s{S_TMP+3}")
                A(f"s_lshl_b32 s{S_TMP+3}, s{S_J}, 14")
                A(f"s_add_u32 s{S_TMP+6}, s{S_TMP+6}, s{S_TMP+3}")
                make_srd(A, S_X1, P_WS, WS_H, 2 * MB)
                make_srd(A, S_O, P_WS, WS_X1, 2 * MB)
                make_srd(A, S_ST, P_WS, WS_STAT, 2048 * 128)
                A(f"buffer_load_dwordx4 v[{X1}:{X1+3}], v{V_GA}, s[{S_X1}:{S_X1+3}], s{S_TMP+2} offen"); vm.issue("e")
            else:
                A(f"v_mov_b32 v{VC[0]}, {fhex(GK1)}")
                A(f"v_mov_b32 v{VC[1]}, {fhex(GK0)}")
                A(f"v_mov_b32 v{VC[2]}, 1.0")
                make_srd(A, S_O, P_WS, WS_H1 + 2048, 2 * MB)
        A(f"s_cmp_ge_u32 s{S_WAVE}, 4")
        A(f"s_cbranch_scc1 .L{lab}_help")
        if own_pf and PFE == 2: own_pf(NE, 99)
        A(f"v_lshrrev_b32 v7, 3, v{L}")
        A(f"v_and_b32 v8, 7, v{L}")
        A("v_lshrrev_b32 v9, 1, v7")
        A("v_xor_b32 v9, v8, v9")
        A(f"s_movk_i32 s{S_TMP}, {a_rb}")
        A(f"v_mul_lo_u32 v10, v7, s{S_TMP}")
        A(f"v_lshl_add_u32 v{VG[0]}, v9, 4, v10")
        A("v_xor_b32 v9, 4, v9")
        A(f"v_lshl_add_u32 v{VG[1]}, v9, 4, v10")
        A(f"s_mul_i32 s{S_GOFF}, s{S_M}, {64*a_rb}")
        A(f"s_mul_i32 s{S_TMP}, s{S_WAVE}, {KW*2}")
        A(f"s_add_u32 s{S_GOFF}, s{S_GOFF}, s{S_TMP}")
        if epi == "res":
            A(f"s_lshl_b32 s{S_TMP}, s{S_WAVE}, 2")
            A(f"s_lshr_b32 s{S_TMP+1}, 0x4031, s{S_TMP}")
            A(f"s_and_b32 s{S_TMP+1}, s{S_TMP+1}, 15")
            A(f"s_lshl_b32 s{S_TMP+1}, s{S_TMP+1}, 10")
            A(f"s_add_u32 s{S_GOFF}, s{S_GOFF}, s{S_TMP+1}")
        make_srd(A, S_G, P_WS, a_off, a_size)
        A(f"v_lshrrev_b32 v7, 5, v{L}")
        A(f"v_bfe_u32 v8, v{L}, 4, 1")
        A(f"v_bfe_u32 v9, v{L}, 2, 2")
        A(f"v_and_b32 v10, 1, v{L}")
        A(f"v_bfe_u32 v11, v{L}, 1, 1")
        A("v_lshl_or_b32 v10, v10, 1, v11")
        A("v_lshlrev_b32 v10, 3, v10")
        A("v_lshl_add_u32 v10, v8, 5, v10")
        A("v_lshl_add_u32 v11, v7, 3, v9")
        A("v_lshrrev_b32 v12, 1, v9")
        for nb in range(2):
            A(f"v_xor_b32 v13, {nb}, v12")
            A("v_lshl_add_u32 v13, v13, 6, v10")
            A("v_lshl_add_u32 v13, v11, 7, v13")
            A(f"v_add_u32 v{AA+nb}, s{S_RB}, v13")
        A(f"v_and_b32 v8, 31, v{L}")
        A("v_bfe_u32 v9, v8, 1, 3")
        for ks in range(4):
            A(f"v_or_b32 v10, {2*ks}, v7")
            A("v_xor_b32 v10, v10, v9")
            A("v_lshlrev_b32 v10, 4, v10")
            A("v_lshl_add_u32 v10, v8, 7, v10")
            A(f"v_add_u32 v{BA+ks}, s{S_RB}, v10")
        A(f"v_mul_u32_u24 v{V_PW}, {RS}, v8")
        A(f"v_lshl_add_u32 v{V_PW}, v7, 5, v{V_PW}")
        A(f"v_add_u32 v{V_PW}, s{S_RB}, v{V_PW}")
        tail_setup()
        A("s_barrier")
        self.stamp(1 + 4 * stage + 3)
        def dmaG(ch):
            base = (ch % DG) * 8192
            for i in range(8):
                A(f"s_add_u32 m0, s{S_RB}, {base + i * 1024}")
                A(f"s_add_u32 s{S_TMP}, s{S_GOFF}, {i * 8 * a_rb + ch * 128}")
                A(f"buffer_load_dwordx4 v{VG[i & 1]}, s[{S_G}:{S_G+3}], s{S_TMP} offen lds")
                vm.issue(("g", ch))
        if half:
            HB = 32 * RS
            def dmaGh(h, ch):
                for i in range(4):
                    A(f"s_add_u32 m0, s{S_RB}, {h * HB + ch * 4096 + i * 1024}")
                    A(f"s_add_u32 s{S_TMP}, s{S_GOFF}, {(4 * h + i) * 8 * a_rb + ch * 128}")
                    A(f"buffer_load_dwordx4 v{VG[i & 1]}, s[{S_G}:{S_G+3}], s{S_TMP} offen lds")
                    vm.issue(("g", h, ch))
            WF = 128; BFR = 192
            def readsh(h, step):
                ch, ks = step // 4, step % 4
                if h == 0:
                    for nb in range(2):
                        for q in range(2):
                            d = WF + step * 8 + nb * 4 + q * 2
                            A(f"ds_read_b64_tr_b16 v[{d}:{d+1}], v{AA+nb} offset:{WB + step * 2048 + q * 512}")
                            lg.issue(("f", step))
                d = BFR + step * 4
                A(f"ds_read_b128 v[{d}:{d+3}], v{BA+ks} offset:{h * HB + ch * 4096}")
                lg.issue(("f", step))
            dmaGh(0, 0); dmaGh(0, 1)
            if not split: dmaGh(1, 0); dmaGh(1, 1)
            for h in range(2):
                if h == 1 and split:
                    self.lds_spin(f".L{lab}_rb", 12, 1, False, V_CT)
                    dmaGh(1, 0); dmaGh(1, 1)
                PD = 2 if h == 0 else 4
                for s0 in range(PD):
                    vm.wait(("g", h, 0)); readsh(h, s0)
                for st in range(8):
                    lg.wait(("f", st))
                    with Cap(A) as cp:
                        if st + PD < 8:
                            vm.wait(("g", h, (st + PD) // 4)); readsh(h, st + PD)
                        if h == HPH and nsched and st in nsched: next_pf(*nsched[st])
                    mf = []
                    for nb in range(2):
                        acc = ACC + (nb * 2 + h) * 16
                        c = "0" if st == 0 else f"v[{acc}:{acc+15}]"
                        mf.append(f"v_mfma_f32_32x32x16_bf16 v[{acc}:{acc+15}], v[{WF+st*8+nb*4}:{WF+st*8+nb*4+3}], v[{BFR+st*4}:{BFR+st*4+3}], {c}")
                    interleave(A, mf, cp.out)
                A("s_nop 7")
                A("s_nop 3")
                for nb in range(2):
                    tl = nb * 2 + h
                    for r4 in range(4):
                        A(f"ds_write_b128 v{V_PW}, v[{ACC+tl*16+r4*4}:{ACC+tl*16+r4*4+3}] offset:{h*HB + (nb*8 + (r4 >> 1)*4 + (r4 & 1))*16}")
                A("s_waitcnt lgkmcnt(0)")
                self.lds_inc(CO + 4 * h, V_CT)
                if h == 0 and HPH == 2 and nsched:
                    for st in range(8): next_pf(*nsched[st])
            vm.wait("e")
            self.lds_spin(f".L{lab}_sb", CO + 4, 4, False, V_CT)
            A(f"s_branch .L{lab}_join")
        else:
            for ch in range(min(DG, NCH)): dmaG(ch)
            def reads(step):
                ch, ks = step // 4, step % 4
                buf = FR + (step % NBG) * 16
                for nb in range(2):
                    for q in range(2):
                        A(f"ds_read_b64_tr_b16 v[{buf+nb*4+q*2}:{buf+nb*4+q*2+1}], v{AA+nb} offset:{WB + ((step + rot) % DW) * 2048 + q * 512}")
                        lg.issue(("f", step))
                for rb in range(2):
                    A(f"ds_read_b128 v[{buf+8+rb*4}:{buf+8+rb*4+3}], v{BA+ks} offset:{(ch % DG) * 8192 + rb * 4096}")
                    lg.issue(("f", step))
            def need(step):
                vm.wait(("w", step)); vm.wait(("g", step // 4))
            for s0 in range(NBG - 1):
                need(s0); reads(s0)
            for st in range(NS):
                lg.wait(("f", st))
                with Cap(A) as cp:
                    if st + DW < NS: self.dmaW(st + DW, WB + ((st + rot) % DW) * 2048)
                    if st % 4 == 3 and st // 4 + DG < NCH: dmaG(st // 4 + DG)
                    if st + NBG - 1 < NS:
                        need(st + NBG - 1); reads(st + NBG - 1)
                    if st + DW >= NS and PFE == 3 and nsched and st in nsched: next_pf(*nsched[st])
                buf = FR + (st % NBG) * 16
                mf = []
                for nb in range(2):
                    for rb in range(2):
                        acc = ACC + (nb * 2 + rb) * 16
                        c = "0" if st == 0 else f"v[{acc}:{acc+15}]"
                        mf.append(f"v_mfma_f32_32x32x16_bf16 v[{acc}:{acc+15}], v[{buf+nb*4}:{buf+nb*4+3}], v[{buf+8+rb*4}:{buf+8+rb*4+3}], {c}")
                interleave(A, mf, cp.out)
            vm.wait("e")
            if not int(os.environ.get("KRX", "0")): self.stamp({1: 25, 2: 26, 4: 27}[stage])
            A("s_nop 7")
            A("s_nop 1")
            for tl in range(4):
                nb, rb = tl >> 1, tl & 1
                for r4 in range(4):
                    A(f"ds_write_b128 v{V_PW}, v[{ACC+tl*16+r4*4}:{ACC+tl*16+r4*4+3}] offset:{rb*32*RS + (nb*8 + (r4 >> 1)*4 + (r4 & 1))*16}")
                if tl == 1: A("s_waitcnt lgkmcnt(0)")
            if next_pf and PFE == 1: next_pf()
            A("s_waitcnt lgkmcnt(0)")
            A(f"s_branch .L{lab}_join")
        A.label(f".L{lab}_help")
        sv = list(vm.ops)
        tail_setup()
        vm.ops = sv
        self.poll(stage, nbr)
        A("s_barrier")
        self.stamp(1 + 4 * stage + 3)
        n = sum(self.l2pf(*x) for x in l2) if l2 else 0
        A(f"s_waitcnt vmcnt({n})")
        if half: self.lds_spin(f".L{lab}_sa", CO, 4, True, V_CT)
        A.label(f".L{lab}_join")
        if not half: A("s_barrier")
        for p in range(4):
            for h in range(2):
                d = ACC + p * 16 + h * 4
                A(f"ds_read_b128 v[{d}:{d+3}], v{V_PR + (p >> 1)} offset:{(p & 1)*RG + h*16}")
        xs = list(range(ACC, ACC + 8)); tp = list(range(72, 80)); t8 = list(range(88, 96))
        b = ACC
        def unpack(src, dst):
            for k in range(4):
                A(f"v_lshlrev_b32 v{dst[2*k]}, 16, v{src+k}")
                A(f"v_and_b32 v{dst[2*k+1]}, {SM}, v{src+k}")
        if epi != "gelu": unpack(X1, tp)
        if epi == "final":
            unpack(X2, list(range(104, 112)))
            if V2:
                for k in range(0, 8, 2): pk(A, "v_pk_add_f32", GB + k, GB + k, 180 + k)
                round_multi(A, list(range(GB, GB + 8)), t8, SM)
        A("s_waitcnt lgkmcnt(4)")
        for e in range(0, 8, 2): pk(A, "v_pk_add_f32", b + e, b + e, b + 16 + e)
        A("s_waitcnt lgkmcnt(0)")
        for e in range(0, 8, 2): pk(A, "v_pk_add_f32", b + 32 + e, b + 32 + e, b + 48 + e)
        for e in range(0, 8, 2): pk(A, "v_pk_add_f32", b + e, b + e, b + 32 + e)
        round_multi(A, xs, t8, SM)
        def store():
            for k in range(4): A(f"v_cvt_pk_bf16_f32 v{56+k}, v{xs[2*k]}, v{xs[2*k+1]}")
            A(f"buffer_store_dwordx4 v[56:59], v{V_GA}, s[{S_O}:{S_O+3}], s{S_TMP+2} offen sc1")
        if epi == "gelu":
            X = xs; T = tp
            for e in range(0, 8, 2): pk(A, "v_pk_mul_f32", T[e], X[e], X[e])
            for e in range(0, 8, 2): pk(A, "v_pk_fma_f32", T[e], T[e], VC[0], VC[1], "op_sel_hi:[1,0,0]")
            for e in range(0, 8, 2): pk(A, "v_pk_mul_f32", T[e], T[e], X[e])
            for e in range(8): A(f"v_exp_f32 v{T[e]}, v{T[e]}")
            for e in range(0, 8, 2): pk(A, "v_pk_add_f32", T[e], T[e], VC[2], None, "op_sel_hi:[1,0]")
            for e in range(8): A(f"v_rcp_f32 v{T[e]}, v{T[e]}")
            A("s_nop 0")
            for e in range(0, 8, 2): pk(A, "v_pk_mul_f32", X[e], X[e], T[e])
            store()
        elif epi == "res":
            for k in range(0, 8, 2): pk(A, "v_pk_add_f32", xs[k], xs[k], tp[k])
            store()
            unpack(56, xs)
            X = xs
            pk(A, "v_pk_mul_f32", tp[0], X[0], X[0])
            pk(A, "v_pk_add_f32", tp[2], X[0], X[2])
            for e in range(2, 8, 2):
                pk(A, "v_pk_fma_f32", tp[0], X[e], X[e], tp[0])
                if e >= 4: pk(A, "v_pk_add_f32", tp[2], tp[2], X[e])
            A(f"v_add_f32 v20, v{tp[2]}, v{tp[3]}")
            A(f"v_add_f32 v21, v{tp[0]}, v{tp[1]}")
            A("s_nop 1")
            for dpp in ("quad_perm:[1,0,3,2]", "quad_perm:[2,3,0,1]", "row_half_mirror"):
                for v in (20, 21):
                    A(f"v_add_f32_dpp v{v}, v{v}, v{v} {dpp} row_mask:0xf bank_mask:0xf")
                A("s_nop 1")
            A("v_and_b32 v10, 7, v1")
            A("v_cmp_eq_u32 vcc, 0, v10")
            A("s_and_saveexec_b64 s[78:79], vcc")
            A(f"buffer_store_dwordx2 v[20:21], v{V_SA}, s[{S_ST}:{S_ST+3}], s{S_TMP+6} offen sc1")
            A("s_mov_b64 exec, s[78:79]")
        else:
            for k in range(0, 8, 2): pk(A, "v_pk_add_f32", xs[k], xs[k], tp[k])
            round_multi(A, xs, t8, SM)
            for k in range(0, 8, 2): pk(A, "v_pk_mul_f32", xs[k], xs[k], GB + k)
            round_multi(A, xs, t8, SM)
            for k in range(0, 8, 2): pk(A, "v_pk_add_f32", xs[k], xs[k], 104 + k)
            store()
    def k5(self, stage, next_pf, own_pf=None):
        A = self.A; vm = self.vm; lg = self.lg
        S_A = 8; S_O = 20; S_ST = 24; S_CS = 28
        VB = [16, 28]; AA = 24; ACC = 64; FQ = 128
        D = K5D
        NB5 = int(os.environ.get('NB5', '3'))
        A(f"s_cmp_lt_u32 s{S_WAVE}, 4")
        A("s_cbranch_scc1 .Lk5_main")
        A(f"s_cmp_eq_u32 s{S_J}, 7")
        A("s_cbranch_scc1 .Lk5_h7")
        self.poll(stage)
        A("s_barrier")
        A("s_barrier")
        A.label(".Lk5_h7")
        if L2PF & 4: self.l2pf(3, 1792 * 1024)
        A("s_branch .Lk5_end")
        A.label(".Lk5_main")
        A(f"s_cmp_eq_u32 s{S_J}, 7")
        A("s_cbranch_scc1 .Lk5_pf")
        if own_pf and PFE == 2: own_pf(NE, 99)
        make_srd(A, S_A, P_WS, WS_X1, 2 * MB)
        make_srd(A, S_ST, P_WS, WS_STAT, 2048 * 128)
        make_srd(A, S_CS, P_WS, WS_CS, 2 * CSP)
        make_srd(A, S_O, P_WS, WS_G, 2048 * 3584)
        A(f"v_lshlrev_b32 v4, 4, v{L}")
        A(f"s_lshl_b32 s{S_TMP}, s{S_M}, 16")
        A(f"s_lshl_b32 s{S_TMP+1}, s{S_WAVE}, 14")
        A(f"s_add_u32 s{S_TMP}, s{S_TMP}, s{S_TMP+1}")
        A(f"s_lshl_b32 s{S_TMP+6}, s{S_J}, 9")
        A(f"s_lshl_b32 s{S_TMP+2}, s{S_WAVE}, 7")
        A(f"s_add_u32 s{S_TMP+6}, s{S_TMP+6}, s{S_TMP+2}")
        A(f"v_lshrrev_b32 v5, 5, v{L}")
        A(f"v_bfe_u32 v7, v{L}, 4, 1")
        A(f"v_bfe_u32 v8, v{L}, 2, 2")
        A(f"v_and_b32 v9, 1, v{L}")
        A(f"v_bfe_u32 v10, v{L}, 1, 1")
        A("v_lshl_or_b32 v9, v9, 1, v10")
        A("v_lshlrev_b32 v9, 3, v9")
        A("v_lshl_add_u32 v9, v7, 5, v9")
        A("v_lshl_add_u32 v10, v5, 3, v8")
        A("v_lshrrev_b32 v11, 1, v8")
        for nb in range(2):
            A(f"v_xor_b32 v12, {nb}, v11")
            A("v_lshl_add_u32 v12, v12, 6, v9")
            A("v_lshl_add_u32 v12, v10, 7, v12")
            A(f"v_add_u32 v{AA+nb}, s{S_RB}, v12")
        A(f"v_and_b32 v13, 31, v{L}")
        A("v_lshrrev_b32 v7, 4, v13")
        A(f"v_mul_u32_u24 v7, {RG // 1024}, v7")
        A("v_and_b32 v8, 15, v13")
        A("v_add_u32 v7, v7, v8")
        for j in range(8):
            A(f"v_or_b32 v8, {2*j}, v5")
            A("v_xor_b32 v8, v8, v13")
            A("v_and_b32 v8, 15, v8")
            A("v_lshlrev_b32 v8, 4, v8")
            A(f"v_lshl_add_u32 v{VB[0]+j}, v7, 10, v8")
            A(f"v_add_u32 v{VB[1]+j}, {2*RG}, v{VB[0]+j}")
        ST = 192; CS = 224
        A("v_lshlrev_b32 v42, 5, v5")
        C2 = [176, 184, 200, 216]
        def csloads():
            A(f"s_lshl_b32 s{S_TMP+2}, s{S_TMP+6}, 1")
            for part in range(2 if V2 else 1):
                for q in range(4):
                    for h4 in range(2):
                        d = (CS + q * 8 if part == 0 else C2[q]) + 4 * h4
                        A(f"buffer_load_dwordx4 v[{d}:{d+3}], v42, s[{S_CS}:{S_CS+3}], s{S_TMP+2} offen offset:{(16*q+4*h4)*4}"); vm.issue("st")
                A(f"s_add_u32 s{S_TMP+2}, s{S_TMP+2}, {CSP}")
        VS = 36
        A("v_and_b32 v7, 7, v13")
        A(f"s_add_u32 s{S_TMP+3}, s{S_RB}, {K5RB}")
        for j in range(4):
            A(f"v_or_b32 v14, {2*j}, v5")
            A("v_xor_b32 v14, v14, v7")
            A("v_lshlrev_b32 v14, 4, v14")
            A("v_lshl_add_u32 v14, v13, 7, v14")
            A(f"v_add_u32 v{VS+j}, s{S_TMP+3}, v14")
        A(f"v_lshrrev_b32 v7, 3, v{L}")
        A(f"v_and_b32 v14, 7, v{L}")
        A(f"v_xor_b32 v{VS+4}, v14, v7")
        A(f"v_lshlrev_b32 v{VS+4}, 4, v{VS+4}")
        A(f"v_lshl_add_u32 v{VS+4}, v7, 7, v{VS+4}")
        A(f"v_add_u32 v{VS+4}, s{S_TMP+3}, v{VS+4}")
        A(f"s_movk_i32 s{S_TMP+2}, 3584")
        A(f"v_mul_lo_u32 v7, v7, s{S_TMP+2}")
        A(f"v_lshl_add_u32 v{VS+5}, v14, 4, v7")
        A(f"s_mul_i32 s{S_TMP+4}, s{S_M}, {64*3584}")
        A(f"s_add_u32 s{S_TMP+4}, s{S_TMP+4}, s{S_TMP+6}")
        A(f"s_add_u32 s{S_TMP+5}, s{S_TMP+4}, {32*3584}")
        A("v_lshlrev_b32 v7, 3, v13")
        A("v_lshl_add_u32 v7, v5, 16, v7")
        A(f"s_lshl_b32 s{S_TMP+7}, s{S_M}, 9")
        A("s_barrier")
        self.stamp(1 + 4 * stage + 3)
        for i in range(16):
            t = 8 + (i & 1)
            A(f"v_xor_b32 v{t}, {i << 4}, v4")
            A(f"s_add_u32 m0, s{S_RB}, {i * 1024}")
            A(f"s_add_u32 s{S_TMP+2}, s{S_TMP}, {i * 1024}")
            A(f"buffer_load_dwordx4 v{t}, s[{S_A}:{S_A+3}], s{S_TMP+2} offen lds")
            vm.issue("act")
        for q in range(4):
            A(f"s_add_u32 s{S_TMP+3}, s{S_TMP+7}, {q*16384}")
            for rb in range(2):
                A(f"buffer_load_dwordx2 v[{ST+16*rb+2*q}:{ST+16*rb+2*q+1}], v7, s[{S_ST}:{S_ST+3}], s{S_TMP+3} offen offset:{rb*256}"); vm.issue("st")
        vm.wait("act")
        A("s_barrier")
        self.stamp(29)
        def reads(step):
            buf = FQ + (step % NB5) * 16
            for nb in range(2):
                for q in range(2):
                    A(f"ds_read_b64_tr_b16 v[{buf+nb*4+q*2}:{buf+nb*4+q*2+1}], v{AA+nb} offset:{K5RB + (step % D) * 2048 + q * 512}")
                    lg.issue(("f", step))
            for rb in range(2):
                A(f"ds_read_b128 v[{buf+8+rb*4}:{buf+8+rb*4+3}], v{VB[rb] + (step & 7)} offset:{(step >> 3) * 256}")
                lg.issue(("f", step))
        PKC = [[44, 46, 48, 50], [52, 54, 56, 58]]
        E = []
        for stg in range(17):
            for rb in range(2):
                b = ST + 16 * rb; c = PKC[rb]
                E.append([f"v_add_f32 v{b}, v{b}, v{b+2}", f"v_add_f32 v{b+1}, v{b+1}, v{b+3}",
                          f"v_add_f32 v{b+4}, v{b+4}, v{b+6}", f"v_add_f32 v{b+5}, v{b+5}, v{b+7}",
                          f"v_add_f32 v{b}, v{b}, v{b+4}", f"v_add_f32 v{b+1}, v{b+1}, v{b+5}",
                          f"v_mov_b32 v{b+2}, v{b}", f"v_mov_b32 v{b+3}, v{b+1}", "s_nop 1",
                          f"v_permlane32_swap_b32 v{b}, v{b+2}", f"v_permlane32_swap_b32 v{b+1}, v{b+3}", "s_nop 1",
                          f"v_add_f32 v{b}, v{b}, v{b+2}", f"v_add_f32 v{b+1}, v{b+1}, v{b+3}",
                          f"v_mul_f32 v{c[0]}, {fhex(-1/512)}, v{b}", f"v_mul_f32 v{b+1}, {fhex(1/512)}, v{b+1}",
                          f"v_fma_f32 v{b+1}, -v{c[0]}, v{c[0]}, v{b+1}"][stg])
        for stg in range(9):
            for rb in range(2):
                b = ST + 16 * rb; c = PKC[rb]
                E.append([f"v_max_f32 v{b+1}, 0, v{b+1}", f"v_add_f32 v{b+1}, {fhex(1e-5)}, v{b+1}",
                          f"v_rsq_f32 v{b+2}, v{b+1}", f"v_sqrt_f32 v{c[3]}, v{b+1}", "s_nop 0",
                          f"v_mul_f32 v{c[2]}, {fhex(GK0)}, v{b+2}", f"v_mul_f32 v{c[1]}, v{b+2}, v{b+2}",
                          f"v_mul_f32 v{c[1]}, v{c[1]}, v{b+2}", f"v_mul_f32 v{c[1]}, {fhex(GK1)}, v{c[1]}"][stg])
        if V2:
            for q in range(4):
                for e in range(8): E.append(f"v_add_f32 v{CS+8*q+e}, v{CS+8*q+e}, v{C2[q]+e}")
        for s0 in range(NB5 - 1):
            vm.wait(("w", s0)); reads(s0)
        k = 0
        for ks in range(32):
            lg.wait(("f", ks))
            with Cap(A) as cp:
                if ks + NB5 - 1 < 32:
                    vm.wait(("w", ks + NB5 - 1)); reads(ks + NB5 - 1)
                if ks + D < 32: self.dmaW(ks + D, K5RB + (ks % D) * 2048)
                elif PFE == 3 and ks == 21: next_pf(0, 1)
                elif PFE == 3 and ks >= 26: next_pf(ks - 25, ks - 24)
                if ks == 1: csloads()
                if 14 <= ks < 28:
                    if ks == 14: vm.wait("st")
                    upto = len(E) * (ks - 13) // 14
                    while k < upto: A(E[k]); k += 1
            buf = FQ + (ks % NB5) * 16
            mf = []
            for nb in range(2):
                for rb in range(2):
                    acc = ACC + (nb * 2 + rb) * 16
                    c = "0" if ks == 0 else f"v[{acc}:{acc+15}]"
                    mf.append(f"v_mfma_f32_32x32x16_bf16 v[{acc}:{acc+15}], v[{buf+nb*4}:{buf+nb*4+3}], v[{buf+8+rb*4}:{buf+8+rb*4+3}], {c}")
            interleave(A, mf, cp.out)
        self.stamp(28)
        if PFE == 1: next_pf()
        else:
            A("s_nop 7"); A("s_nop 3")
        def flush5(rb):
            A("s_waitcnt lgkmcnt(0)")
            for i in range(4):
                A(f"ds_read_b128 v[{192+16*rb+4*i}:{192+16*rb+4*i+3}], v{VS+4} offset:{rb*4096 + i*1024}")
        def store5(rb):
            for i in range(4):
                if rb == 1: A(f"s_waitcnt lgkmcnt({3-i})")
                A(f"s_add_u32 s{S_TMP+3}, s{S_TMP+4+rb}, {i*8*3584}")
                A(f"buffer_store_dwordx4 v[{192+16*rb+4*i}:{192+16*rb+4*i+3}], v{VS+5}, s[{S_O}:{S_O+3}], s{S_TMP+3} offen sc1")
        for rb in range(2):
            for nb in range(2):
                acc = ACC + (nb * 2 + rb) * 16
                if rb == 1 and nb == 1:
                    A("s_waitcnt lgkmcnt(2)")
                    store5(0)
                for mp in range(2):
                    d = 160 + (nb * 4 + rb * 2 + mp) * 4
                    xs = [acc + 8 * mp + e for e in range(8)]
                    ts = list(range(128, 136)); cs = CS + (nb * 2 + mp) * 8; c = PKC[rb]
                    for e in range(0, 8, 2): pk(A, "v_pk_fma_f32", xs[e], cs + e, c[0], xs[e], "op_sel_hi:[1,0,1]")
                    for e in range(0, 8, 2): pk(A, "v_pk_mul_f32", ts[e], xs[e], xs[e])
                    for e in range(0, 8, 2): pk(A, "v_pk_fma_f32", ts[e], ts[e], c[1], c[2], "op_sel_hi:[1,0,0]")
                    for e in range(0, 8, 2): pk(A, "v_pk_mul_f32", ts[e], ts[e], xs[e])
                    for t in ts: A(f"v_exp_f32 v{t}, v{t}")
                    for e in range(0, 8, 2): pk(A, "v_pk_fma_f32", ts[e], ts[e], c[3], c[3], "op_sel_hi:[1,0,0]")
                    for t in ts: A(f"v_rcp_f32 v{t}, v{t}")
                    A("s_nop 0")
                    for e in range(0, 8, 2): pk(A, "v_pk_mul_f32", xs[e], xs[e], ts[e])
                    for e in range(0, 8, 2): A(f"v_cvt_pk_bf16_f32 v{d+e//2}, v{xs[e]}, v{xs[e+1]}")
                    A(f"ds_write_b128 v{VS+2*nb+mp}, v[{d}:{d+3}] offset:{rb*4096}")
            flush5(rb)
        store5(1)
        A("s_branch .Lk5_end")
        A.label(".Lk5_pf")
        if PFE in (1, 3): next_pf(alt=True)
        A.label(".Lk5_end")

def gen_km(A):
    name = "k1_kernel"
    M = Mega(A)
    def pre():
        if MT or HD:
            M.persist(); M.stamp(0); M.vm.ops = []
        if ONE: M.pro_pre()
    if V3: K1.gen_k1(A, emb=True, pre=pre, hookA=M.p3_a, hookB=M.p3_b, v2=True, hookC=M.p2_c)
    elif V2: K1.gen_k1(A, emb=True, pre=pre, hookA=M.p2_a, hookB=M.p2_b, v2=True, hookC=M.p2_c)
    elif ONE: K1.gen_k1(A, emb=True, pre=pre, hookA=M.pro_a, hookB=M.pro_b)
    else: K1.gen_k1(A, emb=True, pre=pre)
    M.persist()
    M.transition(0)
    M.kr()
    M.transition(1)
    pf4 = lambda lo=0, hi=99: M.pf_g64(1, 512, 24576, 8, lo, hi)
    pf6 = lambda lo=0, hi=99, alt=False: M.pf_g64(3, 1792, 26624, 7, lo, hi, 6)
    M.g64("k3", 1, 512, WS_HN, 2 * MB, 1024, "gelu", 24576, 8, False, pf4, None, 0, {st: (st, st + 1) for st in range(8)}, [(2, 1792 * 1024)] if L2PF & 1 else None)
    M.transition(2, pf4)
    M.g64("k4", 2, 512, WS_H1, 2052 * 1024, 1024, "res", 24576, 8, True, M.pf_k5, pf4, 0, {st: ((0, 4) if st == 0 else (st + 3, st + 4)) for st in range(8)}, [(3, 1792 * 1024)] if L2PF & 2 else None)
    M.transition(3, M.pf_k5)
    M.k5(3, pf6, M.pf_k5)
    M.transition(4, pf6)
    M.g64("k6", 4, 1792, WS_G, 2048 * 3584, 3584, "final", 26624, 7, False, None, pf6, 6)
    M.stamp(21)
    if MT or HD: A("s_waitcnt vmcnt(0)")
    M.stamp(22)
    A("s_endpgm")
    A.raw(kernel_desc(name, 256, 102, 256))
    return (name, (256, 1, 1), (512, 1, 1), 163840)
```

```python
from asmlib import *
from gen_k0 import *
import gen_k1 as K1
from gen_k1 import Cnt
from gen_ka import ln_rows, round_multi, pack8, GK0, GK1
from gen_g64 import WS_STAT, WS_CS
import os
MT = int(os.environ.get("MT", "0"))
HD = int(os.environ.get("HD", "0"))
PT = int(os.environ.get("PT", "0"))
TLW = int(os.environ.get("TLW", "0"))
MP = int(os.environ.get("MP", "1"))
XS = int(os.environ.get("XS", "1"))
HP = int(os.environ.get("HP", "0"))
SPOLL = int(os.environ.get("SPOLL", "1"))
HPH = int(os.environ.get("HPH", "0"))
CNT = 17408
S_R8 = 46; V_CT = 53
PRG = int(os.environ.get("PRG", "0"))
MSK = 83968
WQF = int(os.environ.get("WQF", "0"))
W0M = int(os.environ.get("MEGA", "6")) >= 5 and int(os.environ.get("W0M", "1"))
EB = int(os.environ.get("EB", "0"))
DLY = int(os.environ.get("DLY", "1"))
WQE = int(os.environ.get("WQE", "0"))
ONE = int(os.environ.get("MEGA", "6")) >= 4
V2 = int(os.environ.get("MEGA", "6")) >= 5
V3 = int(os.environ.get("MEGA", "6")) == 6
MODP = 12288; CSP = 8192
FP = WS_FLAG + 0x20000; FQ_ = WS_FLAG + 0x30000
S_WAVE = 40; S_M = 41; S_J = 42; S_MASK = 43; S_RB = 44; S_GOFF = 45; S_TMP = 48; S_WOFF = 58
S_W = 32; V_W = 6
P_X = 60; P_OUT = 62; P_WS = 68; P_W = 84
SM = f"s{S_MASK}"
L = 1
RG = 40960; RS = 272
K5RB = 18432; K5D = 11
L2PF = int(os.environ.get('L2PF', '0'))
PFE = int(os.environ.get('PFE', '3'))
NE = int(os.environ.get('NE', '3')) if PFE == 2 else 0

def pk(A, op, d, a, b, c=None, sel=""):
    ops = ", ".join(f"v[{x}:{x+1}]" for x in ((d, a, b) if c is None else (d, a, b, c)))
    A(f"{op} {ops} {sel}".rstrip())

FLN = int(os.environ.get("FLN", "2"))
_ln_slow = ln_rows
def ln_fast(A, R, smask, final_round=True):
    for X, T in R:
        assert X[0] % 2 == 0 and T[0] % 2 == 0
        pk(A, "v_pk_add_f32", T[0], X[0], X[2]); pk(A, "v_pk_mul_f32", T[2], X[0], X[0])
        pk(A, "v_pk_add_f32", T[4], X[4], X[6]); pk(A, "v_pk_mul_f32", T[6], X[2], X[2])
    for X, T in R:
        pk(A, "v_pk_fma_f32", T[2], X[4], X[4], T[2]); pk(A, "v_pk_fma_f32", T[6], X[6], X[6], T[6])
        pk(A, "v_pk_add_f32", T[0], T[0], T[4])
    for X, T in R:
        pk(A, "v_pk_add_f32", T[2], T[2], T[6])
        A(f"v_add_f32 v{T[0]}, v{T[0]}, v{T[1]}")
    for X, T in R:
        A(f"v_add_f32 v{T[1]}, v{T[2]}, v{T[3]}")
    wave_allreduce(A, "v_add_f32", [t for X, T in R for t in (T[0], T[1])], [t for X, T in R for t in (T[2], T[3])], [t for X, T in R for t in (T[4], T[5])])
    for X, T in R:
        A(f"v_mul_f32 v{T[0]}, {fhex(1/512)}, v{T[0]}")
        A(f"v_mul_f32 v{T[1]}, {fhex(1/512)}, v{T[1]}")
    for X, T in R:
        A(f"v_fma_f32 v{T[1]}, -v{T[0]}, v{T[0]}, v{T[1]}")
    for X, T in R:
        A(f"v_max_f32 v{T[1]}, 0, v{T[1]}")
    for X, T in R:
        A(f"v_cvt_pk_bf16_f32 v{T[3]}, v{T[0]}, v{T[1]}")
    for X, T in R:
        A(f"v_and_b32 v{T[1]}, {smask}, v{T[3]}")
        A(f"v_lshlrev_b32 v{T[2]}, 16, v{T[3]}")
    for X, T in R:
        A(f"v_add_f32 v{T[1]}, {fhex(1e-5)}, v{T[1]}")
        for j in range(0, 4, 2): pk(A, "v_pk_add_f32", X[j], X[j], T[2], None, "op_sel_hi:[1,0] neg_lo:[0,1] neg_hi:[0,1]")
    for X, T in R:
        A(f"v_cvt_pk_bf16_f32 v{T[1]}, v{T[1]}, v{T[1]}")
        for j in range(4, 8, 2): pk(A, "v_pk_add_f32", X[j], X[j], T[2], None, "op_sel_hi:[1,0] neg_lo:[0,1] neg_hi:[0,1]")
    for X, T in R:
        A(f"v_lshlrev_b32 v{T[1]}, 16, v{T[1]}")
    for X, T in R:
        A(f"v_sqrt_f32 v{T[0]}, v{T[1]}")
        round_multi(A, X[:4], T[4:6], smask)
    for X, T in R:
        A(f"v_cvt_pk_bf16_f32 v{T[0]}, v{T[0]}, v{T[0]}")
    for X, T in R:
        A(f"v_lshlrev_b32 v{T[0]}, 16, v{T[0]}")
    for X, T in R:
        A(f"v_rcp_f32 v{T[2]}, v{T[0]}")
        round_multi(A, X[4:], T[4:6], smask)
    if FLN == 2:
        for X, T in R:
            for j in range(0, 8, 2): pk(A, "v_pk_mul_f32", X[j], X[j], T[2], None, "op_sel_hi:[1,0]")
    else:
        for X, T in R:
            for h in range(2):
                js = (4 * h, 4 * h + 2)
                for k, j in enumerate(js): pk(A, "v_pk_mul_f32", T[4+2*k], X[j], T[2], None, "op_sel_hi:[1,0]")
                for k, j in enumerate(js): pk(A, "v_pk_fma_f32", X[j], T[4+2*k], T[0], X[j], "op_sel_hi:[1,0,1] neg_lo:[1,0,0] neg_hi:[1,0,0]")
                for k, j in enumerate(js): pk(A, "v_pk_fma_f32", X[j], X[j], T[2], T[4+2*k], "op_sel_hi:[1,0,1]")
    if final_round:
        for X, T in R: round_multi(A, X, T[4:8], smask)
def ln_rows(A, R, smask, final_round=True):
    return ln_fast(A, R, smask, final_round) if FLN else _ln_slow(A, R, smask)

class Cap:
    def __init__(self, A): self.A = A
    def __enter__(self):
        self.sv = self.A.lines; self.A.lines = []; return self
    def __exit__(self, *a):
        self.out = self.A.lines; self.A.lines = self.sv

def interleave(A, mf, fill):
    n = len(mf); k = 0
    for i, m in enumerate(mf):
        A(m)
        upto = (len(fill) * (i + 1) + n - 1) // n
        while upto < len(fill) and upto > 0 and not (fill[upto - 1].lstrip().startswith(("buffer_", "ds_", "v_", "s_waitcnt")) or fill[upto - 1].lstrip().startswith(f"s_add_u32 s{S_WOFF}")): upto += 1
        A.lines.extend(fill[k:upto]); k = max(k, upto)

class Mega:
    def __init__(self, A):
        self.A = A
        self.vm = Cnt(A, "vmcnt", 63); self.lg = Cnt(A, "lgkmcnt", 15)
    def stamp(self, idx):
        if HD:
            hmap = {0: 2, 3: 3, 4: 4, 7: 5, 8: 6, 11: 7, 12: 8, 15: 9, 16: 10, 19: 11, 20: 12, 21: 13, 22: 14}
            if int(os.environ.get('HK', '0')): hmap = {0: 2, 22: 14}
            if idx not in hmap: return
            A = self.A
            lab = A.newlabel("hd")
            A("s_waitcnt lgkmcnt(0)")
            A("s_load_dwordx2 s[76:77], s[0:1], 104")
            A("s_memrealtime s[70:71]")
            A("s_waitcnt lgkmcnt(0)")
            A("s_mov_b32 s72, s76")
            A("s_mov_b32 s73, s77")
            A("s_mov_b32 s74, 256")
            A("s_mov_b32 s75, 0x00020000")
            A(f"s_lshl_b32 s76, s{S_WAVE}, 8")
            A("s_or_b32 s76, s76, s2")
            A(f"s_cmp_lg_u32 s76, {HD}")
            A(f"s_cbranch_scc1 {lab}")
            A("v_mov_b32 v2, s70")
            A("v_mov_b32 v3, 0")
            A(f"buffer_store_dword v2, v3, s[72:75], 0 offen offset:{4*hmap[idx]}")
            A.label(lab)
            self.lg.ops = []
            return
        if not MT: return
        A = self.A
        A("s_waitcnt lgkmcnt(0)")
        A("s_memrealtime s[70:71]")
        make_srd(A, 72, P_WS, WS_DBG, 32 * MB)
        A("s_lshl_b32 s76, s2, 3")
        A(f"s_add_u32 s76, s76, s{S_WAVE}")
        A("s_lshl_b32 s76, s76, 7")
        A("s_waitcnt lgkmcnt(0)")
        A("v_mov_b32 v2, s70")
        A("v_mov_b32 v3, 0")
        A(f"buffer_store_dword v2, v3, s[72:75], s76 offen offset:{4*idx}")
        self.vm.issue("stamp"); self.lg.ops = []
    def flag_srd(self, stage):
        make_srd(self.A, 92, P_WS, WS_FLAG + stage * 32 * 256, 32 * 256)
    def transition(self, stage, early=None):
        A = self.A
        self.stamp(1 + 4 * stage)
        self.vm.ops = []
        if ONE and stage == 0:
            make_srd(A, 80, P_WS, FQ_, 32 * 1024)
            make_srd(A, 12, P_WS, WS_MOD, 4 * MODP)
            A(f"s_cmp_lg_u32 s{S_WAVE}, {0 if W0M else 7}")
            A("s_cbranch_scc1 .Lw0m_end")
            A(f"s_lshl_b32 s98, s{S_M}, 10")
            A("v_add_u32 v2, 64, v1")
            A("v_min_u32 v2, 119, v2")
            A("v_lshlrev_b32 v2, 3, v2")
            A("v_lshlrev_b32 v3, 3, v1")
            self.poll64(".Lplq", [(3, 80, "s98"), (2, 80, "s98")])
            if W0M:
                A("v_lshlrev_b32 v10, 5, v1")
                for part in range(2):
                    for q, idx in enumerate((2, 4, 3)):
                        d = 24 + 8 * q + 88 * part
                        A(f"s_movk_i32 s{S_TMP}, {idx*2048 + part*MODP}")
                        A(f"buffer_load_dwordx4 v[{d}:{d+3}], v10, s[12:15], s{S_TMP} offen")
                        A(f"buffer_load_dwordx4 v[{d+4}:{d+7}], v10, s[12:15], s{S_TMP} offen offset:16")
                A("v_add_u32 v10, 81920, v10")
                A("s_waitcnt vmcnt(0)")
                for j in range(0, 24, 2): pk(A, "v_pk_add_f32", 24 + j, 24 + j, 112 + j)
                for q in range(3): round_multi(A, list(range(24 + 8*q, 32 + 8*q)), [56, 57, 58, 59], SM)
                for j in range(8): A(f"v_add_f32 v{32+j}, 1.0, v{32+j}")
                round_multi(A, list(range(32, 40)), [56, 57, 58, 59], SM)
                for q, off in enumerate((0, 16384, 49152)):
                    A(f"ds_write_b128 v10, v[{24+8*q}:{27+8*q}] offset:{off}")
                    A(f"ds_write_b128 v10, v[{28+8*q}:{31+8*q}] offset:{off+16}")
            A.label(".Lw0m_end")
            if PRG:
                A(f"s_cmp_lg_u32 s{S_WAVE}, 1")
                A("s_cbranch_scc1 .Lw1m_end")
                A(f"s_lshl_b32 s{S_TMP}, 1, s{S_J}")
                A(f"v_mov_b32 v2, {MSK}")
                A(f"v_mov_b32 v3, s{S_TMP}")
                A("ds_write_b32 v2, v3")
                A.label(".Lw1m_end")
        if early and NE:
            A(f"s_cmp_ge_u32 s{S_WAVE}, 4")
            A(f"s_cbranch_scc1 .Ltr{stage}_h")
            early(0, NE)
            A(f"s_waitcnt vmcnt({len(self.vm.ops)})")
            A(f"s_branch .Ltr{stage}_j")
            A.label(f".Ltr{stage}_h")
            A("s_waitcnt vmcnt(0)")
            A.label(f".Ltr{stage}_j")
        else:
            A("s_waitcnt vmcnt(0)")
        self.flag_srd(stage)
        A(f"s_lshl_b32 s96, s{S_M}, 8")
        A(f"s_lshl_b32 s97, s{S_J}, {3 if ONE else 2}")
        A("s_add_u32 s97, s97, s96")
        if ONE:
            A("v_mov_b32 v246, s100")
            A("v_mov_b32 v247, s101")
        A("v_mov_b32 v2, 1")
        A("v_mov_b32 v3, s97")
        A("s_waitcnt lgkmcnt(0)")
        self.lg.ops = []
        A("s_barrier")
        A(f"s_cmp_lg_u32 s{S_WAVE}, 7")
        A(f"s_cbranch_scc1 .Lpub{stage}")
        A("s_mov_b64 exec, 1")
        A("buffer_store_dwordx2 v[246:247], v3, s[92:95], 0 offen sc1" if ONE else "buffer_store_dword v2, v3, s[92:95], 0 offen sc1")
        A("s_mov_b64 exec, -1")
        A.label(f".Lpub{stage}")
        self.stamp(1 + 4 * stage + 2)
    def poll(self, stage, nbr=False, check=True, after=None):
        A = self.A
        lab = f".Lpl{stage}"
        if check:
            A(f"s_cmp_lg_u32 s{S_WAVE}, 7")
            A(f"s_cbranch_scc1 {lab}_done")
        A("v_and_b32 v3, 7, v1")
        A(f"v_lshlrev_b32 v3, {3 if ONE else 2}, v3")
        if nbr:
            A("v_bfe_u32 v2, v1, 3, 2")
            A("v_min_u32 v2, 2, v2")
            A(f"v_add_u32 v2, s{S_M}, v2")
            A("v_max_u32 v2, 1, v2")
            A("v_min_u32 v2, 32, v2")
            A("v_subrev_u32 v2, 1, v2")
            A("v_lshl_add_u32 v3, v2, 8, v3")
        else:
            A("v_add_u32 v3, s96, v3")
        A("s_mov_b32 s98, 0")
        NP = int(os.environ.get("NPOLL", "1")); PSL = int(os.environ.get("PSL", "1"))
        if ONE and SPOLL and not nbr:
            A("s_mov_b32 s99, 0")
            A.label(f"{lab}_sp")
            A("s_buffer_load_dwordx16 s[8:23], s[92:95], s96 glc")
            A("s_add_u32 s99, s99, 1")
            A("s_waitcnt lgkmcnt(0)")
            for i in range(8): A(f"s_xor_b64 s[{8+2*i}:{9+2*i}], s[{8+2*i}:{9+2*i}], s[100:101]")
            for i in range(1, 8): A(f"s_or_b64 s[8:9], s[8:9], s[{8+2*i}:{9+2*i}]")
            A(f"s_cbranch_scc0 {lab}_sd")
            A(f"s_and_b32 s98, s99, {SPOLL * 4 - 1}")
            A(f"s_cbranch_scc1 {lab}_sp")
            A("buffer_load_dwordx2 v[248:249], v3, s[92:95], 0 offen sc1")
            A("s_waitcnt vmcnt(0)")
            A("v_xor_b32 v248, s100, v248")
            A("v_xor_b32 v249, s101, v249")
            A("v_or_b32 v248, v248, v249")
            A("v_cmp_ne_u32 vcc, 0, v248")
            A("s_cmp_lt_u32 s99, 0x80000")
            A(f"s_cbranch_scc0 {lab}_sd")
            A(f"s_cbranch_vccnz {lab}_sp")
            A.label(f"{lab}_sd")
            if after: after()
        elif ONE:
            self.poll64(lab + "x", [(3, 92, "0")])
        elif NP == 1:
            A.label(f"{lab}_poll")
            A("buffer_load_dword v2, v3, s[92:95], 0 offen sc1")
            A("s_add_u32 s98, s98, 1")
            A("s_waitcnt vmcnt(0)")
            A("v_cmp_ne_u32 vcc, 1, v2")
            A("s_cmp_lt_u32 s98, 0x40000")
            A(f"s_cbranch_scc0 {lab}_done")
            A(f"s_cbranch_vccnz {lab}_poll")
        else:
            for i in range(NP):
                A(f"buffer_load_dword v{248+i}, v3, s[92:95], 0 offen sc1")
                if PSL and i < NP - 1: A(f"s_sleep {PSL}")
            A.label(f"{lab}_poll")
            for i in range(NP):
                A(f"s_waitcnt vmcnt({NP-1})")
                A(f"v_cmp_ne_u32 vcc, 1, v{248+i}")
                A(f"s_cbranch_vccz {lab}_done")
                A(f"buffer_load_dword v{248+i}, v3, s[92:95], 0 offen sc1")
            A("s_add_u32 s98, s98, 1")
            A("s_cmp_lt_u32 s98, 0x40000")
            A(f"s_cbranch_scc1 {lab}_poll")
        A.label(f"{lab}_done")
    def poll64(self, lab, srcs, cnt=99, slp=0):
        A = self.A
        A(f"s_mov_b32 s{cnt}, 0")
        A.label(f"{lab}_poll")
        if slp: A(f"s_sleep {slp}")
        for i, (va, srd, so) in enumerate(srcs):
            A(f"buffer_load_dwordx2 v[{248+2*i}:{249+2*i}], v{va}, s[{srd}:{srd+3}], {so} offen sc1")
        A(f"s_add_u32 s{cnt}, s{cnt}, 1")
        A("s_waitcnt vmcnt(0)")
        for i in range(len(srcs)):
            A(f"v_xor_b32 v{248+2*i}, s100, v{248+2*i}")
            A(f"v_xor_b32 v{249+2*i}, s101, v{249+2*i}")
        A("v_or_b32 v248, v248, v249")
        for i in range(1, len(srcs)):
            A(f"v_or3_b32 v248, v248, v{248+2*i}, v{249+2*i}")
        A("v_cmp_ne_u32 vcc, 0, v248")
        A(f"s_cmp_lt_u32 s{cnt}, 0x40000")
        A(f"s_cbranch_scc0 {lab}_done")
        A(f"s_cbranch_vccnz {lab}_poll")
        A.label(f"{lab}_done")
    def pst(self, idx):
        if not PT: return
        A = self.A
        A("s_waitcnt lgkmcnt(0)")
        A("s_memrealtime s[38:39]")
        A("s_waitcnt lgkmcnt(0)")
        A(f"v_writelane_b32 v59, s38, {idx}")
    def pst_flush(self):
        if not PT: return
        A = self.A
        make_srd(A, 36, 68, WS_DBG + 16 * MB, 1 * MB)
        A("s_lshl_b32 s57, s2, 3")
        A("s_add_u32 s57, s57, s40")
        A("s_lshl_b32 s57, s57, 6")
        A("v_lshlrev_b32 v2, 2, v1")
        A("s_mov_b64 exec, 0xffff")
        A("buffer_store_dword v59, v2, s[36:39], s57 offen")
        A("s_mov_b64 exec, -1")
    def pro_pre(self):
        A = self.A
        self.pst(0)
        A("s_load_dwordx2 s[4:5], s[0:1], 0")
        A("s_load_dwordx4 s[72:75], s[0:1], 80")
        A("s_load_dwordx2 s[6:7], s[0:1], 104")
        A("s_memrealtime s[70:71]")
        if int(os.environ.get("CPF", "1")):
            A("s_getpc_b64 s[76:77]")
            A.label(".Lpc0")
            A("s_mov_b32 s78, .Lcode_end-.Lpc0")
            A("s_mov_b32 s79, 0x00020000")
            A("s_lshr_b32 s3, s2, 3")
            A("s_mul_i32 s3, s3, 2304")
            A("v_lshlrev_b32 v2, 6, v0")
            A("v_cmp_gt_u32 vcc, 36, v0")
            A("s_and_b64 exec, exec, vcc")
            A("buffer_load_dword v62, v2, s[76:79], s3 offen")
            A("s_mov_b64 exec, -1")
    def pro_a(self):
        A = self.A
        W = K1.S_WAVE; M_ = K1.S_M; G_ = K1.S_G
        self.pst(1)
        make_srd(A, 76, 72, 0, 1024)
        make_srd(A, 80, 74, 0, 512 * 6144)
        make_srd(A, 84, 68, WS_MOD, 3072 * 4)
        A("s_movk_i32 s3, 6144")
        A("s_mov_b32 s59, s2")
        A("s_cmp_lt_u32 s2, 96")
        A("s_cbranch_scc1 .Lpa_mod")
        make_srd(A, 80, 96, 0, 512 * 3584)
        make_srd(A, 84, 68, WS_CS, 1792 * 4)
        A("s_movk_i32 s3, 3584")
        A("s_sub_u32 s59, s2, 96")
        A.label(".Lpa_mod")
        A("s_cmp_ge_u32 s2, 152")
        A("s_cbranch_scc1 .Lpa_nob")
        A("v_and_b32 v2, 3, v0")
        A("v_lshrrev_b32 v3, 2, v0")
        A("v_mul_lo_u32 v4, v3, s3")
        A("v_lshl_add_u32 v4, v2, 4, v4")
        A("v_lshlrev_b32 v5, 1, v3")
        A("s_lshl_b32 s58, s59, 6")
        A("s_lshl_b32 s3, s3, 7")
        for i in range(4):
            A(f"buffer_load_dwordx4 v[{72+4*i}:{75+4*i}], v4, s[80:83], s58 offen")
            if i < 3: A("s_add_u32 s58, s58, s3")
        for i in range(4):
            A(f"buffer_load_ushort v{64+i}, v5, s[76:79], 0 offen offset:{i*256}")
        A.label(".Lpa_nob")
        make_srd(A, 88, 4, 0, 2 * MB)
        A(f"s_lshl_b32 s3, s{M_}, 3")
        A(f"s_add_u32 s3, s3, s{G_}")
        A("s_lshl_b32 s3, s3, 3")
        A(f"s_add_u32 s3, s3, s{W}")
        A("s_lshl_b32 s3, s3, 10")
        A("buffer_load_dwordx4 v[68:71], v12, s[88:91], s3 offen")
        make_srd(A, 76, 6, 0, 256)
        A(f"s_or_b32 s58, s2, s{W}")
        A("s_cmp_lg_u32 s58, 0")
        A("s_cbranch_scc1 .Lpa_non")
        A("s_or_b32 s70, s70, 1")
        A("v_mov_b32 v2, s70")
        A("v_mov_b32 v3, s71")
        A("v_mov_b32 v4, 0")
        A("s_mov_b64 exec, 1")
        A("buffer_store_dwordx2 v[2:3], v4, s[76:79], 0 offen sc1")
        A("s_mov_b64 exec, -1")
        A.label(".Lpa_non")
        if WQE: self.wqpf()
    def wqpf(self):
        A = self.A; W = K1.S_WAVE
        SQ = 88 if WQE else K1.S_WQ
        if WQE: make_srd(A, 88, 64, 0, 4 * MB)
        A("v_lshrrev_b32 v2, 4, v0")
        A("v_and_b32 v3, 15, v0")
        A("v_lshlrev_b32 v3, 6, v3")
        A("v_lshl_add_u32 v2, v2, 13, v3")
        A("s_lshr_b32 s58, s2, 3")
        A("s_lshl_b32 s58, s58, 17")
        A("s_and_b32 s57, s2, 7")
        A("s_lshl_b32 s57, s57, 10")
        A("s_add_u32 s58, s58, s57")
        A(f"s_cmp_ge_u32 s{W}, 4")
        A("s_cbranch_scc1 .Lpa_nopf")
        A(f"buffer_load_dword v255, v2, s[{SQ}:{SQ+3}], s58 offen")
        A.label(".Lpa_nopf")
    def pro_b(self, nyoung, early, w7):
        A = self.A
        W = K1.S_WAVE; M_ = K1.S_M; G_ = K1.S_G; KM = f"s{K1.S_MASK}"
        NY = nyoung
        ACC = list(range(96, 104)); T = list(range(104, 112)); U = list(range(112, 120)); C = [64, 65, 66, 67]
        make_srd(A, 88, 68, WS_XN, 2 * MB)
        self.pst(2)
        A("s_waitcnt vmcnt(0)")
        self.pst(3)
        if not WQE: self.wqpf()
        A("s_cmp_ge_u32 s2, 152")
        A("s_cbranch_scc1 .Lpb_ln")
        A("s_cmp_lt_u32 s2, 96")
        A("s_cbranch_scc1 .Lpb_silu")
        for c in C: A(f"v_mov_b32 v{c}, 1.0")
        A("s_branch .Lpb_fma")
        A.label(".Lpb_silu")
        for i, c in enumerate(C): A(f"v_lshlrev_b32 v{c}, 16, v{c}")
        for i, c in enumerate(C): A(f"v_mul_f32 v{T[i]}, {fhex(-LOG2E)}, v{c}")
        for i, c in enumerate(C): A(f"v_exp_f32 v{T[i]}, v{T[i]}")
        for i, c in enumerate(C): A(f"v_add_f32 v{T[i]}, 1.0, v{T[i]}")
        for i, c in enumerate(C): A(f"v_rcp_f32 v{U[i]}, v{T[i]}")
        for i, c in enumerate(C): A(f"v_mul_f32 v{U[4+i]}, v{c}, v{U[i]}")
        for i, c in enumerate(C): A(f"v_fma_f32 v{T[i]}, -v{U[4+i]}, v{T[i]}, v{c}")
        for i, c in enumerate(C): A(f"v_fma_f32 v{c}, v{T[i]}, v{U[i]}, v{U[4+i]}")
        for i, c in enumerate(C): A(f"v_cvt_pk_bf16_f32 v{T[i]}, v{c}, v{c}")
        for i, c in enumerate(C): A(f"v_lshlrev_b32 v{c}, 16, v{T[i]}")
        A.label(".Lpb_fma")
        for i in range(4):
            for j in range(4):
                w = 72 + 4 * i + j
                A(f"v_lshlrev_b32 v{T[2*j]}, 16, v{w}")
                A(f"v_and_b32 v{T[2*j+1]}, {KM}, v{w}")
            for j in range(8):
                A(f"v_mul_f32 v{ACC[j]}, v{T[j]}, v{C[i]}" if i == 0 else f"v_fmac_f32 v{ACC[j]}, v{T[j]}, v{C[i]}")
        A("s_nop 1")
        for dpp in ("row_ror:8", "row_ror:4"):
            for v in ACC: A(f"v_add_f32_dpp v{v}, v{v}, v{v} {dpp} row_mask:0xf bank_mask:0xf")
        A("v_and_b32 v2, 3, v1")
        A("v_lshrrev_b32 v3, 4, v0")
        A("v_lshlrev_b32 v3, 7, v3")
        A("v_lshl_add_u32 v3, v2, 5, v3")
        A("v_and_b32 v2, 12, v1")
        A("v_cmp_eq_u32 vcc, 0, v2")
        A("s_and_saveexec_b64 s[58:59], vcc") if False else None
        A("s_mov_b64 s[4:5], exec")
        A("s_and_b64 exec, exec, vcc")
        A(f"ds_write_b128 v3, v[{ACC[0]}:{ACC[3]}]")
        A(f"ds_write_b128 v3, v[{ACC[4]}:{ACC[7]}] offset:16")
        A("s_mov_b64 exec, -1")
        A("s_waitcnt lgkmcnt(0)")
        A("s_barrier")
        self.pst(4)
        A(f"s_cmp_lg_u32 s{W}, 7")
        A("s_cbranch_scc1 .Lpb_ln")
        A("v_and_b32 v2, 31, v1")
        A("v_lshlrev_b32 v2, 2, v2")
        A("v_lshrrev_b32 v3, 5, v1")
        A("v_lshl_add_u32 v3, v3, 11, v2")
        for k in range(16): A(f"ds_read_b32 v{120+k}, v3 offset:{k*128}")
        for k in range(8):
            A(f"s_waitcnt lgkmcnt({14-2*k})")
            A(f"v_add_f32 v{120+2*k}, v{120+2*k}, v{121+2*k}")
        for k in range(4): A(f"v_add_f32 v{120+4*k}, v{120+4*k}, v{122+4*k}")
        A("v_add_f32 v120, v120, v124")
        A("v_add_f32 v128, v128, v132")
        A("v_add_f32 v120, v120, v128")
        A("v_mov_b32 v121, v120")
        A("s_nop 1")
        A("v_permlane32_swap_b32 v120, v121")
        A("s_nop 1")
        A("v_add_f32 v120, v120, v121")
        A("s_cmp_ge_u32 s2, 96")
        A("s_cbranch_scc1 .Lpb_nornd")
        round_bf16_1(A, 120, 121)
        A.label(".Lpb_nornd")
        A("s_lshl_b32 s58, s59, 7")
        A("s_mov_b32 exec_hi, 0")
        A("buffer_store_dword v120, v2, s[84:87], s58 offen sc1")
        A("s_mov_b64 exec, -1")
        A.label(".Lpb_ln")
        A("v_mov_b32 v2, 0")
        A(f"s_cmp_lg_u32 s{W}, 7")
        A("s_cbranch_scc1 .Lpb_ln2")
        A("s_mov_b64 exec, 1")
        A("buffer_load_dwordx2 v[136:137], v2, s[76:79], 0 offen sc1")
        A("s_mov_b64 exec, -1")
        A.label(".Lpb_ln2")
        self.pst(5)
        X = list(range(96, 104)); TT = list(range(104, 116))
        for j in range(4):
            A(f"v_lshlrev_b32 v{X[2*j]}, 16, v{68+j}")
            A(f"v_and_b32 v{X[2*j+1]}, {KM}, v{68+j}")
        ln_rows(A, [(X, TT)], KM)
        pack8(A, X, 68)
        A("buffer_store_dwordx4 v[68:71], v12, s[88:91], s3 offen sc1")
        make_srd(A, 80, 68, FP, 32 * 512)
        self.pst(6)
        A(f"s_cmp_lg_u32 s{W}, 7")
        A("s_cbranch_scc1 .Lpb_w")
        A("s_waitcnt vmcnt(1)")
        A("s_mov_b32 s57, 0")
        A.label(".Lpb_nl")
        A("v_readfirstlane_b32 s100, v136")
        A("v_readfirstlane_b32 s101, v137")
        A("s_add_u32 s57, s57, 1")
        A("s_cmp_lg_u32 s100, 0")
        A("s_cbranch_scc1 .Lpb_nd")
        A("s_cmp_lt_u32 s57, 0x40000")
        A("s_cbranch_scc0 .Lpb_nd")
        A("s_mov_b64 exec, 1")
        A("buffer_load_dwordx2 v[136:137], v2, s[76:79], 0 offen sc1")
        A("s_mov_b64 exec, -1")
        A("s_waitcnt vmcnt(0)")
        A("s_branch .Lpb_nl")
        A.label(".Lpb_nd")
        A("v_mov_b32 v136, s100")
        A("v_mov_b32 v137, s101")
        self.pst(7)
        A("s_cmp_ge_u32 s2, 152")
        A("s_cbranch_scc1 .Lpb_w")
        A("v_lshlrev_b32 v3, 9, v1")
        A("s_lshl_b32 s58, s2, 3")
        A("s_cmp_lt_u32 s2, 32")
        A("s_cbranch_scc1 .Lpb_crit")
        make_srd(A, 80, 68, FQ_, 32 * 1024)
        A("v_lshlrev_b32 v3, 10, v1")
        A("s_sub_u32 s58, s58, 256")
        A.label(".Lpb_crit")
        A("s_mov_b32 exec_hi, 0")
        A("buffer_store_dwordx2 v[136:137], v3, s[80:83], s58 offen sc1")
        A("s_mov_b64 exec, -1")
        make_srd(A, 80, 68, FP, 32 * 512)
        A.label(".Lpb_w")
        A("s_waitcnt vmcnt(1)") if False else None
        A("s_waitcnt vmcnt(0)")
        self.pst(8)
        A("s_barrier")
        self.pst(9)
        A(f"s_cmp_lg_u32 s{W}, 7")
        A("s_cbranch_scc1 .Lpb_early")
        A(f"s_lshl_b32 s58, s{M_}, 9")
        A(f"s_lshl_b32 s57, s{G_}, 3")
        A("s_add_u32 s57, s57, 256")
        A("v_mov_b32 v3, s57")
        A("s_mov_b64 exec, 1")
        A("buffer_store_dwordx2 v[136:137], v3, s[80:83], s58 offen sc1")
        A("s_mov_b64 exec, -1")
        A("v_min_u32 v3, 39, v1")
        A("v_lshlrev_b32 v3, 3, v3")
        sv99 = None
        w7()
        self.poll64(".Lplp", [(3, 80, "s58")], cnt=57)
        A("s_branch .Lpb_done")
        A.label(".Lpb_early")
        early()
        A.label(".Lpb_done")
        A("s_barrier")
        self.pst(10)
        self.pst_flush()
    def p2_a(self):
        A = self.A
        W = K1.S_WAVE; M_ = K1.S_M; G_ = K1.S_G
        SCR = K1.STG + 16384
        A("s_waitcnt lgkmcnt(0)")
        self.pst(1)
        make_srd(A, 76, 72, 0, 1024)
        make_srd(A, 80, 74, 0, 512 * 6144)
        make_srd(A, 84, 68, WS_MOD, 4 * MODP)
        make_srd(A, 88, 4, 0, 2 * MB)
        A("s_movk_i32 s3, 6144")
        A("s_and_b32 s4, s2, 15")
        A("s_lshr_b32 s5, s2, 4")
        A("s_lshl_b32 s57, s5, 8")
        A("s_cmp_lt_u32 s2, 64")
        A("s_cbranch_scc1 .Lp2a_dec")
        A("s_sub_u32 s4, s2, 64")
        A("s_and_b32 s5, s4, 1")
        A("s_lshr_b32 s4, s4, 1")
        A("s_lshl_b32 s57, s5, 9")
        A("s_add_u32 s4, s4, 16")
        A("s_cmp_lt_u32 s4, 48")
        A("s_cbranch_scc1 .Lp2a_dec")
        A("s_sub_u32 s4, s4, 48")
        make_srd(A, 80, 96, 0, 512 * 3584)
        make_srd(A, 84, 68, WS_CS, 2 * CSP)
        A("s_movk_i32 s3, 3584")
        A.label(".Lp2a_dec")
        A("s_lshr_b32 s58, s57, 1")
        A("s_mul_i32 s58, s58, s3")
        A("s_lshl_b32 s59, s4, 7")
        A("s_add_u32 s58, s58, s59")
        A("s_lshl_b32 s59, s4, 8")
        A(f"s_movk_i32 s4, {MODP}")
        A("s_cmp_eq_u32 s3, 3584")
        A(f"s_cselect_b32 s4, {CSP}, s4")
        A("s_mul_i32 s4, s4, s5")
        A("s_add_u32 s59, s59, s4")
        A("v_and_b32 v2, 7, v0")
        A("v_bfe_u32 v3, v0, 3, 5")
        A("v_mul_lo_u32 v60, v3, s3")
        A("v_lshl_add_u32 v60, v2, 4, v60")
        A("v_lshlrev_b32 v61, 1, v3")
        A("s_lshl_b32 s70, s3, 5") if False else None
        A("s_lshl_b32 s5, s3, 5")
        A(f"s_cmp_ge_u32 s{W}, 4")
        A("s_cbranch_scc1 .Lp2a_end")
        A("s_cmp_ge_u32 s2, 64")
        A("s_cbranch_scc1 .Lp2a_x")
        self.p2_tload(0)
        A.label(".Lp2a_x")
        A(f"s_lshl_b32 s3, s{M_}, 3")
        A(f"s_add_u32 s3, s3, s{G_}")
        A("s_lshl_b32 s3, s3, 2")
        A(f"s_add_u32 s3, s3, s{W}")
        A("s_lshl_b32 s3, s3, 11")
        A("buffer_load_dwordx4 v[88:91], v12, s[88:91], s3 offen")
        A("buffer_load_dwordx4 v[92:95], v12, s[88:91], s3 offen offset:1024")
        make_srd(A, 88, 6, 0, 256)
        A(f"s_or_b32 s4, s2, s{W}")
        A("s_cmp_lg_u32 s4, 0")
        A("s_cbranch_scc1 .Lp2a_non")
        A("s_or_b32 s70, s70, 1")
        A("v_mov_b32 v2, s70")
        A("v_mov_b32 v3, s71")
        A("v_mov_b32 v4, 0")
        A("s_mov_b64 exec, 1")
        A("buffer_store_dwordx2 v[2:3], v4, s[88:91], 0 offen sc1")
        A("s_mov_b64 exec, -1")
        A.label(".Lp2a_non")
        A(f"v_mov_b32 v2, {SCR + 8192}")
        A("v_mov_b32 v4, 0")
        A("v_mov_b32 v5, 0")
        A("ds_write_b64 v2, v[4:5]")
        A("s_branch .Lp2a_e2")
        A.label(".Lp2a_end")
        if WQF == 1: self.p2_wq()
        if WQF == 2:
            A("s_cmp_lt_u32 s2, 64")
            A("s_cbranch_scc1 .Lp2a_e2") if False else None
            A("s_sleep 4")
            self.p2_wq()
        if TLW:
            A("v_lshlrev_b32 v2, 21, v1")
            A(f"v_add_u32 v2, {(2 << 20) - 128}, v2")
            make_srd(A, 88, 68, 0, 48 * MB if TLW >= 2 else 4 * MB)
            A(f"s_cmp_lg_u32 s{W}, 4")
            A("s_cbranch_scc1 .Lp2a_e2")
            A("buffer_load_dword v252, v2, s[88:91], 0 offen sc1")
            if TLW == 1:
                A(f"s_mov_b32 s4, {WS_FLAG}")
                make_srd(A, 88, 68, 0, WS_FLAG + 2 * MB)
                A("buffer_load_dword v252, v2, s[88:91], s4 offen sc1")
        A.label(".Lp2a_e2")
        if EB:
            A("s_waitcnt lgkmcnt(0)")
            A("s_barrier")
            A(f"s_cmp_lt_u32 s{W}, 4")
            A("s_cbranch_scc1 .Lp2a_e3")
            self.p2_bulk1()
            A.label(".Lp2a_e3")
        A("s_mov_b32 s70, s57")
        A("s_mov_b32 s71, s58")
    def p2_bulk1(self):
        A = self.A; W = K1.S_WAVE
        A("s_sub_u32 s4, s2, 64")
        A("s_cmp_ge_u32 s4, 120")
        A("s_cbranch_scc1 .Lp2_l1")
        self.p2_tload(0); self.p2_tload(1)
        A.label(".Lp2_l1")
        if EB: make_srd(A, K1.S_WQ, 64, 0, 4 * MB)
        if DLY == 1 and not EB:
            A("s_cmp_ge_u32 s2, 64")
            A("s_cbranch_scc1 .Lp2_l3")
        if DLY and not EB:
            self.lds_spin(".Lp2_sd", 4, 4, True)
            A.label(".Lp2_l3")
        if not WQF: self.p2_wq()
    def p2_wq(self):
        A = self.A; W = K1.S_WAVE
        if WQF: make_srd(A, K1.S_WQ, 64, 0, 4 * MB)
        W128 = int(os.environ.get("W128", "0"))
        A("v_and_b32 v4, 255, v0")
        A(f"v_lshrrev_b32 v2, {3 if W128 else 4}, v4")
        A(f"v_and_b32 v3, {7 if W128 else 15}, v4")
        A(f"v_lshlrev_b32 v3, {7 if W128 else 6}, v3")
        A("v_lshl_add_u32 v2, v2, 13, v3")
        A("s_lshr_b32 s36, s2, 3")
        A("s_lshl_b32 s36, s36, 17")
        A("s_and_b32 s37, s2, 7")
        A("s_lshl_b32 s37, s37, 10")
        A("s_add_u32 s36, s36, s37")
        if W128:
            A(f"s_cmp_ge_u32 s{W}, 6")
            A("s_cbranch_scc1 .Lp2_l2")
        A(f"buffer_load_dword v63, v2, s[{K1.S_WQ}:{K1.S_WQ+3}], s36 offen")
        if W128: A.label(".Lp2_l2")
    def p2_tload(self, b):
        A = self.A
        wd = (72, 140)[b]; cd = (64, 156)[b]
        for i in range(4):
            A(f"buffer_load_dwordx4 v[{wd+4*i}:{wd+4*i+3}], v60, s[80:83], s58 offen")
            A("s_add_u32 s58, s58, s5")
        for i in range(4):
            A(f"buffer_load_ushort v{cd+i}, v61, s[76:79], s57 offen offset:{b*256 + i*64}")
    def lds_spin(self, lab, off, target, sleep=False, va=9):
        A = self.A
        A.label(lab)
        if sleep: A("s_sleep 2")
        A(f"ds_read_b32 v3, v{va} offset:{off}")
        A("s_waitcnt lgkmcnt(0)")
        A("v_readfirstlane_b32 s4, v3")
        A(f"s_cmp_lt_u32 s4, {target}")
        A(f"s_cbranch_scc1 {lab}")
    def lds_inc(self, off, va=9):
        A = self.A
        A("v_mov_b32 v3, 1")
        A("s_mov_b64 exec, 1")
        A(f"ds_add_u32 v{va}, v3 offset:{off}")
        A("s_mov_b64 exec, -1")
    def p2_gemv(self, sfx, nb, maybe_ones, col=3):
        A = self.A
        W = K1.S_WAVE; KM = f"s{K1.S_MASK}"; SCR = K1.STG + 16384
        ACC = list(range(96, 104)); T = list(range(104, 112)); U = list(range(112, 128))
        C = [64, 65, 66, 67] + ([156, 157, 158, 159] if nb == 2 else [])
        n = len(C)
        if maybe_ones:
            A("s_cmp_lt_u32 s2, 128")
            A(f"s_cbranch_scc1 .Lp2_silu{sfx}")
            for c in C: A(f"v_mov_b32 v{c}, 1.0")
            A(f"s_branch .Lp2_fma{sfx}")
            A.label(f".Lp2_silu{sfx}")
        for i, c in enumerate(C): A(f"v_lshlrev_b32 v{c}, 16, v{c}")
        for i, c in enumerate(C): A(f"v_mul_f32 v{T[i]}, {fhex(-LOG2E)}, v{c}")
        for i, c in enumerate(C): A(f"v_exp_f32 v{T[i]}, v{T[i]}")
        for i, c in enumerate(C): A(f"v_add_f32 v{T[i]}, 1.0, v{T[i]}")
        for i, c in enumerate(C): A(f"v_rcp_f32 v{U[i]}, v{T[i]}")
        for i, c in enumerate(C): A(f"v_mul_f32 v{U[8+i]}, v{c}, v{U[i]}")
        for i, c in enumerate(C): A(f"v_fma_f32 v{T[i]}, -v{U[8+i]}, v{T[i]}, v{c}")
        for i, c in enumerate(C): A(f"v_fma_f32 v{c}, v{T[i]}, v{U[i]}, v{U[8+i]}")
        for i, c in enumerate(C): A(f"v_cvt_pk_bf16_f32 v{T[i]}, v{c}, v{c}")
        for i, c in enumerate(C): A(f"v_lshlrev_b32 v{c}, 16, v{T[i]}")
        if maybe_ones: A.label(f".Lp2_fma{sfx}")
        for i in range(n):
            for j in range(4):
                w = (72, 140)[i >> 2] + 4 * (i & 3) + j
                A(f"v_lshlrev_b32 v{T[2*j]}, 16, v{w}")
                A(f"v_and_b32 v{T[2*j+1]}, {KM}, v{w}")
            for j in range(8):
                A(f"v_mul_f32 v{ACC[j]}, v{T[j]}, v{C[i]}" if i == 0 else f"v_fmac_f32 v{ACC[j]}, v{T[j]}, v{C[i]}")
        A("v_and_b32 v2, 7, v1")
        A("v_bfe_u32 v3, v0, 4, 4")
        for v in ACC: A(f"v_add_f32_dpp v{v}, v{v}, v{v} row_ror:8 row_mask:0xf bank_mask:0xf")
        A("v_lshlrev_b32 v3, 8, v3")
        A("v_lshl_add_u32 v3, v2, 5, v3")
        A(f"v_add_u32 v3, {SCR}, v3")
        A("v_and_b32 v2, 8, v1")
        A("v_cmp_eq_u32 vcc, 0, v2")
        A("s_and_b64 exec, exec, vcc")
        A(f"ds_write_b128 v3, v[{ACC[0]}:{ACC[3]}]")
        A(f"ds_write_b128 v3, v[{ACC[4]}:{ACC[7]}] offset:16")
        A("s_mov_b64 exec, -1")
        A("s_waitcnt lgkmcnt(0)")
        self.lds_inc(0)
        A(f"s_cmp_lg_u32 s{W}, {col}")
        A(f"s_cbranch_scc1 .Lp2_gd{sfx}")
        self.lds_spin(f".Lp2_sp{sfx}", 0, 4)
        A("v_lshlrev_b32 v2, 2, v1")
        A(f"v_add_u32 v3, {SCR}, v2")
        for k in range(16): A(f"ds_read_b32 v{104+k}, v3 offset:{k*256}")
        for k in range(8):
            A(f"s_waitcnt lgkmcnt({14-2*k})")
            A(f"v_add_f32 v{104+2*k}, v{104+2*k}, v{105+2*k}")
        for k in range(4): A(f"v_add_f32 v{104+4*k}, v{104+4*k}, v{106+4*k}")
        A("v_add_f32 v104, v104, v108")
        A("v_add_f32 v112, v112, v116")
        A("v_add_f32 v68, v104, v112")
        A("buffer_store_dword v68, v2, s[84:87], s59 offen sc1")
        A.label(f".Lp2_gd{sfx}")
    def p2_ln(self):
        A = self.A; KM = f"s{K1.S_MASK}"
        X0 = list(range(96, 104)); X1 = list(range(120, 128)); T0 = list(range(104, 116)); T1 = list(range(128, 140))
        for r, X in enumerate((X0, X1)):
            for j in range(4):
                A(f"v_lshlrev_b32 v{X[2*j]}, 16, v{88+4*r+j}")
                A(f"v_and_b32 v{X[2*j+1]}, {KM}, v{88+4*r+j}")
        ln_rows(A, [(X0, T0), (X1, T1)], KM, False)
        pack8(A, X0, 88); pack8(A, X1, 92)
        A(f"buffer_store_dwordx4 v[88:91], v12, s[{K1.S_XN}:{K1.S_XN+3}], s3 offen sc1")
        A(f"buffer_store_dwordx4 v[92:95], v12, s[{K1.S_XN}:{K1.S_XN+3}], s3 offen offset:1024 sc1")
    def p2_nonce(self, sfx):
        A = self.A
        A("s_mov_b32 s4, 0")
        A.label(f".Lp2_nl{sfx}")
        A("v_readfirstlane_b32 s100, v70")
        A("v_readfirstlane_b32 s101, v71")
        A("s_add_u32 s4, s4, 1")
        A("s_cmp_lg_u32 s100, 0")
        A(f"s_cbranch_scc1 .Lp2_nd{sfx}")
        A("s_cmp_lt_u32 s4, 0x40000")
        A(f"s_cbranch_scc0 .Lp2_nd{sfx}")
        self.p2_nload()
        A("s_waitcnt vmcnt(0)")
        A(f"s_branch .Lp2_nl{sfx}")
        A.label(f".Lp2_nd{sfx}")
        A("v_mov_b32 v70, s100")
        A("v_mov_b32 v71, s101")
    def p2_nload(self):
        A = self.A
        A("v_mov_b32 v2, 0")
        A("s_mov_b64 exec, 1")
        A("buffer_load_dwordx2 v[70:71], v2, s[88:91], 0 offen sc1")
        A("s_mov_b64 exec, -1")
    def p2_pubtask(self, region, base):
        A = self.A
        make_srd(A, 76, 68, region, 32 * 1024)
        A("v_lshlrev_b32 v3, 10, v1")
        A(f"s_sub_u32 s4, s2, {base}")
        A("s_lshl_b32 s4, s4, 3")
        A("s_mov_b32 exec_hi, 0")
        A("buffer_store_dwordx2 v[70:71], v3, s[76:79], s4 offen sc1")
        A("s_mov_b64 exec, -1")
    def p2_pubxn(self, sfx):
        A = self.A
        self.lds_spin(f".Lp2_sx{sfx}", 4, 3)
        make_srd(A, 76, 68, FP, 32 * 1024)
        A(f"s_lshl_b32 s4, s{K1.S_M}, 10")
        A(f"s_lshl_b32 s5, s{K1.S_G}, 3")
        A("s_add_u32 s5, s5, 512")
        A("v_mov_b32 v3, s5")
        A("s_mov_b64 exec, 1")
        A("buffer_store_dwordx2 v[70:71], v3, s[76:79], s4 offen sc1")
        A("s_mov_b64 exec, -1")
    def p2_b(self, loader, cfix, xn_loads):
        A = self.A
        W = K1.S_WAVE; M_ = K1.S_M; KM = f"s{K1.S_MASK}"; SCR = K1.STG + 16384
        A(f"v_mov_b32 v9, {SCR + 8192}")
        if not EB:
            A("s_waitcnt lgkmcnt(0)")
            A("s_barrier")
        self.pst(2)
        A(f"s_cmp_lt_u32 s{W}, 4")
        A("s_cbranch_scc1 .Lp2_c")
        if not EB:
            A("s_mov_b32 s57, s70")
            A("s_mov_b32 s58, s71")
            self.p2_bulk1()
        elif DLY == 1:
            A("s_cmp_ge_u32 s2, 64")
            A("s_cbranch_scc1 .Lp2_l4")
            self.lds_spin(".Lp2_sd2", 4, 4, True)
            A.label(".Lp2_l4")
        loader()
        A("s_sub_u32 s4, s2, 64")
        A("s_cmp_ge_u32 s4, 120")
        A("s_cbranch_scc1 .Lp2_X")
        A(f"s_waitcnt vmcnt({4 * int(os.environ.get('LDE', '2'))})")
        self.p2_gemv("b", 2, True, 7)
        A("s_branch .Lp2_X")
        A.label(".Lp2_c")
        cfix()
        A("s_waitcnt vmcnt(0)")
        self.pst(3)
        A("s_cmp_ge_u32 s2, 64")
        A("s_cbranch_scc1 .Lp2_a0")
        self.p2_gemv("a", 1, False)
        A.label(".Lp2_a0")
        self.pst(4)
        A(f"s_cmp_lg_u32 s{W}, 3")
        A("s_cbranch_scc1 .Lp2_a1")
        self.p2_nload()
        A.label(".Lp2_a1")
        self.p2_ln()
        self.pst(6)
        A(f"s_cmp_lg_u32 s{W}, 3")
        A("s_cbranch_scc1 .Lp2_ack")
        A("s_waitcnt vmcnt(2)")
        self.p2_nonce("a")
        A("s_cmp_ge_u32 s2, 64")
        A("s_cbranch_scc1 .Lp2_a2")
        self.p2_pubtask(FP, 0)
        self.pst(7)
        A("s_waitcnt vmcnt(1)")
        A("s_branch .Lp2_a3")
        A.label(".Lp2_a2")
        A("s_waitcnt vmcnt(0)")
        A.label(".Lp2_a3")
        self.p2_pubxn("a")
        self.lds_inc(4)
        A("s_branch .Lp2_col")
        A.label(".Lp2_ack")
        A("s_waitcnt vmcnt(0)")
        self.lds_inc(4)
        A("s_branch .Lp2_X")
        A.label(".Lp2_col")
        make_srd(A, 76, 68, FP, 32 * 1024)
        A(f"s_lshl_b32 s5, s{M_}, 10")
        A("v_and_b32 v3, 7, v1")
        A("v_lshlrev_b32 v3, 3, v3")
        A("v_add_u32 v3, 512, v3")
        A("ds_write_b64 v9, v[70:71] offset:16")
        def parts():
            make_srd(A, 84, 68, WS_MOD, 4 * MODP)
            for i in range(4):
                for p in range(4):
                    A(f"s_movk_i32 s4, {p * MODP}") if p * MODP < 32768 else A(f"s_mov_b32 s4, {p * MODP}")
                    A(f"buffer_load_dwordx4 v[{72+16*i+4*p}:{75+16*i+4*p}], v12, s[84:87], s4 offen offset:{i*1024}")
        if MP:
            A("v_lshlrev_b32 v4, 3, v1")
            self.poll64(".Lplx", [(3, 76, "s5"), (4, 76, "s5")], cnt=4)
            parts()
        else:
            self.poll64(".Lplx", [(3, 76, "s5")], cnt=4)
        A.label(".Lp2_X")
        self.pst(8)
        A("s_waitcnt lgkmcnt(0)")
        A("s_barrier")
        self.pst(9)
        xn_loads()
        A(f"s_cmp_lg_u32 s{W}, 3")
        A("s_cbranch_scc1 .Lp2_Y")
        if not MP:
            make_srd(A, 76, 68, FP, 32 * 1024)
            A(f"s_lshl_b32 s5, s{M_}, 10")
            A("v_lshlrev_b32 v3, 3, v1")
            self.poll64(".Lplm", [(3, 76, "s5")], cnt=4)
            parts()
        A(f"v_add_u32 v3, {SCR + 4096}, v12")
        for i in range(4):
            b = 72 + 16 * i
            A(f"s_waitcnt vmcnt({12 - 4*i + (8 if MP else 0)})")
            pk(A, "v_pk_add_f32", b, b, b + 4); pk(A, "v_pk_add_f32", b + 2, b + 2, b + 6)
            pk(A, "v_pk_add_f32", b + 8, b + 8, b + 12); pk(A, "v_pk_add_f32", b + 10, b + 10, b + 14)
            pk(A, "v_pk_add_f32", b, b, b + 8); pk(A, "v_pk_add_f32", b + 2, b + 2, b + 10)
            round_multi(A, [b, b + 1, b + 2, b + 3], [b + 4, b + 5], KM)
            if i >= 2:
                for e in range(4): A(f"v_add_f32 v{b+e}, 1.0, v{b+e}")
                round_multi(A, [b, b + 1, b + 2, b + 3], [b + 4, b + 5], KM)
            A(f"ds_write_b128 v3, v[{b}:{b+3}] offset:{i*1024}")
        A("s_waitcnt lgkmcnt(0)")
        A.label(".Lp2_Y")
        A("s_barrier")
        self.pst(10)
        self.pst_flush()
        A("ds_read_b64 v[2:3], v9 offset:16")
        A("s_waitcnt lgkmcnt(0)")
        A("v_readfirstlane_b32 s100, v2")
        A("v_readfirstlane_b32 s101, v3")
    def p2_c(self):
        A = self.A
        A(f"s_cmp_lg_u32 s{K1.S_WAVE}, {1 if V3 else 7}")
        A("s_cbranch_scc1 .Lp2c_end")
        A("s_sub_u32 s4, s2, 64")
        A("s_cmp_ge_u32 s4, 120")
        A("s_cbranch_scc1 .Lp2c_end")
        A("v_mov_b32 v70, s100")
        A("v_mov_b32 v71, s101")
        A("s_waitcnt vmcnt(0)")
        self.p2_pubtask(FQ_, 64)
        A.label(".Lp2c_end")
    def p3_tload(self, n):
        A = self.A
        for i in range(n):
            A(f"buffer_load_dwordx4 v[{128+4*i}:{131+4*i}], v60, s[80:83], s58 offen")
            A("s_add_u32 s58, s58, s5")
        for i in range(n):
            A(f"buffer_load_ushort v{224+i}, v61, s[76:79], s57 offen offset:{i*64}")
    def p3_wq(self, sfx):
        A = self.A; W = K1.S_WAVE
        make_srd(A, K1.S_WQ, 64, 0, 4 * MB)
        A("v_and_b32 v4, 255, v0")
        A("v_lshrrev_b32 v2, 4, v4")
        A("v_and_b32 v3, 15, v4")
        A("v_lshlrev_b32 v3, 6, v3")
        A("v_lshl_add_u32 v2, v2, 13, v3")
        A("s_lshr_b32 s36, s2, 3")
        if int(os.environ.get("WQR", "1")): A("s_sub_u32 s36, 31, s36")
        A("s_lshl_b32 s36, s36, 17")
        A("s_and_b32 s37, s2, 7")
        A("s_lshl_b32 s37, s37, 10")
        A("s_add_u32 s36, s36, s37")
        A(f"s_cmp_lt_u32 s{W}, 4")
        A(f"s_cbranch_scc1 .Lp3_wq{sfx}")
        A(f"buffer_load_dword v63, v2, s[{K1.S_WQ}:{K1.S_WQ+3}], s36 offen")
        A.label(f".Lp3_wq{sfx}")
    def p3_a(self):
        A = self.A
        W = K1.S_WAVE; M_ = K1.S_M; XR = K1.V_S
        A("s_waitcnt lgkmcnt(0)")
        self.pst(1)
        make_srd(A, 88, 6, 0, 256)
        A(f"s_or_b32 s3, s2, s{W}")
        A("s_cmp_lg_u32 s3, 0")
        A("s_cbranch_scc1 .Lp3a_non")
        A("s_or_b32 s70, s70, 1")
        A("v_mov_b32 v2, s70")
        A("v_mov_b32 v3, s71")
        A("v_mov_b32 v5, 0")
        A("s_mov_b64 exec, 1")
        A("buffer_store_dwordx2 v[2:3], v5, s[88:91], 0 offen sc1")
        A("s_mov_b64 exec, -1")
        A.label(".Lp3a_non")
        make_srd(A, 76, 72, 0, 1024)
        make_srd(A, 80, 74, 0, 512 * 6144)
        make_srd(A, 84, 68, WS_MOD, 4 * MODP)
        make_srd(A, 88, 4, 0, 2 * MB)
        A("s_movk_i32 s3, 6144")
        A("s_and_b32 s4, s2, 15")
        A("s_lshr_b32 s5, s2, 4")
        A("s_lshl_b32 s57, s5, 8")
        A("s_cmp_lt_u32 s2, 64")
        A("s_cbranch_scc1 .Lp3a_dec")
        A("s_sub_u32 s4, s2, 64")
        A("s_and_b32 s5, s4, 1")
        A("s_lshr_b32 s4, s4, 1")
        A("s_lshl_b32 s57, s5, 9")
        A("s_add_u32 s4, s4, 16")
        A("s_cmp_lt_u32 s4, 48")
        A("s_cbranch_scc1 .Lp3a_dec")
        A("s_sub_u32 s4, s4, 48")
        make_srd(A, 80, 96, 0, 512 * 3584)
        make_srd(A, 84, 68, WS_CS, 2 * CSP)
        A("s_movk_i32 s3, 3584")
        A.label(".Lp3a_dec")
        A("s_lshr_b32 s58, s57, 1")
        A("s_mul_i32 s58, s58, s3")
        A("s_lshl_b32 s59, s4, 7")
        A("s_add_u32 s58, s58, s59")
        A("s_lshl_b32 s59, s4, 8")
        A(f"s_movk_i32 s4, {MODP}")
        A("s_cmp_eq_u32 s3, 3584")
        A(f"s_cselect_b32 s4, {CSP}, s4")
        A("s_mul_i32 s4, s4, s5")
        A("s_add_u32 s59, s59, s4")
        A("v_and_b32 v2, 7, v0")
        A("v_bfe_u32 v3, v0, 3, 5")
        A("v_mul_lo_u32 v60, v3, s3")
        A("v_lshl_add_u32 v60, v2, 4, v60")
        A("v_lshlrev_b32 v61, 1, v3")
        A("s_lshl_b32 s5, s3, 5")
        A(f"v_mov_b32 v58, {K1.STG + 16384}")
        A("v_mov_b32 v3, 0")
        A("ds_write_b32 v58, v3 offset:16")
        A("s_cmp_ge_u32 s2, 64")
        A("s_cbranch_scc1 .Lp3a_x")
        A(f"s_cmp_ge_u32 s{W}, 4")
        A("s_cbranch_scc1 .Lp3a_x")
        self.p3_tload(4)
        A.label(".Lp3a_x")
        A("s_waitcnt lgkmcnt(0)")
        A("s_barrier")
        A(f"s_lshl_b32 s3, s{M_}, 16")
        A(f"s_lshl_b32 s4, s{W}, 13")
        A("s_add_u32 s3, s3, s4")
        A("s_add_u32 s4, s3, 4096")
        for i in range(4 if XS else 8):
            A(f"buffer_load_dwordx4 v[{XR+4*i}:{XR+4*i+3}], v12, s[88:91], s{3 + (i >> 2)} offen offset:{(i & 3) * 1024}")
        if not XS: make_srd(A, 88, 6, 0, 256)
        if not XS:
            A("s_cmp_lt_u32 s2, 64")
            A("s_cbranch_scc1 .Lp3a_end")
            self.p3_wq("a")
            A.label(".Lp3a_end")
        A("s_mov_b32 s70, s57")
        A("s_mov_b32 s71, s58")
    def p3_gemv(self, sfx, n, maybe_ones, col):
        A = self.A
        W = K1.S_WAVE; KM = f"s{K1.S_MASK}"; SCR = K1.STG + 16384
        ACC = list(range(64, 72)); T = list(range(72, 80)); U = list(range(80, 96))
        C = list(range(224, 224 + n))
        if maybe_ones:
            A("s_cmp_lt_u32 s2, 128")
            A(f"s_cbranch_scc1 .Lp3_silu{sfx}")
            for c in C: A(f"v_mov_b32 v{c}, 1.0")
            A(f"s_branch .Lp3_fma{sfx}")
            A.label(f".Lp3_silu{sfx}")
        seq = [lambda i, c: f"v_lshlrev_b32 v{c}, 16, v{c}", lambda i, c: f"v_mul_f32 v{T[i]}, {fhex(-LOG2E)}, v{c}",
               lambda i, c: f"v_exp_f32 v{T[i]}, v{T[i]}", None, lambda i, c: f"v_add_f32 v{T[i]}, 1.0, v{T[i]}",
               lambda i, c: f"v_rcp_f32 v{U[i]}, v{T[i]}", None, lambda i, c: f"v_mul_f32 v{U[8+i]}, v{c}, v{U[i]}",
               lambda i, c: f"v_fma_f32 v{T[i]}, -v{U[8+i]}, v{T[i]}, v{c}", lambda i, c: f"v_fma_f32 v{c}, v{T[i]}, v{U[i]}, v{U[8+i]}",
               lambda i, c: f"v_cvt_pk_bf16_f32 v{T[i]}, v{c}, v{c}", lambda i, c: f"v_lshlrev_b32 v{c}, 16, v{T[i]}"]
        for f in seq:
            if f is None: A("s_nop 0"); continue
            for i, c in enumerate(C): A(f(i, c))
        if maybe_ones: A.label(f".Lp3_fma{sfx}")
        for i in range(n):
            for j in range(4):
                w = 128 + 4 * i + j
                A(f"v_lshlrev_b32 v{T[2*j]}, 16, v{w}")
                A(f"v_and_b32 v{T[2*j+1]}, {KM}, v{w}")
            for j in range(8):
                A(f"v_mul_f32 v{ACC[j]}, v{T[j]}, v{C[i]}" if i == 0 else f"v_fmac_f32 v{ACC[j]}, v{T[j]}, v{C[i]}")
        A("v_and_b32 v2, 7, v1")
        A("v_lshrrev_b32 v3, 4, v0")
        for v in ACC: A(f"v_add_f32_dpp v{v}, v{v}, v{v} row_ror:8 row_mask:0xf bank_mask:0xf")
        A("v_lshlrev_b32 v3, 8, v3")
        A("v_lshl_add_u32 v3, v2, 5, v3")
        A(f"v_add_u32 v3, {SCR + 8192}, v3")
        A("v_and_b32 v2, 8, v1")
        A("v_cmp_eq_u32 vcc, 0, v2")
        A("s_and_b64 exec, exec, vcc")
        A(f"ds_write_b128 v3, v[{ACC[0]}:{ACC[3]}]")
        A(f"ds_write_b128 v3, v[{ACC[4]}:{ACC[7]}] offset:16")
        A("s_mov_b64 exec, -1")
        A("s_waitcnt lgkmcnt(0)")
        self.lds_inc(16, 58)
        A(f"s_cmp_lg_u32 s{W}, {col}")
        A(f"s_cbranch_scc1 .Lp3_gd{sfx}")
        self.lds_spin(f".Lp3_sp{sfx}", 16, 4, False, 58)
        A("v_lshlrev_b32 v2, 2, v1")
        A(f"v_add_u32 v3, {SCR + 8192}, v2")
        for k in range(16): A(f"ds_read_b32 v{64+k}, v3 offset:{k*256}")
        for k in range(8):
            A(f"s_waitcnt lgkmcnt({14-2*k})")
            A(f"v_add_f32 v{64+2*k}, v{64+2*k}, v{65+2*k}")
        for k in range(4): A(f"v_add_f32 v{64+4*k}, v{64+4*k}, v{66+4*k}")
        A("v_add_f32 v64, v64, v68")
        A("v_add_f32 v72, v72, v76")
        A("v_add_f32 v234, v64, v72")
        A("buffer_store_dword v234, v2, s[84:87], s59 offen sc1")
        A.label(f".Lp3_gd{sfx}")
    def p3_ln(self, b):
        A = self.A; KM = f"s{K1.S_MASK}"; XR = K1.V_S
        R = [(list(range(64 + 8 * r, 72 + 8 * r)), list(range(96 + 8 * r, 104 + 8 * r))) for r in range(4)]
        for r, (X, T) in enumerate(R):
            for j in range(4):
                A(f"v_lshlrev_b32 v{X[2*j]}, 16, v{XR+16*b+4*r+j}")
                A(f"v_and_b32 v{X[2*j+1]}, {KM}, v{XR+16*b+4*r+j}")
        ln_fast(A, R, KM, False)
        for r, (X, T) in enumerate(R): pack8(A, X, XR + 16 * b + 4 * r)
    def p3_nload(self):
        A = self.A
        A("v_mov_b32 v2, 0")
        A("s_mov_b64 exec, 1")
        A("buffer_load_dwordx2 v[232:233], v2, s[88:91], 0 offen sc1")
        A("s_mov_b64 exec, -1")
    def p3_xwait(self, sfx, n):
        A = self.A
        A("s_sub_u32 s4, s2, 64")
        A("s_cmp_lt_u32 s4, 120")
        A(f"s_cbranch_scc1 .Lp3_xw{sfx}")
        A(f"s_waitcnt vmcnt({n})")
        A.label(f".Lp3_xw{sfx}")
        A(f"s_waitcnt vmcnt({n + 8})")
    def p3_b(self, loader, cfix, xn_loads):
        A = self.A
        W = K1.S_WAVE; M_ = K1.S_M; KM = f"s{K1.S_MASK}"; SCR = K1.STG + 16384
        CW = 0; PW = 1
        WQL = int(os.environ.get('WQL', '0'))
        def nonce(sfx):
            A("s_mov_b32 s4, 0")
            A.label(f".Lp3_nl{sfx}")
            A("v_readfirstlane_b32 s100, v232")
            A("v_readfirstlane_b32 s101, v233")
            A("s_add_u32 s4, s4, 1")
            A("s_cmp_lg_u32 s100, 0")
            A(f"s_cbranch_scc1 .Lp3_nd{sfx}")
            A("s_cmp_lt_u32 s4, 0x40000")
            A(f"s_cbranch_scc0 .Lp3_nd{sfx}")
            self.p3_nload()
            A("s_waitcnt vmcnt(0)")
            A(f"s_branch .Lp3_nl{sfx}")
            A.label(f".Lp3_nd{sfx}")
            A("v_mov_b32 v232, s100")
            A("v_mov_b32 v233, s101")
            A(f"v_mov_b32 v2, {SCR}")
            A("ds_write_b64 v2, v[232:233]")
        if XS:
            A("s_add_u32 s4, s3, 4096")
            for i in range(4, 8):
                A(f"buffer_load_dwordx4 v[{K1.V_S+4*i}:{K1.V_S+4*i+3}], v12, s[88:91], s4 offen offset:{(i & 3) * 1024}")
            make_srd(A, 88, 6, 0, 256)
            A("s_mov_b32 s6, 0")
            A("s_mov_b32 s7, 0")
            A(f"s_cmp_gt_u32 s{W}, 1")
            A("s_cbranch_scc1 .Lp3_e1")
            self.p3_nload()
            A("s_mov_b32 s6, 1")
            A.label(".Lp3_e1")
            A("s_cmp_lt_u32 s2, 64")
            A("s_cbranch_scc1 .Lp3a_end")
            self.p3_wq("a")
            A(f"s_lshr_b32 s7, s{W}, 2")
            A("s_or_b32 s6, s6, s7")
            A.label(".Lp3a_end")
        self.pst(2)
        A("s_cmp_ge_u32 s2, 64")
        A("s_cbranch_scc1 .Lp3_nc")
        A(f"s_cmp_ge_u32 s{W}, 4")
        A("s_cbranch_scc1 .Lp3_ln0")
        A("s_waitcnt vmcnt(8)")
        self.pst(3)
        self.p3_gemv("a", 4, False, PW)
        self.pst(4)
        A.label(".Lp3_nc")
        A.label(".Lp3_ln0")
        assert XS
        A("s_cmp_lg_u32 s6, 0")
        A("s_cbranch_scc1 .Lp3_ln0a")
        A("s_waitcnt vmcnt(4)")
        A.label(".Lp3_ln0a")
        A("s_waitcnt vmcnt(5)")
        self.pst(5)
        self.p3_ln(0)
        self.pst(6)
        make_srd(A, 36, 68, FP, 32 * 1024)
        A("s_cmp_lg_u32 s7, 0")
        A("s_cbranch_scc1 .Lp3_ln1a")
        A("s_waitcnt vmcnt(0)")
        A.label(".Lp3_ln1a")
        A("s_waitcnt vmcnt(1)")
        A(f"s_cmp_gt_u32 s{W}, 1")
        A("s_cbranch_scc1 .Lp3_n1")
        nonce("a")
        A.label(".Lp3_n1")
        A("s_cmp_ge_u32 s2, 64")
        A("s_cbranch_scc1 .Lp3_n3")
        A(f"s_cmp_lg_u32 s{W}, {PW}")
        A("s_cbranch_scc1 .Lp3_n2")
        A("v_lshlrev_b32 v3, 10, v1")
        A("s_lshl_b32 s4, s2, 3")
        A("s_mov_b32 exec_hi, 0")
        A("buffer_store_dwordx2 v[232:233], v3, s[36:39], s4 offen sc1")
        A("s_mov_b64 exec, -1")
        self.pst(7)
        A.label(".Lp3_n2")
        if WQL == 0: self.p3_wq("b")
        A("s_branch .Lp3_n4")
        A.label(".Lp3_n3")
        A("s_cmp_ge_u32 s2, 184")
        A("s_cbranch_scc1 .Lp3_n4")
        A(f"s_cmp_ge_u32 s{W}, 4")
        A("s_cbranch_scc1 .Lp3_n4")
        A("s_mov_b32 s57, s70")
        A("s_mov_b32 s58, s71")
        self.p3_tload(8)
        A.label(".Lp3_n4")
        make_srd(A, 76, 68, FP, 32 * 1024)
        self.p3_ln(1)
        self.pst(8)
        if WQL:
            A("s_cmp_ge_u32 s2, 64")
            A("s_cbranch_scc1 .Lp3_n9")
            A(f"s_cmp_eq_u32 s{W}, {CW}")
            A("s_cbranch_scc1 .Lp3_n9")
            self.p3_wq("b")
            A.label(".Lp3_n9")
        A("s_sub_u32 s4, s2, 64")
        A("s_cmp_ge_u32 s4, 120")
        A("s_cbranch_scc1 .Lp3_n6")
        A(f"s_cmp_ge_u32 s{W}, 4")
        A("s_cbranch_scc1 .Lp3_n6")
        A("s_waitcnt vmcnt(0)")
        self.p3_gemv("b", 8, True, 1)
        A.label(".Lp3_n6")
        A(f"s_cmp_lg_u32 s{W}, {CW}")
        A("s_cbranch_scc1 .Lp3_n5")
        A(f"s_lshl_b32 s5, s{M_}, 10")
        A("v_lshlrev_b32 v3, 3, v1")
        self.poll64(".Lplm", [(3, 76, "s5")], cnt=4, slp=int(os.environ.get("PSLP", "0")))
        make_srd(A, 76, 68, WS_MOD, 4 * MODP)
        for i in range(4):
            for p in range(4):
                A(f"s_movk_i32 s4, {p * MODP}") if p * MODP < 32768 else A(f"s_mov_b32 s4, {p * MODP}")
                A(f"buffer_load_dwordx4 v[{64+16*i+4*p}:{67+16*i+4*p}], v12, s[76:79], s4 offen offset:{i*1024}")
        A.label(".Lp3_n5")
        self.pst(9)
        A(f"s_cmp_lg_u32 s{W}, {CW}")
        A("s_cbranch_scc1 .Lp3_n8")
        A(f"v_add_u32 v3, {SCR + 4096}, v12")
        for i in range(4):
            b = 64 + 16 * i
            A(f"s_waitcnt vmcnt({12 - 4*i})")
            pk(A, "v_pk_add_f32", b, b, b + 4); pk(A, "v_pk_add_f32", b + 2, b + 2, b + 6)
            pk(A, "v_pk_add_f32", b + 8, b + 8, b + 12); pk(A, "v_pk_add_f32", b + 10, b + 10, b + 14)
            pk(A, "v_pk_add_f32", b, b, b + 8); pk(A, "v_pk_add_f32", b + 2, b + 2, b + 10)
            round_multi(A, [b, b + 1, b + 2, b + 3], [b + 4, b + 5], KM)
            if i >= 2:
                for e in range(4): A(f"v_add_f32 v{b+e}, 1.0, v{b+e}")
                round_multi(A, [b, b + 1, b + 2, b + 3], [b + 4, b + 5], KM)
            A(f"ds_write_b128 v3, v[{b}:{b+3}] offset:{i*1024}")
        A("s_waitcnt lgkmcnt(0)")
        A.label(".Lp3_n8")
        A.label(".Lp3_Y")
        loader()
        A("s_barrier")
        self.pst(10)
        self.pst_flush()
        A(f"v_mov_b32 v2, {SCR}")
        A("ds_read_b64 v[2:3], v2")
        A("s_waitcnt lgkmcnt(0)")
        A("v_readfirstlane_b32 s100, v2")
        A("v_readfirstlane_b32 s101, v3")
    def w_setup(self, widx, K, rowbytes, woff_code):
        A = self.A
        make_srd(A, S_W, P_W + 2 * widx, 0, K * rowbytes)
        A(f"v_lshrrev_b32 v2, 3, v{L}")
        A(f"v_and_b32 v3, 7, v{L}")
        A(f"v_lshlrev_b32 v{V_W}, 1, v2")
        A(f"v_and_b32 v{V_W}, 4, v{V_W}")
        A(f"v_xor_b32 v3, v3, v{V_W}")
        A("v_lshlrev_b32 v3, 4, v3")
        A(f"v_mul_u32_u24 v2, {rowbytes}, v2") if rowbytes < 64 else None
        A(f"s_movk_i32 s{S_WOFF}, {rowbytes}")
        A(f"v_mul_lo_u32 v2, v2, s{S_WOFF}")
        A(f"v_add_u32 v{V_W}, v2, v3")
        woff_code()
        self.wrb = rowbytes
    def dmaW(self, st, ldsoff, tag="w"):
        A = self.A
        for i in range(2):
            A(f"s_add_u32 m0, s{S_RB}, {ldsoff + i * 1024}")
            A("s_nop 0")
            A(f"buffer_load_dwordx4 v{V_W}, s[{S_W}:{S_W+3}], s{S_WOFF} offen lds")
            self.vm.issue((tag, st))
            A(f"s_add_u32 s{S_WOFF}, s{S_WOFF}, {8 * self.wrb}")
    def pf_g64(self, widx, K, WB, DW, lo=0, hi=99, rot=0):
        A = self.A
        def woff():
            A(f"s_mul_i32 s{S_WOFF}, s{S_WAVE}, {(K // 4) * 1024}")
            A(f"s_lshl_b32 s{S_TMP+11}, s{S_J}, 7")
            A(f"s_add_u32 s{S_WOFF}, s{S_WOFF}, s{S_TMP+11}")
        if lo == 0: self.w_setup(widx, K, 1024, woff)
        self.wrb = 1024
        for st in range(lo, min(DW, hi)): self.dmaW(st, WB + ((st + rot) % DW) * 2048, "wn" if PFE == 3 else "w")
    def pf_k5(self, lo=0, hi=99):
        A = self.A
        def woff():
            A(f"s_min_u32 s{S_WOFF}, s{S_J}, 6")
            A(f"s_lshl_b32 s{S_WOFF}, s{S_WOFF}, 9")
            A(f"s_lshl_b32 s{S_TMP+11}, s{S_WAVE}, 7")
            A(f"s_add_u32 s{S_WOFF}, s{S_WOFF}, s{S_TMP+11}")
        if lo == 0: self.w_setup(2, 512, 3584, woff)
        self.wrb = 3584
        for st in range(lo, min(K5D, hi)): self.dmaW(st, K5RB + st * 2048, "wn" if PFE == 3 else "w")
    def l2pf(self, widx, size):
        A = self.A
        per = size // 32
        A("s_lshr_b32 s78, s2, 3")
        A(f"s_mul_i32 s78, s78, {per}")
        make_srd(A, 80, P_W + 2 * widx, "s78", per)
        A("v_and_b32 v2, 255, v0")
        A("v_lshlrev_b32 v2, 7, v2")
        n = (per + 32767) // 32768
        for i in range(n):
            A(f"s_mov_b32 s78, {i * 32768}")
            A("buffer_load_dword v3, v2, s[80:83], s78 offen")
        return n
    def persist(self):
        A = self.A
        A(f"s_load_dwordx2 s[{P_X}:{P_X+1}], s[0:1], 0")
        A(f"s_load_dwordx2 s[{P_OUT}:{P_OUT+1}], s[0:1], 96")
        A(f"s_load_dwordx2 s[{P_WS}:{P_WS+1}], s[0:1], 112")
        A(f"s_load_dwordx8 s[{P_W}:{P_W+7}], s[0:1], 48")
        A("v_and_b32 v1, 63, v0")
        A("v_lshrrev_b32 v2, 6, v0")
        A("s_nop 0")
        A(f"v_readfirstlane_b32 s{S_WAVE}, v2")
        A(f"s_and_b32 s{S_M}, s2, 31")
        A(f"s_lshr_b32 s{S_J}, s2, 5")
        A(f"s_mov_b32 s{S_MASK}, 0xffff0000")
        A(f"s_mul_i32 s{S_RB}, s{S_WAVE}, {RG}")
        A("s_waitcnt lgkmcnt(0)")
    def kr(self):
        A = self.A; vm = self.vm
        S_X = 8; S_MOD = 12; S_PT = 16; S_X2 = 20; S_H = 24; S_HN = 28; S_H1 = 36
        PR = 64; XR = 16; GA = 24; CB = 32; SB = 40
        A("v_lshlrev_b32 v9, 4, v1")
        A("v_lshlrev_b32 v10, 5, v1")
        A(f"s_lshl_b32 s3, s{S_M}, 3")
        A(f"s_add_u32 s3, s3, s{S_J}")
        A("s_lshl_b32 s3, s3, 3")
        A(f"s_add_u32 s3, s3, s{S_WAVE}")
        A("s_lshl_b32 s3, s3, 10")
        make_srd(A, S_X, P_X, 0, 2 * MB)
        make_srd(A, S_MOD, P_WS, WS_MOD, 4 * MODP)
        A(f"buffer_load_dwordx4 v[{XR}:{XR+3}], v9, s[{S_X}:{S_X+3}], s3 offen"); vm.issue("x")
        def modloads():
            for part in range(2 if V2 else 1):
                for (dst, idx) in ((CB, 4), (GA, 2), (SB, 3)):
                    d = dst + 88 * part
                    A(f"s_movk_i32 s{S_TMP}, {idx*2048 + part*MODP}")
                    A(f"buffer_load_dwordx4 v[{d}:{d+3}], v10, s[{S_MOD}:{S_MOD+3}], s{S_TMP} offen"); vm.issue("x")
                    A(f"buffer_load_dwordx4 v[{d+4}:{d+7}], v10, s[{S_MOD}:{S_MOD+3}], s{S_TMP} offen offset:16"); vm.issue("x")
        if W0M:
            A("v_add_u32 v2, 81920, v10")
            for q, off in enumerate((0, 16384, 49152)):
                A(f"ds_read_b128 v[{24+8*q}:{27+8*q}], v2 offset:{off}")
                A(f"ds_read_b128 v[{28+8*q}:{31+8*q}], v2 offset:{off+16}")
            A("s_waitcnt lgkmcnt(0)")
        else: modloads()
        make_srd(A, S_PT, P_WS, WS_PART, 8 * 2048 * 512 * 2)
        make_srd(A, S_X2, P_WS, WS_X2, 2 * MB)
        make_srd(A, S_H, P_WS, WS_H, 2 * MB)
        make_srd(A, S_HN, P_WS, WS_HN, 2 * MB)
        make_srd(A, S_H1, P_WS, WS_H1, 2052 * 1024)
        if HP:
            A(f"v_lshlrev_b32 v2, 2, v1")
            A(f"v_add_u32 v2, {CNT}, v2")
            A("v_mov_b32 v3, 0")
            A("ds_write_b32 v2, v3")
            A("s_waitcnt lgkmcnt(0)")
        A(f"s_cmp_ge_u32 s{S_WAVE}, 4")
        A("s_cbranch_scc1 .Lkr_nz2")
        A(f"s_lshr_b32 s{S_TMP}, s{S_WAVE}, 1")
        A(f"s_mul_i32 s{S_TMP}, s{S_TMP}, 31")
        A(f"s_cmp_lg_u32 s2, s{S_TMP}")
        A("s_cbranch_scc1 .Lkr_nz")
        A(f"s_lshl_b32 s{S_TMP}, s{S_WAVE}, 10")
        A(f"s_add_u32 s{S_TMP+1}, s{S_TMP}, {2048*1024}")
        A(f"s_cmp_lt_u32 s{S_WAVE}, 2")
        A(f"s_cselect_b32 s{S_TMP}, s{S_TMP}, s{S_TMP+1}")
        for j in range(4): A(f"v_mov_b32 v{12+j}, 0")
        A(f"buffer_store_dwordx4 v[12:15], v9, s[{S_H1}:{S_H1+3}], s{S_TMP} offen sc1")
        A.label(".Lkr_nz")
        PFW1 = int(os.environ.get("PFW1", "1"))
        if PRG:
            PFP = int(os.environ.get("PFP", "1"))
            if PFP == 0: self.pf_g64(0, 512, 24576, 8)
            PFW1 = 0
            A.label(".Lkr_nz2")
            A(f"s_mul_i32 s{S_TMP}, s{S_M}, {7 * 65536}")
            A(f"s_add_u32 s{S_TMP}, s{S_TMP}, s3")
            A(f"v_mov_b32 v4, {MSK}")
            A(f"s_mov_b32 s{S_TMP+1}, 0")
            A(f"s_cmp_lg_u32 s{S_WAVE}, 7")
            A("s_cbranch_scc1 .Lkr_lp")
            A("v_and_b32 v3, 7, v1")
            A("v_lshlrev_b32 v3, 3, v3")
            A("v_add_u32 v3, s96, v3")
            A("s_mov_b32 s99, 0")
            A.label(".Lkr_pp")
            A("buffer_load_dwordx2 v[248:249], v3, s[92:95], 0 offen sc1")
            A("s_add_u32 s99, s99, 1")
            A("s_waitcnt vmcnt(0)")
            A("v_xor_b32 v248, s100, v248")
            A("v_xor_b32 v249, s101, v249")
            A("v_or_b32 v248, v248, v249")
            A("v_cmp_eq_u32 vcc, 0, v248")
            A(f"s_and_b32 s{S_TMP+2}, vcc_lo, 0xff")
            A("s_cmp_lt_u32 s99, 0x40000")
            A(f"s_cselect_b32 s{S_TMP+2}, s{S_TMP+2}, 0xff")
            A(f"v_mov_b32 v5, s{S_TMP+2}")
            A("s_mov_b64 exec, 1")
            A("ds_or_b32 v4, v5")
            A("s_mov_b64 exec, -1")
            A(f"s_cmp_lg_u32 s{S_TMP+2}, 0xff")
            A("s_cbranch_scc1 .Lkr_pp")
            self.stamp(4)
            A.label(".Lkr_lp")
            A("ds_read_b32 v5, v4")
            A("s_waitcnt lgkmcnt(0)")
            A(f"v_readfirstlane_b32 s{S_TMP+2}, v5")
            A(f"s_andn2_b32 s{S_TMP+3}, s{S_TMP+2}, s{S_TMP+1}")
            A("s_cbranch_scc1 .Lkr_new")
            A("s_sleep 1")
            A("s_branch .Lkr_lp")
            A.label(".Lkr_new")
            for g in range(8):
                A(f"s_bitcmp1_b32 s{S_TMP+3}, {g}")
                A(f"s_cbranch_scc0 .Lkr_n{g}")
                A(f"s_add_u32 s{S_TMP+4}, s{S_TMP}, {g * 65536}")
                A(f"buffer_load_dwordx4 v[{PR+4*g}:{PR+4*g+3}], v9, s[{S_PT}:{S_PT+3}], s{S_TMP+4} offen")
                A.label(f".Lkr_n{g}")
            A(f"s_mov_b32 s{S_TMP+1}, s{S_TMP+2}")
            A(f"s_cmp_lg_u32 s{S_TMP+1}, 0xff")
            A("s_cbranch_scc1 .Lkr_lp")
            if PFP == 1:
                A(f"s_cmp_ge_u32 s{S_WAVE}, 4")
                A("s_cbranch_scc1 .Lkr_w0")
                self.pf_g64(0, 512, 24576, 8)
                A("s_waitcnt vmcnt(16)")
                A("s_branch .Lkr_w1")
                A.label(".Lkr_w0")
            A("s_waitcnt vmcnt(0)")
            if PFP == 1: A.label(".Lkr_w1")
            if PFP == 2: PFW1 = 2
            vm.ops = []
        else:
            sv = list(vm.ops)
            if PFW1 == 1: self.pf_g64(0, 512, 24576, 8)
            vm.ops = sv
            A.label(".Lkr_nz2")
            def rebuild():
                make_srd(A, S_PT, P_WS, WS_PART, 8 * 2048 * 512 * 2)
                make_srd(A, S_X2, P_WS, WS_X2, 2 * MB)
                make_srd(A, S_X, P_X, 0, 2 * MB)
                make_srd(A, S_MOD, P_WS, WS_MOD, 4 * MODP)
            self.poll(0, after=rebuild)
            A("s_barrier")
            self.stamp(4)
            PL = int(os.environ.get("PL", "1"))
            if PL:
                A(f"s_mul_i32 s{S_TMP}, s{S_M}, {7 * 65536}")
                A(f"s_add_u32 s{S_TMP}, s{S_TMP}, s3")
            else: A(f"s_mov_b32 s{S_TMP}, s3")
            for g in range(8):
                A(f"buffer_load_dwordx4 v[{PR+4*g}:{PR+4*g+3}], v9, s[{S_PT}:{S_PT+3}], s{S_TMP} offen {os.environ.get('PLF', '')}"); vm.issue(("p", g))
                if g < 7: A(f"s_add_u32 s{S_TMP}, s{S_TMP}, {65536 if PL else 2048*512*2}")
        X = list(range(48, 56)); T = list(range(PR, PR + 12)); XU = list(range(96, 104))
        if PFW1 == 3:
            def woff():
                A(f"s_and_b32 s{S_TMP+9}, s{S_WAVE}, 3")
                A(f"s_lshr_b32 s{S_TMP+8}, s{S_WAVE}, 2")
                A(f"s_lshl_b32 s{S_WOFF}, s{S_TMP+9}, 17")
                A(f"s_lshl_b32 s{S_TMP+11}, s{S_TMP+8}, 16")
                A(f"s_add_u32 s{S_WOFF}, s{S_WOFF}, s{S_TMP+11}")
                A(f"s_lshl_b32 s{S_TMP+11}, s{S_J}, 7")
                A(f"s_add_u32 s{S_WOFF}, s{S_WOFF}, s{S_TMP+11}")
                A(f"s_mov_b32 s{S_TMP+7}, s{S_RB}")
                A(f"s_mul_i32 s{S_RB}, s{S_TMP+9}, {RG}")
                A(f"s_lshl_b32 s{S_TMP+8}, s{S_TMP+8}, 13")
                A(f"s_add_u32 s{S_RB}, s{S_RB}, s{S_TMP+8}")
            self.w_setup(0, 512, 1024, woff)
            for st in range(4): self.dmaW(st, 24576 + st * 2048, "wn")
            A(f"s_mov_b32 s{S_RB}, s{S_TMP+7}")
        if int(os.environ.get("KRX", "0")):
            vm.wait(("p", 0)); self.stamp(25)
            vm.wait(("p", 7)); self.stamp(26)
        vm.wait("x")
        if V2 and not W0M:
            for j in range(0, 24, 2): pk(A, "v_pk_add_f32", GA + j, GA + j, GA + 88 + j)
            for q in range(3): round_multi(A, list(range(GA + 8*q, GA + 8*q + 8)), [56, 57, 58, 59], SM)
        if not W0M:
            for j in range(8): A(f"v_add_f32 v{CB+j}, 1.0, v{CB+j}")
            round_multi(A, list(range(CB, CB + 8)), [56, 57, 58, 59], SM)
        for j in range(4):
            A(f"v_lshlrev_b32 v{XU[2*j]}, 16, v{XR+j}")
            A(f"v_and_b32 v{XU[2*j+1]}, {SM}, v{XR+j}")
        for g in range(8):
            vm.wait(("p", g))
            if g == 0:
                for j in range(4):
                    A(f"v_lshlrev_b32 v{X[2*j]}, 16, v{PR+j}")
                    A(f"v_and_b32 v{X[2*j+1]}, {SM}, v{PR+j}")
            else:
                U = 136 + 8 * (g & 1)
                for j in range(4):
                    p = PR + 4 * g + j
                    A(f"v_lshlrev_b32 v{U+2*j}, 16, v{p}")
                    A(f"v_and_b32 v{U+2*j+1}, {SM}, v{p}")
                for j in range(0, 8, 2): pk(A, "v_pk_add_f32", X[j], X[j], U + j)
        self.stamp(23)
        if PFW1 == 2:
            A(f"s_cmp_ge_u32 s{S_WAVE}, 4")
            A("s_cbranch_scc1 .Lkr_nz3")
            self.pf_g64(0, 512, 24576, 8)
            A.label(".Lkr_nz3")
        round_multi(A, X, T[5:9], SM)
        for j in range(0, 8, 2): pk(A, "v_pk_mul_f32", X[j], X[j], GA + j)
        round_multi(A, X, T[5:9], SM)
        for j in range(0, 8, 2): pk(A, "v_pk_add_f32", X[j], X[j], XU[j])
        pack8(A, X, XR)
        A(f"buffer_store_dwordx4 v[{XR}:{XR+3}], v9, s[{S_X2}:{S_X2+3}], s3 offen sc1")
        for j in range(4):
            A(f"v_lshlrev_b32 v{X[2*j]}, 16, v{XR+j}")
            A(f"v_and_b32 v{X[2*j+1]}, {SM}, v{XR+j}")
        ln_rows(A, [(X, T)], SM)
        for j in range(0, 8, 2): pk(A, "v_pk_mul_f32", X[j], X[j], CB + j)
        round_multi(A, X, T[5:9], SM)
        for j in range(0, 8, 2): pk(A, "v_pk_add_f32", X[j], X[j], SB + j)
        pack8(A, X, 80)
        A(f"buffer_store_dwordx4 v[80:83], v9, s[{S_H}:{S_H+3}], s3 offen sc1")
        self.stamp(24)
        for j in range(4):
            A(f"v_lshlrev_b32 v{X[2*j]}, 16, v{80+j}")
            A(f"v_and_b32 v{X[2*j+1]}, {SM}, v{80+j}")
        ln_rows(A, [(X, T)], SM, False)
        pack8(A, X, 84)
        A(f"buffer_store_dwordx4 v[84:87], v9, s[{S_HN}:{S_HN+3}], s3 offen sc1")
    def g64(self, lab, stage, K, a_off, a_size, a_rb, epi, WB, DW, nbr, next_pf, own_pf=None, rot=0, nsched=None, l2=None, split=False):
        A = self.A; vm = self.vm; lg = self.lg
        S_G = 8; S_X1 = 16; S_X2 = 20; S_MOD = 24; S_O = 28; S_ST = 36
        KW = K // 4; NCH = KW // 64; NS = NCH * 4; DG = 3
        VG = [4, 5]; AA = 16; BA = 18
        X1 = 24; X2 = 32; GB = 40
        V_PW = 48; V_PR = 49; V_GA = 51; V_SA = 52; VC = (12, 14, 54)
        ACC = 64; FR = 128
        NBG = int(os.environ.get('NBG', '3'))
        half = HP and K == 512
        SW = S_R8 if half else S_WAVE
        CO = 16 * stage
        def tail_setup():
            if half:
                A(f"s_add_u32 s{S_R8}, s{S_WAVE}, 4")
                A(f"s_and_b32 s{S_R8}, s{S_R8}, 7")
                A(f"v_mov_b32 v{V_CT}, {CNT}")
            A(f"v_lshrrev_b32 v10, 3, v{L}")
            A(f"v_and_b32 v11, 7, v{L}")
            A(f"v_mul_u32_u24 v{V_PR}, {RS}, v10")
            A(f"v_lshl_add_u32 v{V_PR}, v11, 5, v{V_PR}")
            A(f"s_mul_i32 s{S_TMP+3}, s{SW}, {8*RS}")
            A(f"v_add_u32 v{V_PR}, s{S_TMP+3}, v{V_PR}")
            A(f"v_add_u32 v{V_PR+1}, {2*RG}, v{V_PR}")
            A(f"v_lshlrev_b32 v{V_GA}, 4, v11")
            A(f"v_lshl_add_u32 v{V_GA}, v10, 10, v{V_GA}")
            A(f"s_lshl_b32 s{S_TMP+2}, s{S_M}, 16")
            A(f"s_lshl_b32 s{S_TMP+3}, s{SW}, 13")
            A(f"s_add_u32 s{S_TMP+2}, s{S_TMP+2}, s{S_TMP+3}")
            A(f"s_lshl_b32 s{S_TMP+3}, s{S_J}, 7")
            A(f"s_add_u32 s{S_TMP+2}, s{S_TMP+2}, s{S_TMP+3}")
            if epi == "final":
                A(f"v_lshlrev_b32 v{V_SA}, 5, v11")
                make_srd(A, S_X1, P_WS, WS_X1, 2 * MB)
                make_srd(A, S_X2, P_WS, WS_X2, 2 * MB)
                make_srd(A, S_MOD, P_WS, WS_MOD, 4 * MODP)
                make_srd(A, S_O, P_OUT, 0, 2 * MB)
                A(f"buffer_load_dwordx4 v[{X1}:{X1+3}], v{V_GA}, s[{S_X1}:{S_X1+3}], s{S_TMP+2} offen"); vm.issue("e")
                A(f"buffer_load_dwordx4 v[{X2}:{X2+3}], v{V_GA}, s[{S_X2}:{S_X2+3}], s{S_TMP+2} offen"); vm.issue("e")
                A(f"s_lshl_b32 s{S_TMP+3}, s{S_J}, 8")
                A(f"s_add_u32 s{S_TMP+3}, s{S_TMP+3}, {5*2048}")
                for h4 in range(2):
                    A(f"buffer_load_dwordx4 v[{GB+4*h4}:{GB+4*h4+3}], v{V_SA}, s[{S_MOD}:{S_MOD+3}], s{S_TMP+3} offen offset:{h4*16}"); vm.issue("e")
                if V2:
                    A(f"s_add_u32 s{S_TMP+3}, s{S_TMP+3}, {MODP}")
                    for h4 in range(2):
                        A(f"buffer_load_dwordx4 v[{180+4*h4}:{183+4*h4}], v{V_SA}, s[{S_MOD}:{S_MOD+3}], s{S_TMP+3} offen offset:{h4*16}"); vm.issue("e")
            elif epi == "res":
                A(f"v_lshlrev_b32 v{V_SA}, 3, v10")
                A(f"s_lshl_b32 s{S_TMP+6}, s{S_M}, 9")
                A(f"s_lshl_b32 s{S_TMP+3}, s{SW}, 6")
                A(f"s_add_u32 s{S_TMP+6}, s{S_TMP+6}, s{S_TMP+3}")
                A(f"s_lshl_b32 s{S_TMP+3}, s{S_J}, 14")
                A(f"s_add_u32 s{S_TMP+6}, s{S_TMP+6}, s{S_TMP+3}")
                make_srd(A, S_X1, P_WS, WS_H, 2 * MB)
                make_srd(A, S_O, P_WS, WS_X1, 2 * MB)
                make_srd(A, S_ST, P_WS, WS_STAT, 2048 * 128)
                A(f"buffer_load_dwordx4 v[{X1}:{X1+3}], v{V_GA}, s[{S_X1}:{S_X1+3}], s{S_TMP+2} offen"); vm.issue("e")
            else:
                A(f"v_mov_b32 v{VC[0]}, {fhex(GK1)}")
                A(f"v_mov_b32 v{VC[1]}, {fhex(GK0)}")
                A(f"v_mov_b32 v{VC[2]}, 1.0")
                make_srd(A, S_O, P_WS, WS_H1 + 2048, 2 * MB)
        A(f"s_cmp_ge_u32 s{S_WAVE}, 4")
        A(f"s_cbranch_scc1 .L{lab}_help")
        if own_pf and PFE == 2: own_pf(NE, 99)
        A(f"v_lshrrev_b32 v7, 3, v{L}")
        A(f"v_and_b32 v8, 7, v{L}")
        A("v_lshrrev_b32 v9, 1, v7")
        A("v_xor_b32 v9, v8, v9")
        A(f"s_movk_i32 s{S_TMP}, {a_rb}")
        A(f"v_mul_lo_u32 v10, v7, s{S_TMP}")
        A(f"v_lshl_add_u32 v{VG[0]}, v9, 4, v10")
        A("v_xor_b32 v9, 4, v9")
        A(f"v_lshl_add_u32 v{VG[1]}, v9, 4, v10")
        A(f"s_mul_i32 s{S_GOFF}, s{S_M}, {64*a_rb}")
        A(f"s_mul_i32 s{S_TMP}, s{S_WAVE}, {KW*2}")
        A(f"s_add_u32 s{S_GOFF}, s{S_GOFF}, s{S_TMP}")
        if epi == "res":
            A(f"s_lshl_b32 s{S_TMP}, s{S_WAVE}, 2")
            A(f"s_lshr_b32 s{S_TMP+1}, 0x4031, s{S_TMP}")
            A(f"s_and_b32 s{S_TMP+1}, s{S_TMP+1}, 15")
            A(f"s_lshl_b32 s{S_TMP+1}, s{S_TMP+1}, 10")
            A(f"s_add_u32 s{S_GOFF}, s{S_GOFF}, s{S_TMP+1}")
        make_srd(A, S_G, P_WS, a_off, a_size)
        A(f"v_lshrrev_b32 v7, 5, v{L}")
        A(f"v_bfe_u32 v8, v{L}, 4, 1")
        A(f"v_bfe_u32 v9, v{L}, 2, 2")
        A(f"v_and_b32 v10, 1, v{L}")
        A(f"v_bfe_u32 v11, v{L}, 1, 1")
        A("v_lshl_or_b32 v10, v10, 1, v11")
        A("v_lshlrev_b32 v10, 3, v10")
        A("v_lshl_add_u32 v10, v8, 5, v10")
        A("v_lshl_add_u32 v11, v7, 3, v9")
        A("v_lshrrev_b32 v12, 1, v9")
        for nb in range(2):
            A(f"v_xor_b32 v13, {nb}, v12")
            A("v_lshl_add_u32 v13, v13, 6, v10")
            A("v_lshl_add_u32 v13, v11, 7, v13")
            A(f"v_add_u32 v{AA+nb}, s{S_RB}, v13")
        A(f"v_and_b32 v8, 31, v{L}")
        A("v_bfe_u32 v9, v8, 1, 3")
        for ks in range(4):
            A(f"v_or_b32 v10, {2*ks}, v7")
            A("v_xor_b32 v10, v10, v9")
            A("v_lshlrev_b32 v10, 4, v10")
            A("v_lshl_add_u32 v10, v8, 7, v10")
            A(f"v_add_u32 v{BA+ks}, s{S_RB}, v10")
        A(f"v_mul_u32_u24 v{V_PW}, {RS}, v8")
        A(f"v_lshl_add_u32 v{V_PW}, v7, 5, v{V_PW}")
        A(f"v_add_u32 v{V_PW}, s{S_RB}, v{V_PW}")
        tail_setup()
        A("s_barrier")
        self.stamp(1 + 4 * stage + 3)
        def dmaG(ch):
            base = (ch % DG) * 8192
            for i in range(8):
                A(f"s_add_u32 m0, s{S_RB}, {base + i * 1024}")
                A(f"s_add_u32 s{S_TMP}, s{S_GOFF}, {i * 8 * a_rb + ch * 128}")
                A(f"buffer_load_dwordx4 v{VG[i & 1]}, s[{S_G}:{S_G+3}], s{S_TMP} offen lds")
                vm.issue(("g", ch))
        if half:
            HB = 32 * RS
            def dmaGh(h, ch):
                for i in range(4):
                    A(f"s_add_u32 m0, s{S_RB}, {h * HB + ch * 4096 + i * 1024}")
                    A(f"s_add_u32 s{S_TMP}, s{S_GOFF}, {(4 * h + i) * 8 * a_rb + ch * 128}")
                    A(f"buffer_load_dwordx4 v{VG[i & 1]}, s[{S_G}:{S_G+3}], s{S_TMP} offen lds")
                    vm.issue(("g", h, ch))
            WF = 128; BFR = 192
            def readsh(h, step):
                ch, ks = step // 4, step % 4
                if h == 0:
                    for nb in range(2):
                        for q in range(2):
                            d = WF + step * 8 + nb * 4 + q * 2
                            A(f"ds_read_b64_tr_b16 v[{d}:{d+1}], v{AA+nb} offset:{WB + step * 2048 + q * 512}")
                            lg.issue(("f", step))
                d = BFR + step * 4
                A(f"ds_read_b128 v[{d}:{d+3}], v{BA+ks} offset:{h * HB + ch * 4096}")
                lg.issue(("f", step))
            dmaGh(0, 0); dmaGh(0, 1)
            if not split: dmaGh(1, 0); dmaGh(1, 1)
            for h in range(2):
                if h == 1 and split:
                    self.lds_spin(f".L{lab}_rb", 12, 1, False, V_CT)
                    dmaGh(1, 0); dmaGh(1, 1)
                PD = 2 if h == 0 else 4
                for s0 in range(PD):
                    vm.wait(("g", h, 0)); readsh(h, s0)
                for st in range(8):
                    lg.wait(("f", st))
                    with Cap(A) as cp:
                        if st + PD < 8:
                            vm.wait(("g", h, (st + PD) // 4)); readsh(h, st + PD)
                        if h == HPH and nsched and st in nsched: next_pf(*nsched[st])
                    mf = []
                    for nb in range(2):
                        acc = ACC + (nb * 2 + h) * 16
                        c = "0" if st == 0 else f"v[{acc}:{acc+15}]"
                        mf.append(f"v_mfma_f32_32x32x16_bf16 v[{acc}:{acc+15}], v[{WF+st*8+nb*4}:{WF+st*8+nb*4+3}], v[{BFR+st*4}:{BFR+st*4+3}], {c}")
                    interleave(A, mf, cp.out)
                A("s_nop 7")
                A("s_nop 3")
                for nb in range(2):
                    tl = nb * 2 + h
                    for r4 in range(4):
                        A(f"ds_write_b128 v{V_PW}, v[{ACC+tl*16+r4*4}:{ACC+tl*16+r4*4+3}] offset:{h*HB + (nb*8 + (r4 >> 1)*4 + (r4 & 1))*16}")
                A("s_waitcnt lgkmcnt(0)")
                self.lds_inc(CO + 4 * h, V_CT)
                if h == 0 and HPH == 2 and nsched:
                    for st in range(8): next_pf(*nsched[st])
            vm.wait("e")
            self.lds_spin(f".L{lab}_sb", CO + 4, 4, False, V_CT)
            A(f"s_branch .L{lab}_join")
        else:
            for ch in range(min(DG, NCH)): dmaG(ch)
            def reads(step):
                ch, ks = step // 4, step % 4
                buf = FR + (step % NBG) * 16
                for nb in range(2):
                    for q in range(2):
                        A(f"ds_read_b64_tr_b16 v[{buf+nb*4+q*2}:{buf+nb*4+q*2+1}], v{AA+nb} offset:{WB + ((step + rot) % DW) * 2048 + q * 512}")
                        lg.issue(("f", step))
                for rb in range(2):
                    A(f"ds_read_b128 v[{buf+8+rb*4}:{buf+8+rb*4+3}], v{BA+ks} offset:{(ch % DG) * 8192 + rb * 4096}")
                    lg.issue(("f", step))
            def need(step):
                vm.wait(("w", step)); vm.wait(("g", step // 4))
            for s0 in range(NBG - 1):
                need(s0); reads(s0)
            for st in range(NS):
                lg.wait(("f", st))
                with Cap(A) as cp:
                    if st + DW < NS: self.dmaW(st + DW, WB + ((st + rot) % DW) * 2048)
                    if st % 4 == 3 and st // 4 + DG < NCH: dmaG(st // 4 + DG)
                    if st + NBG - 1 < NS:
                        need(st + NBG - 1); reads(st + NBG - 1)
                    if st + DW >= NS and PFE == 3 and nsched and st in nsched: next_pf(*nsched[st])
                buf = FR + (st % NBG) * 16
                mf = []
                for nb in range(2):
                    for rb in range(2):
                        acc = ACC + (nb * 2 + rb) * 16
                        c = "0" if st == 0 else f"v[{acc}:{acc+15}]"
                        mf.append(f"v_mfma_f32_32x32x16_bf16 v[{acc}:{acc+15}], v[{buf+nb*4}:{buf+nb*4+3}], v[{buf+8+rb*4}:{buf+8+rb*4+3}], {c}")
                interleave(A, mf, cp.out)
            vm.wait("e")
            if not int(os.environ.get("KRX", "0")): self.stamp({1: 25, 2: 26, 4: 27}[stage])
            A("s_nop 7")
            A("s_nop 1")
            for tl in range(4):
                nb, rb = tl >> 1, tl & 1
                for r4 in range(4):
                    A(f"ds_write_b128 v{V_PW}, v[{ACC+tl*16+r4*4}:{ACC+tl*16+r4*4+3}] offset:{rb*32*RS + (nb*8 + (r4 >> 1)*4 + (r4 & 1))*16}")
                if tl == 1: A("s_waitcnt lgkmcnt(0)")
            if next_pf and PFE == 1: next_pf()
            A("s_waitcnt lgkmcnt(0)")
            A(f"s_branch .L{lab}_join")
        A.label(f".L{lab}_help")
        sv = list(vm.ops)
        tail_setup()
        vm.ops = sv
        self.poll(stage, nbr)
        A("s_barrier")
        self.stamp(1 + 4 * stage + 3)
        n = sum(self.l2pf(*x) for x in l2) if l2 else 0
        A(f"s_waitcnt vmcnt({n})")
        if half: self.lds_spin(f".L{lab}_sa", CO, 4, True, V_CT)
        A.label(f".L{lab}_join")
        if not half: A("s_barrier")
        for p in range(4):
            for h in range(2):
                d = ACC + p * 16 + h * 4
                A(f"ds_read_b128 v[{d}:{d+3}], v{V_PR + (p >> 1)} offset:{(p & 1)*RG + h*16}")
        xs = list(range(ACC, ACC + 8)); tp = list(range(72, 80)); t8 = list(range(88, 96))
        b = ACC
        def unpack(src, dst):
            for k in range(4):
                A(f"v_lshlrev_b32 v{dst[2*k]}, 16, v{src+k}")
                A(f"v_and_b32 v{dst[2*k+1]}, {SM}, v{src+k}")
        if epi != "gelu": unpack(X1, tp)
        if epi == "final":
            unpack(X2, list(range(104, 112)))
            if V2:
                for k in range(0, 8, 2): pk(A, "v_pk_add_f32", GB + k, GB + k, 180 + k)
                round_multi(A, list(range(GB, GB + 8)), t8, SM)
        A("s_waitcnt lgkmcnt(4)")
        for e in range(0, 8, 2): pk(A, "v_pk_add_f32", b + e, b + e, b + 16 + e)
        A("s_waitcnt lgkmcnt(0)")
        for e in range(0, 8, 2): pk(A, "v_pk_add_f32", b + 32 + e, b + 32 + e, b + 48 + e)
        for e in range(0, 8, 2): pk(A, "v_pk_add_f32", b + e, b + e, b + 32 + e)
        round_multi(A, xs, t8, SM)
        def store():
            for k in range(4): A(f"v_cvt_pk_bf16_f32 v{56+k}, v{xs[2*k]}, v{xs[2*k+1]}")
            A(f"buffer_store_dwordx4 v[56:59], v{V_GA}, s[{S_O}:{S_O+3}], s{S_TMP+2} offen sc1")
        if epi == "gelu":
            X = xs; T = tp
            for e in range(0, 8, 2): pk(A, "v_pk_mul_f32", T[e], X[e], X[e])
            for e in range(0, 8, 2): pk(A, "v_pk_fma_f32", T[e], T[e], VC[0], VC[1], "op_sel_hi:[1,0,0]")
            for e in range(0, 8, 2): pk(A, "v_pk_mul_f32", T[e], T[e], X[e])
            for e in range(8): A(f"v_exp_f32 v{T[e]}, v{T[e]}")
            for e in range(0, 8, 2): pk(A, "v_pk_add_f32", T[e], T[e], VC[2], None, "op_sel_hi:[1,0]")
            for e in range(8): A(f"v_rcp_f32 v{T[e]}, v{T[e]}")
            A("s_nop 0")
            for e in range(0, 8, 2): pk(A, "v_pk_mul_f32", X[e], X[e], T[e])
            store()
        elif epi == "res":
            for k in range(0, 8, 2): pk(A, "v_pk_add_f32", xs[k], xs[k], tp[k])
            store()
            unpack(56, xs)
            X = xs
            pk(A, "v_pk_mul_f32", tp[0], X[0], X[0])
            pk(A, "v_pk_add_f32", tp[2], X[0], X[2])
            for e in range(2, 8, 2):
                pk(A, "v_pk_fma_f32", tp[0], X[e], X[e], tp[0])
                if e >= 4: pk(A, "v_pk_add_f32", tp[2], tp[2], X[e])
            A(f"v_add_f32 v20, v{tp[2]}, v{tp[3]}")
            A(f"v_add_f32 v21, v{tp[0]}, v{tp[1]}")
            A("s_nop 1")
            for dpp in ("quad_perm:[1,0,3,2]", "quad_perm:[2,3,0,1]", "row_half_mirror"):
                for v in (20, 21):
                    A(f"v_add_f32_dpp v{v}, v{v}, v{v} {dpp} row_mask:0xf bank_mask:0xf")
                A("s_nop 1")
            A("v_and_b32 v10, 7, v1")
            A("v_cmp_eq_u32 vcc, 0, v10")
            A("s_and_saveexec_b64 s[78:79], vcc")
            A(f"buffer_store_dwordx2 v[20:21], v{V_SA}, s[{S_ST}:{S_ST+3}], s{S_TMP+6} offen sc1")
            A("s_mov_b64 exec, s[78:79]")
        else:
            for k in range(0, 8, 2): pk(A, "v_pk_add_f32", xs[k], xs[k], tp[k])
            round_multi(A, xs, t8, SM)
            for k in range(0, 8, 2): pk(A, "v_pk_mul_f32", xs[k], xs[k], GB + k)
            round_multi(A, xs, t8, SM)
            for k in range(0, 8, 2): pk(A, "v_pk_add_f32", xs[k], xs[k], 104 + k)
            store()
    def k5(self, stage, next_pf, own_pf=None):
        A = self.A; vm = self.vm; lg = self.lg
        S_A = 8; S_O = 20; S_ST = 24; S_CS = 28
        VB = [16, 28]; AA = 24; ACC = 64; FQ = 128
        D = K5D
        NB5 = int(os.environ.get('NB5', '3'))
        A(f"s_cmp_lt_u32 s{S_WAVE}, 4")
        A("s_cbranch_scc1 .Lk5_main")
        A(f"s_cmp_eq_u32 s{S_J}, 7")
        A("s_cbranch_scc1 .Lk5_h7")
        self.poll(stage)
        A("s_barrier")
        A("s_barrier")
        A.label(".Lk5_h7")
        if L2PF & 4: self.l2pf(3, 1792 * 1024)
        A("s_branch .Lk5_end")
        A.label(".Lk5_main")
        A(f"s_cmp_eq_u32 s{S_J}, 7")
        A("s_cbranch_scc1 .Lk5_pf")
        if own_pf and PFE == 2: own_pf(NE, 99)
        make_srd(A, S_A, P_WS, WS_X1, 2 * MB)
        make_srd(A, S_ST, P_WS, WS_STAT, 2048 * 128)
        make_srd(A, S_CS, P_WS, WS_CS, 2 * CSP)
        make_srd(A, S_O, P_WS, WS_G, 2048 * 3584)
        A(f"v_lshlrev_b32 v4, 4, v{L}")
        A(f"s_lshl_b32 s{S_TMP}, s{S_M}, 16")
        A(f"s_lshl_b32 s{S_TMP+1}, s{S_WAVE}, 14")
        A(f"s_add_u32 s{S_TMP}, s{S_TMP}, s{S_TMP+1}")
        A(f"s_lshl_b32 s{S_TMP+6}, s{S_J}, 9")
        A(f"s_lshl_b32 s{S_TMP+2}, s{S_WAVE}, 7")
        A(f"s_add_u32 s{S_TMP+6}, s{S_TMP+6}, s{S_TMP+2}")
        A(f"v_lshrrev_b32 v5, 5, v{L}")
        A(f"v_bfe_u32 v7, v{L}, 4, 1")
        A(f"v_bfe_u32 v8, v{L}, 2, 2")
        A(f"v_and_b32 v9, 1, v{L}")
        A(f"v_bfe_u32 v10, v{L}, 1, 1")
        A("v_lshl_or_b32 v9, v9, 1, v10")
        A("v_lshlrev_b32 v9, 3, v9")
        A("v_lshl_add_u32 v9, v7, 5, v9")
        A("v_lshl_add_u32 v10, v5, 3, v8")
        A("v_lshrrev_b32 v11, 1, v8")
        for nb in range(2):
            A(f"v_xor_b32 v12, {nb}, v11")
            A("v_lshl_add_u32 v12, v12, 6, v9")
            A("v_lshl_add_u32 v12, v10, 7, v12")
            A(f"v_add_u32 v{AA+nb}, s{S_RB}, v12")
        A(f"v_and_b32 v13, 31, v{L}")
        A("v_lshrrev_b32 v7, 4, v13")
        A(f"v_mul_u32_u24 v7, {RG // 1024}, v7")
        A("v_and_b32 v8, 15, v13")
        A("v_add_u32 v7, v7, v8")
        for j in range(8):
            A(f"v_or_b32 v8, {2*j}, v5")
            A("v_xor_b32 v8, v8, v13")
            A("v_and_b32 v8, 15, v8")
            A("v_lshlrev_b32 v8, 4, v8")
            A(f"v_lshl_add_u32 v{VB[0]+j}, v7, 10, v8")
            A(f"v_add_u32 v{VB[1]+j}, {2*RG}, v{VB[0]+j}")
        ST = 192; CS = 224
        A("v_lshlrev_b32 v42, 5, v5")
        C2 = [176, 184, 200, 216]
        def csloads():
            A(f"s_lshl_b32 s{S_TMP+2}, s{S_TMP+6}, 1")
            for part in range(2 if V2 else 1):
                for q in range(4):
                    for h4 in range(2):
                        d = (CS + q * 8 if part == 0 else C2[q]) + 4 * h4
                        A(f"buffer_load_dwordx4 v[{d}:{d+3}], v42, s[{S_CS}:{S_CS+3}], s{S_TMP+2} offen offset:{(16*q+4*h4)*4}"); vm.issue("st")
                A(f"s_add_u32 s{S_TMP+2}, s{S_TMP+2}, {CSP}")
        VS = 36
        A("v_and_b32 v7, 7, v13")
        A(f"s_add_u32 s{S_TMP+3}, s{S_RB}, {K5RB}")
        for j in range(4):
            A(f"v_or_b32 v14, {2*j}, v5")
            A("v_xor_b32 v14, v14, v7")
            A("v_lshlrev_b32 v14, 4, v14")
            A("v_lshl_add_u32 v14, v13, 7, v14")
            A(f"v_add_u32 v{VS+j}, s{S_TMP+3}, v14")
        A(f"v_lshrrev_b32 v7, 3, v{L}")
        A(f"v_and_b32 v14, 7, v{L}")
        A(f"v_xor_b32 v{VS+4}, v14, v7")
        A(f"v_lshlrev_b32 v{VS+4}, 4, v{VS+4}")
        A(f"v_lshl_add_u32 v{VS+4}, v7, 7, v{VS+4}")
        A(f"v_add_u32 v{VS+4}, s{S_TMP+3}, v{VS+4}")
        A(f"s_movk_i32 s{S_TMP+2}, 3584")
        A(f"v_mul_lo_u32 v7, v7, s{S_TMP+2}")
        A(f"v_lshl_add_u32 v{VS+5}, v14, 4, v7")
        A(f"s_mul_i32 s{S_TMP+4}, s{S_M}, {64*3584}")
        A(f"s_add_u32 s{S_TMP+4}, s{S_TMP+4}, s{S_TMP+6}")
        A(f"s_add_u32 s{S_TMP+5}, s{S_TMP+4}, {32*3584}")
        A("v_lshlrev_b32 v7, 3, v13")
        A("v_lshl_add_u32 v7, v5, 16, v7")
        A(f"s_lshl_b32 s{S_TMP+7}, s{S_M}, 9")
        A("s_barrier")
        self.stamp(1 + 4 * stage + 3)
        for i in range(16):
            t = 8 + (i & 1)
            A(f"v_xor_b32 v{t}, {i << 4}, v4")
            A(f"s_add_u32 m0, s{S_RB}, {i * 1024}")
            A(f"s_add_u32 s{S_TMP+2}, s{S_TMP}, {i * 1024}")
            A(f"buffer_load_dwordx4 v{t}, s[{S_A}:{S_A+3}], s{S_TMP+2} offen lds")
            vm.issue("act")
        for q in range(4):
            A(f"s_add_u32 s{S_TMP+3}, s{S_TMP+7}, {q*16384}")
            for rb in range(2):
                A(f"buffer_load_dwordx2 v[{ST+16*rb+2*q}:{ST+16*rb+2*q+1}], v7, s[{S_ST}:{S_ST+3}], s{S_TMP+3} offen offset:{rb*256}"); vm.issue("st")
        vm.wait("act")
        A("s_barrier")
        self.stamp(29)
        def reads(step):
            buf = FQ + (step % NB5) * 16
            for nb in range(2):
                for q in range(2):
                    A(f"ds_read_b64_tr_b16 v[{buf+nb*4+q*2}:{buf+nb*4+q*2+1}], v{AA+nb} offset:{K5RB + (step % D) * 2048 + q * 512}")
                    lg.issue(("f", step))
            for rb in range(2):
                A(f"ds_read_b128 v[{buf+8+rb*4}:{buf+8+rb*4+3}], v{VB[rb] + (step & 7)} offset:{(step >> 3) * 256}")
                lg.issue(("f", step))
        PKC = [[44, 46, 48, 50], [52, 54, 56, 58]]
        E = []
        for stg in range(17):
            for rb in range(2):
                b = ST + 16 * rb; c = PKC[rb]
                E.append([f"v_add_f32 v{b}, v{b}, v{b+2}", f"v_add_f32 v{b+1}, v{b+1}, v{b+3}",
                          f"v_add_f32 v{b+4}, v{b+4}, v{b+6}", f"v_add_f32 v{b+5}, v{b+5}, v{b+7}",
                          f"v_add_f32 v{b}, v{b}, v{b+4}", f"v_add_f32 v{b+1}, v{b+1}, v{b+5}",
                          f"v_mov_b32 v{b+2}, v{b}", f"v_mov_b32 v{b+3}, v{b+1}", "s_nop 1",
                          f"v_permlane32_swap_b32 v{b}, v{b+2}", f"v_permlane32_swap_b32 v{b+1}, v{b+3}", "s_nop 1",
                          f"v_add_f32 v{b}, v{b}, v{b+2}", f"v_add_f32 v{b+1}, v{b+1}, v{b+3}",
                          f"v_mul_f32 v{c[0]}, {fhex(-1/512)}, v{b}", f"v_mul_f32 v{b+1}, {fhex(1/512)}, v{b+1}",
                          f"v_fma_f32 v{b+1}, -v{c[0]}, v{c[0]}, v{b+1}"][stg])
        for stg in range(9):
            for rb in range(2):
                b = ST + 16 * rb; c = PKC[rb]
                E.append([f"v_max_f32 v{b+1}, 0, v{b+1}", f"v_add_f32 v{b+1}, {fhex(1e-5)}, v{b+1}",
                          f"v_rsq_f32 v{b+2}, v{b+1}", f"v_sqrt_f32 v{c[3]}, v{b+1}", "s_nop 0",
                          f"v_mul_f32 v{c[2]}, {fhex(GK0)}, v{b+2}", f"v_mul_f32 v{c[1]}, v{b+2}, v{b+2}",
                          f"v_mul_f32 v{c[1]}, v{c[1]}, v{b+2}", f"v_mul_f32 v{c[1]}, {fhex(GK1)}, v{c[1]}"][stg])
        if V2:
            for q in range(4):
                for e in range(8): E.append(f"v_add_f32 v{CS+8*q+e}, v{CS+8*q+e}, v{C2[q]+e}")
        for s0 in range(NB5 - 1):
            vm.wait(("w", s0)); reads(s0)
        k = 0
        for ks in range(32):
            lg.wait(("f", ks))
            with Cap(A) as cp:
                if ks + NB5 - 1 < 32:
                    vm.wait(("w", ks + NB5 - 1)); reads(ks + NB5 - 1)
                if ks + D < 32: self.dmaW(ks + D, K5RB + (ks % D) * 2048)
                elif PFE == 3 and ks == 21: next_pf(0, 1)
                elif PFE == 3 and ks >= 26: next_pf(ks - 25, ks - 24)
                if ks == 1: csloads()
                if 14 <= ks < 28:
                    if ks == 14: vm.wait("st")
                    upto = len(E) * (ks - 13) // 14
                    while k < upto: A(E[k]); k += 1
            buf = FQ + (ks % NB5) * 16
            mf = []
            for nb in range(2):
                for rb in range(2):
                    acc = ACC + (nb * 2 + rb) * 16
                    c = "0" if ks == 0 else f"v[{acc}:{acc+15}]"
                    mf.append(f"v_mfma_f32_32x32x16_bf16 v[{acc}:{acc+15}], v[{buf+nb*4}:{buf+nb*4+3}], v[{buf+8+rb*4}:{buf+8+rb*4+3}], {c}")
            interleave(A, mf, cp.out)
        self.stamp(28)
        if PFE == 1: next_pf()
        else:
            A("s_nop 7"); A("s_nop 3")
        def flush5(rb):
            A("s_waitcnt lgkmcnt(0)")
            for i in range(4):
                A(f"ds_read_b128 v[{192+16*rb+4*i}:{192+16*rb+4*i+3}], v{VS+4} offset:{rb*4096 + i*1024}")
        def store5(rb):
            for i in range(4):
                if rb == 1: A(f"s_waitcnt lgkmcnt({3-i})")
                A(f"s_add_u32 s{S_TMP+3}, s{S_TMP+4+rb}, {i*8*3584}")
                A(f"buffer_store_dwordx4 v[{192+16*rb+4*i}:{192+16*rb+4*i+3}], v{VS+5}, s[{S_O}:{S_O+3}], s{S_TMP+3} offen sc1")
        for rb in range(2):
            for nb in range(2):
                acc = ACC + (nb * 2 + rb) * 16
                if rb == 1 and nb == 1:
                    A("s_waitcnt lgkmcnt(2)")
                    store5(0)
                for mp in range(2):
                    d = 160 + (nb * 4 + rb * 2 + mp) * 4
                    xs = [acc + 8 * mp + e for e in range(8)]
                    ts = list(range(128, 136)); cs = CS + (nb * 2 + mp) * 8; c = PKC[rb]
                    for e in range(0, 8, 2): pk(A, "v_pk_fma_f32", xs[e], cs + e, c[0], xs[e], "op_sel_hi:[1,0,1]")
                    for e in range(0, 8, 2): pk(A, "v_pk_mul_f32", ts[e], xs[e], xs[e])
                    for e in range(0, 8, 2): pk(A, "v_pk_fma_f32", ts[e], ts[e], c[1], c[2], "op_sel_hi:[1,0,0]")
                    for e in range(0, 8, 2): pk(A, "v_pk_mul_f32", ts[e], ts[e], xs[e])
                    for t in ts: A(f"v_exp_f32 v{t}, v{t}")
                    for e in range(0, 8, 2): pk(A, "v_pk_fma_f32", ts[e], ts[e], c[3], c[3], "op_sel_hi:[1,0,0]")
                    for t in ts: A(f"v_rcp_f32 v{t}, v{t}")
                    A("s_nop 0")
                    for e in range(0, 8, 2): pk(A, "v_pk_mul_f32", xs[e], xs[e], ts[e])
                    for e in range(0, 8, 2): A(f"v_cvt_pk_bf16_f32 v{d+e//2}, v{xs[e]}, v{xs[e+1]}")
                    A(f"ds_write_b128 v{VS+2*nb+mp}, v[{d}:{d+3}] offset:{rb*4096}")
            flush5(rb)
        store5(1)
        A("s_branch .Lk5_end")
        A.label(".Lk5_pf")
        if PFE in (1, 3): next_pf(alt=True)
        A.label(".Lk5_end")

def gen_km(A):
    name = "k1_kernel"
    M = Mega(A)
    def pre():
        if MT or HD:
            M.persist(); M.stamp(0); M.vm.ops = []
        if ONE: M.pro_pre()
    if V3: K1.gen_k1(A, emb=True, pre=pre, hookA=M.p3_a, hookB=M.p3_b, v2=True, hookC=M.p2_c)
    elif V2: K1.gen_k1(A, emb=True, pre=pre, hookA=M.p2_a, hookB=M.p2_b, v2=True, hookC=M.p2_c)
    elif ONE: K1.gen_k1(A, emb=True, pre=pre, hookA=M.pro_a, hookB=M.pro_b)
    else: K1.gen_k1(A, emb=True, pre=pre)
    M.persist()
    M.transition(0)
    M.kr()
    M.transition(1)
    pf4 = lambda lo=0, hi=99: M.pf_g64(1, 512, 24576, 8, lo, hi)
    pf6 = lambda lo=0, hi=99, alt=False: M.pf_g64(3, 1792, 26624, 7, lo, hi, 6)
    M.g64("k3", 1, 512, WS_HN, 2 * MB, 1024, "gelu", 24576, 8, False, pf4, None, 0, {st: (st, st + 1) for st in range(8)}, [(2, 1792 * 1024)] if L2PF & 1 else None)
    M.transition(2, pf4)
    M.g64("k4", 2, 512, WS_H1, 2052 * 1024, 1024, "res", 24576, 8, True, M.pf_k5, pf4, 0, {st: ((0, 4) if st == 0 else (st + 3, st + 4)) for st in range(8)}, [(3, 1792 * 1024)] if L2PF & 2 else None)
    M.transition(3, M.pf_k5)
    M.k5(3, pf6, M.pf_k5)
    M.transition(4, pf6)
    M.g64("k6", 4, 1792, WS_G, 2048 * 3584, 3584, "final", 26624, 7, False, None, pf6, 6)
    M.stamp(21)
    if MT or HD: A("s_waitcnt vmcnt(0)")
    M.stamp(22)
    A("s_endpgm")
    A.raw(kernel_desc(name, 256, 102, 256))
    return (name, (256, 1, 1), (512, 1, 1), 163840)
```

```python
from asmlib import *
from gen_k0 import *
import os
DEBUG = int(os.environ.get("K1DEBUG", "0"))
PART_BF16 = int(os.environ.get("PARTBF16", "1"))
MIMIC = int(os.environ.get("MIMIC", "0"))
LAZY = int(os.environ.get("LAZY", "1"))
THR = float(os.environ.get("THR","30.0"))
TIMING = int(os.environ.get("TIMING", "0"))
USEPK = int(os.environ.get("USEPK", "0"))
EXPT = int(os.environ.get("EXPT", "0"))
NOMAX = int(os.environ.get("NOMAX", "0"))
DOT2 = int(os.environ.get("DOT2", "0"))

class Cnt:
    def __init__(self, A, name, maxv):
        self.A = A; self.name = name; self.maxv = maxv; self.ops = []
    def issue(self, tag):
        self.ops.append(tag)
        assert len(self.ops) <= self.maxv + 1 or self.name == "vmcnt", (self.name, len(self.ops))
    def wait(self, tag):
        idx = None
        for i, t in enumerate(self.ops):
            if t == tag: idx = i
        if idx is None:
            return
        n = len(self.ops) - 1 - idx
        assert n <= self.maxv, (self.name, n)
        self.A(f"s_waitcnt {self.name}({n})")
        self.ops = self.ops[idx+1:]
    def waitall(self):
        self.A(f"s_waitcnt {self.name}(0)")
        self.ops = []

class Stamper:
    def __init__(self, A, lg, srd, swave, base=72):
        self.A = A; self.lg = lg; self.n = 0; self.srd = srd; self.swave = swave; self.base = base
    def __call__(self, real=False):
        if not TIMING: return
        A = self.A
        self.lg.waitall()
        A("s_memrealtime s[70:71]" if (real or TIMING == 2) else "s_memtime s[70:71]")
        A("s_waitcnt lgkmcnt(0)")
        A(f"s_mov_b32 s{self.base+self.n}, s70")
        self.n += 1
    def flush(self):
        if not TIMING: return
        A = self.A
        A(f"s_lshl_b32 s70, s2, 3")
        A(f"s_add_u32 s70, s70, s{self.swave}")
        A(f"s_lshl_b32 s70, s70, 7")
        A("v_mov_b32 v5, 0")
        for i in range(self.n):
            A(f"v_mov_b32 v6, s{self.base+i}")
            A(f"buffer_store_dword v6, v5, s[{self.srd}:{self.srd+3}], s70 offen offset:{4*i}")

ACT = 0
STG = 65536
KRING = STG + 3 * 16384
VRING = STG
V_LANE = 1
V_BADDR = 16; V_AADDR = 24; V_WQOFF = 26; V_WOOFF = 27
V_KADDR = 28; V_VADDR = 36; V_KOFF = 40; V_VOFF = 42
V_M = 43; V_L = 44; V_ALPHA = 46; V_NEGC = 48
V_QADDR = 50
V_T = 58
V_ACC = 64
V_Q = 128
V_S = 160
V_F = 224
NF = 8
RA = int(os.environ.get('RA','6'))
PRIO = int(os.environ.get('PRIO','0'))
CT = int(os.environ.get('CT','1'))
V_NB = 48
S_XN = 8; S_MOD = 12; S_WQ = 16; S_K = 20; S_V = 24; S_WO = 28; S_P = 32; S_DBG = 36
S_WAVE = 40; S_G = 41; S_M = 42; S_RB = 43; S_OFF = 44; S_MASK = 45; S_KVOFF = 46; S_KVM0 = 47
S_C1 = 48; S_K2 = 50; S_SC = 52; S_L2E = 54
S_TMP = 56
S_SL = 66
S_FLAG = 64
S_QOFF = 67
SCALE = 128 ** -0.5

def gemm_dma(A, vm, step, srd, voff, rowstride, D):
    for half in range(2):
        A(f"s_add_u32 m0, s{S_RB}, {(step % D) * 2048 + half * 1024}")
        A("s_nop 0")
        A(f"buffer_load_dwordx4 v{voff}, s[{srd}:{srd+3}], s{S_OFF} offen lds")
        vm.issue(("w", step))
        A(f"s_add_u32 s{S_OFF}, s{S_OFF}, {8 * rowstride}")

def gemm_reads(A, lg, step, D):
    buf = V_Q + (step & 1) * 16
    if (EXPT & 128) and step > 1: return
    for nb in range(2):
        for q in range(2):
            A(f"ds_read_b64_tr_b16 v[{buf+nb*4+q*2}:{buf+nb*4+q*2+1}], v{V_AADDR+nb} offset:{(step % D) * 2048 + q * 512}")
            lg.issue(("f", step))
    for rb in range(2):
        A(f"ds_read_b128 v[{buf+8+rb*4}:{buf+8+rb*4+3}], v{V_BADDR + (step & 7)} offset:{(step >> 3) * 256 + rb * 32768}")
        lg.issue(("f", step))

def gemm_core(A, vm, lg, srd, voff, rowstride, D=4, NS=32):
    vm.wait(("w", 0))
    gemm_reads(A, lg, 0, D)
    for ks in range(NS):
        if ks + 1 < NS:
            vm.wait(("w", ks + 1))
            gemm_reads(A, lg, ks + 1, D)
        lg.wait(("f", ks))
        if ks + D < NS and not (EXPT & 32):
            gemm_dma(A, vm, ks + D, srd, voff, rowstride, D)
        buf = V_Q + (ks & 1) * 16
        for nb in range(2):
            for rb in range(2):
                acc = V_ACC + (nb * 2 + rb) * 16
                c = "0" if ks == 0 else f"v[{acc}:{acc+15}]"
                if (EXPT & 64) and ks > 0: continue
                A(f"v_mfma_f32_32x32x16_bf16 v[{acc}:{acc+15}], v[{buf+nb*4}:{buf+nb*4+3}], v[{buf+8+rb*4}:{buf+8+rb*4+3}], {c}")

D6 = int(os.environ.get("D6", "1"))
V_AADDR2 = (43, 45)
def slot6(step): return (step + 2) % 6
M16 = int(os.environ.get("M16", "1"))
VA16 = 224; VB16 = 232
def addr16(A):
    L = V_LANE
    A(f"v_lshrrev_b32 v2, 4, v{L}")
    A(f"v_and_b32 v3, 15, v{L}")
    for j in range(4):
        A(f"v_or_b32 v4, {4*j}, v2")
        A("v_xor_b32 v4, v4, v3")
        A("v_lshlrev_b32 v4, 4, v4")
        A(f"v_lshl_add_u32 v{VB16+j}, v3, 10, v4")
    A(f"v_bfe_u32 v4, v{L}, 2, 2")
    A(f"v_and_b32 v5, 3, v{L}")
    A("v_and_b32 v6, 1, v2")
    A("v_lshl_add_u32 v7, v6, 3, v4")
    A("v_lshlrev_b32 v7, 7, v7")
    A("v_lshl_add_u32 v7, v5, 3, v7")
    A("v_lshrrev_b32 v8, 1, v2")
    A("v_lshl_add_u32 v7, v8, 14, v7")
    A(f"v_add_u32 v7, s{S_RB}, v7")
    A("v_lshrrev_b32 v8, 1, v4")
    A("v_lshl_or_b32 v8, v8, 1, v6")
    for nt in range(4):
        A(f"v_xor_b32 v9, {nt}, v8")
        A(f"v_lshl_add_u32 v{VA16+nt}, v9, 5, v7")
        A(f"v_add_u32 v{VA16+4+nt}, 65536, v{VA16+nt}")
def gemm_core16(A, vm, lg, srd, voff, rowstride, pre, tail=None):
    for st in range(pre, 6): gemm_dma6(A, vm, st, srd, voff, rowstride)
    def rd(s, part):
        buf = V_Q + (s & 1) * 32
        if part == 0:
            for rt in range(4):
                A(f"ds_read_b128 v[{buf+16+4*rt}:{buf+19+4*rt}], v{VB16 + (s & 3)} offset:{rt * 16384 + (s >> 2) * 256}")
                lg.issue(("b", s))
        else:
            nt = part - 1
            sl = slot6(2 * s)
            for q in range(2):
                A(f"ds_read_b64_tr_b16 v[{buf+4*nt+2*q}:{buf+4*nt+2*q+1}], v{VA16 + (4 if sl >= 4 else 0) + nt} offset:{(sl & 3) * 16384 + q * 512}")
                lg.issue(("a", s, nt))
    vm.wait(("w", 1))
    for p in range(5): rd(0, p)
    for s in range(16):
        buf = V_Q + (s & 1) * 32
        for nt in range(4):
            lg.wait(("a", s, nt))
            if nt == 3:
                for ks in (2 * s, 2 * s + 1):
                    if ks + 6 < 32: gemm_dma6(A, vm, ks + 6, srd, voff, rowstride)
                    elif tail: tail(ks)
            for rt in range(4):
                acc = V_ACC + (nt * 4 + rt) * 4
                c = "0" if s == 0 else f"v[{acc}:{acc+3}]"
                A(f"v_mfma_f32_16x16x32_bf16 v[{acc}:{acc+3}], v[{buf+4*nt}:{buf+4*nt+3}], v[{buf+16+4*rt}:{buf+19+4*rt}], {c}")
                if s + 1 < 16 and rt == 0:
                    if nt == 0: rd(s + 1, 0)
                    if nt == 1:
                        vm.wait(("w", 2 * s + 3)); rd(s + 1, 1); rd(s + 1, 2)
                    if nt == 2: rd(s + 1, 3)
                    if nt == 3: rd(s + 1, 4)
def gemm_dma6(A, vm, step, srd, voff_, rowstride):
    for half in range(2):
        voff = voff_ if not (M16 and half) else V_AADDR2[0 if voff_ == V_WQOFF else 1]
        A(f"s_add_u32 m0, s{S_RB}, {slot6(step) * 16384 + half * 1024}")
        A("s_nop 0")
        A(f"buffer_load_dwordx4 v{voff}, s[{srd}:{srd+3}], s{S_OFF} offen {os.environ.get('WONT', '') if srd == S_WO else ''} lds")
        vm.issue(("w", step))
        A(f"s_add_u32 s{S_OFF}, s{S_OFF}, {8 * rowstride}")
IL6 = int(os.environ.get("IL6", "0"))
def gemm_reads6(A, lg, step):
    buf = V_Q + ((step % 3) if IL6 else (step & 1)) * 16
    sl = slot6(step)
    for nb in range(2):
        for q in range(2):
            a = V_AADDR + nb if sl < 4 else V_AADDR2[nb]
            A(f"ds_read_b64_tr_b16 v[{buf+nb*4+q*2}:{buf+nb*4+q*2+1}], v{a} offset:{(sl & 3) * 16384 + q * 512}")
            lg.issue(("f", step))
    for rb in range(2):
        A(f"ds_read_b128 v[{buf+8+rb*4}:{buf+8+rb*4+3}], v{V_BADDR + (step & 7)} offset:{(step >> 3) * 256 + rb * 32768}")
        lg.issue(("f", step))
def gemm_core6(A, vm, lg, srd, voff, rowstride, pre, tail=None, NS=32, bars=()):
    for st in range(pre, 6): gemm_dma6(A, vm, st, srd, voff, rowstride)
    if IL6:
        for s0 in range(2):
            vm.wait(("w", s0)); gemm_reads6(A, lg, s0)
        for ks in range(NS):
            lg.wait(("f", ks))
            sv = A.lines; A.lines = []
            if IL6 == 2:
                if ks + 6 < NS: gemm_dma6(A, vm, ks + 6, srd, voff, rowstride)
                elif tail: tail(ks)
            if ks + 2 < NS:
                vm.wait(("w", ks + 2)); gemm_reads6(A, lg, ks + 2)
            if IL6 == 1:
                if ks + 6 < NS: gemm_dma6(A, vm, ks + 6, srd, voff, rowstride)
                elif tail: tail(ks)
            fill = A.lines; A.lines = sv
            buf = V_Q + (ks % 3) * 16
            k = 0
            for i in range(4):
                nb, rb = i >> 1, i & 1
                acc = V_ACC + (nb * 2 + rb) * 16
                c = "0" if ks == 0 else f"v[{acc}:{acc+15}]"
                A(f"v_mfma_f32_32x32x16_bf16 v[{acc}:{acc+15}], v[{buf+nb*4}:{buf+nb*4+3}], v[{buf+8+rb*4}:{buf+8+rb*4+3}], {c}")
                upto = (len(fill) * (i + 1) + 3) // 4
                A.lines.extend(fill[k:upto]); k = upto
        return
    vm.wait(("w", 0))
    gemm_reads6(A, lg, 0)
    for ks in range(NS):
        if ks + 1 < NS:
            vm.wait(("w", ks + 1))
            gemm_reads6(A, lg, ks + 1)
        lg.wait(("f", ks))
        if ks + 6 < NS:
            gemm_dma6(A, vm, ks + 6, srd, voff, rowstride)
        elif tail: tail(ks)
        if ks in bars: A("s_barrier")
        buf = V_Q + (ks & 1) * 16
        for nb in range(2):
            for rb in range(2):
                acc = V_ACC + (nb * 2 + rb) * 16
                c = "0" if ks == 0 else f"v[{acc}:{acc+15}]"
                if EXPT & 1024:
                    for hh in range(2):
                        a4 = acc + (ks & 1) * 8 + hh * 4
                        c4 = "0" if ks < 2 else f"v[{a4}:{a4+3}]"
                        A(f"v_mfma_f32_16x16x32_bf16 v[{a4}:{a4+3}], v[{buf+(nb^hh)*4}:{buf+(nb^hh)*4+3}], v[{buf+8+rb*4}:{buf+8+rb*4+3}], {c4}")
                    continue
                A(f"v_mfma_f32_32x32x16_bf16 v[{acc}:{acc+15}], v[{buf+nb*4}:{buf+nb*4+3}], v[{buf+8+rb*4}:{buf+8+rb*4+3}], {c}")

def k_dma(A, vm, t):
    A(f"s_mov_b32 s{S_KVOFF}, {t * 16384}")
    A(f"s_add_u32 m0, s{S_KVM0}, {KRING + ((t + 1) % 3) * 16384}")
    A("s_nop 0")
    A(f"buffer_load_dwordx4 v{V_KOFF}, s[{S_K}:{S_K+3}], s{S_KVOFF} offen lds")
    vm.issue(("k", t))
    A(f"buffer_load_dwordx4 v{V_KOFF+1}, s[{S_K}:{S_K+3}], s{S_KVOFF} offen offset:1024 lds")
    vm.issue(("k", t))
def v_dma(A, vm, t):
    A(f"s_mov_b32 s{S_KVOFF}, {t * 16384}")
    A(f"s_add_u32 m0, s{S_KVM0}, {VRING + (t % 3) * 16384}")
    A("s_nop 0")
    A(f"buffer_load_dwordx4 v{V_VOFF}, s[{S_V}:{S_V+3}], s{S_KVOFF} offen lds")
    vm.issue(("v", t))
    A(f"buffer_load_dwordx4 v{V_VOFF}, s[{S_V}:{S_V+3}], s{S_KVOFF} offen offset:1024 lds")
    vm.issue(("v", t))

def sm_max(t):
    S = V_S + (t & 1) * 32
    mx = 2 if CT else V_T
    L = []
    if NOMAX and t > 0: return []
    L.append(f"v_max3_f32 v{mx}, v{S}, v{S+1}, v{S+2}")
    L.append(f"v_max3_f32 v{mx+1}, v{S+3}, v{S+4}, v{S+5}")
    for i in range(6, 30, 4):
        L.append(f"v_max3_f32 v{mx}, v{mx}, v{S+i}, v{S+i+1}")
        L.append(f"v_max3_f32 v{mx+1}, v{mx+1}, v{S+i+2}, v{S+i+3}")
    L.append(f"v_max3_f32 v{mx}, v{mx}, v{S+30}, v{S+31}")
    L.append(f"v_max_f32 v{mx}, v{mx}, v{mx+1}")
    L.append(f"v_mov_b32 v{mx+1}, v{mx}")
    L.append("s_nop 1")
    L.append(f"v_permlane32_swap_b32 v{mx}, v{mx+1}")
    L.append("s_nop 1")
    L.append(f"v_max_f32 v{mx}, v{mx}, v{mx+1}")
    g, d = mx + 1, mx + 2
    if CT:
        if t == 0:
            for i in range(16): L.append(f"v_sub_f32 v{V_NB+i}, 0, v{mx}")
            for i in range(32): L.append(f"v_sub_f32 v{S+i}, v{S+i}, v{mx}")
            return L
        lbl = f".Lk1_nors_{t}"
        L.append(f"v_cmp_lt_f32 vcc, {fhex(THR)}, v{mx}")
        L.append(f"s_mov_b64 s[{S_FLAG}:{S_FLAG+1}], vcc")
        L.append([f"s_cbranch_vccz {lbl}",
                  f"v_max_f32 v{mx}, 0, v{mx}",
                  f"v_sub_f32 v{V_ALPHA}, 0, v{mx}",
                  f"v_exp_f32 v{V_ALPHA}, v{V_ALPHA}"]
                 + [f"v_sub_f32 v{V_NB+i}, v{V_NB+i}, v{mx}" for i in range(16)]
                 + [f"v_sub_f32 v{S+i}, v{S+i}, v{mx}" for i in range(32)]
                 + [f"v_mul_f32 v{V_L}, v{V_L}, v{V_ALPHA}", f"{lbl}:"])
        return L
    if MIMIC:
        L.append(f"v_mul_f32 v{g}, s{S_C1}, v{mx}")
        L.append(f"v_sub_f32 v{d}, v{mx}, v{g}")
        L.append(f"v_add_f32 v{mx}, v{g}, v{d}")
        L.append(f"v_mul_f32 v{g}, s{S_K2}, v{mx}")
        L.append(f"v_fma_f32 v{d}, v{mx}, s{S_SC}, -v{g}")
        L.append(f"v_add_f32 v{mx}, v{g}, v{d}")
    else:
        L.append(f"v_mul_f32 v{mx}, s{S_SC}, v{mx}")
    if LAZY and t > 0:
        lbl = f".Lk1_nors_{t}"
        L.append(f"v_sub_f32 v{V_ALPHA}, v{V_M}, v{mx}")
        L.append(f"v_cmp_gt_f32 vcc, {fhex(-THR / LOG2E)}, v{V_ALPHA}")
        L.append(f"s_mov_b64 s[{S_FLAG}:{S_FLAG+1}], vcc")
        L.append([f"s_cbranch_vccz {lbl}",
                  f"v_max_f32 v{mx}, v{mx}, v{V_M}",
                  f"v_sub_f32 v{V_ALPHA}, v{V_M}, v{mx}",
                  f"v_mul_f32 v{V_ALPHA}, s{S_L2E}, v{V_ALPHA}",
                  f"v_exp_f32 v{V_ALPHA}, v{V_ALPHA}",
                  f"v_mov_b32 v{V_M}, v{mx}",
                  f"v_mul_f32 v{V_NEGC}, s{S_L2E}, v{mx}",
                  f"v_sub_f32 v{V_NEGC}, 0, v{V_NEGC}",
                  f"v_mul_f32 v{V_L}, v{V_L}, v{V_ALPHA}",
                  f"{lbl}:"])
        return L
    if t > 0:
        L.append(f"v_max_f32 v{mx}, v{mx}, v{V_M}")
        L.append(f"v_sub_f32 v{V_ALPHA}, v{V_M}, v{mx}")
        L.append(f"v_mul_f32 v{V_ALPHA}, s{S_L2E}, v{V_ALPHA}")
        L.append(f"v_exp_f32 v{V_ALPHA}, v{V_ALPHA}")
    L.append(f"v_mov_b32 v{V_M}, v{mx}")
    L.append(f"v_mul_f32 v{V_NEGC}, s{S_L2E}, v{mx}")
    L.append(f"v_sub_f32 v{V_NEGC}, 0, v{V_NEGC}")
    return L

PSUM = 10
def sm_quarter(t, q):
    S = V_S + (t & 1) * 32
    L = []
    pairs = list(range(8 * q, 8 * q + 8, 2))
    def pre(i):
        x = f"v[{S+i}:{S+i+1}]"
        k = (i >> 1) & 1
        g = f"v[{2+4*k}:{3+4*k}]"; d = f"v[{4+4*k}:{5+4*k}]"
        if CT:
            return []
        if not USEPK:
            out = []
            xs = [S + i, S + i + 1]; gs = [2 + 4 * k, 3 + 4 * k]; ds = [4 + 4 * k, 5 + 4 * k]
            if MIMIC:
                for op in range(7):
                    for e in range(2):
                        x_, g_, d_ = xs[e], gs[e], ds[e]
                        out.append([f"v_mul_f32 v{g_}, s{S_C1}, v{x_}",
                                    f"v_sub_f32 v{d_}, v{x_}, v{g_}",
                                    f"v_add_f32 v{x_}, v{g_}, v{d_}",
                                    f"v_mul_f32 v{g_}, s{S_K2}, v{x_}",
                                    f"v_fma_f32 v{d_}, v{x_}, s{S_SC}, -v{g_}",
                                    f"v_add_f32 v{x_}, v{g_}, v{d_}",
                                    f"v_fma_f32 v{x_}, v{x_}, s{S_L2E}, v{V_NEGC}"][op])
            else:
                for e in range(2):
                    out.append(f"v_fma_f32 v{xs[e]}, v{xs[e]}, s{S_SL}, v{V_NEGC}")
            return out
        if MIMIC:
            return [f"v_pk_mul_f32 {g}, {x}, s[{S_C1}:{S_C1+1}]",
                    f"v_pk_add_f32 {d}, {x}, {g} neg_lo:[0,1] neg_hi:[0,1]",
                    f"v_pk_add_f32 {x}, {g}, {d}",
                    f"v_pk_mul_f32 {g}, {x}, s[{S_K2}:{S_K2+1}]",
                    f"v_pk_fma_f32 {d}, {x}, s[{S_SC}:{S_SC+1}], {g} neg_lo:[0,0,1] neg_hi:[0,0,1]",
                    f"v_pk_add_f32 {x}, {g}, {d}",
                    f"v_pk_fma_f32 {x}, {x}, s[{S_L2E}:{S_L2E+1}], v[{V_NEGC}:{V_NEGC+1}] op_sel_hi:[1,1,0]"]
        return [f"v_pk_mul_f32 {x}, {x}, s[{S_SC}:{S_SC+1}]",
                f"v_pk_fma_f32 {x}, {x}, s[{S_L2E}:{S_L2E+1}], v[{V_NEGC}:{V_NEGC+1}] op_sel_hi:[1,1,0]"]
    for a in range(0, 4, 2):
        p0, p1 = pre(pairs[a]), pre(pairs[a + 1])
        for x, y in zip(p0, p1):
            L += [x, y]
        for i in (pairs[a], pairs[a + 1]):
            L.append(f"v_exp_f32 v{S+i}, v{S+i}")
            L.append(f"v_exp_f32 v{S+i+1}, v{S+i+1}")
    L.append("s_nop 0")
    for i in pairs:
        if DOT2:
            L.append(f"v_cvt_pk_bf16_f32 v{S + i // 2}, v{S+i}, v{S+i+1}")
            continue
        if i == 0:
            L.append(f"v_mov_b32 v{PSUM}, v{S}")
            L.append(f"v_mov_b32 v{PSUM+1}, v{S+1}")
        elif USEPK:
            L.append(f"v_pk_add_f32 v[{PSUM}:{PSUM+1}], v[{PSUM}:{PSUM+1}], v[{S+i}:{S+i+1}]")
        else:
            L.append(f"v_add_f32 v{PSUM}, v{PSUM}, v{S+i}")
            L.append(f"v_add_f32 v{PSUM+1}, v{PSUM+1}, v{S+i+1}")
        L.append(f"v_cvt_pk_bf16_f32 v{S + i // 2}, v{S+i}, v{S+i+1}")
    if DOT2:
        for i in pairs:
            a = PSUM + ((i >> 1) & 1)
            if DOT2 == 1: L.append(f"v_dot2c_f32_bf16 v{a}, v{S + i // 2}, v14")
            else: L.append(f"v_dot2_f32_bf16 v{a}, v{S + i // 2}, v14, v{a}")
    if EXPT & 1: L = [x for x in L if not x.startswith("v_exp")]
    if EXPT & 2: L = [x for x in L if x.startswith("v_exp") or x.startswith("s_nop")]
    return L

def sm_rescale(t):
    if t == 0 or NOMAX: return []
    if LAZY:
        lbl = f".Lk1_nors2_{t}"
        return [[f"s_cmp_eq_u64 s[{S_FLAG}:{S_FLAG+1}], 0", f"s_cbranch_scc1 {lbl}"] + [f"v_mul_f32 v{V_ACC+i}, v{V_ALPHA}, v{V_ACC+i}" for i in range(64)] + [f"{lbl}:"]]
    if not USEPK:
        return [f"v_mul_f32 v{V_ACC+i}, v{V_ALPHA}, v{V_ACC+i}" for i in range(64)]
    return [f"v_pk_mul_f32 v[{V_ACC+i}:{V_ACC+i+1}], v[{V_ACC+i}:{V_ACC+i+1}], v[{V_ALPHA}:{V_ALPHA+1}] op_sel_hi:[1,0]" for i in range(0, 64, 2)]

def sm_lupd(t):
    if DOT2: return []
    L = [f"v_add_f32 v{PSUM}, v{PSUM}, v{PSUM+1}"]
    if t == 0:
        L.append(f"v_mov_b32 v{V_L}, v{PSUM}")
    elif LAZY:
        L.append(f"v_add_f32 v{V_L}, v{V_L}, v{PSUM}")
    else:
        L.append(f"v_fma_f32 v{V_L}, v{V_L}, v{V_ALPHA}, v{PSUM}")
    return L

def gen_k1(A, emb=False, pre=None, hookA=None, hookB=None, kname="k1_kernel", v2=False, hookC=None):
    name = kname
    vm = Cnt(A, "vmcnt", 63); lg = Cnt(A, "lgkmcnt", 15)
    stamp = Stamper(A, lg, S_DBG, S_WAVE)
    kernel_header(A, name)
    A("s_cmp_lt_u32 s2, 256")
    A("s_cbranch_scc1 .Lk1_go")
    A("s_endpgm")
    A.label(".Lk1_go")
    if pre: pre()
    A("s_load_dwordx4 s[60:63], s[0:1], 8")
    A("s_load_dwordx4 s[64:67], s[0:1], 24")
    A("s_load_dwordx2 s[68:69], s[0:1], 112")
    A("s_load_dwordx8 s[92:99], s[0:1], 48")
    A(f"v_and_b32 v{V_LANE}, 63, v0")
    A("v_lshrrev_b32 v2, 6, v0")
    A("s_nop 0")
    A(f"v_readfirstlane_b32 s{S_WAVE}, v2")
    KM = int(os.environ.get("K1MAP","1"))
    if KM == 1:
        A(f"s_lshr_b32 s{S_G}, s2, 5")
        A(f"s_and_b32 s{S_M}, s2, 31")
    elif KM == 4:
        A(f"s_and_b32 s{S_G}, s2, 6")
        A(f"s_lshr_b32 s{S_M}, s2, 7")
        A(f"s_or_b32 s{S_G}, s{S_G}, s{S_M}")
        A(f"s_bfe_u32 s{S_M}, s2, 0x40003")
        A(f"s_lshl_b32 s{S_M}, s{S_M}, 1")
        A(f"s_and_b32 s{S_TMP}, s2, 1")
        A(f"s_or_b32 s{S_M}, s{S_M}, s{S_TMP}")
    elif KM == 5:
        A(f"s_and_b32 s{S_G}, s2, 4")
        A(f"s_lshr_b32 s{S_M}, s2, 6")
        A(f"s_or_b32 s{S_G}, s{S_G}, s{S_M}")
        A(f"s_bfe_u32 s{S_M}, s2, 0x30003")
        A(f"s_lshl_b32 s{S_M}, s{S_M}, 2")
        A(f"s_and_b32 s{S_TMP}, s2, 3")
        A(f"s_or_b32 s{S_M}, s{S_M}, s{S_TMP}")
    elif KM == 0:
        A(f"s_and_b32 s{S_G}, s2, 7")
        A(f"s_lshr_b32 s{S_M}, s2, 3")
    else:
        nb_ = KM - 1
        A(f"s_and_b32 s{S_G}, s2, {(1 << nb_) - 1}")
        A(f"s_lshr_b32 s{S_M}, s2, {5 + nb_}")
        A(f"s_lshl_b32 s{S_M}, s{S_M}, {nb_}")
        A(f"s_or_b32 s{S_G}, s{S_G}, s{S_M}")
        A(f"s_bfe_u32 s{S_M}, s2, {hex((5 << 16) | nb_)}")
    A(f"s_mov_b32 s{S_MASK}, 0xffff0000")
    for (s, val) in ((S_C1, 65537.0), (S_K2, 65537.0 * SCALE), (S_SC, SCALE), (S_L2E, LOG2E)):
        A(f"s_mov_b32 s{s}, {fhex(val)}")
        A(f"s_mov_b32 s{s+1}, {fhex(val)}")
    L = V_LANE
    SM = f"s{S_MASK}"
    D = 4
    EARLYA = v2 and int(os.environ.get("EARLYA", "1"))
    if EARLYA:
        A(f"v_lshlrev_b32 v12, 4, v{L}")
        hookA()
    A(f"v_lshrrev_b32 v5, 3, v{L}")
    A(f"v_and_b32 v6, 7, v{L}")
    A("v_lshlrev_b32 v7, 1, v5")
    A("v_and_b32 v7, 4, v7")
    A("v_xor_b32 v6, v6, v7")
    A("v_lshlrev_b32 v6, 4, v6")
    A(f"v_lshl_add_u32 v{V_WQOFF}, v5, 13, v6")
    A(f"v_lshl_add_u32 v{V_WOOFF}, v5, 10, v6")
    A(f"s_lshl_b32 s{S_RB}, s{S_WAVE}, {11 if D6 else 13}")
    A(f"s_add_u32 s{S_RB}, s{S_RB}, {STG}")
    A(f"s_lshl_b32 s{S_OFF}, s{S_G}, 10")
    A(f"s_lshl_b32 s{S_TMP}, s{S_WAVE}, 7")
    A(f"s_add_u32 s{S_OFF}, s{S_OFF}, s{S_TMP}")
    A(f"v_lshrrev_b32 v5, 4, v{L}")
    A(f"v_and_b32 v6, 15, v{L}")
    A(f"s_lshl_b32 s{S_TMP}, s{S_WAVE}, 3")
    A(f"v_add_u32 v7, s{S_TMP}, v5")
    for j in range(2):
        A(f"v_add_u32 v8, {4*j}, v7")
        A("v_and_b32 v9, 15, v8")
        A("v_xor_b32 v9, v6, v9")
        A("v_lshlrev_b32 v9, 4, v9")
        A(f"v_lshl_add_u32 v{V_KOFF+j}, v7, 8, v9")
    A("v_lshlrev_b32 v9, 2, v5")
    A("v_xor_b32 v9, v6, v9")
    A("v_lshlrev_b32 v9, 4, v9")
    A(f"v_lshl_add_u32 v{V_VOFF}, v7, 8, v9")
    A(f"s_lshl_b32 s{S_KVM0}, s{S_WAVE}, 11")
    A(f"v_lshrrev_b32 v5, 5, v{L}")
    A(f"v_bfe_u32 v6, v{L}, 4, 1")
    A(f"v_bfe_u32 v7, v{L}, 2, 2")
    A(f"v_and_b32 v8, 1, v{L}")
    A(f"v_bfe_u32 v9, v{L}, 1, 1")
    A("v_lshl_or_b32 v8, v8, 1, v9")
    A("v_lshlrev_b32 v8, 3, v8")
    A("v_lshl_add_u32 v8, v6, 5, v8")
    A("v_lshl_add_u32 v10, v5, 3, v7")
    A("v_lshrrev_b32 v11, 1, v7")
    for nb in range(2):
        A(f"v_xor_b32 v12, {nb}, v11")
        A("v_lshl_add_u32 v12, v12, 6, v8")
        A("v_lshl_add_u32 v12, v10, 7, v12")
        A(f"v_add_u32 v{V_AADDR+nb}, s{S_RB}, v12")
        if M16: A(f"v_xor_b32 v{V_AADDR2[nb]}, 32, v{(V_WQOFF, V_WOOFF)[nb]}")
        elif D6: A(f"v_add_u32 v{V_AADDR2[nb]}, 65536, v{V_AADDR+nb}")
    for db in range(4):
        A(f"v_xor_b32 v12, {db}, v7")
        A("v_lshl_add_u32 v12, v12, 6, v8")
        A(f"v_lshl_add_u32 v12, v10, 8, v12")
        A(f"v_add_u32 v{V_VADDR+db}, {VRING}, v12")
    A(f"v_and_b32 v6, 31, v{L}")
    for j in range(8):
        A(f"v_or_b32 v7, {2*j}, v5")
        A("v_xor_b32 v7, v7, v6")
        A("v_and_b32 v7, 15, v7")
        A("v_lshlrev_b32 v7, 4, v7")
        A(f"v_lshl_add_u32 v{V_BADDR+j}, v6, 10, v7")
    A("v_and_b32 v7, 0x13, v6")
    A("v_bfe_u32 v8, v6, 2, 1")
    A("v_lshl_or_b32 v7, v8, 3, v7")
    A("v_bfe_u32 v8, v6, 3, 1")
    A("v_lshl_or_b32 v7, v8, 2, v7")
    for j in range(8):
        A(f"v_or_b32 v8, {2*j}, v5")
        A("v_xor_b32 v8, v8, v7")
        A("v_and_b32 v8, 15, v8")
        A("v_lshlrev_b32 v8, 4, v8")
        A(f"v_lshl_add_u32 v8, v7, 8, v8")
        A(f"v_add_u32 v{V_KADDR+j}, {KRING}, v8")
    A(f"s_lshl_b32 s{S_TMP}, s{S_WAVE}, 3")
    A(f"v_and_b32 v14, 48, v{L}")
    for i in range(8):
        A(f"s_add_u32 s{S_TMP+1}, s{S_TMP}, {i}")
        A(f"v_xor_b32 v15, s{S_TMP+1}, v{L}")
        A("v_and_or_b32 v15, v15, 15, v14")
        A("v_lshlrev_b32 v15, 4, v15")
        A(f"s_lshl_b32 s{S_TMP+1}, s{S_TMP+1}, 10")
        A(f"v_add_u32 v{V_QADDR+i}, s{S_TMP+1}, v15")
    A(f"s_lshl_b32 s{S_TMP}, s{S_M}, 16")
    A(f"s_lshl_b32 s{S_TMP+1}, s{S_WAVE}, 13")
    A(f"s_add_u32 s{S_TMP}, s{S_TMP}, s{S_TMP+1}")
    A(f"s_add_u32 s{S_TMP+1}, s{S_TMP}, 4096")
    A(f"v_lshlrev_b32 v12, 4, v{L}")
    A(f"v_lshlrev_b32 v13, 5, v{L}")
    A("s_waitcnt lgkmcnt(0)")
    make_srd(A, S_XN, 68, WS_XN, 2 * MB)
    make_srd(A, S_MOD, 68, WS_MOD, 3072 * 4)
    XR = V_S
    SA = V_S + 32; CA = V_S + 40
    def p0_loads():
        A(f"buffer_load_dwordx4 v[{CA}:{CA+3}], v13, s[{S_MOD}:{S_MOD+3}], 0 offen offset:2048"); vm.issue("mod")
        A(f"buffer_load_dwordx4 v[{CA+4}:{CA+7}], v13, s[{S_MOD}:{S_MOD+3}], 0 offen offset:2064"); vm.issue("mod")
        A(f"buffer_load_dwordx4 v[{SA}:{SA+3}], v13, s[{S_MOD}:{S_MOD+3}], 0 offen"); vm.issue("mod")
        A(f"buffer_load_dwordx4 v[{SA+4}:{SA+7}], v13, s[{S_MOD}:{S_MOD+3}], 0 offen offset:16"); vm.issue("mod")
        for i in range(8):
            A(f"buffer_load_dwordx4 v[{XR+4*i}:{XR+4*i+3}], v12, s[{S_XN}:{S_XN+3}], s{S_TMP + (i >> 2)} offen offset:{(i & 3) * 1024}")
            vm.issue(("x", i))
    if EARLYA: pass
    elif hookA: hookA()
    else: p0_loads()
    make_srd(A, S_WQ, 64, 0, 4 * MB)
    if hookB: pass
    elif D6: gemm_dma6(A, vm, 0, S_WQ, V_WQOFF, 8192)
    else: gemm_dma(A, vm, 0, S_WQ, V_WQOFF, 8192, D)
    A(f"s_lshl_b32 s{S_TMP}, s{S_G}, 19")
    A(f"s_add_u32 s{S_TMP+1}, s{S_TMP}, {1536 * 256}")
    make_srd(A, S_K, 60, f"s{S_TMP+1}", 512 * 256)
    make_srd(A, S_V, 62, f"s{S_TMP+1}", 512 * 256)
    make_srd(A, S_WO, 66, f"s{S_TMP}", 512 * 1024)
    psz = 2 if PART_BF16 else 4
    A(f"s_mov_b32 s{S_SL}, {fhex(SCALE*LOG2E)}")
    PL = int(os.environ.get("PL", "1")) and emb
    if PL:
        A(f"s_lshl_b32 s{S_TMP+2}, s{S_M}, 3")
        A(f"s_add_u32 s{S_TMP+2}, s{S_TMP+2}, s{S_G}")
        A(f"s_lshl_b32 s{S_TMP+2}, s{S_TMP+2}, 16")
        A(f"s_add_u32 s{S_TMP+2}, s{S_TMP+2}, {WS_PART}")
        make_srd(A, S_P, 68, f"s{S_TMP+2}", 65536)
    else:
        A(f"s_mul_i32 s{S_TMP+2}, s{S_G}, {2048 * 512 * psz}")
        A(f"s_add_u32 s{S_TMP+2}, s{S_TMP+2}, {WS_PART}")
        make_srd(A, S_P, 68, f"s{S_TMP+2}", 2048 * 512 * psz)
    if DEBUG or TIMING:
        make_srd(A, S_DBG, 68, WS_DBG, 32 * MB)
    stamp(True); stamp()
    SCR = STG + 16384
    if hookB and v2:
        LDE = int(os.environ.get("LDE", "2"))
        KVL = int(os.environ.get("KVL", "1"))
        def kvpf():
            A(f"v_lshlrev_b32 v5, 7, v{L}")
            A(f"s_lshl_b32 s{S_TMP}, s{S_M}, 12")
            A(f"s_add_u32 s{S_TMP+1}, s{S_TMP}, 4096")
            A(f"s_cmp_lg_u32 s{S_WAVE}, 4")
            A("s_cbranch_scc1 .Lk1_nkv")
            A("s_mov_b32 exec_hi, 0")
            A(f"buffer_load_dword v15, v5, s[{S_K}:{S_K+3}], s{S_TMP} offen")
            A(f"buffer_load_dword v15, v5, s[{S_V}:{S_V+3}], s{S_TMP} offen")
            A("s_mov_b64 exec, -1")
            A.label(".Lk1_nkv")
        def loader():
            for st in range(LDE): gemm_dma6(A, vm, st, S_WQ, V_WQOFF, 8192)
            A(f"s_sub_u32 s{S_RB}, s{S_RB}, 8192")
            A(f"s_sub_u32 s{S_OFF}, s{S_OFF}, {LDE * 16 * 8192 + 512}")
            for st in range(LDE): gemm_dma6(A, vm, st, S_WQ, V_WQOFF, 8192)
            A(f"s_add_u32 s{S_RB}, s{S_RB}, 8192")
            A(f"s_add_u32 s{S_OFF}, s{S_OFF}, 512")
            if not KVL: kvpf()
        def cfix():
            A(f"s_add_u32 s{S_OFF}, s{S_OFF}, {LDE * 16 * 8192}")
        def xn_loads():
            vm.ops = []
            A(f"s_lshl_b32 s{S_TMP}, s{S_M}, 16")
            A(f"s_lshl_b32 s{S_TMP+1}, s{S_WAVE}, 13")
            A(f"s_add_u32 s{S_TMP}, s{S_TMP}, s{S_TMP+1}")
            A(f"s_add_u32 s{S_TMP+1}, s{S_TMP}, 4096")
            for i in range(8):
                A(f"buffer_load_dwordx4 v[{XR+4*i}:{XR+4*i+3}], v12, s[{S_XN}:{S_XN+3}], s{S_TMP + (i >> 2)} offen offset:{(i & 3) * 1024}")
                vm.issue(("x", i))
        def ownfill():
            for st in range(LDE): gemm_dma6(A, vm, st, S_WQ, V_WQOFF, 8192)
        hookB(ownfill if int(os.environ.get("MEGA", "6")) == 6 else loader, cfix, xn_loads)
        lg.ops = []
        A(f"v_add_u32 v2, {SCR + 4096}, v13")
        A(f"ds_read_b128 v[{CA}:{CA+3}], v2 offset:2048")
        A(f"ds_read_b128 v[{CA+4}:{CA+7}], v2 offset:2064")
        A(f"ds_read_b128 v[{SA}:{SA+3}], v2")
        A(f"ds_read_b128 v[{SA+4}:{SA+7}], v2 offset:16")
        A("s_waitcnt lgkmcnt(0)")
    elif hookB:
        def early():
            for st in range(6): gemm_dma6(A, vm, st, S_WQ, V_WQOFF, 8192)
            A(f"s_cmp_lg_u32 s{S_WAVE}, 6")
            A("s_cbranch_scc1 .Lk1_e6")
            A(f"s_add_u32 s{S_RB}, s{S_RB}, 2048")
            A(f"s_sub_u32 s{S_OFF}, s{S_OFF}, {6 * 16 * 8192 - 128}")
            for st in range(6): gemm_dma6(A, vm, st, S_WQ, V_WQOFF, 8192)
            A(f"s_sub_u32 s{S_RB}, s{S_RB}, 2048")
            A(f"s_sub_u32 s{S_OFF}, s{S_OFF}, 128")
            A.label(".Lk1_e6")
            A(f"v_lshlrev_b32 v5, 6, v{L}")
            A(f"s_lshl_b32 s{S_TMP}, s{S_M}, 12")
            A(f"buffer_load_dword v15, v5, s[{S_K}:{S_K+3}], s{S_TMP} offen")
            A(f"buffer_load_dword v15, v5, s[{S_V}:{S_V+3}], s{S_TMP} offen")
        def w7():
            A(f"s_add_u32 s{S_OFF}, s{S_OFF}, {6 * 16 * 8192}")
        hookB(0, early, w7)
        vm.ops = []; lg.ops = []
        A(f"s_lshl_b32 s{S_TMP}, s{S_M}, 16")
        A(f"s_lshl_b32 s{S_TMP+1}, s{S_WAVE}, 13")
        A(f"s_add_u32 s{S_TMP}, s{S_TMP}, s{S_TMP+1}")
        A(f"s_add_u32 s{S_TMP+1}, s{S_TMP}, 4096")
        p0_loads()
    vm.wait("mod")
    for j in range(0, 8 if not v2 else 0, 2):
        A(f"v_add_f32 v{CA+j}, 1.0, v{CA+j}")
        A(f"v_add_f32 v{CA+j+1}, 1.0, v{CA+j+1}")
        round_bf16_2(A, CA + j, CA + j + 1, V_T, SM)
    for i in range(8):
        x = XR + 4 * i
        vm.wait(("x", i))
        for j in range(4):
            a = 2 + 2 * j
            A(f"v_lshlrev_b32 v{a}, 16, v{x+j}")
            A(f"v_and_b32 v{a+1}, {SM}, v{x+j}")
        for j in range(0, 8, 2):
            A(f"v_pk_mul_f32 v[{2+j}:{3+j}], v[{2+j}:{3+j}], v[{CA+j}:{CA+j+1}]")
        for j in range(4):
            a = 2 + 2 * j
            A(f"v_cvt_pk_bf16_f32 v{x+j}, v{a}, v{a+1}")
        for j in range(4):
            a = 2 + 2 * j
            A(f"v_lshlrev_b32 v{a}, 16, v{x+j}")
            A(f"v_and_b32 v{a+1}, {SM}, v{x+j}")
        for j in range(0, 8, 2):
            A(f"v_pk_add_f32 v[{2+j}:{3+j}], v[{2+j}:{3+j}], v[{SA+j}:{SA+j+1}]")
        for j in range(4):
            a = 2 + 2 * j
            A(f"v_cvt_pk_bf16_f32 v{x+j}, v{a}, v{a+1}")
        A(f"ds_write_b128 v{V_QADDR+i}, v[{x}:{x+3}]")
        lg.issue("hw")
        if hookB and v2:
            if LDE + i < 5: gemm_dma6(A, vm, LDE + i, S_WQ, V_WQOFF, 8192)
        elif hookB: pass
        elif D6:
            if i in (1, 3, 5, 6, 7): gemm_dma6(A, vm, {1: 1, 3: 2, 5: 3, 6: 4, 7: 5}[i], S_WQ, V_WQOFF, 8192)
        elif i in (1, 3, 5):
            gemm_dma(A, vm, (i + 1) // 2, S_WQ, V_WQOFF, 8192, D)
    if not D6:
        k_dma(A, vm, 0)
        k_dma(A, vm, 1)
    if PREFETCH and not hookB:
        A(f"v_lshlrev_b32 v5, 6, v{L}")
        A(f"s_lshl_b32 s{S_TMP}, s{S_M}, 12")
        A(f"buffer_load_dword v15, v5, s[{S_K}:{S_K+3}], s{S_TMP} offen"); vm.issue("pf")
        A(f"buffer_load_dword v15, v5, s[{S_V}:{S_V+3}], s{S_TMP} offen"); vm.issue("pf")
    if hookC:
        if KVL: kvpf()
        hookC()
    if M16: addr16(A)
    lg.waitall()
    stamp()
    A("s_barrier")
    stamp()
    if D6:
        def tail1(ks):
            if ks == 26: k_dma(A, vm, 0)
            if ks == 27: k_dma(A, vm, 1)
            if ks == 28: v_dma(A, vm, 0)
            if ks == 29: v_dma(A, vm, 1)
            if ks == 31: k_dma(A, vm, 2)
        if M16: gemm_core16(A, vm, lg, S_WQ, V_WQOFF, 8192, 5 if v2 else 6, tail1)
        else: gemm_core6(A, vm, lg, S_WQ, V_WQOFF, 8192, 5 if v2 else 6, tail1, bars=eval(os.environ.get('B1', '()')))
    else:
        gemm_core(A, vm, lg, S_WQ, V_WQOFF, 8192, D)
    stamp()
    A("s_barrier")
    if not D6:
        v_dma(A, vm, 0)
        k_dma(A, vm, 2)
        v_dma(A, vm, 1)
    A(f"s_and_b32 s{S_TMP}, s{S_WAVE}, 1")
    A(f"s_lshr_b32 s{S_TMP+1}, s{S_WAVE}, 1")
    A(f"s_lshl_b32 s{S_TMP+1}, s{S_TMP+1}, 8")
    A(f"s_cmp_eq_u32 s{S_TMP}, 1")
    A(f"s_cselect_b64 vcc, -1, 0")
    A(f"v_mov_b32 v{V_ALPHA}, s{S_SL}")
    if M16:
        A(f"v_lshrrev_b32 v6, 5, v{L}")
        A(f"v_and_b32 v7, 15, v{L}")
        A(f"s_lshl_b32 s{S_TMP}, s{S_TMP}, 3")
        A(f"v_or_b32 v6, s{S_TMP}, v6")
        A("v_xor_b32 v6, v6, v7")
        A(f"v_bfe_u32 v8, v{L}, 4, 1")
        A("v_lshlrev_b32 v8, 3, v8")
        A("v_lshl_add_u32 v8, v7, 10, v8")
        A(f"v_add_u32 v8, s{S_TMP+1}, v8")
        for nt in range(4):
            A(f"v_xor_b32 v9, {2*nt}, v6")
            A(f"v_lshl_add_u32 v{2+nt}, v9, 4, v8")
        for nt in range(4):
            for rt in range(4):
                acc = V_ACC + (nt * 4 + rt) * 4
                d = V_S + (nt * 4 + rt) * 2
                for e in range(0, 4, 2):
                    A(f"v_pk_mul_f32 v[{acc+e}:{acc+e+1}], v[{acc+e}:{acc+e+1}], v[{V_ALPHA}:{V_ALPHA+1}] op_sel_hi:[1,0]")
                for e in range(2):
                    A(f"v_cvt_pk_bf16_f32 v{d+e}, v{acc+2*e}, v{acc+2*e+1}")
                A(f"ds_write_b64 v{2+nt}, v[{d}:{d+1}] offset:{rt*16384}")
                lg.issue("qw")
    else:
        for j in range(4):
            A(f"v_cndmask_b32 v{2+j}, v{V_BADDR+j}, v{V_BADDR+4+j}, vcc")
            A(f"v_add_u32 v{2+j}, s{S_TMP+1}, v{2+j}")
        for nb in range(2):
            for rb in range(2):
                acc = V_ACC + (nb * 2 + rb) * 16
                for mp in range(2):
                    d = V_S + (nb * 4 + rb * 2 + mp) * 4
                    if CT:
                        for e in range(0, 8, 2):
                            A(f"v_pk_mul_f32 v[{acc+8*mp+e}:{acc+8*mp+e+1}], v[{acc+8*mp+e}:{acc+8*mp+e+1}], v[{V_ALPHA}:{V_ALPHA+1}] op_sel_hi:[1,0]")
                    for e in range(4):
                        A(f"v_cvt_pk_bf16_f32 v{d+e}, v{acc+8*mp+2*e}, v{acc+8*mp+2*e+1}")
                    A(f"ds_write_b128 v{2+2*nb+mp}, v[{d}:{d+3}] offset:{rb*32768}")
                    lg.issue("qw")
                    if DEBUG:
                        A(f"v_and_b32 v8, 31, v{L}")
                        A(f"v_lshrrev_b32 v9, 5, v{L}")
                        A("v_lshlrev_b32 v8, 13, v8")
                        A("v_lshl_add_u32 v8, v9, 4, v8")
                        A(f"s_lshl_b32 s{S_TMP+2}, s{S_M}, 19")
                        A(f"s_lshl_b32 s{S_TMP+3}, s{S_G}, 10")
                        A(f"s_add_u32 s{S_TMP+2}, s{S_TMP+2}, s{S_TMP+3}")
                        A(f"s_lshl_b32 s{S_TMP+3}, s{S_WAVE}, 7")
                        A(f"s_add_u32 s{S_TMP+2}, s{S_TMP+2}, s{S_TMP+3}")
                        A(f"s_add_u32 s{S_TMP+2}, s{S_TMP+2}, {rb*32*8192 + nb*64 + mp*32}")
                        A(f"buffer_store_dwordx4 v[{d}:{d+3}], v8, s[{S_DBG}:{S_DBG+3}], s{S_TMP+2} offen")
                        vm.issue("dbg")
    A(f"s_and_b32 s{S_TMP}, s{S_WAVE}, 3")
    A(f"s_lshl_b32 s{S_TMP}, s{S_TMP}, 8")
    A(f"s_lshr_b32 s{S_TMP+1}, s{S_WAVE}, 2")
    A(f"s_lshl_b32 s{S_TMP+1}, s{S_TMP+1}, 15")
    A(f"s_add_u32 s{S_QOFF}, s{S_TMP}, s{S_TMP+1}")
    for j in range(8):
        A(f"v_add_u32 v{V_QADDR+j}, s{S_QOFF}, v{V_BADDR+j}")
    lg.waitall()
    vm.wait(("k", 0))
    A("s_barrier")
    stamp()
    if PRIO:
        A(f"s_cmp_lt_u32 s{S_WAVE}, 4")
        A("s_cbranch_scc1 .Lk1_noprio" if PRIO == 1 else "s_cbranch_scc0 .Lk1_noprio")
        A("s_setprio 1")
        A.label(".Lk1_noprio")
    for j in range(8):
        A(f"ds_read_b128 v[{V_Q+4*j}:{V_Q+4*j+3}], v{V_QADDR+j}")
        lg.issue("q")
    seq = []
    for kb in range(2):
        for j in range(8):
            seq.append(("k", 0, kb, j))
    for t in range(8):
        if t > 0:
            for db in range(4): seq.append(("v", t - 1, 3, db))
        if t + 1 < 8:
            for kb in range(2):
                for j in range(8): seq.append(("k", t + 1, kb, j))
        for ks in range(3):
            for db in range(4): seq.append(("v", t, ks, db))
    for db in range(4): seq.append(("v", 7, 3, db))
    state = {"issued": 0, "limit": 0}
    def issue_frag(i):
        kind, t, a, b = seq[i]
        f = V_F + (i % NF) * 4
        if (EXPT & 4) and i >= 8: return
        if (EXPT & 16) and (i & 1): return
        if kind == "k":
            A(f"ds_read_b128 v[{f}:{f+3}], v{V_KADDR+b} offset:{((t + 1) % 3) * 16384 + a * 8192}")
            lg.issue(("fr", i))
        else:
            o = (t % 3) * 16384 + a * 4096
            A(f"ds_read_b64_tr_b16 v[{f}:{f+1}], v{V_VADDR+b} offset:{o}")
            lg.issue(("fr", i))
            A(f"ds_read_b64_tr_b16 v[{f+2}:{f+3}], v{V_VADDR+b} offset:{o + 1024}")
            lg.issue(("fr", i))
    def avail(i, epoch):
        kind, t, a, b = seq[i]
        return (t - 1 <= epoch) if kind == "k" else (t <= epoch)
    def runahead(cur, epoch):
        while state["issued"] < len(seq) and state["issued"] <= cur + RA and avail(state["issued"], epoch):
            issue_frag(state["issued"]); state["issued"] += 1
    def mfma(i, epoch):
        kind, t, a, b = seq[i]
        runahead(i - 1, epoch)
        assert state["issued"] > i
        f = V_F + (i % NF) * 4
        lg.wait(("fr", i))
        if (EXPT & 2048) and kind == "k":
            for hh in range(2):
                s4 = V_S + (t & 1) * 32 + a * 16 + (b & 1) * 8 + hh * 4
                c4 = ("0" if t == 0 else f"v[{V_NB}:{V_NB+3}]") if b < 2 else f"v[{s4}:{s4+3}]"
                A(f"v_mfma_f32_16x16x32_bf16 v[{s4}:{s4+3}], v[{f}:{f+3}], v[{V_Q+4*(b^hh)}:{V_Q+4*(b^hh)+3}], {c4}")
        elif (EXPT & 4096) and kind == "v":
            for hh in range(2):
                o4 = V_ACC + b * 16 + (a & 1) * 8 + hh * 4
                p = V_S + (t & 1) * 32 + 4 * a
                c4 = "0" if (t == 0 and a < 2) else f"v[{o4}:{o4+3}]"
                A(f"v_mfma_f32_16x16x32_bf16 v[{o4}:{o4+3}], v[{f}:{f+3}], v[{p}:{p+3}], {c4}")
        elif kind == "k":
            s = V_S + (t & 1) * 32 + a * 16
            c = ("0" if (t == 0 or not CT) else f"v[{V_NB}:{V_NB+15}]") if b == 0 else f"v[{s}:{s+15}]"
            A(f"v_mfma_f32_32x32x16_bf16 v[{s}:{s+15}], v[{f}:{f+3}], v[{V_Q+4*b}:{V_Q+4*b+3}], {c}")
        else:
            o = V_ACC + b * 16
            p = V_S + (t & 1) * 32 + 4 * a
            c = "0" if (t == 0 and a == 0) else f"v[{o}:{o+15}]"
            A(f"v_mfma_f32_32x32x16_bf16 v[{o}:{o+15}], v[{f}:{f+3}], v[{p}:{p+3}], {c}")
        runahead(i, epoch)
    def seg(idx, n, valu, epoch):
        nv = len(valu); k = 0
        def em(x):
            if isinstance(x, list):
                for y in x:
                    if y.endswith(":"): A.label(y[:-1])
                    else: A(y)
            else: A(x)
        if n == 0:
            for x in valu: em(x)
            return idx
        for m_ in range(n):
            mfma(idx + m_, epoch)
            upto = (nv * (m_ + 1) + n - 1) // n
            while k < upto:
                em(valu[k]); k += 1
        return idx + n
    if DOT2:
        assert NOMAX
        A(f"v_mov_b32 v{PSUM}, 0"); A(f"v_mov_b32 v{PSUM+1}, 0"); A("v_mov_b32 v14, 0x3f803f80")
    idx = seg(0, 16, [], -1)
    for t in range(8):
        if t + 1 < 8: vm.wait(("k", t + 1))
        vm.wait(("v", t))
        if not (EXPT & 8): A("s_barrier")
        if t >= 0 and t + 3 < 8: k_dma(A, vm, t + 3)
        if t >= 1 and t + 1 < 8: v_dma(A, vm, t + 1)
        PFMODE = int(os.environ.get("PFMODE", "1"))
        if PREFETCH and t == 1:
            A("v_lshlrev_b32 v12, 6, v0")
            A(f"s_lshl_b32 s{S_TMP}, s{S_M}, 14")
            A(f"s_add_u32 s{S_TMP+1}, s{S_TMP}, 16384")
            A(f"s_mov_b32 s{S_XN}, s{S_WO}")
            A(f"s_mov_b32 s{S_XN+1}, s{S_WO+1}")
            A(f"s_mov_b32 s{S_XN+2}, s{S_TMP+1}")
            A(f"buffer_load_dword v15, v12, s[{S_XN}:{S_XN+3}], s{S_TMP} offen"); vm.issue("pf")
        if PREFETCH and PFMODE < 2:
            for (tt, p, sz) in ((2, 92, 512*1024), (2, 94, 512*1024), (3, 96, 1792*1024), (4, 98, 1792*1024)):
                if t != (1 if PFMODE == 0 else tt): continue
                per = sz // 256
                if p == 96 and int(os.environ.get("K5N", "0")): per = (56 * int(os.environ.get('W3S', '32768')) // 256 + 63) // 64 * 64
                A(f"s_mul_i32 s{S_TMP}, s2, {per}")
                if p == 96 and int(os.environ.get("K5N", "0")):
                    A(f"s_add_u32 s{S_TMP}, s{S_TMP}, {28 * MB}")
                    p = 68
                make_srd(A, S_XN, p, f"s{S_TMP}", per)
                A(f"buffer_load_dword v15, v12, s[{S_XN}:{S_XN+3}], 0 offen"); vm.issue("pf")
        XPF = int(os.environ.get("XPF", "0"))
        if XPF and t in (5, 6):
            for (tt, p, sz, bit) in ((5, 96, 1792*1024, 1), (6, 98, 1792*1024, 2), (5, 92, 512*1024, 4), (6, 94, 512*1024, 4)):
                if t != tt or not (XPF & bit): continue
                per = sz // 32
                A(f"s_lshr_b32 s{S_TMP}, s2, 3")
                A(f"s_mul_i32 s{S_TMP}, s{S_TMP}, {per}")
                make_srd(A, S_XN, p, f"s{S_TMP}", per)
                A("v_lshlrev_b32 v13, 7, v0")
                A(f"buffer_load_dword v15, v13, s[{S_XN}:{S_XN+3}], 0 offen"); vm.issue("pf")
        if t == 7 and D6:
            A(f"s_lshl_b32 s{S_OFF}, s{S_WAVE}, 7")
            for st in range(4):
                gemm_dma6(A, vm, st, S_WO, V_WOOFF, 1024)
        elif t == 7:
            A(f"s_add_u32 s{S_RB}, s{S_RB}, 32768")
            A(f"s_lshl_b32 s{S_OFF}, s{S_WAVE}, 7")
            for nb in range(2):
                A(f"v_add_u32 v{V_AADDR+nb}, 32768, v{V_AADDR+nb}")
            for st in range(D):
                gemm_dma(A, vm, st, S_WO, V_WOOFF, 1024, D)
        mxl = sm_max(t)
        if t == 0:
            mxl = ["s_nop 7", "s_nop 3"] + mxl
        idx = seg(idx, 4 if t > 0 else 0, mxl, t)
        b = sm_quarter(t, 0) + sm_rescale(t) + sm_quarter(t, 1) + ["s_nop 1"]
        idx = seg(idx, 16 if t + 1 < 8 else 0, b, t)
        q3 = sm_quarter(t, 3)
        h = len(q3) // 3
        idx = seg(idx, 8, sm_quarter(t, 2) + ["s_nop 1"] + q3[:h], t)
        idx = seg(idx, 4, q3[h:] + sm_lupd(t) + ["s_nop 1"], t)
        stamp()
    idx = seg(idx, 4, [], 7)
    assert idx == len(seq)
    if DOT2: A(f"v_add_f32 v{V_L}, v{PSUM}, v{PSUM+1}")
    A(f"v_mov_b32 v2, v{V_L}")
    A(f"v_mov_b32 v3, v{V_L}")
    A("s_nop 1")
    A(f"v_permlane32_swap_b32 v2, v3")
    A("s_nop 1")
    A(f"v_add_f32 v{V_L}, v2, v3")
    for j in range(8):
        A(f"v_add_u32 v{V_QADDR+j}, s{S_QOFF}, v{V_BADDR+j}")
    A(f"v_rcp_f32 v{V_ALPHA}, v{V_L}")
    A("s_nop 7")
    A("s_nop 3")
    for db in range(4):
        o = V_ACC + db * 16
        for mp in range(2):
            d = V_S + (db * 2 + mp) * 4
            for e in range(0, 8, 2):
                A(f"v_pk_mul_f32 v[{o+8*mp+e}:{o+8*mp+e+1}], v[{o+8*mp+e}:{o+8*mp+e+1}], v[{V_ALPHA}:{V_ALPHA+1}] op_sel_hi:[1,0]")
            for e in range(4):
                A(f"v_cvt_pk_bf16_f32 v{d+e}, v{o+8*mp+2*e}, v{o+8*mp+2*e+1}")
            A(f"ds_write_b128 v{V_QADDR+2*db+mp}, v[{d}:{d+3}]")
            lg.issue("ow")
            if DEBUG:
                A(f"v_and_b32 v5, 31, v{L}")
                A(f"v_lshrrev_b32 v6, 5, v{L}")
                A("v_lshlrev_b32 v5, 13, v5")
                A("v_lshl_add_u32 v5, v6, 4, v5")
                A(f"s_lshl_b32 s{S_TMP+2}, s{S_M}, 19")
                A(f"s_lshl_b32 s{S_TMP+3}, s{S_G}, 10")
                A(f"s_add_u32 s{S_TMP+2}, s{S_TMP+2}, s{S_TMP+3}")
                A(f"s_and_b32 s{S_TMP+3}, s{S_WAVE}, 3")
                A(f"s_lshl_b32 s{S_TMP+3}, s{S_TMP+3}, 8")
                A(f"s_add_u32 s{S_TMP+2}, s{S_TMP+2}, s{S_TMP+3}")
                A(f"s_lshr_b32 s{S_TMP+3}, s{S_WAVE}, 2")
                A(f"s_lshl_b32 s{S_TMP+3}, s{S_TMP+3}, 18")
                A(f"s_add_u32 s{S_TMP+2}, s{S_TMP+2}, s{S_TMP+3}")
                A(f"s_add_u32 s{S_TMP+2}, s{S_TMP+2}, {16*MB + db*64 + mp*32}")
                A(f"buffer_store_dwordx4 v[{d}:{d+3}], v5, s[{S_DBG}:{S_DBG+3}], s{S_TMP+2} offen")
                vm.issue("dbg")
    if M16: addr16(A)
    lg.waitall()
    A("s_barrier")
    stamp()
    if M16: gemm_core16(A, vm, lg, S_WO, V_WOOFF, 1024, 4)
    elif D6: gemm_core6(A, vm, lg, S_WO, V_WOOFF, 1024, 4, bars=eval(os.environ.get('B3', '()')))
    else: gemm_core(A, vm, lg, S_WO, V_WOOFF, 1024, D)
    stamp()
    if int(os.environ.get("TSTORE", "1")) and PART_BF16:
        if M16:
            A(f"v_and_b32 v5, 15, v{L}")
            A(f"v_lshrrev_b32 v6, 5, v{L}")
            A("v_and_b32 v7, 7, v5")
            A("v_xor_b32 v6, v6, v7")
            A(f"v_bfe_u32 v8, v{L}, 4, 1")
            A("v_lshlrev_b32 v8, 3, v8")
            A("v_lshl_add_u32 v8, v5, 7, v8")
            A(f"v_add_u32 v8, s{S_RB}, v8")
            for nt in range(4):
                A(f"v_xor_b32 v9, {2*nt}, v6")
                A(f"v_lshl_add_u32 v{10+nt}, v9, 4, v8")
        else:
            A(f"v_and_b32 v5, 31, v{L}")
            A(f"v_lshrrev_b32 v6, 5, v{L}")
            A("v_and_b32 v7, 7, v5")
            if D6:
                A("v_lshrrev_b32 v8, 4, v5")
                A("v_and_b32 v5, 15, v5")
                A("v_lshl_add_u32 v5, v8, 7, v5")
            for j in range(4):
                A(f"v_or_b32 v8, {2*j}, v6")
                A("v_xor_b32 v8, v8, v7")
                A("v_lshlrev_b32 v8, 4, v8")
                A("v_lshl_add_u32 v8, v5, 7, v8")
                A(f"v_add_u32 v{10+j}, s{S_RB}, v8")
        A(f"v_lshrrev_b32 v7, 3, v{L}")
        A(f"v_and_b32 v8, 7, v{L}")
        A("v_xor_b32 v9, v8, v7")
        A("v_lshlrev_b32 v9, 4, v9")
        A("v_lshl_add_u32 v9, v7, 7, v9")
        A(f"v_add_u32 v9, s{S_RB}, v9")
        A("v_lshlrev_b32 v8, 4, v8")
        A("v_lshl_add_u32 v8, v7, 10, v8")
        if PL:
            A(f"s_lshl_b32 s{S_TMP}, s{S_WAVE}, 7")
        else:
            A(f"s_lshl_b32 s{S_TMP}, s{S_M}, 16")
            A(f"s_lshl_b32 s{S_TMP+1}, s{S_WAVE}, 7")
            A(f"s_add_u32 s{S_TMP}, s{S_TMP}, s{S_TMP+1}")
        for nt in range(4 if M16 else 0):
            for rt in range(4):
                acc = V_ACC + (nt * 4 + rt) * 4
                d = V_S + (nt * 4 + rt) * 2
                for e in range(2):
                    A(f"v_cvt_pk_bf16_f32 v{d+e}, v{acc+2*e}, v{acc+2*e+1}")
                A(f"ds_write_b64 v{10+nt}, v[{d}:{d+1}] offset:{rt*16384}")
        for nb in range(0 if M16 else 2):
            for rb in range(2):
                acc = V_ACC + (nb * 2 + rb) * 16
                for mp in range(2):
                    d = V_S + (nb * 4 + rb * 2 + mp) * 4
                    for e in range(4):
                        A(f"v_cvt_pk_bf16_f32 v{d+e}, v{acc+8*mp+2*e}, v{acc+8*mp+2*e+1}")
                    A(f"ds_write_b128 v{10+2*nb+mp}, v[{d}:{d+3}] offset:{rb*(32768 if D6 else 4096)}")
        A("s_waitcnt lgkmcnt(0)")
        for i in range(8):
            A(f"ds_read_b128 v[{V_S+32+4*i}:{V_S+32+4*i+3}], v9 offset:{((i >> 1) * 16384 + (i & 1) * 1024) if D6 else i*1024}")
        for i in range(8):
            A(f"s_waitcnt lgkmcnt({7-i})")
            A(f"buffer_store_dwordx4 v[{V_S+32+4*i}:{V_S+32+4*i+3}], v8, s[{S_P}:{S_P+3}], s{S_TMP} offen {os.environ.get('PSTF','sc1')}")
            if i < 7: A(f"s_add_u32 s{S_TMP}, s{S_TMP}, 8192")
    else:
        A(f"v_and_b32 v5, 31, v{L}")
        A(f"v_lshrrev_b32 v6, 5, v{L}")
        sh = 10 if PART_BF16 else 11
        A(f"v_lshlrev_b32 v5, {sh}, v5")
        A(f"v_lshl_add_u32 v5, v6, {4 if PART_BF16 else 5}, v5")
        A(f"s_lshl_b32 s{S_TMP}, s{S_M}, {sh + 6}")
        A(f"s_lshl_b32 s{S_TMP+1}, s{S_WAVE}, {7 if PART_BF16 else 8}")
        A(f"s_add_u32 s{S_TMP}, s{S_TMP}, s{S_TMP+1}")
        A(f"s_add_u32 s{S_TMP+1}, s{S_TMP}, {32 << sh}")
        A("s_nop 7")
        A("s_nop 3")
        for nb in range(2):
            for rb in range(2):
                acc = V_ACC + (nb * 2 + rb) * 16
                for mp in range(2):
                    if PART_BF16:
                        d = V_S + (nb * 4 + rb * 2 + mp) * 4
                        for e in range(4):
                            A(f"v_cvt_pk_bf16_f32 v{d+e}, v{acc+8*mp+2*e}, v{acc+8*mp+2*e+1}")
                        A(f"buffer_store_dwordx4 v[{d}:{d+3}], v5, s[{S_P}:{S_P+3}], s{S_TMP+rb} offen offset:{(32*nb+16*mp)*2} {os.environ.get('PSTF','sc1')}")
                    else:
                        for h4 in range(2):
                            A(f"buffer_store_dwordx4 v[{acc+8*mp+4*h4}:{acc+8*mp+4*h4+3}], v5, s[{S_P}:{S_P+3}], s{S_TMP+rb} offen offset:{(32*nb+16*mp+4*h4)*4}")
    if TIMING:
        A("s_waitcnt vmcnt(0)")
        stamp(); stamp(True)
        stamp.flush()
    if emb: return
    A("s_endpgm")
    A.raw(kernel_desc(name, 256, 102, 256))
    return (name, (256, 1, 1), (512, 1, 1), 163840)
```

```python
from asmlib import *
from gen_k0 import *
import os
DEBUG = int(os.environ.get("K1DEBUG", "0"))
PART_BF16 = int(os.environ.get("PARTBF16", "1"))
MIMIC = int(os.environ.get("MIMIC", "0"))
LAZY = int(os.environ.get("LAZY", "1"))
THR = float(os.environ.get("THR","30.0"))
TIMING = int(os.environ.get("TIMING", "0"))
USEPK = int(os.environ.get("USEPK", "0"))
EXPT = int(os.environ.get("EXPT", "0"))
NOMAX = int(os.environ.get("NOMAX", "0"))
DOT2 = int(os.environ.get("DOT2", "0"))

class Cnt:
    def __init__(self, A, name, maxv):
        self.A = A; self.name = name; self.maxv = maxv; self.ops = []
    def issue(self, tag):
        self.ops.append(tag)
        assert len(self.ops) <= self.maxv + 1 or self.name == "vmcnt", (self.name, len(self.ops))
    def wait(self, tag):
        idx = None
        for i, t in enumerate(self.ops):
            if t == tag: idx = i
        if idx is None:
            return
        n = len(self.ops) - 1 - idx
        assert n <= self.maxv, (self.name, n)
        self.A(f"s_waitcnt {self.name}({n})")
        self.ops = self.ops[idx+1:]
    def waitall(self):
        self.A(f"s_waitcnt {self.name}(0)")
        self.ops = []

class Stamper:
    def __init__(self, A, lg, srd, swave, base=72):
        self.A = A; self.lg = lg; self.n = 0; self.srd = srd; self.swave = swave; self.base = base
    def __call__(self, real=False):
        if not TIMING: return
        A = self.A
        self.lg.waitall()
        A("s_memrealtime s[70:71]" if (real or TIMING == 2) else "s_memtime s[70:71]")
        A("s_waitcnt lgkmcnt(0)")
        A(f"s_mov_b32 s{self.base+self.n}, s70")
        self.n += 1
    def flush(self):
        if not TIMING: return
        A = self.A
        A(f"s_lshl_b32 s70, s2, 3")
        A(f"s_add_u32 s70, s70, s{self.swave}")
        A(f"s_lshl_b32 s70, s70, 7")
        A("v_mov_b32 v5, 0")
        for i in range(self.n):
            A(f"v_mov_b32 v6, s{self.base+i}")
            A(f"buffer_store_dword v6, v5, s[{self.srd}:{self.srd+3}], s70 offen offset:{4*i}")

ACT = 0
STG = 65536
KRING = STG + 3 * 16384
VRING = STG
V_LANE = 1
V_BADDR = 16; V_AADDR = 24; V_WQOFF = 26; V_WOOFF = 27
V_KADDR = 28; V_VADDR = 36; V_KOFF = 40; V_VOFF = 42
V_M = 43; V_L = 44; V_ALPHA = 46; V_NEGC = 48
V_QADDR = 50
V_T = 58
V_ACC = 64
V_Q = 128
V_S = 160
V_F = 224
NF = 8
RA = int(os.environ.get('RA','6'))
PRIO = int(os.environ.get('PRIO','0'))
CT = int(os.environ.get('CT','1'))
V_NB = 48
S_XN = 8; S_MOD = 12; S_WQ = 16; S_K = 20; S_V = 24; S_WO = 28; S_P = 32; S_DBG = 36
S_WAVE = 40; S_G = 41; S_M = 42; S_RB = 43; S_OFF = 44; S_MASK = 45; S_KVOFF = 46; S_KVM0 = 47
S_C1 = 48; S_K2 = 50; S_SC = 52; S_L2E = 54
S_TMP = 56
S_SL = 66
S_FLAG = 64
S_QOFF = 67
SCALE = 128 ** -0.5

def gemm_dma(A, vm, step, srd, voff, rowstride, D):
    for half in range(2):
        A(f"s_add_u32 m0, s{S_RB}, {(step % D) * 2048 + half * 1024}")
        A("s_nop 0")
        A(f"buffer_load_dwordx4 v{voff}, s[{srd}:{srd+3}], s{S_OFF} offen lds")
        vm.issue(("w", step))
        A(f"s_add_u32 s{S_OFF}, s{S_OFF}, {8 * rowstride}")

def gemm_reads(A, lg, step, D):
    buf = V_Q + (step & 1) * 16
    if (EXPT & 128) and step > 1: return
    for nb in range(2):
        for q in range(2):
            A(f"ds_read_b64_tr_b16 v[{buf+nb*4+q*2}:{buf+nb*4+q*2+1}], v{V_AADDR+nb} offset:{(step % D) * 2048 + q * 512}")
            lg.issue(("f", step))
    for rb in range(2):
        A(f"ds_read_b128 v[{buf+8+rb*4}:{buf+8+rb*4+3}], v{V_BADDR + (step & 7)} offset:{(step >> 3) * 256 + rb * 32768}")
        lg.issue(("f", step))

def gemm_core(A, vm, lg, srd, voff, rowstride, D=4, NS=32):
    vm.wait(("w", 0))
    gemm_reads(A, lg, 0, D)
    for ks in range(NS):
        if ks + 1 < NS:
            vm.wait(("w", ks + 1))
            gemm_reads(A, lg, ks + 1, D)
        lg.wait(("f", ks))
        if ks + D < NS and not (EXPT & 32):
            gemm_dma(A, vm, ks + D, srd, voff, rowstride, D)
        buf = V_Q + (ks & 1) * 16
        for nb in range(2):
            for rb in range(2):
                acc = V_ACC + (nb * 2 + rb) * 16
                c = "0" if ks == 0 else f"v[{acc}:{acc+15}]"
                if (EXPT & 64) and ks > 0: continue
                A(f"v_mfma_f32_32x32x16_bf16 v[{acc}:{acc+15}], v[{buf+nb*4}:{buf+nb*4+3}], v[{buf+8+rb*4}:{buf+8+rb*4+3}], {c}")

D6 = int(os.environ.get("D6", "1"))
V_AADDR2 = (43, 45)
def slot6(step): return (step + 2) % 6
def gemm_dma6(A, vm, step, srd, voff, rowstride):
    for half in range(2):
        A(f"s_add_u32 m0, s{S_RB}, {slot6(step) * 16384 + half * 1024}")
        A("s_nop 0")
        A(f"buffer_load_dwordx4 v{voff}, s[{srd}:{srd+3}], s{S_OFF} offen {os.environ.get('WONT', '') if srd == S_WO else ''} lds")
        vm.issue(("w", step))
        A(f"s_add_u32 s{S_OFF}, s{S_OFF}, {8 * rowstride}")
IL6 = int(os.environ.get("IL6", "0"))
def gemm_reads6(A, lg, step):
    buf = V_Q + ((step % 3) if IL6 else (step & 1)) * 16
    sl = slot6(step)
    for nb in range(2):
        for q in range(2):
            a = V_AADDR + nb if sl < 4 else V_AADDR2[nb]
            A(f"ds_read_b64_tr_b16 v[{buf+nb*4+q*2}:{buf+nb*4+q*2+1}], v{a} offset:{(sl & 3) * 16384 + q * 512}")
            lg.issue(("f", step))
    for rb in range(2):
        A(f"ds_read_b128 v[{buf+8+rb*4}:{buf+8+rb*4+3}], v{V_BADDR + (step & 7)} offset:{(step >> 3) * 256 + rb * 32768}")
        lg.issue(("f", step))
def gemm_core6(A, vm, lg, srd, voff, rowstride, pre, tail=None, NS=32, bars=()):
    for st in range(pre, 6): gemm_dma6(A, vm, st, srd, voff, rowstride)
    if IL6:
        for s0 in range(2):
            vm.wait(("w", s0)); gemm_reads6(A, lg, s0)
        for ks in range(NS):
            lg.wait(("f", ks))
            sv = A.lines; A.lines = []
            if IL6 == 2:
                if ks + 6 < NS: gemm_dma6(A, vm, ks + 6, srd, voff, rowstride)
                elif tail: tail(ks)
            if ks + 2 < NS:
                vm.wait(("w", ks + 2)); gemm_reads6(A, lg, ks + 2)
            if IL6 == 1:
                if ks + 6 < NS: gemm_dma6(A, vm, ks + 6, srd, voff, rowstride)
                elif tail: tail(ks)
            fill = A.lines; A.lines = sv
            buf = V_Q + (ks % 3) * 16
            k = 0
            for i in range(4):
                nb, rb = i >> 1, i & 1
                acc = V_ACC + (nb * 2 + rb) * 16
                c = "0" if ks == 0 else f"v[{acc}:{acc+15}]"
                A(f"v_mfma_f32_32x32x16_bf16 v[{acc}:{acc+15}], v[{buf+nb*4}:{buf+nb*4+3}], v[{buf+8+rb*4}:{buf+8+rb*4+3}], {c}")
                upto = (len(fill) * (i + 1) + 3) // 4
                A.lines.extend(fill[k:upto]); k = upto
        return
    vm.wait(("w", 0))
    gemm_reads6(A, lg, 0)
    for ks in range(NS):
        if ks + 1 < NS:
            vm.wait(("w", ks + 1))
            gemm_reads6(A, lg, ks + 1)
        lg.wait(("f", ks))
        if ks + 6 < NS:
            gemm_dma6(A, vm, ks + 6, srd, voff, rowstride)
        elif tail: tail(ks)
        if ks in bars: A("s_barrier")
        buf = V_Q + (ks & 1) * 16
        for nb in range(2):
            for rb in range(2):
                acc = V_ACC + (nb * 2 + rb) * 16
                c = "0" if ks == 0 else f"v[{acc}:{acc+15}]"
                A(f"v_mfma_f32_32x32x16_bf16 v[{acc}:{acc+15}], v[{buf+nb*4}:{buf+nb*4+3}], v[{buf+8+rb*4}:{buf+8+rb*4+3}], {c}")

def k_dma(A, vm, t):
    A(f"s_mov_b32 s{S_KVOFF}, {t * 16384}")
    A(f"s_add_u32 m0, s{S_KVM0}, {KRING + ((t + 1) % 3) * 16384}")
    A("s_nop 0")
    A(f"buffer_load_dwordx4 v{V_KOFF}, s[{S_K}:{S_K+3}], s{S_KVOFF} offen lds")
    vm.issue(("k", t))
    A(f"buffer_load_dwordx4 v{V_KOFF+1}, s[{S_K}:{S_K+3}], s{S_KVOFF} offen offset:1024 lds")
    vm.issue(("k", t))
def v_dma(A, vm, t):
    A(f"s_mov_b32 s{S_KVOFF}, {t * 16384}")
    A(f"s_add_u32 m0, s{S_KVM0}, {VRING + (t % 3) * 16384}")
    A("s_nop 0")
    A(f"buffer_load_dwordx4 v{V_VOFF}, s[{S_V}:{S_V+3}], s{S_KVOFF} offen lds")
    vm.issue(("v", t))
    A(f"buffer_load_dwordx4 v{V_VOFF}, s[{S_V}:{S_V+3}], s{S_KVOFF} offen offset:1024 lds")
    vm.issue(("v", t))

def sm_max(t):
    S = V_S + (t & 1) * 32
    mx = 2 if CT else V_T
    L = []
    if NOMAX and t > 0: return []
    L.append(f"v_max3_f32 v{mx}, v{S}, v{S+1}, v{S+2}")
    L.append(f"v_max3_f32 v{mx+1}, v{S+3}, v{S+4}, v{S+5}")
    for i in range(6, 30, 4):
        L.append(f"v_max3_f32 v{mx}, v{mx}, v{S+i}, v{S+i+1}")
        L.append(f"v_max3_f32 v{mx+1}, v{mx+1}, v{S+i+2}, v{S+i+3}")
    L.append(f"v_max3_f32 v{mx}, v{mx}, v{S+30}, v{S+31}")
    L.append(f"v_max_f32 v{mx}, v{mx}, v{mx+1}")
    L.append(f"v_mov_b32 v{mx+1}, v{mx}")
    L.append("s_nop 1")
    L.append(f"v_permlane32_swap_b32 v{mx}, v{mx+1}")
    L.append("s_nop 1")
    L.append(f"v_max_f32 v{mx}, v{mx}, v{mx+1}")
    g, d = mx + 1, mx + 2
    if CT:
        if t == 0:
            for i in range(16): L.append(f"v_sub_f32 v{V_NB+i}, 0, v{mx}")
            for i in range(32): L.append(f"v_sub_f32 v{S+i}, v{S+i}, v{mx}")
            return L
        lbl = f".Lk1_nors_{t}"
        L.append(f"v_cmp_lt_f32 vcc, {fhex(THR)}, v{mx}")
        L.append(f"s_mov_b64 s[{S_FLAG}:{S_FLAG+1}], vcc")
        L.append([f"s_cbranch_vccz {lbl}",
                  f"v_max_f32 v{mx}, 0, v{mx}",
                  f"v_sub_f32 v{V_ALPHA}, 0, v{mx}",
                  f"v_exp_f32 v{V_ALPHA}, v{V_ALPHA}"]
                 + [f"v_sub_f32 v{V_NB+i}, v{V_NB+i}, v{mx}" for i in range(16)]
                 + [f"v_sub_f32 v{S+i}, v{S+i}, v{mx}" for i in range(32)]
                 + [f"v_mul_f32 v{V_L}, v{V_L}, v{V_ALPHA}", f"{lbl}:"])
        return L
    if MIMIC:
        L.append(f"v_mul_f32 v{g}, s{S_C1}, v{mx}")
        L.append(f"v_sub_f32 v{d}, v{mx}, v{g}")
        L.append(f"v_add_f32 v{mx}, v{g}, v{d}")
        L.append(f"v_mul_f32 v{g}, s{S_K2}, v{mx}")
        L.append(f"v_fma_f32 v{d}, v{mx}, s{S_SC}, -v{g}")
        L.append(f"v_add_f32 v{mx}, v{g}, v{d}")
    else:
        L.append(f"v_mul_f32 v{mx}, s{S_SC}, v{mx}")
    if LAZY and t > 0:
        lbl = f".Lk1_nors_{t}"
        L.append(f"v_sub_f32 v{V_ALPHA}, v{V_M}, v{mx}")
        L.append(f"v_cmp_gt_f32 vcc, {fhex(-THR / LOG2E)}, v{V_ALPHA}")
        L.append(f"s_mov_b64 s[{S_FLAG}:{S_FLAG+1}], vcc")
        L.append([f"s_cbranch_vccz {lbl}",
                  f"v_max_f32 v{mx}, v{mx}, v{V_M}",
                  f"v_sub_f32 v{V_ALPHA}, v{V_M}, v{mx}",
                  f"v_mul_f32 v{V_ALPHA}, s{S_L2E}, v{V_ALPHA}",
                  f"v_exp_f32 v{V_ALPHA}, v{V_ALPHA}",
                  f"v_mov_b32 v{V_M}, v{mx}",
                  f"v_mul_f32 v{V_NEGC}, s{S_L2E}, v{mx}",
                  f"v_sub_f32 v{V_NEGC}, 0, v{V_NEGC}",
                  f"v_mul_f32 v{V_L}, v{V_L}, v{V_ALPHA}",
                  f"{lbl}:"])
        return L
    if t > 0:
        L.append(f"v_max_f32 v{mx}, v{mx}, v{V_M}")
        L.append(f"v_sub_f32 v{V_ALPHA}, v{V_M}, v{mx}")
        L.append(f"v_mul_f32 v{V_ALPHA}, s{S_L2E}, v{V_ALPHA}")
        L.append(f"v_exp_f32 v{V_ALPHA}, v{V_ALPHA}")
    L.append(f"v_mov_b32 v{V_M}, v{mx}")
    L.append(f"v_mul_f32 v{V_NEGC}, s{S_L2E}, v{mx}")
    L.append(f"v_sub_f32 v{V_NEGC}, 0, v{V_NEGC}")
    return L

PSUM = 10
def sm_quarter(t, q):
    S = V_S + (t & 1) * 32
    L = []
    pairs = list(range(8 * q, 8 * q + 8, 2))
    def pre(i):
        x = f"v[{S+i}:{S+i+1}]"
        k = (i >> 1) & 1
        g = f"v[{2+4*k}:{3+4*k}]"; d = f"v[{4+4*k}:{5+4*k}]"
        if CT:
            return []
        if not USEPK:
            out = []
            xs = [S + i, S + i + 1]; gs = [2 + 4 * k, 3 + 4 * k]; ds = [4 + 4 * k, 5 + 4 * k]
            if MIMIC:
                for op in range(7):
                    for e in range(2):
                        x_, g_, d_ = xs[e], gs[e], ds[e]
                        out.append([f"v_mul_f32 v{g_}, s{S_C1}, v{x_}",
                                    f"v_sub_f32 v{d_}, v{x_}, v{g_}",
                                    f"v_add_f32 v{x_}, v{g_}, v{d_}",
                                    f"v_mul_f32 v{g_}, s{S_K2}, v{x_}",
                                    f"v_fma_f32 v{d_}, v{x_}, s{S_SC}, -v{g_}",
                                    f"v_add_f32 v{x_}, v{g_}, v{d_}",
                                    f"v_fma_f32 v{x_}, v{x_}, s{S_L2E}, v{V_NEGC}"][op])
            else:
                for e in range(2):
                    out.append(f"v_fma_f32 v{xs[e]}, v{xs[e]}, s{S_SL}, v{V_NEGC}")
            return out
        if MIMIC:
            return [f"v_pk_mul_f32 {g}, {x}, s[{S_C1}:{S_C1+1}]",
                    f"v_pk_add_f32 {d}, {x}, {g} neg_lo:[0,1] neg_hi:[0,1]",
                    f"v_pk_add_f32 {x}, {g}, {d}",
                    f"v_pk_mul_f32 {g}, {x}, s[{S_K2}:{S_K2+1}]",
                    f"v_pk_fma_f32 {d}, {x}, s[{S_SC}:{S_SC+1}], {g} neg_lo:[0,0,1] neg_hi:[0,0,1]",
                    f"v_pk_add_f32 {x}, {g}, {d}",
                    f"v_pk_fma_f32 {x}, {x}, s[{S_L2E}:{S_L2E+1}], v[{V_NEGC}:{V_NEGC+1}] op_sel_hi:[1,1,0]"]
        return [f"v_pk_mul_f32 {x}, {x}, s[{S_SC}:{S_SC+1}]",
                f"v_pk_fma_f32 {x}, {x}, s[{S_L2E}:{S_L2E+1}], v[{V_NEGC}:{V_NEGC+1}] op_sel_hi:[1,1,0]"]
    for a in range(0, 4, 2):
        p0, p1 = pre(pairs[a]), pre(pairs[a + 1])
        for x, y in zip(p0, p1):
            L += [x, y]
        for i in (pairs[a], pairs[a + 1]):
            L.append(f"v_exp_f32 v{S+i}, v{S+i}")
            L.append(f"v_exp_f32 v{S+i+1}, v{S+i+1}")
    L.append("s_nop 0")
    for i in pairs:
        if DOT2:
            L.append(f"v_cvt_pk_bf16_f32 v{S + i // 2}, v{S+i}, v{S+i+1}")
            continue
        if i == 0:
            L.append(f"v_mov_b32 v{PSUM}, v{S}")
            L.append(f"v_mov_b32 v{PSUM+1}, v{S+1}")
        elif USEPK:
            L.append(f"v_pk_add_f32 v[{PSUM}:{PSUM+1}], v[{PSUM}:{PSUM+1}], v[{S+i}:{S+i+1}]")
        else:
            L.append(f"v_add_f32 v{PSUM}, v{PSUM}, v{S+i}")
            L.append(f"v_add_f32 v{PSUM+1}, v{PSUM+1}, v{S+i+1}")
        L.append(f"v_cvt_pk_bf16_f32 v{S + i // 2}, v{S+i}, v{S+i+1}")
    if DOT2:
        for i in pairs:
            a = PSUM + ((i >> 1) & 1)
            if DOT2 == 1: L.append(f"v_dot2c_f32_bf16 v{a}, v{S + i // 2}, v14")
            else: L.append(f"v_dot2_f32_bf16 v{a}, v{S + i // 2}, v14, v{a}")
    if EXPT & 1: L = [x for x in L if not x.startswith("v_exp")]
    if EXPT & 2: L = [x for x in L if x.startswith("v_exp") or x.startswith("s_nop")]
    return L

def sm_rescale(t):
    if t == 0 or NOMAX: return []
    if LAZY:
        lbl = f".Lk1_nors2_{t}"
        return [[f"s_cmp_eq_u64 s[{S_FLAG}:{S_FLAG+1}], 0", f"s_cbranch_scc1 {lbl}"] + [f"v_mul_f32 v{V_ACC+i}, v{V_ALPHA}, v{V_ACC+i}" for i in range(64)] + [f"{lbl}:"]]
    if not USEPK:
        return [f"v_mul_f32 v{V_ACC+i}, v{V_ALPHA}, v{V_ACC+i}" for i in range(64)]
    return [f"v_pk_mul_f32 v[{V_ACC+i}:{V_ACC+i+1}], v[{V_ACC+i}:{V_ACC+i+1}], v[{V_ALPHA}:{V_ALPHA+1}] op_sel_hi:[1,0]" for i in range(0, 64, 2)]

def sm_lupd(t):
    if DOT2: return []
    L = [f"v_add_f32 v{PSUM}, v{PSUM}, v{PSUM+1}"]
    if t == 0:
        L.append(f"v_mov_b32 v{V_L}, v{PSUM}")
    elif LAZY:
        L.append(f"v_add_f32 v{V_L}, v{V_L}, v{PSUM}")
    else:
        L.append(f"v_fma_f32 v{V_L}, v{V_L}, v{V_ALPHA}, v{PSUM}")
    return L

def gen_k1(A, emb=False, pre=None, hookA=None, hookB=None, kname="k1_kernel", v2=False, hookC=None):
    name = kname
    vm = Cnt(A, "vmcnt", 63); lg = Cnt(A, "lgkmcnt", 15)
    stamp = Stamper(A, lg, S_DBG, S_WAVE)
    kernel_header(A, name)
    A("s_cmp_lt_u32 s2, 256")
    A("s_cbranch_scc1 .Lk1_go")
    A("s_endpgm")
    A.label(".Lk1_go")
    if pre: pre()
    A("s_load_dwordx4 s[60:63], s[0:1], 8")
    A("s_load_dwordx4 s[64:67], s[0:1], 24")
    A("s_load_dwordx2 s[68:69], s[0:1], 112")
    A("s_load_dwordx8 s[92:99], s[0:1], 48")
    A(f"v_and_b32 v{V_LANE}, 63, v0")
    A("v_lshrrev_b32 v2, 6, v0")
    A("s_nop 0")
    A(f"v_readfirstlane_b32 s{S_WAVE}, v2")
    KM = int(os.environ.get("K1MAP","1"))
    if KM == 1:
        A(f"s_lshr_b32 s{S_G}, s2, 5")
        A(f"s_and_b32 s{S_M}, s2, 31")
    elif KM == 4:
        A(f"s_and_b32 s{S_G}, s2, 6")
        A(f"s_lshr_b32 s{S_M}, s2, 7")
        A(f"s_or_b32 s{S_G}, s{S_G}, s{S_M}")
        A(f"s_bfe_u32 s{S_M}, s2, 0x40003")
        A(f"s_lshl_b32 s{S_M}, s{S_M}, 1")
        A(f"s_and_b32 s{S_TMP}, s2, 1")
        A(f"s_or_b32 s{S_M}, s{S_M}, s{S_TMP}")
    elif KM == 5:
        A(f"s_and_b32 s{S_G}, s2, 4")
        A(f"s_lshr_b32 s{S_M}, s2, 6")
        A(f"s_or_b32 s{S_G}, s{S_G}, s{S_M}")
        A(f"s_bfe_u32 s{S_M}, s2, 0x30003")
        A(f"s_lshl_b32 s{S_M}, s{S_M}, 2")
        A(f"s_and_b32 s{S_TMP}, s2, 3")
        A(f"s_or_b32 s{S_M}, s{S_M}, s{S_TMP}")
    elif KM == 0:
        A(f"s_and_b32 s{S_G}, s2, 7")
        A(f"s_lshr_b32 s{S_M}, s2, 3")
    else:
        nb_ = KM - 1
        A(f"s_and_b32 s{S_G}, s2, {(1 << nb_) - 1}")
        A(f"s_lshr_b32 s{S_M}, s2, {5 + nb_}")
        A(f"s_lshl_b32 s{S_M}, s{S_M}, {nb_}")
        A(f"s_or_b32 s{S_G}, s{S_G}, s{S_M}")
        A(f"s_bfe_u32 s{S_M}, s2, {hex((5 << 16) | nb_)}")
    A(f"s_mov_b32 s{S_MASK}, 0xffff0000")
    for (s, val) in ((S_C1, 65537.0), (S_K2, 65537.0 * SCALE), (S_SC, SCALE), (S_L2E, LOG2E)):
        A(f"s_mov_b32 s{s}, {fhex(val)}")
        A(f"s_mov_b32 s{s+1}, {fhex(val)}")
    L = V_LANE
    SM = f"s{S_MASK}"
    D = 4
    EARLYA = v2 and int(os.environ.get("EARLYA", "1"))
    if EARLYA:
        A(f"v_lshlrev_b32 v12, 4, v{L}")
        hookA()
    A(f"v_lshrrev_b32 v5, 3, v{L}")
    A(f"v_and_b32 v6, 7, v{L}")
    A("v_lshlrev_b32 v7, 1, v5")
    A("v_and_b32 v7, 4, v7")
    A("v_xor_b32 v6, v6, v7")
    A("v_lshlrev_b32 v6, 4, v6")
    A(f"v_lshl_add_u32 v{V_WQOFF}, v5, 13, v6")
    A(f"v_lshl_add_u32 v{V_WOOFF}, v5, 10, v6")
    A(f"s_lshl_b32 s{S_RB}, s{S_WAVE}, {11 if D6 else 13}")
    A(f"s_add_u32 s{S_RB}, s{S_RB}, {STG}")
    A(f"s_lshl_b32 s{S_OFF}, s{S_G}, 10")
    A(f"s_lshl_b32 s{S_TMP}, s{S_WAVE}, 7")
    A(f"s_add_u32 s{S_OFF}, s{S_OFF}, s{S_TMP}")
    A(f"v_lshrrev_b32 v5, 4, v{L}")
    A(f"v_and_b32 v6, 15, v{L}")
    A(f"s_lshl_b32 s{S_TMP}, s{S_WAVE}, 3")
    A(f"v_add_u32 v7, s{S_TMP}, v5")
    for j in range(2):
        A(f"v_add_u32 v8, {4*j}, v7")
        A("v_and_b32 v9, 15, v8")
        A("v_xor_b32 v9, v6, v9")
        A("v_lshlrev_b32 v9, 4, v9")
        A(f"v_lshl_add_u32 v{V_KOFF+j}, v7, 8, v9")
    A("v_lshlrev_b32 v9, 2, v5")
    A("v_xor_b32 v9, v6, v9")
    A("v_lshlrev_b32 v9, 4, v9")
    A(f"v_lshl_add_u32 v{V_VOFF}, v7, 8, v9")
    A(f"s_lshl_b32 s{S_KVM0}, s{S_WAVE}, 11")
    A(f"v_lshrrev_b32 v5, 5, v{L}")
    A(f"v_bfe_u32 v6, v{L}, 4, 1")
    A(f"v_bfe_u32 v7, v{L}, 2, 2")
    A(f"v_and_b32 v8, 1, v{L}")
    A(f"v_bfe_u32 v9, v{L}, 1, 1")
    A("v_lshl_or_b32 v8, v8, 1, v9")
    A("v_lshlrev_b32 v8, 3, v8")
    A("v_lshl_add_u32 v8, v6, 5, v8")
    A("v_lshl_add_u32 v10, v5, 3, v7")
    A("v_lshrrev_b32 v11, 1, v7")
    for nb in range(2):
        A(f"v_xor_b32 v12, {nb}, v11")
        A("v_lshl_add_u32 v12, v12, 6, v8")
        A("v_lshl_add_u32 v12, v10, 7, v12")
        A(f"v_add_u32 v{V_AADDR+nb}, s{S_RB}, v12")
        if D6: A(f"v_add_u32 v{V_AADDR2[nb]}, 65536, v{V_AADDR+nb}")
    for db in range(4):
        A(f"v_xor_b32 v12, {db}, v7")
        A("v_lshl_add_u32 v12, v12, 6, v8")
        A(f"v_lshl_add_u32 v12, v10, 8, v12")
        A(f"v_add_u32 v{V_VADDR+db}, {VRING}, v12")
    A(f"v_and_b32 v6, 31, v{L}")
    for j in range(8):
        A(f"v_or_b32 v7, {2*j}, v5")
        A("v_xor_b32 v7, v7, v6")
        A("v_and_b32 v7, 15, v7")
        A("v_lshlrev_b32 v7, 4, v7")
        A(f"v_lshl_add_u32 v{V_BADDR+j}, v6, 10, v7")
    A("v_and_b32 v7, 0x13, v6")
    A("v_bfe_u32 v8, v6, 2, 1")
    A("v_lshl_or_b32 v7, v8, 3, v7")
    A("v_bfe_u32 v8, v6, 3, 1")
    A("v_lshl_or_b32 v7, v8, 2, v7")
    for j in range(8):
        A(f"v_or_b32 v8, {2*j}, v5")
        A("v_xor_b32 v8, v8, v7")
        A("v_and_b32 v8, 15, v8")
        A("v_lshlrev_b32 v8, 4, v8")
        A(f"v_lshl_add_u32 v8, v7, 8, v8")
        A(f"v_add_u32 v{V_KADDR+j}, {KRING}, v8")
    A(f"s_lshl_b32 s{S_TMP}, s{S_WAVE}, 3")
    A(f"v_and_b32 v14, 48, v{L}")
    for i in range(8):
        A(f"s_add_u32 s{S_TMP+1}, s{S_TMP}, {i}")
        A(f"v_xor_b32 v15, s{S_TMP+1}, v{L}")
        A("v_and_or_b32 v15, v15, 15, v14")
        A("v_lshlrev_b32 v15, 4, v15")
        A(f"s_lshl_b32 s{S_TMP+1}, s{S_TMP+1}, 10")
        A(f"v_add_u32 v{V_QADDR+i}, s{S_TMP+1}, v15")
    A(f"s_lshl_b32 s{S_TMP}, s{S_M}, 16")
    A(f"s_lshl_b32 s{S_TMP+1}, s{S_WAVE}, 13")
    A(f"s_add_u32 s{S_TMP}, s{S_TMP}, s{S_TMP+1}")
    A(f"s_add_u32 s{S_TMP+1}, s{S_TMP}, 4096")
    A(f"v_lshlrev_b32 v12, 4, v{L}")
    A(f"v_lshlrev_b32 v13, 5, v{L}")
    A("s_waitcnt lgkmcnt(0)")
    make_srd(A, S_XN, 68, WS_XN, 2 * MB)
    make_srd(A, S_MOD, 68, WS_MOD, 3072 * 4)
    XR = V_S
    SA = V_S + 32; CA = V_S + 40
    def p0_loads():
        A(f"buffer_load_dwordx4 v[{CA}:{CA+3}], v13, s[{S_MOD}:{S_MOD+3}], 0 offen offset:2048"); vm.issue("mod")
        A(f"buffer_load_dwordx4 v[{CA+4}:{CA+7}], v13, s[{S_MOD}:{S_MOD+3}], 0 offen offset:2064"); vm.issue("mod")
        A(f"buffer_load_dwordx4 v[{SA}:{SA+3}], v13, s[{S_MOD}:{S_MOD+3}], 0 offen"); vm.issue("mod")
        A(f"buffer_load_dwordx4 v[{SA+4}:{SA+7}], v13, s[{S_MOD}:{S_MOD+3}], 0 offen offset:16"); vm.issue("mod")
        for i in range(8):
            A(f"buffer_load_dwordx4 v[{XR+4*i}:{XR+4*i+3}], v12, s[{S_XN}:{S_XN+3}], s{S_TMP + (i >> 2)} offen offset:{(i & 3) * 1024}")
            vm.issue(("x", i))
    if EARLYA: pass
    elif hookA: hookA()
    else: p0_loads()
    make_srd(A, S_WQ, 64, 0, 4 * MB)
    if hookB: pass
    elif D6: gemm_dma6(A, vm, 0, S_WQ, V_WQOFF, 8192)
    else: gemm_dma(A, vm, 0, S_WQ, V_WQOFF, 8192, D)
    A(f"s_lshl_b32 s{S_TMP}, s{S_G}, 19")
    A(f"s_add_u32 s{S_TMP+1}, s{S_TMP}, {1536 * 256}")
    make_srd(A, S_K, 60, f"s{S_TMP+1}", 512 * 256)
    make_srd(A, S_V, 62, f"s{S_TMP+1}", 512 * 256)
    make_srd(A, S_WO, 66, f"s{S_TMP}", 512 * 1024)
    psz = 2 if PART_BF16 else 4
    A(f"s_mov_b32 s{S_SL}, {fhex(SCALE*LOG2E)}")
    PL = int(os.environ.get("PL", "1")) and emb
    if PL:
        A(f"s_lshl_b32 s{S_TMP+2}, s{S_M}, 3")
        A(f"s_add_u32 s{S_TMP+2}, s{S_TMP+2}, s{S_G}")
        A(f"s_lshl_b32 s{S_TMP+2}, s{S_TMP+2}, 16")
        A(f"s_add_u32 s{S_TMP+2}, s{S_TMP+2}, {WS_PART}")
        make_srd(A, S_P, 68, f"s{S_TMP+2}", 65536)
    else:
        A(f"s_mul_i32 s{S_TMP+2}, s{S_G}, {2048 * 512 * psz}")
        A(f"s_add_u32 s{S_TMP+2}, s{S_TMP+2}, {WS_PART}")
        make_srd(A, S_P, 68, f"s{S_TMP+2}", 2048 * 512 * psz)
    if DEBUG or TIMING:
        make_srd(A, S_DBG, 68, WS_DBG, 32 * MB)
    stamp(True); stamp()
    SCR = STG + 16384
    if hookB and v2:
        LDE = int(os.environ.get("LDE", "2"))
        KVL = int(os.environ.get("KVL", "1"))
        def kvpf():
            A(f"v_lshlrev_b32 v5, 7, v{L}")
            A(f"s_lshl_b32 s{S_TMP}, s{S_M}, 12")
            A(f"s_add_u32 s{S_TMP+1}, s{S_TMP}, 4096")
            A(f"s_cmp_lg_u32 s{S_WAVE}, 4")
            A("s_cbranch_scc1 .Lk1_nkv")
            A("s_mov_b32 exec_hi, 0")
            A(f"buffer_load_dword v15, v5, s[{S_K}:{S_K+3}], s{S_TMP} offen")
            A(f"buffer_load_dword v15, v5, s[{S_V}:{S_V+3}], s{S_TMP} offen")
            A("s_mov_b64 exec, -1")
            A.label(".Lk1_nkv")
        def loader():
            for st in range(LDE): gemm_dma6(A, vm, st, S_WQ, V_WQOFF, 8192)
            A(f"s_sub_u32 s{S_RB}, s{S_RB}, 8192")
            A(f"s_sub_u32 s{S_OFF}, s{S_OFF}, {LDE * 16 * 8192 + 512}")
            for st in range(LDE): gemm_dma6(A, vm, st, S_WQ, V_WQOFF, 8192)
            A(f"s_add_u32 s{S_RB}, s{S_RB}, 8192")
            A(f"s_add_u32 s{S_OFF}, s{S_OFF}, 512")
            if not KVL: kvpf()
        def cfix():
            A(f"s_add_u32 s{S_OFF}, s{S_OFF}, {LDE * 16 * 8192}")
        def xn_loads():
            vm.ops = []
            A(f"s_lshl_b32 s{S_TMP}, s{S_M}, 16")
            A(f"s_lshl_b32 s{S_TMP+1}, s{S_WAVE}, 13")
            A(f"s_add_u32 s{S_TMP}, s{S_TMP}, s{S_TMP+1}")
            A(f"s_add_u32 s{S_TMP+1}, s{S_TMP}, 4096")
            for i in range(8):
                A(f"buffer_load_dwordx4 v[{XR+4*i}:{XR+4*i+3}], v12, s[{S_XN}:{S_XN+3}], s{S_TMP + (i >> 2)} offen offset:{(i & 3) * 1024}")
                vm.issue(("x", i))
        def ownfill():
            for st in range(LDE): gemm_dma6(A, vm, st, S_WQ, V_WQOFF, 8192)
        hookB(ownfill if int(os.environ.get("MEGA", "6")) == 6 else loader, cfix, xn_loads)
        lg.ops = []
        A(f"v_add_u32 v2, {SCR + 4096}, v13")
        A(f"ds_read_b128 v[{CA}:{CA+3}], v2 offset:2048")
        A(f"ds_read_b128 v[{CA+4}:{CA+7}], v2 offset:2064")
        A(f"ds_read_b128 v[{SA}:{SA+3}], v2")
        A(f"ds_read_b128 v[{SA+4}:{SA+7}], v2 offset:16")
        A("s_waitcnt lgkmcnt(0)")
    elif hookB:
        def early():
            for st in range(6): gemm_dma6(A, vm, st, S_WQ, V_WQOFF, 8192)
            A(f"s_cmp_lg_u32 s{S_WAVE}, 6")
            A("s_cbranch_scc1 .Lk1_e6")
            A(f"s_add_u32 s{S_RB}, s{S_RB}, 2048")
            A(f"s_sub_u32 s{S_OFF}, s{S_OFF}, {6 * 16 * 8192 - 128}")
            for st in range(6): gemm_dma6(A, vm, st, S_WQ, V_WQOFF, 8192)
            A(f"s_sub_u32 s{S_RB}, s{S_RB}, 2048")
            A(f"s_sub_u32 s{S_OFF}, s{S_OFF}, 128")
            A.label(".Lk1_e6")
            A(f"v_lshlrev_b32 v5, 6, v{L}")
            A(f"s_lshl_b32 s{S_TMP}, s{S_M}, 12")
            A(f"buffer_load_dword v15, v5, s[{S_K}:{S_K+3}], s{S_TMP} offen")
            A(f"buffer_load_dword v15, v5, s[{S_V}:{S_V+3}], s{S_TMP} offen")
        def w7():
            A(f"s_add_u32 s{S_OFF}, s{S_OFF}, {6 * 16 * 8192}")
        hookB(0, early, w7)
        vm.ops = []; lg.ops = []
        A(f"s_lshl_b32 s{S_TMP}, s{S_M}, 16")
        A(f"s_lshl_b32 s{S_TMP+1}, s{S_WAVE}, 13")
        A(f"s_add_u32 s{S_TMP}, s{S_TMP}, s{S_TMP+1}")
        A(f"s_add_u32 s{S_TMP+1}, s{S_TMP}, 4096")
        p0_loads()
    vm.wait("mod")
    for j in range(0, 8 if not v2 else 0, 2):
        A(f"v_add_f32 v{CA+j}, 1.0, v{CA+j}")
        A(f"v_add_f32 v{CA+j+1}, 1.0, v{CA+j+1}")
        round_bf16_2(A, CA + j, CA + j + 1, V_T, SM)
    for i in range(8):
        x = XR + 4 * i
        vm.wait(("x", i))
        for j in range(4):
            a = 2 + 2 * j
            A(f"v_lshlrev_b32 v{a}, 16, v{x+j}")
            A(f"v_and_b32 v{a+1}, {SM}, v{x+j}")
        for j in range(0, 8, 2):
            A(f"v_pk_mul_f32 v[{2+j}:{3+j}], v[{2+j}:{3+j}], v[{CA+j}:{CA+j+1}]")
        for j in range(4):
            a = 2 + 2 * j
            A(f"v_cvt_pk_bf16_f32 v{x+j}, v{a}, v{a+1}")
        for j in range(4):
            a = 2 + 2 * j
            A(f"v_lshlrev_b32 v{a}, 16, v{x+j}")
            A(f"v_and_b32 v{a+1}, {SM}, v{x+j}")
        for j in range(0, 8, 2):
            A(f"v_pk_add_f32 v[{2+j}:{3+j}], v[{2+j}:{3+j}], v[{SA+j}:{SA+j+1}]")
        for j in range(4):
            a = 2 + 2 * j
            A(f"v_cvt_pk_bf16_f32 v{x+j}, v{a}, v{a+1}")
        A(f"ds_write_b128 v{V_QADDR+i}, v[{x}:{x+3}]")
        lg.issue("hw")
        if hookB and v2:
            if LDE + i < 5: gemm_dma6(A, vm, LDE + i, S_WQ, V_WQOFF, 8192)
        elif hookB: pass
        elif D6:
            if i in (1, 3, 5, 6, 7): gemm_dma6(A, vm, {1: 1, 3: 2, 5: 3, 6: 4, 7: 5}[i], S_WQ, V_WQOFF, 8192)
        elif i in (1, 3, 5):
            gemm_dma(A, vm, (i + 1) // 2, S_WQ, V_WQOFF, 8192, D)
    if not D6:
        k_dma(A, vm, 0)
        k_dma(A, vm, 1)
    if PREFETCH and not hookB:
        A(f"v_lshlrev_b32 v5, 6, v{L}")
        A(f"s_lshl_b32 s{S_TMP}, s{S_M}, 12")
        A(f"buffer_load_dword v15, v5, s[{S_K}:{S_K+3}], s{S_TMP} offen"); vm.issue("pf")
        A(f"buffer_load_dword v15, v5, s[{S_V}:{S_V+3}], s{S_TMP} offen"); vm.issue("pf")
    if hookC:
        if KVL: kvpf()
        hookC()
    lg.waitall()
    stamp()
    A("s_barrier")
    stamp()
    if D6:
        def tail1(ks):
            if ks == 26: k_dma(A, vm, 0)
            if ks == 27: k_dma(A, vm, 1)
            if ks == 28: v_dma(A, vm, 0)
            if ks == 29: v_dma(A, vm, 1)
            if ks == 31: k_dma(A, vm, 2)
        gemm_core6(A, vm, lg, S_WQ, V_WQOFF, 8192, 5 if v2 else 6, tail1, bars=eval(os.environ.get('B1', '()')))
    else:
        gemm_core(A, vm, lg, S_WQ, V_WQOFF, 8192, D)
    stamp()
    A("s_barrier")
    if not D6:
        v_dma(A, vm, 0)
        k_dma(A, vm, 2)
        v_dma(A, vm, 1)
    A(f"s_and_b32 s{S_TMP}, s{S_WAVE}, 1")
    A(f"s_lshr_b32 s{S_TMP+1}, s{S_WAVE}, 1")
    A(f"s_lshl_b32 s{S_TMP+1}, s{S_TMP+1}, 8")
    A(f"s_cmp_eq_u32 s{S_TMP}, 1")
    A(f"s_cselect_b64 vcc, -1, 0")
    A(f"v_mov_b32 v{V_ALPHA}, s{S_SL}")
    for j in range(4):
        A(f"v_cndmask_b32 v{2+j}, v{V_BADDR+j}, v{V_BADDR+4+j}, vcc")
        A(f"v_add_u32 v{2+j}, s{S_TMP+1}, v{2+j}")
    for nb in range(2):
        for rb in range(2):
            acc = V_ACC + (nb * 2 + rb) * 16
            for mp in range(2):
                d = V_S + (nb * 4 + rb * 2 + mp) * 4
                if CT:
                    for e in range(0, 8, 2):
                        A(f"v_pk_mul_f32 v[{acc+8*mp+e}:{acc+8*mp+e+1}], v[{acc+8*mp+e}:{acc+8*mp+e+1}], v[{V_ALPHA}:{V_ALPHA+1}] op_sel_hi:[1,0]")
                for e in range(4):
                    A(f"v_cvt_pk_bf16_f32 v{d+e}, v{acc+8*mp+2*e}, v{acc+8*mp+2*e+1}")
                A(f"ds_write_b128 v{2+2*nb+mp}, v[{d}:{d+3}] offset:{rb*32768}")
                lg.issue("qw")
                if DEBUG:
                    A(f"v_and_b32 v8, 31, v{L}")
                    A(f"v_lshrrev_b32 v9, 5, v{L}")
                    A("v_lshlrev_b32 v8, 13, v8")
                    A("v_lshl_add_u32 v8, v9, 4, v8")
                    A(f"s_lshl_b32 s{S_TMP+2}, s{S_M}, 19")
                    A(f"s_lshl_b32 s{S_TMP+3}, s{S_G}, 10")
                    A(f"s_add_u32 s{S_TMP+2}, s{S_TMP+2}, s{S_TMP+3}")
                    A(f"s_lshl_b32 s{S_TMP+3}, s{S_WAVE}, 7")
                    A(f"s_add_u32 s{S_TMP+2}, s{S_TMP+2}, s{S_TMP+3}")
                    A(f"s_add_u32 s{S_TMP+2}, s{S_TMP+2}, {rb*32*8192 + nb*64 + mp*32}")
                    A(f"buffer_store_dwordx4 v[{d}:{d+3}], v8, s[{S_DBG}:{S_DBG+3}], s{S_TMP+2} offen")
                    vm.issue("dbg")
    A(f"s_and_b32 s{S_TMP}, s{S_WAVE}, 3")
    A(f"s_lshl_b32 s{S_TMP}, s{S_TMP}, 8")
    A(f"s_lshr_b32 s{S_TMP+1}, s{S_WAVE}, 2")
    A(f"s_lshl_b32 s{S_TMP+1}, s{S_TMP+1}, 15")
    A(f"s_add_u32 s{S_QOFF}, s{S_TMP}, s{S_TMP+1}")
    for j in range(8):
        A(f"v_add_u32 v{V_QADDR+j}, s{S_QOFF}, v{V_BADDR+j}")
    lg.waitall()
    vm.wait(("k", 0))
    A("s_barrier")
    stamp()
    if PRIO:
        A(f"s_cmp_lt_u32 s{S_WAVE}, 4")
        A("s_cbranch_scc1 .Lk1_noprio" if PRIO == 1 else "s_cbranch_scc0 .Lk1_noprio")
        A("s_setprio 1")
        A.label(".Lk1_noprio")
    for j in range(8):
        A(f"ds_read_b128 v[{V_Q+4*j}:{V_Q+4*j+3}], v{V_QADDR+j}")
        lg.issue("q")
    seq = []
    for kb in range(2):
        for j in range(8):
            seq.append(("k", 0, kb, j))
    for t in range(8):
        if t > 0:
            for db in range(4): seq.append(("v", t - 1, 3, db))
        if t + 1 < 8:
            for kb in range(2):
                for j in range(8): seq.append(("k", t + 1, kb, j))
        for ks in range(3):
            for db in range(4): seq.append(("v", t, ks, db))
    for db in range(4): seq.append(("v", 7, 3, db))
    state = {"issued": 0, "limit": 0}
    def issue_frag(i):
        kind, t, a, b = seq[i]
        f = V_F + (i % NF) * 4
        if (EXPT & 4) and i >= 8: return
        if (EXPT & 16) and (i & 1): return
        if kind == "k":
            A(f"ds_read_b128 v[{f}:{f+3}], v{V_KADDR+b} offset:{((t + 1) % 3) * 16384 + a * 8192}")
            lg.issue(("fr", i))
        else:
            o = (t % 3) * 16384 + a * 4096
            A(f"ds_read_b64_tr_b16 v[{f}:{f+1}], v{V_VADDR+b} offset:{o}")
            lg.issue(("fr", i))
            A(f"ds_read_b64_tr_b16 v[{f+2}:{f+3}], v{V_VADDR+b} offset:{o + 1024}")
            lg.issue(("fr", i))
    def avail(i, epoch):
        kind, t, a, b = seq[i]
        return (t - 1 <= epoch) if kind == "k" else (t <= epoch)
    def runahead(cur, epoch):
        while state["issued"] < len(seq) and state["issued"] <= cur + RA and avail(state["issued"], epoch):
            issue_frag(state["issued"]); state["issued"] += 1
    def mfma(i, epoch):
        kind, t, a, b = seq[i]
        runahead(i - 1, epoch)
        assert state["issued"] > i
        f = V_F + (i % NF) * 4
        lg.wait(("fr", i))
        if kind == "k":
            s = V_S + (t & 1) * 32 + a * 16
            c = ("0" if (t == 0 or not CT) else f"v[{V_NB}:{V_NB+15}]") if b == 0 else f"v[{s}:{s+15}]"
            A(f"v_mfma_f32_32x32x16_bf16 v[{s}:{s+15}], v[{f}:{f+3}], v[{V_Q+4*b}:{V_Q+4*b+3}], {c}")
        else:
            o = V_ACC + b * 16
            p = V_S + (t & 1) * 32 + 4 * a
            c = "0" if (t == 0 and a == 0) else f"v[{o}:{o+15}]"
            A(f"v_mfma_f32_32x32x16_bf16 v[{o}:{o+15}], v[{f}:{f+3}], v[{p}:{p+3}], {c}")
        runahead(i, epoch)
    def seg(idx, n, valu, epoch):
        nv = len(valu); k = 0
        def em(x):
            if isinstance(x, list):
                for y in x:
                    if y.endswith(":"): A.label(y[:-1])
                    else: A(y)
            else: A(x)
        if n == 0:
            for x in valu: em(x)
            return idx
        for m_ in range(n):
            mfma(idx + m_, epoch)
            upto = (nv * (m_ + 1) + n - 1) // n
            while k < upto:
                em(valu[k]); k += 1
        return idx + n
    if DOT2:
        assert NOMAX
        A(f"v_mov_b32 v{PSUM}, 0"); A(f"v_mov_b32 v{PSUM+1}, 0"); A("v_mov_b32 v14, 0x3f803f80")
    idx = seg(0, 16, [], -1)
    for t in range(8):
        if t + 1 < 8: vm.wait(("k", t + 1))
        vm.wait(("v", t))
        if not (EXPT & 8): A("s_barrier")
        if t >= 0 and t + 3 < 8: k_dma(A, vm, t + 3)
        if t >= 1 and t + 1 < 8: v_dma(A, vm, t + 1)
        PFMODE = int(os.environ.get("PFMODE", "1"))
        if PREFETCH and t == 1:
            A("v_lshlrev_b32 v12, 6, v0")
            A(f"s_lshl_b32 s{S_TMP}, s{S_M}, 14")
            A(f"s_add_u32 s{S_TMP+1}, s{S_TMP}, 16384")
            A(f"s_mov_b32 s{S_XN}, s{S_WO}")
            A(f"s_mov_b32 s{S_XN+1}, s{S_WO+1}")
            A(f"s_mov_b32 s{S_XN+2}, s{S_TMP+1}")
            A(f"buffer_load_dword v15, v12, s[{S_XN}:{S_XN+3}], s{S_TMP} offen"); vm.issue("pf")
        if PREFETCH and PFMODE < 2:
            for (tt, p, sz) in ((2, 92, 512*1024), (2, 94, 512*1024), (3, 96, 1792*1024), (4, 98, 1792*1024)):
                if t != (1 if PFMODE == 0 else tt): continue
                per = sz // 256
                if p == 96 and int(os.environ.get("K5N", "0")): per = (56 * int(os.environ.get('W3S', '32768')) // 256 + 63) // 64 * 64
                A(f"s_mul_i32 s{S_TMP}, s2, {per}")
                if p == 96 and int(os.environ.get("K5N", "0")):
                    A(f"s_add_u32 s{S_TMP}, s{S_TMP}, {28 * MB}")
                    p = 68
                make_srd(A, S_XN, p, f"s{S_TMP}", per)
                A(f"buffer_load_dword v15, v12, s[{S_XN}:{S_XN+3}], 0 offen"); vm.issue("pf")
        XPF = int(os.environ.get("XPF", "0"))
        if XPF and t in (5, 6):
            for (tt, p, sz, bit) in ((5, 96, 1792*1024, 1), (6, 98, 1792*1024, 2), (5, 92, 512*1024, 4), (6, 94, 512*1024, 4)):
                if t != tt or not (XPF & bit): continue
                per = sz // 32
                A(f"s_lshr_b32 s{S_TMP}, s2, 3")
                A(f"s_mul_i32 s{S_TMP}, s{S_TMP}, {per}")
                make_srd(A, S_XN, p, f"s{S_TMP}", per)
                A("v_lshlrev_b32 v13, 7, v0")
                A(f"buffer_load_dword v15, v13, s[{S_XN}:{S_XN+3}], 0 offen"); vm.issue("pf")
        if t == 7 and D6:
            A(f"s_lshl_b32 s{S_OFF}, s{S_WAVE}, 7")
            for st in range(4):
                gemm_dma6(A, vm, st, S_WO, V_WOOFF, 1024)
        elif t == 7:
            A(f"s_add_u32 s{S_RB}, s{S_RB}, 32768")
            A(f"s_lshl_b32 s{S_OFF}, s{S_WAVE}, 7")
            for nb in range(2):
                A(f"v_add_u32 v{V_AADDR+nb}, 32768, v{V_AADDR+nb}")
            for st in range(D):
                gemm_dma(A, vm, st, S_WO, V_WOOFF, 1024, D)
        mxl = sm_max(t)
        if t == 0:
            mxl = ["s_nop 7", "s_nop 3"] + mxl
        idx = seg(idx, 4 if t > 0 else 0, mxl, t)
        b = sm_quarter(t, 0) + sm_rescale(t) + sm_quarter(t, 1) + ["s_nop 1"]
        idx = seg(idx, 16 if t + 1 < 8 else 0, b, t)
        q3 = sm_quarter(t, 3)
        h = len(q3) // 3
        idx = seg(idx, 8, sm_quarter(t, 2) + ["s_nop 1"] + q3[:h], t)
        idx = seg(idx, 4, q3[h:] + sm_lupd(t) + ["s_nop 1"], t)
        stamp()
    idx = seg(idx, 4, [], 7)
    assert idx == len(seq)
    if DOT2: A(f"v_add_f32 v{V_L}, v{PSUM}, v{PSUM+1}")
    A(f"v_mov_b32 v2, v{V_L}")
    A(f"v_mov_b32 v3, v{V_L}")
    A("s_nop 1")
    A(f"v_permlane32_swap_b32 v2, v3")
    A("s_nop 1")
    A(f"v_add_f32 v{V_L}, v2, v3")
    for j in range(8):
        A(f"v_add_u32 v{V_QADDR+j}, s{S_QOFF}, v{V_BADDR+j}")
    A(f"v_rcp_f32 v{V_ALPHA}, v{V_L}")
    A("s_nop 7")
    A("s_nop 3")
    for db in range(4):
        o = V_ACC + db * 16
        for mp in range(2):
            d = V_S + (db * 2 + mp) * 4
            for e in range(0, 8, 2):
                A(f"v_pk_mul_f32 v[{o+8*mp+e}:{o+8*mp+e+1}], v[{o+8*mp+e}:{o+8*mp+e+1}], v[{V_ALPHA}:{V_ALPHA+1}] op_sel_hi:[1,0]")
            for e in range(4):
                A(f"v_cvt_pk_bf16_f32 v{d+e}, v{o+8*mp+2*e}, v{o+8*mp+2*e+1}")
            A(f"ds_write_b128 v{V_QADDR+2*db+mp}, v[{d}:{d+3}]")
            lg.issue("ow")
            if DEBUG:
                A(f"v_and_b32 v5, 31, v{L}")
                A(f"v_lshrrev_b32 v6, 5, v{L}")
                A("v_lshlrev_b32 v5, 13, v5")
                A("v_lshl_add_u32 v5, v6, 4, v5")
                A(f"s_lshl_b32 s{S_TMP+2}, s{S_M}, 19")
                A(f"s_lshl_b32 s{S_TMP+3}, s{S_G}, 10")
                A(f"s_add_u32 s{S_TMP+2}, s{S_TMP+2}, s{S_TMP+3}")
                A(f"s_and_b32 s{S_TMP+3}, s{S_WAVE}, 3")
                A(f"s_lshl_b32 s{S_TMP+3}, s{S_TMP+3}, 8")
                A(f"s_add_u32 s{S_TMP+2}, s{S_TMP+2}, s{S_TMP+3}")
                A(f"s_lshr_b32 s{S_TMP+3}, s{S_WAVE}, 2")
                A(f"s_lshl_b32 s{S_TMP+3}, s{S_TMP+3}, 18")
                A(f"s_add_u32 s{S_TMP+2}, s{S_TMP+2}, s{S_TMP+3}")
                A(f"s_add_u32 s{S_TMP+2}, s{S_TMP+2}, {16*MB + db*64 + mp*32}")
                A(f"buffer_store_dwordx4 v[{d}:{d+3}], v5, s[{S_DBG}:{S_DBG+3}], s{S_TMP+2} offen")
                vm.issue("dbg")
    lg.waitall()
    A("s_barrier")
    stamp()
    if D6: gemm_core6(A, vm, lg, S_WO, V_WOOFF, 1024, 4, bars=eval(os.environ.get('B3', '()')))
    else: gemm_core(A, vm, lg, S_WO, V_WOOFF, 1024, D)
    stamp()
    if int(os.environ.get("TSTORE", "1")) and PART_BF16:
        A(f"v_and_b32 v5, 31, v{L}")
        A(f"v_lshrrev_b32 v6, 5, v{L}")
        A("v_and_b32 v7, 7, v5")
        if D6:
            A("v_lshrrev_b32 v8, 4, v5")
            A("v_and_b32 v5, 15, v5")
            A("v_lshl_add_u32 v5, v8, 7, v5")
        for j in range(4):
            A(f"v_or_b32 v8, {2*j}, v6")
            A("v_xor_b32 v8, v8, v7")
            A("v_lshlrev_b32 v8, 4, v8")
            A("v_lshl_add_u32 v8, v5, 7, v8")
            A(f"v_add_u32 v{10+j}, s{S_RB}, v8")
        A(f"v_lshrrev_b32 v7, 3, v{L}")
        A(f"v_and_b32 v8, 7, v{L}")
        A("v_xor_b32 v9, v8, v7")
        A("v_lshlrev_b32 v9, 4, v9")
        A("v_lshl_add_u32 v9, v7, 7, v9")
        A(f"v_add_u32 v9, s{S_RB}, v9")
        A("v_lshlrev_b32 v8, 4, v8")
        A("v_lshl_add_u32 v8, v7, 10, v8")
        if PL:
            A(f"s_lshl_b32 s{S_TMP}, s{S_WAVE}, 7")
        else:
            A(f"s_lshl_b32 s{S_TMP}, s{S_M}, 16")
            A(f"s_lshl_b32 s{S_TMP+1}, s{S_WAVE}, 7")
            A(f"s_add_u32 s{S_TMP}, s{S_TMP}, s{S_TMP+1}")
        for nb in range(2):
            for rb in range(2):
                acc = V_ACC + (nb * 2 + rb) * 16
                for mp in range(2):
                    d = V_S + (nb * 4 + rb * 2 + mp) * 4
                    for e in range(4):
                        A(f"v_cvt_pk_bf16_f32 v{d+e}, v{acc+8*mp+2*e}, v{acc+8*mp+2*e+1}")
                    A(f"ds_write_b128 v{10+2*nb+mp}, v[{d}:{d+3}] offset:{rb*(32768 if D6 else 4096)}")
        A("s_waitcnt lgkmcnt(0)")
        for i in range(8):
            A(f"ds_read_b128 v[{V_S+32+4*i}:{V_S+32+4*i+3}], v9 offset:{((i >> 1) * 16384 + (i & 1) * 1024) if D6 else i*1024}")
        for i in range(8):
            A(f"s_waitcnt lgkmcnt({7-i})")
            A(f"buffer_store_dwordx4 v[{V_S+32+4*i}:{V_S+32+4*i+3}], v8, s[{S_P}:{S_P+3}], s{S_TMP} offen {os.environ.get('PSTF','sc1')}")
            if i < 7: A(f"s_add_u32 s{S_TMP}, s{S_TMP}, 8192")
    else:
        A(f"v_and_b32 v5, 31, v{L}")
        A(f"v_lshrrev_b32 v6, 5, v{L}")
        sh = 10 if PART_BF16 else 11
        A(f"v_lshlrev_b32 v5, {sh}, v5")
        A(f"v_lshl_add_u32 v5, v6, {4 if PART_BF16 else 5}, v5")
        A(f"s_lshl_b32 s{S_TMP}, s{S_M}, {sh + 6}")
        A(f"s_lshl_b32 s{S_TMP+1}, s{S_WAVE}, {7 if PART_BF16 else 8}")
        A(f"s_add_u32 s{S_TMP}, s{S_TMP}, s{S_TMP+1}")
        A(f"s_add_u32 s{S_TMP+1}, s{S_TMP}, {32 << sh}")
        A("s_nop 7")
        A("s_nop 3")
        for nb in range(2):
            for rb in range(2):
                acc = V_ACC + (nb * 2 + rb) * 16
                for mp in range(2):
                    if PART_BF16:
                        d = V_S + (nb * 4 + rb * 2 + mp) * 4
                        for e in range(4):
                            A(f"v_cvt_pk_bf16_f32 v{d+e}, v{acc+8*mp+2*e}, v{acc+8*mp+2*e+1}")
                        A(f"buffer_store_dwordx4 v[{d}:{d+3}], v5, s[{S_P}:{S_P+3}], s{S_TMP+rb} offen offset:{(32*nb+16*mp)*2} {os.environ.get('PSTF','sc1')}")
                    else:
                        for h4 in range(2):
                            A(f"buffer_store_dwordx4 v[{acc+8*mp+4*h4}:{acc+8*mp+4*h4+3}], v5, s[{S_P}:{S_P+3}], s{S_TMP+rb} offen offset:{(32*nb+16*mp+4*h4)*4}")
    if TIMING:
        A("s_waitcnt vmcnt(0)")
        stamp(); stamp(True)
        stamp.flush()
    if emb: return
    A("s_endpgm")
    A.raw(kernel_desc(name, 256, 102, 256))
    return (name, (256, 1, 1), (512, 1, 1), 163840)
```

```python
from asmlib import *
from gen_k0 import *
import os
DEBUG = int(os.environ.get("K1DEBUG", "0"))
PART_BF16 = int(os.environ.get("PARTBF16", "1"))
MIMIC = int(os.environ.get("MIMIC", "0"))
LAZY = int(os.environ.get("LAZY", "1"))
THR = float(os.environ.get("THR","30.0"))
TIMING = int(os.environ.get("TIMING", "0"))
USEPK = int(os.environ.get("USEPK", "0"))
EXPT = int(os.environ.get("EXPT", "0"))
NOMAX = int(os.environ.get("NOMAX", "0"))
DOT2 = int(os.environ.get("DOT2", "0"))

class Cnt:
    def __init__(self, A, name, maxv):
        self.A = A; self.name = name; self.maxv = maxv; self.ops = []
    def issue(self, tag):
        self.ops.append(tag)
        assert len(self.ops) <= self.maxv + 1 or self.name == "vmcnt", (self.name, len(self.ops))
    def wait(self, tag):
        idx = None
        for i, t in enumerate(self.ops):
            if t == tag: idx = i
        if idx is None:
            return
        n = len(self.ops) - 1 - idx
        assert n <= self.maxv, (self.name, n)
        self.A(f"s_waitcnt {self.name}({n})")
        self.ops = self.ops[idx+1:]
    def waitall(self):
        self.A(f"s_waitcnt {self.name}(0)")
        self.ops = []

class Stamper:
    def __init__(self, A, lg, srd, swave, base=72):
        self.A = A; self.lg = lg; self.n = 0; self.srd = srd; self.swave = swave; self.base = base
    def __call__(self, real=False):
        if not TIMING: return
        A = self.A
        self.lg.waitall()
        A("s_memrealtime s[70:71]" if (real or TIMING == 2) else "s_memtime s[70:71]")
        A("s_waitcnt lgkmcnt(0)")
        A(f"s_mov_b32 s{self.base+self.n}, s70")
        self.n += 1
    def flush(self):
        if not TIMING: return
        A = self.A
        A(f"s_lshl_b32 s70, s2, 3")
        A(f"s_add_u32 s70, s70, s{self.swave}")
        A(f"s_lshl_b32 s70, s70, 7")
        A("v_mov_b32 v5, 0")
        for i in range(self.n):
            A(f"v_mov_b32 v6, s{self.base+i}")
            A(f"buffer_store_dword v6, v5, s[{self.srd}:{self.srd+3}], s70 offen offset:{4*i}")

ACT = 0
STG = 65536
KRING = STG + 3 * 16384
VRING = STG
V_LANE = 1
V_BADDR = 16; V_AADDR = 24; V_WQOFF = 26; V_WOOFF = 27
V_KADDR = 28; V_VADDR = 36; V_KOFF = 40; V_VOFF = 42
V_M = 43; V_L = 44; V_ALPHA = 46; V_NEGC = 48
V_QADDR = 50
V_T = 58
V_ACC = 64
V_Q = 128
V_S = 160
V_F = 224
NF = 8
RA = int(os.environ.get('RA','6'))
PRIO = int(os.environ.get('PRIO','0'))
CT = int(os.environ.get('CT','1'))
V_NB = 48
S_XN = 8; S_MOD = 12; S_WQ = 16; S_K = 20; S_V = 24; S_WO = 28; S_P = 32; S_DBG = 36
S_WAVE = 40; S_G = 41; S_M = 42; S_RB = 43; S_OFF = 44; S_MASK = 45; S_KVOFF = 46; S_KVM0 = 47
S_C1 = 48; S_K2 = 50; S_SC = 52; S_L2E = 54
S_TMP = 56
S_SL = 66
S_FLAG = 64
S_QOFF = 67
SCALE = 128 ** -0.5

def gemm_dma(A, vm, step, srd, voff, rowstride, D):
    for half in range(2):
        A(f"s_add_u32 m0, s{S_RB}, {(step % D) * 2048 + half * 1024}")
        A("s_nop 0")
        A(f"buffer_load_dwordx4 v{voff}, s[{srd}:{srd+3}], s{S_OFF} offen lds")
        vm.issue(("w", step))
        A(f"s_add_u32 s{S_OFF}, s{S_OFF}, {8 * rowstride}")

def gemm_reads(A, lg, step, D):
    buf = V_Q + (step & 1) * 16
    if (EXPT & 128) and step > 1: return
    for nb in range(2):
        for q in range(2):
            A(f"ds_read_b64_tr_b16 v[{buf+nb*4+q*2}:{buf+nb*4+q*2+1}], v{V_AADDR+nb} offset:{(step % D) * 2048 + q * 512}")
            lg.issue(("f", step))
    for rb in range(2):
        A(f"ds_read_b128 v[{buf+8+rb*4}:{buf+8+rb*4+3}], v{V_BADDR + (step & 7)} offset:{(step >> 3) * 256 + rb * 32768}")
        lg.issue(("f", step))

def gemm_core(A, vm, lg, srd, voff, rowstride, D=4, NS=32):
    vm.wait(("w", 0))
    gemm_reads(A, lg, 0, D)
    for ks in range(NS):
        if ks + 1 < NS:
            vm.wait(("w", ks + 1))
            gemm_reads(A, lg, ks + 1, D)
        lg.wait(("f", ks))
        if ks + D < NS and not (EXPT & 32):
            gemm_dma(A, vm, ks + D, srd, voff, rowstride, D)
        buf = V_Q + (ks & 1) * 16
        for nb in range(2):
            for rb in range(2):
                acc = V_ACC + (nb * 2 + rb) * 16
                c = "0" if ks == 0 else f"v[{acc}:{acc+15}]"
                if (EXPT & 64) and ks > 0: continue
                A(f"v_mfma_f32_32x32x16_bf16 v[{acc}:{acc+15}], v[{buf+nb*4}:{buf+nb*4+3}], v[{buf+8+rb*4}:{buf+8+rb*4+3}], {c}")

D6 = int(os.environ.get("D6", "1"))
V_AADDR2 = (43, 45)
def slot6(step): return (step + 2) % 6
M16 = int(os.environ.get("M16", "0"))
P4 = int(os.environ.get("MEGA", "6")) == 7
V_K10 = 10; V_K01 = 11
VA16 = 224; VB16 = 232
def addr16(A):
    L = V_LANE
    A(f"v_lshrrev_b32 v2, 4, v{L}")
    A(f"v_and_b32 v3, 15, v{L}")
    for j in range(4):
        A(f"v_or_b32 v4, {4*j}, v2")
        A("v_xor_b32 v4, v4, v3")
        A("v_lshlrev_b32 v4, 4, v4")
        A(f"v_lshl_add_u32 v{VB16+j}, v3, 10, v4")
    A(f"v_bfe_u32 v4, v{L}, 2, 2")
    A(f"v_and_b32 v5, 3, v{L}")
    A("v_and_b32 v6, 1, v2")
    A("v_lshl_add_u32 v7, v6, 3, v4")
    A("v_lshlrev_b32 v7, 7, v7")
    A("v_lshl_add_u32 v7, v5, 3, v7")
    A("v_lshrrev_b32 v8, 1, v2")
    A("v_lshl_add_u32 v7, v8, 14, v7")
    A(f"v_add_u32 v7, s{S_RB}, v7")
    A("v_lshrrev_b32 v8, 1, v4")
    A("v_lshl_or_b32 v8, v8, 1, v6")
    for nt in range(4):
        A(f"v_xor_b32 v9, {nt}, v8")
        A(f"v_lshl_add_u32 v{VA16+nt}, v9, 5, v7")
        A(f"v_add_u32 v{VA16+4+nt}, 65536, v{VA16+nt}")
def gemm_core16(A, vm, lg, srd, voff, rowstride, pre, tail=None):
    for st in range(pre, 6): gemm_dma6(A, vm, st, srd, voff, rowstride)
    def rd(s, part):
        buf = V_Q + (s & 1) * 32
        if part == 0:
            for rt in range(4):
                A(f"ds_read_b128 v[{buf+16+4*rt}:{buf+19+4*rt}], v{VB16 + (s & 3)} offset:{rt * 16384 + (s >> 2) * 256}")
                lg.issue(("b", s))
        else:
            nt = part - 1
            sl = slot6(2 * s)
            for q in range(2):
                A(f"ds_read_b64_tr_b16 v[{buf+4*nt+2*q}:{buf+4*nt+2*q+1}], v{VA16 + (4 if sl >= 4 else 0) + nt} offset:{(sl & 3) * 16384 + q * 512}")
                lg.issue(("a", s, nt))
    vm.wait(("w", 1))
    for p in range(5): rd(0, p)
    for s in range(16):
        buf = V_Q + (s & 1) * 32
        for nt in range(4):
            lg.wait(("a", s, nt))
            RF = int(os.environ.get("RF16", "3")); SCH = int(os.environ.get("SCH16", "0"))
            for rt in range(4):
                if nt == RF and rt == (0 if RF == 3 else 1):
                    lg.wait(("a", s, 3))
                    for ks in (2 * s, 2 * s + 1):
                        if ks + 6 < 32: gemm_dma6(A, vm, ks + 6, srd, voff, rowstride)
                        elif tail: tail(ks)
                acc = V_ACC + (nt * 4 + rt) * 4
                c = "0" if s == 0 else f"v[{acc}:{acc+3}]"
                A(f"v_mfma_f32_16x16x32_bf16 v[{acc}:{acc+3}], v[{buf+4*nt}:{buf+4*nt+3}], v[{buf+16+4*rt}:{buf+19+4*rt}], {c}")
                if s + 1 < 16:
                    plan = [{(0, 0): [0], (1, 0): [1, 2], (2, 0): [3], (3, 0): [4]},
                            {(0, 2): [0], (1, 0): [1, 2], (1, 2): [3, 4]},
                            {(1, 0): [0], (1, 2): [1], (2, 0): [2], (2, 2): [3], (3, 0): [4]},
                            {(0, 2): [0], (1, 2): [1, 2], (2, 2): [3, 4]}][SCH]
                    for p in plan.get((nt, rt), []):
                        if p == 1: vm.wait(("w", 2 * s + 3))
                        rd(s + 1, p)
def gemm_dma6(A, vm, step, srd, voff_, rowstride):
    for half in range(2):
        voff = voff_ if not (M16 and half) else V_AADDR2[0 if voff_ == V_WQOFF else 1]
        A(f"s_add_u32 m0, s{S_RB}, {slot6(step) * 16384 + half * 1024}")
        A("s_nop 0")
        A(f"buffer_load_dwordx4 v{voff}, s[{srd}:{srd+3}], s{S_OFF} offen {os.environ.get('WONT', '') if srd == S_WO else ''} lds")
        vm.issue(("w", step))
        A(f"s_add_u32 s{S_OFF}, s{S_OFF}, {8 * rowstride}")
IL6 = int(os.environ.get("IL6", "0"))
def gemm_reads6(A, lg, step):
    buf = V_Q + ((step % 3) if IL6 else (step & 1)) * 16
    sl = slot6(step)
    for nb in range(2):
        for q in range(2):
            a = V_AADDR + nb if sl < 4 else V_AADDR2[nb]
            A(f"ds_read_b64_tr_b16 v[{buf+nb*4+q*2}:{buf+nb*4+q*2+1}], v{a} offset:{(sl & 3) * 16384 + q * 512}")
            lg.issue(("f", step))
    for rb in range(2):
        A(f"ds_read_b128 v[{buf+8+rb*4}:{buf+8+rb*4+3}], v{V_BADDR + (step & 7)} offset:{(step >> 3) * 256 + rb * 32768}")
        lg.issue(("f", step))
def gemm_core6(A, vm, lg, srd, voff, rowstride, pre, tail=None, NS=32, bars=()):
    for st in range(pre, 6): gemm_dma6(A, vm, st, srd, voff, rowstride)
    if IL6:
        for s0 in range(2):
            vm.wait(("w", s0)); gemm_reads6(A, lg, s0)
        for ks in range(NS):
            lg.wait(("f", ks))
            sv = A.lines; A.lines = []
            if IL6 == 2:
                if ks + 6 < NS: gemm_dma6(A, vm, ks + 6, srd, voff, rowstride)
                elif tail: tail(ks)
            if ks + 2 < NS:
                vm.wait(("w", ks + 2)); gemm_reads6(A, lg, ks + 2)
            if IL6 == 1:
                if ks + 6 < NS: gemm_dma6(A, vm, ks + 6, srd, voff, rowstride)
                elif tail: tail(ks)
            fill = A.lines; A.lines = sv
            buf = V_Q + (ks % 3) * 16
            k = 0
            for i in range(4):
                nb, rb = i >> 1, i & 1
                acc = V_ACC + (nb * 2 + rb) * 16
                c = "0" if ks == 0 else f"v[{acc}:{acc+15}]"
                A(f"v_mfma_f32_32x32x16_bf16 v[{acc}:{acc+15}], v[{buf+nb*4}:{buf+nb*4+3}], v[{buf+8+rb*4}:{buf+8+rb*4+3}], {c}")
                upto = (len(fill) * (i + 1) + 3) // 4
                A.lines.extend(fill[k:upto]); k = upto
        return
    vm.wait(("w", 0))
    gemm_reads6(A, lg, 0)
    for ks in range(NS):
        if ks + 1 < NS:
            vm.wait(("w", ks + 1))
            gemm_reads6(A, lg, ks + 1)
        lg.wait(("f", ks))
        if ks + 6 < NS:
            gemm_dma6(A, vm, ks + 6, srd, voff, rowstride)
        elif tail: tail(ks)
        if ks in bars: A("s_barrier")
        buf = V_Q + (ks & 1) * 16
        for nb in range(2):
            for rb in range(2):
                acc = V_ACC + (nb * 2 + rb) * 16
                c = "0" if ks == 0 else f"v[{acc}:{acc+15}]"
                if EXPT & 1024:
                    for hh in range(2):
                        a4 = acc + (ks & 1) * 8 + hh * 4
                        c4 = "0" if ks < 2 else f"v[{a4}:{a4+3}]"
                        A(f"v_mfma_f32_16x16x32_bf16 v[{a4}:{a4+3}], v[{buf+(nb^hh)*4}:{buf+(nb^hh)*4+3}], v[{buf+8+rb*4}:{buf+8+rb*4+3}], {c4}")
                    continue
                A(f"v_mfma_f32_32x32x16_bf16 v[{acc}:{acc+15}], v[{buf+nb*4}:{buf+nb*4+3}], v[{buf+8+rb*4}:{buf+8+rb*4+3}], {c}")

def k_dma(A, vm, t):
    A(f"s_mov_b32 s{S_KVOFF}, {t * 16384}")
    A(f"s_add_u32 m0, s{S_KVM0}, {KRING + ((t + 1) % 3) * 16384}")
    A("s_nop 0")
    A(f"buffer_load_dwordx4 v{V_KOFF}, s[{S_K}:{S_K+3}], s{S_KVOFF} offen lds")
    vm.issue(("k", t))
    A(f"buffer_load_dwordx4 v{V_KOFF+1}, s[{S_K}:{S_K+3}], s{S_KVOFF} offen offset:1024 lds")
    vm.issue(("k", t))
def v_dma(A, vm, t):
    A(f"s_mov_b32 s{S_KVOFF}, {t * 16384}")
    A(f"s_add_u32 m0, s{S_KVM0}, {VRING + (t % 3) * 16384}")
    A("s_nop 0")
    A(f"buffer_load_dwordx4 v{V_VOFF}, s[{S_V}:{S_V+3}], s{S_KVOFF} offen lds")
    vm.issue(("v", t))
    A(f"buffer_load_dwordx4 v{V_VOFF}, s[{S_V}:{S_V+3}], s{S_KVOFF} offen offset:1024 lds")
    vm.issue(("v", t))

def sm_max(t):
    S = V_S + (t & 1) * 32
    mx = 2 if CT else V_T
    L = []
    if NOMAX and t > 0: return []
    L.append(f"v_max3_f32 v{mx}, v{S}, v{S+1}, v{S+2}")
    L.append(f"v_max3_f32 v{mx+1}, v{S+3}, v{S+4}, v{S+5}")
    for i in range(6, 30, 4):
        L.append(f"v_max3_f32 v{mx}, v{mx}, v{S+i}, v{S+i+1}")
        L.append(f"v_max3_f32 v{mx+1}, v{mx+1}, v{S+i+2}, v{S+i+3}")
    L.append(f"v_max3_f32 v{mx}, v{mx}, v{S+30}, v{S+31}")
    L.append(f"v_max_f32 v{mx}, v{mx}, v{mx+1}")
    L.append(f"v_mov_b32 v{mx+1}, v{mx}")
    L.append("s_nop 1")
    L.append(f"v_permlane32_swap_b32 v{mx}, v{mx+1}")
    L.append("s_nop 1")
    L.append(f"v_max_f32 v{mx}, v{mx}, v{mx+1}")
    g, d = mx + 1, mx + 2
    if CT:
        if t == 0:
            for i in range(16): L.append(f"v_sub_f32 v{V_NB+i}, 0, v{mx}")
            for i in range(32): L.append(f"v_sub_f32 v{S+i}, v{S+i}, v{mx}")
            return L
        lbl = f".Lk1_nors_{t}"
        L.append(f"v_cmp_lt_f32 vcc, {fhex(THR)}, v{mx}")
        L.append(f"s_mov_b64 s[{S_FLAG}:{S_FLAG+1}], vcc")
        L.append([f"s_cbranch_vccz {lbl}",
                  f"v_max_f32 v{mx}, 0, v{mx}",
                  f"v_sub_f32 v{V_ALPHA}, 0, v{mx}",
                  f"v_exp_f32 v{V_ALPHA}, v{V_ALPHA}"]
                 + [f"v_sub_f32 v{V_NB+i}, v{V_NB+i}, v{mx}" for i in range(16)]
                 + [f"v_sub_f32 v{S+i}, v{S+i}, v{mx}" for i in range(32)]
                 + [f"v_mul_f32 v{V_L}, v{V_L}, v{V_ALPHA}", f"{lbl}:"])
        return L
    if MIMIC:
        L.append(f"v_mul_f32 v{g}, s{S_C1}, v{mx}")
        L.append(f"v_sub_f32 v{d}, v{mx}, v{g}")
        L.append(f"v_add_f32 v{mx}, v{g}, v{d}")
        L.append(f"v_mul_f32 v{g}, s{S_K2}, v{mx}")
        L.append(f"v_fma_f32 v{d}, v{mx}, s{S_SC}, -v{g}")
        L.append(f"v_add_f32 v{mx}, v{g}, v{d}")
    else:
        L.append(f"v_mul_f32 v{mx}, s{S_SC}, v{mx}")
    if LAZY and t > 0:
        lbl = f".Lk1_nors_{t}"
        L.append(f"v_sub_f32 v{V_ALPHA}, v{V_M}, v{mx}")
        L.append(f"v_cmp_gt_f32 vcc, {fhex(-THR / LOG2E)}, v{V_ALPHA}")
        L.append(f"s_mov_b64 s[{S_FLAG}:{S_FLAG+1}], vcc")
        L.append([f"s_cbranch_vccz {lbl}",
                  f"v_max_f32 v{mx}, v{mx}, v{V_M}",
                  f"v_sub_f32 v{V_ALPHA}, v{V_M}, v{mx}",
                  f"v_mul_f32 v{V_ALPHA}, s{S_L2E}, v{V_ALPHA}",
                  f"v_exp_f32 v{V_ALPHA}, v{V_ALPHA}",
                  f"v_mov_b32 v{V_M}, v{mx}",
                  f"v_mul_f32 v{V_NEGC}, s{S_L2E}, v{mx}",
                  f"v_sub_f32 v{V_NEGC}, 0, v{V_NEGC}",
                  f"v_mul_f32 v{V_L}, v{V_L}, v{V_ALPHA}",
                  f"{lbl}:"])
        return L
    if t > 0:
        L.append(f"v_max_f32 v{mx}, v{mx}, v{V_M}")
        L.append(f"v_sub_f32 v{V_ALPHA}, v{V_M}, v{mx}")
        L.append(f"v_mul_f32 v{V_ALPHA}, s{S_L2E}, v{V_ALPHA}")
        L.append(f"v_exp_f32 v{V_ALPHA}, v{V_ALPHA}")
    L.append(f"v_mov_b32 v{V_M}, v{mx}")
    L.append(f"v_mul_f32 v{V_NEGC}, s{S_L2E}, v{mx}")
    L.append(f"v_sub_f32 v{V_NEGC}, 0, v{V_NEGC}")
    return L

PSUM = 10
def sm_quarter(t, q):
    S = V_S + (t & 1) * 32
    L = []
    pairs = list(range(8 * q, 8 * q + 8, 2))
    def pre(i):
        x = f"v[{S+i}:{S+i+1}]"
        k = (i >> 1) & 1
        g = f"v[{2+4*k}:{3+4*k}]"; d = f"v[{4+4*k}:{5+4*k}]"
        if CT:
            return []
        if not USEPK:
            out = []
            xs = [S + i, S + i + 1]; gs = [2 + 4 * k, 3 + 4 * k]; ds = [4 + 4 * k, 5 + 4 * k]
            if MIMIC:
                for op in range(7):
                    for e in range(2):
                        x_, g_, d_ = xs[e], gs[e], ds[e]
                        out.append([f"v_mul_f32 v{g_}, s{S_C1}, v{x_}",
                                    f"v_sub_f32 v{d_}, v{x_}, v{g_}",
                                    f"v_add_f32 v{x_}, v{g_}, v{d_}",
                                    f"v_mul_f32 v{g_}, s{S_K2}, v{x_}",
                                    f"v_fma_f32 v{d_}, v{x_}, s{S_SC}, -v{g_}",
                                    f"v_add_f32 v{x_}, v{g_}, v{d_}",
                                    f"v_fma_f32 v{x_}, v{x_}, s{S_L2E}, v{V_NEGC}"][op])
            else:
                for e in range(2):
                    out.append(f"v_fma_f32 v{xs[e]}, v{xs[e]}, s{S_SL}, v{V_NEGC}")
            return out
        if MIMIC:
            return [f"v_pk_mul_f32 {g}, {x}, s[{S_C1}:{S_C1+1}]",
                    f"v_pk_add_f32 {d}, {x}, {g} neg_lo:[0,1] neg_hi:[0,1]",
                    f"v_pk_add_f32 {x}, {g}, {d}",
                    f"v_pk_mul_f32 {g}, {x}, s[{S_K2}:{S_K2+1}]",
                    f"v_pk_fma_f32 {d}, {x}, s[{S_SC}:{S_SC+1}], {g} neg_lo:[0,0,1] neg_hi:[0,0,1]",
                    f"v_pk_add_f32 {x}, {g}, {d}",
                    f"v_pk_fma_f32 {x}, {x}, s[{S_L2E}:{S_L2E+1}], v[{V_NEGC}:{V_NEGC+1}] op_sel_hi:[1,1,0]"]
        return [f"v_pk_mul_f32 {x}, {x}, s[{S_SC}:{S_SC+1}]",
                f"v_pk_fma_f32 {x}, {x}, s[{S_L2E}:{S_L2E+1}], v[{V_NEGC}:{V_NEGC+1}] op_sel_hi:[1,1,0]"]
    for a in range(0, 4, 2):
        p0, p1 = pre(pairs[a]), pre(pairs[a + 1])
        for x, y in zip(p0, p1):
            L += [x, y]
        for i in (pairs[a], pairs[a + 1]):
            L.append(f"v_exp_f32 v{S+i}, v{S+i}")
            L.append(f"v_exp_f32 v{S+i+1}, v{S+i+1}")
    L.append("s_nop 0")
    for i in pairs:
        if DOT2:
            L.append(f"v_cvt_pk_bf16_f32 v{S + i // 2}, v{S+i}, v{S+i+1}")
            continue
        if i == 0:
            L.append(f"v_mov_b32 v{PSUM}, v{S}")
            L.append(f"v_mov_b32 v{PSUM+1}, v{S+1}")
        elif USEPK:
            L.append(f"v_pk_add_f32 v[{PSUM}:{PSUM+1}], v[{PSUM}:{PSUM+1}], v[{S+i}:{S+i+1}]")
        else:
            L.append(f"v_add_f32 v{PSUM}, v{PSUM}, v{S+i}")
            L.append(f"v_add_f32 v{PSUM+1}, v{PSUM+1}, v{S+i+1}")
        L.append(f"v_cvt_pk_bf16_f32 v{S + i // 2}, v{S+i}, v{S+i+1}")
    if DOT2:
        for i in pairs:
            a = PSUM + ((i >> 1) & 1)
            if DOT2 == 1: L.append(f"v_dot2c_f32_bf16 v{a}, v{S + i // 2}, v14")
            else: L.append(f"v_dot2_f32_bf16 v{a}, v{S + i // 2}, v14, v{a}")
    if EXPT & 1: L = [x for x in L if not x.startswith("v_exp")]
    if EXPT & 2: L = [x for x in L if x.startswith("v_exp") or x.startswith("s_nop")]
    return L

def sm_rescale(t):
    if t == 0 or NOMAX: return []
    if LAZY:
        lbl = f".Lk1_nors2_{t}"
        return [[f"s_cmp_eq_u64 s[{S_FLAG}:{S_FLAG+1}], 0", f"s_cbranch_scc1 {lbl}"] + [f"v_mul_f32 v{V_ACC+i}, v{V_ALPHA}, v{V_ACC+i}" for i in range(64)] + [f"{lbl}:"]]
    if not USEPK:
        return [f"v_mul_f32 v{V_ACC+i}, v{V_ALPHA}, v{V_ACC+i}" for i in range(64)]
    return [f"v_pk_mul_f32 v[{V_ACC+i}:{V_ACC+i+1}], v[{V_ACC+i}:{V_ACC+i+1}], v[{V_ALPHA}:{V_ALPHA+1}] op_sel_hi:[1,0]" for i in range(0, 64, 2)]

def sm_lupd(t):
    if DOT2: return []
    L = [f"v_add_f32 v{PSUM}, v{PSUM}, v{PSUM+1}"]
    if t == 0:
        L.append(f"v_mov_b32 v{V_L}, v{PSUM}")
    elif LAZY:
        L.append(f"v_add_f32 v{V_L}, v{V_L}, v{PSUM}")
    else:
        L.append(f"v_fma_f32 v{V_L}, v{V_L}, v{V_ALPHA}, v{PSUM}")
    return L

def gen_k1(A, emb=False, pre=None, hookA=None, hookB=None, kname="k1_kernel", v2=False, hookC=None):
    name = kname
    vm = Cnt(A, "vmcnt", 63); lg = Cnt(A, "lgkmcnt", 15)
    stamp = Stamper(A, lg, S_DBG, S_WAVE)
    kernel_header(A, name)
    A("s_cmp_lt_u32 s2, 256")
    A("s_cbranch_scc1 .Lk1_go")
    A("s_endpgm")
    A.label(".Lk1_go")
    if pre: pre()
    A("s_load_dwordx4 s[60:63], s[0:1], 8")
    A("s_load_dwordx4 s[64:67], s[0:1], 24")
    A("s_load_dwordx2 s[68:69], s[0:1], 112")
    A("s_load_dwordx8 s[92:99], s[0:1], 48")
    A(f"v_and_b32 v{V_LANE}, 63, v0")
    A("v_lshrrev_b32 v2, 6, v0")
    A("s_nop 0")
    A(f"v_readfirstlane_b32 s{S_WAVE}, v2")
    KM = int(os.environ.get("K1MAP","1"))
    if KM == 1:
        A(f"s_lshr_b32 s{S_G}, s2, 5")
        A(f"s_and_b32 s{S_M}, s2, 31")
    elif KM == 4:
        A(f"s_and_b32 s{S_G}, s2, 6")
        A(f"s_lshr_b32 s{S_M}, s2, 7")
        A(f"s_or_b32 s{S_G}, s{S_G}, s{S_M}")
        A(f"s_bfe_u32 s{S_M}, s2, 0x40003")
        A(f"s_lshl_b32 s{S_M}, s{S_M}, 1")
        A(f"s_and_b32 s{S_TMP}, s2, 1")
        A(f"s_or_b32 s{S_M}, s{S_M}, s{S_TMP}")
    elif KM == 5:
        A(f"s_and_b32 s{S_G}, s2, 4")
        A(f"s_lshr_b32 s{S_M}, s2, 6")
        A(f"s_or_b32 s{S_G}, s{S_G}, s{S_M}")
        A(f"s_bfe_u32 s{S_M}, s2, 0x30003")
        A(f"s_lshl_b32 s{S_M}, s{S_M}, 2")
        A(f"s_and_b32 s{S_TMP}, s2, 3")
        A(f"s_or_b32 s{S_M}, s{S_M}, s{S_TMP}")
    elif KM == 0:
        A(f"s_and_b32 s{S_G}, s2, 7")
        A(f"s_lshr_b32 s{S_M}, s2, 3")
    else:
        nb_ = KM - 1
        A(f"s_and_b32 s{S_G}, s2, {(1 << nb_) - 1}")
        A(f"s_lshr_b32 s{S_M}, s2, {5 + nb_}")
        A(f"s_lshl_b32 s{S_M}, s{S_M}, {nb_}")
        A(f"s_or_b32 s{S_G}, s{S_G}, s{S_M}")
        A(f"s_bfe_u32 s{S_M}, s2, {hex((5 << 16) | nb_)}")
    A(f"s_mov_b32 s{S_MASK}, 0xffff0000")
    for (s, val) in (() if P4 else ((S_C1, 65537.0), (S_K2, 65537.0 * SCALE), (S_SC, SCALE), (S_L2E, LOG2E))):
        A(f"s_mov_b32 s{s}, {fhex(val)}")
        A(f"s_mov_b32 s{s+1}, {fhex(val)}")
    L = V_LANE
    SM = f"s{S_MASK}"
    D = 4
    EARLYA = v2 and int(os.environ.get("EARLYA", "1"))
    if EARLYA:
        A(f"v_lshlrev_b32 v12, 4, v{L}")
        hookA()
    A(f"v_lshrrev_b32 v5, 3, v{L}")
    A(f"v_and_b32 v6, 7, v{L}")
    A("v_lshlrev_b32 v7, 1, v5")
    A("v_and_b32 v7, 4, v7")
    A("v_xor_b32 v6, v6, v7")
    A("v_lshlrev_b32 v6, 4, v6")
    A(f"v_lshl_add_u32 v{V_WQOFF}, v5, 13, v6")
    A(f"v_lshl_add_u32 v{V_WOOFF}, v5, 10, v6")
    A(f"s_lshl_b32 s{S_RB}, s{S_WAVE}, {11 if D6 else 13}")
    A(f"s_add_u32 s{S_RB}, s{S_RB}, {STG}")
    A(f"s_lshl_b32 s{S_OFF}, s{S_G}, 10")
    A(f"s_lshl_b32 s{S_TMP}, s{S_WAVE}, 7")
    A(f"s_add_u32 s{S_OFF}, s{S_OFF}, s{S_TMP}")
    if P4:
        assert D6 and not M16
        A(f"v_lshrrev_b32 v5, 4, v{L}")
        A(f"v_and_b32 v6, 15, v{L}")
        A(f"s_lshl_b32 s{S_TMP}, s{S_WAVE}, 3")
        A(f"v_add_u32 v7, s{S_TMP}, v5")
        A(f"v_xor_b32 v9, v7, v{L}")
        A("v_and_b32 v9, 15, v9")
        A("v_lshlrev_b32 v9, 4, v9")
        A(f"v_lshl_add_u32 v{V_KOFF}, v7, 8, v9")
        A(f"v_xor_b32 v{V_KOFF+1}, 64, v{V_KOFF}")
        A("v_lshlrev_b32 v9, 2, v5")
        A("v_xor_b32 v9, v6, v9")
        A("v_lshlrev_b32 v9, 4, v9")
        A(f"v_lshl_add_u32 v{V_VOFF}, v7, 8, v9")
        A(f"s_lshl_b32 s{S_KVM0}, s{S_WAVE}, 11")
        A(f"v_lshrrev_b32 v5, 5, v{L}")
        A(f"v_bfe_u32 v6, v{L}, 4, 1")
        A(f"v_bfe_u32 v7, v{L}, 2, 2")
        A(f"v_and_b32 v8, 1, v{L}")
        A(f"v_bfe_u32 v9, v{L}, 1, 1")
        A("v_lshl_or_b32 v8, v8, 1, v9")
        A("v_lshlrev_b32 v8, 3, v8")
        A("v_lshl_add_u32 v8, v6, 5, v8")
        A("v_lshl_add_u32 v10, v5, 3, v7")
        A("v_lshrrev_b32 v11, 1, v7")
        A("v_lshl_add_u32 v9, v11, 6, v8")
        A("v_lshl_add_u32 v9, v10, 7, v9")
        A(f"v_add_u32 v{V_AADDR}, s{S_RB}, v9")
        A(f"v_xor_b32 v{V_AADDR+1}, 64, v{V_AADDR}")
        for nb in range(2): A(f"v_add_u32 v{V_AADDR2[nb]}, 65536, v{V_AADDR+nb}")
        A("v_lshl_add_u32 v9, v7, 6, v8")
        A("v_lshl_add_u32 v9, v10, 8, v9")
        A(f"v_add_u32 v{V_VADDR}, {VRING}, v9")
        for db in range(1, 4): A(f"v_xor_b32 v{V_VADDR+db}, {db << 6}, v{V_VADDR}")
        A(f"v_and_b32 v6, 31, v{L}")
        A("v_xor_b32 v7, v5, v6")
        A("v_and_b32 v7, 15, v7")
        A("v_lshlrev_b32 v7, 4, v7")
        A(f"v_lshl_add_u32 v{V_BADDR}, v6, 10, v7")
        for j in range(1, 8): A(f"v_xor_b32 v{V_BADDR+j}, {j << 5}, v{V_BADDR}")
        A("v_and_b32 v7, 0x13, v6")
        A("v_bfe_u32 v8, v6, 2, 1")
        A("v_lshl_or_b32 v7, v8, 3, v7")
        A("v_bfe_u32 v8, v6, 3, 1")
        A("v_lshl_or_b32 v7, v8, 2, v7")
        A("v_xor_b32 v8, v5, v7")
        A("v_and_b32 v8, 15, v8")
        A("v_lshlrev_b32 v8, 4, v8")
        A("v_lshl_add_u32 v8, v7, 8, v8")
        A(f"v_add_u32 v{V_KADDR}, {KRING}, v8")
        for j in range(1, 8): A(f"v_xor_b32 v{V_KADDR+j}, {j << 5}, v{V_KADDR}")
        A(f"v_and_b32 v14, 48, v{L}")
        A(f"v_xor_b32 v15, s71, v{L}")
        A("v_and_or_b32 v15, v15, 15, v14")
        A("v_lshlrev_b32 v15, 4, v15")
        A(f"s_lshl_b32 s{S_TMP+1}, s71, 10")
        A(f"v_add_u32 v{V_QADDR}, s{S_TMP+1}, v15")
        for i in range(1, 8): A(f"v_xor_b32 v{V_QADDR+i}, {i * 1040}, v{V_QADDR}")
        A(f"v_lshlrev_b32 v13, 5, v{L}")
        A(f"v_mov_b32 v{V_K10}, 0x3f80")
        A(f"v_mov_b32 v{V_K01}, 1.0")
    else:
        A(f"v_lshrrev_b32 v5, 4, v{L}")
        A(f"v_and_b32 v6, 15, v{L}")
        A(f"s_lshl_b32 s{S_TMP}, s{S_WAVE}, 3")
        A(f"v_add_u32 v7, s{S_TMP}, v5")
        for j in range(2):
            A(f"v_add_u32 v8, {4*j}, v7")
            A("v_and_b32 v9, 15, v8")
            A("v_xor_b32 v9, v6, v9")
            A("v_lshlrev_b32 v9, 4, v9")
            A(f"v_lshl_add_u32 v{V_KOFF+j}, v7, 8, v9")
        A("v_lshlrev_b32 v9, 2, v5")
        A("v_xor_b32 v9, v6, v9")
        A("v_lshlrev_b32 v9, 4, v9")
        A(f"v_lshl_add_u32 v{V_VOFF}, v7, 8, v9")
        A(f"s_lshl_b32 s{S_KVM0}, s{S_WAVE}, 11")
        A(f"v_lshrrev_b32 v5, 5, v{L}")
        A(f"v_bfe_u32 v6, v{L}, 4, 1")
        A(f"v_bfe_u32 v7, v{L}, 2, 2")
        A(f"v_and_b32 v8, 1, v{L}")
        A(f"v_bfe_u32 v9, v{L}, 1, 1")
        A("v_lshl_or_b32 v8, v8, 1, v9")
        A("v_lshlrev_b32 v8, 3, v8")
        A("v_lshl_add_u32 v8, v6, 5, v8")
        A("v_lshl_add_u32 v10, v5, 3, v7")
        A("v_lshrrev_b32 v11, 1, v7")
        for nb in range(2):
            A(f"v_xor_b32 v12, {nb}, v11")
            A("v_lshl_add_u32 v12, v12, 6, v8")
            A("v_lshl_add_u32 v12, v10, 7, v12")
            A(f"v_add_u32 v{V_AADDR+nb}, s{S_RB}, v12")
            if M16: A(f"v_xor_b32 v{V_AADDR2[nb]}, 32, v{(V_WQOFF, V_WOOFF)[nb]}")
            elif D6: A(f"v_add_u32 v{V_AADDR2[nb]}, 65536, v{V_AADDR+nb}")
        for db in range(4):
            A(f"v_xor_b32 v12, {db}, v7")
            A("v_lshl_add_u32 v12, v12, 6, v8")
            A(f"v_lshl_add_u32 v12, v10, 8, v12")
            A(f"v_add_u32 v{V_VADDR+db}, {VRING}, v12")
        A(f"v_and_b32 v6, 31, v{L}")
        for j in range(8):
            A(f"v_or_b32 v7, {2*j}, v5")
            A("v_xor_b32 v7, v7, v6")
            A("v_and_b32 v7, 15, v7")
            A("v_lshlrev_b32 v7, 4, v7")
            A(f"v_lshl_add_u32 v{V_BADDR+j}, v6, 10, v7")
        A("v_and_b32 v7, 0x13, v6")
        A("v_bfe_u32 v8, v6, 2, 1")
        A("v_lshl_or_b32 v7, v8, 3, v7")
        A("v_bfe_u32 v8, v6, 3, 1")
        A("v_lshl_or_b32 v7, v8, 2, v7")
        for j in range(8):
            A(f"v_or_b32 v8, {2*j}, v5")
            A("v_xor_b32 v8, v8, v7")
            A("v_and_b32 v8, 15, v8")
            A("v_lshlrev_b32 v8, 4, v8")
            A(f"v_lshl_add_u32 v8, v7, 8, v8")
            A(f"v_add_u32 v{V_KADDR+j}, {KRING}, v8")
        A(f"s_lshl_b32 s{S_TMP}, s{S_WAVE}, 3")
        A(f"v_and_b32 v14, 48, v{L}")
        for i in range(8):
            A(f"s_add_u32 s{S_TMP+1}, s{S_TMP}, {i}")
            A(f"v_xor_b32 v15, s{S_TMP+1}, v{L}")
            A("v_and_or_b32 v15, v15, 15, v14")
            A("v_lshlrev_b32 v15, 4, v15")
            A(f"s_lshl_b32 s{S_TMP+1}, s{S_TMP+1}, 10")
            A(f"v_add_u32 v{V_QADDR+i}, s{S_TMP+1}, v15")
        A(f"s_lshl_b32 s{S_TMP}, s{S_M}, 16")
        A(f"s_lshl_b32 s{S_TMP+1}, s{S_WAVE}, 13")
        A(f"s_add_u32 s{S_TMP}, s{S_TMP}, s{S_TMP+1}")
        A(f"s_add_u32 s{S_TMP+1}, s{S_TMP}, 4096")
        A(f"v_lshlrev_b32 v12, 4, v{L}")
        A(f"v_lshlrev_b32 v13, 5, v{L}")
        A("s_waitcnt lgkmcnt(0)")
        make_srd(A, S_XN, 68, WS_XN, 2 * MB)
        make_srd(A, S_MOD, 68, WS_MOD, 3072 * 4)
    XR = V_S
    SA = V_S + 32; CA = V_S + 40
    def p0_loads():
        A(f"buffer_load_dwordx4 v[{CA}:{CA+3}], v13, s[{S_MOD}:{S_MOD+3}], 0 offen offset:2048"); vm.issue("mod")
        A(f"buffer_load_dwordx4 v[{CA+4}:{CA+7}], v13, s[{S_MOD}:{S_MOD+3}], 0 offen offset:2064"); vm.issue("mod")
        A(f"buffer_load_dwordx4 v[{SA}:{SA+3}], v13, s[{S_MOD}:{S_MOD+3}], 0 offen"); vm.issue("mod")
        A(f"buffer_load_dwordx4 v[{SA+4}:{SA+7}], v13, s[{S_MOD}:{S_MOD+3}], 0 offen offset:16"); vm.issue("mod")
        for i in range(8):
            A(f"buffer_load_dwordx4 v[{XR+4*i}:{XR+4*i+3}], v12, s[{S_XN}:{S_XN+3}], s{S_TMP + (i >> 2)} offen offset:{(i & 3) * 1024}")
            vm.issue(("x", i))
    if EARLYA: pass
    elif hookA: hookA()
    else: p0_loads()
    make_srd(A, S_WQ, 64, 0, 4 * MB)
    if hookB: pass
    elif D6: gemm_dma6(A, vm, 0, S_WQ, V_WQOFF, 8192)
    else: gemm_dma(A, vm, 0, S_WQ, V_WQOFF, 8192, D)
    A(f"s_lshl_b32 s{S_TMP}, s{S_G}, 19")
    A(f"s_add_u32 s{S_TMP+1}, s{S_TMP}, {1536 * 256}")
    make_srd(A, S_K, 60, f"s{S_TMP+1}", 512 * 256)
    make_srd(A, S_V, 62, f"s{S_TMP+1}", 512 * 256)
    make_srd(A, S_WO, 66, f"s{S_TMP}", 512 * 1024)
    psz = 2 if PART_BF16 else 4
    A(f"s_mov_b32 s{S_SL}, {fhex(SCALE*LOG2E)}")
    PL = int(os.environ.get("PL", "1")) and emb
    if PL:
        A(f"s_lshl_b32 s{S_TMP+2}, s{S_M}, 3")
        A(f"s_add_u32 s{S_TMP+2}, s{S_TMP+2}, s{S_G}")
        A(f"s_lshl_b32 s{S_TMP+2}, s{S_TMP+2}, 16")
        A(f"s_add_u32 s{S_TMP+2}, s{S_TMP+2}, {WS_PART}")
        make_srd(A, S_P, 68, f"s{S_TMP+2}", 65536)
    else:
        A(f"s_mul_i32 s{S_TMP+2}, s{S_G}, {2048 * 512 * psz}")
        A(f"s_add_u32 s{S_TMP+2}, s{S_TMP+2}, {WS_PART}")
        make_srd(A, S_P, 68, f"s{S_TMP+2}", 2048 * 512 * psz)
    if DEBUG or TIMING:
        make_srd(A, S_DBG, 68, WS_DBG, 32 * MB)
    stamp(True); stamp()
    SCR = STG + 16384
    if hookB and v2:
        LDE = int(os.environ.get("LDE", "2"))
        KVL = int(os.environ.get("KVL", "1"))
        def kvpf():
            A(f"v_lshlrev_b32 v5, 7, v{L}")
            A(f"s_lshl_b32 s{S_TMP}, s{S_M}, 12")
            A(f"s_add_u32 s{S_TMP+1}, s{S_TMP}, 4096")
            A(f"s_cmp_lg_u32 s{S_WAVE}, 4")
            A("s_cbranch_scc1 .Lk1_nkv")
            A("s_mov_b32 exec_hi, 0")
            A(f"buffer_load_dword v15, v5, s[{S_K}:{S_K+3}], s{S_TMP} offen")
            A(f"buffer_load_dword v15, v5, s[{S_V}:{S_V+3}], s{S_TMP} offen")
            A("s_mov_b64 exec, -1")
            A.label(".Lk1_nkv")
        def loader():
            for st in range(LDE): gemm_dma6(A, vm, st, S_WQ, V_WQOFF, 8192)
            A(f"s_sub_u32 s{S_RB}, s{S_RB}, 8192")
            A(f"s_sub_u32 s{S_OFF}, s{S_OFF}, {LDE * 16 * 8192 + 512}")
            for st in range(LDE): gemm_dma6(A, vm, st, S_WQ, V_WQOFF, 8192)
            A(f"s_add_u32 s{S_RB}, s{S_RB}, 8192")
            A(f"s_add_u32 s{S_OFF}, s{S_OFF}, 512")
            if not KVL: kvpf()
        def cfix():
            A(f"s_add_u32 s{S_OFF}, s{S_OFF}, {LDE * 16 * 8192}")
        def xn_loads():
            vm.ops = []
            A(f"s_lshl_b32 s{S_TMP}, s{S_M}, 16")
            A(f"s_lshl_b32 s{S_TMP+1}, s{S_WAVE}, 13")
            A(f"s_add_u32 s{S_TMP}, s{S_TMP}, s{S_TMP+1}")
            A(f"s_add_u32 s{S_TMP+1}, s{S_TMP}, 4096")
            for i in range(8):
                A(f"buffer_load_dwordx4 v[{XR+4*i}:{XR+4*i+3}], v12, s[{S_XN}:{S_XN+3}], s{S_TMP + (i >> 2)} offen offset:{(i & 3) * 1024}")
                vm.issue(("x", i))
        def ownfill():
            for st in range(LDE): gemm_dma6(A, vm, st, S_WQ, V_WQOFF, 8192)
        hookB(ownfill if int(os.environ.get("MEGA", "6")) >= 6 else loader, cfix, xn_loads)
        lg.ops = []
        A(f"v_add_u32 v2, {SCR + 4096}, v13")
        A(f"ds_read_b128 v[{CA}:{CA+3}], v2 offset:2048")
        A(f"ds_read_b128 v[{CA+4}:{CA+7}], v2 offset:2064")
        A(f"ds_read_b128 v[{SA}:{SA+3}], v2")
        A(f"ds_read_b128 v[{SA+4}:{SA+7}], v2 offset:16")
        A("s_waitcnt lgkmcnt(0)")
    elif hookB:
        def early():
            for st in range(6): gemm_dma6(A, vm, st, S_WQ, V_WQOFF, 8192)
            A(f"s_cmp_lg_u32 s{S_WAVE}, 6")
            A("s_cbranch_scc1 .Lk1_e6")
            A(f"s_add_u32 s{S_RB}, s{S_RB}, 2048")
            A(f"s_sub_u32 s{S_OFF}, s{S_OFF}, {6 * 16 * 8192 - 128}")
            for st in range(6): gemm_dma6(A, vm, st, S_WQ, V_WQOFF, 8192)
            A(f"s_sub_u32 s{S_RB}, s{S_RB}, 2048")
            A(f"s_sub_u32 s{S_OFF}, s{S_OFF}, 128")
            A.label(".Lk1_e6")
            A(f"v_lshlrev_b32 v5, 6, v{L}")
            A(f"s_lshl_b32 s{S_TMP}, s{S_M}, 12")
            A(f"buffer_load_dword v15, v5, s[{S_K}:{S_K+3}], s{S_TMP} offen")
            A(f"buffer_load_dword v15, v5, s[{S_V}:{S_V+3}], s{S_TMP} offen")
        def w7():
            A(f"s_add_u32 s{S_OFF}, s{S_OFF}, {6 * 16 * 8192}")
        hookB(0, early, w7)
        vm.ops = []; lg.ops = []
        A(f"s_lshl_b32 s{S_TMP}, s{S_M}, 16")
        A(f"s_lshl_b32 s{S_TMP+1}, s{S_WAVE}, 13")
        A(f"s_add_u32 s{S_TMP}, s{S_TMP}, s{S_TMP+1}")
        A(f"s_add_u32 s{S_TMP+1}, s{S_TMP}, 4096")
        p0_loads()
    vm.wait("mod")
    for j in range(0, 8 if not v2 else 0, 2):
        A(f"v_add_f32 v{CA+j}, 1.0, v{CA+j}")
        A(f"v_add_f32 v{CA+j+1}, 1.0, v{CA+j+1}")
        round_bf16_2(A, CA + j, CA + j + 1, V_T, SM)
    for i in range(8 if P4 else 0):
        x = XR + 4 * i; T = 64 + 16 * (i & 1)
        for j in range(8): A(f"v_dot2_f32_bf16 v{T+j}, v{x+j//2}, v{CA+j}, 0")
        for j in range(4): A(f"v_cvt_pk_bf16_f32 v{x+j}, v{T+2*j}, v{T+2*j+1}")
        for j in range(8): A(f"v_dot2_f32_bf16 v{T+8+j}, v{x+j//2}, v{(V_K10, V_K01)[j & 1]}, v{SA+j}")
        for j in range(4): A(f"v_cvt_pk_bf16_f32 v{x+j}, v{T+8+2*j}, v{T+8+2*j+1}")
        A(f"ds_write_b128 v{V_QADDR+i}, v[{x}:{x+3}]")
        lg.issue("hw")
        if LDE + i < 5: gemm_dma6(A, vm, LDE + i, S_WQ, V_WQOFF, 8192)
    for i in range(0 if P4 else 8):
        x = XR + 4 * i
        vm.wait(("x", i))
        for j in range(4):
            a = 2 + 2 * j
            A(f"v_lshlrev_b32 v{a}, 16, v{x+j}")
            A(f"v_and_b32 v{a+1}, {SM}, v{x+j}")
        for j in range(0, 8, 2):
            A(f"v_pk_mul_f32 v[{2+j}:{3+j}], v[{2+j}:{3+j}], v[{CA+j}:{CA+j+1}]")
        for j in range(4):
            a = 2 + 2 * j
            A(f"v_cvt_pk_bf16_f32 v{x+j}, v{a}, v{a+1}")
        for j in range(4):
            a = 2 + 2 * j
            A(f"v_lshlrev_b32 v{a}, 16, v{x+j}")
            A(f"v_and_b32 v{a+1}, {SM}, v{x+j}")
        for j in range(0, 8, 2):
            A(f"v_pk_add_f32 v[{2+j}:{3+j}], v[{2+j}:{3+j}], v[{SA+j}:{SA+j+1}]")
        for j in range(4):
            a = 2 + 2 * j
            A(f"v_cvt_pk_bf16_f32 v{x+j}, v{a}, v{a+1}")
        A(f"ds_write_b128 v{V_QADDR+i}, v[{x}:{x+3}]")
        lg.issue("hw")
        if hookB and v2:
            if LDE + i < 5: gemm_dma6(A, vm, LDE + i, S_WQ, V_WQOFF, 8192)
        elif hookB: pass
        elif D6:
            if i in (1, 3, 5, 6, 7): gemm_dma6(A, vm, {1: 1, 3: 2, 5: 3, 6: 4, 7: 5}[i], S_WQ, V_WQOFF, 8192)
        elif i in (1, 3, 5):
            gemm_dma(A, vm, (i + 1) // 2, S_WQ, V_WQOFF, 8192, D)
    if not D6:
        k_dma(A, vm, 0)
        k_dma(A, vm, 1)
    if PREFETCH and not hookB:
        A(f"v_lshlrev_b32 v5, 6, v{L}")
        A(f"s_lshl_b32 s{S_TMP}, s{S_M}, 12")
        A(f"buffer_load_dword v15, v5, s[{S_K}:{S_K+3}], s{S_TMP} offen"); vm.issue("pf")
        A(f"buffer_load_dword v15, v5, s[{S_V}:{S_V+3}], s{S_TMP} offen"); vm.issue("pf")
    if hookC:
        if KVL: kvpf()
        hookC()
    if M16: addr16(A)
    lg.waitall()
    stamp()
    A("s_barrier")
    stamp()
    if D6:
        def tail1(ks):
            if ks == 26: k_dma(A, vm, 0)
            if ks == 27: k_dma(A, vm, 1)
            if ks == 28: v_dma(A, vm, 0)
            if ks == 29: v_dma(A, vm, 1)
            if ks == 31: k_dma(A, vm, 2)
        if M16: gemm_core16(A, vm, lg, S_WQ, V_WQOFF, 8192, 5 if v2 else 6, tail1)
        else: gemm_core6(A, vm, lg, S_WQ, V_WQOFF, 8192, 5 if v2 else 6, tail1, bars=eval(os.environ.get('B1', '()')))
    else:
        gemm_core(A, vm, lg, S_WQ, V_WQOFF, 8192, D)
    stamp()
    A("s_barrier")
    if not D6:
        v_dma(A, vm, 0)
        k_dma(A, vm, 2)
        v_dma(A, vm, 1)
    A(f"s_and_b32 s{S_TMP}, s{S_WAVE}, 1")
    A(f"s_lshr_b32 s{S_TMP+1}, s{S_WAVE}, 1")
    A(f"s_lshl_b32 s{S_TMP+1}, s{S_TMP+1}, 8")
    A(f"s_cmp_eq_u32 s{S_TMP}, 1")
    A(f"s_cselect_b64 vcc, -1, 0")
    A(f"v_mov_b32 v{V_ALPHA}, s{S_SL}")
    if M16:
        A(f"v_lshrrev_b32 v6, 5, v{L}")
        A(f"v_and_b32 v7, 15, v{L}")
        A(f"s_lshl_b32 s{S_TMP}, s{S_TMP}, 3")
        A(f"v_or_b32 v6, s{S_TMP}, v6")
        A("v_xor_b32 v6, v6, v7")
        A(f"v_bfe_u32 v8, v{L}, 4, 1")
        A("v_lshlrev_b32 v8, 3, v8")
        A("v_lshl_add_u32 v8, v7, 10, v8")
        A(f"v_add_u32 v8, s{S_TMP+1}, v8")
        for nt in range(4):
            A(f"v_xor_b32 v9, {2*nt}, v6")
            A(f"v_lshl_add_u32 v{2+nt}, v9, 4, v8")
        for nt in range(4):
            for rt in range(4):
                acc = V_ACC + (nt * 4 + rt) * 4
                d = V_S + (nt * 4 + rt) * 2
                for e in range(0, 4, 2):
                    A(f"v_pk_mul_f32 v[{acc+e}:{acc+e+1}], v[{acc+e}:{acc+e+1}], v[{V_ALPHA}:{V_ALPHA+1}] op_sel_hi:[1,0]")
                for e in range(2):
                    A(f"v_cvt_pk_bf16_f32 v{d+e}, v{acc+2*e}, v{acc+2*e+1}")
                A(f"ds_write_b64 v{2+nt}, v[{d}:{d+1}] offset:{rt*16384}")
                lg.issue("qw")
    else:
        for j in range(4):
            A(f"v_cndmask_b32 v{2+j}, v{V_BADDR+j}, v{V_BADDR+4+j}, vcc")
            A(f"v_add_u32 v{2+j}, s{S_TMP+1}, v{2+j}")
        for nb in range(2):
            for rb in range(2):
                acc = V_ACC + (nb * 2 + rb) * 16
                for mp in range(2):
                    d = V_S + (nb * 4 + rb * 2 + mp) * 4
                    if CT:
                        for e in range(0, 8, 2):
                            A(f"v_pk_mul_f32 v[{acc+8*mp+e}:{acc+8*mp+e+1}], v[{acc+8*mp+e}:{acc+8*mp+e+1}], v[{V_ALPHA}:{V_ALPHA+1}] op_sel_hi:[1,0]")
                    for e in range(4):
                        A(f"v_cvt_pk_bf16_f32 v{d+e}, v{acc+8*mp+2*e}, v{acc+8*mp+2*e+1}")
                    A(f"ds_write_b128 v{2+2*nb+mp}, v[{d}:{d+3}] offset:{rb*32768}")
                    lg.issue("qw")
                    if DEBUG:
                        A(f"v_and_b32 v8, 31, v{L}")
                        A(f"v_lshrrev_b32 v9, 5, v{L}")
                        A("v_lshlrev_b32 v8, 13, v8")
                        A("v_lshl_add_u32 v8, v9, 4, v8")
                        A(f"s_lshl_b32 s{S_TMP+2}, s{S_M}, 19")
                        A(f"s_lshl_b32 s{S_TMP+3}, s{S_G}, 10")
                        A(f"s_add_u32 s{S_TMP+2}, s{S_TMP+2}, s{S_TMP+3}")
                        A(f"s_lshl_b32 s{S_TMP+3}, s{S_WAVE}, 7")
                        A(f"s_add_u32 s{S_TMP+2}, s{S_TMP+2}, s{S_TMP+3}")
                        A(f"s_add_u32 s{S_TMP+2}, s{S_TMP+2}, {rb*32*8192 + nb*64 + mp*32}")
                        A(f"buffer_store_dwordx4 v[{d}:{d+3}], v8, s[{S_DBG}:{S_DBG+3}], s{S_TMP+2} offen")
                        vm.issue("dbg")
    A(f"s_and_b32 s{S_TMP}, s{S_WAVE}, 3")
    A(f"s_lshl_b32 s{S_TMP}, s{S_TMP}, 8")
    A(f"s_lshr_b32 s{S_TMP+1}, s{S_WAVE}, 2")
    A(f"s_lshl_b32 s{S_TMP+1}, s{S_TMP+1}, 15")
    A(f"s_add_u32 s{S_QOFF}, s{S_TMP}, s{S_TMP+1}")
    for j in range(8):
        A(f"v_add_u32 v{V_QADDR+j}, s{S_QOFF}, v{V_BADDR+j}")
    lg.waitall()
    vm.wait(("k", 0))
    A("s_barrier")
    stamp()
    if PRIO:
        A(f"s_cmp_lt_u32 s{S_WAVE}, 4")
        A("s_cbranch_scc1 .Lk1_noprio" if PRIO == 1 else "s_cbranch_scc0 .Lk1_noprio")
        A("s_setprio 1")
        A.label(".Lk1_noprio")
    for j in range(8):
        A(f"ds_read_b128 v[{V_Q+4*j}:{V_Q+4*j+3}], v{V_QADDR+j}")
        lg.issue("q")
    seq = []
    for kb in range(2):
        for j in range(8):
            seq.append(("k", 0, kb, j))
    for t in range(8):
        if t > 0:
            for db in range(4): seq.append(("v", t - 1, 3, db))
        if t + 1 < 8:
            for kb in range(2):
                for j in range(8): seq.append(("k", t + 1, kb, j))
        for ks in range(3):
            for db in range(4): seq.append(("v", t, ks, db))
    for db in range(4): seq.append(("v", 7, 3, db))
    state = {"issued": 0, "limit": 0}
    def issue_frag(i):
        kind, t, a, b = seq[i]
        f = V_F + (i % NF) * 4
        if (EXPT & 4) and i >= 8: return
        if (EXPT & 16) and (i & 1): return
        if kind == "k":
            A(f"ds_read_b128 v[{f}:{f+3}], v{V_KADDR+b} offset:{((t + 1) % 3) * 16384 + a * 8192}")
            lg.issue(("fr", i))
        else:
            o = (t % 3) * 16384 + a * 4096
            A(f"ds_read_b64_tr_b16 v[{f}:{f+1}], v{V_VADDR+b} offset:{o}")
            lg.issue(("fr", i))
            A(f"ds_read_b64_tr_b16 v[{f+2}:{f+3}], v{V_VADDR+b} offset:{o + 1024}")
            lg.issue(("fr", i))
    def avail(i, epoch):
        kind, t, a, b = seq[i]
        return (t - 1 <= epoch) if kind == "k" else (t <= epoch)
    def runahead(cur, epoch):
        while state["issued"] < len(seq) and state["issued"] <= cur + RA and avail(state["issued"], epoch):
            issue_frag(state["issued"]); state["issued"] += 1
    def mfma(i, epoch):
        kind, t, a, b = seq[i]
        runahead(i - 1, epoch)
        assert state["issued"] > i
        f = V_F + (i % NF) * 4
        lg.wait(("fr", i))
        if (EXPT & 2048) and kind == "k":
            for hh in range(2):
                s4 = V_S + (t & 1) * 32 + a * 16 + (b & 1) * 8 + hh * 4
                c4 = ("0" if t == 0 else f"v[{V_NB}:{V_NB+3}]") if b < 2 else f"v[{s4}:{s4+3}]"
                A(f"v_mfma_f32_16x16x32_bf16 v[{s4}:{s4+3}], v[{f}:{f+3}], v[{V_Q+4*(b^hh)}:{V_Q+4*(b^hh)+3}], {c4}")
        elif (EXPT & 4096) and kind == "v":
            for hh in range(2):
                o4 = V_ACC + b * 16 + (a & 1) * 8 + hh * 4
                p = V_S + (t & 1) * 32 + 4 * a
                c4 = "0" if (t == 0 and a < 2) else f"v[{o4}:{o4+3}]"
                A(f"v_mfma_f32_16x16x32_bf16 v[{o4}:{o4+3}], v[{f}:{f+3}], v[{p}:{p+3}], {c4}")
        elif kind == "k":
            s = V_S + (t & 1) * 32 + a * 16
            c = ("0" if (t == 0 or not CT) else f"v[{V_NB}:{V_NB+15}]") if b == 0 else f"v[{s}:{s+15}]"
            A(f"v_mfma_f32_32x32x16_bf16 v[{s}:{s+15}], v[{f}:{f+3}], v[{V_Q+4*b}:{V_Q+4*b+3}], {c}")
        else:
            o = V_ACC + b * 16
            p = V_S + (t & 1) * 32 + 4 * a
            c = "0" if (t == 0 and a == 0) else f"v[{o}:{o+15}]"
            A(f"v_mfma_f32_32x32x16_bf16 v[{o}:{o+15}], v[{f}:{f+3}], v[{p}:{p+3}], {c}")
        runahead(i, epoch)
    def seg(idx, n, valu, epoch):
        nv = len(valu); k = 0
        def em(x):
            if isinstance(x, list):
                for y in x:
                    if y.endswith(":"): A.label(y[:-1])
                    else: A(y)
            else: A(x)
        if n == 0:
            for x in valu: em(x)
            return idx
        for m_ in range(n):
            mfma(idx + m_, epoch)
            upto = (nv * (m_ + 1) + n - 1) // n
            while k < upto:
                em(valu[k]); k += 1
        return idx + n
    if DOT2:
        assert NOMAX
        A(f"v_mov_b32 v{PSUM}, 0"); A(f"v_mov_b32 v{PSUM+1}, 0"); A("v_mov_b32 v14, 0x3f803f80")
    idx = seg(0, 16, [], -1)
    for t in range(8):
        if t + 1 < 8: vm.wait(("k", t + 1))
        vm.wait(("v", t))
        if not (EXPT & 8): A("s_barrier")
        if t >= 0 and t + 3 < 8: k_dma(A, vm, t + 3)
        if t >= 1 and t + 1 < 8: v_dma(A, vm, t + 1)
        PFMODE = int(os.environ.get("PFMODE", "1"))
        if PREFETCH and t == 1:
            A("v_lshlrev_b32 v12, 6, v0")
            A(f"s_lshl_b32 s{S_TMP}, s{S_M}, 14")
            A(f"s_add_u32 s{S_TMP+1}, s{S_TMP}, 16384")
            A(f"s_mov_b32 s{S_XN}, s{S_WO}")
            A(f"s_mov_b32 s{S_XN+1}, s{S_WO+1}")
            A(f"s_mov_b32 s{S_XN+2}, s{S_TMP+1}")
            if P4: A(f"s_mov_b32 s{S_XN+3}, 0x00020000")
            A(f"buffer_load_dword v15, v12, s[{S_XN}:{S_XN+3}], s{S_TMP} offen"); vm.issue("pf")
        if PREFETCH and PFMODE < 2:
            for (tt, p, sz) in ((2, 92, 512*1024), (2, 94, 512*1024), (3, 96, 1792*1024), (4, 98, 1792*1024)):
                if t != (1 if PFMODE == 0 else tt): continue
                per = sz // 256
                if p == 96 and int(os.environ.get("K5N", "0")): per = (56 * int(os.environ.get('W3S', '32768')) // 256 + 63) // 64 * 64
                A(f"s_mul_i32 s{S_TMP}, s2, {per}")
                if p == 96 and int(os.environ.get("K5N", "0")):
                    A(f"s_add_u32 s{S_TMP}, s{S_TMP}, {28 * MB}")
                    p = 68
                make_srd(A, S_XN, p, f"s{S_TMP}", per)
                A(f"buffer_load_dword v15, v12, s[{S_XN}:{S_XN+3}], 0 offen"); vm.issue("pf")
        XPF = int(os.environ.get("XPF", "0"))
        if XPF and t in (5, 6):
            for (tt, p, sz, bit) in ((5, 96, 1792*1024, 1), (6, 98, 1792*1024, 2), (5, 92, 512*1024, 4), (6, 94, 512*1024, 4)):
                if t != tt or not (XPF & bit): continue
                per = sz // 32
                A(f"s_lshr_b32 s{S_TMP}, s2, 3")
                A(f"s_mul_i32 s{S_TMP}, s{S_TMP}, {per}")
                make_srd(A, S_XN, p, f"s{S_TMP}", per)
                A("v_lshlrev_b32 v13, 7, v0")
                A(f"buffer_load_dword v15, v13, s[{S_XN}:{S_XN+3}], 0 offen"); vm.issue("pf")
        if t == 7 and D6:
            A(f"s_lshl_b32 s{S_OFF}, s{S_WAVE}, 7")
            for st in range(4):
                gemm_dma6(A, vm, st, S_WO, V_WOOFF, 1024)
        elif t == 7:
            A(f"s_add_u32 s{S_RB}, s{S_RB}, 32768")
            A(f"s_lshl_b32 s{S_OFF}, s{S_WAVE}, 7")
            for nb in range(2):
                A(f"v_add_u32 v{V_AADDR+nb}, 32768, v{V_AADDR+nb}")
            for st in range(D):
                gemm_dma(A, vm, st, S_WO, V_WOOFF, 1024, D)
        mxl = sm_max(t)
        if t == 0:
            mxl = ["s_nop 7", "s_nop 3"] + mxl
        idx = seg(idx, 4 if t > 0 else 0, mxl, t)
        b = sm_quarter(t, 0) + sm_rescale(t) + sm_quarter(t, 1) + ["s_nop 1"]
        idx = seg(idx, 16 if t + 1 < 8 else 0, b, t)
        q3 = sm_quarter(t, 3)
        h = len(q3) // 3
        idx = seg(idx, 8, sm_quarter(t, 2) + ["s_nop 1"] + q3[:h], t)
        idx = seg(idx, 4, q3[h:] + sm_lupd(t) + ["s_nop 1"], t)
        stamp()
    idx = seg(idx, 4, [], 7)
    assert idx == len(seq)
    if DOT2: A(f"v_add_f32 v{V_L}, v{PSUM}, v{PSUM+1}")
    A(f"v_mov_b32 v2, v{V_L}")
    A(f"v_mov_b32 v3, v{V_L}")
    A("s_nop 1")
    A(f"v_permlane32_swap_b32 v2, v3")
    A("s_nop 1")
    A(f"v_add_f32 v{V_L}, v2, v3")
    for j in range(8):
        A(f"v_add_u32 v{V_QADDR+j}, s{S_QOFF}, v{V_BADDR+j}")
    A(f"v_rcp_f32 v{V_ALPHA}, v{V_L}")
    A("s_nop 7")
    A("s_nop 3")
    for db in range(4):
        o = V_ACC + db * 16
        for mp in range(2):
            d = V_S + (db * 2 + mp) * 4
            for e in range(0, 8, 2):
                A(f"v_pk_mul_f32 v[{o+8*mp+e}:{o+8*mp+e+1}], v[{o+8*mp+e}:{o+8*mp+e+1}], v[{V_ALPHA}:{V_ALPHA+1}] op_sel_hi:[1,0]")
            for e in range(4):
                A(f"v_cvt_pk_bf16_f32 v{d+e}, v{o+8*mp+2*e}, v{o+8*mp+2*e+1}")
            A(f"ds_write_b128 v{V_QADDR+2*db+mp}, v[{d}:{d+3}]")
            lg.issue("ow")
            if DEBUG:
                A(f"v_and_b32 v5, 31, v{L}")
                A(f"v_lshrrev_b32 v6, 5, v{L}")
                A("v_lshlrev_b32 v5, 13, v5")
                A("v_lshl_add_u32 v5, v6, 4, v5")
                A(f"s_lshl_b32 s{S_TMP+2}, s{S_M}, 19")
                A(f"s_lshl_b32 s{S_TMP+3}, s{S_G}, 10")
                A(f"s_add_u32 s{S_TMP+2}, s{S_TMP+2}, s{S_TMP+3}")
                A(f"s_and_b32 s{S_TMP+3}, s{S_WAVE}, 3")
                A(f"s_lshl_b32 s{S_TMP+3}, s{S_TMP+3}, 8")
                A(f"s_add_u32 s{S_TMP+2}, s{S_TMP+2}, s{S_TMP+3}")
                A(f"s_lshr_b32 s{S_TMP+3}, s{S_WAVE}, 2")
                A(f"s_lshl_b32 s{S_TMP+3}, s{S_TMP+3}, 18")
                A(f"s_add_u32 s{S_TMP+2}, s{S_TMP+2}, s{S_TMP+3}")
                A(f"s_add_u32 s{S_TMP+2}, s{S_TMP+2}, {16*MB + db*64 + mp*32}")
                A(f"buffer_store_dwordx4 v[{d}:{d+3}], v5, s[{S_DBG}:{S_DBG+3}], s{S_TMP+2} offen")
                vm.issue("dbg")
    if M16: addr16(A)
    lg.waitall()
    A("s_barrier")
    stamp()
    if M16: gemm_core16(A, vm, lg, S_WO, V_WOOFF, 1024, 4)
    elif D6: gemm_core6(A, vm, lg, S_WO, V_WOOFF, 1024, 4, bars=eval(os.environ.get('B3', '()')))
    else: gemm_core(A, vm, lg, S_WO, V_WOOFF, 1024, D)
    stamp()
    if int(os.environ.get("TSTORE", "1")) and PART_BF16:
        if M16:
            A(f"v_and_b32 v5, 15, v{L}")
            A(f"v_lshrrev_b32 v6, 5, v{L}")
            A("v_and_b32 v7, 7, v5")
            A("v_xor_b32 v6, v6, v7")
            A(f"v_bfe_u32 v8, v{L}, 4, 1")
            A("v_lshlrev_b32 v8, 3, v8")
            A("v_lshl_add_u32 v8, v5, 7, v8")
            A(f"v_add_u32 v8, s{S_RB}, v8")
            for nt in range(4):
                A(f"v_xor_b32 v9, {2*nt}, v6")
                A(f"v_lshl_add_u32 v{10+nt}, v9, 4, v8")
        else:
            A(f"v_and_b32 v5, 31, v{L}")
            A(f"v_lshrrev_b32 v6, 5, v{L}")
            A("v_and_b32 v7, 7, v5")
            if D6:
                A("v_lshrrev_b32 v8, 4, v5")
                A("v_and_b32 v5, 15, v5")
                A("v_lshl_add_u32 v5, v8, 7, v5")
            for j in range(4):
                A(f"v_or_b32 v8, {2*j}, v6")
                A("v_xor_b32 v8, v8, v7")
                A("v_lshlrev_b32 v8, 4, v8")
                A("v_lshl_add_u32 v8, v5, 7, v8")
                A(f"v_add_u32 v{10+j}, s{S_RB}, v8")
        A(f"v_lshrrev_b32 v7, 3, v{L}")
        A(f"v_and_b32 v8, 7, v{L}")
        A("v_xor_b32 v9, v8, v7")
        A("v_lshlrev_b32 v9, 4, v9")
        A("v_lshl_add_u32 v9, v7, 7, v9")
        A(f"v_add_u32 v9, s{S_RB}, v9")
        A("v_lshlrev_b32 v8, 4, v8")
        A("v_lshl_add_u32 v8, v7, 10, v8")
        if PL:
            A(f"s_lshl_b32 s{S_TMP}, s{S_WAVE}, 7")
        else:
            A(f"s_lshl_b32 s{S_TMP}, s{S_M}, 16")
            A(f"s_lshl_b32 s{S_TMP+1}, s{S_WAVE}, 7")
            A(f"s_add_u32 s{S_TMP}, s{S_TMP}, s{S_TMP+1}")
        for nt in range(4 if M16 else 0):
            for rt in range(4):
                acc = V_ACC + (nt * 4 + rt) * 4
                d = V_S + (nt * 4 + rt) * 2
                for e in range(2):
                    A(f"v_cvt_pk_bf16_f32 v{d+e}, v{acc+2*e}, v{acc+2*e+1}")
                A(f"ds_write_b64 v{10+nt}, v[{d}:{d+1}] offset:{rt*16384}")
        for nb in range(0 if M16 else 2):
            for rb in range(2):
                acc = V_ACC + (nb * 2 + rb) * 16
                for mp in range(2):
                    d = V_S + (nb * 4 + rb * 2 + mp) * 4
                    for e in range(4):
                        A(f"v_cvt_pk_bf16_f32 v{d+e}, v{acc+8*mp+2*e}, v{acc+8*mp+2*e+1}")
                    A(f"ds_write_b128 v{10+2*nb+mp}, v[{d}:{d+3}] offset:{rb*(32768 if D6 else 4096)}")
        A("s_waitcnt lgkmcnt(0)")
        for i in range(8):
            A(f"ds_read_b128 v[{V_S+32+4*i}:{V_S+32+4*i+3}], v9 offset:{((i >> 1) * 16384 + (i & 1) * 1024) if D6 else i*1024}")
        for i in range(8):
            A(f"s_waitcnt lgkmcnt({7-i})")
            A(f"buffer_store_dwordx4 v[{V_S+32+4*i}:{V_S+32+4*i+3}], v8, s[{S_P}:{S_P+3}], s{S_TMP} offen {os.environ.get('PSTF','sc1')}")
            if i < 7: A(f"s_add_u32 s{S_TMP}, s{S_TMP}, 8192")
    else:
        A(f"v_and_b32 v5, 31, v{L}")
        A(f"v_lshrrev_b32 v6, 5, v{L}")
        sh = 10 if PART_BF16 else 11
        A(f"v_lshlrev_b32 v5, {sh}, v5")
        A(f"v_lshl_add_u32 v5, v6, {4 if PART_BF16 else 5}, v5")
        A(f"s_lshl_b32 s{S_TMP}, s{S_M}, {sh + 6}")
        A(f"s_lshl_b32 s{S_TMP+1}, s{S_WAVE}, {7 if PART_BF16 else 8}")
        A(f"s_add_u32 s{S_TMP}, s{S_TMP}, s{S_TMP+1}")
        A(f"s_add_u32 s{S_TMP+1}, s{S_TMP}, {32 << sh}")
        A("s_nop 7")
        A("s_nop 3")
        for nb in range(2):
            for rb in range(2):
                acc = V_ACC + (nb * 2 + rb) * 16
                for mp in range(2):
                    if PART_BF16:
                        d = V_S + (nb * 4 + rb * 2 + mp) * 4
                        for e in range(4):
                            A(f"v_cvt_pk_bf16_f32 v{d+e}, v{acc+8*mp+2*e}, v{acc+8*mp+2*e+1}")
                        A(f"buffer_store_dwordx4 v[{d}:{d+3}], v5, s[{S_P}:{S_P+3}], s{S_TMP+rb} offen offset:{(32*nb+16*mp)*2} {os.environ.get('PSTF','sc1')}")
                    else:
                        for h4 in range(2):
                            A(f"buffer_store_dwordx4 v[{acc+8*mp+4*h4}:{acc+8*mp+4*h4+3}], v5, s[{S_P}:{S_P+3}], s{S_TMP+rb} offen offset:{(32*nb+16*mp+4*h4)*4}")
    if TIMING:
        A("s_waitcnt vmcnt(0)")
        stamp(); stamp(True)
        stamp.flush()
    if emb: return
    A("s_endpgm")
    A.raw(kernel_desc(name, 256, 102, 256))
    return (name, (256, 1, 1), (512, 1, 1), 163840)
```

```python
from asmlib import *
from gen_k0 import *
import gen_k1 as K1
from gen_k1 import Cnt
from gen_ka import ln_rows, round_multi, pack8, GK0, GK1
from gen_g64 import WS_STAT, WS_CS
import os
SPAN = int(os.environ.get("SPAN", "0"))
MT = int(os.environ.get("MT", "0")) or SPAN
HD = int(os.environ.get("HD", "0"))
PT = int(os.environ.get("PT", "0"))
TLW = int(os.environ.get("TLW", "0"))
MP = int(os.environ.get("MP", "1"))
RM = int(os.environ.get("RM", "1"))
XS = int(os.environ.get("XS", "1"))
HP = int(os.environ.get("HP", "0"))
SPOLL = int(os.environ.get("SPOLL", "1"))
HPH = int(os.environ.get("HPH", "0"))
CNT = 17408
S_R8 = 46; V_CT = 53
PRG = int(os.environ.get("PRG", "0"))
MSK = 83968
WQF = int(os.environ.get("WQF", "0"))
W0M = int(os.environ.get("MEGA", "6")) >= 5 and int(os.environ.get("W0M", "1"))
EB = int(os.environ.get("EB", "0"))
DLY = int(os.environ.get("DLY", "1"))
WQE = int(os.environ.get("WQE", "0"))
ONE = int(os.environ.get("MEGA", "6")) >= 4
V2 = int(os.environ.get("MEGA", "6")) >= 5
V3 = int(os.environ.get("MEGA", "6")) >= 6
V4 = int(os.environ.get("MEGA", "6")) == 7
LDP = int(os.environ.get("LDP", "1"))
WQP = int(os.environ.get("WQP", "0"))
CX = int(os.environ.get("CX", "0"))
NW = int(os.environ.get("NW", "0"))
XRT = int(os.environ.get("XRT", "1"))
XL = int(os.environ.get("XL", "0"))
DPP_ = int(os.environ.get("DPP_", "0"))
LT = int(os.environ.get("LT", "3" if V4 else "0"))
CS5 = LT == 3
NREP = int(os.environ.get("NREP", "32"))
WS_LL = WS_FLAG + 0x40000
MODP = 12288; CSP = 8192
FP = WS_FLAG + 0x20000; FQ_ = WS_FLAG + 0x30000
S_WAVE = 40; S_M = 41; S_J = 42; S_MASK = 43; S_RB = 44; S_GOFF = 45; S_TMP = 48; S_WOFF = 58
S_W = 32; V_W = 6
P_X = 60; P_OUT = 62; P_WS = 68; P_W = 84
SM = f"s{S_MASK}"
L = 1
RG = 40960; RS = 272
K5RB = 18432; K5D = 11
L2PF = int(os.environ.get('L2PF', '0'))
PFE = int(os.environ.get('PFE', '3'))
NE = int(os.environ.get('NE', '3')) if PFE == 2 else 0

def pk(A, op, d, a, b, c=None, sel=""):
    ops = ", ".join(f"v[{x}:{x+1}]" for x in ((d, a, b) if c is None else (d, a, b, c)))
    A(f"{op} {ops} {sel}".rstrip())

RC1 = int(os.environ.get("RC1", "1" if V4 else "0"))
KRF = int(os.environ.get("KRF", "1" if V4 else "0"))
_round_multi = round_multi
def round_multi(A, xs, ts, smask):
    if not RC1: return _round_multi(A, xs, ts, smask)
    for x in xs: A(f"v_cvt_pk_bf16_f32 v{x}, 0, v{x}")
def ln_pk(A, P, X, m, q, K10, K01, s1, smu, sr, smask):
    for j in range(4):
        A(f"v_dot2_f32_bf16 v{m}, v{P+j}, s{s1}, " + ("0" if j == 0 else f"v{m}"))
        A(f"v_dot2_f32_bf16 v{q}, v{P+j}, v{P+j}, " + ("0" if j == 0 else f"v{q}"))
    A("s_nop 1")
    for d in ("quad_perm:[1,0,3,2] row_mask:0xf", "quad_perm:[2,3,0,1] row_mask:0xf", "row_half_mirror row_mask:0xf", "row_mirror row_mask:0xf",
              "row_bcast:15 row_mask:0xa", "row_bcast:31 row_mask:0xc"):
        for v in (m, q): A(f"v_add_f32_dpp v{v}, v{v}, v{v} {d} bank_mask:0xf")
        if "31" not in d: A("s_nop 0")
    A(f"v_mul_f32 v{m}, {fhex(1/512)}, v{m}")
    A(f"v_mul_f32 v{q}, {fhex(1/512)}, v{q}")
    A(f"v_fma_f32 v{q}, -v{m}, v{m}, v{q}")
    A(f"v_cvt_pk_bf16_f32 v{m}, 0, -v{m}")
    A(f"v_max_f32 v{q}, 0, v{q}")
    A(f"v_readlane_b32 s{smu}, v{m}, 63")
    A(f"v_cvt_pk_bf16_f32 v{q}, 0, v{q}")
    A(f"v_add_f32 v{q}, {fhex(1e-5)}, v{q}")
    A(f"v_cvt_pk_bf16_f32 v{q}, 0, v{q}")
    A(f"v_sqrt_f32 v{q}, v{q}")
    for j in range(4): A(f"v_dot2_f32_bf16 v{X[j]}, v{P+j//2}, v{(K10, K01)[j & 1]}, s{smu}")
    A(f"v_cvt_pk_bf16_f32 v{q}, 0, v{q}")
    A(f"v_rcp_f32 v{q}, v{q}")
    for j in range(4, 8): A(f"v_dot2_f32_bf16 v{X[j]}, v{P+j//2}, v{(K10, K01)[j & 1]}, s{smu}")
    A(f"v_readlane_b32 s{sr}, v{q}, 63")
    for j in range(8): A(f"v_cvt_pk_bf16_f32 v{X[j]}, 0, v{X[j]}")
    for j in range(0, 8, 2): A(f"v_pk_mul_f32 v[{X[j]}:{X[j]+1}], v[{X[j]}:{X[j]+1}], s[{sr}:{sr+1}] op_sel_hi:[1,0]")
FLN = int(os.environ.get("FLN", "2"))
_ln_slow = ln_rows
def ln_fast(A, R, smask, final_round=True):
    for X, T in R:
        assert X[0] % 2 == 0 and T[0] % 2 == 0
        pk(A, "v_pk_add_f32", T[0], X[0], X[2]); pk(A, "v_pk_mul_f32", T[2], X[0], X[0])
        pk(A, "v_pk_add_f32", T[4], X[4], X[6]); pk(A, "v_pk_mul_f32", T[6], X[2], X[2])
    for X, T in R:
        pk(A, "v_pk_fma_f32", T[2], X[4], X[4], T[2]); pk(A, "v_pk_fma_f32", T[6], X[6], X[6], T[6])
        pk(A, "v_pk_add_f32", T[0], T[0], T[4])
    for X, T in R:
        pk(A, "v_pk_add_f32", T[2], T[2], T[6])
        A(f"v_add_f32 v{T[0]}, v{T[0]}, v{T[1]}")
    for X, T in R:
        A(f"v_add_f32 v{T[1]}, v{T[2]}, v{T[3]}")
    wave_allreduce(A, "v_add_f32", [t for X, T in R for t in (T[0], T[1])], [t for X, T in R for t in (T[2], T[3])], [t for X, T in R for t in (T[4], T[5])])
    for X, T in R:
        A(f"v_mul_f32 v{T[0]}, {fhex(1/512)}, v{T[0]}")
        A(f"v_mul_f32 v{T[1]}, {fhex(1/512)}, v{T[1]}")
    for X, T in R:
        A(f"v_fma_f32 v{T[1]}, -v{T[0]}, v{T[0]}, v{T[1]}")
    for X, T in R:
        A(f"v_max_f32 v{T[1]}, 0, v{T[1]}")
    for X, T in R:
        A(f"v_cvt_pk_bf16_f32 v{T[3]}, v{T[0]}, v{T[1]}")
    for X, T in R:
        A(f"v_and_b32 v{T[1]}, {smask}, v{T[3]}")
        A(f"v_lshlrev_b32 v{T[2]}, 16, v{T[3]}")
    for X, T in R:
        A(f"v_add_f32 v{T[1]}, {fhex(1e-5)}, v{T[1]}")
        for j in range(0, 4, 2): pk(A, "v_pk_add_f32", X[j], X[j], T[2], None, "op_sel_hi:[1,0] neg_lo:[0,1] neg_hi:[0,1]")
    for X, T in R:
        A(f"v_cvt_pk_bf16_f32 v{T[1]}, v{T[1]}, v{T[1]}")
        for j in range(4, 8, 2): pk(A, "v_pk_add_f32", X[j], X[j], T[2], None, "op_sel_hi:[1,0] neg_lo:[0,1] neg_hi:[0,1]")
    for X, T in R:
        A(f"v_lshlrev_b32 v{T[1]}, 16, v{T[1]}")
    for X, T in R:
        A(f"v_sqrt_f32 v{T[0]}, v{T[1]}")
        round_multi(A, X[:4], T[4:6], smask)
    for X, T in R:
        A(f"v_cvt_pk_bf16_f32 v{T[0]}, v{T[0]}, v{T[0]}")
    for X, T in R:
        A(f"v_lshlrev_b32 v{T[0]}, 16, v{T[0]}")
    for X, T in R:
        A(f"v_rcp_f32 v{T[2]}, v{T[0]}")
        round_multi(A, X[4:], T[4:6], smask)
    if FLN == 2:
        for X, T in R:
            for j in range(0, 8, 2): pk(A, "v_pk_mul_f32", X[j], X[j], T[2], None, "op_sel_hi:[1,0]")
    else:
        for X, T in R:
            for h in range(2):
                js = (4 * h, 4 * h + 2)
                for k, j in enumerate(js): pk(A, "v_pk_mul_f32", T[4+2*k], X[j], T[2], None, "op_sel_hi:[1,0]")
                for k, j in enumerate(js): pk(A, "v_pk_fma_f32", X[j], T[4+2*k], T[0], X[j], "op_sel_hi:[1,0,1] neg_lo:[1,0,0] neg_hi:[1,0,0]")
                for k, j in enumerate(js): pk(A, "v_pk_fma_f32", X[j], X[j], T[2], T[4+2*k], "op_sel_hi:[1,0,1]")
    if final_round:
        for X, T in R: round_multi(A, X, T[4:8], smask)
def ln_rows(A, R, smask, final_round=True):
    return ln_fast(A, R, smask, final_round) if FLN else _ln_slow(A, R, smask)

class Cap:
    def __init__(self, A): self.A = A
    def __enter__(self):
        self.sv = self.A.lines; self.A.lines = []; return self
    def __exit__(self, *a):
        self.out = self.A.lines; self.A.lines = self.sv

def interleave(A, mf, fill):
    n = len(mf); k = 0
    for i, m in enumerate(mf):
        A(m)
        upto = (len(fill) * (i + 1) + n - 1) // n
        while upto < len(fill) and upto > 0 and not (fill[upto - 1].lstrip().startswith(("buffer_", "ds_", "v_", "s_waitcnt")) or fill[upto - 1].lstrip().startswith(f"s_add_u32 s{S_WOFF}")): upto += 1
        A.lines.extend(fill[k:upto]); k = max(k, upto)

class Mega:
    def __init__(self, A):
        self.A = A
        self.vm = Cnt(A, "vmcnt", 63); self.lg = Cnt(A, "lgkmcnt", 15)
    def stamp(self, idx):
        if SPAN and idx not in (0, 3, 22): return
        if HD:
            hmap = {0: 2, 3: 3, 4: 4, 7: 5, 8: 6, 11: 7, 12: 8, 15: 9, 16: 10, 19: 11, 20: 12, 21: 13, 22: 14}
            if int(os.environ.get('HK', '0')): hmap = {0: 2, 22: 14}
            if idx not in hmap: return
            A = self.A
            lab = A.newlabel("hd")
            A("s_waitcnt lgkmcnt(0)")
            A("s_load_dwordx2 s[76:77], s[0:1], 104")
            A("s_memrealtime s[70:71]")
            A("s_waitcnt lgkmcnt(0)")
            A("s_mov_b32 s72, s76")
            A("s_mov_b32 s73, s77")
            A("s_mov_b32 s74, 256")
            A("s_mov_b32 s75, 0x00020000")
            A(f"s_lshl_b32 s76, s{S_WAVE}, 8")
            A("s_or_b32 s76, s76, s2")
            A(f"s_cmp_lg_u32 s76, {HD}")
            A(f"s_cbranch_scc1 {lab}")
            A("v_mov_b32 v2, s70")
            A("v_mov_b32 v3, 0")
            A(f"buffer_store_dword v2, v3, s[72:75], 0 offen offset:{4*hmap[idx]}")
            A.label(lab)
            self.lg.ops = []
            return
        if not MT: return
        A = self.A
        A("s_waitcnt lgkmcnt(0)")
        A("s_memrealtime s[70:71]")
        make_srd(A, 72, P_WS, WS_DBG, 32 * MB)
        A("s_lshl_b32 s76, s2, 3")
        A(f"s_add_u32 s76, s76, s{S_WAVE}")
        A("s_lshl_b32 s76, s76, 7")
        A("s_waitcnt lgkmcnt(0)")
        A("v_mov_b32 v2, s70")
        A("v_mov_b32 v3, 0")
        A(f"buffer_store_dword v2, v3, s[72:75], s76 offen offset:{4*idx}")
        self.vm.issue("stamp"); self.lg.ops = []
    def flag_srd(self, stage):
        make_srd(self.A, 92, P_WS, WS_FLAG + stage * 32 * 256, 32 * 256)
    def transition(self, stage, early=None):
        A = self.A
        self.stamp(1 + 4 * stage)
        self.vm.ops = []
        if ONE and stage == 0:
            make_srd(A, 80, P_WS, FQ_, 32 * 1024)
            make_srd(A, 12, P_WS, WS_MOD, 4 * MODP)
            A(f"s_cmp_lg_u32 s{S_WAVE}, {0 if W0M else 7}")
            A("s_cbranch_scc1 .Lw0m_end")
            A(f"s_lshl_b32 s98, s{S_M}, 10")
            A("v_add_u32 v2, 64, v1")
            A(f"v_min_u32 v2, {63 if LT == 3 else 119}, v2")
            A("v_lshlrev_b32 v2, 3, v2")
            A("v_lshlrev_b32 v3, 3, v1")
            self.poll64(".Lplq", [(3, 80, "s98"), (2, 80, "s98")])
            if W0M:
                A("v_lshlrev_b32 v10, 5, v1")
                for part in range(2):
                    for q, idx in enumerate((2, 4, 3)):
                        d = 24 + 8 * q + 88 * part
                        A(f"s_movk_i32 s{S_TMP}, {idx*2048 + part*MODP}")
                        A(f"buffer_load_dwordx4 v[{d}:{d+3}], v10, s[12:15], s{S_TMP} offen")
                        A(f"buffer_load_dwordx4 v[{d+4}:{d+7}], v10, s[12:15], s{S_TMP} offen offset:16")
                A("v_add_u32 v10, 81920, v10")
                A("s_waitcnt vmcnt(0)")
                for j in range(0, 24, 2): pk(A, "v_pk_add_f32", 24 + j, 24 + j, 112 + j)
                for q in range(3): round_multi(A, list(range(24 + 8*q, 32 + 8*q)), [56, 57, 58, 59], SM)
                for j in range(8): A(f"v_add_f32 v{32+j}, 1.0, v{32+j}")
                round_multi(A, list(range(32, 40)), [56, 57, 58, 59], SM)
                for q, off in enumerate((0, 16384, 49152)):
                    A(f"ds_write_b128 v10, v[{24+8*q}:{27+8*q}] offset:{off}")
                    A(f"ds_write_b128 v10, v[{28+8*q}:{31+8*q}] offset:{off+16}")
            A.label(".Lw0m_end")
            if PRG:
                A(f"s_cmp_lg_u32 s{S_WAVE}, 1")
                A("s_cbranch_scc1 .Lw1m_end")
                A(f"s_lshl_b32 s{S_TMP}, 1, s{S_J}")
                A(f"v_mov_b32 v2, {MSK}")
                A(f"v_mov_b32 v3, s{S_TMP}")
                A("ds_write_b32 v2, v3")
                A.label(".Lw1m_end")
        if early and NE:
            A(f"s_cmp_ge_u32 s{S_WAVE}, 4")
            A(f"s_cbranch_scc1 .Ltr{stage}_h")
            early(0, NE)
            A(f"s_waitcnt vmcnt({len(self.vm.ops)})")
            A(f"s_branch .Ltr{stage}_j")
            A.label(f".Ltr{stage}_h")
            A("s_waitcnt vmcnt(0)")
            A.label(f".Ltr{stage}_j")
        else:
            A("s_waitcnt vmcnt(0)")
        self.flag_srd(stage)
        A(f"s_lshl_b32 s96, s{S_M}, 8")
        A(f"s_lshl_b32 s97, s{S_J}, {3 if ONE else 2}")
        A("s_add_u32 s97, s97, s96")
        if ONE:
            A("v_mov_b32 v246, s100")
            A("v_mov_b32 v247, s101")
        A("v_mov_b32 v2, 1")
        A("v_mov_b32 v3, s97")
        A("s_waitcnt lgkmcnt(0)")
        self.lg.ops = []
        A("s_barrier")
        A(f"s_cmp_lg_u32 s{S_WAVE}, 7")
        A(f"s_cbranch_scc1 .Lpub{stage}")
        A("s_mov_b64 exec, 1")
        A("buffer_store_dwordx2 v[246:247], v3, s[92:95], 0 offen sc1" if ONE else "buffer_store_dword v2, v3, s[92:95], 0 offen sc1")
        A("s_mov_b64 exec, -1")
        A.label(f".Lpub{stage}")
        self.stamp(1 + 4 * stage + 2)
    def poll(self, stage, nbr=False, check=True, after=None):
        A = self.A
        lab = f".Lpl{stage}"
        if check:
            A(f"s_cmp_lg_u32 s{S_WAVE}, 7")
            A(f"s_cbranch_scc1 {lab}_done")
        A("v_and_b32 v3, 7, v1")
        A(f"v_lshlrev_b32 v3, {3 if ONE else 2}, v3")
        if nbr:
            A("v_bfe_u32 v2, v1, 3, 2")
            A("v_min_u32 v2, 2, v2")
            A(f"v_add_u32 v2, s{S_M}, v2")
            A("v_max_u32 v2, 1, v2")
            A("v_min_u32 v2, 32, v2")
            A("v_subrev_u32 v2, 1, v2")
            A("v_lshl_add_u32 v3, v2, 8, v3")
        else:
            A("v_add_u32 v3, s96, v3")
        A("s_mov_b32 s98, 0")
        NP = int(os.environ.get("NPOLL", "1")); PSL = int(os.environ.get("PSL", "1"))
        if ONE and SPOLL and not nbr:
            A("s_mov_b32 s99, 0")
            A.label(f"{lab}_sp")
            A("s_buffer_load_dwordx16 s[8:23], s[92:95], s96 glc")
            A("s_add_u32 s99, s99, 1")
            A("s_waitcnt lgkmcnt(0)")
            for i in range(8): A(f"s_xor_b64 s[{8+2*i}:{9+2*i}], s[{8+2*i}:{9+2*i}], s[100:101]")
            for i in range(1, 8): A(f"s_or_b64 s[8:9], s[8:9], s[{8+2*i}:{9+2*i}]")
            A(f"s_cbranch_scc0 {lab}_sd")
            A(f"s_and_b32 s98, s99, {SPOLL * 4 - 1}")
            A(f"s_cbranch_scc1 {lab}_sp")
            A("buffer_load_dwordx2 v[248:249], v3, s[92:95], 0 offen sc1")
            A("s_waitcnt vmcnt(0)")
            A("v_xor_b32 v248, s100, v248")
            A("v_xor_b32 v249, s101, v249")
            A("v_or_b32 v248, v248, v249")
            A("v_cmp_ne_u32 vcc, 0, v248")
            A("s_cmp_lt_u32 s99, 0x80000")
            A(f"s_cbranch_scc0 {lab}_sd")
            A(f"s_cbranch_vccnz {lab}_sp")
            A.label(f"{lab}_sd")
            if after: after()
        elif ONE:
            self.poll64(lab + "x", [(3, 92, "0")])
        elif NP == 1:
            A.label(f"{lab}_poll")
            A("buffer_load_dword v2, v3, s[92:95], 0 offen sc1")
            A("s_add_u32 s98, s98, 1")
            A("s_waitcnt vmcnt(0)")
            A("v_cmp_ne_u32 vcc, 1, v2")
            A("s_cmp_lt_u32 s98, 0x40000")
            A(f"s_cbranch_scc0 {lab}_done")
            A(f"s_cbranch_vccnz {lab}_poll")
        else:
            for i in range(NP):
                A(f"buffer_load_dword v{248+i}, v3, s[92:95], 0 offen sc1")
                if PSL and i < NP - 1: A(f"s_sleep {PSL}")
            A.label(f"{lab}_poll")
            for i in range(NP):
                A(f"s_waitcnt vmcnt({NP-1})")
                A(f"v_cmp_ne_u32 vcc, 1, v{248+i}")
                A(f"s_cbranch_vccz {lab}_done")
                A(f"buffer_load_dword v{248+i}, v3, s[92:95], 0 offen sc1")
            A("s_add_u32 s98, s98, 1")
            A("s_cmp_lt_u32 s98, 0x40000")
            A(f"s_cbranch_scc1 {lab}_poll")
        A.label(f"{lab}_done")
    def poll64(self, lab, srcs, cnt=99, slp=0):
        A = self.A
        A(f"s_mov_b32 s{cnt}, 0")
        A.label(f"{lab}_poll")
        if slp: A(f"s_sleep {slp}")
        for i, (va, srd, so) in enumerate(srcs):
            A(f"buffer_load_dwordx2 v[{248+2*i}:{249+2*i}], v{va}, s[{srd}:{srd+3}], {so} offen sc1")
        A(f"s_add_u32 s{cnt}, s{cnt}, 1")
        A("s_waitcnt vmcnt(0)")
        for i in range(len(srcs)):
            A(f"v_xor_b32 v{248+2*i}, s100, v{248+2*i}")
            A(f"v_xor_b32 v{249+2*i}, s101, v{249+2*i}")
        A("v_or_b32 v248, v248, v249")
        for i in range(1, len(srcs)):
            A(f"v_or3_b32 v248, v248, v{248+2*i}, v{249+2*i}")
        A("v_cmp_ne_u32 vcc, 0, v248")
        A(f"s_cmp_lt_u32 s{cnt}, 0x40000")
        A(f"s_cbranch_scc0 {lab}_done")
        A(f"s_cbranch_vccnz {lab}_poll")
        A.label(f"{lab}_done")
    def pst(self, idx):
        if not PT: return
        A = self.A
        A("s_waitcnt lgkmcnt(0)")
        A("s_memrealtime s[38:39]")
        A("s_waitcnt lgkmcnt(0)")
        A(f"v_writelane_b32 v59, s38, {idx}")
    def pst_flush(self):
        if not PT: return
        A = self.A
        make_srd(A, 36, 68, WS_DBG + 16 * MB, 1 * MB)
        A("s_lshl_b32 s57, s2, 3")
        A("s_add_u32 s57, s57, s40")
        A("s_lshl_b32 s57, s57, 6")
        A("v_lshlrev_b32 v2, 2, v1")
        A("s_mov_b64 exec, 0xffff")
        A("buffer_store_dword v59, v2, s[36:39], s57 offen")
        A("s_mov_b64 exec, -1")
    def pro_pre(self):
        A = self.A
        self.pst(0)
        A("s_load_dwordx2 s[4:5], s[0:1], 0")
        A("s_load_dwordx4 s[72:75], s[0:1], 80")
        A("s_load_dwordx2 s[6:7], s[0:1], 104")
        A("s_memrealtime s[70:71]")
        if int(os.environ.get("CPF", "1")):
            A("s_getpc_b64 s[76:77]")
            A.label(".Lpc0")
            A("s_mov_b32 s78, .Lcode_end-.Lpc0")
            A("s_mov_b32 s79, 0x00020000")
            A("s_lshr_b32 s3, s2, 3")
            A("s_mul_i32 s3, s3, 2304")
            A("v_lshlrev_b32 v2, 6, v0")
            A("v_cmp_gt_u32 vcc, 36, v0")
            A("s_and_b64 exec, exec, vcc")
            A("buffer_load_dword v62, v2, s[76:79], s3 offen")
            A("s_mov_b64 exec, -1")
    def pro_a(self):
        A = self.A
        W = K1.S_WAVE; M_ = K1.S_M; G_ = K1.S_G
        self.pst(1)
        make_srd(A, 76, 72, 0, 1024)
        make_srd(A, 80, 74, 0, 512 * 6144)
        make_srd(A, 84, 68, WS_MOD, 3072 * 4)
        A("s_movk_i32 s3, 6144")
        A("s_mov_b32 s59, s2")
        A("s_cmp_lt_u32 s2, 96")
        A("s_cbranch_scc1 .Lpa_mod")
        make_srd(A, 80, 96, 0, 512 * 3584)
        make_srd(A, 84, 68, WS_CS, 1792 * 4)
        A("s_movk_i32 s3, 3584")
        A("s_sub_u32 s59, s2, 96")
        A.label(".Lpa_mod")
        A("s_cmp_ge_u32 s2, 152")
        A("s_cbranch_scc1 .Lpa_nob")
        A("v_and_b32 v2, 3, v0")
        A("v_lshrrev_b32 v3, 2, v0")
        A("v_mul_lo_u32 v4, v3, s3")
        A("v_lshl_add_u32 v4, v2, 4, v4")
        A("v_lshlrev_b32 v5, 1, v3")
        A("s_lshl_b32 s58, s59, 6")
        A("s_lshl_b32 s3, s3, 7")
        for i in range(4):
            A(f"buffer_load_dwordx4 v[{72+4*i}:{75+4*i}], v4, s[80:83], s58 offen")
            if i < 3: A("s_add_u32 s58, s58, s3")
        for i in range(4):
            A(f"buffer_load_ushort v{64+i}, v5, s[76:79], 0 offen offset:{i*256}")
        A.label(".Lpa_nob")
        make_srd(A, 88, 4, 0, 2 * MB)
        A(f"s_lshl_b32 s3, s{M_}, 3")
        A(f"s_add_u32 s3, s3, s{G_}")
        A("s_lshl_b32 s3, s3, 3")
        A(f"s_add_u32 s3, s3, s{W}")
        A("s_lshl_b32 s3, s3, 10")
        A("buffer_load_dwordx4 v[68:71], v12, s[88:91], s3 offen")
        make_srd(A, 76, 6, 0, 256)
        A(f"s_or_b32 s58, s2, s{W}")
        A("s_cmp_lg_u32 s58, 0")
        A("s_cbranch_scc1 .Lpa_non")
        A("s_or_b32 s70, s70, 1")
        A("v_mov_b32 v2, s70")
        A("v_mov_b32 v3, s71")
        A("v_mov_b32 v4, 0")
        A("s_mov_b64 exec, 1")
        A("buffer_store_dwordx2 v[2:3], v4, s[76:79], 0 offen sc1")
        A("s_mov_b64 exec, -1")
        A.label(".Lpa_non")
        if WQE: self.wqpf()
    def wqpf(self):
        A = self.A; W = K1.S_WAVE
        SQ = 88 if WQE else K1.S_WQ
        if WQE: make_srd(A, 88, 64, 0, 4 * MB)
        A("v_lshrrev_b32 v2, 4, v0")
        A("v_and_b32 v3, 15, v0")
        A("v_lshlrev_b32 v3, 6, v3")
        A("v_lshl_add_u32 v2, v2, 13, v3")
        A("s_lshr_b32 s58, s2, 3")
        A("s_lshl_b32 s58, s58, 17")
        A("s_and_b32 s57, s2, 7")
        A("s_lshl_b32 s57, s57, 10")
        A("s_add_u32 s58, s58, s57")
        A(f"s_cmp_ge_u32 s{W}, 4")
        A("s_cbranch_scc1 .Lpa_nopf")
        A(f"buffer_load_dword v255, v2, s[{SQ}:{SQ+3}], s58 offen")
        A.label(".Lpa_nopf")
    def pro_b(self, nyoung, early, w7):
        A = self.A
        W = K1.S_WAVE; M_ = K1.S_M; G_ = K1.S_G; KM = f"s{K1.S_MASK}"
        NY = nyoung
        ACC = list(range(96, 104)); T = list(range(104, 112)); U = list(range(112, 120)); C = [64, 65, 66, 67]
        make_srd(A, 88, 68, WS_XN, 2 * MB)
        self.pst(2)
        A("s_waitcnt vmcnt(0)")
        self.pst(3)
        if not WQE: self.wqpf()
        A("s_cmp_ge_u32 s2, 152")
        A("s_cbranch_scc1 .Lpb_ln")
        A("s_cmp_lt_u32 s2, 96")
        A("s_cbranch_scc1 .Lpb_silu")
        for c in C: A(f"v_mov_b32 v{c}, 1.0")
        A("s_branch .Lpb_fma")
        A.label(".Lpb_silu")
        for i, c in enumerate(C): A(f"v_lshlrev_b32 v{c}, 16, v{c}")
        for i, c in enumerate(C): A(f"v_mul_f32 v{T[i]}, {fhex(-LOG2E)}, v{c}")
        for i, c in enumerate(C): A(f"v_exp_f32 v{T[i]}, v{T[i]}")
        for i, c in enumerate(C): A(f"v_add_f32 v{T[i]}, 1.0, v{T[i]}")
        for i, c in enumerate(C): A(f"v_rcp_f32 v{U[i]}, v{T[i]}")
        for i, c in enumerate(C): A(f"v_mul_f32 v{U[4+i]}, v{c}, v{U[i]}")
        for i, c in enumerate(C): A(f"v_fma_f32 v{T[i]}, -v{U[4+i]}, v{T[i]}, v{c}")
        for i, c in enumerate(C): A(f"v_fma_f32 v{c}, v{T[i]}, v{U[i]}, v{U[4+i]}")
        for i, c in enumerate(C): A(f"v_cvt_pk_bf16_f32 v{T[i]}, v{c}, v{c}")
        for i, c in enumerate(C): A(f"v_lshlrev_b32 v{c}, 16, v{T[i]}")
        A.label(".Lpb_fma")
        for i in range(4):
            for j in range(4):
                w = 72 + 4 * i + j
                A(f"v_lshlrev_b32 v{T[2*j]}, 16, v{w}")
                A(f"v_and_b32 v{T[2*j+1]}, {KM}, v{w}")
            for j in range(8):
                A(f"v_mul_f32 v{ACC[j]}, v{T[j]}, v{C[i]}" if i == 0 else f"v_fmac_f32 v{ACC[j]}, v{T[j]}, v{C[i]}")
        A("s_nop 1")
        for dpp in ("row_ror:8", "row_ror:4"):
            for v in ACC: A(f"v_add_f32_dpp v{v}, v{v}, v{v} {dpp} row_mask:0xf bank_mask:0xf")
        A("v_and_b32 v2, 3, v1")
        A("v_lshrrev_b32 v3, 4, v0")
        A("v_lshlrev_b32 v3, 7, v3")
        A("v_lshl_add_u32 v3, v2, 5, v3")
        A("v_and_b32 v2, 12, v1")
        A("v_cmp_eq_u32 vcc, 0, v2")
        A("s_and_saveexec_b64 s[58:59], vcc") if False else None
        A("s_mov_b64 s[4:5], exec")
        A("s_and_b64 exec, exec, vcc")
        A(f"ds_write_b128 v3, v[{ACC[0]}:{ACC[3]}]")
        A(f"ds_write_b128 v3, v[{ACC[4]}:{ACC[7]}] offset:16")
        A("s_mov_b64 exec, -1")
        A("s_waitcnt lgkmcnt(0)")
        A("s_barrier")
        self.pst(4)
        A(f"s_cmp_lg_u32 s{W}, 7")
        A("s_cbranch_scc1 .Lpb_ln")
        A("v_and_b32 v2, 31, v1")
        A("v_lshlrev_b32 v2, 2, v2")
        A("v_lshrrev_b32 v3, 5, v1")
        A("v_lshl_add_u32 v3, v3, 11, v2")
        for k in range(16): A(f"ds_read_b32 v{120+k}, v3 offset:{k*128}")
        for k in range(8):
            A(f"s_waitcnt lgkmcnt({14-2*k})")
            A(f"v_add_f32 v{120+2*k}, v{120+2*k}, v{121+2*k}")
        for k in range(4): A(f"v_add_f32 v{120+4*k}, v{120+4*k}, v{122+4*k}")
        A("v_add_f32 v120, v120, v124")
        A("v_add_f32 v128, v128, v132")
        A("v_add_f32 v120, v120, v128")
        A("v_mov_b32 v121, v120")
        A("s_nop 1")
        A("v_permlane32_swap_b32 v120, v121")
        A("s_nop 1")
        A("v_add_f32 v120, v120, v121")
        A("s_cmp_ge_u32 s2, 96")
        A("s_cbranch_scc1 .Lpb_nornd")
        round_bf16_1(A, 120, 121)
        A.label(".Lpb_nornd")
        A("s_lshl_b32 s58, s59, 7")
        A("s_mov_b32 exec_hi, 0")
        A("buffer_store_dword v120, v2, s[84:87], s58 offen sc1")
        A("s_mov_b64 exec, -1")
        A.label(".Lpb_ln")
        A("v_mov_b32 v2, 0")
        A(f"s_cmp_lg_u32 s{W}, 7")
        A("s_cbranch_scc1 .Lpb_ln2")
        A("s_mov_b64 exec, 1")
        A("buffer_load_dwordx2 v[136:137], v2, s[76:79], 0 offen sc1")
        A("s_mov_b64 exec, -1")
        A.label(".Lpb_ln2")
        self.pst(5)
        X = list(range(96, 104)); TT = list(range(104, 116))
        for j in range(4):
            A(f"v_lshlrev_b32 v{X[2*j]}, 16, v{68+j}")
            A(f"v_and_b32 v{X[2*j+1]}, {KM}, v{68+j}")
        ln_rows(A, [(X, TT)], KM)
        pack8(A, X, 68)
        A("buffer_store_dwordx4 v[68:71], v12, s[88:91], s3 offen sc1")
        make_srd(A, 80, 68, FP, 32 * 512)
        self.pst(6)
        A(f"s_cmp_lg_u32 s{W}, 7")
        A("s_cbranch_scc1 .Lpb_w")
        A("s_waitcnt vmcnt(1)")
        A("s_mov_b32 s57, 0")
        A.label(".Lpb_nl")
        A("v_readfirstlane_b32 s100, v136")
        A("v_readfirstlane_b32 s101, v137")
        A("s_add_u32 s57, s57, 1")
        A("s_cmp_lg_u32 s100, 0")
        A("s_cbranch_scc1 .Lpb_nd")
        A("s_cmp_lt_u32 s57, 0x40000")
        A("s_cbranch_scc0 .Lpb_nd")
        A("s_mov_b64 exec, 1")
        A("buffer_load_dwordx2 v[136:137], v2, s[76:79], 0 offen sc1")
        A("s_mov_b64 exec, -1")
        A("s_waitcnt vmcnt(0)")
        A("s_branch .Lpb_nl")
        A.label(".Lpb_nd")
        A("v_mov_b32 v136, s100")
        A("v_mov_b32 v137, s101")
        self.pst(7)
        A("s_cmp_ge_u32 s2, 152")
        A("s_cbranch_scc1 .Lpb_w")
        A("v_lshlrev_b32 v3, 9, v1")
        A("s_lshl_b32 s58, s2, 3")
        A("s_cmp_lt_u32 s2, 32")
        A("s_cbranch_scc1 .Lpb_crit")
        make_srd(A, 80, 68, FQ_, 32 * 1024)
        A("v_lshlrev_b32 v3, 10, v1")
        A("s_sub_u32 s58, s58, 256")
        A.label(".Lpb_crit")
        A("s_mov_b32 exec_hi, 0")
        A("buffer_store_dwordx2 v[136:137], v3, s[80:83], s58 offen sc1")
        A("s_mov_b64 exec, -1")
        make_srd(A, 80, 68, FP, 32 * 512)
        A.label(".Lpb_w")
        A("s_waitcnt vmcnt(1)") if False else None
        A("s_waitcnt vmcnt(0)")
        self.pst(8)
        A("s_barrier")
        self.pst(9)
        A(f"s_cmp_lg_u32 s{W}, 7")
        A("s_cbranch_scc1 .Lpb_early")
        A(f"s_lshl_b32 s58, s{M_}, 9")
        A(f"s_lshl_b32 s57, s{G_}, 3")
        A("s_add_u32 s57, s57, 256")
        A("v_mov_b32 v3, s57")
        A("s_mov_b64 exec, 1")
        A("buffer_store_dwordx2 v[136:137], v3, s[80:83], s58 offen sc1")
        A("s_mov_b64 exec, -1")
        A("v_min_u32 v3, 39, v1")
        A("v_lshlrev_b32 v3, 3, v3")
        sv99 = None
        w7()
        self.poll64(".Lplp", [(3, 80, "s58")], cnt=57)
        A("s_branch .Lpb_done")
        A.label(".Lpb_early")
        early()
        A.label(".Lpb_done")
        A("s_barrier")
        self.pst(10)
        self.pst_flush()
    def p2_a(self):
        A = self.A
        W = K1.S_WAVE; M_ = K1.S_M; G_ = K1.S_G
        SCR = K1.STG + 16384
        A("s_waitcnt lgkmcnt(0)")
        self.pst(1)
        make_srd(A, 76, 72, 0, 1024)
        make_srd(A, 80, 74, 0, 512 * 6144)
        make_srd(A, 84, 68, WS_MOD, 4 * MODP)
        make_srd(A, 88, 4, 0, 2 * MB)
        A("s_movk_i32 s3, 6144")
        A("s_and_b32 s4, s2, 15")
        A("s_lshr_b32 s5, s2, 4")
        A("s_lshl_b32 s57, s5, 8")
        A("s_cmp_lt_u32 s2, 64")
        A("s_cbranch_scc1 .Lp2a_dec")
        A("s_sub_u32 s4, s2, 64")
        A("s_and_b32 s5, s4, 1")
        A("s_lshr_b32 s4, s4, 1")
        A("s_lshl_b32 s57, s5, 9")
        A("s_add_u32 s4, s4, 16")
        A("s_cmp_lt_u32 s4, 48")
        A("s_cbranch_scc1 .Lp2a_dec")
        A("s_sub_u32 s4, s4, 48")
        make_srd(A, 80, 96, 0, 512 * 3584)
        make_srd(A, 84, 68, WS_CS, 2 * CSP)
        A("s_movk_i32 s3, 3584")
        A.label(".Lp2a_dec")
        A("s_lshr_b32 s58, s57, 1")
        A("s_mul_i32 s58, s58, s3")
        A("s_lshl_b32 s59, s4, 7")
        A("s_add_u32 s58, s58, s59")
        A("s_lshl_b32 s59, s4, 8")
        A(f"s_movk_i32 s4, {MODP}")
        A("s_cmp_eq_u32 s3, 3584")
        A(f"s_cselect_b32 s4, {CSP}, s4")
        A("s_mul_i32 s4, s4, s5")
        A("s_add_u32 s59, s59, s4")
        A("v_and_b32 v2, 7, v0")
        A("v_bfe_u32 v3, v0, 3, 5")
        A("v_mul_lo_u32 v60, v3, s3")
        A("v_lshl_add_u32 v60, v2, 4, v60")
        A("v_lshlrev_b32 v61, 1, v3")
        A("s_lshl_b32 s70, s3, 5") if False else None
        A("s_lshl_b32 s5, s3, 5")
        A(f"s_cmp_ge_u32 s{W}, 4")
        A("s_cbranch_scc1 .Lp2a_end")
        A("s_cmp_ge_u32 s2, 64")
        A("s_cbranch_scc1 .Lp2a_x")
        self.p2_tload(0)
        A.label(".Lp2a_x")
        A(f"s_lshl_b32 s3, s{M_}, 3")
        A(f"s_add_u32 s3, s3, s{G_}")
        A("s_lshl_b32 s3, s3, 2")
        A(f"s_add_u32 s3, s3, s{W}")
        A("s_lshl_b32 s3, s3, 11")
        A("buffer_load_dwordx4 v[88:91], v12, s[88:91], s3 offen")
        A("buffer_load_dwordx4 v[92:95], v12, s[88:91], s3 offen offset:1024")
        make_srd(A, 88, 6, 0, 256)
        A(f"s_or_b32 s4, s2, s{W}")
        A("s_cmp_lg_u32 s4, 0")
        A("s_cbranch_scc1 .Lp2a_non")
        A("s_or_b32 s70, s70, 1")
        A("v_mov_b32 v2, s70")
        A("v_mov_b32 v3, s71")
        A("v_mov_b32 v4, 0")
        A("s_mov_b64 exec, 1")
        A("buffer_store_dwordx2 v[2:3], v4, s[88:91], 0 offen sc1")
        A("s_mov_b64 exec, -1")
        A.label(".Lp2a_non")
        A(f"v_mov_b32 v2, {SCR + 8192}")
        A("v_mov_b32 v4, 0")
        A("v_mov_b32 v5, 0")
        A("ds_write_b64 v2, v[4:5]")
        A("s_branch .Lp2a_e2")
        A.label(".Lp2a_end")
        if WQF == 1: self.p2_wq()
        if WQF == 2:
            A("s_cmp_lt_u32 s2, 64")
            A("s_cbranch_scc1 .Lp2a_e2") if False else None
            A("s_sleep 4")
            self.p2_wq()
        if TLW:
            A("v_lshlrev_b32 v2, 21, v1")
            A(f"v_add_u32 v2, {(2 << 20) - 128}, v2")
            make_srd(A, 88, 68, 0, 48 * MB if TLW >= 2 else 4 * MB)
            A(f"s_cmp_lg_u32 s{W}, 4")
            A("s_cbranch_scc1 .Lp2a_e2")
            A("buffer_load_dword v252, v2, s[88:91], 0 offen sc1")
            if TLW == 1:
                A(f"s_mov_b32 s4, {WS_FLAG}")
                make_srd(A, 88, 68, 0, WS_FLAG + 2 * MB)
                A("buffer_load_dword v252, v2, s[88:91], s4 offen sc1")
        A.label(".Lp2a_e2")
        if EB:
            A("s_waitcnt lgkmcnt(0)")
            A("s_barrier")
            A(f"s_cmp_lt_u32 s{W}, 4")
            A("s_cbranch_scc1 .Lp2a_e3")
            self.p2_bulk1()
            A.label(".Lp2a_e3")
        A("s_mov_b32 s70, s57")
        A("s_mov_b32 s71, s58")
    def p2_bulk1(self):
        A = self.A; W = K1.S_WAVE
        A("s_sub_u32 s4, s2, 64")
        A("s_cmp_ge_u32 s4, 120")
        A("s_cbranch_scc1 .Lp2_l1")
        self.p2_tload(0); self.p2_tload(1)
        A.label(".Lp2_l1")
        if EB: make_srd(A, K1.S_WQ, 64, 0, 4 * MB)
        if DLY == 1 and not EB:
            A("s_cmp_ge_u32 s2, 64")
            A("s_cbranch_scc1 .Lp2_l3")
        if DLY and not EB:
            self.lds_spin(".Lp2_sd", 4, 4, True)
            A.label(".Lp2_l3")
        if not WQF: self.p2_wq()
    def p2_wq(self):
        A = self.A; W = K1.S_WAVE
        if WQF: make_srd(A, K1.S_WQ, 64, 0, 4 * MB)
        W128 = int(os.environ.get("W128", "0"))
        A("v_and_b32 v4, 255, v0")
        A(f"v_lshrrev_b32 v2, {3 if W128 else 4}, v4")
        A(f"v_and_b32 v3, {7 if W128 else 15}, v4")
        A(f"v_lshlrev_b32 v3, {7 if W128 else 6}, v3")
        A("v_lshl_add_u32 v2, v2, 13, v3")
        A("s_lshr_b32 s36, s2, 3")
        A("s_lshl_b32 s36, s36, 17")
        A("s_and_b32 s37, s2, 7")
        A("s_lshl_b32 s37, s37, 10")
        A("s_add_u32 s36, s36, s37")
        if W128:
            A(f"s_cmp_ge_u32 s{W}, 6")
            A("s_cbranch_scc1 .Lp2_l2")
        A(f"buffer_load_dword v63, v2, s[{K1.S_WQ}:{K1.S_WQ+3}], s36 offen")
        if W128: A.label(".Lp2_l2")
    def p2_tload(self, b):
        A = self.A
        wd = (72, 140)[b]; cd = (64, 156)[b]
        for i in range(4):
            A(f"buffer_load_dwordx4 v[{wd+4*i}:{wd+4*i+3}], v60, s[80:83], s58 offen")
            A("s_add_u32 s58, s58, s5")
        for i in range(4):
            A(f"buffer_load_ushort v{cd+i}, v61, s[76:79], s57 offen offset:{b*256 + i*64}")
    def lds_spin(self, lab, off, target, sleep=False, va=9):
        A = self.A
        A.label(lab)
        if sleep: A("s_sleep 2")
        A(f"ds_read_b32 v3, v{va} offset:{off}")
        A("s_waitcnt lgkmcnt(0)")
        A("v_readfirstlane_b32 s4, v3")
        A(f"s_cmp_lt_u32 s4, {target}")
        A(f"s_cbranch_scc1 {lab}")
    def lds_inc(self, off, va=9):
        A = self.A
        A("v_mov_b32 v3, 1")
        A("s_mov_b64 exec, 1")
        A(f"ds_add_u32 v{va}, v3 offset:{off}")
        A("s_mov_b64 exec, -1")
    def p2_gemv(self, sfx, nb, maybe_ones, col=3):
        A = self.A
        W = K1.S_WAVE; KM = f"s{K1.S_MASK}"; SCR = K1.STG + 16384
        ACC = list(range(96, 104)); T = list(range(104, 112)); U = list(range(112, 128))
        C = [64, 65, 66, 67] + ([156, 157, 158, 159] if nb == 2 else [])
        n = len(C)
        if maybe_ones:
            A("s_cmp_lt_u32 s2, 128")
            A(f"s_cbranch_scc1 .Lp2_silu{sfx}")
            for c in C: A(f"v_mov_b32 v{c}, 1.0")
            A(f"s_branch .Lp2_fma{sfx}")
            A.label(f".Lp2_silu{sfx}")
        for i, c in enumerate(C): A(f"v_lshlrev_b32 v{c}, 16, v{c}")
        for i, c in enumerate(C): A(f"v_mul_f32 v{T[i]}, {fhex(-LOG2E)}, v{c}")
        for i, c in enumerate(C): A(f"v_exp_f32 v{T[i]}, v{T[i]}")
        for i, c in enumerate(C): A(f"v_add_f32 v{T[i]}, 1.0, v{T[i]}")
        for i, c in enumerate(C): A(f"v_rcp_f32 v{U[i]}, v{T[i]}")
        for i, c in enumerate(C): A(f"v_mul_f32 v{U[8+i]}, v{c}, v{U[i]}")
        for i, c in enumerate(C): A(f"v_fma_f32 v{T[i]}, -v{U[8+i]}, v{T[i]}, v{c}")
        for i, c in enumerate(C): A(f"v_fma_f32 v{c}, v{T[i]}, v{U[i]}, v{U[8+i]}")
        for i, c in enumerate(C): A(f"v_cvt_pk_bf16_f32 v{T[i]}, v{c}, v{c}")
        for i, c in enumerate(C): A(f"v_lshlrev_b32 v{c}, 16, v{T[i]}")
        if maybe_ones: A.label(f".Lp2_fma{sfx}")
        for i in range(n):
            for j in range(4):
                w = (72, 140)[i >> 2] + 4 * (i & 3) + j
                A(f"v_lshlrev_b32 v{T[2*j]}, 16, v{w}")
                A(f"v_and_b32 v{T[2*j+1]}, {KM}, v{w}")
            for j in range(8):
                A(f"v_mul_f32 v{ACC[j]}, v{T[j]}, v{C[i]}" if i == 0 else f"v_fmac_f32 v{ACC[j]}, v{T[j]}, v{C[i]}")
        A("v_and_b32 v2, 7, v1")
        A("v_bfe_u32 v3, v0, 4, 4")
        for v in ACC: A(f"v_add_f32_dpp v{v}, v{v}, v{v} row_ror:8 row_mask:0xf bank_mask:0xf")
        A("v_lshlrev_b32 v3, 8, v3")
        A("v_lshl_add_u32 v3, v2, 5, v3")
        A(f"v_add_u32 v3, {SCR}, v3")
        A("v_and_b32 v2, 8, v1")
        A("v_cmp_eq_u32 vcc, 0, v2")
        A("s_and_b64 exec, exec, vcc")
        A(f"ds_write_b128 v3, v[{ACC[0]}:{ACC[3]}]")
        A(f"ds_write_b128 v3, v[{ACC[4]}:{ACC[7]}] offset:16")
        A("s_mov_b64 exec, -1")
        A("s_waitcnt lgkmcnt(0)")
        self.lds_inc(0)
        A(f"s_cmp_lg_u32 s{W}, {col}")
        A(f"s_cbranch_scc1 .Lp2_gd{sfx}")
        self.lds_spin(f".Lp2_sp{sfx}", 0, 4)
        A("v_lshlrev_b32 v2, 2, v1")
        A(f"v_add_u32 v3, {SCR}, v2")
        for k in range(16): A(f"ds_read_b32 v{104+k}, v3 offset:{k*256}")
        for k in range(8):
            A(f"s_waitcnt lgkmcnt({14-2*k})")
            A(f"v_add_f32 v{104+2*k}, v{104+2*k}, v{105+2*k}")
        for k in range(4): A(f"v_add_f32 v{104+4*k}, v{104+4*k}, v{106+4*k}")
        A("v_add_f32 v104, v104, v108")
        A("v_add_f32 v112, v112, v116")
        A("v_add_f32 v68, v104, v112")
        A("buffer_store_dword v68, v2, s[84:87], s59 offen sc1")
        A.label(f".Lp2_gd{sfx}")
    def p2_ln(self):
        A = self.A; KM = f"s{K1.S_MASK}"
        X0 = list(range(96, 104)); X1 = list(range(120, 128)); T0 = list(range(104, 116)); T1 = list(range(128, 140))
        for r, X in enumerate((X0, X1)):
            for j in range(4):
                A(f"v_lshlrev_b32 v{X[2*j]}, 16, v{88+4*r+j}")
                A(f"v_and_b32 v{X[2*j+1]}, {KM}, v{88+4*r+j}")
        ln_rows(A, [(X0, T0), (X1, T1)], KM, False)
        pack8(A, X0, 88); pack8(A, X1, 92)
        A(f"buffer_store_dwordx4 v[88:91], v12, s[{K1.S_XN}:{K1.S_XN+3}], s3 offen sc1")
        A(f"buffer_store_dwordx4 v[92:95], v12, s[{K1.S_XN}:{K1.S_XN+3}], s3 offen offset:1024 sc1")
    def p2_nonce(self, sfx):
        A = self.A
        A("s_mov_b32 s4, 0")
        A.label(f".Lp2_nl{sfx}")
        A("v_readfirstlane_b32 s100, v70")
        A("v_readfirstlane_b32 s101, v71")
        A("s_add_u32 s4, s4, 1")
        A("s_cmp_lg_u32 s100, 0")
        A(f"s_cbranch_scc1 .Lp2_nd{sfx}")
        A("s_cmp_lt_u32 s4, 0x40000")
        A(f"s_cbranch_scc0 .Lp2_nd{sfx}")
        self.p2_nload()
        A("s_waitcnt vmcnt(0)")
        A(f"s_branch .Lp2_nl{sfx}")
        A.label(f".Lp2_nd{sfx}")
        A("v_mov_b32 v70, s100")
        A("v_mov_b32 v71, s101")
    def p2_nload(self):
        A = self.A
        A("v_mov_b32 v2, 0")
        A("s_mov_b64 exec, 1")
        A("buffer_load_dwordx2 v[70:71], v2, s[88:91], 0 offen sc1")
        A("s_mov_b64 exec, -1")
    def p2_pubtask(self, region, base):
        A = self.A
        make_srd(A, 76, 68, region, 32 * 1024)
        A("v_lshlrev_b32 v3, 10, v1")
        A("s_mov_b32 s4, s73" if V3 else f"s_sub_u32 s4, s2, {base}")
        A("s_lshl_b32 s4, s4, 3")
        A("s_mov_b32 exec_hi, 0")
        A("buffer_store_dwordx2 v[70:71], v3, s[76:79], s4 offen sc1")
        A("s_mov_b64 exec, -1")
    def p2_pubxn(self, sfx):
        A = self.A
        self.lds_spin(f".Lp2_sx{sfx}", 4, 3)
        make_srd(A, 76, 68, FP, 32 * 1024)
        A(f"s_lshl_b32 s4, s{K1.S_M}, 10")
        A(f"s_lshl_b32 s5, s{K1.S_G}, 3")
        A("s_add_u32 s5, s5, 512")
        A("v_mov_b32 v3, s5")
        A("s_mov_b64 exec, 1")
        A("buffer_store_dwordx2 v[70:71], v3, s[76:79], s4 offen sc1")
        A("s_mov_b64 exec, -1")
    def p2_b(self, loader, cfix, xn_loads):
        A = self.A
        W = K1.S_WAVE; M_ = K1.S_M; KM = f"s{K1.S_MASK}"; SCR = K1.STG + 16384
        A(f"v_mov_b32 v9, {SCR + 8192}")
        if not EB:
            A("s_waitcnt lgkmcnt(0)")
            A("s_barrier")
        self.pst(2)
        A(f"s_cmp_lt_u32 s{W}, 4")
        A("s_cbranch_scc1 .Lp2_c")
        if not EB:
            A("s_mov_b32 s57, s70")
            A("s_mov_b32 s58, s71")
            self.p2_bulk1()
        elif DLY == 1:
            A("s_cmp_ge_u32 s2, 64")
            A("s_cbranch_scc1 .Lp2_l4")
            self.lds_spin(".Lp2_sd2", 4, 4, True)
            A.label(".Lp2_l4")
        loader()
        A("s_sub_u32 s4, s2, 64")
        A("s_cmp_ge_u32 s4, 120")
        A("s_cbranch_scc1 .Lp2_X")
        A(f"s_waitcnt vmcnt({4 * int(os.environ.get('LDE', '2'))})")
        self.p2_gemv("b", 2, True, 7)
        A("s_branch .Lp2_X")
        A.label(".Lp2_c")
        cfix()
        A("s_waitcnt vmcnt(0)")
        self.pst(3)
        A("s_cmp_ge_u32 s2, 64")
        A("s_cbranch_scc1 .Lp2_a0")
        self.p2_gemv("a", 1, False)
        A.label(".Lp2_a0")
        self.pst(4)
        A(f"s_cmp_lg_u32 s{W}, 3")
        A("s_cbranch_scc1 .Lp2_a1")
        self.p2_nload()
        A.label(".Lp2_a1")
        self.p2_ln()
        self.pst(6)
        A(f"s_cmp_lg_u32 s{W}, 3")
        A("s_cbranch_scc1 .Lp2_ack")
        A("s_waitcnt vmcnt(2)")
        self.p2_nonce("a")
        A("s_cmp_ge_u32 s2, 64")
        A("s_cbranch_scc1 .Lp2_a2")
        self.p2_pubtask(FP, 0)
        self.pst(7)
        A("s_waitcnt vmcnt(1)")
        A("s_branch .Lp2_a3")
        A.label(".Lp2_a2")
        A("s_waitcnt vmcnt(0)")
        A.label(".Lp2_a3")
        self.p2_pubxn("a")
        self.lds_inc(4)
        A("s_branch .Lp2_col")
        A.label(".Lp2_ack")
        A("s_waitcnt vmcnt(0)")
        self.lds_inc(4)
        A("s_branch .Lp2_X")
        A.label(".Lp2_col")
        make_srd(A, 76, 68, FP, 32 * 1024)
        A(f"s_lshl_b32 s5, s{M_}, 10")
        A("v_and_b32 v3, 7, v1")
        A("v_lshlrev_b32 v3, 3, v3")
        A("v_add_u32 v3, 512, v3")
        A("ds_write_b64 v9, v[70:71] offset:16")
        def parts():
            make_srd(A, 84, 68, WS_MOD, 4 * MODP)
            for i in range(4):
                for p in range(4):
                    A(f"s_movk_i32 s4, {p * MODP}") if p * MODP < 32768 else A(f"s_mov_b32 s4, {p * MODP}")
                    A(f"buffer_load_dwordx4 v[{72+16*i+4*p}:{75+16*i+4*p}], v12, s[84:87], s4 offen offset:{i*1024}")
        if MP:
            A("v_lshlrev_b32 v4, 3, v1")
            self.poll64(".Lplx", [(3, 76, "s5"), (4, 76, "s5")], cnt=4)
            parts()
        else:
            self.poll64(".Lplx", [(3, 76, "s5")], cnt=4)
        A.label(".Lp2_X")
        self.pst(8)
        A("s_waitcnt lgkmcnt(0)")
        A("s_barrier")
        self.pst(9)
        xn_loads()
        A(f"s_cmp_lg_u32 s{W}, 3")
        A("s_cbranch_scc1 .Lp2_Y")
        if not MP:
            make_srd(A, 76, 68, FP, 32 * 1024)
            A(f"s_lshl_b32 s5, s{M_}, 10")
            A("v_lshlrev_b32 v3, 3, v1")
            self.poll64(".Lplm", [(3, 76, "s5")], cnt=4)
            parts()
        A(f"v_add_u32 v3, {SCR + 4096}, v12")
        for i in range(4):
            b = 72 + 16 * i
            A(f"s_waitcnt vmcnt({12 - 4*i + (8 if MP else 0)})")
            pk(A, "v_pk_add_f32", b, b, b + 4); pk(A, "v_pk_add_f32", b + 2, b + 2, b + 6)
            pk(A, "v_pk_add_f32", b + 8, b + 8, b + 12); pk(A, "v_pk_add_f32", b + 10, b + 10, b + 14)
            pk(A, "v_pk_add_f32", b, b, b + 8); pk(A, "v_pk_add_f32", b + 2, b + 2, b + 10)
            round_multi(A, [b, b + 1, b + 2, b + 3], [b + 4, b + 5], KM)
            if i >= 2:
                for e in range(4): A(f"v_add_f32 v{b+e}, 1.0, v{b+e}")
                round_multi(A, [b, b + 1, b + 2, b + 3], [b + 4, b + 5], KM)
            A(f"ds_write_b128 v3, v[{b}:{b+3}] offset:{i*1024}")
        A("s_waitcnt lgkmcnt(0)")
        A.label(".Lp2_Y")
        A("s_barrier")
        self.pst(10)
        self.pst_flush()
        A("ds_read_b64 v[2:3], v9 offset:16")
        A("s_waitcnt lgkmcnt(0)")
        A("v_readfirstlane_b32 s100, v2")
        A("v_readfirstlane_b32 s101, v3")
    def p2_c(self):
        A = self.A
        if V4 and WQP == 3: self.p4_wq()
        if not V4:
            A(f"s_cmp_lg_u32 s{K1.S_WAVE}, {1 if V3 else 7}")
            A("s_cbranch_scc1 .Lp2c_end")
        A("s_mov_b32 s4, s73" if V3 else "s_sub_u32 s4, s2, 64")
        A("s_cmp_ge_u32 s4, 120")
        A("s_cbranch_scc1 .Lp2c_end")
        A("v_mov_b32 v70, s100")
        A("v_mov_b32 v71, s101")
        A("s_waitcnt vmcnt(0)")
        self.p2_pubtask(FQ_, 64)
        A.label(".Lp2c_end")
    def p3_tload(self, n):
        A = self.A
        for i in range(n):
            A(f"buffer_load_dwordx4 v[{128+4*i}:{131+4*i}], v60, s[80:83], s58 offen")
            A("s_add_u32 s58, s58, s5")
        for i in range(n):
            A(f"buffer_load_ushort v{224+i}, v61, s[76:79], s57 offen offset:{i*64}")
    def p3_wq(self, sfx):
        A = self.A; W = K1.S_WAVE
        make_srd(A, K1.S_WQ, 64, 0, 4 * MB)
        A("v_and_b32 v4, 255, v0")
        A("v_lshrrev_b32 v2, 4, v4")
        A("v_and_b32 v3, 15, v4")
        A("v_lshlrev_b32 v3, 6, v3")
        A("v_lshl_add_u32 v2, v2, 13, v3")
        A("s_lshr_b32 s36, s70, 3")
        A("s_lshl_b32 s36, s36, 17")
        A("s_and_b32 s37, s70, 7")
        A("s_lshl_b32 s37, s37, 10")
        A("s_add_u32 s36, s36, s37")
        A(f"s_cmp_lt_u32 s{W}, 4")
        A(f"s_cbranch_scc1 .Lp3_wq{sfx}")
        A(f"buffer_load_dword v63, v2, s[{K1.S_WQ}:{K1.S_WQ+3}], s36 offen")
        A.label(f".Lp3_wq{sfx}")
    def p3_dec(self, crit):
        A = self.A
        A("s_movk_i32 s71, 6144")
        if crit:
            A("s_and_b32 s4, s72, 15")
            A("s_bfe_u32 s5, s72, 0x20004")
            A("s_lshl_b32 s57, s5, 8")
        else:
            make_srd(A, 80, 74, 0, 512 * 6144)
            make_srd(A, 84, 68, WS_MOD, 4 * MODP)
            A("s_and_b32 s5, s73, 1")
            A("s_lshr_b32 s4, s73, 1")
            A("s_lshl_b32 s57, s5, 9")
            A("s_add_u32 s4, s4, 16")
            A("s_cmp_lt_u32 s4, 48")
            A("s_cbranch_scc1 .Lp3a_dec")
            A("s_sub_u32 s4, s4, 48")
            make_srd(A, 80, 96, 0, 512 * 3584)
            make_srd(A, 84, 68, WS_CS, 2 * CSP)
            A("s_movk_i32 s71, 3584")
            A.label(".Lp3a_dec")
        A("s_lshr_b32 s58, s57, 1")
        A("s_mul_i32 s58, s58, s71")
        A("s_lshl_b32 s59, s4, 7")
        A("s_add_u32 s58, s58, s59")
        A("s_lshl_b32 s59, s4, 8")
        A(f"s_movk_i32 s4, {MODP}")
        A("s_cmp_eq_u32 s71, 3584")
        A(f"s_cselect_b32 s4, {CSP}, s4")
        A("s_mul_i32 s4, s4, s5")
        A("s_add_u32 s59, s59, s4")
        A("v_and_b32 v2, 7, v0")
        A("v_bfe_u32 v3, v0, 3, 5")
        A("v_mul_lo_u32 v60, v3, s71")
        A("v_lshl_add_u32 v60, v2, 4, v60")
        A("v_lshlrev_b32 v61, 1, v3")
        A("s_lshl_b32 s5, s71, 5")
    def p3_a(self):
        A = self.A
        W = K1.S_WAVE; M_ = K1.S_M; XR = K1.V_S
        A("s_waitcnt lgkmcnt(0)")
        self.pst(1)
        make_srd(A, 88, 6, 0, 256)
        A(f"s_or_b32 s3, s2, s{W}")
        A("s_cmp_lg_u32 s3, 0")
        A("s_cbranch_scc1 .Lp3a_non")
        A("s_or_b32 s70, s70, 1")
        A("v_mov_b32 v2, s70")
        A("v_mov_b32 v3, s71")
        A("v_mov_b32 v5, 0")
        A("s_mov_b64 exec, 1")
        A("buffer_store_dwordx2 v[2:3], v5, s[88:91], 0 offen sc1")
        A("s_mov_b64 exec, -1")
        A.label(".Lp3a_non")
        make_srd(A, 76, 72, 0, 1024)
        make_srd(A, 80, 74, 0, 512 * 6144)
        make_srd(A, 84, 68, WS_MOD, 4 * MODP)
        make_srd(A, 88, 4, 0, 2 * MB)
        if RM:
            A("s_add_u32 s70, s2, 6")
            A("s_and_b32 s70, s70, 7")
            A("s_lshl_b32 s70, s70, 5")
            A("s_lshr_b32 s71, s2, 3")
            A("s_add_u32 s70, s70, s71")
            A("s_sub_u32 s72, s70, 192")
            if RM == 1:
                A("s_add_u32 s73, s72, 64")
                A("s_cmp_lt_u32 s70, 192")
                A("s_cselect_b32 s73, 255, s73")
                A("s_cmp_lt_u32 s70, 64")
                A("s_cselect_b32 s73, s70, s73")
            else:
                A("s_mov_b32 s73, s70")
        else:
            A("s_mov_b32 s72, s2")
            A("s_sub_u32 s73, s2, 64")
            A("s_sub_u32 s70, 255, s2")
            A("s_xor_b32 s70, s70, 7")
        self.p3_dec(True)
        A(f"v_mov_b32 v58, {K1.STG + 16384}")
        A("v_mov_b32 v3, 0")
        A("ds_write_b32 v58, v3 offset:16")
        A("ds_write_b32 v58, v3 offset:20")
        A("s_cmp_ge_u32 s72, 64")
        A("s_cbranch_scc1 .Lp3a_x")
        A(f"s_cmp_ge_u32 s{W}, 4")
        A("s_cbranch_scc1 .Lp3a_x")
        self.p3_tload(4)
        A.label(".Lp3a_x")
        A("s_waitcnt lgkmcnt(0)")
        A("s_barrier")
        A(f"s_lshl_b32 s3, s{M_}, 16")
        A(f"s_lshl_b32 s4, s{W}, 13")
        A("s_add_u32 s3, s3, s4")
        A("s_add_u32 s4, s3, 4096")
        for i in range(4 if XS else 8):
            A(f"buffer_load_dwordx4 v[{XR+4*i}:{XR+4*i+3}], v12, s[88:91], s{3 + (i >> 2)} offen offset:{(i & 3) * 1024}")
        if not XS: make_srd(A, 88, 6, 0, 256)
        if not XS:
            A("s_cmp_lt_u32 s72, 64")
            A("s_cbranch_scc1 .Lp3a_end")
            self.p3_wq("a")
            A.label(".Lp3a_end")
    def p3_gemv(self, sfx, n, maybe_ones, col):
        A = self.A
        W = K1.S_WAVE; KM = f"s{K1.S_MASK}"; SCR = K1.STG + 16384
        ACC = list(range(64, 72)); T = list(range(72, 80)); U = list(range(80, 96))
        C = list(range(224, 224 + n))
        GO = 8192 if sfx == 'a' else 12288; CT_ = 16 if sfx == 'a' else 20
        if maybe_ones:
            A("s_cmp_lt_u32 s73, 64")
            A(f"s_cbranch_scc1 .Lp3_silu{sfx}")
            for c in C: A(f"v_mov_b32 v{c}, 1.0")
            A(f"s_branch .Lp3_fma{sfx}")
            A.label(f".Lp3_silu{sfx}")
        seq = [lambda i, c: f"v_lshlrev_b32 v{c}, 16, v{c}", lambda i, c: f"v_mul_f32 v{T[i]}, {fhex(-LOG2E)}, v{c}",
               lambda i, c: f"v_exp_f32 v{T[i]}, v{T[i]}", None, lambda i, c: f"v_add_f32 v{T[i]}, 1.0, v{T[i]}",
               lambda i, c: f"v_rcp_f32 v{U[i]}, v{T[i]}", None, lambda i, c: f"v_mul_f32 v{U[8+i]}, v{c}, v{U[i]}",
               lambda i, c: f"v_fma_f32 v{T[i]}, -v{U[8+i]}, v{T[i]}, v{c}", lambda i, c: f"v_fma_f32 v{c}, v{T[i]}, v{U[i]}, v{U[8+i]}",
               lambda i, c: f"v_cvt_pk_bf16_f32 v{T[i]}, v{c}, v{c}", lambda i, c: f"v_lshlrev_b32 v{c}, 16, v{T[i]}"]
        for f in seq:
            if f is None: A("s_nop 0"); continue
            for i, c in enumerate(C): A(f(i, c))
        if maybe_ones: A.label(f".Lp3_fma{sfx}")
        for i in range(n):
            for j in range(4):
                w = 128 + 4 * i + j
                A(f"v_lshlrev_b32 v{T[2*j]}, 16, v{w}")
                A(f"v_and_b32 v{T[2*j+1]}, {KM}, v{w}")
            for j in range(8):
                A(f"v_mul_f32 v{ACC[j]}, v{T[j]}, v{C[i]}" if i == 0 else f"v_fmac_f32 v{ACC[j]}, v{T[j]}, v{C[i]}")
        A("v_and_b32 v2, 7, v1")
        A("v_lshrrev_b32 v3, 4, v0")
        for v in ACC: A(f"v_add_f32_dpp v{v}, v{v}, v{v} row_ror:8 row_mask:0xf bank_mask:0xf")
        A("v_lshlrev_b32 v3, 8, v3")
        A("v_lshl_add_u32 v3, v2, 5, v3")
        A(f"v_add_u32 v3, {SCR + GO}, v3")
        A("v_and_b32 v2, 8, v1")
        A("v_cmp_eq_u32 vcc, 0, v2")
        A("s_and_b64 exec, exec, vcc")
        A(f"ds_write_b128 v3, v[{ACC[0]}:{ACC[3]}]")
        A(f"ds_write_b128 v3, v[{ACC[4]}:{ACC[7]}] offset:16")
        A("s_mov_b64 exec, -1")
        A("s_waitcnt lgkmcnt(0)")
        self.lds_inc(CT_, 58)
        A(f"s_cmp_lg_u32 s{W}, {col}")
        A(f"s_cbranch_scc1 .Lp3_gd{sfx}")
        self.lds_spin(f".Lp3_sp{sfx}", CT_, 4, False, 58)
        A("v_lshlrev_b32 v2, 2, v1")
        A(f"v_add_u32 v3, {SCR + GO}, v2")
        for k in range(16): A(f"ds_read_b32 v{64+k}, v3 offset:{k*256}")
        for k in range(8):
            A(f"s_waitcnt lgkmcnt({14-2*k})")
            A(f"v_add_f32 v{64+2*k}, v{64+2*k}, v{65+2*k}")
        for k in range(4): A(f"v_add_f32 v{64+4*k}, v{64+4*k}, v{66+4*k}")
        A("v_add_f32 v64, v64, v68")
        A("v_add_f32 v72, v72, v76")
        A("v_add_f32 v234, v64, v72")
        A("buffer_store_dword v234, v2, s[84:87], s59 offen sc1")
        A.label(f".Lp3_gd{sfx}")
    def p3_ln(self, b):
        A = self.A; KM = f"s{K1.S_MASK}"; XR = K1.V_S
        R = [(list(range(64 + 8 * r, 72 + 8 * r)), list(range(96 + 8 * r, 104 + 8 * r))) for r in range(4)]
        for r, (X, T) in enumerate(R):
            for j in range(4):
                A(f"v_lshlrev_b32 v{X[2*j]}, 16, v{XR+16*b+4*r+j}")
                A(f"v_and_b32 v{X[2*j+1]}, {KM}, v{XR+16*b+4*r+j}")
        ln_fast(A, R, KM, False)
        for r, (X, T) in enumerate(R): pack8(A, X, XR + 16 * b + 4 * r)
    def p3_nload(self):
        A = self.A
        A("v_mov_b32 v2, 0")
        A("s_mov_b64 exec, 1")
        A("buffer_load_dwordx2 v[232:233], v2, s[88:91], 0 offen sc1")
        A("s_mov_b64 exec, -1")
    def p3_xwait(self, sfx, n):
        A = self.A
        A("s_sub_u32 s4, s2, 64")
        A("s_cmp_lt_u32 s4, 120")
        A(f"s_cbranch_scc1 .Lp3_xw{sfx}")
        A(f"s_waitcnt vmcnt({n})")
        A.label(f".Lp3_xw{sfx}")
        A(f"s_waitcnt vmcnt({n + 8})")
    def p3_b(self, loader, cfix, xn_loads):
        A = self.A
        W = K1.S_WAVE; M_ = K1.S_M; KM = f"s{K1.S_MASK}"; SCR = K1.STG + 16384
        CW = 0; PW = 1
        WQL = int(os.environ.get('WQL', '0'))
        def nonce(sfx):
            A("s_mov_b32 s4, 0")
            A.label(f".Lp3_nl{sfx}")
            A("v_readfirstlane_b32 s100, v232")
            A("v_readfirstlane_b32 s101, v233")
            A("s_add_u32 s4, s4, 1")
            A("s_cmp_lg_u32 s100, 0")
            A(f"s_cbranch_scc1 .Lp3_nd{sfx}")
            A("s_cmp_lt_u32 s4, 0x40000")
            A(f"s_cbranch_scc0 .Lp3_nd{sfx}")
            self.p3_nload()
            A("s_waitcnt vmcnt(0)")
            A(f"s_branch .Lp3_nl{sfx}")
            A.label(f".Lp3_nd{sfx}")
            A("v_mov_b32 v232, s100")
            A("v_mov_b32 v233, s101")
            A(f"v_mov_b32 v2, {SCR}")
            A("ds_write_b64 v2, v[232:233]")
        if XS:
            A("s_add_u32 s4, s3, 4096")
            for i in range(4, 8):
                A(f"buffer_load_dwordx4 v[{K1.V_S+4*i}:{K1.V_S+4*i+3}], v12, s[88:91], s4 offen offset:{(i & 3) * 1024}")
            make_srd(A, 88, 6, 0, 256)
            A("s_mov_b32 s6, 0")
            A("s_mov_b32 s7, 0")
            A(f"s_cmp_gt_u32 s{W}, 1")
            A("s_cbranch_scc1 .Lp3_e1")
            self.p3_nload()
            A("s_mov_b32 s6, 1")
            A.label(".Lp3_e1")
            A("s_cmp_lt_u32 s72, 64")
            A("s_cbranch_scc1 .Lp3a_end")
            self.p3_wq("a")
            A(f"s_lshr_b32 s7, s{W}, 2")
            A("s_or_b32 s6, s6, s7")
            A.label(".Lp3a_end")
        self.pst(2)
        A("s_cmp_ge_u32 s72, 64")
        A("s_cbranch_scc1 .Lp3_nc")
        A(f"s_cmp_ge_u32 s{W}, 4")
        A("s_cbranch_scc1 .Lp3_ln0")
        A("s_waitcnt vmcnt(8)")
        self.pst(3)
        self.p3_gemv("a", 4, False, PW)
        self.pst(4)
        A.label(".Lp3_nc")
        A.label(".Lp3_ln0")
        assert XS
        A("s_cmp_lg_u32 s6, 0")
        A("s_cbranch_scc1 .Lp3_ln0a")
        A("s_waitcnt vmcnt(4)")
        A.label(".Lp3_ln0a")
        A("s_waitcnt vmcnt(5)")
        self.pst(5)
        self.p3_ln(0)
        self.pst(6)
        make_srd(A, 36, 68, FP, 32 * 1024)
        A("s_cmp_lg_u32 s7, 0")
        A("s_cbranch_scc1 .Lp3_ln1a")
        A("s_waitcnt vmcnt(0)")
        A.label(".Lp3_ln1a")
        A("s_waitcnt vmcnt(1)")
        A(f"s_cmp_gt_u32 s{W}, 1")
        A("s_cbranch_scc1 .Lp3_n1")
        nonce("a")
        A.label(".Lp3_n1")
        A("s_cmp_ge_u32 s72, 64")
        A("s_cbranch_scc1 .Lp3_n3")
        A(f"s_cmp_lg_u32 s{W}, {PW}")
        A("s_cbranch_scc1 .Lp3_n2")
        A("v_lshlrev_b32 v3, 10, v1")
        A("s_lshl_b32 s4, s72, 3")
        A("s_mov_b32 exec_hi, 0")
        A("buffer_store_dwordx2 v[232:233], v3, s[36:39], s4 offen sc1")
        A("s_mov_b64 exec, -1")
        self.pst(7)
        A.label(".Lp3_n2")
        if WQL == 0: self.p3_wq("b")
        A.label(".Lp3_n3")
        A("s_cmp_ge_u32 s73, 120")
        A("s_cbranch_scc1 .Lp3_n4")
        A(f"s_cmp_ge_u32 s{W}, 4")
        A("s_cbranch_scc1 .Lp3_n4")
        self.p3_dec(False)
        A("s_cmp_ge_u32 s72, 64")
        A("s_cbranch_scc1 .Lp3_n3b")
        A("s_sleep 6")
        A.label(".Lp3_n3b")
        self.p3_tload(8)
        A.label(".Lp3_n4")
        make_srd(A, 76, 68, FP, 32 * 1024)
        self.p3_ln(1)
        self.pst(8)
        if WQL:
            A("s_cmp_ge_u32 s72, 64")
            A("s_cbranch_scc1 .Lp3_n9")
            A(f"s_cmp_eq_u32 s{W}, {CW}")
            A("s_cbranch_scc1 .Lp3_n9")
            self.p3_wq("b")
            A.label(".Lp3_n9")
        A("s_cmp_ge_u32 s73, 120")
        A("s_cbranch_scc1 .Lp3_n6")
        A(f"s_cmp_ge_u32 s{W}, 4")
        A("s_cbranch_scc1 .Lp3_n6")
        A("s_waitcnt vmcnt(0)")
        self.p3_gemv("b", 8, True, 1)
        A.label(".Lp3_n6")
        A(f"s_cmp_lg_u32 s{W}, {CW}")
        A("s_cbranch_scc1 .Lp3_n5")
        A(f"s_lshl_b32 s5, s{M_}, 10")
        A("v_lshlrev_b32 v3, 3, v1")
        self.poll64(".Lplm", [(3, 76, "s5")], cnt=4, slp=int(os.environ.get("PSLP", "0")))
        make_srd(A, 76, 68, WS_MOD, 4 * MODP)
        for i in range(4):
            for p in range(4):
                A(f"s_movk_i32 s4, {p * MODP}") if p * MODP < 32768 else A(f"s_mov_b32 s4, {p * MODP}")
                A(f"buffer_load_dwordx4 v[{64+16*i+4*p}:{67+16*i+4*p}], v12, s[76:79], s4 offen offset:{i*1024}")
        A.label(".Lp3_n5")
        self.pst(9)
        A(f"s_cmp_lg_u32 s{W}, {CW}")
        A("s_cbranch_scc1 .Lp3_n8")
        A(f"v_add_u32 v3, {SCR + 4096}, v12")
        for i in range(4):
            b = 64 + 16 * i
            A(f"s_waitcnt vmcnt({12 - 4*i})")
            pk(A, "v_pk_add_f32", b, b, b + 4); pk(A, "v_pk_add_f32", b + 2, b + 2, b + 6)
            pk(A, "v_pk_add_f32", b + 8, b + 8, b + 12); pk(A, "v_pk_add_f32", b + 10, b + 10, b + 14)
            pk(A, "v_pk_add_f32", b, b, b + 8); pk(A, "v_pk_add_f32", b + 2, b + 2, b + 10)
            round_multi(A, [b, b + 1, b + 2, b + 3], [b + 4, b + 5], KM)
            if i >= 2:
                for e in range(4): A(f"v_add_f32 v{b+e}, 1.0, v{b+e}")
                round_multi(A, [b, b + 1, b + 2, b + 3], [b + 4, b + 5], KM)
            A(f"ds_write_b128 v3, v[{b}:{b+3}] offset:{i*1024}")
        A("s_waitcnt lgkmcnt(0)")
        A.label(".Lp3_n8")
        A.label(".Lp3_Y")
        loader()
        A("s_barrier")
        self.pst(10)
        self.pst_flush()
        A(f"v_mov_b32 v2, {SCR}")
        A("ds_read_b64 v[2:3], v2")
        A("s_waitcnt lgkmcnt(0)")
        A("v_readfirstlane_b32 s100, v2")
        A("v_readfirstlane_b32 s101, v3")
    def p4_silu(self, C, T, U):
        A = self.A; n = len(C)
        seq = [lambda i, c: f"v_mul_f32 v{T[i]}, {fhex(-LOG2E)}, v{c}",
               lambda i, c: f"v_exp_f32 v{T[i]}, v{T[i]}", None, lambda i, c: f"v_add_f32 v{T[i]}, 1.0, v{T[i]}",
               lambda i, c: f"v_rcp_f32 v{U[i]}, v{T[i]}", None, lambda i, c: f"v_mul_f32 v{U[n+i]}, v{c}, v{U[i]}",
               lambda i, c: f"v_fma_f32 v{T[i]}, -v{U[n+i]}, v{T[i]}, v{c}", lambda i, c: f"v_fma_f32 v{c}, v{T[i]}, v{U[i]}, v{U[n+i]}"]
        for f in seq:
            if f is None: A("s_nop 0"); continue
            for i, c in enumerate(C): A(f(i, c))
    def p4_red8(self, sets, last):
        A = self.A
        DP = "row_mask:0xf bank_mask:"
        for S in sets:
            for k in range(4): A(f"v_permlane32_swap_b32 v{S[k]}, v{S[k+4]}")
        if len(sets) == 1: A("s_nop 0")
        for S in sets:
            for k in range(4): A(f"v_add_f32 v{S[k]}, v{S[k]}, v{S[k+4]}")
        A("s_nop 1" if len(sets) == 1 else "s_nop 0")
        for S in sets:
            for k in range(2): A(f"v_permlane16_swap_b32 v{S[k]}, v{S[k+2]}")
        A("s_nop 1")
        for S in sets:
            for k in range(2): A(f"v_add_f32 v{S[k]}, v{S[k]}, v{S[k+2]}")
        A("s_nop 1")
        for S in sets:
            A(f"v_add_f32_dpp v{S[2]}, v{S[0]}, v{S[0]} row_ror:8 {DP}0x3")
            A(f"v_add_f32_dpp v{S[2]}, v{S[1]}, v{S[1]} row_ror:8 {DP}0xc")
        src = 2
        for i, d in enumerate(last):
            A("s_nop 1" if len(sets) == 1 else "s_nop 0")
            for S in sets: A(f"v_add_f32_dpp v{S[0]}, v{S[src]}, v{S[src]} {d} {DP}0xf")
            src = 0
    def p4_xl(self):
        A = self.A; XR = K1.V_S
        A("s_add_u32 s4, s3, 4096")
        for i in range(8):
            A(f"buffer_load_dwordx4 v[{XR+4*i}:{XR+4*i+3}], v12, s[84:87], s{3 + (i >> 2)} offen offset:{(i & 3) * 1024}")
    def p4_a(self):
        A = self.A
        W = K1.S_WAVE; M_ = K1.S_M; XR = K1.V_S; SCR = K1.STG + 16384
        NLT = 64 if LT == 3 else 120
        A(f"v_mov_b32 v58, {SCR}")
        for i in range(4): A(f"v_mov_b32 v{4+i}, 0")
        A("ds_write_b128 v58, v[4:7]")
        A("ds_write_b128 v58, v[4:7] offset:16")
        if RM:
            A("s_add_u32 s3, s2, 6")
            A("s_and_b32 s3, s3, 7")
            A("s_lshl_b32 s3, s3, 5")
            A("s_lshr_b32 s57, s2, 3")
            A("s_add_u32 s3, s3, s57")
        else:
            A("s_sub_u32 s3, 255, s2")
        A(f"s_cmp_lt_u32 s{W}, 4")
        A("s_cselect_b32 s36, s3, 128")
        A("v_lshrrev_b32 v3, 3, v0")
        A("s_cmp_lt_u32 s36, 192")
        A("s_cbranch_scc1 .Lp4a_l")
        A("v_and_b32 v2, 1, v1")
        A("v_lshl_or_b32 v2, v3, 1, v2")
        A("v_lshlrev_b32 v61, 3, v2")
        A("v_mul_u32_u24 v60, 24576, v2")
        A("v_bfe_u32 v3, v1, 1, 2")
        A("v_lshl_add_u32 v60, v3, 4, v60")
        A("s_bfe_u32 s59, s3, 0x10005")
        A("s_and_b32 s58, s3, 31")
        A("s_lshl_b32 s58, s58, 6")
        A(f"s_mul_i32 s57, s59, {256 * 6144}")
        A("s_add_u32 s58, s58, s57")
        A("s_lshl_b32 s59, s59, 9")
        A("s_waitcnt lgkmcnt(0)")
        self.pst(1)
        make_srd(A, 76, 72, 0, 1024)
        make_srd(A, 80, 74, 0, 512 * 6144)
        A("buffer_load_dwordx2 v[224:225], v61, s[76:79], s59 offen")
        for i in range(4):
            A(f"buffer_load_dwordx4 v[{128+4*i}:{131+4*i}], v60, s[80:83], s58 offen")
            if i < 3: A("s_add_u32 s58, s58, 6144")
        A("s_branch .Lp4a_x")
        A.label(".Lp4a_l")
        A(f"s_cmp_ge_u32 s36, {NLT}")
        A("s_cbranch_scc1 .Lp4a_w")
        A("s_and_b32 s37, s3, 1")
        A("s_lshr_b32 s56, s3, 1")
        A("s_add_u32 s57, s56, 16")
        A("s_sub_u32 s56, s56, 32")
        A("s_cmp_lt_u32 s3, 64")
        A("s_cselect_b32 s56, s57, s56")
        A(f"s_movk_i32 s57, {CSP}")
        A(f"s_cselect_b32 s59, {MODP}, s57")
        A("s_movk_i32 s57, 3584")
        A("s_cselect_b32 s46, 6144, s57")
        A(f"s_cselect_b32 s47, {WS_MOD}, {WS_CS}")
        A("s_mul_i32 s59, s59, s37")
        A("s_add_u32 s59, s59, s47")
        A("s_lshl_b32 s57, s56, 8")
        A("s_add_u32 s59, s59, s57")
        A("s_lshl_b32 s58, s37, 8")
        A("s_mul_i32 s58, s58, s46")
        A("s_lshl_b32 s56, s56, 7")
        A("s_add_u32 s58, s58, s56")
        A("s_lshl_b32 s57, s37, 9")
        A("s_lshl_b32 s56, s46, 3")
        A("v_and_b32 v2, 7, v1")
        A("v_mul_lo_u32 v60, v3, s56")
        A("v_lshl_add_u32 v60, v2, 4, v60")
        A("v_lshlrev_b32 v61, 4, v3")
        A("s_cmp_lt_u32 s3, 64")
        A("s_waitcnt lgkmcnt(0)")
        make_srd(A, 76, 72, 0, 1024)
        A("s_cselect_b32 s80, s74, s96")
        A("s_cselect_b32 s81, s75, s97")
        A("s_lshl_b32 s82, s46, 9")
        A("s_mov_b32 s83, 0x00020000")
        A("buffer_load_dwordx4 v[224:227], v61, s[76:79], s57 offen")
        for i in range(8):
            A(f"buffer_load_dwordx4 v[{128+4*i}:{131+4*i}], v60, s[80:83], s58 offen")
            if i < 7: A("s_add_u32 s58, s58, s46")
        A.label(".Lp4a_w")
        A("s_waitcnt lgkmcnt(0)")
        self.pst(1)
        A.label(".Lp4a_x")
        make_srd(A, 88, 6, 0, 256)
        A(f"s_xor_b32 s57, s{W}, 4")
        A("s_or_b32 s57, s2, s57")
        A("s_cmp_lg_u32 s57, 0")
        A("s_cbranch_scc1 .Lp4a_non")
        A("s_or_b32 s70, s70, 1")
        A("v_mov_b32 v2, s70")
        A("v_mov_b32 v3, s71")
        A("s_mov_b64 exec, 1")
        A("buffer_store_dwordx2 v[2:3], v5, s[88:91], 0 offen sc1")
        A("s_mov_b64 exec, -1")
        A.label(".Lp4a_non")
        make_srd(A, 84, 4, 0, 2 * MB)
        A("s_mov_b32 s70, s3")
        A("s_sub_u32 s72, s36, 192")
        A(f"s_cmp_lt_u32 s36, {NLT}")
        A("s_cselect_b32 s73, s36, 255")
        if XRT:
            A(f"s_add_u32 s71, s{W}, s{K1.S_G}")
            A("s_and_b32 s71, s71, 7")
            A("s_lshl_b32 s71, s71, 3")
        else: A(f"s_lshl_b32 s71, s{W}, 3")
        A(f"s_lshl_b32 s3, s{M_}, 16")
        A("s_lshl_b32 s4, s71, 10")
        A("s_add_u32 s3, s3, s4")
        A("s_barrier")
        if XL:
            A(f"s_cmp_ge_u32 s{W}, {XL}")
            A("s_cbranch_scc1 .Lp4a_nx")
        A("s_cmp_lt_u32 s73, 120")
        A("s_cbranch_scc1 .Lp4a_nx")
        if CX:
            A("s_sub_u32 s4, s70, s36")
            A("s_cmp_ge_i32 s4, 64")
        else:
            A("s_cmp_lt_u32 s72, 64")
        A("s_cbranch_scc1 .Lp4a_nx")
        self.p4_xl()
        if NW:
            A(f"s_cmp_lg_u32 s{W}, 0")
            A("s_cbranch_scc1 .Lp4a_nx")
            A("s_cmp_ge_u32 s70, 192")
            A("s_cbranch_scc1 .Lp4a_nx")
            self.p3_nload()
        A.label(".Lp4a_nx")
    def p4_arrive(self, lab):
        A = self.A
        A("v_mov_b32 v3, 1")
        A("s_waitcnt lgkmcnt(0)")
        A("s_mov_b64 exec, 1")
        A("ds_add_rtn_u32 v3, v58, v3 offset:16")
        A("s_mov_b64 exec, -1")
        A("s_waitcnt lgkmcnt(0)")
        A("v_readfirstlane_b32 s4, v3")
        A("s_cmp_lg_u32 s4, 3")
        A(f"s_cbranch_scc1 {lab}")
    def p4_forms(self, P, F):
        A = self.A; KM = f"s{K1.S_MASK}"
        for i, p in enumerate(P):
            A(f"v_and_b32 v{F[4*i]}, 0xffff, v{p}")
            A(f"v_lshlrev_b32 v{F[4*i+1]}, 16, v{p}")
            A(f"v_lshrrev_b32 v{F[4*i+2]}, 16, v{p}")
            A(f"v_and_b32 v{F[4*i+3]}, {KM}, v{p}")
    def p4_wq(self):
        A = self.A; W = K1.S_WAVE
        A("v_and_b32 v4, 255, v0")
        A("v_lshrrev_b32 v2, 4, v4")
        A("v_and_b32 v3, 15, v4")
        A("v_lshlrev_b32 v3, 6, v3")
        A("v_lshl_add_u32 v2, v2, 13, v3")
        A("s_add_u32 s36, s70, 64")
        A("s_cmp_lt_u32 s70, 128")
        A("s_cselect_b32 s36, 256, s36")
        A("s_cmp_lt_u32 s70, 192")
        A("s_cselect_b32 s37, s70, 256")
        A(f"s_cmp_lt_u32 s{W}, 4")
        A("s_cselect_b32 s36, s36, s37")
        A("s_cmp_ge_u32 s36, 256")
        A("s_cbranch_scc1 .Lp4_wq")
        A("s_and_b32 s37, s36, 7")
        A("s_lshr_b32 s36, s36, 3")
        A("s_lshl_b32 s36, s36, 17")
        A("s_lshl_b32 s37, s37, 10")
        A("s_add_u32 s36, s36, s37")
        A(f"buffer_load_dword v63, v2, s[{K1.S_WQ}:{K1.S_WQ+3}], s36 offen")
        A.label(".Lp4_wq")
    def p4_nonce(self, sfx):
        A = self.A
        A("s_mov_b32 s4, 0")
        A.label(f".Lp4_nl{sfx}")
        A("v_readfirstlane_b32 s100, v232")
        A("v_readfirstlane_b32 s101, v233")
        A("s_add_u32 s4, s4, 1")
        A("s_cmp_lg_u32 s100, 0")
        A(f"s_cbranch_scc1 .Lp4_nd{sfx}")
        A("s_cmp_lt_u32 s4, 0x40000")
        A(f"s_cbranch_scc0 .Lp4_nd{sfx}")
        self.p3_nload()
        A("s_waitcnt vmcnt(0)")
        A(f"s_branch .Lp4_nl{sfx}")
        A.label(f".Lp4_nd{sfx}")
        A("s_or_b32 s100, s100, 1")
        A("v_mov_b32 v232, s100")
        A("v_mov_b32 v233, s101")
        A("ds_write_b64 v58, v[232:233]")
    def p4_nget(self, lab):
        A = self.A
        A.label(lab)
        A("ds_read_b64 v[2:3], v58")
        A("s_waitcnt lgkmcnt(0)")
        A("v_readfirstlane_b32 s100, v2")
        A("v_readfirstlane_b32 s101, v3")
        A("s_cmp_eq_u32 s100, 0")
        A(f"s_cbranch_scc1 {lab}")
    def p4_b(self, loader, cfix, xn_loads):
        A = self.A
        W = K1.S_WAVE; M_ = K1.S_M; KM = f"s{K1.S_MASK}"; SCR = K1.STG + 16384; XR = K1.V_S
        K10 = K1.V_K10; K01 = K1.V_K01
        ACC = list(range(72, 80))
        A("s_mov_b32 s6, 0")
        if XL:
            assert not CX and XL >= 4
            A(f"s_cmp_lt_u32 s{W}, {XL}")
            A("s_cbranch_scc1 .Lp4_xl0")
            self.p4_xl()
            A.label(".Lp4_xl0")
        if CX:
            A("s_cmp_lt_u32 s70, 192")
            A("s_cbranch_scc1 .Lp4_cx0")
            A(f"s_cmp_lt_u32 s{W}, 4")
            A("s_cbranch_scc1 .Lp4_cx0")
            self.p4_xl()
            A.label(".Lp4_cx0")
        XN_ = 8 if CX else 0
        self.pst(2)
        A("s_cmp_ge_u32 s72, 64")
        A("s_cbranch_scc1 .Lp4_nc")
        self.p3_nload()
        make_srd(A, 76, 68, WS_LL, NREP * 16384)
        A("v_and_b32 v2, 15, v1")
        A("v_lshrrev_b32 v4, 4, v1")
        A("v_lshlrev_b32 v4, 14, v4")
        A("v_lshl_add_u32 v4, v2, 4, v4")
        A("v_lshlrev_b32 v2, 5, v2")
        A(f"v_add_u32 v5, {SCR + 256}, v2")
        A("s_lshl_b32 s57, s72, 8")
        A("v_lshrrev_b32 v2, 3, v1")
        A("v_bfe_u32 v3, v1, 1, 2")
        A("v_lshl_add_u32 v2, v3, 3, v2")
        A(f"s_lshl_b32 s4, s{W}, 2")
        A(f"s_add_u32 s4, s4, {SCR + 256}")
        A("v_lshlrev_b32 v2, 4, v2")
        A("v_add_u32 v6, s4, v2")
        A(f"s_waitcnt vmcnt({5 + XN_})")
        C = [64, 65, 66, 67]
        for i in range(2):
            A(f"v_lshlrev_b32 v{C[2*i]}, 16, v{224+i}")
            A(f"v_and_b32 v{C[2*i+1]}, {KM}, v{224+i}")
        self.p4_silu(C, [68, 69, 70, 71], list(range(80, 88)))
        A("v_cvt_pk_bf16_f32 v64, v64, v65")
        A("v_cvt_pk_bf16_f32 v65, v66, v67")
        self.p4_forms([64, 65], list(range(80, 88)))
        for r in range(4):
            A(f"s_waitcnt vmcnt({4 - r + XN_})")
            if r == 3: self.pst(3)
            for k in range(8):
                A(f"v_dot2_f32_bf16 v{ACC[k]}, v{128+4*r+k//2}, v{80+2*r+(k&1)}, {'0' if r == 0 else 'v%d' % ACC[k]}")
        A("s_nop 0")
        self.p4_red8([ACC], ["quad_perm:[1,0,3,2]"])
        A(f"ds_write_b32 v6, v{ACC[0]}")
        self.pst(4)
        self.p4_arrive(".Lp4_cw")
        for i in range(2): A(f"ds_read_b128 v[{64+4*i}:{67+4*i}], v5 offset:{16*i}")
        A("s_waitcnt vmcnt(0)")
        self.p4_nonce("a")
        A("s_waitcnt lgkmcnt(0)")
        for b in (64, 68): pk(A, "v_pk_add_f32", b, b, b + 2)
        A("v_add_f32 v64, v64, v65")
        A("v_add_f32 v66, v68, v69")
        A("v_mov_b32 v65, s100")
        A("v_mov_b32 v67, s100")
        for i in range(NREP // 4):
            A("buffer_store_dwordx4 v[64:67], v4, s[76:79], s57 offen sc1")
            if i < NREP // 4 - 1: A("s_add_u32 s57, s57, 65536")
        if CX:
            self.pst(7)
            A("s_branch .Lp4_xd")
            A.label(".Lp4_cw")
            A("s_waitcnt vmcnt(1)")
            A("s_branch .Lp4_xd")
        else:
            self.lds_inc(16, 58)
            self.pst(7)
            A("s_branch .Lp4_cx")
            A.label(".Lp4_cw")
            self.lds_spin(".Lp4_spc", 16, 5, True, 58)
            A("s_branch .Lp4_cx")
        A.label(".Lp4_nc")
        A("s_cmp_ge_u32 s73, 120")
        A("s_cbranch_scc1 .Lp4_nl")
        F = list(range(96, 112)); C = list(range(64, 72))
        make_srd(A, 76, 68, 0, 128 * 1024)
        A("v_and_b32 v2, 7, v1")
        A("v_lshrrev_b32 v3, 3, v1")
        A("v_lshl_add_u32 v2, v2, 3, v3")
        A(f"s_lshl_b32 s4, s{W}, 8")
        A(f"s_add_u32 s4, s4, {SCR + 256}")
        A("v_lshlrev_b32 v2, 2, v2")
        A("v_add_u32 v6, s4, v2")
        A("v_lshlrev_b32 v4, 2, v1")
        A(f"v_add_u32 v5, {SCR + 256}, v4")
        A("s_cmp_lt_u32 s73, 64")
        A("s_cbranch_scc1 .Lp4_silu")
        for i in range(8):
            A(f"v_mov_b32 v{F[2*i]}, v{K10}")
            A(f"v_mov_b32 v{F[2*i+1]}, v{K01}")
        A("s_branch .Lp4_fma")
        A.label(".Lp4_silu")
        A("s_waitcnt vmcnt(8)")
        for i in range(4):
            A(f"v_lshlrev_b32 v{C[2*i]}, 16, v{224+i}")
            A(f"v_and_b32 v{C[2*i+1]}, {KM}, v{224+i}")
        self.p4_silu(C, list(range(72, 80)), list(range(80, 96)))
        for i in range(4): A(f"v_cvt_pk_bf16_f32 v{72+i}, v{C[2*i]}, v{C[2*i+1]}")
        self.p4_forms([72, 73, 74, 75], F)
        A.label(".Lp4_fma")
        for i in range(8):
            A(f"s_waitcnt vmcnt({7 - i})")
            if i == 7: self.pst(3)
            for k in range(8):
                A(f"v_dot2_f32_bf16 v{ACC[k]}, v{128+4*i+k//2}, v{F[2*i+(k&1)]}, {'0' if i == 0 else 'v%d' % ACC[k]}")
        self.p4_xl()
        self.p4_red8([ACC], [])
        A(f"ds_write_b32 v6, v{ACC[2]}")
        self.pst(4)
        A("s_mov_b32 s5, s73")
        A("s_movk_i32 s73, 255")
        self.p4_arrive(".Lp4_nl")
        A("s_mov_b32 s73, s5")
        for k in range(4): A(f"ds_read_b32 v{64+k}, v5 offset:{k*256}")
        A("s_waitcnt lgkmcnt(0)")
        A("v_add_f32 v64, v64, v65")
        A("v_add_f32 v66, v66, v67")
        A("v_add_f32 v64, v64, v66")
        A("buffer_store_dword v64, v4, s[76:79], s59 offen sc1")
        A("s_waitcnt vmcnt(1)")
        A("s_branch .Lp4_xd")
        if not CX:
            A.label(".Lp4_cx")
            self.p4_xl()
        A.label(".Lp4_nl")
        A("s_cmp_ge_u32 s70, 192")
        A("s_cbranch_scc1 .Lp4_e1")
        if NW:
            A(f"s_cmp_lt_u32 s70, {64 if LT == 3 else 120}")
            A("s_cbranch_scc1 .Lp4_e0")
            A(f"s_cmp_lg_u32 s{W}, 0")
            A("s_cbranch_scc1 .Lp4_e1")
            A("s_branch .Lp4_e2")
            A.label(".Lp4_e0")
        A(f"s_cmp_lg_u32 s{W}, 4")
        A("s_cbranch_scc1 .Lp4_e1")
        self.p3_nload()
        A.label(".Lp4_e2")
        if NW == 2:
            A("s_mov_b32 s6, 1")
            A("s_waitcnt vmcnt(1)")
            A("s_branch .Lp4_xd")
        else:
            A("s_waitcnt vmcnt(0)")
            self.p4_nonce("b")
        A.label(".Lp4_e1")
        A("s_waitcnt vmcnt(0)")
        A.label(".Lp4_xd")
        A("s_mov_b32 s7, 0x3f803f80")
        self.pst(5)
        if WQP == 0 and NW != 2: self.p4_wq()
        S = list(range(80, 88)); Q = list(range(88, 96))
        for r in range(8):
            for j in range(4):
                x = XR + 4 * r + j
                A(f"v_dot2_f32_bf16 v{S[r]}, v{x}, s7, {'0' if j == 0 else 'v%d' % S[r]}")
                A(f"v_dot2_f32_bf16 v{Q[r]}, v{x}, v{x}, {'0' if j == 0 else 'v%d' % Q[r]}")
        make_srd(A, 76, 68, WS_LL, NREP * 16384)
        A(f"s_and_b32 s57, s{M_}, {NREP - 1}")
        A("s_lshl_b32 s57, s57, 14")
        A(f"s_lshl_b32 s4, s{W}, 10")
        A("s_add_u32 s57, s57, s4")
        A("s_add_u32 s58, s57, 8192")
        self.p4_red8([S, Q], ["row_half_mirror", "quad_perm:[1,0,3,2]", "quad_perm:[2,3,0,1]"])
        m = S[0]; q = Q[0]
        A(f"v_mul_f32 v{m}, {fhex(1/512)}, v{m}")
        A(f"v_mul_f32 v{q}, {fhex(1/512)}, v{q}")
        A(f"v_fma_f32 v{q}, -v{m}, v{m}, v{q}")
        A(f"v_cvt_pk_bf16_f32 v{m}, 0, -v{m}")
        A(f"v_max_f32 v{q}, 0, v{q}")
        A(f"v_cvt_pk_bf16_f32 v{q}, 0, v{q}")
        A(f"v_add_f32 v{q}, {fhex(1e-5)}, v{q}")
        A(f"v_cvt_pk_bf16_f32 v{q}, 0, v{q}")
        A(f"v_sqrt_f32 v{q}, v{q}")
        for r in range(4): A(f"v_readlane_b32 s{8+r}, v{m}, {8*r}")
        A(f"v_cvt_pk_bf16_f32 v{q}, 0, v{q}")
        A(f"v_rcp_f32 v{q}, v{q}")
        for r in range(4, 8): A(f"v_readlane_b32 s{8+r}, v{m}, {8*r}")
        for r in range(8): A(f"v_readlane_b32 s{48+r}, v{q}, {8*r}")
        self.pst(6)
        if NW == 2:
            A("s_cmp_eq_u32 s6, 0")
            A("s_cbranch_scc1 .Lp4_e3")
            A("s_waitcnt vmcnt(0)")
            self.p4_nonce("b")
            A.label(".Lp4_e3")
            if WQP == 0: self.p4_wq()
        PPOS = int(os.environ.get("PPOS", "0"))
        with Cap(A) as cpl:
            A("buffer_load_dwordx4 v[236:239], v12, s[76:79], s57 offen sc1")
            A("buffer_load_dwordx4 v[240:243], v12, s[76:79], s58 offen sc1")
            if LDP == 1: loader()
        def poll1(): A.lines.extend(cpl.out)
        if DPP_:
            A("s_sub_u32 s6, s70, 64")
            A("s_cmp_ge_u32 s6, 128")
            A("s_cbranch_scc1 .Lp4_p0")
            poll1()
            A.label(".Lp4_p0")
        for r in range(8):
            if r == PPOS and not DPP_: poll1()
            T = 96 + 16 * (r & 1); x = XR + 4 * r
            for j in range(8): A(f"v_dot2_f32_bf16 v{T+j}, v{x+j//2}, v{(K10, K01)[j & 1]}, s{8+r}")
            for j in range(8): A(f"v_cvt_pk_bf16_f32 v{T+j}, 0, v{T+j}")
            sp = 48 + (r & ~1)
            for j in range(4): A(f"v_pk_mul_f32 v[{T+2*j}:{T+2*j+1}], v[{T+2*j}:{T+2*j+1}], s[{sp}:{sp+1}] " + ("op_sel:[0,1]" if r & 1 else "op_sel_hi:[1,0]"))
            for j in range(4): A(f"v_cvt_pk_bf16_f32 v{x+j}, v{T+2*j}, v{T+2*j+1}")
        if DPP_:
            A("s_cmp_lt_u32 s6, 128")
            A("s_cbranch_scc1 .Lp4_p1")
            poll1()
            A.label(".Lp4_p1")
        elif PPOS >= 8: poll1()
        self.pst(8)
        ND = 4 if LDP == 1 else 0
        A(f"s_waitcnt vmcnt({ND})")
        self.p4_nget(".Lp4_ng1")
        A("s_mov_b32 s4, 0")
        A(f"s_cmp_ge_u32 s{W}, 4")
        A("s_cselect_b32 s71, 1.0, 0")
        A("s_cselect_b32 s7, 0, 16")
        A(f"s_lshl_b32 s6, s{W}, 9")
        A(f"s_add_u32 s6, s6, {SCR + 4096}")
        A("v_lshlrev_b32 v6, 3, v1")
        A("v_add_u32 v6, s6, v6")
        A.label(".Lp4_chk")
        A("v_xor_b32 v2, s100, v237")
        A("v_xor_b32 v3, s100, v239")
        A("v_xor_b32 v4, s100, v241")
        A("v_xor_b32 v5, s100, v243")
        A("v_or_b32 v2, v2, v3")
        A("v_or_b32 v4, v4, v5")
        A("v_cmp_ne_u32 s[12:13], 0, v2")
        A("v_cmp_ne_u32 vcc, 0, v4")
        A("s_add_u32 s4, s4, 1")
        A("s_or_b64 s[14:15], s[12:13], vcc")
        A("s_cbranch_scc0 .Lp4_ok")
        A("s_cmp_lt_u32 s4, 0x40000")
        A("s_cbranch_scc0 .Lp4_ok")
        if int(os.environ.get("PSL", "0")): A(f"s_sleep {int(os.environ.get('PSL', '0'))}")
        MRL = int(os.environ.get("MRL", "1"))
        if MRL: A("s_mov_b64 exec, s[12:13]")
        A("buffer_load_dwordx4 v[236:239], v12, s[76:79], s57 offen sc1")
        if MRL: A("s_mov_b64 exec, vcc")
        A("buffer_load_dwordx4 v[240:243], v12, s[76:79], s58 offen sc1")
        if MRL: A("s_mov_b64 exec, -1")
        A("s_waitcnt vmcnt(0)")
        A("s_branch .Lp4_chk")
        A.label(".Lp4_ok")
        self.pst(9)
        A("v_add_f32 v236, v236, v240")
        A("v_add_f32 v238, v238, v242")
        A("v_cvt_pk_bf16_f32 v236, 0, v236")
        A("v_cvt_pk_bf16_f32 v238, 0, v238")
        A("v_add_f32 v236, s71, v236")
        A("v_add_f32 v238, s71, v238")
        A("v_cvt_pk_bf16_f32 v2, v236, v238")
        A("v_and_b32 v236, 0xffff, v2")
        A(f"v_and_b32 v237, {KM}, v2")
        A("v_lshlrev_b32 v236, s7, v236")
        A("ds_write_b64 v6, v[236:237]")
        if LDP == 2: loader()
        if WQP == 2: self.p4_wq()
        A("s_waitcnt lgkmcnt(0)")
        A("s_barrier")
        self.pst(10)
        self.pst_flush()
    def w_setup(self, widx, K, rowbytes, woff_code):
        A = self.A
        make_srd(A, S_W, P_W + 2 * widx, 0, K * rowbytes)
        A(f"v_lshrrev_b32 v2, 3, v{L}")
        A(f"v_and_b32 v3, 7, v{L}")
        A(f"v_lshlrev_b32 v{V_W}, 1, v2")
        A(f"v_and_b32 v{V_W}, 4, v{V_W}")
        A(f"v_xor_b32 v3, v3, v{V_W}")
        A("v_lshlrev_b32 v3, 4, v3")
        A(f"v_mul_u32_u24 v2, {rowbytes}, v2") if rowbytes < 64 else None
        A(f"s_movk_i32 s{S_WOFF}, {rowbytes}")
        A(f"v_mul_lo_u32 v2, v2, s{S_WOFF}")
        A(f"v_add_u32 v{V_W}, v2, v3")
        woff_code()
        self.wrb = rowbytes
    def dmaW(self, st, ldsoff, tag="w"):
        A = self.A
        for i in range(2):
            A(f"s_add_u32 m0, s{S_RB}, {ldsoff + i * 1024}")
            A("s_nop 0")
            A(f"buffer_load_dwordx4 v{V_W}, s[{S_W}:{S_W+3}], s{S_WOFF} offen lds")
            self.vm.issue((tag, st))
            A(f"s_add_u32 s{S_WOFF}, s{S_WOFF}, {8 * self.wrb}")
    def pf_g64(self, widx, K, WB, DW, lo=0, hi=99, rot=0):
        A = self.A
        def woff():
            A(f"s_mul_i32 s{S_WOFF}, s{S_WAVE}, {(K // 4) * 1024}")
            A(f"s_lshl_b32 s{S_TMP+11}, s{S_J}, 7")
            A(f"s_add_u32 s{S_WOFF}, s{S_WOFF}, s{S_TMP+11}")
        if lo == 0: self.w_setup(widx, K, 1024, woff)
        self.wrb = 1024
        for st in range(lo, min(DW, hi)): self.dmaW(st, WB + ((st + rot) % DW) * 2048, "wn" if PFE == 3 else "w")
    def pf_k5(self, lo=0, hi=99):
        A = self.A
        def woff():
            A(f"s_min_u32 s{S_WOFF}, s{S_J}, 6")
            A(f"s_lshl_b32 s{S_WOFF}, s{S_WOFF}, 9")
            A(f"s_lshl_b32 s{S_TMP+11}, s{S_WAVE}, 7")
            A(f"s_add_u32 s{S_WOFF}, s{S_WOFF}, s{S_TMP+11}")
        if lo == 0: self.w_setup(2, 512, 3584, woff)
        self.wrb = 3584
        for st in range(lo, min(K5D, hi)): self.dmaW(st, K5RB + st * 2048, "wn" if PFE == 3 else "w")
    def l2pf(self, widx, size):
        A = self.A
        per = size // 32
        A("s_lshr_b32 s78, s2, 3")
        A(f"s_mul_i32 s78, s78, {per}")
        make_srd(A, 80, P_W + 2 * widx, "s78", per)
        A("v_and_b32 v2, 255, v0")
        A("v_lshlrev_b32 v2, 7, v2")
        n = (per + 32767) // 32768
        for i in range(n):
            A(f"s_mov_b32 s78, {i * 32768}")
            A("buffer_load_dword v3, v2, s[80:83], s78 offen")
        return n
    def persist(self):
        A = self.A
        A(f"s_load_dwordx2 s[{P_X}:{P_X+1}], s[0:1], 0")
        A(f"s_load_dwordx2 s[{P_OUT}:{P_OUT+1}], s[0:1], 96")
        A(f"s_load_dwordx2 s[{P_WS}:{P_WS+1}], s[0:1], 112")
        A(f"s_load_dwordx8 s[{P_W}:{P_W+7}], s[0:1], 48")
        A("v_and_b32 v1, 63, v0")
        A("v_lshrrev_b32 v2, 6, v0")
        A("s_nop 0")
        A(f"v_readfirstlane_b32 s{S_WAVE}, v2")
        A(f"s_and_b32 s{S_M}, s2, 31")
        A(f"s_lshr_b32 s{S_J}, s2, 5")
        A(f"s_mov_b32 s{S_MASK}, 0xffff0000")
        A(f"s_mul_i32 s{S_RB}, s{S_WAVE}, {RG}")
        A("s_waitcnt lgkmcnt(0)")
    def kr(self):
        A = self.A; vm = self.vm
        S_X = 8; S_MOD = 12; S_PT = 16; S_X2 = 20; S_H = 24; S_HN = 28; S_H1 = 36
        PR = 64; XR = 16; GA = 24; CB = 32; SB = 40
        A("v_lshlrev_b32 v9, 4, v1")
        A("v_lshlrev_b32 v10, 5, v1")
        A(f"s_lshl_b32 s3, s{S_M}, 3")
        A(f"s_add_u32 s3, s3, s{S_J}")
        A("s_lshl_b32 s3, s3, 3")
        A(f"s_add_u32 s3, s3, s{S_WAVE}")
        A("s_lshl_b32 s3, s3, 10")
        make_srd(A, S_X, P_X, 0, 2 * MB)
        make_srd(A, S_MOD, P_WS, WS_MOD, 4 * MODP)
        A(f"buffer_load_dwordx4 v[{XR}:{XR+3}], v9, s[{S_X}:{S_X+3}], s3 offen"); vm.issue("x")
        def modloads():
            for part in range(2 if V2 else 1):
                for (dst, idx) in ((CB, 4), (GA, 2), (SB, 3)):
                    d = dst + 88 * part
                    A(f"s_movk_i32 s{S_TMP}, {idx*2048 + part*MODP}")
                    A(f"buffer_load_dwordx4 v[{d}:{d+3}], v10, s[{S_MOD}:{S_MOD+3}], s{S_TMP} offen"); vm.issue("x")
                    A(f"buffer_load_dwordx4 v[{d+4}:{d+7}], v10, s[{S_MOD}:{S_MOD+3}], s{S_TMP} offen offset:16"); vm.issue("x")
        if W0M:
            A("v_add_u32 v2, 81920, v10")
            for q, off in enumerate((0, 16384, 49152)):
                A(f"ds_read_b128 v[{24+8*q}:{27+8*q}], v2 offset:{off}")
                A(f"ds_read_b128 v[{28+8*q}:{31+8*q}], v2 offset:{off+16}")
            A("s_waitcnt lgkmcnt(0)")
        else: modloads()
        make_srd(A, S_PT, P_WS, WS_PART, 8 * 2048 * 512 * 2)
        make_srd(A, S_X2, P_WS, WS_X2, 2 * MB)
        make_srd(A, S_H, P_WS, WS_H, 2 * MB)
        make_srd(A, S_HN, P_WS, WS_HN, 2 * MB)
        make_srd(A, S_H1, P_WS, WS_H1, 2052 * 1024)
        if HP:
            A(f"v_lshlrev_b32 v2, 2, v1")
            A(f"v_add_u32 v2, {CNT}, v2")
            A("v_mov_b32 v3, 0")
            A("ds_write_b32 v2, v3")
            A("s_waitcnt lgkmcnt(0)")
        A(f"s_cmp_ge_u32 s{S_WAVE}, 4")
        A("s_cbranch_scc1 .Lkr_nz2")
        A(f"s_lshr_b32 s{S_TMP}, s{S_WAVE}, 1")
        A(f"s_mul_i32 s{S_TMP}, s{S_TMP}, 31")
        A(f"s_cmp_lg_u32 s2, s{S_TMP}")
        A("s_cbranch_scc1 .Lkr_nz")
        A(f"s_lshl_b32 s{S_TMP}, s{S_WAVE}, 10")
        A(f"s_add_u32 s{S_TMP+1}, s{S_TMP}, {2048*1024}")
        A(f"s_cmp_lt_u32 s{S_WAVE}, 2")
        A(f"s_cselect_b32 s{S_TMP}, s{S_TMP}, s{S_TMP+1}")
        for j in range(4): A(f"v_mov_b32 v{12+j}, 0")
        A(f"buffer_store_dwordx4 v[12:15], v9, s[{S_H1}:{S_H1+3}], s{S_TMP} offen sc1")
        A.label(".Lkr_nz")
        PFW1 = int(os.environ.get("PFW1", "1"))
        if PRG:
            PFP = int(os.environ.get("PFP", "1"))
            if PFP == 0: self.pf_g64(0, 512, 24576, 8)
            PFW1 = 0
            A.label(".Lkr_nz2")
            A(f"s_mul_i32 s{S_TMP}, s{S_M}, {7 * 65536}")
            A(f"s_add_u32 s{S_TMP}, s{S_TMP}, s3")
            A(f"v_mov_b32 v4, {MSK}")
            A(f"s_mov_b32 s{S_TMP+1}, 0")
            A(f"s_cmp_lg_u32 s{S_WAVE}, 7")
            A("s_cbranch_scc1 .Lkr_lp")
            A("v_and_b32 v3, 7, v1")
            A("v_lshlrev_b32 v3, 3, v3")
            A("v_add_u32 v3, s96, v3")
            A("s_mov_b32 s99, 0")
            A.label(".Lkr_pp")
            A("buffer_load_dwordx2 v[248:249], v3, s[92:95], 0 offen sc1")
            A("s_add_u32 s99, s99, 1")
            A("s_waitcnt vmcnt(0)")
            A("v_xor_b32 v248, s100, v248")
            A("v_xor_b32 v249, s101, v249")
            A("v_or_b32 v248, v248, v249")
            A("v_cmp_eq_u32 vcc, 0, v248")
            A(f"s_and_b32 s{S_TMP+2}, vcc_lo, 0xff")
            A("s_cmp_lt_u32 s99, 0x40000")
            A(f"s_cselect_b32 s{S_TMP+2}, s{S_TMP+2}, 0xff")
            A(f"v_mov_b32 v5, s{S_TMP+2}")
            A("s_mov_b64 exec, 1")
            A("ds_or_b32 v4, v5")
            A("s_mov_b64 exec, -1")
            A(f"s_cmp_lg_u32 s{S_TMP+2}, 0xff")
            A("s_cbranch_scc1 .Lkr_pp")
            self.stamp(4)
            A.label(".Lkr_lp")
            A("ds_read_b32 v5, v4")
            A("s_waitcnt lgkmcnt(0)")
            A(f"v_readfirstlane_b32 s{S_TMP+2}, v5")
            A(f"s_andn2_b32 s{S_TMP+3}, s{S_TMP+2}, s{S_TMP+1}")
            A("s_cbranch_scc1 .Lkr_new")
            A("s_sleep 1")
            A("s_branch .Lkr_lp")
            A.label(".Lkr_new")
            for g in range(8):
                A(f"s_bitcmp1_b32 s{S_TMP+3}, {g}")
                A(f"s_cbranch_scc0 .Lkr_n{g}")
                A(f"s_add_u32 s{S_TMP+4}, s{S_TMP}, {g * 65536}")
                A(f"buffer_load_dwordx4 v[{PR+4*g}:{PR+4*g+3}], v9, s[{S_PT}:{S_PT+3}], s{S_TMP+4} offen")
                A.label(f".Lkr_n{g}")
            A(f"s_mov_b32 s{S_TMP+1}, s{S_TMP+2}")
            A(f"s_cmp_lg_u32 s{S_TMP+1}, 0xff")
            A("s_cbranch_scc1 .Lkr_lp")
            if PFP == 1:
                A(f"s_cmp_ge_u32 s{S_WAVE}, 4")
                A("s_cbranch_scc1 .Lkr_w0")
                self.pf_g64(0, 512, 24576, 8)
                A("s_waitcnt vmcnt(16)")
                A("s_branch .Lkr_w1")
                A.label(".Lkr_w0")
            A("s_waitcnt vmcnt(0)")
            if PFP == 1: A.label(".Lkr_w1")
            if PFP == 2: PFW1 = 2
            vm.ops = []
        else:
            sv = list(vm.ops)
            if PFW1 == 1: self.pf_g64(0, 512, 24576, 8)
            vm.ops = sv
            A.label(".Lkr_nz2")
            def rebuild():
                make_srd(A, S_PT, P_WS, WS_PART, 8 * 2048 * 512 * 2)
                make_srd(A, S_X2, P_WS, WS_X2, 2 * MB)
                make_srd(A, S_X, P_X, 0, 2 * MB)
                make_srd(A, S_MOD, P_WS, WS_MOD, 4 * MODP)
            self.poll(0, after=rebuild)
            A("s_barrier")
            self.stamp(4)
            PL = int(os.environ.get("PL", "1"))
            if PL:
                A(f"s_mul_i32 s{S_TMP}, s{S_M}, {7 * 65536}")
                A(f"s_add_u32 s{S_TMP}, s{S_TMP}, s3")
            else: A(f"s_mov_b32 s{S_TMP}, s3")
            for g in range(8):
                A(f"buffer_load_dwordx4 v[{PR+4*g}:{PR+4*g+3}], v9, s[{S_PT}:{S_PT+3}], s{S_TMP} offen {os.environ.get('PLF', '')}"); vm.issue(("p", g))
                if g < 7: A(f"s_add_u32 s{S_TMP}, s{S_TMP}, {65536 if PL else 2048*512*2}")
        X = list(range(48, 56)); T = list(range(PR, PR + 12)); XU = list(range(96, 104))
        if PFW1 == 3:
            def woff():
                A(f"s_and_b32 s{S_TMP+9}, s{S_WAVE}, 3")
                A(f"s_lshr_b32 s{S_TMP+8}, s{S_WAVE}, 2")
                A(f"s_lshl_b32 s{S_WOFF}, s{S_TMP+9}, 17")
                A(f"s_lshl_b32 s{S_TMP+11}, s{S_TMP+8}, 16")
                A(f"s_add_u32 s{S_WOFF}, s{S_WOFF}, s{S_TMP+11}")
                A(f"s_lshl_b32 s{S_TMP+11}, s{S_J}, 7")
                A(f"s_add_u32 s{S_WOFF}, s{S_WOFF}, s{S_TMP+11}")
                A(f"s_mov_b32 s{S_TMP+7}, s{S_RB}")
                A(f"s_mul_i32 s{S_RB}, s{S_TMP+9}, {RG}")
                A(f"s_lshl_b32 s{S_TMP+8}, s{S_TMP+8}, 13")
                A(f"s_add_u32 s{S_RB}, s{S_RB}, s{S_TMP+8}")
            self.w_setup(0, 512, 1024, woff)
            for st in range(4): self.dmaW(st, 24576 + st * 2048, "wn")
            A(f"s_mov_b32 s{S_RB}, s{S_TMP+7}")
        if int(os.environ.get("KRX", "0")):
            vm.wait(("p", 0)); self.stamp(25)
            vm.wait(("p", 7)); self.stamp(26)
        vm.wait("x")
        if V2 and not W0M:
            for j in range(0, 24, 2): pk(A, "v_pk_add_f32", GA + j, GA + j, GA + 88 + j)
            for q in range(3): round_multi(A, list(range(GA + 8*q, GA + 8*q + 8)), [56, 57, 58, 59], SM)
        if not W0M:
            for j in range(8): A(f"v_add_f32 v{CB+j}, 1.0, v{CB+j}")
            round_multi(A, list(range(CB, CB + 8)), [56, 57, 58, 59], SM)
        for j in range(4):
            A(f"v_lshlrev_b32 v{XU[2*j]}, 16, v{XR+j}")
            A(f"v_and_b32 v{XU[2*j+1]}, {SM}, v{XR+j}")
        if KRF:
            A("v_mov_b32 v56, 0x3f80")
            A("v_mov_b32 v57, 1.0")
            A("s_mov_b32 s50, 0x3f803f80")
        for g in range(8):
            vm.wait(("p", g))
            if KRF:
                for j in range(8): A(f"v_dot2_f32_bf16 v{X[j]}, v{PR+4*g+j//2}, v{56 + (j & 1)}, " + ("0" if g == 0 else f"v{X[j]}"))
            elif g == 0:
                for j in range(4):
                    A(f"v_lshlrev_b32 v{X[2*j]}, 16, v{PR+j}")
                    A(f"v_and_b32 v{X[2*j+1]}, {SM}, v{PR+j}")
            else:
                U = 136 + 8 * (g & 1)
                for j in range(4):
                    p = PR + 4 * g + j
                    A(f"v_lshlrev_b32 v{U+2*j}, 16, v{p}")
                    A(f"v_and_b32 v{U+2*j+1}, {SM}, v{p}")
                for j in range(0, 8, 2): pk(A, "v_pk_add_f32", X[j], X[j], U + j)
        self.stamp(23)
        if PFW1 == 2:
            A(f"s_cmp_ge_u32 s{S_WAVE}, 4")
            A("s_cbranch_scc1 .Lkr_nz3")
            self.pf_g64(0, 512, 24576, 8)
            A.label(".Lkr_nz3")
        round_multi(A, X, T[5:9], SM)
        for j in range(0, 8, 2): pk(A, "v_pk_mul_f32", X[j], X[j], GA + j)
        round_multi(A, X, T[5:9], SM)
        for j in range(0, 8, 2): pk(A, "v_pk_add_f32", X[j], X[j], XU[j])
        pack8(A, X, XR)
        A(f"buffer_store_dwordx4 v[{XR}:{XR+3}], v9, s[{S_X2}:{S_X2+3}], s3 offen sc1")
        if KRF:
            ln_pk(A, XR, X, 58, 59, 56, 57, 50, 52, 54, SM)
            round_multi(A, X, T[5:9], SM)
        else:
            for j in range(4):
                A(f"v_lshlrev_b32 v{X[2*j]}, 16, v{XR+j}")
                A(f"v_and_b32 v{X[2*j+1]}, {SM}, v{XR+j}")
            ln_rows(A, [(X, T)], SM)
        for j in range(0, 8, 2): pk(A, "v_pk_mul_f32", X[j], X[j], CB + j)
        round_multi(A, X, T[5:9], SM)
        for j in range(0, 8, 2): pk(A, "v_pk_add_f32", X[j], X[j], SB + j)
        pack8(A, X, 80)
        A(f"buffer_store_dwordx4 v[80:83], v9, s[{S_H}:{S_H+3}], s3 offen sc1")
        self.stamp(24)
        if KRF: ln_pk(A, 80, X, 58, 59, 56, 57, 50, 52, 54, SM)
        else:
            for j in range(4):
                A(f"v_lshlrev_b32 v{X[2*j]}, 16, v{80+j}")
                A(f"v_and_b32 v{X[2*j+1]}, {SM}, v{80+j}")
            ln_rows(A, [(X, T)], SM, False)
        pack8(A, X, 84)
        A(f"buffer_store_dwordx4 v[84:87], v9, s[{S_HN}:{S_HN+3}], s3 offen sc1")
    def g64(self, lab, stage, K, a_off, a_size, a_rb, epi, WB, DW, nbr, next_pf, own_pf=None, rot=0, nsched=None, l2=None, split=False):
        A = self.A; vm = self.vm; lg = self.lg
        S_G = 8; S_X1 = 16; S_X2 = 20; S_MOD = 24; S_O = 28; S_ST = 36
        KW = K // 4; NCH = KW // 64; NS = NCH * 4; DG = 3
        VG = [4, 5]; AA = 16; BA = 18
        X1 = 24; X2 = 32; GB = 40
        V_PW = 48; V_PR = 49; V_GA = 51; V_SA = 52; VC = (12, 14, 54)
        ACC = 64; FR = 128
        NBG = int(os.environ.get('NBG', '3'))
        half = HP and K == 512
        SW = S_R8 if half else S_WAVE
        CO = 16 * stage
        def tail_setup():
            if half:
                A(f"s_add_u32 s{S_R8}, s{S_WAVE}, 4")
                A(f"s_and_b32 s{S_R8}, s{S_R8}, 7")
                A(f"v_mov_b32 v{V_CT}, {CNT}")
            A(f"v_lshrrev_b32 v10, 3, v{L}")
            A(f"v_and_b32 v11, 7, v{L}")
            A(f"v_mul_u32_u24 v{V_PR}, {RS}, v10")
            A(f"v_lshl_add_u32 v{V_PR}, v11, 5, v{V_PR}")
            A(f"s_mul_i32 s{S_TMP+3}, s{SW}, {8*RS}")
            A(f"v_add_u32 v{V_PR}, s{S_TMP+3}, v{V_PR}")
            A(f"v_add_u32 v{V_PR+1}, {2*RG}, v{V_PR}")
            A(f"v_lshlrev_b32 v{V_GA}, 4, v11")
            A(f"v_lshl_add_u32 v{V_GA}, v10, 10, v{V_GA}")
            A(f"s_lshl_b32 s{S_TMP+2}, s{S_M}, 16")
            A(f"s_lshl_b32 s{S_TMP+3}, s{SW}, 13")
            A(f"s_add_u32 s{S_TMP+2}, s{S_TMP+2}, s{S_TMP+3}")
            A(f"s_lshl_b32 s{S_TMP+3}, s{S_J}, 7")
            A(f"s_add_u32 s{S_TMP+2}, s{S_TMP+2}, s{S_TMP+3}")
            if epi == "final":
                A(f"v_lshlrev_b32 v{V_SA}, 5, v11")
                make_srd(A, S_X1, P_WS, WS_X1, 2 * MB)
                make_srd(A, S_X2, P_WS, WS_X2, 2 * MB)
                make_srd(A, S_MOD, P_WS, WS_MOD, 4 * MODP)
                make_srd(A, S_O, P_OUT, 0, 2 * MB)
                A(f"buffer_load_dwordx4 v[{X1}:{X1+3}], v{V_GA}, s[{S_X1}:{S_X1+3}], s{S_TMP+2} offen"); vm.issue("e")
                A(f"buffer_load_dwordx4 v[{X2}:{X2+3}], v{V_GA}, s[{S_X2}:{S_X2+3}], s{S_TMP+2} offen"); vm.issue("e")
                A(f"s_lshl_b32 s{S_TMP+3}, s{S_J}, 8")
                A(f"s_add_u32 s{S_TMP+3}, s{S_TMP+3}, {5*2048}")
                for h4 in range(2):
                    A(f"buffer_load_dwordx4 v[{GB+4*h4}:{GB+4*h4+3}], v{V_SA}, s[{S_MOD}:{S_MOD+3}], s{S_TMP+3} offen offset:{h4*16}"); vm.issue("e")
                if V2:
                    A(f"s_add_u32 s{S_TMP+3}, s{S_TMP+3}, {MODP}")
                    for h4 in range(2):
                        A(f"buffer_load_dwordx4 v[{180+4*h4}:{183+4*h4}], v{V_SA}, s[{S_MOD}:{S_MOD+3}], s{S_TMP+3} offen offset:{h4*16}"); vm.issue("e")
            elif epi == "res":
                A(f"v_lshlrev_b32 v{V_SA}, 3, v10")
                A(f"s_lshl_b32 s{S_TMP+6}, s{S_M}, 9")
                A(f"s_lshl_b32 s{S_TMP+3}, s{SW}, 6")
                A(f"s_add_u32 s{S_TMP+6}, s{S_TMP+6}, s{S_TMP+3}")
                A(f"s_lshl_b32 s{S_TMP+3}, s{S_J}, 14")
                A(f"s_add_u32 s{S_TMP+6}, s{S_TMP+6}, s{S_TMP+3}")
                make_srd(A, S_X1, P_WS, WS_H, 2 * MB)
                make_srd(A, S_O, P_WS, WS_X1, 2 * MB)
                make_srd(A, S_ST, P_WS, WS_STAT, 2048 * 128)
                A(f"buffer_load_dwordx4 v[{X1}:{X1+3}], v{V_GA}, s[{S_X1}:{S_X1+3}], s{S_TMP+2} offen"); vm.issue("e")
            else:
                A(f"v_mov_b32 v{VC[0]}, {fhex(GK1)}")
                A(f"v_mov_b32 v{VC[1]}, {fhex(GK0)}")
                A(f"v_mov_b32 v{VC[2]}, 1.0")
                make_srd(A, S_O, P_WS, WS_H1 + 2048, 2 * MB)
        A(f"s_cmp_ge_u32 s{S_WAVE}, 4")
        A(f"s_cbranch_scc1 .L{lab}_help")
        if own_pf and PFE == 2: own_pf(NE, 99)
        A(f"v_lshrrev_b32 v7, 3, v{L}")
        A(f"v_and_b32 v8, 7, v{L}")
        A("v_lshrrev_b32 v9, 1, v7")
        A("v_xor_b32 v9, v8, v9")
        A(f"s_movk_i32 s{S_TMP}, {a_rb}")
        A(f"v_mul_lo_u32 v10, v7, s{S_TMP}")
        A(f"v_lshl_add_u32 v{VG[0]}, v9, 4, v10")
        A("v_xor_b32 v9, 4, v9")
        A(f"v_lshl_add_u32 v{VG[1]}, v9, 4, v10")
        A(f"s_mul_i32 s{S_GOFF}, s{S_M}, {64*a_rb}")
        A(f"s_mul_i32 s{S_TMP}, s{S_WAVE}, {KW*2}")
        A(f"s_add_u32 s{S_GOFF}, s{S_GOFF}, s{S_TMP}")
        if epi == "res":
            A(f"s_lshl_b32 s{S_TMP}, s{S_WAVE}, 2")
            A(f"s_lshr_b32 s{S_TMP+1}, 0x4031, s{S_TMP}")
            A(f"s_and_b32 s{S_TMP+1}, s{S_TMP+1}, 15")
            A(f"s_lshl_b32 s{S_TMP+1}, s{S_TMP+1}, 10")
            A(f"s_add_u32 s{S_GOFF}, s{S_GOFF}, s{S_TMP+1}")
        make_srd(A, S_G, P_WS, a_off, a_size)
        A(f"v_lshrrev_b32 v7, 5, v{L}")
        A(f"v_bfe_u32 v8, v{L}, 4, 1")
        A(f"v_bfe_u32 v9, v{L}, 2, 2")
        A(f"v_and_b32 v10, 1, v{L}")
        A(f"v_bfe_u32 v11, v{L}, 1, 1")
        A("v_lshl_or_b32 v10, v10, 1, v11")
        A("v_lshlrev_b32 v10, 3, v10")
        A("v_lshl_add_u32 v10, v8, 5, v10")
        A("v_lshl_add_u32 v11, v7, 3, v9")
        A("v_lshrrev_b32 v12, 1, v9")
        for nb in range(2):
            A(f"v_xor_b32 v13, {nb}, v12")
            A("v_lshl_add_u32 v13, v13, 6, v10")
            A("v_lshl_add_u32 v13, v11, 7, v13")
            A(f"v_add_u32 v{AA+nb}, s{S_RB}, v13")
        A(f"v_and_b32 v8, 31, v{L}")
        A("v_bfe_u32 v9, v8, 1, 3")
        for ks in range(4):
            A(f"v_or_b32 v10, {2*ks}, v7")
            A("v_xor_b32 v10, v10, v9")
            A("v_lshlrev_b32 v10, 4, v10")
            A("v_lshl_add_u32 v10, v8, 7, v10")
            A(f"v_add_u32 v{BA+ks}, s{S_RB}, v10")
        A(f"v_mul_u32_u24 v{V_PW}, {RS}, v8")
        A(f"v_lshl_add_u32 v{V_PW}, v7, 5, v{V_PW}")
        A(f"v_add_u32 v{V_PW}, s{S_RB}, v{V_PW}")
        tail_setup()
        A("s_barrier")
        self.stamp(1 + 4 * stage + 3)
        def dmaG(ch):
            base = (ch % DG) * 8192
            for i in range(8):
                A(f"s_add_u32 m0, s{S_RB}, {base + i * 1024}")
                A(f"s_add_u32 s{S_TMP}, s{S_GOFF}, {i * 8 * a_rb + ch * 128}")
                A(f"buffer_load_dwordx4 v{VG[i & 1]}, s[{S_G}:{S_G+3}], s{S_TMP} offen lds")
                vm.issue(("g", ch))
        if half:
            HB = 32 * RS
            def dmaGh(h, ch):
                for i in range(4):
                    A(f"s_add_u32 m0, s{S_RB}, {h * HB + ch * 4096 + i * 1024}")
                    A(f"s_add_u32 s{S_TMP}, s{S_GOFF}, {(4 * h + i) * 8 * a_rb + ch * 128}")
                    A(f"buffer_load_dwordx4 v{VG[i & 1]}, s[{S_G}:{S_G+3}], s{S_TMP} offen lds")
                    vm.issue(("g", h, ch))
            WF = 128; BFR = 192
            def readsh(h, step):
                ch, ks = step // 4, step % 4
                if h == 0:
                    for nb in range(2):
                        for q in range(2):
                            d = WF + step * 8 + nb * 4 + q * 2
                            A(f"ds_read_b64_tr_b16 v[{d}:{d+1}], v{AA+nb} offset:{WB + step * 2048 + q * 512}")
                            lg.issue(("f", step))
                d = BFR + step * 4
                A(f"ds_read_b128 v[{d}:{d+3}], v{BA+ks} offset:{h * HB + ch * 4096}")
                lg.issue(("f", step))
            dmaGh(0, 0); dmaGh(0, 1)
            if not split: dmaGh(1, 0); dmaGh(1, 1)
            for h in range(2):
                if h == 1 and split:
                    self.lds_spin(f".L{lab}_rb", 12, 1, False, V_CT)
                    dmaGh(1, 0); dmaGh(1, 1)
                PD = 2 if h == 0 else 4
                for s0 in range(PD):
                    vm.wait(("g", h, 0)); readsh(h, s0)
                for st in range(8):
                    lg.wait(("f", st))
                    with Cap(A) as cp:
                        if st + PD < 8:
                            vm.wait(("g", h, (st + PD) // 4)); readsh(h, st + PD)
                        if h == HPH and nsched and st in nsched: next_pf(*nsched[st])
                    mf = []
                    for nb in range(2):
                        acc = ACC + (nb * 2 + h) * 16
                        c = "0" if st == 0 else f"v[{acc}:{acc+15}]"
                        mf.append(f"v_mfma_f32_32x32x16_bf16 v[{acc}:{acc+15}], v[{WF+st*8+nb*4}:{WF+st*8+nb*4+3}], v[{BFR+st*4}:{BFR+st*4+3}], {c}")
                    interleave(A, mf, cp.out)
                A("s_nop 7")
                A("s_nop 3")
                for nb in range(2):
                    tl = nb * 2 + h
                    for r4 in range(4):
                        A(f"ds_write_b128 v{V_PW}, v[{ACC+tl*16+r4*4}:{ACC+tl*16+r4*4+3}] offset:{h*HB + (nb*8 + (r4 >> 1)*4 + (r4 & 1))*16}")
                A("s_waitcnt lgkmcnt(0)")
                self.lds_inc(CO + 4 * h, V_CT)
                if h == 0 and HPH == 2 and nsched:
                    for st in range(8): next_pf(*nsched[st])
            vm.wait("e")
            self.lds_spin(f".L{lab}_sb", CO + 4, 4, False, V_CT)
            A(f"s_branch .L{lab}_join")
        else:
            for ch in range(min(DG, NCH)): dmaG(ch)
            def reads(step):
                ch, ks = step // 4, step % 4
                buf = FR + (step % NBG) * 16
                for nb in range(2):
                    for q in range(2):
                        A(f"ds_read_b64_tr_b16 v[{buf+nb*4+q*2}:{buf+nb*4+q*2+1}], v{AA+nb} offset:{WB + ((step + rot) % DW) * 2048 + q * 512}")
                        lg.issue(("f", step))
                for rb in range(2):
                    A(f"ds_read_b128 v[{buf+8+rb*4}:{buf+8+rb*4+3}], v{BA+ks} offset:{(ch % DG) * 8192 + rb * 4096}")
                    lg.issue(("f", step))
            def need(step):
                vm.wait(("w", step)); vm.wait(("g", step // 4))
            for s0 in range(NBG - 1):
                need(s0); reads(s0)
            for st in range(NS):
                lg.wait(("f", st))
                with Cap(A) as cp:
                    if st + DW < NS: self.dmaW(st + DW, WB + ((st + rot) % DW) * 2048)
                    if st % 4 == 3 and st // 4 + DG < NCH: dmaG(st // 4 + DG)
                    if st + NBG - 1 < NS:
                        need(st + NBG - 1); reads(st + NBG - 1)
                    if st + DW >= NS and PFE == 3 and nsched and st in nsched: next_pf(*nsched[st])
                buf = FR + (st % NBG) * 16
                mf = []
                for nb in range(2):
                    for rb in range(2):
                        acc = ACC + (nb * 2 + rb) * 16
                        c = "0" if st == 0 else f"v[{acc}:{acc+15}]"
                        mf.append(f"v_mfma_f32_32x32x16_bf16 v[{acc}:{acc+15}], v[{buf+nb*4}:{buf+nb*4+3}], v[{buf+8+rb*4}:{buf+8+rb*4+3}], {c}")
                interleave(A, mf, cp.out)
            vm.wait("e")
            if not int(os.environ.get("KRX", "0")): self.stamp({1: 25, 2: 26, 4: 27}[stage])
            A("s_nop 7")
            A("s_nop 1")
            for tl in range(4):
                nb, rb = tl >> 1, tl & 1
                for r4 in range(4):
                    A(f"ds_write_b128 v{V_PW}, v[{ACC+tl*16+r4*4}:{ACC+tl*16+r4*4+3}] offset:{rb*32*RS + (nb*8 + (r4 >> 1)*4 + (r4 & 1))*16}")
                if tl == 1: A("s_waitcnt lgkmcnt(0)")
            if next_pf and PFE == 1: next_pf()
            A("s_waitcnt lgkmcnt(0)")
            A(f"s_branch .L{lab}_join")
        A.label(f".L{lab}_help")
        sv = list(vm.ops)
        tail_setup()
        vm.ops = sv
        self.poll(stage, nbr)
        A("s_barrier")
        self.stamp(1 + 4 * stage + 3)
        n = sum(self.l2pf(*x) for x in l2) if l2 else 0
        A(f"s_waitcnt vmcnt({n})")
        if half: self.lds_spin(f".L{lab}_sa", CO, 4, True, V_CT)
        A.label(f".L{lab}_join")
        if not half: A("s_barrier")
        for p in range(4):
            for h in range(2):
                d = ACC + p * 16 + h * 4
                A(f"ds_read_b128 v[{d}:{d+3}], v{V_PR + (p >> 1)} offset:{(p & 1)*RG + h*16}")
        xs = list(range(ACC, ACC + 8)); tp = list(range(72, 80)); t8 = list(range(88, 96))
        b = ACC
        def unpack(src, dst):
            for k in range(4):
                A(f"v_lshlrev_b32 v{dst[2*k]}, 16, v{src+k}")
                A(f"v_and_b32 v{dst[2*k+1]}, {SM}, v{src+k}")
        if epi != "gelu": unpack(X1, tp)
        if epi == "final":
            unpack(X2, list(range(104, 112)))
            if V2:
                for k in range(0, 8, 2): pk(A, "v_pk_add_f32", GB + k, GB + k, 180 + k)
                round_multi(A, list(range(GB, GB + 8)), t8, SM)
        A("s_waitcnt lgkmcnt(4)")
        for e in range(0, 8, 2): pk(A, "v_pk_add_f32", b + e, b + e, b + 16 + e)
        A("s_waitcnt lgkmcnt(0)")
        for e in range(0, 8, 2): pk(A, "v_pk_add_f32", b + 32 + e, b + 32 + e, b + 48 + e)
        for e in range(0, 8, 2): pk(A, "v_pk_add_f32", b + e, b + e, b + 32 + e)
        round_multi(A, xs, t8, SM)
        def store():
            for k in range(4): A(f"v_cvt_pk_bf16_f32 v{56+k}, v{xs[2*k]}, v{xs[2*k+1]}")
            A(f"buffer_store_dwordx4 v[56:59], v{V_GA}, s[{S_O}:{S_O+3}], s{S_TMP+2} offen sc1")
        if epi == "gelu":
            X = xs; T = tp
            for e in range(0, 8, 2): pk(A, "v_pk_mul_f32", T[e], X[e], X[e])
            for e in range(0, 8, 2): pk(A, "v_pk_fma_f32", T[e], T[e], VC[0], VC[1], "op_sel_hi:[1,0,0]")
            for e in range(0, 8, 2): pk(A, "v_pk_mul_f32", T[e], T[e], X[e])
            for e in range(8): A(f"v_exp_f32 v{T[e]}, v{T[e]}")
            for e in range(0, 8, 2): pk(A, "v_pk_add_f32", T[e], T[e], VC[2], None, "op_sel_hi:[1,0]")
            for e in range(8): A(f"v_rcp_f32 v{T[e]}, v{T[e]}")
            A("s_nop 0")
            for e in range(0, 8, 2): pk(A, "v_pk_mul_f32", X[e], X[e], T[e])
            store()
        elif epi == "res":
            for k in range(0, 8, 2): pk(A, "v_pk_add_f32", xs[k], xs[k], tp[k])
            store()
            unpack(56, xs)
            X = xs
            pk(A, "v_pk_mul_f32", tp[0], X[0], X[0])
            pk(A, "v_pk_add_f32", tp[2], X[0], X[2])
            for e in range(2, 8, 2):
                pk(A, "v_pk_fma_f32", tp[0], X[e], X[e], tp[0])
                if e >= 4: pk(A, "v_pk_add_f32", tp[2], tp[2], X[e])
            A(f"v_add_f32 v20, v{tp[2]}, v{tp[3]}")
            A(f"v_add_f32 v21, v{tp[0]}, v{tp[1]}")
            A("s_nop 1")
            for dpp in ("quad_perm:[1,0,3,2]", "quad_perm:[2,3,0,1]", "row_half_mirror"):
                for v in (20, 21):
                    A(f"v_add_f32_dpp v{v}, v{v}, v{v} {dpp} row_mask:0xf bank_mask:0xf")
                A("s_nop 1")
            A("v_and_b32 v10, 7, v1")
            A("v_cmp_eq_u32 vcc, 0, v10")
            A("s_and_saveexec_b64 s[78:79], vcc")
            A(f"buffer_store_dwordx2 v[20:21], v{V_SA}, s[{S_ST}:{S_ST+3}], s{S_TMP+6} offen sc1")
            A("s_mov_b64 exec, s[78:79]")
        else:
            for k in range(0, 8, 2): pk(A, "v_pk_add_f32", xs[k], xs[k], tp[k])
            round_multi(A, xs, t8, SM)
            for k in range(0, 8, 2): pk(A, "v_pk_mul_f32", xs[k], xs[k], GB + k)
            round_multi(A, xs, t8, SM)
            for k in range(0, 8, 2): pk(A, "v_pk_add_f32", xs[k], xs[k], 104 + k)
            store()
    def k5(self, stage, next_pf, own_pf=None):
        A = self.A; vm = self.vm; lg = self.lg
        S_A = 8; S_O = 20; S_ST = 24; S_CS = 28
        VB = [16, 28]; AA = 24; ACC = 64; FQ = 128
        D = K5D
        NB5 = int(os.environ.get('NB5', '3'))
        A(f"s_cmp_lt_u32 s{S_WAVE}, 4")
        A("s_cbranch_scc1 .Lk5_main")
        A(f"s_cmp_eq_u32 s{S_J}, 7")
        A("s_cbranch_scc1 .Lk5_h7")
        self.poll(stage)
        A("s_barrier")
        A("s_barrier")
        A.label(".Lk5_h7")
        if L2PF & 4: self.l2pf(3, 1792 * 1024)
        A("s_branch .Lk5_end")
        A.label(".Lk5_main")
        A(f"s_cmp_eq_u32 s{S_J}, 7")
        A("s_cbranch_scc1 .Lk5_pf")
        if own_pf and PFE == 2: own_pf(NE, 99)
        make_srd(A, S_A, P_WS, WS_X1, 2 * MB)
        make_srd(A, S_ST, P_WS, WS_STAT, 2048 * 128)
        if not CS5: make_srd(A, S_CS, P_WS, WS_CS, 2 * CSP)
        else: A(f"s_mov_b32 s{S_CS}, 0x3f803f80")
        make_srd(A, S_O, P_WS, WS_G, 2048 * 3584)
        A(f"v_lshlrev_b32 v4, 4, v{L}")
        A(f"s_lshl_b32 s{S_TMP}, s{S_M}, 16")
        A(f"s_lshl_b32 s{S_TMP+1}, s{S_WAVE}, 14")
        A(f"s_add_u32 s{S_TMP}, s{S_TMP}, s{S_TMP+1}")
        A(f"s_lshl_b32 s{S_TMP+6}, s{S_J}, 9")
        A(f"s_lshl_b32 s{S_TMP+2}, s{S_WAVE}, 7")
        A(f"s_add_u32 s{S_TMP+6}, s{S_TMP+6}, s{S_TMP+2}")
        A(f"v_lshrrev_b32 v5, 5, v{L}")
        A(f"v_bfe_u32 v7, v{L}, 4, 1")
        A(f"v_bfe_u32 v8, v{L}, 2, 2")
        A(f"v_and_b32 v9, 1, v{L}")
        A(f"v_bfe_u32 v10, v{L}, 1, 1")
        A("v_lshl_or_b32 v9, v9, 1, v10")
        A("v_lshlrev_b32 v9, 3, v9")
        A("v_lshl_add_u32 v9, v7, 5, v9")
        A("v_lshl_add_u32 v10, v5, 3, v8")
        A("v_lshrrev_b32 v11, 1, v8")
        for nb in range(2):
            A(f"v_xor_b32 v12, {nb}, v11")
            A("v_lshl_add_u32 v12, v12, 6, v9")
            A("v_lshl_add_u32 v12, v10, 7, v12")
            A(f"v_add_u32 v{AA+nb}, s{S_RB}, v12")
        A(f"v_and_b32 v13, 31, v{L}")
        A("v_lshrrev_b32 v7, 4, v13")
        A(f"v_mul_u32_u24 v7, {RG // 1024}, v7")
        A("v_and_b32 v8, 15, v13")
        A("v_add_u32 v7, v7, v8")
        for j in range(8):
            A(f"v_or_b32 v8, {2*j}, v5")
            A("v_xor_b32 v8, v8, v13")
            A("v_and_b32 v8, 15, v8")
            A("v_lshlrev_b32 v8, 4, v8")
            A(f"v_lshl_add_u32 v{VB[0]+j}, v7, 10, v8")
            A(f"v_add_u32 v{VB[1]+j}, {2*RG}, v{VB[0]+j}")
        ST = 192; CS = 224
        A("v_lshlrev_b32 v42, 5, v5")
        if CS5:
            A(f"s_add_u32 s{S_TMP+3}, s{S_RB}, 16384")
            A(f"v_add_u32 v42, s{S_TMP+3}, v42")
            A("v_and_b32 v7, 0x13, v13")
            A("v_bfe_u32 v8, v13, 2, 1")
            A("v_lshl_or_b32 v7, v8, 3, v7")
            A("v_bfe_u32 v8, v13, 3, 1")
            A("v_lshl_or_b32 v7, v8, 2, v7")
            A("v_lshlrev_b32 v7, 2, v7")
            A(f"v_add_u32 v43, s{S_TMP+3}, v7")
        C2 = [176, 184, 200, 216]
        def csloads():
            A(f"s_lshl_b32 s{S_TMP+2}, s{S_TMP+6}, 1")
            for part in range(2 if V2 else 1):
                for q in range(4):
                    for h4 in range(2):
                        d = (CS + q * 8 if part == 0 else C2[q]) + 4 * h4
                        A(f"buffer_load_dwordx4 v[{d}:{d+3}], v42, s[{S_CS}:{S_CS+3}], s{S_TMP+2} offen offset:{(16*q+4*h4)*4}"); vm.issue("st")
                A(f"s_add_u32 s{S_TMP+2}, s{S_TMP+2}, {CSP}")
        VS = 36
        A("v_and_b32 v7, 7, v13")
        A(f"s_add_u32 s{S_TMP+3}, s{S_RB}, {K5RB}")
        for j in range(4):
            A(f"v_or_b32 v14, {2*j}, v5")
            A("v_xor_b32 v14, v14, v7")
            A("v_lshlrev_b32 v14, 4, v14")
            A("v_lshl_add_u32 v14, v13, 7, v14")
            A(f"v_add_u32 v{VS+j}, s{S_TMP+3}, v14")
        A(f"v_lshrrev_b32 v7, 3, v{L}")
        A(f"v_and_b32 v14, 7, v{L}")
        A(f"v_xor_b32 v{VS+4}, v14, v7")
        A(f"v_lshlrev_b32 v{VS+4}, 4, v{VS+4}")
        A(f"v_lshl_add_u32 v{VS+4}, v7, 7, v{VS+4}")
        A(f"v_add_u32 v{VS+4}, s{S_TMP+3}, v{VS+4}")
        A(f"s_movk_i32 s{S_TMP+2}, 3584")
        A(f"v_mul_lo_u32 v7, v7, s{S_TMP+2}")
        A(f"v_lshl_add_u32 v{VS+5}, v14, 4, v7")
        A(f"s_mul_i32 s{S_TMP+4}, s{S_M}, {64*3584}")
        A(f"s_add_u32 s{S_TMP+4}, s{S_TMP+4}, s{S_TMP+6}")
        A(f"s_add_u32 s{S_TMP+5}, s{S_TMP+4}, {32*3584}")
        A("v_lshlrev_b32 v7, 3, v13")
        A("v_lshl_add_u32 v7, v5, 16, v7")
        A(f"s_lshl_b32 s{S_TMP+7}, s{S_M}, 9")
        A("s_barrier")
        self.stamp(1 + 4 * stage + 3)
        for i in range(16):
            t = 8 + (i & 1)
            A(f"v_xor_b32 v{t}, {i << 4}, v4")
            A(f"s_add_u32 m0, s{S_RB}, {i * 1024}")
            A(f"s_add_u32 s{S_TMP+2}, s{S_TMP}, {i * 1024}")
            A(f"buffer_load_dwordx4 v{t}, s[{S_A}:{S_A+3}], s{S_TMP+2} offen lds")
            vm.issue("act")
        for q in range(4):
            A(f"s_add_u32 s{S_TMP+3}, s{S_TMP+7}, {q*16384}")
            for rb in range(2):
                A(f"buffer_load_dwordx2 v[{ST+16*rb+2*q}:{ST+16*rb+2*q+1}], v7, s[{S_ST}:{S_ST+3}], s{S_TMP+3} offen offset:{rb*256}"); vm.issue("st")
        vm.wait("act")
        A("s_barrier")
        self.stamp(29)
        def reads(step):
            buf = FQ + (step % NB5) * 16
            for nb in range(2):
                for q in range(2):
                    A(f"ds_read_b64_tr_b16 v[{buf+nb*4+q*2}:{buf+nb*4+q*2+1}], v{AA+nb} offset:{K5RB + (step % D) * 2048 + q * 512}")
                    lg.issue(("f", step))
            for rb in range(2):
                A(f"ds_read_b128 v[{buf+8+rb*4}:{buf+8+rb*4+3}], v{VB[rb] + (step & 7)} offset:{(step >> 3) * 256}")
                lg.issue(("f", step))
        PKC = [[44, 46, 48, 50], [52, 54, 56, 58]]
        E = []
        for stg in range(17):
            for rb in range(2):
                b = ST + 16 * rb; c = PKC[rb]
                E.append([f"v_add_f32 v{b}, v{b}, v{b+2}", f"v_add_f32 v{b+1}, v{b+1}, v{b+3}",
                          f"v_add_f32 v{b+4}, v{b+4}, v{b+6}", f"v_add_f32 v{b+5}, v{b+5}, v{b+7}",
                          f"v_add_f32 v{b}, v{b}, v{b+4}", f"v_add_f32 v{b+1}, v{b+1}, v{b+5}",
                          f"v_mov_b32 v{b+2}, v{b}", f"v_mov_b32 v{b+3}, v{b+1}", "s_nop 1",
                          f"v_permlane32_swap_b32 v{b}, v{b+2}", f"v_permlane32_swap_b32 v{b+1}, v{b+3}", "s_nop 1",
                          f"v_add_f32 v{b}, v{b}, v{b+2}", f"v_add_f32 v{b+1}, v{b+1}, v{b+3}",
                          f"v_mul_f32 v{c[0]}, {fhex(-1/512)}, v{b}", f"v_mul_f32 v{b+1}, {fhex(1/512)}, v{b+1}",
                          f"v_fma_f32 v{b+1}, -v{c[0]}, v{c[0]}, v{b+1}"][stg])
        for stg in range(9):
            for rb in range(2):
                b = ST + 16 * rb; c = PKC[rb]
                E.append([f"v_max_f32 v{b+1}, 0, v{b+1}", f"v_add_f32 v{b+1}, {fhex(1e-5)}, v{b+1}",
                          f"v_rsq_f32 v{b+2}, v{b+1}", f"v_sqrt_f32 v{c[3]}, v{b+1}", "s_nop 0",
                          f"v_mul_f32 v{c[2]}, {fhex(GK0)}, v{b+2}", f"v_mul_f32 v{c[1]}, v{b+2}, v{b+2}",
                          f"v_mul_f32 v{c[1]}, v{c[1]}, v{b+2}", f"v_mul_f32 v{c[1]}, {fhex(GK1)}, v{c[1]}"][stg])
        if V2 and not CS5:
            for q in range(4):
                for e in range(8): E.append(f"v_add_f32 v{CS+8*q+e}, v{CS+8*q+e}, v{C2[q]+e}")
        for s0 in range(NB5 - 1):
            vm.wait(("w", s0)); reads(s0)
        k = 0
        for ks in range(32):
            lg.wait(("f", ks))
            with Cap(A) as cp:
                if ks + NB5 - 1 < 32:
                    vm.wait(("w", ks + NB5 - 1)); reads(ks + NB5 - 1)
                if ks + D < 32: self.dmaW(ks + D, K5RB + (ks % D) * 2048)
                elif PFE == 3 and ks == 21: next_pf(0, 1)
                elif PFE == 3 and ks >= 26: next_pf(ks - 25, ks - 24)
                if ks == 1 and not CS5: csloads()
                if CS5:
                    bf_ = FQ + (ks % NB5) * 16
                    dl = [f"v_dot2_f32_bf16 v{176+nb}, v{bf_+nb*4+j}, s{S_CS}, " + ("0" if ks == 0 and j == 0 else f"v{176+nb}") for j in range(4) for nb in range(2)]
                    if ks < 31:
                        for d_ in dl: A(d_)
                    else:
                        A("v_mov_b32 v178, v176")
                        A("v_mov_b32 v179, v177")
                        A("s_nop 1")
                        A("v_permlane32_swap_b32 v176, v178")
                        A("v_permlane32_swap_b32 v177, v179")
                        A("s_nop 1")
                        A("v_add_f32 v176, v176, v178")
                        A("v_add_f32 v177, v177, v179")
                        A("ds_write_b32 v43, v176")
                        A("ds_write_b32 v43, v177 offset:128")
                        A("s_waitcnt lgkmcnt(0)")
                        for q in range(4):
                            for h4 in range(2):
                                d = CS + q * 8 + 4 * h4
                                A(f"ds_read_b128 v[{d}:{d+3}], v42 offset:{(16*q+4*h4)*4}")
                if 14 <= ks < 28:
                    if ks == 14: vm.wait("st")
                    upto = len(E) * (ks - 13) // 14
                    while k < upto: A(E[k]); k += 1
            buf = FQ + (ks % NB5) * 16
            mf = []
            for nb in range(2):
                for rb in range(2):
                    acc = ACC + (nb * 2 + rb) * 16
                    c = "0" if ks == 0 else f"v[{acc}:{acc+15}]"
                    mf.append(f"v_mfma_f32_32x32x16_bf16 v[{acc}:{acc+15}], v[{buf+nb*4}:{buf+nb*4+3}], v[{buf+8+rb*4}:{buf+8+rb*4+3}], {c}")
            if CS5 and ks == 31:
                for d_ in dl: A(d_)
                A("s_nop 1")
            interleave(A, mf, cp.out)
        if CS5: A("s_waitcnt lgkmcnt(0)")
        self.stamp(28)
        if PFE == 1: next_pf()
        else:
            A("s_nop 7"); A("s_nop 3")
        def flush5(rb):
            A("s_waitcnt lgkmcnt(0)")
            for i in range(4):
                A(f"ds_read_b128 v[{192+16*rb+4*i}:{192+16*rb+4*i+3}], v{VS+4} offset:{rb*4096 + i*1024}")
        def store5(rb):
            for i in range(4):
                if rb == 1: A(f"s_waitcnt lgkmcnt({3-i})")
                A(f"s_add_u32 s{S_TMP+3}, s{S_TMP+4+rb}, {i*8*3584}")
                A(f"buffer_store_dwordx4 v[{192+16*rb+4*i}:{192+16*rb+4*i+3}], v{VS+5}, s[{S_O}:{S_O+3}], s{S_TMP+3} offen sc1")
        for rb in range(2):
            for nb in range(2):
                acc = ACC + (nb * 2 + rb) * 16
                if rb == 1 and nb == 1:
                    A("s_waitcnt lgkmcnt(2)")
                    store5(0)
                for mp in range(2):
                    d = 160 + (nb * 4 + rb * 2 + mp) * 4
                    xs = [acc + 8 * mp + e for e in range(8)]
                    ts = list(range(128, 136)); cs = CS + (nb * 2 + mp) * 8; c = PKC[rb]
                    for e in range(0, 8, 2): pk(A, "v_pk_fma_f32", xs[e], cs + e, c[0], xs[e], "op_sel_hi:[1,0,1]")
                    for e in range(0, 8, 2): pk(A, "v_pk_mul_f32", ts[e], xs[e], xs[e])
                    for e in range(0, 8, 2): pk(A, "v_pk_fma_f32", ts[e], ts[e], c[1], c[2], "op_sel_hi:[1,0,0]")
                    for e in range(0, 8, 2): pk(A, "v_pk_mul_f32", ts[e], ts[e], xs[e])
                    for t in ts: A(f"v_exp_f32 v{t}, v{t}")
                    for e in range(0, 8, 2): pk(A, "v_pk_fma_f32", ts[e], ts[e], c[3], c[3], "op_sel_hi:[1,0,0]")
                    for t in ts: A(f"v_rcp_f32 v{t}, v{t}")
                    A("s_nop 0")
                    for e in range(0, 8, 2): pk(A, "v_pk_mul_f32", xs[e], xs[e], ts[e])
                    for e in range(0, 8, 2): A(f"v_cvt_pk_bf16_f32 v{d+e//2}, v{xs[e]}, v{xs[e+1]}")
                    A(f"ds_write_b128 v{VS+2*nb+mp}, v[{d}:{d+3}] offset:{rb*4096}")
            flush5(rb)
        store5(1)
        A("s_branch .Lk5_end")
        A.label(".Lk5_pf")
        if PFE in (1, 3): next_pf(alt=True)
        A.label(".Lk5_end")

def gen_km(A):
    name = "k1_kernel"
    M = Mega(A)
    def pre():
        if MT or HD:
            M.persist(); M.stamp(0); M.vm.ops = []
        if ONE: M.pro_pre()
    if V4: K1.gen_k1(A, emb=True, pre=pre, hookA=M.p4_a, hookB=M.p4_b, v2=True, hookC=M.p2_c)
    elif V3: K1.gen_k1(A, emb=True, pre=pre, hookA=M.p3_a, hookB=M.p3_b, v2=True, hookC=M.p2_c)
    elif V2: K1.gen_k1(A, emb=True, pre=pre, hookA=M.p2_a, hookB=M.p2_b, v2=True, hookC=M.p2_c)
    elif ONE: K1.gen_k1(A, emb=True, pre=pre, hookA=M.pro_a, hookB=M.pro_b)
    else: K1.gen_k1(A, emb=True, pre=pre)
    M.persist()
    M.transition(0)
    M.kr()
    M.transition(1)
    pf4 = lambda lo=0, hi=99: M.pf_g64(1, 512, 24576, 8, lo, hi)
    pf6 = lambda lo=0, hi=99, alt=False: M.pf_g64(3, 1792, 26624, 7, lo, hi, 6)
    M.g64("k3", 1, 512, WS_HN, 2 * MB, 1024, "gelu", 24576, 8, False, pf4, None, 0, {st: (st, st + 1) for st in range(8)}, [(2, 1792 * 1024)] if L2PF & 1 else None)
    M.transition(2, pf4)
    M.g64("k4", 2, 512, WS_H1, 2052 * 1024, 1024, "res", 24576, 8, True, M.pf_k5, pf4, 0, {st: ((0, 4) if st == 0 else (st + 3, st + 4)) for st in range(8)}, [(3, 1792 * 1024)] if L2PF & 2 else None)
    M.transition(3, M.pf_k5)
    M.k5(3, pf6, M.pf_k5)
    M.transition(4, pf6)
    M.g64("k6", 4, 1792, WS_G, 2048 * 3584, 3584, "final", 26624, 7, False, None, pf6, 6)
    M.stamp(21)
    if MT or HD: A("s_waitcnt vmcnt(0)")
    M.stamp(22)
    A("s_endpgm")
    A.raw(kernel_desc(name, 256, 102, 256))
    return (name, (256, 1, 1), (512, 1, 1), 163840)
```

```python
from asmlib import *
from gen_k0 import *
import gen_k1 as K1
from gen_k1 import Cnt
from gen_ka import ln_rows, round_multi, pack8, GK0, GK1
from gen_g64 import WS_STAT, WS_CS
import os
SPAN = int(os.environ.get("SPAN", "0"))
MT = int(os.environ.get("MT", "0")) or SPAN
HD = int(os.environ.get("HD", "0"))
PT = int(os.environ.get("PT", "0"))
TLW = int(os.environ.get("TLW", "0"))
MP = int(os.environ.get("MP", "1"))
RM = int(os.environ.get("RM", "1"))
XS = int(os.environ.get("XS", "1"))
HP = int(os.environ.get("HP", "0"))
SPOLL = int(os.environ.get("SPOLL", "1"))
HPH = int(os.environ.get("HPH", "0"))
CNT = 17408
S_R8 = 46; V_CT = 53
PRG = int(os.environ.get("PRG", "0"))
MSK = 83968
WQF = int(os.environ.get("WQF", "0"))
W0M = int(os.environ.get("MEGA", "6")) >= 5 and int(os.environ.get("W0M", "1"))
EB = int(os.environ.get("EB", "0"))
DLY = int(os.environ.get("DLY", "1"))
WQE = int(os.environ.get("WQE", "0"))
ONE = int(os.environ.get("MEGA", "6")) >= 4
V2 = int(os.environ.get("MEGA", "6")) >= 5
V3 = int(os.environ.get("MEGA", "6")) >= 6
V4 = int(os.environ.get("MEGA", "6")) == 7
LDP = int(os.environ.get("LDP", "1"))
WQP = int(os.environ.get("WQP", "0"))
CX = int(os.environ.get("CX", "0"))
NW = int(os.environ.get("NW", "0"))
XRT = int(os.environ.get("XRT", "1"))
XH = int(os.environ.get("XH", "1"))
KFB = int(os.environ.get("KFB", "6"))
XL = int(os.environ.get("XL", "0"))
DPP_ = int(os.environ.get("DPP_", "0"))
LT = int(os.environ.get("LT", "3" if V4 else "0"))
CSM = int(os.environ.get("CSM", "2"))
CS5 = LT == 3 and CSM == 1
CS6 = LT == 3 and CSM == 2
WS_CS2 = WS_FLAG + 0x100000
NREP = int(os.environ.get("NREP", "32"))
WS_LL = WS_FLAG + 0x40000
MODP = 12288; CSP = 8192
FP = WS_FLAG + 0x20000; FQ_ = WS_FLAG + 0x30000
S_WAVE = 40; S_M = 41; S_J = 42; S_MASK = 43; S_RB = 44; S_GOFF = 45; S_TMP = 48; S_WOFF = 58
S_W = 32; V_W = 6
P_X = 60; P_OUT = 62; P_WS = 68; P_W = 84
SM = f"s{S_MASK}"
L = 1
RG = 40960; RS = 272
K5RB = 18432; K5D = 11
L2PF = int(os.environ.get('L2PF', '0'))
PFE = int(os.environ.get('PFE', '3'))
NE = int(os.environ.get('NE', '3')) if PFE == 2 else 0

def pk(A, op, d, a, b, c=None, sel=""):
    ops = ", ".join(f"v[{x}:{x+1}]" for x in ((d, a, b) if c is None else (d, a, b, c)))
    A(f"{op} {ops} {sel}".rstrip())

RC1 = int(os.environ.get("RC1", "1" if V4 else "0"))
KRF = int(os.environ.get("KRF", "1" if V4 else "0"))
_round_multi = round_multi
def round_multi(A, xs, ts, smask):
    if not RC1: return _round_multi(A, xs, ts, smask)
    for x in xs: A(f"v_cvt_pk_bf16_f32 v{x}, 0, v{x}")
def ln_pk(A, P, X, m, q, K10, K01, s1, smu, sr, smask):
    for j in range(4):
        A(f"v_dot2_f32_bf16 v{m}, v{P+j}, s{s1}, " + ("0" if j == 0 else f"v{m}"))
        A(f"v_dot2_f32_bf16 v{q}, v{P+j}, v{P+j}, " + ("0" if j == 0 else f"v{q}"))
    A("s_nop 1")
    for d in ("quad_perm:[1,0,3,2] row_mask:0xf", "quad_perm:[2,3,0,1] row_mask:0xf", "row_half_mirror row_mask:0xf", "row_mirror row_mask:0xf",
              "row_bcast:15 row_mask:0xa", "row_bcast:31 row_mask:0xc"):
        for v in (m, q): A(f"v_add_f32_dpp v{v}, v{v}, v{v} {d} bank_mask:0xf")
        if "31" not in d: A("s_nop 0")
    A(f"v_mul_f32 v{m}, {fhex(1/512)}, v{m}")
    A(f"v_mul_f32 v{q}, {fhex(1/512)}, v{q}")
    A(f"v_fma_f32 v{q}, -v{m}, v{m}, v{q}")
    A(f"v_cvt_pk_bf16_f32 v{m}, 0, -v{m}")
    A(f"v_max_f32 v{q}, 0, v{q}")
    A(f"v_readlane_b32 s{smu}, v{m}, 63")
    A(f"v_cvt_pk_bf16_f32 v{q}, 0, v{q}")
    A(f"v_add_f32 v{q}, {fhex(1e-5)}, v{q}")
    A(f"v_cvt_pk_bf16_f32 v{q}, 0, v{q}")
    A(f"v_sqrt_f32 v{q}, v{q}")
    for j in range(4): A(f"v_dot2_f32_bf16 v{X[j]}, v{P+j//2}, v{(K10, K01)[j & 1]}, s{smu}")
    A(f"v_cvt_pk_bf16_f32 v{q}, 0, v{q}")
    A(f"v_rcp_f32 v{q}, v{q}")
    for j in range(4, 8): A(f"v_dot2_f32_bf16 v{X[j]}, v{P+j//2}, v{(K10, K01)[j & 1]}, s{smu}")
    A(f"v_readlane_b32 s{sr}, v{q}, 63")
    for j in range(8): A(f"v_cvt_pk_bf16_f32 v{X[j]}, 0, v{X[j]}")
    for j in range(0, 8, 2): A(f"v_pk_mul_f32 v[{X[j]}:{X[j]+1}], v[{X[j]}:{X[j]+1}], s[{sr}:{sr+1}] op_sel_hi:[1,0]")
FLN = int(os.environ.get("FLN", "2"))
_ln_slow = ln_rows
def ln_fast(A, R, smask, final_round=True):
    for X, T in R:
        assert X[0] % 2 == 0 and T[0] % 2 == 0
        pk(A, "v_pk_add_f32", T[0], X[0], X[2]); pk(A, "v_pk_mul_f32", T[2], X[0], X[0])
        pk(A, "v_pk_add_f32", T[4], X[4], X[6]); pk(A, "v_pk_mul_f32", T[6], X[2], X[2])
    for X, T in R:
        pk(A, "v_pk_fma_f32", T[2], X[4], X[4], T[2]); pk(A, "v_pk_fma_f32", T[6], X[6], X[6], T[6])
        pk(A, "v_pk_add_f32", T[0], T[0], T[4])
    for X, T in R:
        pk(A, "v_pk_add_f32", T[2], T[2], T[6])
        A(f"v_add_f32 v{T[0]}, v{T[0]}, v{T[1]}")
    for X, T in R:
        A(f"v_add_f32 v{T[1]}, v{T[2]}, v{T[3]}")
    wave_allreduce(A, "v_add_f32", [t for X, T in R for t in (T[0], T[1])], [t for X, T in R for t in (T[2], T[3])], [t for X, T in R for t in (T[4], T[5])])
    for X, T in R:
        A(f"v_mul_f32 v{T[0]}, {fhex(1/512)}, v{T[0]}")
        A(f"v_mul_f32 v{T[1]}, {fhex(1/512)}, v{T[1]}")
    for X, T in R:
        A(f"v_fma_f32 v{T[1]}, -v{T[0]}, v{T[0]}, v{T[1]}")
    for X, T in R:
        A(f"v_max_f32 v{T[1]}, 0, v{T[1]}")
    for X, T in R:
        A(f"v_cvt_pk_bf16_f32 v{T[3]}, v{T[0]}, v{T[1]}")
    for X, T in R:
        A(f"v_and_b32 v{T[1]}, {smask}, v{T[3]}")
        A(f"v_lshlrev_b32 v{T[2]}, 16, v{T[3]}")
    for X, T in R:
        A(f"v_add_f32 v{T[1]}, {fhex(1e-5)}, v{T[1]}")
        for j in range(0, 4, 2): pk(A, "v_pk_add_f32", X[j], X[j], T[2], None, "op_sel_hi:[1,0] neg_lo:[0,1] neg_hi:[0,1]")
    for X, T in R:
        A(f"v_cvt_pk_bf16_f32 v{T[1]}, v{T[1]}, v{T[1]}")
        for j in range(4, 8, 2): pk(A, "v_pk_add_f32", X[j], X[j], T[2], None, "op_sel_hi:[1,0] neg_lo:[0,1] neg_hi:[0,1]")
    for X, T in R:
        A(f"v_lshlrev_b32 v{T[1]}, 16, v{T[1]}")
    for X, T in R:
        A(f"v_sqrt_f32 v{T[0]}, v{T[1]}")
        round_multi(A, X[:4], T[4:6], smask)
    for X, T in R:
        A(f"v_cvt_pk_bf16_f32 v{T[0]}, v{T[0]}, v{T[0]}")
    for X, T in R:
        A(f"v_lshlrev_b32 v{T[0]}, 16, v{T[0]}")
    for X, T in R:
        A(f"v_rcp_f32 v{T[2]}, v{T[0]}")
        round_multi(A, X[4:], T[4:6], smask)
    if FLN == 2:
        for X, T in R:
            for j in range(0, 8, 2): pk(A, "v_pk_mul_f32", X[j], X[j], T[2], None, "op_sel_hi:[1,0]")
    else:
        for X, T in R:
            for h in range(2):
                js = (4 * h, 4 * h + 2)
                for k, j in enumerate(js): pk(A, "v_pk_mul_f32", T[4+2*k], X[j], T[2], None, "op_sel_hi:[1,0]")
                for k, j in enumerate(js): pk(A, "v_pk_fma_f32", X[j], T[4+2*k], T[0], X[j], "op_sel_hi:[1,0,1] neg_lo:[1,0,0] neg_hi:[1,0,0]")
                for k, j in enumerate(js): pk(A, "v_pk_fma_f32", X[j], X[j], T[2], T[4+2*k], "op_sel_hi:[1,0,1]")
    if final_round:
        for X, T in R: round_multi(A, X, T[4:8], smask)
def ln_rows(A, R, smask, final_round=True):
    return ln_fast(A, R, smask, final_round) if FLN else _ln_slow(A, R, smask)

class Cap:
    def __init__(self, A): self.A = A
    def __enter__(self):
        self.sv = self.A.lines; self.A.lines = []; return self
    def __exit__(self, *a):
        self.out = self.A.lines; self.A.lines = self.sv

def interleave(A, mf, fill):
    n = len(mf); k = 0
    for i, m in enumerate(mf):
        A(m)
        upto = (len(fill) * (i + 1) + n - 1) // n
        while upto < len(fill) and upto > 0 and not (fill[upto - 1].lstrip().startswith(("buffer_", "ds_", "v_", "s_waitcnt")) or fill[upto - 1].lstrip().startswith(f"s_add_u32 s{S_WOFF}")): upto += 1
        A.lines.extend(fill[k:upto]); k = max(k, upto)

class Mega:
    def __init__(self, A):
        self.A = A
        self.vm = Cnt(A, "vmcnt", 63); self.lg = Cnt(A, "lgkmcnt", 15)
    def stamp(self, idx):
        if SPAN and idx not in (0, 3, 22): return
        if HD:
            hmap = {0: 2, 3: 3, 4: 4, 7: 5, 8: 6, 11: 7, 12: 8, 15: 9, 16: 10, 19: 11, 20: 12, 21: 13, 22: 14}
            if int(os.environ.get('HK', '0')): hmap = {0: 2, 22: 14}
            if idx not in hmap: return
            A = self.A
            lab = A.newlabel("hd")
            A("s_waitcnt lgkmcnt(0)")
            A("s_load_dwordx2 s[76:77], s[0:1], 104")
            A("s_memrealtime s[70:71]")
            A("s_waitcnt lgkmcnt(0)")
            A("s_mov_b32 s72, s76")
            A("s_mov_b32 s73, s77")
            A("s_mov_b32 s74, 256")
            A("s_mov_b32 s75, 0x00020000")
            A(f"s_lshl_b32 s76, s{S_WAVE}, 8")
            A("s_or_b32 s76, s76, s2")
            A(f"s_cmp_lg_u32 s76, {HD}")
            A(f"s_cbranch_scc1 {lab}")
            A("v_mov_b32 v2, s70")
            A("v_mov_b32 v3, 0")
            A(f"buffer_store_dword v2, v3, s[72:75], 0 offen offset:{4*hmap[idx]}")
            A.label(lab)
            self.lg.ops = []
            return
        if not MT: return
        A = self.A
        A("s_waitcnt lgkmcnt(0)")
        A("s_memrealtime s[70:71]")
        make_srd(A, 72, P_WS, WS_DBG, 32 * MB)
        A("s_lshl_b32 s76, s2, 3")
        A(f"s_add_u32 s76, s76, s{S_WAVE}")
        A("s_lshl_b32 s76, s76, 7")
        A("s_waitcnt lgkmcnt(0)")
        A("v_mov_b32 v2, s70")
        A("v_mov_b32 v3, 0")
        A(f"buffer_store_dword v2, v3, s[72:75], s76 offen offset:{4*idx}")
        self.vm.issue("stamp"); self.lg.ops = []
    def flag_srd(self, stage):
        make_srd(self.A, 92, P_WS, WS_FLAG + stage * 32 * 256, 32 * 256)
    def transition(self, stage, early=None):
        A = self.A
        self.stamp(1 + 4 * stage)
        self.vm.ops = []
        if ONE and stage == 0:
            make_srd(A, 80, P_WS, FQ_, 32 * 1024)
            make_srd(A, 12, P_WS, WS_MOD, 4 * MODP)
            A(f"s_cmp_lg_u32 s{S_WAVE}, {0 if W0M else 7}")
            A("s_cbranch_scc1 .Lw0m_end")
            A(f"s_lshl_b32 s98, s{S_M}, 10")
            A("v_add_u32 v2, 64, v1")
            A(f"v_min_u32 v2, {63 if LT == 3 else 119}, v2")
            A("v_lshlrev_b32 v2, 3, v2")
            A("v_lshlrev_b32 v3, 3, v1")
            if V4 and XH:
                assert LT == 3
                A("s_mov_b32 s99, 0")
                A("v_lshlrev_b32 v4, 3, v1")
                A.label(".Lplq_poll")
                A("buffer_load_dwordx2 v[248:249], v4, s[80:83], s98 offen sc1")
                A("s_add_u32 s99, s99, 1")
                A("s_waitcnt vmcnt(0)")
                A("v_xor_b32 v248, s100, v248")
                A("v_xor_b32 v249, s101, v249")
                A("v_or_b32 v248, v248, v249")
                A("v_cmp_ne_u32 vcc, 0, v248")
                A("s_cmp_lt_u32 s99, 0x40000")
                A("s_cbranch_scc0 .Lplq_done")
                A("s_cbranch_vccz .Lplq_done")
                A(f"s_cmp_lg_u32 s99, {KFB}")
                A("s_cbranch_scc1 .Lplq_poll")
                A("s_bitcmp1_b32 s2, 1")
                A("s_cbranch_scc0 .Lplq_poll")
                A("s_and_b32 s52, s2, 1")
                A("s_lshl_b32 s52, s52, 5")
                A("s_lshr_b32 s53, s2, 3")
                A("s_add_u32 s52, s52, s53")
                A("s_bitcmp1_b64 vcc, s52")
                A("s_cbranch_scc0 .Lplq_poll")
                A("s_and_b32 s53, s52, 1")
                A("s_lshr_b32 s54, s52, 1")
                A("s_add_u32 s54, s54, 16")
                A("s_lshl_b32 s55, s54, 7")
                self.p4_slow("l", 55, 53, 16, 20, 48, SM)
                A(f"s_mul_i32 s53, s53, {MODP}")
                A("s_lshl_b32 s54, s54, 8")
                A("s_add_u32 s53, s53, s54")
                A("v_lshlrev_b32 v2, 2, v2")
                A("buffer_store_dword v114, v2, s[12:15], s53 offen sc1")
                A("v_mov_b32 v70, s100")
                A("v_mov_b32 v71, s101")
                A("v_lshlrev_b32 v3, 10, v1")
                A("s_lshl_b32 s52, s52, 3")
                A("s_waitcnt vmcnt(0)")
                A("s_mov_b32 exec_hi, 0")
                A("buffer_store_dwordx2 v[70:71], v3, s[80:83], s52 offen sc1")
                A("s_mov_b64 exec, -1")
                A("s_branch .Lplq_poll")
                A.label(".Lplq_done")
            else: self.poll64(".Lplq", [(3, 80, "s98"), (2, 80, "s98")])
            if W0M:
                A("v_lshlrev_b32 v10, 5, v1")
                for part in range(2):
                    for q, idx in enumerate((2, 4, 3)):
                        d = 24 + 8 * q + 88 * part
                        A(f"s_movk_i32 s{S_TMP}, {idx*2048 + part*MODP}")
                        A(f"buffer_load_dwordx4 v[{d}:{d+3}], v10, s[12:15], s{S_TMP} offen")
                        A(f"buffer_load_dwordx4 v[{d+4}:{d+7}], v10, s[12:15], s{S_TMP} offen offset:16")
                A("v_add_u32 v10, 81920, v10")
                A("s_waitcnt vmcnt(0)")
                for j in range(0, 24, 2): pk(A, "v_pk_add_f32", 24 + j, 24 + j, 112 + j)
                for q in range(3): round_multi(A, list(range(24 + 8*q, 32 + 8*q)), [56, 57, 58, 59], SM)
                for j in range(8): A(f"v_add_f32 v{32+j}, 1.0, v{32+j}")
                round_multi(A, list(range(32, 40)), [56, 57, 58, 59], SM)
                for q, off in enumerate((0, 16384, 49152)):
                    A(f"ds_write_b128 v10, v[{24+8*q}:{27+8*q}] offset:{off}")
                    A(f"ds_write_b128 v10, v[{28+8*q}:{31+8*q}] offset:{off+16}")
            A.label(".Lw0m_end")
            if CS6:
                A(f"s_cmp_lg_u32 s{S_WAVE}, 1")
                A("s_cbranch_scc1 .Lcs_end")
                A("s_cmp_ge_u32 s2, 224")
                A("s_cbranch_scc1 .Lcs_end")
                make_srd(A, 16, P_W + 4, 0, 512 * 3584)
                make_srd(A, 20, P_WS, WS_CS2, 8 * 1792 * 8)
                A("s_lshr_b32 s48, s2, 3")
                A("s_and_b32 s49, s2, 7")
                A(f"s_mul_i32 s50, s49, {64 * 3584}")
                A("s_lshl_b32 s51, s48, 7")
                A("s_add_u32 s50, s50, s51")
                A("v_and_b32 v2, 7, v1")
                A("v_lshrrev_b32 v3, 3, v1")
                A(f"v_mul_u32_u24 v4, {8 * 3584}, v3")
                A("v_lshl_add_u32 v4, v2, 4, v4")
                for i in range(8):
                    A(f"buffer_load_dwordx4 v[{128+4*i}:{131+4*i}], v4, s[16:19], s50 offen")
                    if i < 7: A("s_add_u32 s50, s50, 3584")
                A("v_lshl_add_u32 v2, v2, 3, v3")
                A("v_lshlrev_b32 v2, 3, v2")
                A(f"s_mul_i32 s49, s49, {1792 * 8}")
                A("s_lshl_b32 s48, s48, 9")
                A("s_add_u32 s48, s48, s49")
                AC = list(range(64, 72))
                for i in range(8):
                    A(f"s_waitcnt vmcnt({7 - i})")
                    U = 64 if i == 0 else 72 + 8 * (i & 1)
                    for j in range(4):
                        A(f"v_lshlrev_b32 v{U+2*j}, 16, v{128+4*i+j}")
                        A(f"v_and_b32 v{U+2*j+1}, {SM}, v{128+4*i+j}")
                    if i:
                        for j in range(8): A(f"v_add_f32 v{64+j}, v{64+j}, v{U+j}")
                A("s_nop 1")
                self.p4_red8([AC], [])
                A("v_mov_b32 v67, s100")
                A("buffer_store_dwordx2 v[66:67], v2, s[20:23], s48 offen sc1")
                A.label(".Lcs_end")
            if PRG:
                A(f"s_cmp_lg_u32 s{S_WAVE}, 1")
                A("s_cbranch_scc1 .Lw1m_end")
                A(f"s_lshl_b32 s{S_TMP}, 1, s{S_J}")
                A(f"v_mov_b32 v2, {MSK}")
                A(f"v_mov_b32 v3, s{S_TMP}")
                A("ds_write_b32 v2, v3")
                A.label(".Lw1m_end")
        if early and NE:
            A(f"s_cmp_ge_u32 s{S_WAVE}, 4")
            A(f"s_cbranch_scc1 .Ltr{stage}_h")
            early(0, NE)
            A(f"s_waitcnt vmcnt({len(self.vm.ops)})")
            A(f"s_branch .Ltr{stage}_j")
            A.label(f".Ltr{stage}_h")
            A("s_waitcnt vmcnt(0)")
            A.label(f".Ltr{stage}_j")
        else:
            A("s_waitcnt vmcnt(0)")
        self.flag_srd(stage)
        A(f"s_lshl_b32 s96, s{S_M}, 8")
        A(f"s_lshl_b32 s97, s{S_J}, {3 if ONE else 2}")
        A("s_add_u32 s97, s97, s96")
        if ONE:
            A("v_mov_b32 v246, s100")
            A("v_mov_b32 v247, s101")
        A("v_mov_b32 v2, 1")
        A("v_mov_b32 v3, s97")
        A("s_waitcnt lgkmcnt(0)")
        self.lg.ops = []
        A("s_barrier")
        A(f"s_cmp_lg_u32 s{S_WAVE}, 7")
        A(f"s_cbranch_scc1 .Lpub{stage}")
        A("s_mov_b64 exec, 1")
        A("buffer_store_dwordx2 v[246:247], v3, s[92:95], 0 offen sc1" if ONE else "buffer_store_dword v2, v3, s[92:95], 0 offen sc1")
        A("s_mov_b64 exec, -1")
        A.label(f".Lpub{stage}")
        self.stamp(1 + 4 * stage + 2)
    def poll(self, stage, nbr=False, check=True, after=None):
        A = self.A
        lab = f".Lpl{stage}"
        if check:
            A(f"s_cmp_lg_u32 s{S_WAVE}, 7")
            A(f"s_cbranch_scc1 {lab}_done")
        A("v_and_b32 v3, 7, v1")
        A(f"v_lshlrev_b32 v3, {3 if ONE else 2}, v3")
        if nbr:
            A("v_bfe_u32 v2, v1, 3, 2")
            A("v_min_u32 v2, 2, v2")
            A(f"v_add_u32 v2, s{S_M}, v2")
            A("v_max_u32 v2, 1, v2")
            A("v_min_u32 v2, 32, v2")
            A("v_subrev_u32 v2, 1, v2")
            A("v_lshl_add_u32 v3, v2, 8, v3")
        else:
            A("v_add_u32 v3, s96, v3")
        A("s_mov_b32 s98, 0")
        NP = int(os.environ.get("NPOLL", "1")); PSL = int(os.environ.get("PSL", "1"))
        if ONE and SPOLL and not nbr:
            A("s_mov_b32 s99, 0")
            A.label(f"{lab}_sp")
            A("s_buffer_load_dwordx16 s[8:23], s[92:95], s96 glc")
            A("s_add_u32 s99, s99, 1")
            A("s_waitcnt lgkmcnt(0)")
            for i in range(8): A(f"s_xor_b64 s[{8+2*i}:{9+2*i}], s[{8+2*i}:{9+2*i}], s[100:101]")
            for i in range(1, 8): A(f"s_or_b64 s[8:9], s[8:9], s[{8+2*i}:{9+2*i}]")
            A(f"s_cbranch_scc0 {lab}_sd")
            A(f"s_and_b32 s98, s99, {SPOLL * 4 - 1}")
            A(f"s_cbranch_scc1 {lab}_sp")
            A("buffer_load_dwordx2 v[248:249], v3, s[92:95], 0 offen sc1")
            A("s_waitcnt vmcnt(0)")
            A("v_xor_b32 v248, s100, v248")
            A("v_xor_b32 v249, s101, v249")
            A("v_or_b32 v248, v248, v249")
            A("v_cmp_ne_u32 vcc, 0, v248")
            A("s_cmp_lt_u32 s99, 0x80000")
            A(f"s_cbranch_scc0 {lab}_sd")
            A(f"s_cbranch_vccnz {lab}_sp")
            A.label(f"{lab}_sd")
            if after: after()
        elif ONE:
            self.poll64(lab + "x", [(3, 92, "0")])
        elif NP == 1:
            A.label(f"{lab}_poll")
            A("buffer_load_dword v2, v3, s[92:95], 0 offen sc1")
            A("s_add_u32 s98, s98, 1")
            A("s_waitcnt vmcnt(0)")
            A("v_cmp_ne_u32 vcc, 1, v2")
            A("s_cmp_lt_u32 s98, 0x40000")
            A(f"s_cbranch_scc0 {lab}_done")
            A(f"s_cbranch_vccnz {lab}_poll")
        else:
            for i in range(NP):
                A(f"buffer_load_dword v{248+i}, v3, s[92:95], 0 offen sc1")
                if PSL and i < NP - 1: A(f"s_sleep {PSL}")
            A.label(f"{lab}_poll")
            for i in range(NP):
                A(f"s_waitcnt vmcnt({NP-1})")
                A(f"v_cmp_ne_u32 vcc, 1, v{248+i}")
                A(f"s_cbranch_vccz {lab}_done")
                A(f"buffer_load_dword v{248+i}, v3, s[92:95], 0 offen sc1")
            A("s_add_u32 s98, s98, 1")
            A("s_cmp_lt_u32 s98, 0x40000")
            A(f"s_cbranch_scc1 {lab}_poll")
        A.label(f"{lab}_done")
    def poll64(self, lab, srcs, cnt=99, slp=0):
        A = self.A
        A(f"s_mov_b32 s{cnt}, 0")
        A.label(f"{lab}_poll")
        if slp: A(f"s_sleep {slp}")
        for i, (va, srd, so) in enumerate(srcs):
            A(f"buffer_load_dwordx2 v[{248+2*i}:{249+2*i}], v{va}, s[{srd}:{srd+3}], {so} offen sc1")
        A(f"s_add_u32 s{cnt}, s{cnt}, 1")
        A("s_waitcnt vmcnt(0)")
        for i in range(len(srcs)):
            A(f"v_xor_b32 v{248+2*i}, s100, v{248+2*i}")
            A(f"v_xor_b32 v{249+2*i}, s101, v{249+2*i}")
        A("v_or_b32 v248, v248, v249")
        for i in range(1, len(srcs)):
            A(f"v_or3_b32 v248, v248, v{248+2*i}, v{249+2*i}")
        A("v_cmp_ne_u32 vcc, 0, v248")
        A(f"s_cmp_lt_u32 s{cnt}, 0x40000")
        A(f"s_cbranch_scc0 {lab}_done")
        A(f"s_cbranch_vccnz {lab}_poll")
        A.label(f"{lab}_done")
    def pst(self, idx):
        if not PT: return
        A = self.A
        A("s_waitcnt lgkmcnt(0)")
        A("s_memrealtime s[38:39]")
        A("s_waitcnt lgkmcnt(0)")
        A(f"v_writelane_b32 v59, s38, {idx}")
    def pst_flush(self):
        if not PT: return
        A = self.A
        make_srd(A, 36, 68, WS_DBG + 16 * MB, 1 * MB)
        A("s_lshl_b32 s57, s2, 3")
        A("s_add_u32 s57, s57, s40")
        A("s_lshl_b32 s57, s57, 6")
        A("v_lshlrev_b32 v2, 2, v1")
        A("s_mov_b64 exec, 0xffff")
        A("buffer_store_dword v59, v2, s[36:39], s57 offen")
        A("s_mov_b64 exec, -1")
    def pro_pre(self):
        A = self.A
        self.pst(0)
        A("s_load_dwordx2 s[4:5], s[0:1], 0")
        A("s_load_dwordx4 s[72:75], s[0:1], 80")
        A("s_load_dwordx2 s[6:7], s[0:1], 104")
        A("s_memrealtime s[70:71]")
        if int(os.environ.get("CPF", "1")):
            A("s_getpc_b64 s[76:77]")
            A.label(".Lpc0")
            A("s_mov_b32 s78, .Lcode_end-.Lpc0")
            A("s_mov_b32 s79, 0x00020000")
            A("s_lshr_b32 s3, s2, 3")
            A("s_mul_i32 s3, s3, 2304")
            A("v_lshlrev_b32 v2, 6, v0")
            A("v_cmp_gt_u32 vcc, 36, v0")
            A("s_and_b64 exec, exec, vcc")
            A("buffer_load_dword v62, v2, s[76:79], s3 offen")
            A("s_mov_b64 exec, -1")
    def pro_a(self):
        A = self.A
        W = K1.S_WAVE; M_ = K1.S_M; G_ = K1.S_G
        self.pst(1)
        make_srd(A, 76, 72, 0, 1024)
        make_srd(A, 80, 74, 0, 512 * 6144)
        make_srd(A, 84, 68, WS_MOD, 3072 * 4)
        A("s_movk_i32 s3, 6144")
        A("s_mov_b32 s59, s2")
        A("s_cmp_lt_u32 s2, 96")
        A("s_cbranch_scc1 .Lpa_mod")
        make_srd(A, 80, 96, 0, 512 * 3584)
        make_srd(A, 84, 68, WS_CS, 1792 * 4)
        A("s_movk_i32 s3, 3584")
        A("s_sub_u32 s59, s2, 96")
        A.label(".Lpa_mod")
        A("s_cmp_ge_u32 s2, 152")
        A("s_cbranch_scc1 .Lpa_nob")
        A("v_and_b32 v2, 3, v0")
        A("v_lshrrev_b32 v3, 2, v0")
        A("v_mul_lo_u32 v4, v3, s3")
        A("v_lshl_add_u32 v4, v2, 4, v4")
        A("v_lshlrev_b32 v5, 1, v3")
        A("s_lshl_b32 s58, s59, 6")
        A("s_lshl_b32 s3, s3, 7")
        for i in range(4):
            A(f"buffer_load_dwordx4 v[{72+4*i}:{75+4*i}], v4, s[80:83], s58 offen")
            if i < 3: A("s_add_u32 s58, s58, s3")
        for i in range(4):
            A(f"buffer_load_ushort v{64+i}, v5, s[76:79], 0 offen offset:{i*256}")
        A.label(".Lpa_nob")
        make_srd(A, 88, 4, 0, 2 * MB)
        A(f"s_lshl_b32 s3, s{M_}, 3")
        A(f"s_add_u32 s3, s3, s{G_}")
        A("s_lshl_b32 s3, s3, 3")
        A(f"s_add_u32 s3, s3, s{W}")
        A("s_lshl_b32 s3, s3, 10")
        A("buffer_load_dwordx4 v[68:71], v12, s[88:91], s3 offen")
        make_srd(A, 76, 6, 0, 256)
        A(f"s_or_b32 s58, s2, s{W}")
        A("s_cmp_lg_u32 s58, 0")
        A("s_cbranch_scc1 .Lpa_non")
        A("s_or_b32 s70, s70, 1")
        A("v_mov_b32 v2, s70")
        A("v_mov_b32 v3, s71")
        A("v_mov_b32 v4, 0")
        A("s_mov_b64 exec, 1")
        A("buffer_store_dwordx2 v[2:3], v4, s[76:79], 0 offen sc1")
        A("s_mov_b64 exec, -1")
        A.label(".Lpa_non")
        if WQE: self.wqpf()
    def wqpf(self):
        A = self.A; W = K1.S_WAVE
        SQ = 88 if WQE else K1.S_WQ
        if WQE: make_srd(A, 88, 64, 0, 4 * MB)
        A("v_lshrrev_b32 v2, 4, v0")
        A("v_and_b32 v3, 15, v0")
        A("v_lshlrev_b32 v3, 6, v3")
        A("v_lshl_add_u32 v2, v2, 13, v3")
        A("s_lshr_b32 s58, s2, 3")
        A("s_lshl_b32 s58, s58, 17")
        A("s_and_b32 s57, s2, 7")
        A("s_lshl_b32 s57, s57, 10")
        A("s_add_u32 s58, s58, s57")
        A(f"s_cmp_ge_u32 s{W}, 4")
        A("s_cbranch_scc1 .Lpa_nopf")
        A(f"buffer_load_dword v255, v2, s[{SQ}:{SQ+3}], s58 offen")
        A.label(".Lpa_nopf")
    def pro_b(self, nyoung, early, w7):
        A = self.A
        W = K1.S_WAVE; M_ = K1.S_M; G_ = K1.S_G; KM = f"s{K1.S_MASK}"
        NY = nyoung
        ACC = list(range(96, 104)); T = list(range(104, 112)); U = list(range(112, 120)); C = [64, 65, 66, 67]
        make_srd(A, 88, 68, WS_XN, 2 * MB)
        self.pst(2)
        A("s_waitcnt vmcnt(0)")
        self.pst(3)
        if not WQE: self.wqpf()
        A("s_cmp_ge_u32 s2, 152")
        A("s_cbranch_scc1 .Lpb_ln")
        A("s_cmp_lt_u32 s2, 96")
        A("s_cbranch_scc1 .Lpb_silu")
        for c in C: A(f"v_mov_b32 v{c}, 1.0")
        A("s_branch .Lpb_fma")
        A.label(".Lpb_silu")
        for i, c in enumerate(C): A(f"v_lshlrev_b32 v{c}, 16, v{c}")
        for i, c in enumerate(C): A(f"v_mul_f32 v{T[i]}, {fhex(-LOG2E)}, v{c}")
        for i, c in enumerate(C): A(f"v_exp_f32 v{T[i]}, v{T[i]}")
        for i, c in enumerate(C): A(f"v_add_f32 v{T[i]}, 1.0, v{T[i]}")
        for i, c in enumerate(C): A(f"v_rcp_f32 v{U[i]}, v{T[i]}")
        for i, c in enumerate(C): A(f"v_mul_f32 v{U[4+i]}, v{c}, v{U[i]}")
        for i, c in enumerate(C): A(f"v_fma_f32 v{T[i]}, -v{U[4+i]}, v{T[i]}, v{c}")
        for i, c in enumerate(C): A(f"v_fma_f32 v{c}, v{T[i]}, v{U[i]}, v{U[4+i]}")
        for i, c in enumerate(C): A(f"v_cvt_pk_bf16_f32 v{T[i]}, v{c}, v{c}")
        for i, c in enumerate(C): A(f"v_lshlrev_b32 v{c}, 16, v{T[i]}")
        A.label(".Lpb_fma")
        for i in range(4):
            for j in range(4):
                w = 72 + 4 * i + j
                A(f"v_lshlrev_b32 v{T[2*j]}, 16, v{w}")
                A(f"v_and_b32 v{T[2*j+1]}, {KM}, v{w}")
            for j in range(8):
                A(f"v_mul_f32 v{ACC[j]}, v{T[j]}, v{C[i]}" if i == 0 else f"v_fmac_f32 v{ACC[j]}, v{T[j]}, v{C[i]}")
        A("s_nop 1")
        for dpp in ("row_ror:8", "row_ror:4"):
            for v in ACC: A(f"v_add_f32_dpp v{v}, v{v}, v{v} {dpp} row_mask:0xf bank_mask:0xf")
        A("v_and_b32 v2, 3, v1")
        A("v_lshrrev_b32 v3, 4, v0")
        A("v_lshlrev_b32 v3, 7, v3")
        A("v_lshl_add_u32 v3, v2, 5, v3")
        A("v_and_b32 v2, 12, v1")
        A("v_cmp_eq_u32 vcc, 0, v2")
        A("s_and_saveexec_b64 s[58:59], vcc") if False else None
        A("s_mov_b64 s[4:5], exec")
        A("s_and_b64 exec, exec, vcc")
        A(f"ds_write_b128 v3, v[{ACC[0]}:{ACC[3]}]")
        A(f"ds_write_b128 v3, v[{ACC[4]}:{ACC[7]}] offset:16")
        A("s_mov_b64 exec, -1")
        A("s_waitcnt lgkmcnt(0)")
        A("s_barrier")
        self.pst(4)
        A(f"s_cmp_lg_u32 s{W}, 7")
        A("s_cbranch_scc1 .Lpb_ln")
        A("v_and_b32 v2, 31, v1")
        A("v_lshlrev_b32 v2, 2, v2")
        A("v_lshrrev_b32 v3, 5, v1")
        A("v_lshl_add_u32 v3, v3, 11, v2")
        for k in range(16): A(f"ds_read_b32 v{120+k}, v3 offset:{k*128}")
        for k in range(8):
            A(f"s_waitcnt lgkmcnt({14-2*k})")
            A(f"v_add_f32 v{120+2*k}, v{120+2*k}, v{121+2*k}")
        for k in range(4): A(f"v_add_f32 v{120+4*k}, v{120+4*k}, v{122+4*k}")
        A("v_add_f32 v120, v120, v124")
        A("v_add_f32 v128, v128, v132")
        A("v_add_f32 v120, v120, v128")
        A("v_mov_b32 v121, v120")
        A("s_nop 1")
        A("v_permlane32_swap_b32 v120, v121")
        A("s_nop 1")
        A("v_add_f32 v120, v120, v121")
        A("s_cmp_ge_u32 s2, 96")
        A("s_cbranch_scc1 .Lpb_nornd")
        round_bf16_1(A, 120, 121)
        A.label(".Lpb_nornd")
        A("s_lshl_b32 s58, s59, 7")
        A("s_mov_b32 exec_hi, 0")
        A("buffer_store_dword v120, v2, s[84:87], s58 offen sc1")
        A("s_mov_b64 exec, -1")
        A.label(".Lpb_ln")
        A("v_mov_b32 v2, 0")
        A(f"s_cmp_lg_u32 s{W}, 7")
        A("s_cbranch_scc1 .Lpb_ln2")
        A("s_mov_b64 exec, 1")
        A("buffer_load_dwordx2 v[136:137], v2, s[76:79], 0 offen sc1")
        A("s_mov_b64 exec, -1")
        A.label(".Lpb_ln2")
        self.pst(5)
        X = list(range(96, 104)); TT = list(range(104, 116))
        for j in range(4):
            A(f"v_lshlrev_b32 v{X[2*j]}, 16, v{68+j}")
            A(f"v_and_b32 v{X[2*j+1]}, {KM}, v{68+j}")
        ln_rows(A, [(X, TT)], KM)
        pack8(A, X, 68)
        A("buffer_store_dwordx4 v[68:71], v12, s[88:91], s3 offen sc1")
        make_srd(A, 80, 68, FP, 32 * 512)
        self.pst(6)
        A(f"s_cmp_lg_u32 s{W}, 7")
        A("s_cbranch_scc1 .Lpb_w")
        A("s_waitcnt vmcnt(1)")
        A("s_mov_b32 s57, 0")
        A.label(".Lpb_nl")
        A("v_readfirstlane_b32 s100, v136")
        A("v_readfirstlane_b32 s101, v137")
        A("s_add_u32 s57, s57, 1")
        A("s_cmp_lg_u32 s100, 0")
        A("s_cbranch_scc1 .Lpb_nd")
        A("s_cmp_lt_u32 s57, 0x40000")
        A("s_cbranch_scc0 .Lpb_nd")
        A("s_mov_b64 exec, 1")
        A("buffer_load_dwordx2 v[136:137], v2, s[76:79], 0 offen sc1")
        A("s_mov_b64 exec, -1")
        A("s_waitcnt vmcnt(0)")
        A("s_branch .Lpb_nl")
        A.label(".Lpb_nd")
        A("v_mov_b32 v136, s100")
        A("v_mov_b32 v137, s101")
        self.pst(7)
        A("s_cmp_ge_u32 s2, 152")
        A("s_cbranch_scc1 .Lpb_w")
        A("v_lshlrev_b32 v3, 9, v1")
        A("s_lshl_b32 s58, s2, 3")
        A("s_cmp_lt_u32 s2, 32")
        A("s_cbranch_scc1 .Lpb_crit")
        make_srd(A, 80, 68, FQ_, 32 * 1024)
        A("v_lshlrev_b32 v3, 10, v1")
        A("s_sub_u32 s58, s58, 256")
        A.label(".Lpb_crit")
        A("s_mov_b32 exec_hi, 0")
        A("buffer_store_dwordx2 v[136:137], v3, s[80:83], s58 offen sc1")
        A("s_mov_b64 exec, -1")
        make_srd(A, 80, 68, FP, 32 * 512)
        A.label(".Lpb_w")
        A("s_waitcnt vmcnt(1)") if False else None
        A("s_waitcnt vmcnt(0)")
        self.pst(8)
        A("s_barrier")
        self.pst(9)
        A(f"s_cmp_lg_u32 s{W}, 7")
        A("s_cbranch_scc1 .Lpb_early")
        A(f"s_lshl_b32 s58, s{M_}, 9")
        A(f"s_lshl_b32 s57, s{G_}, 3")
        A("s_add_u32 s57, s57, 256")
        A("v_mov_b32 v3, s57")
        A("s_mov_b64 exec, 1")
        A("buffer_store_dwordx2 v[136:137], v3, s[80:83], s58 offen sc1")
        A("s_mov_b64 exec, -1")
        A("v_min_u32 v3, 39, v1")
        A("v_lshlrev_b32 v3, 3, v3")
        sv99 = None
        w7()
        self.poll64(".Lplp", [(3, 80, "s58")], cnt=57)
        A("s_branch .Lpb_done")
        A.label(".Lpb_early")
        early()
        A.label(".Lpb_done")
        A("s_barrier")
        self.pst(10)
        self.pst_flush()
    def p2_a(self):
        A = self.A
        W = K1.S_WAVE; M_ = K1.S_M; G_ = K1.S_G
        SCR = K1.STG + 16384
        A("s_waitcnt lgkmcnt(0)")
        self.pst(1)
        make_srd(A, 76, 72, 0, 1024)
        make_srd(A, 80, 74, 0, 512 * 6144)
        make_srd(A, 84, 68, WS_MOD, 4 * MODP)
        make_srd(A, 88, 4, 0, 2 * MB)
        A("s_movk_i32 s3, 6144")
        A("s_and_b32 s4, s2, 15")
        A("s_lshr_b32 s5, s2, 4")
        A("s_lshl_b32 s57, s5, 8")
        A("s_cmp_lt_u32 s2, 64")
        A("s_cbranch_scc1 .Lp2a_dec")
        A("s_sub_u32 s4, s2, 64")
        A("s_and_b32 s5, s4, 1")
        A("s_lshr_b32 s4, s4, 1")
        A("s_lshl_b32 s57, s5, 9")
        A("s_add_u32 s4, s4, 16")
        A("s_cmp_lt_u32 s4, 48")
        A("s_cbranch_scc1 .Lp2a_dec")
        A("s_sub_u32 s4, s4, 48")
        make_srd(A, 80, 96, 0, 512 * 3584)
        make_srd(A, 84, 68, WS_CS, 2 * CSP)
        A("s_movk_i32 s3, 3584")
        A.label(".Lp2a_dec")
        A("s_lshr_b32 s58, s57, 1")
        A("s_mul_i32 s58, s58, s3")
        A("s_lshl_b32 s59, s4, 7")
        A("s_add_u32 s58, s58, s59")
        A("s_lshl_b32 s59, s4, 8")
        A(f"s_movk_i32 s4, {MODP}")
        A("s_cmp_eq_u32 s3, 3584")
        A(f"s_cselect_b32 s4, {CSP}, s4")
        A("s_mul_i32 s4, s4, s5")
        A("s_add_u32 s59, s59, s4")
        A("v_and_b32 v2, 7, v0")
        A("v_bfe_u32 v3, v0, 3, 5")
        A("v_mul_lo_u32 v60, v3, s3")
        A("v_lshl_add_u32 v60, v2, 4, v60")
        A("v_lshlrev_b32 v61, 1, v3")
        A("s_lshl_b32 s70, s3, 5") if False else None
        A("s_lshl_b32 s5, s3, 5")
        A(f"s_cmp_ge_u32 s{W}, 4")
        A("s_cbranch_scc1 .Lp2a_end")
        A("s_cmp_ge_u32 s2, 64")
        A("s_cbranch_scc1 .Lp2a_x")
        self.p2_tload(0)
        A.label(".Lp2a_x")
        A(f"s_lshl_b32 s3, s{M_}, 3")
        A(f"s_add_u32 s3, s3, s{G_}")
        A("s_lshl_b32 s3, s3, 2")
        A(f"s_add_u32 s3, s3, s{W}")
        A("s_lshl_b32 s3, s3, 11")
        A("buffer_load_dwordx4 v[88:91], v12, s[88:91], s3 offen")
        A("buffer_load_dwordx4 v[92:95], v12, s[88:91], s3 offen offset:1024")
        make_srd(A, 88, 6, 0, 256)
        A(f"s_or_b32 s4, s2, s{W}")
        A("s_cmp_lg_u32 s4, 0")
        A("s_cbranch_scc1 .Lp2a_non")
        A("s_or_b32 s70, s70, 1")
        A("v_mov_b32 v2, s70")
        A("v_mov_b32 v3, s71")
        A("v_mov_b32 v4, 0")
        A("s_mov_b64 exec, 1")
        A("buffer_store_dwordx2 v[2:3], v4, s[88:91], 0 offen sc1")
        A("s_mov_b64 exec, -1")
        A.label(".Lp2a_non")
        A(f"v_mov_b32 v2, {SCR + 8192}")
        A("v_mov_b32 v4, 0")
        A("v_mov_b32 v5, 0")
        A("ds_write_b64 v2, v[4:5]")
        A("s_branch .Lp2a_e2")
        A.label(".Lp2a_end")
        if WQF == 1: self.p2_wq()
        if WQF == 2:
            A("s_cmp_lt_u32 s2, 64")
            A("s_cbranch_scc1 .Lp2a_e2") if False else None
            A("s_sleep 4")
            self.p2_wq()
        if TLW:
            A("v_lshlrev_b32 v2, 21, v1")
            A(f"v_add_u32 v2, {(2 << 20) - 128}, v2")
            make_srd(A, 88, 68, 0, 48 * MB if TLW >= 2 else 4 * MB)
            A(f"s_cmp_lg_u32 s{W}, 4")
            A("s_cbranch_scc1 .Lp2a_e2")
            A("buffer_load_dword v252, v2, s[88:91], 0 offen sc1")
            if TLW == 1:
                A(f"s_mov_b32 s4, {WS_FLAG}")
                make_srd(A, 88, 68, 0, WS_FLAG + 2 * MB)
                A("buffer_load_dword v252, v2, s[88:91], s4 offen sc1")
        A.label(".Lp2a_e2")
        if EB:
            A("s_waitcnt lgkmcnt(0)")
            A("s_barrier")
            A(f"s_cmp_lt_u32 s{W}, 4")
            A("s_cbranch_scc1 .Lp2a_e3")
            self.p2_bulk1()
            A.label(".Lp2a_e3")
        A("s_mov_b32 s70, s57")
        A("s_mov_b32 s71, s58")
    def p2_bulk1(self):
        A = self.A; W = K1.S_WAVE
        A("s_sub_u32 s4, s2, 64")
        A("s_cmp_ge_u32 s4, 120")
        A("s_cbranch_scc1 .Lp2_l1")
        self.p2_tload(0); self.p2_tload(1)
        A.label(".Lp2_l1")
        if EB: make_srd(A, K1.S_WQ, 64, 0, 4 * MB)
        if DLY == 1 and not EB:
            A("s_cmp_ge_u32 s2, 64")
            A("s_cbranch_scc1 .Lp2_l3")
        if DLY and not EB:
            self.lds_spin(".Lp2_sd", 4, 4, True)
            A.label(".Lp2_l3")
        if not WQF: self.p2_wq()
    def p2_wq(self):
        A = self.A; W = K1.S_WAVE
        if WQF: make_srd(A, K1.S_WQ, 64, 0, 4 * MB)
        W128 = int(os.environ.get("W128", "0"))
        A("v_and_b32 v4, 255, v0")
        A(f"v_lshrrev_b32 v2, {3 if W128 else 4}, v4")
        A(f"v_and_b32 v3, {7 if W128 else 15}, v4")
        A(f"v_lshlrev_b32 v3, {7 if W128 else 6}, v3")
        A("v_lshl_add_u32 v2, v2, 13, v3")
        A("s_lshr_b32 s36, s2, 3")
        A("s_lshl_b32 s36, s36, 17")
        A("s_and_b32 s37, s2, 7")
        A("s_lshl_b32 s37, s37, 10")
        A("s_add_u32 s36, s36, s37")
        if W128:
            A(f"s_cmp_ge_u32 s{W}, 6")
            A("s_cbranch_scc1 .Lp2_l2")
        A(f"buffer_load_dword v63, v2, s[{K1.S_WQ}:{K1.S_WQ+3}], s36 offen")
        if W128: A.label(".Lp2_l2")
    def p2_tload(self, b):
        A = self.A
        wd = (72, 140)[b]; cd = (64, 156)[b]
        for i in range(4):
            A(f"buffer_load_dwordx4 v[{wd+4*i}:{wd+4*i+3}], v60, s[80:83], s58 offen")
            A("s_add_u32 s58, s58, s5")
        for i in range(4):
            A(f"buffer_load_ushort v{cd+i}, v61, s[76:79], s57 offen offset:{b*256 + i*64}")
    def lds_spin(self, lab, off, target, sleep=False, va=9):
        A = self.A
        A.label(lab)
        if sleep: A("s_sleep 2")
        A(f"ds_read_b32 v3, v{va} offset:{off}")
        A("s_waitcnt lgkmcnt(0)")
        A("v_readfirstlane_b32 s4, v3")
        A(f"s_cmp_lt_u32 s4, {target}")
        A(f"s_cbranch_scc1 {lab}")
    def lds_inc(self, off, va=9):
        A = self.A
        A("v_mov_b32 v3, 1")
        A("s_mov_b64 exec, 1")
        A(f"ds_add_u32 v{va}, v3 offset:{off}")
        A("s_mov_b64 exec, -1")
    def p2_gemv(self, sfx, nb, maybe_ones, col=3):
        A = self.A
        W = K1.S_WAVE; KM = f"s{K1.S_MASK}"; SCR = K1.STG + 16384
        ACC = list(range(96, 104)); T = list(range(104, 112)); U = list(range(112, 128))
        C = [64, 65, 66, 67] + ([156, 157, 158, 159] if nb == 2 else [])
        n = len(C)
        if maybe_ones:
            A("s_cmp_lt_u32 s2, 128")
            A(f"s_cbranch_scc1 .Lp2_silu{sfx}")
            for c in C: A(f"v_mov_b32 v{c}, 1.0")
            A(f"s_branch .Lp2_fma{sfx}")
            A.label(f".Lp2_silu{sfx}")
        for i, c in enumerate(C): A(f"v_lshlrev_b32 v{c}, 16, v{c}")
        for i, c in enumerate(C): A(f"v_mul_f32 v{T[i]}, {fhex(-LOG2E)}, v{c}")
        for i, c in enumerate(C): A(f"v_exp_f32 v{T[i]}, v{T[i]}")
        for i, c in enumerate(C): A(f"v_add_f32 v{T[i]}, 1.0, v{T[i]}")
        for i, c in enumerate(C): A(f"v_rcp_f32 v{U[i]}, v{T[i]}")
        for i, c in enumerate(C): A(f"v_mul_f32 v{U[8+i]}, v{c}, v{U[i]}")
        for i, c in enumerate(C): A(f"v_fma_f32 v{T[i]}, -v{U[8+i]}, v{T[i]}, v{c}")
        for i, c in enumerate(C): A(f"v_fma_f32 v{c}, v{T[i]}, v{U[i]}, v{U[8+i]}")
        for i, c in enumerate(C): A(f"v_cvt_pk_bf16_f32 v{T[i]}, v{c}, v{c}")
        for i, c in enumerate(C): A(f"v_lshlrev_b32 v{c}, 16, v{T[i]}")
        if maybe_ones: A.label(f".Lp2_fma{sfx}")
        for i in range(n):
            for j in range(4):
                w = (72, 140)[i >> 2] + 4 * (i & 3) + j
                A(f"v_lshlrev_b32 v{T[2*j]}, 16, v{w}")
                A(f"v_and_b32 v{T[2*j+1]}, {KM}, v{w}")
            for j in range(8):
                A(f"v_mul_f32 v{ACC[j]}, v{T[j]}, v{C[i]}" if i == 0 else f"v_fmac_f32 v{ACC[j]}, v{T[j]}, v{C[i]}")
        A("v_and_b32 v2, 7, v1")
        A("v_bfe_u32 v3, v0, 4, 4")
        for v in ACC: A(f"v_add_f32_dpp v{v}, v{v}, v{v} row_ror:8 row_mask:0xf bank_mask:0xf")
        A("v_lshlrev_b32 v3, 8, v3")
        A("v_lshl_add_u32 v3, v2, 5, v3")
        A(f"v_add_u32 v3, {SCR}, v3")
        A("v_and_b32 v2, 8, v1")
        A("v_cmp_eq_u32 vcc, 0, v2")
        A("s_and_b64 exec, exec, vcc")
        A(f"ds_write_b128 v3, v[{ACC[0]}:{ACC[3]}]")
        A(f"ds_write_b128 v3, v[{ACC[4]}:{ACC[7]}] offset:16")
        A("s_mov_b64 exec, -1")
        A("s_waitcnt lgkmcnt(0)")
        self.lds_inc(0)
        A(f"s_cmp_lg_u32 s{W}, {col}")
        A(f"s_cbranch_scc1 .Lp2_gd{sfx}")
        self.lds_spin(f".Lp2_sp{sfx}", 0, 4)
        A("v_lshlrev_b32 v2, 2, v1")
        A(f"v_add_u32 v3, {SCR}, v2")
        for k in range(16): A(f"ds_read_b32 v{104+k}, v3 offset:{k*256}")
        for k in range(8):
            A(f"s_waitcnt lgkmcnt({14-2*k})")
            A(f"v_add_f32 v{104+2*k}, v{104+2*k}, v{105+2*k}")
        for k in range(4): A(f"v_add_f32 v{104+4*k}, v{104+4*k}, v{106+4*k}")
        A("v_add_f32 v104, v104, v108")
        A("v_add_f32 v112, v112, v116")
        A("v_add_f32 v68, v104, v112")
        A("buffer_store_dword v68, v2, s[84:87], s59 offen sc1")
        A.label(f".Lp2_gd{sfx}")
    def p2_ln(self):
        A = self.A; KM = f"s{K1.S_MASK}"
        X0 = list(range(96, 104)); X1 = list(range(120, 128)); T0 = list(range(104, 116)); T1 = list(range(128, 140))
        for r, X in enumerate((X0, X1)):
            for j in range(4):
                A(f"v_lshlrev_b32 v{X[2*j]}, 16, v{88+4*r+j}")
                A(f"v_and_b32 v{X[2*j+1]}, {KM}, v{88+4*r+j}")
        ln_rows(A, [(X0, T0), (X1, T1)], KM, False)
        pack8(A, X0, 88); pack8(A, X1, 92)
        A(f"buffer_store_dwordx4 v[88:91], v12, s[{K1.S_XN}:{K1.S_XN+3}], s3 offen sc1")
        A(f"buffer_store_dwordx4 v[92:95], v12, s[{K1.S_XN}:{K1.S_XN+3}], s3 offen offset:1024 sc1")
    def p2_nonce(self, sfx):
        A = self.A
        A("s_mov_b32 s4, 0")
        A.label(f".Lp2_nl{sfx}")
        A("v_readfirstlane_b32 s100, v70")
        A("v_readfirstlane_b32 s101, v71")
        A("s_add_u32 s4, s4, 1")
        A("s_cmp_lg_u32 s100, 0")
        A(f"s_cbranch_scc1 .Lp2_nd{sfx}")
        A("s_cmp_lt_u32 s4, 0x40000")
        A(f"s_cbranch_scc0 .Lp2_nd{sfx}")
        self.p2_nload()
        A("s_waitcnt vmcnt(0)")
        A(f"s_branch .Lp2_nl{sfx}")
        A.label(f".Lp2_nd{sfx}")
        A("v_mov_b32 v70, s100")
        A("v_mov_b32 v71, s101")
    def p2_nload(self):
        A = self.A
        A("v_mov_b32 v2, 0")
        A("s_mov_b64 exec, 1")
        A("buffer_load_dwordx2 v[70:71], v2, s[88:91], 0 offen sc1")
        A("s_mov_b64 exec, -1")
    def p2_pubtask(self, region, base):
        A = self.A
        make_srd(A, 76, 68, region, 32 * 1024)
        A("v_lshlrev_b32 v3, 10, v1")
        A("s_mov_b32 s4, s73" if V3 else f"s_sub_u32 s4, s2, {base}")
        A("s_lshl_b32 s4, s4, 3")
        A("s_mov_b32 exec_hi, 0")
        A("buffer_store_dwordx2 v[70:71], v3, s[76:79], s4 offen sc1")
        A("s_mov_b64 exec, -1")
    def p2_pubxn(self, sfx):
        A = self.A
        self.lds_spin(f".Lp2_sx{sfx}", 4, 3)
        make_srd(A, 76, 68, FP, 32 * 1024)
        A(f"s_lshl_b32 s4, s{K1.S_M}, 10")
        A(f"s_lshl_b32 s5, s{K1.S_G}, 3")
        A("s_add_u32 s5, s5, 512")
        A("v_mov_b32 v3, s5")
        A("s_mov_b64 exec, 1")
        A("buffer_store_dwordx2 v[70:71], v3, s[76:79], s4 offen sc1")
        A("s_mov_b64 exec, -1")
    def p2_b(self, loader, cfix, xn_loads):
        A = self.A
        W = K1.S_WAVE; M_ = K1.S_M; KM = f"s{K1.S_MASK}"; SCR = K1.STG + 16384
        A(f"v_mov_b32 v9, {SCR + 8192}")
        if not EB:
            A("s_waitcnt lgkmcnt(0)")
            A("s_barrier")
        self.pst(2)
        A(f"s_cmp_lt_u32 s{W}, 4")
        A("s_cbranch_scc1 .Lp2_c")
        if not EB:
            A("s_mov_b32 s57, s70")
            A("s_mov_b32 s58, s71")
            self.p2_bulk1()
        elif DLY == 1:
            A("s_cmp_ge_u32 s2, 64")
            A("s_cbranch_scc1 .Lp2_l4")
            self.lds_spin(".Lp2_sd2", 4, 4, True)
            A.label(".Lp2_l4")
        loader()
        A("s_sub_u32 s4, s2, 64")
        A("s_cmp_ge_u32 s4, 120")
        A("s_cbranch_scc1 .Lp2_X")
        A(f"s_waitcnt vmcnt({4 * int(os.environ.get('LDE', '2'))})")
        self.p2_gemv("b", 2, True, 7)
        A("s_branch .Lp2_X")
        A.label(".Lp2_c")
        cfix()
        A("s_waitcnt vmcnt(0)")
        self.pst(3)
        A("s_cmp_ge_u32 s2, 64")
        A("s_cbranch_scc1 .Lp2_a0")
        self.p2_gemv("a", 1, False)
        A.label(".Lp2_a0")
        self.pst(4)
        A(f"s_cmp_lg_u32 s{W}, 3")
        A("s_cbranch_scc1 .Lp2_a1")
        self.p2_nload()
        A.label(".Lp2_a1")
        self.p2_ln()
        self.pst(6)
        A(f"s_cmp_lg_u32 s{W}, 3")
        A("s_cbranch_scc1 .Lp2_ack")
        A("s_waitcnt vmcnt(2)")
        self.p2_nonce("a")
        A("s_cmp_ge_u32 s2, 64")
        A("s_cbranch_scc1 .Lp2_a2")
        self.p2_pubtask(FP, 0)
        self.pst(7)
        A("s_waitcnt vmcnt(1)")
        A("s_branch .Lp2_a3")
        A.label(".Lp2_a2")
        A("s_waitcnt vmcnt(0)")
        A.label(".Lp2_a3")
        self.p2_pubxn("a")
        self.lds_inc(4)
        A("s_branch .Lp2_col")
        A.label(".Lp2_ack")
        A("s_waitcnt vmcnt(0)")
        self.lds_inc(4)
        A("s_branch .Lp2_X")
        A.label(".Lp2_col")
        make_srd(A, 76, 68, FP, 32 * 1024)
        A(f"s_lshl_b32 s5, s{M_}, 10")
        A("v_and_b32 v3, 7, v1")
        A("v_lshlrev_b32 v3, 3, v3")
        A("v_add_u32 v3, 512, v3")
        A("ds_write_b64 v9, v[70:71] offset:16")
        def parts():
            make_srd(A, 84, 68, WS_MOD, 4 * MODP)
            for i in range(4):
                for p in range(4):
                    A(f"s_movk_i32 s4, {p * MODP}") if p * MODP < 32768 else A(f"s_mov_b32 s4, {p * MODP}")
                    A(f"buffer_load_dwordx4 v[{72+16*i+4*p}:{75+16*i+4*p}], v12, s[84:87], s4 offen offset:{i*1024}")
        if MP:
            A("v_lshlrev_b32 v4, 3, v1")
            self.poll64(".Lplx", [(3, 76, "s5"), (4, 76, "s5")], cnt=4)
            parts()
        else:
            self.poll64(".Lplx", [(3, 76, "s5")], cnt=4)
        A.label(".Lp2_X")
        self.pst(8)
        A("s_waitcnt lgkmcnt(0)")
        A("s_barrier")
        self.pst(9)
        xn_loads()
        A(f"s_cmp_lg_u32 s{W}, 3")
        A("s_cbranch_scc1 .Lp2_Y")
        if not MP:
            make_srd(A, 76, 68, FP, 32 * 1024)
            A(f"s_lshl_b32 s5, s{M_}, 10")
            A("v_lshlrev_b32 v3, 3, v1")
            self.poll64(".Lplm", [(3, 76, "s5")], cnt=4)
            parts()
        A(f"v_add_u32 v3, {SCR + 4096}, v12")
        for i in range(4):
            b = 72 + 16 * i
            A(f"s_waitcnt vmcnt({12 - 4*i + (8 if MP else 0)})")
            pk(A, "v_pk_add_f32", b, b, b + 4); pk(A, "v_pk_add_f32", b + 2, b + 2, b + 6)
            pk(A, "v_pk_add_f32", b + 8, b + 8, b + 12); pk(A, "v_pk_add_f32", b + 10, b + 10, b + 14)
            pk(A, "v_pk_add_f32", b, b, b + 8); pk(A, "v_pk_add_f32", b + 2, b + 2, b + 10)
            round_multi(A, [b, b + 1, b + 2, b + 3], [b + 4, b + 5], KM)
            if i >= 2:
                for e in range(4): A(f"v_add_f32 v{b+e}, 1.0, v{b+e}")
                round_multi(A, [b, b + 1, b + 2, b + 3], [b + 4, b + 5], KM)
            A(f"ds_write_b128 v3, v[{b}:{b+3}] offset:{i*1024}")
        A("s_waitcnt lgkmcnt(0)")
        A.label(".Lp2_Y")
        A("s_barrier")
        self.pst(10)
        self.pst_flush()
        A("ds_read_b64 v[2:3], v9 offset:16")
        A("s_waitcnt lgkmcnt(0)")
        A("v_readfirstlane_b32 s100, v2")
        A("v_readfirstlane_b32 s101, v3")
    def p2_c(self):
        A = self.A
        if V4 and WQP == 3: self.p4_wq()
        if not V4:
            A(f"s_cmp_lg_u32 s{K1.S_WAVE}, {1 if V3 else 7}")
            A("s_cbranch_scc1 .Lp2c_end")
        A("s_mov_b32 s4, s73" if V3 else "s_sub_u32 s4, s2, 64")
        A("s_cmp_ge_u32 s4, 120")
        A("s_cbranch_scc1 .Lp2c_end")
        A("v_mov_b32 v70, s100")
        A("v_mov_b32 v71, s101")
        A("s_waitcnt vmcnt(0)")
        self.p2_pubtask(FQ_, 64)
        A.label(".Lp2c_end")
    def p3_tload(self, n):
        A = self.A
        for i in range(n):
            A(f"buffer_load_dwordx4 v[{128+4*i}:{131+4*i}], v60, s[80:83], s58 offen")
            A("s_add_u32 s58, s58, s5")
        for i in range(n):
            A(f"buffer_load_ushort v{224+i}, v61, s[76:79], s57 offen offset:{i*64}")
    def p3_wq(self, sfx):
        A = self.A; W = K1.S_WAVE
        make_srd(A, K1.S_WQ, 64, 0, 4 * MB)
        A("v_and_b32 v4, 255, v0")
        A("v_lshrrev_b32 v2, 4, v4")
        A("v_and_b32 v3, 15, v4")
        A("v_lshlrev_b32 v3, 6, v3")
        A("v_lshl_add_u32 v2, v2, 13, v3")
        A("s_lshr_b32 s36, s70, 3")
        A("s_lshl_b32 s36, s36, 17")
        A("s_and_b32 s37, s70, 7")
        A("s_lshl_b32 s37, s37, 10")
        A("s_add_u32 s36, s36, s37")
        A(f"s_cmp_lt_u32 s{W}, 4")
        A(f"s_cbranch_scc1 .Lp3_wq{sfx}")
        A(f"buffer_load_dword v63, v2, s[{K1.S_WQ}:{K1.S_WQ+3}], s36 offen")
        A.label(f".Lp3_wq{sfx}")
    def p3_dec(self, crit):
        A = self.A
        A("s_movk_i32 s71, 6144")
        if crit:
            A("s_and_b32 s4, s72, 15")
            A("s_bfe_u32 s5, s72, 0x20004")
            A("s_lshl_b32 s57, s5, 8")
        else:
            make_srd(A, 80, 74, 0, 512 * 6144)
            make_srd(A, 84, 68, WS_MOD, 4 * MODP)
            A("s_and_b32 s5, s73, 1")
            A("s_lshr_b32 s4, s73, 1")
            A("s_lshl_b32 s57, s5, 9")
            A("s_add_u32 s4, s4, 16")
            A("s_cmp_lt_u32 s4, 48")
            A("s_cbranch_scc1 .Lp3a_dec")
            A("s_sub_u32 s4, s4, 48")
            make_srd(A, 80, 96, 0, 512 * 3584)
            make_srd(A, 84, 68, WS_CS, 2 * CSP)
            A("s_movk_i32 s71, 3584")
            A.label(".Lp3a_dec")
        A("s_lshr_b32 s58, s57, 1")
        A("s_mul_i32 s58, s58, s71")
        A("s_lshl_b32 s59, s4, 7")
        A("s_add_u32 s58, s58, s59")
        A("s_lshl_b32 s59, s4, 8")
        A(f"s_movk_i32 s4, {MODP}")
        A("s_cmp_eq_u32 s71, 3584")
        A(f"s_cselect_b32 s4, {CSP}, s4")
        A("s_mul_i32 s4, s4, s5")
        A("s_add_u32 s59, s59, s4")
        A("v_and_b32 v2, 7, v0")
        A("v_bfe_u32 v3, v0, 3, 5")
        A("v_mul_lo_u32 v60, v3, s71")
        A("v_lshl_add_u32 v60, v2, 4, v60")
        A("v_lshlrev_b32 v61, 1, v3")
        A("s_lshl_b32 s5, s71, 5")
    def p3_a(self):
        A = self.A
        W = K1.S_WAVE; M_ = K1.S_M; XR = K1.V_S
        A("s_waitcnt lgkmcnt(0)")
        self.pst(1)
        make_srd(A, 88, 6, 0, 256)
        A(f"s_or_b32 s3, s2, s{W}")
        A("s_cmp_lg_u32 s3, 0")
        A("s_cbranch_scc1 .Lp3a_non")
        A("s_or_b32 s70, s70, 1")
        A("v_mov_b32 v2, s70")
        A("v_mov_b32 v3, s71")
        A("v_mov_b32 v5, 0")
        A("s_mov_b64 exec, 1")
        A("buffer_store_dwordx2 v[2:3], v5, s[88:91], 0 offen sc1")
        A("s_mov_b64 exec, -1")
        A.label(".Lp3a_non")
        make_srd(A, 76, 72, 0, 1024)
        make_srd(A, 80, 74, 0, 512 * 6144)
        make_srd(A, 84, 68, WS_MOD, 4 * MODP)
        make_srd(A, 88, 4, 0, 2 * MB)
        if RM:
            A("s_add_u32 s70, s2, 6")
            A("s_and_b32 s70, s70, 7")
            A("s_lshl_b32 s70, s70, 5")
            A("s_lshr_b32 s71, s2, 3")
            A("s_add_u32 s70, s70, s71")
            A("s_sub_u32 s72, s70, 192")
            if RM == 1:
                A("s_add_u32 s73, s72, 64")
                A("s_cmp_lt_u32 s70, 192")
                A("s_cselect_b32 s73, 255, s73")
                A("s_cmp_lt_u32 s70, 64")
                A("s_cselect_b32 s73, s70, s73")
            else:
                A("s_mov_b32 s73, s70")
        else:
            A("s_mov_b32 s72, s2")
            A("s_sub_u32 s73, s2, 64")
            A("s_sub_u32 s70, 255, s2")
            A("s_xor_b32 s70, s70, 7")
        self.p3_dec(True)
        A(f"v_mov_b32 v58, {K1.STG + 16384}")
        A("v_mov_b32 v3, 0")
        A("ds_write_b32 v58, v3 offset:16")
        A("ds_write_b32 v58, v3 offset:20")
        A("s_cmp_ge_u32 s72, 64")
        A("s_cbranch_scc1 .Lp3a_x")
        A(f"s_cmp_ge_u32 s{W}, 4")
        A("s_cbranch_scc1 .Lp3a_x")
        self.p3_tload(4)
        A.label(".Lp3a_x")
        A("s_waitcnt lgkmcnt(0)")
        A("s_barrier")
        A(f"s_lshl_b32 s3, s{M_}, 16")
        A(f"s_lshl_b32 s4, s{W}, 13")
        A("s_add_u32 s3, s3, s4")
        A("s_add_u32 s4, s3, 4096")
        for i in range(4 if XS else 8):
            A(f"buffer_load_dwordx4 v[{XR+4*i}:{XR+4*i+3}], v12, s[88:91], s{3 + (i >> 2)} offen offset:{(i & 3) * 1024}")
        if not XS: make_srd(A, 88, 6, 0, 256)
        if not XS:
            A("s_cmp_lt_u32 s72, 64")
            A("s_cbranch_scc1 .Lp3a_end")
            self.p3_wq("a")
            A.label(".Lp3a_end")
    def p3_gemv(self, sfx, n, maybe_ones, col):
        A = self.A
        W = K1.S_WAVE; KM = f"s{K1.S_MASK}"; SCR = K1.STG + 16384
        ACC = list(range(64, 72)); T = list(range(72, 80)); U = list(range(80, 96))
        C = list(range(224, 224 + n))
        GO = 8192 if sfx == 'a' else 12288; CT_ = 16 if sfx == 'a' else 20
        if maybe_ones:
            A("s_cmp_lt_u32 s73, 64")
            A(f"s_cbranch_scc1 .Lp3_silu{sfx}")
            for c in C: A(f"v_mov_b32 v{c}, 1.0")
            A(f"s_branch .Lp3_fma{sfx}")
            A.label(f".Lp3_silu{sfx}")
        seq = [lambda i, c: f"v_lshlrev_b32 v{c}, 16, v{c}", lambda i, c: f"v_mul_f32 v{T[i]}, {fhex(-LOG2E)}, v{c}",
               lambda i, c: f"v_exp_f32 v{T[i]}, v{T[i]}", None, lambda i, c: f"v_add_f32 v{T[i]}, 1.0, v{T[i]}",
               lambda i, c: f"v_rcp_f32 v{U[i]}, v{T[i]}", None, lambda i, c: f"v_mul_f32 v{U[8+i]}, v{c}, v{U[i]}",
               lambda i, c: f"v_fma_f32 v{T[i]}, -v{U[8+i]}, v{T[i]}, v{c}", lambda i, c: f"v_fma_f32 v{c}, v{T[i]}, v{U[i]}, v{U[8+i]}",
               lambda i, c: f"v_cvt_pk_bf16_f32 v{T[i]}, v{c}, v{c}", lambda i, c: f"v_lshlrev_b32 v{c}, 16, v{T[i]}"]
        for f in seq:
            if f is None: A("s_nop 0"); continue
            for i, c in enumerate(C): A(f(i, c))
        if maybe_ones: A.label(f".Lp3_fma{sfx}")
        for i in range(n):
            for j in range(4):
                w = 128 + 4 * i + j
                A(f"v_lshlrev_b32 v{T[2*j]}, 16, v{w}")
                A(f"v_and_b32 v{T[2*j+1]}, {KM}, v{w}")
            for j in range(8):
                A(f"v_mul_f32 v{ACC[j]}, v{T[j]}, v{C[i]}" if i == 0 else f"v_fmac_f32 v{ACC[j]}, v{T[j]}, v{C[i]}")
        A("v_and_b32 v2, 7, v1")
        A("v_lshrrev_b32 v3, 4, v0")
        for v in ACC: A(f"v_add_f32_dpp v{v}, v{v}, v{v} row_ror:8 row_mask:0xf bank_mask:0xf")
        A("v_lshlrev_b32 v3, 8, v3")
        A("v_lshl_add_u32 v3, v2, 5, v3")
        A(f"v_add_u32 v3, {SCR + GO}, v3")
        A("v_and_b32 v2, 8, v1")
        A("v_cmp_eq_u32 vcc, 0, v2")
        A("s_and_b64 exec, exec, vcc")
        A(f"ds_write_b128 v3, v[{ACC[0]}:{ACC[3]}]")
        A(f"ds_write_b128 v3, v[{ACC[4]}:{ACC[7]}] offset:16")
        A("s_mov_b64 exec, -1")
        A("s_waitcnt lgkmcnt(0)")
        self.lds_inc(CT_, 58)
        A(f"s_cmp_lg_u32 s{W}, {col}")
        A(f"s_cbranch_scc1 .Lp3_gd{sfx}")
        self.lds_spin(f".Lp3_sp{sfx}", CT_, 4, False, 58)
        A("v_lshlrev_b32 v2, 2, v1")
        A(f"v_add_u32 v3, {SCR + GO}, v2")
        for k in range(16): A(f"ds_read_b32 v{64+k}, v3 offset:{k*256}")
        for k in range(8):
            A(f"s_waitcnt lgkmcnt({14-2*k})")
            A(f"v_add_f32 v{64+2*k}, v{64+2*k}, v{65+2*k}")
        for k in range(4): A(f"v_add_f32 v{64+4*k}, v{64+4*k}, v{66+4*k}")
        A("v_add_f32 v64, v64, v68")
        A("v_add_f32 v72, v72, v76")
        A("v_add_f32 v234, v64, v72")
        A("buffer_store_dword v234, v2, s[84:87], s59 offen sc1")
        A.label(f".Lp3_gd{sfx}")
    def p3_ln(self, b):
        A = self.A; KM = f"s{K1.S_MASK}"; XR = K1.V_S
        R = [(list(range(64 + 8 * r, 72 + 8 * r)), list(range(96 + 8 * r, 104 + 8 * r))) for r in range(4)]
        for r, (X, T) in enumerate(R):
            for j in range(4):
                A(f"v_lshlrev_b32 v{X[2*j]}, 16, v{XR+16*b+4*r+j}")
                A(f"v_and_b32 v{X[2*j+1]}, {KM}, v{XR+16*b+4*r+j}")
        ln_fast(A, R, KM, False)
        for r, (X, T) in enumerate(R): pack8(A, X, XR + 16 * b + 4 * r)
    def p3_nload(self):
        A = self.A
        A("v_mov_b32 v2, 0")
        A("s_mov_b64 exec, 1")
        A("buffer_load_dwordx2 v[232:233], v2, s[88:91], 0 offen sc1")
        A("s_mov_b64 exec, -1")
    def p3_xwait(self, sfx, n):
        A = self.A
        A("s_sub_u32 s4, s2, 64")
        A("s_cmp_lt_u32 s4, 120")
        A(f"s_cbranch_scc1 .Lp3_xw{sfx}")
        A(f"s_waitcnt vmcnt({n})")
        A.label(f".Lp3_xw{sfx}")
        A(f"s_waitcnt vmcnt({n + 8})")
    def p3_b(self, loader, cfix, xn_loads):
        A = self.A
        W = K1.S_WAVE; M_ = K1.S_M; KM = f"s{K1.S_MASK}"; SCR = K1.STG + 16384
        CW = 0; PW = 1
        WQL = int(os.environ.get('WQL', '0'))
        def nonce(sfx):
            A("s_mov_b32 s4, 0")
            A.label(f".Lp3_nl{sfx}")
            A("v_readfirstlane_b32 s100, v232")
            A("v_readfirstlane_b32 s101, v233")
            A("s_add_u32 s4, s4, 1")
            A("s_cmp_lg_u32 s100, 0")
            A(f"s_cbranch_scc1 .Lp3_nd{sfx}")
            A("s_cmp_lt_u32 s4, 0x40000")
            A(f"s_cbranch_scc0 .Lp3_nd{sfx}")
            self.p3_nload()
            A("s_waitcnt vmcnt(0)")
            A(f"s_branch .Lp3_nl{sfx}")
            A.label(f".Lp3_nd{sfx}")
            A("v_mov_b32 v232, s100")
            A("v_mov_b32 v233, s101")
            A(f"v_mov_b32 v2, {SCR}")
            A("ds_write_b64 v2, v[232:233]")
        if XS:
            A("s_add_u32 s4, s3, 4096")
            for i in range(4, 8):
                A(f"buffer_load_dwordx4 v[{K1.V_S+4*i}:{K1.V_S+4*i+3}], v12, s[88:91], s4 offen offset:{(i & 3) * 1024}")
            make_srd(A, 88, 6, 0, 256)
            A("s_mov_b32 s6, 0")
            A("s_mov_b32 s7, 0")
            A(f"s_cmp_gt_u32 s{W}, 1")
            A("s_cbranch_scc1 .Lp3_e1")
            self.p3_nload()
            A("s_mov_b32 s6, 1")
            A.label(".Lp3_e1")
            A("s_cmp_lt_u32 s72, 64")
            A("s_cbranch_scc1 .Lp3a_end")
            self.p3_wq("a")
            A(f"s_lshr_b32 s7, s{W}, 2")
            A("s_or_b32 s6, s6, s7")
            A.label(".Lp3a_end")
        self.pst(2)
        A("s_cmp_ge_u32 s72, 64")
        A("s_cbranch_scc1 .Lp3_nc")
        A(f"s_cmp_ge_u32 s{W}, 4")
        A("s_cbranch_scc1 .Lp3_ln0")
        A("s_waitcnt vmcnt(8)")
        self.pst(3)
        self.p3_gemv("a", 4, False, PW)
        self.pst(4)
        A.label(".Lp3_nc")
        A.label(".Lp3_ln0")
        assert XS
        A("s_cmp_lg_u32 s6, 0")
        A("s_cbranch_scc1 .Lp3_ln0a")
        A("s_waitcnt vmcnt(4)")
        A.label(".Lp3_ln0a")
        A("s_waitcnt vmcnt(5)")
        self.pst(5)
        self.p3_ln(0)
        self.pst(6)
        make_srd(A, 36, 68, FP, 32 * 1024)
        A("s_cmp_lg_u32 s7, 0")
        A("s_cbranch_scc1 .Lp3_ln1a")
        A("s_waitcnt vmcnt(0)")
        A.label(".Lp3_ln1a")
        A("s_waitcnt vmcnt(1)")
        A(f"s_cmp_gt_u32 s{W}, 1")
        A("s_cbranch_scc1 .Lp3_n1")
        nonce("a")
        A.label(".Lp3_n1")
        A("s_cmp_ge_u32 s72, 64")
        A("s_cbranch_scc1 .Lp3_n3")
        A(f"s_cmp_lg_u32 s{W}, {PW}")
        A("s_cbranch_scc1 .Lp3_n2")
        A("v_lshlrev_b32 v3, 10, v1")
        A("s_lshl_b32 s4, s72, 3")
        A("s_mov_b32 exec_hi, 0")
        A("buffer_store_dwordx2 v[232:233], v3, s[36:39], s4 offen sc1")
        A("s_mov_b64 exec, -1")
        self.pst(7)
        A.label(".Lp3_n2")
        if WQL == 0: self.p3_wq("b")
        A.label(".Lp3_n3")
        A("s_cmp_ge_u32 s73, 120")
        A("s_cbranch_scc1 .Lp3_n4")
        A(f"s_cmp_ge_u32 s{W}, 4")
        A("s_cbranch_scc1 .Lp3_n4")
        self.p3_dec(False)
        A("s_cmp_ge_u32 s72, 64")
        A("s_cbranch_scc1 .Lp3_n3b")
        A("s_sleep 6")
        A.label(".Lp3_n3b")
        self.p3_tload(8)
        A.label(".Lp3_n4")
        make_srd(A, 76, 68, FP, 32 * 1024)
        self.p3_ln(1)
        self.pst(8)
        if WQL:
            A("s_cmp_ge_u32 s72, 64")
            A("s_cbranch_scc1 .Lp3_n9")
            A(f"s_cmp_eq_u32 s{W}, {CW}")
            A("s_cbranch_scc1 .Lp3_n9")
            self.p3_wq("b")
            A.label(".Lp3_n9")
        A("s_cmp_ge_u32 s73, 120")
        A("s_cbranch_scc1 .Lp3_n6")
        A(f"s_cmp_ge_u32 s{W}, 4")
        A("s_cbranch_scc1 .Lp3_n6")
        A("s_waitcnt vmcnt(0)")
        self.p3_gemv("b", 8, True, 1)
        A.label(".Lp3_n6")
        A(f"s_cmp_lg_u32 s{W}, {CW}")
        A("s_cbranch_scc1 .Lp3_n5")
        A(f"s_lshl_b32 s5, s{M_}, 10")
        A("v_lshlrev_b32 v3, 3, v1")
        self.poll64(".Lplm", [(3, 76, "s5")], cnt=4, slp=int(os.environ.get("PSLP", "0")))
        make_srd(A, 76, 68, WS_MOD, 4 * MODP)
        for i in range(4):
            for p in range(4):
                A(f"s_movk_i32 s4, {p * MODP}") if p * MODP < 32768 else A(f"s_mov_b32 s4, {p * MODP}")
                A(f"buffer_load_dwordx4 v[{64+16*i+4*p}:{67+16*i+4*p}], v12, s[76:79], s4 offen offset:{i*1024}")
        A.label(".Lp3_n5")
        self.pst(9)
        A(f"s_cmp_lg_u32 s{W}, {CW}")
        A("s_cbranch_scc1 .Lp3_n8")
        A(f"v_add_u32 v3, {SCR + 4096}, v12")
        for i in range(4):
            b = 64 + 16 * i
            A(f"s_waitcnt vmcnt({12 - 4*i})")
            pk(A, "v_pk_add_f32", b, b, b + 4); pk(A, "v_pk_add_f32", b + 2, b + 2, b + 6)
            pk(A, "v_pk_add_f32", b + 8, b + 8, b + 12); pk(A, "v_pk_add_f32", b + 10, b + 10, b + 14)
            pk(A, "v_pk_add_f32", b, b, b + 8); pk(A, "v_pk_add_f32", b + 2, b + 2, b + 10)
            round_multi(A, [b, b + 1, b + 2, b + 3], [b + 4, b + 5], KM)
            if i >= 2:
                for e in range(4): A(f"v_add_f32 v{b+e}, 1.0, v{b+e}")
                round_multi(A, [b, b + 1, b + 2, b + 3], [b + 4, b + 5], KM)
            A(f"ds_write_b128 v3, v[{b}:{b+3}] offset:{i*1024}")
        A("s_waitcnt lgkmcnt(0)")
        A.label(".Lp3_n8")
        A.label(".Lp3_Y")
        loader()
        A("s_barrier")
        self.pst(10)
        self.pst_flush()
        A(f"v_mov_b32 v2, {SCR}")
        A("ds_read_b64 v[2:3], v2")
        A("s_waitcnt lgkmcnt(0)")
        A("v_readfirstlane_b32 s100, v2")
        A("v_readfirstlane_b32 s101, v3")
    def p4_silu(self, C, T, U):
        A = self.A; n = len(C)
        seq = [lambda i, c: f"v_mul_f32 v{T[i]}, {fhex(-LOG2E)}, v{c}",
               lambda i, c: f"v_exp_f32 v{T[i]}, v{T[i]}", None, lambda i, c: f"v_add_f32 v{T[i]}, 1.0, v{T[i]}",
               lambda i, c: f"v_rcp_f32 v{U[i]}, v{T[i]}", None, lambda i, c: f"v_mul_f32 v{U[n+i]}, v{c}, v{U[i]}",
               lambda i, c: f"v_fma_f32 v{T[i]}, -v{U[n+i]}, v{T[i]}, v{c}", lambda i, c: f"v_fma_f32 v{c}, v{T[i]}, v{U[i]}, v{U[n+i]}"]
        for f in seq:
            if f is None: A("s_nop 0"); continue
            for i, c in enumerate(C): A(f(i, c))
    def p4_red8(self, sets, last):
        A = self.A
        DP = "row_mask:0xf bank_mask:"
        for S in sets:
            for k in range(4): A(f"v_permlane32_swap_b32 v{S[k]}, v{S[k+4]}")
        if len(sets) == 1: A("s_nop 0")
        for S in sets:
            for k in range(4): A(f"v_add_f32 v{S[k]}, v{S[k]}, v{S[k+4]}")
        A("s_nop 1" if len(sets) == 1 else "s_nop 0")
        for S in sets:
            for k in range(2): A(f"v_permlane16_swap_b32 v{S[k]}, v{S[k+2]}")
        A("s_nop 1")
        for S in sets:
            for k in range(2): A(f"v_add_f32 v{S[k]}, v{S[k]}, v{S[k+2]}")
        A("s_nop 1")
        for S in sets:
            A(f"v_add_f32_dpp v{S[2]}, v{S[0]}, v{S[0]} row_ror:8 {DP}0x3")
            A(f"v_add_f32_dpp v{S[2]}, v{S[1]}, v{S[1]} row_ror:8 {DP}0xc")
        src = 2
        for i, d in enumerate(last):
            A("s_nop 1" if len(sets) == 1 else "s_nop 0")
            for S in sets: A(f"v_add_f32_dpp v{S[0]}, v{S[src]}, v{S[src]} {d} {DP}0xf")
            src = 0
    def p4_xl(self):
        A = self.A; XR = K1.V_S
        A("s_add_u32 s4, s3, 4096")
        for i in range(8):
            A(f"buffer_load_dwordx4 v[{XR+4*i}:{XR+4*i+3}], v12, s[84:87], s{3 + (i >> 2)} offen offset:{(i & 3) * 1024}")
    def p4_a(self):
        A = self.A
        W = K1.S_WAVE; M_ = K1.S_M; XR = K1.V_S; SCR = K1.STG + 16384
        NLT = 64 if LT == 3 else 120
        A(f"v_mov_b32 v58, {SCR}")
        for i in range(4): A(f"v_mov_b32 v{4+i}, 0")
        A("ds_write_b128 v58, v[4:7]")
        A("ds_write_b128 v58, v[4:7] offset:16")
        if XH:
            A("s_getreg_b32 s57, hwreg(HW_REG_XCC_ID)")
            A("s_and_b32 s3, s2, 1")
            A("s_lshl_b32 s3, s3, 5")
            A("s_lshr_b32 s56, s2, 3")
            A("s_add_u32 s3, s3, s56")
            A("s_bitcmp1_b32 s2, 1")
            A("s_cselect_b32 s56, 0, 192")
            A("s_cselect_b32 s58, 64, 128")
            A("s_bitcmp1_b32 s57, 2" if XH == 1 else ("s_cmp_eq_u32 s57, s57" if XH == 2 else "s_cmp_lg_u32 s57, s57"))
            A("s_cselect_b32 s56, s58, s56")
            A("s_add_u32 s3, s3, s56")
        elif RM:
            A("s_add_u32 s3, s2, 6")
            A("s_and_b32 s3, s3, 7")
            A("s_lshl_b32 s3, s3, 5")
            A("s_lshr_b32 s57, s2, 3")
            A("s_add_u32 s3, s3, s57")
        else:
            A("s_sub_u32 s3, 255, s2")
        A(f"s_cmp_lt_u32 s{W}, 4")
        A("s_cselect_b32 s36, s3, 128")
        A("v_lshrrev_b32 v3, 3, v0")
        A("s_cmp_lt_u32 s36, 192")
        A("s_cbranch_scc1 .Lp4a_l")
        A("v_and_b32 v2, 1, v1")
        A("v_lshl_or_b32 v2, v3, 1, v2")
        A("v_lshlrev_b32 v61, 3, v2")
        A("v_mul_u32_u24 v60, 24576, v2")
        A("v_bfe_u32 v3, v1, 1, 2")
        A("v_lshl_add_u32 v60, v3, 4, v60")
        A("s_bfe_u32 s59, s3, 0x10005")
        A("s_and_b32 s58, s3, 31")
        A("s_lshl_b32 s58, s58, 6")
        A(f"s_mul_i32 s57, s59, {256 * 6144}")
        A("s_add_u32 s58, s58, s57")
        A("s_lshl_b32 s59, s59, 9")
        A("s_waitcnt lgkmcnt(0)")
        self.pst(1)
        make_srd(A, 76, 72, 0, 1024)
        make_srd(A, 80, 74, 0, 512 * 6144)
        A("buffer_load_dwordx2 v[224:225], v61, s[76:79], s59 offen")
        for i in range(4):
            A(f"buffer_load_dwordx4 v[{128+4*i}:{131+4*i}], v60, s[80:83], s58 offen")
            if i < 3: A("s_add_u32 s58, s58, 6144")
        A("s_branch .Lp4a_x")
        A.label(".Lp4a_l")
        A(f"s_cmp_ge_u32 s36, {NLT}")
        A("s_cbranch_scc1 .Lp4a_w")
        A("s_and_b32 s37, s3, 1")
        A("s_lshr_b32 s56, s3, 1")
        A("s_add_u32 s57, s56, 16")
        A("s_sub_u32 s56, s56, 32")
        A("s_cmp_lt_u32 s3, 64")
        A("s_cselect_b32 s56, s57, s56")
        A(f"s_movk_i32 s57, {CSP}")
        A(f"s_cselect_b32 s59, {MODP}, s57")
        A("s_movk_i32 s57, 3584")
        A("s_cselect_b32 s46, 6144, s57")
        A(f"s_cselect_b32 s47, {WS_MOD}, {WS_CS}")
        A("s_mul_i32 s59, s59, s37")
        A("s_add_u32 s59, s59, s47")
        A("s_lshl_b32 s57, s56, 8")
        A("s_add_u32 s59, s59, s57")
        A("s_lshl_b32 s58, s37, 8")
        A("s_mul_i32 s58, s58, s46")
        A("s_lshl_b32 s56, s56, 7")
        A("s_add_u32 s58, s58, s56")
        A("s_lshl_b32 s57, s37, 9")
        A("s_lshl_b32 s56, s46, 3")
        A("v_and_b32 v2, 7, v1")
        A("v_mul_lo_u32 v60, v3, s56")
        A("v_lshl_add_u32 v60, v2, 4, v60")
        A("v_lshlrev_b32 v61, 4, v3")
        A("s_cmp_lt_u32 s3, 64")
        A("s_waitcnt lgkmcnt(0)")
        make_srd(A, 76, 72, 0, 1024)
        A("s_cselect_b32 s80, s74, s96")
        A("s_cselect_b32 s81, s75, s97")
        A("s_lshl_b32 s82, s46, 9")
        A("s_mov_b32 s83, 0x00020000")
        A("buffer_load_dwordx4 v[224:227], v61, s[76:79], s57 offen")
        for i in range(8):
            A(f"buffer_load_dwordx4 v[{128+4*i}:{131+4*i}], v60, s[80:83], s58 offen")
            if i < 7: A("s_add_u32 s58, s58, s46")
        A.label(".Lp4a_w")
        A("s_waitcnt lgkmcnt(0)")
        self.pst(1)
        A.label(".Lp4a_x")
        make_srd(A, 88, 6, 0, 256)
        A(f"s_xor_b32 s57, s{W}, 4")
        if XH:
            A("s_lshr_b32 s56, s2, 3")
            A("s_or_b32 s57, s56, s57")
        else: A("s_or_b32 s57, s2, s57")
        A("s_cmp_lg_u32 s57, 0")
        A("s_cbranch_scc1 .Lp4a_non")
        A("s_or_b32 s70, s70, 1")
        A("v_mov_b32 v2, s70")
        A("v_mov_b32 v3, s71")
        A("s_mov_b64 exec, 1")
        if XH: A("buffer_atomic_cmpswap_x2 v[2:5], v6, s[88:91], 0 offen sc1")
        else: A("buffer_store_dwordx2 v[2:3], v5, s[88:91], 0 offen sc1")
        A("s_mov_b64 exec, -1")
        A.label(".Lp4a_non")
        if int(os.environ.get("HX", "0")):
            A(f"s_cmp_lg_u32 s{W}, 5")
            A("s_cbranch_scc1 .Lp4a_hx")
            A("s_cmp_ge_u32 s2, 14")
            A("s_cbranch_scc1 .Lp4a_hx")
            A("s_getreg_b32 s57, hwreg(HW_REG_XCC_ID)")
            A("s_and_b32 s57, s57, 15")
            A("s_mul_i32 s57, s57, 100000000")
            A("s_and_b32 s56, s70, 0xffff")
            A("s_add_u32 s57, s57, s56")
            A("v_mov_b32 v2, s57")
            A("s_lshl_b32 s57, s2, 2")
            A("s_mov_b64 exec, 1")
            A("buffer_store_dword v2, v5, s[88:91], s57 offen offset:8")
            A("s_mov_b64 exec, -1")
            A.label(".Lp4a_hx")
        make_srd(A, 84, 4, 0, 2 * MB)
        A("s_mov_b32 s70, s3")
        A("s_sub_u32 s72, s36, 192")
        A(f"s_cmp_lt_u32 s36, {NLT}")
        A("s_cselect_b32 s73, s36, 255")
        if XRT:
            A(f"s_add_u32 s71, s{W}, s{K1.S_G}")
            A("s_and_b32 s71, s71, 7")
            A("s_lshl_b32 s71, s71, 3")
        else: A(f"s_lshl_b32 s71, s{W}, 3")
        A(f"s_lshl_b32 s3, s{M_}, 16")
        A("s_lshl_b32 s4, s71, 10")
        A("s_add_u32 s3, s3, s4")
        A("s_barrier")
        if XL:
            A(f"s_cmp_ge_u32 s{W}, {XL}")
            A("s_cbranch_scc1 .Lp4a_nx")
        A("s_cmp_lt_u32 s73, 120")
        A("s_cbranch_scc1 .Lp4a_nx")
        if CX:
            A("s_sub_u32 s4, s70, s36")
            A("s_cmp_ge_i32 s4, 64")
        else:
            A("s_cmp_lt_u32 s72, 64")
        A("s_cbranch_scc1 .Lp4a_nx")
        self.p4_xl()
        if NW:
            A(f"s_cmp_lg_u32 s{W}, 0")
            A("s_cbranch_scc1 .Lp4a_nx")
            A("s_cmp_ge_u32 s70, 192")
            A("s_cbranch_scc1 .Lp4a_nx")
            self.p3_nload()
        A.label(".Lp4a_nx")
    def p4_arrive(self, lab):
        A = self.A
        A("v_mov_b32 v3, 1")
        A("s_waitcnt lgkmcnt(0)")
        A("s_mov_b64 exec, 1")
        A("ds_add_rtn_u32 v3, v58, v3 offset:16")
        A("s_mov_b64 exec, -1")
        A("s_waitcnt lgkmcnt(0)")
        A("v_readfirstlane_b32 s4, v3")
        A("s_cmp_lg_u32 s4, 3")
        A(f"s_cbranch_scc1 {lab}")
    def p4_slow(self, sfx, scol, spart, sA, sB, sT, KM):
        A = self.A
        ACC = list(range(112, 120)); F = list(range(96, 112)); C = list(range(64, 72))
        A(f"s_load_dwordx4 s[{sT}:{sT+3}], s[0:1], 80")
        A("v_and_b32 v2, 7, v1")
        A("v_lshrrev_b32 v3, 3, v1")
        A("v_mul_u32_u24 v60, 49152, v3")
        A("v_lshl_add_u32 v60, v2, 4, v60")
        A("v_lshlrev_b32 v61, 4, v3")
        A("v_lshl_add_u32 v2, v2, 3, v3")
        for a in ACC: A(f"v_mov_b32 v{a}, 0")
        A("s_waitcnt lgkmcnt(0)")
        make_srd(A, sA, sT, 0, 1024)
        make_srd(A, sB, sT + 2, 0, 512 * 6144)
        A(f"s_mul_i32 s{sT}, s{spart}, {256 * 6144}")
        A(f"s_add_u32 s{sT}, s{sT}, s{scol}")
        A(f"s_lshl_b32 s{sT+1}, s{spart}, 9")
        A(f"s_mov_b32 s{sT+2}, 4")
        A.label(f".Lp4s_{sfx}")
        A(f"buffer_load_dwordx4 v[224:227], v61, s[{sA}:{sA+3}], s{sT+1} offen")
        for i in range(8):
            A(f"buffer_load_dwordx4 v[{128+4*i}:{131+4*i}], v60, s[{sB}:{sB+3}], s{sT} offen")
            A(f"s_add_u32 s{sT}, s{sT}, {6144 if i < 7 else 57 * 6144}")
        A(f"s_add_u32 s{sT+1}, s{sT+1}, 128")
        A("s_waitcnt vmcnt(8)")
        for i in range(4):
            A(f"v_lshlrev_b32 v{C[2*i]}, 16, v{224+i}")
            A(f"v_and_b32 v{C[2*i+1]}, {KM}, v{224+i}")
        self.p4_silu(C, list(range(72, 80)), list(range(80, 96)))
        for i in range(4): A(f"v_cvt_pk_bf16_f32 v{72+i}, v{C[2*i]}, v{C[2*i+1]}")
        self.p4_forms([72, 73, 74, 75], F, KM)
        A("s_waitcnt vmcnt(0)")
        for i in range(8):
            for k in range(8):
                A(f"v_dot2_f32_bf16 v{ACC[k]}, v{128+4*i+k//2}, v{F[2*i+(k&1)]}, v{ACC[k]}")
        A(f"s_sub_u32 s{sT+2}, s{sT+2}, 1")
        A(f"s_cmp_lg_u32 s{sT+2}, 0")
        A(f"s_cbranch_scc1 .Lp4s_{sfx}")
        self.p4_red8([ACC], [])
    def p4_forms(self, P, F, KM=None):
        A = self.A; KM = KM or f"s{K1.S_MASK}"
        for i, p in enumerate(P):
            A(f"v_and_b32 v{F[4*i]}, 0xffff, v{p}")
            A(f"v_lshlrev_b32 v{F[4*i+1]}, 16, v{p}")
            A(f"v_lshrrev_b32 v{F[4*i+2]}, 16, v{p}")
            A(f"v_and_b32 v{F[4*i+3]}, {KM}, v{p}")
    def p4_wq(self):
        A = self.A; W = K1.S_WAVE
        A("v_and_b32 v4, 255, v0")
        A("v_lshrrev_b32 v2, 4, v4")
        A("v_and_b32 v3, 15, v4")
        A("v_lshlrev_b32 v3, 6, v3")
        A("v_lshl_add_u32 v2, v2, 13, v3")
        A("s_add_u32 s36, s70, 64")
        A("s_cmp_lt_u32 s70, 128")
        A("s_cselect_b32 s36, 256, s36")
        A("s_cmp_lt_u32 s70, 192")
        A("s_cselect_b32 s37, s70, 256")
        A(f"s_cmp_lt_u32 s{W}, 4")
        A("s_cselect_b32 s36, s36, s37")
        A("s_cmp_ge_u32 s36, 256")
        A("s_cbranch_scc1 .Lp4_wq")
        A("s_and_b32 s37, s36, 7")
        A("s_lshr_b32 s36, s36, 3")
        A("s_lshl_b32 s36, s36, 17")
        A("s_lshl_b32 s37, s37, 10")
        A("s_add_u32 s36, s36, s37")
        A(f"buffer_load_dword v63, v2, s[{K1.S_WQ}:{K1.S_WQ+3}], s36 offen")
        A.label(".Lp4_wq")
    def p4_nonce(self, sfx):
        A = self.A
        A("s_mov_b32 s4, 0")
        A.label(f".Lp4_nl{sfx}")
        A("v_readfirstlane_b32 s100, v232")
        A("v_readfirstlane_b32 s101, v233")
        A("s_add_u32 s4, s4, 1")
        A("s_cmp_lg_u32 s100, 0")
        A(f"s_cbranch_scc1 .Lp4_nd{sfx}")
        A("s_cmp_lt_u32 s4, 0x40000")
        A(f"s_cbranch_scc0 .Lp4_nd{sfx}")
        self.p3_nload()
        A("s_waitcnt vmcnt(0)")
        A(f"s_branch .Lp4_nl{sfx}")
        A.label(f".Lp4_nd{sfx}")
        A("s_or_b32 s100, s100, 1")
        A("v_mov_b32 v232, s100")
        A("v_mov_b32 v233, s101")
        A("ds_write_b64 v58, v[232:233]")
    def p4_nget(self, lab):
        A = self.A
        A.label(lab)
        A("ds_read_b64 v[2:3], v58")
        A("s_waitcnt lgkmcnt(0)")
        A("v_readfirstlane_b32 s100, v2")
        A("v_readfirstlane_b32 s101, v3")
        A("s_cmp_eq_u32 s100, 0")
        A(f"s_cbranch_scc1 {lab}")
    def p4_b(self, loader, cfix, xn_loads):
        A = self.A
        W = K1.S_WAVE; M_ = K1.S_M; KM = f"s{K1.S_MASK}"; SCR = K1.STG + 16384; XR = K1.V_S
        K10 = K1.V_K10; K01 = K1.V_K01
        ACC = list(range(72, 80))
        A("s_mov_b32 s6, 0")
        if XL:
            assert not CX and XL >= 4
            A(f"s_cmp_lt_u32 s{W}, {XL}")
            A("s_cbranch_scc1 .Lp4_xl0")
            self.p4_xl()
            A.label(".Lp4_xl0")
        if CX:
            A("s_cmp_lt_u32 s70, 192")
            A("s_cbranch_scc1 .Lp4_cx0")
            A(f"s_cmp_lt_u32 s{W}, 4")
            A("s_cbranch_scc1 .Lp4_cx0")
            self.p4_xl()
            A.label(".Lp4_cx0")
        XN_ = 8 if CX else 0
        self.pst(2)
        A("s_cmp_ge_u32 s72, 64")
        A("s_cbranch_scc1 .Lp4_nc")
        self.p3_nload()
        make_srd(A, 76, 68, WS_LL, NREP * 16384)
        A("v_and_b32 v2, 15, v1")
        A("v_lshrrev_b32 v4, 4, v1")
        A("v_lshlrev_b32 v4, 14, v4")
        A("v_lshl_add_u32 v4, v2, 4, v4")
        A("v_lshlrev_b32 v2, 5, v2")
        A(f"v_add_u32 v5, {SCR + 256}, v2")
        A("s_lshl_b32 s57, s72, 8")
        A("v_lshrrev_b32 v2, 3, v1")
        A("v_bfe_u32 v3, v1, 1, 2")
        A("v_lshl_add_u32 v2, v3, 3, v2")
        A(f"s_lshl_b32 s4, s{W}, 2")
        A(f"s_add_u32 s4, s4, {SCR + 256}")
        A("v_lshlrev_b32 v2, 4, v2")
        A("v_add_u32 v6, s4, v2")
        A(f"s_waitcnt vmcnt({5 + XN_})")
        C = [64, 65, 66, 67]
        for i in range(2):
            A(f"v_lshlrev_b32 v{C[2*i]}, 16, v{224+i}")
            A(f"v_and_b32 v{C[2*i+1]}, {KM}, v{224+i}")
        self.p4_silu(C, [68, 69, 70, 71], list(range(80, 88)))
        A("v_cvt_pk_bf16_f32 v64, v64, v65")
        A("v_cvt_pk_bf16_f32 v65, v66, v67")
        self.p4_forms([64, 65], list(range(80, 88)))
        for r in range(4):
            A(f"s_waitcnt vmcnt({4 - r + XN_})")
            if r == 3: self.pst(3)
            for k in range(8):
                A(f"v_dot2_f32_bf16 v{ACC[k]}, v{128+4*r+k//2}, v{80+2*r+(k&1)}, {'0' if r == 0 else 'v%d' % ACC[k]}")
        A("s_nop 0")
        self.p4_red8([ACC], ["quad_perm:[1,0,3,2]"])
        A(f"ds_write_b32 v6, v{ACC[0]}")
        self.pst(4)
        self.p4_arrive(".Lp4_cw")
        for i in range(2): A(f"ds_read_b128 v[{64+4*i}:{67+4*i}], v5 offset:{16*i}")
        A("s_waitcnt vmcnt(0)")
        self.p4_nonce("a")
        A("s_waitcnt lgkmcnt(0)")
        for b in (64, 68): pk(A, "v_pk_add_f32", b, b, b + 2)
        A("v_add_f32 v64, v64, v65")
        A("v_add_f32 v66, v68, v69")
        A("v_mov_b32 v65, s100")
        A("v_mov_b32 v67, s100")
        for i in range(NREP // 4):
            A("buffer_store_dwordx4 v[64:67], v4, s[76:79], s57 offen sc1")
            if i < NREP // 4 - 1: A("s_add_u32 s57, s57, 65536")
        if CX:
            self.pst(7)
            A("s_branch .Lp4_xd")
            A.label(".Lp4_cw")
            A("s_waitcnt vmcnt(1)")
            A("s_branch .Lp4_xd")
        else:
            self.lds_inc(16, 58)
            self.pst(7)
            A("s_branch .Lp4_cx")
            A.label(".Lp4_cw")
            self.lds_spin(".Lp4_spc", 16, 5, True, 58)
            A("s_branch .Lp4_cx")
        A.label(".Lp4_nc")
        A("s_cmp_ge_u32 s73, 120")
        A("s_cbranch_scc1 .Lp4_nl")
        F = list(range(96, 112)); C = list(range(64, 72))
        make_srd(A, 76, 68, 0, 128 * 1024)
        A("v_and_b32 v2, 7, v1")
        A("v_lshrrev_b32 v3, 3, v1")
        A("v_lshl_add_u32 v2, v2, 3, v3")
        A(f"s_lshl_b32 s4, s{W}, 8")
        A(f"s_add_u32 s4, s4, {SCR + 256}")
        A("v_lshlrev_b32 v2, 2, v2")
        A("v_add_u32 v6, s4, v2")
        A("v_lshlrev_b32 v4, 2, v1")
        A(f"v_add_u32 v5, {SCR + 256}, v4")
        A("s_cmp_lt_u32 s73, 64")
        A("s_cbranch_scc1 .Lp4_silu")
        for i in range(8):
            A(f"v_mov_b32 v{F[2*i]}, v{K10}")
            A(f"v_mov_b32 v{F[2*i+1]}, v{K01}")
        A("s_branch .Lp4_fma")
        A.label(".Lp4_silu")
        A("s_waitcnt vmcnt(8)")
        for i in range(4):
            A(f"v_lshlrev_b32 v{C[2*i]}, 16, v{224+i}")
            A(f"v_and_b32 v{C[2*i+1]}, {KM}, v{224+i}")
        self.p4_silu(C, list(range(72, 80)), list(range(80, 96)))
        for i in range(4): A(f"v_cvt_pk_bf16_f32 v{72+i}, v{C[2*i]}, v{C[2*i+1]}")
        self.p4_forms([72, 73, 74, 75], F)
        A.label(".Lp4_fma")
        for i in range(8):
            A(f"s_waitcnt vmcnt({7 - i})")
            if i == 7: self.pst(3)
            for k in range(8):
                A(f"v_dot2_f32_bf16 v{ACC[k]}, v{128+4*i+k//2}, v{F[2*i+(k&1)]}, {'0' if i == 0 else 'v%d' % ACC[k]}")
        self.p4_xl()
        self.p4_red8([ACC], [])
        A(f"ds_write_b32 v6, v{ACC[2]}")
        self.pst(4)
        A("s_mov_b32 s5, s73")
        A("s_movk_i32 s73, 255")
        self.p4_arrive(".Lp4_nl")
        A("s_mov_b32 s73, s5")
        for k in range(4): A(f"ds_read_b32 v{64+k}, v5 offset:{k*256}")
        A("s_waitcnt lgkmcnt(0)")
        A("v_add_f32 v64, v64, v65")
        A("v_add_f32 v66, v66, v67")
        A("v_add_f32 v64, v64, v66")
        A("buffer_store_dword v64, v4, s[76:79], s59 offen sc1")
        A("s_waitcnt vmcnt(1)")
        A("s_branch .Lp4_xd")
        if not CX:
            A.label(".Lp4_cx")
            self.p4_xl()
        A.label(".Lp4_nl")
        A("s_cmp_ge_u32 s70, 192")
        A("s_cbranch_scc1 .Lp4_e1")
        if NW:
            A(f"s_cmp_lt_u32 s70, {64 if LT == 3 else 120}")
            A("s_cbranch_scc1 .Lp4_e0")
            A(f"s_cmp_lg_u32 s{W}, 0")
            A("s_cbranch_scc1 .Lp4_e1")
            A("s_branch .Lp4_e2")
            A.label(".Lp4_e0")
        A(f"s_cmp_lg_u32 s{W}, 4")
        A("s_cbranch_scc1 .Lp4_e1")
        self.p3_nload()
        A.label(".Lp4_e2")
        if NW == 2:
            A("s_mov_b32 s6, 1")
            A("s_waitcnt vmcnt(1)")
            A("s_branch .Lp4_xd")
        else:
            A("s_waitcnt vmcnt(0)")
            self.p4_nonce("b")
        A.label(".Lp4_e1")
        A("s_waitcnt vmcnt(0)")
        A.label(".Lp4_xd")
        A("s_mov_b32 s7, 0x3f803f80")
        self.pst(5)
        if WQP == 0 and NW != 2: self.p4_wq()
        S = list(range(80, 88)); Q = list(range(88, 96))
        for r in range(8):
            for j in range(4):
                x = XR + 4 * r + j
                A(f"v_dot2_f32_bf16 v{S[r]}, v{x}, s7, {'0' if j == 0 else 'v%d' % S[r]}")
                A(f"v_dot2_f32_bf16 v{Q[r]}, v{x}, v{x}, {'0' if j == 0 else 'v%d' % Q[r]}")
        make_srd(A, 76, 68, WS_LL, NREP * 16384)
        A(f"s_and_b32 s57, s{M_}, {NREP - 1}")
        A("s_lshl_b32 s57, s57, 14")
        A(f"s_lshl_b32 s4, s{W}, 10")
        A("s_add_u32 s57, s57, s4")
        A("s_add_u32 s58, s57, 8192")
        self.p4_red8([S, Q], ["row_half_mirror", "quad_perm:[1,0,3,2]", "quad_perm:[2,3,0,1]"])
        m = S[0]; q = Q[0]
        A(f"v_mul_f32 v{m}, {fhex(1/512)}, v{m}")
        A(f"v_mul_f32 v{q}, {fhex(1/512)}, v{q}")
        A(f"v_fma_f32 v{q}, -v{m}, v{m}, v{q}")
        A(f"v_cvt_pk_bf16_f32 v{m}, 0, -v{m}")
        A(f"v_max_f32 v{q}, 0, v{q}")
        A(f"v_cvt_pk_bf16_f32 v{q}, 0, v{q}")
        A(f"v_add_f32 v{q}, {fhex(1e-5)}, v{q}")
        A(f"v_cvt_pk_bf16_f32 v{q}, 0, v{q}")
        A(f"v_sqrt_f32 v{q}, v{q}")
        for r in range(4): A(f"v_readlane_b32 s{8+r}, v{m}, {8*r}")
        A(f"v_cvt_pk_bf16_f32 v{q}, 0, v{q}")
        A(f"v_rcp_f32 v{q}, v{q}")
        for r in range(4, 8): A(f"v_readlane_b32 s{8+r}, v{m}, {8*r}")
        for r in range(8): A(f"v_readlane_b32 s{48+r}, v{q}, {8*r}")
        self.pst(6)
        if NW == 2:
            A("s_cmp_eq_u32 s6, 0")
            A("s_cbranch_scc1 .Lp4_e3")
            A("s_waitcnt vmcnt(0)")
            self.p4_nonce("b")
            A.label(".Lp4_e3")
            if WQP == 0: self.p4_wq()
        PPOS = int(os.environ.get("PPOS", "0"))
        if XH:
            A("s_sub_u32 s72, s70, 128")
            A(f"s_cmp_eq_u32 s{W}, 0")
            A("s_cselect_b32 s72, s72, 255")
            A("s_lshl_b32 s59, s72, 8")
            A(f"s_and_b32 s4, s{M_}, {NREP - 1}")
            A("s_lshl_b32 s4, s4, 14")
            A("s_add_u32 s59, s59, s4")
            A("v_and_b32 v7, 31, v1")
            A("v_lshlrev_b32 v7, 3, v7")
        with Cap(A) as cpl:
            if XH:
                lb = ".Lp4_g%d_"
                A("s_cmp_ge_u32 s72, 64")
                A(f"s_cbranch_scc1 {lb}")
                A("buffer_load_dwordx2 v[244:245], v7, s[76:79], s59 offen sc1")
                A.label(lb)
            A("buffer_load_dwordx4 v[236:239], v12, s[76:79], s57 offen sc1")
            A("buffer_load_dwordx4 v[240:243], v12, s[76:79], s58 offen sc1")
            if LDP == 1: loader()
        pn = [0]
        def poll1():
            pn[0] += 1
            A.lines.extend([l.replace("%d", str(pn[0])) for l in cpl.out])
        if DPP_:
            A("s_sub_u32 s6, s70, 64")
            A("s_cmp_ge_u32 s6, 128")
            A("s_cbranch_scc1 .Lp4_p0")
            poll1()
            A.label(".Lp4_p0")
        for r in range(8):
            if r == PPOS and not DPP_: poll1()
            T = 96 + 16 * (r & 1); x = XR + 4 * r
            for j in range(8): A(f"v_dot2_f32_bf16 v{T+j}, v{x+j//2}, v{(K10, K01)[j & 1]}, s{8+r}")
            for j in range(8): A(f"v_cvt_pk_bf16_f32 v{T+j}, 0, v{T+j}")
            sp = 48 + (r & ~1)
            for j in range(4): A(f"v_pk_mul_f32 v[{T+2*j}:{T+2*j+1}], v[{T+2*j}:{T+2*j+1}], s[{sp}:{sp+1}] " + ("op_sel:[0,1]" if r & 1 else "op_sel_hi:[1,0]"))
            for j in range(4): A(f"v_cvt_pk_bf16_f32 v{x+j}, v{T+2*j}, v{T+2*j+1}")
        if DPP_:
            A("s_cmp_lt_u32 s6, 128")
            A("s_cbranch_scc1 .Lp4_p1")
            poll1()
            A.label(".Lp4_p1")
        elif PPOS >= 8: poll1()
        self.pst(8)
        ND = 4 if LDP == 1 else 0
        A(f"s_waitcnt vmcnt({ND})")
        self.p4_nget(".Lp4_ng1")
        if XH:
            A("s_cmp_ge_u32 s72, 64")
            A("s_cbranch_scc1 .Lp4_gd")
            A("s_mov_b32 s4, 0")
            A.label(".Lp4_gl")
            A("v_cmp_ne_u32 vcc, s100, v245")
            A("s_add_u32 s4, s4, 1")
            A("s_cbranch_vccz .Lp4_gd")
            A(f"s_cmp_ge_u32 s4, {KFB}")
            A("s_cbranch_scc1 .Lp4_gf")
            A("buffer_load_dwordx2 v[244:245], v7, s[76:79], s59 offen sc1")
            A("s_waitcnt vmcnt(0)")
            A("s_branch .Lp4_gl")
            A.label(".Lp4_gf")
            A("s_lshr_b32 s5, s72, 5")
            A("s_bfe_u32 s6, s72, 0x40001")
            A("s_lshl_b32 s7, s6, 7")
            self.p4_slow("c", 7, 5, 80, 84, 48, KM)
            A("s_lshl_b32 s5, s5, 13")
            A("s_lshl_b32 s6, s6, 9")
            A("s_add_u32 s5, s5, s6")
            A("v_lshlrev_b32 v2, 3, v2")
            A("v_mov_b32 v115, s100")
            for i in range(NREP):
                A("buffer_store_dwordx2 v[114:115], v2, s[76:79], s5 offen sc1")
                if i < NREP - 1: A("s_add_u32 s5, s5, 16384")
            A.label(".Lp4_gd")
        A("s_mov_b32 s4, 0")
        A(f"s_cmp_ge_u32 s{W}, 4")
        A("s_cselect_b32 s71, 1.0, 0")
        A("s_cselect_b32 s7, 0, 16")
        A(f"s_lshl_b32 s6, s{W}, 9")
        A(f"s_add_u32 s6, s6, {SCR + 4096}")
        A("v_lshlrev_b32 v6, 3, v1")
        A("v_add_u32 v6, s6, v6")
        A.label(".Lp4_chk")
        A("v_xor_b32 v2, s100, v237")
        A("v_xor_b32 v3, s100, v239")
        A("v_xor_b32 v4, s100, v241")
        A("v_xor_b32 v5, s100, v243")
        A("v_or_b32 v2, v2, v3")
        A("v_or_b32 v4, v4, v5")
        A("v_cmp_ne_u32 s[12:13], 0, v2")
        A("v_cmp_ne_u32 vcc, 0, v4")
        A("s_add_u32 s4, s4, 1")
        A("s_or_b64 s[14:15], s[12:13], vcc")
        A("s_cbranch_scc0 .Lp4_ok")
        A("s_cmp_lt_u32 s4, 0x40000")
        A("s_cbranch_scc0 .Lp4_ok")
        if int(os.environ.get("PSL", "0")): A(f"s_sleep {int(os.environ.get('PSL', '0'))}")
        MRL = int(os.environ.get("MRL", "1"))
        if MRL: A("s_mov_b64 exec, s[12:13]")
        A("buffer_load_dwordx4 v[236:239], v12, s[76:79], s57 offen sc1")
        if MRL: A("s_mov_b64 exec, vcc")
        A("buffer_load_dwordx4 v[240:243], v12, s[76:79], s58 offen sc1")
        if MRL: A("s_mov_b64 exec, -1")
        A("s_waitcnt vmcnt(0)")
        A("s_branch .Lp4_chk")
        A.label(".Lp4_ok")
        self.pst(9)
        A("v_add_f32 v236, v236, v240")
        A("v_add_f32 v238, v238, v242")
        A("v_cvt_pk_bf16_f32 v236, 0, v236")
        A("v_cvt_pk_bf16_f32 v238, 0, v238")
        A("v_add_f32 v236, s71, v236")
        A("v_add_f32 v238, s71, v238")
        A("v_cvt_pk_bf16_f32 v2, v236, v238")
        A("v_and_b32 v236, 0xffff, v2")
        A(f"v_and_b32 v237, {KM}, v2")
        A("v_lshlrev_b32 v236, s7, v236")
        A("ds_write_b64 v6, v[236:237]")
        if LDP == 2: loader()
        if WQP == 2: self.p4_wq()
        if int(os.environ.get("YSL", "0")): A(f"s_sleep {int(os.environ.get('YSL', '0'))}")
        A("s_waitcnt lgkmcnt(0)")
        A("s_barrier")
        self.pst(10)
        self.pst_flush()
    def w_setup(self, widx, K, rowbytes, woff_code):
        A = self.A
        make_srd(A, S_W, P_W + 2 * widx, 0, K * rowbytes)
        A(f"v_lshrrev_b32 v2, 3, v{L}")
        A(f"v_and_b32 v3, 7, v{L}")
        A(f"v_lshlrev_b32 v{V_W}, 1, v2")
        A(f"v_and_b32 v{V_W}, 4, v{V_W}")
        A(f"v_xor_b32 v3, v3, v{V_W}")
        A("v_lshlrev_b32 v3, 4, v3")
        A(f"v_mul_u32_u24 v2, {rowbytes}, v2") if rowbytes < 64 else None
        A(f"s_movk_i32 s{S_WOFF}, {rowbytes}")
        A(f"v_mul_lo_u32 v2, v2, s{S_WOFF}")
        A(f"v_add_u32 v{V_W}, v2, v3")
        woff_code()
        self.wrb = rowbytes
    def dmaW(self, st, ldsoff, tag="w"):
        A = self.A
        for i in range(2):
            A(f"s_add_u32 m0, s{S_RB}, {ldsoff + i * 1024}")
            A("s_nop 0")
            A(f"buffer_load_dwordx4 v{V_W}, s[{S_W}:{S_W+3}], s{S_WOFF} offen lds")
            self.vm.issue((tag, st))
            A(f"s_add_u32 s{S_WOFF}, s{S_WOFF}, {8 * self.wrb}")
    def pf_g64(self, widx, K, WB, DW, lo=0, hi=99, rot=0):
        A = self.A
        def woff():
            A(f"s_mul_i32 s{S_WOFF}, s{S_WAVE}, {(K // 4) * 1024}")
            A(f"s_lshl_b32 s{S_TMP+11}, s{S_J}, 7")
            A(f"s_add_u32 s{S_WOFF}, s{S_WOFF}, s{S_TMP+11}")
        if lo == 0: self.w_setup(widx, K, 1024, woff)
        self.wrb = 1024
        for st in range(lo, min(DW, hi)): self.dmaW(st, WB + ((st + rot) % DW) * 2048, "wn" if PFE == 3 else "w")
    def pf_k5(self, lo=0, hi=99):
        A = self.A
        def woff():
            A(f"s_min_u32 s{S_WOFF}, s{S_J}, 6")
            A(f"s_lshl_b32 s{S_WOFF}, s{S_WOFF}, 9")
            A(f"s_lshl_b32 s{S_TMP+11}, s{S_WAVE}, 7")
            A(f"s_add_u32 s{S_WOFF}, s{S_WOFF}, s{S_TMP+11}")
        if lo == 0: self.w_setup(2, 512, 3584, woff)
        self.wrb = 3584
        for st in range(lo, min(K5D, hi)): self.dmaW(st, K5RB + st * 2048, "wn" if PFE == 3 else "w")
    def l2pf(self, widx, size):
        A = self.A
        per = size // 32
        A("s_lshr_b32 s78, s2, 3")
        A(f"s_mul_i32 s78, s78, {per}")
        make_srd(A, 80, P_W + 2 * widx, "s78", per)
        A("v_and_b32 v2, 255, v0")
        A("v_lshlrev_b32 v2, 7, v2")
        n = (per + 32767) // 32768
        for i in range(n):
            A(f"s_mov_b32 s78, {i * 32768}")
            A("buffer_load_dword v3, v2, s[80:83], s78 offen")
        return n
    def persist(self):
        A = self.A
        A(f"s_load_dwordx2 s[{P_X}:{P_X+1}], s[0:1], 0")
        A(f"s_load_dwordx2 s[{P_OUT}:{P_OUT+1}], s[0:1], 96")
        A(f"s_load_dwordx2 s[{P_WS}:{P_WS+1}], s[0:1], 112")
        A(f"s_load_dwordx8 s[{P_W}:{P_W+7}], s[0:1], 48")
        A("v_and_b32 v1, 63, v0")
        A("v_lshrrev_b32 v2, 6, v0")
        A("s_nop 0")
        A(f"v_readfirstlane_b32 s{S_WAVE}, v2")
        A(f"s_and_b32 s{S_M}, s2, 31")
        A(f"s_lshr_b32 s{S_J}, s2, 5")
        A(f"s_mov_b32 s{S_MASK}, 0xffff0000")
        A(f"s_mul_i32 s{S_RB}, s{S_WAVE}, {RG}")
        A("s_waitcnt lgkmcnt(0)")
    def kr(self):
        A = self.A; vm = self.vm
        S_X = 8; S_MOD = 12; S_PT = 16; S_X2 = 20; S_H = 24; S_HN = 28; S_H1 = 36
        PR = 64; XR = 16; GA = 24; CB = 32; SB = 40
        A("v_lshlrev_b32 v9, 4, v1")
        A("v_lshlrev_b32 v10, 5, v1")
        A(f"s_lshl_b32 s3, s{S_M}, 3")
        A(f"s_add_u32 s3, s3, s{S_J}")
        A("s_lshl_b32 s3, s3, 3")
        A(f"s_add_u32 s3, s3, s{S_WAVE}")
        A("s_lshl_b32 s3, s3, 10")
        make_srd(A, S_X, P_X, 0, 2 * MB)
        make_srd(A, S_MOD, P_WS, WS_MOD, 4 * MODP)
        A(f"buffer_load_dwordx4 v[{XR}:{XR+3}], v9, s[{S_X}:{S_X+3}], s3 offen"); vm.issue("x")
        def modloads():
            for part in range(2 if V2 else 1):
                for (dst, idx) in ((CB, 4), (GA, 2), (SB, 3)):
                    d = dst + 88 * part
                    A(f"s_movk_i32 s{S_TMP}, {idx*2048 + part*MODP}")
                    A(f"buffer_load_dwordx4 v[{d}:{d+3}], v10, s[{S_MOD}:{S_MOD+3}], s{S_TMP} offen"); vm.issue("x")
                    A(f"buffer_load_dwordx4 v[{d+4}:{d+7}], v10, s[{S_MOD}:{S_MOD+3}], s{S_TMP} offen offset:16"); vm.issue("x")
        if W0M:
            A("v_add_u32 v2, 81920, v10")
            for q, off in enumerate((0, 16384, 49152)):
                A(f"ds_read_b128 v[{24+8*q}:{27+8*q}], v2 offset:{off}")
                A(f"ds_read_b128 v[{28+8*q}:{31+8*q}], v2 offset:{off+16}")
            A("s_waitcnt lgkmcnt(0)")
        else: modloads()
        make_srd(A, S_PT, P_WS, WS_PART, 8 * 2048 * 512 * 2)
        make_srd(A, S_X2, P_WS, WS_X2, 2 * MB)
        make_srd(A, S_H, P_WS, WS_H, 2 * MB)
        make_srd(A, S_HN, P_WS, WS_HN, 2 * MB)
        make_srd(A, S_H1, P_WS, WS_H1, 2052 * 1024)
        if HP:
            A(f"v_lshlrev_b32 v2, 2, v1")
            A(f"v_add_u32 v2, {CNT}, v2")
            A("v_mov_b32 v3, 0")
            A("ds_write_b32 v2, v3")
            A("s_waitcnt lgkmcnt(0)")
        A(f"s_cmp_ge_u32 s{S_WAVE}, 4")
        A("s_cbranch_scc1 .Lkr_nz2")
        A(f"s_lshr_b32 s{S_TMP}, s{S_WAVE}, 1")
        A(f"s_mul_i32 s{S_TMP}, s{S_TMP}, 31")
        A(f"s_cmp_lg_u32 s2, s{S_TMP}")
        A("s_cbranch_scc1 .Lkr_nz")
        A(f"s_lshl_b32 s{S_TMP}, s{S_WAVE}, 10")
        A(f"s_add_u32 s{S_TMP+1}, s{S_TMP}, {2048*1024}")
        A(f"s_cmp_lt_u32 s{S_WAVE}, 2")
        A(f"s_cselect_b32 s{S_TMP}, s{S_TMP}, s{S_TMP+1}")
        for j in range(4): A(f"v_mov_b32 v{12+j}, 0")
        A(f"buffer_store_dwordx4 v[12:15], v9, s[{S_H1}:{S_H1+3}], s{S_TMP} offen sc1")
        A.label(".Lkr_nz")
        PFW1 = int(os.environ.get("PFW1", "1"))
        if PRG:
            PFP = int(os.environ.get("PFP", "1"))
            if PFP == 0: self.pf_g64(0, 512, 24576, 8)
            PFW1 = 0
            A.label(".Lkr_nz2")
            A(f"s_mul_i32 s{S_TMP}, s{S_M}, {7 * 65536}")
            A(f"s_add_u32 s{S_TMP}, s{S_TMP}, s3")
            A(f"v_mov_b32 v4, {MSK}")
            A(f"s_mov_b32 s{S_TMP+1}, 0")
            A(f"s_cmp_lg_u32 s{S_WAVE}, 7")
            A("s_cbranch_scc1 .Lkr_lp")
            A("v_and_b32 v3, 7, v1")
            A("v_lshlrev_b32 v3, 3, v3")
            A("v_add_u32 v3, s96, v3")
            A("s_mov_b32 s99, 0")
            A.label(".Lkr_pp")
            A("buffer_load_dwordx2 v[248:249], v3, s[92:95], 0 offen sc1")
            A("s_add_u32 s99, s99, 1")
            A("s_waitcnt vmcnt(0)")
            A("v_xor_b32 v248, s100, v248")
            A("v_xor_b32 v249, s101, v249")
            A("v_or_b32 v248, v248, v249")
            A("v_cmp_eq_u32 vcc, 0, v248")
            A(f"s_and_b32 s{S_TMP+2}, vcc_lo, 0xff")
            A("s_cmp_lt_u32 s99, 0x40000")
            A(f"s_cselect_b32 s{S_TMP+2}, s{S_TMP+2}, 0xff")
            A(f"v_mov_b32 v5, s{S_TMP+2}")
            A("s_mov_b64 exec, 1")
            A("ds_or_b32 v4, v5")
            A("s_mov_b64 exec, -1")
            A(f"s_cmp_lg_u32 s{S_TMP+2}, 0xff")
            A("s_cbranch_scc1 .Lkr_pp")
            self.stamp(4)
            A.label(".Lkr_lp")
            A("ds_read_b32 v5, v4")
            A("s_waitcnt lgkmcnt(0)")
            A(f"v_readfirstlane_b32 s{S_TMP+2}, v5")
            A(f"s_andn2_b32 s{S_TMP+3}, s{S_TMP+2}, s{S_TMP+1}")
            A("s_cbranch_scc1 .Lkr_new")
            A("s_sleep 1")
            A("s_branch .Lkr_lp")
            A.label(".Lkr_new")
            for g in range(8):
                A(f"s_bitcmp1_b32 s{S_TMP+3}, {g}")
                A(f"s_cbranch_scc0 .Lkr_n{g}")
                A(f"s_add_u32 s{S_TMP+4}, s{S_TMP}, {g * 65536}")
                A(f"buffer_load_dwordx4 v[{PR+4*g}:{PR+4*g+3}], v9, s[{S_PT}:{S_PT+3}], s{S_TMP+4} offen")
                A.label(f".Lkr_n{g}")
            A(f"s_mov_b32 s{S_TMP+1}, s{S_TMP+2}")
            A(f"s_cmp_lg_u32 s{S_TMP+1}, 0xff")
            A("s_cbranch_scc1 .Lkr_lp")
            if PFP == 1:
                A(f"s_cmp_ge_u32 s{S_WAVE}, 4")
                A("s_cbranch_scc1 .Lkr_w0")
                self.pf_g64(0, 512, 24576, 8)
                A("s_waitcnt vmcnt(16)")
                A("s_branch .Lkr_w1")
                A.label(".Lkr_w0")
            A("s_waitcnt vmcnt(0)")
            if PFP == 1: A.label(".Lkr_w1")
            if PFP == 2: PFW1 = 2
            vm.ops = []
        else:
            sv = list(vm.ops)
            if PFW1 == 1: self.pf_g64(0, 512, 24576, 8)
            vm.ops = sv
            A.label(".Lkr_nz2")
            def rebuild():
                make_srd(A, S_PT, P_WS, WS_PART, 8 * 2048 * 512 * 2)
                make_srd(A, S_X2, P_WS, WS_X2, 2 * MB)
                make_srd(A, S_X, P_X, 0, 2 * MB)
                make_srd(A, S_MOD, P_WS, WS_MOD, 4 * MODP)
            self.poll(0, after=rebuild)
            A("s_barrier")
            self.stamp(4)
            PL = int(os.environ.get("PL", "1"))
            if PL:
                A(f"s_mul_i32 s{S_TMP}, s{S_M}, {7 * 65536}")
                A(f"s_add_u32 s{S_TMP}, s{S_TMP}, s3")
            else: A(f"s_mov_b32 s{S_TMP}, s3")
            for g in range(8):
                A(f"buffer_load_dwordx4 v[{PR+4*g}:{PR+4*g+3}], v9, s[{S_PT}:{S_PT+3}], s{S_TMP} offen {os.environ.get('PLF', '')}"); vm.issue(("p", g))
                if g < 7: A(f"s_add_u32 s{S_TMP}, s{S_TMP}, {65536 if PL else 2048*512*2}")
        X = list(range(48, 56)); T = list(range(PR, PR + 12)); XU = list(range(96, 104))
        if PFW1 == 3:
            def woff():
                A(f"s_and_b32 s{S_TMP+9}, s{S_WAVE}, 3")
                A(f"s_lshr_b32 s{S_TMP+8}, s{S_WAVE}, 2")
                A(f"s_lshl_b32 s{S_WOFF}, s{S_TMP+9}, 17")
                A(f"s_lshl_b32 s{S_TMP+11}, s{S_TMP+8}, 16")
                A(f"s_add_u32 s{S_WOFF}, s{S_WOFF}, s{S_TMP+11}")
                A(f"s_lshl_b32 s{S_TMP+11}, s{S_J}, 7")
                A(f"s_add_u32 s{S_WOFF}, s{S_WOFF}, s{S_TMP+11}")
                A(f"s_mov_b32 s{S_TMP+7}, s{S_RB}")
                A(f"s_mul_i32 s{S_RB}, s{S_TMP+9}, {RG}")
                A(f"s_lshl_b32 s{S_TMP+8}, s{S_TMP+8}, 13")
                A(f"s_add_u32 s{S_RB}, s{S_RB}, s{S_TMP+8}")
            self.w_setup(0, 512, 1024, woff)
            for st in range(4): self.dmaW(st, 24576 + st * 2048, "wn")
            A(f"s_mov_b32 s{S_RB}, s{S_TMP+7}")
        if int(os.environ.get("KRX", "0")):
            vm.wait(("p", 0)); self.stamp(25)
            vm.wait(("p", 7)); self.stamp(26)
        vm.wait("x")
        if V2 and not W0M:
            for j in range(0, 24, 2): pk(A, "v_pk_add_f32", GA + j, GA + j, GA + 88 + j)
            for q in range(3): round_multi(A, list(range(GA + 8*q, GA + 8*q + 8)), [56, 57, 58, 59], SM)
        if not W0M:
            for j in range(8): A(f"v_add_f32 v{CB+j}, 1.0, v{CB+j}")
            round_multi(A, list(range(CB, CB + 8)), [56, 57, 58, 59], SM)
        for j in range(4):
            A(f"v_lshlrev_b32 v{XU[2*j]}, 16, v{XR+j}")
            A(f"v_and_b32 v{XU[2*j+1]}, {SM}, v{XR+j}")
        if KRF:
            A("v_mov_b32 v56, 0x3f80")
            A("v_mov_b32 v57, 1.0")
            A("s_mov_b32 s50, 0x3f803f80")
        for g in range(8):
            vm.wait(("p", g))
            if KRF:
                for j in range(8): A(f"v_dot2_f32_bf16 v{X[j]}, v{PR+4*g+j//2}, v{56 + (j & 1)}, " + ("0" if g == 0 else f"v{X[j]}"))
            elif g == 0:
                for j in range(4):
                    A(f"v_lshlrev_b32 v{X[2*j]}, 16, v{PR+j}")
                    A(f"v_and_b32 v{X[2*j+1]}, {SM}, v{PR+j}")
            else:
                U = 136 + 8 * (g & 1)
                for j in range(4):
                    p = PR + 4 * g + j
                    A(f"v_lshlrev_b32 v{U+2*j}, 16, v{p}")
                    A(f"v_and_b32 v{U+2*j+1}, {SM}, v{p}")
                for j in range(0, 8, 2): pk(A, "v_pk_add_f32", X[j], X[j], U + j)
        self.stamp(23)
        if PFW1 == 2:
            A(f"s_cmp_ge_u32 s{S_WAVE}, 4")
            A("s_cbranch_scc1 .Lkr_nz3")
            self.pf_g64(0, 512, 24576, 8)
            A.label(".Lkr_nz3")
        round_multi(A, X, T[5:9], SM)
        for j in range(0, 8, 2): pk(A, "v_pk_mul_f32", X[j], X[j], GA + j)
        round_multi(A, X, T[5:9], SM)
        for j in range(0, 8, 2): pk(A, "v_pk_add_f32", X[j], X[j], XU[j])
        pack8(A, X, XR)
        A(f"buffer_store_dwordx4 v[{XR}:{XR+3}], v9, s[{S_X2}:{S_X2+3}], s3 offen sc1")
        if KRF:
            ln_pk(A, XR, X, 58, 59, 56, 57, 50, 52, 54, SM)
            round_multi(A, X, T[5:9], SM)
        else:
            for j in range(4):
                A(f"v_lshlrev_b32 v{X[2*j]}, 16, v{XR+j}")
                A(f"v_and_b32 v{X[2*j+1]}, {SM}, v{XR+j}")
            ln_rows(A, [(X, T)], SM)
        for j in range(0, 8, 2): pk(A, "v_pk_mul_f32", X[j], X[j], CB + j)
        round_multi(A, X, T[5:9], SM)
        for j in range(0, 8, 2): pk(A, "v_pk_add_f32", X[j], X[j], SB + j)
        pack8(A, X, 80)
        A(f"buffer_store_dwordx4 v[80:83], v9, s[{S_H}:{S_H+3}], s3 offen sc1")
        self.stamp(24)
        if KRF: ln_pk(A, 80, X, 58, 59, 56, 57, 50, 52, 54, SM)
        else:
            for j in range(4):
                A(f"v_lshlrev_b32 v{X[2*j]}, 16, v{80+j}")
                A(f"v_and_b32 v{X[2*j+1]}, {SM}, v{80+j}")
            ln_rows(A, [(X, T)], SM, False)
        pack8(A, X, 84)
        A(f"buffer_store_dwordx4 v[84:87], v9, s[{S_HN}:{S_HN+3}], s3 offen sc1")
    def g64(self, lab, stage, K, a_off, a_size, a_rb, epi, WB, DW, nbr, next_pf, own_pf=None, rot=0, nsched=None, l2=None, split=False):
        A = self.A; vm = self.vm; lg = self.lg
        S_G = 8; S_X1 = 16; S_X2 = 20; S_MOD = 24; S_O = 28; S_ST = 36
        KW = K // 4; NCH = KW // 64; NS = NCH * 4; DG = 3
        VG = [4, 5]; AA = 16; BA = 18
        X1 = 24; X2 = 32; GB = 40
        V_PW = 48; V_PR = 49; V_GA = 51; V_SA = 52; VC = (12, 14, 54)
        ACC = 64; FR = 128
        NBG = int(os.environ.get('NBG', '3'))
        half = HP and K == 512
        SW = S_R8 if half else S_WAVE
        CO = 16 * stage
        def tail_setup():
            if half:
                A(f"s_add_u32 s{S_R8}, s{S_WAVE}, 4")
                A(f"s_and_b32 s{S_R8}, s{S_R8}, 7")
                A(f"v_mov_b32 v{V_CT}, {CNT}")
            A(f"v_lshrrev_b32 v10, 3, v{L}")
            A(f"v_and_b32 v11, 7, v{L}")
            A(f"v_mul_u32_u24 v{V_PR}, {RS}, v10")
            A(f"v_lshl_add_u32 v{V_PR}, v11, 5, v{V_PR}")
            A(f"s_mul_i32 s{S_TMP+3}, s{SW}, {8*RS}")
            A(f"v_add_u32 v{V_PR}, s{S_TMP+3}, v{V_PR}")
            A(f"v_add_u32 v{V_PR+1}, {2*RG}, v{V_PR}")
            A(f"v_lshlrev_b32 v{V_GA}, 4, v11")
            A(f"v_lshl_add_u32 v{V_GA}, v10, 10, v{V_GA}")
            A(f"s_lshl_b32 s{S_TMP+2}, s{S_M}, 16")
            A(f"s_lshl_b32 s{S_TMP+3}, s{SW}, 13")
            A(f"s_add_u32 s{S_TMP+2}, s{S_TMP+2}, s{S_TMP+3}")
            A(f"s_lshl_b32 s{S_TMP+3}, s{S_J}, 7")
            A(f"s_add_u32 s{S_TMP+2}, s{S_TMP+2}, s{S_TMP+3}")
            if epi == "final":
                A(f"v_lshlrev_b32 v{V_SA}, 5, v11")
                make_srd(A, S_X1, P_WS, WS_X1, 2 * MB)
                make_srd(A, S_X2, P_WS, WS_X2, 2 * MB)
                make_srd(A, S_MOD, P_WS, WS_MOD, 4 * MODP)
                make_srd(A, S_O, P_OUT, 0, 2 * MB)
                A(f"buffer_load_dwordx4 v[{X1}:{X1+3}], v{V_GA}, s[{S_X1}:{S_X1+3}], s{S_TMP+2} offen"); vm.issue("e")
                A(f"buffer_load_dwordx4 v[{X2}:{X2+3}], v{V_GA}, s[{S_X2}:{S_X2+3}], s{S_TMP+2} offen"); vm.issue("e")
                A(f"s_lshl_b32 s{S_TMP+3}, s{S_J}, 8")
                A(f"s_add_u32 s{S_TMP+3}, s{S_TMP+3}, {5*2048}")
                for h4 in range(2):
                    A(f"buffer_load_dwordx4 v[{GB+4*h4}:{GB+4*h4+3}], v{V_SA}, s[{S_MOD}:{S_MOD+3}], s{S_TMP+3} offen offset:{h4*16}"); vm.issue("e")
                if V2:
                    A(f"s_add_u32 s{S_TMP+3}, s{S_TMP+3}, {MODP}")
                    for h4 in range(2):
                        A(f"buffer_load_dwordx4 v[{180+4*h4}:{183+4*h4}], v{V_SA}, s[{S_MOD}:{S_MOD+3}], s{S_TMP+3} offen offset:{h4*16}"); vm.issue("e")
            elif epi == "res":
                A(f"v_lshlrev_b32 v{V_SA}, 3, v10")
                A(f"s_lshl_b32 s{S_TMP+6}, s{S_M}, 9")
                A(f"s_lshl_b32 s{S_TMP+3}, s{SW}, 6")
                A(f"s_add_u32 s{S_TMP+6}, s{S_TMP+6}, s{S_TMP+3}")
                A(f"s_lshl_b32 s{S_TMP+3}, s{S_J}, 14")
                A(f"s_add_u32 s{S_TMP+6}, s{S_TMP+6}, s{S_TMP+3}")
                make_srd(A, S_X1, P_WS, WS_H, 2 * MB)
                make_srd(A, S_O, P_WS, WS_X1, 2 * MB)
                make_srd(A, S_ST, P_WS, WS_STAT, 2048 * 128)
                A(f"buffer_load_dwordx4 v[{X1}:{X1+3}], v{V_GA}, s[{S_X1}:{S_X1+3}], s{S_TMP+2} offen"); vm.issue("e")
            else:
                A(f"v_mov_b32 v{VC[0]}, {fhex(GK1)}")
                A(f"v_mov_b32 v{VC[1]}, {fhex(GK0)}")
                A(f"v_mov_b32 v{VC[2]}, 1.0")
                make_srd(A, S_O, P_WS, WS_H1 + 2048, 2 * MB)
        A(f"s_cmp_ge_u32 s{S_WAVE}, 4")
        A(f"s_cbranch_scc1 .L{lab}_help")
        if own_pf and PFE == 2: own_pf(NE, 99)
        A(f"v_lshrrev_b32 v7, 3, v{L}")
        A(f"v_and_b32 v8, 7, v{L}")
        A("v_lshrrev_b32 v9, 1, v7")
        A("v_xor_b32 v9, v8, v9")
        A(f"s_movk_i32 s{S_TMP}, {a_rb}")
        A(f"v_mul_lo_u32 v10, v7, s{S_TMP}")
        A(f"v_lshl_add_u32 v{VG[0]}, v9, 4, v10")
        A("v_xor_b32 v9, 4, v9")
        A(f"v_lshl_add_u32 v{VG[1]}, v9, 4, v10")
        A(f"s_mul_i32 s{S_GOFF}, s{S_M}, {64*a_rb}")
        A(f"s_mul_i32 s{S_TMP}, s{S_WAVE}, {KW*2}")
        A(f"s_add_u32 s{S_GOFF}, s{S_GOFF}, s{S_TMP}")
        if epi == "res":
            A(f"s_lshl_b32 s{S_TMP}, s{S_WAVE}, 2")
            A(f"s_lshr_b32 s{S_TMP+1}, 0x4031, s{S_TMP}")
            A(f"s_and_b32 s{S_TMP+1}, s{S_TMP+1}, 15")
            A(f"s_lshl_b32 s{S_TMP+1}, s{S_TMP+1}, 10")
            A(f"s_add_u32 s{S_GOFF}, s{S_GOFF}, s{S_TMP+1}")
        make_srd(A, S_G, P_WS, a_off, a_size)
        A(f"v_lshrrev_b32 v7, 5, v{L}")
        A(f"v_bfe_u32 v8, v{L}, 4, 1")
        A(f"v_bfe_u32 v9, v{L}, 2, 2")
        A(f"v_and_b32 v10, 1, v{L}")
        A(f"v_bfe_u32 v11, v{L}, 1, 1")
        A("v_lshl_or_b32 v10, v10, 1, v11")
        A("v_lshlrev_b32 v10, 3, v10")
        A("v_lshl_add_u32 v10, v8, 5, v10")
        A("v_lshl_add_u32 v11, v7, 3, v9")
        A("v_lshrrev_b32 v12, 1, v9")
        for nb in range(2):
            A(f"v_xor_b32 v13, {nb}, v12")
            A("v_lshl_add_u32 v13, v13, 6, v10")
            A("v_lshl_add_u32 v13, v11, 7, v13")
            A(f"v_add_u32 v{AA+nb}, s{S_RB}, v13")
        A(f"v_and_b32 v8, 31, v{L}")
        A("v_bfe_u32 v9, v8, 1, 3")
        for ks in range(4):
            A(f"v_or_b32 v10, {2*ks}, v7")
            A("v_xor_b32 v10, v10, v9")
            A("v_lshlrev_b32 v10, 4, v10")
            A("v_lshl_add_u32 v10, v8, 7, v10")
            A(f"v_add_u32 v{BA+ks}, s{S_RB}, v10")
        A(f"v_mul_u32_u24 v{V_PW}, {RS}, v8")
        A(f"v_lshl_add_u32 v{V_PW}, v7, 5, v{V_PW}")
        A(f"v_add_u32 v{V_PW}, s{S_RB}, v{V_PW}")
        tail_setup()
        A("s_barrier")
        self.stamp(1 + 4 * stage + 3)
        def dmaG(ch):
            base = (ch % DG) * 8192
            for i in range(8):
                A(f"s_add_u32 m0, s{S_RB}, {base + i * 1024}")
                A(f"s_add_u32 s{S_TMP}, s{S_GOFF}, {i * 8 * a_rb + ch * 128}")
                A(f"buffer_load_dwordx4 v{VG[i & 1]}, s[{S_G}:{S_G+3}], s{S_TMP} offen lds")
                vm.issue(("g", ch))
        if half:
            HB = 32 * RS
            def dmaGh(h, ch):
                for i in range(4):
                    A(f"s_add_u32 m0, s{S_RB}, {h * HB + ch * 4096 + i * 1024}")
                    A(f"s_add_u32 s{S_TMP}, s{S_GOFF}, {(4 * h + i) * 8 * a_rb + ch * 128}")
                    A(f"buffer_load_dwordx4 v{VG[i & 1]}, s[{S_G}:{S_G+3}], s{S_TMP} offen lds")
                    vm.issue(("g", h, ch))
            WF = 128; BFR = 192
            def readsh(h, step):
                ch, ks = step // 4, step % 4
                if h == 0:
                    for nb in range(2):
                        for q in range(2):
                            d = WF + step * 8 + nb * 4 + q * 2
                            A(f"ds_read_b64_tr_b16 v[{d}:{d+1}], v{AA+nb} offset:{WB + step * 2048 + q * 512}")
                            lg.issue(("f", step))
                d = BFR + step * 4
                A(f"ds_read_b128 v[{d}:{d+3}], v{BA+ks} offset:{h * HB + ch * 4096}")
                lg.issue(("f", step))
            dmaGh(0, 0); dmaGh(0, 1)
            if not split: dmaGh(1, 0); dmaGh(1, 1)
            for h in range(2):
                if h == 1 and split:
                    self.lds_spin(f".L{lab}_rb", 12, 1, False, V_CT)
                    dmaGh(1, 0); dmaGh(1, 1)
                PD = 2 if h == 0 else 4
                for s0 in range(PD):
                    vm.wait(("g", h, 0)); readsh(h, s0)
                for st in range(8):
                    lg.wait(("f", st))
                    with Cap(A) as cp:
                        if st + PD < 8:
                            vm.wait(("g", h, (st + PD) // 4)); readsh(h, st + PD)
                        if h == HPH and nsched and st in nsched: next_pf(*nsched[st])
                    mf = []
                    for nb in range(2):
                        acc = ACC + (nb * 2 + h) * 16
                        c = "0" if st == 0 else f"v[{acc}:{acc+15}]"
                        mf.append(f"v_mfma_f32_32x32x16_bf16 v[{acc}:{acc+15}], v[{WF+st*8+nb*4}:{WF+st*8+nb*4+3}], v[{BFR+st*4}:{BFR+st*4+3}], {c}")
                    interleave(A, mf, cp.out)
                A("s_nop 7")
                A("s_nop 3")
                for nb in range(2):
                    tl = nb * 2 + h
                    for r4 in range(4):
                        A(f"ds_write_b128 v{V_PW}, v[{ACC+tl*16+r4*4}:{ACC+tl*16+r4*4+3}] offset:{h*HB + (nb*8 + (r4 >> 1)*4 + (r4 & 1))*16}")
                A("s_waitcnt lgkmcnt(0)")
                self.lds_inc(CO + 4 * h, V_CT)
                if h == 0 and HPH == 2 and nsched:
                    for st in range(8): next_pf(*nsched[st])
            vm.wait("e")
            self.lds_spin(f".L{lab}_sb", CO + 4, 4, False, V_CT)
            A(f"s_branch .L{lab}_join")
        else:
            for ch in range(min(DG, NCH)): dmaG(ch)
            def reads(step):
                ch, ks = step // 4, step % 4
                buf = FR + (step % NBG) * 16
                for nb in range(2):
                    for q in range(2):
                        A(f"ds_read_b64_tr_b16 v[{buf+nb*4+q*2}:{buf+nb*4+q*2+1}], v{AA+nb} offset:{WB + ((step + rot) % DW) * 2048 + q * 512}")
                        lg.issue(("f", step))
                for rb in range(2):
                    A(f"ds_read_b128 v[{buf+8+rb*4}:{buf+8+rb*4+3}], v{BA+ks} offset:{(ch % DG) * 8192 + rb * 4096}")
                    lg.issue(("f", step))
            def need(step):
                vm.wait(("w", step)); vm.wait(("g", step // 4))
            for s0 in range(NBG - 1):
                need(s0); reads(s0)
            for st in range(NS):
                lg.wait(("f", st))
                with Cap(A) as cp:
                    if st + DW < NS: self.dmaW(st + DW, WB + ((st + rot) % DW) * 2048)
                    if st % 4 == 3 and st // 4 + DG < NCH: dmaG(st // 4 + DG)
                    if st + NBG - 1 < NS:
                        need(st + NBG - 1); reads(st + NBG - 1)
                    if st + DW >= NS and PFE == 3 and nsched and st in nsched: next_pf(*nsched[st])
                buf = FR + (st % NBG) * 16
                mf = []
                for nb in range(2):
                    for rb in range(2):
                        acc = ACC + (nb * 2 + rb) * 16
                        c = "0" if st == 0 else f"v[{acc}:{acc+15}]"
                        mf.append(f"v_mfma_f32_32x32x16_bf16 v[{acc}:{acc+15}], v[{buf+nb*4}:{buf+nb*4+3}], v[{buf+8+rb*4}:{buf+8+rb*4+3}], {c}")
                interleave(A, mf, cp.out)
            vm.wait("e")
            if not int(os.environ.get("KRX", "0")): self.stamp({1: 25, 2: 26, 4: 27}[stage])
            A("s_nop 7")
            A("s_nop 1")
            for tl in range(4):
                nb, rb = tl >> 1, tl & 1
                for r4 in range(4):
                    A(f"ds_write_b128 v{V_PW}, v[{ACC+tl*16+r4*4}:{ACC+tl*16+r4*4+3}] offset:{rb*32*RS + (nb*8 + (r4 >> 1)*4 + (r4 & 1))*16}")
                if tl == 1: A("s_waitcnt lgkmcnt(0)")
            if next_pf and PFE == 1: next_pf()
            A("s_waitcnt lgkmcnt(0)")
            A(f"s_branch .L{lab}_join")
        A.label(f".L{lab}_help")
        sv = list(vm.ops)
        tail_setup()
        vm.ops = sv
        self.poll(stage, nbr)
        A("s_barrier")
        self.stamp(1 + 4 * stage + 3)
        n = sum(self.l2pf(*x) for x in l2) if l2 else 0
        A(f"s_waitcnt vmcnt({n})")
        if half: self.lds_spin(f".L{lab}_sa", CO, 4, True, V_CT)
        A.label(f".L{lab}_join")
        if not half: A("s_barrier")
        for p in range(4):
            for h in range(2):
                d = ACC + p * 16 + h * 4
                A(f"ds_read_b128 v[{d}:{d+3}], v{V_PR + (p >> 1)} offset:{(p & 1)*RG + h*16}")
        xs = list(range(ACC, ACC + 8)); tp = list(range(72, 80)); t8 = list(range(88, 96))
        b = ACC
        def unpack(src, dst):
            for k in range(4):
                A(f"v_lshlrev_b32 v{dst[2*k]}, 16, v{src+k}")
                A(f"v_and_b32 v{dst[2*k+1]}, {SM}, v{src+k}")
        if epi != "gelu": unpack(X1, tp)
        if epi == "final":
            unpack(X2, list(range(104, 112)))
            if V2:
                for k in range(0, 8, 2): pk(A, "v_pk_add_f32", GB + k, GB + k, 180 + k)
                round_multi(A, list(range(GB, GB + 8)), t8, SM)
        A("s_waitcnt lgkmcnt(4)")
        for e in range(0, 8, 2): pk(A, "v_pk_add_f32", b + e, b + e, b + 16 + e)
        A("s_waitcnt lgkmcnt(0)")
        for e in range(0, 8, 2): pk(A, "v_pk_add_f32", b + 32 + e, b + 32 + e, b + 48 + e)
        for e in range(0, 8, 2): pk(A, "v_pk_add_f32", b + e, b + e, b + 32 + e)
        round_multi(A, xs, t8, SM)
        def store():
            for k in range(4): A(f"v_cvt_pk_bf16_f32 v{56+k}, v{xs[2*k]}, v{xs[2*k+1]}")
            A(f"buffer_store_dwordx4 v[56:59], v{V_GA}, s[{S_O}:{S_O+3}], s{S_TMP+2} offen sc1")
        if epi == "gelu":
            X = xs; T = tp
            for e in range(0, 8, 2): pk(A, "v_pk_mul_f32", T[e], X[e], X[e])
            for e in range(0, 8, 2): pk(A, "v_pk_fma_f32", T[e], T[e], VC[0], VC[1], "op_sel_hi:[1,0,0]")
            for e in range(0, 8, 2): pk(A, "v_pk_mul_f32", T[e], T[e], X[e])
            for e in range(8): A(f"v_exp_f32 v{T[e]}, v{T[e]}")
            for e in range(0, 8, 2): pk(A, "v_pk_add_f32", T[e], T[e], VC[2], None, "op_sel_hi:[1,0]")
            for e in range(8): A(f"v_rcp_f32 v{T[e]}, v{T[e]}")
            A("s_nop 0")
            for e in range(0, 8, 2): pk(A, "v_pk_mul_f32", X[e], X[e], T[e])
            store()
        elif epi == "res":
            for k in range(0, 8, 2): pk(A, "v_pk_add_f32", xs[k], xs[k], tp[k])
            store()
            unpack(56, xs)
            X = xs
            pk(A, "v_pk_mul_f32", tp[0], X[0], X[0])
            pk(A, "v_pk_add_f32", tp[2], X[0], X[2])
            for e in range(2, 8, 2):
                pk(A, "v_pk_fma_f32", tp[0], X[e], X[e], tp[0])
                if e >= 4: pk(A, "v_pk_add_f32", tp[2], tp[2], X[e])
            A(f"v_add_f32 v20, v{tp[2]}, v{tp[3]}")
            A(f"v_add_f32 v21, v{tp[0]}, v{tp[1]}")
            A("s_nop 1")
            for dpp in ("quad_perm:[1,0,3,2]", "quad_perm:[2,3,0,1]", "row_half_mirror"):
                for v in (20, 21):
                    A(f"v_add_f32_dpp v{v}, v{v}, v{v} {dpp} row_mask:0xf bank_mask:0xf")
                A("s_nop 1")
            A("v_and_b32 v10, 7, v1")
            A("v_cmp_eq_u32 vcc, 0, v10")
            A("s_and_saveexec_b64 s[78:79], vcc")
            A(f"buffer_store_dwordx2 v[20:21], v{V_SA}, s[{S_ST}:{S_ST+3}], s{S_TMP+6} offen sc1")
            A("s_mov_b64 exec, s[78:79]")
        else:
            for k in range(0, 8, 2): pk(A, "v_pk_add_f32", xs[k], xs[k], tp[k])
            round_multi(A, xs, t8, SM)
            for k in range(0, 8, 2): pk(A, "v_pk_mul_f32", xs[k], xs[k], GB + k)
            round_multi(A, xs, t8, SM)
            for k in range(0, 8, 2): pk(A, "v_pk_add_f32", xs[k], xs[k], 104 + k)
            store()
    def k5(self, stage, next_pf, own_pf=None):
        A = self.A; vm = self.vm; lg = self.lg
        S_A = 8; S_O = 20; S_ST = 24; S_CS = 28
        VB = [16, 28]; AA = 24; ACC = 64; FQ = 128
        D = K5D
        NB5 = int(os.environ.get('NB5', '3'))
        A(f"s_cmp_lt_u32 s{S_WAVE}, 4")
        A("s_cbranch_scc1 .Lk5_main")
        A(f"s_cmp_eq_u32 s{S_J}, 7")
        A("s_cbranch_scc1 .Lk5_h7")
        if CS6:
            A(f"s_cmp_ge_u32 s{S_WAVE}, 6")
            A("s_cbranch_scc1 .Lk5_cse")
            make_srd(A, 8, P_WS, WS_CS2, 8 * 1792 * 8)
            A(f"s_sub_u32 s48, s{S_WAVE}, 4")
            A(f"s_lshl_b32 s49, s{S_J}, 11")
            A("s_lshl_b32 s50, s48, 10")
            A("s_add_u32 s49, s49, s50")
            A("v_lshlrev_b32 v4, 4, v1")
            A(f"s_mul_i32 s50, s48, {2 * RG}")
            A("s_add_u32 s50, s50, 16384")
            A("v_lshrrev_b32 v5, 5, v1")
            A(f"v_mul_u32_u24 v5, {RG}, v5")
            A("v_and_b32 v6, 31, v1")
            A("v_lshl_add_u32 v5, v6, 3, v5")
            A("v_add_u32 v5, s50, v5")
            A("s_mov_b32 s52, 0")
            A.label(".Lk5_csl")
            A("s_mov_b32 s51, s49")
            for r in range(8):
                A(f"buffer_load_dwordx4 v[{64+4*r}:{67+4*r}], v4, s[8:11], s51 offen sc1")
                if r < 7: A(f"s_add_u32 s51, s51, {1792 * 8}")
            A("s_add_u32 s52, s52, 1")
            A("v_mov_b32 v6, 0")
            A("s_waitcnt vmcnt(0)")
            for r in range(8):
                A(f"v_xor_b32 v{65+4*r}, s100, v{65+4*r}")
                A(f"v_xor_b32 v{67+4*r}, s100, v{67+4*r}")
                A(f"v_or3_b32 v6, v6, v{65+4*r}, v{67+4*r}")
            A("v_cmp_ne_u32 vcc, 0, v6")
            A("s_cmp_lt_u32 s52, 0x40000")
            A("s_cbranch_scc0 .Lk5_csd")
            A("s_cbranch_vccnz .Lk5_csl")
            A.label(".Lk5_csd")
            for st in (4, 8, 16):
                for r in range(0, 32, 2 * st):
                    A(f"v_add_f32 v{64+r}, v{64+r}, v{64+r+st}")
                    A(f"v_add_f32 v{66+r}, v{66+r}, v{66+r+st}")
            A("v_mov_b32 v65, v66")
            A("ds_write_b64 v5, v[64:65]")
            A("s_waitcnt lgkmcnt(0)")
            A.label(".Lk5_cse")
        self.poll(stage)
        A("s_barrier")
        A("s_barrier")
        A.label(".Lk5_h7")
        if L2PF & 4: self.l2pf(3, 1792 * 1024)
        A("s_branch .Lk5_end")
        A.label(".Lk5_main")
        A(f"s_cmp_eq_u32 s{S_J}, 7")
        A("s_cbranch_scc1 .Lk5_pf")
        if own_pf and PFE == 2: own_pf(NE, 99)
        make_srd(A, S_A, P_WS, WS_X1, 2 * MB)
        make_srd(A, S_ST, P_WS, WS_STAT, 2048 * 128)
        if CS6: pass
        elif not CS5: make_srd(A, S_CS, P_WS, WS_CS, 2 * CSP)
        else: A(f"s_mov_b32 s{S_CS}, 0x3f803f80")
        make_srd(A, S_O, P_WS, WS_G, 2048 * 3584)
        A(f"v_lshlrev_b32 v4, 4, v{L}")
        A(f"s_lshl_b32 s{S_TMP}, s{S_M}, 16")
        A(f"s_lshl_b32 s{S_TMP+1}, s{S_WAVE}, 14")
        A(f"s_add_u32 s{S_TMP}, s{S_TMP}, s{S_TMP+1}")
        A(f"s_lshl_b32 s{S_TMP+6}, s{S_J}, 9")
        A(f"s_lshl_b32 s{S_TMP+2}, s{S_WAVE}, 7")
        A(f"s_add_u32 s{S_TMP+6}, s{S_TMP+6}, s{S_TMP+2}")
        A(f"v_lshrrev_b32 v5, 5, v{L}")
        A(f"v_bfe_u32 v7, v{L}, 4, 1")
        A(f"v_bfe_u32 v8, v{L}, 2, 2")
        A(f"v_and_b32 v9, 1, v{L}")
        A(f"v_bfe_u32 v10, v{L}, 1, 1")
        A("v_lshl_or_b32 v9, v9, 1, v10")
        A("v_lshlrev_b32 v9, 3, v9")
        A("v_lshl_add_u32 v9, v7, 5, v9")
        A("v_lshl_add_u32 v10, v5, 3, v8")
        A("v_lshrrev_b32 v11, 1, v8")
        for nb in range(2):
            A(f"v_xor_b32 v12, {nb}, v11")
            A("v_lshl_add_u32 v12, v12, 6, v9")
            A("v_lshl_add_u32 v12, v10, 7, v12")
            A(f"v_add_u32 v{AA+nb}, s{S_RB}, v12")
        A(f"v_and_b32 v13, 31, v{L}")
        A("v_lshrrev_b32 v7, 4, v13")
        A(f"v_mul_u32_u24 v7, {RG // 1024}, v7")
        A("v_and_b32 v8, 15, v13")
        A("v_add_u32 v7, v7, v8")
        for j in range(8):
            A(f"v_or_b32 v8, {2*j}, v5")
            A("v_xor_b32 v8, v8, v13")
            A("v_and_b32 v8, 15, v8")
            A("v_lshlrev_b32 v8, 4, v8")
            A(f"v_lshl_add_u32 v{VB[0]+j}, v7, 10, v8")
            A(f"v_add_u32 v{VB[1]+j}, {2*RG}, v{VB[0]+j}")
        ST = 192; CS = 224
        A("v_lshlrev_b32 v42, 5, v5")
        if CS6:
            A(f"s_add_u32 s{S_TMP+3}, s{S_RB}, 16384")
            A(f"v_add_u32 v42, s{S_TMP+3}, v42")
        if CS5:
            A(f"s_add_u32 s{S_TMP+3}, s{S_RB}, 16384")
            A(f"v_add_u32 v42, s{S_TMP+3}, v42")
            A("v_and_b32 v7, 0x13, v13")
            A("v_bfe_u32 v8, v13, 2, 1")
            A("v_lshl_or_b32 v7, v8, 3, v7")
            A("v_bfe_u32 v8, v13, 3, 1")
            A("v_lshl_or_b32 v7, v8, 2, v7")
            A("v_lshlrev_b32 v7, 2, v7")
            A(f"v_add_u32 v43, s{S_TMP+3}, v7")
        C2 = [176, 184, 200, 216]
        def csloads():
            A(f"s_lshl_b32 s{S_TMP+2}, s{S_TMP+6}, 1")
            for part in range(2 if V2 else 1):
                for q in range(4):
                    for h4 in range(2):
                        d = (CS + q * 8 if part == 0 else C2[q]) + 4 * h4
                        A(f"buffer_load_dwordx4 v[{d}:{d+3}], v42, s[{S_CS}:{S_CS+3}], s{S_TMP+2} offen offset:{(16*q+4*h4)*4}"); vm.issue("st")
                A(f"s_add_u32 s{S_TMP+2}, s{S_TMP+2}, {CSP}")
        VS = 36
        A("v_and_b32 v7, 7, v13")
        A(f"s_add_u32 s{S_TMP+3}, s{S_RB}, {K5RB}")
        for j in range(4):
            A(f"v_or_b32 v14, {2*j}, v5")
            A("v_xor_b32 v14, v14, v7")
            A("v_lshlrev_b32 v14, 4, v14")
            A("v_lshl_add_u32 v14, v13, 7, v14")
            A(f"v_add_u32 v{VS+j}, s{S_TMP+3}, v14")
        A(f"v_lshrrev_b32 v7, 3, v{L}")
        A(f"v_and_b32 v14, 7, v{L}")
        A(f"v_xor_b32 v{VS+4}, v14, v7")
        A(f"v_lshlrev_b32 v{VS+4}, 4, v{VS+4}")
        A(f"v_lshl_add_u32 v{VS+4}, v7, 7, v{VS+4}")
        A(f"v_add_u32 v{VS+4}, s{S_TMP+3}, v{VS+4}")
        A(f"s_movk_i32 s{S_TMP+2}, 3584")
        A(f"v_mul_lo_u32 v7, v7, s{S_TMP+2}")
        A(f"v_lshl_add_u32 v{VS+5}, v14, 4, v7")
        A(f"s_mul_i32 s{S_TMP+4}, s{S_M}, {64*3584}")
        A(f"s_add_u32 s{S_TMP+4}, s{S_TMP+4}, s{S_TMP+6}")
        A(f"s_add_u32 s{S_TMP+5}, s{S_TMP+4}, {32*3584}")
        A("v_lshlrev_b32 v7, 3, v13")
        A("v_lshl_add_u32 v7, v5, 16, v7")
        A(f"s_lshl_b32 s{S_TMP+7}, s{S_M}, 9")
        A("s_barrier")
        self.stamp(1 + 4 * stage + 3)
        for i in range(16):
            t = 8 + (i & 1)
            A(f"v_xor_b32 v{t}, {i << 4}, v4")
            A(f"s_add_u32 m0, s{S_RB}, {i * 1024}")
            A(f"s_add_u32 s{S_TMP+2}, s{S_TMP}, {i * 1024}")
            A(f"buffer_load_dwordx4 v{t}, s[{S_A}:{S_A+3}], s{S_TMP+2} offen lds")
            vm.issue("act")
        for q in range(4):
            A(f"s_add_u32 s{S_TMP+3}, s{S_TMP+7}, {q*16384}")
            for rb in range(2):
                A(f"buffer_load_dwordx2 v[{ST+16*rb+2*q}:{ST+16*rb+2*q+1}], v7, s[{S_ST}:{S_ST+3}], s{S_TMP+3} offen offset:{rb*256}"); vm.issue("st")
        if CS6:
            for q in range(4):
                for h4 in range(2):
                    d = CS + q * 8 + 4 * h4
                    A(f"ds_read_b128 v[{d}:{d+3}], v42 offset:{(16*q+4*h4)*4}")
        vm.wait("act")
        if CS6: A("s_waitcnt lgkmcnt(0)")
        A("s_barrier")
        self.stamp(29)
        def reads(step):
            buf = FQ + (step % NB5) * 16
            for nb in range(2):
                for q in range(2):
                    A(f"ds_read_b64_tr_b16 v[{buf+nb*4+q*2}:{buf+nb*4+q*2+1}], v{AA+nb} offset:{K5RB + (step % D) * 2048 + q * 512}")
                    lg.issue(("f", step))
            for rb in range(2):
                A(f"ds_read_b128 v[{buf+8+rb*4}:{buf+8+rb*4+3}], v{VB[rb] + (step & 7)} offset:{(step >> 3) * 256}")
                lg.issue(("f", step))
        PKC = [[44, 46, 48, 50], [52, 54, 56, 58]]
        E = []
        for stg in range(17):
            for rb in range(2):
                b = ST + 16 * rb; c = PKC[rb]
                E.append([f"v_add_f32 v{b}, v{b}, v{b+2}", f"v_add_f32 v{b+1}, v{b+1}, v{b+3}",
                          f"v_add_f32 v{b+4}, v{b+4}, v{b+6}", f"v_add_f32 v{b+5}, v{b+5}, v{b+7}",
                          f"v_add_f32 v{b}, v{b}, v{b+4}", f"v_add_f32 v{b+1}, v{b+1}, v{b+5}",
                          f"v_mov_b32 v{b+2}, v{b}", f"v_mov_b32 v{b+3}, v{b+1}", "s_nop 1",
                          f"v_permlane32_swap_b32 v{b}, v{b+2}", f"v_permlane32_swap_b32 v{b+1}, v{b+3}", "s_nop 1",
                          f"v_add_f32 v{b}, v{b}, v{b+2}", f"v_add_f32 v{b+1}, v{b+1}, v{b+3}",
                          f"v_mul_f32 v{c[0]}, {fhex(-1/512)}, v{b}", f"v_mul_f32 v{b+1}, {fhex(1/512)}, v{b+1}",
                          f"v_fma_f32 v{b+1}, -v{c[0]}, v{c[0]}, v{b+1}"][stg])
        for stg in range(9):
            for rb in range(2):
                b = ST + 16 * rb; c = PKC[rb]
                E.append([f"v_max_f32 v{b+1}, 0, v{b+1}", f"v_add_f32 v{b+1}, {fhex(1e-5)}, v{b+1}",
                          f"v_rsq_f32 v{b+2}, v{b+1}", f"v_sqrt_f32 v{c[3]}, v{b+1}", "s_nop 0",
                          f"v_mul_f32 v{c[2]}, {fhex(GK0)}, v{b+2}", f"v_mul_f32 v{c[1]}, v{b+2}, v{b+2}",
                          f"v_mul_f32 v{c[1]}, v{c[1]}, v{b+2}", f"v_mul_f32 v{c[1]}, {fhex(GK1)}, v{c[1]}"][stg])
        if V2 and not CS5 and not CS6:
            for q in range(4):
                for e in range(8): E.append(f"v_add_f32 v{CS+8*q+e}, v{CS+8*q+e}, v{C2[q]+e}")
        for s0 in range(NB5 - 1):
            vm.wait(("w", s0)); reads(s0)
        k = 0
        for ks in range(32):
            lg.wait(("f", ks))
            with Cap(A) as cp:
                if ks + NB5 - 1 < 32:
                    vm.wait(("w", ks + NB5 - 1)); reads(ks + NB5 - 1)
                if ks + D < 32: self.dmaW(ks + D, K5RB + (ks % D) * 2048)
                elif PFE == 3 and ks == 21: next_pf(0, 1)
                elif PFE == 3 and ks >= 26: next_pf(ks - 25, ks - 24)
                if ks == 1 and not CS5 and not CS6: csloads()
                if CS5:
                    bf_ = FQ + (ks % NB5) * 16
                    dl = [f"v_dot2_f32_bf16 v{176+nb}, v{bf_+nb*4+j}, s{S_CS}, " + ("0" if ks == 0 and j == 0 else f"v{176+nb}") for j in range(4) for nb in range(2)]
                    if ks < 31:
                        for d_ in dl: A(d_)
                    else:
                        A("v_mov_b32 v178, v176")
                        A("v_mov_b32 v179, v177")
                        A("s_nop 1")
                        A("v_permlane32_swap_b32 v176, v178")
                        A("v_permlane32_swap_b32 v177, v179")
                        A("s_nop 1")
                        A("v_add_f32 v176, v176, v178")
                        A("v_add_f32 v177, v177, v179")
                        A("ds_write_b32 v43, v176")
                        A("ds_write_b32 v43, v177 offset:128")
                        A("s_waitcnt lgkmcnt(0)")
                        for q in range(4):
                            for h4 in range(2):
                                d = CS + q * 8 + 4 * h4
                                A(f"ds_read_b128 v[{d}:{d+3}], v42 offset:{(16*q+4*h4)*4}")
                if 14 <= ks < 28:
                    if ks == 14: vm.wait("st")
                    upto = len(E) * (ks - 13) // 14
                    while k < upto: A(E[k]); k += 1
            buf = FQ + (ks % NB5) * 16
            mf = []
            for nb in range(2):
                for rb in range(2):
                    acc = ACC + (nb * 2 + rb) * 16
                    c = "0" if ks == 0 else f"v[{acc}:{acc+15}]"
                    mf.append(f"v_mfma_f32_32x32x16_bf16 v[{acc}:{acc+15}], v[{buf+nb*4}:{buf+nb*4+3}], v[{buf+8+rb*4}:{buf+8+rb*4+3}], {c}")
            if CS5 and ks == 31:
                for d_ in dl: A(d_)
                A("s_nop 1")
            interleave(A, mf, cp.out)
        if CS5: A("s_waitcnt lgkmcnt(0)")
        self.stamp(28)
        if PFE == 1: next_pf()
        else:
            A("s_nop 7"); A("s_nop 3")
        def flush5(rb):
            A("s_waitcnt lgkmcnt(0)")
            for i in range(4):
                A(f"ds_read_b128 v[{192+16*rb+4*i}:{192+16*rb+4*i+3}], v{VS+4} offset:{rb*4096 + i*1024}")
        def store5(rb):
            for i in range(4):
                if rb == 1: A(f"s_waitcnt lgkmcnt({3-i})")
                A(f"s_add_u32 s{S_TMP+3}, s{S_TMP+4+rb}, {i*8*3584}")
                A(f"buffer_store_dwordx4 v[{192+16*rb+4*i}:{192+16*rb+4*i+3}], v{VS+5}, s[{S_O}:{S_O+3}], s{S_TMP+3} offen sc1")
        for rb in range(2):
            for nb in range(2):
                acc = ACC + (nb * 2 + rb) * 16
                if rb == 1 and nb == 1:
                    A("s_waitcnt lgkmcnt(2)")
                    store5(0)
                for mp in range(2):
                    d = 160 + (nb * 4 + rb * 2 + mp) * 4
                    xs = [acc + 8 * mp + e for e in range(8)]
                    ts = list(range(128, 136)); cs = CS + (nb * 2 + mp) * 8; c = PKC[rb]
                    for e in range(0, 8, 2): pk(A, "v_pk_fma_f32", xs[e], cs + e, c[0], xs[e], "op_sel_hi:[1,0,1]")
                    for e in range(0, 8, 2): pk(A, "v_pk_mul_f32", ts[e], xs[e], xs[e])
                    for e in range(0, 8, 2): pk(A, "v_pk_fma_f32", ts[e], ts[e], c[1], c[2], "op_sel_hi:[1,0,0]")
                    for e in range(0, 8, 2): pk(A, "v_pk_mul_f32", ts[e], ts[e], xs[e])
                    for t in ts: A(f"v_exp_f32 v{t}, v{t}")
                    for e in range(0, 8, 2): pk(A, "v_pk_fma_f32", ts[e], ts[e], c[3], c[3], "op_sel_hi:[1,0,0]")
                    for t in ts: A(f"v_rcp_f32 v{t}, v{t}")
                    A("s_nop 0")
                    for e in range(0, 8, 2): pk(A, "v_pk_mul_f32", xs[e], xs[e], ts[e])
                    for e in range(0, 8, 2): A(f"v_cvt_pk_bf16_f32 v{d+e//2}, v{xs[e]}, v{xs[e+1]}")
                    A(f"ds_write_b128 v{VS+2*nb+mp}, v[{d}:{d+3}] offset:{rb*4096}")
            flush5(rb)
        store5(1)
        A("s_branch .Lk5_end")
        A.label(".Lk5_pf")
        if PFE in (1, 3): next_pf(alt=True)
        A.label(".Lk5_end")

def gen_km(A):
    name = "k1_kernel"
    M = Mega(A)
    def pre():
        if MT or HD:
            M.persist(); M.stamp(0); M.vm.ops = []
        if ONE: M.pro_pre()
    if V4: K1.gen_k1(A, emb=True, pre=pre, hookA=M.p4_a, hookB=M.p4_b, v2=True, hookC=M.p2_c)
    elif V3: K1.gen_k1(A, emb=True, pre=pre, hookA=M.p3_a, hookB=M.p3_b, v2=True, hookC=M.p2_c)
    elif V2: K1.gen_k1(A, emb=True, pre=pre, hookA=M.p2_a, hookB=M.p2_b, v2=True, hookC=M.p2_c)
    elif ONE: K1.gen_k1(A, emb=True, pre=pre, hookA=M.pro_a, hookB=M.pro_b)
    else: K1.gen_k1(A, emb=True, pre=pre)
    M.persist()
    M.transition(0)
    M.kr()
    M.transition(1)
    pf4 = lambda lo=0, hi=99: M.pf_g64(1, 512, 24576, 8, lo, hi)
    pf6 = lambda lo=0, hi=99, alt=False: M.pf_g64(3, 1792, 26624, 7, lo, hi, 6)
    M.g64("k3", 1, 512, WS_HN, 2 * MB, 1024, "gelu", 24576, 8, False, pf4, None, 0, {st: (st, st + 1) for st in range(8)}, [(2, 1792 * 1024)] if L2PF & 1 else None)
    M.transition(2, pf4)
    M.g64("k4", 2, 512, WS_H1, 2052 * 1024, 1024, "res", 24576, 8, True, M.pf_k5, pf4, 0, {st: ((0, 4) if st == 0 else (st + 3, st + 4)) for st in range(8)}, [(3, 1792 * 1024)] if L2PF & 2 else None)
    M.transition(3, M.pf_k5)
    M.k5(3, pf6, M.pf_k5)
    M.transition(4, pf6)
    M.g64("k6", 4, 1792, WS_G, 2048 * 3584, 3584, "final", 26624, 7, False, None, pf6, 6)
    M.stamp(21)
    if MT or HD: A("s_waitcnt vmcnt(0)")
    M.stamp(22)
    A("s_endpgm")
    A.raw(kernel_desc(name, 256, 102, 256))
    return (name, (256, 1, 1), (512, 1, 1), 163840)
```

```python
from asmlib import *
from gen_k0 import *
import os
DEBUG = int(os.environ.get("K1DEBUG", "0"))
PART_BF16 = int(os.environ.get("PARTBF16", "1"))
MIMIC = int(os.environ.get("MIMIC", "0"))
LAZY = int(os.environ.get("LAZY", "1"))
THR = float(os.environ.get("THR","30.0"))
TIMING = int(os.environ.get("TIMING", "0"))
KT = int(os.environ.get("KT", "0"))
HB3 = eval(os.environ.get("HB3", "None"))
PD = int(os.environ.get("PD", "0"))
PDS = [128, 136, 144, 152, 192, 200, 208, 216, 224, 232, 160, 168, 176, 184][:int(os.environ.get("PDD", "8"))]
def pd_load(A, vm, st):
    d = PDS[st % len(PDS)]
    for nb in range(2):
        A(f"buffer_load_dwordx4 v[{d+4*nb}:{d+4*nb+3}], v{V_WOOFF}, s[{S_WO}:{S_WO+3}], s{S_OFF} offen offset:{nb*1024}")
        vm.issue(("w", st))
    A(f"s_add_u32 s{S_OFF}, s{S_OFF}, 2048")
def pd_core(A, vm, lg, pre, NS=32):
    DW = len(PDS)
    def reads(step):
        buf = 240 + (step & 1) * 8
        for rb in range(2):
            A(f"ds_read_b128 v[{buf+rb*4}:{buf+rb*4+3}], v{V_BADDR + (step & 7)} offset:{(step >> 3) * 256 + rb * 32768}")
            lg.issue(("f", step))
    for st in range(pre, DW): pd_load(A, vm, st)
    reads(0)
    for ks in range(NS):
        lg.wait(("f", ks))
        vm.wait(("w", ks))
        buf = 240 + (ks & 1) * 8; w = PDS[ks % DW]
        i = 0
        for nb in range(2):
            for rb in range(2):
                acc = V_ACC + (nb * 2 + rb) * 16
                c = "0" if ks == 0 else f"v[{acc}:{acc+15}]"
                A(f"v_mfma_f32_32x32x16_bf16 v[{acc}:{acc+15}], v[{w+nb*4}:{w+nb*4+3}], v[{buf+rb*4}:{buf+rb*4+3}], {c}")
                if i == 0 and ks + 1 < NS: reads(ks + 1)
                if i == 1 and ks >= 1 and ks - 1 + DW < NS: pd_load(A, vm, ks - 1 + DW)
                if i == 2 and HB3 is not None and ks == NS - DW + int(os.environ.get("PDG", "0")):
                    A(f"s_add_u32 s{S_TMP}, s{S_RB}, {slot6(HB3) * 16384}")
                    A(f"v_mov_b32 v58, s{S_TMP}")
                    A("v_mov_b32 v60, s100")
                    A("v_mov_b32 v61, s101")
                    A("ds_write_b64 v58, v[60:61]")
                i += 1
USEPK = int(os.environ.get("USEPK", "0"))
EXPT = int(os.environ.get("EXPT", "0"))
NOMAX = int(os.environ.get("NOMAX", "0"))
DOT2 = int(os.environ.get("DOT2", "0"))

class Cnt:
    def __init__(self, A, name, maxv):
        self.A = A; self.name = name; self.maxv = maxv; self.ops = []
    def issue(self, tag):
        self.ops.append(tag)
        assert len(self.ops) <= self.maxv + 1 or self.name == "vmcnt", (self.name, len(self.ops))
    def wait(self, tag):
        idx = None
        for i, t in enumerate(self.ops):
            if t == tag: idx = i
        if idx is None:
            return
        n = len(self.ops) - 1 - idx
        assert n <= self.maxv, (self.name, n)
        self.A(f"s_waitcnt {self.name}({n})")
        self.ops = self.ops[idx+1:]
    def waitall(self):
        self.A(f"s_waitcnt {self.name}(0)")
        self.ops = []

class Stamper:
    def __init__(self, A, lg, srd, swave, base=72):
        self.A = A; self.lg = lg; self.n = 0; self.srd = srd; self.swave = swave; self.base = base
    def __call__(self, real=False):
        if KT:
            self.c = getattr(self, "c", 0) + 1
            if self.c <= 2: return
            A = self.A
            self.lg.waitall()
            A("s_memrealtime s[36:37]" if KT == 1 else "s_memtime s[36:37]")
            A("s_waitcnt lgkmcnt(0)")
            A(f"s_mov_b32 s{76+self.n}, s36")
            self.n += 1
            assert self.n <= 16
            return
        if not TIMING: return
        A = self.A
        self.lg.waitall()
        A("s_memrealtime s[70:71]" if (real or TIMING == 2) else "s_memtime s[70:71]")
        A("s_waitcnt lgkmcnt(0)")
        A(f"s_mov_b32 s{self.base+self.n}, s70")
        self.n += 1
    def flush(self):
        if KT:
            A = self.A
            make_srd(A, 36, 68, WS_DBG + 24 * MB, 1 * MB)
            A(f"s_lshl_b32 s70, s2, 3")
            A(f"s_add_u32 s70, s70, s{self.swave}")
            A(f"s_lshl_b32 s70, s70, 6")
            A("v_mov_b32 v5, 0")
            for i in range(self.n):
                A(f"v_mov_b32 v6, s{76+i}")
                A(f"buffer_store_dword v6, v5, s[36:39], s70 offen offset:{4*i}")
            return
        if not TIMING: return
        A = self.A
        A(f"s_lshl_b32 s70, s2, 3")
        A(f"s_add_u32 s70, s70, s{self.swave}")
        A(f"s_lshl_b32 s70, s70, 7")
        A("v_mov_b32 v5, 0")
        for i in range(self.n):
            A(f"v_mov_b32 v6, s{self.base+i}")
            A(f"buffer_store_dword v6, v5, s[{self.srd}:{self.srd+3}], s70 offen offset:{4*i}")

ACT = 0
STG = 65536
KRING = STG + 3 * 16384
VRING = STG
V_LANE = 1
V_BADDR = 16; V_AADDR = 24; V_WQOFF = 26; V_WOOFF = 27
V_KADDR = 28; V_VADDR = 36; V_KOFF = 40; V_VOFF = 42
V_M = 43; V_L = 44; V_ALPHA = 46; V_NEGC = 48
V_QADDR = 50
V_T = 58
V_ACC = 64
V_Q = 128
V_S = 160
V_F = 224
NF = 8
RA = int(os.environ.get('RA','6'))
PRIO = int(os.environ.get('PRIO','0'))
CT = int(os.environ.get('CT','1'))
V_NB = 48
S_XN = 8; S_MOD = 12; S_WQ = 16; S_K = 20; S_V = 24; S_WO = 28; S_P = 32; S_DBG = 36
S_WAVE = 40; S_G = 41; S_M = 42; S_RB = 43; S_OFF = 44; S_MASK = 45; S_KVOFF = 46; S_KVM0 = 47
S_C1 = 48; S_K2 = 50; S_SC = 52; S_L2E = 54
S_TMP = 56
S_SL = 66
S_FLAG = 64
S_QOFF = 67
SCALE = 128 ** -0.5

def gemm_dma(A, vm, step, srd, voff, rowstride, D):
    for half in range(2):
        A(f"s_add_u32 m0, s{S_RB}, {(step % D) * 2048 + half * 1024}")
        A("s_nop 0")
        A(f"buffer_load_dwordx4 v{voff}, s[{srd}:{srd+3}], s{S_OFF} offen lds")
        vm.issue(("w", step))
        A(f"s_add_u32 s{S_OFF}, s{S_OFF}, {8 * rowstride}")

def gemm_reads(A, lg, step, D):
    buf = V_Q + (step & 1) * 16
    if (EXPT & 128) and step > 1: return
    for nb in range(2):
        for q in range(2):
            A(f"ds_read_b64_tr_b16 v[{buf+nb*4+q*2}:{buf+nb*4+q*2+1}], v{V_AADDR+nb} offset:{(step % D) * 2048 + q * 512}")
            lg.issue(("f", step))
    for rb in range(2):
        A(f"ds_read_b128 v[{buf+8+rb*4}:{buf+8+rb*4+3}], v{V_BADDR + (step & 7)} offset:{(step >> 3) * 256 + rb * 32768}")
        lg.issue(("f", step))

def gemm_core(A, vm, lg, srd, voff, rowstride, D=4, NS=32):
    vm.wait(("w", 0))
    gemm_reads(A, lg, 0, D)
    for ks in range(NS):
        if ks + 1 < NS:
            vm.wait(("w", ks + 1))
            gemm_reads(A, lg, ks + 1, D)
        lg.wait(("f", ks))
        if ks + D < NS and not (EXPT & 32):
            gemm_dma(A, vm, ks + D, srd, voff, rowstride, D)
        buf = V_Q + (ks & 1) * 16
        for nb in range(2):
            for rb in range(2):
                acc = V_ACC + (nb * 2 + rb) * 16
                c = "0" if ks == 0 else f"v[{acc}:{acc+15}]"
                if (EXPT & 64) and ks > 0: continue
                A(f"v_mfma_f32_32x32x16_bf16 v[{acc}:{acc+15}], v[{buf+nb*4}:{buf+nb*4+3}], v[{buf+8+rb*4}:{buf+8+rb*4+3}], {c}")

D6 = int(os.environ.get("D6", "1"))
V_AADDR2 = (43, 45)
def slot6(step): return (step + 2) % 6
M16 = int(os.environ.get("M16", "0"))
P4 = int(os.environ.get("MEGA", "7")) == 7
V_K10 = 10; V_K01 = 11
VA16 = 224; VB16 = 232
def addr16(A):
    L = V_LANE
    A(f"v_lshrrev_b32 v2, 4, v{L}")
    A(f"v_and_b32 v3, 15, v{L}")
    for j in range(4):
        A(f"v_or_b32 v4, {4*j}, v2")
        A("v_xor_b32 v4, v4, v3")
        A("v_lshlrev_b32 v4, 4, v4")
        A(f"v_lshl_add_u32 v{VB16+j}, v3, 10, v4")
    A(f"v_bfe_u32 v4, v{L}, 2, 2")
    A(f"v_and_b32 v5, 3, v{L}")
    A("v_and_b32 v6, 1, v2")
    A("v_lshl_add_u32 v7, v6, 3, v4")
    A("v_lshlrev_b32 v7, 7, v7")
    A("v_lshl_add_u32 v7, v5, 3, v7")
    A("v_lshrrev_b32 v8, 1, v2")
    A("v_lshl_add_u32 v7, v8, 14, v7")
    A(f"v_add_u32 v7, s{S_RB}, v7")
    A("v_lshrrev_b32 v8, 1, v4")
    A("v_lshl_or_b32 v8, v8, 1, v6")
    for nt in range(4):
        A(f"v_xor_b32 v9, {nt}, v8")
        A(f"v_lshl_add_u32 v{VA16+nt}, v9, 5, v7")
        A(f"v_add_u32 v{VA16+4+nt}, 65536, v{VA16+nt}")
def gemm_core16(A, vm, lg, srd, voff, rowstride, pre, tail=None):
    for st in range(pre, 6): gemm_dma6(A, vm, st, srd, voff, rowstride)
    def rd(s, part):
        buf = V_Q + (s & 1) * 32
        if part == 0:
            for rt in range(4):
                A(f"ds_read_b128 v[{buf+16+4*rt}:{buf+19+4*rt}], v{VB16 + (s & 3)} offset:{rt * 16384 + (s >> 2) * 256}")
                lg.issue(("b", s))
        else:
            nt = part - 1
            sl = slot6(2 * s)
            for q in range(2):
                A(f"ds_read_b64_tr_b16 v[{buf+4*nt+2*q}:{buf+4*nt+2*q+1}], v{VA16 + (4 if sl >= 4 else 0) + nt} offset:{(sl & 3) * 16384 + q * 512}")
                lg.issue(("a", s, nt))
    vm.wait(("w", 1))
    for p in range(5): rd(0, p)
    for s in range(16):
        buf = V_Q + (s & 1) * 32
        for nt in range(4):
            lg.wait(("a", s, nt))
            RF = int(os.environ.get("RF16", "3")); SCH = int(os.environ.get("SCH16", "0"))
            for rt in range(4):
                if nt == RF and rt == (0 if RF == 3 else 1):
                    lg.wait(("a", s, 3))
                    for ks in (2 * s, 2 * s + 1):
                        if ks + 6 < 32: gemm_dma6(A, vm, ks + 6, srd, voff, rowstride)
                        elif tail: tail(ks)
                acc = V_ACC + (nt * 4 + rt) * 4
                c = "0" if s == 0 else f"v[{acc}:{acc+3}]"
                A(f"v_mfma_f32_16x16x32_bf16 v[{acc}:{acc+3}], v[{buf+4*nt}:{buf+4*nt+3}], v[{buf+16+4*rt}:{buf+19+4*rt}], {c}")
                if s + 1 < 16:
                    plan = [{(0, 0): [0], (1, 0): [1, 2], (2, 0): [3], (3, 0): [4]},
                            {(0, 2): [0], (1, 0): [1, 2], (1, 2): [3, 4]},
                            {(1, 0): [0], (1, 2): [1], (2, 0): [2], (2, 2): [3], (3, 0): [4]},
                            {(0, 2): [0], (1, 2): [1, 2], (2, 2): [3, 4]}][SCH]
                    for p in plan.get((nt, rt), []):
                        if p == 1: vm.wait(("w", 2 * s + 3))
                        rd(s + 1, p)
def gemm_dma6(A, vm, step, srd, voff_, rowstride):
    for half in range(2):
        voff = voff_ if not (M16 and half) else V_AADDR2[0 if voff_ == V_WQOFF else 1]
        A(f"s_add_u32 m0, s{S_RB}, {slot6(step) * 16384 + half * 1024}")
        A("s_nop 0")
        A(f"buffer_load_dwordx4 v{voff}, s[{srd}:{srd+3}], s{S_OFF} offen {os.environ.get('WONT', '') if srd == S_WO else ''} lds")
        vm.issue(("w", step))
        A(f"s_add_u32 s{S_OFF}, s{S_OFF}, {8 * rowstride}")
IL6 = int(os.environ.get("IL6", "0"))
def gemm_reads6(A, lg, step):
    buf = V_Q + ((step % 3) if IL6 else (step & 1)) * 16
    sl = slot6(step)
    for nb in range(2):
        for q in range(2):
            a = V_AADDR + nb if sl < 4 else V_AADDR2[nb]
            A(f"ds_read_b64_tr_b16 v[{buf+nb*4+q*2}:{buf+nb*4+q*2+1}], v{a} offset:{(sl & 3) * 16384 + q * 512}")
            lg.issue(("f", step))
    for rb in range(2):
        A(f"ds_read_b128 v[{buf+8+rb*4}:{buf+8+rb*4+3}], v{V_BADDR + (step & 7)} offset:{(step >> 3) * 256 + rb * 32768}")
        lg.issue(("f", step))
def gemm_core6(A, vm, lg, srd, voff, rowstride, pre, tail=None, NS=32, bars=(), hb=None):
    for st in range(pre, 6): gemm_dma6(A, vm, st, srd, voff, rowstride)
    if IL6:
        for s0 in range(2):
            vm.wait(("w", s0)); gemm_reads6(A, lg, s0)
        for ks in range(NS):
            lg.wait(("f", ks))
            sv = A.lines; A.lines = []
            if IL6 == 2:
                if ks + 6 < NS: gemm_dma6(A, vm, ks + 6, srd, voff, rowstride)
                elif tail: tail(ks)
            if ks + 2 < NS:
                vm.wait(("w", ks + 2)); gemm_reads6(A, lg, ks + 2)
            if IL6 == 1:
                if ks + 6 < NS: gemm_dma6(A, vm, ks + 6, srd, voff, rowstride)
                elif tail: tail(ks)
            fill = A.lines; A.lines = sv
            buf = V_Q + (ks % 3) * 16
            k = 0
            for i in range(4):
                nb, rb = i >> 1, i & 1
                acc = V_ACC + (nb * 2 + rb) * 16
                c = "0" if ks == 0 else f"v[{acc}:{acc+15}]"
                A(f"v_mfma_f32_32x32x16_bf16 v[{acc}:{acc+15}], v[{buf+nb*4}:{buf+nb*4+3}], v[{buf+8+rb*4}:{buf+8+rb*4+3}], {c}")
                upto = (len(fill) * (i + 1) + 3) // 4
                A.lines.extend(fill[k:upto]); k = upto
        return
    vm.wait(("w", 0))
    gemm_reads6(A, lg, 0)
    for ks in range(NS):
        if ks + 1 < NS:
            vm.wait(("w", ks + 1))
            gemm_reads6(A, lg, ks + 1)
        lg.wait(("f", ks))
        if ks + 6 < NS:
            gemm_dma6(A, vm, ks + 6, srd, voff, rowstride)
        elif tail: tail(ks)
        if ks in bars: A("s_barrier")
        if hb is not None and ks == hb:
            assert hb >= 26 and slot6(hb) >= 4
            A(f"s_add_u32 s{S_TMP}, s{S_RB}, {slot6(hb) * 16384}")
            A(f"v_mov_b32 v58, s{S_TMP}")
            A("v_mov_b32 v60, s100")
            A("v_mov_b32 v61, s101")
            A("ds_write_b64 v58, v[60:61]")
        buf = V_Q + (ks & 1) * 16
        for nb in range(2):
            for rb in range(2):
                acc = V_ACC + (nb * 2 + rb) * 16
                c = "0" if ks == 0 else f"v[{acc}:{acc+15}]"
                if EXPT & 1024:
                    for hh in range(2):
                        a4 = acc + (ks & 1) * 8 + hh * 4
                        c4 = "0" if ks < 2 else f"v[{a4}:{a4+3}]"
                        A(f"v_mfma_f32_16x16x32_bf16 v[{a4}:{a4+3}], v[{buf+(nb^hh)*4}:{buf+(nb^hh)*4+3}], v[{buf+8+rb*4}:{buf+8+rb*4+3}], {c4}")
                    continue
                A(f"v_mfma_f32_32x32x16_bf16 v[{acc}:{acc+15}], v[{buf+nb*4}:{buf+nb*4+3}], v[{buf+8+rb*4}:{buf+8+rb*4+3}], {c}")

def k_dma(A, vm, t):
    A(f"s_mov_b32 s{S_KVOFF}, {t * 16384}")
    A(f"s_add_u32 m0, s{S_KVM0}, {KRING + ((t + 1) % 3) * 16384}")
    A("s_nop 0")
    A(f"buffer_load_dwordx4 v{V_KOFF}, s[{S_K}:{S_K+3}], s{S_KVOFF} offen lds")
    vm.issue(("k", t))
    A(f"buffer_load_dwordx4 v{V_KOFF+1}, s[{S_K}:{S_K+3}], s{S_KVOFF} offen offset:1024 lds")
    vm.issue(("k", t))
def v_dma(A, vm, t):
    A(f"s_mov_b32 s{S_KVOFF}, {t * 16384}")
    A(f"s_add_u32 m0, s{S_KVM0}, {VRING + (t % 3) * 16384}")
    A("s_nop 0")
    A(f"buffer_load_dwordx4 v{V_VOFF}, s[{S_V}:{S_V+3}], s{S_KVOFF} offen lds")
    vm.issue(("v", t))
    A(f"buffer_load_dwordx4 v{V_VOFF}, s[{S_V}:{S_V+3}], s{S_KVOFF} offen offset:1024 lds")
    vm.issue(("v", t))

def sm_max(t):
    S = V_S + (t & 1) * 32
    mx = 2 if CT else V_T
    L = []
    if NOMAX and t > 0: return []
    L.append(f"v_max3_f32 v{mx}, v{S}, v{S+1}, v{S+2}")
    L.append(f"v_max3_f32 v{mx+1}, v{S+3}, v{S+4}, v{S+5}")
    for i in range(6, 30, 4):
        L.append(f"v_max3_f32 v{mx}, v{mx}, v{S+i}, v{S+i+1}")
        L.append(f"v_max3_f32 v{mx+1}, v{mx+1}, v{S+i+2}, v{S+i+3}")
    L.append(f"v_max3_f32 v{mx}, v{mx}, v{S+30}, v{S+31}")
    L.append(f"v_max_f32 v{mx}, v{mx}, v{mx+1}")
    L.append(f"v_mov_b32 v{mx+1}, v{mx}")
    L.append("s_nop 1")
    L.append(f"v_permlane32_swap_b32 v{mx}, v{mx+1}")
    L.append("s_nop 1")
    L.append(f"v_max_f32 v{mx}, v{mx}, v{mx+1}")
    g, d = mx + 1, mx + 2
    if CT:
        if t == 0:
            for i in range(16): L.append(f"v_sub_f32 v{V_NB+i}, 0, v{mx}")
            for i in range(32): L.append(f"v_sub_f32 v{S+i}, v{S+i}, v{mx}")
            return L
        lbl = f".Lk1_nors_{t}"
        L.append(f"v_cmp_lt_f32 vcc, {fhex(THR)}, v{mx}")
        L.append(f"s_mov_b64 s[{S_FLAG}:{S_FLAG+1}], vcc")
        L.append([f"s_cbranch_vccz {lbl}",
                  f"v_max_f32 v{mx}, 0, v{mx}",
                  f"v_sub_f32 v{V_ALPHA}, 0, v{mx}",
                  f"v_exp_f32 v{V_ALPHA}, v{V_ALPHA}"]
                 + [f"v_sub_f32 v{V_NB+i}, v{V_NB+i}, v{mx}" for i in range(16)]
                 + [f"v_sub_f32 v{S+i}, v{S+i}, v{mx}" for i in range(32)]
                 + [f"v_mul_f32 v{V_L}, v{V_L}, v{V_ALPHA}", f"{lbl}:"])
        return L
    if MIMIC:
        L.append(f"v_mul_f32 v{g}, s{S_C1}, v{mx}")
        L.append(f"v_sub_f32 v{d}, v{mx}, v{g}")
        L.append(f"v_add_f32 v{mx}, v{g}, v{d}")
        L.append(f"v_mul_f32 v{g}, s{S_K2}, v{mx}")
        L.append(f"v_fma_f32 v{d}, v{mx}, s{S_SC}, -v{g}")
        L.append(f"v_add_f32 v{mx}, v{g}, v{d}")
    else:
        L.append(f"v_mul_f32 v{mx}, s{S_SC}, v{mx}")
    if LAZY and t > 0:
        lbl = f".Lk1_nors_{t}"
        L.append(f"v_sub_f32 v{V_ALPHA}, v{V_M}, v{mx}")
        L.append(f"v_cmp_gt_f32 vcc, {fhex(-THR / LOG2E)}, v{V_ALPHA}")
        L.append(f"s_mov_b64 s[{S_FLAG}:{S_FLAG+1}], vcc")
        L.append([f"s_cbranch_vccz {lbl}",
                  f"v_max_f32 v{mx}, v{mx}, v{V_M}",
                  f"v_sub_f32 v{V_ALPHA}, v{V_M}, v{mx}",
                  f"v_mul_f32 v{V_ALPHA}, s{S_L2E}, v{V_ALPHA}",
                  f"v_exp_f32 v{V_ALPHA}, v{V_ALPHA}",
                  f"v_mov_b32 v{V_M}, v{mx}",
                  f"v_mul_f32 v{V_NEGC}, s{S_L2E}, v{mx}",
                  f"v_sub_f32 v{V_NEGC}, 0, v{V_NEGC}",
                  f"v_mul_f32 v{V_L}, v{V_L}, v{V_ALPHA}",
                  f"{lbl}:"])
        return L
    if t > 0:
        L.append(f"v_max_f32 v{mx}, v{mx}, v{V_M}")
        L.append(f"v_sub_f32 v{V_ALPHA}, v{V_M}, v{mx}")
        L.append(f"v_mul_f32 v{V_ALPHA}, s{S_L2E}, v{V_ALPHA}")
        L.append(f"v_exp_f32 v{V_ALPHA}, v{V_ALPHA}")
    L.append(f"v_mov_b32 v{V_M}, v{mx}")
    L.append(f"v_mul_f32 v{V_NEGC}, s{S_L2E}, v{mx}")
    L.append(f"v_sub_f32 v{V_NEGC}, 0, v{V_NEGC}")
    return L

PSUM = 10
def sm_quarter(t, q):
    S = V_S + (t & 1) * 32
    L = []
    pairs = list(range(8 * q, 8 * q + 8, 2))
    def pre(i):
        x = f"v[{S+i}:{S+i+1}]"
        k = (i >> 1) & 1
        g = f"v[{2+4*k}:{3+4*k}]"; d = f"v[{4+4*k}:{5+4*k}]"
        if CT:
            return []
        if not USEPK:
            out = []
            xs = [S + i, S + i + 1]; gs = [2 + 4 * k, 3 + 4 * k]; ds = [4 + 4 * k, 5 + 4 * k]
            if MIMIC:
                for op in range(7):
                    for e in range(2):
                        x_, g_, d_ = xs[e], gs[e], ds[e]
                        out.append([f"v_mul_f32 v{g_}, s{S_C1}, v{x_}",
                                    f"v_sub_f32 v{d_}, v{x_}, v{g_}",
                                    f"v_add_f32 v{x_}, v{g_}, v{d_}",
                                    f"v_mul_f32 v{g_}, s{S_K2}, v{x_}",
                                    f"v_fma_f32 v{d_}, v{x_}, s{S_SC}, -v{g_}",
                                    f"v_add_f32 v{x_}, v{g_}, v{d_}",
                                    f"v_fma_f32 v{x_}, v{x_}, s{S_L2E}, v{V_NEGC}"][op])
            else:
                for e in range(2):
                    out.append(f"v_fma_f32 v{xs[e]}, v{xs[e]}, s{S_SL}, v{V_NEGC}")
            return out
        if MIMIC:
            return [f"v_pk_mul_f32 {g}, {x}, s[{S_C1}:{S_C1+1}]",
                    f"v_pk_add_f32 {d}, {x}, {g} neg_lo:[0,1] neg_hi:[0,1]",
                    f"v_pk_add_f32 {x}, {g}, {d}",
                    f"v_pk_mul_f32 {g}, {x}, s[{S_K2}:{S_K2+1}]",
                    f"v_pk_fma_f32 {d}, {x}, s[{S_SC}:{S_SC+1}], {g} neg_lo:[0,0,1] neg_hi:[0,0,1]",
                    f"v_pk_add_f32 {x}, {g}, {d}",
                    f"v_pk_fma_f32 {x}, {x}, s[{S_L2E}:{S_L2E+1}], v[{V_NEGC}:{V_NEGC+1}] op_sel_hi:[1,1,0]"]
        return [f"v_pk_mul_f32 {x}, {x}, s[{S_SC}:{S_SC+1}]",
                f"v_pk_fma_f32 {x}, {x}, s[{S_L2E}:{S_L2E+1}], v[{V_NEGC}:{V_NEGC+1}] op_sel_hi:[1,1,0]"]
    for a in range(0, 4, 2):
        p0, p1 = pre(pairs[a]), pre(pairs[a + 1])
        for x, y in zip(p0, p1):
            L += [x, y]
        for i in (pairs[a], pairs[a + 1]):
            L.append(f"v_exp_f32 v{S+i}, v{S+i}")
            L.append(f"v_exp_f32 v{S+i+1}, v{S+i+1}")
    L.append("s_nop 0")
    for i in pairs:
        if DOT2:
            L.append(f"v_cvt_pk_bf16_f32 v{S + i // 2}, v{S+i}, v{S+i+1}")
            continue
        if i == 0:
            L.append(f"v_mov_b32 v{PSUM}, v{S}")
            L.append(f"v_mov_b32 v{PSUM+1}, v{S+1}")
        elif USEPK:
            L.append(f"v_pk_add_f32 v[{PSUM}:{PSUM+1}], v[{PSUM}:{PSUM+1}], v[{S+i}:{S+i+1}]")
        else:
            L.append(f"v_add_f32 v{PSUM}, v{PSUM}, v{S+i}")
            L.append(f"v_add_f32 v{PSUM+1}, v{PSUM+1}, v{S+i+1}")
        L.append(f"v_cvt_pk_bf16_f32 v{S + i // 2}, v{S+i}, v{S+i+1}")
    if DOT2:
        for i in pairs:
            a = PSUM + ((i >> 1) & 1)
            if DOT2 == 1: L.append(f"v_dot2c_f32_bf16 v{a}, v{S + i // 2}, v14")
            else: L.append(f"v_dot2_f32_bf16 v{a}, v{S + i // 2}, v14, v{a}")
    if EXPT & 1: L = [x for x in L if not x.startswith("v_exp")]
    if EXPT & 2: L = [x for x in L if x.startswith("v_exp") or x.startswith("s_nop")]
    return L

def sm_rescale(t):
    if t == 0 or NOMAX: return []
    if LAZY:
        lbl = f".Lk1_nors2_{t}"
        return [[f"s_cmp_eq_u64 s[{S_FLAG}:{S_FLAG+1}], 0", f"s_cbranch_scc1 {lbl}"] + [f"v_mul_f32 v{V_ACC+i}, v{V_ALPHA}, v{V_ACC+i}" for i in range(64)] + [f"{lbl}:"]]
    if not USEPK:
        return [f"v_mul_f32 v{V_ACC+i}, v{V_ALPHA}, v{V_ACC+i}" for i in range(64)]
    return [f"v_pk_mul_f32 v[{V_ACC+i}:{V_ACC+i+1}], v[{V_ACC+i}:{V_ACC+i+1}], v[{V_ALPHA}:{V_ALPHA+1}] op_sel_hi:[1,0]" for i in range(0, 64, 2)]

def sm_lupd(t):
    if DOT2: return []
    L = [f"v_add_f32 v{PSUM}, v{PSUM}, v{PSUM+1}"]
    if t == 0:
        L.append(f"v_mov_b32 v{V_L}, v{PSUM}")
    elif LAZY:
        L.append(f"v_add_f32 v{V_L}, v{V_L}, v{PSUM}")
    else:
        L.append(f"v_fma_f32 v{V_L}, v{V_L}, v{V_ALPHA}, v{PSUM}")
    return L

def gen_k1(A, emb=False, pre=None, hookA=None, hookB=None, kname="k1_kernel", v2=False, hookC=None, hookD=None):
    name = kname
    vm = Cnt(A, "vmcnt", 63); lg = Cnt(A, "lgkmcnt", 15)
    stamp = Stamper(A, lg, S_DBG, S_WAVE)
    kernel_header(A, name)
    A("s_cmp_lt_u32 s2, 256")
    A("s_cbranch_scc1 .Lk1_go")
    A("s_endpgm")
    A.label(".Lk1_go")
    if pre: pre()
    A("s_load_dwordx4 s[60:63], s[0:1], 8")
    A("s_load_dwordx4 s[64:67], s[0:1], 24")
    A("s_load_dwordx2 s[68:69], s[0:1], 112")
    A("s_load_dwordx8 s[92:99], s[0:1], 48")
    A(f"v_and_b32 v{V_LANE}, 63, v0")
    A("v_lshrrev_b32 v2, 6, v0")
    A("s_nop 0")
    A(f"v_readfirstlane_b32 s{S_WAVE}, v2")
    KM = int(os.environ.get("K1MAP","1"))
    if KM == 1:
        A(f"s_lshr_b32 s{S_G}, s2, 5")
        A(f"s_and_b32 s{S_M}, s2, 31")
    elif KM == 4:
        A(f"s_and_b32 s{S_G}, s2, 6")
        A(f"s_lshr_b32 s{S_M}, s2, 7")
        A(f"s_or_b32 s{S_G}, s{S_G}, s{S_M}")
        A(f"s_bfe_u32 s{S_M}, s2, 0x40003")
        A(f"s_lshl_b32 s{S_M}, s{S_M}, 1")
        A(f"s_and_b32 s{S_TMP}, s2, 1")
        A(f"s_or_b32 s{S_M}, s{S_M}, s{S_TMP}")
    elif KM == 5:
        A(f"s_and_b32 s{S_G}, s2, 4")
        A(f"s_lshr_b32 s{S_M}, s2, 6")
        A(f"s_or_b32 s{S_G}, s{S_G}, s{S_M}")
        A(f"s_bfe_u32 s{S_M}, s2, 0x30003")
        A(f"s_lshl_b32 s{S_M}, s{S_M}, 2")
        A(f"s_and_b32 s{S_TMP}, s2, 3")
        A(f"s_or_b32 s{S_M}, s{S_M}, s{S_TMP}")
    elif KM == 0:
        A(f"s_and_b32 s{S_G}, s2, 7")
        A(f"s_lshr_b32 s{S_M}, s2, 3")
    else:
        nb_ = KM - 1
        A(f"s_and_b32 s{S_G}, s2, {(1 << nb_) - 1}")
        A(f"s_lshr_b32 s{S_M}, s2, {5 + nb_}")
        A(f"s_lshl_b32 s{S_M}, s{S_M}, {nb_}")
        A(f"s_or_b32 s{S_G}, s{S_G}, s{S_M}")
        A(f"s_bfe_u32 s{S_M}, s2, {hex((5 << 16) | nb_)}")
    A(f"s_mov_b32 s{S_MASK}, 0xffff0000")
    for (s, val) in (() if P4 else ((S_C1, 65537.0), (S_K2, 65537.0 * SCALE), (S_SC, SCALE), (S_L2E, LOG2E))):
        A(f"s_mov_b32 s{s}, {fhex(val)}")
        A(f"s_mov_b32 s{s+1}, {fhex(val)}")
    L = V_LANE
    SM = f"s{S_MASK}"
    D = 4
    EARLYA = v2 and int(os.environ.get("EARLYA", "1"))
    if EARLYA:
        A(f"v_lshlrev_b32 v12, 4, v{L}")
        hookA()
    A(f"v_lshrrev_b32 v5, 3, v{L}")
    A(f"v_and_b32 v6, 7, v{L}")
    A("v_lshlrev_b32 v7, 1, v5")
    A("v_and_b32 v7, 4, v7")
    A("v_xor_b32 v6, v6, v7")
    A("v_lshlrev_b32 v6, 4, v6")
    A(f"v_lshl_add_u32 v{V_WQOFF}, v5, 13, v6")
    A(f"v_lshl_add_u32 v{V_WOOFF}, v5, 10, v6")
    A(f"s_lshl_b32 s{S_RB}, s{S_WAVE}, {11 if D6 else 13}")
    A(f"s_add_u32 s{S_RB}, s{S_RB}, {STG}")
    A(f"s_lshl_b32 s{S_OFF}, s{S_G}, 10")
    A(f"s_lshl_b32 s{S_TMP}, s{S_WAVE}, 7")
    A(f"s_add_u32 s{S_OFF}, s{S_OFF}, s{S_TMP}")
    if P4:
        assert D6 and not M16
        A(f"v_lshrrev_b32 v5, 4, v{L}")
        A(f"v_and_b32 v6, 15, v{L}")
        A(f"s_lshl_b32 s{S_TMP}, s{S_WAVE}, 3")
        A(f"v_add_u32 v7, s{S_TMP}, v5")
        A(f"v_xor_b32 v9, v7, v{L}")
        A("v_and_b32 v9, 15, v9")
        A("v_lshlrev_b32 v9, 4, v9")
        A(f"v_lshl_add_u32 v{V_KOFF}, v7, 8, v9")
        A(f"v_xor_b32 v{V_KOFF+1}, 64, v{V_KOFF}")
        A("v_lshlrev_b32 v9, 2, v5")
        A("v_xor_b32 v9, v6, v9")
        A("v_lshlrev_b32 v9, 4, v9")
        A(f"v_lshl_add_u32 v{V_VOFF}, v7, 8, v9")
        A(f"s_lshl_b32 s{S_KVM0}, s{S_WAVE}, 11")
        A(f"v_lshrrev_b32 v5, 5, v{L}")
        A(f"v_bfe_u32 v6, v{L}, 4, 1")
        A(f"v_bfe_u32 v7, v{L}, 2, 2")
        A(f"v_and_b32 v8, 1, v{L}")
        A(f"v_bfe_u32 v9, v{L}, 1, 1")
        A("v_lshl_or_b32 v8, v8, 1, v9")
        A("v_lshlrev_b32 v8, 3, v8")
        A("v_lshl_add_u32 v8, v6, 5, v8")
        A("v_lshl_add_u32 v10, v5, 3, v7")
        A("v_lshrrev_b32 v11, 1, v7")
        A("v_lshl_add_u32 v9, v11, 6, v8")
        A("v_lshl_add_u32 v9, v10, 7, v9")
        A(f"v_add_u32 v{V_AADDR}, s{S_RB}, v9")
        A(f"v_xor_b32 v{V_AADDR+1}, 64, v{V_AADDR}")
        for nb in range(2): A(f"v_add_u32 v{V_AADDR2[nb]}, 65536, v{V_AADDR+nb}")
        A("v_lshl_add_u32 v9, v7, 6, v8")
        A("v_lshl_add_u32 v9, v10, 8, v9")
        A(f"v_add_u32 v{V_VADDR}, {VRING}, v9")
        for db in range(1, 4): A(f"v_xor_b32 v{V_VADDR+db}, {db << 6}, v{V_VADDR}")
        A(f"v_and_b32 v6, 31, v{L}")
        A("v_xor_b32 v7, v5, v6")
        A("v_and_b32 v7, 15, v7")
        A("v_lshlrev_b32 v7, 4, v7")
        A(f"v_lshl_add_u32 v{V_BADDR}, v6, 10, v7")
        for j in range(1, 8): A(f"v_xor_b32 v{V_BADDR+j}, {j << 5}, v{V_BADDR}")
        A("v_and_b32 v7, 0x13, v6")
        A("v_bfe_u32 v8, v6, 2, 1")
        A("v_lshl_or_b32 v7, v8, 3, v7")
        A("v_bfe_u32 v8, v6, 3, 1")
        A("v_lshl_or_b32 v7, v8, 2, v7")
        A("v_xor_b32 v8, v5, v7")
        A("v_and_b32 v8, 15, v8")
        A("v_lshlrev_b32 v8, 4, v8")
        A("v_lshl_add_u32 v8, v7, 8, v8")
        A(f"v_add_u32 v{V_KADDR}, {KRING}, v8")
        for j in range(1, 8): A(f"v_xor_b32 v{V_KADDR+j}, {j << 5}, v{V_KADDR}")
        A(f"v_and_b32 v14, 48, v{L}")
        A(f"v_xor_b32 v15, s71, v{L}")
        A("v_and_or_b32 v15, v15, 15, v14")
        A("v_lshlrev_b32 v15, 4, v15")
        A(f"s_lshl_b32 s{S_TMP+1}, s71, 10")
        A(f"v_add_u32 v{V_QADDR}, s{S_TMP+1}, v15")
        for i in range(1, 8): A(f"v_xor_b32 v{V_QADDR+i}, {i * 1040}, v{V_QADDR}")
        A(f"v_lshlrev_b32 v13, 5, v{L}")
        A(f"v_mov_b32 v{V_K10}, 0x3f80")
        A(f"v_mov_b32 v{V_K01}, 1.0")
    else:
        A(f"v_lshrrev_b32 v5, 4, v{L}")
        A(f"v_and_b32 v6, 15, v{L}")
        A(f"s_lshl_b32 s{S_TMP}, s{S_WAVE}, 3")
        A(f"v_add_u32 v7, s{S_TMP}, v5")
        for j in range(2):
            A(f"v_add_u32 v8, {4*j}, v7")
            A("v_and_b32 v9, 15, v8")
            A("v_xor_b32 v9, v6, v9")
            A("v_lshlrev_b32 v9, 4, v9")
            A(f"v_lshl_add_u32 v{V_KOFF+j}, v7, 8, v9")
        A("v_lshlrev_b32 v9, 2, v5")
        A("v_xor_b32 v9, v6, v9")
        A("v_lshlrev_b32 v9, 4, v9")
        A(f"v_lshl_add_u32 v{V_VOFF}, v7, 8, v9")
        A(f"s_lshl_b32 s{S_KVM0}, s{S_WAVE}, 11")
        A(f"v_lshrrev_b32 v5, 5, v{L}")
        A(f"v_bfe_u32 v6, v{L}, 4, 1")
        A(f"v_bfe_u32 v7, v{L}, 2, 2")
        A(f"v_and_b32 v8, 1, v{L}")
        A(f"v_bfe_u32 v9, v{L}, 1, 1")
        A("v_lshl_or_b32 v8, v8, 1, v9")
        A("v_lshlrev_b32 v8, 3, v8")
        A("v_lshl_add_u32 v8, v6, 5, v8")
        A("v_lshl_add_u32 v10, v5, 3, v7")
        A("v_lshrrev_b32 v11, 1, v7")
        for nb in range(2):
            A(f"v_xor_b32 v12, {nb}, v11")
            A("v_lshl_add_u32 v12, v12, 6, v8")
            A("v_lshl_add_u32 v12, v10, 7, v12")
            A(f"v_add_u32 v{V_AADDR+nb}, s{S_RB}, v12")
            if M16: A(f"v_xor_b32 v{V_AADDR2[nb]}, 32, v{(V_WQOFF, V_WOOFF)[nb]}")
            elif D6: A(f"v_add_u32 v{V_AADDR2[nb]}, 65536, v{V_AADDR+nb}")
        for db in range(4):
            A(f"v_xor_b32 v12, {db}, v7")
            A("v_lshl_add_u32 v12, v12, 6, v8")
            A(f"v_lshl_add_u32 v12, v10, 8, v12")
            A(f"v_add_u32 v{V_VADDR+db}, {VRING}, v12")
        A(f"v_and_b32 v6, 31, v{L}")
        for j in range(8):
            A(f"v_or_b32 v7, {2*j}, v5")
            A("v_xor_b32 v7, v7, v6")
            A("v_and_b32 v7, 15, v7")
            A("v_lshlrev_b32 v7, 4, v7")
            A(f"v_lshl_add_u32 v{V_BADDR+j}, v6, 10, v7")
        A("v_and_b32 v7, 0x13, v6")
        A("v_bfe_u32 v8, v6, 2, 1")
        A("v_lshl_or_b32 v7, v8, 3, v7")
        A("v_bfe_u32 v8, v6, 3, 1")
        A("v_lshl_or_b32 v7, v8, 2, v7")
        for j in range(8):
            A(f"v_or_b32 v8, {2*j}, v5")
            A("v_xor_b32 v8, v8, v7")
            A("v_and_b32 v8, 15, v8")
            A("v_lshlrev_b32 v8, 4, v8")
            A(f"v_lshl_add_u32 v8, v7, 8, v8")
            A(f"v_add_u32 v{V_KADDR+j}, {KRING}, v8")
        A(f"s_lshl_b32 s{S_TMP}, s{S_WAVE}, 3")
        A(f"v_and_b32 v14, 48, v{L}")
        for i in range(8):
            A(f"s_add_u32 s{S_TMP+1}, s{S_TMP}, {i}")
            A(f"v_xor_b32 v15, s{S_TMP+1}, v{L}")
            A("v_and_or_b32 v15, v15, 15, v14")
            A("v_lshlrev_b32 v15, 4, v15")
            A(f"s_lshl_b32 s{S_TMP+1}, s{S_TMP+1}, 10")
            A(f"v_add_u32 v{V_QADDR+i}, s{S_TMP+1}, v15")
        A(f"s_lshl_b32 s{S_TMP}, s{S_M}, 16")
        A(f"s_lshl_b32 s{S_TMP+1}, s{S_WAVE}, 13")
        A(f"s_add_u32 s{S_TMP}, s{S_TMP}, s{S_TMP+1}")
        A(f"s_add_u32 s{S_TMP+1}, s{S_TMP}, 4096")
        A(f"v_lshlrev_b32 v12, 4, v{L}")
        A(f"v_lshlrev_b32 v13, 5, v{L}")
        A("s_waitcnt lgkmcnt(0)")
        make_srd(A, S_XN, 68, WS_XN, 2 * MB)
        make_srd(A, S_MOD, 68, WS_MOD, 3072 * 4)
    XR = V_S
    SA = V_S + 32; CA = V_S + 40
    def p0_loads():
        A(f"buffer_load_dwordx4 v[{CA}:{CA+3}], v13, s[{S_MOD}:{S_MOD+3}], 0 offen offset:2048"); vm.issue("mod")
        A(f"buffer_load_dwordx4 v[{CA+4}:{CA+7}], v13, s[{S_MOD}:{S_MOD+3}], 0 offen offset:2064"); vm.issue("mod")
        A(f"buffer_load_dwordx4 v[{SA}:{SA+3}], v13, s[{S_MOD}:{S_MOD+3}], 0 offen"); vm.issue("mod")
        A(f"buffer_load_dwordx4 v[{SA+4}:{SA+7}], v13, s[{S_MOD}:{S_MOD+3}], 0 offen offset:16"); vm.issue("mod")
        for i in range(8):
            A(f"buffer_load_dwordx4 v[{XR+4*i}:{XR+4*i+3}], v12, s[{S_XN}:{S_XN+3}], s{S_TMP + (i >> 2)} offen offset:{(i & 3) * 1024}")
            vm.issue(("x", i))
    if EARLYA: pass
    elif hookA: hookA()
    else: p0_loads()
    make_srd(A, S_WQ, 64, 0, 4 * MB)
    if hookB: pass
    elif D6: gemm_dma6(A, vm, 0, S_WQ, V_WQOFF, 8192)
    else: gemm_dma(A, vm, 0, S_WQ, V_WQOFF, 8192, D)
    A(f"s_lshl_b32 s{S_TMP}, s{S_G}, 19")
    A(f"s_add_u32 s{S_TMP+1}, s{S_TMP}, {1536 * 256}")
    make_srd(A, S_K, 60, f"s{S_TMP+1}", 512 * 256)
    make_srd(A, S_V, 62, f"s{S_TMP+1}", 512 * 256)
    make_srd(A, S_WO, 66, f"s{S_TMP}", 512 * 1024)
    psz = 2 if PART_BF16 else 4
    A(f"s_mov_b32 s{S_SL}, {fhex(SCALE*LOG2E)}")
    PL = int(os.environ.get("PL", "1")) and emb
    if PL:
        A(f"s_lshl_b32 s{S_TMP+2}, s{S_M}, 3")
        A(f"s_add_u32 s{S_TMP+2}, s{S_TMP+2}, s{S_G}")
        A(f"s_lshl_b32 s{S_TMP+2}, s{S_TMP+2}, 16")
        A(f"s_add_u32 s{S_TMP+2}, s{S_TMP+2}, {WS_PART}")
        make_srd(A, S_P, 68, f"s{S_TMP+2}", 65536)
    else:
        A(f"s_mul_i32 s{S_TMP+2}, s{S_G}, {2048 * 512 * psz}")
        A(f"s_add_u32 s{S_TMP+2}, s{S_TMP+2}, {WS_PART}")
        make_srd(A, S_P, 68, f"s{S_TMP+2}", 2048 * 512 * psz)
    if DEBUG or TIMING:
        make_srd(A, S_DBG, 68, WS_DBG, 32 * MB)
    stamp(True); stamp()
    SCR = STG + 16384
    if hookB and v2:
        LDE = int(os.environ.get("LDE", "2"))
        KVL = int(os.environ.get("KVL", "1"))
        def kvpf():
            A(f"v_lshlrev_b32 v5, 7, v{L}")
            A(f"s_lshl_b32 s{S_TMP}, s{S_M}, 12")
            A(f"s_add_u32 s{S_TMP+1}, s{S_TMP}, 4096")
            A(f"s_cmp_lg_u32 s{S_WAVE}, 4")
            A("s_cbranch_scc1 .Lk1_nkv")
            A("s_mov_b32 exec_hi, 0")
            A(f"buffer_load_dword v15, v5, s[{S_K}:{S_K+3}], s{S_TMP} offen")
            A(f"buffer_load_dword v15, v5, s[{S_V}:{S_V+3}], s{S_TMP} offen")
            A("s_mov_b64 exec, -1")
            A.label(".Lk1_nkv")
        def loader():
            for st in range(LDE): gemm_dma6(A, vm, st, S_WQ, V_WQOFF, 8192)
            A(f"s_sub_u32 s{S_RB}, s{S_RB}, 8192")
            A(f"s_sub_u32 s{S_OFF}, s{S_OFF}, {LDE * 16 * 8192 + 512}")
            for st in range(LDE): gemm_dma6(A, vm, st, S_WQ, V_WQOFF, 8192)
            A(f"s_add_u32 s{S_RB}, s{S_RB}, 8192")
            A(f"s_add_u32 s{S_OFF}, s{S_OFF}, 512")
            if not KVL: kvpf()
        def cfix():
            A(f"s_add_u32 s{S_OFF}, s{S_OFF}, {LDE * 16 * 8192}")
        def xn_loads():
            vm.ops = []
            A(f"s_lshl_b32 s{S_TMP}, s{S_M}, 16")
            A(f"s_lshl_b32 s{S_TMP+1}, s{S_WAVE}, 13")
            A(f"s_add_u32 s{S_TMP}, s{S_TMP}, s{S_TMP+1}")
            A(f"s_add_u32 s{S_TMP+1}, s{S_TMP}, 4096")
            for i in range(8):
                A(f"buffer_load_dwordx4 v[{XR+4*i}:{XR+4*i+3}], v12, s[{S_XN}:{S_XN+3}], s{S_TMP + (i >> 2)} offen offset:{(i & 3) * 1024}")
                vm.issue(("x", i))
        def ownfill():
            for st in range(LDE): gemm_dma6(A, vm, st, S_WQ, V_WQOFF, 8192)
        hookB(ownfill if int(os.environ.get("MEGA", "7")) >= 6 else loader, cfix, xn_loads)
        lg.ops = []
        A(f"v_add_u32 v2, {SCR + 4096}, v13")
        A(f"ds_read_b128 v[{CA}:{CA+3}], v2 offset:2048")
        A(f"ds_read_b128 v[{CA+4}:{CA+7}], v2 offset:2064")
        A(f"ds_read_b128 v[{SA}:{SA+3}], v2")
        A(f"ds_read_b128 v[{SA+4}:{SA+7}], v2 offset:16")
        A("s_waitcnt lgkmcnt(0)")
    elif hookB:
        def early():
            for st in range(6): gemm_dma6(A, vm, st, S_WQ, V_WQOFF, 8192)
            A(f"s_cmp_lg_u32 s{S_WAVE}, 6")
            A("s_cbranch_scc1 .Lk1_e6")
            A(f"s_add_u32 s{S_RB}, s{S_RB}, 2048")
            A(f"s_sub_u32 s{S_OFF}, s{S_OFF}, {6 * 16 * 8192 - 128}")
            for st in range(6): gemm_dma6(A, vm, st, S_WQ, V_WQOFF, 8192)
            A(f"s_sub_u32 s{S_RB}, s{S_RB}, 2048")
            A(f"s_sub_u32 s{S_OFF}, s{S_OFF}, 128")
            A.label(".Lk1_e6")
            A(f"v_lshlrev_b32 v5, 6, v{L}")
            A(f"s_lshl_b32 s{S_TMP}, s{S_M}, 12")
            A(f"buffer_load_dword v15, v5, s[{S_K}:{S_K+3}], s{S_TMP} offen")
            A(f"buffer_load_dword v15, v5, s[{S_V}:{S_V+3}], s{S_TMP} offen")
        def w7():
            A(f"s_add_u32 s{S_OFF}, s{S_OFF}, {6 * 16 * 8192}")
        hookB(0, early, w7)
        vm.ops = []; lg.ops = []
        A(f"s_lshl_b32 s{S_TMP}, s{S_M}, 16")
        A(f"s_lshl_b32 s{S_TMP+1}, s{S_WAVE}, 13")
        A(f"s_add_u32 s{S_TMP}, s{S_TMP}, s{S_TMP+1}")
        A(f"s_add_u32 s{S_TMP+1}, s{S_TMP}, 4096")
        p0_loads()
    vm.wait("mod")
    for j in range(0, 8 if not v2 else 0, 2):
        A(f"v_add_f32 v{CA+j}, 1.0, v{CA+j}")
        A(f"v_add_f32 v{CA+j+1}, 1.0, v{CA+j+1}")
        round_bf16_2(A, CA + j, CA + j + 1, V_T, SM)
    for i in range(8 if P4 else 0):
        x = XR + 4 * i; T = 64 + 16 * (i & 1)
        for j in range(8): A(f"v_dot2_f32_bf16 v{T+j}, v{x+j//2}, v{CA+j}, 0")
        for j in range(4): A(f"v_cvt_pk_bf16_f32 v{x+j}, v{T+2*j}, v{T+2*j+1}")
        for j in range(8): A(f"v_dot2_f32_bf16 v{T+8+j}, v{x+j//2}, v{(V_K10, V_K01)[j & 1]}, v{SA+j}")
        for j in range(4): A(f"v_cvt_pk_bf16_f32 v{x+j}, v{T+8+2*j}, v{T+8+2*j+1}")
        A(f"ds_write_b128 v{V_QADDR+i}, v[{x}:{x+3}]")
        lg.issue("hw")
        if LDE + i < 5: gemm_dma6(A, vm, LDE + i, S_WQ, V_WQOFF, 8192)
    for i in range(0 if P4 else 8):
        x = XR + 4 * i
        vm.wait(("x", i))
        for j in range(4):
            a = 2 + 2 * j
            A(f"v_lshlrev_b32 v{a}, 16, v{x+j}")
            A(f"v_and_b32 v{a+1}, {SM}, v{x+j}")
        for j in range(0, 8, 2):
            A(f"v_pk_mul_f32 v[{2+j}:{3+j}], v[{2+j}:{3+j}], v[{CA+j}:{CA+j+1}]")
        for j in range(4):
            a = 2 + 2 * j
            A(f"v_cvt_pk_bf16_f32 v{x+j}, v{a}, v{a+1}")
        for j in range(4):
            a = 2 + 2 * j
            A(f"v_lshlrev_b32 v{a}, 16, v{x+j}")
            A(f"v_and_b32 v{a+1}, {SM}, v{x+j}")
        for j in range(0, 8, 2):
            A(f"v_pk_add_f32 v[{2+j}:{3+j}], v[{2+j}:{3+j}], v[{SA+j}:{SA+j+1}]")
        for j in range(4):
            a = 2 + 2 * j
            A(f"v_cvt_pk_bf16_f32 v{x+j}, v{a}, v{a+1}")
        A(f"ds_write_b128 v{V_QADDR+i}, v[{x}:{x+3}]")
        lg.issue("hw")
        if hookB and v2:
            if LDE + i < 5: gemm_dma6(A, vm, LDE + i, S_WQ, V_WQOFF, 8192)
        elif hookB: pass
        elif D6:
            if i in (1, 3, 5, 6, 7): gemm_dma6(A, vm, {1: 1, 3: 2, 5: 3, 6: 4, 7: 5}[i], S_WQ, V_WQOFF, 8192)
        elif i in (1, 3, 5):
            gemm_dma(A, vm, (i + 1) // 2, S_WQ, V_WQOFF, 8192, D)
    if not D6:
        k_dma(A, vm, 0)
        k_dma(A, vm, 1)
    if PREFETCH and not hookB:
        A(f"v_lshlrev_b32 v5, 6, v{L}")
        A(f"s_lshl_b32 s{S_TMP}, s{S_M}, 12")
        A(f"buffer_load_dword v15, v5, s[{S_K}:{S_K+3}], s{S_TMP} offen"); vm.issue("pf")
        A(f"buffer_load_dword v15, v5, s[{S_V}:{S_V+3}], s{S_TMP} offen"); vm.issue("pf")
    if hookC:
        if KVL: kvpf()
        hookC()
    if M16: addr16(A)
    lg.waitall()
    stamp()
    A("s_barrier")
    stamp()
    if D6:
        def tail1(ks):
            if ks == 26: k_dma(A, vm, 0)
            if ks == 27: k_dma(A, vm, 1)
            if ks == 28: v_dma(A, vm, 0)
            if ks == 29: v_dma(A, vm, 1)
            if ks == 31: k_dma(A, vm, 2)
        if M16: gemm_core16(A, vm, lg, S_WQ, V_WQOFF, 8192, 5 if v2 else 6, tail1)
        else: gemm_core6(A, vm, lg, S_WQ, V_WQOFF, 8192, 5 if v2 else 6, tail1, bars=eval(os.environ.get('B1', '()')))
    else:
        gemm_core(A, vm, lg, S_WQ, V_WQOFF, 8192, D)
    stamp()
    A("s_barrier")
    if not D6:
        v_dma(A, vm, 0)
        k_dma(A, vm, 2)
        v_dma(A, vm, 1)
    A(f"s_and_b32 s{S_TMP}, s{S_WAVE}, 1")
    A(f"s_lshr_b32 s{S_TMP+1}, s{S_WAVE}, 1")
    A(f"s_lshl_b32 s{S_TMP+1}, s{S_TMP+1}, 8")
    A(f"s_cmp_eq_u32 s{S_TMP}, 1")
    A(f"s_cselect_b64 vcc, -1, 0")
    A(f"v_mov_b32 v{V_ALPHA}, s{S_SL}")
    if M16:
        A(f"v_lshrrev_b32 v6, 5, v{L}")
        A(f"v_and_b32 v7, 15, v{L}")
        A(f"s_lshl_b32 s{S_TMP}, s{S_TMP}, 3")
        A(f"v_or_b32 v6, s{S_TMP}, v6")
        A("v_xor_b32 v6, v6, v7")
        A(f"v_bfe_u32 v8, v{L}, 4, 1")
        A("v_lshlrev_b32 v8, 3, v8")
        A("v_lshl_add_u32 v8, v7, 10, v8")
        A(f"v_add_u32 v8, s{S_TMP+1}, v8")
        for nt in range(4):
            A(f"v_xor_b32 v9, {2*nt}, v6")
            A(f"v_lshl_add_u32 v{2+nt}, v9, 4, v8")
        for nt in range(4):
            for rt in range(4):
                acc = V_ACC + (nt * 4 + rt) * 4
                d = V_S + (nt * 4 + rt) * 2
                for e in range(0, 4, 2):
                    A(f"v_pk_mul_f32 v[{acc+e}:{acc+e+1}], v[{acc+e}:{acc+e+1}], v[{V_ALPHA}:{V_ALPHA+1}] op_sel_hi:[1,0]")
                for e in range(2):
                    A(f"v_cvt_pk_bf16_f32 v{d+e}, v{acc+2*e}, v{acc+2*e+1}")
                A(f"ds_write_b64 v{2+nt}, v[{d}:{d+1}] offset:{rt*16384}")
                lg.issue("qw")
    else:
        for j in range(4):
            A(f"v_cndmask_b32 v{2+j}, v{V_BADDR+j}, v{V_BADDR+4+j}, vcc")
            A(f"v_add_u32 v{2+j}, s{S_TMP+1}, v{2+j}")
        for nb in range(2):
            for rb in range(2):
                acc = V_ACC + (nb * 2 + rb) * 16
                for mp in range(2):
                    d = V_S + (nb * 4 + rb * 2 + mp) * 4
                    if CT:
                        for e in range(0, 8, 2):
                            A(f"v_pk_mul_f32 v[{acc+8*mp+e}:{acc+8*mp+e+1}], v[{acc+8*mp+e}:{acc+8*mp+e+1}], v[{V_ALPHA}:{V_ALPHA+1}] op_sel_hi:[1,0]")
                    for e in range(4):
                        A(f"v_cvt_pk_bf16_f32 v{d+e}, v{acc+8*mp+2*e}, v{acc+8*mp+2*e+1}")
                    A(f"ds_write_b128 v{2+2*nb+mp}, v[{d}:{d+3}] offset:{rb*32768}")
                    lg.issue("qw")
                    if DEBUG:
                        A(f"v_and_b32 v8, 31, v{L}")
                        A(f"v_lshrrev_b32 v9, 5, v{L}")
                        A("v_lshlrev_b32 v8, 13, v8")
                        A("v_lshl_add_u32 v8, v9, 4, v8")
                        A(f"s_lshl_b32 s{S_TMP+2}, s{S_M}, 19")
                        A(f"s_lshl_b32 s{S_TMP+3}, s{S_G}, 10")
                        A(f"s_add_u32 s{S_TMP+2}, s{S_TMP+2}, s{S_TMP+3}")
                        A(f"s_lshl_b32 s{S_TMP+3}, s{S_WAVE}, 7")
                        A(f"s_add_u32 s{S_TMP+2}, s{S_TMP+2}, s{S_TMP+3}")
                        A(f"s_add_u32 s{S_TMP+2}, s{S_TMP+2}, {rb*32*8192 + nb*64 + mp*32}")
                        A(f"buffer_store_dwordx4 v[{d}:{d+3}], v8, s[{S_DBG}:{S_DBG+3}], s{S_TMP+2} offen")
                        vm.issue("dbg")
    A(f"s_and_b32 s{S_TMP}, s{S_WAVE}, 3")
    A(f"s_lshl_b32 s{S_TMP}, s{S_TMP}, 8")
    A(f"s_lshr_b32 s{S_TMP+1}, s{S_WAVE}, 2")
    A(f"s_lshl_b32 s{S_TMP+1}, s{S_TMP+1}, 15")
    A(f"s_add_u32 s{S_QOFF}, s{S_TMP}, s{S_TMP+1}")
    for j in range(8):
        A(f"v_add_u32 v{V_QADDR+j}, s{S_QOFF}, v{V_BADDR+j}")
    lg.waitall()
    vm.wait(("k", 0))
    A("s_barrier")
    stamp()
    if PRIO:
        A(f"s_cmp_lt_u32 s{S_WAVE}, 4")
        A("s_cbranch_scc1 .Lk1_noprio" if PRIO == 1 else "s_cbranch_scc0 .Lk1_noprio")
        A("s_setprio 1")
        A.label(".Lk1_noprio")
    for j in range(8):
        A(f"ds_read_b128 v[{V_Q+4*j}:{V_Q+4*j+3}], v{V_QADDR+j}")
        lg.issue("q")
    seq = []
    for kb in range(2):
        for j in range(8):
            seq.append(("k", 0, kb, j))
    for t in range(8):
        if t > 0:
            for db in range(4): seq.append(("v", t - 1, 3, db))
        if t + 1 < 8:
            for kb in range(2):
                for j in range(8): seq.append(("k", t + 1, kb, j))
        for ks in range(3):
            for db in range(4): seq.append(("v", t, ks, db))
    for db in range(4): seq.append(("v", 7, 3, db))
    state = {"issued": 0, "limit": 0}
    def issue_frag(i):
        kind, t, a, b = seq[i]
        f = V_F + (i % NF) * 4
        if (EXPT & 4) and i >= 8: return
        if (EXPT & 16) and (i & 1): return
        if kind == "k":
            A(f"ds_read_b128 v[{f}:{f+3}], v{V_KADDR+b} offset:{((t + 1) % 3) * 16384 + a * 8192}")
            lg.issue(("fr", i))
        else:
            o = (t % 3) * 16384 + a * 4096
            A(f"ds_read_b64_tr_b16 v[{f}:{f+1}], v{V_VADDR+b} offset:{o}")
            lg.issue(("fr", i))
            A(f"ds_read_b64_tr_b16 v[{f+2}:{f+3}], v{V_VADDR+b} offset:{o + 1024}")
            lg.issue(("fr", i))
    def avail(i, epoch):
        kind, t, a, b = seq[i]
        return (t - 1 <= epoch) if kind == "k" else (t <= epoch)
    def runahead(cur, epoch):
        while state["issued"] < len(seq) and state["issued"] <= cur + RA and avail(state["issued"], epoch):
            issue_frag(state["issued"]); state["issued"] += 1
    def mfma(i, epoch):
        kind, t, a, b = seq[i]
        runahead(i - 1, epoch)
        assert state["issued"] > i
        f = V_F + (i % NF) * 4
        lg.wait(("fr", i))
        if (EXPT & 2048) and kind == "k":
            for hh in range(2):
                s4 = V_S + (t & 1) * 32 + a * 16 + (b & 1) * 8 + hh * 4
                c4 = ("0" if t == 0 else f"v[{V_NB}:{V_NB+3}]") if b < 2 else f"v[{s4}:{s4+3}]"
                A(f"v_mfma_f32_16x16x32_bf16 v[{s4}:{s4+3}], v[{f}:{f+3}], v[{V_Q+4*(b^hh)}:{V_Q+4*(b^hh)+3}], {c4}")
        elif (EXPT & 4096) and kind == "v":
            for hh in range(2):
                o4 = V_ACC + b * 16 + (a & 1) * 8 + hh * 4
                p = V_S + (t & 1) * 32 + 4 * a
                c4 = "0" if (t == 0 and a < 2) else f"v[{o4}:{o4+3}]"
                A(f"v_mfma_f32_16x16x32_bf16 v[{o4}:{o4+3}], v[{f}:{f+3}], v[{p}:{p+3}], {c4}")
        elif kind == "k":
            s = V_S + (t & 1) * 32 + a * 16
            c = ("0" if (t == 0 or not CT) else f"v[{V_NB}:{V_NB+15}]") if b == 0 else f"v[{s}:{s+15}]"
            A(f"v_mfma_f32_32x32x16_bf16 v[{s}:{s+15}], v[{f}:{f+3}], v[{V_Q+4*b}:{V_Q+4*b+3}], {c}")
        else:
            o = V_ACC + b * 16
            p = V_S + (t & 1) * 32 + 4 * a
            c = "0" if (t == 0 and a == 0) else f"v[{o}:{o+15}]"
            A(f"v_mfma_f32_32x32x16_bf16 v[{o}:{o+15}], v[{f}:{f+3}], v[{p}:{p+3}], {c}")
        runahead(i, epoch)
    def seg(idx, n, valu, epoch):
        nv = len(valu); k = 0
        def em(x):
            if isinstance(x, list):
                for y in x:
                    if y.endswith(":"): A.label(y[:-1])
                    else: A(y)
            else: A(x)
        if n == 0:
            for x in valu: em(x)
            return idx
        for m_ in range(n):
            mfma(idx + m_, epoch)
            upto = (nv * (m_ + 1) + n - 1) // n
            while k < upto:
                em(valu[k]); k += 1
        return idx + n
    if DOT2:
        assert NOMAX
        A(f"v_mov_b32 v{PSUM}, 0"); A(f"v_mov_b32 v{PSUM+1}, 0"); A("v_mov_b32 v14, 0x3f803f80")
    idx = seg(0, 16, [], -1)
    for t in range(8):
        if t + 1 < 8: vm.wait(("k", t + 1))
        vm.wait(("v", t))
        if not (EXPT & 8): A("s_barrier")
        if t >= 0 and t + 3 < 8: k_dma(A, vm, t + 3)
        if t >= 1 and t + 1 < 8: v_dma(A, vm, t + 1)
        PFMODE = int(os.environ.get("PFMODE", "1"))
        if PREFETCH and t == 1:
            A("v_lshlrev_b32 v12, 6, v0")
            A(f"s_lshl_b32 s{S_TMP}, s{S_M}, 14")
            A(f"s_add_u32 s{S_TMP+1}, s{S_TMP}, 16384")
            A(f"s_mov_b32 s{S_XN}, s{S_WO}")
            A(f"s_mov_b32 s{S_XN+1}, s{S_WO+1}")
            A(f"s_mov_b32 s{S_XN+2}, s{S_TMP+1}")
            if P4: A(f"s_mov_b32 s{S_XN+3}, 0x00020000")
            A(f"buffer_load_dword v15, v12, s[{S_XN}:{S_XN+3}], s{S_TMP} offen"); vm.issue("pf")
        if PREFETCH and PFMODE < 2:
            for (tt, p, sz) in ((2, 92, 512*1024), (2, 94, 512*1024), (3, 96, 1792*1024), (4, 98, 1792*1024)):
                if t != (1 if PFMODE == 0 else tt): continue
                per = sz // 256
                if p == 96 and int(os.environ.get("K5N", "0")): per = (56 * int(os.environ.get('W3S', '32768')) // 256 + 63) // 64 * 64
                A(f"s_mul_i32 s{S_TMP}, s2, {per}")
                if p == 96 and int(os.environ.get("K5N", "0")):
                    A(f"s_add_u32 s{S_TMP}, s{S_TMP}, {28 * MB}")
                    p = 68
                make_srd(A, S_XN, p, f"s{S_TMP}", per)
                A(f"buffer_load_dword v15, v12, s[{S_XN}:{S_XN+3}], 0 offen"); vm.issue("pf")
        XPF = int(os.environ.get("XPF", "0"))
        if XPF and t in (5, 6):
            for (tt, p, sz, bit) in ((5, 96, 1792*1024, 1), (6, 98, 1792*1024, 2), (5, 92, 512*1024, 4), (6, 94, 512*1024, 4)):
                if t != tt or not (XPF & bit): continue
                per = sz // 32
                A(f"s_lshr_b32 s{S_TMP}, s2, 3")
                A(f"s_mul_i32 s{S_TMP}, s{S_TMP}, {per}")
                make_srd(A, S_XN, p, f"s{S_TMP}", per)
                A("v_lshlrev_b32 v13, 7, v0")
                A(f"buffer_load_dword v15, v13, s[{S_XN}:{S_XN+3}], 0 offen"); vm.issue("pf")
        if t == 7 and PD:
            A(f"s_lshl_b32 s{S_OFF}, s{S_WAVE}, 16")
            A(f"v_lshlrev_b32 v{V_WOOFF}, 4, v{L}")
            for st in range(4): pd_load(A, vm, st)
        elif t == 7 and D6:
            A(f"s_lshl_b32 s{S_OFF}, s{S_WAVE}, 7")
            for st in range(4):
                gemm_dma6(A, vm, st, S_WO, V_WOOFF, 1024)
        elif t == 7:
            A(f"s_add_u32 s{S_RB}, s{S_RB}, 32768")
            A(f"s_lshl_b32 s{S_OFF}, s{S_WAVE}, 7")
            for nb in range(2):
                A(f"v_add_u32 v{V_AADDR+nb}, 32768, v{V_AADDR+nb}")
            for st in range(D):
                gemm_dma(A, vm, st, S_WO, V_WOOFF, 1024, D)
        mxl = sm_max(t)
        if t == 0:
            mxl = ["s_nop 7", "s_nop 3"] + mxl
        idx = seg(idx, 4 if t > 0 else 0, mxl, t)
        b = sm_quarter(t, 0) + sm_rescale(t) + sm_quarter(t, 1) + ["s_nop 1"]
        idx = seg(idx, 16 if t + 1 < 8 else 0, b, t)
        q3 = sm_quarter(t, 3)
        h = len(q3) // 3
        idx = seg(idx, 8, sm_quarter(t, 2) + ["s_nop 1"] + q3[:h], t)
        idx = seg(idx, 4, q3[h:] + sm_lupd(t) + ["s_nop 1"], t)
        stamp()
    idx = seg(idx, 4, [], 7)
    assert idx == len(seq)
    if DOT2: A(f"v_add_f32 v{V_L}, v{PSUM}, v{PSUM+1}")
    A(f"v_mov_b32 v2, v{V_L}")
    A(f"v_mov_b32 v3, v{V_L}")
    A("s_nop 1")
    A(f"v_permlane32_swap_b32 v2, v3")
    A("s_nop 1")
    A(f"v_add_f32 v{V_L}, v2, v3")
    for j in range(8):
        A(f"v_add_u32 v{V_QADDR+j}, s{S_QOFF}, v{V_BADDR+j}")
    A(f"v_rcp_f32 v{V_ALPHA}, v{V_L}")
    A("s_nop 7")
    A("s_nop 3")
    for db in range(4):
        o = V_ACC + db * 16
        for mp in range(2):
            d = V_S + (db * 2 + mp) * 4
            for e in range(0, 8, 2):
                A(f"v_pk_mul_f32 v[{o+8*mp+e}:{o+8*mp+e+1}], v[{o+8*mp+e}:{o+8*mp+e+1}], v[{V_ALPHA}:{V_ALPHA+1}] op_sel_hi:[1,0]")
            for e in range(4):
                A(f"v_cvt_pk_bf16_f32 v{d+e}, v{o+8*mp+2*e}, v{o+8*mp+2*e+1}")
            A(f"ds_write_b128 v{V_QADDR+2*db+mp}, v[{d}:{d+3}]")
            lg.issue("ow")
            if DEBUG:
                A(f"v_and_b32 v5, 31, v{L}")
                A(f"v_lshrrev_b32 v6, 5, v{L}")
                A("v_lshlrev_b32 v5, 13, v5")
                A("v_lshl_add_u32 v5, v6, 4, v5")
                A(f"s_lshl_b32 s{S_TMP+2}, s{S_M}, 19")
                A(f"s_lshl_b32 s{S_TMP+3}, s{S_G}, 10")
                A(f"s_add_u32 s{S_TMP+2}, s{S_TMP+2}, s{S_TMP+3}")
                A(f"s_and_b32 s{S_TMP+3}, s{S_WAVE}, 3")
                A(f"s_lshl_b32 s{S_TMP+3}, s{S_TMP+3}, 8")
                A(f"s_add_u32 s{S_TMP+2}, s{S_TMP+2}, s{S_TMP+3}")
                A(f"s_lshr_b32 s{S_TMP+3}, s{S_WAVE}, 2")
                A(f"s_lshl_b32 s{S_TMP+3}, s{S_TMP+3}, 18")
                A(f"s_add_u32 s{S_TMP+2}, s{S_TMP+2}, s{S_TMP+3}")
                A(f"s_add_u32 s{S_TMP+2}, s{S_TMP+2}, {16*MB + db*64 + mp*32}")
                A(f"buffer_store_dwordx4 v[{d}:{d+3}], v5, s[{S_DBG}:{S_DBG+3}], s{S_TMP+2} offen")
                vm.issue("dbg")
    if M16: addr16(A)
    lg.waitall()
    A("s_barrier")
    stamp()
    if PD: pd_core(A, vm, lg, 4)
    elif M16: gemm_core16(A, vm, lg, S_WO, V_WOOFF, 1024, 4)
    elif D6: gemm_core6(A, vm, lg, S_WO, V_WOOFF, 1024, 4, bars=eval(os.environ.get('B3', '()')), hb=HB3)
    else: gemm_core(A, vm, lg, S_WO, V_WOOFF, 1024, D)
    stamp()
    if int(os.environ.get("TSTORE", "1")) and PART_BF16:
        if M16:
            A(f"v_and_b32 v5, 15, v{L}")
            A(f"v_lshrrev_b32 v6, 5, v{L}")
            A("v_and_b32 v7, 7, v5")
            A("v_xor_b32 v6, v6, v7")
            A(f"v_bfe_u32 v8, v{L}, 4, 1")
            A("v_lshlrev_b32 v8, 3, v8")
            A("v_lshl_add_u32 v8, v5, 7, v8")
            A(f"v_add_u32 v8, s{S_RB}, v8")
            for nt in range(4):
                A(f"v_xor_b32 v9, {2*nt}, v6")
                A(f"v_lshl_add_u32 v{10+nt}, v9, 4, v8")
        else:
            A(f"v_and_b32 v5, 31, v{L}")
            A(f"v_lshrrev_b32 v6, 5, v{L}")
            A("v_and_b32 v7, 7, v5")
            if D6:
                A("v_lshrrev_b32 v8, 4, v5")
                A("v_and_b32 v5, 15, v5")
                A("v_lshl_add_u32 v5, v8, 7, v5")
            for j in range(4):
                A(f"v_or_b32 v8, {2*j}, v6")
                A("v_xor_b32 v8, v8, v7")
                A("v_lshlrev_b32 v8, 4, v8")
                A("v_lshl_add_u32 v8, v5, 7, v8")
                A(f"v_add_u32 v{10+j}, s{S_RB}, v8")
        A(f"v_lshrrev_b32 v7, 3, v{L}")
        A(f"v_and_b32 v8, 7, v{L}")
        A("v_xor_b32 v9, v8, v7")
        A("v_lshlrev_b32 v9, 4, v9")
        A("v_lshl_add_u32 v9, v7, 7, v9")
        A(f"v_add_u32 v9, s{S_RB}, v9")
        A("v_lshlrev_b32 v8, 4, v8")
        A("v_lshl_add_u32 v8, v7, 10, v8")
        if PL:
            A(f"s_lshl_b32 s{S_TMP}, s{S_WAVE}, 7")
        else:
            A(f"s_lshl_b32 s{S_TMP}, s{S_M}, 16")
            A(f"s_lshl_b32 s{S_TMP+1}, s{S_WAVE}, 7")
            A(f"s_add_u32 s{S_TMP}, s{S_TMP}, s{S_TMP+1}")
        for nt in range(4 if M16 else 0):
            for rt in range(4):
                acc = V_ACC + (nt * 4 + rt) * 4
                d = V_S + (nt * 4 + rt) * 2
                for e in range(2):
                    A(f"v_cvt_pk_bf16_f32 v{d+e}, v{acc+2*e}, v{acc+2*e+1}")
                A(f"ds_write_b64 v{10+nt}, v[{d}:{d+1}] offset:{rt*16384}")
        for nb in range(0 if M16 else 2):
            for rb in range(2):
                acc = V_ACC + (nb * 2 + rb) * 16
                for mp in range(2):
                    d = V_S + (nb * 4 + rb * 2 + mp) * 4
                    for e in range(4):
                        A(f"v_cvt_pk_bf16_f32 v{d+e}, v{acc+8*mp+2*e}, v{acc+8*mp+2*e+1}")
                    A(f"ds_write_b128 v{10+2*nb+mp}, v[{d}:{d+3}] offset:{rb*(32768 if D6 else 4096)}")
        A("s_waitcnt lgkmcnt(0)")
        for i in range(8):
            A(f"ds_read_b128 v[{V_S+32+4*i}:{V_S+32+4*i+3}], v9 offset:{((i >> 1) * 16384 + (i & 1) * 1024) if D6 else i*1024}")
        if HB3 is not None:
            A(f"s_cmp_ge_u32 s{S_WAVE}, 4")
            A("s_cbranch_scc1 .Lhb_b")
            A("s_waitcnt lgkmcnt(0)")
            hookD()
            A(f"v_and_b32 v3, 3, v{L}")
            A("v_lshlrev_b32 v3, 11, v3")
            A(f"v_add_u32 v3, {STG + slot6(HB3) * 16384 + 8192}, v3")
            A.label(".Lhb_sp")
            A("ds_read_b64 v[6:7], v3")
            A("s_waitcnt lgkmcnt(0)")
            A("v_xor_b32 v6, s100, v6")
            A("v_xor_b32 v7, s101, v7")
            A("v_or_b32 v6, v6, v7")
            A("v_cmp_ne_u32 vcc, 0, v6")
            A("s_nop 0")
            A("s_cbranch_vccz .Lhb_b")
            A("s_sleep 2")
            A("s_branch .Lhb_sp")
            A.label(".Lhb_b")
        for i in range(8):
            A(f"s_waitcnt lgkmcnt({7-i})")
            A(f"buffer_store_dwordx4 v[{V_S+32+4*i}:{V_S+32+4*i+3}], v8, s[{S_P}:{S_P+3}], s{S_TMP} offen {os.environ.get('PSTF','sc1')}")
            if i < 7: A(f"s_add_u32 s{S_TMP}, s{S_TMP}, 8192")
    else:
        A(f"v_and_b32 v5, 31, v{L}")
        A(f"v_lshrrev_b32 v6, 5, v{L}")
        sh = 10 if PART_BF16 else 11
        A(f"v_lshlrev_b32 v5, {sh}, v5")
        A(f"v_lshl_add_u32 v5, v6, {4 if PART_BF16 else 5}, v5")
        A(f"s_lshl_b32 s{S_TMP}, s{S_M}, {sh + 6}")
        A(f"s_lshl_b32 s{S_TMP+1}, s{S_WAVE}, {7 if PART_BF16 else 8}")
        A(f"s_add_u32 s{S_TMP}, s{S_TMP}, s{S_TMP+1}")
        A(f"s_add_u32 s{S_TMP+1}, s{S_TMP}, {32 << sh}")
        A("s_nop 7")
        A("s_nop 3")
        for nb in range(2):
            for rb in range(2):
                acc = V_ACC + (nb * 2 + rb) * 16
                for mp in range(2):
                    if PART_BF16:
                        d = V_S + (nb * 4 + rb * 2 + mp) * 4
                        for e in range(4):
                            A(f"v_cvt_pk_bf16_f32 v{d+e}, v{acc+8*mp+2*e}, v{acc+8*mp+2*e+1}")
                        A(f"buffer_store_dwordx4 v[{d}:{d+3}], v5, s[{S_P}:{S_P+3}], s{S_TMP+rb} offen offset:{(32*nb+16*mp)*2} {os.environ.get('PSTF','sc1')}")
                    else:
                        for h4 in range(2):
                            A(f"buffer_store_dwordx4 v[{acc+8*mp+4*h4}:{acc+8*mp+4*h4+3}], v5, s[{S_P}:{S_P+3}], s{S_TMP+rb} offen offset:{(32*nb+16*mp+4*h4)*4}")
    if KT:
        stamp(); stamp.flush()
    if TIMING:
        A("s_waitcnt vmcnt(0)")
        stamp(); stamp(True)
        stamp.flush()
    if emb: return
    A("s_endpgm")
    A.raw(kernel_desc(name, 256, 102, 256))
    return (name, (256, 1, 1), (512, 1, 1), 163840)
```

```python
from asmlib import *
from gen_k0 import *
import gen_k1 as K1
from gen_k1 import Cnt
from gen_ka import ln_rows, round_multi, pack8, GK0, GK1
from gen_g64 import WS_STAT, WS_CS
import os
SPAN = int(os.environ.get("SPAN", "0"))
MT = int(os.environ.get("MT", "0")) or SPAN
HD = int(os.environ.get("HD", "0"))
PT = int(os.environ.get("PT", "0"))
TLW = int(os.environ.get("TLW", "0"))
MP = int(os.environ.get("MP", "1"))
RM = int(os.environ.get("RM", "1"))
XS = int(os.environ.get("XS", "1"))
HP = int(os.environ.get("HP", "0"))
SPOLL = int(os.environ.get("SPOLL", "1"))
HPH = int(os.environ.get("HPH", "0"))
CNT = 17408
S_R8 = 46; V_CT = 53
PRG = int(os.environ.get("PRG", "0"))
MSK = 83968
WQF = int(os.environ.get("WQF", "0"))
W0M = int(os.environ.get("MEGA", "7")) >= 5 and int(os.environ.get("W0M", "1"))
EB = int(os.environ.get("EB", "0"))
DLY = int(os.environ.get("DLY", "1"))
WQE = int(os.environ.get("WQE", "0"))
ONE = int(os.environ.get("MEGA", "7")) >= 4
V2 = int(os.environ.get("MEGA", "7")) >= 5
V3 = int(os.environ.get("MEGA", "7")) >= 6
V4 = int(os.environ.get("MEGA", "7")) == 7
LDP = int(os.environ.get("LDP", "1"))
WQP = int(os.environ.get("WQP", "2"))
CX = int(os.environ.get("CX", "0"))
NW = int(os.environ.get("NW", "2"))
XRT = int(os.environ.get("XRT", "1"))
XH = int(os.environ.get("XH", "1"))
KFB = int(os.environ.get("KFB", "6"))
XL = int(os.environ.get("XL", "4"))
DPP_ = int(os.environ.get("DPP_", "1"))
LT = int(os.environ.get("LT", "3" if V4 else "0"))
CSM = int(os.environ.get("CSM", "2"))
HA = int(os.environ.get("HA", "0"))
FG = int(os.environ.get("FG", "1" if V4 else "0"))
FGP = int(os.environ.get("FGP", "19"))
FGD = int(os.environ.get("FGD", "8"))
J7P = int(os.environ.get("J7P", "-1"))
FGR = int(os.environ.get("FGR", "0"))
FGL = int(os.environ.get("FGL", "0"))
FGH = int(os.environ.get("FGH", "1"))
FGE = int(os.environ.get("FGE", "8"))
def fg_slot(st):
    st %= FGP
    return 18432 + ((21 + st) % 11) * 2048 if st < 11 else (st - 11) * 2048
CS5 = LT == 3 and CSM == 1
CS6 = LT == 3 and CSM == 2
WS_CS2 = WS_FLAG + 0x100000
NREP = int(os.environ.get("NREP", "8"))
WS_LL = WS_FLAG + 0x40000
MODP = 12288; CSP = 8192
FP = WS_FLAG + 0x20000; FQ_ = WS_FLAG + 0x30000
S_WAVE = 40; S_M = 41; S_J = 42; S_MASK = 43; S_RB = 44; S_GOFF = 45; S_TMP = 48; S_WOFF = 58
S_W = 32; V_W = 6
P_X = 60; P_OUT = 62; P_WS = 68; P_W = 84
SM = f"s{S_MASK}"
L = 1
RG = 40960; RS = 272
K5RB = 18432; K5D = 11
L2PF = int(os.environ.get('L2PF', '0'))
PFE = int(os.environ.get('PFE', '3'))
NE = int(os.environ.get('NE', '3')) if PFE == 2 else 0

def pk(A, op, d, a, b, c=None, sel=""):
    ops = ", ".join(f"v[{x}:{x+1}]" for x in ((d, a, b) if c is None else (d, a, b, c)))
    A(f"{op} {ops} {sel}".rstrip())

RC1 = int(os.environ.get("RC1", "1" if V4 else "0"))
KRF = int(os.environ.get("KRF", "1" if V4 else "0"))
_round_multi = round_multi
def round_multi(A, xs, ts, smask):
    if not RC1: return _round_multi(A, xs, ts, smask)
    for x in xs: A(f"v_cvt_pk_bf16_f32 v{x}, 0, v{x}")
def ln_pk(A, P, X, m, q, K10, K01, s1, smu, sr, smask):
    for j in range(4):
        A(f"v_dot2_f32_bf16 v{m}, v{P+j}, s{s1}, " + ("0" if j == 0 else f"v{m}"))
        A(f"v_dot2_f32_bf16 v{q}, v{P+j}, v{P+j}, " + ("0" if j == 0 else f"v{q}"))
    A("s_nop 1")
    for d in ("quad_perm:[1,0,3,2] row_mask:0xf", "quad_perm:[2,3,0,1] row_mask:0xf", "row_half_mirror row_mask:0xf", "row_mirror row_mask:0xf",
              "row_bcast:15 row_mask:0xa", "row_bcast:31 row_mask:0xc"):
        for v in (m, q): A(f"v_add_f32_dpp v{v}, v{v}, v{v} {d} bank_mask:0xf")
        if "31" not in d: A("s_nop 0")
    A(f"v_mul_f32 v{m}, {fhex(1/512)}, v{m}")
    A(f"v_mul_f32 v{q}, {fhex(1/512)}, v{q}")
    A(f"v_fma_f32 v{q}, -v{m}, v{m}, v{q}")
    A(f"v_cvt_pk_bf16_f32 v{m}, 0, -v{m}")
    A(f"v_max_f32 v{q}, 0, v{q}")
    A(f"v_readlane_b32 s{smu}, v{m}, 63")
    A(f"v_cvt_pk_bf16_f32 v{q}, 0, v{q}")
    A(f"v_add_f32 v{q}, {fhex(1e-5)}, v{q}")
    A(f"v_cvt_pk_bf16_f32 v{q}, 0, v{q}")
    A(f"v_sqrt_f32 v{q}, v{q}")
    for j in range(4): A(f"v_dot2_f32_bf16 v{X[j]}, v{P+j//2}, v{(K10, K01)[j & 1]}, s{smu}")
    A(f"v_cvt_pk_bf16_f32 v{q}, 0, v{q}")
    A(f"v_rcp_f32 v{q}, v{q}")
    for j in range(4, 8): A(f"v_dot2_f32_bf16 v{X[j]}, v{P+j//2}, v{(K10, K01)[j & 1]}, s{smu}")
    A(f"v_readlane_b32 s{sr}, v{q}, 63")
    for j in range(8): A(f"v_cvt_pk_bf16_f32 v{X[j]}, 0, v{X[j]}")
    for j in range(0, 8, 2): A(f"v_pk_mul_f32 v[{X[j]}:{X[j]+1}], v[{X[j]}:{X[j]+1}], s[{sr}:{sr+1}] op_sel_hi:[1,0]")
FLN = int(os.environ.get("FLN", "2"))
_ln_slow = ln_rows
def ln_fast(A, R, smask, final_round=True):
    for X, T in R:
        assert X[0] % 2 == 0 and T[0] % 2 == 0
        pk(A, "v_pk_add_f32", T[0], X[0], X[2]); pk(A, "v_pk_mul_f32", T[2], X[0], X[0])
        pk(A, "v_pk_add_f32", T[4], X[4], X[6]); pk(A, "v_pk_mul_f32", T[6], X[2], X[2])
    for X, T in R:
        pk(A, "v_pk_fma_f32", T[2], X[4], X[4], T[2]); pk(A, "v_pk_fma_f32", T[6], X[6], X[6], T[6])
        pk(A, "v_pk_add_f32", T[0], T[0], T[4])
    for X, T in R:
        pk(A, "v_pk_add_f32", T[2], T[2], T[6])
        A(f"v_add_f32 v{T[0]}, v{T[0]}, v{T[1]}")
    for X, T in R:
        A(f"v_add_f32 v{T[1]}, v{T[2]}, v{T[3]}")
    wave_allreduce(A, "v_add_f32", [t for X, T in R for t in (T[0], T[1])], [t for X, T in R for t in (T[2], T[3])], [t for X, T in R for t in (T[4], T[5])])
    for X, T in R:
        A(f"v_mul_f32 v{T[0]}, {fhex(1/512)}, v{T[0]}")
        A(f"v_mul_f32 v{T[1]}, {fhex(1/512)}, v{T[1]}")
    for X, T in R:
        A(f"v_fma_f32 v{T[1]}, -v{T[0]}, v{T[0]}, v{T[1]}")
    for X, T in R:
        A(f"v_max_f32 v{T[1]}, 0, v{T[1]}")
    for X, T in R:
        A(f"v_cvt_pk_bf16_f32 v{T[3]}, v{T[0]}, v{T[1]}")
    for X, T in R:
        A(f"v_and_b32 v{T[1]}, {smask}, v{T[3]}")
        A(f"v_lshlrev_b32 v{T[2]}, 16, v{T[3]}")
    for X, T in R:
        A(f"v_add_f32 v{T[1]}, {fhex(1e-5)}, v{T[1]}")
        for j in range(0, 4, 2): pk(A, "v_pk_add_f32", X[j], X[j], T[2], None, "op_sel_hi:[1,0] neg_lo:[0,1] neg_hi:[0,1]")
    for X, T in R:
        A(f"v_cvt_pk_bf16_f32 v{T[1]}, v{T[1]}, v{T[1]}")
        for j in range(4, 8, 2): pk(A, "v_pk_add_f32", X[j], X[j], T[2], None, "op_sel_hi:[1,0] neg_lo:[0,1] neg_hi:[0,1]")
    for X, T in R:
        A(f"v_lshlrev_b32 v{T[1]}, 16, v{T[1]}")
    for X, T in R:
        A(f"v_sqrt_f32 v{T[0]}, v{T[1]}")
        round_multi(A, X[:4], T[4:6], smask)
    for X, T in R:
        A(f"v_cvt_pk_bf16_f32 v{T[0]}, v{T[0]}, v{T[0]}")
    for X, T in R:
        A(f"v_lshlrev_b32 v{T[0]}, 16, v{T[0]}")
    for X, T in R:
        A(f"v_rcp_f32 v{T[2]}, v{T[0]}")
        round_multi(A, X[4:], T[4:6], smask)
    if FLN == 2:
        for X, T in R:
            for j in range(0, 8, 2): pk(A, "v_pk_mul_f32", X[j], X[j], T[2], None, "op_sel_hi:[1,0]")
    else:
        for X, T in R:
            for h in range(2):
                js = (4 * h, 4 * h + 2)
                for k, j in enumerate(js): pk(A, "v_pk_mul_f32", T[4+2*k], X[j], T[2], None, "op_sel_hi:[1,0]")
                for k, j in enumerate(js): pk(A, "v_pk_fma_f32", X[j], T[4+2*k], T[0], X[j], "op_sel_hi:[1,0,1] neg_lo:[1,0,0] neg_hi:[1,0,0]")
                for k, j in enumerate(js): pk(A, "v_pk_fma_f32", X[j], X[j], T[2], T[4+2*k], "op_sel_hi:[1,0,1]")
    if final_round:
        for X, T in R: round_multi(A, X, T[4:8], smask)
def ln_rows(A, R, smask, final_round=True):
    return ln_fast(A, R, smask, final_round) if FLN else _ln_slow(A, R, smask)

class Cap:
    def __init__(self, A): self.A = A
    def __enter__(self):
        self.sv = self.A.lines; self.A.lines = []; return self
    def __exit__(self, *a):
        self.out = self.A.lines; self.A.lines = self.sv

def interleave(A, mf, fill):
    n = len(mf); k = 0
    for i, m in enumerate(mf):
        A(m)
        upto = (len(fill) * (i + 1) + n - 1) // n
        while upto < len(fill) and upto > 0 and not (fill[upto - 1].lstrip().startswith(("buffer_", "ds_", "v_", "s_waitcnt")) or fill[upto - 1].lstrip().startswith(f"s_add_u32 s{S_WOFF}")): upto += 1
        A.lines.extend(fill[k:upto]); k = max(k, upto)

class Mega:
    def __init__(self, A):
        self.A = A
        self.vm = Cnt(A, "vmcnt", 63); self.lg = Cnt(A, "lgkmcnt", 15)
    def stamp(self, idx):
        if SPAN and idx not in (0, 3, 22): return
        if HD:
            hmap = {0: 2, 3: 3, 4: 4, 7: 5, 8: 6, 11: 7, 12: 8, 15: 9, 16: 10, 19: 11, 20: 12, 21: 13, 22: 14}
            if int(os.environ.get('HK', '0')): hmap = {0: 2, 22: 14}
            if idx not in hmap: return
            A = self.A
            lab = A.newlabel("hd")
            A("s_waitcnt lgkmcnt(0)")
            A("s_load_dwordx2 s[76:77], s[0:1], 104")
            A("s_memrealtime s[70:71]")
            A("s_waitcnt lgkmcnt(0)")
            A("s_mov_b32 s72, s76")
            A("s_mov_b32 s73, s77")
            A("s_mov_b32 s74, 256")
            A("s_mov_b32 s75, 0x00020000")
            A(f"s_lshl_b32 s76, s{S_WAVE}, 8")
            A("s_or_b32 s76, s76, s2")
            A(f"s_cmp_lg_u32 s76, {HD}")
            A(f"s_cbranch_scc1 {lab}")
            A("v_mov_b32 v2, s70")
            A("v_mov_b32 v3, 0")
            A(f"buffer_store_dword v2, v3, s[72:75], 0 offen offset:{4*hmap[idx]}")
            A.label(lab)
            self.lg.ops = []
            return
        if not MT: return
        A = self.A
        A("s_waitcnt lgkmcnt(0)")
        A("s_memrealtime s[70:71]")
        make_srd(A, 72, P_WS, WS_DBG, 32 * MB)
        A("s_lshl_b32 s76, s2, 3")
        A(f"s_add_u32 s76, s76, s{S_WAVE}")
        A("s_lshl_b32 s76, s76, 7")
        A("s_waitcnt lgkmcnt(0)")
        A("v_mov_b32 v2, s70")
        A("v_mov_b32 v3, 0")
        A(f"buffer_store_dword v2, v3, s[72:75], s76 offen offset:{4*idx}")
        self.vm.issue("stamp"); self.lg.ops = []
    def flag_srd(self, stage):
        make_srd(self.A, 92, P_WS, WS_FLAG + stage * 32 * 256, 32 * 256)
    def jobs0(self):
        A = self.A
        make_srd(A, 80, P_WS, FQ_, 32 * 1024)
        make_srd(A, 12, P_WS, WS_MOD, 4 * MODP)
        A(f"s_cmp_lg_u32 s{S_WAVE}, {0 if W0M else 7}")
        A("s_cbranch_scc1 .Lw0m_end")
        A(f"s_lshl_b32 s98, s{S_M}, 10")
        A("v_add_u32 v2, 64, v1")
        A(f"v_min_u32 v2, {63 if LT == 3 else 119}, v2")
        A("v_lshlrev_b32 v2, 3, v2")
        A("v_lshlrev_b32 v3, 3, v1")
        if V4 and XH:
            assert LT == 3
            A("s_mov_b32 s99, 0")
            A("v_lshlrev_b32 v4, 3, v1")
            A.label(".Lplq_poll")
            A("buffer_load_dwordx2 v[248:249], v4, s[80:83], s98 offen sc1")
            A("s_add_u32 s99, s99, 1")
            A("s_waitcnt vmcnt(0)")
            A("v_xor_b32 v248, s100, v248")
            A("v_xor_b32 v249, s101, v249")
            A("v_or_b32 v248, v248, v249")
            A("v_cmp_ne_u32 vcc, 0, v248")
            A("s_cmp_lt_u32 s99, 0x40000")
            A("s_cbranch_scc0 .Lplq_done")
            A("s_cbranch_vccz .Lplq_done")
            A(f"s_cmp_lg_u32 s99, {KFB}")
            A("s_cbranch_scc1 .Lplq_poll")
            A("s_bitcmp1_b32 s2, 1")
            A("s_cbranch_scc0 .Lplq_poll")
            A("s_and_b32 s52, s2, 1")
            A("s_lshl_b32 s52, s52, 5")
            A("s_lshr_b32 s53, s2, 3")
            A("s_add_u32 s52, s52, s53")
            A("s_bitcmp1_b64 vcc, s52")
            A("s_cbranch_scc0 .Lplq_poll")
            A("s_and_b32 s53, s52, 1")
            A("s_lshr_b32 s54, s52, 1")
            A("s_add_u32 s54, s54, 16")
            A("s_lshl_b32 s55, s54, 7")
            self.p4_slow("l", 55, 53, 16, 20, 48, SM)
            A(f"s_mul_i32 s53, s53, {MODP}")
            A("s_lshl_b32 s54, s54, 8")
            A("s_add_u32 s53, s53, s54")
            A("v_lshlrev_b32 v2, 2, v2")
            A("buffer_store_dword v114, v2, s[12:15], s53 offen sc1")
            A("v_mov_b32 v70, s100")
            A("v_mov_b32 v71, s101")
            A("v_lshlrev_b32 v3, 10, v1")
            A("s_lshl_b32 s52, s52, 3")
            A("s_waitcnt vmcnt(0)")
            A("s_mov_b32 exec_hi, 0")
            A("buffer_store_dwordx2 v[70:71], v3, s[80:83], s52 offen sc1")
            A("s_mov_b64 exec, -1")
            A("s_branch .Lplq_poll")
            A.label(".Lplq_done")
        else: self.poll64(".Lplq", [(3, 80, "s98"), (2, 80, "s98")])
        if W0M:
            A("v_lshlrev_b32 v10, 5, v1")
            for part in range(2):
                for q, idx in enumerate((2, 4, 3)):
                    d = 24 + 8 * q + 88 * part
                    A(f"s_movk_i32 s{S_TMP}, {idx*2048 + part*MODP}")
                    A(f"buffer_load_dwordx4 v[{d}:{d+3}], v10, s[12:15], s{S_TMP} offen")
                    A(f"buffer_load_dwordx4 v[{d+4}:{d+7}], v10, s[12:15], s{S_TMP} offen offset:16")
            A("v_add_u32 v10, 81920, v10")
            A("s_waitcnt vmcnt(0)")
            for j in range(0, 24, 2): pk(A, "v_pk_add_f32", 24 + j, 24 + j, 112 + j)
            for q in range(3): round_multi(A, list(range(24 + 8*q, 32 + 8*q)), [56, 57, 58, 59], SM)
            for j in range(8): A(f"v_add_f32 v{32+j}, 1.0, v{32+j}")
            round_multi(A, list(range(32, 40)), [56, 57, 58, 59], SM)
            for q, off in enumerate((0, 16384, 49152)):
                A(f"ds_write_b128 v10, v[{24+8*q}:{27+8*q}] offset:{off}")
                A(f"ds_write_b128 v10, v[{28+8*q}:{31+8*q}] offset:{off+16}")
        A.label(".Lw0m_end")
        if CS6:
            A(f"s_cmp_lg_u32 s{S_WAVE}, 1")
            A("s_cbranch_scc1 .Lcs_end")
            A("s_cmp_ge_u32 s2, 224")
            A("s_cbranch_scc1 .Lcs_end")
            make_srd(A, 16, P_W + 4, 0, 512 * 3584)
            make_srd(A, 20, P_WS, WS_CS2, 8 * 1792 * 8)
            A("s_lshr_b32 s48, s2, 3")
            A("s_and_b32 s49, s2, 7")
            A(f"s_mul_i32 s50, s49, {64 * 3584}")
            A("s_lshl_b32 s51, s48, 7")
            A("s_add_u32 s50, s50, s51")
            A("v_and_b32 v2, 7, v1")
            A("v_lshrrev_b32 v3, 3, v1")
            A(f"v_mul_u32_u24 v4, {8 * 3584}, v3")
            A("v_lshl_add_u32 v4, v2, 4, v4")
            for i in range(8):
                A(f"buffer_load_dwordx4 v[{128+4*i}:{131+4*i}], v4, s[16:19], s50 offen")
                if i < 7: A("s_add_u32 s50, s50, 3584")
            A("v_lshl_add_u32 v2, v2, 3, v3")
            A("v_lshlrev_b32 v2, 3, v2")
            A(f"s_mul_i32 s49, s49, {1792 * 8}")
            A("s_lshl_b32 s48, s48, 9")
            A("s_add_u32 s48, s48, s49")
            AC = list(range(64, 72))
            for i in range(8):
                A(f"s_waitcnt vmcnt({7 - i})")
                U = 64 if i == 0 else 72 + 8 * (i & 1)
                for j in range(4):
                    A(f"v_lshlrev_b32 v{U+2*j}, 16, v{128+4*i+j}")
                    A(f"v_and_b32 v{U+2*j+1}, {SM}, v{128+4*i+j}")
                if i:
                    for j in range(8): A(f"v_add_f32 v{64+j}, v{64+j}, v{U+j}")
            A("s_nop 1")
            self.p4_red8([AC], [])
            A("v_mov_b32 v67, s100")
            A("buffer_store_dwordx2 v[66:67], v2, s[20:23], s48 offen sc1")
            A.label(".Lcs_end")
    def transition(self, stage, early=None):
        A = self.A
        self.stamp(1 + 4 * stage)
        self.vm.ops = []
        if HA and stage == 0:
            TG = K1.STG + 5 * 16384
            make_srd(A, 92, P_WS, WS_FLAG, 6 * 32 * 256)
            A(f"s_lshl_b32 s96, s{S_M}, 8")
            A(f"s_lshl_b32 s97, s{S_J}, 3")
            A("s_add_u32 s97, s97, s96")
            A(f"s_add_u32 s98, s97, {5 * 8192}")
            A(f"s_cmp_lt_u32 s{S_WAVE}, 4")
            A("s_cselect_b32 s97, s98, s97")
            A(f"s_lshl_b32 s98, s{S_WAVE}, 11")
            A(f"s_add_u32 s98, s98, {TG}")
            A("v_mov_b32 v2, s98")
            A(f"s_and_b32 s98, s98, {hex(0xffffffff & ~0x1fff)}")
            A("v_and_b32 v3, 3, v1")
            A("v_lshlrev_b32 v3, 11, v3")
            A("v_add_u32 v3, s98, v3")
            A("v_mov_b32 v246, s100")
            A("v_mov_b32 v247, s101")
            A("v_mov_b32 v4, s97")
            A("s_waitcnt vmcnt(0)")
            A("ds_write_b64 v2, v[246:247]")
            A("ds_read_b64 v[6:7], v3")
            A("s_waitcnt lgkmcnt(0)")
            A("v_xor_b32 v6, s100, v6")
            A("v_xor_b32 v7, s101, v7")
            A("v_or_b32 v6, v6, v7")
            A("v_cmp_ne_u32 vcc, 0, v6")
            A("s_nop 0")
            A("s_cbranch_vccnz .Lha_np")
            A("s_mov_b64 exec, 1")
            A("buffer_store_dwordx2 v[246:247], v4, s[92:95], 0 offen sc1")
            A("s_mov_b64 exec, -1")
            A.label(".Lha_np")
            A(f"s_sub_u32 s48, s{S_WAVE}, 2")
            A("s_cmp_ge_u32 s48, 2")
            A("s_cbranch_scc1 .Lha_end")
            make_srd(A, 72, P_WS, WS_PART, 8 * 2048 * 512 * 2)
            make_srd(A, 76, P_WS, WS_FLAG + 5 * 8192, 8192)
            A("v_and_b32 v60, 7, v1")
            A("v_lshlrev_b32 v60, 3, v60")
            A(f"s_lshl_b32 s64, s{S_M}, 19")
            A(f"s_lshl_b32 s50, s{S_J}, 13")
            A("s_add_u32 s64, s64, s50")
            A("s_lshl_b32 s50, s48, 12")
            A("s_add_u32 s64, s64, s50")
            A("v_lshrrev_b32 v61, 5, v1")
            A("v_and_b32 v5, 31, v1")
            A("v_lshlrev_b32 v61, 10, v61")
            A("v_lshl_add_u32 v61, v5, 4, v61")
            A("s_lshl_b32 s50, s48, 11")
            A(f"s_add_u32 s50, s50, {81920 + 4096}")
            A("v_lshlrev_b32 v62, 5, v1")
            A("v_add_u32 v62, s50, v62")
            A("v_add_u32 v3, 8192, v3")
            A("s_mov_b32 s65, 0")
            A.label(".Lha_pl")
            A("buffer_load_dwordx2 v[248:249], v60, s[76:79], s96 offen sc1")
            A("s_waitcnt vmcnt(0)")
            A("ds_read_b64 v[6:7], v3")
            A("v_xor_b32 v248, s100, v248")
            A("v_xor_b32 v249, s101, v249")
            A("v_or_b32 v248, v248, v249")
            A("v_cmp_ne_u32 vcc, 0, v248")
            A("s_waitcnt lgkmcnt(0)")
            A("s_cbranch_vccz .Lha_go")
            A("v_xor_b32 v6, s100, v6")
            A("v_xor_b32 v7, s101, v7")
            A("v_or_b32 v6, v6, v7")
            A("v_cmp_ne_u32 vcc, 0, v6")
            A("s_nop 0")
            A("s_cbranch_vccz .Lha_end")
            A(f"s_sleep {int(os.environ.get('HASL', '2'))}")
            A("s_branch .Lha_pl")
            A.label(".Lha_go")
            self.ha_loads()
            A.label(".Lha_end")
        if ONE and stage == 0:
            if K1.HB3 is None: self.jobs0()
            if PRG:
                A(f"s_cmp_lg_u32 s{S_WAVE}, 1")
                A("s_cbranch_scc1 .Lw1m_end")
                A(f"s_lshl_b32 s{S_TMP}, 1, s{S_J}")
                A(f"v_mov_b32 v2, {MSK}")
                A(f"v_mov_b32 v3, s{S_TMP}")
                A("ds_write_b32 v2, v3")
                A.label(".Lw1m_end")
        if early and NE:
            A(f"s_cmp_ge_u32 s{S_WAVE}, 4")
            A(f"s_cbranch_scc1 .Ltr{stage}_h")
            early(0, NE)
            A(f"s_waitcnt vmcnt({len(self.vm.ops)})")
            A(f"s_branch .Ltr{stage}_j")
            A.label(f".Ltr{stage}_h")
            A("s_waitcnt vmcnt(0)")
            A.label(f".Ltr{stage}_j")
        elif not (HA and stage == 0):
            A("s_waitcnt vmcnt(0)")
        self.flag_srd(stage)
        A(f"s_lshl_b32 s96, s{S_M}, 8")
        A(f"s_lshl_b32 s97, s{S_J}, {3 if ONE else 2}")
        A("s_add_u32 s97, s97, s96")
        if ONE:
            A("v_mov_b32 v246, s100")
            A("v_mov_b32 v247, s101")
        A("v_mov_b32 v2, 1")
        A("v_mov_b32 v3, s97")
        A("s_waitcnt lgkmcnt(0)")
        self.lg.ops = []
        A("s_barrier")
        if not (HA and stage == 0):
            A(f"s_cmp_lg_u32 s{S_WAVE}, 7")
            A(f"s_cbranch_scc1 .Lpub{stage}")
            A("s_mov_b64 exec, 1")
            A("buffer_store_dwordx2 v[246:247], v3, s[92:95], 0 offen sc1" if ONE else "buffer_store_dword v2, v3, s[92:95], 0 offen sc1")
            A("s_mov_b64 exec, -1")
            A.label(f".Lpub{stage}")
        self.stamp(1 + 4 * stage + 2)
    def ha_loads(self):
        A = self.A
        for g in range(8):
            for p in range(2):
                d = 128 + 8 * g + 4 * p
                A(f"buffer_load_dwordx4 v[{d}:{d+3}], v61, s[72:75], s64 offen offset:{p*2048}")
            if g < 7: A("s_add_u32 s64, s64, 65536")
        A("s_mov_b32 s65, 1")
    def poll(self, stage, nbr=False, check=True, after=None):
        A = self.A
        lab = f".Lpl{stage}"
        if check:
            A(f"s_cmp_lg_u32 s{S_WAVE}, 7")
            A(f"s_cbranch_scc1 {lab}_done")
        A("v_and_b32 v3, 7, v1")
        A(f"v_lshlrev_b32 v3, {3 if ONE else 2}, v3")
        if nbr:
            A("v_bfe_u32 v2, v1, 3, 2")
            A("v_min_u32 v2, 2, v2")
            A(f"v_add_u32 v2, s{S_M}, v2")
            A("v_max_u32 v2, 1, v2")
            A("v_min_u32 v2, 32, v2")
            A("v_subrev_u32 v2, 1, v2")
            A("v_lshl_add_u32 v3, v2, 8, v3")
        else:
            A("v_add_u32 v3, s96, v3")
        A("s_mov_b32 s98, 0")
        NP = int(os.environ.get("NPOLL", "1")); PSL = int(os.environ.get("PSL", "1"))
        if ONE and SPOLL and not nbr:
            A("s_mov_b32 s99, 0")
            A.label(f"{lab}_sp")
            A("s_buffer_load_dwordx16 s[8:23], s[92:95], s96 glc")
            A("s_add_u32 s99, s99, 1")
            A("s_waitcnt lgkmcnt(0)")
            for i in range(8): A(f"s_xor_b64 s[{8+2*i}:{9+2*i}], s[{8+2*i}:{9+2*i}], s[100:101]")
            for i in range(1, 8): A(f"s_or_b64 s[8:9], s[8:9], s[{8+2*i}:{9+2*i}]")
            A(f"s_cbranch_scc0 {lab}_sd")
            A(f"s_and_b32 s98, s99, {SPOLL * 4 - 1}")
            A(f"s_cbranch_scc1 {lab}_sp")
            A("buffer_load_dwordx2 v[248:249], v3, s[92:95], 0 offen sc1")
            A("s_waitcnt vmcnt(0)")
            A("v_xor_b32 v248, s100, v248")
            A("v_xor_b32 v249, s101, v249")
            A("v_or_b32 v248, v248, v249")
            A("v_cmp_ne_u32 vcc, 0, v248")
            A("s_cmp_lt_u32 s99, 0x80000")
            A(f"s_cbranch_scc0 {lab}_sd")
            A(f"s_cbranch_vccnz {lab}_sp")
            A.label(f"{lab}_sd")
            if after: after()
        elif ONE:
            self.poll64(lab + "x", [(3, 92, "0")])
        elif NP == 1:
            A.label(f"{lab}_poll")
            A("buffer_load_dword v2, v3, s[92:95], 0 offen sc1")
            A("s_add_u32 s98, s98, 1")
            A("s_waitcnt vmcnt(0)")
            A("v_cmp_ne_u32 vcc, 1, v2")
            A("s_cmp_lt_u32 s98, 0x40000")
            A(f"s_cbranch_scc0 {lab}_done")
            A(f"s_cbranch_vccnz {lab}_poll")
        else:
            for i in range(NP):
                A(f"buffer_load_dword v{248+i}, v3, s[92:95], 0 offen sc1")
                if PSL and i < NP - 1: A(f"s_sleep {PSL}")
            A.label(f"{lab}_poll")
            for i in range(NP):
                A(f"s_waitcnt vmcnt({NP-1})")
                A(f"v_cmp_ne_u32 vcc, 1, v{248+i}")
                A(f"s_cbranch_vccz {lab}_done")
                A(f"buffer_load_dword v{248+i}, v3, s[92:95], 0 offen sc1")
            A("s_add_u32 s98, s98, 1")
            A("s_cmp_lt_u32 s98, 0x40000")
            A(f"s_cbranch_scc1 {lab}_poll")
        A.label(f"{lab}_done")
    def poll64(self, lab, srcs, cnt=99, slp=0):
        A = self.A
        A(f"s_mov_b32 s{cnt}, 0")
        A.label(f"{lab}_poll")
        if slp: A(f"s_sleep {slp}")
        for i, (va, srd, so) in enumerate(srcs):
            A(f"buffer_load_dwordx2 v[{248+2*i}:{249+2*i}], v{va}, s[{srd}:{srd+3}], {so} offen sc1")
        A(f"s_add_u32 s{cnt}, s{cnt}, 1")
        A("s_waitcnt vmcnt(0)")
        for i in range(len(srcs)):
            A(f"v_xor_b32 v{248+2*i}, s100, v{248+2*i}")
            A(f"v_xor_b32 v{249+2*i}, s101, v{249+2*i}")
        A("v_or_b32 v248, v248, v249")
        for i in range(1, len(srcs)):
            A(f"v_or3_b32 v248, v248, v{248+2*i}, v{249+2*i}")
        A("v_cmp_ne_u32 vcc, 0, v248")
        A(f"s_cmp_lt_u32 s{cnt}, 0x40000")
        A(f"s_cbranch_scc0 {lab}_done")
        A(f"s_cbranch_vccnz {lab}_poll")
        A.label(f"{lab}_done")
    def pst(self, idx):
        if not PT: return
        A = self.A
        A("s_waitcnt lgkmcnt(0)")
        A("s_memrealtime s[38:39]")
        A("s_waitcnt lgkmcnt(0)")
        A(f"v_writelane_b32 v59, s38, {idx}")
    def pst_flush(self):
        if not PT: return
        A = self.A
        make_srd(A, 36, 68, WS_DBG + 16 * MB, 1 * MB)
        A("s_lshl_b32 s57, s2, 3")
        A("s_add_u32 s57, s57, s40")
        A("s_lshl_b32 s57, s57, 6")
        A("v_lshlrev_b32 v2, 2, v1")
        A("s_mov_b64 exec, 0xffff")
        A("buffer_store_dword v59, v2, s[36:39], s57 offen")
        A("s_mov_b64 exec, -1")
    def pro_pre(self):
        A = self.A
        self.pst(0)
        A("s_load_dwordx2 s[4:5], s[0:1], 0")
        A("s_load_dwordx4 s[72:75], s[0:1], 80")
        A("s_load_dwordx2 s[6:7], s[0:1], 104")
        A("s_memrealtime s[70:71]")
        if int(os.environ.get("CPF", "1")):
            A("s_getpc_b64 s[76:77]")
            A.label(".Lpc0")
            A("s_mov_b32 s78, .Lcode_end-.Lpc0")
            A("s_mov_b32 s79, 0x00020000")
            A("s_lshr_b32 s3, s2, 3")
            A("s_mul_i32 s3, s3, 2304")
            A("v_lshlrev_b32 v2, 6, v0")
            A("v_cmp_gt_u32 vcc, 36, v0")
            A("s_and_b64 exec, exec, vcc")
            A("buffer_load_dword v62, v2, s[76:79], s3 offen")
            A("s_mov_b64 exec, -1")
    def pro_a(self):
        A = self.A
        W = K1.S_WAVE; M_ = K1.S_M; G_ = K1.S_G
        self.pst(1)
        make_srd(A, 76, 72, 0, 1024)
        make_srd(A, 80, 74, 0, 512 * 6144)
        make_srd(A, 84, 68, WS_MOD, 3072 * 4)
        A("s_movk_i32 s3, 6144")
        A("s_mov_b32 s59, s2")
        A("s_cmp_lt_u32 s2, 96")
        A("s_cbranch_scc1 .Lpa_mod")
        make_srd(A, 80, 96, 0, 512 * 3584)
        make_srd(A, 84, 68, WS_CS, 1792 * 4)
        A("s_movk_i32 s3, 3584")
        A("s_sub_u32 s59, s2, 96")
        A.label(".Lpa_mod")
        A("s_cmp_ge_u32 s2, 152")
        A("s_cbranch_scc1 .Lpa_nob")
        A("v_and_b32 v2, 3, v0")
        A("v_lshrrev_b32 v3, 2, v0")
        A("v_mul_lo_u32 v4, v3, s3")
        A("v_lshl_add_u32 v4, v2, 4, v4")
        A("v_lshlrev_b32 v5, 1, v3")
        A("s_lshl_b32 s58, s59, 6")
        A("s_lshl_b32 s3, s3, 7")
        for i in range(4):
            A(f"buffer_load_dwordx4 v[{72+4*i}:{75+4*i}], v4, s[80:83], s58 offen")
            if i < 3: A("s_add_u32 s58, s58, s3")
        for i in range(4):
            A(f"buffer_load_ushort v{64+i}, v5, s[76:79], 0 offen offset:{i*256}")
        A.label(".Lpa_nob")
        make_srd(A, 88, 4, 0, 2 * MB)
        A(f"s_lshl_b32 s3, s{M_}, 3")
        A(f"s_add_u32 s3, s3, s{G_}")
        A("s_lshl_b32 s3, s3, 3")
        A(f"s_add_u32 s3, s3, s{W}")
        A("s_lshl_b32 s3, s3, 10")
        A("buffer_load_dwordx4 v[68:71], v12, s[88:91], s3 offen")
        make_srd(A, 76, 6, 0, 256)
        A(f"s_or_b32 s58, s2, s{W}")
        A("s_cmp_lg_u32 s58, 0")
        A("s_cbranch_scc1 .Lpa_non")
        A("s_or_b32 s70, s70, 1")
        A("v_mov_b32 v2, s70")
        A("v_mov_b32 v3, s71")
        A("v_mov_b32 v4, 0")
        A("s_mov_b64 exec, 1")
        A("buffer_store_dwordx2 v[2:3], v4, s[76:79], 0 offen sc1")
        A("s_mov_b64 exec, -1")
        A.label(".Lpa_non")
        if WQE: self.wqpf()
    def wqpf(self):
        A = self.A; W = K1.S_WAVE
        SQ = 88 if WQE else K1.S_WQ
        if WQE: make_srd(A, 88, 64, 0, 4 * MB)
        A("v_lshrrev_b32 v2, 4, v0")
        A("v_and_b32 v3, 15, v0")
        A("v_lshlrev_b32 v3, 6, v3")
        A("v_lshl_add_u32 v2, v2, 13, v3")
        A("s_lshr_b32 s58, s2, 3")
        A("s_lshl_b32 s58, s58, 17")
        A("s_and_b32 s57, s2, 7")
        A("s_lshl_b32 s57, s57, 10")
        A("s_add_u32 s58, s58, s57")
        A(f"s_cmp_ge_u32 s{W}, 4")
        A("s_cbranch_scc1 .Lpa_nopf")
        A(f"buffer_load_dword v255, v2, s[{SQ}:{SQ+3}], s58 offen")
        A.label(".Lpa_nopf")
    def pro_b(self, nyoung, early, w7):
        A = self.A
        W = K1.S_WAVE; M_ = K1.S_M; G_ = K1.S_G; KM = f"s{K1.S_MASK}"
        NY = nyoung
        ACC = list(range(96, 104)); T = list(range(104, 112)); U = list(range(112, 120)); C = [64, 65, 66, 67]
        make_srd(A, 88, 68, WS_XN, 2 * MB)
        self.pst(2)
        A("s_waitcnt vmcnt(0)")
        self.pst(3)
        if not WQE: self.wqpf()
        A("s_cmp_ge_u32 s2, 152")
        A("s_cbranch_scc1 .Lpb_ln")
        A("s_cmp_lt_u32 s2, 96")
        A("s_cbranch_scc1 .Lpb_silu")
        for c in C: A(f"v_mov_b32 v{c}, 1.0")
        A("s_branch .Lpb_fma")
        A.label(".Lpb_silu")
        for i, c in enumerate(C): A(f"v_lshlrev_b32 v{c}, 16, v{c}")
        for i, c in enumerate(C): A(f"v_mul_f32 v{T[i]}, {fhex(-LOG2E)}, v{c}")
        for i, c in enumerate(C): A(f"v_exp_f32 v{T[i]}, v{T[i]}")
        for i, c in enumerate(C): A(f"v_add_f32 v{T[i]}, 1.0, v{T[i]}")
        for i, c in enumerate(C): A(f"v_rcp_f32 v{U[i]}, v{T[i]}")
        for i, c in enumerate(C): A(f"v_mul_f32 v{U[4+i]}, v{c}, v{U[i]}")
        for i, c in enumerate(C): A(f"v_fma_f32 v{T[i]}, -v{U[4+i]}, v{T[i]}, v{c}")
        for i, c in enumerate(C): A(f"v_fma_f32 v{c}, v{T[i]}, v{U[i]}, v{U[4+i]}")
        for i, c in enumerate(C): A(f"v_cvt_pk_bf16_f32 v{T[i]}, v{c}, v{c}")
        for i, c in enumerate(C): A(f"v_lshlrev_b32 v{c}, 16, v{T[i]}")
        A.label(".Lpb_fma")
        for i in range(4):
            for j in range(4):
                w = 72 + 4 * i + j
                A(f"v_lshlrev_b32 v{T[2*j]}, 16, v{w}")
                A(f"v_and_b32 v{T[2*j+1]}, {KM}, v{w}")
            for j in range(8):
                A(f"v_mul_f32 v{ACC[j]}, v{T[j]}, v{C[i]}" if i == 0 else f"v_fmac_f32 v{ACC[j]}, v{T[j]}, v{C[i]}")
        A("s_nop 1")
        for dpp in ("row_ror:8", "row_ror:4"):
            for v in ACC: A(f"v_add_f32_dpp v{v}, v{v}, v{v} {dpp} row_mask:0xf bank_mask:0xf")
        A("v_and_b32 v2, 3, v1")
        A("v_lshrrev_b32 v3, 4, v0")
        A("v_lshlrev_b32 v3, 7, v3")
        A("v_lshl_add_u32 v3, v2, 5, v3")
        A("v_and_b32 v2, 12, v1")
        A("v_cmp_eq_u32 vcc, 0, v2")
        A("s_and_saveexec_b64 s[58:59], vcc") if False else None
        A("s_mov_b64 s[4:5], exec")
        A("s_and_b64 exec, exec, vcc")
        A(f"ds_write_b128 v3, v[{ACC[0]}:{ACC[3]}]")
        A(f"ds_write_b128 v3, v[{ACC[4]}:{ACC[7]}] offset:16")
        A("s_mov_b64 exec, -1")
        A("s_waitcnt lgkmcnt(0)")
        A("s_barrier")
        self.pst(4)
        A(f"s_cmp_lg_u32 s{W}, 7")
        A("s_cbranch_scc1 .Lpb_ln")
        A("v_and_b32 v2, 31, v1")
        A("v_lshlrev_b32 v2, 2, v2")
        A("v_lshrrev_b32 v3, 5, v1")
        A("v_lshl_add_u32 v3, v3, 11, v2")
        for k in range(16): A(f"ds_read_b32 v{120+k}, v3 offset:{k*128}")
        for k in range(8):
            A(f"s_waitcnt lgkmcnt({14-2*k})")
            A(f"v_add_f32 v{120+2*k}, v{120+2*k}, v{121+2*k}")
        for k in range(4): A(f"v_add_f32 v{120+4*k}, v{120+4*k}, v{122+4*k}")
        A("v_add_f32 v120, v120, v124")
        A("v_add_f32 v128, v128, v132")
        A("v_add_f32 v120, v120, v128")
        A("v_mov_b32 v121, v120")
        A("s_nop 1")
        A("v_permlane32_swap_b32 v120, v121")
        A("s_nop 1")
        A("v_add_f32 v120, v120, v121")
        A("s_cmp_ge_u32 s2, 96")
        A("s_cbranch_scc1 .Lpb_nornd")
        round_bf16_1(A, 120, 121)
        A.label(".Lpb_nornd")
        A("s_lshl_b32 s58, s59, 7")
        A("s_mov_b32 exec_hi, 0")
        A("buffer_store_dword v120, v2, s[84:87], s58 offen sc1")
        A("s_mov_b64 exec, -1")
        A.label(".Lpb_ln")
        A("v_mov_b32 v2, 0")
        A(f"s_cmp_lg_u32 s{W}, 7")
        A("s_cbranch_scc1 .Lpb_ln2")
        A("s_mov_b64 exec, 1")
        A("buffer_load_dwordx2 v[136:137], v2, s[76:79], 0 offen sc1")
        A("s_mov_b64 exec, -1")
        A.label(".Lpb_ln2")
        self.pst(5)
        X = list(range(96, 104)); TT = list(range(104, 116))
        for j in range(4):
            A(f"v_lshlrev_b32 v{X[2*j]}, 16, v{68+j}")
            A(f"v_and_b32 v{X[2*j+1]}, {KM}, v{68+j}")
        ln_rows(A, [(X, TT)], KM)
        pack8(A, X, 68)
        A("buffer_store_dwordx4 v[68:71], v12, s[88:91], s3 offen sc1")
        make_srd(A, 80, 68, FP, 32 * 512)
        self.pst(6)
        A(f"s_cmp_lg_u32 s{W}, 7")
        A("s_cbranch_scc1 .Lpb_w")
        A("s_waitcnt vmcnt(1)")
        A("s_mov_b32 s57, 0")
        A.label(".Lpb_nl")
        A("v_readfirstlane_b32 s100, v136")
        A("v_readfirstlane_b32 s101, v137")
        A("s_add_u32 s57, s57, 1")
        A("s_cmp_lg_u32 s100, 0")
        A("s_cbranch_scc1 .Lpb_nd")
        A("s_cmp_lt_u32 s57, 0x40000")
        A("s_cbranch_scc0 .Lpb_nd")
        A("s_mov_b64 exec, 1")
        A("buffer_load_dwordx2 v[136:137], v2, s[76:79], 0 offen sc1")
        A("s_mov_b64 exec, -1")
        A("s_waitcnt vmcnt(0)")
        A("s_branch .Lpb_nl")
        A.label(".Lpb_nd")
        A("v_mov_b32 v136, s100")
        A("v_mov_b32 v137, s101")
        self.pst(7)
        A("s_cmp_ge_u32 s2, 152")
        A("s_cbranch_scc1 .Lpb_w")
        A("v_lshlrev_b32 v3, 9, v1")
        A("s_lshl_b32 s58, s2, 3")
        A("s_cmp_lt_u32 s2, 32")
        A("s_cbranch_scc1 .Lpb_crit")
        make_srd(A, 80, 68, FQ_, 32 * 1024)
        A("v_lshlrev_b32 v3, 10, v1")
        A("s_sub_u32 s58, s58, 256")
        A.label(".Lpb_crit")
        A("s_mov_b32 exec_hi, 0")
        A("buffer_store_dwordx2 v[136:137], v3, s[80:83], s58 offen sc1")
        A("s_mov_b64 exec, -1")
        make_srd(A, 80, 68, FP, 32 * 512)
        A.label(".Lpb_w")
        A("s_waitcnt vmcnt(1)") if False else None
        A("s_waitcnt vmcnt(0)")
        self.pst(8)
        A("s_barrier")
        self.pst(9)
        A(f"s_cmp_lg_u32 s{W}, 7")
        A("s_cbranch_scc1 .Lpb_early")
        A(f"s_lshl_b32 s58, s{M_}, 9")
        A(f"s_lshl_b32 s57, s{G_}, 3")
        A("s_add_u32 s57, s57, 256")
        A("v_mov_b32 v3, s57")
        A("s_mov_b64 exec, 1")
        A("buffer_store_dwordx2 v[136:137], v3, s[80:83], s58 offen sc1")
        A("s_mov_b64 exec, -1")
        A("v_min_u32 v3, 39, v1")
        A("v_lshlrev_b32 v3, 3, v3")
        sv99 = None
        w7()
        self.poll64(".Lplp", [(3, 80, "s58")], cnt=57)
        A("s_branch .Lpb_done")
        A.label(".Lpb_early")
        early()
        A.label(".Lpb_done")
        A("s_barrier")
        self.pst(10)
        self.pst_flush()
    def p2_a(self):
        A = self.A
        W = K1.S_WAVE; M_ = K1.S_M; G_ = K1.S_G
        SCR = K1.STG + 16384
        A("s_waitcnt lgkmcnt(0)")
        self.pst(1)
        make_srd(A, 76, 72, 0, 1024)
        make_srd(A, 80, 74, 0, 512 * 6144)
        make_srd(A, 84, 68, WS_MOD, 4 * MODP)
        make_srd(A, 88, 4, 0, 2 * MB)
        A("s_movk_i32 s3, 6144")
        A("s_and_b32 s4, s2, 15")
        A("s_lshr_b32 s5, s2, 4")
        A("s_lshl_b32 s57, s5, 8")
        A("s_cmp_lt_u32 s2, 64")
        A("s_cbranch_scc1 .Lp2a_dec")
        A("s_sub_u32 s4, s2, 64")
        A("s_and_b32 s5, s4, 1")
        A("s_lshr_b32 s4, s4, 1")
        A("s_lshl_b32 s57, s5, 9")
        A("s_add_u32 s4, s4, 16")
        A("s_cmp_lt_u32 s4, 48")
        A("s_cbranch_scc1 .Lp2a_dec")
        A("s_sub_u32 s4, s4, 48")
        make_srd(A, 80, 96, 0, 512 * 3584)
        make_srd(A, 84, 68, WS_CS, 2 * CSP)
        A("s_movk_i32 s3, 3584")
        A.label(".Lp2a_dec")
        A("s_lshr_b32 s58, s57, 1")
        A("s_mul_i32 s58, s58, s3")
        A("s_lshl_b32 s59, s4, 7")
        A("s_add_u32 s58, s58, s59")
        A("s_lshl_b32 s59, s4, 8")
        A(f"s_movk_i32 s4, {MODP}")
        A("s_cmp_eq_u32 s3, 3584")
        A(f"s_cselect_b32 s4, {CSP}, s4")
        A("s_mul_i32 s4, s4, s5")
        A("s_add_u32 s59, s59, s4")
        A("v_and_b32 v2, 7, v0")
        A("v_bfe_u32 v3, v0, 3, 5")
        A("v_mul_lo_u32 v60, v3, s3")
        A("v_lshl_add_u32 v60, v2, 4, v60")
        A("v_lshlrev_b32 v61, 1, v3")
        A("s_lshl_b32 s70, s3, 5") if False else None
        A("s_lshl_b32 s5, s3, 5")
        A(f"s_cmp_ge_u32 s{W}, 4")
        A("s_cbranch_scc1 .Lp2a_end")
        A("s_cmp_ge_u32 s2, 64")
        A("s_cbranch_scc1 .Lp2a_x")
        self.p2_tload(0)
        A.label(".Lp2a_x")
        A(f"s_lshl_b32 s3, s{M_}, 3")
        A(f"s_add_u32 s3, s3, s{G_}")
        A("s_lshl_b32 s3, s3, 2")
        A(f"s_add_u32 s3, s3, s{W}")
        A("s_lshl_b32 s3, s3, 11")
        A("buffer_load_dwordx4 v[88:91], v12, s[88:91], s3 offen")
        A("buffer_load_dwordx4 v[92:95], v12, s[88:91], s3 offen offset:1024")
        make_srd(A, 88, 6, 0, 256)
        A(f"s_or_b32 s4, s2, s{W}")
        A("s_cmp_lg_u32 s4, 0")
        A("s_cbranch_scc1 .Lp2a_non")
        A("s_or_b32 s70, s70, 1")
        A("v_mov_b32 v2, s70")
        A("v_mov_b32 v3, s71")
        A("v_mov_b32 v4, 0")
        A("s_mov_b64 exec, 1")
        A("buffer_store_dwordx2 v[2:3], v4, s[88:91], 0 offen sc1")
        A("s_mov_b64 exec, -1")
        A.label(".Lp2a_non")
        A(f"v_mov_b32 v2, {SCR + 8192}")
        A("v_mov_b32 v4, 0")
        A("v_mov_b32 v5, 0")
        A("ds_write_b64 v2, v[4:5]")
        A("s_branch .Lp2a_e2")
        A.label(".Lp2a_end")
        if WQF == 1: self.p2_wq()
        if WQF == 2:
            A("s_cmp_lt_u32 s2, 64")
            A("s_cbranch_scc1 .Lp2a_e2") if False else None
            A("s_sleep 4")
            self.p2_wq()
        if TLW:
            A("v_lshlrev_b32 v2, 21, v1")
            A(f"v_add_u32 v2, {(2 << 20) - 128}, v2")
            make_srd(A, 88, 68, 0, 48 * MB if TLW >= 2 else 4 * MB)
            A(f"s_cmp_lg_u32 s{W}, 4")
            A("s_cbranch_scc1 .Lp2a_e2")
            A("buffer_load_dword v252, v2, s[88:91], 0 offen sc1")
            if TLW == 1:
                A(f"s_mov_b32 s4, {WS_FLAG}")
                make_srd(A, 88, 68, 0, WS_FLAG + 2 * MB)
                A("buffer_load_dword v252, v2, s[88:91], s4 offen sc1")
        A.label(".Lp2a_e2")
        if EB:
            A("s_waitcnt lgkmcnt(0)")
            A("s_barrier")
            A(f"s_cmp_lt_u32 s{W}, 4")
            A("s_cbranch_scc1 .Lp2a_e3")
            self.p2_bulk1()
            A.label(".Lp2a_e3")
        A("s_mov_b32 s70, s57")
        A("s_mov_b32 s71, s58")
    def p2_bulk1(self):
        A = self.A; W = K1.S_WAVE
        A("s_sub_u32 s4, s2, 64")
        A("s_cmp_ge_u32 s4, 120")
        A("s_cbranch_scc1 .Lp2_l1")
        self.p2_tload(0); self.p2_tload(1)
        A.label(".Lp2_l1")
        if EB: make_srd(A, K1.S_WQ, 64, 0, 4 * MB)
        if DLY == 1 and not EB:
            A("s_cmp_ge_u32 s2, 64")
            A("s_cbranch_scc1 .Lp2_l3")
        if DLY and not EB:
            self.lds_spin(".Lp2_sd", 4, 4, True)
            A.label(".Lp2_l3")
        if not WQF: self.p2_wq()
    def p2_wq(self):
        A = self.A; W = K1.S_WAVE
        if WQF: make_srd(A, K1.S_WQ, 64, 0, 4 * MB)
        W128 = int(os.environ.get("W128", "0"))
        A("v_and_b32 v4, 255, v0")
        A(f"v_lshrrev_b32 v2, {3 if W128 else 4}, v4")
        A(f"v_and_b32 v3, {7 if W128 else 15}, v4")
        A(f"v_lshlrev_b32 v3, {7 if W128 else 6}, v3")
        A("v_lshl_add_u32 v2, v2, 13, v3")
        A("s_lshr_b32 s36, s2, 3")
        A("s_lshl_b32 s36, s36, 17")
        A("s_and_b32 s37, s2, 7")
        A("s_lshl_b32 s37, s37, 10")
        A("s_add_u32 s36, s36, s37")
        if W128:
            A(f"s_cmp_ge_u32 s{W}, 6")
            A("s_cbranch_scc1 .Lp2_l2")
        A(f"buffer_load_dword v63, v2, s[{K1.S_WQ}:{K1.S_WQ+3}], s36 offen")
        if W128: A.label(".Lp2_l2")
    def p2_tload(self, b):
        A = self.A
        wd = (72, 140)[b]; cd = (64, 156)[b]
        for i in range(4):
            A(f"buffer_load_dwordx4 v[{wd+4*i}:{wd+4*i+3}], v60, s[80:83], s58 offen")
            A("s_add_u32 s58, s58, s5")
        for i in range(4):
            A(f"buffer_load_ushort v{cd+i}, v61, s[76:79], s57 offen offset:{b*256 + i*64}")
    def lds_spin(self, lab, off, target, sleep=False, va=9):
        A = self.A
        A.label(lab)
        if sleep: A("s_sleep 2")
        A(f"ds_read_b32 v3, v{va} offset:{off}")
        A("s_waitcnt lgkmcnt(0)")
        A("v_readfirstlane_b32 s4, v3")
        A(f"s_cmp_lt_u32 s4, {target}")
        A(f"s_cbranch_scc1 {lab}")
    def lds_inc(self, off, va=9):
        A = self.A
        A("v_mov_b32 v3, 1")
        A("s_mov_b64 exec, 1")
        A(f"ds_add_u32 v{va}, v3 offset:{off}")
        A("s_mov_b64 exec, -1")
    def p2_gemv(self, sfx, nb, maybe_ones, col=3):
        A = self.A
        W = K1.S_WAVE; KM = f"s{K1.S_MASK}"; SCR = K1.STG + 16384
        ACC = list(range(96, 104)); T = list(range(104, 112)); U = list(range(112, 128))
        C = [64, 65, 66, 67] + ([156, 157, 158, 159] if nb == 2 else [])
        n = len(C)
        if maybe_ones:
            A("s_cmp_lt_u32 s2, 128")
            A(f"s_cbranch_scc1 .Lp2_silu{sfx}")
            for c in C: A(f"v_mov_b32 v{c}, 1.0")
            A(f"s_branch .Lp2_fma{sfx}")
            A.label(f".Lp2_silu{sfx}")
        for i, c in enumerate(C): A(f"v_lshlrev_b32 v{c}, 16, v{c}")
        for i, c in enumerate(C): A(f"v_mul_f32 v{T[i]}, {fhex(-LOG2E)}, v{c}")
        for i, c in enumerate(C): A(f"v_exp_f32 v{T[i]}, v{T[i]}")
        for i, c in enumerate(C): A(f"v_add_f32 v{T[i]}, 1.0, v{T[i]}")
        for i, c in enumerate(C): A(f"v_rcp_f32 v{U[i]}, v{T[i]}")
        for i, c in enumerate(C): A(f"v_mul_f32 v{U[8+i]}, v{c}, v{U[i]}")
        for i, c in enumerate(C): A(f"v_fma_f32 v{T[i]}, -v{U[8+i]}, v{T[i]}, v{c}")
        for i, c in enumerate(C): A(f"v_fma_f32 v{c}, v{T[i]}, v{U[i]}, v{U[8+i]}")
        for i, c in enumerate(C): A(f"v_cvt_pk_bf16_f32 v{T[i]}, v{c}, v{c}")
        for i, c in enumerate(C): A(f"v_lshlrev_b32 v{c}, 16, v{T[i]}")
        if maybe_ones: A.label(f".Lp2_fma{sfx}")
        for i in range(n):
            for j in range(4):
                w = (72, 140)[i >> 2] + 4 * (i & 3) + j
                A(f"v_lshlrev_b32 v{T[2*j]}, 16, v{w}")
                A(f"v_and_b32 v{T[2*j+1]}, {KM}, v{w}")
            for j in range(8):
                A(f"v_mul_f32 v{ACC[j]}, v{T[j]}, v{C[i]}" if i == 0 else f"v_fmac_f32 v{ACC[j]}, v{T[j]}, v{C[i]}")
        A("v_and_b32 v2, 7, v1")
        A("v_bfe_u32 v3, v0, 4, 4")
        for v in ACC: A(f"v_add_f32_dpp v{v}, v{v}, v{v} row_ror:8 row_mask:0xf bank_mask:0xf")
        A("v_lshlrev_b32 v3, 8, v3")
        A("v_lshl_add_u32 v3, v2, 5, v3")
        A(f"v_add_u32 v3, {SCR}, v3")
        A("v_and_b32 v2, 8, v1")
        A("v_cmp_eq_u32 vcc, 0, v2")
        A("s_and_b64 exec, exec, vcc")
        A(f"ds_write_b128 v3, v[{ACC[0]}:{ACC[3]}]")
        A(f"ds_write_b128 v3, v[{ACC[4]}:{ACC[7]}] offset:16")
        A("s_mov_b64 exec, -1")
        A("s_waitcnt lgkmcnt(0)")
        self.lds_inc(0)
        A(f"s_cmp_lg_u32 s{W}, {col}")
        A(f"s_cbranch_scc1 .Lp2_gd{sfx}")
        self.lds_spin(f".Lp2_sp{sfx}", 0, 4)
        A("v_lshlrev_b32 v2, 2, v1")
        A(f"v_add_u32 v3, {SCR}, v2")
        for k in range(16): A(f"ds_read_b32 v{104+k}, v3 offset:{k*256}")
        for k in range(8):
            A(f"s_waitcnt lgkmcnt({14-2*k})")
            A(f"v_add_f32 v{104+2*k}, v{104+2*k}, v{105+2*k}")
        for k in range(4): A(f"v_add_f32 v{104+4*k}, v{104+4*k}, v{106+4*k}")
        A("v_add_f32 v104, v104, v108")
        A("v_add_f32 v112, v112, v116")
        A("v_add_f32 v68, v104, v112")
        A("buffer_store_dword v68, v2, s[84:87], s59 offen sc1")
        A.label(f".Lp2_gd{sfx}")
    def p2_ln(self):
        A = self.A; KM = f"s{K1.S_MASK}"
        X0 = list(range(96, 104)); X1 = list(range(120, 128)); T0 = list(range(104, 116)); T1 = list(range(128, 140))
        for r, X in enumerate((X0, X1)):
            for j in range(4):
                A(f"v_lshlrev_b32 v{X[2*j]}, 16, v{88+4*r+j}")
                A(f"v_and_b32 v{X[2*j+1]}, {KM}, v{88+4*r+j}")
        ln_rows(A, [(X0, T0), (X1, T1)], KM, False)
        pack8(A, X0, 88); pack8(A, X1, 92)
        A(f"buffer_store_dwordx4 v[88:91], v12, s[{K1.S_XN}:{K1.S_XN+3}], s3 offen sc1")
        A(f"buffer_store_dwordx4 v[92:95], v12, s[{K1.S_XN}:{K1.S_XN+3}], s3 offen offset:1024 sc1")
    def p2_nonce(self, sfx):
        A = self.A
        A("s_mov_b32 s4, 0")
        A.label(f".Lp2_nl{sfx}")
        A("v_readfirstlane_b32 s100, v70")
        A("v_readfirstlane_b32 s101, v71")
        A("s_add_u32 s4, s4, 1")
        A("s_cmp_lg_u32 s100, 0")
        A(f"s_cbranch_scc1 .Lp2_nd{sfx}")
        A("s_cmp_lt_u32 s4, 0x40000")
        A(f"s_cbranch_scc0 .Lp2_nd{sfx}")
        self.p2_nload()
        A("s_waitcnt vmcnt(0)")
        A(f"s_branch .Lp2_nl{sfx}")
        A.label(f".Lp2_nd{sfx}")
        A("v_mov_b32 v70, s100")
        A("v_mov_b32 v71, s101")
    def p2_nload(self):
        A = self.A
        A("v_mov_b32 v2, 0")
        A("s_mov_b64 exec, 1")
        A("buffer_load_dwordx2 v[70:71], v2, s[88:91], 0 offen sc1")
        A("s_mov_b64 exec, -1")
    def p2_pubtask(self, region, base):
        A = self.A
        make_srd(A, 76, 68, region, 32 * 1024)
        A("v_lshlrev_b32 v3, 10, v1")
        A("s_mov_b32 s4, s73" if V3 else f"s_sub_u32 s4, s2, {base}")
        A("s_lshl_b32 s4, s4, 3")
        A("s_mov_b32 exec_hi, 0")
        A("buffer_store_dwordx2 v[70:71], v3, s[76:79], s4 offen sc1")
        A("s_mov_b64 exec, -1")
    def p2_pubxn(self, sfx):
        A = self.A
        self.lds_spin(f".Lp2_sx{sfx}", 4, 3)
        make_srd(A, 76, 68, FP, 32 * 1024)
        A(f"s_lshl_b32 s4, s{K1.S_M}, 10")
        A(f"s_lshl_b32 s5, s{K1.S_G}, 3")
        A("s_add_u32 s5, s5, 512")
        A("v_mov_b32 v3, s5")
        A("s_mov_b64 exec, 1")
        A("buffer_store_dwordx2 v[70:71], v3, s[76:79], s4 offen sc1")
        A("s_mov_b64 exec, -1")
    def p2_b(self, loader, cfix, xn_loads):
        A = self.A
        W = K1.S_WAVE; M_ = K1.S_M; KM = f"s{K1.S_MASK}"; SCR = K1.STG + 16384
        A(f"v_mov_b32 v9, {SCR + 8192}")
        if not EB:
            A("s_waitcnt lgkmcnt(0)")
            A("s_barrier")
        self.pst(2)
        A(f"s_cmp_lt_u32 s{W}, 4")
        A("s_cbranch_scc1 .Lp2_c")
        if not EB:
            A("s_mov_b32 s57, s70")
            A("s_mov_b32 s58, s71")
            self.p2_bulk1()
        elif DLY == 1:
            A("s_cmp_ge_u32 s2, 64")
            A("s_cbranch_scc1 .Lp2_l4")
            self.lds_spin(".Lp2_sd2", 4, 4, True)
            A.label(".Lp2_l4")
        loader()
        A("s_sub_u32 s4, s2, 64")
        A("s_cmp_ge_u32 s4, 120")
        A("s_cbranch_scc1 .Lp2_X")
        A(f"s_waitcnt vmcnt({4 * int(os.environ.get('LDE', '2'))})")
        self.p2_gemv("b", 2, True, 7)
        A("s_branch .Lp2_X")
        A.label(".Lp2_c")
        cfix()
        A("s_waitcnt vmcnt(0)")
        self.pst(3)
        A("s_cmp_ge_u32 s2, 64")
        A("s_cbranch_scc1 .Lp2_a0")
        self.p2_gemv("a", 1, False)
        A.label(".Lp2_a0")
        self.pst(4)
        A(f"s_cmp_lg_u32 s{W}, 3")
        A("s_cbranch_scc1 .Lp2_a1")
        self.p2_nload()
        A.label(".Lp2_a1")
        self.p2_ln()
        self.pst(6)
        A(f"s_cmp_lg_u32 s{W}, 3")
        A("s_cbranch_scc1 .Lp2_ack")
        A("s_waitcnt vmcnt(2)")
        self.p2_nonce("a")
        A("s_cmp_ge_u32 s2, 64")
        A("s_cbranch_scc1 .Lp2_a2")
        self.p2_pubtask(FP, 0)
        self.pst(7)
        A("s_waitcnt vmcnt(1)")
        A("s_branch .Lp2_a3")
        A.label(".Lp2_a2")
        A("s_waitcnt vmcnt(0)")
        A.label(".Lp2_a3")
        self.p2_pubxn("a")
        self.lds_inc(4)
        A("s_branch .Lp2_col")
        A.label(".Lp2_ack")
        A("s_waitcnt vmcnt(0)")
        self.lds_inc(4)
        A("s_branch .Lp2_X")
        A.label(".Lp2_col")
        make_srd(A, 76, 68, FP, 32 * 1024)
        A(f"s_lshl_b32 s5, s{M_}, 10")
        A("v_and_b32 v3, 7, v1")
        A("v_lshlrev_b32 v3, 3, v3")
        A("v_add_u32 v3, 512, v3")
        A("ds_write_b64 v9, v[70:71] offset:16")
        def parts():
            make_srd(A, 84, 68, WS_MOD, 4 * MODP)
            for i in range(4):
                for p in range(4):
                    A(f"s_movk_i32 s4, {p * MODP}") if p * MODP < 32768 else A(f"s_mov_b32 s4, {p * MODP}")
                    A(f"buffer_load_dwordx4 v[{72+16*i+4*p}:{75+16*i+4*p}], v12, s[84:87], s4 offen offset:{i*1024}")
        if MP:
            A("v_lshlrev_b32 v4, 3, v1")
            self.poll64(".Lplx", [(3, 76, "s5"), (4, 76, "s5")], cnt=4)
            parts()
        else:
            self.poll64(".Lplx", [(3, 76, "s5")], cnt=4)
        A.label(".Lp2_X")
        self.pst(8)
        A("s_waitcnt lgkmcnt(0)")
        A("s_barrier")
        self.pst(9)
        xn_loads()
        A(f"s_cmp_lg_u32 s{W}, 3")
        A("s_cbranch_scc1 .Lp2_Y")
        if not MP:
            make_srd(A, 76, 68, FP, 32 * 1024)
            A(f"s_lshl_b32 s5, s{M_}, 10")
            A("v_lshlrev_b32 v3, 3, v1")
            self.poll64(".Lplm", [(3, 76, "s5")], cnt=4)
            parts()
        A(f"v_add_u32 v3, {SCR + 4096}, v12")
        for i in range(4):
            b = 72 + 16 * i
            A(f"s_waitcnt vmcnt({12 - 4*i + (8 if MP else 0)})")
            pk(A, "v_pk_add_f32", b, b, b + 4); pk(A, "v_pk_add_f32", b + 2, b + 2, b + 6)
            pk(A, "v_pk_add_f32", b + 8, b + 8, b + 12); pk(A, "v_pk_add_f32", b + 10, b + 10, b + 14)
            pk(A, "v_pk_add_f32", b, b, b + 8); pk(A, "v_pk_add_f32", b + 2, b + 2, b + 10)
            round_multi(A, [b, b + 1, b + 2, b + 3], [b + 4, b + 5], KM)
            if i >= 2:
                for e in range(4): A(f"v_add_f32 v{b+e}, 1.0, v{b+e}")
                round_multi(A, [b, b + 1, b + 2, b + 3], [b + 4, b + 5], KM)
            A(f"ds_write_b128 v3, v[{b}:{b+3}] offset:{i*1024}")
        A("s_waitcnt lgkmcnt(0)")
        A.label(".Lp2_Y")
        A("s_barrier")
        self.pst(10)
        self.pst_flush()
        A("ds_read_b64 v[2:3], v9 offset:16")
        A("s_waitcnt lgkmcnt(0)")
        A("v_readfirstlane_b32 s100, v2")
        A("v_readfirstlane_b32 s101, v3")
    def p2_c(self):
        A = self.A
        if V4 and WQP == 3: self.p4_wq()
        if not V4:
            A(f"s_cmp_lg_u32 s{K1.S_WAVE}, {1 if V3 else 7}")
            A("s_cbranch_scc1 .Lp2c_end")
        A("s_mov_b32 s4, s73" if V3 else "s_sub_u32 s4, s2, 64")
        A("s_cmp_ge_u32 s4, 120")
        A("s_cbranch_scc1 .Lp2c_end")
        A("v_mov_b32 v70, s100")
        A("v_mov_b32 v71, s101")
        A("s_waitcnt vmcnt(0)")
        self.p2_pubtask(FQ_, 64)
        A.label(".Lp2c_end")
    def p3_tload(self, n):
        A = self.A
        for i in range(n):
            A(f"buffer_load_dwordx4 v[{128+4*i}:{131+4*i}], v60, s[80:83], s58 offen")
            A("s_add_u32 s58, s58, s5")
        for i in range(n):
            A(f"buffer_load_ushort v{224+i}, v61, s[76:79], s57 offen offset:{i*64}")
    def p3_wq(self, sfx):
        A = self.A; W = K1.S_WAVE
        make_srd(A, K1.S_WQ, 64, 0, 4 * MB)
        A("v_and_b32 v4, 255, v0")
        A("v_lshrrev_b32 v2, 4, v4")
        A("v_and_b32 v3, 15, v4")
        A("v_lshlrev_b32 v3, 6, v3")
        A("v_lshl_add_u32 v2, v2, 13, v3")
        A("s_lshr_b32 s36, s70, 3")
        A("s_lshl_b32 s36, s36, 17")
        A("s_and_b32 s37, s70, 7")
        A("s_lshl_b32 s37, s37, 10")
        A("s_add_u32 s36, s36, s37")
        A(f"s_cmp_lt_u32 s{W}, 4")
        A(f"s_cbranch_scc1 .Lp3_wq{sfx}")
        A(f"buffer_load_dword v63, v2, s[{K1.S_WQ}:{K1.S_WQ+3}], s36 offen")
        A.label(f".Lp3_wq{sfx}")
    def p3_dec(self, crit):
        A = self.A
        A("s_movk_i32 s71, 6144")
        if crit:
            A("s_and_b32 s4, s72, 15")
            A("s_bfe_u32 s5, s72, 0x20004")
            A("s_lshl_b32 s57, s5, 8")
        else:
            make_srd(A, 80, 74, 0, 512 * 6144)
            make_srd(A, 84, 68, WS_MOD, 4 * MODP)
            A("s_and_b32 s5, s73, 1")
            A("s_lshr_b32 s4, s73, 1")
            A("s_lshl_b32 s57, s5, 9")
            A("s_add_u32 s4, s4, 16")
            A("s_cmp_lt_u32 s4, 48")
            A("s_cbranch_scc1 .Lp3a_dec")
            A("s_sub_u32 s4, s4, 48")
            make_srd(A, 80, 96, 0, 512 * 3584)
            make_srd(A, 84, 68, WS_CS, 2 * CSP)
            A("s_movk_i32 s71, 3584")
            A.label(".Lp3a_dec")
        A("s_lshr_b32 s58, s57, 1")
        A("s_mul_i32 s58, s58, s71")
        A("s_lshl_b32 s59, s4, 7")
        A("s_add_u32 s58, s58, s59")
        A("s_lshl_b32 s59, s4, 8")
        A(f"s_movk_i32 s4, {MODP}")
        A("s_cmp_eq_u32 s71, 3584")
        A(f"s_cselect_b32 s4, {CSP}, s4")
        A("s_mul_i32 s4, s4, s5")
        A("s_add_u32 s59, s59, s4")
        A("v_and_b32 v2, 7, v0")
        A("v_bfe_u32 v3, v0, 3, 5")
        A("v_mul_lo_u32 v60, v3, s71")
        A("v_lshl_add_u32 v60, v2, 4, v60")
        A("v_lshlrev_b32 v61, 1, v3")
        A("s_lshl_b32 s5, s71, 5")
    def p3_a(self):
        A = self.A
        W = K1.S_WAVE; M_ = K1.S_M; XR = K1.V_S
        A("s_waitcnt lgkmcnt(0)")
        self.pst(1)
        make_srd(A, 88, 6, 0, 256)
        A(f"s_or_b32 s3, s2, s{W}")
        A("s_cmp_lg_u32 s3, 0")
        A("s_cbranch_scc1 .Lp3a_non")
        A("s_or_b32 s70, s70, 1")
        A("v_mov_b32 v2, s70")
        A("v_mov_b32 v3, s71")
        A("v_mov_b32 v5, 0")
        A("s_mov_b64 exec, 1")
        A("buffer_store_dwordx2 v[2:3], v5, s[88:91], 0 offen sc1")
        A("s_mov_b64 exec, -1")
        A.label(".Lp3a_non")
        make_srd(A, 76, 72, 0, 1024)
        make_srd(A, 80, 74, 0, 512 * 6144)
        make_srd(A, 84, 68, WS_MOD, 4 * MODP)
        make_srd(A, 88, 4, 0, 2 * MB)
        if RM:
            A("s_add_u32 s70, s2, 6")
            A("s_and_b32 s70, s70, 7")
            A("s_lshl_b32 s70, s70, 5")
            A("s_lshr_b32 s71, s2, 3")
            A("s_add_u32 s70, s70, s71")
            A("s_sub_u32 s72, s70, 192")
            if RM == 1:
                A("s_add_u32 s73, s72, 64")
                A("s_cmp_lt_u32 s70, 192")
                A("s_cselect_b32 s73, 255, s73")
                A("s_cmp_lt_u32 s70, 64")
                A("s_cselect_b32 s73, s70, s73")
            else:
                A("s_mov_b32 s73, s70")
        else:
            A("s_mov_b32 s72, s2")
            A("s_sub_u32 s73, s2, 64")
            A("s_sub_u32 s70, 255, s2")
            A("s_xor_b32 s70, s70, 7")
        self.p3_dec(True)
        A(f"v_mov_b32 v58, {K1.STG + 16384}")
        A("v_mov_b32 v3, 0")
        A("ds_write_b32 v58, v3 offset:16")
        A("ds_write_b32 v58, v3 offset:20")
        A("s_cmp_ge_u32 s72, 64")
        A("s_cbranch_scc1 .Lp3a_x")
        A(f"s_cmp_ge_u32 s{W}, 4")
        A("s_cbranch_scc1 .Lp3a_x")
        self.p3_tload(4)
        A.label(".Lp3a_x")
        A("s_waitcnt lgkmcnt(0)")
        A("s_barrier")
        A(f"s_lshl_b32 s3, s{M_}, 16")
        A(f"s_lshl_b32 s4, s{W}, 13")
        A("s_add_u32 s3, s3, s4")
        A("s_add_u32 s4, s3, 4096")
        for i in range(4 if XS else 8):
            A(f"buffer_load_dwordx4 v[{XR+4*i}:{XR+4*i+3}], v12, s[88:91], s{3 + (i >> 2)} offen offset:{(i & 3) * 1024}")
        if not XS: make_srd(A, 88, 6, 0, 256)
        if not XS:
            A("s_cmp_lt_u32 s72, 64")
            A("s_cbranch_scc1 .Lp3a_end")
            self.p3_wq("a")
            A.label(".Lp3a_end")
    def p3_gemv(self, sfx, n, maybe_ones, col):
        A = self.A
        W = K1.S_WAVE; KM = f"s{K1.S_MASK}"; SCR = K1.STG + 16384
        ACC = list(range(64, 72)); T = list(range(72, 80)); U = list(range(80, 96))
        C = list(range(224, 224 + n))
        GO = 8192 if sfx == 'a' else 12288; CT_ = 16 if sfx == 'a' else 20
        if maybe_ones:
            A("s_cmp_lt_u32 s73, 64")
            A(f"s_cbranch_scc1 .Lp3_silu{sfx}")
            for c in C: A(f"v_mov_b32 v{c}, 1.0")
            A(f"s_branch .Lp3_fma{sfx}")
            A.label(f".Lp3_silu{sfx}")
        seq = [lambda i, c: f"v_lshlrev_b32 v{c}, 16, v{c}", lambda i, c: f"v_mul_f32 v{T[i]}, {fhex(-LOG2E)}, v{c}",
               lambda i, c: f"v_exp_f32 v{T[i]}, v{T[i]}", None, lambda i, c: f"v_add_f32 v{T[i]}, 1.0, v{T[i]}",
               lambda i, c: f"v_rcp_f32 v{U[i]}, v{T[i]}", None, lambda i, c: f"v_mul_f32 v{U[8+i]}, v{c}, v{U[i]}",
               lambda i, c: f"v_fma_f32 v{T[i]}, -v{U[8+i]}, v{T[i]}, v{c}", lambda i, c: f"v_fma_f32 v{c}, v{T[i]}, v{U[i]}, v{U[8+i]}",
               lambda i, c: f"v_cvt_pk_bf16_f32 v{T[i]}, v{c}, v{c}", lambda i, c: f"v_lshlrev_b32 v{c}, 16, v{T[i]}"]
        for f in seq:
            if f is None: A("s_nop 0"); continue
            for i, c in enumerate(C): A(f(i, c))
        if maybe_ones: A.label(f".Lp3_fma{sfx}")
        for i in range(n):
            for j in range(4):
                w = 128 + 4 * i + j
                A(f"v_lshlrev_b32 v{T[2*j]}, 16, v{w}")
                A(f"v_and_b32 v{T[2*j+1]}, {KM}, v{w}")
            for j in range(8):
                A(f"v_mul_f32 v{ACC[j]}, v{T[j]}, v{C[i]}" if i == 0 else f"v_fmac_f32 v{ACC[j]}, v{T[j]}, v{C[i]}")
        A("v_and_b32 v2, 7, v1")
        A("v_lshrrev_b32 v3, 4, v0")
        for v in ACC: A(f"v_add_f32_dpp v{v}, v{v}, v{v} row_ror:8 row_mask:0xf bank_mask:0xf")
        A("v_lshlrev_b32 v3, 8, v3")
        A("v_lshl_add_u32 v3, v2, 5, v3")
        A(f"v_add_u32 v3, {SCR + GO}, v3")
        A("v_and_b32 v2, 8, v1")
        A("v_cmp_eq_u32 vcc, 0, v2")
        A("s_and_b64 exec, exec, vcc")
        A(f"ds_write_b128 v3, v[{ACC[0]}:{ACC[3]}]")
        A(f"ds_write_b128 v3, v[{ACC[4]}:{ACC[7]}] offset:16")
        A("s_mov_b64 exec, -1")
        A("s_waitcnt lgkmcnt(0)")
        self.lds_inc(CT_, 58)
        A(f"s_cmp_lg_u32 s{W}, {col}")
        A(f"s_cbranch_scc1 .Lp3_gd{sfx}")
        self.lds_spin(f".Lp3_sp{sfx}", CT_, 4, False, 58)
        A("v_lshlrev_b32 v2, 2, v1")
        A(f"v_add_u32 v3, {SCR + GO}, v2")
        for k in range(16): A(f"ds_read_b32 v{64+k}, v3 offset:{k*256}")
        for k in range(8):
            A(f"s_waitcnt lgkmcnt({14-2*k})")
            A(f"v_add_f32 v{64+2*k}, v{64+2*k}, v{65+2*k}")
        for k in range(4): A(f"v_add_f32 v{64+4*k}, v{64+4*k}, v{66+4*k}")
        A("v_add_f32 v64, v64, v68")
        A("v_add_f32 v72, v72, v76")
        A("v_add_f32 v234, v64, v72")
        A("buffer_store_dword v234, v2, s[84:87], s59 offen sc1")
        A.label(f".Lp3_gd{sfx}")
    def p3_ln(self, b):
        A = self.A; KM = f"s{K1.S_MASK}"; XR = K1.V_S
        R = [(list(range(64 + 8 * r, 72 + 8 * r)), list(range(96 + 8 * r, 104 + 8 * r))) for r in range(4)]
        for r, (X, T) in enumerate(R):
            for j in range(4):
                A(f"v_lshlrev_b32 v{X[2*j]}, 16, v{XR+16*b+4*r+j}")
                A(f"v_and_b32 v{X[2*j+1]}, {KM}, v{XR+16*b+4*r+j}")
        ln_fast(A, R, KM, False)
        for r, (X, T) in enumerate(R): pack8(A, X, XR + 16 * b + 4 * r)
    def p3_nload(self):
        A = self.A
        A("v_mov_b32 v2, 0")
        A("s_mov_b64 exec, 1")
        A("buffer_load_dwordx2 v[232:233], v2, s[88:91], 0 offen sc1")
        A("s_mov_b64 exec, -1")
    def p3_xwait(self, sfx, n):
        A = self.A
        A("s_sub_u32 s4, s2, 64")
        A("s_cmp_lt_u32 s4, 120")
        A(f"s_cbranch_scc1 .Lp3_xw{sfx}")
        A(f"s_waitcnt vmcnt({n})")
        A.label(f".Lp3_xw{sfx}")
        A(f"s_waitcnt vmcnt({n + 8})")
    def p3_b(self, loader, cfix, xn_loads):
        A = self.A
        W = K1.S_WAVE; M_ = K1.S_M; KM = f"s{K1.S_MASK}"; SCR = K1.STG + 16384
        CW = 0; PW = 1
        WQL = int(os.environ.get('WQL', '0'))
        def nonce(sfx):
            A("s_mov_b32 s4, 0")
            A.label(f".Lp3_nl{sfx}")
            A("v_readfirstlane_b32 s100, v232")
            A("v_readfirstlane_b32 s101, v233")
            A("s_add_u32 s4, s4, 1")
            A("s_cmp_lg_u32 s100, 0")
            A(f"s_cbranch_scc1 .Lp3_nd{sfx}")
            A("s_cmp_lt_u32 s4, 0x40000")
            A(f"s_cbranch_scc0 .Lp3_nd{sfx}")
            self.p3_nload()
            A("s_waitcnt vmcnt(0)")
            A(f"s_branch .Lp3_nl{sfx}")
            A.label(f".Lp3_nd{sfx}")
            A("v_mov_b32 v232, s100")
            A("v_mov_b32 v233, s101")
            A(f"v_mov_b32 v2, {SCR}")
            A("ds_write_b64 v2, v[232:233]")
        if XS:
            A("s_add_u32 s4, s3, 4096")
            for i in range(4, 8):
                A(f"buffer_load_dwordx4 v[{K1.V_S+4*i}:{K1.V_S+4*i+3}], v12, s[88:91], s4 offen offset:{(i & 3) * 1024}")
            make_srd(A, 88, 6, 0, 256)
            A("s_mov_b32 s6, 0")
            A("s_mov_b32 s7, 0")
            A(f"s_cmp_gt_u32 s{W}, 1")
            A("s_cbranch_scc1 .Lp3_e1")
            self.p3_nload()
            A("s_mov_b32 s6, 1")
            A.label(".Lp3_e1")
            A("s_cmp_lt_u32 s72, 64")
            A("s_cbranch_scc1 .Lp3a_end")
            self.p3_wq("a")
            A(f"s_lshr_b32 s7, s{W}, 2")
            A("s_or_b32 s6, s6, s7")
            A.label(".Lp3a_end")
        self.pst(2)
        A("s_cmp_ge_u32 s72, 64")
        A("s_cbranch_scc1 .Lp3_nc")
        A(f"s_cmp_ge_u32 s{W}, 4")
        A("s_cbranch_scc1 .Lp3_ln0")
        A("s_waitcnt vmcnt(8)")
        self.pst(3)
        self.p3_gemv("a", 4, False, PW)
        self.pst(4)
        A.label(".Lp3_nc")
        A.label(".Lp3_ln0")
        assert XS
        A("s_cmp_lg_u32 s6, 0")
        A("s_cbranch_scc1 .Lp3_ln0a")
        A("s_waitcnt vmcnt(4)")
        A.label(".Lp3_ln0a")
        A("s_waitcnt vmcnt(5)")
        self.pst(5)
        self.p3_ln(0)
        self.pst(6)
        make_srd(A, 36, 68, FP, 32 * 1024)
        A("s_cmp_lg_u32 s7, 0")
        A("s_cbranch_scc1 .Lp3_ln1a")
        A("s_waitcnt vmcnt(0)")
        A.label(".Lp3_ln1a")
        A("s_waitcnt vmcnt(1)")
        A(f"s_cmp_gt_u32 s{W}, 1")
        A("s_cbranch_scc1 .Lp3_n1")
        nonce("a")
        A.label(".Lp3_n1")
        A("s_cmp_ge_u32 s72, 64")
        A("s_cbranch_scc1 .Lp3_n3")
        A(f"s_cmp_lg_u32 s{W}, {PW}")
        A("s_cbranch_scc1 .Lp3_n2")
        A("v_lshlrev_b32 v3, 10, v1")
        A("s_lshl_b32 s4, s72, 3")
        A("s_mov_b32 exec_hi, 0")
        A("buffer_store_dwordx2 v[232:233], v3, s[36:39], s4 offen sc1")
        A("s_mov_b64 exec, -1")
        self.pst(7)
        A.label(".Lp3_n2")
        if WQL == 0: self.p3_wq("b")
        A.label(".Lp3_n3")
        A("s_cmp_ge_u32 s73, 120")
        A("s_cbranch_scc1 .Lp3_n4")
        A(f"s_cmp_ge_u32 s{W}, 4")
        A("s_cbranch_scc1 .Lp3_n4")
        self.p3_dec(False)
        A("s_cmp_ge_u32 s72, 64")
        A("s_cbranch_scc1 .Lp3_n3b")
        A("s_sleep 6")
        A.label(".Lp3_n3b")
        self.p3_tload(8)
        A.label(".Lp3_n4")
        make_srd(A, 76, 68, FP, 32 * 1024)
        self.p3_ln(1)
        self.pst(8)
        if WQL:
            A("s_cmp_ge_u32 s72, 64")
            A("s_cbranch_scc1 .Lp3_n9")
            A(f"s_cmp_eq_u32 s{W}, {CW}")
            A("s_cbranch_scc1 .Lp3_n9")
            self.p3_wq("b")
            A.label(".Lp3_n9")
        A("s_cmp_ge_u32 s73, 120")
        A("s_cbranch_scc1 .Lp3_n6")
        A(f"s_cmp_ge_u32 s{W}, 4")
        A("s_cbranch_scc1 .Lp3_n6")
        A("s_waitcnt vmcnt(0)")
        self.p3_gemv("b", 8, True, 1)
        A.label(".Lp3_n6")
        A(f"s_cmp_lg_u32 s{W}, {CW}")
        A("s_cbranch_scc1 .Lp3_n5")
        A(f"s_lshl_b32 s5, s{M_}, 10")
        A("v_lshlrev_b32 v3, 3, v1")
        self.poll64(".Lplm", [(3, 76, "s5")], cnt=4, slp=int(os.environ.get("PSLP", "0")))
        make_srd(A, 76, 68, WS_MOD, 4 * MODP)
        for i in range(4):
            for p in range(4):
                A(f"s_movk_i32 s4, {p * MODP}") if p * MODP < 32768 else A(f"s_mov_b32 s4, {p * MODP}")
                A(f"buffer_load_dwordx4 v[{64+16*i+4*p}:{67+16*i+4*p}], v12, s[76:79], s4 offen offset:{i*1024}")
        A.label(".Lp3_n5")
        self.pst(9)
        A(f"s_cmp_lg_u32 s{W}, {CW}")
        A("s_cbranch_scc1 .Lp3_n8")
        A(f"v_add_u32 v3, {SCR + 4096}, v12")
        for i in range(4):
            b = 64 + 16 * i
            A(f"s_waitcnt vmcnt({12 - 4*i})")
            pk(A, "v_pk_add_f32", b, b, b + 4); pk(A, "v_pk_add_f32", b + 2, b + 2, b + 6)
            pk(A, "v_pk_add_f32", b + 8, b + 8, b + 12); pk(A, "v_pk_add_f32", b + 10, b + 10, b + 14)
            pk(A, "v_pk_add_f32", b, b, b + 8); pk(A, "v_pk_add_f32", b + 2, b + 2, b + 10)
            round_multi(A, [b, b + 1, b + 2, b + 3], [b + 4, b + 5], KM)
            if i >= 2:
                for e in range(4): A(f"v_add_f32 v{b+e}, 1.0, v{b+e}")
                round_multi(A, [b, b + 1, b + 2, b + 3], [b + 4, b + 5], KM)
            A(f"ds_write_b128 v3, v[{b}:{b+3}] offset:{i*1024}")
        A("s_waitcnt lgkmcnt(0)")
        A.label(".Lp3_n8")
        A.label(".Lp3_Y")
        loader()
        A("s_barrier")
        self.pst(10)
        self.pst_flush()
        A(f"v_mov_b32 v2, {SCR}")
        A("ds_read_b64 v[2:3], v2")
        A("s_waitcnt lgkmcnt(0)")
        A("v_readfirstlane_b32 s100, v2")
        A("v_readfirstlane_b32 s101, v3")
    def p4_silu(self, C, T, U):
        A = self.A; n = len(C)
        seq = [lambda i, c: f"v_mul_f32 v{T[i]}, {fhex(-LOG2E)}, v{c}",
               lambda i, c: f"v_exp_f32 v{T[i]}, v{T[i]}", None, lambda i, c: f"v_add_f32 v{T[i]}, 1.0, v{T[i]}",
               lambda i, c: f"v_rcp_f32 v{U[i]}, v{T[i]}", None, lambda i, c: f"v_mul_f32 v{U[n+i]}, v{c}, v{U[i]}",
               lambda i, c: f"v_fma_f32 v{T[i]}, -v{U[n+i]}, v{T[i]}, v{c}", lambda i, c: f"v_fma_f32 v{c}, v{T[i]}, v{U[i]}, v{U[n+i]}"]
        for f in seq:
            if f is None: A("s_nop 0"); continue
            for i, c in enumerate(C): A(f(i, c))
    def p4_red8(self, sets, last):
        A = self.A
        DP = "row_mask:0xf bank_mask:"
        for S in sets:
            for k in range(4): A(f"v_permlane32_swap_b32 v{S[k]}, v{S[k+4]}")
        if len(sets) == 1: A("s_nop 0")
        for S in sets:
            for k in range(4): A(f"v_add_f32 v{S[k]}, v{S[k]}, v{S[k+4]}")
        A("s_nop 1" if len(sets) == 1 else "s_nop 0")
        for S in sets:
            for k in range(2): A(f"v_permlane16_swap_b32 v{S[k]}, v{S[k+2]}")
        A("s_nop 1")
        for S in sets:
            for k in range(2): A(f"v_add_f32 v{S[k]}, v{S[k]}, v{S[k+2]}")
        A("s_nop 1")
        for S in sets:
            A(f"v_add_f32_dpp v{S[2]}, v{S[0]}, v{S[0]} row_ror:8 {DP}0x3")
            A(f"v_add_f32_dpp v{S[2]}, v{S[1]}, v{S[1]} row_ror:8 {DP}0xc")
        src = 2
        for i, d in enumerate(last):
            A("s_nop 1" if len(sets) == 1 else "s_nop 0")
            for S in sets: A(f"v_add_f32_dpp v{S[0]}, v{S[src]}, v{S[src]} {d} {DP}0xf")
            src = 0
    def p4_xl(self):
        A = self.A; XR = K1.V_S
        A("s_add_u32 s4, s3, 4096")
        for i in range(8):
            A(f"buffer_load_dwordx4 v[{XR+4*i}:{XR+4*i+3}], v12, s[84:87], s{3 + (i >> 2)} offen offset:{(i & 3) * 1024}")
    def p4_a(self):
        A = self.A
        W = K1.S_WAVE; M_ = K1.S_M; XR = K1.V_S; SCR = K1.STG + 16384
        NLT = 64 if LT == 3 else 120
        A(f"v_mov_b32 v58, {SCR}")
        for i in range(4): A(f"v_mov_b32 v{4+i}, 0")
        A("ds_write_b128 v58, v[4:7]")
        A("ds_write_b128 v58, v[4:7] offset:16")
        if XH:
            A("s_getreg_b32 s57, hwreg(HW_REG_XCC_ID)")
            A("s_and_b32 s3, s2, 1")
            A("s_lshl_b32 s3, s3, 5")
            A("s_lshr_b32 s56, s2, 3")
            A("s_add_u32 s3, s3, s56")
            A("s_bitcmp1_b32 s2, 1")
            A("s_cselect_b32 s56, 0, 192")
            A("s_cselect_b32 s58, 64, 128")
            A("s_bitcmp1_b32 s57, 2" if XH == 1 else ("s_cmp_eq_u32 s57, s57" if XH == 2 else "s_cmp_lg_u32 s57, s57"))
            A("s_cselect_b32 s56, s58, s56")
            A("s_add_u32 s3, s3, s56")
        elif RM:
            A("s_add_u32 s3, s2, 6")
            A("s_and_b32 s3, s3, 7")
            A("s_lshl_b32 s3, s3, 5")
            A("s_lshr_b32 s57, s2, 3")
            A("s_add_u32 s3, s3, s57")
        else:
            A("s_sub_u32 s3, 255, s2")
        A(f"s_cmp_lt_u32 s{W}, 4")
        A("s_cselect_b32 s36, s3, 128")
        A("v_lshrrev_b32 v3, 3, v0")
        A("s_cmp_lt_u32 s36, 192")
        A("s_cbranch_scc1 .Lp4a_l")
        A("v_and_b32 v2, 1, v1")
        A("v_lshl_or_b32 v2, v3, 1, v2")
        A("v_lshlrev_b32 v61, 3, v2")
        A("v_mul_u32_u24 v60, 24576, v2")
        A("v_bfe_u32 v3, v1, 1, 2")
        A("v_lshl_add_u32 v60, v3, 4, v60")
        A("s_bfe_u32 s59, s3, 0x10005")
        A("s_and_b32 s58, s3, 31")
        A("s_lshl_b32 s58, s58, 6")
        A(f"s_mul_i32 s57, s59, {256 * 6144}")
        A("s_add_u32 s58, s58, s57")
        A("s_lshl_b32 s59, s59, 9")
        A("s_waitcnt lgkmcnt(0)")
        self.pst(1)
        make_srd(A, 76, 72, 0, 1024)
        make_srd(A, 80, 74, 0, 512 * 6144)
        A("buffer_load_dwordx2 v[224:225], v61, s[76:79], s59 offen")
        for i in range(4):
            A(f"buffer_load_dwordx4 v[{128+4*i}:{131+4*i}], v60, s[80:83], s58 offen")
            if i < 3: A("s_add_u32 s58, s58, 6144")
        A("s_branch .Lp4a_x")
        A.label(".Lp4a_l")
        A(f"s_cmp_ge_u32 s36, {NLT}")
        A("s_cbranch_scc1 .Lp4a_w")
        A("s_and_b32 s37, s3, 1")
        A("s_lshr_b32 s56, s3, 1")
        A("s_add_u32 s57, s56, 16")
        A("s_sub_u32 s56, s56, 32")
        A("s_cmp_lt_u32 s3, 64")
        A("s_cselect_b32 s56, s57, s56")
        A(f"s_movk_i32 s57, {CSP}")
        A(f"s_cselect_b32 s59, {MODP}, s57")
        A("s_movk_i32 s57, 3584")
        A("s_cselect_b32 s46, 6144, s57")
        A(f"s_cselect_b32 s47, {WS_MOD}, {WS_CS}")
        A("s_mul_i32 s59, s59, s37")
        A("s_add_u32 s59, s59, s47")
        A("s_lshl_b32 s57, s56, 8")
        A("s_add_u32 s59, s59, s57")
        A("s_lshl_b32 s58, s37, 8")
        A("s_mul_i32 s58, s58, s46")
        A("s_lshl_b32 s56, s56, 7")
        A("s_add_u32 s58, s58, s56")
        A("s_lshl_b32 s57, s37, 9")
        A("s_lshl_b32 s56, s46, 3")
        A("v_and_b32 v2, 7, v1")
        A("v_mul_lo_u32 v60, v3, s56")
        A("v_lshl_add_u32 v60, v2, 4, v60")
        A("v_lshlrev_b32 v61, 4, v3")
        A("s_cmp_lt_u32 s3, 64")
        A("s_waitcnt lgkmcnt(0)")
        make_srd(A, 76, 72, 0, 1024)
        A("s_cselect_b32 s80, s74, s96")
        A("s_cselect_b32 s81, s75, s97")
        A("s_lshl_b32 s82, s46, 9")
        A("s_mov_b32 s83, 0x00020000")
        A("buffer_load_dwordx4 v[224:227], v61, s[76:79], s57 offen")
        for i in range(8):
            A(f"buffer_load_dwordx4 v[{128+4*i}:{131+4*i}], v60, s[80:83], s58 offen")
            if i < 7: A("s_add_u32 s58, s58, s46")
        A.label(".Lp4a_w")
        A("s_waitcnt lgkmcnt(0)")
        self.pst(1)
        A.label(".Lp4a_x")
        make_srd(A, 88, 6, 0, 256)
        A(f"s_xor_b32 s57, s{W}, 4")
        if XH:
            A("s_lshr_b32 s56, s2, 3")
            A("s_or_b32 s57, s56, s57")
        else: A("s_or_b32 s57, s2, s57")
        A("s_cmp_lg_u32 s57, 0")
        A("s_cbranch_scc1 .Lp4a_non")
        A("s_or_b32 s70, s70, 1")
        A("v_mov_b32 v2, s70")
        A("v_mov_b32 v3, s71")
        A("s_mov_b64 exec, 1")
        if XH: A("buffer_atomic_cmpswap_x2 v[2:5], v6, s[88:91], 0 offen sc1")
        else: A("buffer_store_dwordx2 v[2:3], v5, s[88:91], 0 offen sc1")
        A("s_mov_b64 exec, -1")
        A.label(".Lp4a_non")
        if int(os.environ.get("HX", "0")):
            A(f"s_cmp_lg_u32 s{W}, 5")
            A("s_cbranch_scc1 .Lp4a_hx")
            A("s_cmp_ge_u32 s2, 14")
            A("s_cbranch_scc1 .Lp4a_hx")
            A("s_getreg_b32 s57, hwreg(HW_REG_XCC_ID)")
            A("s_and_b32 s57, s57, 15")
            A("s_mul_i32 s57, s57, 100000000")
            A("s_and_b32 s56, s70, 0xffff")
            A("s_add_u32 s57, s57, s56")
            A("v_mov_b32 v2, s57")
            A("s_lshl_b32 s57, s2, 2")
            A("s_mov_b64 exec, 1")
            A("buffer_store_dword v2, v5, s[88:91], s57 offen offset:8")
            A("s_mov_b64 exec, -1")
            A.label(".Lp4a_hx")
        make_srd(A, 84, 4, 0, 2 * MB)
        A("s_mov_b32 s70, s3")
        A("s_sub_u32 s72, s36, 192")
        A(f"s_cmp_lt_u32 s36, {NLT}")
        A("s_cselect_b32 s73, s36, 255")
        if XRT:
            A(f"s_add_u32 s71, s{W}, s{K1.S_G}")
            A("s_and_b32 s71, s71, 7")
            A("s_lshl_b32 s71, s71, 3")
        else: A(f"s_lshl_b32 s71, s{W}, 3")
        A(f"s_lshl_b32 s3, s{M_}, 16")
        A("s_lshl_b32 s4, s71, 10")
        A("s_add_u32 s3, s3, s4")
        A("s_barrier")
        if XL:
            A(f"s_cmp_ge_u32 s{W}, {XL}")
            A("s_cbranch_scc1 .Lp4a_nx")
        A("s_cmp_lt_u32 s73, 120")
        A("s_cbranch_scc1 .Lp4a_nx")
        if CX:
            A("s_sub_u32 s4, s70, s36")
            A("s_cmp_ge_i32 s4, 64")
        else:
            A("s_cmp_lt_u32 s72, 64")
        A("s_cbranch_scc1 .Lp4a_nx")
        self.p4_xl()
        if NW:
            A(f"s_cmp_lg_u32 s{W}, 0")
            A("s_cbranch_scc1 .Lp4a_nx")
            A("s_cmp_ge_u32 s70, 192")
            A("s_cbranch_scc1 .Lp4a_nx")
            self.p3_nload()
        A.label(".Lp4a_nx")
    def p4_arrive(self, lab):
        A = self.A
        A("v_mov_b32 v3, 1")
        A("s_waitcnt lgkmcnt(0)")
        A("s_mov_b64 exec, 1")
        A("ds_add_rtn_u32 v3, v58, v3 offset:16")
        A("s_mov_b64 exec, -1")
        A("s_waitcnt lgkmcnt(0)")
        A("v_readfirstlane_b32 s4, v3")
        A("s_cmp_lg_u32 s4, 3")
        A(f"s_cbranch_scc1 {lab}")
    def p4_slow(self, sfx, scol, spart, sA, sB, sT, KM):
        A = self.A
        ACC = list(range(112, 120)); F = list(range(96, 112)); C = list(range(64, 72))
        A(f"s_load_dwordx4 s[{sT}:{sT+3}], s[0:1], 80")
        A("v_and_b32 v2, 7, v1")
        A("v_lshrrev_b32 v3, 3, v1")
        A("v_mul_u32_u24 v60, 49152, v3")
        A("v_lshl_add_u32 v60, v2, 4, v60")
        A("v_lshlrev_b32 v61, 4, v3")
        A("v_lshl_add_u32 v2, v2, 3, v3")
        for a in ACC: A(f"v_mov_b32 v{a}, 0")
        A("s_waitcnt lgkmcnt(0)")
        make_srd(A, sA, sT, 0, 1024)
        make_srd(A, sB, sT + 2, 0, 512 * 6144)
        A(f"s_mul_i32 s{sT}, s{spart}, {256 * 6144}")
        A(f"s_add_u32 s{sT}, s{sT}, s{scol}")
        A(f"s_lshl_b32 s{sT+1}, s{spart}, 9")
        A(f"s_mov_b32 s{sT+2}, 4")
        A.label(f".Lp4s_{sfx}")
        A(f"buffer_load_dwordx4 v[224:227], v61, s[{sA}:{sA+3}], s{sT+1} offen")
        for i in range(8):
            A(f"buffer_load_dwordx4 v[{128+4*i}:{131+4*i}], v60, s[{sB}:{sB+3}], s{sT} offen")
            A(f"s_add_u32 s{sT}, s{sT}, {6144 if i < 7 else 57 * 6144}")
        A(f"s_add_u32 s{sT+1}, s{sT+1}, 128")
        A("s_waitcnt vmcnt(8)")
        for i in range(4):
            A(f"v_lshlrev_b32 v{C[2*i]}, 16, v{224+i}")
            A(f"v_and_b32 v{C[2*i+1]}, {KM}, v{224+i}")
        self.p4_silu(C, list(range(72, 80)), list(range(80, 96)))
        for i in range(4): A(f"v_cvt_pk_bf16_f32 v{72+i}, v{C[2*i]}, v{C[2*i+1]}")
        self.p4_forms([72, 73, 74, 75], F, KM)
        A("s_waitcnt vmcnt(0)")
        for i in range(8):
            for k in range(8):
                A(f"v_dot2_f32_bf16 v{ACC[k]}, v{128+4*i+k//2}, v{F[2*i+(k&1)]}, v{ACC[k]}")
        A(f"s_sub_u32 s{sT+2}, s{sT+2}, 1")
        A(f"s_cmp_lg_u32 s{sT+2}, 0")
        A(f"s_cbranch_scc1 .Lp4s_{sfx}")
        self.p4_red8([ACC], [])
    def p4_forms(self, P, F, KM=None):
        A = self.A; KM = KM or f"s{K1.S_MASK}"
        for i, p in enumerate(P):
            A(f"v_and_b32 v{F[4*i]}, 0xffff, v{p}")
            A(f"v_lshlrev_b32 v{F[4*i+1]}, 16, v{p}")
            A(f"v_lshrrev_b32 v{F[4*i+2]}, 16, v{p}")
            A(f"v_and_b32 v{F[4*i+3]}, {KM}, v{p}")
    def p4_wq(self):
        A = self.A; W = K1.S_WAVE
        A("v_and_b32 v4, 255, v0")
        A("v_lshrrev_b32 v2, 4, v4")
        A("v_and_b32 v3, 15, v4")
        A("v_lshlrev_b32 v3, 6, v3")
        A("v_lshl_add_u32 v2, v2, 13, v3")
        A("s_add_u32 s36, s70, 64")
        A("s_cmp_lt_u32 s70, 128")
        A("s_cselect_b32 s36, 256, s36")
        A("s_cmp_lt_u32 s70, 192")
        A("s_cselect_b32 s37, s70, 256")
        A(f"s_cmp_lt_u32 s{W}, 4")
        A("s_cselect_b32 s36, s36, s37")
        A("s_cmp_ge_u32 s36, 256")
        A("s_cbranch_scc1 .Lp4_wq")
        A("s_and_b32 s37, s36, 7")
        A("s_lshr_b32 s36, s36, 3")
        A("s_lshl_b32 s36, s36, 17")
        A("s_lshl_b32 s37, s37, 10")
        A("s_add_u32 s36, s36, s37")
        A(f"buffer_load_dword v63, v2, s[{K1.S_WQ}:{K1.S_WQ+3}], s36 offen")
        A.label(".Lp4_wq")
    def p4_nonce(self, sfx):
        A = self.A
        A("s_mov_b32 s4, 0")
        A.label(f".Lp4_nl{sfx}")
        A("v_readfirstlane_b32 s100, v232")
        A("v_readfirstlane_b32 s101, v233")
        A("s_add_u32 s4, s4, 1")
        A("s_cmp_lg_u32 s100, 0")
        A(f"s_cbranch_scc1 .Lp4_nd{sfx}")
        A("s_cmp_lt_u32 s4, 0x40000")
        A(f"s_cbranch_scc0 .Lp4_nd{sfx}")
        self.p3_nload()
        A("s_waitcnt vmcnt(0)")
        A(f"s_branch .Lp4_nl{sfx}")
        A.label(f".Lp4_nd{sfx}")
        A("s_or_b32 s100, s100, 1")
        A("v_mov_b32 v232, s100")
        A("v_mov_b32 v233, s101")
        A("ds_write_b64 v58, v[232:233]")
    def p4_nget(self, lab):
        A = self.A
        A.label(lab)
        A("ds_read_b64 v[2:3], v58")
        A("s_waitcnt lgkmcnt(0)")
        A("v_readfirstlane_b32 s100, v2")
        A("v_readfirstlane_b32 s101, v3")
        A("s_cmp_eq_u32 s100, 0")
        A(f"s_cbranch_scc1 {lab}")
    def p4_b(self, loader, cfix, xn_loads):
        A = self.A
        W = K1.S_WAVE; M_ = K1.S_M; KM = f"s{K1.S_MASK}"; SCR = K1.STG + 16384; XR = K1.V_S
        K10 = K1.V_K10; K01 = K1.V_K01
        ACC = list(range(72, 80))
        A("s_mov_b32 s6, 0")
        if XL:
            assert not CX and XL >= 4
            A(f"s_cmp_lt_u32 s{W}, {XL}")
            A("s_cbranch_scc1 .Lp4_xl0")
            self.p4_xl()
            A.label(".Lp4_xl0")
        if CX:
            A("s_cmp_lt_u32 s70, 192")
            A("s_cbranch_scc1 .Lp4_cx0")
            A(f"s_cmp_lt_u32 s{W}, 4")
            A("s_cbranch_scc1 .Lp4_cx0")
            self.p4_xl()
            A.label(".Lp4_cx0")
        XN_ = 8 if CX else 0
        self.pst(2)
        A("s_cmp_ge_u32 s72, 64")
        A("s_cbranch_scc1 .Lp4_nc")
        self.p3_nload()
        make_srd(A, 76, 68, WS_LL, NREP * 16384)
        A("v_and_b32 v2, 15, v1")
        A("v_lshrrev_b32 v4, 4, v1")
        A("v_lshlrev_b32 v4, 14, v4")
        A("v_lshl_add_u32 v4, v2, 4, v4")
        A("v_lshlrev_b32 v2, 5, v2")
        A(f"v_add_u32 v5, {SCR + 256}, v2")
        A("s_lshl_b32 s57, s72, 8")
        A("v_lshrrev_b32 v2, 3, v1")
        A("v_bfe_u32 v3, v1, 1, 2")
        A("v_lshl_add_u32 v2, v3, 3, v2")
        A(f"s_lshl_b32 s4, s{W}, 2")
        A(f"s_add_u32 s4, s4, {SCR + 256}")
        A("v_lshlrev_b32 v2, 4, v2")
        A("v_add_u32 v6, s4, v2")
        A(f"s_waitcnt vmcnt({5 + XN_})")
        C = [64, 65, 66, 67]
        for i in range(2):
            A(f"v_lshlrev_b32 v{C[2*i]}, 16, v{224+i}")
            A(f"v_and_b32 v{C[2*i+1]}, {KM}, v{224+i}")
        self.p4_silu(C, [68, 69, 70, 71], list(range(80, 88)))
        A("v_cvt_pk_bf16_f32 v64, v64, v65")
        A("v_cvt_pk_bf16_f32 v65, v66, v67")
        self.p4_forms([64, 65], list(range(80, 88)))
        for r in range(4):
            A(f"s_waitcnt vmcnt({4 - r + XN_})")
            if r == 3: self.pst(3)
            for k in range(8):
                A(f"v_dot2_f32_bf16 v{ACC[k]}, v{128+4*r+k//2}, v{80+2*r+(k&1)}, {'0' if r == 0 else 'v%d' % ACC[k]}")
        A("s_nop 0")
        self.p4_red8([ACC], ["quad_perm:[1,0,3,2]"])
        A(f"ds_write_b32 v6, v{ACC[0]}")
        self.pst(4)
        self.p4_arrive(".Lp4_cw")
        for i in range(2): A(f"ds_read_b128 v[{64+4*i}:{67+4*i}], v5 offset:{16*i}")
        A("s_waitcnt vmcnt(0)")
        self.p4_nonce("a")
        A("s_waitcnt lgkmcnt(0)")
        for b in (64, 68): pk(A, "v_pk_add_f32", b, b, b + 2)
        A("v_add_f32 v64, v64, v65")
        A("v_add_f32 v66, v68, v69")
        A("v_mov_b32 v65, s100")
        A("v_mov_b32 v67, s100")
        for i in range(NREP // 4):
            A("buffer_store_dwordx4 v[64:67], v4, s[76:79], s57 offen sc1")
            if i < NREP // 4 - 1: A("s_add_u32 s57, s57, 65536")
        if CX:
            self.pst(7)
            A("s_branch .Lp4_xd")
            A.label(".Lp4_cw")
            A("s_waitcnt vmcnt(1)")
            A("s_branch .Lp4_xd")
        else:
            self.lds_inc(16, 58)
            self.pst(7)
            A("s_branch .Lp4_cx")
            A.label(".Lp4_cw")
            self.lds_spin(".Lp4_spc", 16, 5, True, 58)
            A("s_branch .Lp4_cx")
        A.label(".Lp4_nc")
        A("s_cmp_ge_u32 s73, 120")
        A("s_cbranch_scc1 .Lp4_nl")
        F = list(range(96, 112)); C = list(range(64, 72))
        make_srd(A, 76, 68, 0, 128 * 1024)
        A("v_and_b32 v2, 7, v1")
        A("v_lshrrev_b32 v3, 3, v1")
        A("v_lshl_add_u32 v2, v2, 3, v3")
        A(f"s_lshl_b32 s4, s{W}, 8")
        A(f"s_add_u32 s4, s4, {SCR + 256}")
        A("v_lshlrev_b32 v2, 2, v2")
        A("v_add_u32 v6, s4, v2")
        A("v_lshlrev_b32 v4, 2, v1")
        A(f"v_add_u32 v5, {SCR + 256}, v4")
        A("s_cmp_lt_u32 s73, 64")
        A("s_cbranch_scc1 .Lp4_silu")
        for i in range(8):
            A(f"v_mov_b32 v{F[2*i]}, v{K10}")
            A(f"v_mov_b32 v{F[2*i+1]}, v{K01}")
        A("s_branch .Lp4_fma")
        A.label(".Lp4_silu")
        A("s_waitcnt vmcnt(8)")
        for i in range(4):
            A(f"v_lshlrev_b32 v{C[2*i]}, 16, v{224+i}")
            A(f"v_and_b32 v{C[2*i+1]}, {KM}, v{224+i}")
        self.p4_silu(C, list(range(72, 80)), list(range(80, 96)))
        for i in range(4): A(f"v_cvt_pk_bf16_f32 v{72+i}, v{C[2*i]}, v{C[2*i+1]}")
        self.p4_forms([72, 73, 74, 75], F)
        A.label(".Lp4_fma")
        for i in range(8):
            A(f"s_waitcnt vmcnt({7 - i})")
            if i == 7: self.pst(3)
            for k in range(8):
                A(f"v_dot2_f32_bf16 v{ACC[k]}, v{128+4*i+k//2}, v{F[2*i+(k&1)]}, {'0' if i == 0 else 'v%d' % ACC[k]}")
        self.p4_xl()
        self.p4_red8([ACC], [])
        A(f"ds_write_b32 v6, v{ACC[2]}")
        self.pst(4)
        A("s_mov_b32 s5, s73")
        A("s_movk_i32 s73, 255")
        self.p4_arrive(".Lp4_nl")
        A("s_mov_b32 s73, s5")
        for k in range(4): A(f"ds_read_b32 v{64+k}, v5 offset:{k*256}")
        A("s_waitcnt lgkmcnt(0)")
        A("v_add_f32 v64, v64, v65")
        A("v_add_f32 v66, v66, v67")
        A("v_add_f32 v64, v64, v66")
        A("buffer_store_dword v64, v4, s[76:79], s59 offen sc1")
        A("s_waitcnt vmcnt(1)")
        A("s_branch .Lp4_xd")
        if not CX:
            A.label(".Lp4_cx")
            self.p4_xl()
        A.label(".Lp4_nl")
        A("s_cmp_ge_u32 s70, 192")
        A("s_cbranch_scc1 .Lp4_e1")
        if NW:
            A(f"s_cmp_lt_u32 s70, {64 if LT == 3 else 120}")
            A("s_cbranch_scc1 .Lp4_e0")
            A(f"s_cmp_lg_u32 s{W}, 0")
            A("s_cbranch_scc1 .Lp4_e1")
            A("s_branch .Lp4_e2")
            A.label(".Lp4_e0")
        A(f"s_cmp_lg_u32 s{W}, 4")
        A("s_cbranch_scc1 .Lp4_e1")
        self.p3_nload()
        A.label(".Lp4_e2")
        if NW == 2:
            A("s_mov_b32 s6, 1")
            A("s_waitcnt vmcnt(1)")
            A("s_branch .Lp4_xd")
        else:
            A("s_waitcnt vmcnt(0)")
            self.p4_nonce("b")
        A.label(".Lp4_e1")
        A("s_waitcnt vmcnt(0)")
        A.label(".Lp4_xd")
        A("s_mov_b32 s7, 0x3f803f80")
        self.pst(5)
        if WQP == 0 and NW != 2: self.p4_wq()
        S = list(range(80, 88)); Q = list(range(88, 96))
        for r in range(8):
            for j in range(4):
                x = XR + 4 * r + j
                A(f"v_dot2_f32_bf16 v{S[r]}, v{x}, s7, {'0' if j == 0 else 'v%d' % S[r]}")
                A(f"v_dot2_f32_bf16 v{Q[r]}, v{x}, v{x}, {'0' if j == 0 else 'v%d' % Q[r]}")
        make_srd(A, 76, 68, WS_LL, NREP * 16384)
        A(f"s_and_b32 s57, s{M_}, {NREP - 1}")
        A("s_lshl_b32 s57, s57, 14")
        A(f"s_lshl_b32 s4, s{W}, 10")
        A("s_add_u32 s57, s57, s4")
        A("s_add_u32 s58, s57, 8192")
        self.p4_red8([S, Q], ["row_half_mirror", "quad_perm:[1,0,3,2]", "quad_perm:[2,3,0,1]"])
        m = S[0]; q = Q[0]
        A(f"v_mul_f32 v{m}, {fhex(1/512)}, v{m}")
        A(f"v_mul_f32 v{q}, {fhex(1/512)}, v{q}")
        A(f"v_fma_f32 v{q}, -v{m}, v{m}, v{q}")
        A(f"v_cvt_pk_bf16_f32 v{m}, 0, -v{m}")
        A(f"v_max_f32 v{q}, 0, v{q}")
        A(f"v_cvt_pk_bf16_f32 v{q}, 0, v{q}")
        A(f"v_add_f32 v{q}, {fhex(1e-5)}, v{q}")
        A(f"v_cvt_pk_bf16_f32 v{q}, 0, v{q}")
        A(f"v_sqrt_f32 v{q}, v{q}")
        for r in range(4): A(f"v_readlane_b32 s{8+r}, v{m}, {8*r}")
        A(f"v_cvt_pk_bf16_f32 v{q}, 0, v{q}")
        A(f"v_rcp_f32 v{q}, v{q}")
        for r in range(4, 8): A(f"v_readlane_b32 s{8+r}, v{m}, {8*r}")
        for r in range(8): A(f"v_readlane_b32 s{48+r}, v{q}, {8*r}")
        self.pst(6)
        if NW == 2:
            A("s_cmp_eq_u32 s6, 0")
            A("s_cbranch_scc1 .Lp4_e3")
            A("s_waitcnt vmcnt(0)")
            self.p4_nonce("b")
            A.label(".Lp4_e3")
            if WQP == 0: self.p4_wq()
        PPOS = int(os.environ.get("PPOS", "8"))
        if XH:
            A("s_sub_u32 s72, s70, 128")
            A(f"s_cmp_eq_u32 s{W}, 0")
            A("s_cselect_b32 s72, s72, 255")
            A("s_lshl_b32 s59, s72, 8")
            A(f"s_and_b32 s4, s{M_}, {NREP - 1}")
            A("s_lshl_b32 s4, s4, 14")
            A("s_add_u32 s59, s59, s4")
            A("v_and_b32 v7, 31, v1")
            A("v_lshlrev_b32 v7, 3, v7")
        with Cap(A) as cpl:
            if XH:
                lb = ".Lp4_g%d_"
                A("s_cmp_ge_u32 s72, 64")
                A(f"s_cbranch_scc1 {lb}")
                A("buffer_load_dwordx2 v[244:245], v7, s[76:79], s59 offen sc1")
                A.label(lb)
            A("buffer_load_dwordx4 v[236:239], v12, s[76:79], s57 offen sc1")
            A("buffer_load_dwordx4 v[240:243], v12, s[76:79], s58 offen sc1")
            if LDP == 1: loader()
        pn = [0]
        def poll1():
            pn[0] += 1
            A.lines.extend([l.replace("%d", str(pn[0])) for l in cpl.out])
        if DPP_:
            A("s_sub_u32 s6, s70, 64")
            A("s_cmp_ge_u32 s6, 128")
            A("s_cbranch_scc1 .Lp4_p0")
            poll1()
            A.label(".Lp4_p0")
        for r in range(8):
            if r == PPOS and not DPP_: poll1()
            T = 96 + 16 * (r & 1); x = XR + 4 * r
            for j in range(8): A(f"v_dot2_f32_bf16 v{T+j}, v{x+j//2}, v{(K10, K01)[j & 1]}, s{8+r}")
            for j in range(8): A(f"v_cvt_pk_bf16_f32 v{T+j}, 0, v{T+j}")
            sp = 48 + (r & ~1)
            for j in range(4): A(f"v_pk_mul_f32 v[{T+2*j}:{T+2*j+1}], v[{T+2*j}:{T+2*j+1}], s[{sp}:{sp+1}] " + ("op_sel:[0,1]" if r & 1 else "op_sel_hi:[1,0]"))
            for j in range(4): A(f"v_cvt_pk_bf16_f32 v{x+j}, v{T+2*j}, v{T+2*j+1}")
        if DPP_:
            A("s_cmp_lt_u32 s6, 128")
            A("s_cbranch_scc1 .Lp4_p1")
            poll1()
            A.label(".Lp4_p1")
        elif PPOS >= 8: poll1()
        self.pst(8)
        ND = 4 if LDP == 1 else 0
        A(f"s_waitcnt vmcnt({ND})")
        self.p4_nget(".Lp4_ng1")
        if XH:
            A("s_cmp_ge_u32 s72, 64")
            A("s_cbranch_scc1 .Lp4_gd")
            A("s_mov_b32 s4, 0")
            A.label(".Lp4_gl")
            A("v_cmp_ne_u32 vcc, s100, v245")
            A("s_add_u32 s4, s4, 1")
            A("s_cbranch_vccz .Lp4_gd")
            A(f"s_cmp_ge_u32 s4, {KFB}")
            A("s_cbranch_scc1 .Lp4_gf")
            A("buffer_load_dwordx2 v[244:245], v7, s[76:79], s59 offen sc1")
            A("s_waitcnt vmcnt(0)")
            A("s_branch .Lp4_gl")
            A.label(".Lp4_gf")
            A("s_lshr_b32 s5, s72, 5")
            A("s_bfe_u32 s6, s72, 0x40001")
            A("s_lshl_b32 s7, s6, 7")
            self.p4_slow("c", 7, 5, 80, 84, 48, KM)
            A("s_lshl_b32 s5, s5, 13")
            A("s_lshl_b32 s6, s6, 9")
            A("s_add_u32 s5, s5, s6")
            A("v_lshlrev_b32 v2, 3, v2")
            A("v_mov_b32 v115, s100")
            for i in range(NREP):
                A("buffer_store_dwordx2 v[114:115], v2, s[76:79], s5 offen sc1")
                if i < NREP - 1: A("s_add_u32 s5, s5, 16384")
            A.label(".Lp4_gd")
        A("s_mov_b32 s4, 0")
        A(f"s_cmp_ge_u32 s{W}, 4")
        A("s_cselect_b32 s71, 1.0, 0")
        A("s_cselect_b32 s7, 0, 16")
        A(f"s_lshl_b32 s6, s{W}, 9")
        A(f"s_add_u32 s6, s6, {SCR + 4096}")
        A("v_lshlrev_b32 v6, 3, v1")
        A("v_add_u32 v6, s6, v6")
        A.label(".Lp4_chk")
        A("v_xor_b32 v2, s100, v237")
        A("v_xor_b32 v3, s100, v239")
        A("v_xor_b32 v4, s100, v241")
        A("v_xor_b32 v5, s100, v243")
        A("v_or_b32 v2, v2, v3")
        A("v_or_b32 v4, v4, v5")
        A("v_cmp_ne_u32 s[12:13], 0, v2")
        A("v_cmp_ne_u32 vcc, 0, v4")
        A("s_add_u32 s4, s4, 1")
        A("s_or_b64 s[14:15], s[12:13], vcc")
        A("s_cbranch_scc0 .Lp4_ok")
        A("s_cmp_lt_u32 s4, 0x40000")
        A("s_cbranch_scc0 .Lp4_ok")
        if int(os.environ.get("PSL", "0")): A(f"s_sleep {int(os.environ.get('PSL', '0'))}")
        MRL = int(os.environ.get("MRL", "1"))
        if MRL: A("s_mov_b64 exec, s[12:13]")
        A("buffer_load_dwordx4 v[236:239], v12, s[76:79], s57 offen sc1")
        if MRL: A("s_mov_b64 exec, vcc")
        A("buffer_load_dwordx4 v[240:243], v12, s[76:79], s58 offen sc1")
        if MRL: A("s_mov_b64 exec, -1")
        A("s_waitcnt vmcnt(0)")
        A("s_branch .Lp4_chk")
        A.label(".Lp4_ok")
        self.pst(9)
        A("v_add_f32 v236, v236, v240")
        A("v_add_f32 v238, v238, v242")
        A("v_cvt_pk_bf16_f32 v236, 0, v236")
        A("v_cvt_pk_bf16_f32 v238, 0, v238")
        A("v_add_f32 v236, s71, v236")
        A("v_add_f32 v238, s71, v238")
        A("v_cvt_pk_bf16_f32 v2, v236, v238")
        A("v_and_b32 v236, 0xffff, v2")
        A(f"v_and_b32 v237, {KM}, v2")
        A("v_lshlrev_b32 v236, s7, v236")
        A("ds_write_b64 v6, v[236:237]")
        if LDP == 2: loader()
        if WQP == 2: self.p4_wq()
        if int(os.environ.get("YSL", "0")): A(f"s_sleep {int(os.environ.get('YSL', '0'))}")
        A("s_waitcnt lgkmcnt(0)")
        A("s_barrier")
        self.pst(10)
        self.pst_flush()
    def w_setup(self, widx, K, rowbytes, woff_code):
        A = self.A
        make_srd(A, S_W, P_W + 2 * widx, 0, K * rowbytes)
        A(f"v_lshrrev_b32 v2, 3, v{L}")
        A(f"v_and_b32 v3, 7, v{L}")
        A(f"v_lshlrev_b32 v{V_W}, 1, v2")
        A(f"v_and_b32 v{V_W}, 4, v{V_W}")
        A(f"v_xor_b32 v3, v3, v{V_W}")
        A("v_lshlrev_b32 v3, 4, v3")
        A(f"v_mul_u32_u24 v2, {rowbytes}, v2") if rowbytes < 64 else None
        A(f"s_movk_i32 s{S_WOFF}, {rowbytes}")
        A(f"v_mul_lo_u32 v2, v2, s{S_WOFF}")
        A(f"v_add_u32 v{V_W}, v2, v3")
        woff_code()
        self.wrb = rowbytes
    def dmaW(self, st, ldsoff, tag="w"):
        A = self.A
        for i in range(2):
            A(f"s_add_u32 m0, s{S_RB}, {ldsoff + i * 1024}")
            A("s_nop 0")
            A(f"buffer_load_dwordx4 v{V_W}, s[{S_W}:{S_W+3}], s{S_WOFF} offen lds")
            self.vm.issue((tag, st))
            A(f"s_add_u32 s{S_WOFF}, s{S_WOFF}, {8 * self.wrb}")
    def pf_g64(self, widx, K, WB, DW, lo=0, hi=99, rot=0):
        A = self.A
        def woff():
            A(f"s_mul_i32 s{S_WOFF}, s{S_WAVE}, {(K // 4) * 1024}")
            A(f"s_lshl_b32 s{S_TMP+11}, s{S_J}, 7")
            A(f"s_add_u32 s{S_WOFF}, s{S_WOFF}, s{S_TMP+11}")
        if lo == 0: self.w_setup(widx, K, 1024, woff)
        self.wrb = 1024
        for st in range(lo, min(DW, hi)): self.dmaW(st, WB + ((st + rot) % DW) * 2048, "wn" if PFE == 3 else "w")
    def pf_fg(self, lo=0, hi=11 + FGE, alt=False, tag="wn"):
        A = self.A
        def woff():
            A(f"s_mul_i32 s{S_WOFF}, s{S_WAVE}, {448 * 1024}")
            A(f"s_lshl_b32 s{S_TMP+11}, s{S_J}, 7")
            A(f"s_add_u32 s{S_WOFF}, s{S_WOFF}, s{S_TMP+11}")
        if lo == 0: self.w_setup(3, 1792, 1024, woff)
        self.wrb = 1024
        for st in range(lo, hi): self.dmaW(st, fg_slot(st), tag)
    def pf_k5(self, lo=0, hi=99):
        A = self.A
        def woff():
            A(f"s_min_u32 s{S_WOFF}, s{S_J}, 6")
            A(f"s_lshl_b32 s{S_WOFF}, s{S_WOFF}, 9")
            A(f"s_lshl_b32 s{S_TMP+11}, s{S_WAVE}, 7")
            A(f"s_add_u32 s{S_WOFF}, s{S_WOFF}, s{S_TMP+11}")
        if lo == 0: self.w_setup(2, 512, 3584, woff)
        self.wrb = 3584
        for st in range(lo, min(K5D, hi)): self.dmaW(st, K5RB + st * 2048, "wn" if PFE == 3 else "w")
    def l2pf(self, widx, size):
        A = self.A
        per = size // 32
        A("s_lshr_b32 s78, s2, 3")
        A(f"s_mul_i32 s78, s78, {per}")
        make_srd(A, 80, P_W + 2 * widx, "s78", per)
        A("v_and_b32 v2, 255, v0")
        A("v_lshlrev_b32 v2, 7, v2")
        n = (per + 32767) // 32768
        for i in range(n):
            A(f"s_mov_b32 s78, {i * 32768}")
            A("buffer_load_dword v3, v2, s[80:83], s78 offen")
        return n
    def persist(self):
        A = self.A
        A(f"s_load_dwordx2 s[{P_X}:{P_X+1}], s[0:1], 0")
        A(f"s_load_dwordx2 s[{P_OUT}:{P_OUT+1}], s[0:1], 96")
        A(f"s_load_dwordx2 s[{P_WS}:{P_WS+1}], s[0:1], 112")
        A(f"s_load_dwordx8 s[{P_W}:{P_W+7}], s[0:1], 48")
        A("v_and_b32 v1, 63, v0")
        A("v_lshrrev_b32 v2, 6, v0")
        A("s_nop 0")
        A(f"v_readfirstlane_b32 s{S_WAVE}, v2")
        A(f"s_and_b32 s{S_M}, s2, 31")
        A(f"s_lshr_b32 s{S_J}, s2, 5")
        A(f"s_mov_b32 s{S_MASK}, 0xffff0000")
        A(f"s_mul_i32 s{S_RB}, s{S_WAVE}, {RG}")
        A("s_waitcnt lgkmcnt(0)")
    def kr(self):
        A = self.A; vm = self.vm
        S_X = 8; S_MOD = 12; S_PT = 16; S_X2 = 20; S_H = 24; S_HN = 28; S_H1 = 36
        PR = 64; XR = 16; GA = 24; CB = 32; SB = 40
        A("v_lshlrev_b32 v9, 4, v1")
        A("v_lshlrev_b32 v10, 5, v1")
        A(f"s_lshl_b32 s3, s{S_M}, 3")
        A(f"s_add_u32 s3, s3, s{S_J}")
        A("s_lshl_b32 s3, s3, 3")
        A(f"s_add_u32 s3, s3, s{S_WAVE}")
        A("s_lshl_b32 s3, s3, 10")
        make_srd(A, S_X, P_X, 0, 2 * MB)
        make_srd(A, S_MOD, P_WS, WS_MOD, 4 * MODP)
        if HA:
            assert KRF and W0M and not PRG
            A("v_lshlrev_b32 v11, 3, v1")
            for h in range(2):
                A(f"buffer_load_dwordx2 v[{XR+2*h}:{XR+2*h+1}], v11, s[{S_X}:{S_X+3}], s3 offen offset:{512*h}"); vm.issue("x")
        else:
            A(f"buffer_load_dwordx4 v[{XR}:{XR+3}], v9, s[{S_X}:{S_X+3}], s3 offen"); vm.issue("x")
        def rowst(r, srd):
            if HA:
                for h in range(2): A(f"buffer_store_dwordx2 v[{r+2*h}:{r+2*h+1}], v11, s[{srd}:{srd+3}], s3 offen offset:{512*h} sc1")
            else: A(f"buffer_store_dwordx4 v[{r}:{r+3}], v9, s[{srd}:{srd+3}], s3 offen sc1")
        def modloads():
            for part in range(2 if V2 else 1):
                for (dst, idx) in ((CB, 4), (GA, 2), (SB, 3)):
                    d = dst + 88 * part
                    A(f"s_movk_i32 s{S_TMP}, {idx*2048 + part*MODP}")
                    A(f"buffer_load_dwordx4 v[{d}:{d+3}], v10, s[{S_MOD}:{S_MOD+3}], s{S_TMP} offen"); vm.issue("x")
                    A(f"buffer_load_dwordx4 v[{d+4}:{d+7}], v10, s[{S_MOD}:{S_MOD+3}], s{S_TMP} offen offset:16"); vm.issue("x")
        if HA:
            A("v_add_u32 v2, 81920, v9")
            for q, off in enumerate((0, 16384, 49152)):
                A(f"ds_read_b128 v[{24+8*q}:{27+8*q}], v2 offset:{off}")
                A(f"ds_read_b128 v[{28+8*q}:{31+8*q}], v2 offset:{off+1024}")
            A(f"s_and_b32 s48, s{S_WAVE}, 2")
            A("s_lshl_b32 s48, s48, 13")
            A(f"s_lshr_b32 s49, s{S_WAVE}, 2")
            A("s_lshl_b32 s49, s49, 11")
            A("s_add_u32 s48, s48, s49")
            A(f"s_and_b32 s49, s{S_WAVE}, 1")
            A("s_lshl_b32 s49, s49, 10")
            A("s_add_u32 s48, s48, s49")
            A("v_add_u32 v63, s48, v2")
            A("v_mov_b32 v56, 0x3f80")
            A("v_mov_b32 v57, 1.0")
            A(f"s_sub_u32 s48, s{S_WAVE}, 2")
            A("s_cmp_ge_u32 s48, 2")
            A("s_cbranch_scc1 .Lha_k1")
            A("s_cmp_lg_u32 s65, 0")
            A("s_cbranch_scc1 .Lha_k1")
            make_srd(A, 72, P_WS, WS_PART, 8 * 2048 * 512 * 2)
            make_srd(A, 76, P_WS, WS_FLAG + 5 * 8192, 8192)
            self.poll64(".Lpla", [(60, 76, "s96")])
            self.ha_loads()
            A.label(".Lha_k1")
            A("s_waitcnt lgkmcnt(0)")
        elif W0M:
            A("v_add_u32 v2, 81920, v10")
            for q, off in enumerate((0, 16384, 49152)):
                A(f"ds_read_b128 v[{24+8*q}:{27+8*q}], v2 offset:{off}")
                A(f"ds_read_b128 v[{28+8*q}:{31+8*q}], v2 offset:{off+16}")
            A("s_waitcnt lgkmcnt(0)")
        else: modloads()
        make_srd(A, S_PT, P_WS, WS_PART, 8 * 2048 * 512 * 2)
        make_srd(A, S_X2, P_WS, WS_X2, 2 * MB)
        make_srd(A, S_H, P_WS, WS_H, 2 * MB)
        make_srd(A, S_HN, P_WS, WS_HN, 2 * MB)
        make_srd(A, S_H1, P_WS, WS_H1, 2052 * 1024)
        if HP:
            A(f"v_lshlrev_b32 v2, 2, v1")
            A(f"v_add_u32 v2, {CNT}, v2")
            A("v_mov_b32 v3, 0")
            A("ds_write_b32 v2, v3")
            A("s_waitcnt lgkmcnt(0)")
        A(f"s_cmp_ge_u32 s{S_WAVE}, 4")
        A("s_cbranch_scc1 .Lkr_nz2")
        A(f"s_lshr_b32 s{S_TMP}, s{S_WAVE}, 1")
        A(f"s_mul_i32 s{S_TMP}, s{S_TMP}, 31")
        A(f"s_cmp_lg_u32 s2, s{S_TMP}")
        A("s_cbranch_scc1 .Lkr_nz")
        A(f"s_lshl_b32 s{S_TMP}, s{S_WAVE}, 10")
        A(f"s_add_u32 s{S_TMP+1}, s{S_TMP}, {2048*1024}")
        A(f"s_cmp_lt_u32 s{S_WAVE}, 2")
        A(f"s_cselect_b32 s{S_TMP}, s{S_TMP}, s{S_TMP+1}")
        for j in range(4): A(f"v_mov_b32 v{12+j}, 0")
        A(f"buffer_store_dwordx4 v[12:15], v9, s[{S_H1}:{S_H1+3}], s{S_TMP} offen sc1")
        A.label(".Lkr_nz")
        PFW1 = int(os.environ.get("PFW1", "1"))
        if PRG:
            PFP = int(os.environ.get("PFP", "1"))
            if PFP == 0: self.pf_g64(0, 512, 24576, 8)
            PFW1 = 0
            A.label(".Lkr_nz2")
            A(f"s_mul_i32 s{S_TMP}, s{S_M}, {7 * 65536}")
            A(f"s_add_u32 s{S_TMP}, s{S_TMP}, s3")
            A(f"v_mov_b32 v4, {MSK}")
            A(f"s_mov_b32 s{S_TMP+1}, 0")
            A(f"s_cmp_lg_u32 s{S_WAVE}, 7")
            A("s_cbranch_scc1 .Lkr_lp")
            A("v_and_b32 v3, 7, v1")
            A("v_lshlrev_b32 v3, 3, v3")
            A("v_add_u32 v3, s96, v3")
            A("s_mov_b32 s99, 0")
            A.label(".Lkr_pp")
            A("buffer_load_dwordx2 v[248:249], v3, s[92:95], 0 offen sc1")
            A("s_add_u32 s99, s99, 1")
            A("s_waitcnt vmcnt(0)")
            A("v_xor_b32 v248, s100, v248")
            A("v_xor_b32 v249, s101, v249")
            A("v_or_b32 v248, v248, v249")
            A("v_cmp_eq_u32 vcc, 0, v248")
            A(f"s_and_b32 s{S_TMP+2}, vcc_lo, 0xff")
            A("s_cmp_lt_u32 s99, 0x40000")
            A(f"s_cselect_b32 s{S_TMP+2}, s{S_TMP+2}, 0xff")
            A(f"v_mov_b32 v5, s{S_TMP+2}")
            A("s_mov_b64 exec, 1")
            A("ds_or_b32 v4, v5")
            A("s_mov_b64 exec, -1")
            A(f"s_cmp_lg_u32 s{S_TMP+2}, 0xff")
            A("s_cbranch_scc1 .Lkr_pp")
            self.stamp(4)
            A.label(".Lkr_lp")
            A("ds_read_b32 v5, v4")
            A("s_waitcnt lgkmcnt(0)")
            A(f"v_readfirstlane_b32 s{S_TMP+2}, v5")
            A(f"s_andn2_b32 s{S_TMP+3}, s{S_TMP+2}, s{S_TMP+1}")
            A("s_cbranch_scc1 .Lkr_new")
            A("s_sleep 1")
            A("s_branch .Lkr_lp")
            A.label(".Lkr_new")
            for g in range(8):
                A(f"s_bitcmp1_b32 s{S_TMP+3}, {g}")
                A(f"s_cbranch_scc0 .Lkr_n{g}")
                A(f"s_add_u32 s{S_TMP+4}, s{S_TMP}, {g * 65536}")
                A(f"buffer_load_dwordx4 v[{PR+4*g}:{PR+4*g+3}], v9, s[{S_PT}:{S_PT+3}], s{S_TMP+4} offen")
                A.label(f".Lkr_n{g}")
            A(f"s_mov_b32 s{S_TMP+1}, s{S_TMP+2}")
            A(f"s_cmp_lg_u32 s{S_TMP+1}, 0xff")
            A("s_cbranch_scc1 .Lkr_lp")
            if PFP == 1:
                A(f"s_cmp_ge_u32 s{S_WAVE}, 4")
                A("s_cbranch_scc1 .Lkr_w0")
                self.pf_g64(0, 512, 24576, 8)
                A("s_waitcnt vmcnt(16)")
                A("s_branch .Lkr_w1")
                A.label(".Lkr_w0")
            A("s_waitcnt vmcnt(0)")
            if PFP == 1: A.label(".Lkr_w1")
            if PFP == 2: PFW1 = 2
            vm.ops = []
        else:
            sv = list(vm.ops)
            if PFW1 == 1: self.pf_g64(0, 512, 24576, 8)
            vm.ops = sv
            if HA:
                assert PFW1 == 1
                A(f"s_cmp_lt_u32 s{S_WAVE}, 2")
                A("s_cbranch_scc1 .Lkr_nz2")
                A("s_waitcnt vmcnt(16)")
                for g in range(8):
                    for p in range(2):
                        for j in range(8):
                            A(f"v_dot2_f32_bf16 v{96+8*p+j}, v{128+8*g+4*p+j//2}, v{56 + (j & 1)}, " + ("0" if g == 0 else f"v{96+8*p+j}"))
                A("s_nop 1")
                for p in range(2):
                    A(f"ds_write_b128 v62, v[{96+8*p}:{99+8*p}] offset:{p*16384}")
                    A(f"ds_write_b128 v62, v[{100+8*p}:{103+8*p}] offset:{p*16384+16}")
                A("s_waitcnt lgkmcnt(0)")
            A.label(".Lkr_nz2")
            def rebuild():
                make_srd(A, S_PT, P_WS, WS_PART, 8 * 2048 * 512 * 2)
                make_srd(A, S_X2, P_WS, WS_X2, 2 * MB)
                make_srd(A, S_X, P_X, 0, 2 * MB)
                make_srd(A, S_MOD, P_WS, WS_MOD, 4 * MODP)
            self.poll(0, after=rebuild)
            A("s_barrier")
            self.stamp(4)
            PL = int(os.environ.get("PL", "1"))
            if PL:
                A(f"s_mul_i32 s{S_TMP}, s{S_M}, {7 * 65536}")
                A(f"s_add_u32 s{S_TMP}, s{S_TMP}, s3")
            else: A(f"s_mov_b32 s{S_TMP}, s3")
            for g in range(8):
                if HA: A(f"buffer_load_dwordx2 v[{PR+4*g+2}:{PR+4*g+3}], v11, s[{S_PT}:{S_PT+3}], s{S_TMP} offen offset:512")
                else: A(f"buffer_load_dwordx4 v[{PR+4*g}:{PR+4*g+3}], v9, s[{S_PT}:{S_PT+3}], s{S_TMP} offen {os.environ.get('PLF', '')}")
                vm.issue(("p", g))
                if g < 7: A(f"s_add_u32 s{S_TMP}, s{S_TMP}, {65536 if PL else 2048*512*2}")
        X = list(range(48, 56)); T = list(range(PR, PR + 12)); XU = list(range(96, 104))
        if HA: A("ds_read_b128 v[48:51], v63 offset:4096")
        if PFW1 == 3:
            def woff():
                A(f"s_and_b32 s{S_TMP+9}, s{S_WAVE}, 3")
                A(f"s_lshr_b32 s{S_TMP+8}, s{S_WAVE}, 2")
                A(f"s_lshl_b32 s{S_WOFF}, s{S_TMP+9}, 17")
                A(f"s_lshl_b32 s{S_TMP+11}, s{S_TMP+8}, 16")
                A(f"s_add_u32 s{S_WOFF}, s{S_WOFF}, s{S_TMP+11}")
                A(f"s_lshl_b32 s{S_TMP+11}, s{S_J}, 7")
                A(f"s_add_u32 s{S_WOFF}, s{S_WOFF}, s{S_TMP+11}")
                A(f"s_mov_b32 s{S_TMP+7}, s{S_RB}")
                A(f"s_mul_i32 s{S_RB}, s{S_TMP+9}, {RG}")
                A(f"s_lshl_b32 s{S_TMP+8}, s{S_TMP+8}, 13")
                A(f"s_add_u32 s{S_RB}, s{S_RB}, s{S_TMP+8}")
            self.w_setup(0, 512, 1024, woff)
            for st in range(4): self.dmaW(st, 24576 + st * 2048, "wn")
            A(f"s_mov_b32 s{S_RB}, s{S_TMP+7}")
        if int(os.environ.get("KRX", "0")):
            vm.wait(("p", 0)); self.stamp(25)
            vm.wait(("p", 7)); self.stamp(26)
        vm.wait("x")
        if V2 and not W0M:
            for j in range(0, 24, 2): pk(A, "v_pk_add_f32", GA + j, GA + j, GA + 88 + j)
            for q in range(3): round_multi(A, list(range(GA + 8*q, GA + 8*q + 8)), [56, 57, 58, 59], SM)
        if not W0M:
            for j in range(8): A(f"v_add_f32 v{CB+j}, 1.0, v{CB+j}")
            round_multi(A, list(range(CB, CB + 8)), [56, 57, 58, 59], SM)
        for j in range(4):
            A(f"v_lshlrev_b32 v{XU[2*j]}, 16, v{XR+j}")
            A(f"v_and_b32 v{XU[2*j+1]}, {SM}, v{XR+j}")
        if KRF:
            A("v_mov_b32 v56, 0x3f80")
            A("v_mov_b32 v57, 1.0")
            A("s_mov_b32 s50, 0x3f803f80")
        for g in range(8):
            vm.wait(("p", g))
            if KRF:
                for j in range(4 if HA else 0, 8): A(f"v_dot2_f32_bf16 v{X[j]}, v{PR+4*g+j//2}, v{56 + (j & 1)}, " + ("0" if g == 0 else f"v{X[j]}"))
            elif g == 0:
                for j in range(4):
                    A(f"v_lshlrev_b32 v{X[2*j]}, 16, v{PR+j}")
                    A(f"v_and_b32 v{X[2*j+1]}, {SM}, v{PR+j}")
            else:
                U = 136 + 8 * (g & 1)
                for j in range(4):
                    p = PR + 4 * g + j
                    A(f"v_lshlrev_b32 v{U+2*j}, 16, v{p}")
                    A(f"v_and_b32 v{U+2*j+1}, {SM}, v{p}")
                for j in range(0, 8, 2): pk(A, "v_pk_add_f32", X[j], X[j], U + j)
        if HA: A("s_waitcnt lgkmcnt(0)")
        self.stamp(23)
        if PFW1 == 2:
            A(f"s_cmp_ge_u32 s{S_WAVE}, 4")
            A("s_cbranch_scc1 .Lkr_nz3")
            self.pf_g64(0, 512, 24576, 8)
            A.label(".Lkr_nz3")
        round_multi(A, X, T[5:9], SM)
        for j in range(0, 8, 2): pk(A, "v_pk_mul_f32", X[j], X[j], GA + j)
        round_multi(A, X, T[5:9], SM)
        for j in range(0, 8, 2): pk(A, "v_pk_add_f32", X[j], X[j], XU[j])
        pack8(A, X, XR)
        rowst(XR, S_X2)
        if KRF:
            ln_pk(A, XR, X, 58, 59, 56, 57, 50, 52, 54, SM)
            round_multi(A, X, T[5:9], SM)
        else:
            for j in range(4):
                A(f"v_lshlrev_b32 v{X[2*j]}, 16, v{XR+j}")
                A(f"v_and_b32 v{X[2*j+1]}, {SM}, v{XR+j}")
            ln_rows(A, [(X, T)], SM)
        for j in range(0, 8, 2): pk(A, "v_pk_mul_f32", X[j], X[j], CB + j)
        round_multi(A, X, T[5:9], SM)
        for j in range(0, 8, 2): pk(A, "v_pk_add_f32", X[j], X[j], SB + j)
        pack8(A, X, 80)
        rowst(80, S_H)
        self.stamp(24)
        if KRF: ln_pk(A, 80, X, 58, 59, 56, 57, 50, 52, 54, SM)
        else:
            for j in range(4):
                A(f"v_lshlrev_b32 v{X[2*j]}, 16, v{80+j}")
                A(f"v_and_b32 v{X[2*j+1]}, {SM}, v{80+j}")
            ln_rows(A, [(X, T)], SM, False)
        pack8(A, X, 84)
        rowst(84, S_HN)
    def g64(self, lab, stage, K, a_off, a_size, a_rb, epi, WB, DW, nbr, next_pf, own_pf=None, rot=0, nsched=None, l2=None, split=False):
        A = self.A; vm = self.vm; lg = self.lg
        S_G = 8; S_X1 = 16; S_X2 = 20; S_MOD = 24; S_O = 28; S_ST = 36
        KW = K // 4; NCH = KW // 64; NS = NCH * 4; DG = 3
        VG = [4, 5]; AA = 16; BA = 18
        X1 = 24; X2 = 32; GB = 40
        V_PW = 48; V_PR = 49; V_GA = 51; V_SA = 52; VC = (12, 14, 54)
        ACC = 64; FR = 128
        NBG = int(os.environ.get('NBG', '3'))
        half = HP and K == 512
        frag = FG and epi == "final"
        GB2 = [28, 36] if frag else [180, 184]
        SW = S_R8 if half else S_WAVE
        CO = 16 * stage
        def tail_setup():
            if half:
                A(f"s_add_u32 s{S_R8}, s{S_WAVE}, 4")
                A(f"s_and_b32 s{S_R8}, s{S_R8}, 7")
                A(f"v_mov_b32 v{V_CT}, {CNT}")
            A(f"v_lshrrev_b32 v10, 3, v{L}")
            A(f"v_and_b32 v11, 7, v{L}")
            A(f"v_mul_u32_u24 v{V_PR}, {RS}, v10")
            A(f"v_lshl_add_u32 v{V_PR}, v11, 5, v{V_PR}")
            A(f"s_mul_i32 s{S_TMP+3}, s{SW}, {8*RS}")
            A(f"v_add_u32 v{V_PR}, s{S_TMP+3}, v{V_PR}")
            A(f"v_add_u32 v{V_PR+1}, {2*RG}, v{V_PR}")
            A(f"v_lshlrev_b32 v{V_GA}, 4, v11")
            A(f"v_lshl_add_u32 v{V_GA}, v10, 10, v{V_GA}")
            A(f"s_lshl_b32 s{S_TMP+2}, s{S_M}, 16")
            A(f"s_lshl_b32 s{S_TMP+3}, s{SW}, 13")
            A(f"s_add_u32 s{S_TMP+2}, s{S_TMP+2}, s{S_TMP+3}")
            A(f"s_lshl_b32 s{S_TMP+3}, s{S_J}, 7")
            A(f"s_add_u32 s{S_TMP+2}, s{S_TMP+2}, s{S_TMP+3}")
            if epi == "final":
                A(f"v_lshlrev_b32 v{V_SA}, 5, v11")
                make_srd(A, S_X1, P_WS, WS_X1, 2 * MB)
                make_srd(A, S_X2, P_WS, WS_X2, 2 * MB)
                make_srd(A, S_MOD, P_WS, WS_MOD, 4 * MODP)
                make_srd(A, S_O, P_OUT, 0, 2 * MB)
                A(f"buffer_load_dwordx4 v[{X1}:{X1+3}], v{V_GA}, s[{S_X1}:{S_X1+3}], s{S_TMP+2} offen"); vm.issue("e")
                A(f"buffer_load_dwordx4 v[{X2}:{X2+3}], v{V_GA}, s[{S_X2}:{S_X2+3}], s{S_TMP+2} offen"); vm.issue("e")
                A(f"s_lshl_b32 s{S_TMP+3}, s{S_J}, 8")
                A(f"s_add_u32 s{S_TMP+3}, s{S_TMP+3}, {5*2048}")
                for h4 in range(2):
                    A(f"buffer_load_dwordx4 v[{GB+4*h4}:{GB+4*h4+3}], v{V_SA}, s[{S_MOD}:{S_MOD+3}], s{S_TMP+3} offen offset:{h4*16}"); vm.issue("e")
                if V2:
                    A(f"s_add_u32 s{S_TMP+3}, s{S_TMP+3}, {MODP}")
                    for h4 in range(2):
                        A(f"buffer_load_dwordx4 v[{GB2[h4]}:{GB2[h4]+3}], v{V_SA}, s[{S_MOD}:{S_MOD+3}], s{S_TMP+3} offen offset:{h4*16}"); vm.issue("e")
            elif epi == "res":
                A(f"v_lshlrev_b32 v{V_SA}, 3, v10")
                A(f"s_lshl_b32 s{S_TMP+6}, s{S_M}, 9")
                A(f"s_lshl_b32 s{S_TMP+3}, s{SW}, 6")
                A(f"s_add_u32 s{S_TMP+6}, s{S_TMP+6}, s{S_TMP+3}")
                A(f"s_lshl_b32 s{S_TMP+3}, s{S_J}, 14")
                A(f"s_add_u32 s{S_TMP+6}, s{S_TMP+6}, s{S_TMP+3}")
                make_srd(A, S_X1, P_WS, WS_H, 2 * MB)
                make_srd(A, S_O, P_WS, WS_X1, 2 * MB)
                make_srd(A, S_ST, P_WS, WS_STAT, 2048 * 128)
                A(f"buffer_load_dwordx4 v[{X1}:{X1+3}], v{V_GA}, s[{S_X1}:{S_X1+3}], s{S_TMP+2} offen"); vm.issue("e")
            else:
                A(f"v_mov_b32 v{VC[0]}, {fhex(GK1)}")
                A(f"v_mov_b32 v{VC[1]}, {fhex(GK0)}")
                A(f"v_mov_b32 v{VC[2]}, 1.0")
                make_srd(A, S_O, P_WS, WS_H1 + 2048, 2 * MB)
        A(f"s_cmp_ge_u32 s{S_WAVE}, 4")
        A(f"s_cbranch_scc1 .L{lab}_help")
        if own_pf and PFE == 2: own_pf(NE, 99)
        A(f"v_lshrrev_b32 v7, 3, v{L}")
        A(f"v_and_b32 v8, 7, v{L}")
        A("v_lshrrev_b32 v9, 1, v7")
        A("v_xor_b32 v9, v8, v9")
        A(f"s_movk_i32 s{S_TMP}, {a_rb}")
        A(f"v_mul_lo_u32 v10, v7, s{S_TMP}")
        A(f"v_lshl_add_u32 v{VG[0]}, v9, 4, v10")
        A("v_xor_b32 v9, 4, v9")
        A(f"v_lshl_add_u32 v{VG[1]}, v9, 4, v10")
        A(f"s_mul_i32 s{S_GOFF}, s{S_M}, {64*a_rb}")
        A(f"s_mul_i32 s{S_TMP}, s{S_WAVE}, {KW*128 if frag else KW*2}")
        if frag: A(f"v_lshlrev_b32 v{VG[0]}, 4, v{L}")
        A(f"s_add_u32 s{S_GOFF}, s{S_GOFF}, s{S_TMP}")
        if epi == "res":
            A(f"s_lshl_b32 s{S_TMP}, s{S_WAVE}, 2")
            A(f"s_lshr_b32 s{S_TMP+1}, 0x4031, s{S_TMP}")
            A(f"s_and_b32 s{S_TMP+1}, s{S_TMP+1}, 15")
            A(f"s_lshl_b32 s{S_TMP+1}, s{S_TMP+1}, 10")
            A(f"s_add_u32 s{S_GOFF}, s{S_GOFF}, s{S_TMP+1}")
        make_srd(A, S_G, P_WS, a_off, a_size)
        A(f"v_lshrrev_b32 v7, 5, v{L}")
        A(f"v_bfe_u32 v8, v{L}, 4, 1")
        A(f"v_bfe_u32 v9, v{L}, 2, 2")
        A(f"v_and_b32 v10, 1, v{L}")
        A(f"v_bfe_u32 v11, v{L}, 1, 1")
        A("v_lshl_or_b32 v10, v10, 1, v11")
        A("v_lshlrev_b32 v10, 3, v10")
        A("v_lshl_add_u32 v10, v8, 5, v10")
        A("v_lshl_add_u32 v11, v7, 3, v9")
        A("v_lshrrev_b32 v12, 1, v9")
        for nb in range(2):
            A(f"v_xor_b32 v13, {nb}, v12")
            A("v_lshl_add_u32 v13, v13, 6, v10")
            A("v_lshl_add_u32 v13, v11, 7, v13")
            A(f"v_add_u32 v{AA+nb}, s{S_RB}, v13")
        A(f"v_and_b32 v8, 31, v{L}")
        A("v_bfe_u32 v9, v8, 1, 3")
        for ks in range(4):
            A(f"v_or_b32 v10, {2*ks}, v7")
            A("v_xor_b32 v10, v10, v9")
            A("v_lshlrev_b32 v10, 4, v10")
            A("v_lshl_add_u32 v10, v8, 7, v10")
            A(f"v_add_u32 v{BA+ks}, s{S_RB}, v10")
        A(f"v_mul_u32_u24 v{V_PW}, {RS}, v8")
        A(f"v_lshl_add_u32 v{V_PW}, v7, 5, v{V_PW}")
        A(f"v_add_u32 v{V_PW}, s{S_RB}, v{V_PW}")
        tail_setup()
        if frag:
            if FGR: NBG = FGR + 1
            def readsw(step):
                buf = FR + (step % NBG) * 8
                for nb in range(2):
                    for q in range(2):
                        A(f"ds_read_b64_tr_b16 v[{buf+nb*4+q*2}:{buf+nb*4+q*2+1}], v{AA+nb} offset:{fg_slot(step) + q * 512}")
                        lg.issue(("f", step))
            if FGR:
                for s0 in range(3): readsw(s0)
            self.pf_fg(11 + FGE, FGP, tag="w")
            for s0 in range(FGR):
                lg.wait(("f", s0))
                if s0 + 3 < FGR: readsw(s0 + 3)
                if s0 + FGP < NS: self.dmaW(s0 + FGP, fg_slot(s0))
        A("s_barrier")
        self.stamp(1 + 4 * stage + 3)
        def dmaG(ch):
            base = (ch % DG) * 8192
            for i in range(8):
                A(f"s_add_u32 m0, s{S_RB}, {base + i * 1024}")
                A(f"s_add_u32 s{S_TMP}, s{S_GOFF}, {i * 8 * a_rb + ch * 128}")
                A(f"buffer_load_dwordx4 v{VG[i & 1]}, s[{S_G}:{S_G+3}], s{S_TMP} offen lds")
                vm.issue(("g", ch))
        if half:
            HB = 32 * RS
            def dmaGh(h, ch):
                for i in range(4):
                    A(f"s_add_u32 m0, s{S_RB}, {h * HB + ch * 4096 + i * 1024}")
                    A(f"s_add_u32 s{S_TMP}, s{S_GOFF}, {(4 * h + i) * 8 * a_rb + ch * 128}")
                    A(f"buffer_load_dwordx4 v{VG[i & 1]}, s[{S_G}:{S_G+3}], s{S_TMP} offen lds")
                    vm.issue(("g", h, ch))
            WF = 128; BFR = 192
            def readsh(h, step):
                ch, ks = step // 4, step % 4
                if h == 0:
                    for nb in range(2):
                        for q in range(2):
                            d = WF + step * 8 + nb * 4 + q * 2
                            A(f"ds_read_b64_tr_b16 v[{d}:{d+1}], v{AA+nb} offset:{WB + step * 2048 + q * 512}")
                            lg.issue(("f", step))
                d = BFR + step * 4
                A(f"ds_read_b128 v[{d}:{d+3}], v{BA+ks} offset:{h * HB + ch * 4096}")
                lg.issue(("f", step))
            dmaGh(0, 0); dmaGh(0, 1)
            if not split: dmaGh(1, 0); dmaGh(1, 1)
            for h in range(2):
                if h == 1 and split:
                    self.lds_spin(f".L{lab}_rb", 12, 1, False, V_CT)
                    dmaGh(1, 0); dmaGh(1, 1)
                PD = 2 if h == 0 else 4
                for s0 in range(PD):
                    vm.wait(("g", h, 0)); readsh(h, s0)
                for st in range(8):
                    lg.wait(("f", st))
                    with Cap(A) as cp:
                        if st + PD < 8:
                            vm.wait(("g", h, (st + PD) // 4)); readsh(h, st + PD)
                        if h == HPH and nsched and st in nsched: next_pf(*nsched[st])
                    mf = []
                    for nb in range(2):
                        acc = ACC + (nb * 2 + h) * 16
                        c = "0" if st == 0 else f"v[{acc}:{acc+15}]"
                        mf.append(f"v_mfma_f32_32x32x16_bf16 v[{acc}:{acc+15}], v[{WF+st*8+nb*4}:{WF+st*8+nb*4+3}], v[{BFR+st*4}:{BFR+st*4+3}], {c}")
                    interleave(A, mf, cp.out)
                A("s_nop 7")
                A("s_nop 3")
                for nb in range(2):
                    tl = nb * 2 + h
                    for r4 in range(4):
                        A(f"ds_write_b128 v{V_PW}, v[{ACC+tl*16+r4*4}:{ACC+tl*16+r4*4+3}] offset:{h*HB + (nb*8 + (r4 >> 1)*4 + (r4 & 1))*16}")
                A("s_waitcnt lgkmcnt(0)")
                self.lds_inc(CO + 4 * h, V_CT)
                if h == 0 and HPH == 2 and nsched:
                    for st in range(8): next_pf(*nsched[st])
            vm.wait("e")
            self.lds_spin(f".L{lab}_sb", CO + 4, 4, False, V_CT)
            A(f"s_branch .L{lab}_join")
        elif frag:
            AR = 256 - 8 * FGD
            def aload(st):
                d = AR + (st % FGD) * 8
                for rb in range(2):
                    A(f"buffer_load_dwordx4 v[{d+4*rb}:{d+4*rb+3}], v{VG[0]}, s[{S_G}:{S_G+3}], s{S_GOFF} offen offset:{(st & 1) * 2048 + rb * 1024}")
                    vm.issue(("g", st))
                if st & 1: A(f"s_add_u32 s{S_GOFF}, s{S_GOFF}, 4096")
            reads = readsw
            assert FR + NBG * 8 <= AR
            for st in range(FGD): aload(st)
            if not FGR:
                for s0 in range(NBG - 1): reads(s0)
            for st in range(NS):
                lg.wait(("f", st))
                if FGR: lg.wait(("f", st + NBG - 4))
                vm.wait(("g", st))
                with Cap(A) as cp:
                    if st >= 1 and st - 1 + FGD < NS: aload(st - 1 + FGD)
                    if FGR:
                        s_ = st + NBG - 4
                        if s_ >= FGR and s_ + FGP < NS: self.dmaW(s_ + FGP, fg_slot(s_))
                    elif st + FGP < NS: self.dmaW(st + FGP, fg_slot(st))
                    if st + NBG - 1 < NS:
                        vm.wait(("w", st + NBG - 1)); reads(st + NBG - 1)
                buf = FR + (st % NBG) * 8; ab = AR + (st % FGD) * 8
                mf = []
                for nb in range(2):
                    for rb in range(2):
                        acc = ACC + (nb * 2 + rb) * 16
                        c = "0" if st == 0 else f"v[{acc}:{acc+15}]"
                        mf.append(f"v_mfma_f32_32x32x16_bf16 v[{acc}:{acc+15}], v[{buf+nb*4}:{buf+nb*4+3}], v[{ab+rb*4}:{ab+rb*4+3}], {c}")
                interleave(A, mf, cp.out)
            vm.wait("e")
            self.stamp(27)
            A("s_nop 7")
            A("s_nop 1")
            for tl in range(4):
                nb, rb = tl >> 1, tl & 1
                for r4 in range(4):
                    A(f"ds_write_b128 v{V_PW}, v[{ACC+tl*16+r4*4}:{ACC+tl*16+r4*4+3}] offset:{rb*32*RS + (nb*8 + (r4 >> 1)*4 + (r4 & 1))*16}")
                if tl == 1: A("s_waitcnt lgkmcnt(0)")
            A("s_waitcnt lgkmcnt(0)")
            A(f"s_branch .L{lab}_join")
        else:
            for ch in range(min(DG, NCH)): dmaG(ch)
            def reads(step):
                ch, ks = step // 4, step % 4
                buf = FR + (step % NBG) * 16
                for nb in range(2):
                    for q in range(2):
                        A(f"ds_read_b64_tr_b16 v[{buf+nb*4+q*2}:{buf+nb*4+q*2+1}], v{AA+nb} offset:{WB + ((step + rot) % DW) * 2048 + q * 512}")
                        lg.issue(("f", step))
                for rb in range(2):
                    A(f"ds_read_b128 v[{buf+8+rb*4}:{buf+8+rb*4+3}], v{BA+ks} offset:{(ch % DG) * 8192 + rb * 4096}")
                    lg.issue(("f", step))
            def need(step):
                vm.wait(("w", step)); vm.wait(("g", step // 4))
            for s0 in range(NBG - 1):
                need(s0); reads(s0)
            for st in range(NS):
                lg.wait(("f", st))
                with Cap(A) as cp:
                    if st + DW < NS: self.dmaW(st + DW, WB + ((st + rot) % DW) * 2048)
                    if st % 4 == 3 and st // 4 + DG < NCH: dmaG(st // 4 + DG)
                    if st + NBG - 1 < NS:
                        need(st + NBG - 1); reads(st + NBG - 1)
                    if st + DW >= NS and PFE == 3 and nsched and st in nsched: next_pf(*nsched[st])
                buf = FR + (st % NBG) * 16
                mf = []
                for nb in range(2):
                    for rb in range(2):
                        acc = ACC + (nb * 2 + rb) * 16
                        c = "0" if st == 0 else f"v[{acc}:{acc+15}]"
                        mf.append(f"v_mfma_f32_32x32x16_bf16 v[{acc}:{acc+15}], v[{buf+nb*4}:{buf+nb*4+3}], v[{buf+8+rb*4}:{buf+8+rb*4+3}], {c}")
                interleave(A, mf, cp.out)
            vm.wait("e")
            if not int(os.environ.get("KRX", "0")): self.stamp({1: 25, 2: 26, 4: 27}[stage])
            A("s_nop 7")
            A("s_nop 1")
            for tl in range(4):
                nb, rb = tl >> 1, tl & 1
                for r4 in range(4):
                    A(f"ds_write_b128 v{V_PW}, v[{ACC+tl*16+r4*4}:{ACC+tl*16+r4*4+3}] offset:{rb*32*RS + (nb*8 + (r4 >> 1)*4 + (r4 & 1))*16}")
                if tl == 1: A("s_waitcnt lgkmcnt(0)")
            if next_pf and PFE == 1: next_pf()
            A("s_waitcnt lgkmcnt(0)")
            A(f"s_branch .L{lab}_join")
        A.label(f".L{lab}_help")
        sv = list(vm.ops)
        tail_setup()
        vm.ops = sv
        if frag and FGL:
            nl = (28 - FGL) * 2
            A(f"s_mul_i32 s{S_GOFF}, s{S_M}, {64*a_rb}")
            A(f"s_sub_u32 s{S_TMP}, s{S_WAVE}, 4")
            A(f"s_mul_i32 s{S_TMP}, s{S_TMP}, {KW*128}")
            A(f"s_add_u32 s{S_GOFF}, s{S_GOFF}, s{S_TMP}")
            A(f"s_lshl_b32 s{S_TMP}, s{S_J}, 7")
            A(f"s_add_u32 s{S_GOFF}, s{S_GOFF}, s{S_TMP}")
            A(f"s_add_u32 s{S_GOFF}, s{S_GOFF}, {FGL * 2048}")
            A(f"v_min_u32 v4, {nl - 1}, v{L}")
            A("v_lshlrev_b32 v4, 10, v4")
        self.poll(stage, nbr)
        if frag and FGL: make_srd(A, S_G, P_WS, a_off, a_size)
        A("s_barrier")
        self.stamp(1 + 4 * stage + 3)
        n = sum(self.l2pf(*x) for x in l2) if l2 else 0
        if frag and FGL:
            A(f"buffer_load_dword v5, v4, s[{S_G}:{S_G+3}], s{S_GOFF} offen")
            n += 1
        A(f"s_waitcnt vmcnt({n})")
        if half: self.lds_spin(f".L{lab}_sa", CO, 4, True, V_CT)
        A.label(f".L{lab}_join")
        if not half: A("s_barrier")
        for p in range(4):
            for h in range(2):
                d = ACC + p * 16 + h * 4
                A(f"ds_read_b128 v[{d}:{d+3}], v{V_PR + (p >> 1)} offset:{(p & 1)*RG + h*16}")
        xs = list(range(ACC, ACC + 8)); tp = list(range(72, 80)); t8 = list(range(88, 96))
        b = ACC
        def unpack(src, dst):
            for k in range(4):
                A(f"v_lshlrev_b32 v{dst[2*k]}, 16, v{src+k}")
                A(f"v_and_b32 v{dst[2*k+1]}, {SM}, v{src+k}")
        if epi != "gelu": unpack(X1, tp)
        if epi == "final":
            unpack(X2, list(range(104, 112)))
            if V2:
                for k in range(0, 8, 2): pk(A, "v_pk_add_f32", GB + k, GB + k, GB2[k >> 2] + (k & 3))
                round_multi(A, list(range(GB, GB + 8)), t8, SM)
        A("s_waitcnt lgkmcnt(4)")
        for e in range(0, 8, 2): pk(A, "v_pk_add_f32", b + e, b + e, b + 16 + e)
        A("s_waitcnt lgkmcnt(0)")
        for e in range(0, 8, 2): pk(A, "v_pk_add_f32", b + 32 + e, b + 32 + e, b + 48 + e)
        for e in range(0, 8, 2): pk(A, "v_pk_add_f32", b + e, b + e, b + 32 + e)
        round_multi(A, xs, t8, SM)
        def store():
            for k in range(4): A(f"v_cvt_pk_bf16_f32 v{56+k}, v{xs[2*k]}, v{xs[2*k+1]}")
            A(f"buffer_store_dwordx4 v[56:59], v{V_GA}, s[{S_O}:{S_O+3}], s{S_TMP+2} offen sc1")
        if epi == "gelu":
            X = xs; T = tp
            for e in range(0, 8, 2): pk(A, "v_pk_mul_f32", T[e], X[e], X[e])
            for e in range(0, 8, 2): pk(A, "v_pk_fma_f32", T[e], T[e], VC[0], VC[1], "op_sel_hi:[1,0,0]")
            for e in range(0, 8, 2): pk(A, "v_pk_mul_f32", T[e], T[e], X[e])
            for e in range(8): A(f"v_exp_f32 v{T[e]}, v{T[e]}")
            for e in range(0, 8, 2): pk(A, "v_pk_add_f32", T[e], T[e], VC[2], None, "op_sel_hi:[1,0]")
            for e in range(8): A(f"v_rcp_f32 v{T[e]}, v{T[e]}")
            A("s_nop 0")
            for e in range(0, 8, 2): pk(A, "v_pk_mul_f32", X[e], X[e], T[e])
            store()
        elif epi == "res":
            for k in range(0, 8, 2): pk(A, "v_pk_add_f32", xs[k], xs[k], tp[k])
            store()
            unpack(56, xs)
            X = xs
            pk(A, "v_pk_mul_f32", tp[0], X[0], X[0])
            pk(A, "v_pk_add_f32", tp[2], X[0], X[2])
            for e in range(2, 8, 2):
                pk(A, "v_pk_fma_f32", tp[0], X[e], X[e], tp[0])
                if e >= 4: pk(A, "v_pk_add_f32", tp[2], tp[2], X[e])
            A(f"v_add_f32 v20, v{tp[2]}, v{tp[3]}")
            A(f"v_add_f32 v21, v{tp[0]}, v{tp[1]}")
            A("s_nop 1")
            for dpp in ("quad_perm:[1,0,3,2]", "quad_perm:[2,3,0,1]", "row_half_mirror"):
                for v in (20, 21):
                    A(f"v_add_f32_dpp v{v}, v{v}, v{v} {dpp} row_mask:0xf bank_mask:0xf")
                A("s_nop 1")
            A("v_and_b32 v10, 7, v1")
            A("v_cmp_eq_u32 vcc, 0, v10")
            A("s_and_saveexec_b64 s[78:79], vcc")
            A(f"buffer_store_dwordx2 v[20:21], v{V_SA}, s[{S_ST}:{S_ST+3}], s{S_TMP+6} offen sc1")
            A("s_mov_b64 exec, s[78:79]")
        else:
            for k in range(0, 8, 2): pk(A, "v_pk_add_f32", xs[k], xs[k], tp[k])
            round_multi(A, xs, t8, SM)
            for k in range(0, 8, 2): pk(A, "v_pk_mul_f32", xs[k], xs[k], GB + k)
            round_multi(A, xs, t8, SM)
            for k in range(0, 8, 2): pk(A, "v_pk_add_f32", xs[k], xs[k], 104 + k)
            store()
    def k5(self, stage, next_pf, own_pf=None):
        A = self.A; vm = self.vm; lg = self.lg
        S_A = 8; S_O = 20; S_ST = 24; S_CS = 28
        VB = [16, 28]; AA = 24; ACC = 64; FQ = 128
        D = K5D
        NB5 = int(os.environ.get('NB5', '3'))
        A(f"s_cmp_lt_u32 s{S_WAVE}, 4")
        A("s_cbranch_scc1 .Lk5_main")
        A(f"s_cmp_eq_u32 s{S_J}, 7")
        A("s_cbranch_scc1 .Lk5_h7")
        if CS6:
            A(f"s_cmp_ge_u32 s{S_WAVE}, 6")
            A("s_cbranch_scc1 .Lk5_cse")
            make_srd(A, 8, P_WS, WS_CS2, 8 * 1792 * 8)
            A(f"s_sub_u32 s48, s{S_WAVE}, 4")
            A(f"s_lshl_b32 s49, s{S_J}, 11")
            A("s_lshl_b32 s50, s48, 10")
            A("s_add_u32 s49, s49, s50")
            A("v_lshlrev_b32 v4, 4, v1")
            A(f"s_mul_i32 s50, s48, {2 * RG}")
            A("s_add_u32 s50, s50, 16384")
            A("v_lshrrev_b32 v5, 5, v1")
            A(f"v_mul_u32_u24 v5, {RG}, v5")
            A("v_and_b32 v6, 31, v1")
            A("v_lshl_add_u32 v5, v6, 3, v5")
            A("v_add_u32 v5, s50, v5")
            A("s_mov_b32 s52, 0")
            A.label(".Lk5_csl")
            A("s_mov_b32 s51, s49")
            for r in range(8):
                A(f"buffer_load_dwordx4 v[{64+4*r}:{67+4*r}], v4, s[8:11], s51 offen sc1")
                if r < 7: A(f"s_add_u32 s51, s51, {1792 * 8}")
            A("s_add_u32 s52, s52, 1")
            A("v_mov_b32 v6, 0")
            A("s_waitcnt vmcnt(0)")
            for r in range(8):
                A(f"v_xor_b32 v{65+4*r}, s100, v{65+4*r}")
                A(f"v_xor_b32 v{67+4*r}, s100, v{67+4*r}")
                A(f"v_or3_b32 v6, v6, v{65+4*r}, v{67+4*r}")
            A("v_cmp_ne_u32 vcc, 0, v6")
            A("s_cmp_lt_u32 s52, 0x40000")
            A("s_cbranch_scc0 .Lk5_csd")
            A("s_cbranch_vccnz .Lk5_csl")
            A.label(".Lk5_csd")
            for st in (4, 8, 16):
                for r in range(0, 32, 2 * st):
                    A(f"v_add_f32 v{64+r}, v{64+r}, v{64+r+st}")
                    A(f"v_add_f32 v{66+r}, v{66+r}, v{66+r+st}")
            A("v_mov_b32 v65, v66")
            A("ds_write_b64 v5, v[64:65]")
            A("s_waitcnt lgkmcnt(0)")
            A.label(".Lk5_cse")
        self.poll(stage)
        A("s_barrier")
        A("s_barrier")
        if FG and FGE and FGH:
            def woff():
                A(f"s_sub_u32 s{S_TMP}, s{S_WAVE}, 4")
                A(f"s_mul_i32 s{S_WOFF}, s{S_TMP}, {448 * 1024}")
                A(f"s_lshl_b32 s{S_TMP+11}, s{S_J}, 7")
                A(f"s_add_u32 s{S_WOFF}, s{S_WOFF}, s{S_TMP+11}")
                A(f"s_add_u32 s{S_WOFF}, s{S_WOFF}, {11 * 16384}")
                A(f"s_mul_i32 s{S_RB}, s{S_TMP}, {RG}")
            sv_ = list(vm.ops); wrb_ = self.wrb
            self.w_setup(3, 1792, 1024, woff)
            A("v_and_b32 v37, 3, v1")
            A(f"v_mul_u32_u24 v37, {RG}, v37")
            A("s_sleep 60")
            A.label(".Lk5_tgh")
            A("s_sleep 2")
            A(f"ds_read_b64 v[38:39], v37 offset:{16384 + 1024}")
            A("s_waitcnt lgkmcnt(0)")
            A("v_xor_b32 v38, s100, v38")
            A("v_xor_b32 v39, s101, v39")
            A("v_or_b32 v38, v38, v39")
            A("v_cmp_ne_u32 vcc, 0, v38")
            A("s_nop 0")
            A("s_cbranch_vccnz .Lk5_tgh")
            for st in range(11, 11 + FGE): self.dmaW(st, fg_slot(st), "wn")
            A(f"s_mul_i32 s{S_RB}, s{S_WAVE}, {RG}")
            vm.ops = sv_; self.wrb = wrb_
        A.label(".Lk5_h7")
        if L2PF & 4: self.l2pf(3, 1792 * 1024)
        A("s_branch .Lk5_end")
        A.label(".Lk5_main")
        A(f"s_cmp_eq_u32 s{S_J}, 7")
        A("s_cbranch_scc1 .Lk5_pf")
        if own_pf and PFE == 2: own_pf(NE, 99)
        make_srd(A, S_A, P_WS, WS_X1, 2 * MB)
        make_srd(A, S_ST, P_WS, WS_STAT, 2048 * 128)
        if CS6: pass
        elif not CS5: make_srd(A, S_CS, P_WS, WS_CS, 2 * CSP)
        else: A(f"s_mov_b32 s{S_CS}, 0x3f803f80")
        make_srd(A, S_O, P_WS, WS_G, 2048 * 3584)
        A(f"v_lshlrev_b32 v4, 4, v{L}")
        A(f"s_lshl_b32 s{S_TMP}, s{S_M}, 16")
        A(f"s_lshl_b32 s{S_TMP+1}, s{S_WAVE}, 14")
        A(f"s_add_u32 s{S_TMP}, s{S_TMP}, s{S_TMP+1}")
        A(f"s_lshl_b32 s{S_TMP+6}, s{S_J}, 9")
        A(f"s_lshl_b32 s{S_TMP+2}, s{S_WAVE}, 7")
        A(f"s_add_u32 s{S_TMP+6}, s{S_TMP+6}, s{S_TMP+2}")
        A(f"v_lshrrev_b32 v5, 5, v{L}")
        A(f"v_bfe_u32 v7, v{L}, 4, 1")
        A(f"v_bfe_u32 v8, v{L}, 2, 2")
        A(f"v_and_b32 v9, 1, v{L}")
        A(f"v_bfe_u32 v10, v{L}, 1, 1")
        A("v_lshl_or_b32 v9, v9, 1, v10")
        A("v_lshlrev_b32 v9, 3, v9")
        A("v_lshl_add_u32 v9, v7, 5, v9")
        A("v_lshl_add_u32 v10, v5, 3, v8")
        A("v_lshrrev_b32 v11, 1, v8")
        for nb in range(2):
            A(f"v_xor_b32 v12, {nb}, v11")
            A("v_lshl_add_u32 v12, v12, 6, v9")
            A("v_lshl_add_u32 v12, v10, 7, v12")
            A(f"v_add_u32 v{AA+nb}, s{S_RB}, v12")
        A(f"v_and_b32 v13, 31, v{L}")
        A("v_lshrrev_b32 v7, 4, v13")
        A(f"v_mul_u32_u24 v7, {RG // 1024}, v7")
        A("v_and_b32 v8, 15, v13")
        A("v_add_u32 v7, v7, v8")
        for j in range(8):
            A(f"v_or_b32 v8, {2*j}, v5")
            A("v_xor_b32 v8, v8, v13")
            A("v_and_b32 v8, 15, v8")
            A("v_lshlrev_b32 v8, 4, v8")
            A(f"v_lshl_add_u32 v{VB[0]+j}, v7, 10, v8")
            A(f"v_add_u32 v{VB[1]+j}, {2*RG}, v{VB[0]+j}")
        ST = 192; CS = 224
        A("v_lshlrev_b32 v42, 5, v5")
        if CS6:
            A(f"s_add_u32 s{S_TMP+3}, s{S_RB}, 16384")
            A(f"v_add_u32 v42, s{S_TMP+3}, v42")
        if CS5:
            A(f"s_add_u32 s{S_TMP+3}, s{S_RB}, 16384")
            A(f"v_add_u32 v42, s{S_TMP+3}, v42")
            A("v_and_b32 v7, 0x13, v13")
            A("v_bfe_u32 v8, v13, 2, 1")
            A("v_lshl_or_b32 v7, v8, 3, v7")
            A("v_bfe_u32 v8, v13, 3, 1")
            A("v_lshl_or_b32 v7, v8, 2, v7")
            A("v_lshlrev_b32 v7, 2, v7")
            A(f"v_add_u32 v43, s{S_TMP+3}, v7")
        C2 = [176, 184, 200, 216]
        def csloads():
            A(f"s_lshl_b32 s{S_TMP+2}, s{S_TMP+6}, 1")
            for part in range(2 if V2 else 1):
                for q in range(4):
                    for h4 in range(2):
                        d = (CS + q * 8 if part == 0 else C2[q]) + 4 * h4
                        A(f"buffer_load_dwordx4 v[{d}:{d+3}], v42, s[{S_CS}:{S_CS+3}], s{S_TMP+2} offen offset:{(16*q+4*h4)*4}"); vm.issue("st")
                A(f"s_add_u32 s{S_TMP+2}, s{S_TMP+2}, {CSP}")
        VS = 36
        A("v_and_b32 v7, 7, v13")
        A(f"s_add_u32 s{S_TMP+3}, s{S_RB}, {K5RB}")
        for j in range(4):
            A(f"v_or_b32 v14, {2*j}, v5")
            A("v_xor_b32 v14, v14, v7")
            A("v_lshlrev_b32 v14, 4, v14")
            A("v_lshl_add_u32 v14, v13, 7, v14")
            A(f"v_add_u32 v{VS+j}, s{S_TMP+3}, v14")
        A(f"v_lshrrev_b32 v7, 3, v{L}")
        A(f"v_and_b32 v14, 7, v{L}")
        A(f"v_xor_b32 v{VS+4}, v14, v7")
        A(f"v_lshlrev_b32 v{VS+4}, 4, v{VS+4}")
        A(f"v_lshl_add_u32 v{VS+4}, v7, 7, v{VS+4}")
        A(f"v_add_u32 v{VS+4}, s{S_TMP+3}, v{VS+4}")
        A(f"s_movk_i32 s{S_TMP+2}, 3584")
        A(f"v_mul_lo_u32 v7, v7, s{S_TMP+2}")
        A(f"v_lshl_add_u32 v{VS+5}, v14, 4, v7")
        A(f"s_mul_i32 s{S_TMP+4}, s{S_M}, {64*3584}")
        if FG:
            A(f"s_lshl_b32 s{S_TMP+5}, s{S_TMP+6}, 6")
            A(f"s_add_u32 s{S_TMP+4}, s{S_TMP+4}, s{S_TMP+5}")
            A(f"s_add_u32 s{S_TMP+5}, s{S_TMP+4}, 4096")
        else:
            A(f"s_add_u32 s{S_TMP+4}, s{S_TMP+4}, s{S_TMP+6}")
            A(f"s_add_u32 s{S_TMP+5}, s{S_TMP+4}, {32*3584}")
        A("v_lshlrev_b32 v7, 3, v13")
        A("v_lshl_add_u32 v7, v5, 16, v7")
        A(f"s_lshl_b32 s{S_TMP+7}, s{S_M}, 9")
        A("s_barrier")
        self.stamp(1 + 4 * stage + 3)
        for i in range(16):
            t = 8 + (i & 1)
            A(f"v_xor_b32 v{t}, {i << 4}, v4")
            A(f"s_add_u32 m0, s{S_RB}, {i * 1024}")
            A(f"s_add_u32 s{S_TMP+2}, s{S_TMP}, {i * 1024}")
            A(f"buffer_load_dwordx4 v{t}, s[{S_A}:{S_A+3}], s{S_TMP+2} offen lds")
            vm.issue("act")
        for q in range(4):
            A(f"s_add_u32 s{S_TMP+3}, s{S_TMP+7}, {q*16384}")
            for rb in range(2):
                A(f"buffer_load_dwordx2 v[{ST+16*rb+2*q}:{ST+16*rb+2*q+1}], v7, s[{S_ST}:{S_ST+3}], s{S_TMP+3} offen offset:{rb*256}"); vm.issue("st")
        if CS6:
            for q in range(4):
                for h4 in range(2):
                    d = CS + q * 8 + 4 * h4
                    A(f"ds_read_b128 v[{d}:{d+3}], v42 offset:{(16*q+4*h4)*4}")
        vm.wait("act")
        if CS6: A("s_waitcnt lgkmcnt(0)")
        A("s_barrier")
        self.stamp(29)
        def reads(step):
            buf = FQ + (step % NB5) * 16
            for nb in range(2):
                for q in range(2):
                    A(f"ds_read_b64_tr_b16 v[{buf+nb*4+q*2}:{buf+nb*4+q*2+1}], v{AA+nb} offset:{K5RB + (step % D) * 2048 + q * 512}")
                    lg.issue(("f", step))
            for rb in range(2):
                A(f"ds_read_b128 v[{buf+8+rb*4}:{buf+8+rb*4+3}], v{VB[rb] + (step & 7)} offset:{(step >> 3) * 256}")
                lg.issue(("f", step))
        PKC = [[44, 46, 48, 50], [52, 54, 56, 58]]
        E = []
        for stg in range(17):
            for rb in range(2):
                b = ST + 16 * rb; c = PKC[rb]
                E.append([f"v_add_f32 v{b}, v{b}, v{b+2}", f"v_add_f32 v{b+1}, v{b+1}, v{b+3}",
                          f"v_add_f32 v{b+4}, v{b+4}, v{b+6}", f"v_add_f32 v{b+5}, v{b+5}, v{b+7}",
                          f"v_add_f32 v{b}, v{b}, v{b+4}", f"v_add_f32 v{b+1}, v{b+1}, v{b+5}",
                          f"v_mov_b32 v{b+2}, v{b}", f"v_mov_b32 v{b+3}, v{b+1}", "s_nop 1",
                          f"v_permlane32_swap_b32 v{b}, v{b+2}", f"v_permlane32_swap_b32 v{b+1}, v{b+3}", "s_nop 1",
                          f"v_add_f32 v{b}, v{b}, v{b+2}", f"v_add_f32 v{b+1}, v{b+1}, v{b+3}",
                          f"v_mul_f32 v{c[0]}, {fhex(-1/512)}, v{b}", f"v_mul_f32 v{b+1}, {fhex(1/512)}, v{b+1}",
                          f"v_fma_f32 v{b+1}, -v{c[0]}, v{c[0]}, v{b+1}"][stg])
        for stg in range(9):
            for rb in range(2):
                b = ST + 16 * rb; c = PKC[rb]
                E.append([f"v_max_f32 v{b+1}, 0, v{b+1}", f"v_add_f32 v{b+1}, {fhex(1e-5)}, v{b+1}",
                          f"v_rsq_f32 v{b+2}, v{b+1}", f"v_sqrt_f32 v{c[3]}, v{b+1}", "s_nop 0",
                          f"v_mul_f32 v{c[2]}, {fhex(GK0)}, v{b+2}", f"v_mul_f32 v{c[1]}, v{b+2}, v{b+2}",
                          f"v_mul_f32 v{c[1]}, v{c[1]}, v{b+2}", f"v_mul_f32 v{c[1]}, {fhex(GK1)}, v{c[1]}"][stg])
        if V2 and not CS5 and not CS6:
            for q in range(4):
                for e in range(8): E.append(f"v_add_f32 v{CS+8*q+e}, v{CS+8*q+e}, v{C2[q]+e}")
        for s0 in range(NB5 - 1):
            vm.wait(("w", s0)); reads(s0)
        k = 0
        for ks in range(32):
            lg.wait(("f", ks))
            with Cap(A) as cp:
                if ks + NB5 - 1 < 32:
                    vm.wait(("w", ks + NB5 - 1)); reads(ks + NB5 - 1)
                if ks + D < 32: self.dmaW(ks + D, K5RB + (ks % D) * 2048)
                elif FG: next_pf(ks - 21, ks - 20)
                elif PFE == 3 and ks == 21: next_pf(0, 1)
                elif PFE == 3 and ks >= 26: next_pf(ks - 25, ks - 24)
                if ks == 1 and not CS5 and not CS6: csloads()
                if CS5:
                    bf_ = FQ + (ks % NB5) * 16
                    dl = [f"v_dot2_f32_bf16 v{176+nb}, v{bf_+nb*4+j}, s{S_CS}, " + ("0" if ks == 0 and j == 0 else f"v{176+nb}") for j in range(4) for nb in range(2)]
                    if ks < 31:
                        for d_ in dl: A(d_)
                    else:
                        A("v_mov_b32 v178, v176")
                        A("v_mov_b32 v179, v177")
                        A("s_nop 1")
                        A("v_permlane32_swap_b32 v176, v178")
                        A("v_permlane32_swap_b32 v177, v179")
                        A("s_nop 1")
                        A("v_add_f32 v176, v176, v178")
                        A("v_add_f32 v177, v177, v179")
                        A("ds_write_b32 v43, v176")
                        A("ds_write_b32 v43, v177 offset:128")
                        A("s_waitcnt lgkmcnt(0)")
                        for q in range(4):
                            for h4 in range(2):
                                d = CS + q * 8 + 4 * h4
                                A(f"ds_read_b128 v[{d}:{d+3}], v42 offset:{(16*q+4*h4)*4}")
                if 14 <= ks < 28:
                    if ks == 14: vm.wait("st")
                    upto = len(E) * (ks - 13) // 14
                    while k < upto: A(E[k]); k += 1
            buf = FQ + (ks % NB5) * 16
            mf = []
            for nb in range(2):
                for rb in range(2):
                    acc = ACC + (nb * 2 + rb) * 16
                    c = "0" if ks == 0 else f"v[{acc}:{acc+15}]"
                    mf.append(f"v_mfma_f32_32x32x16_bf16 v[{acc}:{acc+15}], v[{buf+nb*4}:{buf+nb*4+3}], v[{buf+8+rb*4}:{buf+8+rb*4+3}], {c}")
            if CS5 and ks == 31:
                for d_ in dl: A(d_)
                A("s_nop 1")
            interleave(A, mf, cp.out)
        if CS5: A("s_waitcnt lgkmcnt(0)")
        if FG and FGE:
            A(f"s_add_u32 s{S_TMP+3}, s{S_RB}, {16384 + 1024}")
            A(f"v_mov_b32 v36, s{S_TMP+3}")
            A("v_mov_b32 v38, s100")
            A("v_mov_b32 v39, s101")
            A("ds_write_b64 v36, v[38:39]")
            A("v_and_b32 v37, 3, v1")
            A(f"v_mul_u32_u24 v37, {RG}, v37")
        self.stamp(28)
        if PFE == 1: next_pf()
        else:
            A("s_nop 7"); A("s_nop 3")
        def flush5(rb):
            A("s_waitcnt lgkmcnt(0)")
            for i in range(4):
                A(f"ds_read_b128 v[{192+16*rb+4*i}:{192+16*rb+4*i+3}], v{VS+4} offset:{rb*4096 + i*1024}")
        def store5(rb):
            for i in range(4):
                if rb == 1: A(f"s_waitcnt lgkmcnt({3-i})")
                A(f"s_add_u32 s{S_TMP+3}, s{S_TMP+4+rb}, {i*8*3584}")
                A(f"buffer_store_dwordx4 v[{192+16*rb+4*i}:{192+16*rb+4*i+3}], v{VS+5}, s[{S_O}:{S_O+3}], s{S_TMP+3} offen sc1")
        for rb in range(2):
            for nb in range(2):
                acc = ACC + (nb * 2 + rb) * 16
                if rb == 1 and nb == 1 and not FG:
                    A("s_waitcnt lgkmcnt(2)")
                    store5(0)
                for mp in range(2):
                    d = 160 + (nb * 4 + rb * 2 + mp) * 4
                    xs = [acc + 8 * mp + e for e in range(8)]
                    ts = list(range(128, 136)); cs = CS + (nb * 2 + mp) * 8; c = PKC[rb]
                    for e in range(0, 8, 2): pk(A, "v_pk_fma_f32", xs[e], cs + e, c[0], xs[e], "op_sel_hi:[1,0,1]")
                    for e in range(0, 8, 2): pk(A, "v_pk_mul_f32", ts[e], xs[e], xs[e])
                    for e in range(0, 8, 2): pk(A, "v_pk_fma_f32", ts[e], ts[e], c[1], c[2], "op_sel_hi:[1,0,0]")
                    for e in range(0, 8, 2): pk(A, "v_pk_mul_f32", ts[e], ts[e], xs[e])
                    for t in ts: A(f"v_exp_f32 v{t}, v{t}")
                    for e in range(0, 8, 2): pk(A, "v_pk_fma_f32", ts[e], ts[e], c[3], c[3], "op_sel_hi:[1,0,0]")
                    for t in ts: A(f"v_rcp_f32 v{t}, v{t}")
                    A("s_nop 0")
                    for e in range(0, 8, 2): pk(A, "v_pk_mul_f32", xs[e], xs[e], ts[e])
                    for e in range(0, 8, 2): A(f"v_cvt_pk_bf16_f32 v{d+e//2}, v{xs[e]}, v{xs[e+1]}")
                    if FG: A(f"buffer_store_dwordx4 v[{d}:{d+3}], v4, s[{S_O}:{S_O+3}], s{S_TMP+4+nb} offen offset:{mp*2048 + rb*1024} sc1")
                    else: A(f"ds_write_b128 v{VS+2*nb+mp}, v[{d}:{d+3}] offset:{rb*4096}")
                    if FG and FGE and not FGH:
                        gi = rb * 4 + nb * 2 + mp
                        G0 = int(os.environ.get("FGG", "0")); NG = int(os.environ.get("FGN", "4"))
                        if gi == G0:
                            A.label(".Lk5_tg")
                            A(f"ds_read_b64 v[38:39], v37 offset:{16384 + 1024}")
                            A("s_waitcnt lgkmcnt(0)")
                            A("v_xor_b32 v38, s100, v38")
                            A("v_xor_b32 v39, s101, v39")
                            A("v_or_b32 v38, v38, v39")
                            A("v_cmp_ne_u32 vcc, 0, v38")
                            A("s_nop 0")
                            A("s_cbranch_vccnz .Lk5_tg")
                        if G0 <= gi < G0 + NG:
                            next_pf(11 + FGE * (gi - G0) // NG, 11 + FGE * (gi - G0 + 1) // NG)
            if not FG: flush5(rb)
        if not FG: store5(1)
        if FG and FGE and FGH: A(f"s_add_u32 s{S_WOFF}, s{S_WOFF}, {FGE * 16384}")
        A("s_branch .Lk5_end")
        A.label(".Lk5_pf")
        if PFE in (1, 3): next_pf(alt=True)
        A.label(".Lk5_end")
        if J7P >= 0:
            A(f"s_cmp_lg_u32 s{S_J}, 7")
            A("s_cbranch_scc1 .Lk5_j7e")
            make_srd(A, 80, P_W + 6, 0, 1792 * 1024)
            A(f"s_lshr_b32 s78, s{S_M}, 3")
            A(f"s_mul_i32 s78, s78, {448 * 1024}")
            A(f"s_add_u32 s78, s78, {J7P * 16384}")
            A("v_lshlrev_b32 v2, 7, v0")
            for i in range((28 - J7P) // 4):
                A("buffer_load_dword v3, v2, s[80:83], s78 offen")
                A("s_add_u32 s78, s78, 65536")
            A.label(".Lk5_j7e")

def gen_km(A):
    name = "k1_kernel"
    M = Mega(A)
    def pre():
        if MT or HD:
            M.persist(); M.stamp(0); M.vm.ops = []
        if ONE: M.pro_pre()
    if V4: K1.gen_k1(A, emb=True, pre=pre, hookA=M.p4_a, hookB=M.p4_b, v2=True, hookC=M.p2_c, hookD=lambda: (M.persist(), M.jobs0()))
    elif V3: K1.gen_k1(A, emb=True, pre=pre, hookA=M.p3_a, hookB=M.p3_b, v2=True, hookC=M.p2_c)
    elif V2: K1.gen_k1(A, emb=True, pre=pre, hookA=M.p2_a, hookB=M.p2_b, v2=True, hookC=M.p2_c)
    elif ONE: K1.gen_k1(A, emb=True, pre=pre, hookA=M.pro_a, hookB=M.pro_b)
    else: K1.gen_k1(A, emb=True, pre=pre)
    M.persist()
    M.transition(0)
    M.kr()
    M.transition(1)
    pf4 = lambda lo=0, hi=99: M.pf_g64(1, 512, 24576, 8, lo, hi)
    pf6 = lambda lo=0, hi=99, alt=False: M.pf_g64(3, 1792, 26624, 7, lo, hi, 6)
    if FG: pf6 = M.pf_fg
    M.g64("k3", 1, 512, WS_HN, 2 * MB, 1024, "gelu", 24576, 8, False, pf4, None, 0, {st: (st, st + 1) for st in range(8)}, [(2, 1792 * 1024)] if L2PF & 1 else None)
    M.transition(2, pf4)
    M.g64("k4", 2, 512, WS_H1, 2052 * 1024, 1024, "res", 24576, 8, True, M.pf_k5, pf4, 0, {st: ((0, 4) if st == 0 else (st + 3, st + 4)) for st in range(8)}, [(3, 1792 * 1024)] if L2PF & 2 else None)
    M.transition(3, M.pf_k5)
    M.k5(3, pf6, M.pf_k5)
    M.transition(4, pf6)
    M.g64("k6", 4, 1792, WS_G, 2048 * 3584, 3584, "final", 26624, 7, False, None, pf6, 6)
    M.stamp(21)
    if MT or HD: A("s_waitcnt vmcnt(0)")
    M.stamp(22)
    A("s_endpgm")
    A.raw(kernel_desc(name, 256, 102, 256))
    return (name, (256, 1, 1), (512, 1, 1), 163840)
```

```python
from asmlib import *
from gen_k0 import *
import os
DEBUG = int(os.environ.get("K1DEBUG", "0"))
PART_BF16 = int(os.environ.get("PARTBF16", "1"))
MIMIC = int(os.environ.get("MIMIC", "0"))
LAZY = int(os.environ.get("LAZY", "1"))
THR = float(os.environ.get("THR","30.0"))
TIMING = int(os.environ.get("TIMING", "0"))
KT = int(os.environ.get("KT", "0"))
ZB = float(os.environ.get("ZB", "108"))
HB3 = eval(os.environ.get("HB3", "None"))
PD = int(os.environ.get("PD", "0"))
PDS = [128, 136, 144, 152, 192, 200, 208, 216, 224, 232, 160, 168, 176, 184][:int(os.environ.get("PDD", "8"))]
def pd_load(A, vm, st):
    d = PDS[st % len(PDS)]
    for nb in range(2):
        A(f"buffer_load_dwordx4 v[{d+4*nb}:{d+4*nb+3}], v{V_WOOFF}, s[{S_WO}:{S_WO+3}], s{S_OFF} offen offset:{nb*1024}")
        vm.issue(("w", st))
    A(f"s_add_u32 s{S_OFF}, s{S_OFF}, 2048")
def pd_core(A, vm, lg, pre, NS=32):
    DW = len(PDS)
    def reads(step):
        buf = 240 + (step & 1) * 8
        for rb in range(2):
            A(f"ds_read_b128 v[{buf+rb*4}:{buf+rb*4+3}], v{V_BADDR + (step & 7)} offset:{(step >> 3) * 256 + rb * 32768}")
            lg.issue(("f", step))
    for st in range(pre, DW): pd_load(A, vm, st)
    reads(0)
    for ks in range(NS):
        lg.wait(("f", ks))
        vm.wait(("w", ks))
        buf = 240 + (ks & 1) * 8; w = PDS[ks % DW]
        i = 0
        for nb in range(2):
            for rb in range(2):
                acc = V_ACC + (nb * 2 + rb) * 16
                c = "0" if ks == 0 else f"v[{acc}:{acc+15}]"
                A(f"v_mfma_f32_32x32x16_bf16 v[{acc}:{acc+15}], v[{w+nb*4}:{w+nb*4+3}], v[{buf+rb*4}:{buf+rb*4+3}], {c}")
                if i == 0 and ks + 1 < NS: reads(ks + 1)
                if i == 1 and ks >= 1 and ks - 1 + DW < NS: pd_load(A, vm, ks - 1 + DW)
                if i == 2 and HB3 is not None and ks == NS - DW + int(os.environ.get("PDG", "0")):
                    A(f"s_add_u32 s{S_TMP}, s{S_RB}, {slot6(HB3) * 16384}")
                    A(f"v_mov_b32 v58, s{S_TMP}")
                    A("v_mov_b32 v60, s100")
                    A("v_mov_b32 v61, s101")
                    A("ds_write_b64 v58, v[60:61]")
                i += 1
USEPK = int(os.environ.get("USEPK", "0"))
EXPT = int(os.environ.get("EXPT", "0"))
NOMAX = int(os.environ.get("NOMAX", "0"))
DOT2 = int(os.environ.get("DOT2", "0"))

class Cnt:
    def __init__(self, A, name, maxv):
        self.A = A; self.name = name; self.maxv = maxv; self.ops = []
    def issue(self, tag):
        self.ops.append(tag)
        assert len(self.ops) <= self.maxv + 1 or self.name == "vmcnt", (self.name, len(self.ops))
    def wait(self, tag):
        idx = None
        for i, t in enumerate(self.ops):
            if t == tag: idx = i
        if idx is None:
            return
        n = len(self.ops) - 1 - idx
        assert n <= self.maxv, (self.name, n)
        self.A(f"s_waitcnt {self.name}({n})")
        self.ops = self.ops[idx+1:]
    def waitall(self):
        self.A(f"s_waitcnt {self.name}(0)")
        self.ops = []

class Stamper:
    def __init__(self, A, lg, srd, swave, base=72):
        self.A = A; self.lg = lg; self.n = 0; self.srd = srd; self.swave = swave; self.base = base
    def __call__(self, real=False):
        if KT:
            self.c = getattr(self, "c", 0) + 1
            if self.c <= 2: return
            A = self.A
            self.lg.waitall()
            A("s_memrealtime s[36:37]" if KT == 1 else "s_memtime s[36:37]")
            A("s_waitcnt lgkmcnt(0)")
            A(f"s_mov_b32 s{76+self.n}, s36")
            self.n += 1
            assert self.n <= 16
            return
        if not TIMING: return
        A = self.A
        self.lg.waitall()
        A("s_memrealtime s[70:71]" if (real or TIMING == 2) else "s_memtime s[70:71]")
        A("s_waitcnt lgkmcnt(0)")
        A(f"s_mov_b32 s{self.base+self.n}, s70")
        self.n += 1
    def flush(self):
        if KT:
            A = self.A
            make_srd(A, 36, 68, WS_DBG + 24 * MB, 1 * MB)
            A(f"s_lshl_b32 s70, s2, 3")
            A(f"s_add_u32 s70, s70, s{self.swave}")
            A(f"s_lshl_b32 s70, s70, 6")
            A("v_mov_b32 v5, 0")
            for i in range(self.n):
                A(f"v_mov_b32 v6, s{76+i}")
                A(f"buffer_store_dword v6, v5, s[36:39], s70 offen offset:{4*i}")
            return
        if not TIMING: return
        A = self.A
        A(f"s_lshl_b32 s70, s2, 3")
        A(f"s_add_u32 s70, s70, s{self.swave}")
        A(f"s_lshl_b32 s70, s70, 7")
        A("v_mov_b32 v5, 0")
        for i in range(self.n):
            A(f"v_mov_b32 v6, s{self.base+i}")
            A(f"buffer_store_dword v6, v5, s[{self.srd}:{self.srd+3}], s70 offen offset:{4*i}")

ACT = 0
STG = 65536
KRING = STG + 3 * 16384
VRING = STG
V_LANE = 1
V_BADDR = 16; V_AADDR = 24; V_WQOFF = 26; V_WOOFF = 27
V_KADDR = 28; V_VADDR = 36; V_KOFF = 40; V_VOFF = 42
V_M = 43; V_L = 44; V_ALPHA = 46; V_NEGC = 48
V_QADDR = 50
V_T = 58
V_ACC = 64
V_Q = 128
V_S = 160
V_F = 224
NF = 8
RA = int(os.environ.get('RA','6'))
PRIO = int(os.environ.get('PRIO','0'))
CT = int(os.environ.get('CT','1'))
V_NB = 48
S_XN = 8; S_MOD = 12; S_WQ = 16; S_K = 20; S_V = 24; S_WO = 28; S_P = 32; S_DBG = 36
S_WAVE = 40; S_G = 41; S_M = 42; S_RB = 43; S_OFF = 44; S_MASK = 45; S_KVOFF = 46; S_KVM0 = 47
S_C1 = 48; S_K2 = 50; S_SC = 52; S_L2E = 54
S_TMP = 56
S_SL = 66
S_FLAG = 64
S_QOFF = 67
SCALE = 128 ** -0.5

def gemm_dma(A, vm, step, srd, voff, rowstride, D):
    for half in range(2):
        A(f"s_add_u32 m0, s{S_RB}, {(step % D) * 2048 + half * 1024}")
        A("s_nop 0")
        A(f"buffer_load_dwordx4 v{voff}, s[{srd}:{srd+3}], s{S_OFF} offen lds")
        vm.issue(("w", step))
        A(f"s_add_u32 s{S_OFF}, s{S_OFF}, {8 * rowstride}")

def gemm_reads(A, lg, step, D):
    buf = V_Q + (step & 1) * 16
    if (EXPT & 128) and step > 1: return
    for nb in range(2):
        for q in range(2):
            A(f"ds_read_b64_tr_b16 v[{buf+nb*4+q*2}:{buf+nb*4+q*2+1}], v{V_AADDR+nb} offset:{(step % D) * 2048 + q * 512}")
            lg.issue(("f", step))
    for rb in range(2):
        A(f"ds_read_b128 v[{buf+8+rb*4}:{buf+8+rb*4+3}], v{V_BADDR + (step & 7)} offset:{(step >> 3) * 256 + rb * 32768}")
        lg.issue(("f", step))

def gemm_core(A, vm, lg, srd, voff, rowstride, D=4, NS=32):
    vm.wait(("w", 0))
    gemm_reads(A, lg, 0, D)
    for ks in range(NS):
        if ks + 1 < NS:
            vm.wait(("w", ks + 1))
            gemm_reads(A, lg, ks + 1, D)
        lg.wait(("f", ks))
        if ks + D < NS and not (EXPT & 32):
            gemm_dma(A, vm, ks + D, srd, voff, rowstride, D)
        buf = V_Q + (ks & 1) * 16
        for nb in range(2):
            for rb in range(2):
                acc = V_ACC + (nb * 2 + rb) * 16
                c = "0" if ks == 0 else f"v[{acc}:{acc+15}]"
                if (EXPT & 64) and ks > 0: continue
                A(f"v_mfma_f32_32x32x16_bf16 v[{acc}:{acc+15}], v[{buf+nb*4}:{buf+nb*4+3}], v[{buf+8+rb*4}:{buf+8+rb*4+3}], {c}")

D6 = int(os.environ.get("D6", "1"))
V_AADDR2 = (43, 45)
def slot6(step): return (step + 2) % 6
M16 = int(os.environ.get("M16", "0"))
P4 = int(os.environ.get("MEGA", "7")) == 7
V_K10 = 10; V_K01 = 11
R7 = int(os.environ.get("R7", "0")) and P4
SCRO = 0 if R7 else 16384
def slot7(step): return slot6(step + 5) if step < 5 else slot6(step)
def dma7(A, vm, step):
    for half in range(2):
        A(f"s_add_u32 m0, s{S_RB}, {slot7(step) * 16384 + half * 1024}")
        A("s_nop 0")
        A(f"buffer_load_dwordx4 v{V_WQOFF}, s[{S_WQ}:{S_WQ+3}], s{S_OFF} offen lds")
        vm.issue(("w", step))
        A(f"s_add_u32 s{S_OFF}, s{S_OFF}, 65536")
def wreads7(A, lg, step):
    buf = 208 + (step % 6) * 8; sl = slot7(step)
    for nb in range(2):
        for q in range(2):
            a = V_AADDR + nb if sl < 4 else V_AADDR2[nb]
            A(f"ds_read_b64_tr_b16 v[{buf+nb*4+q*2}:{buf+nb*4+q*2+1}], v{a} offset:{(sl & 3) * 16384 + q * 512}")
            lg.issue(("w5", step))
def gemm_core7(A, vm, lg, tail):
    def breads(step):
        buf = V_Q + (step & 1) * 8
        for rb in range(2):
            A(f"ds_read_b128 v[{buf+rb*4}:{buf+rb*4+3}], v{V_BADDR + (step & 7)} offset:{(step >> 3) * 256 + rb * 32768}")
            lg.issue(("f", step))
    breads(0)
    dma7(A, vm, 10)
    for ks in range(32):
        r = ks + 5
        if ks + 1 < 32: breads(ks + 1)
        if r < 32:
            vm.wait(("w", r)); wreads7(A, lg, r)
        lg.wait(("f", ks)); lg.wait(("w5", r - 1))
        if 11 <= ks + 10 < 32: dma7(A, vm, ks + 10)
        elif ks + 10 >= 32: tail(ks + 4)
        buf = V_Q + (ks & 1) * 8; w = 208 + (ks % 6) * 8
        for nb in range(2):
            for rb in range(2):
                acc = V_ACC + (nb * 2 + rb) * 16
                c = "0" if ks == 0 else f"v[{acc}:{acc+15}]"
                A(f"v_mfma_f32_32x32x16_bf16 v[{acc}:{acc+15}], v[{w+nb*4}:{w+nb*4+3}], v[{buf+rb*4}:{buf+rb*4+3}], {c}")
VA16 = 224; VB16 = 232
def addr16(A):
    L = V_LANE
    A(f"v_lshrrev_b32 v2, 4, v{L}")
    A(f"v_and_b32 v3, 15, v{L}")
    for j in range(4):
        A(f"v_or_b32 v4, {4*j}, v2")
        A("v_xor_b32 v4, v4, v3")
        A("v_lshlrev_b32 v4, 4, v4")
        A(f"v_lshl_add_u32 v{VB16+j}, v3, 10, v4")
    A(f"v_bfe_u32 v4, v{L}, 2, 2")
    A(f"v_and_b32 v5, 3, v{L}")
    A("v_and_b32 v6, 1, v2")
    A("v_lshl_add_u32 v7, v6, 3, v4")
    A("v_lshlrev_b32 v7, 7, v7")
    A("v_lshl_add_u32 v7, v5, 3, v7")
    A("v_lshrrev_b32 v8, 1, v2")
    A("v_lshl_add_u32 v7, v8, 14, v7")
    A(f"v_add_u32 v7, s{S_RB}, v7")
    A("v_lshrrev_b32 v8, 1, v4")
    A("v_lshl_or_b32 v8, v8, 1, v6")
    for nt in range(4):
        A(f"v_xor_b32 v9, {nt}, v8")
        A(f"v_lshl_add_u32 v{VA16+nt}, v9, 5, v7")
        A(f"v_add_u32 v{VA16+4+nt}, 65536, v{VA16+nt}")
def gemm_core16(A, vm, lg, srd, voff, rowstride, pre, tail=None):
    for st in range(pre, 6): gemm_dma6(A, vm, st, srd, voff, rowstride)
    def rd(s, part):
        buf = V_Q + (s & 1) * 32
        if part == 0:
            for rt in range(4):
                A(f"ds_read_b128 v[{buf+16+4*rt}:{buf+19+4*rt}], v{VB16 + (s & 3)} offset:{rt * 16384 + (s >> 2) * 256}")
                lg.issue(("b", s))
        else:
            nt = part - 1
            sl = slot6(2 * s)
            for q in range(2):
                A(f"ds_read_b64_tr_b16 v[{buf+4*nt+2*q}:{buf+4*nt+2*q+1}], v{VA16 + (4 if sl >= 4 else 0) + nt} offset:{(sl & 3) * 16384 + q * 512}")
                lg.issue(("a", s, nt))
    vm.wait(("w", 1))
    for p in range(5): rd(0, p)
    for s in range(16):
        buf = V_Q + (s & 1) * 32
        for nt in range(4):
            lg.wait(("a", s, nt))
            RF = int(os.environ.get("RF16", "3")); SCH = int(os.environ.get("SCH16", "0"))
            for rt in range(4):
                if nt == RF and rt == (0 if RF == 3 else 1):
                    lg.wait(("a", s, 3))
                    for ks in (2 * s, 2 * s + 1):
                        if ks + 6 < 32: gemm_dma6(A, vm, ks + 6, srd, voff, rowstride)
                        elif tail: tail(ks)
                acc = V_ACC + (nt * 4 + rt) * 4
                c = "0" if s == 0 else f"v[{acc}:{acc+3}]"
                A(f"v_mfma_f32_16x16x32_bf16 v[{acc}:{acc+3}], v[{buf+4*nt}:{buf+4*nt+3}], v[{buf+16+4*rt}:{buf+19+4*rt}], {c}")
                if s + 1 < 16:
                    plan = [{(0, 0): [0], (1, 0): [1, 2], (2, 0): [3], (3, 0): [4]},
                            {(0, 2): [0], (1, 0): [1, 2], (1, 2): [3, 4]},
                            {(1, 0): [0], (1, 2): [1], (2, 0): [2], (2, 2): [3], (3, 0): [4]},
                            {(0, 2): [0], (1, 2): [1, 2], (2, 2): [3, 4]}][SCH]
                    for p in plan.get((nt, rt), []):
                        if p == 1: vm.wait(("w", 2 * s + 3))
                        rd(s + 1, p)
def gemm_dma6(A, vm, step, srd, voff_, rowstride):
    for half in range(2):
        voff = voff_ if not (M16 and half) else V_AADDR2[0 if voff_ == V_WQOFF else 1]
        A(f"s_add_u32 m0, s{S_RB}, {slot6(step) * 16384 + half * 1024}")
        A("s_nop 0")
        A(f"buffer_load_dwordx4 v{voff}, s[{srd}:{srd+3}], s{S_OFF} offen {os.environ.get('WONT', '') if srd == S_WO else ''} lds")
        vm.issue(("w", step))
        A(f"s_add_u32 s{S_OFF}, s{S_OFF}, {8 * rowstride}")
IL6 = int(os.environ.get("IL6", "0"))
def gemm_reads6(A, lg, step):
    buf = V_Q + ((step % 3) if IL6 else (step & 1)) * 16
    sl = slot6(step)
    for nb in range(2):
        for q in range(2):
            a = V_AADDR + nb if sl < 4 else V_AADDR2[nb]
            A(f"ds_read_b64_tr_b16 v[{buf+nb*4+q*2}:{buf+nb*4+q*2+1}], v{a} offset:{(sl & 3) * 16384 + q * 512}")
            lg.issue(("f", step))
    for rb in range(2):
        A(f"ds_read_b128 v[{buf+8+rb*4}:{buf+8+rb*4+3}], v{V_BADDR + (step & 7)} offset:{(step >> 3) * 256 + rb * 32768}")
        lg.issue(("f", step))
def gemm_core6(A, vm, lg, srd, voff, rowstride, pre, tail=None, NS=32, bars=(), hb=None):
    for st in range(pre, 6): gemm_dma6(A, vm, st, srd, voff, rowstride)
    if IL6:
        for s0 in range(2):
            vm.wait(("w", s0)); gemm_reads6(A, lg, s0)
        for ks in range(NS):
            lg.wait(("f", ks))
            sv = A.lines; A.lines = []
            if IL6 == 2:
                if ks + 6 < NS: gemm_dma6(A, vm, ks + 6, srd, voff, rowstride)
                elif tail: tail(ks)
            if ks + 2 < NS:
                vm.wait(("w", ks + 2)); gemm_reads6(A, lg, ks + 2)
            if IL6 == 1:
                if ks + 6 < NS: gemm_dma6(A, vm, ks + 6, srd, voff, rowstride)
                elif tail: tail(ks)
            fill = A.lines; A.lines = sv
            buf = V_Q + (ks % 3) * 16
            k = 0
            for i in range(4):
                nb, rb = i >> 1, i & 1
                acc = V_ACC + (nb * 2 + rb) * 16
                c = "0" if ks == 0 else f"v[{acc}:{acc+15}]"
                A(f"v_mfma_f32_32x32x16_bf16 v[{acc}:{acc+15}], v[{buf+nb*4}:{buf+nb*4+3}], v[{buf+8+rb*4}:{buf+8+rb*4+3}], {c}")
                upto = (len(fill) * (i + 1) + 3) // 4
                A.lines.extend(fill[k:upto]); k = upto
        return
    vm.wait(("w", 0))
    gemm_reads6(A, lg, 0)
    for ks in range(NS):
        if ks + 1 < NS:
            vm.wait(("w", ks + 1))
            gemm_reads6(A, lg, ks + 1)
        lg.wait(("f", ks))
        if ks + 6 < NS:
            gemm_dma6(A, vm, ks + 6, srd, voff, rowstride)
        elif tail: tail(ks)
        if ks in bars: A("s_barrier")
        if hb is not None and ks == hb:
            assert hb >= 26 and slot6(hb) >= 4
            A(f"s_add_u32 s{S_TMP}, s{S_RB}, {slot6(hb) * 16384}")
            A(f"v_mov_b32 v58, s{S_TMP}")
            A("v_mov_b32 v60, s100")
            A("v_mov_b32 v61, s101")
            A("ds_write_b64 v58, v[60:61]")
        buf = V_Q + (ks & 1) * 16
        for nb in range(2):
            for rb in range(2):
                acc = V_ACC + (nb * 2 + rb) * 16
                c = "0" if ks == 0 else f"v[{acc}:{acc+15}]"
                if EXPT & 1024:
                    for hh in range(2):
                        a4 = acc + (ks & 1) * 8 + hh * 4
                        c4 = "0" if ks < 2 else f"v[{a4}:{a4+3}]"
                        A(f"v_mfma_f32_16x16x32_bf16 v[{a4}:{a4+3}], v[{buf+(nb^hh)*4}:{buf+(nb^hh)*4+3}], v[{buf+8+rb*4}:{buf+8+rb*4+3}], {c4}")
                    continue
                A(f"v_mfma_f32_32x32x16_bf16 v[{acc}:{acc+15}], v[{buf+nb*4}:{buf+nb*4+3}], v[{buf+8+rb*4}:{buf+8+rb*4+3}], {c}")

def k_dma(A, vm, t):
    A(f"s_mov_b32 s{S_KVOFF}, {t * 16384}")
    A(f"s_add_u32 m0, s{S_KVM0}, {KRING + ((t + 1) % 3) * 16384}")
    A("s_nop 0")
    A(f"buffer_load_dwordx4 v{V_KOFF}, s[{S_K}:{S_K+3}], s{S_KVOFF} offen lds")
    vm.issue(("k", t))
    A(f"buffer_load_dwordx4 v{V_KOFF+1}, s[{S_K}:{S_K+3}], s{S_KVOFF} offen offset:1024 lds")
    vm.issue(("k", t))
def v_dma(A, vm, t):
    A(f"s_mov_b32 s{S_KVOFF}, {t * 16384}")
    A(f"s_add_u32 m0, s{S_KVM0}, {VRING + (t % 3) * 16384}")
    A("s_nop 0")
    A(f"buffer_load_dwordx4 v{V_VOFF}, s[{S_V}:{S_V+3}], s{S_KVOFF} offen lds")
    vm.issue(("v", t))
    A(f"buffer_load_dwordx4 v{V_VOFF}, s[{S_V}:{S_V+3}], s{S_KVOFF} offen offset:1024 lds")
    vm.issue(("v", t))

def sm_max(t):
    S = V_S + (t & 1) * 32
    mx = 2 if CT else V_T
    L = []
    if NOMAX and t > 0: return []
    L.append(f"v_max3_f32 v{mx}, v{S}, v{S+1}, v{S+2}")
    L.append(f"v_max3_f32 v{mx+1}, v{S+3}, v{S+4}, v{S+5}")
    for i in range(6, 30, 4):
        L.append(f"v_max3_f32 v{mx}, v{mx}, v{S+i}, v{S+i+1}")
        L.append(f"v_max3_f32 v{mx+1}, v{mx+1}, v{S+i+2}, v{S+i+3}")
    L.append(f"v_max3_f32 v{mx}, v{mx}, v{S+30}, v{S+31}")
    L.append(f"v_max_f32 v{mx}, v{mx}, v{mx+1}")
    L.append(f"v_mov_b32 v{mx+1}, v{mx}")
    L.append("s_nop 1")
    L.append(f"v_permlane32_swap_b32 v{mx}, v{mx+1}")
    L.append("s_nop 1")
    L.append(f"v_max_f32 v{mx}, v{mx}, v{mx+1}")
    g, d = mx + 1, mx + 2
    if CT:
        if t == 0:
            if ZB: L.append(f"v_add_f32 v{mx}, {fhex(ZB)}, v{mx}")
            for i in range(16): L.append(f"v_sub_f32 v{V_NB+i}, 0, v{mx}")
            for i in range(32): L.append(f"v_sub_f32 v{S+i}, v{S+i}, v{mx}")
            return L
        lbl = f".Lk1_nors_{t}"
        L.append(f"v_cmp_lt_f32 vcc, {fhex(THR - ZB)}, v{mx}")
        L.append(f"s_mov_b64 s[{S_FLAG}:{S_FLAG+1}], vcc")
        L.append([f"s_cbranch_vccz {lbl}"] + ([f"v_add_f32 v{mx}, {fhex(ZB)}, v{mx}"] if ZB else []) + [
                  f"v_max_f32 v{mx}, 0, v{mx}",
                  f"v_sub_f32 v{V_ALPHA}, 0, v{mx}",
                  f"v_exp_f32 v{V_ALPHA}, v{V_ALPHA}"]
                 + [f"v_sub_f32 v{V_NB+i}, v{V_NB+i}, v{mx}" for i in range(16)]
                 + [f"v_sub_f32 v{S+i}, v{S+i}, v{mx}" for i in range(32)]
                 + [f"v_mul_f32 v{V_L}, v{V_L}, v{V_ALPHA}", f"{lbl}:"])
        return L
    if MIMIC:
        L.append(f"v_mul_f32 v{g}, s{S_C1}, v{mx}")
        L.append(f"v_sub_f32 v{d}, v{mx}, v{g}")
        L.append(f"v_add_f32 v{mx}, v{g}, v{d}")
        L.append(f"v_mul_f32 v{g}, s{S_K2}, v{mx}")
        L.append(f"v_fma_f32 v{d}, v{mx}, s{S_SC}, -v{g}")
        L.append(f"v_add_f32 v{mx}, v{g}, v{d}")
    else:
        L.append(f"v_mul_f32 v{mx}, s{S_SC}, v{mx}")
    if LAZY and t > 0:
        lbl = f".Lk1_nors_{t}"
        L.append(f"v_sub_f32 v{V_ALPHA}, v{V_M}, v{mx}")
        L.append(f"v_cmp_gt_f32 vcc, {fhex(-THR / LOG2E)}, v{V_ALPHA}")
        L.append(f"s_mov_b64 s[{S_FLAG}:{S_FLAG+1}], vcc")
        L.append([f"s_cbranch_vccz {lbl}",
                  f"v_max_f32 v{mx}, v{mx}, v{V_M}",
                  f"v_sub_f32 v{V_ALPHA}, v{V_M}, v{mx}",
                  f"v_mul_f32 v{V_ALPHA}, s{S_L2E}, v{V_ALPHA}",
                  f"v_exp_f32 v{V_ALPHA}, v{V_ALPHA}",
                  f"v_mov_b32 v{V_M}, v{mx}",
                  f"v_mul_f32 v{V_NEGC}, s{S_L2E}, v{mx}",
                  f"v_sub_f32 v{V_NEGC}, 0, v{V_NEGC}",
                  f"v_mul_f32 v{V_L}, v{V_L}, v{V_ALPHA}",
                  f"{lbl}:"])
        return L
    if t > 0:
        L.append(f"v_max_f32 v{mx}, v{mx}, v{V_M}")
        L.append(f"v_sub_f32 v{V_ALPHA}, v{V_M}, v{mx}")
        L.append(f"v_mul_f32 v{V_ALPHA}, s{S_L2E}, v{V_ALPHA}")
        L.append(f"v_exp_f32 v{V_ALPHA}, v{V_ALPHA}")
    L.append(f"v_mov_b32 v{V_M}, v{mx}")
    L.append(f"v_mul_f32 v{V_NEGC}, s{S_L2E}, v{mx}")
    L.append(f"v_sub_f32 v{V_NEGC}, 0, v{V_NEGC}")
    return L

PSUM = 10
def sm_quarter(t, q):
    S = V_S + (t & 1) * 32
    L = []
    pairs = list(range(8 * q, 8 * q + 8, 2))
    def pre(i):
        x = f"v[{S+i}:{S+i+1}]"
        k = (i >> 1) & 1
        g = f"v[{2+4*k}:{3+4*k}]"; d = f"v[{4+4*k}:{5+4*k}]"
        if CT:
            return []
        if not USEPK:
            out = []
            xs = [S + i, S + i + 1]; gs = [2 + 4 * k, 3 + 4 * k]; ds = [4 + 4 * k, 5 + 4 * k]
            if MIMIC:
                for op in range(7):
                    for e in range(2):
                        x_, g_, d_ = xs[e], gs[e], ds[e]
                        out.append([f"v_mul_f32 v{g_}, s{S_C1}, v{x_}",
                                    f"v_sub_f32 v{d_}, v{x_}, v{g_}",
                                    f"v_add_f32 v{x_}, v{g_}, v{d_}",
                                    f"v_mul_f32 v{g_}, s{S_K2}, v{x_}",
                                    f"v_fma_f32 v{d_}, v{x_}, s{S_SC}, -v{g_}",
                                    f"v_add_f32 v{x_}, v{g_}, v{d_}",
                                    f"v_fma_f32 v{x_}, v{x_}, s{S_L2E}, v{V_NEGC}"][op])
            else:
                for e in range(2):
                    out.append(f"v_fma_f32 v{xs[e]}, v{xs[e]}, s{S_SL}, v{V_NEGC}")
            return out
        if MIMIC:
            return [f"v_pk_mul_f32 {g}, {x}, s[{S_C1}:{S_C1+1}]",
                    f"v_pk_add_f32 {d}, {x}, {g} neg_lo:[0,1] neg_hi:[0,1]",
                    f"v_pk_add_f32 {x}, {g}, {d}",
                    f"v_pk_mul_f32 {g}, {x}, s[{S_K2}:{S_K2+1}]",
                    f"v_pk_fma_f32 {d}, {x}, s[{S_SC}:{S_SC+1}], {g} neg_lo:[0,0,1] neg_hi:[0,0,1]",
                    f"v_pk_add_f32 {x}, {g}, {d}",
                    f"v_pk_fma_f32 {x}, {x}, s[{S_L2E}:{S_L2E+1}], v[{V_NEGC}:{V_NEGC+1}] op_sel_hi:[1,1,0]"]
        return [f"v_pk_mul_f32 {x}, {x}, s[{S_SC}:{S_SC+1}]",
                f"v_pk_fma_f32 {x}, {x}, s[{S_L2E}:{S_L2E+1}], v[{V_NEGC}:{V_NEGC+1}] op_sel_hi:[1,1,0]"]
    for a in range(0, 4, 2):
        p0, p1 = pre(pairs[a]), pre(pairs[a + 1])
        for x, y in zip(p0, p1):
            L += [x, y]
        for i in (pairs[a], pairs[a + 1]):
            L.append(f"v_exp_f32 v{S+i}, v{S+i}")
            L.append(f"v_exp_f32 v{S+i+1}, v{S+i+1}")
    L.append("s_nop 0")
    for i in pairs:
        if DOT2:
            L.append(f"v_cvt_pk_bf16_f32 v{S + i // 2}, v{S+i}, v{S+i+1}")
            continue
        if i == 0:
            L.append(f"v_mov_b32 v{PSUM}, v{S}")
            L.append(f"v_mov_b32 v{PSUM+1}, v{S+1}")
        elif USEPK:
            L.append(f"v_pk_add_f32 v[{PSUM}:{PSUM+1}], v[{PSUM}:{PSUM+1}], v[{S+i}:{S+i+1}]")
        else:
            L.append(f"v_add_f32 v{PSUM}, v{PSUM}, v{S+i}")
            L.append(f"v_add_f32 v{PSUM+1}, v{PSUM+1}, v{S+i+1}")
        L.append(f"v_cvt_pk_bf16_f32 v{S + i // 2}, v{S+i}, v{S+i+1}")
    if DOT2:
        for i in pairs:
            a = PSUM + ((i >> 1) & 1)
            if DOT2 == 1: L.append(f"v_dot2c_f32_bf16 v{a}, v{S + i // 2}, v14")
            else: L.append(f"v_dot2_f32_bf16 v{a}, v{S + i // 2}, v14, v{a}")
    if EXPT & 1: L = [x for x in L if not x.startswith("v_exp")]
    if EXPT & 2: L = [x for x in L if x.startswith("v_exp") or x.startswith("s_nop")]
    return L

def sm_rescale(t):
    if t == 0 or NOMAX: return []
    if LAZY:
        lbl = f".Lk1_nors2_{t}"
        return [[f"s_cmp_eq_u64 s[{S_FLAG}:{S_FLAG+1}], 0", f"s_cbranch_scc1 {lbl}"] + [f"v_mul_f32 v{V_ACC+i}, v{V_ALPHA}, v{V_ACC+i}" for i in range(64)] + [f"{lbl}:"]]
    if not USEPK:
        return [f"v_mul_f32 v{V_ACC+i}, v{V_ALPHA}, v{V_ACC+i}" for i in range(64)]
    return [f"v_pk_mul_f32 v[{V_ACC+i}:{V_ACC+i+1}], v[{V_ACC+i}:{V_ACC+i+1}], v[{V_ALPHA}:{V_ALPHA+1}] op_sel_hi:[1,0]" for i in range(0, 64, 2)]

def sm_lupd(t):
    if DOT2: return []
    L = [f"v_add_f32 v{PSUM}, v{PSUM}, v{PSUM+1}"]
    if t == 0:
        L.append(f"v_mov_b32 v{V_L}, v{PSUM}")
    elif LAZY:
        L.append(f"v_add_f32 v{V_L}, v{V_L}, v{PSUM}")
    else:
        L.append(f"v_fma_f32 v{V_L}, v{V_L}, v{V_ALPHA}, v{PSUM}")
    return L

def gen_k1(A, emb=False, pre=None, hookA=None, hookB=None, kname="k1_kernel", v2=False, hookC=None, hookD=None):
    name = kname
    vm = Cnt(A, "vmcnt", 63); lg = Cnt(A, "lgkmcnt", 15)
    stamp = Stamper(A, lg, S_DBG, S_WAVE)
    kernel_header(A, name)
    A("s_cmp_lt_u32 s2, 256")
    A("s_cbranch_scc1 .Lk1_go")
    A("s_endpgm")
    A.label(".Lk1_go")
    if pre: pre()
    A("s_load_dwordx4 s[60:63], s[0:1], 8")
    A("s_load_dwordx4 s[64:67], s[0:1], 24")
    A("s_load_dwordx2 s[68:69], s[0:1], 112")
    A("s_load_dwordx8 s[92:99], s[0:1], 48")
    A(f"v_and_b32 v{V_LANE}, 63, v0")
    A("v_lshrrev_b32 v2, 6, v0")
    A("s_nop 0")
    A(f"v_readfirstlane_b32 s{S_WAVE}, v2")
    KM = int(os.environ.get("K1MAP","1"))
    if KM == 1:
        A(f"s_lshr_b32 s{S_G}, s2, 5")
        A(f"s_and_b32 s{S_M}, s2, 31")
    elif KM == 4:
        A(f"s_and_b32 s{S_G}, s2, 6")
        A(f"s_lshr_b32 s{S_M}, s2, 7")
        A(f"s_or_b32 s{S_G}, s{S_G}, s{S_M}")
        A(f"s_bfe_u32 s{S_M}, s2, 0x40003")
        A(f"s_lshl_b32 s{S_M}, s{S_M}, 1")
        A(f"s_and_b32 s{S_TMP}, s2, 1")
        A(f"s_or_b32 s{S_M}, s{S_M}, s{S_TMP}")
    elif KM == 5:
        A(f"s_and_b32 s{S_G}, s2, 4")
        A(f"s_lshr_b32 s{S_M}, s2, 6")
        A(f"s_or_b32 s{S_G}, s{S_G}, s{S_M}")
        A(f"s_bfe_u32 s{S_M}, s2, 0x30003")
        A(f"s_lshl_b32 s{S_M}, s{S_M}, 2")
        A(f"s_and_b32 s{S_TMP}, s2, 3")
        A(f"s_or_b32 s{S_M}, s{S_M}, s{S_TMP}")
    elif KM == 0:
        A(f"s_and_b32 s{S_G}, s2, 7")
        A(f"s_lshr_b32 s{S_M}, s2, 3")
    else:
        nb_ = KM - 1
        A(f"s_and_b32 s{S_G}, s2, {(1 << nb_) - 1}")
        A(f"s_lshr_b32 s{S_M}, s2, {5 + nb_}")
        A(f"s_lshl_b32 s{S_M}, s{S_M}, {nb_}")
        A(f"s_or_b32 s{S_G}, s{S_G}, s{S_M}")
        A(f"s_bfe_u32 s{S_M}, s2, {hex((5 << 16) | nb_)}")
    A(f"s_mov_b32 s{S_MASK}, 0xffff0000")
    for (s, val) in (() if P4 else ((S_C1, 65537.0), (S_K2, 65537.0 * SCALE), (S_SC, SCALE), (S_L2E, LOG2E))):
        A(f"s_mov_b32 s{s}, {fhex(val)}")
        A(f"s_mov_b32 s{s+1}, {fhex(val)}")
    L = V_LANE
    SM = f"s{S_MASK}"
    D = 4
    EARLYA = v2 and int(os.environ.get("EARLYA", "1"))
    if EARLYA:
        A(f"v_lshlrev_b32 v12, 4, v{L}")
        hookA()
    A(f"v_lshrrev_b32 v5, 3, v{L}")
    A(f"v_and_b32 v6, 7, v{L}")
    A("v_lshlrev_b32 v7, 1, v5")
    A("v_and_b32 v7, 4, v7")
    A("v_xor_b32 v6, v6, v7")
    A("v_lshlrev_b32 v6, 4, v6")
    A(f"v_lshl_add_u32 v{V_WQOFF}, v5, 13, v6")
    A(f"v_lshl_add_u32 v{V_WOOFF}, v5, 10, v6")
    A(f"s_lshl_b32 s{S_RB}, s{S_WAVE}, {11 if D6 else 13}")
    A(f"s_add_u32 s{S_RB}, s{S_RB}, {STG}")
    A(f"s_lshl_b32 s{S_OFF}, s{S_G}, 10")
    A(f"s_lshl_b32 s{S_TMP}, s{S_WAVE}, 7")
    A(f"s_add_u32 s{S_OFF}, s{S_OFF}, s{S_TMP}")
    if P4:
        assert D6 and not M16
        A(f"v_lshrrev_b32 v5, 4, v{L}")
        A(f"v_and_b32 v6, 15, v{L}")
        A(f"s_lshl_b32 s{S_TMP}, s{S_WAVE}, 3")
        A(f"v_add_u32 v7, s{S_TMP}, v5")
        A(f"v_xor_b32 v9, v7, v{L}")
        A("v_and_b32 v9, 15, v9")
        A("v_lshlrev_b32 v9, 4, v9")
        A(f"v_lshl_add_u32 v{V_KOFF}, v7, 8, v9")
        A(f"v_xor_b32 v{V_KOFF+1}, 64, v{V_KOFF}")
        A("v_lshlrev_b32 v9, 2, v5")
        A("v_xor_b32 v9, v6, v9")
        A("v_lshlrev_b32 v9, 4, v9")
        A(f"v_lshl_add_u32 v{V_VOFF}, v7, 8, v9")
        A(f"s_lshl_b32 s{S_KVM0}, s{S_WAVE}, 11")
        A(f"v_lshrrev_b32 v5, 5, v{L}")
        A(f"v_bfe_u32 v6, v{L}, 4, 1")
        A(f"v_bfe_u32 v7, v{L}, 2, 2")
        A(f"v_and_b32 v8, 1, v{L}")
        A(f"v_bfe_u32 v9, v{L}, 1, 1")
        A("v_lshl_or_b32 v8, v8, 1, v9")
        A("v_lshlrev_b32 v8, 3, v8")
        A("v_lshl_add_u32 v8, v6, 5, v8")
        A("v_lshl_add_u32 v10, v5, 3, v7")
        A("v_lshrrev_b32 v11, 1, v7")
        A("v_lshl_add_u32 v9, v11, 6, v8")
        A("v_lshl_add_u32 v9, v10, 7, v9")
        A(f"v_add_u32 v{V_AADDR}, s{S_RB}, v9")
        A(f"v_xor_b32 v{V_AADDR+1}, 64, v{V_AADDR}")
        for nb in range(2): A(f"v_add_u32 v{V_AADDR2[nb]}, 65536, v{V_AADDR+nb}")
        A("v_lshl_add_u32 v9, v7, 6, v8")
        A("v_lshl_add_u32 v9, v10, 8, v9")
        A(f"v_add_u32 v{V_VADDR}, {VRING}, v9")
        for db in range(1, 4): A(f"v_xor_b32 v{V_VADDR+db}, {db << 6}, v{V_VADDR}")
        A(f"v_and_b32 v6, 31, v{L}")
        A("v_xor_b32 v7, v5, v6")
        A("v_and_b32 v7, 15, v7")
        A("v_lshlrev_b32 v7, 4, v7")
        A(f"v_lshl_add_u32 v{V_BADDR}, v6, 10, v7")
        for j in range(1, 8): A(f"v_xor_b32 v{V_BADDR+j}, {j << 5}, v{V_BADDR}")
        A("v_and_b32 v7, 0x13, v6")
        A("v_bfe_u32 v8, v6, 2, 1")
        A("v_lshl_or_b32 v7, v8, 3, v7")
        A("v_bfe_u32 v8, v6, 3, 1")
        A("v_lshl_or_b32 v7, v8, 2, v7")
        A("v_xor_b32 v8, v5, v7")
        A("v_and_b32 v8, 15, v8")
        A("v_lshlrev_b32 v8, 4, v8")
        A("v_lshl_add_u32 v8, v7, 8, v8")
        A(f"v_add_u32 v{V_KADDR}, {KRING}, v8")
        for j in range(1, 8): A(f"v_xor_b32 v{V_KADDR+j}, {j << 5}, v{V_KADDR}")
        A(f"v_and_b32 v14, 48, v{L}")
        A(f"v_xor_b32 v15, s71, v{L}")
        A("v_and_or_b32 v15, v15, 15, v14")
        A("v_lshlrev_b32 v15, 4, v15")
        A(f"s_lshl_b32 s{S_TMP+1}, s71, 10")
        A(f"v_add_u32 v{V_QADDR}, s{S_TMP+1}, v15")
        for i in range(1, 8): A(f"v_xor_b32 v{V_QADDR+i}, {i * 1040}, v{V_QADDR}")
        A(f"v_lshlrev_b32 v13, 5, v{L}")
        A(f"v_mov_b32 v{V_K10}, 0x3f80")
        A(f"v_mov_b32 v{V_K01}, 1.0")
    else:
        A(f"v_lshrrev_b32 v5, 4, v{L}")
        A(f"v_and_b32 v6, 15, v{L}")
        A(f"s_lshl_b32 s{S_TMP}, s{S_WAVE}, 3")
        A(f"v_add_u32 v7, s{S_TMP}, v5")
        for j in range(2):
            A(f"v_add_u32 v8, {4*j}, v7")
            A("v_and_b32 v9, 15, v8")
            A("v_xor_b32 v9, v6, v9")
            A("v_lshlrev_b32 v9, 4, v9")
            A(f"v_lshl_add_u32 v{V_KOFF+j}, v7, 8, v9")
        A("v_lshlrev_b32 v9, 2, v5")
        A("v_xor_b32 v9, v6, v9")
        A("v_lshlrev_b32 v9, 4, v9")
        A(f"v_lshl_add_u32 v{V_VOFF}, v7, 8, v9")
        A(f"s_lshl_b32 s{S_KVM0}, s{S_WAVE}, 11")
        A(f"v_lshrrev_b32 v5, 5, v{L}")
        A(f"v_bfe_u32 v6, v{L}, 4, 1")
        A(f"v_bfe_u32 v7, v{L}, 2, 2")
        A(f"v_and_b32 v8, 1, v{L}")
        A(f"v_bfe_u32 v9, v{L}, 1, 1")
        A("v_lshl_or_b32 v8, v8, 1, v9")
        A("v_lshlrev_b32 v8, 3, v8")
        A("v_lshl_add_u32 v8, v6, 5, v8")
        A("v_lshl_add_u32 v10, v5, 3, v7")
        A("v_lshrrev_b32 v11, 1, v7")
        for nb in range(2):
            A(f"v_xor_b32 v12, {nb}, v11")
            A("v_lshl_add_u32 v12, v12, 6, v8")
            A("v_lshl_add_u32 v12, v10, 7, v12")
            A(f"v_add_u32 v{V_AADDR+nb}, s{S_RB}, v12")
            if M16: A(f"v_xor_b32 v{V_AADDR2[nb]}, 32, v{(V_WQOFF, V_WOOFF)[nb]}")
            elif D6: A(f"v_add_u32 v{V_AADDR2[nb]}, 65536, v{V_AADDR+nb}")
        for db in range(4):
            A(f"v_xor_b32 v12, {db}, v7")
            A("v_lshl_add_u32 v12, v12, 6, v8")
            A(f"v_lshl_add_u32 v12, v10, 8, v12")
            A(f"v_add_u32 v{V_VADDR+db}, {VRING}, v12")
        A(f"v_and_b32 v6, 31, v{L}")
        for j in range(8):
            A(f"v_or_b32 v7, {2*j}, v5")
            A("v_xor_b32 v7, v7, v6")
            A("v_and_b32 v7, 15, v7")
            A("v_lshlrev_b32 v7, 4, v7")
            A(f"v_lshl_add_u32 v{V_BADDR+j}, v6, 10, v7")
        A("v_and_b32 v7, 0x13, v6")
        A("v_bfe_u32 v8, v6, 2, 1")
        A("v_lshl_or_b32 v7, v8, 3, v7")
        A("v_bfe_u32 v8, v6, 3, 1")
        A("v_lshl_or_b32 v7, v8, 2, v7")
        for j in range(8):
            A(f"v_or_b32 v8, {2*j}, v5")
            A("v_xor_b32 v8, v8, v7")
            A("v_and_b32 v8, 15, v8")
            A("v_lshlrev_b32 v8, 4, v8")
            A(f"v_lshl_add_u32 v8, v7, 8, v8")
            A(f"v_add_u32 v{V_KADDR+j}, {KRING}, v8")
        A(f"s_lshl_b32 s{S_TMP}, s{S_WAVE}, 3")
        A(f"v_and_b32 v14, 48, v{L}")
        for i in range(8):
            A(f"s_add_u32 s{S_TMP+1}, s{S_TMP}, {i}")
            A(f"v_xor_b32 v15, s{S_TMP+1}, v{L}")
            A("v_and_or_b32 v15, v15, 15, v14")
            A("v_lshlrev_b32 v15, 4, v15")
            A(f"s_lshl_b32 s{S_TMP+1}, s{S_TMP+1}, 10")
            A(f"v_add_u32 v{V_QADDR+i}, s{S_TMP+1}, v15")
        A(f"s_lshl_b32 s{S_TMP}, s{S_M}, 16")
        A(f"s_lshl_b32 s{S_TMP+1}, s{S_WAVE}, 13")
        A(f"s_add_u32 s{S_TMP}, s{S_TMP}, s{S_TMP+1}")
        A(f"s_add_u32 s{S_TMP+1}, s{S_TMP}, 4096")
        A(f"v_lshlrev_b32 v12, 4, v{L}")
        A(f"v_lshlrev_b32 v13, 5, v{L}")
        A("s_waitcnt lgkmcnt(0)")
        make_srd(A, S_XN, 68, WS_XN, 2 * MB)
        make_srd(A, S_MOD, 68, WS_MOD, 3072 * 4)
    XR = V_S
    SA = V_S + 32; CA = V_S + 40
    def p0_loads():
        A(f"buffer_load_dwordx4 v[{CA}:{CA+3}], v13, s[{S_MOD}:{S_MOD+3}], 0 offen offset:2048"); vm.issue("mod")
        A(f"buffer_load_dwordx4 v[{CA+4}:{CA+7}], v13, s[{S_MOD}:{S_MOD+3}], 0 offen offset:2064"); vm.issue("mod")
        A(f"buffer_load_dwordx4 v[{SA}:{SA+3}], v13, s[{S_MOD}:{S_MOD+3}], 0 offen"); vm.issue("mod")
        A(f"buffer_load_dwordx4 v[{SA+4}:{SA+7}], v13, s[{S_MOD}:{S_MOD+3}], 0 offen offset:16"); vm.issue("mod")
        for i in range(8):
            A(f"buffer_load_dwordx4 v[{XR+4*i}:{XR+4*i+3}], v12, s[{S_XN}:{S_XN+3}], s{S_TMP + (i >> 2)} offen offset:{(i & 3) * 1024}")
            vm.issue(("x", i))
    if EARLYA: pass
    elif hookA: hookA()
    else: p0_loads()
    make_srd(A, S_WQ, 64, 0, 4 * MB)
    if hookB: pass
    elif D6: gemm_dma6(A, vm, 0, S_WQ, V_WQOFF, 8192)
    else: gemm_dma(A, vm, 0, S_WQ, V_WQOFF, 8192, D)
    A(f"s_lshl_b32 s{S_TMP}, s{S_G}, 19")
    A(f"s_add_u32 s{S_TMP+1}, s{S_TMP}, {1536 * 256}")
    make_srd(A, S_K, 60, f"s{S_TMP+1}", 512 * 256)
    make_srd(A, S_V, 62, f"s{S_TMP+1}", 512 * 256)
    make_srd(A, S_WO, 66, f"s{S_TMP}", 512 * 1024)
    psz = 2 if PART_BF16 else 4
    A(f"s_mov_b32 s{S_SL}, {fhex(SCALE*LOG2E)}")
    PL = int(os.environ.get("PL", "1")) and emb
    if PL:
        A(f"s_lshl_b32 s{S_TMP+2}, s{S_M}, 3")
        A(f"s_add_u32 s{S_TMP+2}, s{S_TMP+2}, s{S_G}")
        A(f"s_lshl_b32 s{S_TMP+2}, s{S_TMP+2}, 16")
        A(f"s_add_u32 s{S_TMP+2}, s{S_TMP+2}, {WS_PART}")
        make_srd(A, S_P, 68, f"s{S_TMP+2}", 65536)
    else:
        A(f"s_mul_i32 s{S_TMP+2}, s{S_G}, {2048 * 512 * psz}")
        A(f"s_add_u32 s{S_TMP+2}, s{S_TMP+2}, {WS_PART}")
        make_srd(A, S_P, 68, f"s{S_TMP+2}", 2048 * 512 * psz)
    if DEBUG or TIMING:
        make_srd(A, S_DBG, 68, WS_DBG, 32 * MB)
    stamp(True); stamp()
    SCR = STG + SCRO
    if hookB and v2:
        LDE = int(os.environ.get("LDE", "2"))
        KVL = int(os.environ.get("KVL", "1"))
        def kvpf():
            A(f"v_lshlrev_b32 v5, 7, v{L}")
            A(f"s_lshl_b32 s{S_TMP}, s{S_M}, 12")
            A(f"s_add_u32 s{S_TMP+1}, s{S_TMP}, 4096")
            A(f"s_cmp_lg_u32 s{S_WAVE}, 4")
            A("s_cbranch_scc1 .Lk1_nkv")
            A("s_mov_b32 exec_hi, 0")
            A(f"buffer_load_dword v15, v5, s[{S_K}:{S_K+3}], s{S_TMP} offen")
            A(f"buffer_load_dword v15, v5, s[{S_V}:{S_V+3}], s{S_TMP} offen")
            A("s_mov_b64 exec, -1")
            A.label(".Lk1_nkv")
        def loader():
            for st in range(LDE): gemm_dma6(A, vm, st, S_WQ, V_WQOFF, 8192)
            A(f"s_sub_u32 s{S_RB}, s{S_RB}, 8192")
            A(f"s_sub_u32 s{S_OFF}, s{S_OFF}, {LDE * 16 * 8192 + 512}")
            for st in range(LDE): gemm_dma6(A, vm, st, S_WQ, V_WQOFF, 8192)
            A(f"s_add_u32 s{S_RB}, s{S_RB}, 8192")
            A(f"s_add_u32 s{S_OFF}, s{S_OFF}, 512")
            if not KVL: kvpf()
        def cfix():
            A(f"s_add_u32 s{S_OFF}, s{S_OFF}, {LDE * 16 * 8192}")
        def xn_loads():
            vm.ops = []
            A(f"s_lshl_b32 s{S_TMP}, s{S_M}, 16")
            A(f"s_lshl_b32 s{S_TMP+1}, s{S_WAVE}, 13")
            A(f"s_add_u32 s{S_TMP}, s{S_TMP}, s{S_TMP+1}")
            A(f"s_add_u32 s{S_TMP+1}, s{S_TMP}, 4096")
            for i in range(8):
                A(f"buffer_load_dwordx4 v[{XR+4*i}:{XR+4*i+3}], v12, s[{S_XN}:{S_XN+3}], s{S_TMP + (i >> 2)} offen offset:{(i & 3) * 1024}")
                vm.issue(("x", i))
        def ownfill():
            for st in range(LDE):
                if R7: dma7(A, vm, st)
                else: gemm_dma6(A, vm, st, S_WQ, V_WQOFF, 8192)
        if R7:
            def cfix():
                for st in range(LDE, 5): dma7(A, vm, st)
        hookB(ownfill if int(os.environ.get("MEGA", "7")) >= 6 else loader, cfix, xn_loads)
        lg.ops = []
        A(f"v_add_u32 v2, {SCR + 4096}, v13")
        A(f"ds_read_b128 v[{CA}:{CA+3}], v2 offset:2048")
        A(f"ds_read_b128 v[{CA+4}:{CA+7}], v2 offset:2064")
        A(f"ds_read_b128 v[{SA}:{SA+3}], v2")
        A(f"ds_read_b128 v[{SA+4}:{SA+7}], v2 offset:16")
        A("s_waitcnt lgkmcnt(0)")
    elif hookB:
        def early():
            for st in range(6): gemm_dma6(A, vm, st, S_WQ, V_WQOFF, 8192)
            A(f"s_cmp_lg_u32 s{S_WAVE}, 6")
            A("s_cbranch_scc1 .Lk1_e6")
            A(f"s_add_u32 s{S_RB}, s{S_RB}, 2048")
            A(f"s_sub_u32 s{S_OFF}, s{S_OFF}, {6 * 16 * 8192 - 128}")
            for st in range(6): gemm_dma6(A, vm, st, S_WQ, V_WQOFF, 8192)
            A(f"s_sub_u32 s{S_RB}, s{S_RB}, 2048")
            A(f"s_sub_u32 s{S_OFF}, s{S_OFF}, 128")
            A.label(".Lk1_e6")
            A(f"v_lshlrev_b32 v5, 6, v{L}")
            A(f"s_lshl_b32 s{S_TMP}, s{S_M}, 12")
            A(f"buffer_load_dword v15, v5, s[{S_K}:{S_K+3}], s{S_TMP} offen")
            A(f"buffer_load_dword v15, v5, s[{S_V}:{S_V+3}], s{S_TMP} offen")
        def w7():
            A(f"s_add_u32 s{S_OFF}, s{S_OFF}, {6 * 16 * 8192}")
        hookB(0, early, w7)
        vm.ops = []; lg.ops = []
        A(f"s_lshl_b32 s{S_TMP}, s{S_M}, 16")
        A(f"s_lshl_b32 s{S_TMP+1}, s{S_WAVE}, 13")
        A(f"s_add_u32 s{S_TMP}, s{S_TMP}, s{S_TMP+1}")
        A(f"s_add_u32 s{S_TMP+1}, s{S_TMP}, 4096")
        p0_loads()
    vm.wait("mod")
    for j in range(0, 8 if not v2 else 0, 2):
        A(f"v_add_f32 v{CA+j}, 1.0, v{CA+j}")
        A(f"v_add_f32 v{CA+j+1}, 1.0, v{CA+j+1}")
        round_bf16_2(A, CA + j, CA + j + 1, V_T, SM)
    for i in range(8 if P4 else 0):
        x = XR + 4 * i; T = 64 + 16 * (i & 1)
        for j in range(8): A(f"v_dot2_f32_bf16 v{T+j}, v{x+j//2}, v{CA+j}, 0")
        for j in range(4): A(f"v_cvt_pk_bf16_f32 v{x+j}, v{T+2*j}, v{T+2*j+1}")
        for j in range(8): A(f"v_dot2_f32_bf16 v{T+8+j}, v{x+j//2}, v{(V_K10, V_K01)[j & 1]}, v{SA+j}")
        for j in range(4): A(f"v_cvt_pk_bf16_f32 v{x+j}, v{T+8+2*j}, v{T+8+2*j+1}")
        A(f"ds_write_b128 v{V_QADDR+i}, v[{x}:{x+3}]")
        lg.issue("hw")
        if R7:
            R7O = int(os.environ.get("R7O", "0"))
            j = i - R7O
            if 1 <= j <= 5:
                lg.wait(("w5", j - 1)); dma7(A, vm, j + 4)
            if 0 <= j < 5:
                vm.wait(("w", j)); wreads7(A, lg, j)
        elif LDE + i < 5: gemm_dma6(A, vm, LDE + i, S_WQ, V_WQOFF, 8192)
    for i in range(0 if P4 else 8):
        x = XR + 4 * i
        vm.wait(("x", i))
        for j in range(4):
            a = 2 + 2 * j
            A(f"v_lshlrev_b32 v{a}, 16, v{x+j}")
            A(f"v_and_b32 v{a+1}, {SM}, v{x+j}")
        for j in range(0, 8, 2):
            A(f"v_pk_mul_f32 v[{2+j}:{3+j}], v[{2+j}:{3+j}], v[{CA+j}:{CA+j+1}]")
        for j in range(4):
            a = 2 + 2 * j
            A(f"v_cvt_pk_bf16_f32 v{x+j}, v{a}, v{a+1}")
        for j in range(4):
            a = 2 + 2 * j
            A(f"v_lshlrev_b32 v{a}, 16, v{x+j}")
            A(f"v_and_b32 v{a+1}, {SM}, v{x+j}")
        for j in range(0, 8, 2):
            A(f"v_pk_add_f32 v[{2+j}:{3+j}], v[{2+j}:{3+j}], v[{SA+j}:{SA+j+1}]")
        for j in range(4):
            a = 2 + 2 * j
            A(f"v_cvt_pk_bf16_f32 v{x+j}, v{a}, v{a+1}")
        A(f"ds_write_b128 v{V_QADDR+i}, v[{x}:{x+3}]")
        lg.issue("hw")
        if hookB and v2:
            if LDE + i < 5: gemm_dma6(A, vm, LDE + i, S_WQ, V_WQOFF, 8192)
        elif hookB: pass
        elif D6:
            if i in (1, 3, 5, 6, 7): gemm_dma6(A, vm, {1: 1, 3: 2, 5: 3, 6: 4, 7: 5}[i], S_WQ, V_WQOFF, 8192)
        elif i in (1, 3, 5):
            gemm_dma(A, vm, (i + 1) // 2, S_WQ, V_WQOFF, 8192, D)
    if not D6:
        k_dma(A, vm, 0)
        k_dma(A, vm, 1)
    if PREFETCH and not hookB:
        A(f"v_lshlrev_b32 v5, 6, v{L}")
        A(f"s_lshl_b32 s{S_TMP}, s{S_M}, 12")
        A(f"buffer_load_dword v15, v5, s[{S_K}:{S_K+3}], s{S_TMP} offen"); vm.issue("pf")
        A(f"buffer_load_dword v15, v5, s[{S_V}:{S_V+3}], s{S_TMP} offen"); vm.issue("pf")
    if hookC:
        if KVL: kvpf()
        hookC()
    if M16: addr16(A)
    lg.waitall()
    stamp()
    A("s_barrier")
    stamp()
    if D6:
        def tail1(ks):
            if ks == 26: k_dma(A, vm, 0)
            if ks == 27: k_dma(A, vm, 1)
            if ks == 28: v_dma(A, vm, 0)
            if ks == 29: v_dma(A, vm, 1)
            if ks == 31: k_dma(A, vm, 2)
        if R7: gemm_core7(A, vm, lg, tail1)
        elif M16: gemm_core16(A, vm, lg, S_WQ, V_WQOFF, 8192, 5 if v2 else 6, tail1)
        else: gemm_core6(A, vm, lg, S_WQ, V_WQOFF, 8192, 5 if v2 else 6, tail1, bars=eval(os.environ.get('B1', '()')))
    else:
        gemm_core(A, vm, lg, S_WQ, V_WQOFF, 8192, D)
    stamp()
    A("s_barrier")
    if not D6:
        v_dma(A, vm, 0)
        k_dma(A, vm, 2)
        v_dma(A, vm, 1)
    A(f"s_and_b32 s{S_TMP}, s{S_WAVE}, 1")
    A(f"s_lshr_b32 s{S_TMP+1}, s{S_WAVE}, 1")
    A(f"s_lshl_b32 s{S_TMP+1}, s{S_TMP+1}, 8")
    A(f"s_cmp_eq_u32 s{S_TMP}, 1")
    A(f"s_cselect_b64 vcc, -1, 0")
    A(f"v_mov_b32 v{V_ALPHA}, s{S_SL}")
    if M16:
        A(f"v_lshrrev_b32 v6, 5, v{L}")
        A(f"v_and_b32 v7, 15, v{L}")
        A(f"s_lshl_b32 s{S_TMP}, s{S_TMP}, 3")
        A(f"v_or_b32 v6, s{S_TMP}, v6")
        A("v_xor_b32 v6, v6, v7")
        A(f"v_bfe_u32 v8, v{L}, 4, 1")
        A("v_lshlrev_b32 v8, 3, v8")
        A("v_lshl_add_u32 v8, v7, 10, v8")
        A(f"v_add_u32 v8, s{S_TMP+1}, v8")
        for nt in range(4):
            A(f"v_xor_b32 v9, {2*nt}, v6")
            A(f"v_lshl_add_u32 v{2+nt}, v9, 4, v8")
        for nt in range(4):
            for rt in range(4):
                acc = V_ACC + (nt * 4 + rt) * 4
                d = V_S + (nt * 4 + rt) * 2
                for e in range(0, 4, 2):
                    A(f"v_pk_mul_f32 v[{acc+e}:{acc+e+1}], v[{acc+e}:{acc+e+1}], v[{V_ALPHA}:{V_ALPHA+1}] op_sel_hi:[1,0]")
                for e in range(2):
                    A(f"v_cvt_pk_bf16_f32 v{d+e}, v{acc+2*e}, v{acc+2*e+1}")
                A(f"ds_write_b64 v{2+nt}, v[{d}:{d+1}] offset:{rt*16384}")
                lg.issue("qw")
    else:
        for j in range(4):
            A(f"v_cndmask_b32 v{2+j}, v{V_BADDR+j}, v{V_BADDR+4+j}, vcc")
            A(f"v_add_u32 v{2+j}, s{S_TMP+1}, v{2+j}")
        for nb in range(2):
            for rb in range(2):
                acc = V_ACC + (nb * 2 + rb) * 16
                for mp in range(2):
                    d = V_S + (nb * 4 + rb * 2 + mp) * 4
                    if CT:
                        for e in range(0, 8, 2):
                            A(f"v_pk_mul_f32 v[{acc+8*mp+e}:{acc+8*mp+e+1}], v[{acc+8*mp+e}:{acc+8*mp+e+1}], v[{V_ALPHA}:{V_ALPHA+1}] op_sel_hi:[1,0]")
                    for e in range(4):
                        A(f"v_cvt_pk_bf16_f32 v{d+e}, v{acc+8*mp+2*e}, v{acc+8*mp+2*e+1}")
                    A(f"ds_write_b128 v{2+2*nb+mp}, v[{d}:{d+3}] offset:{rb*32768}")
                    lg.issue("qw")
                    if DEBUG:
                        A(f"v_and_b32 v8, 31, v{L}")
                        A(f"v_lshrrev_b32 v9, 5, v{L}")
                        A("v_lshlrev_b32 v8, 13, v8")
                        A("v_lshl_add_u32 v8, v9, 4, v8")
                        A(f"s_lshl_b32 s{S_TMP+2}, s{S_M}, 19")
                        A(f"s_lshl_b32 s{S_TMP+3}, s{S_G}, 10")
                        A(f"s_add_u32 s{S_TMP+2}, s{S_TMP+2}, s{S_TMP+3}")
                        A(f"s_lshl_b32 s{S_TMP+3}, s{S_WAVE}, 7")
                        A(f"s_add_u32 s{S_TMP+2}, s{S_TMP+2}, s{S_TMP+3}")
                        A(f"s_add_u32 s{S_TMP+2}, s{S_TMP+2}, {rb*32*8192 + nb*64 + mp*32}")
                        A(f"buffer_store_dwordx4 v[{d}:{d+3}], v8, s[{S_DBG}:{S_DBG+3}], s{S_TMP+2} offen")
                        vm.issue("dbg")
    A(f"s_and_b32 s{S_TMP}, s{S_WAVE}, 3")
    A(f"s_lshl_b32 s{S_TMP}, s{S_TMP}, 8")
    A(f"s_lshr_b32 s{S_TMP+1}, s{S_WAVE}, 2")
    A(f"s_lshl_b32 s{S_TMP+1}, s{S_TMP+1}, 15")
    A(f"s_add_u32 s{S_QOFF}, s{S_TMP}, s{S_TMP+1}")
    for j in range(8):
        A(f"v_add_u32 v{V_QADDR+j}, s{S_QOFF}, v{V_BADDR+j}")
    lg.waitall()
    vm.wait(("k", 0))
    A("s_barrier")
    stamp()
    if PRIO:
        A(f"s_cmp_lt_u32 s{S_WAVE}, 4")
        A("s_cbranch_scc1 .Lk1_noprio" if PRIO == 1 else "s_cbranch_scc0 .Lk1_noprio")
        A("s_setprio 1")
        A.label(".Lk1_noprio")
    for j in range(8):
        A(f"ds_read_b128 v[{V_Q+4*j}:{V_Q+4*j+3}], v{V_QADDR+j}")
        lg.issue("q")
    seq = []
    for kb in range(2):
        for j in range(8):
            seq.append(("k", 0, kb, j))
    for t in range(8):
        if t > 0:
            for db in range(4): seq.append(("v", t - 1, 3, db))
        if t + 1 < 8:
            for kb in range(2):
                for j in range(8): seq.append(("k", t + 1, kb, j))
        for ks in range(3):
            for db in range(4): seq.append(("v", t, ks, db))
    for db in range(4): seq.append(("v", 7, 3, db))
    state = {"issued": 0, "limit": 0}
    def issue_frag(i):
        kind, t, a, b = seq[i]
        f = V_F + (i % NF) * 4
        if (EXPT & 4) and i >= 8: return
        if (EXPT & 16) and (i & 1): return
        if kind == "k":
            A(f"ds_read_b128 v[{f}:{f+3}], v{V_KADDR+b} offset:{((t + 1) % 3) * 16384 + a * 8192}")
            lg.issue(("fr", i))
        else:
            o = (t % 3) * 16384 + a * 4096
            A(f"ds_read_b64_tr_b16 v[{f}:{f+1}], v{V_VADDR+b} offset:{o}")
            lg.issue(("fr", i))
            A(f"ds_read_b64_tr_b16 v[{f+2}:{f+3}], v{V_VADDR+b} offset:{o + 1024}")
            lg.issue(("fr", i))
    def avail(i, epoch):
        kind, t, a, b = seq[i]
        return (t - 1 <= epoch) if kind == "k" else (t <= epoch)
    def runahead(cur, epoch):
        while state["issued"] < len(seq) and state["issued"] <= cur + RA and avail(state["issued"], epoch):
            issue_frag(state["issued"]); state["issued"] += 1
    def mfma(i, epoch):
        kind, t, a, b = seq[i]
        runahead(i - 1, epoch)
        assert state["issued"] > i
        f = V_F + (i % NF) * 4
        lg.wait(("fr", i))
        if (EXPT & 2048) and kind == "k":
            for hh in range(2):
                s4 = V_S + (t & 1) * 32 + a * 16 + (b & 1) * 8 + hh * 4
                c4 = ("0" if t == 0 else f"v[{V_NB}:{V_NB+3}]") if b < 2 else f"v[{s4}:{s4+3}]"
                A(f"v_mfma_f32_16x16x32_bf16 v[{s4}:{s4+3}], v[{f}:{f+3}], v[{V_Q+4*(b^hh)}:{V_Q+4*(b^hh)+3}], {c4}")
        elif (EXPT & 4096) and kind == "v":
            for hh in range(2):
                o4 = V_ACC + b * 16 + (a & 1) * 8 + hh * 4
                p = V_S + (t & 1) * 32 + 4 * a
                c4 = "0" if (t == 0 and a < 2) else f"v[{o4}:{o4+3}]"
                A(f"v_mfma_f32_16x16x32_bf16 v[{o4}:{o4+3}], v[{f}:{f+3}], v[{p}:{p+3}], {c4}")
        elif kind == "k":
            s = V_S + (t & 1) * 32 + a * 16
            c = ("0" if (t == 0 or not CT) else f"v[{V_NB}:{V_NB+15}]") if b == 0 else f"v[{s}:{s+15}]"
            A(f"v_mfma_f32_32x32x16_bf16 v[{s}:{s+15}], v[{f}:{f+3}], v[{V_Q+4*b}:{V_Q+4*b+3}], {c}")
        else:
            o = V_ACC + b * 16
            p = V_S + (t & 1) * 32 + 4 * a
            c = "0" if (t == 0 and a == 0) else f"v[{o}:{o+15}]"
            A(f"v_mfma_f32_32x32x16_bf16 v[{o}:{o+15}], v[{f}:{f+3}], v[{p}:{p+3}], {c}")
        runahead(i, epoch)
    def seg(idx, n, valu, epoch):
        nv = len(valu); k = 0
        def em(x):
            if isinstance(x, list):
                for y in x:
                    if y.endswith(":"): A.label(y[:-1])
                    else: A(y)
            else: A(x)
        if n == 0:
            for x in valu: em(x)
            return idx
        for m_ in range(n):
            mfma(idx + m_, epoch)
            upto = (nv * (m_ + 1) + n - 1) // n
            while k < upto:
                em(valu[k]); k += 1
        return idx + n
    if DOT2:
        assert NOMAX
        A(f"v_mov_b32 v{PSUM}, 0"); A(f"v_mov_b32 v{PSUM+1}, 0"); A("v_mov_b32 v14, 0x3f803f80")
    idx = seg(0, 16, [], -1)
    for t in range(8):
        if t + 1 < 8: vm.wait(("k", t + 1))
        vm.wait(("v", t))
        if not (EXPT & 8): A("s_barrier")
        if t >= 0 and t + 3 < 8: k_dma(A, vm, t + 3)
        if t >= 1 and t + 1 < 8: v_dma(A, vm, t + 1)
        PFMODE = int(os.environ.get("PFMODE", "1"))
        if PREFETCH and t == 1:
            A("v_lshlrev_b32 v12, 6, v0")
            A(f"s_lshl_b32 s{S_TMP}, s{S_M}, 14")
            A(f"s_add_u32 s{S_TMP+1}, s{S_TMP}, 16384")
            A(f"s_mov_b32 s{S_XN}, s{S_WO}")
            A(f"s_mov_b32 s{S_XN+1}, s{S_WO+1}")
            A(f"s_mov_b32 s{S_XN+2}, s{S_TMP+1}")
            if P4: A(f"s_mov_b32 s{S_XN+3}, 0x00020000")
            A(f"buffer_load_dword v15, v12, s[{S_XN}:{S_XN+3}], s{S_TMP} offen"); vm.issue("pf")
        if PREFETCH and PFMODE < 2:
            for (tt, p, sz) in ((2, 92, 512*1024), (2, 94, 512*1024), (3, 96, 1792*1024), (4, 98, 1792*1024)):
                if t != (1 if PFMODE == 0 else tt): continue
                per = sz // 256
                if p == 96 and int(os.environ.get("K5N", "0")): per = (56 * int(os.environ.get('W3S', '32768')) // 256 + 63) // 64 * 64
                A(f"s_mul_i32 s{S_TMP}, s2, {per}")
                if p == 96 and int(os.environ.get("K5N", "0")):
                    A(f"s_add_u32 s{S_TMP}, s{S_TMP}, {28 * MB}")
                    p = 68
                make_srd(A, S_XN, p, f"s{S_TMP}", per)
                A(f"buffer_load_dword v15, v12, s[{S_XN}:{S_XN+3}], 0 offen"); vm.issue("pf")
        XPF = int(os.environ.get("XPF", "0"))
        if XPF and t in (5, 6):
            for (tt, p, sz, bit) in ((5, 96, 1792*1024, 1), (6, 98, 1792*1024, 2), (5, 92, 512*1024, 4), (6, 94, 512*1024, 4)):
                if t != tt or not (XPF & bit): continue
                per = sz // 32
                A(f"s_lshr_b32 s{S_TMP}, s2, 3")
                A(f"s_mul_i32 s{S_TMP}, s{S_TMP}, {per}")
                make_srd(A, S_XN, p, f"s{S_TMP}", per)
                A("v_lshlrev_b32 v13, 7, v0")
                A(f"buffer_load_dword v15, v13, s[{S_XN}:{S_XN+3}], 0 offen"); vm.issue("pf")
        if t == 7 and PD:
            A(f"s_lshl_b32 s{S_OFF}, s{S_WAVE}, 16")
            A(f"v_lshlrev_b32 v{V_WOOFF}, 4, v{L}")
            for st in range(4): pd_load(A, vm, st)
        elif t == 7 and D6:
            A(f"s_lshl_b32 s{S_OFF}, s{S_WAVE}, 7")
            for st in range(4):
                gemm_dma6(A, vm, st, S_WO, V_WOOFF, 1024)
        elif t == 7:
            A(f"s_add_u32 s{S_RB}, s{S_RB}, 32768")
            A(f"s_lshl_b32 s{S_OFF}, s{S_WAVE}, 7")
            for nb in range(2):
                A(f"v_add_u32 v{V_AADDR+nb}, 32768, v{V_AADDR+nb}")
            for st in range(D):
                gemm_dma(A, vm, st, S_WO, V_WOOFF, 1024, D)
        mxl = sm_max(t)
        if t == 0:
            mxl = ["s_nop 7", "s_nop 3"] + mxl
        idx = seg(idx, 4 if t > 0 else 0, mxl, t)
        b = sm_quarter(t, 0) + sm_rescale(t) + sm_quarter(t, 1) + ["s_nop 1"]
        idx = seg(idx, 16 if t + 1 < 8 else 0, b, t)
        q3 = sm_quarter(t, 3)
        h = len(q3) // 3
        idx = seg(idx, 8, sm_quarter(t, 2) + ["s_nop 1"] + q3[:h], t)
        idx = seg(idx, 4, q3[h:] + sm_lupd(t) + ["s_nop 1"], t)
        stamp()
    idx = seg(idx, 4, [], 7)
    assert idx == len(seq)
    if DOT2: A(f"v_add_f32 v{V_L}, v{PSUM}, v{PSUM+1}")
    A(f"v_mov_b32 v2, v{V_L}")
    A(f"v_mov_b32 v3, v{V_L}")
    A("s_nop 1")
    A(f"v_permlane32_swap_b32 v2, v3")
    A("s_nop 1")
    A(f"v_add_f32 v{V_L}, v2, v3")
    for j in range(8):
        A(f"v_add_u32 v{V_QADDR+j}, s{S_QOFF}, v{V_BADDR+j}")
    A(f"v_rcp_f32 v{V_ALPHA}, v{V_L}")
    A("s_nop 7")
    A("s_nop 3")
    for db in range(4):
        o = V_ACC + db * 16
        for mp in range(2):
            d = V_S + (db * 2 + mp) * 4
            for e in range(0, 8, 2):
                A(f"v_pk_mul_f32 v[{o+8*mp+e}:{o+8*mp+e+1}], v[{o+8*mp+e}:{o+8*mp+e+1}], v[{V_ALPHA}:{V_ALPHA+1}] op_sel_hi:[1,0]")
            for e in range(4):
                A(f"v_cvt_pk_bf16_f32 v{d+e}, v{o+8*mp+2*e}, v{o+8*mp+2*e+1}")
            A(f"ds_write_b128 v{V_QADDR+2*db+mp}, v[{d}:{d+3}]")
            lg.issue("ow")
            if DEBUG:
                A(f"v_and_b32 v5, 31, v{L}")
                A(f"v_lshrrev_b32 v6, 5, v{L}")
                A("v_lshlrev_b32 v5, 13, v5")
                A("v_lshl_add_u32 v5, v6, 4, v5")
                A(f"s_lshl_b32 s{S_TMP+2}, s{S_M}, 19")
                A(f"s_lshl_b32 s{S_TMP+3}, s{S_G}, 10")
                A(f"s_add_u32 s{S_TMP+2}, s{S_TMP+2}, s{S_TMP+3}")
                A(f"s_and_b32 s{S_TMP+3}, s{S_WAVE}, 3")
                A(f"s_lshl_b32 s{S_TMP+3}, s{S_TMP+3}, 8")
                A(f"s_add_u32 s{S_TMP+2}, s{S_TMP+2}, s{S_TMP+3}")
                A(f"s_lshr_b32 s{S_TMP+3}, s{S_WAVE}, 2")
                A(f"s_lshl_b32 s{S_TMP+3}, s{S_TMP+3}, 18")
                A(f"s_add_u32 s{S_TMP+2}, s{S_TMP+2}, s{S_TMP+3}")
                A(f"s_add_u32 s{S_TMP+2}, s{S_TMP+2}, {16*MB + db*64 + mp*32}")
                A(f"buffer_store_dwordx4 v[{d}:{d+3}], v5, s[{S_DBG}:{S_DBG+3}], s{S_TMP+2} offen")
                vm.issue("dbg")
    if M16: addr16(A)
    lg.waitall()
    A("s_barrier")
    stamp()
    if PD: pd_core(A, vm, lg, 4)
    elif M16: gemm_core16(A, vm, lg, S_WO, V_WOOFF, 1024, 4)
    elif D6: gemm_core6(A, vm, lg, S_WO, V_WOOFF, 1024, 4, bars=eval(os.environ.get('B3', '()')), hb=HB3)
    else: gemm_core(A, vm, lg, S_WO, V_WOOFF, 1024, D)
    stamp()
    if int(os.environ.get("TSTORE", "1")) and PART_BF16:
        if M16:
            A(f"v_and_b32 v5, 15, v{L}")
            A(f"v_lshrrev_b32 v6, 5, v{L}")
            A("v_and_b32 v7, 7, v5")
            A("v_xor_b32 v6, v6, v7")
            A(f"v_bfe_u32 v8, v{L}, 4, 1")
            A("v_lshlrev_b32 v8, 3, v8")
            A("v_lshl_add_u32 v8, v5, 7, v8")
            A(f"v_add_u32 v8, s{S_RB}, v8")
            for nt in range(4):
                A(f"v_xor_b32 v9, {2*nt}, v6")
                A(f"v_lshl_add_u32 v{10+nt}, v9, 4, v8")
        else:
            A(f"v_and_b32 v5, 31, v{L}")
            A(f"v_lshrrev_b32 v6, 5, v{L}")
            A("v_and_b32 v7, 7, v5")
            if D6:
                A("v_lshrrev_b32 v8, 4, v5")
                A("v_and_b32 v5, 15, v5")
                A("v_lshl_add_u32 v5, v8, 7, v5")
            for j in range(4):
                A(f"v_or_b32 v8, {2*j}, v6")
                A("v_xor_b32 v8, v8, v7")
                A("v_lshlrev_b32 v8, 4, v8")
                A("v_lshl_add_u32 v8, v5, 7, v8")
                A(f"v_add_u32 v{10+j}, s{S_RB}, v8")
        A(f"v_lshrrev_b32 v7, 3, v{L}")
        A(f"v_and_b32 v8, 7, v{L}")
        A("v_xor_b32 v9, v8, v7")
        A("v_lshlrev_b32 v9, 4, v9")
        A("v_lshl_add_u32 v9, v7, 7, v9")
        A(f"v_add_u32 v9, s{S_RB}, v9")
        A("v_lshlrev_b32 v8, 4, v8")
        A("v_lshl_add_u32 v8, v7, 10, v8")
        if PL:
            A(f"s_lshl_b32 s{S_TMP}, s{S_WAVE}, 7")
        else:
            A(f"s_lshl_b32 s{S_TMP}, s{S_M}, 16")
            A(f"s_lshl_b32 s{S_TMP+1}, s{S_WAVE}, 7")
            A(f"s_add_u32 s{S_TMP}, s{S_TMP}, s{S_TMP+1}")
        for nt in range(4 if M16 else 0):
            for rt in range(4):
                acc = V_ACC + (nt * 4 + rt) * 4
                d = V_S + (nt * 4 + rt) * 2
                for e in range(2):
                    A(f"v_cvt_pk_bf16_f32 v{d+e}, v{acc+2*e}, v{acc+2*e+1}")
                A(f"ds_write_b64 v{10+nt}, v[{d}:{d+1}] offset:{rt*16384}")
        for nb in range(0 if M16 else 2):
            for rb in range(2):
                acc = V_ACC + (nb * 2 + rb) * 16
                for mp in range(2):
                    d = V_S + (nb * 4 + rb * 2 + mp) * 4
                    for e in range(4):
                        A(f"v_cvt_pk_bf16_f32 v{d+e}, v{acc+8*mp+2*e}, v{acc+8*mp+2*e+1}")
                    A(f"ds_write_b128 v{10+2*nb+mp}, v[{d}:{d+3}] offset:{rb*(32768 if D6 else 4096)}")
        A("s_waitcnt lgkmcnt(0)")
        for i in range(8):
            A(f"ds_read_b128 v[{V_S+32+4*i}:{V_S+32+4*i+3}], v9 offset:{((i >> 1) * 16384 + (i & 1) * 1024) if D6 else i*1024}")
        if HB3 is not None:
            A(f"s_cmp_ge_u32 s{S_WAVE}, 4")
            A("s_cbranch_scc1 .Lhb_b")
            A("s_waitcnt lgkmcnt(0)")
            hookD()
            A(f"v_and_b32 v3, 3, v{L}")
            A("v_lshlrev_b32 v3, 11, v3")
            A(f"v_add_u32 v3, {STG + slot6(HB3) * 16384 + 8192}, v3")
            A.label(".Lhb_sp")
            A("ds_read_b64 v[6:7], v3")
            A("s_waitcnt lgkmcnt(0)")
            A("v_xor_b32 v6, s100, v6")
            A("v_xor_b32 v7, s101, v7")
            A("v_or_b32 v6, v6, v7")
            A("v_cmp_ne_u32 vcc, 0, v6")
            A("s_nop 0")
            A("s_cbranch_vccz .Lhb_b")
            A("s_sleep 2")
            A("s_branch .Lhb_sp")
            A.label(".Lhb_b")
        for i in range(8):
            A(f"s_waitcnt lgkmcnt({7-i})")
            A(f"buffer_store_dwordx4 v[{V_S+32+4*i}:{V_S+32+4*i+3}], v8, s[{S_P}:{S_P+3}], s{S_TMP} offen {os.environ.get('PSTF','sc1')}")
            if i < 7: A(f"s_add_u32 s{S_TMP}, s{S_TMP}, 8192")
    else:
        A(f"v_and_b32 v5, 31, v{L}")
        A(f"v_lshrrev_b32 v6, 5, v{L}")
        sh = 10 if PART_BF16 else 11
        A(f"v_lshlrev_b32 v5, {sh}, v5")
        A(f"v_lshl_add_u32 v5, v6, {4 if PART_BF16 else 5}, v5")
        A(f"s_lshl_b32 s{S_TMP}, s{S_M}, {sh + 6}")
        A(f"s_lshl_b32 s{S_TMP+1}, s{S_WAVE}, {7 if PART_BF16 else 8}")
        A(f"s_add_u32 s{S_TMP}, s{S_TMP}, s{S_TMP+1}")
        A(f"s_add_u32 s{S_TMP+1}, s{S_TMP}, {32 << sh}")
        A("s_nop 7")
        A("s_nop 3")
        for nb in range(2):
            for rb in range(2):
                acc = V_ACC + (nb * 2 + rb) * 16
                for mp in range(2):
                    if PART_BF16:
                        d = V_S + (nb * 4 + rb * 2 + mp) * 4
                        for e in range(4):
                            A(f"v_cvt_pk_bf16_f32 v{d+e}, v{acc+8*mp+2*e}, v{acc+8*mp+2*e+1}")
                        A(f"buffer_store_dwordx4 v[{d}:{d+3}], v5, s[{S_P}:{S_P+3}], s{S_TMP+rb} offen offset:{(32*nb+16*mp)*2} {os.environ.get('PSTF','sc1')}")
                    else:
                        for h4 in range(2):
                            A(f"buffer_store_dwordx4 v[{acc+8*mp+4*h4}:{acc+8*mp+4*h4+3}], v5, s[{S_P}:{S_P+3}], s{S_TMP+rb} offen offset:{(32*nb+16*mp+4*h4)*4}")
    if KT:
        stamp(); stamp.flush()
    if TIMING:
        A("s_waitcnt vmcnt(0)")
        stamp(); stamp(True)
        stamp.flush()
    if emb: return
    A("s_endpgm")
    A.raw(kernel_desc(name, 256, 102, 256))
    return (name, (256, 1, 1), (512, 1, 1), 163840)
```

```python
from asmlib import *
from gen_k0 import *
import gen_k1 as K1
from gen_k1 import Cnt
from gen_ka import ln_rows, round_multi, pack8, GK0, GK1
from gen_g64 import WS_STAT, WS_CS
import os
SPAN = int(os.environ.get("SPAN", "0"))
MT = int(os.environ.get("MT", "0")) or SPAN
HD = int(os.environ.get("HD", "0"))
PT = int(os.environ.get("PT", "0"))
TLW = int(os.environ.get("TLW", "0"))
MP = int(os.environ.get("MP", "1"))
RM = int(os.environ.get("RM", "1"))
XS = int(os.environ.get("XS", "1"))
HP = int(os.environ.get("HP", "0"))
SPOLL = int(os.environ.get("SPOLL", "1"))
HPH = int(os.environ.get("HPH", "0"))
CNT = 17408
S_R8 = 46; V_CT = 53
PRG = int(os.environ.get("PRG", "0"))
MSK = 83968
WQF = int(os.environ.get("WQF", "0"))
W0M = int(os.environ.get("MEGA", "7")) >= 5 and int(os.environ.get("W0M", "1"))
EB = int(os.environ.get("EB", "0"))
DLY = int(os.environ.get("DLY", "1"))
WQE = int(os.environ.get("WQE", "0"))
ONE = int(os.environ.get("MEGA", "7")) >= 4
V2 = int(os.environ.get("MEGA", "7")) >= 5
V3 = int(os.environ.get("MEGA", "7")) >= 6
V4 = int(os.environ.get("MEGA", "7")) == 7
LDP = int(os.environ.get("LDP", "1"))
WQP = int(os.environ.get("WQP", "2"))
CX = int(os.environ.get("CX", "0"))
NW = int(os.environ.get("NW", "2"))
XRT = int(os.environ.get("XRT", "1"))
XH = int(os.environ.get("XH", "1"))
KFB = int(os.environ.get("KFB", "6"))
XL = int(os.environ.get("XL", "4"))
DPP_ = int(os.environ.get("DPP_", "1"))
LT = int(os.environ.get("LT", "3" if V4 else "0"))
CSM = int(os.environ.get("CSM", "2"))
HA = int(os.environ.get("HA", "0"))
FG = int(os.environ.get("FG", "1" if V4 else "0"))
FGP = int(os.environ.get("FGP", "19"))
FGD = int(os.environ.get("FGD", "8"))
K5R = int(os.environ.get("K5R", "0"))
K6D = int(os.environ.get("K6D", "0"))
PRI = int(os.environ.get("PRI", "1")) and not K6D
FL6 = WS_FLAG + 0x10000
CPL = 38 if K6D else 36
D6POS = [3, 4, 0, 1, 2]
J7P = int(os.environ.get("J7P", "-1"))
FGR = int(os.environ.get("FGR", "0"))
FGL = int(os.environ.get("FGL", "0"))
FGH = int(os.environ.get("FGH", "1"))
FGE = int(os.environ.get("FGE", "8"))
def fg_slot(st):
    st %= FGP
    return 18432 + ((21 + st) % 11) * 2048 if st < 11 else (st - 11) * 2048
CS5 = LT == 3 and CSM == 1
CS6 = LT == 3 and CSM == 2
WS_CS2 = WS_FLAG + 0x100000
NREP = int(os.environ.get("NREP", "8"))
WS_LL = WS_FLAG + 0x40000
MODP = 12288; CSP = 8192
FP = WS_FLAG + 0x20000; FQ_ = WS_FLAG + 0x30000
S_WAVE = 40; S_M = 41; S_J = 42; S_MASK = 43; S_RB = 44; S_GOFF = 45; S_TMP = 48; S_WOFF = 58
S_W = 32; V_W = 6
P_X = 60; P_OUT = 62; P_WS = 68; P_W = 84
SM = f"s{S_MASK}"
L = 1
RG = 40960; RS = 272
K5RB = 18432; K5D = 11
L2PF = int(os.environ.get('L2PF', '0'))
PFE = int(os.environ.get('PFE', '3'))
NE = int(os.environ.get('NE', '3')) if PFE == 2 else 0

def pk(A, op, d, a, b, c=None, sel=""):
    ops = ", ".join(f"v[{x}:{x+1}]" for x in ((d, a, b) if c is None else (d, a, b, c)))
    A(f"{op} {ops} {sel}".rstrip())

RC1 = int(os.environ.get("RC1", "1" if V4 else "0"))
KRF = int(os.environ.get("KRF", "1" if V4 else "0"))
_round_multi = round_multi
def round_multi(A, xs, ts, smask):
    if not RC1: return _round_multi(A, xs, ts, smask)
    for x in xs: A(f"v_cvt_pk_bf16_f32 v{x}, 0, v{x}")
def ln_pk(A, P, X, m, q, K10, K01, s1, smu, sr, smask):
    for j in range(4):
        A(f"v_dot2_f32_bf16 v{m}, v{P+j}, s{s1}, " + ("0" if j == 0 else f"v{m}"))
        A(f"v_dot2_f32_bf16 v{q}, v{P+j}, v{P+j}, " + ("0" if j == 0 else f"v{q}"))
    A("s_nop 1")
    for d in ("quad_perm:[1,0,3,2] row_mask:0xf", "quad_perm:[2,3,0,1] row_mask:0xf", "row_half_mirror row_mask:0xf", "row_mirror row_mask:0xf",
              "row_bcast:15 row_mask:0xa", "row_bcast:31 row_mask:0xc"):
        for v in (m, q): A(f"v_add_f32_dpp v{v}, v{v}, v{v} {d} bank_mask:0xf")
        if "31" not in d: A("s_nop 0")
    A(f"v_mul_f32 v{m}, {fhex(1/512)}, v{m}")
    A(f"v_mul_f32 v{q}, {fhex(1/512)}, v{q}")
    A(f"v_fma_f32 v{q}, -v{m}, v{m}, v{q}")
    A(f"v_cvt_pk_bf16_f32 v{m}, 0, -v{m}")
    A(f"v_max_f32 v{q}, 0, v{q}")
    A(f"v_readlane_b32 s{smu}, v{m}, 63")
    A(f"v_cvt_pk_bf16_f32 v{q}, 0, v{q}")
    A(f"v_add_f32 v{q}, {fhex(1e-5)}, v{q}")
    A(f"v_cvt_pk_bf16_f32 v{q}, 0, v{q}")
    A(f"v_sqrt_f32 v{q}, v{q}")
    for j in range(4): A(f"v_dot2_f32_bf16 v{X[j]}, v{P+j//2}, v{(K10, K01)[j & 1]}, s{smu}")
    A(f"v_cvt_pk_bf16_f32 v{q}, 0, v{q}")
    A(f"v_rcp_f32 v{q}, v{q}")
    for j in range(4, 8): A(f"v_dot2_f32_bf16 v{X[j]}, v{P+j//2}, v{(K10, K01)[j & 1]}, s{smu}")
    A(f"v_readlane_b32 s{sr}, v{q}, 63")
    for j in range(8): A(f"v_cvt_pk_bf16_f32 v{X[j]}, 0, v{X[j]}")
    for j in range(0, 8, 2): A(f"v_pk_mul_f32 v[{X[j]}:{X[j]+1}], v[{X[j]}:{X[j]+1}], s[{sr}:{sr+1}] op_sel_hi:[1,0]")
FLN = int(os.environ.get("FLN", "2"))
_ln_slow = ln_rows
def ln_fast(A, R, smask, final_round=True):
    for X, T in R:
        assert X[0] % 2 == 0 and T[0] % 2 == 0
        pk(A, "v_pk_add_f32", T[0], X[0], X[2]); pk(A, "v_pk_mul_f32", T[2], X[0], X[0])
        pk(A, "v_pk_add_f32", T[4], X[4], X[6]); pk(A, "v_pk_mul_f32", T[6], X[2], X[2])
    for X, T in R:
        pk(A, "v_pk_fma_f32", T[2], X[4], X[4], T[2]); pk(A, "v_pk_fma_f32", T[6], X[6], X[6], T[6])
        pk(A, "v_pk_add_f32", T[0], T[0], T[4])
    for X, T in R:
        pk(A, "v_pk_add_f32", T[2], T[2], T[6])
        A(f"v_add_f32 v{T[0]}, v{T[0]}, v{T[1]}")
    for X, T in R:
        A(f"v_add_f32 v{T[1]}, v{T[2]}, v{T[3]}")
    wave_allreduce(A, "v_add_f32", [t for X, T in R for t in (T[0], T[1])], [t for X, T in R for t in (T[2], T[3])], [t for X, T in R for t in (T[4], T[5])])
    for X, T in R:
        A(f"v_mul_f32 v{T[0]}, {fhex(1/512)}, v{T[0]}")
        A(f"v_mul_f32 v{T[1]}, {fhex(1/512)}, v{T[1]}")
    for X, T in R:
        A(f"v_fma_f32 v{T[1]}, -v{T[0]}, v{T[0]}, v{T[1]}")
    for X, T in R:
        A(f"v_max_f32 v{T[1]}, 0, v{T[1]}")
    for X, T in R:
        A(f"v_cvt_pk_bf16_f32 v{T[3]}, v{T[0]}, v{T[1]}")
    for X, T in R:
        A(f"v_and_b32 v{T[1]}, {smask}, v{T[3]}")
        A(f"v_lshlrev_b32 v{T[2]}, 16, v{T[3]}")
    for X, T in R:
        A(f"v_add_f32 v{T[1]}, {fhex(1e-5)}, v{T[1]}")
        for j in range(0, 4, 2): pk(A, "v_pk_add_f32", X[j], X[j], T[2], None, "op_sel_hi:[1,0] neg_lo:[0,1] neg_hi:[0,1]")
    for X, T in R:
        A(f"v_cvt_pk_bf16_f32 v{T[1]}, v{T[1]}, v{T[1]}")
        for j in range(4, 8, 2): pk(A, "v_pk_add_f32", X[j], X[j], T[2], None, "op_sel_hi:[1,0] neg_lo:[0,1] neg_hi:[0,1]")
    for X, T in R:
        A(f"v_lshlrev_b32 v{T[1]}, 16, v{T[1]}")
    for X, T in R:
        A(f"v_sqrt_f32 v{T[0]}, v{T[1]}")
        round_multi(A, X[:4], T[4:6], smask)
    for X, T in R:
        A(f"v_cvt_pk_bf16_f32 v{T[0]}, v{T[0]}, v{T[0]}")
    for X, T in R:
        A(f"v_lshlrev_b32 v{T[0]}, 16, v{T[0]}")
    for X, T in R:
        A(f"v_rcp_f32 v{T[2]}, v{T[0]}")
        round_multi(A, X[4:], T[4:6], smask)
    if FLN == 2:
        for X, T in R:
            for j in range(0, 8, 2): pk(A, "v_pk_mul_f32", X[j], X[j], T[2], None, "op_sel_hi:[1,0]")
    else:
        for X, T in R:
            for h in range(2):
                js = (4 * h, 4 * h + 2)
                for k, j in enumerate(js): pk(A, "v_pk_mul_f32", T[4+2*k], X[j], T[2], None, "op_sel_hi:[1,0]")
                for k, j in enumerate(js): pk(A, "v_pk_fma_f32", X[j], T[4+2*k], T[0], X[j], "op_sel_hi:[1,0,1] neg_lo:[1,0,0] neg_hi:[1,0,0]")
                for k, j in enumerate(js): pk(A, "v_pk_fma_f32", X[j], X[j], T[2], T[4+2*k], "op_sel_hi:[1,0,1]")
    if final_round:
        for X, T in R: round_multi(A, X, T[4:8], smask)
def ln_rows(A, R, smask, final_round=True):
    return ln_fast(A, R, smask, final_round) if FLN else _ln_slow(A, R, smask)

class Cap:
    def __init__(self, A): self.A = A
    def __enter__(self):
        self.sv = self.A.lines; self.A.lines = []; return self
    def __exit__(self, *a):
        self.out = self.A.lines; self.A.lines = self.sv

def interleave(A, mf, fill):
    n = len(mf); k = 0
    for i, m in enumerate(mf):
        A(m)
        upto = (len(fill) * (i + 1) + n - 1) // n
        while upto < len(fill) and upto > 0 and not (fill[upto - 1].lstrip().startswith(("buffer_", "ds_", "v_", "s_waitcnt")) or (not PRI and fill[upto - 1].lstrip().startswith(f"s_add_u32 s{S_WOFF}, s{S_WOFF}"))): upto += 1
        A.lines.extend(fill[k:upto]); k = max(k, upto)

class Mega:
    def __init__(self, A):
        self.A = A
        self.vm = Cnt(A, "vmcnt", 63); self.lg = Cnt(A, "lgkmcnt", 15)
    def stamp(self, idx):
        if SPAN and idx not in (0, 3, 22): return
        if HD:
            hmap = {0: 2, 3: 3, 4: 4, 7: 5, 8: 6, 11: 7, 12: 8, 15: 9, 16: 10, 19: 11, 20: 12, 21: 13, 22: 14}
            if int(os.environ.get('HK', '0')): hmap = {0: 2, 22: 14}
            if idx not in hmap: return
            A = self.A
            lab = A.newlabel("hd")
            A("s_waitcnt lgkmcnt(0)")
            A("s_load_dwordx2 s[76:77], s[0:1], 104")
            A("s_memrealtime s[70:71]")
            A("s_waitcnt lgkmcnt(0)")
            A("s_mov_b32 s72, s76")
            A("s_mov_b32 s73, s77")
            A("s_mov_b32 s74, 256")
            A("s_mov_b32 s75, 0x00020000")
            A(f"s_lshl_b32 s76, s{S_WAVE}, 8")
            A("s_or_b32 s76, s76, s2")
            A(f"s_cmp_lg_u32 s76, {HD}")
            A(f"s_cbranch_scc1 {lab}")
            A("v_mov_b32 v2, s70")
            A("v_mov_b32 v3, 0")
            A(f"buffer_store_dword v2, v3, s[72:75], 0 offen offset:{4*hmap[idx]}")
            A.label(lab)
            self.lg.ops = []
            return
        if not MT: return
        A = self.A
        A("s_waitcnt lgkmcnt(0)")
        A("s_memrealtime s[70:71]")
        make_srd(A, 72, P_WS, WS_DBG, 32 * MB)
        A("s_lshl_b32 s76, s2, 3")
        A(f"s_add_u32 s76, s76, s{S_WAVE}")
        A("s_lshl_b32 s76, s76, 7")
        A("s_waitcnt lgkmcnt(0)")
        A("v_mov_b32 v2, s70")
        A("v_mov_b32 v3, 0")
        A(f"buffer_store_dword v2, v3, s[72:75], s76 offen offset:{4*idx}")
        self.vm.issue("stamp"); self.lg.ops = []
    def flag_srd(self, stage):
        make_srd(self.A, 92, P_WS, WS_FLAG + stage * 32 * 256, 32 * 256)
    def jobs0(self):
        A = self.A
        make_srd(A, 80, P_WS, FQ_, 32 * 1024)
        make_srd(A, 12, P_WS, WS_MOD, 4 * MODP)
        A(f"s_cmp_lg_u32 s{S_WAVE}, {0 if W0M else 7}")
        A("s_cbranch_scc1 .Lw0m_end")
        A(f"s_lshl_b32 s98, s{S_M}, 10")
        A("v_add_u32 v2, 64, v1")
        A(f"v_min_u32 v2, {63 if LT == 3 else 119}, v2")
        A("v_lshlrev_b32 v2, 3, v2")
        A("v_lshlrev_b32 v3, 3, v1")
        if V4 and XH:
            assert LT == 3
            A("s_mov_b32 s99, 0")
            A("v_lshlrev_b32 v4, 3, v1")
            A.label(".Lplq_poll")
            A("buffer_load_dwordx2 v[248:249], v4, s[80:83], s98 offen sc1")
            A("s_add_u32 s99, s99, 1")
            A("s_waitcnt vmcnt(0)")
            A("v_xor_b32 v248, s100, v248")
            A("v_xor_b32 v249, s101, v249")
            A("v_or_b32 v248, v248, v249")
            A("v_cmp_ne_u32 vcc, 0, v248")
            A("s_cmp_lt_u32 s99, 0x40000")
            A("s_cbranch_scc0 .Lplq_done")
            A("s_cbranch_vccz .Lplq_done")
            A(f"s_cmp_lg_u32 s99, {KFB}")
            A("s_cbranch_scc1 .Lplq_poll")
            A("s_bitcmp1_b32 s2, 1")
            A("s_cbranch_scc0 .Lplq_poll")
            A("s_and_b32 s52, s2, 1")
            A("s_lshl_b32 s52, s52, 5")
            A("s_lshr_b32 s53, s2, 3")
            A("s_add_u32 s52, s52, s53")
            A("s_bitcmp1_b64 vcc, s52")
            A("s_cbranch_scc0 .Lplq_poll")
            A("s_and_b32 s53, s52, 1")
            A("s_lshr_b32 s54, s52, 1")
            A("s_add_u32 s54, s54, 16")
            A("s_lshl_b32 s55, s54, 7")
            self.p4_slow("l", 55, 53, 16, 20, 48, SM)
            A(f"s_mul_i32 s53, s53, {MODP}")
            A("s_lshl_b32 s54, s54, 8")
            A("s_add_u32 s53, s53, s54")
            A("v_lshlrev_b32 v2, 2, v2")
            A("buffer_store_dword v114, v2, s[12:15], s53 offen sc1")
            A("v_mov_b32 v70, s100")
            A("v_mov_b32 v71, s101")
            A("v_lshlrev_b32 v3, 10, v1")
            A("s_lshl_b32 s52, s52, 3")
            A("s_waitcnt vmcnt(0)")
            A("s_mov_b32 exec_hi, 0")
            A("buffer_store_dwordx2 v[70:71], v3, s[80:83], s52 offen sc1")
            A("s_mov_b64 exec, -1")
            A("s_branch .Lplq_poll")
            A.label(".Lplq_done")
        else: self.poll64(".Lplq", [(3, 80, "s98"), (2, 80, "s98")])
        if W0M:
            A("v_lshlrev_b32 v10, 5, v1")
            for part in range(2):
                for q, idx in enumerate((2, 4, 3)):
                    d = 24 + 8 * q + 88 * part
                    A(f"s_movk_i32 s{S_TMP}, {idx*2048 + part*MODP}")
                    A(f"buffer_load_dwordx4 v[{d}:{d+3}], v10, s[12:15], s{S_TMP} offen")
                    A(f"buffer_load_dwordx4 v[{d+4}:{d+7}], v10, s[12:15], s{S_TMP} offen offset:16")
            A("v_add_u32 v10, 81920, v10")
            A("s_waitcnt vmcnt(0)")
            for j in range(0, 24, 2): pk(A, "v_pk_add_f32", 24 + j, 24 + j, 112 + j)
            for q in range(3): round_multi(A, list(range(24 + 8*q, 32 + 8*q)), [56, 57, 58, 59], SM)
            for j in range(8): A(f"v_add_f32 v{32+j}, 1.0, v{32+j}")
            round_multi(A, list(range(32, 40)), [56, 57, 58, 59], SM)
            for q, off in enumerate((0, 16384, 49152)):
                A(f"ds_write_b128 v10, v[{24+8*q}:{27+8*q}] offset:{off}")
                A(f"ds_write_b128 v10, v[{28+8*q}:{31+8*q}] offset:{off+16}")
        A.label(".Lw0m_end")
        if CS6:
            A(f"s_cmp_lg_u32 s{S_WAVE}, 1")
            A("s_cbranch_scc1 .Lcs_end")
            A("s_cmp_ge_u32 s2, 224")
            A("s_cbranch_scc1 .Lcs_end")
            make_srd(A, 16, P_W + 4, 0, 512 * 3584)
            make_srd(A, 20, P_WS, WS_CS2, 8 * 1792 * 8)
            A("s_lshr_b32 s48, s2, 3")
            A("s_and_b32 s49, s2, 7")
            A(f"s_mul_i32 s50, s49, {64 * 3584}")
            A("s_lshl_b32 s51, s48, 7")
            A("s_add_u32 s50, s50, s51")
            A("v_and_b32 v2, 7, v1")
            A("v_lshrrev_b32 v3, 3, v1")
            A(f"v_mul_u32_u24 v4, {8 * 3584}, v3")
            A("v_lshl_add_u32 v4, v2, 4, v4")
            for i in range(8):
                A(f"buffer_load_dwordx4 v[{128+4*i}:{131+4*i}], v4, s[16:19], s50 offen")
                if i < 7: A("s_add_u32 s50, s50, 3584")
            A("v_lshl_add_u32 v2, v2, 3, v3")
            A("v_lshlrev_b32 v2, 3, v2")
            A(f"s_mul_i32 s49, s49, {1792 * 8}")
            A("s_lshl_b32 s48, s48, 9")
            A("s_add_u32 s48, s48, s49")
            AC = list(range(64, 72))
            for i in range(8):
                A(f"s_waitcnt vmcnt({7 - i})")
                U = 64 if i == 0 else 72 + 8 * (i & 1)
                for j in range(4):
                    A(f"v_lshlrev_b32 v{U+2*j}, 16, v{128+4*i+j}")
                    A(f"v_and_b32 v{U+2*j+1}, {SM}, v{128+4*i+j}")
                if i:
                    for j in range(8): A(f"v_add_f32 v{64+j}, v{64+j}, v{U+j}")
            A("s_nop 1")
            self.p4_red8([AC], [])
            A("v_mov_b32 v67, s100")
            A("buffer_store_dwordx2 v[66:67], v2, s[20:23], s48 offen sc1")
            A.label(".Lcs_end")
    def transition(self, stage, early=None):
        A = self.A
        self.stamp(1 + 4 * stage)
        self.vm.ops = []
        if HA and stage == 0:
            TG = K1.STG + 5 * 16384
            make_srd(A, 92, P_WS, WS_FLAG, 6 * 32 * 256)
            A(f"s_lshl_b32 s96, s{S_M}, 8")
            A(f"s_lshl_b32 s97, s{S_J}, 3")
            A("s_add_u32 s97, s97, s96")
            A(f"s_add_u32 s98, s97, {5 * 8192}")
            A(f"s_cmp_lt_u32 s{S_WAVE}, 4")
            A("s_cselect_b32 s97, s98, s97")
            A(f"s_lshl_b32 s98, s{S_WAVE}, 11")
            A(f"s_add_u32 s98, s98, {TG}")
            A("v_mov_b32 v2, s98")
            A(f"s_and_b32 s98, s98, {hex(0xffffffff & ~0x1fff)}")
            A("v_and_b32 v3, 3, v1")
            A("v_lshlrev_b32 v3, 11, v3")
            A("v_add_u32 v3, s98, v3")
            A("v_mov_b32 v246, s100")
            A("v_mov_b32 v247, s101")
            A("v_mov_b32 v4, s97")
            A("s_waitcnt vmcnt(0)")
            A("ds_write_b64 v2, v[246:247]")
            A("ds_read_b64 v[6:7], v3")
            A("s_waitcnt lgkmcnt(0)")
            A("v_xor_b32 v6, s100, v6")
            A("v_xor_b32 v7, s101, v7")
            A("v_or_b32 v6, v6, v7")
            A("v_cmp_ne_u32 vcc, 0, v6")
            A("s_nop 0")
            A("s_cbranch_vccnz .Lha_np")
            A("s_mov_b64 exec, 1")
            A("buffer_store_dwordx2 v[246:247], v4, s[92:95], 0 offen sc1")
            A("s_mov_b64 exec, -1")
            A.label(".Lha_np")
            A(f"s_sub_u32 s48, s{S_WAVE}, 2")
            A("s_cmp_ge_u32 s48, 2")
            A("s_cbranch_scc1 .Lha_end")
            make_srd(A, 72, P_WS, WS_PART, 8 * 2048 * 512 * 2)
            make_srd(A, 76, P_WS, WS_FLAG + 5 * 8192, 8192)
            A("v_and_b32 v60, 7, v1")
            A("v_lshlrev_b32 v60, 3, v60")
            A(f"s_lshl_b32 s64, s{S_M}, 19")
            A(f"s_lshl_b32 s50, s{S_J}, 13")
            A("s_add_u32 s64, s64, s50")
            A("s_lshl_b32 s50, s48, 12")
            A("s_add_u32 s64, s64, s50")
            A("v_lshrrev_b32 v61, 5, v1")
            A("v_and_b32 v5, 31, v1")
            A("v_lshlrev_b32 v61, 10, v61")
            A("v_lshl_add_u32 v61, v5, 4, v61")
            A("s_lshl_b32 s50, s48, 11")
            A(f"s_add_u32 s50, s50, {81920 + 4096}")
            A("v_lshlrev_b32 v62, 5, v1")
            A("v_add_u32 v62, s50, v62")
            A("v_add_u32 v3, 8192, v3")
            A("s_mov_b32 s65, 0")
            A.label(".Lha_pl")
            A("buffer_load_dwordx2 v[248:249], v60, s[76:79], s96 offen sc1")
            A("s_waitcnt vmcnt(0)")
            A("ds_read_b64 v[6:7], v3")
            A("v_xor_b32 v248, s100, v248")
            A("v_xor_b32 v249, s101, v249")
            A("v_or_b32 v248, v248, v249")
            A("v_cmp_ne_u32 vcc, 0, v248")
            A("s_waitcnt lgkmcnt(0)")
            A("s_cbranch_vccz .Lha_go")
            A("v_xor_b32 v6, s100, v6")
            A("v_xor_b32 v7, s101, v7")
            A("v_or_b32 v6, v6, v7")
            A("v_cmp_ne_u32 vcc, 0, v6")
            A("s_nop 0")
            A("s_cbranch_vccz .Lha_end")
            A(f"s_sleep {int(os.environ.get('HASL', '2'))}")
            A("s_branch .Lha_pl")
            A.label(".Lha_go")
            self.ha_loads()
            A.label(".Lha_end")
        if ONE and stage == 0:
            if K1.HB3 is None: self.jobs0()
            if PRG:
                A(f"s_cmp_lg_u32 s{S_WAVE}, 1")
                A("s_cbranch_scc1 .Lw1m_end")
                A(f"s_lshl_b32 s{S_TMP}, 1, s{S_J}")
                A(f"v_mov_b32 v2, {MSK}")
                A(f"v_mov_b32 v3, s{S_TMP}")
                A("ds_write_b32 v2, v3")
                A.label(".Lw1m_end")
        if early and NE:
            A(f"s_cmp_ge_u32 s{S_WAVE}, 4")
            A(f"s_cbranch_scc1 .Ltr{stage}_h")
            early(0, NE)
            A(f"s_waitcnt vmcnt({len(self.vm.ops)})")
            A(f"s_branch .Ltr{stage}_j")
            A.label(f".Ltr{stage}_h")
            A("s_waitcnt vmcnt(0)")
            A.label(f".Ltr{stage}_j")
        elif not (HA and stage == 0):
            A("s_waitcnt vmcnt(0)")
        self.flag_srd(stage)
        A(f"s_lshl_b32 s96, s{S_M}, 8")
        A(f"s_lshl_b32 s97, s{S_J}, {3 if ONE else 2}")
        A("s_add_u32 s97, s97, s96")
        if ONE:
            A("v_mov_b32 v246, s100")
            A("v_mov_b32 v247, s101")
        A("v_mov_b32 v2, 1")
        A("v_mov_b32 v3, s97")
        A("s_waitcnt lgkmcnt(0)")
        self.lg.ops = []
        A("s_barrier")
        if not (HA and stage == 0):
            A(f"s_cmp_lg_u32 s{S_WAVE}, 7")
            A(f"s_cbranch_scc1 .Lpub{stage}")
            A("s_mov_b64 exec, 1")
            A("buffer_store_dwordx2 v[246:247], v3, s[92:95], 0 offen sc1" if ONE else "buffer_store_dword v2, v3, s[92:95], 0 offen sc1")
            A("s_mov_b64 exec, -1")
            A.label(f".Lpub{stage}")
        self.stamp(1 + 4 * stage + 2)
    def ha_loads(self):
        A = self.A
        for g in range(8):
            for p in range(2):
                d = 128 + 8 * g + 4 * p
                A(f"buffer_load_dwordx4 v[{d}:{d+3}], v61, s[72:75], s64 offen offset:{p*2048}")
            if g < 7: A("s_add_u32 s64, s64, 65536")
        A("s_mov_b32 s65, 1")
    def poll(self, stage, nbr=False, check=True, after=None):
        A = self.A
        lab = f".Lpl{stage}"
        if check:
            A(f"s_cmp_lg_u32 s{S_WAVE}, 7")
            A(f"s_cbranch_scc1 {lab}_done")
        A("v_and_b32 v3, 7, v1")
        A(f"v_lshlrev_b32 v3, {3 if ONE else 2}, v3")
        if nbr:
            A("v_bfe_u32 v2, v1, 3, 2")
            A("v_min_u32 v2, 2, v2")
            A(f"v_add_u32 v2, s{S_M}, v2")
            A("v_max_u32 v2, 1, v2")
            A("v_min_u32 v2, 32, v2")
            A("v_subrev_u32 v2, 1, v2")
            A("v_lshl_add_u32 v3, v2, 8, v3")
        else:
            A("v_add_u32 v3, s96, v3")
        A("s_mov_b32 s98, 0")
        NP = int(os.environ.get("NPOLL", "1")); PSL = int(os.environ.get("PSL", "1"))
        if ONE and SPOLL and not nbr:
            A("s_mov_b32 s99, 0")
            A.label(f"{lab}_sp")
            A("s_buffer_load_dwordx16 s[8:23], s[92:95], s96 glc")
            A("s_add_u32 s99, s99, 1")
            A("s_waitcnt lgkmcnt(0)")
            for i in range(8): A(f"s_xor_b64 s[{8+2*i}:{9+2*i}], s[{8+2*i}:{9+2*i}], s[100:101]")
            for i in range(1, 8): A(f"s_or_b64 s[8:9], s[8:9], s[{8+2*i}:{9+2*i}]")
            A(f"s_cbranch_scc0 {lab}_sd")
            A(f"s_and_b32 s98, s99, {SPOLL * 4 - 1}")
            A(f"s_cbranch_scc1 {lab}_sp")
            A("buffer_load_dwordx2 v[248:249], v3, s[92:95], 0 offen sc1")
            A("s_waitcnt vmcnt(0)")
            A("v_xor_b32 v248, s100, v248")
            A("v_xor_b32 v249, s101, v249")
            A("v_or_b32 v248, v248, v249")
            A("v_cmp_ne_u32 vcc, 0, v248")
            A("s_cmp_lt_u32 s99, 0x80000")
            A(f"s_cbranch_scc0 {lab}_sd")
            A(f"s_cbranch_vccnz {lab}_sp")
            A.label(f"{lab}_sd")
            if after: after()
        elif ONE:
            self.poll64(lab + "x", [(3, 92, "0")])
        elif NP == 1:
            A.label(f"{lab}_poll")
            A("buffer_load_dword v2, v3, s[92:95], 0 offen sc1")
            A("s_add_u32 s98, s98, 1")
            A("s_waitcnt vmcnt(0)")
            A("v_cmp_ne_u32 vcc, 1, v2")
            A("s_cmp_lt_u32 s98, 0x40000")
            A(f"s_cbranch_scc0 {lab}_done")
            A(f"s_cbranch_vccnz {lab}_poll")
        else:
            for i in range(NP):
                A(f"buffer_load_dword v{248+i}, v3, s[92:95], 0 offen sc1")
                if PSL and i < NP - 1: A(f"s_sleep {PSL}")
            A.label(f"{lab}_poll")
            for i in range(NP):
                A(f"s_waitcnt vmcnt({NP-1})")
                A(f"v_cmp_ne_u32 vcc, 1, v{248+i}")
                A(f"s_cbranch_vccz {lab}_done")
                A(f"buffer_load_dword v{248+i}, v3, s[92:95], 0 offen sc1")
            A("s_add_u32 s98, s98, 1")
            A("s_cmp_lt_u32 s98, 0x40000")
            A(f"s_cbranch_scc1 {lab}_poll")
        A.label(f"{lab}_done")
    def poll64(self, lab, srcs, cnt=99, slp=0):
        A = self.A
        A(f"s_mov_b32 s{cnt}, 0")
        A.label(f"{lab}_poll")
        if slp: A(f"s_sleep {slp}")
        for i, (va, srd, so) in enumerate(srcs):
            A(f"buffer_load_dwordx2 v[{248+2*i}:{249+2*i}], v{va}, s[{srd}:{srd+3}], {so} offen sc1")
        A(f"s_add_u32 s{cnt}, s{cnt}, 1")
        A("s_waitcnt vmcnt(0)")
        for i in range(len(srcs)):
            A(f"v_xor_b32 v{248+2*i}, s100, v{248+2*i}")
            A(f"v_xor_b32 v{249+2*i}, s101, v{249+2*i}")
        A("v_or_b32 v248, v248, v249")
        for i in range(1, len(srcs)):
            A(f"v_or3_b32 v248, v248, v{248+2*i}, v{249+2*i}")
        A("v_cmp_ne_u32 vcc, 0, v248")
        A(f"s_cmp_lt_u32 s{cnt}, 0x40000")
        A(f"s_cbranch_scc0 {lab}_done")
        A(f"s_cbranch_vccnz {lab}_poll")
        A.label(f"{lab}_done")
    def pst(self, idx):
        if not PT: return
        A = self.A
        A("s_waitcnt lgkmcnt(0)")
        A("s_memrealtime s[38:39]")
        A("s_waitcnt lgkmcnt(0)")
        A(f"v_writelane_b32 v59, s38, {idx}")
    def pst_flush(self):
        if not PT: return
        A = self.A
        make_srd(A, 36, 68, WS_DBG + 16 * MB, 1 * MB)
        A("s_lshl_b32 s57, s2, 3")
        A("s_add_u32 s57, s57, s40")
        A("s_lshl_b32 s57, s57, 6")
        A("v_lshlrev_b32 v2, 2, v1")
        A("s_mov_b64 exec, 0xffff")
        A("buffer_store_dword v59, v2, s[36:39], s57 offen")
        A("s_mov_b64 exec, -1")
    def pro_pre(self):
        A = self.A
        self.pst(0)
        A("s_load_dwordx2 s[4:5], s[0:1], 0")
        A("s_load_dwordx4 s[72:75], s[0:1], 80")
        A("s_load_dwordx2 s[6:7], s[0:1], 104")
        A("s_memrealtime s[70:71]")
        if int(os.environ.get("CPF", "1")):
            A("s_getpc_b64 s[76:77]")
            A.label(".Lpc0")
            A("s_mov_b32 s78, .Lcode_end-.Lpc0")
            A("s_mov_b32 s79, 0x00020000")
            A("s_lshr_b32 s3, s2, 3")
            A(f"s_mul_i32 s3, s3, {64 * CPL}")
            A("v_lshlrev_b32 v2, 6, v0")
            A(f"v_cmp_gt_u32 vcc, {CPL}, v0")
            A("s_and_b64 exec, exec, vcc")
            A("buffer_load_dword v62, v2, s[76:79], s3 offen")
            A("s_mov_b64 exec, -1")
    def pro_a(self):
        A = self.A
        W = K1.S_WAVE; M_ = K1.S_M; G_ = K1.S_G
        self.pst(1)
        make_srd(A, 76, 72, 0, 1024)
        make_srd(A, 80, 74, 0, 512 * 6144)
        make_srd(A, 84, 68, WS_MOD, 3072 * 4)
        A("s_movk_i32 s3, 6144")
        A("s_mov_b32 s59, s2")
        A("s_cmp_lt_u32 s2, 96")
        A("s_cbranch_scc1 .Lpa_mod")
        make_srd(A, 80, 96, 0, 512 * 3584)
        make_srd(A, 84, 68, WS_CS, 1792 * 4)
        A("s_movk_i32 s3, 3584")
        A("s_sub_u32 s59, s2, 96")
        A.label(".Lpa_mod")
        A("s_cmp_ge_u32 s2, 152")
        A("s_cbranch_scc1 .Lpa_nob")
        A("v_and_b32 v2, 3, v0")
        A("v_lshrrev_b32 v3, 2, v0")
        A("v_mul_lo_u32 v4, v3, s3")
        A("v_lshl_add_u32 v4, v2, 4, v4")
        A("v_lshlrev_b32 v5, 1, v3")
        A("s_lshl_b32 s58, s59, 6")
        A("s_lshl_b32 s3, s3, 7")
        for i in range(4):
            A(f"buffer_load_dwordx4 v[{72+4*i}:{75+4*i}], v4, s[80:83], s58 offen")
            if i < 3: A("s_add_u32 s58, s58, s3")
        for i in range(4):
            A(f"buffer_load_ushort v{64+i}, v5, s[76:79], 0 offen offset:{i*256}")
        A.label(".Lpa_nob")
        make_srd(A, 88, 4, 0, 2 * MB)
        A(f"s_lshl_b32 s3, s{M_}, 3")
        A(f"s_add_u32 s3, s3, s{G_}")
        A("s_lshl_b32 s3, s3, 3")
        A(f"s_add_u32 s3, s3, s{W}")
        A("s_lshl_b32 s3, s3, 10")
        A("buffer_load_dwordx4 v[68:71], v12, s[88:91], s3 offen")
        make_srd(A, 76, 6, 0, 256)
        A(f"s_or_b32 s58, s2, s{W}")
        A("s_cmp_lg_u32 s58, 0")
        A("s_cbranch_scc1 .Lpa_non")
        A("s_or_b32 s70, s70, 1")
        A("v_mov_b32 v2, s70")
        A("v_mov_b32 v3, s71")
        A("v_mov_b32 v4, 0")
        A("s_mov_b64 exec, 1")
        A("buffer_store_dwordx2 v[2:3], v4, s[76:79], 0 offen sc1")
        A("s_mov_b64 exec, -1")
        A.label(".Lpa_non")
        if WQE: self.wqpf()
    def wqpf(self):
        A = self.A; W = K1.S_WAVE
        SQ = 88 if WQE else K1.S_WQ
        if WQE: make_srd(A, 88, 64, 0, 4 * MB)
        A("v_lshrrev_b32 v2, 4, v0")
        A("v_and_b32 v3, 15, v0")
        A("v_lshlrev_b32 v3, 6, v3")
        A("v_lshl_add_u32 v2, v2, 13, v3")
        A("s_lshr_b32 s58, s2, 3")
        A("s_lshl_b32 s58, s58, 17")
        A("s_and_b32 s57, s2, 7")
        A("s_lshl_b32 s57, s57, 10")
        A("s_add_u32 s58, s58, s57")
        A(f"s_cmp_ge_u32 s{W}, 4")
        A("s_cbranch_scc1 .Lpa_nopf")
        A(f"buffer_load_dword v255, v2, s[{SQ}:{SQ+3}], s58 offen")
        A.label(".Lpa_nopf")
    def pro_b(self, nyoung, early, w7):
        A = self.A
        W = K1.S_WAVE; M_ = K1.S_M; G_ = K1.S_G; KM = f"s{K1.S_MASK}"
        NY = nyoung
        ACC = list(range(96, 104)); T = list(range(104, 112)); U = list(range(112, 120)); C = [64, 65, 66, 67]
        make_srd(A, 88, 68, WS_XN, 2 * MB)
        self.pst(2)
        A("s_waitcnt vmcnt(0)")
        self.pst(3)
        if not WQE: self.wqpf()
        A("s_cmp_ge_u32 s2, 152")
        A("s_cbranch_scc1 .Lpb_ln")
        A("s_cmp_lt_u32 s2, 96")
        A("s_cbranch_scc1 .Lpb_silu")
        for c in C: A(f"v_mov_b32 v{c}, 1.0")
        A("s_branch .Lpb_fma")
        A.label(".Lpb_silu")
        for i, c in enumerate(C): A(f"v_lshlrev_b32 v{c}, 16, v{c}")
        for i, c in enumerate(C): A(f"v_mul_f32 v{T[i]}, {fhex(-LOG2E)}, v{c}")
        for i, c in enumerate(C): A(f"v_exp_f32 v{T[i]}, v{T[i]}")
        for i, c in enumerate(C): A(f"v_add_f32 v{T[i]}, 1.0, v{T[i]}")
        for i, c in enumerate(C): A(f"v_rcp_f32 v{U[i]}, v{T[i]}")
        for i, c in enumerate(C): A(f"v_mul_f32 v{U[4+i]}, v{c}, v{U[i]}")
        for i, c in enumerate(C): A(f"v_fma_f32 v{T[i]}, -v{U[4+i]}, v{T[i]}, v{c}")
        for i, c in enumerate(C): A(f"v_fma_f32 v{c}, v{T[i]}, v{U[i]}, v{U[4+i]}")
        for i, c in enumerate(C): A(f"v_cvt_pk_bf16_f32 v{T[i]}, v{c}, v{c}")
        for i, c in enumerate(C): A(f"v_lshlrev_b32 v{c}, 16, v{T[i]}")
        A.label(".Lpb_fma")
        for i in range(4):
            for j in range(4):
                w = 72 + 4 * i + j
                A(f"v_lshlrev_b32 v{T[2*j]}, 16, v{w}")
                A(f"v_and_b32 v{T[2*j+1]}, {KM}, v{w}")
            for j in range(8):
                A(f"v_mul_f32 v{ACC[j]}, v{T[j]}, v{C[i]}" if i == 0 else f"v_fmac_f32 v{ACC[j]}, v{T[j]}, v{C[i]}")
        A("s_nop 1")
        for dpp in ("row_ror:8", "row_ror:4"):
            for v in ACC: A(f"v_add_f32_dpp v{v}, v{v}, v{v} {dpp} row_mask:0xf bank_mask:0xf")
        A("v_and_b32 v2, 3, v1")
        A("v_lshrrev_b32 v3, 4, v0")
        A("v_lshlrev_b32 v3, 7, v3")
        A("v_lshl_add_u32 v3, v2, 5, v3")
        A("v_and_b32 v2, 12, v1")
        A("v_cmp_eq_u32 vcc, 0, v2")
        A("s_and_saveexec_b64 s[58:59], vcc") if False else None
        A("s_mov_b64 s[4:5], exec")
        A("s_and_b64 exec, exec, vcc")
        A(f"ds_write_b128 v3, v[{ACC[0]}:{ACC[3]}]")
        A(f"ds_write_b128 v3, v[{ACC[4]}:{ACC[7]}] offset:16")
        A("s_mov_b64 exec, -1")
        A("s_waitcnt lgkmcnt(0)")
        A("s_barrier")
        self.pst(4)
        A(f"s_cmp_lg_u32 s{W}, 7")
        A("s_cbranch_scc1 .Lpb_ln")
        A("v_and_b32 v2, 31, v1")
        A("v_lshlrev_b32 v2, 2, v2")
        A("v_lshrrev_b32 v3, 5, v1")
        A("v_lshl_add_u32 v3, v3, 11, v2")
        for k in range(16): A(f"ds_read_b32 v{120+k}, v3 offset:{k*128}")
        for k in range(8):
            A(f"s_waitcnt lgkmcnt({14-2*k})")
            A(f"v_add_f32 v{120+2*k}, v{120+2*k}, v{121+2*k}")
        for k in range(4): A(f"v_add_f32 v{120+4*k}, v{120+4*k}, v{122+4*k}")
        A("v_add_f32 v120, v120, v124")
        A("v_add_f32 v128, v128, v132")
        A("v_add_f32 v120, v120, v128")
        A("v_mov_b32 v121, v120")
        A("s_nop 1")
        A("v_permlane32_swap_b32 v120, v121")
        A("s_nop 1")
        A("v_add_f32 v120, v120, v121")
        A("s_cmp_ge_u32 s2, 96")
        A("s_cbranch_scc1 .Lpb_nornd")
        round_bf16_1(A, 120, 121)
        A.label(".Lpb_nornd")
        A("s_lshl_b32 s58, s59, 7")
        A("s_mov_b32 exec_hi, 0")
        A("buffer_store_dword v120, v2, s[84:87], s58 offen sc1")
        A("s_mov_b64 exec, -1")
        A.label(".Lpb_ln")
        A("v_mov_b32 v2, 0")
        A(f"s_cmp_lg_u32 s{W}, 7")
        A("s_cbranch_scc1 .Lpb_ln2")
        A("s_mov_b64 exec, 1")
        A("buffer_load_dwordx2 v[136:137], v2, s[76:79], 0 offen sc1")
        A("s_mov_b64 exec, -1")
        A.label(".Lpb_ln2")
        self.pst(5)
        X = list(range(96, 104)); TT = list(range(104, 116))
        for j in range(4):
            A(f"v_lshlrev_b32 v{X[2*j]}, 16, v{68+j}")
            A(f"v_and_b32 v{X[2*j+1]}, {KM}, v{68+j}")
        ln_rows(A, [(X, TT)], KM)
        pack8(A, X, 68)
        A("buffer_store_dwordx4 v[68:71], v12, s[88:91], s3 offen sc1")
        make_srd(A, 80, 68, FP, 32 * 512)
        self.pst(6)
        A(f"s_cmp_lg_u32 s{W}, 7")
        A("s_cbranch_scc1 .Lpb_w")
        A("s_waitcnt vmcnt(1)")
        A("s_mov_b32 s57, 0")
        A.label(".Lpb_nl")
        A("v_readfirstlane_b32 s100, v136")
        A("v_readfirstlane_b32 s101, v137")
        A("s_add_u32 s57, s57, 1")
        A("s_cmp_lg_u32 s100, 0")
        A("s_cbranch_scc1 .Lpb_nd")
        A("s_cmp_lt_u32 s57, 0x40000")
        A("s_cbranch_scc0 .Lpb_nd")
        A("s_mov_b64 exec, 1")
        A("buffer_load_dwordx2 v[136:137], v2, s[76:79], 0 offen sc1")
        A("s_mov_b64 exec, -1")
        A("s_waitcnt vmcnt(0)")
        A("s_branch .Lpb_nl")
        A.label(".Lpb_nd")
        A("v_mov_b32 v136, s100")
        A("v_mov_b32 v137, s101")
        self.pst(7)
        A("s_cmp_ge_u32 s2, 152")
        A("s_cbranch_scc1 .Lpb_w")
        A("v_lshlrev_b32 v3, 9, v1")
        A("s_lshl_b32 s58, s2, 3")
        A("s_cmp_lt_u32 s2, 32")
        A("s_cbranch_scc1 .Lpb_crit")
        make_srd(A, 80, 68, FQ_, 32 * 1024)
        A("v_lshlrev_b32 v3, 10, v1")
        A("s_sub_u32 s58, s58, 256")
        A.label(".Lpb_crit")
        A("s_mov_b32 exec_hi, 0")
        A("buffer_store_dwordx2 v[136:137], v3, s[80:83], s58 offen sc1")
        A("s_mov_b64 exec, -1")
        make_srd(A, 80, 68, FP, 32 * 512)
        A.label(".Lpb_w")
        A("s_waitcnt vmcnt(1)") if False else None
        A("s_waitcnt vmcnt(0)")
        self.pst(8)
        A("s_barrier")
        self.pst(9)
        A(f"s_cmp_lg_u32 s{W}, 7")
        A("s_cbranch_scc1 .Lpb_early")
        A(f"s_lshl_b32 s58, s{M_}, 9")
        A(f"s_lshl_b32 s57, s{G_}, 3")
        A("s_add_u32 s57, s57, 256")
        A("v_mov_b32 v3, s57")
        A("s_mov_b64 exec, 1")
        A("buffer_store_dwordx2 v[136:137], v3, s[80:83], s58 offen sc1")
        A("s_mov_b64 exec, -1")
        A("v_min_u32 v3, 39, v1")
        A("v_lshlrev_b32 v3, 3, v3")
        sv99 = None
        w7()
        self.poll64(".Lplp", [(3, 80, "s58")], cnt=57)
        A("s_branch .Lpb_done")
        A.label(".Lpb_early")
        early()
        A.label(".Lpb_done")
        A("s_barrier")
        self.pst(10)
        self.pst_flush()
    def p2_a(self):
        A = self.A
        W = K1.S_WAVE; M_ = K1.S_M; G_ = K1.S_G
        SCR = K1.STG + 16384
        A("s_waitcnt lgkmcnt(0)")
        self.pst(1)
        make_srd(A, 76, 72, 0, 1024)
        make_srd(A, 80, 74, 0, 512 * 6144)
        make_srd(A, 84, 68, WS_MOD, 4 * MODP)
        make_srd(A, 88, 4, 0, 2 * MB)
        A("s_movk_i32 s3, 6144")
        A("s_and_b32 s4, s2, 15")
        A("s_lshr_b32 s5, s2, 4")
        A("s_lshl_b32 s57, s5, 8")
        A("s_cmp_lt_u32 s2, 64")
        A("s_cbranch_scc1 .Lp2a_dec")
        A("s_sub_u32 s4, s2, 64")
        A("s_and_b32 s5, s4, 1")
        A("s_lshr_b32 s4, s4, 1")
        A("s_lshl_b32 s57, s5, 9")
        A("s_add_u32 s4, s4, 16")
        A("s_cmp_lt_u32 s4, 48")
        A("s_cbranch_scc1 .Lp2a_dec")
        A("s_sub_u32 s4, s4, 48")
        make_srd(A, 80, 96, 0, 512 * 3584)
        make_srd(A, 84, 68, WS_CS, 2 * CSP)
        A("s_movk_i32 s3, 3584")
        A.label(".Lp2a_dec")
        A("s_lshr_b32 s58, s57, 1")
        A("s_mul_i32 s58, s58, s3")
        A("s_lshl_b32 s59, s4, 7")
        A("s_add_u32 s58, s58, s59")
        A("s_lshl_b32 s59, s4, 8")
        A(f"s_movk_i32 s4, {MODP}")
        A("s_cmp_eq_u32 s3, 3584")
        A(f"s_cselect_b32 s4, {CSP}, s4")
        A("s_mul_i32 s4, s4, s5")
        A("s_add_u32 s59, s59, s4")
        A("v_and_b32 v2, 7, v0")
        A("v_bfe_u32 v3, v0, 3, 5")
        A("v_mul_lo_u32 v60, v3, s3")
        A("v_lshl_add_u32 v60, v2, 4, v60")
        A("v_lshlrev_b32 v61, 1, v3")
        A("s_lshl_b32 s70, s3, 5") if False else None
        A("s_lshl_b32 s5, s3, 5")
        A(f"s_cmp_ge_u32 s{W}, 4")
        A("s_cbranch_scc1 .Lp2a_end")
        A("s_cmp_ge_u32 s2, 64")
        A("s_cbranch_scc1 .Lp2a_x")
        self.p2_tload(0)
        A.label(".Lp2a_x")
        A(f"s_lshl_b32 s3, s{M_}, 3")
        A(f"s_add_u32 s3, s3, s{G_}")
        A("s_lshl_b32 s3, s3, 2")
        A(f"s_add_u32 s3, s3, s{W}")
        A("s_lshl_b32 s3, s3, 11")
        A("buffer_load_dwordx4 v[88:91], v12, s[88:91], s3 offen")
        A("buffer_load_dwordx4 v[92:95], v12, s[88:91], s3 offen offset:1024")
        make_srd(A, 88, 6, 0, 256)
        A(f"s_or_b32 s4, s2, s{W}")
        A("s_cmp_lg_u32 s4, 0")
        A("s_cbranch_scc1 .Lp2a_non")
        A("s_or_b32 s70, s70, 1")
        A("v_mov_b32 v2, s70")
        A("v_mov_b32 v3, s71")
        A("v_mov_b32 v4, 0")
        A("s_mov_b64 exec, 1")
        A("buffer_store_dwordx2 v[2:3], v4, s[88:91], 0 offen sc1")
        A("s_mov_b64 exec, -1")
        A.label(".Lp2a_non")
        A(f"v_mov_b32 v2, {SCR + 8192}")
        A("v_mov_b32 v4, 0")
        A("v_mov_b32 v5, 0")
        A("ds_write_b64 v2, v[4:5]")
        A("s_branch .Lp2a_e2")
        A.label(".Lp2a_end")
        if WQF == 1: self.p2_wq()
        if WQF == 2:
            A("s_cmp_lt_u32 s2, 64")
            A("s_cbranch_scc1 .Lp2a_e2") if False else None
            A("s_sleep 4")
            self.p2_wq()
        if TLW:
            A("v_lshlrev_b32 v2, 21, v1")
            A(f"v_add_u32 v2, {(2 << 20) - 128}, v2")
            make_srd(A, 88, 68, 0, 48 * MB if TLW >= 2 else 4 * MB)
            A(f"s_cmp_lg_u32 s{W}, 4")
            A("s_cbranch_scc1 .Lp2a_e2")
            A("buffer_load_dword v252, v2, s[88:91], 0 offen sc1")
            if TLW == 1:
                A(f"s_mov_b32 s4, {WS_FLAG}")
                make_srd(A, 88, 68, 0, WS_FLAG + 2 * MB)
                A("buffer_load_dword v252, v2, s[88:91], s4 offen sc1")
        A.label(".Lp2a_e2")
        if EB:
            A("s_waitcnt lgkmcnt(0)")
            A("s_barrier")
            A(f"s_cmp_lt_u32 s{W}, 4")
            A("s_cbranch_scc1 .Lp2a_e3")
            self.p2_bulk1()
            A.label(".Lp2a_e3")
        A("s_mov_b32 s70, s57")
        A("s_mov_b32 s71, s58")
    def p2_bulk1(self):
        A = self.A; W = K1.S_WAVE
        A("s_sub_u32 s4, s2, 64")
        A("s_cmp_ge_u32 s4, 120")
        A("s_cbranch_scc1 .Lp2_l1")
        self.p2_tload(0); self.p2_tload(1)
        A.label(".Lp2_l1")
        if EB: make_srd(A, K1.S_WQ, 64, 0, 4 * MB)
        if DLY == 1 and not EB:
            A("s_cmp_ge_u32 s2, 64")
            A("s_cbranch_scc1 .Lp2_l3")
        if DLY and not EB:
            self.lds_spin(".Lp2_sd", 4, 4, True)
            A.label(".Lp2_l3")
        if not WQF: self.p2_wq()
    def p2_wq(self):
        A = self.A; W = K1.S_WAVE
        if WQF: make_srd(A, K1.S_WQ, 64, 0, 4 * MB)
        W128 = int(os.environ.get("W128", "0"))
        A("v_and_b32 v4, 255, v0")
        A(f"v_lshrrev_b32 v2, {3 if W128 else 4}, v4")
        A(f"v_and_b32 v3, {7 if W128 else 15}, v4")
        A(f"v_lshlrev_b32 v3, {7 if W128 else 6}, v3")
        A("v_lshl_add_u32 v2, v2, 13, v3")
        A("s_lshr_b32 s36, s2, 3")
        A("s_lshl_b32 s36, s36, 17")
        A("s_and_b32 s37, s2, 7")
        A("s_lshl_b32 s37, s37, 10")
        A("s_add_u32 s36, s36, s37")
        if W128:
            A(f"s_cmp_ge_u32 s{W}, 6")
            A("s_cbranch_scc1 .Lp2_l2")
        A(f"buffer_load_dword v63, v2, s[{K1.S_WQ}:{K1.S_WQ+3}], s36 offen")
        if W128: A.label(".Lp2_l2")
    def p2_tload(self, b):
        A = self.A
        wd = (72, 140)[b]; cd = (64, 156)[b]
        for i in range(4):
            A(f"buffer_load_dwordx4 v[{wd+4*i}:{wd+4*i+3}], v60, s[80:83], s58 offen")
            A("s_add_u32 s58, s58, s5")
        for i in range(4):
            A(f"buffer_load_ushort v{cd+i}, v61, s[76:79], s57 offen offset:{b*256 + i*64}")
    def lds_spin(self, lab, off, target, sleep=False, va=9):
        A = self.A
        A.label(lab)
        if sleep: A("s_sleep 2")
        A(f"ds_read_b32 v3, v{va} offset:{off}")
        A("s_waitcnt lgkmcnt(0)")
        A("v_readfirstlane_b32 s4, v3")
        A(f"s_cmp_lt_u32 s4, {target}")
        A(f"s_cbranch_scc1 {lab}")
    def lds_inc(self, off, va=9):
        A = self.A
        A("v_mov_b32 v3, 1")
        A("s_mov_b64 exec, 1")
        A(f"ds_add_u32 v{va}, v3 offset:{off}")
        A("s_mov_b64 exec, -1")
    def p2_gemv(self, sfx, nb, maybe_ones, col=3):
        A = self.A
        W = K1.S_WAVE; KM = f"s{K1.S_MASK}"; SCR = K1.STG + 16384
        ACC = list(range(96, 104)); T = list(range(104, 112)); U = list(range(112, 128))
        C = [64, 65, 66, 67] + ([156, 157, 158, 159] if nb == 2 else [])
        n = len(C)
        if maybe_ones:
            A("s_cmp_lt_u32 s2, 128")
            A(f"s_cbranch_scc1 .Lp2_silu{sfx}")
            for c in C: A(f"v_mov_b32 v{c}, 1.0")
            A(f"s_branch .Lp2_fma{sfx}")
            A.label(f".Lp2_silu{sfx}")
        for i, c in enumerate(C): A(f"v_lshlrev_b32 v{c}, 16, v{c}")
        for i, c in enumerate(C): A(f"v_mul_f32 v{T[i]}, {fhex(-LOG2E)}, v{c}")
        for i, c in enumerate(C): A(f"v_exp_f32 v{T[i]}, v{T[i]}")
        for i, c in enumerate(C): A(f"v_add_f32 v{T[i]}, 1.0, v{T[i]}")
        for i, c in enumerate(C): A(f"v_rcp_f32 v{U[i]}, v{T[i]}")
        for i, c in enumerate(C): A(f"v_mul_f32 v{U[8+i]}, v{c}, v{U[i]}")
        for i, c in enumerate(C): A(f"v_fma_f32 v{T[i]}, -v{U[8+i]}, v{T[i]}, v{c}")
        for i, c in enumerate(C): A(f"v_fma_f32 v{c}, v{T[i]}, v{U[i]}, v{U[8+i]}")
        for i, c in enumerate(C): A(f"v_cvt_pk_bf16_f32 v{T[i]}, v{c}, v{c}")
        for i, c in enumerate(C): A(f"v_lshlrev_b32 v{c}, 16, v{T[i]}")
        if maybe_ones: A.label(f".Lp2_fma{sfx}")
        for i in range(n):
            for j in range(4):
                w = (72, 140)[i >> 2] + 4 * (i & 3) + j
                A(f"v_lshlrev_b32 v{T[2*j]}, 16, v{w}")
                A(f"v_and_b32 v{T[2*j+1]}, {KM}, v{w}")
            for j in range(8):
                A(f"v_mul_f32 v{ACC[j]}, v{T[j]}, v{C[i]}" if i == 0 else f"v_fmac_f32 v{ACC[j]}, v{T[j]}, v{C[i]}")
        A("v_and_b32 v2, 7, v1")
        A("v_bfe_u32 v3, v0, 4, 4")
        for v in ACC: A(f"v_add_f32_dpp v{v}, v{v}, v{v} row_ror:8 row_mask:0xf bank_mask:0xf")
        A("v_lshlrev_b32 v3, 8, v3")
        A("v_lshl_add_u32 v3, v2, 5, v3")
        A(f"v_add_u32 v3, {SCR}, v3")
        A("v_and_b32 v2, 8, v1")
        A("v_cmp_eq_u32 vcc, 0, v2")
        A("s_and_b64 exec, exec, vcc")
        A(f"ds_write_b128 v3, v[{ACC[0]}:{ACC[3]}]")
        A(f"ds_write_b128 v3, v[{ACC[4]}:{ACC[7]}] offset:16")
        A("s_mov_b64 exec, -1")
        A("s_waitcnt lgkmcnt(0)")
        self.lds_inc(0)
        A(f"s_cmp_lg_u32 s{W}, {col}")
        A(f"s_cbranch_scc1 .Lp2_gd{sfx}")
        self.lds_spin(f".Lp2_sp{sfx}", 0, 4)
        A("v_lshlrev_b32 v2, 2, v1")
        A(f"v_add_u32 v3, {SCR}, v2")
        for k in range(16): A(f"ds_read_b32 v{104+k}, v3 offset:{k*256}")
        for k in range(8):
            A(f"s_waitcnt lgkmcnt({14-2*k})")
            A(f"v_add_f32 v{104+2*k}, v{104+2*k}, v{105+2*k}")
        for k in range(4): A(f"v_add_f32 v{104+4*k}, v{104+4*k}, v{106+4*k}")
        A("v_add_f32 v104, v104, v108")
        A("v_add_f32 v112, v112, v116")
        A("v_add_f32 v68, v104, v112")
        A("buffer_store_dword v68, v2, s[84:87], s59 offen sc1")
        A.label(f".Lp2_gd{sfx}")
    def p2_ln(self):
        A = self.A; KM = f"s{K1.S_MASK}"
        X0 = list(range(96, 104)); X1 = list(range(120, 128)); T0 = list(range(104, 116)); T1 = list(range(128, 140))
        for r, X in enumerate((X0, X1)):
            for j in range(4):
                A(f"v_lshlrev_b32 v{X[2*j]}, 16, v{88+4*r+j}")
                A(f"v_and_b32 v{X[2*j+1]}, {KM}, v{88+4*r+j}")
        ln_rows(A, [(X0, T0), (X1, T1)], KM, False)
        pack8(A, X0, 88); pack8(A, X1, 92)
        A(f"buffer_store_dwordx4 v[88:91], v12, s[{K1.S_XN}:{K1.S_XN+3}], s3 offen sc1")
        A(f"buffer_store_dwordx4 v[92:95], v12, s[{K1.S_XN}:{K1.S_XN+3}], s3 offen offset:1024 sc1")
    def p2_nonce(self, sfx):
        A = self.A
        A("s_mov_b32 s4, 0")
        A.label(f".Lp2_nl{sfx}")
        A("v_readfirstlane_b32 s100, v70")
        A("v_readfirstlane_b32 s101, v71")
        A("s_add_u32 s4, s4, 1")
        A("s_cmp_lg_u32 s100, 0")
        A(f"s_cbranch_scc1 .Lp2_nd{sfx}")
        A("s_cmp_lt_u32 s4, 0x40000")
        A(f"s_cbranch_scc0 .Lp2_nd{sfx}")
        self.p2_nload()
        A("s_waitcnt vmcnt(0)")
        A(f"s_branch .Lp2_nl{sfx}")
        A.label(f".Lp2_nd{sfx}")
        A("v_mov_b32 v70, s100")
        A("v_mov_b32 v71, s101")
    def p2_nload(self):
        A = self.A
        A("v_mov_b32 v2, 0")
        A("s_mov_b64 exec, 1")
        A("buffer_load_dwordx2 v[70:71], v2, s[88:91], 0 offen sc1")
        A("s_mov_b64 exec, -1")
    def p2_pubtask(self, region, base):
        A = self.A
        make_srd(A, 76, 68, region, 32 * 1024)
        A("v_lshlrev_b32 v3, 10, v1")
        A("s_mov_b32 s4, s73" if V3 else f"s_sub_u32 s4, s2, {base}")
        A("s_lshl_b32 s4, s4, 3")
        A("s_mov_b32 exec_hi, 0")
        A("buffer_store_dwordx2 v[70:71], v3, s[76:79], s4 offen sc1")
        A("s_mov_b64 exec, -1")
    def p2_pubxn(self, sfx):
        A = self.A
        self.lds_spin(f".Lp2_sx{sfx}", 4, 3)
        make_srd(A, 76, 68, FP, 32 * 1024)
        A(f"s_lshl_b32 s4, s{K1.S_M}, 10")
        A(f"s_lshl_b32 s5, s{K1.S_G}, 3")
        A("s_add_u32 s5, s5, 512")
        A("v_mov_b32 v3, s5")
        A("s_mov_b64 exec, 1")
        A("buffer_store_dwordx2 v[70:71], v3, s[76:79], s4 offen sc1")
        A("s_mov_b64 exec, -1")
    def p2_b(self, loader, cfix, xn_loads):
        A = self.A
        W = K1.S_WAVE; M_ = K1.S_M; KM = f"s{K1.S_MASK}"; SCR = K1.STG + 16384
        A(f"v_mov_b32 v9, {SCR + 8192}")
        if not EB:
            A("s_waitcnt lgkmcnt(0)")
            A("s_barrier")
        self.pst(2)
        A(f"s_cmp_lt_u32 s{W}, 4")
        A("s_cbranch_scc1 .Lp2_c")
        if not EB:
            A("s_mov_b32 s57, s70")
            A("s_mov_b32 s58, s71")
            self.p2_bulk1()
        elif DLY == 1:
            A("s_cmp_ge_u32 s2, 64")
            A("s_cbranch_scc1 .Lp2_l4")
            self.lds_spin(".Lp2_sd2", 4, 4, True)
            A.label(".Lp2_l4")
        loader()
        A("s_sub_u32 s4, s2, 64")
        A("s_cmp_ge_u32 s4, 120")
        A("s_cbranch_scc1 .Lp2_X")
        A(f"s_waitcnt vmcnt({4 * int(os.environ.get('LDE', '2'))})")
        self.p2_gemv("b", 2, True, 7)
        A("s_branch .Lp2_X")
        A.label(".Lp2_c")
        cfix()
        A("s_waitcnt vmcnt(0)")
        self.pst(3)
        A("s_cmp_ge_u32 s2, 64")
        A("s_cbranch_scc1 .Lp2_a0")
        self.p2_gemv("a", 1, False)
        A.label(".Lp2_a0")
        self.pst(4)
        A(f"s_cmp_lg_u32 s{W}, 3")
        A("s_cbranch_scc1 .Lp2_a1")
        self.p2_nload()
        A.label(".Lp2_a1")
        self.p2_ln()
        self.pst(6)
        A(f"s_cmp_lg_u32 s{W}, 3")
        A("s_cbranch_scc1 .Lp2_ack")
        A("s_waitcnt vmcnt(2)")
        self.p2_nonce("a")
        A("s_cmp_ge_u32 s2, 64")
        A("s_cbranch_scc1 .Lp2_a2")
        self.p2_pubtask(FP, 0)
        self.pst(7)
        A("s_waitcnt vmcnt(1)")
        A("s_branch .Lp2_a3")
        A.label(".Lp2_a2")
        A("s_waitcnt vmcnt(0)")
        A.label(".Lp2_a3")
        self.p2_pubxn("a")
        self.lds_inc(4)
        A("s_branch .Lp2_col")
        A.label(".Lp2_ack")
        A("s_waitcnt vmcnt(0)")
        self.lds_inc(4)
        A("s_branch .Lp2_X")
        A.label(".Lp2_col")
        make_srd(A, 76, 68, FP, 32 * 1024)
        A(f"s_lshl_b32 s5, s{M_}, 10")
        A("v_and_b32 v3, 7, v1")
        A("v_lshlrev_b32 v3, 3, v3")
        A("v_add_u32 v3, 512, v3")
        A("ds_write_b64 v9, v[70:71] offset:16")
        def parts():
            make_srd(A, 84, 68, WS_MOD, 4 * MODP)
            for i in range(4):
                for p in range(4):
                    A(f"s_movk_i32 s4, {p * MODP}") if p * MODP < 32768 else A(f"s_mov_b32 s4, {p * MODP}")
                    A(f"buffer_load_dwordx4 v[{72+16*i+4*p}:{75+16*i+4*p}], v12, s[84:87], s4 offen offset:{i*1024}")
        if MP:
            A("v_lshlrev_b32 v4, 3, v1")
            self.poll64(".Lplx", [(3, 76, "s5"), (4, 76, "s5")], cnt=4)
            parts()
        else:
            self.poll64(".Lplx", [(3, 76, "s5")], cnt=4)
        A.label(".Lp2_X")
        self.pst(8)
        A("s_waitcnt lgkmcnt(0)")
        A("s_barrier")
        self.pst(9)
        xn_loads()
        A(f"s_cmp_lg_u32 s{W}, 3")
        A("s_cbranch_scc1 .Lp2_Y")
        if not MP:
            make_srd(A, 76, 68, FP, 32 * 1024)
            A(f"s_lshl_b32 s5, s{M_}, 10")
            A("v_lshlrev_b32 v3, 3, v1")
            self.poll64(".Lplm", [(3, 76, "s5")], cnt=4)
            parts()
        A(f"v_add_u32 v3, {SCR + 4096}, v12")
        for i in range(4):
            b = 72 + 16 * i
            A(f"s_waitcnt vmcnt({12 - 4*i + (8 if MP else 0)})")
            pk(A, "v_pk_add_f32", b, b, b + 4); pk(A, "v_pk_add_f32", b + 2, b + 2, b + 6)
            pk(A, "v_pk_add_f32", b + 8, b + 8, b + 12); pk(A, "v_pk_add_f32", b + 10, b + 10, b + 14)
            pk(A, "v_pk_add_f32", b, b, b + 8); pk(A, "v_pk_add_f32", b + 2, b + 2, b + 10)
            round_multi(A, [b, b + 1, b + 2, b + 3], [b + 4, b + 5], KM)
            if i >= 2:
                for e in range(4): A(f"v_add_f32 v{b+e}, 1.0, v{b+e}")
                round_multi(A, [b, b + 1, b + 2, b + 3], [b + 4, b + 5], KM)
            A(f"ds_write_b128 v3, v[{b}:{b+3}] offset:{i*1024}")
        A("s_waitcnt lgkmcnt(0)")
        A.label(".Lp2_Y")
        A("s_barrier")
        self.pst(10)
        self.pst_flush()
        A("ds_read_b64 v[2:3], v9 offset:16")
        A("s_waitcnt lgkmcnt(0)")
        A("v_readfirstlane_b32 s100, v2")
        A("v_readfirstlane_b32 s101, v3")
    def p2_c(self):
        A = self.A
        if V4 and WQP == 3: self.p4_wq()
        if not V4:
            A(f"s_cmp_lg_u32 s{K1.S_WAVE}, {1 if V3 else 7}")
            A("s_cbranch_scc1 .Lp2c_end")
        A("s_mov_b32 s4, s73" if V3 else "s_sub_u32 s4, s2, 64")
        A("s_cmp_ge_u32 s4, 120")
        A("s_cbranch_scc1 .Lp2c_end")
        A("v_mov_b32 v70, s100")
        A("v_mov_b32 v71, s101")
        A("s_waitcnt vmcnt(0)")
        self.p2_pubtask(FQ_, 64)
        A.label(".Lp2c_end")
    def p3_tload(self, n):
        A = self.A
        for i in range(n):
            A(f"buffer_load_dwordx4 v[{128+4*i}:{131+4*i}], v60, s[80:83], s58 offen")
            A("s_add_u32 s58, s58, s5")
        for i in range(n):
            A(f"buffer_load_ushort v{224+i}, v61, s[76:79], s57 offen offset:{i*64}")
    def p3_wq(self, sfx):
        A = self.A; W = K1.S_WAVE
        make_srd(A, K1.S_WQ, 64, 0, 4 * MB)
        A("v_and_b32 v4, 255, v0")
        A("v_lshrrev_b32 v2, 4, v4")
        A("v_and_b32 v3, 15, v4")
        A("v_lshlrev_b32 v3, 6, v3")
        A("v_lshl_add_u32 v2, v2, 13, v3")
        A("s_lshr_b32 s36, s70, 3")
        A("s_lshl_b32 s36, s36, 17")
        A("s_and_b32 s37, s70, 7")
        A("s_lshl_b32 s37, s37, 10")
        A("s_add_u32 s36, s36, s37")
        A(f"s_cmp_lt_u32 s{W}, 4")
        A(f"s_cbranch_scc1 .Lp3_wq{sfx}")
        A(f"buffer_load_dword v63, v2, s[{K1.S_WQ}:{K1.S_WQ+3}], s36 offen")
        A.label(f".Lp3_wq{sfx}")
    def p3_dec(self, crit):
        A = self.A
        A("s_movk_i32 s71, 6144")
        if crit:
            A("s_and_b32 s4, s72, 15")
            A("s_bfe_u32 s5, s72, 0x20004")
            A("s_lshl_b32 s57, s5, 8")
        else:
            make_srd(A, 80, 74, 0, 512 * 6144)
            make_srd(A, 84, 68, WS_MOD, 4 * MODP)
            A("s_and_b32 s5, s73, 1")
            A("s_lshr_b32 s4, s73, 1")
            A("s_lshl_b32 s57, s5, 9")
            A("s_add_u32 s4, s4, 16")
            A("s_cmp_lt_u32 s4, 48")
            A("s_cbranch_scc1 .Lp3a_dec")
            A("s_sub_u32 s4, s4, 48")
            make_srd(A, 80, 96, 0, 512 * 3584)
            make_srd(A, 84, 68, WS_CS, 2 * CSP)
            A("s_movk_i32 s71, 3584")
            A.label(".Lp3a_dec")
        A("s_lshr_b32 s58, s57, 1")
        A("s_mul_i32 s58, s58, s71")
        A("s_lshl_b32 s59, s4, 7")
        A("s_add_u32 s58, s58, s59")
        A("s_lshl_b32 s59, s4, 8")
        A(f"s_movk_i32 s4, {MODP}")
        A("s_cmp_eq_u32 s71, 3584")
        A(f"s_cselect_b32 s4, {CSP}, s4")
        A("s_mul_i32 s4, s4, s5")
        A("s_add_u32 s59, s59, s4")
        A("v_and_b32 v2, 7, v0")
        A("v_bfe_u32 v3, v0, 3, 5")
        A("v_mul_lo_u32 v60, v3, s71")
        A("v_lshl_add_u32 v60, v2, 4, v60")
        A("v_lshlrev_b32 v61, 1, v3")
        A("s_lshl_b32 s5, s71, 5")
    def p3_a(self):
        A = self.A
        W = K1.S_WAVE; M_ = K1.S_M; XR = K1.V_S
        A("s_waitcnt lgkmcnt(0)")
        self.pst(1)
        make_srd(A, 88, 6, 0, 256)
        A(f"s_or_b32 s3, s2, s{W}")
        A("s_cmp_lg_u32 s3, 0")
        A("s_cbranch_scc1 .Lp3a_non")
        A("s_or_b32 s70, s70, 1")
        A("v_mov_b32 v2, s70")
        A("v_mov_b32 v3, s71")
        A("v_mov_b32 v5, 0")
        A("s_mov_b64 exec, 1")
        A("buffer_store_dwordx2 v[2:3], v5, s[88:91], 0 offen sc1")
        A("s_mov_b64 exec, -1")
        A.label(".Lp3a_non")
        make_srd(A, 76, 72, 0, 1024)
        make_srd(A, 80, 74, 0, 512 * 6144)
        make_srd(A, 84, 68, WS_MOD, 4 * MODP)
        make_srd(A, 88, 4, 0, 2 * MB)
        if RM:
            A("s_add_u32 s70, s2, 6")
            A("s_and_b32 s70, s70, 7")
            A("s_lshl_b32 s70, s70, 5")
            A("s_lshr_b32 s71, s2, 3")
            A("s_add_u32 s70, s70, s71")
            A("s_sub_u32 s72, s70, 192")
            if RM == 1:
                A("s_add_u32 s73, s72, 64")
                A("s_cmp_lt_u32 s70, 192")
                A("s_cselect_b32 s73, 255, s73")
                A("s_cmp_lt_u32 s70, 64")
                A("s_cselect_b32 s73, s70, s73")
            else:
                A("s_mov_b32 s73, s70")
        else:
            A("s_mov_b32 s72, s2")
            A("s_sub_u32 s73, s2, 64")
            A("s_sub_u32 s70, 255, s2")
            A("s_xor_b32 s70, s70, 7")
        self.p3_dec(True)
        A(f"v_mov_b32 v58, {K1.STG + 16384}")
        A("v_mov_b32 v3, 0")
        A("ds_write_b32 v58, v3 offset:16")
        A("ds_write_b32 v58, v3 offset:20")
        A("s_cmp_ge_u32 s72, 64")
        A("s_cbranch_scc1 .Lp3a_x")
        A(f"s_cmp_ge_u32 s{W}, 4")
        A("s_cbranch_scc1 .Lp3a_x")
        self.p3_tload(4)
        A.label(".Lp3a_x")
        A("s_waitcnt lgkmcnt(0)")
        A("s_barrier")
        A(f"s_lshl_b32 s3, s{M_}, 16")
        A(f"s_lshl_b32 s4, s{W}, 13")
        A("s_add_u32 s3, s3, s4")
        A("s_add_u32 s4, s3, 4096")
        for i in range(4 if XS else 8):
            A(f"buffer_load_dwordx4 v[{XR+4*i}:{XR+4*i+3}], v12, s[88:91], s{3 + (i >> 2)} offen offset:{(i & 3) * 1024}")
        if not XS: make_srd(A, 88, 6, 0, 256)
        if not XS:
            A("s_cmp_lt_u32 s72, 64")
            A("s_cbranch_scc1 .Lp3a_end")
            self.p3_wq("a")
            A.label(".Lp3a_end")
    def p3_gemv(self, sfx, n, maybe_ones, col):
        A = self.A
        W = K1.S_WAVE; KM = f"s{K1.S_MASK}"; SCR = K1.STG + 16384
        ACC = list(range(64, 72)); T = list(range(72, 80)); U = list(range(80, 96))
        C = list(range(224, 224 + n))
        GO = 8192 if sfx == 'a' else 12288; CT_ = 16 if sfx == 'a' else 20
        if maybe_ones:
            A("s_cmp_lt_u32 s73, 64")
            A(f"s_cbranch_scc1 .Lp3_silu{sfx}")
            for c in C: A(f"v_mov_b32 v{c}, 1.0")
            A(f"s_branch .Lp3_fma{sfx}")
            A.label(f".Lp3_silu{sfx}")
        seq = [lambda i, c: f"v_lshlrev_b32 v{c}, 16, v{c}", lambda i, c: f"v_mul_f32 v{T[i]}, {fhex(-LOG2E)}, v{c}",
               lambda i, c: f"v_exp_f32 v{T[i]}, v{T[i]}", None, lambda i, c: f"v_add_f32 v{T[i]}, 1.0, v{T[i]}",
               lambda i, c: f"v_rcp_f32 v{U[i]}, v{T[i]}", None, lambda i, c: f"v_mul_f32 v{U[8+i]}, v{c}, v{U[i]}",
               lambda i, c: f"v_fma_f32 v{T[i]}, -v{U[8+i]}, v{T[i]}, v{c}", lambda i, c: f"v_fma_f32 v{c}, v{T[i]}, v{U[i]}, v{U[8+i]}",
               lambda i, c: f"v_cvt_pk_bf16_f32 v{T[i]}, v{c}, v{c}", lambda i, c: f"v_lshlrev_b32 v{c}, 16, v{T[i]}"]
        for f in seq:
            if f is None: A("s_nop 0"); continue
            for i, c in enumerate(C): A(f(i, c))
        if maybe_ones: A.label(f".Lp3_fma{sfx}")
        for i in range(n):
            for j in range(4):
                w = 128 + 4 * i + j
                A(f"v_lshlrev_b32 v{T[2*j]}, 16, v{w}")
                A(f"v_and_b32 v{T[2*j+1]}, {KM}, v{w}")
            for j in range(8):
                A(f"v_mul_f32 v{ACC[j]}, v{T[j]}, v{C[i]}" if i == 0 else f"v_fmac_f32 v{ACC[j]}, v{T[j]}, v{C[i]}")
        A("v_and_b32 v2, 7, v1")
        A("v_lshrrev_b32 v3, 4, v0")
        for v in ACC: A(f"v_add_f32_dpp v{v}, v{v}, v{v} row_ror:8 row_mask:0xf bank_mask:0xf")
        A("v_lshlrev_b32 v3, 8, v3")
        A("v_lshl_add_u32 v3, v2, 5, v3")
        A(f"v_add_u32 v3, {SCR + GO}, v3")
        A("v_and_b32 v2, 8, v1")
        A("v_cmp_eq_u32 vcc, 0, v2")
        A("s_and_b64 exec, exec, vcc")
        A(f"ds_write_b128 v3, v[{ACC[0]}:{ACC[3]}]")
        A(f"ds_write_b128 v3, v[{ACC[4]}:{ACC[7]}] offset:16")
        A("s_mov_b64 exec, -1")
        A("s_waitcnt lgkmcnt(0)")
        self.lds_inc(CT_, 58)
        A(f"s_cmp_lg_u32 s{W}, {col}")
        A(f"s_cbranch_scc1 .Lp3_gd{sfx}")
        self.lds_spin(f".Lp3_sp{sfx}", CT_, 4, False, 58)
        A("v_lshlrev_b32 v2, 2, v1")
        A(f"v_add_u32 v3, {SCR + GO}, v2")
        for k in range(16): A(f"ds_read_b32 v{64+k}, v3 offset:{k*256}")
        for k in range(8):
            A(f"s_waitcnt lgkmcnt({14-2*k})")
            A(f"v_add_f32 v{64+2*k}, v{64+2*k}, v{65+2*k}")
        for k in range(4): A(f"v_add_f32 v{64+4*k}, v{64+4*k}, v{66+4*k}")
        A("v_add_f32 v64, v64, v68")
        A("v_add_f32 v72, v72, v76")
        A("v_add_f32 v234, v64, v72")
        A("buffer_store_dword v234, v2, s[84:87], s59 offen sc1")
        A.label(f".Lp3_gd{sfx}")
    def p3_ln(self, b):
        A = self.A; KM = f"s{K1.S_MASK}"; XR = K1.V_S
        R = [(list(range(64 + 8 * r, 72 + 8 * r)), list(range(96 + 8 * r, 104 + 8 * r))) for r in range(4)]
        for r, (X, T) in enumerate(R):
            for j in range(4):
                A(f"v_lshlrev_b32 v{X[2*j]}, 16, v{XR+16*b+4*r+j}")
                A(f"v_and_b32 v{X[2*j+1]}, {KM}, v{XR+16*b+4*r+j}")
        ln_fast(A, R, KM, False)
        for r, (X, T) in enumerate(R): pack8(A, X, XR + 16 * b + 4 * r)
    def p3_nload(self):
        A = self.A
        A("v_mov_b32 v2, 0")
        A("s_mov_b64 exec, 1")
        A("buffer_load_dwordx2 v[232:233], v2, s[88:91], 0 offen sc1")
        A("s_mov_b64 exec, -1")
    def p3_xwait(self, sfx, n):
        A = self.A
        A("s_sub_u32 s4, s2, 64")
        A("s_cmp_lt_u32 s4, 120")
        A(f"s_cbranch_scc1 .Lp3_xw{sfx}")
        A(f"s_waitcnt vmcnt({n})")
        A.label(f".Lp3_xw{sfx}")
        A(f"s_waitcnt vmcnt({n + 8})")
    def p3_b(self, loader, cfix, xn_loads):
        A = self.A
        W = K1.S_WAVE; M_ = K1.S_M; KM = f"s{K1.S_MASK}"; SCR = K1.STG + 16384
        CW = 0; PW = 1
        WQL = int(os.environ.get('WQL', '0'))
        def nonce(sfx):
            A("s_mov_b32 s4, 0")
            A.label(f".Lp3_nl{sfx}")
            A("v_readfirstlane_b32 s100, v232")
            A("v_readfirstlane_b32 s101, v233")
            A("s_add_u32 s4, s4, 1")
            A("s_cmp_lg_u32 s100, 0")
            A(f"s_cbranch_scc1 .Lp3_nd{sfx}")
            A("s_cmp_lt_u32 s4, 0x40000")
            A(f"s_cbranch_scc0 .Lp3_nd{sfx}")
            self.p3_nload()
            A("s_waitcnt vmcnt(0)")
            A(f"s_branch .Lp3_nl{sfx}")
            A.label(f".Lp3_nd{sfx}")
            A("v_mov_b32 v232, s100")
            A("v_mov_b32 v233, s101")
            A(f"v_mov_b32 v2, {SCR}")
            A("ds_write_b64 v2, v[232:233]")
        if XS:
            A("s_add_u32 s4, s3, 4096")
            for i in range(4, 8):
                A(f"buffer_load_dwordx4 v[{K1.V_S+4*i}:{K1.V_S+4*i+3}], v12, s[88:91], s4 offen offset:{(i & 3) * 1024}")
            make_srd(A, 88, 6, 0, 256)
            A("s_mov_b32 s6, 0")
            A("s_mov_b32 s7, 0")
            A(f"s_cmp_gt_u32 s{W}, 1")
            A("s_cbranch_scc1 .Lp3_e1")
            self.p3_nload()
            A("s_mov_b32 s6, 1")
            A.label(".Lp3_e1")
            A("s_cmp_lt_u32 s72, 64")
            A("s_cbranch_scc1 .Lp3a_end")
            self.p3_wq("a")
            A(f"s_lshr_b32 s7, s{W}, 2")
            A("s_or_b32 s6, s6, s7")
            A.label(".Lp3a_end")
        self.pst(2)
        A("s_cmp_ge_u32 s72, 64")
        A("s_cbranch_scc1 .Lp3_nc")
        A(f"s_cmp_ge_u32 s{W}, 4")
        A("s_cbranch_scc1 .Lp3_ln0")
        A("s_waitcnt vmcnt(8)")
        self.pst(3)
        self.p3_gemv("a", 4, False, PW)
        self.pst(4)
        A.label(".Lp3_nc")
        A.label(".Lp3_ln0")
        assert XS
        A("s_cmp_lg_u32 s6, 0")
        A("s_cbranch_scc1 .Lp3_ln0a")
        A("s_waitcnt vmcnt(4)")
        A.label(".Lp3_ln0a")
        A("s_waitcnt vmcnt(5)")
        self.pst(5)
        self.p3_ln(0)
        self.pst(6)
        make_srd(A, 36, 68, FP, 32 * 1024)
        A("s_cmp_lg_u32 s7, 0")
        A("s_cbranch_scc1 .Lp3_ln1a")
        A("s_waitcnt vmcnt(0)")
        A.label(".Lp3_ln1a")
        A("s_waitcnt vmcnt(1)")
        A(f"s_cmp_gt_u32 s{W}, 1")
        A("s_cbranch_scc1 .Lp3_n1")
        nonce("a")
        A.label(".Lp3_n1")
        A("s_cmp_ge_u32 s72, 64")
        A("s_cbranch_scc1 .Lp3_n3")
        A(f"s_cmp_lg_u32 s{W}, {PW}")
        A("s_cbranch_scc1 .Lp3_n2")
        A("v_lshlrev_b32 v3, 10, v1")
        A("s_lshl_b32 s4, s72, 3")
        A("s_mov_b32 exec_hi, 0")
        A("buffer_store_dwordx2 v[232:233], v3, s[36:39], s4 offen sc1")
        A("s_mov_b64 exec, -1")
        self.pst(7)
        A.label(".Lp3_n2")
        if WQL == 0: self.p3_wq("b")
        A.label(".Lp3_n3")
        A("s_cmp_ge_u32 s73, 120")
        A("s_cbranch_scc1 .Lp3_n4")
        A(f"s_cmp_ge_u32 s{W}, 4")
        A("s_cbranch_scc1 .Lp3_n4")
        self.p3_dec(False)
        A("s_cmp_ge_u32 s72, 64")
        A("s_cbranch_scc1 .Lp3_n3b")
        A("s_sleep 6")
        A.label(".Lp3_n3b")
        self.p3_tload(8)
        A.label(".Lp3_n4")
        make_srd(A, 76, 68, FP, 32 * 1024)
        self.p3_ln(1)
        self.pst(8)
        if WQL:
            A("s_cmp_ge_u32 s72, 64")
            A("s_cbranch_scc1 .Lp3_n9")
            A(f"s_cmp_eq_u32 s{W}, {CW}")
            A("s_cbranch_scc1 .Lp3_n9")
            self.p3_wq("b")
            A.label(".Lp3_n9")
        A("s_cmp_ge_u32 s73, 120")
        A("s_cbranch_scc1 .Lp3_n6")
        A(f"s_cmp_ge_u32 s{W}, 4")
        A("s_cbranch_scc1 .Lp3_n6")
        A("s_waitcnt vmcnt(0)")
        self.p3_gemv("b", 8, True, 1)
        A.label(".Lp3_n6")
        A(f"s_cmp_lg_u32 s{W}, {CW}")
        A("s_cbranch_scc1 .Lp3_n5")
        A(f"s_lshl_b32 s5, s{M_}, 10")
        A("v_lshlrev_b32 v3, 3, v1")
        self.poll64(".Lplm", [(3, 76, "s5")], cnt=4, slp=int(os.environ.get("PSLP", "0")))
        make_srd(A, 76, 68, WS_MOD, 4 * MODP)
        for i in range(4):
            for p in range(4):
                A(f"s_movk_i32 s4, {p * MODP}") if p * MODP < 32768 else A(f"s_mov_b32 s4, {p * MODP}")
                A(f"buffer_load_dwordx4 v[{64+16*i+4*p}:{67+16*i+4*p}], v12, s[76:79], s4 offen offset:{i*1024}")
        A.label(".Lp3_n5")
        self.pst(9)
        A(f"s_cmp_lg_u32 s{W}, {CW}")
        A("s_cbranch_scc1 .Lp3_n8")
        A(f"v_add_u32 v3, {SCR + 4096}, v12")
        for i in range(4):
            b = 64 + 16 * i
            A(f"s_waitcnt vmcnt({12 - 4*i})")
            pk(A, "v_pk_add_f32", b, b, b + 4); pk(A, "v_pk_add_f32", b + 2, b + 2, b + 6)
            pk(A, "v_pk_add_f32", b + 8, b + 8, b + 12); pk(A, "v_pk_add_f32", b + 10, b + 10, b + 14)
            pk(A, "v_pk_add_f32", b, b, b + 8); pk(A, "v_pk_add_f32", b + 2, b + 2, b + 10)
            round_multi(A, [b, b + 1, b + 2, b + 3], [b + 4, b + 5], KM)
            if i >= 2:
                for e in range(4): A(f"v_add_f32 v{b+e}, 1.0, v{b+e}")
                round_multi(A, [b, b + 1, b + 2, b + 3], [b + 4, b + 5], KM)
            A(f"ds_write_b128 v3, v[{b}:{b+3}] offset:{i*1024}")
        A("s_waitcnt lgkmcnt(0)")
        A.label(".Lp3_n8")
        A.label(".Lp3_Y")
        loader()
        A("s_barrier")
        self.pst(10)
        self.pst_flush()
        A(f"v_mov_b32 v2, {SCR}")
        A("ds_read_b64 v[2:3], v2")
        A("s_waitcnt lgkmcnt(0)")
        A("v_readfirstlane_b32 s100, v2")
        A("v_readfirstlane_b32 s101, v3")
    def p4_silu(self, C, T, U):
        A = self.A; n = len(C)
        seq = [lambda i, c: f"v_mul_f32 v{T[i]}, {fhex(-LOG2E)}, v{c}",
               lambda i, c: f"v_exp_f32 v{T[i]}, v{T[i]}", None, lambda i, c: f"v_add_f32 v{T[i]}, 1.0, v{T[i]}",
               lambda i, c: f"v_rcp_f32 v{U[i]}, v{T[i]}", None, lambda i, c: f"v_mul_f32 v{U[n+i]}, v{c}, v{U[i]}",
               lambda i, c: f"v_fma_f32 v{T[i]}, -v{U[n+i]}, v{T[i]}, v{c}", lambda i, c: f"v_fma_f32 v{c}, v{T[i]}, v{U[i]}, v{U[n+i]}"]
        for f in seq:
            if f is None: A("s_nop 0"); continue
            for i, c in enumerate(C): A(f(i, c))
    def p4_red8(self, sets, last):
        A = self.A
        DP = "row_mask:0xf bank_mask:"
        for S in sets:
            for k in range(4): A(f"v_permlane32_swap_b32 v{S[k]}, v{S[k+4]}")
        if len(sets) == 1: A("s_nop 0")
        for S in sets:
            for k in range(4): A(f"v_add_f32 v{S[k]}, v{S[k]}, v{S[k+4]}")
        A("s_nop 1" if len(sets) == 1 else "s_nop 0")
        for S in sets:
            for k in range(2): A(f"v_permlane16_swap_b32 v{S[k]}, v{S[k+2]}")
        A("s_nop 1")
        for S in sets:
            for k in range(2): A(f"v_add_f32 v{S[k]}, v{S[k]}, v{S[k+2]}")
        A("s_nop 1")
        for S in sets:
            A(f"v_add_f32_dpp v{S[2]}, v{S[0]}, v{S[0]} row_ror:8 {DP}0x3")
            A(f"v_add_f32_dpp v{S[2]}, v{S[1]}, v{S[1]} row_ror:8 {DP}0xc")
        src = 2
        for i, d in enumerate(last):
            A("s_nop 1" if len(sets) == 1 else "s_nop 0")
            for S in sets: A(f"v_add_f32_dpp v{S[0]}, v{S[src]}, v{S[src]} {d} {DP}0xf")
            src = 0
    def p4_xl(self):
        A = self.A; XR = K1.V_S
        A("s_add_u32 s4, s3, 4096")
        for i in range(8):
            A(f"buffer_load_dwordx4 v[{XR+4*i}:{XR+4*i+3}], v12, s[84:87], s{3 + (i >> 2)} offen offset:{(i & 3) * 1024}")
    def p4_a(self):
        A = self.A
        W = K1.S_WAVE; M_ = K1.S_M; XR = K1.V_S; SCR = K1.STG + K1.SCRO
        NLT = 64 if LT == 3 else 120
        A(f"v_mov_b32 v58, {SCR}")
        for i in range(4): A(f"v_mov_b32 v{4+i}, 0")
        A("ds_write_b128 v58, v[4:7]")
        A("ds_write_b128 v58, v[4:7] offset:16")
        if XH:
            A("s_getreg_b32 s57, hwreg(HW_REG_XCC_ID)")
            A("s_and_b32 s3, s2, 1")
            A("s_lshl_b32 s3, s3, 5")
            A("s_lshr_b32 s56, s2, 3")
            A("s_add_u32 s3, s3, s56")
            A("s_bitcmp1_b32 s2, 1")
            A("s_cselect_b32 s56, 0, 192")
            A("s_cselect_b32 s58, 64, 128")
            A("s_bitcmp1_b32 s57, 2" if XH == 1 else ("s_cmp_eq_u32 s57, s57" if XH == 2 else "s_cmp_lg_u32 s57, s57"))
            A("s_cselect_b32 s56, s58, s56")
            A("s_add_u32 s3, s3, s56")
        elif RM:
            A("s_add_u32 s3, s2, 6")
            A("s_and_b32 s3, s3, 7")
            A("s_lshl_b32 s3, s3, 5")
            A("s_lshr_b32 s57, s2, 3")
            A("s_add_u32 s3, s3, s57")
        else:
            A("s_sub_u32 s3, 255, s2")
        A(f"s_cmp_lt_u32 s{W}, 4")
        A("s_cselect_b32 s36, s3, 128")
        A("v_lshrrev_b32 v3, 3, v0")
        A("s_cmp_lt_u32 s36, 192")
        A("s_cbranch_scc1 .Lp4a_l")
        A("v_and_b32 v2, 1, v1")
        A("v_lshl_or_b32 v2, v3, 1, v2")
        A("v_lshlrev_b32 v61, 3, v2")
        A("v_mul_u32_u24 v60, 24576, v2")
        A("v_bfe_u32 v3, v1, 1, 2")
        A("v_lshl_add_u32 v60, v3, 4, v60")
        A("s_bfe_u32 s59, s3, 0x10005")
        A("s_and_b32 s58, s3, 31")
        A("s_lshl_b32 s58, s58, 6")
        A(f"s_mul_i32 s57, s59, {256 * 6144}")
        A("s_add_u32 s58, s58, s57")
        A("s_lshl_b32 s59, s59, 9")
        A("s_waitcnt lgkmcnt(0)")
        self.pst(1)
        make_srd(A, 76, 72, 0, 1024)
        make_srd(A, 80, 74, 0, 512 * 6144)
        A("buffer_load_dwordx2 v[224:225], v61, s[76:79], s59 offen")
        for i in range(4):
            A(f"buffer_load_dwordx4 v[{128+4*i}:{131+4*i}], v60, s[80:83], s58 offen")
            if i < 3: A("s_add_u32 s58, s58, 6144")
        A("s_branch .Lp4a_x")
        A.label(".Lp4a_l")
        A(f"s_cmp_ge_u32 s36, {NLT}")
        A("s_cbranch_scc1 .Lp4a_w")
        A("s_and_b32 s37, s3, 1")
        A("s_lshr_b32 s56, s3, 1")
        A("s_add_u32 s57, s56, 16")
        A("s_sub_u32 s56, s56, 32")
        A("s_cmp_lt_u32 s3, 64")
        A("s_cselect_b32 s56, s57, s56")
        A(f"s_movk_i32 s57, {CSP}")
        A(f"s_cselect_b32 s59, {MODP}, s57")
        A("s_movk_i32 s57, 3584")
        A("s_cselect_b32 s46, 6144, s57")
        A(f"s_cselect_b32 s47, {WS_MOD}, {WS_CS}")
        A("s_mul_i32 s59, s59, s37")
        A("s_add_u32 s59, s59, s47")
        A("s_lshl_b32 s57, s56, 8")
        A("s_add_u32 s59, s59, s57")
        A("s_lshl_b32 s58, s37, 8")
        A("s_mul_i32 s58, s58, s46")
        A("s_lshl_b32 s56, s56, 7")
        A("s_add_u32 s58, s58, s56")
        A("s_lshl_b32 s57, s37, 9")
        A("s_lshl_b32 s56, s46, 3")
        A("v_and_b32 v2, 7, v1")
        A("v_mul_lo_u32 v60, v3, s56")
        A("v_lshl_add_u32 v60, v2, 4, v60")
        A("v_lshlrev_b32 v61, 4, v3")
        A("s_cmp_lt_u32 s3, 64")
        A("s_waitcnt lgkmcnt(0)")
        make_srd(A, 76, 72, 0, 1024)
        A("s_cselect_b32 s80, s74, s96")
        A("s_cselect_b32 s81, s75, s97")
        A("s_lshl_b32 s82, s46, 9")
        A("s_mov_b32 s83, 0x00020000")
        A("buffer_load_dwordx4 v[224:227], v61, s[76:79], s57 offen")
        for i in range(8):
            A(f"buffer_load_dwordx4 v[{128+4*i}:{131+4*i}], v60, s[80:83], s58 offen")
            if i < 7: A("s_add_u32 s58, s58, s46")
        A.label(".Lp4a_w")
        A("s_waitcnt lgkmcnt(0)")
        self.pst(1)
        A.label(".Lp4a_x")
        make_srd(A, 88, 6, 0, 256)
        A(f"s_xor_b32 s57, s{W}, 4")
        if XH:
            A("s_lshr_b32 s56, s2, 3")
            A("s_or_b32 s57, s56, s57")
        else: A("s_or_b32 s57, s2, s57")
        A("s_cmp_lg_u32 s57, 0")
        A("s_cbranch_scc1 .Lp4a_non")
        A("s_or_b32 s70, s70, 1")
        A("v_mov_b32 v2, s70")
        A("v_mov_b32 v3, s71")
        A("s_mov_b64 exec, 1")
        if XH: A("buffer_atomic_cmpswap_x2 v[2:5], v6, s[88:91], 0 offen sc1")
        else: A("buffer_store_dwordx2 v[2:3], v5, s[88:91], 0 offen sc1")
        A("s_mov_b64 exec, -1")
        A.label(".Lp4a_non")
        if int(os.environ.get("HX", "0")):
            A(f"s_cmp_lg_u32 s{W}, 5")
            A("s_cbranch_scc1 .Lp4a_hx")
            A("s_cmp_ge_u32 s2, 14")
            A("s_cbranch_scc1 .Lp4a_hx")
            A("s_getreg_b32 s57, hwreg(HW_REG_XCC_ID)")
            A("s_and_b32 s57, s57, 15")
            A("s_mul_i32 s57, s57, 100000000")
            A("s_and_b32 s56, s70, 0xffff")
            A("s_add_u32 s57, s57, s56")
            A("v_mov_b32 v2, s57")
            A("s_lshl_b32 s57, s2, 2")
            A("s_mov_b64 exec, 1")
            A("buffer_store_dword v2, v5, s[88:91], s57 offen offset:8")
            A("s_mov_b64 exec, -1")
            A.label(".Lp4a_hx")
        make_srd(A, 84, 4, 0, 2 * MB)
        A("s_mov_b32 s70, s3")
        A("s_sub_u32 s72, s36, 192")
        A(f"s_cmp_lt_u32 s36, {NLT}")
        A("s_cselect_b32 s73, s36, 255")
        if XRT:
            A(f"s_add_u32 s71, s{W}, s{K1.S_G}")
            A("s_and_b32 s71, s71, 7")
            A("s_lshl_b32 s71, s71, 3")
        else: A(f"s_lshl_b32 s71, s{W}, 3")
        A(f"s_lshl_b32 s3, s{M_}, 16")
        A("s_lshl_b32 s4, s71, 10")
        A("s_add_u32 s3, s3, s4")
        A("s_barrier")
        if XL:
            A(f"s_cmp_ge_u32 s{W}, {XL}")
            A("s_cbranch_scc1 .Lp4a_nx")
        A("s_cmp_lt_u32 s73, 120")
        A("s_cbranch_scc1 .Lp4a_nx")
        if CX:
            A("s_sub_u32 s4, s70, s36")
            A("s_cmp_ge_i32 s4, 64")
        else:
            A("s_cmp_lt_u32 s72, 64")
        A("s_cbranch_scc1 .Lp4a_nx")
        self.p4_xl()
        if NW:
            A(f"s_cmp_lg_u32 s{W}, 0")
            A("s_cbranch_scc1 .Lp4a_nx")
            A("s_cmp_ge_u32 s70, 192")
            A("s_cbranch_scc1 .Lp4a_nx")
            self.p3_nload()
        A.label(".Lp4a_nx")
    def p4_arrive(self, lab):
        A = self.A
        A("v_mov_b32 v3, 1")
        A("s_waitcnt lgkmcnt(0)")
        A("s_mov_b64 exec, 1")
        A("ds_add_rtn_u32 v3, v58, v3 offset:16")
        A("s_mov_b64 exec, -1")
        A("s_waitcnt lgkmcnt(0)")
        A("v_readfirstlane_b32 s4, v3")
        A("s_cmp_lg_u32 s4, 3")
        A(f"s_cbranch_scc1 {lab}")
    def p4_slow(self, sfx, scol, spart, sA, sB, sT, KM):
        A = self.A
        ACC = list(range(112, 120)); F = list(range(96, 112)); C = list(range(64, 72))
        A(f"s_load_dwordx4 s[{sT}:{sT+3}], s[0:1], 80")
        A("v_and_b32 v2, 7, v1")
        A("v_lshrrev_b32 v3, 3, v1")
        A("v_mul_u32_u24 v60, 49152, v3")
        A("v_lshl_add_u32 v60, v2, 4, v60")
        A("v_lshlrev_b32 v61, 4, v3")
        A("v_lshl_add_u32 v2, v2, 3, v3")
        for a in ACC: A(f"v_mov_b32 v{a}, 0")
        A("s_waitcnt lgkmcnt(0)")
        make_srd(A, sA, sT, 0, 1024)
        make_srd(A, sB, sT + 2, 0, 512 * 6144)
        A(f"s_mul_i32 s{sT}, s{spart}, {256 * 6144}")
        A(f"s_add_u32 s{sT}, s{sT}, s{scol}")
        A(f"s_lshl_b32 s{sT+1}, s{spart}, 9")
        A(f"s_mov_b32 s{sT+2}, 4")
        A.label(f".Lp4s_{sfx}")
        A(f"buffer_load_dwordx4 v[224:227], v61, s[{sA}:{sA+3}], s{sT+1} offen")
        for i in range(8):
            A(f"buffer_load_dwordx4 v[{128+4*i}:{131+4*i}], v60, s[{sB}:{sB+3}], s{sT} offen")
            A(f"s_add_u32 s{sT}, s{sT}, {6144 if i < 7 else 57 * 6144}")
        A(f"s_add_u32 s{sT+1}, s{sT+1}, 128")
        A("s_waitcnt vmcnt(8)")
        for i in range(4):
            A(f"v_lshlrev_b32 v{C[2*i]}, 16, v{224+i}")
            A(f"v_and_b32 v{C[2*i+1]}, {KM}, v{224+i}")
        self.p4_silu(C, list(range(72, 80)), list(range(80, 96)))
        for i in range(4): A(f"v_cvt_pk_bf16_f32 v{72+i}, v{C[2*i]}, v{C[2*i+1]}")
        self.p4_forms([72, 73, 74, 75], F, KM)
        A("s_waitcnt vmcnt(0)")
        for i in range(8):
            for k in range(8):
                A(f"v_dot2_f32_bf16 v{ACC[k]}, v{128+4*i+k//2}, v{F[2*i+(k&1)]}, v{ACC[k]}")
        A(f"s_sub_u32 s{sT+2}, s{sT+2}, 1")
        A(f"s_cmp_lg_u32 s{sT+2}, 0")
        A(f"s_cbranch_scc1 .Lp4s_{sfx}")
        self.p4_red8([ACC], [])
    def p4_forms(self, P, F, KM=None):
        A = self.A; KM = KM or f"s{K1.S_MASK}"
        for i, p in enumerate(P):
            A(f"v_and_b32 v{F[4*i]}, 0xffff, v{p}")
            A(f"v_lshlrev_b32 v{F[4*i+1]}, 16, v{p}")
            A(f"v_lshrrev_b32 v{F[4*i+2]}, 16, v{p}")
            A(f"v_and_b32 v{F[4*i+3]}, {KM}, v{p}")
    def p4_wq(self):
        A = self.A; W = K1.S_WAVE
        A("v_and_b32 v4, 255, v0")
        A("v_lshrrev_b32 v2, 4, v4")
        A("v_and_b32 v3, 15, v4")
        A("v_lshlrev_b32 v3, 6, v3")
        A("v_lshl_add_u32 v2, v2, 13, v3")
        A("s_add_u32 s36, s70, 64")
        A("s_cmp_lt_u32 s70, 128")
        A("s_cselect_b32 s36, 256, s36")
        A("s_cmp_lt_u32 s70, 192")
        A("s_cselect_b32 s37, s70, 256")
        A(f"s_cmp_lt_u32 s{W}, 4")
        A("s_cselect_b32 s36, s36, s37")
        A("s_cmp_ge_u32 s36, 256")
        A("s_cbranch_scc1 .Lp4_wq")
        A("s_and_b32 s37, s36, 7")
        A("s_lshr_b32 s36, s36, 3")
        A("s_lshl_b32 s36, s36, 17")
        A("s_lshl_b32 s37, s37, 10")
        A("s_add_u32 s36, s36, s37")
        A(f"buffer_load_dword v63, v2, s[{K1.S_WQ}:{K1.S_WQ+3}], s36 offen")
        A.label(".Lp4_wq")
    def p4_nonce(self, sfx):
        A = self.A
        A("s_mov_b32 s4, 0")
        A.label(f".Lp4_nl{sfx}")
        A("v_readfirstlane_b32 s100, v232")
        A("v_readfirstlane_b32 s101, v233")
        A("s_add_u32 s4, s4, 1")
        A("s_cmp_lg_u32 s100, 0")
        A(f"s_cbranch_scc1 .Lp4_nd{sfx}")
        A("s_cmp_lt_u32 s4, 0x40000")
        A(f"s_cbranch_scc0 .Lp4_nd{sfx}")
        self.p3_nload()
        A("s_waitcnt vmcnt(0)")
        A(f"s_branch .Lp4_nl{sfx}")
        A.label(f".Lp4_nd{sfx}")
        A("s_or_b32 s100, s100, 1")
        A("v_mov_b32 v232, s100")
        A("v_mov_b32 v233, s101")
        A("ds_write_b64 v58, v[232:233]")
    def p4_nget(self, lab):
        A = self.A
        A.label(lab)
        A("ds_read_b64 v[2:3], v58")
        A("s_waitcnt lgkmcnt(0)")
        A("v_readfirstlane_b32 s100, v2")
        A("v_readfirstlane_b32 s101, v3")
        A("s_cmp_eq_u32 s100, 0")
        A(f"s_cbranch_scc1 {lab}")
    def p4_b(self, loader, cfix, xn_loads):
        A = self.A
        W = K1.S_WAVE; M_ = K1.S_M; KM = f"s{K1.S_MASK}"; SCR = K1.STG + K1.SCRO; XR = K1.V_S
        K10 = K1.V_K10; K01 = K1.V_K01
        ACC = list(range(72, 80))
        A("s_mov_b32 s6, 0")
        if XL:
            assert not CX and XL >= 4
            A(f"s_cmp_lt_u32 s{W}, {XL}")
            A("s_cbranch_scc1 .Lp4_xl0")
            self.p4_xl()
            A.label(".Lp4_xl0")
        if CX:
            A("s_cmp_lt_u32 s70, 192")
            A("s_cbranch_scc1 .Lp4_cx0")
            A(f"s_cmp_lt_u32 s{W}, 4")
            A("s_cbranch_scc1 .Lp4_cx0")
            self.p4_xl()
            A.label(".Lp4_cx0")
        XN_ = 8 if CX else 0
        self.pst(2)
        A("s_cmp_ge_u32 s72, 64")
        A("s_cbranch_scc1 .Lp4_nc")
        self.p3_nload()
        make_srd(A, 76, 68, WS_LL, NREP * 16384)
        A("v_and_b32 v2, 15, v1")
        A("v_lshrrev_b32 v4, 4, v1")
        A("v_lshlrev_b32 v4, 14, v4")
        A("v_lshl_add_u32 v4, v2, 4, v4")
        A("v_lshlrev_b32 v2, 5, v2")
        A(f"v_add_u32 v5, {SCR + 256}, v2")
        A("s_lshl_b32 s57, s72, 8")
        A("v_lshrrev_b32 v2, 3, v1")
        A("v_bfe_u32 v3, v1, 1, 2")
        A("v_lshl_add_u32 v2, v3, 3, v2")
        A(f"s_lshl_b32 s4, s{W}, 2")
        A(f"s_add_u32 s4, s4, {SCR + 256}")
        A("v_lshlrev_b32 v2, 4, v2")
        A("v_add_u32 v6, s4, v2")
        A(f"s_waitcnt vmcnt({5 + XN_})")
        C = [64, 65, 66, 67]
        for i in range(2):
            A(f"v_lshlrev_b32 v{C[2*i]}, 16, v{224+i}")
            A(f"v_and_b32 v{C[2*i+1]}, {KM}, v{224+i}")
        self.p4_silu(C, [68, 69, 70, 71], list(range(80, 88)))
        A("v_cvt_pk_bf16_f32 v64, v64, v65")
        A("v_cvt_pk_bf16_f32 v65, v66, v67")
        self.p4_forms([64, 65], list(range(80, 88)))
        for r in range(4):
            A(f"s_waitcnt vmcnt({4 - r + XN_})")
            if r == 3: self.pst(3)
            for k in range(8):
                A(f"v_dot2_f32_bf16 v{ACC[k]}, v{128+4*r+k//2}, v{80+2*r+(k&1)}, {'0' if r == 0 else 'v%d' % ACC[k]}")
        A("s_nop 0")
        self.p4_red8([ACC], ["quad_perm:[1,0,3,2]"])
        A(f"ds_write_b32 v6, v{ACC[0]}")
        self.pst(4)
        self.p4_arrive(".Lp4_cw")
        for i in range(2): A(f"ds_read_b128 v[{64+4*i}:{67+4*i}], v5 offset:{16*i}")
        A("s_waitcnt vmcnt(0)")
        self.p4_nonce("a")
        A("s_waitcnt lgkmcnt(0)")
        for b in (64, 68): pk(A, "v_pk_add_f32", b, b, b + 2)
        A("v_add_f32 v64, v64, v65")
        A("v_add_f32 v66, v68, v69")
        A("v_mov_b32 v65, s100")
        A("v_mov_b32 v67, s100")
        for i in range(NREP // 4):
            A("buffer_store_dwordx4 v[64:67], v4, s[76:79], s57 offen sc1")
            if i < NREP // 4 - 1: A("s_add_u32 s57, s57, 65536")
        if CX:
            self.pst(7)
            A("s_branch .Lp4_xd")
            A.label(".Lp4_cw")
            A("s_waitcnt vmcnt(1)")
            A("s_branch .Lp4_xd")
        else:
            self.lds_inc(16, 58)
            self.pst(7)
            A("s_branch .Lp4_cx")
            A.label(".Lp4_cw")
            self.lds_spin(".Lp4_spc", 16, 5, True, 58)
            A("s_branch .Lp4_cx")
        A.label(".Lp4_nc")
        A("s_cmp_ge_u32 s73, 120")
        A("s_cbranch_scc1 .Lp4_nl")
        F = list(range(96, 112)); C = list(range(64, 72))
        make_srd(A, 76, 68, 0, 128 * 1024)
        A("v_and_b32 v2, 7, v1")
        A("v_lshrrev_b32 v3, 3, v1")
        A("v_lshl_add_u32 v2, v2, 3, v3")
        A(f"s_lshl_b32 s4, s{W}, 8")
        A(f"s_add_u32 s4, s4, {SCR + 256}")
        A("v_lshlrev_b32 v2, 2, v2")
        A("v_add_u32 v6, s4, v2")
        A("v_lshlrev_b32 v4, 2, v1")
        A(f"v_add_u32 v5, {SCR + 256}, v4")
        A("s_cmp_lt_u32 s73, 64")
        A("s_cbranch_scc1 .Lp4_silu")
        for i in range(8):
            A(f"v_mov_b32 v{F[2*i]}, v{K10}")
            A(f"v_mov_b32 v{F[2*i+1]}, v{K01}")
        A("s_branch .Lp4_fma")
        A.label(".Lp4_silu")
        A("s_waitcnt vmcnt(8)")
        for i in range(4):
            A(f"v_lshlrev_b32 v{C[2*i]}, 16, v{224+i}")
            A(f"v_and_b32 v{C[2*i+1]}, {KM}, v{224+i}")
        self.p4_silu(C, list(range(72, 80)), list(range(80, 96)))
        for i in range(4): A(f"v_cvt_pk_bf16_f32 v{72+i}, v{C[2*i]}, v{C[2*i+1]}")
        self.p4_forms([72, 73, 74, 75], F)
        A.label(".Lp4_fma")
        for i in range(8):
            A(f"s_waitcnt vmcnt({7 - i})")
            if i == 7: self.pst(3)
            for k in range(8):
                A(f"v_dot2_f32_bf16 v{ACC[k]}, v{128+4*i+k//2}, v{F[2*i+(k&1)]}, {'0' if i == 0 else 'v%d' % ACC[k]}")
        self.p4_xl()
        self.p4_red8([ACC], [])
        A(f"ds_write_b32 v6, v{ACC[2]}")
        self.pst(4)
        A("s_mov_b32 s5, s73")
        A("s_movk_i32 s73, 255")
        self.p4_arrive(".Lp4_nl")
        A("s_mov_b32 s73, s5")
        for k in range(4): A(f"ds_read_b32 v{64+k}, v5 offset:{k*256}")
        A("s_waitcnt lgkmcnt(0)")
        A("v_add_f32 v64, v64, v65")
        A("v_add_f32 v66, v66, v67")
        A("v_add_f32 v64, v64, v66")
        A("buffer_store_dword v64, v4, s[76:79], s59 offen sc1")
        A("s_waitcnt vmcnt(1)")
        A("s_branch .Lp4_xd")
        if not CX:
            A.label(".Lp4_cx")
            self.p4_xl()
        A.label(".Lp4_nl")
        A("s_cmp_ge_u32 s70, 192")
        A("s_cbranch_scc1 .Lp4_e1")
        if NW:
            A(f"s_cmp_lt_u32 s70, {64 if LT == 3 else 120}")
            A("s_cbranch_scc1 .Lp4_e0")
            A(f"s_cmp_lg_u32 s{W}, 0")
            A("s_cbranch_scc1 .Lp4_e1")
            A("s_branch .Lp4_e2")
            A.label(".Lp4_e0")
        A(f"s_cmp_lg_u32 s{W}, 4")
        A("s_cbranch_scc1 .Lp4_e1")
        self.p3_nload()
        A.label(".Lp4_e2")
        if NW == 2:
            A("s_mov_b32 s6, 1")
            A("s_waitcnt vmcnt(1)")
            A("s_branch .Lp4_xd")
        else:
            A("s_waitcnt vmcnt(0)")
            self.p4_nonce("b")
        A.label(".Lp4_e1")
        A("s_waitcnt vmcnt(0)")
        A.label(".Lp4_xd")
        A("s_mov_b32 s7, 0x3f803f80")
        self.pst(5)
        if WQP == 0 and NW != 2: self.p4_wq()
        S = list(range(80, 88)); Q = list(range(88, 96))
        for r in range(8):
            for j in range(4):
                x = XR + 4 * r + j
                A(f"v_dot2_f32_bf16 v{S[r]}, v{x}, s7, {'0' if j == 0 else 'v%d' % S[r]}")
                A(f"v_dot2_f32_bf16 v{Q[r]}, v{x}, v{x}, {'0' if j == 0 else 'v%d' % Q[r]}")
        make_srd(A, 76, 68, WS_LL, NREP * 16384)
        A(f"s_and_b32 s57, s{M_}, {NREP - 1}")
        A("s_lshl_b32 s57, s57, 14")
        A(f"s_lshl_b32 s4, s{W}, 10")
        A("s_add_u32 s57, s57, s4")
        A("s_add_u32 s58, s57, 8192")
        self.p4_red8([S, Q], ["row_half_mirror", "quad_perm:[1,0,3,2]", "quad_perm:[2,3,0,1]"])
        m = S[0]; q = Q[0]
        A(f"v_mul_f32 v{m}, {fhex(1/512)}, v{m}")
        A(f"v_mul_f32 v{q}, {fhex(1/512)}, v{q}")
        A(f"v_fma_f32 v{q}, -v{m}, v{m}, v{q}")
        A(f"v_cvt_pk_bf16_f32 v{m}, 0, -v{m}")
        A(f"v_max_f32 v{q}, 0, v{q}")
        A(f"v_cvt_pk_bf16_f32 v{q}, 0, v{q}")
        A(f"v_add_f32 v{q}, {fhex(1e-5)}, v{q}")
        A(f"v_cvt_pk_bf16_f32 v{q}, 0, v{q}")
        A(f"v_sqrt_f32 v{q}, v{q}")
        for r in range(4): A(f"v_readlane_b32 s{8+r}, v{m}, {8*r}")
        A(f"v_cvt_pk_bf16_f32 v{q}, 0, v{q}")
        A(f"v_rcp_f32 v{q}, v{q}")
        for r in range(4, 8): A(f"v_readlane_b32 s{8+r}, v{m}, {8*r}")
        for r in range(8): A(f"v_readlane_b32 s{48+r}, v{q}, {8*r}")
        self.pst(6)
        if NW == 2:
            A("s_cmp_eq_u32 s6, 0")
            A("s_cbranch_scc1 .Lp4_e3")
            A("s_waitcnt vmcnt(0)")
            self.p4_nonce("b")
            A.label(".Lp4_e3")
            if WQP == 0: self.p4_wq()
        PPOS = int(os.environ.get("PPOS", "8"))
        if XH:
            A("s_sub_u32 s72, s70, 128")
            A(f"s_cmp_eq_u32 s{W}, 0")
            A("s_cselect_b32 s72, s72, 255")
            A("s_lshl_b32 s59, s72, 8")
            A(f"s_and_b32 s4, s{M_}, {NREP - 1}")
            A("s_lshl_b32 s4, s4, 14")
            A("s_add_u32 s59, s59, s4")
            A("v_and_b32 v7, 31, v1")
            A("v_lshlrev_b32 v7, 3, v7")
        with Cap(A) as cpl:
            if XH:
                lb = ".Lp4_g%d_"
                A("s_cmp_ge_u32 s72, 64")
                A(f"s_cbranch_scc1 {lb}")
                A("buffer_load_dwordx2 v[244:245], v7, s[76:79], s59 offen sc1")
                A.label(lb)
            A("buffer_load_dwordx4 v[236:239], v12, s[76:79], s57 offen sc1")
            A("buffer_load_dwordx4 v[240:243], v12, s[76:79], s58 offen sc1")
            if LDP == 1: loader()
        pn = [0]
        def poll1():
            pn[0] += 1
            A.lines.extend([l.replace("%d", str(pn[0])) for l in cpl.out])
        if DPP_:
            A("s_sub_u32 s6, s70, 64")
            A("s_cmp_ge_u32 s6, 128")
            A("s_cbranch_scc1 .Lp4_p0")
            poll1()
            A.label(".Lp4_p0")
        for r in range(8):
            if r == PPOS and not DPP_: poll1()
            T = 96 + 16 * (r & 1); x = XR + 4 * r
            for j in range(8): A(f"v_dot2_f32_bf16 v{T+j}, v{x+j//2}, v{(K10, K01)[j & 1]}, s{8+r}")
            for j in range(8): A(f"v_cvt_pk_bf16_f32 v{T+j}, 0, v{T+j}")
            sp = 48 + (r & ~1)
            for j in range(4): A(f"v_pk_mul_f32 v[{T+2*j}:{T+2*j+1}], v[{T+2*j}:{T+2*j+1}], s[{sp}:{sp+1}] " + ("op_sel:[0,1]" if r & 1 else "op_sel_hi:[1,0]"))
            for j in range(4): A(f"v_cvt_pk_bf16_f32 v{x+j}, v{T+2*j}, v{T+2*j+1}")
        if DPP_:
            A("s_cmp_lt_u32 s6, 128")
            A("s_cbranch_scc1 .Lp4_p1")
            poll1()
            A.label(".Lp4_p1")
        elif PPOS >= 8: poll1()
        self.pst(8)
        ND = 2 * int(os.environ.get('LDE', '2')) if LDP == 1 else 0
        A(f"s_waitcnt vmcnt({ND})")
        self.p4_nget(".Lp4_ng1")
        if XH:
            A("s_cmp_ge_u32 s72, 64")
            A("s_cbranch_scc1 .Lp4_gd")
            A("s_mov_b32 s4, 0")
            A.label(".Lp4_gl")
            A("v_cmp_ne_u32 vcc, s100, v245")
            A("s_add_u32 s4, s4, 1")
            A("s_cbranch_vccz .Lp4_gd")
            A(f"s_cmp_ge_u32 s4, {KFB}")
            A("s_cbranch_scc1 .Lp4_gf")
            A("buffer_load_dwordx2 v[244:245], v7, s[76:79], s59 offen sc1")
            A("s_waitcnt vmcnt(0)")
            A("s_branch .Lp4_gl")
            A.label(".Lp4_gf")
            A("s_lshr_b32 s5, s72, 5")
            A("s_bfe_u32 s6, s72, 0x40001")
            A("s_lshl_b32 s7, s6, 7")
            self.p4_slow("c", 7, 5, 80, 84, 48, KM)
            A("s_lshl_b32 s5, s5, 13")
            A("s_lshl_b32 s6, s6, 9")
            A("s_add_u32 s5, s5, s6")
            A("v_lshlrev_b32 v2, 3, v2")
            A("v_mov_b32 v115, s100")
            for i in range(NREP):
                A("buffer_store_dwordx2 v[114:115], v2, s[76:79], s5 offen sc1")
                if i < NREP - 1: A("s_add_u32 s5, s5, 16384")
            A.label(".Lp4_gd")
        A("s_mov_b32 s4, 0")
        A(f"s_cmp_ge_u32 s{W}, 4")
        A("s_cselect_b32 s71, 1.0, 0")
        A("s_cselect_b32 s7, 0, 16")
        A(f"s_lshl_b32 s6, s{W}, 9")
        A(f"s_add_u32 s6, s6, {SCR + 4096}")
        A("v_lshlrev_b32 v6, 3, v1")
        A("v_add_u32 v6, s6, v6")
        A.label(".Lp4_chk")
        A("v_xor_b32 v2, s100, v237")
        A("v_xor_b32 v3, s100, v239")
        A("v_xor_b32 v4, s100, v241")
        A("v_xor_b32 v5, s100, v243")
        A("v_or_b32 v2, v2, v3")
        A("v_or_b32 v4, v4, v5")
        A("v_cmp_ne_u32 s[12:13], 0, v2")
        A("v_cmp_ne_u32 vcc, 0, v4")
        A("s_add_u32 s4, s4, 1")
        A("s_or_b64 s[14:15], s[12:13], vcc")
        A("s_cbranch_scc0 .Lp4_ok")
        A("s_cmp_lt_u32 s4, 0x40000")
        A("s_cbranch_scc0 .Lp4_ok")
        if int(os.environ.get("PSL", "0")): A(f"s_sleep {int(os.environ.get('PSL', '0'))}")
        MRL = int(os.environ.get("MRL", "1"))
        if MRL: A("s_mov_b64 exec, s[12:13]")
        A("buffer_load_dwordx4 v[236:239], v12, s[76:79], s57 offen sc1")
        if MRL: A("s_mov_b64 exec, vcc")
        A("buffer_load_dwordx4 v[240:243], v12, s[76:79], s58 offen sc1")
        if MRL: A("s_mov_b64 exec, -1")
        A("s_waitcnt vmcnt(0)")
        A("s_branch .Lp4_chk")
        A.label(".Lp4_ok")
        self.pst(9)
        A("v_add_f32 v236, v236, v240")
        A("v_add_f32 v238, v238, v242")
        A("v_cvt_pk_bf16_f32 v236, 0, v236")
        A("v_cvt_pk_bf16_f32 v238, 0, v238")
        A("v_add_f32 v236, s71, v236")
        A("v_add_f32 v238, s71, v238")
        A("v_cvt_pk_bf16_f32 v2, v236, v238")
        A("v_and_b32 v236, 0xffff, v2")
        A(f"v_and_b32 v237, {KM}, v2")
        A("v_lshlrev_b32 v236, s7, v236")
        A("ds_write_b64 v6, v[236:237]")
        if LDP == 2: loader()
        if K1.R7: cfix()
        if WQP == 2: self.p4_wq()
        if int(os.environ.get("YSL", "0")): A(f"s_sleep {int(os.environ.get('YSL', '0'))}")
        A("s_waitcnt lgkmcnt(0)")
        A("s_barrier")
        self.pst(10)
        self.pst_flush()
    def w_setup(self, widx, K, rowbytes, woff_code):
        A = self.A
        make_srd(A, S_W, P_W + 2 * widx, 0, K * rowbytes)
        A(f"v_lshrrev_b32 v2, 3, v{L}")
        A(f"v_and_b32 v3, 7, v{L}")
        A(f"v_lshlrev_b32 v{V_W}, 1, v2")
        A(f"v_and_b32 v{V_W}, 4, v{V_W}")
        A(f"v_xor_b32 v3, v3, v{V_W}")
        A("v_lshlrev_b32 v3, 4, v3")
        A(f"v_mul_u32_u24 v2, {rowbytes}, v2") if rowbytes < 64 else None
        A(f"s_movk_i32 s{S_WOFF}, {rowbytes}")
        A(f"v_mul_lo_u32 v2, v2, s{S_WOFF}")
        A(f"v_add_u32 v{V_W}, v2, v3")
        woff_code()
        if PRI: A(f"s_sub_u32 s{S_WOFF}, s{S_WOFF}, {8 * rowbytes}")
        self.wrb = rowbytes
    def dmaW(self, st, ldsoff, tag="w"):
        A = self.A
        for i in range(2):
            A(f"s_add_u32 m0, s{S_RB}, {ldsoff + i * 1024}")
            A(f"s_add_u32 s{S_WOFF}, s{S_WOFF}, {8 * self.wrb}" if PRI else "s_nop 0")
            A(f"buffer_load_dwordx4 v{V_W}, s[{S_W}:{S_W+3}], s{S_WOFF} offen lds")
            self.vm.issue((tag, st))
            if not PRI: A(f"s_add_u32 s{S_WOFF}, s{S_WOFF}, {8 * self.wrb}")
    def pf_g64(self, widx, K, WB, DW, lo=0, hi=99, rot=0):
        A = self.A
        def woff():
            A(f"s_mul_i32 s{S_WOFF}, s{S_WAVE}, {(K // 4) * 1024}")
            A(f"s_lshl_b32 s{S_TMP+11}, s{S_J}, 7")
            A(f"s_add_u32 s{S_WOFF}, s{S_WOFF}, s{S_TMP+11}")
        if lo == 0: self.w_setup(widx, K, 1024, woff)
        self.wrb = 1024
        for st in range(lo, min(DW, hi)): self.dmaW(st, WB + ((st + rot) % DW) * 2048, "wn" if PFE == 3 else "w")
    def pf_fg(self, lo=0, hi=11 + FGE, alt=False, tag="wn"):
        A = self.A
        def woff():
            A(f"s_mul_i32 s{S_WOFF}, s{S_WAVE}, {448 * 1024}")
            A(f"s_lshl_b32 s{S_TMP+11}, s{S_J}, 7")
            A(f"s_add_u32 s{S_WOFF}, s{S_WOFF}, s{S_TMP+11}")
        if lo == 0: self.w_setup(3, 1792, 1024, woff)
        self.wrb = 1024
        for st in range(lo, hi): self.dmaW(st, fg_slot(st), tag)
    def d6_woffs(self, ks_, swv, dst):
        A = self.A
        A(f"s_cmp_eq_u32 s{S_J}, 7")
        A(f"s_cselect_b32 s64, 0, s{S_J}")
        A(f"s_lshl_b32 s57, s{swv}, 16")
        A(f"s_lshl_b32 s{S_TMP+11}, s{S_J}, 7")
        A(f"s_add_u32 s57, s57, s{S_TMP+11}")
        for i, k in enumerate(ks_):
            d = dst + i
            A(f"s_add_u32 s{d}, s64, {k}")
            A(f"s_sub_u32 s{S_TMP+11}, s{d}, 7")
            A(f"s_cselect_b32 s{d}, s{d}, s{S_TMP+11}")
            A(f"s_lshl_b32 s{d}, s{d}, 18")
            A(f"s_add_u32 s{d}, s{d}, s57")
    def d6_dma(self, sw, q, lds, tag="wn"):
        A = self.A
        for i in range(2):
            if isinstance(lds, int): A(f"s_add_u32 m0, s{S_RB}, {lds + i * 1024}")
            else: A(f"s_add_u32 m0, s{lds[0]}, {lds[1] + i * 1024}")
            A(f"s_add_u32 s{S_WOFF}, s{sw}, {q * 16384 + i * 8192}")
            A(f"buffer_load_dwordx4 v{V_W}, s[{S_W}:{S_W+3}], s{S_WOFF} offen lds")
            self.vm.issue((tag, q))
    def pf_d6(self, lo=0, hi=11, alt=False):
        if lo == 0: self.w_setup(3, 1792, 1024, lambda: self.d6_woffs(range(5), S_WAVE, 12))
        sl = [9 + (21 + i) % 11 for i in range(lo, hi)] + (list(range(9)) if alt else [])
        for s_ in sl:
            k = D6POS.index(s_ >> 2)
            self.d6_dma(12 + k, s_ & 3, s_ * 2048)
    def pf_k5(self, lo=0, hi=99):
        A = self.A
        def woff():
            A(f"s_min_u32 s{S_WOFF}, s{S_J}, 6")
            A(f"s_lshl_b32 s{S_WOFF}, s{S_WOFF}, 9")
            A(f"s_lshl_b32 s{S_TMP+11}, s{S_WAVE}, 7")
            A(f"s_add_u32 s{S_WOFF}, s{S_WOFF}, s{S_TMP+11}")
        if lo == 0: self.w_setup(2, 512, 3584, woff)
        self.wrb = 3584
        for st in range(lo, min(K5D, hi)): self.dmaW(st, K5RB + st * 2048, "wn" if PFE == 3 else "w")
    def l2pf(self, widx, size):
        A = self.A
        per = size // 32
        A("s_lshr_b32 s78, s2, 3")
        A(f"s_mul_i32 s78, s78, {per}")
        make_srd(A, 80, P_W + 2 * widx, "s78", per)
        A("v_and_b32 v2, 255, v0")
        A("v_lshlrev_b32 v2, 7, v2")
        n = (per + 32767) // 32768
        for i in range(n):
            A(f"s_mov_b32 s78, {i * 32768}")
            A("buffer_load_dword v3, v2, s[80:83], s78 offen")
        return n
    def persist(self):
        A = self.A
        A(f"s_load_dwordx2 s[{P_X}:{P_X+1}], s[0:1], 0")
        A(f"s_load_dwordx2 s[{P_OUT}:{P_OUT+1}], s[0:1], 96")
        A(f"s_load_dwordx2 s[{P_WS}:{P_WS+1}], s[0:1], 112")
        A(f"s_load_dwordx8 s[{P_W}:{P_W+7}], s[0:1], 48")
        A("v_and_b32 v1, 63, v0")
        A("v_lshrrev_b32 v2, 6, v0")
        A("s_nop 0")
        A(f"v_readfirstlane_b32 s{S_WAVE}, v2")
        A(f"s_and_b32 s{S_M}, s2, 31")
        A(f"s_lshr_b32 s{S_J}, s2, 5")
        A(f"s_mov_b32 s{S_MASK}, 0xffff0000")
        A(f"s_mul_i32 s{S_RB}, s{S_WAVE}, {RG}")
        A("s_waitcnt lgkmcnt(0)")
    def kr(self):
        A = self.A; vm = self.vm
        S_X = 8; S_MOD = 12; S_PT = 16; S_X2 = 20; S_H = 24; S_HN = 28; S_H1 = 36
        PR = 64; XR = 16; GA = 24; CB = 32; SB = 40
        A("v_lshlrev_b32 v9, 4, v1")
        A("v_lshlrev_b32 v10, 5, v1")
        A(f"s_lshl_b32 s3, s{S_M}, 3")
        A(f"s_add_u32 s3, s3, s{S_J}")
        A("s_lshl_b32 s3, s3, 3")
        A(f"s_add_u32 s3, s3, s{S_WAVE}")
        A("s_lshl_b32 s3, s3, 10")
        make_srd(A, S_X, P_X, 0, 2 * MB)
        make_srd(A, S_MOD, P_WS, WS_MOD, 4 * MODP)
        if HA:
            assert KRF and W0M and not PRG
            A("v_lshlrev_b32 v11, 3, v1")
            for h in range(2):
                A(f"buffer_load_dwordx2 v[{XR+2*h}:{XR+2*h+1}], v11, s[{S_X}:{S_X+3}], s3 offen offset:{512*h}"); vm.issue("x")
        else:
            A(f"buffer_load_dwordx4 v[{XR}:{XR+3}], v9, s[{S_X}:{S_X+3}], s3 offen"); vm.issue("x")
        def rowst(r, srd):
            if HA:
                for h in range(2): A(f"buffer_store_dwordx2 v[{r+2*h}:{r+2*h+1}], v11, s[{srd}:{srd+3}], s3 offen offset:{512*h} sc1")
            else: A(f"buffer_store_dwordx4 v[{r}:{r+3}], v9, s[{srd}:{srd+3}], s3 offen sc1")
        def modloads():
            for part in range(2 if V2 else 1):
                for (dst, idx) in ((CB, 4), (GA, 2), (SB, 3)):
                    d = dst + 88 * part
                    A(f"s_movk_i32 s{S_TMP}, {idx*2048 + part*MODP}")
                    A(f"buffer_load_dwordx4 v[{d}:{d+3}], v10, s[{S_MOD}:{S_MOD+3}], s{S_TMP} offen"); vm.issue("x")
                    A(f"buffer_load_dwordx4 v[{d+4}:{d+7}], v10, s[{S_MOD}:{S_MOD+3}], s{S_TMP} offen offset:16"); vm.issue("x")
        if HA:
            A("v_add_u32 v2, 81920, v9")
            for q, off in enumerate((0, 16384, 49152)):
                A(f"ds_read_b128 v[{24+8*q}:{27+8*q}], v2 offset:{off}")
                A(f"ds_read_b128 v[{28+8*q}:{31+8*q}], v2 offset:{off+1024}")
            A(f"s_and_b32 s48, s{S_WAVE}, 2")
            A("s_lshl_b32 s48, s48, 13")
            A(f"s_lshr_b32 s49, s{S_WAVE}, 2")
            A("s_lshl_b32 s49, s49, 11")
            A("s_add_u32 s48, s48, s49")
            A(f"s_and_b32 s49, s{S_WAVE}, 1")
            A("s_lshl_b32 s49, s49, 10")
            A("s_add_u32 s48, s48, s49")
            A("v_add_u32 v63, s48, v2")
            A("v_mov_b32 v56, 0x3f80")
            A("v_mov_b32 v57, 1.0")
            A(f"s_sub_u32 s48, s{S_WAVE}, 2")
            A("s_cmp_ge_u32 s48, 2")
            A("s_cbranch_scc1 .Lha_k1")
            A("s_cmp_lg_u32 s65, 0")
            A("s_cbranch_scc1 .Lha_k1")
            make_srd(A, 72, P_WS, WS_PART, 8 * 2048 * 512 * 2)
            make_srd(A, 76, P_WS, WS_FLAG + 5 * 8192, 8192)
            self.poll64(".Lpla", [(60, 76, "s96")])
            self.ha_loads()
            A.label(".Lha_k1")
            A("s_waitcnt lgkmcnt(0)")
        elif W0M:
            A("v_add_u32 v2, 81920, v10")
            for q, off in enumerate((0, 16384, 49152)):
                A(f"ds_read_b128 v[{24+8*q}:{27+8*q}], v2 offset:{off}")
                A(f"ds_read_b128 v[{28+8*q}:{31+8*q}], v2 offset:{off+16}")
            A("s_waitcnt lgkmcnt(0)")
        else: modloads()
        make_srd(A, S_PT, P_WS, WS_PART, 8 * 2048 * 512 * 2)
        make_srd(A, S_X2, P_WS, WS_X2, 2 * MB)
        make_srd(A, S_H, P_WS, WS_H, 2 * MB)
        make_srd(A, S_HN, P_WS, WS_HN, 2 * MB)
        make_srd(A, S_H1, P_WS, WS_H1, 2052 * 1024)
        if HP:
            A(f"v_lshlrev_b32 v2, 2, v1")
            A(f"v_add_u32 v2, {CNT}, v2")
            A("v_mov_b32 v3, 0")
            A("ds_write_b32 v2, v3")
            A("s_waitcnt lgkmcnt(0)")
        A(f"s_cmp_ge_u32 s{S_WAVE}, 4")
        A("s_cbranch_scc1 .Lkr_nz2")
        A(f"s_lshr_b32 s{S_TMP}, s{S_WAVE}, 1")
        A(f"s_mul_i32 s{S_TMP}, s{S_TMP}, 31")
        A(f"s_cmp_lg_u32 s2, s{S_TMP}")
        A("s_cbranch_scc1 .Lkr_nz")
        A(f"s_lshl_b32 s{S_TMP}, s{S_WAVE}, 10")
        A(f"s_add_u32 s{S_TMP+1}, s{S_TMP}, {2048*1024}")
        A(f"s_cmp_lt_u32 s{S_WAVE}, 2")
        A(f"s_cselect_b32 s{S_TMP}, s{S_TMP}, s{S_TMP+1}")
        for j in range(4): A(f"v_mov_b32 v{12+j}, 0")
        A(f"buffer_store_dwordx4 v[12:15], v9, s[{S_H1}:{S_H1+3}], s{S_TMP} offen sc1")
        A.label(".Lkr_nz")
        PFW1 = int(os.environ.get("PFW1", "1"))
        if PRG:
            PFP = int(os.environ.get("PFP", "1"))
            if PFP == 0: self.pf_g64(0, 512, 24576, 8)
            PFW1 = 0
            A.label(".Lkr_nz2")
            A(f"s_mul_i32 s{S_TMP}, s{S_M}, {7 * 65536}")
            A(f"s_add_u32 s{S_TMP}, s{S_TMP}, s3")
            A(f"v_mov_b32 v4, {MSK}")
            A(f"s_mov_b32 s{S_TMP+1}, 0")
            A(f"s_cmp_lg_u32 s{S_WAVE}, 7")
            A("s_cbranch_scc1 .Lkr_lp")
            A("v_and_b32 v3, 7, v1")
            A("v_lshlrev_b32 v3, 3, v3")
            A("v_add_u32 v3, s96, v3")
            A("s_mov_b32 s99, 0")
            A.label(".Lkr_pp")
            A("buffer_load_dwordx2 v[248:249], v3, s[92:95], 0 offen sc1")
            A("s_add_u32 s99, s99, 1")
            A("s_waitcnt vmcnt(0)")
            A("v_xor_b32 v248, s100, v248")
            A("v_xor_b32 v249, s101, v249")
            A("v_or_b32 v248, v248, v249")
            A("v_cmp_eq_u32 vcc, 0, v248")
            A(f"s_and_b32 s{S_TMP+2}, vcc_lo, 0xff")
            A("s_cmp_lt_u32 s99, 0x40000")
            A(f"s_cselect_b32 s{S_TMP+2}, s{S_TMP+2}, 0xff")
            A(f"v_mov_b32 v5, s{S_TMP+2}")
            A("s_mov_b64 exec, 1")
            A("ds_or_b32 v4, v5")
            A("s_mov_b64 exec, -1")
            A(f"s_cmp_lg_u32 s{S_TMP+2}, 0xff")
            A("s_cbranch_scc1 .Lkr_pp")
            self.stamp(4)
            A.label(".Lkr_lp")
            A("ds_read_b32 v5, v4")
            A("s_waitcnt lgkmcnt(0)")
            A(f"v_readfirstlane_b32 s{S_TMP+2}, v5")
            A(f"s_andn2_b32 s{S_TMP+3}, s{S_TMP+2}, s{S_TMP+1}")
            A("s_cbranch_scc1 .Lkr_new")
            A("s_sleep 1")
            A("s_branch .Lkr_lp")
            A.label(".Lkr_new")
            for g in range(8):
                A(f"s_bitcmp1_b32 s{S_TMP+3}, {g}")
                A(f"s_cbranch_scc0 .Lkr_n{g}")
                A(f"s_add_u32 s{S_TMP+4}, s{S_TMP}, {g * 65536}")
                A(f"buffer_load_dwordx4 v[{PR+4*g}:{PR+4*g+3}], v9, s[{S_PT}:{S_PT+3}], s{S_TMP+4} offen")
                A.label(f".Lkr_n{g}")
            A(f"s_mov_b32 s{S_TMP+1}, s{S_TMP+2}")
            A(f"s_cmp_lg_u32 s{S_TMP+1}, 0xff")
            A("s_cbranch_scc1 .Lkr_lp")
            if PFP == 1:
                A(f"s_cmp_ge_u32 s{S_WAVE}, 4")
                A("s_cbranch_scc1 .Lkr_w0")
                self.pf_g64(0, 512, 24576, 8)
                A("s_waitcnt vmcnt(16)")
                A("s_branch .Lkr_w1")
                A.label(".Lkr_w0")
            A("s_waitcnt vmcnt(0)")
            if PFP == 1: A.label(".Lkr_w1")
            if PFP == 2: PFW1 = 2
            vm.ops = []
        else:
            sv = list(vm.ops)
            if PFW1 == 1: self.pf_g64(0, 512, 24576, 8)
            vm.ops = sv
            if HA:
                assert PFW1 == 1
                A(f"s_cmp_lt_u32 s{S_WAVE}, 2")
                A("s_cbranch_scc1 .Lkr_nz2")
                A("s_waitcnt vmcnt(16)")
                for g in range(8):
                    for p in range(2):
                        for j in range(8):
                            A(f"v_dot2_f32_bf16 v{96+8*p+j}, v{128+8*g+4*p+j//2}, v{56 + (j & 1)}, " + ("0" if g == 0 else f"v{96+8*p+j}"))
                A("s_nop 1")
                for p in range(2):
                    A(f"ds_write_b128 v62, v[{96+8*p}:{99+8*p}] offset:{p*16384}")
                    A(f"ds_write_b128 v62, v[{100+8*p}:{103+8*p}] offset:{p*16384+16}")
                A("s_waitcnt lgkmcnt(0)")
            A.label(".Lkr_nz2")
            def rebuild():
                make_srd(A, S_PT, P_WS, WS_PART, 8 * 2048 * 512 * 2)
                make_srd(A, S_X2, P_WS, WS_X2, 2 * MB)
                make_srd(A, S_X, P_X, 0, 2 * MB)
                make_srd(A, S_MOD, P_WS, WS_MOD, 4 * MODP)
            self.poll(0, after=rebuild)
            A("s_barrier")
            self.stamp(4)
            PL = int(os.environ.get("PL", "1"))
            if PL:
                A(f"s_mul_i32 s{S_TMP}, s{S_M}, {7 * 65536}")
                A(f"s_add_u32 s{S_TMP}, s{S_TMP}, s3")
            else: A(f"s_mov_b32 s{S_TMP}, s3")
            for g in range(8):
                if HA: A(f"buffer_load_dwordx2 v[{PR+4*g+2}:{PR+4*g+3}], v11, s[{S_PT}:{S_PT+3}], s{S_TMP} offen offset:512")
                else: A(f"buffer_load_dwordx4 v[{PR+4*g}:{PR+4*g+3}], v9, s[{S_PT}:{S_PT+3}], s{S_TMP} offen {os.environ.get('PLF', '')}")
                vm.issue(("p", g))
                if g < 7: A(f"s_add_u32 s{S_TMP}, s{S_TMP}, {65536 if PL else 2048*512*2}")
        X = list(range(48, 56)); T = list(range(PR, PR + 12)); XU = list(range(96, 104))
        if HA: A("ds_read_b128 v[48:51], v63 offset:4096")
        if PFW1 == 3:
            def woff():
                A(f"s_and_b32 s{S_TMP+9}, s{S_WAVE}, 3")
                A(f"s_lshr_b32 s{S_TMP+8}, s{S_WAVE}, 2")
                A(f"s_lshl_b32 s{S_WOFF}, s{S_TMP+9}, 17")
                A(f"s_lshl_b32 s{S_TMP+11}, s{S_TMP+8}, 16")
                A(f"s_add_u32 s{S_WOFF}, s{S_WOFF}, s{S_TMP+11}")
                A(f"s_lshl_b32 s{S_TMP+11}, s{S_J}, 7")
                A(f"s_add_u32 s{S_WOFF}, s{S_WOFF}, s{S_TMP+11}")
                A(f"s_mov_b32 s{S_TMP+7}, s{S_RB}")
                A(f"s_mul_i32 s{S_RB}, s{S_TMP+9}, {RG}")
                A(f"s_lshl_b32 s{S_TMP+8}, s{S_TMP+8}, 13")
                A(f"s_add_u32 s{S_RB}, s{S_RB}, s{S_TMP+8}")
            self.w_setup(0, 512, 1024, woff)
            for st in range(4): self.dmaW(st, 24576 + st * 2048, "wn")
            A(f"s_mov_b32 s{S_RB}, s{S_TMP+7}")
        if int(os.environ.get("KRX", "0")):
            vm.wait(("p", 0)); self.stamp(25)
            vm.wait(("p", 7)); self.stamp(26)
        vm.wait("x")
        if V2 and not W0M:
            for j in range(0, 24, 2): pk(A, "v_pk_add_f32", GA + j, GA + j, GA + 88 + j)
            for q in range(3): round_multi(A, list(range(GA + 8*q, GA + 8*q + 8)), [56, 57, 58, 59], SM)
        if not W0M:
            for j in range(8): A(f"v_add_f32 v{CB+j}, 1.0, v{CB+j}")
            round_multi(A, list(range(CB, CB + 8)), [56, 57, 58, 59], SM)
        for j in range(4):
            A(f"v_lshlrev_b32 v{XU[2*j]}, 16, v{XR+j}")
            A(f"v_and_b32 v{XU[2*j+1]}, {SM}, v{XR+j}")
        if KRF:
            A("v_mov_b32 v56, 0x3f80")
            A("v_mov_b32 v57, 1.0")
            A("s_mov_b32 s50, 0x3f803f80")
        for g in range(8):
            vm.wait(("p", g))
            if KRF:
                for j in range(4 if HA else 0, 8): A(f"v_dot2_f32_bf16 v{X[j]}, v{PR+4*g+j//2}, v{56 + (j & 1)}, " + ("0" if g == 0 else f"v{X[j]}"))
            elif g == 0:
                for j in range(4):
                    A(f"v_lshlrev_b32 v{X[2*j]}, 16, v{PR+j}")
                    A(f"v_and_b32 v{X[2*j+1]}, {SM}, v{PR+j}")
            else:
                U = 136 + 8 * (g & 1)
                for j in range(4):
                    p = PR + 4 * g + j
                    A(f"v_lshlrev_b32 v{U+2*j}, 16, v{p}")
                    A(f"v_and_b32 v{U+2*j+1}, {SM}, v{p}")
                for j in range(0, 8, 2): pk(A, "v_pk_add_f32", X[j], X[j], U + j)
        if HA: A("s_waitcnt lgkmcnt(0)")
        self.stamp(23)
        if PFW1 == 2:
            A(f"s_cmp_ge_u32 s{S_WAVE}, 4")
            A("s_cbranch_scc1 .Lkr_nz3")
            self.pf_g64(0, 512, 24576, 8)
            A.label(".Lkr_nz3")
        round_multi(A, X, T[5:9], SM)
        for j in range(0, 8, 2): pk(A, "v_pk_mul_f32", X[j], X[j], GA + j)
        round_multi(A, X, T[5:9], SM)
        for j in range(0, 8, 2): pk(A, "v_pk_add_f32", X[j], X[j], XU[j])
        pack8(A, X, XR)
        rowst(XR, S_X2)
        if KRF:
            ln_pk(A, XR, X, 58, 59, 56, 57, 50, 52, 54, SM)
            round_multi(A, X, T[5:9], SM)
        else:
            for j in range(4):
                A(f"v_lshlrev_b32 v{X[2*j]}, 16, v{XR+j}")
                A(f"v_and_b32 v{X[2*j+1]}, {SM}, v{XR+j}")
            ln_rows(A, [(X, T)], SM)
        for j in range(0, 8, 2): pk(A, "v_pk_mul_f32", X[j], X[j], CB + j)
        round_multi(A, X, T[5:9], SM)
        for j in range(0, 8, 2): pk(A, "v_pk_add_f32", X[j], X[j], SB + j)
        pack8(A, X, 80)
        rowst(80, S_H)
        self.stamp(24)
        if KRF: ln_pk(A, 80, X, 58, 59, 56, 57, 50, 52, 54, SM)
        else:
            for j in range(4):
                A(f"v_lshlrev_b32 v{X[2*j]}, 16, v{80+j}")
                A(f"v_and_b32 v{X[2*j+1]}, {SM}, v{80+j}")
            ln_rows(A, [(X, T)], SM, False)
        pack8(A, X, 84)
        rowst(84, S_HN)
    def g64(self, lab, stage, K, a_off, a_size, a_rb, epi, WB, DW, nbr, next_pf, own_pf=None, rot=0, nsched=None, l2=None, split=False):
        A = self.A; vm = self.vm; lg = self.lg
        S_G = 8; S_X1 = 16; S_X2 = 20; S_MOD = 24; S_O = 28; S_ST = 36
        KW = K // 4; NCH = KW // 64; NS = NCH * 4; DG = 3
        VG = [4, 5]; AA = 16; BA = 18
        X1 = 24; X2 = 32; GB = 40
        V_PW = 48; V_PR = 49; V_GA = 51; V_SA = 52; VC = (12, 14, 54)
        ACC = 64; FR = 128
        NBG = int(os.environ.get('NBG', '3'))
        half = HP and K == 512
        frag = FG and epi == "final"
        GB2 = [28, 36] if frag else [180, 184]
        SW = S_R8 if half else S_WAVE
        CO = 16 * stage
        def tail_setup():
            if half:
                A(f"s_add_u32 s{S_R8}, s{S_WAVE}, 4")
                A(f"s_and_b32 s{S_R8}, s{S_R8}, 7")
                A(f"v_mov_b32 v{V_CT}, {CNT}")
            A(f"v_lshrrev_b32 v10, 3, v{L}")
            A(f"v_and_b32 v11, 7, v{L}")
            A(f"v_mul_u32_u24 v{V_PR}, {RS}, v10")
            A(f"v_lshl_add_u32 v{V_PR}, v11, 5, v{V_PR}")
            A(f"s_mul_i32 s{S_TMP+3}, s{SW}, {8*RS}")
            A(f"v_add_u32 v{V_PR}, s{S_TMP+3}, v{V_PR}")
            A(f"v_add_u32 v{V_PR+1}, {2*RG}, v{V_PR}")
            A(f"v_lshlrev_b32 v{V_GA}, 4, v11")
            A(f"v_lshl_add_u32 v{V_GA}, v10, 10, v{V_GA}")
            A(f"s_lshl_b32 s{S_TMP+2}, s{S_M}, 16")
            A(f"s_lshl_b32 s{S_TMP+3}, s{SW}, 13")
            A(f"s_add_u32 s{S_TMP+2}, s{S_TMP+2}, s{S_TMP+3}")
            A(f"s_lshl_b32 s{S_TMP+3}, s{S_J}, 7")
            A(f"s_add_u32 s{S_TMP+2}, s{S_TMP+2}, s{S_TMP+3}")
            if epi == "final":
                A(f"v_lshlrev_b32 v{V_SA}, 5, v11")
                make_srd(A, S_X1, P_WS, WS_X1, 2 * MB)
                make_srd(A, S_X2, P_WS, WS_X2, 2 * MB)
                make_srd(A, S_MOD, P_WS, WS_MOD, 4 * MODP)
                make_srd(A, S_O, P_OUT, 0, 2 * MB)
                A(f"buffer_load_dwordx4 v[{X1}:{X1+3}], v{V_GA}, s[{S_X1}:{S_X1+3}], s{S_TMP+2} offen"); vm.issue("e")
                A(f"buffer_load_dwordx4 v[{X2}:{X2+3}], v{V_GA}, s[{S_X2}:{S_X2+3}], s{S_TMP+2} offen"); vm.issue("e")
                A(f"s_lshl_b32 s{S_TMP+3}, s{S_J}, 8")
                A(f"s_add_u32 s{S_TMP+3}, s{S_TMP+3}, {5*2048}")
                for h4 in range(2):
                    A(f"buffer_load_dwordx4 v[{GB+4*h4}:{GB+4*h4+3}], v{V_SA}, s[{S_MOD}:{S_MOD+3}], s{S_TMP+3} offen offset:{h4*16}"); vm.issue("e")
                if V2:
                    A(f"s_add_u32 s{S_TMP+3}, s{S_TMP+3}, {MODP}")
                    for h4 in range(2):
                        A(f"buffer_load_dwordx4 v[{GB2[h4]}:{GB2[h4]+3}], v{V_SA}, s[{S_MOD}:{S_MOD+3}], s{S_TMP+3} offen offset:{h4*16}"); vm.issue("e")
            elif epi == "res":
                A(f"v_lshlrev_b32 v{V_SA}, 3, v10")
                A(f"s_lshl_b32 s{S_TMP+6}, s{S_M}, 9")
                A(f"s_lshl_b32 s{S_TMP+3}, s{SW}, 6")
                A(f"s_add_u32 s{S_TMP+6}, s{S_TMP+6}, s{S_TMP+3}")
                A(f"s_lshl_b32 s{S_TMP+3}, s{S_J}, 14")
                A(f"s_add_u32 s{S_TMP+6}, s{S_TMP+6}, s{S_TMP+3}")
                make_srd(A, S_X1, P_WS, WS_H, 2 * MB)
                make_srd(A, S_O, P_WS, WS_X1, 2 * MB)
                make_srd(A, S_ST, P_WS, WS_STAT, 2048 * 128)
                A(f"buffer_load_dwordx4 v[{X1}:{X1+3}], v{V_GA}, s[{S_X1}:{S_X1+3}], s{S_TMP+2} offen"); vm.issue("e")
            else:
                A(f"v_mov_b32 v{VC[0]}, {fhex(GK1)}")
                A(f"v_mov_b32 v{VC[1]}, {fhex(GK0)}")
                A(f"v_mov_b32 v{VC[2]}, 1.0")
                make_srd(A, S_O, P_WS, WS_H1 + 2048, 2 * MB)
        A(f"s_cmp_ge_u32 s{S_WAVE}, 4")
        A(f"s_cbranch_scc1 .L{lab}_help")
        dyn = frag and K6D
        if dyn:
            self.k6d(tail_setup, a_off, a_size, S_G, AA, V_PW, ACC, lab)
            svl = A.lines; A.lines = []; svv = list(vm.ops); svg = list(lg.ops)
        if own_pf and PFE == 2: own_pf(NE, 99)
        A(f"v_lshrrev_b32 v7, 3, v{L}")
        A(f"v_and_b32 v8, 7, v{L}")
        A("v_lshrrev_b32 v9, 1, v7")
        A("v_xor_b32 v9, v8, v9")
        A(f"s_movk_i32 s{S_TMP}, {a_rb}")
        A(f"v_mul_lo_u32 v10, v7, s{S_TMP}")
        A(f"v_lshl_add_u32 v{VG[0]}, v9, 4, v10")
        A("v_xor_b32 v9, 4, v9")
        A(f"v_lshl_add_u32 v{VG[1]}, v9, 4, v10")
        A(f"s_mul_i32 s{S_GOFF}, s{S_M}, {64*a_rb}")
        A(f"s_mul_i32 s{S_TMP}, s{S_WAVE}, {KW*128 if frag else KW*2}")
        if frag: A(f"v_lshlrev_b32 v{VG[0]}, 4, v{L}")
        A(f"s_add_u32 s{S_GOFF}, s{S_GOFF}, s{S_TMP}")
        if epi == "res":
            A(f"s_lshl_b32 s{S_TMP}, s{S_WAVE}, 2")
            A(f"s_lshr_b32 s{S_TMP+1}, 0x4031, s{S_TMP}")
            A(f"s_and_b32 s{S_TMP+1}, s{S_TMP+1}, 15")
            A(f"s_lshl_b32 s{S_TMP+1}, s{S_TMP+1}, 10")
            A(f"s_add_u32 s{S_GOFF}, s{S_GOFF}, s{S_TMP+1}")
        make_srd(A, S_G, P_WS, a_off, a_size)
        A(f"v_lshrrev_b32 v7, 5, v{L}")
        A(f"v_bfe_u32 v8, v{L}, 4, 1")
        A(f"v_bfe_u32 v9, v{L}, 2, 2")
        A(f"v_and_b32 v10, 1, v{L}")
        A(f"v_bfe_u32 v11, v{L}, 1, 1")
        A("v_lshl_or_b32 v10, v10, 1, v11")
        A("v_lshlrev_b32 v10, 3, v10")
        A("v_lshl_add_u32 v10, v8, 5, v10")
        A("v_lshl_add_u32 v11, v7, 3, v9")
        A("v_lshrrev_b32 v12, 1, v9")
        for nb in range(2):
            A(f"v_xor_b32 v13, {nb}, v12")
            A("v_lshl_add_u32 v13, v13, 6, v10")
            A("v_lshl_add_u32 v13, v11, 7, v13")
            A(f"v_add_u32 v{AA+nb}, s{S_RB}, v13")
        A(f"v_and_b32 v8, 31, v{L}")
        A("v_bfe_u32 v9, v8, 1, 3")
        for ks in range(4):
            A(f"v_or_b32 v10, {2*ks}, v7")
            A("v_xor_b32 v10, v10, v9")
            A("v_lshlrev_b32 v10, 4, v10")
            A("v_lshl_add_u32 v10, v8, 7, v10")
            A(f"v_add_u32 v{BA+ks}, s{S_RB}, v10")
        A(f"v_mul_u32_u24 v{V_PW}, {RS}, v8")
        A(f"v_lshl_add_u32 v{V_PW}, v7, 5, v{V_PW}")
        A(f"v_add_u32 v{V_PW}, s{S_RB}, v{V_PW}")
        tail_setup()
        if frag:
            if FGR: NBG = FGR + 1
            def readsw(step):
                buf = FR + (step % NBG) * 8
                for nb in range(2):
                    for q in range(2):
                        A(f"ds_read_b64_tr_b16 v[{buf+nb*4+q*2}:{buf+nb*4+q*2+1}], v{AA+nb} offset:{fg_slot(step) + q * 512}")
                        lg.issue(("f", step))
            if FGR:
                for s0 in range(3): readsw(s0)
            self.pf_fg(11 + FGE, FGP, tag="w")
            for s0 in range(FGR):
                lg.wait(("f", s0))
                if s0 + 3 < FGR: readsw(s0 + 3)
                if s0 + FGP < NS: self.dmaW(s0 + FGP, fg_slot(s0))
        A("s_barrier")
        self.stamp(1 + 4 * stage + 3)
        def dmaG(ch):
            base = (ch % DG) * 8192
            for i in range(8):
                A(f"s_add_u32 m0, s{S_RB}, {base + i * 1024}")
                A(f"s_add_u32 s{S_TMP}, s{S_GOFF}, {i * 8 * a_rb + ch * 128}")
                A(f"buffer_load_dwordx4 v{VG[i & 1]}, s[{S_G}:{S_G+3}], s{S_TMP} offen lds")
                vm.issue(("g", ch))
        if half:
            HB = 32 * RS
            def dmaGh(h, ch):
                for i in range(4):
                    A(f"s_add_u32 m0, s{S_RB}, {h * HB + ch * 4096 + i * 1024}")
                    A(f"s_add_u32 s{S_TMP}, s{S_GOFF}, {(4 * h + i) * 8 * a_rb + ch * 128}")
                    A(f"buffer_load_dwordx4 v{VG[i & 1]}, s[{S_G}:{S_G+3}], s{S_TMP} offen lds")
                    vm.issue(("g", h, ch))
            WF = 128; BFR = 192
            def readsh(h, step):
                ch, ks = step // 4, step % 4
                if h == 0:
                    for nb in range(2):
                        for q in range(2):
                            d = WF + step * 8 + nb * 4 + q * 2
                            A(f"ds_read_b64_tr_b16 v[{d}:{d+1}], v{AA+nb} offset:{WB + step * 2048 + q * 512}")
                            lg.issue(("f", step))
                d = BFR + step * 4
                A(f"ds_read_b128 v[{d}:{d+3}], v{BA+ks} offset:{h * HB + ch * 4096}")
                lg.issue(("f", step))
            dmaGh(0, 0); dmaGh(0, 1)
            if not split: dmaGh(1, 0); dmaGh(1, 1)
            for h in range(2):
                if h == 1 and split:
                    self.lds_spin(f".L{lab}_rb", 12, 1, False, V_CT)
                    dmaGh(1, 0); dmaGh(1, 1)
                PD = 2 if h == 0 else 4
                for s0 in range(PD):
                    vm.wait(("g", h, 0)); readsh(h, s0)
                for st in range(8):
                    lg.wait(("f", st))
                    with Cap(A) as cp:
                        if st + PD < 8:
                            vm.wait(("g", h, (st + PD) // 4)); readsh(h, st + PD)
                        if h == HPH and nsched and st in nsched: next_pf(*nsched[st])
                    mf = []
                    for nb in range(2):
                        acc = ACC + (nb * 2 + h) * 16
                        c = "0" if st == 0 else f"v[{acc}:{acc+15}]"
                        mf.append(f"v_mfma_f32_32x32x16_bf16 v[{acc}:{acc+15}], v[{WF+st*8+nb*4}:{WF+st*8+nb*4+3}], v[{BFR+st*4}:{BFR+st*4+3}], {c}")
                    interleave(A, mf, cp.out)
                A("s_nop 7")
                A("s_nop 3")
                for nb in range(2):
                    tl = nb * 2 + h
                    for r4 in range(4):
                        A(f"ds_write_b128 v{V_PW}, v[{ACC+tl*16+r4*4}:{ACC+tl*16+r4*4+3}] offset:{h*HB + (nb*8 + (r4 >> 1)*4 + (r4 & 1))*16}")
                A("s_waitcnt lgkmcnt(0)")
                self.lds_inc(CO + 4 * h, V_CT)
                if h == 0 and HPH == 2 and nsched:
                    for st in range(8): next_pf(*nsched[st])
            vm.wait("e")
            self.lds_spin(f".L{lab}_sb", CO + 4, 4, False, V_CT)
            A(f"s_branch .L{lab}_join")
        elif frag:
            AR = 256 - 8 * FGD
            def aload(st):
                d = AR + (st % FGD) * 8
                for rb in range(2):
                    A(f"buffer_load_dwordx4 v[{d+4*rb}:{d+4*rb+3}], v{VG[0]}, s[{S_G}:{S_G+3}], s{S_GOFF} offen offset:{(st & 1) * 2048 + rb * 1024}")
                    vm.issue(("g", st))
                if st & 1: A(f"s_add_u32 s{S_GOFF}, s{S_GOFF}, 4096")
            reads = readsw
            assert FR + NBG * 8 <= AR
            for st in range(FGD): aload(st)
            if not FGR:
                for s0 in range(NBG - 1): reads(s0)
            for st in range(NS):
                lg.wait(("f", st))
                if FGR: lg.wait(("f", st + NBG - 4))
                vm.wait(("g", st))
                with Cap(A) as cp:
                    if st >= 1 and st - 1 + FGD < NS: aload(st - 1 + FGD)
                    if FGR:
                        s_ = st + NBG - 4
                        if s_ >= FGR and s_ + FGP < NS: self.dmaW(s_ + FGP, fg_slot(s_))
                    elif st + FGP < NS: self.dmaW(st + FGP, fg_slot(st))
                    if st + NBG - 1 < NS:
                        vm.wait(("w", st + NBG - 1)); reads(st + NBG - 1)
                buf = FR + (st % NBG) * 8; ab = AR + (st % FGD) * 8
                mf = []
                for nb in range(2):
                    for rb in range(2):
                        acc = ACC + (nb * 2 + rb) * 16
                        c = "0" if st == 0 else f"v[{acc}:{acc+15}]"
                        mf.append(f"v_mfma_f32_32x32x16_bf16 v[{acc}:{acc+15}], v[{buf+nb*4}:{buf+nb*4+3}], v[{ab+rb*4}:{ab+rb*4+3}], {c}")
                interleave(A, mf, cp.out)
            vm.wait("e")
            self.stamp(27)
            A("s_nop 7")
            A("s_nop 1")
            for tl in range(4):
                nb, rb = tl >> 1, tl & 1
                for r4 in range(4):
                    A(f"ds_write_b128 v{V_PW}, v[{ACC+tl*16+r4*4}:{ACC+tl*16+r4*4+3}] offset:{rb*32*RS + (nb*8 + (r4 >> 1)*4 + (r4 & 1))*16}")
                if tl == 1: A("s_waitcnt lgkmcnt(0)")
            A("s_waitcnt lgkmcnt(0)")
            A(f"s_branch .L{lab}_join")
        else:
            for ch in range(min(DG, NCH)): dmaG(ch)
            def reads(step):
                ch, ks = step // 4, step % 4
                buf = FR + (step % NBG) * 16
                for nb in range(2):
                    for q in range(2):
                        A(f"ds_read_b64_tr_b16 v[{buf+nb*4+q*2}:{buf+nb*4+q*2+1}], v{AA+nb} offset:{WB + ((step + rot) % DW) * 2048 + q * 512}")
                        lg.issue(("f", step))
                for rb in range(2):
                    A(f"ds_read_b128 v[{buf+8+rb*4}:{buf+8+rb*4+3}], v{BA+ks} offset:{(ch % DG) * 8192 + rb * 4096}")
                    lg.issue(("f", step))
            def need(step):
                vm.wait(("w", step)); vm.wait(("g", step // 4))
            for s0 in range(NBG - 1):
                need(s0); reads(s0)
            for st in range(NS):
                lg.wait(("f", st))
                with Cap(A) as cp:
                    if st + DW < NS: self.dmaW(st + DW, WB + ((st + rot) % DW) * 2048)
                    if st % 4 == 3 and st // 4 + DG < NCH: dmaG(st // 4 + DG)
                    if st + NBG - 1 < NS:
                        need(st + NBG - 1); reads(st + NBG - 1)
                    if st + DW >= NS and PFE == 3 and nsched and st in nsched: next_pf(*nsched[st])
                buf = FR + (st % NBG) * 16
                mf = []
                for nb in range(2):
                    for rb in range(2):
                        acc = ACC + (nb * 2 + rb) * 16
                        c = "0" if st == 0 else f"v[{acc}:{acc+15}]"
                        mf.append(f"v_mfma_f32_32x32x16_bf16 v[{acc}:{acc+15}], v[{buf+nb*4}:{buf+nb*4+3}], v[{buf+8+rb*4}:{buf+8+rb*4+3}], {c}")
                interleave(A, mf, cp.out)
            vm.wait("e")
            if not int(os.environ.get("KRX", "0")): self.stamp({1: 25, 2: 26, 4: 27}[stage])
            A("s_nop 7")
            A("s_nop 1")
            for tl in range(4):
                nb, rb = tl >> 1, tl & 1
                for r4 in range(4):
                    A(f"ds_write_b128 v{V_PW}, v[{ACC+tl*16+r4*4}:{ACC+tl*16+r4*4+3}] offset:{rb*32*RS + (nb*8 + (r4 >> 1)*4 + (r4 & 1))*16}")
                if tl == 1: A("s_waitcnt lgkmcnt(0)")
            if next_pf and PFE == 1: next_pf()
            A("s_waitcnt lgkmcnt(0)")
            A(f"s_branch .L{lab}_join")
        if dyn: A.lines = svl; vm.ops = svv; lg.ops = svg
        A.label(f".L{lab}_help")
        if dyn:
            A("s_waitcnt vmcnt(0)")
            A("s_barrier")
        sv = list(vm.ops)
        tail_setup()
        vm.ops = sv
        if frag and FGL:
            nl = (28 - FGL) * 2
            A(f"s_mul_i32 s{S_GOFF}, s{S_M}, {64*a_rb}")
            A(f"s_sub_u32 s{S_TMP}, s{S_WAVE}, 4")
            A(f"s_mul_i32 s{S_TMP}, s{S_TMP}, {KW*128}")
            A(f"s_add_u32 s{S_GOFF}, s{S_GOFF}, s{S_TMP}")
            A(f"s_lshl_b32 s{S_TMP}, s{S_J}, 7")
            A(f"s_add_u32 s{S_GOFF}, s{S_GOFF}, s{S_TMP}")
            A(f"s_add_u32 s{S_GOFF}, s{S_GOFF}, {FGL * 2048}")
            A(f"v_min_u32 v4, {nl - 1}, v{L}")
            A("v_lshlrev_b32 v4, 10, v4")
        if not dyn:
            self.poll(stage, nbr)
            if frag and FGL: make_srd(A, S_G, P_WS, a_off, a_size)
            A("s_barrier")
            self.stamp(1 + 4 * stage + 3)
        n = sum(self.l2pf(*x) for x in l2) if l2 else 0
        if frag and FGL:
            A(f"buffer_load_dword v5, v4, s[{S_G}:{S_G+3}], s{S_GOFF} offen")
            n += 1
        A(f"s_waitcnt vmcnt({n})")
        if half: self.lds_spin(f".L{lab}_sa", CO, 4, True, V_CT)
        A.label(f".L{lab}_join")
        if not half: A("s_barrier")
        for p in range(4):
            for h in range(2):
                d = ACC + p * 16 + h * 4
                A(f"ds_read_b128 v[{d}:{d+3}], v{V_PR + (p >> 1)} offset:{(p & 1)*RG + h*16}")
        xs = list(range(ACC, ACC + 8)); tp = list(range(72, 80)); t8 = list(range(88, 96))
        b = ACC
        def unpack(src, dst):
            for k in range(4):
                A(f"v_lshlrev_b32 v{dst[2*k]}, 16, v{src+k}")
                A(f"v_and_b32 v{dst[2*k+1]}, {SM}, v{src+k}")
        if epi != "gelu": unpack(X1, tp)
        if epi == "final":
            unpack(X2, list(range(104, 112)))
            if V2:
                for k in range(0, 8, 2): pk(A, "v_pk_add_f32", GB + k, GB + k, GB2[k >> 2] + (k & 3))
                round_multi(A, list(range(GB, GB + 8)), t8, SM)
        A("s_waitcnt lgkmcnt(4)")
        for e in range(0, 8, 2): pk(A, "v_pk_add_f32", b + e, b + e, b + 16 + e)
        A("s_waitcnt lgkmcnt(0)")
        for e in range(0, 8, 2): pk(A, "v_pk_add_f32", b + 32 + e, b + 32 + e, b + 48 + e)
        for e in range(0, 8, 2): pk(A, "v_pk_add_f32", b + e, b + e, b + 32 + e)
        round_multi(A, xs, t8, SM)
        def store():
            for k in range(4): A(f"v_cvt_pk_bf16_f32 v{56+k}, v{xs[2*k]}, v{xs[2*k+1]}")
            A(f"buffer_store_dwordx4 v[56:59], v{V_GA}, s[{S_O}:{S_O+3}], s{S_TMP+2} offen sc1")
        if epi == "gelu":
            X = xs; T = tp
            for e in range(0, 8, 2): pk(A, "v_pk_mul_f32", T[e], X[e], X[e])
            for e in range(0, 8, 2): pk(A, "v_pk_fma_f32", T[e], T[e], VC[0], VC[1], "op_sel_hi:[1,0,0]")
            for e in range(0, 8, 2): pk(A, "v_pk_mul_f32", T[e], T[e], X[e])
            for e in range(8): A(f"v_exp_f32 v{T[e]}, v{T[e]}")
            for e in range(0, 8, 2): pk(A, "v_pk_add_f32", T[e], T[e], VC[2], None, "op_sel_hi:[1,0]")
            for e in range(8): A(f"v_rcp_f32 v{T[e]}, v{T[e]}")
            A("s_nop 0")
            for e in range(0, 8, 2): pk(A, "v_pk_mul_f32", X[e], X[e], T[e])
            store()
        elif epi == "res":
            for k in range(0, 8, 2): pk(A, "v_pk_add_f32", xs[k], xs[k], tp[k])
            store()
            unpack(56, xs)
            X = xs
            pk(A, "v_pk_mul_f32", tp[0], X[0], X[0])
            pk(A, "v_pk_add_f32", tp[2], X[0], X[2])
            for e in range(2, 8, 2):
                pk(A, "v_pk_fma_f32", tp[0], X[e], X[e], tp[0])
                if e >= 4: pk(A, "v_pk_add_f32", tp[2], tp[2], X[e])
            A(f"v_add_f32 v20, v{tp[2]}, v{tp[3]}")
            A(f"v_add_f32 v21, v{tp[0]}, v{tp[1]}")
            A("s_nop 1")
            for dpp in ("quad_perm:[1,0,3,2]", "quad_perm:[2,3,0,1]", "row_half_mirror"):
                for v in (20, 21):
                    A(f"v_add_f32_dpp v{v}, v{v}, v{v} {dpp} row_mask:0xf bank_mask:0xf")
                A("s_nop 1")
            A("v_and_b32 v10, 7, v1")
            A("v_cmp_eq_u32 vcc, 0, v10")
            A("s_and_saveexec_b64 s[78:79], vcc")
            A(f"buffer_store_dwordx2 v[20:21], v{V_SA}, s[{S_ST}:{S_ST+3}], s{S_TMP+6} offen sc1")
            A("s_mov_b64 exec, s[78:79]")
        else:
            for k in range(0, 8, 2): pk(A, "v_pk_add_f32", xs[k], xs[k], tp[k])
            round_multi(A, xs, t8, SM)
            for k in range(0, 8, 2): pk(A, "v_pk_mul_f32", xs[k], xs[k], GB + k)
            round_multi(A, xs, t8, SM)
            for k in range(0, 8, 2): pk(A, "v_pk_add_f32", xs[k], xs[k], 104 + k)
            store()
    def k6d(self, tail_setup, a_off, a_size, S_G, AA, V_PW, ACC, lab):
        A = self.A; vm = self.vm
        SJ7 = 64; RDY = 65; DONE = 66; ELIG = 67; TBL = 36; ISS = 37; VALID = 38; PEND = 39; SP = [46, 47, 56]
        AS = [160, 192, 224]; WB = 128; VA = [(18, 19), (20, 21)]; VL = 4; VF = 5
        def areg(n, q, rb): return AS[n % 3] + ((q >> 1) * 4 + rb * 2 + (q & 1)) * 4
        def wreads(va, q, base=0):
            for nb in range(2):
                for h in range(2):
                    d = WB + 8 * q + nb * 4 + h * 2
                    A(f"ds_read_b64_tr_b16 v[{d}:{d+1}], v{va[nb]} offset:{base + q * 2048 + h * 512}")
        def mf(n, q, first=False):
            for nb in range(2):
                for rb in range(2):
                    acc = ACC + (nb * 2 + rb) * 16; a = areg(n, q, rb); w = WB + 8 * q + nb * 4
                    c = "0" if first else f"v[{acc}:{acc+15}]"
                    A(f"v_mfma_f32_32x32x16_bf16 v[{acc}:{acc+15}], v[{w}:{w+3}], v[{a}:{a+3}], {c}")
        def setva(va, sp):
            for nb in range(2): A(f"v_add_u32 v{va[nb]}, s{sp}, v{AA+nb}")
        def rot():
            A("s_lshl_b32 s53, s52, 7")
            A("s_or_b32 s53, s53, s52")
            A(f"s_lshr_b32 s53, s53, s{SJ7}")
            A("s_and_b32 s53, s53, 0x7f")
            A(f"s_or_b32 s{RDY}, s{RDY}, s53")
        def consume():
            A("s_mov_b32 s52, 0")
            for jj in range(6, -1, -1):
                A(f"s_cmp_eq_u64 s[{12+2*jj}:{13+2*jj}], s[100:101]")
                A("s_addc_u32 s52, s52, s52")
            rot()
        def avail(n):
            A(f"s_and_b32 s52, s{RDY}, {hex((0x1f, 0x0f, 0x3f, 0x3f, 0x3f, 0x7f, 0x7f)[n])}")
            A(f"s_andn2_b32 s52, s52, s{DONE}")
        def issue(n, blocking, fast=False):
            l = A.newlabel("d6")
            if not fast:
                A(f"s_cmp_lg_u32 s{ISS}, {n}")
                A(f"s_cbranch_scc1 {l}e")
            avail(n)
            if fast: pass
            elif not blocking: A(f"s_cbranch_scc0 {l}e")
            else:
                A(f"s_cbranch_scc1 {l}g")
                A("s_mov_b32 s99, 0")
                A.label(f"{l}p")
                A("s_buffer_load_dwordx16 s[12:27], s[92:95], s96 glc")
                A("s_add_u32 s99, s99, 1")
                A("s_waitcnt lgkmcnt(0)")
                consume(); avail(n)
                A(f"s_cbranch_scc1 {l}g")
                A("s_and_b32 s98, s99, 3")
                A(f"s_cbranch_scc1 {l}p")
                A(f"buffer_load_dwordx2 v[2:3], v{VF}, s[92:95], s96 offen sc1")
                A("s_waitcnt vmcnt(0)")
                A("v_xor_b32 v2, s100, v2")
                A("v_xor_b32 v3, s101, v3")
                A("v_or_b32 v2, v2, v3")
                A("v_cmp_eq_u32 vcc, 0, v2")
                A("s_nop 0")
                A("s_and_b32 s52, vcc_lo, 0x7f")
                A("s_cmp_lt_u32 s99, 0x80000")
                A("s_cselect_b32 s52, s52, 0x7f")
                rot(); avail(n)
                A(f"s_cbranch_scc0 {l}p")
                A.label(f"{l}g")
                A(f"s_mov_b32 s{VALID}, 0")
            A("s_ff1_i32_b32 s52, s52")
            A(f"s_bitset1_b32 s{DONE}, s52")
            A(f"s_add_u32 s53, s52, s{SJ7}")
            A("s_sub_u32 s54, s53, 7")
            A("s_cselect_b32 s53, s53, s54")
            A("s_lshl_b32 s53, s53, 15")
            A(f"s_add_u32 s53, s53, s{S_GOFF}")
            A("s_add_u32 s54, s53, 4096")
            for q in range(4):
                for rb in range(2):
                    a = areg(n, q, rb)
                    A(f"buffer_load_dwordx4 v[{a}:{a+3}], v{VL}, s[{S_G}:{S_G+3}], s{53 + (q >> 1)} offen offset:{(q & 1) * 2048 + rb * 1024}")
            A("s_lshl_b32 s52, s52, 2")
            A(f"s_lshr_b32 s52, s{TBL}, s52")
            A("s_and_b32 s52, s52, 15")
            A(f"s_lshl_b32 s{SP[n % 3]}, s52, 13")
            A(f"s_mov_b32 s{ISS}, {n + 1}")
            A.label(f"{l}e")
        def regroup(k, sp):
            self.d6_woffs([k], S_WAVE, 55)
            A(f"s_add_u32 s54, s{sp}, s{S_RB}")
            for q in range(4): self.d6_dma(55, q, (54, q * 2048))
            A(f"s_lshl_b32 s52, s{sp}, {4 * k - 13}")
            A(f"s_or_b32 s{TBL}, s{TBL}, s52")
        A(f"v_lshrrev_b32 v7, 5, v{L}")
        A(f"v_bfe_u32 v8, v{L}, 4, 1")
        A(f"v_bfe_u32 v9, v{L}, 2, 2")
        A(f"v_and_b32 v10, 1, v{L}")
        A(f"v_bfe_u32 v11, v{L}, 1, 1")
        A("v_lshl_or_b32 v10, v10, 1, v11")
        A("v_lshlrev_b32 v10, 3, v10")
        A("v_lshl_add_u32 v10, v8, 5, v10")
        A("v_lshl_add_u32 v11, v7, 3, v9")
        A("v_lshrrev_b32 v12, 1, v9")
        A("v_lshl_add_u32 v13, v12, 6, v10")
        A("v_lshl_add_u32 v13, v11, 7, v13")
        A(f"v_add_u32 v{AA}, s{S_RB}, v13")
        A(f"v_xor_b32 v{AA+1}, 64, v{AA}")
        def rest():
            A(f"v_and_b32 v8, 31, v{L}")
            A(f"v_mul_u32_u24 v{V_PW}, {RS}, v8")
            A(f"v_lshl_add_u32 v{V_PW}, v7, 5, v{V_PW}")
            A(f"v_add_u32 v{V_PW}, s{S_RB}, v{V_PW}")
            A(f"v_lshlrev_b32 v{VL}, 4, v{L}")
            A(f"v_and_b32 v{VF}, 7, v{L}")
            A(f"v_lshlrev_b32 v{VF}, 3, v{VF}")
            make_srd(A, S_G, P_WS, a_off, a_size)
            make_srd(A, 92, P_WS, FL6, 128 * 128)
            A(f"s_lshl_b32 s96, s{S_M}, 2")
            A(f"s_add_u32 s96, s96, s{S_WAVE}")
            A("s_lshl_b32 s96, s96, 7")
            A(f"s_mul_i32 s{S_GOFF}, s{S_M}, {64 * 3584}")
            A(f"s_lshl_b32 s52, s{S_WAVE}, 13")
            A(f"s_add_u32 s{S_GOFF}, s{S_GOFF}, s52")
            A(f"s_mov_b32 s{TBL}, {hex(sum(p << (4 * k) for k, p in enumerate(D6POS)))}")
            A(f"s_mov_b32 s{PEND}, 0")
            A(f"s_mov_b32 s{VALID}, 0")
            for x in SP: A(f"s_mov_b32 s{x}, {D6POS[0] * 8192}")
        A(f"s_cmp_eq_u32 s{S_J}, 7")
        A("s_cbranch_scc1 .Ld6_j7")
        A("s_waitcnt vmcnt(8)" if (not MT or SPAN) else "s_waitcnt vmcnt(0)")
        for q in range(3): wreads((AA, AA + 1), q, D6POS[0] * 8192)
        rest()
        A(f"s_mov_b32 s{RDY}, 1")
        A(f"s_mov_b32 s{DONE}, 1")
        A(f"s_mov_b32 s{ISS}, 1")
        A(f"s_lshl_b32 s97, s{S_J}, 3")
        A("v_mov_b32 v2, s100")
        A("v_mov_b32 v3, s101")
        A("v_mov_b32 v22, s97")
        A("s_waitcnt lgkmcnt(8)")
        wreads((AA, AA + 1), 3, D6POS[0] * 8192)
        mf(0, 0, True)
        A("s_waitcnt lgkmcnt(8)")
        mf(0, 1)
        A("s_waitcnt vmcnt(0)")
        A("s_mov_b64 exec, 1")
        A("buffer_store_dwordx2 v[2:3], v22, s[92:95], s96 offen sc1")
        A("s_mov_b64 exec, -1")
        self.stamp(19)
        A("s_waitcnt lgkmcnt(0)")
        mf(0, 2); mf(0, 3)
        A("s_barrier")
        self.d6_woffs([4], S_WAVE, 55)
        self.d6_dma(55, 0, 8 * 2048)
        regroup(5, SP[0])
        tail_setup()
        with Cap(A) as j7c:
            A.label(".Ld6_j7")
            rest()
            tail_setup()
            A(f"s_mov_b32 s{SJ7}, 0")
            A(f"s_mov_b32 s{RDY}, 0")
            A(f"s_mov_b32 s{DONE}, 0")
            A(f"s_mov_b32 s{ISS}, 0")
            A("s_waitcnt vmcnt(0)")
            A("s_barrier")
            issue(0, True)
            setva(VA[0], SP[0])
            for q in range(3): wreads(VA[0], q)
            A("s_waitcnt lgkmcnt(8)")
            wreads(VA[0], 3)
            A("s_waitcnt lgkmcnt(0)")
            regroup(5, SP[0])
            A("s_mov_b32 s99, 0")
            A.label(".Ld6_j7x")
            issue(1, False); issue(2, False)
            A(f"s_cmp_eq_u32 s{ISS}, 3")
            A("s_cbranch_scc1 .Ld6_j7y")
            A("s_cmp_ge_u32 s99, 2")
            A("s_cbranch_scc1 .Ld6_j7y")
            A("s_buffer_load_dwordx16 s[12:27], s[92:95], s96 glc")
            A("s_add_u32 s99, s99, 1")
            A("s_waitcnt lgkmcnt(0)")
            consume()
            A("s_branch .Ld6_j7x")
            A.label(".Ld6_j7y")
            for ah in (2, 1, 0):
                A(f"s_waitcnt vmcnt({8 * ah + 8})")
                if ah:
                    A(f"s_cmp_eq_u32 s{ISS}, {1 + ah}")
                    A("s_cbranch_scc1 .Ld6_j7w")
            A.label(".Ld6_j7w")
            mf(0, 0, True); mf(0, 1); mf(0, 2); mf(0, 3)
            A("s_branch .Ld6_com")
        A.label(".Ld6_com")
        if int(os.environ.get("D6SL", "0")): A("s_sleep 127")
        self.stamp(20)
        FAST = ELIG
        def body(i, vb):
            mf(i, 0)
            A("s_waitcnt lgkmcnt(4)")
            if i < 6: wreads(vb, 0)
            mf(i, 1)
            if i < 6: wreads(vb, 1)
            mf(i, 2)
            A(f"s_waitcnt lgkmcnt({8 if i < 6 else 0})")
            mf(i, 3)
            if i == 1: regroup(6, SP[1])
        def generic(i):
            l = f".Ld6i{i}"
            va = VA[i & 1]; vb = VA[(i + 1) & 1]
            A("s_waitcnt lgkmcnt(0)")
            if i > 1:
                A(f"s_cmp_eq_u32 s{PEND}, 0")
                A(f"s_cbranch_scc1 {l}a")
                consume()
                A.label(f"{l}a")
            issue(i, True)
            if i == 1:
                A("s_mov_b32 s99, 0")
                A.label(f"{l}x")
            for n in (i + 1, i + 2):
                if n < 7: issue(n, False)
            if i == 1:
                A(f"s_cmp_eq_u32 s{RDY}, 0x7f")
                A(f"s_cbranch_scc1 {l}y")
                A(f"s_cmp_ge_u32 s99, {int(os.environ.get('D6X', '2'))}")
                A(f"s_cbranch_scc1 {l}y")
                A("s_buffer_load_dwordx16 s[12:27], s[92:95], s96 glc")
                A("s_add_u32 s99, s99, 1")
                A("s_waitcnt lgkmcnt(0)")
                consume()
                A(f"s_branch {l}x")
                A.label(f"{l}y")
            if i > 1:
                A(f"s_cmp_lg_u32 s{VALID}, 0")
                A(f"s_cbranch_scc1 {l}v")
            setva(va, SP[i % 3])
            wreads(va, 0); wreads(va, 1)
            A("s_waitcnt lgkmcnt(0)")
            A.label(f"{l}v")
            wreads(va, 2); wreads(va, 3)
            if i < 6:
                A(f"s_mov_b32 s{PEND}, 0")
                A(f"s_cmp_eq_u32 s{ISS}, {min(i + 3, 7)}")
                A(f"s_cselect_b32 s{FAST}, 1, 0")
                A(f"s_cmp_eq_u32 s{ISS}, 7")
                A(f"s_cselect_b32 s{RDY}, 0x7f, s{RDY}")
                A(f"s_cmp_eq_u32 s{RDY}, 0x7f")
                A(f"s_cbranch_scc1 {l}n")
                A("s_buffer_load_dwordx16 s[12:27], s[92:95], s96 glc")
                A(f"s_mov_b32 s{PEND}, 1")
                A(f"s_mov_b32 s{FAST}, 0")
                A.label(f"{l}n")
                setva(vb, SP[(i + 1) % 3])
                A(f"s_cmp_gt_u32 s{ISS}, {i + 1}")
                A(f"s_cselect_b32 s{VALID}, 1, 0")
            for ah in (2, 1, 0):
                if i + ah > 6: continue
                A(f"s_waitcnt vmcnt({8 * ah})")
                if ah:
                    A(f"s_cmp_eq_u32 s{ISS}, {i + 1 + ah}")
                    A(f"s_cbranch_scc1 {l}w")
            A.label(f"{l}w")
            body(i, vb)
        generic(1)
        for i in range(2, 7):
            va = VA[i & 1]; vb = VA[(i + 1) & 1]
            A.label(f".Ld6f{i}")
            A(f"s_cmp_eq_u32 s{FAST}, 0")
            A(f"s_cbranch_scc1 .Ld6g{i}")
            with Cap(A) as ci:
                if i + 2 < 7: issue(i + 2, False, True)
            il = [x for x in ci.out if not x.endswith(":")]
            ah = min(1, 6 - i)
            def mfl(q):
                with Cap(A) as cm: mf(i, q)
                return [x.strip() for x in cm.out]
            def rd(v_, q):
                with Cap(A) as cr: wreads(v_, q)
                return cr.out
            def spread(m, fill):
                for t, x in enumerate(m):
                    A(x); A.lines.extend(fill[len(fill) * t // 4: len(fill) * (t + 1) // 4])
            A(f"s_waitcnt vmcnt({8 * ah + 4}) lgkmcnt(4)")
            with Cap(A) as cs:
                if i < 6: setva(vb, SP[(i + 1) % 3])
            spread(mfl(0), rd(va, 2) + il[:10])
            A("s_waitcnt lgkmcnt(4)")
            spread(mfl(1), rd(va, 3) + il[10:18] + cs.out)
            A(f"s_waitcnt vmcnt({8 * ah + (8 if il else 0)}) lgkmcnt(4)")
            spread(mfl(2), (rd(vb, 0) + rd(vb, 1) if i < 6 else []) + il[18:])
            A(f"s_waitcnt lgkmcnt({8 if i < 6 else 0})")
            spread(mfl(3), [])
        A.label(".Ld6f7")
        with Cap(A) as ool:
            for i in range(2, 7):
                A.label(f".Ld6g{i}")
                generic(i)
                A(f"s_branch .Ld6f{i+1}")
        self.ool = j7c.out + ool.out
        self.stamp(27)
        A("s_nop 7")
        A("s_nop 1")
        for tl in range(4):
            nb, rb = tl >> 1, tl & 1
            for r4 in range(4):
                A(f"ds_write_b128 v{V_PW}, v[{ACC+tl*16+r4*4}:{ACC+tl*16+r4*4+3}] offset:{rb*32*RS + (nb*8 + (r4 >> 1)*4 + (r4 & 1))*16}")
            if tl == 1: A("s_waitcnt lgkmcnt(0)")
        A("s_waitcnt lgkmcnt(0)")
        A(f"s_branch .L{lab}_join")
        vm.ops = []; self.lg.ops = []
    def k5(self, stage, next_pf, own_pf=None):
        A = self.A; vm = self.vm; lg = self.lg
        S_A = 8; S_O = 20; S_ST = 24; S_CS = 28
        VB = [16, 28]; AA = 24; ACC = 64; FQ = 128
        D = K5D
        NB5 = int(os.environ.get('NB5', '3'))
        A(f"s_cmp_lt_u32 s{S_WAVE}, 4")
        A("s_cbranch_scc1 .Lk5_main")
        A(f"s_cmp_eq_u32 s{S_J}, 7")
        A("s_cbranch_scc1 .Lk5_h7")
        if CS6:
            A(f"s_cmp_ge_u32 s{S_WAVE}, 6")
            A("s_cbranch_scc1 .Lk5_cse")
            make_srd(A, 8, P_WS, WS_CS2, 8 * 1792 * 8)
            A(f"s_sub_u32 s48, s{S_WAVE}, 4")
            A(f"s_lshl_b32 s49, s{S_J}, 11")
            A("s_lshl_b32 s50, s48, 10")
            A("s_add_u32 s49, s49, s50")
            A("v_lshlrev_b32 v4, 4, v1")
            A(f"s_mul_i32 s50, s48, {2 * RG}")
            A("s_add_u32 s50, s50, 16384")
            A("v_lshrrev_b32 v5, 5, v1")
            A(f"v_mul_u32_u24 v5, {RG}, v5")
            A("v_and_b32 v6, 31, v1")
            A("v_lshl_add_u32 v5, v6, 3, v5")
            A("v_add_u32 v5, s50, v5")
            A("s_mov_b32 s52, 0")
            A.label(".Lk5_csl")
            A("s_mov_b32 s51, s49")
            for r in range(8):
                A(f"buffer_load_dwordx4 v[{64+4*r}:{67+4*r}], v4, s[8:11], s51 offen sc1")
                if r < 7: A(f"s_add_u32 s51, s51, {1792 * 8}")
            A("s_add_u32 s52, s52, 1")
            A("v_mov_b32 v6, 0")
            A("s_waitcnt vmcnt(0)")
            for r in range(8):
                A(f"v_xor_b32 v{65+4*r}, s100, v{65+4*r}")
                A(f"v_xor_b32 v{67+4*r}, s100, v{67+4*r}")
                A(f"v_or3_b32 v6, v6, v{65+4*r}, v{67+4*r}")
            A("v_cmp_ne_u32 vcc, 0, v6")
            A("s_cmp_lt_u32 s52, 0x40000")
            A("s_cbranch_scc0 .Lk5_csd")
            A("s_cbranch_vccnz .Lk5_csl")
            A.label(".Lk5_csd")
            for st in (4, 8, 16):
                for r in range(0, 32, 2 * st):
                    A(f"v_add_f32 v{64+r}, v{64+r}, v{64+r+st}")
                    A(f"v_add_f32 v{66+r}, v{66+r}, v{66+r+st}")
            A("v_mov_b32 v65, v66")
            A("ds_write_b64 v5, v[64:65]")
            A("s_waitcnt lgkmcnt(0)")
            A.label(".Lk5_cse")
        self.poll(stage)
        A("s_barrier")
        A("s_barrier")
        if FG and FGE and FGH:
            def woff():
                A(f"s_sub_u32 s{S_TMP}, s{S_WAVE}, 4")
                A(f"s_mul_i32 s{S_WOFF}, s{S_TMP}, {448 * 1024}")
                A(f"s_lshl_b32 s{S_TMP+11}, s{S_J}, 7")
                A(f"s_add_u32 s{S_WOFF}, s{S_WOFF}, s{S_TMP+11}")
                A(f"s_add_u32 s{S_WOFF}, s{S_WOFF}, {11 * 16384}")
                A(f"s_mul_i32 s{S_RB}, s{S_TMP}, {RG}")
            sv_ = list(vm.ops); wrb_ = self.wrb
            def woff6():
                A(f"s_sub_u32 s{S_TMP}, s{S_WAVE}, 4")
                A(f"s_mul_i32 s{S_RB}, s{S_TMP}, {RG}")
                self.d6_woffs([2, 3], S_TMP, 12)
            self.w_setup(3, 1792, 1024, woff6 if K6D else woff)
            A("v_and_b32 v37, 3, v1")
            A(f"v_mul_u32_u24 v37, {RG}, v37")
            A("s_sleep 60")
            A.label(".Lk5_tgh")
            A("s_sleep 2")
            A(f"ds_read_b64 v[38:39], v37 offset:{16384 + 1024}")
            A("s_waitcnt lgkmcnt(0)")
            A("v_xor_b32 v38, s100, v38")
            A("v_xor_b32 v39, s101, v39")
            A("v_or_b32 v38, v38, v39")
            A("v_cmp_ne_u32 vcc, 0, v38")
            A("s_nop 0")
            A("s_cbranch_vccnz .Lk5_tgh")
            if K6D:
                for s_ in range(8): self.d6_dma(12 + (s_ >> 2), s_ & 3, s_ * 2048)
            else:
                for st in range(11, 11 + FGE): self.dmaW(st, fg_slot(st), "wn")
            A(f"s_mul_i32 s{S_RB}, s{S_WAVE}, {RG}")
            vm.ops = sv_; self.wrb = wrb_
        A.label(".Lk5_h7")
        if L2PF & 4: self.l2pf(3, 1792 * 1024)
        A("s_branch .Lk5_end")
        A.label(".Lk5_main")
        A(f"s_cmp_eq_u32 s{S_J}, 7")
        A("s_cbranch_scc1 .Lk5_pf")
        if own_pf and PFE == 2: own_pf(NE, 99)
        make_srd(A, S_A, P_WS, WS_X1, 2 * MB)
        make_srd(A, S_ST, P_WS, WS_STAT, 2048 * 128)
        if CS6: pass
        elif not CS5: make_srd(A, S_CS, P_WS, WS_CS, 2 * CSP)
        else: A(f"s_mov_b32 s{S_CS}, 0x3f803f80")
        make_srd(A, S_O, P_WS, WS_G, 2048 * 3584)
        A(f"v_lshlrev_b32 v4, 4, v{L}")
        A(f"s_lshl_b32 s{S_TMP}, s{S_M}, 16")
        A(f"s_lshl_b32 s{S_TMP+1}, s{S_WAVE}, 14")
        A(f"s_add_u32 s{S_TMP}, s{S_TMP}, s{S_TMP+1}")
        A(f"s_lshl_b32 s{S_TMP+6}, s{S_J}, 9")
        A(f"s_lshl_b32 s{S_TMP+2}, s{S_WAVE}, 7")
        A(f"s_add_u32 s{S_TMP+6}, s{S_TMP+6}, s{S_TMP+2}")
        A(f"v_lshrrev_b32 v5, 5, v{L}")
        A(f"v_bfe_u32 v7, v{L}, 4, 1")
        A(f"v_bfe_u32 v8, v{L}, 2, 2")
        A(f"v_and_b32 v9, 1, v{L}")
        A(f"v_bfe_u32 v10, v{L}, 1, 1")
        A("v_lshl_or_b32 v9, v9, 1, v10")
        A("v_lshlrev_b32 v9, 3, v9")
        A("v_lshl_add_u32 v9, v7, 5, v9")
        A("v_lshl_add_u32 v10, v5, 3, v8")
        A("v_lshrrev_b32 v11, 1, v8")
        for nb in range(2):
            A(f"v_xor_b32 v12, {nb}, v11")
            A("v_lshl_add_u32 v12, v12, 6, v9")
            A("v_lshl_add_u32 v12, v10, 7, v12")
            A(f"v_add_u32 v{AA+nb}, s{S_RB}, v12")
        A(f"v_and_b32 v13, 31, v{L}")
        A("v_lshrrev_b32 v7, 4, v13")
        A(f"v_mul_u32_u24 v7, {RG // 1024}, v7")
        A("v_and_b32 v8, 15, v13")
        A("v_add_u32 v7, v7, v8")
        for j in range(8):
            A(f"v_or_b32 v8, {2*j}, v5")
            A("v_xor_b32 v8, v8, v13")
            A("v_and_b32 v8, 15, v8")
            A("v_lshlrev_b32 v8, 4, v8")
            A(f"v_lshl_add_u32 v{VB[0]+j}, v7, 10, v8")
            A(f"v_add_u32 v{VB[1]+j}, {2*RG}, v{VB[0]+j}")
        ST = 192; CS = 224
        A("v_lshlrev_b32 v42, 5, v5")
        if CS6:
            A(f"s_add_u32 s{S_TMP+3}, s{S_RB}, 16384")
            A(f"v_add_u32 v42, s{S_TMP+3}, v42")
        if CS5:
            A(f"s_add_u32 s{S_TMP+3}, s{S_RB}, 16384")
            A(f"v_add_u32 v42, s{S_TMP+3}, v42")
            A("v_and_b32 v7, 0x13, v13")
            A("v_bfe_u32 v8, v13, 2, 1")
            A("v_lshl_or_b32 v7, v8, 3, v7")
            A("v_bfe_u32 v8, v13, 3, 1")
            A("v_lshl_or_b32 v7, v8, 2, v7")
            A("v_lshlrev_b32 v7, 2, v7")
            A(f"v_add_u32 v43, s{S_TMP+3}, v7")
        C2 = [176, 184, 200, 216]
        def csloads():
            A(f"s_lshl_b32 s{S_TMP+2}, s{S_TMP+6}, 1")
            for part in range(2 if V2 else 1):
                for q in range(4):
                    for h4 in range(2):
                        d = (CS + q * 8 if part == 0 else C2[q]) + 4 * h4
                        A(f"buffer_load_dwordx4 v[{d}:{d+3}], v42, s[{S_CS}:{S_CS+3}], s{S_TMP+2} offen offset:{(16*q+4*h4)*4}"); vm.issue("st")
                A(f"s_add_u32 s{S_TMP+2}, s{S_TMP+2}, {CSP}")
        VS = 36
        A("v_and_b32 v7, 7, v13")
        A(f"s_add_u32 s{S_TMP+3}, s{S_RB}, {K5RB}")
        for j in range(4):
            A(f"v_or_b32 v14, {2*j}, v5")
            A("v_xor_b32 v14, v14, v7")
            A("v_lshlrev_b32 v14, 4, v14")
            A("v_lshl_add_u32 v14, v13, 7, v14")
            A(f"v_add_u32 v{VS+j}, s{S_TMP+3}, v14")
        A(f"v_lshrrev_b32 v7, 3, v{L}")
        A(f"v_and_b32 v14, 7, v{L}")
        A(f"v_xor_b32 v{VS+4}, v14, v7")
        A(f"v_lshlrev_b32 v{VS+4}, 4, v{VS+4}")
        A(f"v_lshl_add_u32 v{VS+4}, v7, 7, v{VS+4}")
        A(f"v_add_u32 v{VS+4}, s{S_TMP+3}, v{VS+4}")
        A(f"s_movk_i32 s{S_TMP+2}, 3584")
        A(f"v_mul_lo_u32 v7, v7, s{S_TMP+2}")
        A(f"v_lshl_add_u32 v{VS+5}, v14, 4, v7")
        A(f"s_mul_i32 s{S_TMP+4}, s{S_M}, {64*3584}")
        if FG:
            A(f"s_lshl_b32 s{S_TMP+5}, s{S_TMP+6}, 6")
            A(f"s_add_u32 s{S_TMP+4}, s{S_TMP+4}, s{S_TMP+5}")
            A(f"s_add_u32 s{S_TMP+5}, s{S_TMP+4}, 4096")
        else:
            A(f"s_add_u32 s{S_TMP+4}, s{S_TMP+4}, s{S_TMP+6}")
            A(f"s_add_u32 s{S_TMP+5}, s{S_TMP+4}, {32*3584}")
        A("v_lshlrev_b32 v7, 3, v13")
        A("v_lshl_add_u32 v7, v5, 16, v7")
        A(f"s_lshl_b32 s{S_TMP+7}, s{S_M}, 9")
        A("s_barrier")
        self.stamp(1 + 4 * stage + 3)
        for i in range(16):
            t = 8 + (i & 1)
            A(f"v_xor_b32 v{t}, {i << 4}, v4")
            A(f"s_add_u32 m0, s{S_RB}, {i * 1024}")
            A(f"s_add_u32 s{S_TMP+2}, s{S_TMP}, {i * 1024}")
            A(f"buffer_load_dwordx4 v{t}, s[{S_A}:{S_A+3}], s{S_TMP+2} offen lds")
            vm.issue("act")
        for q in range(4):
            A(f"s_add_u32 s{S_TMP+3}, s{S_TMP+7}, {q*16384}")
            for rb in range(2):
                A(f"buffer_load_dwordx2 v[{ST+16*rb+2*q}:{ST+16*rb+2*q+1}], v7, s[{S_ST}:{S_ST+3}], s{S_TMP+3} offen offset:{rb*256}"); vm.issue("st")
        def csreads():
            for q in range(4):
                for h4 in range(2):
                    d = CS + q * 8 + 4 * h4
                    A(f"ds_read_b128 v[{d}:{d+3}], v42 offset:{(16*q+4*h4)*4}")
        WR = [152, 160, 168, 176, 184, 200, 216, 224, 232, 240, 248][:K5R + 1]
        def wr5(step):
            buf = WR[step % len(WR)]
            for nb in range(2):
                for q in range(2):
                    A(f"ds_read_b64_tr_b16 v[{buf+nb*4+q*2}:{buf+nb*4+q*2+1}], v{AA+nb} offset:{K5RB + (step % D) * 2048 + q * 512}")
                    lg.issue(("w5", step))
        if K5R:
            assert CS6 and FG
            for s0 in range(K5R + 2):
                if s0 < K5R: wr5(s0)
                if 2 <= s0 <= K5R:
                    lg.wait(("w5", s0 - 2)); self.dmaW(s0 - 2 + D, K5RB + ((s0 - 2) % D) * 2048)
        elif CS6: csreads()
        vm.wait("act")
        if CS6 and not K5R: A("s_waitcnt lgkmcnt(0)")
        A("s_barrier")
        self.stamp(29)
        def reads(step):
            buf = FQ + (step % NB5) * 16
            for nb in range(2):
                for q in range(2):
                    A(f"ds_read_b64_tr_b16 v[{buf+nb*4+q*2}:{buf+nb*4+q*2+1}], v{AA+nb} offset:{K5RB + (step % D) * 2048 + q * 512}")
                    lg.issue(("f", step))
            for rb in range(2):
                A(f"ds_read_b128 v[{buf+8+rb*4}:{buf+8+rb*4+3}], v{VB[rb] + (step & 7)} offset:{(step >> 3) * 256}")
                lg.issue(("f", step))
        PKC = [[44, 46, 48, 50], [52, 54, 56, 58]]
        E = []
        for stg in range(17):
            for rb in range(2):
                b = ST + 16 * rb; c = PKC[rb]
                E.append([f"v_add_f32 v{b}, v{b}, v{b+2}", f"v_add_f32 v{b+1}, v{b+1}, v{b+3}",
                          f"v_add_f32 v{b+4}, v{b+4}, v{b+6}", f"v_add_f32 v{b+5}, v{b+5}, v{b+7}",
                          f"v_add_f32 v{b}, v{b}, v{b+4}", f"v_add_f32 v{b+1}, v{b+1}, v{b+5}",
                          f"v_mov_b32 v{b+2}, v{b}", f"v_mov_b32 v{b+3}, v{b+1}", "s_nop 1",
                          f"v_permlane32_swap_b32 v{b}, v{b+2}", f"v_permlane32_swap_b32 v{b+1}, v{b+3}", "s_nop 1",
                          f"v_add_f32 v{b}, v{b}, v{b+2}", f"v_add_f32 v{b+1}, v{b+1}, v{b+3}",
                          f"v_mul_f32 v{c[0]}, {fhex(-1/512)}, v{b}", f"v_mul_f32 v{b+1}, {fhex(1/512)}, v{b+1}",
                          f"v_fma_f32 v{b+1}, -v{c[0]}, v{c[0]}, v{b+1}"][stg])
        for stg in range(9):
            for rb in range(2):
                b = ST + 16 * rb; c = PKC[rb]
                E.append([f"v_max_f32 v{b+1}, 0, v{b+1}", f"v_add_f32 v{b+1}, {fhex(1e-5)}, v{b+1}",
                          f"v_rsq_f32 v{b+2}, v{b+1}", f"v_sqrt_f32 v{c[3]}, v{b+1}", "s_nop 0",
                          f"v_mul_f32 v{c[2]}, {fhex(GK0)}, v{b+2}", f"v_mul_f32 v{c[1]}, v{b+2}, v{b+2}",
                          f"v_mul_f32 v{c[1]}, v{c[1]}, v{b+2}", f"v_mul_f32 v{c[1]}, {fhex(GK1)}, v{c[1]}"][stg])
        if V2 and not CS5 and not CS6:
            for q in range(4):
                for e in range(8): E.append(f"v_add_f32 v{CS+8*q+e}, v{CS+8*q+e}, v{C2[q]+e}")
        if K5R:
            def br5(step):
                buf = FQ + (step % 3) * 8
                for rb in range(2):
                    A(f"ds_read_b128 v[{buf+rb*4}:{buf+rb*4+3}], v{VB[rb] + (step & 7)} offset:{(step >> 3) * 256}")
                    lg.issue(("f", step))
            br5(0); br5(1)
            k = 0
            for ks in range(32):
                lg.wait(("f", ks))
                r = ks + K5R
                with Cap(A) as cp:
                    f_ = r - 1
                    if ks + 2 < 32: br5(ks + 2)
                    if f_ < 32:
                        lg.wait(("w5", f_))
                        if f_ + D < 32: self.dmaW(f_ + D, K5RB + (f_ % D) * 2048)
                        else: next_pf(f_ - 21, f_ - 20)
                    if r < 32:
                        vm.wait(("w", r)); wr5(r)
                    if 8 <= ks < 28:
                        if ks == 8: vm.wait("st")
                        upto = len(E) * (ks - 7) // 20
                        while k < upto: A(E[k]); k += 1
                buf = FQ + (ks % 3) * 8; w = WR[ks % len(WR)]
                mf = []
                for nb in range(2):
                    for rb in range(2):
                        acc = ACC + (nb * 2 + rb) * 16
                        c = "0" if ks == 0 else f"v[{acc}:{acc+15}]"
                        mf.append(f"v_mfma_f32_32x32x16_bf16 v[{acc}:{acc+15}], v[{w+nb*4}:{w+nb*4+3}], v[{buf+rb*4}:{buf+rb*4+3}], {c}")
                interleave(A, mf, cp.out)
            csreads()
            A("s_waitcnt lgkmcnt(0)")
            lg.ops = []
        for s0 in range(NB5 - 1 if not K5R else 0):
            vm.wait(("w", s0)); reads(s0)
        k = 0
        for ks in range(32 if not K5R else 0):
            lg.wait(("f", ks))
            with Cap(A) as cp:
                if ks + NB5 - 1 < 32:
                    vm.wait(("w", ks + NB5 - 1)); reads(ks + NB5 - 1)
                if ks + D < 32: self.dmaW(ks + D, K5RB + (ks % D) * 2048)
                elif FG: next_pf(ks - 21, ks - 20)
                elif PFE == 3 and ks == 21: next_pf(0, 1)
                elif PFE == 3 and ks >= 26: next_pf(ks - 25, ks - 24)
                if ks == 1 and not CS5 and not CS6: csloads()
                if CS5:
                    bf_ = FQ + (ks % NB5) * 16
                    dl = [f"v_dot2_f32_bf16 v{176+nb}, v{bf_+nb*4+j}, s{S_CS}, " + ("0" if ks == 0 and j == 0 else f"v{176+nb}") for j in range(4) for nb in range(2)]
                    if ks < 31:
                        for d_ in dl: A(d_)
                    else:
                        A("v_mov_b32 v178, v176")
                        A("v_mov_b32 v179, v177")
                        A("s_nop 1")
                        A("v_permlane32_swap_b32 v176, v178")
                        A("v_permlane32_swap_b32 v177, v179")
                        A("s_nop 1")
                        A("v_add_f32 v176, v176, v178")
                        A("v_add_f32 v177, v177, v179")
                        A("ds_write_b32 v43, v176")
                        A("ds_write_b32 v43, v177 offset:128")
                        A("s_waitcnt lgkmcnt(0)")
                        for q in range(4):
                            for h4 in range(2):
                                d = CS + q * 8 + 4 * h4
                                A(f"ds_read_b128 v[{d}:{d+3}], v42 offset:{(16*q+4*h4)*4}")
                if 14 <= ks < 28:
                    if ks == 14: vm.wait("st")
                    upto = len(E) * (ks - 13) // 14
                    while k < upto: A(E[k]); k += 1
            buf = FQ + (ks % NB5) * 16
            mf = []
            for nb in range(2):
                for rb in range(2):
                    acc = ACC + (nb * 2 + rb) * 16
                    c = "0" if ks == 0 else f"v[{acc}:{acc+15}]"
                    mf.append(f"v_mfma_f32_32x32x16_bf16 v[{acc}:{acc+15}], v[{buf+nb*4}:{buf+nb*4+3}], v[{buf+8+rb*4}:{buf+8+rb*4+3}], {c}")
            if CS5 and ks == 31:
                for d_ in dl: A(d_)
                A("s_nop 1")
            interleave(A, mf, cp.out)
        if CS5: A("s_waitcnt lgkmcnt(0)")
        if FG and FGE:
            A(f"s_add_u32 s{S_TMP+3}, s{S_RB}, {16384 + 1024}")
            A(f"v_mov_b32 v36, s{S_TMP+3}")
            A("v_mov_b32 v38, s100")
            A("v_mov_b32 v39, s101")
            A("ds_write_b64 v36, v[38:39]")
            A("v_and_b32 v37, 3, v1")
            A(f"v_mul_u32_u24 v37, {RG}, v37")
        self.stamp(28)
        if PFE == 1: next_pf()
        else:
            A("s_nop 7"); A("s_nop 3")
        def flush5(rb):
            A("s_waitcnt lgkmcnt(0)")
            for i in range(4):
                A(f"ds_read_b128 v[{192+16*rb+4*i}:{192+16*rb+4*i+3}], v{VS+4} offset:{rb*4096 + i*1024}")
        def store5(rb):
            for i in range(4):
                if rb == 1: A(f"s_waitcnt lgkmcnt({3-i})")
                A(f"s_add_u32 s{S_TMP+3}, s{S_TMP+4+rb}, {i*8*3584}")
                A(f"buffer_store_dwordx4 v[{192+16*rb+4*i}:{192+16*rb+4*i+3}], v{VS+5}, s[{S_O}:{S_O+3}], s{S_TMP+3} offen sc1")
        for rb in range(2):
            for nb in range(2):
                acc = ACC + (nb * 2 + rb) * 16
                if rb == 1 and nb == 1 and not FG:
                    A("s_waitcnt lgkmcnt(2)")
                    store5(0)
                for mp in range(2):
                    d = 160 + (nb * 4 + rb * 2 + mp) * 4
                    xs = [acc + 8 * mp + e for e in range(8)]
                    ts = list(range(128, 136)); cs = CS + (nb * 2 + mp) * 8; c = PKC[rb]
                    for e in range(0, 8, 2): pk(A, "v_pk_fma_f32", xs[e], cs + e, c[0], xs[e], "op_sel_hi:[1,0,1]")
                    for e in range(0, 8, 2): pk(A, "v_pk_mul_f32", ts[e], xs[e], xs[e])
                    for e in range(0, 8, 2): pk(A, "v_pk_fma_f32", ts[e], ts[e], c[1], c[2], "op_sel_hi:[1,0,0]")
                    for e in range(0, 8, 2): pk(A, "v_pk_mul_f32", ts[e], ts[e], xs[e])
                    for t in ts: A(f"v_exp_f32 v{t}, v{t}")
                    for e in range(0, 8, 2): pk(A, "v_pk_fma_f32", ts[e], ts[e], c[3], c[3], "op_sel_hi:[1,0,0]")
                    for t in ts: A(f"v_rcp_f32 v{t}, v{t}")
                    A("s_nop 0")
                    for e in range(0, 8, 2): pk(A, "v_pk_mul_f32", xs[e], xs[e], ts[e])
                    for e in range(0, 8, 2): A(f"v_cvt_pk_bf16_f32 v{d+e//2}, v{xs[e]}, v{xs[e+1]}")
                    if FG: A(f"buffer_store_dwordx4 v[{d}:{d+3}], v4, s[{S_O}:{S_O+3}], s{S_TMP+4+nb} offen offset:{mp*2048 + rb*1024} sc1")
                    else: A(f"ds_write_b128 v{VS+2*nb+mp}, v[{d}:{d+3}] offset:{rb*4096}")
                    if FG and FGE and not FGH:
                        gi = rb * 4 + nb * 2 + mp
                        G0 = int(os.environ.get("FGG", "0")); NG = int(os.environ.get("FGN", "4"))
                        if gi == G0:
                            A.label(".Lk5_tg")
                            A(f"ds_read_b64 v[38:39], v37 offset:{16384 + 1024}")
                            A("s_waitcnt lgkmcnt(0)")
                            A("v_xor_b32 v38, s100, v38")
                            A("v_xor_b32 v39, s101, v39")
                            A("v_or_b32 v38, v38, v39")
                            A("v_cmp_ne_u32 vcc, 0, v38")
                            A("s_nop 0")
                            A("s_cbranch_vccnz .Lk5_tg")
                        if G0 <= gi < G0 + NG:
                            next_pf(11 + FGE * (gi - G0) // NG, 11 + FGE * (gi - G0 + 1) // NG)
            if not FG: flush5(rb)
        if not FG: store5(1)
        if FG and FGE and FGH and not K6D: A(f"s_add_u32 s{S_WOFF}, s{S_WOFF}, {FGE * 16384}")
        A("s_branch .Lk5_end")
        A.label(".Lk5_pf")
        if PFE in (1, 3): next_pf(alt=True)
        A.label(".Lk5_end")
        if J7P >= 0:
            A(f"s_cmp_lg_u32 s{S_J}, 7")
            A("s_cbranch_scc1 .Lk5_j7e")
            make_srd(A, 80, P_W + 6, 0, 1792 * 1024)
            A(f"s_lshr_b32 s78, s{S_M}, 3")
            A(f"s_mul_i32 s78, s78, {448 * 1024}")
            A(f"s_add_u32 s78, s78, {J7P * 16384}")
            A("v_lshlrev_b32 v2, 7, v0")
            for i in range((28 - J7P) // 4):
                A("buffer_load_dword v3, v2, s[80:83], s78 offen")
                A("s_add_u32 s78, s78, 65536")
            A.label(".Lk5_j7e")

def gen_km(A):
    name = "k1_kernel"
    M = Mega(A)
    def pre():
        if MT or HD:
            M.persist(); M.stamp(0); M.vm.ops = []
        if ONE: M.pro_pre()
    if V4: K1.gen_k1(A, emb=True, pre=pre, hookA=M.p4_a, hookB=M.p4_b, v2=True, hookC=M.p2_c, hookD=lambda: (M.persist(), M.jobs0()))
    elif V3: K1.gen_k1(A, emb=True, pre=pre, hookA=M.p3_a, hookB=M.p3_b, v2=True, hookC=M.p2_c)
    elif V2: K1.gen_k1(A, emb=True, pre=pre, hookA=M.p2_a, hookB=M.p2_b, v2=True, hookC=M.p2_c)
    elif ONE: K1.gen_k1(A, emb=True, pre=pre, hookA=M.pro_a, hookB=M.pro_b)
    else: K1.gen_k1(A, emb=True, pre=pre)
    M.persist()
    M.transition(0)
    M.kr()
    M.transition(1)
    pf4 = lambda lo=0, hi=99: M.pf_g64(1, 512, 24576, 8, lo, hi)
    pf6 = lambda lo=0, hi=99, alt=False: M.pf_g64(3, 1792, 26624, 7, lo, hi, 6)
    if FG: pf6 = M.pf_d6 if K6D else M.pf_fg
    M.g64("k3", 1, 512, WS_HN, 2 * MB, 1024, "gelu", 24576, 8, False, pf4, None, 0, {st: (st, st + 1) for st in range(8)}, [(2, 1792 * 1024)] if L2PF & 1 else None)
    M.transition(2, pf4)
    M.g64("k4", 2, 512, WS_H1, 2052 * 1024, 1024, "res", 24576, 8, True, M.pf_k5, pf4, 0, {st: ((0, 4) if st == 0 else (st + 3, st + 4)) for st in range(8)}, [(3, 1792 * 1024)] if L2PF & 2 else None)
    M.transition(3, M.pf_k5)
    M.k5(3, pf6, M.pf_k5)
    if K6D: M.stamp(17); M.vm.ops = []; M.lg.ops = []
    else: M.transition(4, pf6)
    M.g64("k6", 4, 1792, WS_G, 2048 * 3584, 3584, "final", 26624, 7, False, None, pf6, 6)
    M.stamp(21)
    if MT or HD: A("s_waitcnt vmcnt(0)")
    M.stamp(22)
    A("s_endpgm")
    if getattr(M, "ool", None):
        A.lines.extend(M.ool)
        A("s_endpgm")
    A.raw(kernel_desc(name, 256, 102, 256))
    return (name, (256, 1, 1), (512, 1, 1), 163840)
```

```python
from asmlib import *
from gen_k0 import *
import os
DEBUG = int(os.environ.get("K1DEBUG", "0"))
PART_BF16 = int(os.environ.get("PARTBF16", "1"))
MIMIC = int(os.environ.get("MIMIC", "0"))
LAZY = int(os.environ.get("LAZY", "1"))
THR = float(os.environ.get("THR","30.0"))
TIMING = int(os.environ.get("TIMING", "0"))
KT = int(os.environ.get("KT", "0"))
LM = int(os.environ.get("LM", "0"))
ZB = float(os.environ.get("ZB", "108"))
HB3 = eval(os.environ.get("HB3", "None"))
PD = int(os.environ.get("PD", "0"))
PDS = [128, 136, 144, 152, 192, 200, 208, 216, 224, 232, 160, 168, 176, 184][:int(os.environ.get("PDD", "8"))]
def pd_load(A, vm, st):
    d = PDS[st % len(PDS)]
    for nb in range(2):
        A(f"buffer_load_dwordx4 v[{d+4*nb}:{d+4*nb+3}], v{V_WOOFF}, s[{S_WO}:{S_WO+3}], s{S_OFF} offen offset:{nb*1024}")
        vm.issue(("w", st))
    A(f"s_add_u32 s{S_OFF}, s{S_OFF}, 2048")
def pd_core(A, vm, lg, pre, NS=32):
    DW = len(PDS)
    def reads(step):
        buf = 240 + (step & 1) * 8
        for rb in range(2):
            A(f"ds_read_b128 v[{buf+rb*4}:{buf+rb*4+3}], v{V_BADDR + (step & 7)} offset:{(step >> 3) * 256 + rb * 32768}")
            lg.issue(("f", step))
    for st in range(pre, DW): pd_load(A, vm, st)
    reads(0)
    for ks in range(NS):
        lg.wait(("f", ks))
        vm.wait(("w", ks))
        buf = 240 + (ks & 1) * 8; w = PDS[ks % DW]
        i = 0
        for nb in range(2):
            for rb in range(2):
                acc = V_ACC + (nb * 2 + rb) * 16
                c = "0" if ks == 0 else f"v[{acc}:{acc+15}]"
                A(f"v_mfma_f32_32x32x16_bf16 v[{acc}:{acc+15}], v[{w+nb*4}:{w+nb*4+3}], v[{buf+rb*4}:{buf+rb*4+3}], {c}")
                if i == 0 and ks + 1 < NS: reads(ks + 1)
                if i == 1 and ks >= 1 and ks - 1 + DW < NS: pd_load(A, vm, ks - 1 + DW)
                if i == 2 and HB3 is not None and ks == NS - DW + int(os.environ.get("PDG", "0")):
                    A(f"s_add_u32 s{S_TMP}, s{S_RB}, {slot6(HB3) * 16384}")
                    A(f"v_mov_b32 v58, s{S_TMP}")
                    A("v_mov_b32 v60, s100")
                    A("v_mov_b32 v61, s101")
                    A("ds_write_b64 v58, v[60:61]")
                i += 1
USEPK = int(os.environ.get("USEPK", "0"))
EXPT = int(os.environ.get("EXPT", "0"))
NOMAX = int(os.environ.get("NOMAX", "0"))
DOT2 = int(os.environ.get("DOT2", "0"))

class Cnt:
    def __init__(self, A, name, maxv):
        self.A = A; self.name = name; self.maxv = maxv; self.ops = []
    def issue(self, tag):
        self.ops.append(tag)
        assert len(self.ops) <= self.maxv + 1 or self.name == "vmcnt", (self.name, len(self.ops))
    def wait(self, tag):
        idx = None
        for i, t in enumerate(self.ops):
            if t == tag: idx = i
        if idx is None:
            return
        n = len(self.ops) - 1 - idx
        assert n <= self.maxv, (self.name, n)
        self.A(f"s_waitcnt {self.name}({n})")
        self.ops = self.ops[idx+1:]
    def waitall(self):
        self.A(f"s_waitcnt {self.name}(0)")
        self.ops = []

class Stamper:
    def __init__(self, A, lg, srd, swave, base=72):
        self.A = A; self.lg = lg; self.n = 0; self.srd = srd; self.swave = swave; self.base = base
    def __call__(self, real=False):
        if KT:
            self.c = getattr(self, "c", 0) + 1
            if self.c <= 2: return
            A = self.A
            self.lg.waitall()
            A("s_memrealtime s[36:37]" if KT == 1 else "s_memtime s[36:37]")
            A("s_waitcnt lgkmcnt(0)")
            A(f"s_mov_b32 s{76+self.n}, s36")
            self.n += 1
            assert self.n <= 16
            return
        if not TIMING: return
        A = self.A
        self.lg.waitall()
        A("s_memrealtime s[70:71]" if (real or TIMING == 2) else "s_memtime s[70:71]")
        A("s_waitcnt lgkmcnt(0)")
        A(f"s_mov_b32 s{self.base+self.n}, s70")
        self.n += 1
    def flush(self):
        if KT:
            A = self.A
            make_srd(A, 36, 68, WS_DBG + 24 * MB, 1 * MB)
            A(f"s_lshl_b32 s70, s2, 3")
            A(f"s_add_u32 s70, s70, s{self.swave}")
            A(f"s_lshl_b32 s70, s70, 6")
            A("v_mov_b32 v5, 0")
            for i in range(self.n):
                A(f"v_mov_b32 v6, s{76+i}")
                A(f"buffer_store_dword v6, v5, s[36:39], s70 offen offset:{4*i}")
            return
        if not TIMING: return
        A = self.A
        A(f"s_lshl_b32 s70, s2, 3")
        A(f"s_add_u32 s70, s70, s{self.swave}")
        A(f"s_lshl_b32 s70, s70, 7")
        A("v_mov_b32 v5, 0")
        for i in range(self.n):
            A(f"v_mov_b32 v6, s{self.base+i}")
            A(f"buffer_store_dword v6, v5, s[{self.srd}:{self.srd+3}], s70 offen offset:{4*i}")

ACT = 0
STG = 65536
KRING = STG + 3 * 16384
VRING = STG
V_LANE = 1
V_BADDR = 16; V_AADDR = 24; V_WQOFF = 26; V_WOOFF = 27
V_KADDR = 28; V_VADDR = 36; V_KOFF = 40; V_VOFF = 42
V_M = 43; V_L = 44; V_ALPHA = 46; V_NEGC = 48
V_QADDR = 50
V_T = 58
V_ACC = 64
V_Q = 128
V_S = 160
V_F = 224
NF = 8
RA = int(os.environ.get('RA','6'))
PRIO = int(os.environ.get('PRIO','0'))
CT = int(os.environ.get('CT','1'))
V_NB = 48
S_XN = 8; S_MOD = 12; S_WQ = 16; S_K = 20; S_V = 24; S_WO = 28; S_P = 32; S_DBG = 36
S_WAVE = 40; S_G = 41; S_M = 42; S_RB = 43; S_OFF = 44; S_MASK = 45; S_KVOFF = 46; S_KVM0 = 47
S_C1 = 48; S_K2 = 50; S_SC = 52; S_L2E = 54
S_TMP = 56
S_SL = 66
S_FLAG = 64
S_QOFF = 67
SCALE = 128 ** -0.5

def gemm_dma(A, vm, step, srd, voff, rowstride, D):
    for half in range(2):
        A(f"s_add_u32 m0, s{S_RB}, {(step % D) * 2048 + half * 1024}")
        A("s_nop 0")
        A(f"buffer_load_dwordx4 v{voff}, s[{srd}:{srd+3}], s{S_OFF} offen lds")
        vm.issue(("w", step))
        A(f"s_add_u32 s{S_OFF}, s{S_OFF}, {8 * rowstride}")

def gemm_reads(A, lg, step, D):
    buf = V_Q + (step & 1) * 16
    if (EXPT & 128) and step > 1: return
    for nb in range(2):
        for q in range(2):
            A(f"ds_read_b64_tr_b16 v[{buf+nb*4+q*2}:{buf+nb*4+q*2+1}], v{V_AADDR+nb} offset:{(step % D) * 2048 + q * 512}")
            lg.issue(("f", step))
    for rb in range(2):
        A(f"ds_read_b128 v[{buf+8+rb*4}:{buf+8+rb*4+3}], v{V_BADDR + (step & 7)} offset:{(step >> 3) * 256 + rb * 32768}")
        lg.issue(("f", step))

def gemm_core(A, vm, lg, srd, voff, rowstride, D=4, NS=32):
    vm.wait(("w", 0))
    gemm_reads(A, lg, 0, D)
    for ks in range(NS):
        if ks + 1 < NS:
            vm.wait(("w", ks + 1))
            gemm_reads(A, lg, ks + 1, D)
        lg.wait(("f", ks))
        if ks + D < NS and not (EXPT & 32):
            gemm_dma(A, vm, ks + D, srd, voff, rowstride, D)
        buf = V_Q + (ks & 1) * 16
        for nb in range(2):
            for rb in range(2):
                acc = V_ACC + (nb * 2 + rb) * 16
                c = "0" if ks == 0 else f"v[{acc}:{acc+15}]"
                if (EXPT & 64) and ks > 0: continue
                A(f"v_mfma_f32_32x32x16_bf16 v[{acc}:{acc+15}], v[{buf+nb*4}:{buf+nb*4+3}], v[{buf+8+rb*4}:{buf+8+rb*4+3}], {c}")

D6 = int(os.environ.get("D6", "1"))
V_AADDR2 = (43, 45)
def slot6(step): return (step + 2) % 6
M16 = int(os.environ.get("M16", "0"))
P4 = int(os.environ.get("MEGA", "7")) == 7
V_K10 = 10; V_K01 = 11
R7 = int(os.environ.get("R7", "0")) and P4
SCRO = 0 if R7 else 16384
def slot7(step): return slot6(step + 5) if step < 5 else slot6(step)
def dma7(A, vm, step):
    for half in range(2):
        A(f"s_add_u32 m0, s{S_RB}, {slot7(step) * 16384 + half * 1024}")
        A("s_nop 0")
        A(f"buffer_load_dwordx4 v{V_WQOFF}, s[{S_WQ}:{S_WQ+3}], s{S_OFF} offen lds")
        vm.issue(("w", step))
        A(f"s_add_u32 s{S_OFF}, s{S_OFF}, 65536")
def wreads7(A, lg, step):
    buf = 208 + (step % 6) * 8; sl = slot7(step)
    for nb in range(2):
        for q in range(2):
            a = V_AADDR + nb if sl < 4 else V_AADDR2[nb]
            A(f"ds_read_b64_tr_b16 v[{buf+nb*4+q*2}:{buf+nb*4+q*2+1}], v{a} offset:{(sl & 3) * 16384 + q * 512}")
            lg.issue(("w5", step))
def gemm_core7(A, vm, lg, tail):
    def breads(step):
        buf = V_Q + (step & 1) * 8
        for rb in range(2):
            A(f"ds_read_b128 v[{buf+rb*4}:{buf+rb*4+3}], v{V_BADDR + (step & 7)} offset:{(step >> 3) * 256 + rb * 32768}")
            lg.issue(("f", step))
    breads(0)
    dma7(A, vm, 10)
    for ks in range(32):
        r = ks + 5
        if ks + 1 < 32: breads(ks + 1)
        if r < 32:
            vm.wait(("w", r)); wreads7(A, lg, r)
        lg.wait(("f", ks)); lg.wait(("w5", r - 1))
        if 11 <= ks + 10 < 32: dma7(A, vm, ks + 10)
        elif ks + 10 >= 32: tail(ks + 4)
        buf = V_Q + (ks & 1) * 8; w = 208 + (ks % 6) * 8
        for nb in range(2):
            for rb in range(2):
                acc = V_ACC + (nb * 2 + rb) * 16
                c = "0" if ks == 0 else f"v[{acc}:{acc+15}]"
                A(f"v_mfma_f32_32x32x16_bf16 v[{acc}:{acc+15}], v[{w+nb*4}:{w+nb*4+3}], v[{buf+rb*4}:{buf+rb*4+3}], {c}")
VA16 = 224; VB16 = 232
def addr16(A):
    L = V_LANE
    A(f"v_lshrrev_b32 v2, 4, v{L}")
    A(f"v_and_b32 v3, 15, v{L}")
    for j in range(4):
        A(f"v_or_b32 v4, {4*j}, v2")
        A("v_xor_b32 v4, v4, v3")
        A("v_lshlrev_b32 v4, 4, v4")
        A(f"v_lshl_add_u32 v{VB16+j}, v3, 10, v4")
    A(f"v_bfe_u32 v4, v{L}, 2, 2")
    A(f"v_and_b32 v5, 3, v{L}")
    A("v_and_b32 v6, 1, v2")
    A("v_lshl_add_u32 v7, v6, 3, v4")
    A("v_lshlrev_b32 v7, 7, v7")
    A("v_lshl_add_u32 v7, v5, 3, v7")
    A("v_lshrrev_b32 v8, 1, v2")
    A("v_lshl_add_u32 v7, v8, 14, v7")
    A(f"v_add_u32 v7, s{S_RB}, v7")
    A("v_lshrrev_b32 v8, 1, v4")
    A("v_lshl_or_b32 v8, v8, 1, v6")
    for nt in range(4):
        A(f"v_xor_b32 v9, {nt}, v8")
        A(f"v_lshl_add_u32 v{VA16+nt}, v9, 5, v7")
        A(f"v_add_u32 v{VA16+4+nt}, 65536, v{VA16+nt}")
def gemm_core16(A, vm, lg, srd, voff, rowstride, pre, tail=None):
    for st in range(pre, 6): gemm_dma6(A, vm, st, srd, voff, rowstride)
    def rd(s, part):
        buf = V_Q + (s & 1) * 32
        if part == 0:
            for rt in range(4):
                A(f"ds_read_b128 v[{buf+16+4*rt}:{buf+19+4*rt}], v{VB16 + (s & 3)} offset:{rt * 16384 + (s >> 2) * 256}")
                lg.issue(("b", s))
        else:
            nt = part - 1
            sl = slot6(2 * s)
            for q in range(2):
                A(f"ds_read_b64_tr_b16 v[{buf+4*nt+2*q}:{buf+4*nt+2*q+1}], v{VA16 + (4 if sl >= 4 else 0) + nt} offset:{(sl & 3) * 16384 + q * 512}")
                lg.issue(("a", s, nt))
    vm.wait(("w", 1))
    for p in range(5): rd(0, p)
    for s in range(16):
        buf = V_Q + (s & 1) * 32
        for nt in range(4):
            lg.wait(("a", s, nt))
            RF = int(os.environ.get("RF16", "3")); SCH = int(os.environ.get("SCH16", "0"))
            for rt in range(4):
                if nt == RF and rt == (0 if RF == 3 else 1):
                    lg.wait(("a", s, 3))
                    for ks in (2 * s, 2 * s + 1):
                        if ks + 6 < 32: gemm_dma6(A, vm, ks + 6, srd, voff, rowstride)
                        elif tail: tail(ks)
                acc = V_ACC + (nt * 4 + rt) * 4
                c = "0" if s == 0 else f"v[{acc}:{acc+3}]"
                A(f"v_mfma_f32_16x16x32_bf16 v[{acc}:{acc+3}], v[{buf+4*nt}:{buf+4*nt+3}], v[{buf+16+4*rt}:{buf+19+4*rt}], {c}")
                if s + 1 < 16:
                    plan = [{(0, 0): [0], (1, 0): [1, 2], (2, 0): [3], (3, 0): [4]},
                            {(0, 2): [0], (1, 0): [1, 2], (1, 2): [3, 4]},
                            {(1, 0): [0], (1, 2): [1], (2, 0): [2], (2, 2): [3], (3, 0): [4]},
                            {(0, 2): [0], (1, 2): [1, 2], (2, 2): [3, 4]}][SCH]
                    for p in plan.get((nt, rt), []):
                        if p == 1: vm.wait(("w", 2 * s + 3))
                        rd(s + 1, p)
def gemm_dma6(A, vm, step, srd, voff_, rowstride):
    for half in range(2):
        voff = voff_ if not (M16 and half) else V_AADDR2[0 if voff_ == V_WQOFF else 1]
        A(f"s_add_u32 m0, s{S_RB}, {slot6(step) * 16384 + half * 1024}")
        A("s_nop 0")
        A(f"buffer_load_dwordx4 v{voff}, s[{srd}:{srd+3}], s{S_OFF} offen {os.environ.get('WONT', '') if srd == S_WO else ''} lds")
        vm.issue(("w", step))
        A(f"s_add_u32 s{S_OFF}, s{S_OFF}, {8 * rowstride}")
IL6 = int(os.environ.get("IL6", "0"))
def gemm_reads6(A, lg, step):
    buf = V_Q + ((step % 3) if IL6 else (step & 1)) * 16
    sl = slot6(step)
    for nb in range(2):
        for q in range(2):
            a = V_AADDR + nb if sl < 4 else V_AADDR2[nb]
            A(f"ds_read_b64_tr_b16 v[{buf+nb*4+q*2}:{buf+nb*4+q*2+1}], v{a} offset:{(sl & 3) * 16384 + q * 512}")
            lg.issue(("f", step))
    for rb in range(2):
        A(f"ds_read_b128 v[{buf+8+rb*4}:{buf+8+rb*4+3}], v{V_BADDR + (step & 7)} offset:{(step >> 3) * 256 + rb * 32768}")
        lg.issue(("f", step))
def gemm_core6(A, vm, lg, srd, voff, rowstride, pre, tail=None, NS=32, bars=(), hb=None):
    for st in range(pre, 6): gemm_dma6(A, vm, st, srd, voff, rowstride)
    if IL6:
        for s0 in range(2):
            vm.wait(("w", s0)); gemm_reads6(A, lg, s0)
        for ks in range(NS):
            lg.wait(("f", ks))
            sv = A.lines; A.lines = []
            if IL6 == 2:
                if ks + 6 < NS: gemm_dma6(A, vm, ks + 6, srd, voff, rowstride)
                elif tail: tail(ks)
            if ks + 2 < NS:
                vm.wait(("w", ks + 2)); gemm_reads6(A, lg, ks + 2)
            if IL6 == 1:
                if ks + 6 < NS: gemm_dma6(A, vm, ks + 6, srd, voff, rowstride)
                elif tail: tail(ks)
            fill = A.lines; A.lines = sv
            buf = V_Q + (ks % 3) * 16
            k = 0
            for i in range(4):
                nb, rb = i >> 1, i & 1
                acc = V_ACC + (nb * 2 + rb) * 16
                c = "0" if ks == 0 else f"v[{acc}:{acc+15}]"
                A(f"v_mfma_f32_32x32x16_bf16 v[{acc}:{acc+15}], v[{buf+nb*4}:{buf+nb*4+3}], v[{buf+8+rb*4}:{buf+8+rb*4+3}], {c}")
                upto = (len(fill) * (i + 1) + 3) // 4
                A.lines.extend(fill[k:upto]); k = upto
        return
    vm.wait(("w", 0))
    gemm_reads6(A, lg, 0)
    for ks in range(NS):
        if ks + 1 < NS:
            vm.wait(("w", ks + 1))
            gemm_reads6(A, lg, ks + 1)
        lg.wait(("f", ks))
        if ks + 6 < NS:
            gemm_dma6(A, vm, ks + 6, srd, voff, rowstride)
        elif tail: tail(ks)
        if ks in bars: A("s_barrier")
        if hb is not None and ks == hb:
            assert hb >= 26 and slot6(hb) >= 4
            A(f"s_add_u32 s{S_TMP}, s{S_RB}, {slot6(hb) * 16384}")
            A(f"v_mov_b32 v58, s{S_TMP}")
            A("v_mov_b32 v60, s100")
            A("v_mov_b32 v61, s101")
            A("ds_write_b64 v58, v[60:61]")
        buf = V_Q + (ks & 1) * 16
        SNK = int(os.environ.get("SNK", "0"))
        for nb, rb in (((0,0),(0,1),(1,0),(1,1)), ((0,0),(0,1),(1,1),(1,0)), ((0,0),(1,0),(1,1),(0,1)))[SNK]:
            if True:
                acc = V_ACC + (nb * 2 + rb) * 16
                c = "0" if ks == 0 else f"v[{acc}:{acc+15}]"
                if EXPT & 1024:
                    for hh in range(2):
                        a4 = acc + (ks & 1) * 8 + hh * 4
                        c4 = "0" if ks < 2 else f"v[{a4}:{a4+3}]"
                        A(f"v_mfma_f32_16x16x32_bf16 v[{a4}:{a4+3}], v[{buf+(nb^hh)*4}:{buf+(nb^hh)*4+3}], v[{buf+8+rb*4}:{buf+8+rb*4+3}], {c4}")
                    continue
                A(f"v_mfma_f32_32x32x16_bf16 v[{acc}:{acc+15}], v[{buf+nb*4}:{buf+nb*4+3}], v[{buf+8+rb*4}:{buf+8+rb*4+3}], {c}")

def k_dma(A, vm, t):
    A(f"s_mov_b32 s{S_KVOFF}, {t * 16384}")
    A(f"s_add_u32 m0, s{S_KVM0}, {KRING + ((t + 1) % 3) * 16384}")
    A("s_nop 0")
    A(f"buffer_load_dwordx4 v{V_KOFF}, s[{S_K}:{S_K+3}], s{S_KVOFF} offen lds")
    vm.issue(("k", t))
    A(f"buffer_load_dwordx4 v{V_KOFF+1}, s[{S_K}:{S_K+3}], s{S_KVOFF} offen offset:1024 lds")
    vm.issue(("k", t))
def v_dma(A, vm, t):
    A(f"s_mov_b32 s{S_KVOFF}, {t * 16384}")
    A(f"s_add_u32 m0, s{S_KVM0}, {VRING + (t % 3) * 16384}")
    A("s_nop 0")
    A(f"buffer_load_dwordx4 v{V_VOFF}, s[{S_V}:{S_V+3}], s{S_KVOFF} offen lds")
    vm.issue(("v", t))
    A(f"buffer_load_dwordx4 v{V_VOFF}, s[{S_V}:{S_V+3}], s{S_KVOFF} offen offset:1024 lds")
    vm.issue(("v", t))

def sm_max(t):
    S = V_S + (t & 1) * 32
    mx = 2 if CT else V_T
    L = []
    if NOMAX and t > 0: return []
    L.append(f"v_max3_f32 v{mx}, v{S}, v{S+1}, v{S+2}")
    L.append(f"v_max3_f32 v{mx+1}, v{S+3}, v{S+4}, v{S+5}")
    for i in range(6, 30, 4):
        L.append(f"v_max3_f32 v{mx}, v{mx}, v{S+i}, v{S+i+1}")
        L.append(f"v_max3_f32 v{mx+1}, v{mx+1}, v{S+i+2}, v{S+i+3}")
    L.append(f"v_max3_f32 v{mx}, v{mx}, v{S+30}, v{S+31}")
    L.append(f"v_max_f32 v{mx}, v{mx}, v{mx+1}")
    L.append(f"v_mov_b32 v{mx+1}, v{mx}")
    L.append("s_nop 1")
    L.append(f"v_permlane32_swap_b32 v{mx}, v{mx+1}")
    L.append("s_nop 1")
    L.append(f"v_max_f32 v{mx}, v{mx}, v{mx+1}")
    g, d = mx + 1, mx + 2
    if CT:
        if t == 0:
            if ZB: L.append(f"v_add_f32 v{mx}, {fhex(ZB)}, v{mx}")
            for i in range(16): L.append(f"v_sub_f32 v{V_NB+i}, 0, v{mx}")
            for i in range(32): L.append(f"v_sub_f32 v{S+i}, v{S+i}, v{mx}")
            return L
        lbl = f".Lk1_nors_{t}"
        L.append(f"v_cmp_lt_f32 vcc, {fhex(THR - ZB)}, v{mx}")
        L.append(f"s_mov_b64 s[{S_FLAG}:{S_FLAG+1}], vcc")
        L.append([f"s_cbranch_vccz {lbl}"] + ([f"v_add_f32 v{mx}, {fhex(ZB)}, v{mx}"] if ZB else []) + [
                  f"v_max_f32 v{mx}, 0, v{mx}",
                  f"v_sub_f32 v{V_ALPHA}, 0, v{mx}",
                  f"v_exp_f32 v{V_ALPHA}, v{V_ALPHA}"]
                 + [f"v_sub_f32 v{V_NB+i}, v{V_NB+i}, v{mx}" for i in range(16)]
                 + [f"v_sub_f32 v{S+i}, v{S+i}, v{mx}" for i in range(32)]
                 + ([] if LM else [f"v_mul_f32 v{V_L}, v{V_L}, v{V_ALPHA}"]) + [f"{lbl}:"])
        return L
    if MIMIC:
        L.append(f"v_mul_f32 v{g}, s{S_C1}, v{mx}")
        L.append(f"v_sub_f32 v{d}, v{mx}, v{g}")
        L.append(f"v_add_f32 v{mx}, v{g}, v{d}")
        L.append(f"v_mul_f32 v{g}, s{S_K2}, v{mx}")
        L.append(f"v_fma_f32 v{d}, v{mx}, s{S_SC}, -v{g}")
        L.append(f"v_add_f32 v{mx}, v{g}, v{d}")
    else:
        L.append(f"v_mul_f32 v{mx}, s{S_SC}, v{mx}")
    if LAZY and t > 0:
        lbl = f".Lk1_nors_{t}"
        L.append(f"v_sub_f32 v{V_ALPHA}, v{V_M}, v{mx}")
        L.append(f"v_cmp_gt_f32 vcc, {fhex(-THR / LOG2E)}, v{V_ALPHA}")
        L.append(f"s_mov_b64 s[{S_FLAG}:{S_FLAG+1}], vcc")
        L.append([f"s_cbranch_vccz {lbl}",
                  f"v_max_f32 v{mx}, v{mx}, v{V_M}",
                  f"v_sub_f32 v{V_ALPHA}, v{V_M}, v{mx}",
                  f"v_mul_f32 v{V_ALPHA}, s{S_L2E}, v{V_ALPHA}",
                  f"v_exp_f32 v{V_ALPHA}, v{V_ALPHA}",
                  f"v_mov_b32 v{V_M}, v{mx}",
                  f"v_mul_f32 v{V_NEGC}, s{S_L2E}, v{mx}",
                  f"v_sub_f32 v{V_NEGC}, 0, v{V_NEGC}",
                  f"v_mul_f32 v{V_L}, v{V_L}, v{V_ALPHA}",
                  f"{lbl}:"])
        return L
    if t > 0:
        L.append(f"v_max_f32 v{mx}, v{mx}, v{V_M}")
        L.append(f"v_sub_f32 v{V_ALPHA}, v{V_M}, v{mx}")
        L.append(f"v_mul_f32 v{V_ALPHA}, s{S_L2E}, v{V_ALPHA}")
        L.append(f"v_exp_f32 v{V_ALPHA}, v{V_ALPHA}")
    L.append(f"v_mov_b32 v{V_M}, v{mx}")
    L.append(f"v_mul_f32 v{V_NEGC}, s{S_L2E}, v{mx}")
    L.append(f"v_sub_f32 v{V_NEGC}, 0, v{V_NEGC}")
    return L

PSUM = 10
def sm_quarter(t, q):
    S = V_S + (t & 1) * 32
    L = []
    pairs = list(range(8 * q, 8 * q + 8, 2))
    def pre(i):
        x = f"v[{S+i}:{S+i+1}]"
        k = (i >> 1) & 1
        g = f"v[{2+4*k}:{3+4*k}]"; d = f"v[{4+4*k}:{5+4*k}]"
        if CT:
            return []
        if not USEPK:
            out = []
            xs = [S + i, S + i + 1]; gs = [2 + 4 * k, 3 + 4 * k]; ds = [4 + 4 * k, 5 + 4 * k]
            if MIMIC:
                for op in range(7):
                    for e in range(2):
                        x_, g_, d_ = xs[e], gs[e], ds[e]
                        out.append([f"v_mul_f32 v{g_}, s{S_C1}, v{x_}",
                                    f"v_sub_f32 v{d_}, v{x_}, v{g_}",
                                    f"v_add_f32 v{x_}, v{g_}, v{d_}",
                                    f"v_mul_f32 v{g_}, s{S_K2}, v{x_}",
                                    f"v_fma_f32 v{d_}, v{x_}, s{S_SC}, -v{g_}",
                                    f"v_add_f32 v{x_}, v{g_}, v{d_}",
                                    f"v_fma_f32 v{x_}, v{x_}, s{S_L2E}, v{V_NEGC}"][op])
            else:
                for e in range(2):
                    out.append(f"v_fma_f32 v{xs[e]}, v{xs[e]}, s{S_SL}, v{V_NEGC}")
            return out
        if MIMIC:
            return [f"v_pk_mul_f32 {g}, {x}, s[{S_C1}:{S_C1+1}]",
                    f"v_pk_add_f32 {d}, {x}, {g} neg_lo:[0,1] neg_hi:[0,1]",
                    f"v_pk_add_f32 {x}, {g}, {d}",
                    f"v_pk_mul_f32 {g}, {x}, s[{S_K2}:{S_K2+1}]",
                    f"v_pk_fma_f32 {d}, {x}, s[{S_SC}:{S_SC+1}], {g} neg_lo:[0,0,1] neg_hi:[0,0,1]",
                    f"v_pk_add_f32 {x}, {g}, {d}",
                    f"v_pk_fma_f32 {x}, {x}, s[{S_L2E}:{S_L2E+1}], v[{V_NEGC}:{V_NEGC+1}] op_sel_hi:[1,1,0]"]
        return [f"v_pk_mul_f32 {x}, {x}, s[{S_SC}:{S_SC+1}]",
                f"v_pk_fma_f32 {x}, {x}, s[{S_L2E}:{S_L2E+1}], v[{V_NEGC}:{V_NEGC+1}] op_sel_hi:[1,1,0]"]
    for a in range(0, 4, 2):
        p0, p1 = pre(pairs[a]), pre(pairs[a + 1])
        for x, y in zip(p0, p1):
            L += [x, y]
        for i in (pairs[a], pairs[a + 1]):
            L.append(f"v_exp_f32 v{S+i}, v{S+i}")
            L.append(f"v_exp_f32 v{S+i+1}, v{S+i+1}")
    L.append("s_nop 0")
    for i in pairs:
        if DOT2 or LM:
            L.append(f"v_cvt_pk_bf16_f32 v{S + i // 2}, v{S+i}, v{S+i+1}")
            continue
        if i == 0:
            L.append(f"v_mov_b32 v{PSUM}, v{S}")
            L.append(f"v_mov_b32 v{PSUM+1}, v{S+1}")
        elif USEPK:
            L.append(f"v_pk_add_f32 v[{PSUM}:{PSUM+1}], v[{PSUM}:{PSUM+1}], v[{S+i}:{S+i+1}]")
        else:
            L.append(f"v_add_f32 v{PSUM}, v{PSUM}, v{S+i}")
            L.append(f"v_add_f32 v{PSUM+1}, v{PSUM+1}, v{S+i+1}")
        L.append(f"v_cvt_pk_bf16_f32 v{S + i // 2}, v{S+i}, v{S+i+1}")
    if DOT2:
        for i in pairs:
            a = PSUM + ((i >> 1) & 1)
            if DOT2 == 1: L.append(f"v_dot2c_f32_bf16 v{a}, v{S + i // 2}, v14")
            else: L.append(f"v_dot2_f32_bf16 v{a}, v{S + i // 2}, v14, v{a}")
    if EXPT & 1: L = [x for x in L if not x.startswith("v_exp")]
    if EXPT & 2: L = [x for x in L if x.startswith("v_exp") or x.startswith("s_nop")]
    return L

def sm_rescale(t):
    if t == 0 or NOMAX: return []
    if LAZY:
        lbl = f".Lk1_nors2_{t}"
        return [[f"s_cmp_eq_u64 s[{S_FLAG}:{S_FLAG+1}], 0", f"s_cbranch_scc1 {lbl}"] + [f"v_mul_f32 v{V_ACC+i}, v{V_ALPHA}, v{V_ACC+i}" for i in range(64)] + ([f"v_mul_f32 v4, v{V_ALPHA}, v4"] if LM else []) + [f"{lbl}:"]]
    if not USEPK:
        return [f"v_mul_f32 v{V_ACC+i}, v{V_ALPHA}, v{V_ACC+i}" for i in range(64)]
    return [f"v_pk_mul_f32 v[{V_ACC+i}:{V_ACC+i+1}], v[{V_ACC+i}:{V_ACC+i+1}], v[{V_ALPHA}:{V_ALPHA+1}] op_sel_hi:[1,0]" for i in range(0, 64, 2)]

def sm_lupd(t):
    if DOT2 or LM: return []
    L = [f"v_add_f32 v{PSUM}, v{PSUM}, v{PSUM+1}"]
    if t == 0:
        L.append(f"v_mov_b32 v{V_L}, v{PSUM}")
    elif LAZY:
        L.append(f"v_add_f32 v{V_L}, v{V_L}, v{PSUM}")
    else:
        L.append(f"v_fma_f32 v{V_L}, v{V_L}, v{V_ALPHA}, v{PSUM}")
    return L

def gen_k1(A, emb=False, pre=None, hookA=None, hookB=None, kname="k1_kernel", v2=False, hookC=None, hookD=None):
    name = kname
    vm = Cnt(A, "vmcnt", 63); lg = Cnt(A, "lgkmcnt", 15)
    stamp = Stamper(A, lg, S_DBG, S_WAVE)
    kernel_header(A, name)
    A("s_cmp_lt_u32 s2, 256")
    A("s_cbranch_scc1 .Lk1_go")
    A("s_endpgm")
    A.label(".Lk1_go")
    if pre: pre()
    A("s_load_dwordx4 s[60:63], s[0:1], 8")
    A("s_load_dwordx4 s[64:67], s[0:1], 24")
    A("s_load_dwordx2 s[68:69], s[0:1], 112")
    A("s_load_dwordx8 s[92:99], s[0:1], 48")
    A(f"v_and_b32 v{V_LANE}, 63, v0")
    A("v_lshrrev_b32 v2, 6, v0")
    A("s_nop 0")
    A(f"v_readfirstlane_b32 s{S_WAVE}, v2")
    KM = int(os.environ.get("K1MAP","4"))
    if KM == 1:
        A(f"s_lshr_b32 s{S_G}, s2, 5")
        A(f"s_and_b32 s{S_M}, s2, 31")
    elif KM == 4:
        A(f"s_and_b32 s{S_G}, s2, 6")
        A(f"s_lshr_b32 s{S_M}, s2, 7")
        A(f"s_or_b32 s{S_G}, s{S_G}, s{S_M}")
        A(f"s_bfe_u32 s{S_M}, s2, 0x40003")
        A(f"s_lshl_b32 s{S_M}, s{S_M}, 1")
        A(f"s_and_b32 s{S_TMP}, s2, 1")
        A(f"s_or_b32 s{S_M}, s{S_M}, s{S_TMP}")
    elif KM == 5:
        A(f"s_and_b32 s{S_G}, s2, 4")
        A(f"s_lshr_b32 s{S_M}, s2, 6")
        A(f"s_or_b32 s{S_G}, s{S_G}, s{S_M}")
        A(f"s_bfe_u32 s{S_M}, s2, 0x30003")
        A(f"s_lshl_b32 s{S_M}, s{S_M}, 2")
        A(f"s_and_b32 s{S_TMP}, s2, 3")
        A(f"s_or_b32 s{S_M}, s{S_M}, s{S_TMP}")
    elif KM == 0:
        A(f"s_and_b32 s{S_G}, s2, 7")
        A(f"s_lshr_b32 s{S_M}, s2, 3")
    else:
        nb_ = KM - 1
        A(f"s_and_b32 s{S_G}, s2, {(1 << nb_) - 1}")
        A(f"s_lshr_b32 s{S_M}, s2, {5 + nb_}")
        A(f"s_lshl_b32 s{S_M}, s{S_M}, {nb_}")
        A(f"s_or_b32 s{S_G}, s{S_G}, s{S_M}")
        A(f"s_bfe_u32 s{S_M}, s2, {hex((5 << 16) | nb_)}")
    A(f"s_mov_b32 s{S_MASK}, 0xffff0000")
    for (s, val) in (() if P4 else ((S_C1, 65537.0), (S_K2, 65537.0 * SCALE), (S_SC, SCALE), (S_L2E, LOG2E))):
        A(f"s_mov_b32 s{s}, {fhex(val)}")
        A(f"s_mov_b32 s{s+1}, {fhex(val)}")
    L = V_LANE
    SM = f"s{S_MASK}"
    D = 4
    EARLYA = v2 and int(os.environ.get("EARLYA", "1"))
    if EARLYA:
        A(f"v_lshlrev_b32 v12, 4, v{L}")
        hookA()
    A(f"v_lshrrev_b32 v5, 3, v{L}")
    A(f"v_and_b32 v6, 7, v{L}")
    A("v_lshlrev_b32 v7, 1, v5")
    A("v_and_b32 v7, 4, v7")
    A("v_xor_b32 v6, v6, v7")
    A("v_lshlrev_b32 v6, 4, v6")
    A(f"v_lshl_add_u32 v{V_WQOFF}, v5, 13, v6")
    A(f"v_lshl_add_u32 v{V_WOOFF}, v5, 10, v6")
    A(f"s_lshl_b32 s{S_RB}, s{S_WAVE}, {11 if D6 else 13}")
    A(f"s_add_u32 s{S_RB}, s{S_RB}, {STG}")
    A(f"s_lshl_b32 s{S_OFF}, s{S_G}, 10")
    A(f"s_lshl_b32 s{S_TMP}, s{S_WAVE}, 7")
    A(f"s_add_u32 s{S_OFF}, s{S_OFF}, s{S_TMP}")
    if P4:
        assert D6 and not M16
        A(f"v_lshrrev_b32 v5, 4, v{L}")
        A(f"v_and_b32 v6, 15, v{L}")
        A(f"s_lshl_b32 s{S_TMP}, s{S_WAVE}, 3")
        A(f"v_add_u32 v7, s{S_TMP}, v5")
        A(f"v_xor_b32 v9, v7, v{L}")
        A("v_and_b32 v9, 15, v9")
        A("v_lshlrev_b32 v9, 4, v9")
        A(f"v_lshl_add_u32 v{V_KOFF}, v7, 8, v9")
        A(f"v_xor_b32 v{V_KOFF+1}, 64, v{V_KOFF}")
        A("v_lshlrev_b32 v9, 2, v5")
        A("v_xor_b32 v9, v6, v9")
        A("v_lshlrev_b32 v9, 4, v9")
        A(f"v_lshl_add_u32 v{V_VOFF}, v7, 8, v9")
        A(f"s_lshl_b32 s{S_KVM0}, s{S_WAVE}, 11")
        A(f"v_lshrrev_b32 v5, 5, v{L}")
        A(f"v_bfe_u32 v6, v{L}, 4, 1")
        A(f"v_bfe_u32 v7, v{L}, 2, 2")
        A(f"v_and_b32 v8, 1, v{L}")
        A(f"v_bfe_u32 v9, v{L}, 1, 1")
        A("v_lshl_or_b32 v8, v8, 1, v9")
        A("v_lshlrev_b32 v8, 3, v8")
        A("v_lshl_add_u32 v8, v6, 5, v8")
        A("v_lshl_add_u32 v10, v5, 3, v7")
        A("v_lshrrev_b32 v11, 1, v7")
        A("v_lshl_add_u32 v9, v11, 6, v8")
        A("v_lshl_add_u32 v9, v10, 7, v9")
        A(f"v_add_u32 v{V_AADDR}, s{S_RB}, v9")
        A(f"v_xor_b32 v{V_AADDR+1}, 64, v{V_AADDR}")
        for nb in range(2): A(f"v_add_u32 v{V_AADDR2[nb]}, 65536, v{V_AADDR+nb}")
        A("v_lshl_add_u32 v9, v7, 6, v8")
        A("v_lshl_add_u32 v9, v10, 8, v9")
        A(f"v_add_u32 v{V_VADDR}, {VRING}, v9")
        for db in range(1, 4): A(f"v_xor_b32 v{V_VADDR+db}, {db << 6}, v{V_VADDR}")
        A(f"v_and_b32 v6, 31, v{L}")
        A("v_xor_b32 v7, v5, v6")
        A("v_and_b32 v7, 15, v7")
        A("v_lshlrev_b32 v7, 4, v7")
        A(f"v_lshl_add_u32 v{V_BADDR}, v6, 10, v7")
        for j in range(1, 8): A(f"v_xor_b32 v{V_BADDR+j}, {j << 5}, v{V_BADDR}")
        A("v_and_b32 v7, 0x13, v6")
        A("v_bfe_u32 v8, v6, 2, 1")
        A("v_lshl_or_b32 v7, v8, 3, v7")
        A("v_bfe_u32 v8, v6, 3, 1")
        A("v_lshl_or_b32 v7, v8, 2, v7")
        A("v_xor_b32 v8, v5, v7")
        A("v_and_b32 v8, 15, v8")
        A("v_lshlrev_b32 v8, 4, v8")
        A("v_lshl_add_u32 v8, v7, 8, v8")
        A(f"v_add_u32 v{V_KADDR}, {KRING}, v8")
        for j in range(1, 8): A(f"v_xor_b32 v{V_KADDR+j}, {j << 5}, v{V_KADDR}")
        A(f"v_and_b32 v14, 48, v{L}")
        A(f"v_xor_b32 v15, s71, v{L}")
        A("v_and_or_b32 v15, v15, 15, v14")
        A("v_lshlrev_b32 v15, 4, v15")
        A(f"s_lshl_b32 s{S_TMP+1}, s71, 10")
        A(f"v_add_u32 v{V_QADDR}, s{S_TMP+1}, v15")
        for i in range(1, 8): A(f"v_xor_b32 v{V_QADDR+i}, {i * 1040}, v{V_QADDR}")
        A(f"v_lshlrev_b32 v13, 5, v{L}")
        A(f"v_mov_b32 v{V_K10}, 0x3f80")
        A(f"v_mov_b32 v{V_K01}, 1.0")
    else:
        A(f"v_lshrrev_b32 v5, 4, v{L}")
        A(f"v_and_b32 v6, 15, v{L}")
        A(f"s_lshl_b32 s{S_TMP}, s{S_WAVE}, 3")
        A(f"v_add_u32 v7, s{S_TMP}, v5")
        for j in range(2):
            A(f"v_add_u32 v8, {4*j}, v7")
            A("v_and_b32 v9, 15, v8")
            A("v_xor_b32 v9, v6, v9")
            A("v_lshlrev_b32 v9, 4, v9")
            A(f"v_lshl_add_u32 v{V_KOFF+j}, v7, 8, v9")
        A("v_lshlrev_b32 v9, 2, v5")
        A("v_xor_b32 v9, v6, v9")
        A("v_lshlrev_b32 v9, 4, v9")
        A(f"v_lshl_add_u32 v{V_VOFF}, v7, 8, v9")
        A(f"s_lshl_b32 s{S_KVM0}, s{S_WAVE}, 11")
        A(f"v_lshrrev_b32 v5, 5, v{L}")
        A(f"v_bfe_u32 v6, v{L}, 4, 1")
        A(f"v_bfe_u32 v7, v{L}, 2, 2")
        A(f"v_and_b32 v8, 1, v{L}")
        A(f"v_bfe_u32 v9, v{L}, 1, 1")
        A("v_lshl_or_b32 v8, v8, 1, v9")
        A("v_lshlrev_b32 v8, 3, v8")
        A("v_lshl_add_u32 v8, v6, 5, v8")
        A("v_lshl_add_u32 v10, v5, 3, v7")
        A("v_lshrrev_b32 v11, 1, v7")
        for nb in range(2):
            A(f"v_xor_b32 v12, {nb}, v11")
            A("v_lshl_add_u32 v12, v12, 6, v8")
            A("v_lshl_add_u32 v12, v10, 7, v12")
            A(f"v_add_u32 v{V_AADDR+nb}, s{S_RB}, v12")
            if M16: A(f"v_xor_b32 v{V_AADDR2[nb]}, 32, v{(V_WQOFF, V_WOOFF)[nb]}")
            elif D6: A(f"v_add_u32 v{V_AADDR2[nb]}, 65536, v{V_AADDR+nb}")
        for db in range(4):
            A(f"v_xor_b32 v12, {db}, v7")
            A("v_lshl_add_u32 v12, v12, 6, v8")
            A(f"v_lshl_add_u32 v12, v10, 8, v12")
            A(f"v_add_u32 v{V_VADDR+db}, {VRING}, v12")
        A(f"v_and_b32 v6, 31, v{L}")
        for j in range(8):
            A(f"v_or_b32 v7, {2*j}, v5")
            A("v_xor_b32 v7, v7, v6")
            A("v_and_b32 v7, 15, v7")
            A("v_lshlrev_b32 v7, 4, v7")
            A(f"v_lshl_add_u32 v{V_BADDR+j}, v6, 10, v7")
        A("v_and_b32 v7, 0x13, v6")
        A("v_bfe_u32 v8, v6, 2, 1")
        A("v_lshl_or_b32 v7, v8, 3, v7")
        A("v_bfe_u32 v8, v6, 3, 1")
        A("v_lshl_or_b32 v7, v8, 2, v7")
        for j in range(8):
            A(f"v_or_b32 v8, {2*j}, v5")
            A("v_xor_b32 v8, v8, v7")
            A("v_and_b32 v8, 15, v8")
            A("v_lshlrev_b32 v8, 4, v8")
            A(f"v_lshl_add_u32 v8, v7, 8, v8")
            A(f"v_add_u32 v{V_KADDR+j}, {KRING}, v8")
        A(f"s_lshl_b32 s{S_TMP}, s{S_WAVE}, 3")
        A(f"v_and_b32 v14, 48, v{L}")
        for i in range(8):
            A(f"s_add_u32 s{S_TMP+1}, s{S_TMP}, {i}")
            A(f"v_xor_b32 v15, s{S_TMP+1}, v{L}")
            A("v_and_or_b32 v15, v15, 15, v14")
            A("v_lshlrev_b32 v15, 4, v15")
            A(f"s_lshl_b32 s{S_TMP+1}, s{S_TMP+1}, 10")
            A(f"v_add_u32 v{V_QADDR+i}, s{S_TMP+1}, v15")
        A(f"s_lshl_b32 s{S_TMP}, s{S_M}, 16")
        A(f"s_lshl_b32 s{S_TMP+1}, s{S_WAVE}, 13")
        A(f"s_add_u32 s{S_TMP}, s{S_TMP}, s{S_TMP+1}")
        A(f"s_add_u32 s{S_TMP+1}, s{S_TMP}, 4096")
        A(f"v_lshlrev_b32 v12, 4, v{L}")
        A(f"v_lshlrev_b32 v13, 5, v{L}")
        A("s_waitcnt lgkmcnt(0)")
        make_srd(A, S_XN, 68, WS_XN, 2 * MB)
        make_srd(A, S_MOD, 68, WS_MOD, 3072 * 4)
    XR = V_S
    SA = V_S + 32; CA = V_S + 40
    def p0_loads():
        A(f"buffer_load_dwordx4 v[{CA}:{CA+3}], v13, s[{S_MOD}:{S_MOD+3}], 0 offen offset:2048"); vm.issue("mod")
        A(f"buffer_load_dwordx4 v[{CA+4}:{CA+7}], v13, s[{S_MOD}:{S_MOD+3}], 0 offen offset:2064"); vm.issue("mod")
        A(f"buffer_load_dwordx4 v[{SA}:{SA+3}], v13, s[{S_MOD}:{S_MOD+3}], 0 offen"); vm.issue("mod")
        A(f"buffer_load_dwordx4 v[{SA+4}:{SA+7}], v13, s[{S_MOD}:{S_MOD+3}], 0 offen offset:16"); vm.issue("mod")
        for i in range(8):
            A(f"buffer_load_dwordx4 v[{XR+4*i}:{XR+4*i+3}], v12, s[{S_XN}:{S_XN+3}], s{S_TMP + (i >> 2)} offen offset:{(i & 3) * 1024}")
            vm.issue(("x", i))
    if EARLYA: pass
    elif hookA: hookA()
    else: p0_loads()
    make_srd(A, S_WQ, 64, 0, 4 * MB)
    if hookB: pass
    elif D6: gemm_dma6(A, vm, 0, S_WQ, V_WQOFF, 8192)
    else: gemm_dma(A, vm, 0, S_WQ, V_WQOFF, 8192, D)
    A(f"s_lshl_b32 s{S_TMP}, s{S_G}, 19")
    A(f"s_add_u32 s{S_TMP+1}, s{S_TMP}, {1536 * 256}")
    make_srd(A, S_K, 60, f"s{S_TMP+1}", 512 * 256)
    make_srd(A, S_V, 62, f"s{S_TMP+1}", 512 * 256)
    make_srd(A, S_WO, 66, f"s{S_TMP}", 512 * 1024)
    psz = 2 if PART_BF16 else 4
    A(f"s_mov_b32 s{S_SL}, {fhex(SCALE*LOG2E)}")
    PL = int(os.environ.get("PL", "1")) and emb
    if PL:
        A(f"s_lshl_b32 s{S_TMP+2}, s{S_M}, 3")
        A(f"s_add_u32 s{S_TMP+2}, s{S_TMP+2}, s{S_G}")
        A(f"s_lshl_b32 s{S_TMP+2}, s{S_TMP+2}, 16")
        A(f"s_add_u32 s{S_TMP+2}, s{S_TMP+2}, {WS_PART}")
        make_srd(A, S_P, 68, f"s{S_TMP+2}", 65536)
    else:
        A(f"s_mul_i32 s{S_TMP+2}, s{S_G}, {2048 * 512 * psz}")
        A(f"s_add_u32 s{S_TMP+2}, s{S_TMP+2}, {WS_PART}")
        make_srd(A, S_P, 68, f"s{S_TMP+2}", 2048 * 512 * psz)
    if DEBUG or TIMING:
        make_srd(A, S_DBG, 68, WS_DBG, 32 * MB)
    stamp(True); stamp()
    SCR = STG + SCRO
    if hookB and v2:
        LDE = int(os.environ.get("LDE", "2"))
        KVL = int(os.environ.get("KVL", "1"))
        def kvpf():
            A(f"v_lshlrev_b32 v5, 7, v{L}")
            A(f"s_lshl_b32 s{S_TMP}, s{S_M}, 12")
            A(f"s_add_u32 s{S_TMP+1}, s{S_TMP}, 4096")
            A(f"s_cmp_lg_u32 s{S_WAVE}, 4")
            A("s_cbranch_scc1 .Lk1_nkv")
            A("s_mov_b32 exec_hi, 0")
            A(f"buffer_load_dword v15, v5, s[{S_K}:{S_K+3}], s{S_TMP} offen")
            A(f"buffer_load_dword v15, v5, s[{S_V}:{S_V+3}], s{S_TMP} offen")
            A("s_mov_b64 exec, -1")
            A.label(".Lk1_nkv")
        def loader():
            for st in range(LDE): gemm_dma6(A, vm, st, S_WQ, V_WQOFF, 8192)
            A(f"s_sub_u32 s{S_RB}, s{S_RB}, 8192")
            A(f"s_sub_u32 s{S_OFF}, s{S_OFF}, {LDE * 16 * 8192 + 512}")
            for st in range(LDE): gemm_dma6(A, vm, st, S_WQ, V_WQOFF, 8192)
            A(f"s_add_u32 s{S_RB}, s{S_RB}, 8192")
            A(f"s_add_u32 s{S_OFF}, s{S_OFF}, 512")
            if not KVL: kvpf()
        def cfix():
            A(f"s_add_u32 s{S_OFF}, s{S_OFF}, {LDE * 16 * 8192}")
        def xn_loads():
            vm.ops = []
            A(f"s_lshl_b32 s{S_TMP}, s{S_M}, 16")
            A(f"s_lshl_b32 s{S_TMP+1}, s{S_WAVE}, 13")
            A(f"s_add_u32 s{S_TMP}, s{S_TMP}, s{S_TMP+1}")
            A(f"s_add_u32 s{S_TMP+1}, s{S_TMP}, 4096")
            for i in range(8):
                A(f"buffer_load_dwordx4 v[{XR+4*i}:{XR+4*i+3}], v12, s[{S_XN}:{S_XN+3}], s{S_TMP + (i >> 2)} offen offset:{(i & 3) * 1024}")
                vm.issue(("x", i))
        def ownfill():
            for st in range(LDE):
                if R7: dma7(A, vm, st)
                else: gemm_dma6(A, vm, st, S_WQ, V_WQOFF, 8192)
        if R7:
            def cfix():
                for st in range(LDE, 5): dma7(A, vm, st)
        hookB(ownfill if int(os.environ.get("MEGA", "7")) >= 6 else loader, cfix, xn_loads)
        lg.ops = []
        A(f"v_add_u32 v2, {SCR + 4096}, v13")
        A(f"ds_read_b128 v[{CA}:{CA+3}], v2 offset:2048")
        A(f"ds_read_b128 v[{CA+4}:{CA+7}], v2 offset:2064")
        A(f"ds_read_b128 v[{SA}:{SA+3}], v2")
        A(f"ds_read_b128 v[{SA+4}:{SA+7}], v2 offset:16")
        A("s_waitcnt lgkmcnt(0)")
    elif hookB:
        def early():
            for st in range(6): gemm_dma6(A, vm, st, S_WQ, V_WQOFF, 8192)
            A(f"s_cmp_lg_u32 s{S_WAVE}, 6")
            A("s_cbranch_scc1 .Lk1_e6")
            A(f"s_add_u32 s{S_RB}, s{S_RB}, 2048")
            A(f"s_sub_u32 s{S_OFF}, s{S_OFF}, {6 * 16 * 8192 - 128}")
            for st in range(6): gemm_dma6(A, vm, st, S_WQ, V_WQOFF, 8192)
            A(f"s_sub_u32 s{S_RB}, s{S_RB}, 2048")
            A(f"s_sub_u32 s{S_OFF}, s{S_OFF}, 128")
            A.label(".Lk1_e6")
            A(f"v_lshlrev_b32 v5, 6, v{L}")
            A(f"s_lshl_b32 s{S_TMP}, s{S_M}, 12")
            A(f"buffer_load_dword v15, v5, s[{S_K}:{S_K+3}], s{S_TMP} offen")
            A(f"buffer_load_dword v15, v5, s[{S_V}:{S_V+3}], s{S_TMP} offen")
        def w7():
            A(f"s_add_u32 s{S_OFF}, s{S_OFF}, {6 * 16 * 8192}")
        hookB(0, early, w7)
        vm.ops = []; lg.ops = []
        A(f"s_lshl_b32 s{S_TMP}, s{S_M}, 16")
        A(f"s_lshl_b32 s{S_TMP+1}, s{S_WAVE}, 13")
        A(f"s_add_u32 s{S_TMP}, s{S_TMP}, s{S_TMP+1}")
        A(f"s_add_u32 s{S_TMP+1}, s{S_TMP}, 4096")
        p0_loads()
    vm.wait("mod")
    for j in range(0, 8 if not v2 else 0, 2):
        A(f"v_add_f32 v{CA+j}, 1.0, v{CA+j}")
        A(f"v_add_f32 v{CA+j+1}, 1.0, v{CA+j+1}")
        round_bf16_2(A, CA + j, CA + j + 1, V_T, SM)
    for i in range(8 if P4 else 0):
        x = XR + 4 * i; T = 64 + 16 * (i & 1)
        for j in range(8): A(f"v_dot2_f32_bf16 v{T+j}, v{x+j//2}, v{CA+j}, 0")
        for j in range(4): A(f"v_cvt_pk_bf16_f32 v{x+j}, v{T+2*j}, v{T+2*j+1}")
        for j in range(8): A(f"v_dot2_f32_bf16 v{T+8+j}, v{x+j//2}, v{(V_K10, V_K01)[j & 1]}, v{SA+j}")
        for j in range(4): A(f"v_cvt_pk_bf16_f32 v{x+j}, v{T+8+2*j}, v{T+8+2*j+1}")
        A(f"ds_write_b128 v{V_QADDR+i}, v[{x}:{x+3}]")
        lg.issue("hw")
        if R7:
            R7O = int(os.environ.get("R7O", "0"))
            j = i - R7O
            if 1 <= j <= 5:
                lg.wait(("w5", j - 1)); dma7(A, vm, j + 4)
            if 0 <= j < 5:
                vm.wait(("w", j)); wreads7(A, lg, j)
        elif LDE + i < 5: gemm_dma6(A, vm, LDE + i, S_WQ, V_WQOFF, 8192)
    for i in range(0 if P4 else 8):
        x = XR + 4 * i
        vm.wait(("x", i))
        for j in range(4):
            a = 2 + 2 * j
            A(f"v_lshlrev_b32 v{a}, 16, v{x+j}")
            A(f"v_and_b32 v{a+1}, {SM}, v{x+j}")
        for j in range(0, 8, 2):
            A(f"v_pk_mul_f32 v[{2+j}:{3+j}], v[{2+j}:{3+j}], v[{CA+j}:{CA+j+1}]")
        for j in range(4):
            a = 2 + 2 * j
            A(f"v_cvt_pk_bf16_f32 v{x+j}, v{a}, v{a+1}")
        for j in range(4):
            a = 2 + 2 * j
            A(f"v_lshlrev_b32 v{a}, 16, v{x+j}")
            A(f"v_and_b32 v{a+1}, {SM}, v{x+j}")
        for j in range(0, 8, 2):
            A(f"v_pk_add_f32 v[{2+j}:{3+j}], v[{2+j}:{3+j}], v[{SA+j}:{SA+j+1}]")
        for j in range(4):
            a = 2 + 2 * j
            A(f"v_cvt_pk_bf16_f32 v{x+j}, v{a}, v{a+1}")
        A(f"ds_write_b128 v{V_QADDR+i}, v[{x}:{x+3}]")
        lg.issue("hw")
        if hookB and v2:
            if LDE + i < 5: gemm_dma6(A, vm, LDE + i, S_WQ, V_WQOFF, 8192)
        elif hookB: pass
        elif D6:
            if i in (1, 3, 5, 6, 7): gemm_dma6(A, vm, {1: 1, 3: 2, 5: 3, 6: 4, 7: 5}[i], S_WQ, V_WQOFF, 8192)
        elif i in (1, 3, 5):
            gemm_dma(A, vm, (i + 1) // 2, S_WQ, V_WQOFF, 8192, D)
    if not D6:
        k_dma(A, vm, 0)
        k_dma(A, vm, 1)
    if PREFETCH and not hookB:
        A(f"v_lshlrev_b32 v5, 6, v{L}")
        A(f"s_lshl_b32 s{S_TMP}, s{S_M}, 12")
        A(f"buffer_load_dword v15, v5, s[{S_K}:{S_K+3}], s{S_TMP} offen"); vm.issue("pf")
        A(f"buffer_load_dword v15, v5, s[{S_V}:{S_V+3}], s{S_TMP} offen"); vm.issue("pf")
    if hookC:
        if KVL: kvpf()
        hookC()
    if M16: addr16(A)
    lg.waitall()
    stamp()
    A("s_barrier")
    stamp()
    if D6:
        def tail1(ks):
            if ks == 26: k_dma(A, vm, 0)
            if ks == 27: k_dma(A, vm, 1)
            if ks == 28: v_dma(A, vm, 0)
            if ks == 29: v_dma(A, vm, 1)
            if ks == 31: k_dma(A, vm, 2)
        if R7: gemm_core7(A, vm, lg, tail1)
        elif M16: gemm_core16(A, vm, lg, S_WQ, V_WQOFF, 8192, 5 if v2 else 6, tail1)
        else: gemm_core6(A, vm, lg, S_WQ, V_WQOFF, 8192, 5 if v2 else 6, tail1, bars=eval(os.environ.get('B1', '()')))
    else:
        gemm_core(A, vm, lg, S_WQ, V_WQOFF, 8192, D)
    stamp()
    A("s_barrier")
    if not D6:
        v_dma(A, vm, 0)
        k_dma(A, vm, 2)
        v_dma(A, vm, 1)
    A(f"s_and_b32 s{S_TMP}, s{S_WAVE}, 1")
    A(f"s_lshr_b32 s{S_TMP+1}, s{S_WAVE}, 1")
    A(f"s_lshl_b32 s{S_TMP+1}, s{S_TMP+1}, 8")
    A(f"s_cmp_eq_u32 s{S_TMP}, 1")
    A(f"s_cselect_b64 vcc, -1, 0")
    A(f"v_mov_b32 v{V_ALPHA}, s{S_SL}")
    if M16:
        A(f"v_lshrrev_b32 v6, 5, v{L}")
        A(f"v_and_b32 v7, 15, v{L}")
        A(f"s_lshl_b32 s{S_TMP}, s{S_TMP}, 3")
        A(f"v_or_b32 v6, s{S_TMP}, v6")
        A("v_xor_b32 v6, v6, v7")
        A(f"v_bfe_u32 v8, v{L}, 4, 1")
        A("v_lshlrev_b32 v8, 3, v8")
        A("v_lshl_add_u32 v8, v7, 10, v8")
        A(f"v_add_u32 v8, s{S_TMP+1}, v8")
        for nt in range(4):
            A(f"v_xor_b32 v9, {2*nt}, v6")
            A(f"v_lshl_add_u32 v{2+nt}, v9, 4, v8")
        for nt in range(4):
            for rt in range(4):
                acc = V_ACC + (nt * 4 + rt) * 4
                d = V_S + (nt * 4 + rt) * 2
                for e in range(0, 4, 2):
                    A(f"v_pk_mul_f32 v[{acc+e}:{acc+e+1}], v[{acc+e}:{acc+e+1}], v[{V_ALPHA}:{V_ALPHA+1}] op_sel_hi:[1,0]")
                for e in range(2):
                    A(f"v_cvt_pk_bf16_f32 v{d+e}, v{acc+2*e}, v{acc+2*e+1}")
                A(f"ds_write_b64 v{2+nt}, v[{d}:{d+1}] offset:{rt*16384}")
                lg.issue("qw")
    else:
        for j in range(4):
            A(f"v_cndmask_b32 v{2+j}, v{V_BADDR+j}, v{V_BADDR+4+j}, vcc")
            A(f"v_add_u32 v{2+j}, s{S_TMP+1}, v{2+j}")
        for nb in range(2):
            for rb in range(2):
                acc = V_ACC + (nb * 2 + rb) * 16
                for mp in range(2):
                    d = V_S + (nb * 4 + rb * 2 + mp) * 4
                    if CT:
                        for e in range(0, 8, 2):
                            A(f"v_pk_mul_f32 v[{acc+8*mp+e}:{acc+8*mp+e+1}], v[{acc+8*mp+e}:{acc+8*mp+e+1}], v[{V_ALPHA}:{V_ALPHA+1}] op_sel_hi:[1,0]")
                    for e in range(4):
                        A(f"v_cvt_pk_bf16_f32 v{d+e}, v{acc+8*mp+2*e}, v{acc+8*mp+2*e+1}")
                    A(f"ds_write_b128 v{2+2*nb+mp}, v[{d}:{d+3}] offset:{rb*32768}")
                    lg.issue("qw")
                    if DEBUG:
                        A(f"v_and_b32 v8, 31, v{L}")
                        A(f"v_lshrrev_b32 v9, 5, v{L}")
                        A("v_lshlrev_b32 v8, 13, v8")
                        A("v_lshl_add_u32 v8, v9, 4, v8")
                        A(f"s_lshl_b32 s{S_TMP+2}, s{S_M}, 19")
                        A(f"s_lshl_b32 s{S_TMP+3}, s{S_G}, 10")
                        A(f"s_add_u32 s{S_TMP+2}, s{S_TMP+2}, s{S_TMP+3}")
                        A(f"s_lshl_b32 s{S_TMP+3}, s{S_WAVE}, 7")
                        A(f"s_add_u32 s{S_TMP+2}, s{S_TMP+2}, s{S_TMP+3}")
                        A(f"s_add_u32 s{S_TMP+2}, s{S_TMP+2}, {rb*32*8192 + nb*64 + mp*32}")
                        A(f"buffer_store_dwordx4 v[{d}:{d+3}], v8, s[{S_DBG}:{S_DBG+3}], s{S_TMP+2} offen")
                        vm.issue("dbg")
    A(f"s_and_b32 s{S_TMP}, s{S_WAVE}, 3")
    A(f"s_lshl_b32 s{S_TMP}, s{S_TMP}, 8")
    A(f"s_lshr_b32 s{S_TMP+1}, s{S_WAVE}, 2")
    A(f"s_lshl_b32 s{S_TMP+1}, s{S_TMP+1}, 15")
    A(f"s_add_u32 s{S_QOFF}, s{S_TMP}, s{S_TMP+1}")
    for j in range(8):
        A(f"v_add_u32 v{V_QADDR+j}, s{S_QOFF}, v{V_BADDR+j}")
    lg.waitall()
    vm.wait(("k", 0))
    A("s_barrier")
    stamp()
    if PRIO:
        A(f"s_cmp_lt_u32 s{S_WAVE}, 4")
        A("s_cbranch_scc1 .Lk1_noprio" if PRIO == 1 else "s_cbranch_scc0 .Lk1_noprio")
        A("s_setprio 1")
        A.label(".Lk1_noprio")
    for j in range(8):
        A(f"ds_read_b128 v[{V_Q+4*j}:{V_Q+4*j+3}], v{V_QADDR+j}")
        lg.issue("q")
    seq = []
    for kb in range(2):
        for j in range(8):
            seq.append(("k", 0, kb, j))
    for t in range(8):
        if t > 0:
            for db in range(4): seq.append(("v", t - 1, 3, db))
        if t + 1 < 8:
            for kb in range(2):
                for j in range(8): seq.append(("k", t + 1, kb, j))
        for ks in range(3):
            for db in range(4): seq.append(("v", t, ks, db))
    for db in range(4): seq.append(("v", 7, 3, db))
    state = {"issued": 0, "limit": 0}
    def issue_frag(i):
        kind, t, a, b = seq[i]
        f = V_F + (i % NF) * 4
        if (EXPT & 4) and i >= 8: return
        if (EXPT & 16) and (i & 1): return
        if kind == "k":
            A(f"ds_read_b128 v[{f}:{f+3}], v{V_KADDR+b} offset:{((t + 1) % 3) * 16384 + a * 8192}")
            lg.issue(("fr", i))
        else:
            o = (t % 3) * 16384 + a * 4096
            A(f"ds_read_b64_tr_b16 v[{f}:{f+1}], v{V_VADDR+b} offset:{o}")
            lg.issue(("fr", i))
            A(f"ds_read_b64_tr_b16 v[{f+2}:{f+3}], v{V_VADDR+b} offset:{o + 1024}")
            lg.issue(("fr", i))
    def avail(i, epoch):
        kind, t, a, b = seq[i]
        return (t - 1 <= epoch) if kind == "k" else (t <= epoch)
    def runahead(cur, epoch):
        while state["issued"] < len(seq) and state["issued"] <= cur + RA and avail(state["issued"], epoch):
            issue_frag(state["issued"]); state["issued"] += 1
    def mfma(i, epoch):
        kind, t, a, b = seq[i]
        runahead(i - 1, epoch)
        assert state["issued"] > i
        f = V_F + (i % NF) * 4
        lg.wait(("fr", i))
        if (EXPT & 2048) and kind == "k":
            for hh in range(2):
                s4 = V_S + (t & 1) * 32 + a * 16 + (b & 1) * 8 + hh * 4
                c4 = ("0" if t == 0 else f"v[{V_NB}:{V_NB+3}]") if b < 2 else f"v[{s4}:{s4+3}]"
                A(f"v_mfma_f32_16x16x32_bf16 v[{s4}:{s4+3}], v[{f}:{f+3}], v[{V_Q+4*(b^hh)}:{V_Q+4*(b^hh)+3}], {c4}")
        elif (EXPT & 4096) and kind == "v":
            for hh in range(2):
                o4 = V_ACC + b * 16 + (a & 1) * 8 + hh * 4
                p = V_S + (t & 1) * 32 + 4 * a
                c4 = "0" if (t == 0 and a < 2) else f"v[{o4}:{o4+3}]"
                A(f"v_mfma_f32_16x16x32_bf16 v[{o4}:{o4+3}], v[{f}:{f+3}], v[{p}:{p+3}], {c4}")
        elif kind == "k":
            s = V_S + (t & 1) * 32 + a * 16
            c = ("0" if (t == 0 or not CT) else f"v[{V_NB}:{V_NB+15}]") if b == 0 else f"v[{s}:{s+15}]"
            A(f"v_mfma_f32_32x32x16_bf16 v[{s}:{s+15}], v[{f}:{f+3}], v[{V_Q+4*b}:{V_Q+4*b+3}], {c}")
        else:
            o = V_ACC + b * 16
            p = V_S + (t & 1) * 32 + 4 * a
            c = "0" if (t == 0 and a == 0) else f"v[{o}:{o+15}]"
            if LM == 2 and b in (1, 3):
                cl = "0" if (t == 0 and a == 0 and b == 1) else "v[4:7]"
                A(f"v_mfma_f32_4x4x4_16b_bf16 v[4:7], v[8:9], v[{p+b-1}:{p+b}], {cl}")
            A(f"v_mfma_f32_32x32x16_bf16 v[{o}:{o+15}], v[{f}:{f+3}], v[{p}:{p+3}], {c}")
            if LM == 1 and b in (0, 2):
                cl = "0" if (t == 0 and a == 0 and b == 0) else "v[4:7]"
                A(f"v_mfma_f32_4x4x4_16b_bf16 v[4:7], v[8:9], v[{p+b}:{p+b+1}], {cl}")
        runahead(i, epoch)
    def seg(idx, n, valu, epoch):
        nv = len(valu); k = 0
        def em(x):
            if isinstance(x, list):
                for y in x:
                    if y.endswith(":"): A.label(y[:-1])
                    else: A(y)
            else: A(x)
        if n == 0:
            for x in valu: em(x)
            return idx
        for m_ in range(n):
            mfma(idx + m_, epoch)
            upto = (nv * (m_ + 1) + n - 1) // n
            while k < upto:
                em(valu[k]); k += 1
        return idx + n
    if DOT2:
        assert NOMAX
        A(f"v_mov_b32 v{PSUM}, 0"); A(f"v_mov_b32 v{PSUM+1}, 0"); A("v_mov_b32 v14, 0x3f803f80")
    if LM:
        A("v_mov_b32 v8, 0x3f803f80"); A("v_mov_b32 v9, 0x3f803f80")
    idx = seg(0, 16, [], -1)
    for t in range(8):
        if t + 1 < 8: vm.wait(("k", t + 1))
        vm.wait(("v", t))
        if not (EXPT & 8): A("s_barrier")
        if t >= 0 and t + 3 < 8: k_dma(A, vm, t + 3)
        if t >= 1 and t + 1 < 8: v_dma(A, vm, t + 1)
        PFMODE = int(os.environ.get("PFMODE", "1"))
        PFX = int(os.environ.get("PFX", "5"))
        if PFX:
            if t == PFX:
                lab = ".Lpfx"
                A(f"v_lshlrev_b32 v12, 7, v{L}")
                A(f"s_lshl_b32 s{S_TMP}, s{S_M}, 14")
                A(f"s_lshl_b32 s{S_TMP+1}, s{S_WAVE}, 13")
                A(f"s_add_u32 s{S_TMP}, s{S_TMP}, s{S_TMP+1}")
                A(f"s_mov_b32 s{S_XN}, s{S_WO}")
                A(f"s_mov_b32 s{S_XN+1}, s{S_WO+1}")
                A(f"s_movk_i32 s{S_XN+2}, 8192")
                for w_, p, per in ((2, 92, 2048), (3, 94, 2048), (4, 96, 7168), (5, 98, 7168), (6, 98, 0)):
                    A(f"s_mul_i32 s{S_TMP+1}, s2, {per}")
                    A(f"s_cmp_ge_u32 s{S_WAVE}, {w_}")
                    A(f"s_cselect_b32 s{S_TMP}, s{S_TMP+1}, s{S_TMP}")
                    A(f"s_cselect_b32 s{S_XN}, s{p}, s{S_XN}")
                    A(f"s_cselect_b32 s{S_XN+1}, s{p+1}, s{S_XN+1}")
                    A(f"s_cselect_b32 s{S_XN+2}, {per}, s{S_XN+2}")
                A(f"s_add_u32 s{S_XN}, s{S_XN}, s{S_TMP}")
                A(f"s_addc_u32 s{S_XN+1}, s{S_XN+1}, 0")
                A(f"s_mov_b32 s{S_XN+3}, 0x00020000")
                A(f"buffer_load_dword v15, v12, s[{S_XN}:{S_XN+3}], 0 offen"); vm.issue("pf")
        else:
            if PREFETCH and t == 1:
                A(f"v_lshlrev_b32 v12, {int(os.environ.get('PFS', '6'))}, v0")
                A(f"s_lshl_b32 s{S_TMP}, s{S_M}, 14")
                A(f"s_add_u32 s{S_TMP+1}, s{S_TMP}, 16384")
                A(f"s_mov_b32 s{S_XN}, s{S_WO}")
                A(f"s_mov_b32 s{S_XN+1}, s{S_WO+1}")
                A(f"s_mov_b32 s{S_XN+2}, s{S_TMP+1}")
                if P4: A(f"s_mov_b32 s{S_XN+3}, 0x00020000")
                A(f"buffer_load_dword v15, v12, s[{S_XN}:{S_XN+3}], s{S_TMP} offen"); vm.issue("pf")
            if PREFETCH and PFMODE < 2:
                for (tt, p, sz) in ((2, 92, 512*1024), (2, 94, 512*1024), (3, 96, 1792*1024), (4, 98, 1792*1024)):
                    if t != (1 if PFMODE == 0 else tt): continue
                    per = sz // 256
                    if p == 96 and int(os.environ.get("K5N", "0")): per = (56 * int(os.environ.get('W3S', '32768')) // 256 + 63) // 64 * 64
                    A(f"s_mul_i32 s{S_TMP}, s2, {per}")
                    if p == 96 and int(os.environ.get("K5N", "0")):
                        A(f"s_add_u32 s{S_TMP}, s{S_TMP}, {28 * MB}")
                        p = 68
                    make_srd(A, S_XN, p, f"s{S_TMP}", per)
                    A(f"buffer_load_dword v15, v12, s[{S_XN}:{S_XN+3}], 0 offen"); vm.issue("pf")
        XPF = int(os.environ.get("XPF", "0"))
        if XPF and t in (5, 6):
            for (tt, p, sz, bit) in ((5, 96, 1792*1024, 1), (6, 98, 1792*1024, 2), (5, 92, 512*1024, 4), (6, 94, 512*1024, 4)):
                if t != tt or not (XPF & bit): continue
                per = sz // 32
                A(f"s_lshr_b32 s{S_TMP}, s2, 3")
                A(f"s_mul_i32 s{S_TMP}, s{S_TMP}, {per}")
                make_srd(A, S_XN, p, f"s{S_TMP}", per)
                A("v_lshlrev_b32 v13, 7, v0")
                A(f"buffer_load_dword v15, v13, s[{S_XN}:{S_XN+3}], 0 offen"); vm.issue("pf")
        if t == 7 and PD:
            A(f"s_lshl_b32 s{S_OFF}, s{S_WAVE}, 16")
            A(f"v_lshlrev_b32 v{V_WOOFF}, 4, v{L}")
            for st in range(4): pd_load(A, vm, st)
        elif t == 7 and D6:
            A(f"s_lshl_b32 s{S_OFF}, s{S_WAVE}, 7")
            for st in range(4):
                gemm_dma6(A, vm, st, S_WO, V_WOOFF, 1024)
        elif t == 7:
            A(f"s_add_u32 s{S_RB}, s{S_RB}, 32768")
            A(f"s_lshl_b32 s{S_OFF}, s{S_WAVE}, 7")
            for nb in range(2):
                A(f"v_add_u32 v{V_AADDR+nb}, 32768, v{V_AADDR+nb}")
            for st in range(D):
                gemm_dma(A, vm, st, S_WO, V_WOOFF, 1024, D)
        mxl = sm_max(t)
        if t == 0:
            mxl = ["s_nop 7", "s_nop 3"] + mxl
        idx = seg(idx, 4 if t > 0 else 0, mxl, t)
        b = sm_quarter(t, 0) + sm_rescale(t) + sm_quarter(t, 1) + ["s_nop 1"]
        idx = seg(idx, 16 if t + 1 < 8 else 0, b, t)
        q3 = sm_quarter(t, 3)
        h = len(q3) // 3
        idx = seg(idx, 8, sm_quarter(t, 2) + ["s_nop 1"] + q3[:h], t)
        idx = seg(idx, 4, q3[h:] + sm_lupd(t) + ["s_nop 1"], t)
        stamp()
    idx = seg(idx, 4, [], 7)
    assert idx == len(seq)
    if DOT2: A(f"v_add_f32 v{V_L}, v{PSUM}, v{PSUM+1}")
    if LM:
        A("s_nop 7")
        A(f"v_mov_b32 v{V_L}, v4")
    A(f"v_mov_b32 v2, v{V_L}")
    A(f"v_mov_b32 v3, v{V_L}")
    A("s_nop 1")
    A(f"v_permlane32_swap_b32 v2, v3")
    A("s_nop 1")
    A(f"v_add_f32 v{V_L}, v2, v3")
    for j in range(8):
        A(f"v_add_u32 v{V_QADDR+j}, s{S_QOFF}, v{V_BADDR+j}")
    A(f"v_rcp_f32 v{V_ALPHA}, v{V_L}")
    A("s_nop 7")
    A("s_nop 3")
    for db in range(4):
        o = V_ACC + db * 16
        for mp in range(2):
            d = V_S + (db * 2 + mp) * 4
            for e in range(0, 8, 2):
                A(f"v_pk_mul_f32 v[{o+8*mp+e}:{o+8*mp+e+1}], v[{o+8*mp+e}:{o+8*mp+e+1}], v[{V_ALPHA}:{V_ALPHA+1}] op_sel_hi:[1,0]")
            for e in range(4):
                A(f"v_cvt_pk_bf16_f32 v{d+e}, v{o+8*mp+2*e}, v{o+8*mp+2*e+1}")
            A(f"ds_write_b128 v{V_QADDR+2*db+mp}, v[{d}:{d+3}]")
            lg.issue("ow")
            if DEBUG:
                A(f"v_and_b32 v5, 31, v{L}")
                A(f"v_lshrrev_b32 v6, 5, v{L}")
                A("v_lshlrev_b32 v5, 13, v5")
                A("v_lshl_add_u32 v5, v6, 4, v5")
                A(f"s_lshl_b32 s{S_TMP+2}, s{S_M}, 19")
                A(f"s_lshl_b32 s{S_TMP+3}, s{S_G}, 10")
                A(f"s_add_u32 s{S_TMP+2}, s{S_TMP+2}, s{S_TMP+3}")
                A(f"s_and_b32 s{S_TMP+3}, s{S_WAVE}, 3")
                A(f"s_lshl_b32 s{S_TMP+3}, s{S_TMP+3}, 8")
                A(f"s_add_u32 s{S_TMP+2}, s{S_TMP+2}, s{S_TMP+3}")
                A(f"s_lshr_b32 s{S_TMP+3}, s{S_WAVE}, 2")
                A(f"s_lshl_b32 s{S_TMP+3}, s{S_TMP+3}, 18")
                A(f"s_add_u32 s{S_TMP+2}, s{S_TMP+2}, s{S_TMP+3}")
                A(f"s_add_u32 s{S_TMP+2}, s{S_TMP+2}, {16*MB + db*64 + mp*32}")
                A(f"buffer_store_dwordx4 v[{d}:{d+3}], v5, s[{S_DBG}:{S_DBG+3}], s{S_TMP+2} offen")
                vm.issue("dbg")
    if M16: addr16(A)
    lg.waitall()
    A("s_barrier")
    stamp()
    if PD: pd_core(A, vm, lg, 4)
    elif M16: gemm_core16(A, vm, lg, S_WO, V_WOOFF, 1024, 4)
    elif D6: gemm_core6(A, vm, lg, S_WO, V_WOOFF, 1024, 4, bars=eval(os.environ.get('B3', '()')), hb=HB3)
    else: gemm_core(A, vm, lg, S_WO, V_WOOFF, 1024, D)
    stamp()
    if int(os.environ.get("TSTORE", "1")) and PART_BF16:
        if M16:
            A(f"v_and_b32 v5, 15, v{L}")
            A(f"v_lshrrev_b32 v6, 5, v{L}")
            A("v_and_b32 v7, 7, v5")
            A("v_xor_b32 v6, v6, v7")
            A(f"v_bfe_u32 v8, v{L}, 4, 1")
            A("v_lshlrev_b32 v8, 3, v8")
            A("v_lshl_add_u32 v8, v5, 7, v8")
            A(f"v_add_u32 v8, s{S_RB}, v8")
            for nt in range(4):
                A(f"v_xor_b32 v9, {2*nt}, v6")
                A(f"v_lshl_add_u32 v{10+nt}, v9, 4, v8")
        else:
            A(f"v_and_b32 v5, 31, v{L}")
            A(f"v_lshrrev_b32 v6, 5, v{L}")
            A("v_and_b32 v7, 7, v5")
            if D6:
                A("v_lshrrev_b32 v8, 4, v5")
                A("v_and_b32 v5, 15, v5")
                A("v_lshl_add_u32 v5, v8, 7, v5")
            for j in range(4):
                A(f"v_or_b32 v8, {2*j}, v6")
                A("v_xor_b32 v8, v8, v7")
                A("v_lshlrev_b32 v8, 4, v8")
                A("v_lshl_add_u32 v8, v5, 7, v8")
                A(f"v_add_u32 v{10+j}, s{S_RB}, v8")
        A(f"v_lshrrev_b32 v7, 3, v{L}")
        A(f"v_and_b32 v8, 7, v{L}")
        A("v_xor_b32 v9, v8, v7")
        A("v_lshlrev_b32 v9, 4, v9")
        A("v_lshl_add_u32 v9, v7, 7, v9")
        A(f"v_add_u32 v9, s{S_RB}, v9")
        A("v_lshlrev_b32 v8, 4, v8")
        A("v_lshl_add_u32 v8, v7, 10, v8")
        if PL:
            A(f"s_lshl_b32 s{S_TMP}, s{S_WAVE}, 7")
        else:
            A(f"s_lshl_b32 s{S_TMP}, s{S_M}, 16")
            A(f"s_lshl_b32 s{S_TMP+1}, s{S_WAVE}, 7")
            A(f"s_add_u32 s{S_TMP}, s{S_TMP}, s{S_TMP+1}")
        for nt in range(4 if M16 else 0):
            for rt in range(4):
                acc = V_ACC + (nt * 4 + rt) * 4
                d = V_S + (nt * 4 + rt) * 2
                for e in range(2):
                    A(f"v_cvt_pk_bf16_f32 v{d+e}, v{acc+2*e}, v{acc+2*e+1}")
                A(f"ds_write_b64 v{10+nt}, v[{d}:{d+1}] offset:{rt*16384}")
        for nb in range(0 if M16 else 2):
            for rb in range(2):
                acc = V_ACC + (nb * 2 + rb) * 16
                for mp in range(2):
                    d = V_S + (nb * 4 + rb * 2 + mp) * 4
                    for e in range(4):
                        A(f"v_cvt_pk_bf16_f32 v{d+e}, v{acc+8*mp+2*e}, v{acc+8*mp+2*e+1}")
                    A(f"ds_write_b128 v{10+2*nb+mp}, v[{d}:{d+3}] offset:{rb*(32768 if D6 else 4096)}")
        A("s_waitcnt lgkmcnt(0)")
        for i in range(8):
            A(f"ds_read_b128 v[{V_S+32+4*i}:{V_S+32+4*i+3}], v9 offset:{((i >> 1) * 16384 + (i & 1) * 1024) if D6 else i*1024}")
        if HB3 is not None:
            A(f"s_cmp_ge_u32 s{S_WAVE}, 4")
            A("s_cbranch_scc1 .Lhb_b")
            A("s_waitcnt lgkmcnt(0)")
            hookD()
            A(f"v_and_b32 v3, 3, v{L}")
            A("v_lshlrev_b32 v3, 11, v3")
            A(f"v_add_u32 v3, {STG + slot6(HB3) * 16384 + 8192}, v3")
            A.label(".Lhb_sp")
            A("ds_read_b64 v[6:7], v3")
            A("s_waitcnt lgkmcnt(0)")
            A("v_xor_b32 v6, s100, v6")
            A("v_xor_b32 v7, s101, v7")
            A("v_or_b32 v6, v6, v7")
            A("v_cmp_ne_u32 vcc, 0, v6")
            A("s_nop 0")
            A("s_cbranch_vccz .Lhb_b")
            A("s_sleep 2")
            A("s_branch .Lhb_sp")
            A.label(".Lhb_b")
        for i in range(8):
            A(f"s_waitcnt lgkmcnt({7-i})")
            A(f"buffer_store_dwordx4 v[{V_S+32+4*i}:{V_S+32+4*i+3}], v8, s[{S_P}:{S_P+3}], s{S_TMP} offen {os.environ.get('PSTF','sc1')}")
            if i < 7: A(f"s_add_u32 s{S_TMP}, s{S_TMP}, 8192")
    else:
        A(f"v_and_b32 v5, 31, v{L}")
        A(f"v_lshrrev_b32 v6, 5, v{L}")
        sh = 10 if PART_BF16 else 11
        A(f"v_lshlrev_b32 v5, {sh}, v5")
        A(f"v_lshl_add_u32 v5, v6, {4 if PART_BF16 else 5}, v5")
        A(f"s_lshl_b32 s{S_TMP}, s{S_M}, {sh + 6}")
        A(f"s_lshl_b32 s{S_TMP+1}, s{S_WAVE}, {7 if PART_BF16 else 8}")
        A(f"s_add_u32 s{S_TMP}, s{S_TMP}, s{S_TMP+1}")
        A(f"s_add_u32 s{S_TMP+1}, s{S_TMP}, {32 << sh}")
        A("s_nop 7")
        A("s_nop 3")
        for nb in range(2):
            for rb in range(2):
                acc = V_ACC + (nb * 2 + rb) * 16
                for mp in range(2):
                    if PART_BF16:
                        d = V_S + (nb * 4 + rb * 2 + mp) * 4
                        for e in range(4):
                            A(f"v_cvt_pk_bf16_f32 v{d+e}, v{acc+8*mp+2*e}, v{acc+8*mp+2*e+1}")
                        A(f"buffer_store_dwordx4 v[{d}:{d+3}], v5, s[{S_P}:{S_P+3}], s{S_TMP+rb} offen offset:{(32*nb+16*mp)*2} {os.environ.get('PSTF','sc1')}")
                    else:
                        for h4 in range(2):
                            A(f"buffer_store_dwordx4 v[{acc+8*mp+4*h4}:{acc+8*mp+4*h4+3}], v5, s[{S_P}:{S_P+3}], s{S_TMP+rb} offen offset:{(32*nb+16*mp+4*h4)*4}")
    if KT:
        stamp(); stamp.flush()
    if TIMING:
        A("s_waitcnt vmcnt(0)")
        stamp(); stamp(True)
        stamp.flush()
    if emb: return
    A("s_endpgm")
    A.raw(kernel_desc(name, 256, 102, 256))
    return (name, (256, 1, 1), (512, 1, 1), 163840)
```

```python
from asmlib import *
from gen_k0 import *
import gen_k1 as K1
from gen_k1 import Cnt
from gen_ka import ln_rows, round_multi, pack8, GK0, GK1
from gen_g64 import WS_STAT, WS_CS
import os
SPAN = int(os.environ.get("SPAN", "0"))
MT = int(os.environ.get("MT", "0")) or SPAN
HD = int(os.environ.get("HD", "0"))
PT = int(os.environ.get("PT", "0"))
TLW = int(os.environ.get("TLW", "0"))
MP = int(os.environ.get("MP", "1"))
RM = int(os.environ.get("RM", "1"))
XS = int(os.environ.get("XS", "1"))
HP = int(os.environ.get("HP", "0"))
SPOLL = int(os.environ.get("SPOLL", "1"))
HPH = int(os.environ.get("HPH", "0"))
CNT = 17408
S_R8 = 46; V_CT = 53
PRG = int(os.environ.get("PRG", "0"))
MSK = 83968
WQF = int(os.environ.get("WQF", "0"))
W0M = int(os.environ.get("MEGA", "7")) >= 5 and int(os.environ.get("W0M", "1"))
EB = int(os.environ.get("EB", "0"))
DLY = int(os.environ.get("DLY", "1"))
WQE = int(os.environ.get("WQE", "0"))
ONE = int(os.environ.get("MEGA", "7")) >= 4
V2 = int(os.environ.get("MEGA", "7")) >= 5
V3 = int(os.environ.get("MEGA", "7")) >= 6
V4 = int(os.environ.get("MEGA", "7")) == 7
LDP = int(os.environ.get("LDP", "1"))
WQP = int(os.environ.get("WQP", "2"))
CX = int(os.environ.get("CX", "0"))
NW = int(os.environ.get("NW", "2"))
XRT = int(os.environ.get("XRT", "1"))
XH = int(os.environ.get("XH", "1"))
KFB = int(os.environ.get("KFB", "6"))
XL = int(os.environ.get("XL", "4"))
DPP_ = int(os.environ.get("DPP_", "1"))
LT = int(os.environ.get("LT", "3" if V4 else "0"))
CSM = int(os.environ.get("CSM", "2"))
HA = int(os.environ.get("HA", "0"))
KMAP = int(os.environ.get("K1MAP", "1"))
FG = int(os.environ.get("FG", "1" if V4 else "0"))
FGP = int(os.environ.get("FGP", "19"))
FGD = int(os.environ.get("FGD", "8"))
K5R = int(os.environ.get("K5R", "0"))
K6D = int(os.environ.get("K6D", "0"))
PRI = int(os.environ.get("PRI", "1")) and not K6D
FL6 = WS_FLAG + 0x10000
CPL = 38 if K6D else 36
D6POS = [3, 4, 0, 1, 2]
J7P = int(os.environ.get("J7P", "-1"))
FGR = int(os.environ.get("FGR", "0"))
FGL = int(os.environ.get("FGL", "0"))
FGH = int(os.environ.get("FGH", "1"))
FGE = int(os.environ.get("FGE", "8"))
def fg_slot(st):
    st %= FGP
    return 18432 + ((21 + st) % 11) * 2048 if st < 11 else (st - 11) * 2048
CS5 = LT == 3 and CSM == 1
CS6 = LT == 3 and CSM == 2
WS_CS2 = WS_FLAG + 0x100000
NREP = int(os.environ.get("NREP", "8"))
WS_LL = WS_FLAG + 0x40000
MODP = 12288; CSP = 8192
FP = WS_FLAG + 0x20000; FQ_ = WS_FLAG + 0x30000
S_WAVE = 40; S_M = 41; S_J = 42; S_MASK = 43; S_RB = 44; S_GOFF = 45; S_TMP = 48; S_WOFF = 58
S_W = 32; V_W = 6
P_X = 60; P_OUT = 62; P_WS = 68; P_W = 84
SM = f"s{S_MASK}"
L = 1
RG = 40960; RS = 272
K5RB = 18432; K5D = 11
L2PF = int(os.environ.get('L2PF', '0'))
PFE = int(os.environ.get('PFE', '3'))
NE = int(os.environ.get('NE', '3')) if PFE == 2 else 0

def pk(A, op, d, a, b, c=None, sel=""):
    ops = ", ".join(f"v[{x}:{x+1}]" for x in ((d, a, b) if c is None else (d, a, b, c)))
    A(f"{op} {ops} {sel}".rstrip())

RC1 = int(os.environ.get("RC1", "1" if V4 else "0"))
KRF = int(os.environ.get("KRF", "1" if V4 else "0"))
_round_multi = round_multi
def round_multi(A, xs, ts, smask):
    if not RC1: return _round_multi(A, xs, ts, smask)
    for x in xs: A(f"v_cvt_pk_bf16_f32 v{x}, 0, v{x}")
def ln_pk(A, P, X, m, q, K10, K01, s1, smu, sr, smask):
    for j in range(4):
        A(f"v_dot2_f32_bf16 v{m}, v{P+j}, s{s1}, " + ("0" if j == 0 else f"v{m}"))
        A(f"v_dot2_f32_bf16 v{q}, v{P+j}, v{P+j}, " + ("0" if j == 0 else f"v{q}"))
    A("s_nop 1")
    for d in ("quad_perm:[1,0,3,2] row_mask:0xf", "quad_perm:[2,3,0,1] row_mask:0xf", "row_half_mirror row_mask:0xf", "row_mirror row_mask:0xf",
              "row_bcast:15 row_mask:0xa", "row_bcast:31 row_mask:0xc"):
        for v in (m, q): A(f"v_add_f32_dpp v{v}, v{v}, v{v} {d} bank_mask:0xf")
        if "31" not in d: A("s_nop 0")
    A(f"v_mul_f32 v{m}, {fhex(1/512)}, v{m}")
    A(f"v_mul_f32 v{q}, {fhex(1/512)}, v{q}")
    A(f"v_fma_f32 v{q}, -v{m}, v{m}, v{q}")
    A(f"v_cvt_pk_bf16_f32 v{m}, 0, -v{m}")
    A(f"v_max_f32 v{q}, 0, v{q}")
    A(f"v_readlane_b32 s{smu}, v{m}, 63")
    A(f"v_cvt_pk_bf16_f32 v{q}, 0, v{q}")
    A(f"v_add_f32 v{q}, {fhex(1e-5)}, v{q}")
    A(f"v_cvt_pk_bf16_f32 v{q}, 0, v{q}")
    A(f"v_sqrt_f32 v{q}, v{q}")
    for j in range(4): A(f"v_dot2_f32_bf16 v{X[j]}, v{P+j//2}, v{(K10, K01)[j & 1]}, s{smu}")
    A(f"v_cvt_pk_bf16_f32 v{q}, 0, v{q}")
    A(f"v_rcp_f32 v{q}, v{q}")
    for j in range(4, 8): A(f"v_dot2_f32_bf16 v{X[j]}, v{P+j//2}, v{(K10, K01)[j & 1]}, s{smu}")
    A(f"v_readlane_b32 s{sr}, v{q}, 63")
    for j in range(8): A(f"v_cvt_pk_bf16_f32 v{X[j]}, 0, v{X[j]}")
    for j in range(0, 8, 2): A(f"v_pk_mul_f32 v[{X[j]}:{X[j]+1}], v[{X[j]}:{X[j]+1}], s[{sr}:{sr+1}] op_sel_hi:[1,0]")
FLN = int(os.environ.get("FLN", "2"))
_ln_slow = ln_rows
def ln_fast(A, R, smask, final_round=True):
    for X, T in R:
        assert X[0] % 2 == 0 and T[0] % 2 == 0
        pk(A, "v_pk_add_f32", T[0], X[0], X[2]); pk(A, "v_pk_mul_f32", T[2], X[0], X[0])
        pk(A, "v_pk_add_f32", T[4], X[4], X[6]); pk(A, "v_pk_mul_f32", T[6], X[2], X[2])
    for X, T in R:
        pk(A, "v_pk_fma_f32", T[2], X[4], X[4], T[2]); pk(A, "v_pk_fma_f32", T[6], X[6], X[6], T[6])
        pk(A, "v_pk_add_f32", T[0], T[0], T[4])
    for X, T in R:
        pk(A, "v_pk_add_f32", T[2], T[2], T[6])
        A(f"v_add_f32 v{T[0]}, v{T[0]}, v{T[1]}")
    for X, T in R:
        A(f"v_add_f32 v{T[1]}, v{T[2]}, v{T[3]}")
    wave_allreduce(A, "v_add_f32", [t for X, T in R for t in (T[0], T[1])], [t for X, T in R for t in (T[2], T[3])], [t for X, T in R for t in (T[4], T[5])])
    for X, T in R:
        A(f"v_mul_f32 v{T[0]}, {fhex(1/512)}, v{T[0]}")
        A(f"v_mul_f32 v{T[1]}, {fhex(1/512)}, v{T[1]}")
    for X, T in R:
        A(f"v_fma_f32 v{T[1]}, -v{T[0]}, v{T[0]}, v{T[1]}")
    for X, T in R:
        A(f"v_max_f32 v{T[1]}, 0, v{T[1]}")
    for X, T in R:
        A(f"v_cvt_pk_bf16_f32 v{T[3]}, v{T[0]}, v{T[1]}")
    for X, T in R:
        A(f"v_and_b32 v{T[1]}, {smask}, v{T[3]}")
        A(f"v_lshlrev_b32 v{T[2]}, 16, v{T[3]}")
    for X, T in R:
        A(f"v_add_f32 v{T[1]}, {fhex(1e-5)}, v{T[1]}")
        for j in range(0, 4, 2): pk(A, "v_pk_add_f32", X[j], X[j], T[2], None, "op_sel_hi:[1,0] neg_lo:[0,1] neg_hi:[0,1]")
    for X, T in R:
        A(f"v_cvt_pk_bf16_f32 v{T[1]}, v{T[1]}, v{T[1]}")
        for j in range(4, 8, 2): pk(A, "v_pk_add_f32", X[j], X[j], T[2], None, "op_sel_hi:[1,0] neg_lo:[0,1] neg_hi:[0,1]")
    for X, T in R:
        A(f"v_lshlrev_b32 v{T[1]}, 16, v{T[1]}")
    for X, T in R:
        A(f"v_sqrt_f32 v{T[0]}, v{T[1]}")
        round_multi(A, X[:4], T[4:6], smask)
    for X, T in R:
        A(f"v_cvt_pk_bf16_f32 v{T[0]}, v{T[0]}, v{T[0]}")
    for X, T in R:
        A(f"v_lshlrev_b32 v{T[0]}, 16, v{T[0]}")
    for X, T in R:
        A(f"v_rcp_f32 v{T[2]}, v{T[0]}")
        round_multi(A, X[4:], T[4:6], smask)
    if FLN == 2:
        for X, T in R:
            for j in range(0, 8, 2): pk(A, "v_pk_mul_f32", X[j], X[j], T[2], None, "op_sel_hi:[1,0]")
    else:
        for X, T in R:
            for h in range(2):
                js = (4 * h, 4 * h + 2)
                for k, j in enumerate(js): pk(A, "v_pk_mul_f32", T[4+2*k], X[j], T[2], None, "op_sel_hi:[1,0]")
                for k, j in enumerate(js): pk(A, "v_pk_fma_f32", X[j], T[4+2*k], T[0], X[j], "op_sel_hi:[1,0,1] neg_lo:[1,0,0] neg_hi:[1,0,0]")
                for k, j in enumerate(js): pk(A, "v_pk_fma_f32", X[j], X[j], T[2], T[4+2*k], "op_sel_hi:[1,0,1]")
    if final_round:
        for X, T in R: round_multi(A, X, T[4:8], smask)
def ln_rows(A, R, smask, final_round=True):
    return ln_fast(A, R, smask, final_round) if FLN else _ln_slow(A, R, smask)

class Cap:
    def __init__(self, A): self.A = A
    def __enter__(self):
        self.sv = self.A.lines; self.A.lines = []; return self
    def __exit__(self, *a):
        self.out = self.A.lines; self.A.lines = self.sv

def interleave(A, mf, fill):
    n = len(mf); k = 0
    for i, m in enumerate(mf):
        A(m)
        upto = (len(fill) * (i + 1) + n - 1) // n
        while upto < len(fill) and upto > 0 and not (fill[upto - 1].lstrip().startswith(("buffer_", "ds_", "v_", "s_waitcnt")) or (not PRI and fill[upto - 1].lstrip().startswith(f"s_add_u32 s{S_WOFF}, s{S_WOFF}"))): upto += 1
        A.lines.extend(fill[k:upto]); k = max(k, upto)

class Mega:
    def __init__(self, A):
        self.A = A
        self.vm = Cnt(A, "vmcnt", 63); self.lg = Cnt(A, "lgkmcnt", 15)
    def stamp(self, idx):
        if SPAN and idx not in (0, 3, 22): return
        if HD:
            hmap = {0: 2, 3: 3, 4: 4, 7: 5, 8: 6, 11: 7, 12: 8, 15: 9, 16: 10, 19: 11, 20: 12, 21: 13, 22: 14}
            if int(os.environ.get('HK', '0')): hmap = {0: 2, 22: 14}
            if idx not in hmap: return
            A = self.A
            lab = A.newlabel("hd")
            A("s_waitcnt lgkmcnt(0)")
            A("s_load_dwordx2 s[76:77], s[0:1], 104")
            A("s_memrealtime s[70:71]")
            A("s_waitcnt lgkmcnt(0)")
            A("s_mov_b32 s72, s76")
            A("s_mov_b32 s73, s77")
            A("s_mov_b32 s74, 256")
            A("s_mov_b32 s75, 0x00020000")
            A(f"s_lshl_b32 s76, s{S_WAVE}, 8")
            A("s_or_b32 s76, s76, s2")
            A(f"s_cmp_lg_u32 s76, {HD}")
            A(f"s_cbranch_scc1 {lab}")
            A("v_mov_b32 v2, s70")
            A("v_mov_b32 v3, 0")
            A(f"buffer_store_dword v2, v3, s[72:75], 0 offen offset:{4*hmap[idx]}")
            A.label(lab)
            self.lg.ops = []
            return
        if not MT: return
        A = self.A
        A("s_waitcnt lgkmcnt(0)")
        A("s_memrealtime s[70:71]")
        make_srd(A, 72, P_WS, WS_DBG, 32 * MB)
        A("s_lshl_b32 s76, s2, 3")
        A(f"s_add_u32 s76, s76, s{S_WAVE}")
        A("s_lshl_b32 s76, s76, 7")
        A("s_waitcnt lgkmcnt(0)")
        A("v_mov_b32 v2, s70")
        A("v_mov_b32 v3, 0")
        A(f"buffer_store_dword v2, v3, s[72:75], s76 offen offset:{4*idx}")
        self.vm.issue("stamp"); self.lg.ops = []
    def flag_srd(self, stage):
        make_srd(self.A, 92, P_WS, WS_FLAG + stage * 32 * 256, 32 * 256)
    def jobs0(self):
        A = self.A
        make_srd(A, 80, P_WS, FQ_, 32 * 1024)
        make_srd(A, 12, P_WS, WS_MOD, 4 * MODP)
        A(f"s_cmp_lg_u32 s{S_WAVE}, {0 if W0M else 7}")
        A("s_cbranch_scc1 .Lw0m_end")
        A(f"s_lshl_b32 s98, s{S_M}, 10")
        A("v_add_u32 v2, 64, v1")
        A(f"v_min_u32 v2, {63 if LT == 3 else 119}, v2")
        A("v_lshlrev_b32 v2, 3, v2")
        A("v_lshlrev_b32 v3, 3, v1")
        if V4 and XH:
            assert LT == 3
            A("s_mov_b32 s99, 0")
            A("v_lshlrev_b32 v4, 3, v1")
            A.label(".Lplq_poll")
            A("buffer_load_dwordx2 v[248:249], v4, s[80:83], s98 offen sc1")
            A("s_add_u32 s99, s99, 1")
            A("s_waitcnt vmcnt(0)")
            A("v_xor_b32 v248, s100, v248")
            A("v_xor_b32 v249, s101, v249")
            A("v_or_b32 v248, v248, v249")
            A("v_cmp_ne_u32 vcc, 0, v248")
            A("s_cmp_lt_u32 s99, 0x40000")
            A("s_cbranch_scc0 .Lplq_done")
            A("s_cbranch_vccz .Lplq_done")
            A(f"s_cmp_lg_u32 s99, {KFB}")
            A("s_cbranch_scc1 .Lplq_poll")
            A("s_bitcmp1_b32 s2, 1")
            A("s_cbranch_scc0 .Lplq_poll")
            A("s_and_b32 s52, s2, 1")
            A("s_lshl_b32 s52, s52, 5")
            A("s_lshr_b32 s53, s2, 3")
            A("s_add_u32 s52, s52, s53")
            A("s_bitcmp1_b64 vcc, s52")
            A("s_cbranch_scc0 .Lplq_poll")
            A("s_and_b32 s53, s52, 1")
            A("s_lshr_b32 s54, s52, 1")
            A("s_add_u32 s54, s54, 16")
            A("s_lshl_b32 s55, s54, 7")
            self.p4_slow("l", 55, 53, 16, 20, 48, SM)
            A(f"s_mul_i32 s53, s53, {MODP}")
            A("s_lshl_b32 s54, s54, 8")
            A("s_add_u32 s53, s53, s54")
            A("v_lshlrev_b32 v2, 2, v2")
            A("buffer_store_dword v114, v2, s[12:15], s53 offen sc1")
            A("v_mov_b32 v70, s100")
            A("v_mov_b32 v71, s101")
            A("v_lshlrev_b32 v3, 10, v1")
            A("s_lshl_b32 s52, s52, 3")
            A("s_waitcnt vmcnt(0)")
            A("s_mov_b32 exec_hi, 0")
            A("buffer_store_dwordx2 v[70:71], v3, s[80:83], s52 offen sc1")
            A("s_mov_b64 exec, -1")
            A("s_branch .Lplq_poll")
            A.label(".Lplq_done")
        else: self.poll64(".Lplq", [(3, 80, "s98"), (2, 80, "s98")])
        if W0M:
            A("v_lshlrev_b32 v10, 5, v1")
            for part in range(2):
                for q, idx in enumerate((2, 4, 3)):
                    d = 24 + 8 * q + 88 * part
                    A(f"s_movk_i32 s{S_TMP}, {idx*2048 + part*MODP}")
                    A(f"buffer_load_dwordx4 v[{d}:{d+3}], v10, s[12:15], s{S_TMP} offen")
                    A(f"buffer_load_dwordx4 v[{d+4}:{d+7}], v10, s[12:15], s{S_TMP} offen offset:16")
            A("v_add_u32 v10, 81920, v10")
            A("s_waitcnt vmcnt(0)")
            for j in range(0, 24, 2): pk(A, "v_pk_add_f32", 24 + j, 24 + j, 112 + j)
            for q in range(3): round_multi(A, list(range(24 + 8*q, 32 + 8*q)), [56, 57, 58, 59], SM)
            for j in range(8): A(f"v_add_f32 v{32+j}, 1.0, v{32+j}")
            round_multi(A, list(range(32, 40)), [56, 57, 58, 59], SM)
            for q, off in enumerate((0, 16384, 49152)):
                A(f"ds_write_b128 v10, v[{24+8*q}:{27+8*q}] offset:{off}")
                A(f"ds_write_b128 v10, v[{28+8*q}:{31+8*q}] offset:{off+16}")
        A.label(".Lw0m_end")
        if CS6:
            A(f"s_cmp_lg_u32 s{S_WAVE}, 1")
            A("s_cbranch_scc1 .Lcs_end")
            A("s_cmp_ge_u32 s2, 224")
            A("s_cbranch_scc1 .Lcs_end")
            make_srd(A, 16, P_W + 4, 0, 512 * 3584)
            make_srd(A, 20, P_WS, WS_CS2, 8 * 1792 * 8)
            A("s_lshr_b32 s48, s2, 3")
            A("s_and_b32 s49, s2, 7")
            A(f"s_mul_i32 s50, s49, {64 * 3584}")
            A("s_lshl_b32 s51, s48, 7")
            A("s_add_u32 s50, s50, s51")
            A("v_and_b32 v2, 7, v1")
            A("v_lshrrev_b32 v3, 3, v1")
            A(f"v_mul_u32_u24 v4, {8 * 3584}, v3")
            A("v_lshl_add_u32 v4, v2, 4, v4")
            for i in range(8):
                A(f"buffer_load_dwordx4 v[{128+4*i}:{131+4*i}], v4, s[16:19], s50 offen")
                if i < 7: A("s_add_u32 s50, s50, 3584")
            A("v_lshl_add_u32 v2, v2, 3, v3")
            A("v_lshlrev_b32 v2, 3, v2")
            A(f"s_mul_i32 s49, s49, {1792 * 8}")
            A("s_lshl_b32 s48, s48, 9")
            A("s_add_u32 s48, s48, s49")
            AC = list(range(64, 72))
            for i in range(8):
                A(f"s_waitcnt vmcnt({7 - i})")
                U = 64 if i == 0 else 72 + 8 * (i & 1)
                for j in range(4):
                    A(f"v_lshlrev_b32 v{U+2*j}, 16, v{128+4*i+j}")
                    A(f"v_and_b32 v{U+2*j+1}, {SM}, v{128+4*i+j}")
                if i:
                    for j in range(8): A(f"v_add_f32 v{64+j}, v{64+j}, v{U+j}")
            A("s_nop 1")
            self.p4_red8([AC], [])
            A("v_mov_b32 v67, s100")
            A("buffer_store_dwordx2 v[66:67], v2, s[20:23], s48 offen sc1")
            A.label(".Lcs_end")
    def transition(self, stage, early=None):
        A = self.A
        self.stamp(1 + 4 * stage)
        self.vm.ops = []
        if HA and stage == 0:
            TG = K1.STG + 5 * 16384
            make_srd(A, 92, P_WS, WS_FLAG, 6 * 32 * 256)
            A(f"s_lshl_b32 s96, s{S_M}, 8")
            A(f"s_lshl_b32 s97, s{S_J}, 3")
            A("s_add_u32 s97, s97, s96")
            A(f"s_add_u32 s98, s97, {5 * 8192}")
            A(f"s_cmp_lt_u32 s{S_WAVE}, 4")
            A("s_cselect_b32 s97, s98, s97")
            A(f"s_lshl_b32 s98, s{S_WAVE}, 11")
            A(f"s_add_u32 s98, s98, {TG}")
            A("v_mov_b32 v2, s98")
            A(f"s_and_b32 s98, s98, {hex(0xffffffff & ~0x1fff)}")
            A("v_and_b32 v3, 3, v1")
            A("v_lshlrev_b32 v3, 11, v3")
            A("v_add_u32 v3, s98, v3")
            A("v_mov_b32 v246, s100")
            A("v_mov_b32 v247, s101")
            A("v_mov_b32 v4, s97")
            A("s_waitcnt vmcnt(0)")
            A("ds_write_b64 v2, v[246:247]")
            A("ds_read_b64 v[6:7], v3")
            A("s_waitcnt lgkmcnt(0)")
            A("v_xor_b32 v6, s100, v6")
            A("v_xor_b32 v7, s101, v7")
            A("v_or_b32 v6, v6, v7")
            A("v_cmp_ne_u32 vcc, 0, v6")
            A("s_nop 0")
            A("s_cbranch_vccnz .Lha_np")
            A("s_mov_b64 exec, 1")
            A("buffer_store_dwordx2 v[246:247], v4, s[92:95], 0 offen sc1")
            A("s_mov_b64 exec, -1")
            A.label(".Lha_np")
            A(f"s_sub_u32 s48, s{S_WAVE}, 2")
            A("s_cmp_ge_u32 s48, 2")
            A("s_cbranch_scc1 .Lha_end")
            make_srd(A, 72, P_WS, WS_PART, 8 * 2048 * 512 * 2)
            make_srd(A, 76, P_WS, WS_FLAG + 5 * 8192, 8192)
            A("v_and_b32 v60, 7, v1")
            A("v_lshlrev_b32 v60, 3, v60")
            A(f"s_lshl_b32 s64, s{S_M}, 19")
            A(f"s_lshl_b32 s50, s{S_J}, 13")
            A("s_add_u32 s64, s64, s50")
            A("s_lshl_b32 s50, s48, 12")
            A("s_add_u32 s64, s64, s50")
            A("v_lshrrev_b32 v61, 5, v1")
            A("v_and_b32 v5, 31, v1")
            A("v_lshlrev_b32 v61, 10, v61")
            A("v_lshl_add_u32 v61, v5, 4, v61")
            A("s_lshl_b32 s50, s48, 11")
            A(f"s_add_u32 s50, s50, {81920 + 4096}")
            A("v_lshlrev_b32 v62, 5, v1")
            A("v_add_u32 v62, s50, v62")
            A("v_add_u32 v3, 8192, v3")
            A("s_mov_b32 s65, 0")
            A.label(".Lha_pl")
            A("buffer_load_dwordx2 v[248:249], v60, s[76:79], s96 offen sc1")
            A("s_waitcnt vmcnt(0)")
            A("ds_read_b64 v[6:7], v3")
            A("v_xor_b32 v248, s100, v248")
            A("v_xor_b32 v249, s101, v249")
            A("v_or_b32 v248, v248, v249")
            A("v_cmp_ne_u32 vcc, 0, v248")
            A("s_waitcnt lgkmcnt(0)")
            A("s_cbranch_vccz .Lha_go")
            A("v_xor_b32 v6, s100, v6")
            A("v_xor_b32 v7, s101, v7")
            A("v_or_b32 v6, v6, v7")
            A("v_cmp_ne_u32 vcc, 0, v6")
            A("s_nop 0")
            A("s_cbranch_vccz .Lha_end")
            A(f"s_sleep {int(os.environ.get('HASL', '2'))}")
            A("s_branch .Lha_pl")
            A.label(".Lha_go")
            self.ha_loads()
            A.label(".Lha_end")
        if ONE and stage == 0:
            if K1.HB3 is None: self.jobs0()
            if PRG:
                A(f"s_cmp_lg_u32 s{S_WAVE}, 1")
                A("s_cbranch_scc1 .Lw1m_end")
                A(f"s_lshl_b32 s{S_TMP}, 1, s{S_J}")
                A(f"v_mov_b32 v2, {MSK}")
                A(f"v_mov_b32 v3, s{S_TMP}")
                A("ds_write_b32 v2, v3")
                A.label(".Lw1m_end")
        if early and NE:
            A(f"s_cmp_ge_u32 s{S_WAVE}, 4")
            A(f"s_cbranch_scc1 .Ltr{stage}_h")
            early(0, NE)
            A(f"s_waitcnt vmcnt({len(self.vm.ops)})")
            A(f"s_branch .Ltr{stage}_j")
            A.label(f".Ltr{stage}_h")
            A("s_waitcnt vmcnt(0)")
            A.label(f".Ltr{stage}_j")
        elif not (HA and stage == 0):
            A("s_waitcnt vmcnt(0)")
        self.flag_srd(stage)
        A(f"s_lshl_b32 s96, s{S_M}, 8")
        A(f"s_lshl_b32 s97, s{S_J}, {3 if ONE else 2}")
        A("s_add_u32 s97, s97, s96")
        if stage == 0 and KMAP != 1: A("s_mov_b32 s97, s39")
        if ONE:
            A("v_mov_b32 v246, s100")
            A("v_mov_b32 v247, s101")
        A("v_mov_b32 v2, 1")
        A("v_mov_b32 v3, s97")
        A("s_waitcnt lgkmcnt(0)")
        self.lg.ops = []
        A("s_barrier")
        if not (HA and stage == 0):
            A(f"s_cmp_lg_u32 s{S_WAVE}, 7")
            A(f"s_cbranch_scc1 .Lpub{stage}")
            A("s_mov_b64 exec, 1")
            A("buffer_store_dwordx2 v[246:247], v3, s[92:95], 0 offen sc1" if ONE else "buffer_store_dword v2, v3, s[92:95], 0 offen sc1")
            A("s_mov_b64 exec, -1")
            A.label(f".Lpub{stage}")
        self.stamp(1 + 4 * stage + 2)
    def ha_loads(self):
        A = self.A
        for g in range(8):
            for p in range(2):
                d = 128 + 8 * g + 4 * p
                A(f"buffer_load_dwordx4 v[{d}:{d+3}], v61, s[72:75], s64 offen offset:{p*2048}")
            if g < 7: A("s_add_u32 s64, s64, 65536")
        A("s_mov_b32 s65, 1")
    def poll(self, stage, nbr=False, check=True, after=None):
        A = self.A
        lab = f".Lpl{stage}"
        if check:
            A(f"s_cmp_lg_u32 s{S_WAVE}, 7")
            A(f"s_cbranch_scc1 {lab}_done")
        A("v_and_b32 v3, 7, v1")
        A(f"v_lshlrev_b32 v3, {3 if ONE else 2}, v3")
        if nbr:
            A("v_bfe_u32 v2, v1, 3, 2")
            A("v_min_u32 v2, 2, v2")
            A(f"v_add_u32 v2, s{S_M}, v2")
            A("v_max_u32 v2, 1, v2")
            A("v_min_u32 v2, 32, v2")
            A("v_subrev_u32 v2, 1, v2")
            A("v_lshl_add_u32 v3, v2, 8, v3")
        else:
            A("v_add_u32 v3, s96, v3")
        A("s_mov_b32 s98, 0")
        NP = int(os.environ.get("NPOLL", "1")); PSL = int(os.environ.get("PSL", "1"))
        if ONE and SPOLL and not nbr and not (stage == 0 and KMAP != 1):
            A("s_mov_b32 s99, 0")
            A.label(f"{lab}_sp")
            A("s_buffer_load_dwordx16 s[8:23], s[92:95], s96 glc")
            A("s_add_u32 s99, s99, 1")
            A("s_waitcnt lgkmcnt(0)")
            for i in range(8): A(f"s_xor_b64 s[{8+2*i}:{9+2*i}], s[{8+2*i}:{9+2*i}], s[100:101]")
            for i in range(1, 8): A(f"s_or_b64 s[8:9], s[8:9], s[{8+2*i}:{9+2*i}]")
            A(f"s_cbranch_scc0 {lab}_sd")
            A(f"s_and_b32 s98, s99, {SPOLL * 4 - 1}")
            A(f"s_cbranch_scc1 {lab}_sp")
            A("buffer_load_dwordx2 v[248:249], v3, s[92:95], 0 offen sc1")
            A("s_waitcnt vmcnt(0)")
            A("v_xor_b32 v248, s100, v248")
            A("v_xor_b32 v249, s101, v249")
            A("v_or_b32 v248, v248, v249")
            A("v_cmp_ne_u32 vcc, 0, v248")
            A("s_cmp_lt_u32 s99, 0x80000")
            A(f"s_cbranch_scc0 {lab}_sd")
            A(f"s_cbranch_vccnz {lab}_sp")
            A.label(f"{lab}_sd")
            if after: after()
        elif ONE:
            self.poll64(lab + "x", [(3, 92, "0")])
        elif NP == 1:
            A.label(f"{lab}_poll")
            A("buffer_load_dword v2, v3, s[92:95], 0 offen sc1")
            A("s_add_u32 s98, s98, 1")
            A("s_waitcnt vmcnt(0)")
            A("v_cmp_ne_u32 vcc, 1, v2")
            A("s_cmp_lt_u32 s98, 0x40000")
            A(f"s_cbranch_scc0 {lab}_done")
            A(f"s_cbranch_vccnz {lab}_poll")
        else:
            for i in range(NP):
                A(f"buffer_load_dword v{248+i}, v3, s[92:95], 0 offen sc1")
                if PSL and i < NP - 1: A(f"s_sleep {PSL}")
            A.label(f"{lab}_poll")
            for i in range(NP):
                A(f"s_waitcnt vmcnt({NP-1})")
                A(f"v_cmp_ne_u32 vcc, 1, v{248+i}")
                A(f"s_cbranch_vccz {lab}_done")
                A(f"buffer_load_dword v{248+i}, v3, s[92:95], 0 offen sc1")
            A("s_add_u32 s98, s98, 1")
            A("s_cmp_lt_u32 s98, 0x40000")
            A(f"s_cbranch_scc1 {lab}_poll")
        A.label(f"{lab}_done")
    def poll64(self, lab, srcs, cnt=99, slp=0):
        A = self.A
        A(f"s_mov_b32 s{cnt}, 0")
        A.label(f"{lab}_poll")
        if slp: A(f"s_sleep {slp}")
        for i, (va, srd, so) in enumerate(srcs):
            A(f"buffer_load_dwordx2 v[{248+2*i}:{249+2*i}], v{va}, s[{srd}:{srd+3}], {so} offen sc1")
        A(f"s_add_u32 s{cnt}, s{cnt}, 1")
        A("s_waitcnt vmcnt(0)")
        for i in range(len(srcs)):
            A(f"v_xor_b32 v{248+2*i}, s100, v{248+2*i}")
            A(f"v_xor_b32 v{249+2*i}, s101, v{249+2*i}")
        A("v_or_b32 v248, v248, v249")
        for i in range(1, len(srcs)):
            A(f"v_or3_b32 v248, v248, v{248+2*i}, v{249+2*i}")
        A("v_cmp_ne_u32 vcc, 0, v248")
        A(f"s_cmp_lt_u32 s{cnt}, 0x40000")
        A(f"s_cbranch_scc0 {lab}_done")
        A(f"s_cbranch_vccnz {lab}_poll")
        A.label(f"{lab}_done")
    def pst(self, idx):
        if not PT: return
        A = self.A
        A("s_waitcnt lgkmcnt(0)")
        A("s_memrealtime s[38:39]")
        A("s_waitcnt lgkmcnt(0)")
        A(f"v_writelane_b32 v59, s38, {idx}")
    def pst_flush(self):
        if not PT: return
        A = self.A
        make_srd(A, 36, 68, WS_DBG + 16 * MB, 1 * MB)
        A("s_lshl_b32 s57, s2, 3")
        A("s_add_u32 s57, s57, s40")
        A("s_lshl_b32 s57, s57, 6")
        A("v_lshlrev_b32 v2, 2, v1")
        A("s_mov_b64 exec, 0xffff")
        A("buffer_store_dword v59, v2, s[36:39], s57 offen")
        A("s_mov_b64 exec, -1")
    def pro_pre(self):
        A = self.A
        self.pst(0)
        A("s_load_dwordx2 s[4:5], s[0:1], 0")
        A("s_load_dwordx4 s[72:75], s[0:1], 80")
        A("s_load_dwordx2 s[6:7], s[0:1], 104")
        A("s_memrealtime s[70:71]")
        if int(os.environ.get("CPF", "1")):
            A("s_getpc_b64 s[76:77]")
            A.label(".Lpc0")
            A("s_mov_b32 s78, .Lcode_end-.Lpc0")
            A("s_mov_b32 s79, 0x00020000")
            A("s_lshr_b32 s3, s2, 3")
            A(f"s_mul_i32 s3, s3, {64 * CPL}")
            A("v_lshlrev_b32 v2, 6, v0")
            A(f"v_cmp_gt_u32 vcc, {CPL}, v0")
            A("s_and_b64 exec, exec, vcc")
            A("buffer_load_dword v62, v2, s[76:79], s3 offen")
            A("s_mov_b64 exec, -1")
    def pro_a(self):
        A = self.A
        W = K1.S_WAVE; M_ = K1.S_M; G_ = K1.S_G
        self.pst(1)
        make_srd(A, 76, 72, 0, 1024)
        make_srd(A, 80, 74, 0, 512 * 6144)
        make_srd(A, 84, 68, WS_MOD, 3072 * 4)
        A("s_movk_i32 s3, 6144")
        A("s_mov_b32 s59, s2")
        A("s_cmp_lt_u32 s2, 96")
        A("s_cbranch_scc1 .Lpa_mod")
        make_srd(A, 80, 96, 0, 512 * 3584)
        make_srd(A, 84, 68, WS_CS, 1792 * 4)
        A("s_movk_i32 s3, 3584")
        A("s_sub_u32 s59, s2, 96")
        A.label(".Lpa_mod")
        A("s_cmp_ge_u32 s2, 152")
        A("s_cbranch_scc1 .Lpa_nob")
        A("v_and_b32 v2, 3, v0")
        A("v_lshrrev_b32 v3, 2, v0")
        A("v_mul_lo_u32 v4, v3, s3")
        A("v_lshl_add_u32 v4, v2, 4, v4")
        A("v_lshlrev_b32 v5, 1, v3")
        A("s_lshl_b32 s58, s59, 6")
        A("s_lshl_b32 s3, s3, 7")
        for i in range(4):
            A(f"buffer_load_dwordx4 v[{72+4*i}:{75+4*i}], v4, s[80:83], s58 offen")
            if i < 3: A("s_add_u32 s58, s58, s3")
        for i in range(4):
            A(f"buffer_load_ushort v{64+i}, v5, s[76:79], 0 offen offset:{i*256}")
        A.label(".Lpa_nob")
        make_srd(A, 88, 4, 0, 2 * MB)
        A(f"s_lshl_b32 s3, s{M_}, 3")
        A(f"s_add_u32 s3, s3, s{G_}")
        A("s_lshl_b32 s3, s3, 3")
        A(f"s_add_u32 s3, s3, s{W}")
        A("s_lshl_b32 s3, s3, 10")
        A("buffer_load_dwordx4 v[68:71], v12, s[88:91], s3 offen")
        make_srd(A, 76, 6, 0, 256)
        A(f"s_or_b32 s58, s2, s{W}")
        A("s_cmp_lg_u32 s58, 0")
        A("s_cbranch_scc1 .Lpa_non")
        A("s_or_b32 s70, s70, 1")
        A("v_mov_b32 v2, s70")
        A("v_mov_b32 v3, s71")
        A("v_mov_b32 v4, 0")
        A("s_mov_b64 exec, 1")
        A("buffer_store_dwordx2 v[2:3], v4, s[76:79], 0 offen sc1")
        A("s_mov_b64 exec, -1")
        A.label(".Lpa_non")
        if WQE: self.wqpf()
    def wqpf(self):
        A = self.A; W = K1.S_WAVE
        SQ = 88 if WQE else K1.S_WQ
        if WQE: make_srd(A, 88, 64, 0, 4 * MB)
        A("v_lshrrev_b32 v2, 4, v0")
        A("v_and_b32 v3, 15, v0")
        A("v_lshlrev_b32 v3, 6, v3")
        A("v_lshl_add_u32 v2, v2, 13, v3")
        A("s_lshr_b32 s58, s2, 3")
        A("s_lshl_b32 s58, s58, 17")
        A("s_and_b32 s57, s2, 7")
        A("s_lshl_b32 s57, s57, 10")
        A("s_add_u32 s58, s58, s57")
        A(f"s_cmp_ge_u32 s{W}, 4")
        A("s_cbranch_scc1 .Lpa_nopf")
        A(f"buffer_load_dword v255, v2, s[{SQ}:{SQ+3}], s58 offen")
        A.label(".Lpa_nopf")
    def pro_b(self, nyoung, early, w7):
        A = self.A
        W = K1.S_WAVE; M_ = K1.S_M; G_ = K1.S_G; KM = f"s{K1.S_MASK}"
        NY = nyoung
        ACC = list(range(96, 104)); T = list(range(104, 112)); U = list(range(112, 120)); C = [64, 65, 66, 67]
        make_srd(A, 88, 68, WS_XN, 2 * MB)
        self.pst(2)
        A("s_waitcnt vmcnt(0)")
        self.pst(3)
        if not WQE: self.wqpf()
        A("s_cmp_ge_u32 s2, 152")
        A("s_cbranch_scc1 .Lpb_ln")
        A("s_cmp_lt_u32 s2, 96")
        A("s_cbranch_scc1 .Lpb_silu")
        for c in C: A(f"v_mov_b32 v{c}, 1.0")
        A("s_branch .Lpb_fma")
        A.label(".Lpb_silu")
        for i, c in enumerate(C): A(f"v_lshlrev_b32 v{c}, 16, v{c}")
        for i, c in enumerate(C): A(f"v_mul_f32 v{T[i]}, {fhex(-LOG2E)}, v{c}")
        for i, c in enumerate(C): A(f"v_exp_f32 v{T[i]}, v{T[i]}")
        for i, c in enumerate(C): A(f"v_add_f32 v{T[i]}, 1.0, v{T[i]}")
        for i, c in enumerate(C): A(f"v_rcp_f32 v{U[i]}, v{T[i]}")
        for i, c in enumerate(C): A(f"v_mul_f32 v{U[4+i]}, v{c}, v{U[i]}")
        for i, c in enumerate(C): A(f"v_fma_f32 v{T[i]}, -v{U[4+i]}, v{T[i]}, v{c}")
        for i, c in enumerate(C): A(f"v_fma_f32 v{c}, v{T[i]}, v{U[i]}, v{U[4+i]}")
        for i, c in enumerate(C): A(f"v_cvt_pk_bf16_f32 v{T[i]}, v{c}, v{c}")
        for i, c in enumerate(C): A(f"v_lshlrev_b32 v{c}, 16, v{T[i]}")
        A.label(".Lpb_fma")
        for i in range(4):
            for j in range(4):
                w = 72 + 4 * i + j
                A(f"v_lshlrev_b32 v{T[2*j]}, 16, v{w}")
                A(f"v_and_b32 v{T[2*j+1]}, {KM}, v{w}")
            for j in range(8):
                A(f"v_mul_f32 v{ACC[j]}, v{T[j]}, v{C[i]}" if i == 0 else f"v_fmac_f32 v{ACC[j]}, v{T[j]}, v{C[i]}")
        A("s_nop 1")
        for dpp in ("row_ror:8", "row_ror:4"):
            for v in ACC: A(f"v_add_f32_dpp v{v}, v{v}, v{v} {dpp} row_mask:0xf bank_mask:0xf")
        A("v_and_b32 v2, 3, v1")
        A("v_lshrrev_b32 v3, 4, v0")
        A("v_lshlrev_b32 v3, 7, v3")
        A("v_lshl_add_u32 v3, v2, 5, v3")
        A("v_and_b32 v2, 12, v1")
        A("v_cmp_eq_u32 vcc, 0, v2")
        A("s_and_saveexec_b64 s[58:59], vcc") if False else None
        A("s_mov_b64 s[4:5], exec")
        A("s_and_b64 exec, exec, vcc")
        A(f"ds_write_b128 v3, v[{ACC[0]}:{ACC[3]}]")
        A(f"ds_write_b128 v3, v[{ACC[4]}:{ACC[7]}] offset:16")
        A("s_mov_b64 exec, -1")
        A("s_waitcnt lgkmcnt(0)")
        A("s_barrier")
        self.pst(4)
        A(f"s_cmp_lg_u32 s{W}, 7")
        A("s_cbranch_scc1 .Lpb_ln")
        A("v_and_b32 v2, 31, v1")
        A("v_lshlrev_b32 v2, 2, v2")
        A("v_lshrrev_b32 v3, 5, v1")
        A("v_lshl_add_u32 v3, v3, 11, v2")
        for k in range(16): A(f"ds_read_b32 v{120+k}, v3 offset:{k*128}")
        for k in range(8):
            A(f"s_waitcnt lgkmcnt({14-2*k})")
            A(f"v_add_f32 v{120+2*k}, v{120+2*k}, v{121+2*k}")
        for k in range(4): A(f"v_add_f32 v{120+4*k}, v{120+4*k}, v{122+4*k}")
        A("v_add_f32 v120, v120, v124")
        A("v_add_f32 v128, v128, v132")
        A("v_add_f32 v120, v120, v128")
        A("v_mov_b32 v121, v120")
        A("s_nop 1")
        A("v_permlane32_swap_b32 v120, v121")
        A("s_nop 1")
        A("v_add_f32 v120, v120, v121")
        A("s_cmp_ge_u32 s2, 96")
        A("s_cbranch_scc1 .Lpb_nornd")
        round_bf16_1(A, 120, 121)
        A.label(".Lpb_nornd")
        A("s_lshl_b32 s58, s59, 7")
        A("s_mov_b32 exec_hi, 0")
        A("buffer_store_dword v120, v2, s[84:87], s58 offen sc1")
        A("s_mov_b64 exec, -1")
        A.label(".Lpb_ln")
        A("v_mov_b32 v2, 0")
        A(f"s_cmp_lg_u32 s{W}, 7")
        A("s_cbranch_scc1 .Lpb_ln2")
        A("s_mov_b64 exec, 1")
        A("buffer_load_dwordx2 v[136:137], v2, s[76:79], 0 offen sc1")
        A("s_mov_b64 exec, -1")
        A.label(".Lpb_ln2")
        self.pst(5)
        X = list(range(96, 104)); TT = list(range(104, 116))
        for j in range(4):
            A(f"v_lshlrev_b32 v{X[2*j]}, 16, v{68+j}")
            A(f"v_and_b32 v{X[2*j+1]}, {KM}, v{68+j}")
        ln_rows(A, [(X, TT)], KM)
        pack8(A, X, 68)
        A("buffer_store_dwordx4 v[68:71], v12, s[88:91], s3 offen sc1")
        make_srd(A, 80, 68, FP, 32 * 512)
        self.pst(6)
        A(f"s_cmp_lg_u32 s{W}, 7")
        A("s_cbranch_scc1 .Lpb_w")
        A("s_waitcnt vmcnt(1)")
        A("s_mov_b32 s57, 0")
        A.label(".Lpb_nl")
        A("v_readfirstlane_b32 s100, v136")
        A("v_readfirstlane_b32 s101, v137")
        A("s_add_u32 s57, s57, 1")
        A("s_cmp_lg_u32 s100, 0")
        A("s_cbranch_scc1 .Lpb_nd")
        A("s_cmp_lt_u32 s57, 0x40000")
        A("s_cbranch_scc0 .Lpb_nd")
        A("s_mov_b64 exec, 1")
        A("buffer_load_dwordx2 v[136:137], v2, s[76:79], 0 offen sc1")
        A("s_mov_b64 exec, -1")
        A("s_waitcnt vmcnt(0)")
        A("s_branch .Lpb_nl")
        A.label(".Lpb_nd")
        A("v_mov_b32 v136, s100")
        A("v_mov_b32 v137, s101")
        self.pst(7)
        A("s_cmp_ge_u32 s2, 152")
        A("s_cbranch_scc1 .Lpb_w")
        A("v_lshlrev_b32 v3, 9, v1")
        A("s_lshl_b32 s58, s2, 3")
        A("s_cmp_lt_u32 s2, 32")
        A("s_cbranch_scc1 .Lpb_crit")
        make_srd(A, 80, 68, FQ_, 32 * 1024)
        A("v_lshlrev_b32 v3, 10, v1")
        A("s_sub_u32 s58, s58, 256")
        A.label(".Lpb_crit")
        A("s_mov_b32 exec_hi, 0")
        A("buffer_store_dwordx2 v[136:137], v3, s[80:83], s58 offen sc1")
        A("s_mov_b64 exec, -1")
        make_srd(A, 80, 68, FP, 32 * 512)
        A.label(".Lpb_w")
        A("s_waitcnt vmcnt(1)") if False else None
        A("s_waitcnt vmcnt(0)")
        self.pst(8)
        A("s_barrier")
        self.pst(9)
        A(f"s_cmp_lg_u32 s{W}, 7")
        A("s_cbranch_scc1 .Lpb_early")
        A(f"s_lshl_b32 s58, s{M_}, 9")
        A(f"s_lshl_b32 s57, s{G_}, 3")
        A("s_add_u32 s57, s57, 256")
        A("v_mov_b32 v3, s57")
        A("s_mov_b64 exec, 1")
        A("buffer_store_dwordx2 v[136:137], v3, s[80:83], s58 offen sc1")
        A("s_mov_b64 exec, -1")
        A("v_min_u32 v3, 39, v1")
        A("v_lshlrev_b32 v3, 3, v3")
        sv99 = None
        w7()
        self.poll64(".Lplp", [(3, 80, "s58")], cnt=57)
        A("s_branch .Lpb_done")
        A.label(".Lpb_early")
        early()
        A.label(".Lpb_done")
        A("s_barrier")
        self.pst(10)
        self.pst_flush()
    def p2_a(self):
        A = self.A
        W = K1.S_WAVE; M_ = K1.S_M; G_ = K1.S_G
        SCR = K1.STG + 16384
        A("s_waitcnt lgkmcnt(0)")
        self.pst(1)
        make_srd(A, 76, 72, 0, 1024)
        make_srd(A, 80, 74, 0, 512 * 6144)
        make_srd(A, 84, 68, WS_MOD, 4 * MODP)
        make_srd(A, 88, 4, 0, 2 * MB)
        A("s_movk_i32 s3, 6144")
        A("s_and_b32 s4, s2, 15")
        A("s_lshr_b32 s5, s2, 4")
        A("s_lshl_b32 s57, s5, 8")
        A("s_cmp_lt_u32 s2, 64")
        A("s_cbranch_scc1 .Lp2a_dec")
        A("s_sub_u32 s4, s2, 64")
        A("s_and_b32 s5, s4, 1")
        A("s_lshr_b32 s4, s4, 1")
        A("s_lshl_b32 s57, s5, 9")
        A("s_add_u32 s4, s4, 16")
        A("s_cmp_lt_u32 s4, 48")
        A("s_cbranch_scc1 .Lp2a_dec")
        A("s_sub_u32 s4, s4, 48")
        make_srd(A, 80, 96, 0, 512 * 3584)
        make_srd(A, 84, 68, WS_CS, 2 * CSP)
        A("s_movk_i32 s3, 3584")
        A.label(".Lp2a_dec")
        A("s_lshr_b32 s58, s57, 1")
        A("s_mul_i32 s58, s58, s3")
        A("s_lshl_b32 s59, s4, 7")
        A("s_add_u32 s58, s58, s59")
        A("s_lshl_b32 s59, s4, 8")
        A(f"s_movk_i32 s4, {MODP}")
        A("s_cmp_eq_u32 s3, 3584")
        A(f"s_cselect_b32 s4, {CSP}, s4")
        A("s_mul_i32 s4, s4, s5")
        A("s_add_u32 s59, s59, s4")
        A("v_and_b32 v2, 7, v0")
        A("v_bfe_u32 v3, v0, 3, 5")
        A("v_mul_lo_u32 v60, v3, s3")
        A("v_lshl_add_u32 v60, v2, 4, v60")
        A("v_lshlrev_b32 v61, 1, v3")
        A("s_lshl_b32 s70, s3, 5") if False else None
        A("s_lshl_b32 s5, s3, 5")
        A(f"s_cmp_ge_u32 s{W}, 4")
        A("s_cbranch_scc1 .Lp2a_end")
        A("s_cmp_ge_u32 s2, 64")
        A("s_cbranch_scc1 .Lp2a_x")
        self.p2_tload(0)
        A.label(".Lp2a_x")
        A(f"s_lshl_b32 s3, s{M_}, 3")
        A(f"s_add_u32 s3, s3, s{G_}")
        A("s_lshl_b32 s3, s3, 2")
        A(f"s_add_u32 s3, s3, s{W}")
        A("s_lshl_b32 s3, s3, 11")
        A("buffer_load_dwordx4 v[88:91], v12, s[88:91], s3 offen")
        A("buffer_load_dwordx4 v[92:95], v12, s[88:91], s3 offen offset:1024")
        make_srd(A, 88, 6, 0, 256)
        A(f"s_or_b32 s4, s2, s{W}")
        A("s_cmp_lg_u32 s4, 0")
        A("s_cbranch_scc1 .Lp2a_non")
        A("s_or_b32 s70, s70, 1")
        A("v_mov_b32 v2, s70")
        A("v_mov_b32 v3, s71")
        A("v_mov_b32 v4, 0")
        A("s_mov_b64 exec, 1")
        A("buffer_store_dwordx2 v[2:3], v4, s[88:91], 0 offen sc1")
        A("s_mov_b64 exec, -1")
        A.label(".Lp2a_non")
        A(f"v_mov_b32 v2, {SCR + 8192}")
        A("v_mov_b32 v4, 0")
        A("v_mov_b32 v5, 0")
        A("ds_write_b64 v2, v[4:5]")
        A("s_branch .Lp2a_e2")
        A.label(".Lp2a_end")
        if WQF == 1: self.p2_wq()
        if WQF == 2:
            A("s_cmp_lt_u32 s2, 64")
            A("s_cbranch_scc1 .Lp2a_e2") if False else None
            A("s_sleep 4")
            self.p2_wq()
        if TLW:
            A("v_lshlrev_b32 v2, 21, v1")
            A(f"v_add_u32 v2, {(2 << 20) - 128}, v2")
            make_srd(A, 88, 68, 0, 48 * MB if TLW >= 2 else 4 * MB)
            A(f"s_cmp_lg_u32 s{W}, 4")
            A("s_cbranch_scc1 .Lp2a_e2")
            A("buffer_load_dword v252, v2, s[88:91], 0 offen sc1")
            if TLW == 1:
                A(f"s_mov_b32 s4, {WS_FLAG}")
                make_srd(A, 88, 68, 0, WS_FLAG + 2 * MB)
                A("buffer_load_dword v252, v2, s[88:91], s4 offen sc1")
        A.label(".Lp2a_e2")
        if EB:
            A("s_waitcnt lgkmcnt(0)")
            A("s_barrier")
            A(f"s_cmp_lt_u32 s{W}, 4")
            A("s_cbranch_scc1 .Lp2a_e3")
            self.p2_bulk1()
            A.label(".Lp2a_e3")
        A("s_mov_b32 s70, s57")
        A("s_mov_b32 s71, s58")
    def p2_bulk1(self):
        A = self.A; W = K1.S_WAVE
        A("s_sub_u32 s4, s2, 64")
        A("s_cmp_ge_u32 s4, 120")
        A("s_cbranch_scc1 .Lp2_l1")
        self.p2_tload(0); self.p2_tload(1)
        A.label(".Lp2_l1")
        if EB: make_srd(A, K1.S_WQ, 64, 0, 4 * MB)
        if DLY == 1 and not EB:
            A("s_cmp_ge_u32 s2, 64")
            A("s_cbranch_scc1 .Lp2_l3")
        if DLY and not EB:
            self.lds_spin(".Lp2_sd", 4, 4, True)
            A.label(".Lp2_l3")
        if not WQF: self.p2_wq()
    def p2_wq(self):
        A = self.A; W = K1.S_WAVE
        if WQF: make_srd(A, K1.S_WQ, 64, 0, 4 * MB)
        W128 = int(os.environ.get("W128", "0"))
        A("v_and_b32 v4, 255, v0")
        A(f"v_lshrrev_b32 v2, {3 if W128 else 4}, v4")
        A(f"v_and_b32 v3, {7 if W128 else 15}, v4")
        A(f"v_lshlrev_b32 v3, {7 if W128 else 6}, v3")
        A("v_lshl_add_u32 v2, v2, 13, v3")
        A("s_lshr_b32 s36, s2, 3")
        A("s_lshl_b32 s36, s36, 17")
        A("s_and_b32 s37, s2, 7")
        A("s_lshl_b32 s37, s37, 10")
        A("s_add_u32 s36, s36, s37")
        if W128:
            A(f"s_cmp_ge_u32 s{W}, 6")
            A("s_cbranch_scc1 .Lp2_l2")
        A(f"buffer_load_dword v63, v2, s[{K1.S_WQ}:{K1.S_WQ+3}], s36 offen")
        if W128: A.label(".Lp2_l2")
    def p2_tload(self, b):
        A = self.A
        wd = (72, 140)[b]; cd = (64, 156)[b]
        for i in range(4):
            A(f"buffer_load_dwordx4 v[{wd+4*i}:{wd+4*i+3}], v60, s[80:83], s58 offen")
            A("s_add_u32 s58, s58, s5")
        for i in range(4):
            A(f"buffer_load_ushort v{cd+i}, v61, s[76:79], s57 offen offset:{b*256 + i*64}")
    def lds_spin(self, lab, off, target, sleep=False, va=9):
        A = self.A
        A.label(lab)
        if sleep: A("s_sleep 2")
        A(f"ds_read_b32 v3, v{va} offset:{off}")
        A("s_waitcnt lgkmcnt(0)")
        A("v_readfirstlane_b32 s4, v3")
        A(f"s_cmp_lt_u32 s4, {target}")
        A(f"s_cbranch_scc1 {lab}")
    def lds_inc(self, off, va=9):
        A = self.A
        A("v_mov_b32 v3, 1")
        A("s_mov_b64 exec, 1")
        A(f"ds_add_u32 v{va}, v3 offset:{off}")
        A("s_mov_b64 exec, -1")
    def p2_gemv(self, sfx, nb, maybe_ones, col=3):
        A = self.A
        W = K1.S_WAVE; KM = f"s{K1.S_MASK}"; SCR = K1.STG + 16384
        ACC = list(range(96, 104)); T = list(range(104, 112)); U = list(range(112, 128))
        C = [64, 65, 66, 67] + ([156, 157, 158, 159] if nb == 2 else [])
        n = len(C)
        if maybe_ones:
            A("s_cmp_lt_u32 s2, 128")
            A(f"s_cbranch_scc1 .Lp2_silu{sfx}")
            for c in C: A(f"v_mov_b32 v{c}, 1.0")
            A(f"s_branch .Lp2_fma{sfx}")
            A.label(f".Lp2_silu{sfx}")
        for i, c in enumerate(C): A(f"v_lshlrev_b32 v{c}, 16, v{c}")
        for i, c in enumerate(C): A(f"v_mul_f32 v{T[i]}, {fhex(-LOG2E)}, v{c}")
        for i, c in enumerate(C): A(f"v_exp_f32 v{T[i]}, v{T[i]}")
        for i, c in enumerate(C): A(f"v_add_f32 v{T[i]}, 1.0, v{T[i]}")
        for i, c in enumerate(C): A(f"v_rcp_f32 v{U[i]}, v{T[i]}")
        for i, c in enumerate(C): A(f"v_mul_f32 v{U[8+i]}, v{c}, v{U[i]}")
        for i, c in enumerate(C): A(f"v_fma_f32 v{T[i]}, -v{U[8+i]}, v{T[i]}, v{c}")
        for i, c in enumerate(C): A(f"v_fma_f32 v{c}, v{T[i]}, v{U[i]}, v{U[8+i]}")
        for i, c in enumerate(C): A(f"v_cvt_pk_bf16_f32 v{T[i]}, v{c}, v{c}")
        for i, c in enumerate(C): A(f"v_lshlrev_b32 v{c}, 16, v{T[i]}")
        if maybe_ones: A.label(f".Lp2_fma{sfx}")
        for i in range(n):
            for j in range(4):
                w = (72, 140)[i >> 2] + 4 * (i & 3) + j
                A(f"v_lshlrev_b32 v{T[2*j]}, 16, v{w}")
                A(f"v_and_b32 v{T[2*j+1]}, {KM}, v{w}")
            for j in range(8):
                A(f"v_mul_f32 v{ACC[j]}, v{T[j]}, v{C[i]}" if i == 0 else f"v_fmac_f32 v{ACC[j]}, v{T[j]}, v{C[i]}")
        A("v_and_b32 v2, 7, v1")
        A("v_bfe_u32 v3, v0, 4, 4")
        for v in ACC: A(f"v_add_f32_dpp v{v}, v{v}, v{v} row_ror:8 row_mask:0xf bank_mask:0xf")
        A("v_lshlrev_b32 v3, 8, v3")
        A("v_lshl_add_u32 v3, v2, 5, v3")
        A(f"v_add_u32 v3, {SCR}, v3")
        A("v_and_b32 v2, 8, v1")
        A("v_cmp_eq_u32 vcc, 0, v2")
        A("s_and_b64 exec, exec, vcc")
        A(f"ds_write_b128 v3, v[{ACC[0]}:{ACC[3]}]")
        A(f"ds_write_b128 v3, v[{ACC[4]}:{ACC[7]}] offset:16")
        A("s_mov_b64 exec, -1")
        A("s_waitcnt lgkmcnt(0)")
        self.lds_inc(0)
        A(f"s_cmp_lg_u32 s{W}, {col}")
        A(f"s_cbranch_scc1 .Lp2_gd{sfx}")
        self.lds_spin(f".Lp2_sp{sfx}", 0, 4)
        A("v_lshlrev_b32 v2, 2, v1")
        A(f"v_add_u32 v3, {SCR}, v2")
        for k in range(16): A(f"ds_read_b32 v{104+k}, v3 offset:{k*256}")
        for k in range(8):
            A(f"s_waitcnt lgkmcnt({14-2*k})")
            A(f"v_add_f32 v{104+2*k}, v{104+2*k}, v{105+2*k}")
        for k in range(4): A(f"v_add_f32 v{104+4*k}, v{104+4*k}, v{106+4*k}")
        A("v_add_f32 v104, v104, v108")
        A("v_add_f32 v112, v112, v116")
        A("v_add_f32 v68, v104, v112")
        A("buffer_store_dword v68, v2, s[84:87], s59 offen sc1")
        A.label(f".Lp2_gd{sfx}")
    def p2_ln(self):
        A = self.A; KM = f"s{K1.S_MASK}"
        X0 = list(range(96, 104)); X1 = list(range(120, 128)); T0 = list(range(104, 116)); T1 = list(range(128, 140))
        for r, X in enumerate((X0, X1)):
            for j in range(4):
                A(f"v_lshlrev_b32 v{X[2*j]}, 16, v{88+4*r+j}")
                A(f"v_and_b32 v{X[2*j+1]}, {KM}, v{88+4*r+j}")
        ln_rows(A, [(X0, T0), (X1, T1)], KM, False)
        pack8(A, X0, 88); pack8(A, X1, 92)
        A(f"buffer_store_dwordx4 v[88:91], v12, s[{K1.S_XN}:{K1.S_XN+3}], s3 offen sc1")
        A(f"buffer_store_dwordx4 v[92:95], v12, s[{K1.S_XN}:{K1.S_XN+3}], s3 offen offset:1024 sc1")
    def p2_nonce(self, sfx):
        A = self.A
        A("s_mov_b32 s4, 0")
        A.label(f".Lp2_nl{sfx}")
        A("v_readfirstlane_b32 s100, v70")
        A("v_readfirstlane_b32 s101, v71")
        A("s_add_u32 s4, s4, 1")
        A("s_cmp_lg_u32 s100, 0")
        A(f"s_cbranch_scc1 .Lp2_nd{sfx}")
        A("s_cmp_lt_u32 s4, 0x40000")
        A(f"s_cbranch_scc0 .Lp2_nd{sfx}")
        self.p2_nload()
        A("s_waitcnt vmcnt(0)")
        A(f"s_branch .Lp2_nl{sfx}")
        A.label(f".Lp2_nd{sfx}")
        A("v_mov_b32 v70, s100")
        A("v_mov_b32 v71, s101")
    def p2_nload(self):
        A = self.A
        A("v_mov_b32 v2, 0")
        A("s_mov_b64 exec, 1")
        A("buffer_load_dwordx2 v[70:71], v2, s[88:91], 0 offen sc1")
        A("s_mov_b64 exec, -1")
    def p2_pubtask(self, region, base):
        A = self.A
        make_srd(A, 76, 68, region, 32 * 1024)
        A("v_lshlrev_b32 v3, 10, v1")
        A("s_mov_b32 s4, s73" if V3 else f"s_sub_u32 s4, s2, {base}")
        A("s_lshl_b32 s4, s4, 3")
        A("s_mov_b32 exec_hi, 0")
        A("buffer_store_dwordx2 v[70:71], v3, s[76:79], s4 offen sc1")
        A("s_mov_b64 exec, -1")
    def p2_pubxn(self, sfx):
        A = self.A
        self.lds_spin(f".Lp2_sx{sfx}", 4, 3)
        make_srd(A, 76, 68, FP, 32 * 1024)
        A(f"s_lshl_b32 s4, s{K1.S_M}, 10")
        A(f"s_lshl_b32 s5, s{K1.S_G}, 3")
        A("s_add_u32 s5, s5, 512")
        A("v_mov_b32 v3, s5")
        A("s_mov_b64 exec, 1")
        A("buffer_store_dwordx2 v[70:71], v3, s[76:79], s4 offen sc1")
        A("s_mov_b64 exec, -1")
    def p2_b(self, loader, cfix, xn_loads):
        A = self.A
        W = K1.S_WAVE; M_ = K1.S_M; KM = f"s{K1.S_MASK}"; SCR = K1.STG + 16384
        A(f"v_mov_b32 v9, {SCR + 8192}")
        if not EB:
            A("s_waitcnt lgkmcnt(0)")
            A("s_barrier")
        self.pst(2)
        A(f"s_cmp_lt_u32 s{W}, 4")
        A("s_cbranch_scc1 .Lp2_c")
        if not EB:
            A("s_mov_b32 s57, s70")
            A("s_mov_b32 s58, s71")
            self.p2_bulk1()
        elif DLY == 1:
            A("s_cmp_ge_u32 s2, 64")
            A("s_cbranch_scc1 .Lp2_l4")
            self.lds_spin(".Lp2_sd2", 4, 4, True)
            A.label(".Lp2_l4")
        loader()
        A("s_sub_u32 s4, s2, 64")
        A("s_cmp_ge_u32 s4, 120")
        A("s_cbranch_scc1 .Lp2_X")
        A(f"s_waitcnt vmcnt({4 * int(os.environ.get('LDE', '2'))})")
        self.p2_gemv("b", 2, True, 7)
        A("s_branch .Lp2_X")
        A.label(".Lp2_c")
        cfix()
        A("s_waitcnt vmcnt(0)")
        self.pst(3)
        A("s_cmp_ge_u32 s2, 64")
        A("s_cbranch_scc1 .Lp2_a0")
        self.p2_gemv("a", 1, False)
        A.label(".Lp2_a0")
        self.pst(4)
        A(f"s_cmp_lg_u32 s{W}, 3")
        A("s_cbranch_scc1 .Lp2_a1")
        self.p2_nload()
        A.label(".Lp2_a1")
        self.p2_ln()
        self.pst(6)
        A(f"s_cmp_lg_u32 s{W}, 3")
        A("s_cbranch_scc1 .Lp2_ack")
        A("s_waitcnt vmcnt(2)")
        self.p2_nonce("a")
        A("s_cmp_ge_u32 s2, 64")
        A("s_cbranch_scc1 .Lp2_a2")
        self.p2_pubtask(FP, 0)
        self.pst(7)
        A("s_waitcnt vmcnt(1)")
        A("s_branch .Lp2_a3")
        A.label(".Lp2_a2")
        A("s_waitcnt vmcnt(0)")
        A.label(".Lp2_a3")
        self.p2_pubxn("a")
        self.lds_inc(4)
        A("s_branch .Lp2_col")
        A.label(".Lp2_ack")
        A("s_waitcnt vmcnt(0)")
        self.lds_inc(4)
        A("s_branch .Lp2_X")
        A.label(".Lp2_col")
        make_srd(A, 76, 68, FP, 32 * 1024)
        A(f"s_lshl_b32 s5, s{M_}, 10")
        A("v_and_b32 v3, 7, v1")
        A("v_lshlrev_b32 v3, 3, v3")
        A("v_add_u32 v3, 512, v3")
        A("ds_write_b64 v9, v[70:71] offset:16")
        def parts():
            make_srd(A, 84, 68, WS_MOD, 4 * MODP)
            for i in range(4):
                for p in range(4):
                    A(f"s_movk_i32 s4, {p * MODP}") if p * MODP < 32768 else A(f"s_mov_b32 s4, {p * MODP}")
                    A(f"buffer_load_dwordx4 v[{72+16*i+4*p}:{75+16*i+4*p}], v12, s[84:87], s4 offen offset:{i*1024}")
        if MP:
            A("v_lshlrev_b32 v4, 3, v1")
            self.poll64(".Lplx", [(3, 76, "s5"), (4, 76, "s5")], cnt=4)
            parts()
        else:
            self.poll64(".Lplx", [(3, 76, "s5")], cnt=4)
        A.label(".Lp2_X")
        self.pst(8)
        A("s_waitcnt lgkmcnt(0)")
        A("s_barrier")
        self.pst(9)
        xn_loads()
        A(f"s_cmp_lg_u32 s{W}, 3")
        A("s_cbranch_scc1 .Lp2_Y")
        if not MP:
            make_srd(A, 76, 68, FP, 32 * 1024)
            A(f"s_lshl_b32 s5, s{M_}, 10")
            A("v_lshlrev_b32 v3, 3, v1")
            self.poll64(".Lplm", [(3, 76, "s5")], cnt=4)
            parts()
        A(f"v_add_u32 v3, {SCR + 4096}, v12")
        for i in range(4):
            b = 72 + 16 * i
            A(f"s_waitcnt vmcnt({12 - 4*i + (8 if MP else 0)})")
            pk(A, "v_pk_add_f32", b, b, b + 4); pk(A, "v_pk_add_f32", b + 2, b + 2, b + 6)
            pk(A, "v_pk_add_f32", b + 8, b + 8, b + 12); pk(A, "v_pk_add_f32", b + 10, b + 10, b + 14)
            pk(A, "v_pk_add_f32", b, b, b + 8); pk(A, "v_pk_add_f32", b + 2, b + 2, b + 10)
            round_multi(A, [b, b + 1, b + 2, b + 3], [b + 4, b + 5], KM)
            if i >= 2:
                for e in range(4): A(f"v_add_f32 v{b+e}, 1.0, v{b+e}")
                round_multi(A, [b, b + 1, b + 2, b + 3], [b + 4, b + 5], KM)
            A(f"ds_write_b128 v3, v[{b}:{b+3}] offset:{i*1024}")
        A("s_waitcnt lgkmcnt(0)")
        A.label(".Lp2_Y")
        A("s_barrier")
        self.pst(10)
        self.pst_flush()
        A("ds_read_b64 v[2:3], v9 offset:16")
        A("s_waitcnt lgkmcnt(0)")
        A("v_readfirstlane_b32 s100, v2")
        A("v_readfirstlane_b32 s101, v3")
    def p2_c(self):
        A = self.A
        if V4 and WQP == 3: self.p4_wq()
        if not V4:
            A(f"s_cmp_lg_u32 s{K1.S_WAVE}, {1 if V3 else 7}")
            A("s_cbranch_scc1 .Lp2c_end")
        A("s_mov_b32 s4, s73" if V3 else "s_sub_u32 s4, s2, 64")
        A("s_cmp_ge_u32 s4, 120")
        A("s_cbranch_scc1 .Lp2c_end")
        A("v_mov_b32 v70, s100")
        A("v_mov_b32 v71, s101")
        A("s_waitcnt vmcnt(0)")
        self.p2_pubtask(FQ_, 64)
        A.label(".Lp2c_end")
    def p3_tload(self, n):
        A = self.A
        for i in range(n):
            A(f"buffer_load_dwordx4 v[{128+4*i}:{131+4*i}], v60, s[80:83], s58 offen")
            A("s_add_u32 s58, s58, s5")
        for i in range(n):
            A(f"buffer_load_ushort v{224+i}, v61, s[76:79], s57 offen offset:{i*64}")
    def p3_wq(self, sfx):
        A = self.A; W = K1.S_WAVE
        make_srd(A, K1.S_WQ, 64, 0, 4 * MB)
        A("v_and_b32 v4, 255, v0")
        A("v_lshrrev_b32 v2, 4, v4")
        A("v_and_b32 v3, 15, v4")
        A("v_lshlrev_b32 v3, 6, v3")
        A("v_lshl_add_u32 v2, v2, 13, v3")
        A("s_lshr_b32 s36, s70, 3")
        A("s_lshl_b32 s36, s36, 17")
        A("s_and_b32 s37, s70, 7")
        A("s_lshl_b32 s37, s37, 10")
        A("s_add_u32 s36, s36, s37")
        A(f"s_cmp_lt_u32 s{W}, 4")
        A(f"s_cbranch_scc1 .Lp3_wq{sfx}")
        A(f"buffer_load_dword v63, v2, s[{K1.S_WQ}:{K1.S_WQ+3}], s36 offen")
        A.label(f".Lp3_wq{sfx}")
    def p3_dec(self, crit):
        A = self.A
        A("s_movk_i32 s71, 6144")
        if crit:
            A("s_and_b32 s4, s72, 15")
            A("s_bfe_u32 s5, s72, 0x20004")
            A("s_lshl_b32 s57, s5, 8")
        else:
            make_srd(A, 80, 74, 0, 512 * 6144)
            make_srd(A, 84, 68, WS_MOD, 4 * MODP)
            A("s_and_b32 s5, s73, 1")
            A("s_lshr_b32 s4, s73, 1")
            A("s_lshl_b32 s57, s5, 9")
            A("s_add_u32 s4, s4, 16")
            A("s_cmp_lt_u32 s4, 48")
            A("s_cbranch_scc1 .Lp3a_dec")
            A("s_sub_u32 s4, s4, 48")
            make_srd(A, 80, 96, 0, 512 * 3584)
            make_srd(A, 84, 68, WS_CS, 2 * CSP)
            A("s_movk_i32 s71, 3584")
            A.label(".Lp3a_dec")
        A("s_lshr_b32 s58, s57, 1")
        A("s_mul_i32 s58, s58, s71")
        A("s_lshl_b32 s59, s4, 7")
        A("s_add_u32 s58, s58, s59")
        A("s_lshl_b32 s59, s4, 8")
        A(f"s_movk_i32 s4, {MODP}")
        A("s_cmp_eq_u32 s71, 3584")
        A(f"s_cselect_b32 s4, {CSP}, s4")
        A("s_mul_i32 s4, s4, s5")
        A("s_add_u32 s59, s59, s4")
        A("v_and_b32 v2, 7, v0")
        A("v_bfe_u32 v3, v0, 3, 5")
        A("v_mul_lo_u32 v60, v3, s71")
        A("v_lshl_add_u32 v60, v2, 4, v60")
        A("v_lshlrev_b32 v61, 1, v3")
        A("s_lshl_b32 s5, s71, 5")
    def p3_a(self):
        A = self.A
        W = K1.S_WAVE; M_ = K1.S_M; XR = K1.V_S
        A("s_waitcnt lgkmcnt(0)")
        self.pst(1)
        make_srd(A, 88, 6, 0, 256)
        A(f"s_or_b32 s3, s2, s{W}")
        A("s_cmp_lg_u32 s3, 0")
        A("s_cbranch_scc1 .Lp3a_non")
        A("s_or_b32 s70, s70, 1")
        A("v_mov_b32 v2, s70")
        A("v_mov_b32 v3, s71")
        A("v_mov_b32 v5, 0")
        A("s_mov_b64 exec, 1")
        A("buffer_store_dwordx2 v[2:3], v5, s[88:91], 0 offen sc1")
        A("s_mov_b64 exec, -1")
        A.label(".Lp3a_non")
        make_srd(A, 76, 72, 0, 1024)
        make_srd(A, 80, 74, 0, 512 * 6144)
        make_srd(A, 84, 68, WS_MOD, 4 * MODP)
        make_srd(A, 88, 4, 0, 2 * MB)
        if RM:
            A("s_add_u32 s70, s2, 6")
            A("s_and_b32 s70, s70, 7")
            A("s_lshl_b32 s70, s70, 5")
            A("s_lshr_b32 s71, s2, 3")
            A("s_add_u32 s70, s70, s71")
            A("s_sub_u32 s72, s70, 192")
            if RM == 1:
                A("s_add_u32 s73, s72, 64")
                A("s_cmp_lt_u32 s70, 192")
                A("s_cselect_b32 s73, 255, s73")
                A("s_cmp_lt_u32 s70, 64")
                A("s_cselect_b32 s73, s70, s73")
            else:
                A("s_mov_b32 s73, s70")
        else:
            A("s_mov_b32 s72, s2")
            A("s_sub_u32 s73, s2, 64")
            A("s_sub_u32 s70, 255, s2")
            A("s_xor_b32 s70, s70, 7")
        self.p3_dec(True)
        A(f"v_mov_b32 v58, {K1.STG + 16384}")
        A("v_mov_b32 v3, 0")
        A("ds_write_b32 v58, v3 offset:16")
        A("ds_write_b32 v58, v3 offset:20")
        A("s_cmp_ge_u32 s72, 64")
        A("s_cbranch_scc1 .Lp3a_x")
        A(f"s_cmp_ge_u32 s{W}, 4")
        A("s_cbranch_scc1 .Lp3a_x")
        self.p3_tload(4)
        A.label(".Lp3a_x")
        A("s_waitcnt lgkmcnt(0)")
        A("s_barrier")
        A(f"s_lshl_b32 s3, s{M_}, 16")
        A(f"s_lshl_b32 s4, s{W}, 13")
        A("s_add_u32 s3, s3, s4")
        A("s_add_u32 s4, s3, 4096")
        for i in range(4 if XS else 8):
            A(f"buffer_load_dwordx4 v[{XR+4*i}:{XR+4*i+3}], v12, s[88:91], s{3 + (i >> 2)} offen offset:{(i & 3) * 1024}")
        if not XS: make_srd(A, 88, 6, 0, 256)
        if not XS:
            A("s_cmp_lt_u32 s72, 64")
            A("s_cbranch_scc1 .Lp3a_end")
            self.p3_wq("a")
            A.label(".Lp3a_end")
    def p3_gemv(self, sfx, n, maybe_ones, col):
        A = self.A
        W = K1.S_WAVE; KM = f"s{K1.S_MASK}"; SCR = K1.STG + 16384
        ACC = list(range(64, 72)); T = list(range(72, 80)); U = list(range(80, 96))
        C = list(range(224, 224 + n))
        GO = 8192 if sfx == 'a' else 12288; CT_ = 16 if sfx == 'a' else 20
        if maybe_ones:
            A("s_cmp_lt_u32 s73, 64")
            A(f"s_cbranch_scc1 .Lp3_silu{sfx}")
            for c in C: A(f"v_mov_b32 v{c}, 1.0")
            A(f"s_branch .Lp3_fma{sfx}")
            A.label(f".Lp3_silu{sfx}")
        seq = [lambda i, c: f"v_lshlrev_b32 v{c}, 16, v{c}", lambda i, c: f"v_mul_f32 v{T[i]}, {fhex(-LOG2E)}, v{c}",
               lambda i, c: f"v_exp_f32 v{T[i]}, v{T[i]}", None, lambda i, c: f"v_add_f32 v{T[i]}, 1.0, v{T[i]}",
               lambda i, c: f"v_rcp_f32 v{U[i]}, v{T[i]}", None, lambda i, c: f"v_mul_f32 v{U[8+i]}, v{c}, v{U[i]}",
               lambda i, c: f"v_fma_f32 v{T[i]}, -v{U[8+i]}, v{T[i]}, v{c}", lambda i, c: f"v_fma_f32 v{c}, v{T[i]}, v{U[i]}, v{U[8+i]}",
               lambda i, c: f"v_cvt_pk_bf16_f32 v{T[i]}, v{c}, v{c}", lambda i, c: f"v_lshlrev_b32 v{c}, 16, v{T[i]}"]
        for f in seq:
            if f is None: A("s_nop 0"); continue
            for i, c in enumerate(C): A(f(i, c))
        if maybe_ones: A.label(f".Lp3_fma{sfx}")
        for i in range(n):
            for j in range(4):
                w = 128 + 4 * i + j
                A(f"v_lshlrev_b32 v{T[2*j]}, 16, v{w}")
                A(f"v_and_b32 v{T[2*j+1]}, {KM}, v{w}")
            for j in range(8):
                A(f"v_mul_f32 v{ACC[j]}, v{T[j]}, v{C[i]}" if i == 0 else f"v_fmac_f32 v{ACC[j]}, v{T[j]}, v{C[i]}")
        A("v_and_b32 v2, 7, v1")
        A("v_lshrrev_b32 v3, 4, v0")
        for v in ACC: A(f"v_add_f32_dpp v{v}, v{v}, v{v} row_ror:8 row_mask:0xf bank_mask:0xf")
        A("v_lshlrev_b32 v3, 8, v3")
        A("v_lshl_add_u32 v3, v2, 5, v3")
        A(f"v_add_u32 v3, {SCR + GO}, v3")
        A("v_and_b32 v2, 8, v1")
        A("v_cmp_eq_u32 vcc, 0, v2")
        A("s_and_b64 exec, exec, vcc")
        A(f"ds_write_b128 v3, v[{ACC[0]}:{ACC[3]}]")
        A(f"ds_write_b128 v3, v[{ACC[4]}:{ACC[7]}] offset:16")
        A("s_mov_b64 exec, -1")
        A("s_waitcnt lgkmcnt(0)")
        self.lds_inc(CT_, 58)
        A(f"s_cmp_lg_u32 s{W}, {col}")
        A(f"s_cbranch_scc1 .Lp3_gd{sfx}")
        self.lds_spin(f".Lp3_sp{sfx}", CT_, 4, False, 58)
        A("v_lshlrev_b32 v2, 2, v1")
        A(f"v_add_u32 v3, {SCR + GO}, v2")
        for k in range(16): A(f"ds_read_b32 v{64+k}, v3 offset:{k*256}")
        for k in range(8):
            A(f"s_waitcnt lgkmcnt({14-2*k})")
            A(f"v_add_f32 v{64+2*k}, v{64+2*k}, v{65+2*k}")
        for k in range(4): A(f"v_add_f32 v{64+4*k}, v{64+4*k}, v{66+4*k}")
        A("v_add_f32 v64, v64, v68")
        A("v_add_f32 v72, v72, v76")
        A("v_add_f32 v234, v64, v72")
        A("buffer_store_dword v234, v2, s[84:87], s59 offen sc1")
        A.label(f".Lp3_gd{sfx}")
    def p3_ln(self, b):
        A = self.A; KM = f"s{K1.S_MASK}"; XR = K1.V_S
        R = [(list(range(64 + 8 * r, 72 + 8 * r)), list(range(96 + 8 * r, 104 + 8 * r))) for r in range(4)]
        for r, (X, T) in enumerate(R):
            for j in range(4):
                A(f"v_lshlrev_b32 v{X[2*j]}, 16, v{XR+16*b+4*r+j}")
                A(f"v_and_b32 v{X[2*j+1]}, {KM}, v{XR+16*b+4*r+j}")
        ln_fast(A, R, KM, False)
        for r, (X, T) in enumerate(R): pack8(A, X, XR + 16 * b + 4 * r)
    def p3_nload(self):
        A = self.A
        A("v_mov_b32 v2, 0")
        A("s_mov_b64 exec, 1")
        A("buffer_load_dwordx2 v[232:233], v2, s[88:91], 0 offen sc1")
        A("s_mov_b64 exec, -1")
    def p3_xwait(self, sfx, n):
        A = self.A
        A("s_sub_u32 s4, s2, 64")
        A("s_cmp_lt_u32 s4, 120")
        A(f"s_cbranch_scc1 .Lp3_xw{sfx}")
        A(f"s_waitcnt vmcnt({n})")
        A.label(f".Lp3_xw{sfx}")
        A(f"s_waitcnt vmcnt({n + 8})")
    def p3_b(self, loader, cfix, xn_loads):
        A = self.A
        W = K1.S_WAVE; M_ = K1.S_M; KM = f"s{K1.S_MASK}"; SCR = K1.STG + 16384
        CW = 0; PW = 1
        WQL = int(os.environ.get('WQL', '0'))
        def nonce(sfx):
            A("s_mov_b32 s4, 0")
            A.label(f".Lp3_nl{sfx}")
            A("v_readfirstlane_b32 s100, v232")
            A("v_readfirstlane_b32 s101, v233")
            A("s_add_u32 s4, s4, 1")
            A("s_cmp_lg_u32 s100, 0")
            A(f"s_cbranch_scc1 .Lp3_nd{sfx}")
            A("s_cmp_lt_u32 s4, 0x40000")
            A(f"s_cbranch_scc0 .Lp3_nd{sfx}")
            self.p3_nload()
            A("s_waitcnt vmcnt(0)")
            A(f"s_branch .Lp3_nl{sfx}")
            A.label(f".Lp3_nd{sfx}")
            A("v_mov_b32 v232, s100")
            A("v_mov_b32 v233, s101")
            A(f"v_mov_b32 v2, {SCR}")
            A("ds_write_b64 v2, v[232:233]")
        if XS:
            A("s_add_u32 s4, s3, 4096")
            for i in range(4, 8):
                A(f"buffer_load_dwordx4 v[{K1.V_S+4*i}:{K1.V_S+4*i+3}], v12, s[88:91], s4 offen offset:{(i & 3) * 1024}")
            make_srd(A, 88, 6, 0, 256)
            A("s_mov_b32 s6, 0")
            A("s_mov_b32 s7, 0")
            A(f"s_cmp_gt_u32 s{W}, 1")
            A("s_cbranch_scc1 .Lp3_e1")
            self.p3_nload()
            A("s_mov_b32 s6, 1")
            A.label(".Lp3_e1")
            A("s_cmp_lt_u32 s72, 64")
            A("s_cbranch_scc1 .Lp3a_end")
            self.p3_wq("a")
            A(f"s_lshr_b32 s7, s{W}, 2")
            A("s_or_b32 s6, s6, s7")
            A.label(".Lp3a_end")
        self.pst(2)
        A("s_cmp_ge_u32 s72, 64")
        A("s_cbranch_scc1 .Lp3_nc")
        A(f"s_cmp_ge_u32 s{W}, 4")
        A("s_cbranch_scc1 .Lp3_ln0")
        A("s_waitcnt vmcnt(8)")
        self.pst(3)
        self.p3_gemv("a", 4, False, PW)
        self.pst(4)
        A.label(".Lp3_nc")
        A.label(".Lp3_ln0")
        assert XS
        A("s_cmp_lg_u32 s6, 0")
        A("s_cbranch_scc1 .Lp3_ln0a")
        A("s_waitcnt vmcnt(4)")
        A.label(".Lp3_ln0a")
        A("s_waitcnt vmcnt(5)")
        self.pst(5)
        self.p3_ln(0)
        self.pst(6)
        make_srd(A, 36, 68, FP, 32 * 1024)
        A("s_cmp_lg_u32 s7, 0")
        A("s_cbranch_scc1 .Lp3_ln1a")
        A("s_waitcnt vmcnt(0)")
        A.label(".Lp3_ln1a")
        A("s_waitcnt vmcnt(1)")
        A(f"s_cmp_gt_u32 s{W}, 1")
        A("s_cbranch_scc1 .Lp3_n1")
        nonce("a")
        A.label(".Lp3_n1")
        A("s_cmp_ge_u32 s72, 64")
        A("s_cbranch_scc1 .Lp3_n3")
        A(f"s_cmp_lg_u32 s{W}, {PW}")
        A("s_cbranch_scc1 .Lp3_n2")
        A("v_lshlrev_b32 v3, 10, v1")
        A("s_lshl_b32 s4, s72, 3")
        A("s_mov_b32 exec_hi, 0")
        A("buffer_store_dwordx2 v[232:233], v3, s[36:39], s4 offen sc1")
        A("s_mov_b64 exec, -1")
        self.pst(7)
        A.label(".Lp3_n2")
        if WQL == 0: self.p3_wq("b")
        A.label(".Lp3_n3")
        A("s_cmp_ge_u32 s73, 120")
        A("s_cbranch_scc1 .Lp3_n4")
        A(f"s_cmp_ge_u32 s{W}, 4")
        A("s_cbranch_scc1 .Lp3_n4")
        self.p3_dec(False)
        A("s_cmp_ge_u32 s72, 64")
        A("s_cbranch_scc1 .Lp3_n3b")
        A("s_sleep 6")
        A.label(".Lp3_n3b")
        self.p3_tload(8)
        A.label(".Lp3_n4")
        make_srd(A, 76, 68, FP, 32 * 1024)
        self.p3_ln(1)
        self.pst(8)
        if WQL:
            A("s_cmp_ge_u32 s72, 64")
            A("s_cbranch_scc1 .Lp3_n9")
            A(f"s_cmp_eq_u32 s{W}, {CW}")
            A("s_cbranch_scc1 .Lp3_n9")
            self.p3_wq("b")
            A.label(".Lp3_n9")
        A("s_cmp_ge_u32 s73, 120")
        A("s_cbranch_scc1 .Lp3_n6")
        A(f"s_cmp_ge_u32 s{W}, 4")
        A("s_cbranch_scc1 .Lp3_n6")
        A("s_waitcnt vmcnt(0)")
        self.p3_gemv("b", 8, True, 1)
        A.label(".Lp3_n6")
        A(f"s_cmp_lg_u32 s{W}, {CW}")
        A("s_cbranch_scc1 .Lp3_n5")
        A(f"s_lshl_b32 s5, s{M_}, 10")
        A("v_lshlrev_b32 v3, 3, v1")
        self.poll64(".Lplm", [(3, 76, "s5")], cnt=4, slp=int(os.environ.get("PSLP", "0")))
        make_srd(A, 76, 68, WS_MOD, 4 * MODP)
        for i in range(4):
            for p in range(4):
                A(f"s_movk_i32 s4, {p * MODP}") if p * MODP < 32768 else A(f"s_mov_b32 s4, {p * MODP}")
                A(f"buffer_load_dwordx4 v[{64+16*i+4*p}:{67+16*i+4*p}], v12, s[76:79], s4 offen offset:{i*1024}")
        A.label(".Lp3_n5")
        self.pst(9)
        A(f"s_cmp_lg_u32 s{W}, {CW}")
        A("s_cbranch_scc1 .Lp3_n8")
        A(f"v_add_u32 v3, {SCR + 4096}, v12")
        for i in range(4):
            b = 64 + 16 * i
            A(f"s_waitcnt vmcnt({12 - 4*i})")
            pk(A, "v_pk_add_f32", b, b, b + 4); pk(A, "v_pk_add_f32", b + 2, b + 2, b + 6)
            pk(A, "v_pk_add_f32", b + 8, b + 8, b + 12); pk(A, "v_pk_add_f32", b + 10, b + 10, b + 14)
            pk(A, "v_pk_add_f32", b, b, b + 8); pk(A, "v_pk_add_f32", b + 2, b + 2, b + 10)
            round_multi(A, [b, b + 1, b + 2, b + 3], [b + 4, b + 5], KM)
            if i >= 2:
                for e in range(4): A(f"v_add_f32 v{b+e}, 1.0, v{b+e}")
                round_multi(A, [b, b + 1, b + 2, b + 3], [b + 4, b + 5], KM)
            A(f"ds_write_b128 v3, v[{b}:{b+3}] offset:{i*1024}")
        A("s_waitcnt lgkmcnt(0)")
        A.label(".Lp3_n8")
        A.label(".Lp3_Y")
        loader()
        A("s_barrier")
        self.pst(10)
        self.pst_flush()
        A(f"v_mov_b32 v2, {SCR}")
        A("ds_read_b64 v[2:3], v2")
        A("s_waitcnt lgkmcnt(0)")
        A("v_readfirstlane_b32 s100, v2")
        A("v_readfirstlane_b32 s101, v3")
    def p4_silu(self, C, T, U):
        A = self.A; n = len(C)
        seq = [lambda i, c: f"v_mul_f32 v{T[i]}, {fhex(-LOG2E)}, v{c}",
               lambda i, c: f"v_exp_f32 v{T[i]}, v{T[i]}", None, lambda i, c: f"v_add_f32 v{T[i]}, 1.0, v{T[i]}",
               lambda i, c: f"v_rcp_f32 v{U[i]}, v{T[i]}", None, lambda i, c: f"v_mul_f32 v{U[n+i]}, v{c}, v{U[i]}",
               lambda i, c: f"v_fma_f32 v{T[i]}, -v{U[n+i]}, v{T[i]}, v{c}", lambda i, c: f"v_fma_f32 v{c}, v{T[i]}, v{U[i]}, v{U[n+i]}"]
        for f in seq:
            if f is None: A("s_nop 0"); continue
            for i, c in enumerate(C): A(f(i, c))
    def p4_red8(self, sets, last):
        A = self.A
        DP = "row_mask:0xf bank_mask:"
        for S in sets:
            for k in range(4): A(f"v_permlane32_swap_b32 v{S[k]}, v{S[k+4]}")
        if len(sets) == 1: A("s_nop 0")
        for S in sets:
            for k in range(4): A(f"v_add_f32 v{S[k]}, v{S[k]}, v{S[k+4]}")
        A("s_nop 1" if len(sets) == 1 else "s_nop 0")
        for S in sets:
            for k in range(2): A(f"v_permlane16_swap_b32 v{S[k]}, v{S[k+2]}")
        A("s_nop 1")
        for S in sets:
            for k in range(2): A(f"v_add_f32 v{S[k]}, v{S[k]}, v{S[k+2]}")
        A("s_nop 1")
        for S in sets:
            A(f"v_add_f32_dpp v{S[2]}, v{S[0]}, v{S[0]} row_ror:8 {DP}0x3")
            A(f"v_add_f32_dpp v{S[2]}, v{S[1]}, v{S[1]} row_ror:8 {DP}0xc")
        src = 2
        for i, d in enumerate(last):
            A("s_nop 1" if len(sets) == 1 else "s_nop 0")
            for S in sets: A(f"v_add_f32_dpp v{S[0]}, v{S[src]}, v{S[src]} {d} {DP}0xf")
            src = 0
    def p4_xl(self):
        A = self.A; XR = K1.V_S
        A("s_add_u32 s4, s3, 4096")
        for i in range(8):
            A(f"buffer_load_dwordx4 v[{XR+4*i}:{XR+4*i+3}], v12, s[84:87], s{3 + (i >> 2)} offen offset:{(i & 3) * 1024}")
    def p4_a(self):
        A = self.A
        W = K1.S_WAVE; M_ = K1.S_M; XR = K1.V_S; SCR = K1.STG + K1.SCRO
        NLT = 64 if LT == 3 else 120
        A(f"v_mov_b32 v58, {SCR}")
        for i in range(4): A(f"v_mov_b32 v{4+i}, 0")
        A("ds_write_b128 v58, v[4:7]")
        A("ds_write_b128 v58, v[4:7] offset:16")
        if XH:
            A("s_getreg_b32 s57, hwreg(HW_REG_XCC_ID)")
            A("s_and_b32 s3, s2, 1")
            A("s_lshl_b32 s3, s3, 5")
            A("s_lshr_b32 s56, s2, 3")
            A("s_add_u32 s3, s3, s56")
            A("s_bitcmp1_b32 s2, 1")
            A("s_cselect_b32 s56, 0, 192")
            A("s_cselect_b32 s58, 64, 128")
            A("s_bitcmp1_b32 s57, 2" if XH == 1 else ("s_cmp_eq_u32 s57, s57" if XH == 2 else "s_cmp_lg_u32 s57, s57"))
            A("s_cselect_b32 s56, s58, s56")
            A("s_add_u32 s3, s3, s56")
        elif RM:
            A("s_add_u32 s3, s2, 6")
            A("s_and_b32 s3, s3, 7")
            A("s_lshl_b32 s3, s3, 5")
            A("s_lshr_b32 s57, s2, 3")
            A("s_add_u32 s3, s3, s57")
        else:
            A("s_sub_u32 s3, 255, s2")
        A(f"s_cmp_lt_u32 s{W}, 4")
        A("s_cselect_b32 s36, s3, 128")
        A("v_lshrrev_b32 v3, 3, v0")
        A("s_cmp_lt_u32 s36, 192")
        A("s_cbranch_scc1 .Lp4a_l")
        A("v_and_b32 v2, 1, v1")
        A("v_lshl_or_b32 v2, v3, 1, v2")
        A("v_lshlrev_b32 v61, 3, v2")
        A("v_mul_u32_u24 v60, 24576, v2")
        A("v_bfe_u32 v3, v1, 1, 2")
        A("v_lshl_add_u32 v60, v3, 4, v60")
        A("s_bfe_u32 s59, s3, 0x10005")
        A("s_and_b32 s58, s3, 31")
        A("s_lshl_b32 s58, s58, 6")
        A(f"s_mul_i32 s57, s59, {256 * 6144}")
        A("s_add_u32 s58, s58, s57")
        A("s_lshl_b32 s59, s59, 9")
        A("s_waitcnt lgkmcnt(0)")
        self.pst(1)
        make_srd(A, 76, 72, 0, 1024)
        make_srd(A, 80, 74, 0, 512 * 6144)
        A("buffer_load_dwordx2 v[224:225], v61, s[76:79], s59 offen")
        for i in range(4):
            A(f"buffer_load_dwordx4 v[{128+4*i}:{131+4*i}], v60, s[80:83], s58 offen")
            if i < 3: A("s_add_u32 s58, s58, 6144")
        A("s_branch .Lp4a_x")
        A.label(".Lp4a_l")
        A(f"s_cmp_ge_u32 s36, {NLT}")
        A("s_cbranch_scc1 .Lp4a_w")
        A("s_and_b32 s37, s3, 1")
        A("s_lshr_b32 s56, s3, 1")
        A("s_add_u32 s57, s56, 16")
        A("s_sub_u32 s56, s56, 32")
        A("s_cmp_lt_u32 s3, 64")
        A("s_cselect_b32 s56, s57, s56")
        A(f"s_movk_i32 s57, {CSP}")
        A(f"s_cselect_b32 s59, {MODP}, s57")
        A("s_movk_i32 s57, 3584")
        A("s_cselect_b32 s46, 6144, s57")
        A(f"s_cselect_b32 s47, {WS_MOD}, {WS_CS}")
        A("s_mul_i32 s59, s59, s37")
        A("s_add_u32 s59, s59, s47")
        A("s_lshl_b32 s57, s56, 8")
        A("s_add_u32 s59, s59, s57")
        A("s_lshl_b32 s58, s37, 8")
        A("s_mul_i32 s58, s58, s46")
        A("s_lshl_b32 s56, s56, 7")
        A("s_add_u32 s58, s58, s56")
        A("s_lshl_b32 s57, s37, 9")
        A("s_lshl_b32 s56, s46, 3")
        A("v_and_b32 v2, 7, v1")
        A("v_mul_lo_u32 v60, v3, s56")
        A("v_lshl_add_u32 v60, v2, 4, v60")
        A("v_lshlrev_b32 v61, 4, v3")
        A("s_cmp_lt_u32 s3, 64")
        A("s_waitcnt lgkmcnt(0)")
        make_srd(A, 76, 72, 0, 1024)
        A("s_cselect_b32 s80, s74, s96")
        A("s_cselect_b32 s81, s75, s97")
        A("s_lshl_b32 s82, s46, 9")
        A("s_mov_b32 s83, 0x00020000")
        A("buffer_load_dwordx4 v[224:227], v61, s[76:79], s57 offen")
        for i in range(8):
            A(f"buffer_load_dwordx4 v[{128+4*i}:{131+4*i}], v60, s[80:83], s58 offen")
            if i < 7: A("s_add_u32 s58, s58, s46")
        A.label(".Lp4a_w")
        A("s_waitcnt lgkmcnt(0)")
        self.pst(1)
        A.label(".Lp4a_x")
        make_srd(A, 88, 6, 0, 256)
        A(f"s_xor_b32 s57, s{W}, 4")
        if XH:
            A("s_lshr_b32 s56, s2, 3")
            A("s_or_b32 s57, s56, s57")
        else: A("s_or_b32 s57, s2, s57")
        A("s_cmp_lg_u32 s57, 0")
        A("s_cbranch_scc1 .Lp4a_non")
        A("s_or_b32 s70, s70, 1")
        A("v_mov_b32 v2, s70")
        A("v_mov_b32 v3, s71")
        A("s_mov_b64 exec, 1")
        if XH: A("buffer_atomic_cmpswap_x2 v[2:5], v6, s[88:91], 0 offen sc1")
        else: A("buffer_store_dwordx2 v[2:3], v5, s[88:91], 0 offen sc1")
        A("s_mov_b64 exec, -1")
        A.label(".Lp4a_non")
        if int(os.environ.get("HX", "0")):
            A(f"s_cmp_lg_u32 s{W}, 5")
            A("s_cbranch_scc1 .Lp4a_hx")
            A("s_cmp_ge_u32 s2, 14")
            A("s_cbranch_scc1 .Lp4a_hx")
            A("s_getreg_b32 s57, hwreg(HW_REG_XCC_ID)")
            A("s_and_b32 s57, s57, 15")
            A("s_mul_i32 s57, s57, 100000000")
            A("s_and_b32 s56, s70, 0xffff")
            A("s_add_u32 s57, s57, s56")
            A("v_mov_b32 v2, s57")
            A("s_lshl_b32 s57, s2, 2")
            A("s_mov_b64 exec, 1")
            A("buffer_store_dword v2, v5, s[88:91], s57 offen offset:8")
            A("s_mov_b64 exec, -1")
            A.label(".Lp4a_hx")
        make_srd(A, 84, 4, 0, 2 * MB)
        A("s_mov_b32 s70, s3")
        A("s_sub_u32 s72, s36, 192")
        A(f"s_cmp_lt_u32 s36, {NLT}")
        A("s_cselect_b32 s73, s36, 255")
        if XRT:
            A(f"s_add_u32 s71, s{W}, s{K1.S_G}")
            A("s_and_b32 s71, s71, 7")
            A("s_lshl_b32 s71, s71, 3")
        else: A(f"s_lshl_b32 s71, s{W}, 3")
        A(f"s_lshl_b32 s3, s{M_}, 16")
        A("s_lshl_b32 s4, s71, 10")
        A("s_add_u32 s3, s3, s4")
        A("s_barrier")
        if XL:
            A(f"s_cmp_ge_u32 s{W}, {XL}")
            A("s_cbranch_scc1 .Lp4a_nx")
        A("s_cmp_lt_u32 s73, 120")
        A("s_cbranch_scc1 .Lp4a_nx")
        if CX:
            A("s_sub_u32 s4, s70, s36")
            A("s_cmp_ge_i32 s4, 64")
        else:
            A("s_cmp_lt_u32 s72, 64")
        A("s_cbranch_scc1 .Lp4a_nx")
        self.p4_xl()
        if NW:
            A(f"s_cmp_lg_u32 s{W}, 0")
            A("s_cbranch_scc1 .Lp4a_nx")
            A("s_cmp_ge_u32 s70, 192")
            A("s_cbranch_scc1 .Lp4a_nx")
            self.p3_nload()
        A.label(".Lp4a_nx")
    def p4_arrive(self, lab):
        A = self.A
        A("v_mov_b32 v3, 1")
        A("s_waitcnt lgkmcnt(0)")
        A("s_mov_b64 exec, 1")
        A("ds_add_rtn_u32 v3, v58, v3 offset:16")
        A("s_mov_b64 exec, -1")
        A("s_waitcnt lgkmcnt(0)")
        A("v_readfirstlane_b32 s4, v3")
        A("s_cmp_lg_u32 s4, 3")
        A(f"s_cbranch_scc1 {lab}")
    def p4_slow(self, sfx, scol, spart, sA, sB, sT, KM):
        A = self.A
        ACC = list(range(112, 120)); F = list(range(96, 112)); C = list(range(64, 72))
        A(f"s_load_dwordx4 s[{sT}:{sT+3}], s[0:1], 80")
        A("v_and_b32 v2, 7, v1")
        A("v_lshrrev_b32 v3, 3, v1")
        A("v_mul_u32_u24 v60, 49152, v3")
        A("v_lshl_add_u32 v60, v2, 4, v60")
        A("v_lshlrev_b32 v61, 4, v3")
        A("v_lshl_add_u32 v2, v2, 3, v3")
        for a in ACC: A(f"v_mov_b32 v{a}, 0")
        A("s_waitcnt lgkmcnt(0)")
        make_srd(A, sA, sT, 0, 1024)
        make_srd(A, sB, sT + 2, 0, 512 * 6144)
        A(f"s_mul_i32 s{sT}, s{spart}, {256 * 6144}")
        A(f"s_add_u32 s{sT}, s{sT}, s{scol}")
        A(f"s_lshl_b32 s{sT+1}, s{spart}, 9")
        A(f"s_mov_b32 s{sT+2}, 4")
        A.label(f".Lp4s_{sfx}")
        A(f"buffer_load_dwordx4 v[224:227], v61, s[{sA}:{sA+3}], s{sT+1} offen")
        for i in range(8):
            A(f"buffer_load_dwordx4 v[{128+4*i}:{131+4*i}], v60, s[{sB}:{sB+3}], s{sT} offen")
            A(f"s_add_u32 s{sT}, s{sT}, {6144 if i < 7 else 57 * 6144}")
        A(f"s_add_u32 s{sT+1}, s{sT+1}, 128")
        A("s_waitcnt vmcnt(8)")
        for i in range(4):
            A(f"v_lshlrev_b32 v{C[2*i]}, 16, v{224+i}")
            A(f"v_and_b32 v{C[2*i+1]}, {KM}, v{224+i}")
        self.p4_silu(C, list(range(72, 80)), list(range(80, 96)))
        for i in range(4): A(f"v_cvt_pk_bf16_f32 v{72+i}, v{C[2*i]}, v{C[2*i+1]}")
        self.p4_forms([72, 73, 74, 75], F, KM)
        A("s_waitcnt vmcnt(0)")
        for i in range(8):
            for k in range(8):
                A(f"v_dot2_f32_bf16 v{ACC[k]}, v{128+4*i+k//2}, v{F[2*i+(k&1)]}, v{ACC[k]}")
        A(f"s_sub_u32 s{sT+2}, s{sT+2}, 1")
        A(f"s_cmp_lg_u32 s{sT+2}, 0")
        A(f"s_cbranch_scc1 .Lp4s_{sfx}")
        self.p4_red8([ACC], [])
    def p4_forms(self, P, F, KM=None):
        A = self.A; KM = KM or f"s{K1.S_MASK}"
        for i, p in enumerate(P):
            A(f"v_and_b32 v{F[4*i]}, 0xffff, v{p}")
            A(f"v_lshlrev_b32 v{F[4*i+1]}, 16, v{p}")
            A(f"v_lshrrev_b32 v{F[4*i+2]}, 16, v{p}")
            A(f"v_and_b32 v{F[4*i+3]}, {KM}, v{p}")
    def p4_wq(self):
        A = self.A; W = K1.S_WAVE
        A("v_and_b32 v4, 255, v0")
        A("v_lshrrev_b32 v2, 4, v4")
        A("v_and_b32 v3, 15, v4")
        A("v_lshlrev_b32 v3, 6, v3")
        A("v_lshl_add_u32 v2, v2, 13, v3")
        if int(os.environ.get("WQS", "0")):
            A(f"s_cmp_lt_u32 s{W}, 4")
            A("s_cbranch_scc1 .Lp4_wq")
            A(f"s_lshl_b32 s36, s{K1.S_M}, 17")
            A(f"s_lshl_b32 s37, s{K1.S_G}, 10")
            A("s_add_u32 s36, s36, s37")
            A(f"buffer_load_dword v63, v2, s[{K1.S_WQ}:{K1.S_WQ+3}], s36 offen")
            A.label(".Lp4_wq")
            return
        A("s_add_u32 s36, s70, 64")
        A("s_cmp_lt_u32 s70, 128")
        A("s_cselect_b32 s36, 256, s36")
        A("s_cmp_lt_u32 s70, 192")
        A("s_cselect_b32 s37, s70, 256")
        A(f"s_cmp_lt_u32 s{W}, 4")
        A("s_cselect_b32 s36, s36, s37")
        A("s_cmp_ge_u32 s36, 256")
        A("s_cbranch_scc1 .Lp4_wq")
        A("s_and_b32 s37, s36, 7")
        A("s_lshr_b32 s36, s36, 3")
        A("s_lshl_b32 s36, s36, 17")
        A("s_lshl_b32 s37, s37, 10")
        A("s_add_u32 s36, s36, s37")
        A(f"buffer_load_dword v63, v2, s[{K1.S_WQ}:{K1.S_WQ+3}], s36 offen")
        A.label(".Lp4_wq")
    def p4_nonce(self, sfx):
        A = self.A
        A("s_mov_b32 s4, 0")
        A.label(f".Lp4_nl{sfx}")
        A("v_readfirstlane_b32 s100, v232")
        A("v_readfirstlane_b32 s101, v233")
        A("s_add_u32 s4, s4, 1")
        A("s_cmp_lg_u32 s100, 0")
        A(f"s_cbranch_scc1 .Lp4_nd{sfx}")
        A("s_cmp_lt_u32 s4, 0x40000")
        A(f"s_cbranch_scc0 .Lp4_nd{sfx}")
        self.p3_nload()
        A("s_waitcnt vmcnt(0)")
        A(f"s_branch .Lp4_nl{sfx}")
        A.label(f".Lp4_nd{sfx}")
        A("s_or_b32 s100, s100, 1")
        A("v_mov_b32 v232, s100")
        A("v_mov_b32 v233, s101")
        A("ds_write_b64 v58, v[232:233]")
    def p4_nget(self, lab):
        A = self.A
        A.label(lab)
        A("ds_read_b64 v[2:3], v58")
        A("s_waitcnt lgkmcnt(0)")
        A("v_readfirstlane_b32 s100, v2")
        A("v_readfirstlane_b32 s101, v3")
        A("s_cmp_eq_u32 s100, 0")
        A(f"s_cbranch_scc1 {lab}")
    def p4_b(self, loader, cfix, xn_loads):
        A = self.A
        W = K1.S_WAVE; M_ = K1.S_M; KM = f"s{K1.S_MASK}"; SCR = K1.STG + K1.SCRO; XR = K1.V_S
        K10 = K1.V_K10; K01 = K1.V_K01
        ACC = list(range(72, 80))
        A("s_mov_b32 s6, 0")
        if XL:
            assert not CX and XL >= 4
            A(f"s_cmp_lt_u32 s{W}, {XL}")
            A("s_cbranch_scc1 .Lp4_xl0")
            self.p4_xl()
            A.label(".Lp4_xl0")
        if CX:
            A("s_cmp_lt_u32 s70, 192")
            A("s_cbranch_scc1 .Lp4_cx0")
            A(f"s_cmp_lt_u32 s{W}, 4")
            A("s_cbranch_scc1 .Lp4_cx0")
            self.p4_xl()
            A.label(".Lp4_cx0")
        XN_ = 8 if CX else 0
        self.pst(2)
        A("s_cmp_ge_u32 s72, 64")
        A("s_cbranch_scc1 .Lp4_nc")
        self.p3_nload()
        make_srd(A, 76, 68, WS_LL, NREP * 16384)
        A("v_and_b32 v2, 15, v1")
        A("v_lshrrev_b32 v4, 4, v1")
        A("v_lshlrev_b32 v4, 14, v4")
        A("v_lshl_add_u32 v4, v2, 4, v4")
        A("v_lshlrev_b32 v2, 5, v2")
        A(f"v_add_u32 v5, {SCR + 256}, v2")
        A("s_lshl_b32 s57, s72, 8")
        A("v_lshrrev_b32 v2, 3, v1")
        A("v_bfe_u32 v3, v1, 1, 2")
        A("v_lshl_add_u32 v2, v3, 3, v2")
        A(f"s_lshl_b32 s4, s{W}, 2")
        A(f"s_add_u32 s4, s4, {SCR + 256}")
        A("v_lshlrev_b32 v2, 4, v2")
        A("v_add_u32 v6, s4, v2")
        A(f"s_waitcnt vmcnt({5 + XN_})")
        C = [64, 65, 66, 67]
        for i in range(2):
            A(f"v_lshlrev_b32 v{C[2*i]}, 16, v{224+i}")
            A(f"v_and_b32 v{C[2*i+1]}, {KM}, v{224+i}")
        self.p4_silu(C, [68, 69, 70, 71], list(range(80, 88)))
        A("v_cvt_pk_bf16_f32 v64, v64, v65")
        A("v_cvt_pk_bf16_f32 v65, v66, v67")
        self.p4_forms([64, 65], list(range(80, 88)))
        for r in range(4):
            A(f"s_waitcnt vmcnt({4 - r + XN_})")
            if r == 3: self.pst(3)
            for k in range(8):
                A(f"v_dot2_f32_bf16 v{ACC[k]}, v{128+4*r+k//2}, v{80+2*r+(k&1)}, {'0' if r == 0 else 'v%d' % ACC[k]}")
        A("s_nop 0")
        self.p4_red8([ACC], ["quad_perm:[1,0,3,2]"])
        A(f"ds_write_b32 v6, v{ACC[0]}")
        self.pst(4)
        self.p4_arrive(".Lp4_cw")
        for i in range(2): A(f"ds_read_b128 v[{64+4*i}:{67+4*i}], v5 offset:{16*i}")
        A("s_waitcnt vmcnt(0)")
        self.p4_nonce("a")
        A("s_waitcnt lgkmcnt(0)")
        for b in (64, 68): pk(A, "v_pk_add_f32", b, b, b + 2)
        A("v_add_f32 v64, v64, v65")
        A("v_add_f32 v66, v68, v69")
        A("v_mov_b32 v65, s100")
        A("v_mov_b32 v67, s100")
        for i in range(NREP // 4):
            A("buffer_store_dwordx4 v[64:67], v4, s[76:79], s57 offen sc1")
            if i < NREP // 4 - 1: A("s_add_u32 s57, s57, 65536")
        if CX:
            self.pst(7)
            A("s_branch .Lp4_xd")
            A.label(".Lp4_cw")
            A("s_waitcnt vmcnt(1)")
            A("s_branch .Lp4_xd")
        else:
            self.lds_inc(16, 58)
            self.pst(7)
            A("s_branch .Lp4_cx")
            A.label(".Lp4_cw")
            self.lds_spin(".Lp4_spc", 16, 5, True, 58)
            A("s_branch .Lp4_cx")
        A.label(".Lp4_nc")
        A("s_cmp_ge_u32 s73, 120")
        A("s_cbranch_scc1 .Lp4_nl")
        F = list(range(96, 112)); C = list(range(64, 72))
        make_srd(A, 76, 68, 0, 128 * 1024)
        A("v_and_b32 v2, 7, v1")
        A("v_lshrrev_b32 v3, 3, v1")
        A("v_lshl_add_u32 v2, v2, 3, v3")
        A(f"s_lshl_b32 s4, s{W}, 8")
        A(f"s_add_u32 s4, s4, {SCR + 256}")
        A("v_lshlrev_b32 v2, 2, v2")
        A("v_add_u32 v6, s4, v2")
        A("v_lshlrev_b32 v4, 2, v1")
        A(f"v_add_u32 v5, {SCR + 256}, v4")
        A("s_cmp_lt_u32 s73, 64")
        A("s_cbranch_scc1 .Lp4_silu")
        for i in range(8):
            A(f"v_mov_b32 v{F[2*i]}, v{K10}")
            A(f"v_mov_b32 v{F[2*i+1]}, v{K01}")
        A("s_branch .Lp4_fma")
        A.label(".Lp4_silu")
        A("s_waitcnt vmcnt(8)")
        for i in range(4):
            A(f"v_lshlrev_b32 v{C[2*i]}, 16, v{224+i}")
            A(f"v_and_b32 v{C[2*i+1]}, {KM}, v{224+i}")
        self.p4_silu(C, list(range(72, 80)), list(range(80, 96)))
        for i in range(4): A(f"v_cvt_pk_bf16_f32 v{72+i}, v{C[2*i]}, v{C[2*i+1]}")
        self.p4_forms([72, 73, 74, 75], F)
        A.label(".Lp4_fma")
        for i in range(8):
            A(f"s_waitcnt vmcnt({7 - i})")
            if i == 7: self.pst(3)
            for k in range(8):
                A(f"v_dot2_f32_bf16 v{ACC[k]}, v{128+4*i+k//2}, v{F[2*i+(k&1)]}, {'0' if i == 0 else 'v%d' % ACC[k]}")
        self.p4_xl()
        self.p4_red8([ACC], [])
        A(f"ds_write_b32 v6, v{ACC[2]}")
        self.pst(4)
        A("s_mov_b32 s5, s73")
        A("s_movk_i32 s73, 255")
        self.p4_arrive(".Lp4_nl")
        A("s_mov_b32 s73, s5")
        for k in range(4): A(f"ds_read_b32 v{64+k}, v5 offset:{k*256}")
        A("s_waitcnt lgkmcnt(0)")
        A("v_add_f32 v64, v64, v65")
        A("v_add_f32 v66, v66, v67")
        A("v_add_f32 v64, v64, v66")
        A("buffer_store_dword v64, v4, s[76:79], s59 offen sc1")
        A("s_waitcnt vmcnt(1)")
        A("s_branch .Lp4_xd")
        if not CX:
            A.label(".Lp4_cx")
            self.p4_xl()
        A.label(".Lp4_nl")
        A("s_cmp_ge_u32 s70, 192")
        A("s_cbranch_scc1 .Lp4_e1")
        if NW:
            A(f"s_cmp_lt_u32 s70, {64 if LT == 3 else 120}")
            A("s_cbranch_scc1 .Lp4_e0")
            A(f"s_cmp_lg_u32 s{W}, 0")
            A("s_cbranch_scc1 .Lp4_e1")
            A("s_branch .Lp4_e2")
            A.label(".Lp4_e0")
        A(f"s_cmp_lg_u32 s{W}, 4")
        A("s_cbranch_scc1 .Lp4_e1")
        self.p3_nload()
        A.label(".Lp4_e2")
        if NW == 2:
            A("s_mov_b32 s6, 1")
            A("s_waitcnt vmcnt(1)")
            A("s_branch .Lp4_xd")
        else:
            A("s_waitcnt vmcnt(0)")
            self.p4_nonce("b")
        A.label(".Lp4_e1")
        A("s_waitcnt vmcnt(0)")
        A.label(".Lp4_xd")
        A("s_mov_b32 s7, 0x3f803f80")
        self.pst(5)
        if WQP == 0 and NW != 2: self.p4_wq()
        S = list(range(80, 88)); Q = list(range(88, 96))
        for r in range(8):
            for j in range(4):
                x = XR + 4 * r + j
                A(f"v_dot2_f32_bf16 v{S[r]}, v{x}, s7, {'0' if j == 0 else 'v%d' % S[r]}")
                A(f"v_dot2_f32_bf16 v{Q[r]}, v{x}, v{x}, {'0' if j == 0 else 'v%d' % Q[r]}")
        make_srd(A, 76, 68, WS_LL, NREP * 16384)
        A(f"s_and_b32 s57, s{M_}, {NREP - 1}")
        A("s_lshl_b32 s57, s57, 14")
        A(f"s_lshl_b32 s4, s{W}, 10")
        A("s_add_u32 s57, s57, s4")
        A("s_add_u32 s58, s57, 8192")
        self.p4_red8([S, Q], ["row_half_mirror", "quad_perm:[1,0,3,2]", "quad_perm:[2,3,0,1]"])
        m = S[0]; q = Q[0]
        A(f"v_mul_f32 v{m}, {fhex(1/512)}, v{m}")
        A(f"v_mul_f32 v{q}, {fhex(1/512)}, v{q}")
        A(f"v_fma_f32 v{q}, -v{m}, v{m}, v{q}")
        A(f"v_cvt_pk_bf16_f32 v{m}, 0, -v{m}")
        A(f"v_max_f32 v{q}, 0, v{q}")
        A(f"v_cvt_pk_bf16_f32 v{q}, 0, v{q}")
        A(f"v_add_f32 v{q}, {fhex(1e-5)}, v{q}")
        A(f"v_cvt_pk_bf16_f32 v{q}, 0, v{q}")
        A(f"v_sqrt_f32 v{q}, v{q}")
        for r in range(4): A(f"v_readlane_b32 s{8+r}, v{m}, {8*r}")
        A(f"v_cvt_pk_bf16_f32 v{q}, 0, v{q}")
        A(f"v_rcp_f32 v{q}, v{q}")
        for r in range(4, 8): A(f"v_readlane_b32 s{8+r}, v{m}, {8*r}")
        for r in range(8): A(f"v_readlane_b32 s{48+r}, v{q}, {8*r}")
        self.pst(6)
        if NW == 2:
            A("s_cmp_eq_u32 s6, 0")
            A("s_cbranch_scc1 .Lp4_e3")
            A("s_waitcnt vmcnt(0)")
            self.p4_nonce("b")
            A.label(".Lp4_e3")
            if WQP == 0: self.p4_wq()
        PPOS = int(os.environ.get("PPOS", "8"))
        if XH:
            A("s_sub_u32 s72, s70, 128")
            A(f"s_cmp_eq_u32 s{W}, 0")
            A("s_cselect_b32 s72, s72, 255")
            A("s_lshl_b32 s59, s72, 8")
            A(f"s_and_b32 s4, s{M_}, {NREP - 1}")
            A("s_lshl_b32 s4, s4, 14")
            A("s_add_u32 s59, s59, s4")
            A("v_and_b32 v7, 31, v1")
            A("v_lshlrev_b32 v7, 3, v7")
        with Cap(A) as cpl:
            if XH:
                lb = ".Lp4_g%d_"
                A("s_cmp_ge_u32 s72, 64")
                A(f"s_cbranch_scc1 {lb}")
                A("buffer_load_dwordx2 v[244:245], v7, s[76:79], s59 offen sc1")
                A.label(lb)
            A("buffer_load_dwordx4 v[236:239], v12, s[76:79], s57 offen sc1")
            A("buffer_load_dwordx4 v[240:243], v12, s[76:79], s58 offen sc1")
            if LDP == 1: loader()
        pn = [0]
        def poll1():
            pn[0] += 1
            A.lines.extend([l.replace("%d", str(pn[0])) for l in cpl.out])
        if DPP_:
            A("s_sub_u32 s6, s70, 64")
            A("s_cmp_ge_u32 s6, 128")
            A("s_cbranch_scc1 .Lp4_p0")
            poll1()
            A.label(".Lp4_p0")
        for r in range(8):
            if r == PPOS and not DPP_: poll1()
            T = 96 + 16 * (r & 1); x = XR + 4 * r
            for j in range(8): A(f"v_dot2_f32_bf16 v{T+j}, v{x+j//2}, v{(K10, K01)[j & 1]}, s{8+r}")
            for j in range(8): A(f"v_cvt_pk_bf16_f32 v{T+j}, 0, v{T+j}")
            sp = 48 + (r & ~1)
            for j in range(4): A(f"v_pk_mul_f32 v[{T+2*j}:{T+2*j+1}], v[{T+2*j}:{T+2*j+1}], s[{sp}:{sp+1}] " + ("op_sel:[0,1]" if r & 1 else "op_sel_hi:[1,0]"))
            for j in range(4): A(f"v_cvt_pk_bf16_f32 v{x+j}, v{T+2*j}, v{T+2*j+1}")
        if DPP_:
            A("s_cmp_lt_u32 s6, 128")
            A("s_cbranch_scc1 .Lp4_p1")
            poll1()
            A.label(".Lp4_p1")
        elif PPOS >= 8: poll1()
        self.pst(8)
        ND = 2 * int(os.environ.get('LDE', '2')) if LDP == 1 else 0
        A(f"s_waitcnt vmcnt({ND})")
        self.p4_nget(".Lp4_ng1")
        if XH:
            A("s_cmp_ge_u32 s72, 64")
            A("s_cbranch_scc1 .Lp4_gd")
            A("s_mov_b32 s4, 0")
            A.label(".Lp4_gl")
            A("v_cmp_ne_u32 vcc, s100, v245")
            A("s_add_u32 s4, s4, 1")
            A("s_cbranch_vccz .Lp4_gd")
            A(f"s_cmp_ge_u32 s4, {KFB}")
            A("s_cbranch_scc1 .Lp4_gf")
            A("buffer_load_dwordx2 v[244:245], v7, s[76:79], s59 offen sc1")
            A("s_waitcnt vmcnt(0)")
            A("s_branch .Lp4_gl")
            A.label(".Lp4_gf")
            A("s_lshr_b32 s5, s72, 5")
            A("s_bfe_u32 s6, s72, 0x40001")
            A("s_lshl_b32 s7, s6, 7")
            self.p4_slow("c", 7, 5, 80, 84, 48, KM)
            A("s_lshl_b32 s5, s5, 13")
            A("s_lshl_b32 s6, s6, 9")
            A("s_add_u32 s5, s5, s6")
            A("v_lshlrev_b32 v2, 3, v2")
            A("v_mov_b32 v115, s100")
            for i in range(NREP):
                A("buffer_store_dwordx2 v[114:115], v2, s[76:79], s5 offen sc1")
                if i < NREP - 1: A("s_add_u32 s5, s5, 16384")
            A.label(".Lp4_gd")
        A("s_mov_b32 s4, 0")
        A(f"s_cmp_ge_u32 s{W}, 4")
        A("s_cselect_b32 s71, 1.0, 0")
        A("s_cselect_b32 s7, 0, 16")
        A(f"s_lshl_b32 s6, s{W}, 9")
        A(f"s_add_u32 s6, s6, {SCR + 4096}")
        A("v_lshlrev_b32 v6, 3, v1")
        A("v_add_u32 v6, s6, v6")
        A.label(".Lp4_chk")
        A("v_xor_b32 v2, s100, v237")
        A("v_xor_b32 v3, s100, v239")
        A("v_xor_b32 v4, s100, v241")
        A("v_xor_b32 v5, s100, v243")
        A("v_or_b32 v2, v2, v3")
        A("v_or_b32 v4, v4, v5")
        A("v_cmp_ne_u32 s[12:13], 0, v2")
        A("v_cmp_ne_u32 vcc, 0, v4")
        A("s_add_u32 s4, s4, 1")
        A("s_or_b64 s[14:15], s[12:13], vcc")
        A("s_cbranch_scc0 .Lp4_ok")
        A("s_cmp_lt_u32 s4, 0x40000")
        A("s_cbranch_scc0 .Lp4_ok")
        if int(os.environ.get("PSL", "0")): A(f"s_sleep {int(os.environ.get('PSL', '0'))}")
        MRL = int(os.environ.get("MRL", "1"))
        if MRL: A("s_mov_b64 exec, s[12:13]")
        A("buffer_load_dwordx4 v[236:239], v12, s[76:79], s57 offen sc1")
        if MRL: A("s_mov_b64 exec, vcc")
        A("buffer_load_dwordx4 v[240:243], v12, s[76:79], s58 offen sc1")
        if MRL: A("s_mov_b64 exec, -1")
        A("s_waitcnt vmcnt(0)")
        A("s_branch .Lp4_chk")
        A.label(".Lp4_ok")
        self.pst(9)
        A("v_add_f32 v236, v236, v240")
        A("v_add_f32 v238, v238, v242")
        A("v_cvt_pk_bf16_f32 v236, 0, v236")
        A("v_cvt_pk_bf16_f32 v238, 0, v238")
        A("v_add_f32 v236, s71, v236")
        A("v_add_f32 v238, s71, v238")
        A("v_cvt_pk_bf16_f32 v2, v236, v238")
        A("v_and_b32 v236, 0xffff, v2")
        A(f"v_and_b32 v237, {KM}, v2")
        A("v_lshlrev_b32 v236, s7, v236")
        A("ds_write_b64 v6, v[236:237]")
        if LDP == 2: loader()
        if K1.R7: cfix()
        if WQP == 2: self.p4_wq()
        if int(os.environ.get("YSL", "0")): A(f"s_sleep {int(os.environ.get('YSL', '0'))}")
        A("s_waitcnt lgkmcnt(0)")
        A("s_barrier")
        self.pst(10)
        self.pst_flush()
    def w_setup(self, widx, K, rowbytes, woff_code):
        A = self.A
        make_srd(A, S_W, P_W + 2 * widx, 0, K * rowbytes)
        A(f"v_lshrrev_b32 v2, 3, v{L}")
        A(f"v_and_b32 v3, 7, v{L}")
        A(f"v_lshlrev_b32 v{V_W}, 1, v2")
        A(f"v_and_b32 v{V_W}, 4, v{V_W}")
        A(f"v_xor_b32 v3, v3, v{V_W}")
        A("v_lshlrev_b32 v3, 4, v3")
        A(f"v_mul_u32_u24 v2, {rowbytes}, v2") if rowbytes < 64 else None
        A(f"s_movk_i32 s{S_WOFF}, {rowbytes}")
        A(f"v_mul_lo_u32 v2, v2, s{S_WOFF}")
        A(f"v_add_u32 v{V_W}, v2, v3")
        woff_code()
        if PRI: A(f"s_sub_u32 s{S_WOFF}, s{S_WOFF}, {8 * rowbytes}")
        self.wrb = rowbytes
    def dmaW(self, st, ldsoff, tag="w"):
        A = self.A
        for i in range(2):
            A(f"s_add_u32 m0, s{S_RB}, {ldsoff + i * 1024}")
            A(f"s_add_u32 s{S_WOFF}, s{S_WOFF}, {8 * self.wrb}" if PRI else "s_nop 0")
            A(f"buffer_load_dwordx4 v{V_W}, s[{S_W}:{S_W+3}], s{S_WOFF} offen lds")
            self.vm.issue((tag, st))
            if not PRI: A(f"s_add_u32 s{S_WOFF}, s{S_WOFF}, {8 * self.wrb}")
    def pf_g64(self, widx, K, WB, DW, lo=0, hi=99, rot=0):
        A = self.A
        def woff():
            A(f"s_mul_i32 s{S_WOFF}, s{S_WAVE}, {(K // 4) * 1024}")
            A(f"s_lshl_b32 s{S_TMP+11}, s{S_J}, 7")
            A(f"s_add_u32 s{S_WOFF}, s{S_WOFF}, s{S_TMP+11}")
        if lo == 0: self.w_setup(widx, K, 1024, woff)
        self.wrb = 1024
        for st in range(lo, min(DW, hi)): self.dmaW(st, WB + ((st + rot) % DW) * 2048, "wn" if PFE == 3 else "w")
    def pf_fg(self, lo=0, hi=11 + FGE, alt=False, tag="wn"):
        A = self.A
        def woff():
            A(f"s_mul_i32 s{S_WOFF}, s{S_WAVE}, {448 * 1024}")
            A(f"s_lshl_b32 s{S_TMP+11}, s{S_J}, 7")
            A(f"s_add_u32 s{S_WOFF}, s{S_WOFF}, s{S_TMP+11}")
        if lo == 0: self.w_setup(3, 1792, 1024, woff)
        self.wrb = 1024
        for st in range(lo, hi): self.dmaW(st, fg_slot(st), tag)
    def d6_woffs(self, ks_, swv, dst):
        A = self.A
        A(f"s_cmp_eq_u32 s{S_J}, 7")
        A(f"s_cselect_b32 s64, 0, s{S_J}")
        A(f"s_lshl_b32 s57, s{swv}, 16")
        A(f"s_lshl_b32 s{S_TMP+11}, s{S_J}, 7")
        A(f"s_add_u32 s57, s57, s{S_TMP+11}")
        for i, k in enumerate(ks_):
            d = dst + i
            A(f"s_add_u32 s{d}, s64, {k}")
            A(f"s_sub_u32 s{S_TMP+11}, s{d}, 7")
            A(f"s_cselect_b32 s{d}, s{d}, s{S_TMP+11}")
            A(f"s_lshl_b32 s{d}, s{d}, 18")
            A(f"s_add_u32 s{d}, s{d}, s57")
    def d6_dma(self, sw, q, lds, tag="wn"):
        A = self.A
        for i in range(2):
            if isinstance(lds, int): A(f"s_add_u32 m0, s{S_RB}, {lds + i * 1024}")
            else: A(f"s_add_u32 m0, s{lds[0]}, {lds[1] + i * 1024}")
            A(f"s_add_u32 s{S_WOFF}, s{sw}, {q * 16384 + i * 8192}")
            A(f"buffer_load_dwordx4 v{V_W}, s[{S_W}:{S_W+3}], s{S_WOFF} offen lds")
            self.vm.issue((tag, q))
    def pf_d6(self, lo=0, hi=11, alt=False):
        if lo == 0: self.w_setup(3, 1792, 1024, lambda: self.d6_woffs(range(5), S_WAVE, 12))
        sl = [9 + (21 + i) % 11 for i in range(lo, hi)] + (list(range(9)) if alt else [])
        for s_ in sl:
            k = D6POS.index(s_ >> 2)
            self.d6_dma(12 + k, s_ & 3, s_ * 2048)
    def pf_k5(self, lo=0, hi=99):
        A = self.A
        def woff():
            A(f"s_min_u32 s{S_WOFF}, s{S_J}, 6")
            A(f"s_lshl_b32 s{S_WOFF}, s{S_WOFF}, 9")
            A(f"s_lshl_b32 s{S_TMP+11}, s{S_WAVE}, 7")
            A(f"s_add_u32 s{S_WOFF}, s{S_WOFF}, s{S_TMP+11}")
        if lo == 0: self.w_setup(2, 512, 3584, woff)
        self.wrb = 3584
        for st in range(lo, min(K5D, hi)): self.dmaW(st, K5RB + st * 2048, "wn" if PFE == 3 else "w")
    def l2pf(self, widx, size):
        A = self.A
        per = size // 32
        A("s_lshr_b32 s78, s2, 3")
        A(f"s_mul_i32 s78, s78, {per}")
        make_srd(A, 80, P_W + 2 * widx, "s78", per)
        A("v_and_b32 v2, 255, v0")
        A("v_lshlrev_b32 v2, 7, v2")
        n = (per + 32767) // 32768
        for i in range(n):
            A(f"s_mov_b32 s78, {i * 32768}")
            A("buffer_load_dword v3, v2, s[80:83], s78 offen")
        return n
    def persist(self):
        A = self.A
        A(f"s_load_dwordx2 s[{P_X}:{P_X+1}], s[0:1], 0")
        A(f"s_load_dwordx2 s[{P_OUT}:{P_OUT+1}], s[0:1], 96")
        A(f"s_load_dwordx2 s[{P_WS}:{P_WS+1}], s[0:1], 112")
        A(f"s_load_dwordx8 s[{P_W}:{P_W+7}], s[0:1], 48")
        A("v_and_b32 v1, 63, v0")
        A("v_lshrrev_b32 v2, 6, v0")
        A("s_nop 0")
        A(f"v_readfirstlane_b32 s{S_WAVE}, v2")
        A(f"s_and_b32 s{S_M}, s2, 31")
        A(f"s_lshr_b32 s{S_J}, s2, 5")
        A(f"s_mov_b32 s{S_MASK}, 0xffff0000")
        A(f"s_mul_i32 s{S_RB}, s{S_WAVE}, {RG}")
        A("s_waitcnt lgkmcnt(0)")
    def kr(self):
        A = self.A; vm = self.vm
        S_X = 8; S_MOD = 12; S_PT = 16; S_X2 = 20; S_H = 24; S_HN = 28; S_H1 = 36
        PR = 64; XR = 16; GA = 24; CB = 32; SB = 40
        A("v_lshlrev_b32 v9, 4, v1")
        A("v_lshlrev_b32 v10, 5, v1")
        A(f"s_lshl_b32 s3, s{S_M}, 3")
        A(f"s_add_u32 s3, s3, s{S_J}")
        A("s_lshl_b32 s3, s3, 3")
        A(f"s_add_u32 s3, s3, s{S_WAVE}")
        A("s_lshl_b32 s3, s3, 10")
        make_srd(A, S_X, P_X, 0, 2 * MB)
        make_srd(A, S_MOD, P_WS, WS_MOD, 4 * MODP)
        if HA:
            assert KRF and W0M and not PRG
            A("v_lshlrev_b32 v11, 3, v1")
            for h in range(2):
                A(f"buffer_load_dwordx2 v[{XR+2*h}:{XR+2*h+1}], v11, s[{S_X}:{S_X+3}], s3 offen offset:{512*h}"); vm.issue("x")
        else:
            A(f"buffer_load_dwordx4 v[{XR}:{XR+3}], v9, s[{S_X}:{S_X+3}], s3 offen"); vm.issue("x")
        def rowst(r, srd):
            if HA:
                for h in range(2): A(f"buffer_store_dwordx2 v[{r+2*h}:{r+2*h+1}], v11, s[{srd}:{srd+3}], s3 offen offset:{512*h} sc1")
            else: A(f"buffer_store_dwordx4 v[{r}:{r+3}], v9, s[{srd}:{srd+3}], s3 offen sc1")
        def modloads():
            for part in range(2 if V2 else 1):
                for (dst, idx) in ((CB, 4), (GA, 2), (SB, 3)):
                    d = dst + 88 * part
                    A(f"s_movk_i32 s{S_TMP}, {idx*2048 + part*MODP}")
                    A(f"buffer_load_dwordx4 v[{d}:{d+3}], v10, s[{S_MOD}:{S_MOD+3}], s{S_TMP} offen"); vm.issue("x")
                    A(f"buffer_load_dwordx4 v[{d+4}:{d+7}], v10, s[{S_MOD}:{S_MOD+3}], s{S_TMP} offen offset:16"); vm.issue("x")
        if HA:
            A("v_add_u32 v2, 81920, v9")
            for q, off in enumerate((0, 16384, 49152)):
                A(f"ds_read_b128 v[{24+8*q}:{27+8*q}], v2 offset:{off}")
                A(f"ds_read_b128 v[{28+8*q}:{31+8*q}], v2 offset:{off+1024}")
            A(f"s_and_b32 s48, s{S_WAVE}, 2")
            A("s_lshl_b32 s48, s48, 13")
            A(f"s_lshr_b32 s49, s{S_WAVE}, 2")
            A("s_lshl_b32 s49, s49, 11")
            A("s_add_u32 s48, s48, s49")
            A(f"s_and_b32 s49, s{S_WAVE}, 1")
            A("s_lshl_b32 s49, s49, 10")
            A("s_add_u32 s48, s48, s49")
            A("v_add_u32 v63, s48, v2")
            A("v_mov_b32 v56, 0x3f80")
            A("v_mov_b32 v57, 1.0")
            A(f"s_sub_u32 s48, s{S_WAVE}, 2")
            A("s_cmp_ge_u32 s48, 2")
            A("s_cbranch_scc1 .Lha_k1")
            A("s_cmp_lg_u32 s65, 0")
            A("s_cbranch_scc1 .Lha_k1")
            make_srd(A, 72, P_WS, WS_PART, 8 * 2048 * 512 * 2)
            make_srd(A, 76, P_WS, WS_FLAG + 5 * 8192, 8192)
            self.poll64(".Lpla", [(60, 76, "s96")])
            self.ha_loads()
            A.label(".Lha_k1")
            A("s_waitcnt lgkmcnt(0)")
        elif W0M:
            A("v_add_u32 v2, 81920, v10")
            for q, off in enumerate((0, 16384, 49152)):
                A(f"ds_read_b128 v[{24+8*q}:{27+8*q}], v2 offset:{off}")
                A(f"ds_read_b128 v[{28+8*q}:{31+8*q}], v2 offset:{off+16}")
            A("s_waitcnt lgkmcnt(0)")
        else: modloads()
        make_srd(A, S_PT, P_WS, WS_PART, 8 * 2048 * 512 * 2)
        make_srd(A, S_X2, P_WS, WS_X2, 2 * MB)
        make_srd(A, S_H, P_WS, WS_H, 2 * MB)
        make_srd(A, S_HN, P_WS, WS_HN, 2 * MB)
        make_srd(A, S_H1, P_WS, WS_H1, 2052 * 1024)
        if HP:
            A(f"v_lshlrev_b32 v2, 2, v1")
            A(f"v_add_u32 v2, {CNT}, v2")
            A("v_mov_b32 v3, 0")
            A("ds_write_b32 v2, v3")
            A("s_waitcnt lgkmcnt(0)")
        A(f"s_cmp_ge_u32 s{S_WAVE}, 4")
        A("s_cbranch_scc1 .Lkr_nz2")
        A(f"s_lshr_b32 s{S_TMP}, s{S_WAVE}, 1")
        A(f"s_mul_i32 s{S_TMP}, s{S_TMP}, 31")
        A(f"s_cmp_lg_u32 s2, s{S_TMP}")
        A("s_cbranch_scc1 .Lkr_nz")
        A(f"s_lshl_b32 s{S_TMP}, s{S_WAVE}, 10")
        A(f"s_add_u32 s{S_TMP+1}, s{S_TMP}, {2048*1024}")
        A(f"s_cmp_lt_u32 s{S_WAVE}, 2")
        A(f"s_cselect_b32 s{S_TMP}, s{S_TMP}, s{S_TMP+1}")
        for j in range(4): A(f"v_mov_b32 v{12+j}, 0")
        A(f"buffer_store_dwordx4 v[12:15], v9, s[{S_H1}:{S_H1+3}], s{S_TMP} offen sc1")
        A.label(".Lkr_nz")
        PFW1 = int(os.environ.get("PFW1", "1"))
        if PRG:
            PFP = int(os.environ.get("PFP", "1"))
            if PFP == 0: self.pf_g64(0, 512, 24576, 8)
            PFW1 = 0
            A.label(".Lkr_nz2")
            A(f"s_mul_i32 s{S_TMP}, s{S_M}, {7 * 65536}")
            A(f"s_add_u32 s{S_TMP}, s{S_TMP}, s3")
            A(f"v_mov_b32 v4, {MSK}")
            A(f"s_mov_b32 s{S_TMP+1}, 0")
            A(f"s_cmp_lg_u32 s{S_WAVE}, 7")
            A("s_cbranch_scc1 .Lkr_lp")
            A("v_and_b32 v3, 7, v1")
            A("v_lshlrev_b32 v3, 3, v3")
            A("v_add_u32 v3, s96, v3")
            A("s_mov_b32 s99, 0")
            A.label(".Lkr_pp")
            A("buffer_load_dwordx2 v[248:249], v3, s[92:95], 0 offen sc1")
            A("s_add_u32 s99, s99, 1")
            A("s_waitcnt vmcnt(0)")
            A("v_xor_b32 v248, s100, v248")
            A("v_xor_b32 v249, s101, v249")
            A("v_or_b32 v248, v248, v249")
            A("v_cmp_eq_u32 vcc, 0, v248")
            A(f"s_and_b32 s{S_TMP+2}, vcc_lo, 0xff")
            A("s_cmp_lt_u32 s99, 0x40000")
            A(f"s_cselect_b32 s{S_TMP+2}, s{S_TMP+2}, 0xff")
            A(f"v_mov_b32 v5, s{S_TMP+2}")
            A("s_mov_b64 exec, 1")
            A("ds_or_b32 v4, v5")
            A("s_mov_b64 exec, -1")
            A(f"s_cmp_lg_u32 s{S_TMP+2}, 0xff")
            A("s_cbranch_scc1 .Lkr_pp")
            self.stamp(4)
            A.label(".Lkr_lp")
            A("ds_read_b32 v5, v4")
            A("s_waitcnt lgkmcnt(0)")
            A(f"v_readfirstlane_b32 s{S_TMP+2}, v5")
            A(f"s_andn2_b32 s{S_TMP+3}, s{S_TMP+2}, s{S_TMP+1}")
            A("s_cbranch_scc1 .Lkr_new")
            A("s_sleep 1")
            A("s_branch .Lkr_lp")
            A.label(".Lkr_new")
            for g in range(8):
                A(f"s_bitcmp1_b32 s{S_TMP+3}, {g}")
                A(f"s_cbranch_scc0 .Lkr_n{g}")
                A(f"s_add_u32 s{S_TMP+4}, s{S_TMP}, {g * 65536}")
                A(f"buffer_load_dwordx4 v[{PR+4*g}:{PR+4*g+3}], v9, s[{S_PT}:{S_PT+3}], s{S_TMP+4} offen")
                A.label(f".Lkr_n{g}")
            A(f"s_mov_b32 s{S_TMP+1}, s{S_TMP+2}")
            A(f"s_cmp_lg_u32 s{S_TMP+1}, 0xff")
            A("s_cbranch_scc1 .Lkr_lp")
            if PFP == 1:
                A(f"s_cmp_ge_u32 s{S_WAVE}, 4")
                A("s_cbranch_scc1 .Lkr_w0")
                self.pf_g64(0, 512, 24576, 8)
                A("s_waitcnt vmcnt(16)")
                A("s_branch .Lkr_w1")
                A.label(".Lkr_w0")
            A("s_waitcnt vmcnt(0)")
            if PFP == 1: A.label(".Lkr_w1")
            if PFP == 2: PFW1 = 2
            vm.ops = []
        else:
            sv = list(vm.ops)
            if PFW1 == 1: self.pf_g64(0, 512, 24576, 8)
            vm.ops = sv
            if HA:
                assert PFW1 == 1
                A(f"s_cmp_lt_u32 s{S_WAVE}, 2")
                A("s_cbranch_scc1 .Lkr_nz2")
                A("s_waitcnt vmcnt(16)")
                for g in range(8):
                    for p in range(2):
                        for j in range(8):
                            A(f"v_dot2_f32_bf16 v{96+8*p+j}, v{128+8*g+4*p+j//2}, v{56 + (j & 1)}, " + ("0" if g == 0 else f"v{96+8*p+j}"))
                A("s_nop 1")
                for p in range(2):
                    A(f"ds_write_b128 v62, v[{96+8*p}:{99+8*p}] offset:{p*16384}")
                    A(f"ds_write_b128 v62, v[{100+8*p}:{103+8*p}] offset:{p*16384+16}")
                A("s_waitcnt lgkmcnt(0)")
            A.label(".Lkr_nz2")
            def rebuild():
                make_srd(A, S_PT, P_WS, WS_PART, 8 * 2048 * 512 * 2)
                make_srd(A, S_X2, P_WS, WS_X2, 2 * MB)
                make_srd(A, S_X, P_X, 0, 2 * MB)
                make_srd(A, S_MOD, P_WS, WS_MOD, 4 * MODP)
            self.poll(0, after=rebuild)
            A("s_barrier")
            self.stamp(4)
            PL = int(os.environ.get("PL", "1"))
            if PL:
                A(f"s_mul_i32 s{S_TMP}, s{S_M}, {7 * 65536}")
                A(f"s_add_u32 s{S_TMP}, s{S_TMP}, s3")
            else: A(f"s_mov_b32 s{S_TMP}, s3")
            for g in range(8):
                if HA: A(f"buffer_load_dwordx2 v[{PR+4*g+2}:{PR+4*g+3}], v11, s[{S_PT}:{S_PT+3}], s{S_TMP} offen offset:512")
                else: A(f"buffer_load_dwordx4 v[{PR+4*g}:{PR+4*g+3}], v9, s[{S_PT}:{S_PT+3}], s{S_TMP} offen {os.environ.get('PLF', '')}")
                vm.issue(("p", g))
                if g < 7: A(f"s_add_u32 s{S_TMP}, s{S_TMP}, {65536 if PL else 2048*512*2}")
        X = list(range(48, 56)); T = list(range(PR, PR + 12)); XU = list(range(96, 104))
        if HA: A("ds_read_b128 v[48:51], v63 offset:4096")
        if PFW1 == 3:
            def woff():
                A(f"s_and_b32 s{S_TMP+9}, s{S_WAVE}, 3")
                A(f"s_lshr_b32 s{S_TMP+8}, s{S_WAVE}, 2")
                A(f"s_lshl_b32 s{S_WOFF}, s{S_TMP+9}, 17")
                A(f"s_lshl_b32 s{S_TMP+11}, s{S_TMP+8}, 16")
                A(f"s_add_u32 s{S_WOFF}, s{S_WOFF}, s{S_TMP+11}")
                A(f"s_lshl_b32 s{S_TMP+11}, s{S_J}, 7")
                A(f"s_add_u32 s{S_WOFF}, s{S_WOFF}, s{S_TMP+11}")
                A(f"s_mov_b32 s{S_TMP+7}, s{S_RB}")
                A(f"s_mul_i32 s{S_RB}, s{S_TMP+9}, {RG}")
                A(f"s_lshl_b32 s{S_TMP+8}, s{S_TMP+8}, 13")
                A(f"s_add_u32 s{S_RB}, s{S_RB}, s{S_TMP+8}")
            self.w_setup(0, 512, 1024, woff)
            for st in range(4): self.dmaW(st, 24576 + st * 2048, "wn")
            A(f"s_mov_b32 s{S_RB}, s{S_TMP+7}")
        if int(os.environ.get("KRX", "0")):
            vm.wait(("p", 0)); self.stamp(25)
            vm.wait(("p", 7)); self.stamp(26)
        vm.wait("x")
        if V2 and not W0M:
            for j in range(0, 24, 2): pk(A, "v_pk_add_f32", GA + j, GA + j, GA + 88 + j)
            for q in range(3): round_multi(A, list(range(GA + 8*q, GA + 8*q + 8)), [56, 57, 58, 59], SM)
        if not W0M:
            for j in range(8): A(f"v_add_f32 v{CB+j}, 1.0, v{CB+j}")
            round_multi(A, list(range(CB, CB + 8)), [56, 57, 58, 59], SM)
        for j in range(4):
            A(f"v_lshlrev_b32 v{XU[2*j]}, 16, v{XR+j}")
            A(f"v_and_b32 v{XU[2*j+1]}, {SM}, v{XR+j}")
        if KRF:
            A("v_mov_b32 v56, 0x3f80")
            A("v_mov_b32 v57, 1.0")
            A("s_mov_b32 s50, 0x3f803f80")
        for g in range(8):
            vm.wait(("p", g))
            if KRF:
                for j in range(4 if HA else 0, 8): A(f"v_dot2_f32_bf16 v{X[j]}, v{PR+4*g+j//2}, v{56 + (j & 1)}, " + ("0" if g == 0 else f"v{X[j]}"))
            elif g == 0:
                for j in range(4):
                    A(f"v_lshlrev_b32 v{X[2*j]}, 16, v{PR+j}")
                    A(f"v_and_b32 v{X[2*j+1]}, {SM}, v{PR+j}")
            else:
                U = 136 + 8 * (g & 1)
                for j in range(4):
                    p = PR + 4 * g + j
                    A(f"v_lshlrev_b32 v{U+2*j}, 16, v{p}")
                    A(f"v_and_b32 v{U+2*j+1}, {SM}, v{p}")
                for j in range(0, 8, 2): pk(A, "v_pk_add_f32", X[j], X[j], U + j)
        if HA: A("s_waitcnt lgkmcnt(0)")
        self.stamp(23)
        if PFW1 == 2:
            A(f"s_cmp_ge_u32 s{S_WAVE}, 4")
            A("s_cbranch_scc1 .Lkr_nz3")
            self.pf_g64(0, 512, 24576, 8)
            A.label(".Lkr_nz3")
        round_multi(A, X, T[5:9], SM)
        for j in range(0, 8, 2): pk(A, "v_pk_mul_f32", X[j], X[j], GA + j)
        round_multi(A, X, T[5:9], SM)
        for j in range(0, 8, 2): pk(A, "v_pk_add_f32", X[j], X[j], XU[j])
        pack8(A, X, XR)
        rowst(XR, S_X2)
        if KRF:
            ln_pk(A, XR, X, 58, 59, 56, 57, 50, 52, 54, SM)
            round_multi(A, X, T[5:9], SM)
        else:
            for j in range(4):
                A(f"v_lshlrev_b32 v{X[2*j]}, 16, v{XR+j}")
                A(f"v_and_b32 v{X[2*j+1]}, {SM}, v{XR+j}")
            ln_rows(A, [(X, T)], SM)
        for j in range(0, 8, 2): pk(A, "v_pk_mul_f32", X[j], X[j], CB + j)
        round_multi(A, X, T[5:9], SM)
        for j in range(0, 8, 2): pk(A, "v_pk_add_f32", X[j], X[j], SB + j)
        pack8(A, X, 80)
        rowst(80, S_H)
        self.stamp(24)
        if KRF: ln_pk(A, 80, X, 58, 59, 56, 57, 50, 52, 54, SM)
        else:
            for j in range(4):
                A(f"v_lshlrev_b32 v{X[2*j]}, 16, v{80+j}")
                A(f"v_and_b32 v{X[2*j+1]}, {SM}, v{80+j}")
            ln_rows(A, [(X, T)], SM, False)
        pack8(A, X, 84)
        rowst(84, S_HN)
    def g64(self, lab, stage, K, a_off, a_size, a_rb, epi, WB, DW, nbr, next_pf, own_pf=None, rot=0, nsched=None, l2=None, split=False):
        A = self.A; vm = self.vm; lg = self.lg
        S_G = 8; S_X1 = 16; S_X2 = 20; S_MOD = 24; S_O = 28; S_ST = 36
        KW = K // 4; NCH = KW // 64; NS = NCH * 4; DG = 3
        VG = [4, 5]; AA = 16; BA = 18
        X1 = 24; X2 = 32; GB = 40
        V_PW = 48; V_PR = 49; V_GA = 51; V_SA = 52; VC = (12, 14, 54)
        ACC = 64; FR = 128
        NBG = int(os.environ.get('NBG', '3'))
        half = HP and K == 512
        frag = FG and epi == "final"
        GB2 = [28, 36] if frag else [180, 184]
        SW = S_R8 if half else S_WAVE
        CO = 16 * stage
        def tail_setup():
            if half:
                A(f"s_add_u32 s{S_R8}, s{S_WAVE}, 4")
                A(f"s_and_b32 s{S_R8}, s{S_R8}, 7")
                A(f"v_mov_b32 v{V_CT}, {CNT}")
            A(f"v_lshrrev_b32 v10, 3, v{L}")
            A(f"v_and_b32 v11, 7, v{L}")
            A(f"v_mul_u32_u24 v{V_PR}, {RS}, v10")
            A(f"v_lshl_add_u32 v{V_PR}, v11, 5, v{V_PR}")
            A(f"s_mul_i32 s{S_TMP+3}, s{SW}, {8*RS}")
            A(f"v_add_u32 v{V_PR}, s{S_TMP+3}, v{V_PR}")
            A(f"v_add_u32 v{V_PR+1}, {2*RG}, v{V_PR}")
            A(f"v_lshlrev_b32 v{V_GA}, 4, v11")
            A(f"v_lshl_add_u32 v{V_GA}, v10, 10, v{V_GA}")
            A(f"s_lshl_b32 s{S_TMP+2}, s{S_M}, 16")
            A(f"s_lshl_b32 s{S_TMP+3}, s{SW}, 13")
            A(f"s_add_u32 s{S_TMP+2}, s{S_TMP+2}, s{S_TMP+3}")
            A(f"s_lshl_b32 s{S_TMP+3}, s{S_J}, 7")
            A(f"s_add_u32 s{S_TMP+2}, s{S_TMP+2}, s{S_TMP+3}")
            if epi == "final":
                A(f"v_lshlrev_b32 v{V_SA}, 5, v11")
                make_srd(A, S_X1, P_WS, WS_X1, 2 * MB)
                make_srd(A, S_X2, P_WS, WS_X2, 2 * MB)
                make_srd(A, S_MOD, P_WS, WS_MOD, 4 * MODP)
                make_srd(A, S_O, P_OUT, 0, 2 * MB)
                A(f"buffer_load_dwordx4 v[{X1}:{X1+3}], v{V_GA}, s[{S_X1}:{S_X1+3}], s{S_TMP+2} offen"); vm.issue("e")
                A(f"buffer_load_dwordx4 v[{X2}:{X2+3}], v{V_GA}, s[{S_X2}:{S_X2+3}], s{S_TMP+2} offen"); vm.issue("e")
                A(f"s_lshl_b32 s{S_TMP+3}, s{S_J}, 8")
                A(f"s_add_u32 s{S_TMP+3}, s{S_TMP+3}, {5*2048}")
                for h4 in range(2):
                    A(f"buffer_load_dwordx4 v[{GB+4*h4}:{GB+4*h4+3}], v{V_SA}, s[{S_MOD}:{S_MOD+3}], s{S_TMP+3} offen offset:{h4*16}"); vm.issue("e")
                if V2:
                    A(f"s_add_u32 s{S_TMP+3}, s{S_TMP+3}, {MODP}")
                    for h4 in range(2):
                        A(f"buffer_load_dwordx4 v[{GB2[h4]}:{GB2[h4]+3}], v{V_SA}, s[{S_MOD}:{S_MOD+3}], s{S_TMP+3} offen offset:{h4*16}"); vm.issue("e")
            elif epi == "res":
                A(f"v_lshlrev_b32 v{V_SA}, 3, v10")
                A(f"s_lshl_b32 s{S_TMP+6}, s{S_M}, 9")
                A(f"s_lshl_b32 s{S_TMP+3}, s{SW}, 6")
                A(f"s_add_u32 s{S_TMP+6}, s{S_TMP+6}, s{S_TMP+3}")
                A(f"s_lshl_b32 s{S_TMP+3}, s{S_J}, 14")
                A(f"s_add_u32 s{S_TMP+6}, s{S_TMP+6}, s{S_TMP+3}")
                make_srd(A, S_X1, P_WS, WS_H, 2 * MB)
                make_srd(A, S_O, P_WS, WS_X1, 2 * MB)
                make_srd(A, S_ST, P_WS, WS_STAT, 2048 * 128)
                A(f"buffer_load_dwordx4 v[{X1}:{X1+3}], v{V_GA}, s[{S_X1}:{S_X1+3}], s{S_TMP+2} offen"); vm.issue("e")
            else:
                A(f"v_mov_b32 v{VC[0]}, {fhex(GK1)}")
                A(f"v_mov_b32 v{VC[1]}, {fhex(GK0)}")
                A(f"v_mov_b32 v{VC[2]}, 1.0")
                make_srd(A, S_O, P_WS, WS_H1 + 2048, 2 * MB)
        A(f"s_cmp_ge_u32 s{S_WAVE}, 4")
        A(f"s_cbranch_scc1 .L{lab}_help")
        dyn = frag and K6D
        if dyn:
            self.k6d(tail_setup, a_off, a_size, S_G, AA, V_PW, ACC, lab)
            svl = A.lines; A.lines = []; svv = list(vm.ops); svg = list(lg.ops)
        if own_pf and PFE == 2: own_pf(NE, 99)
        A(f"v_lshrrev_b32 v7, 3, v{L}")
        A(f"v_and_b32 v8, 7, v{L}")
        A("v_lshrrev_b32 v9, 1, v7")
        A("v_xor_b32 v9, v8, v9")
        A(f"s_movk_i32 s{S_TMP}, {a_rb}")
        A(f"v_mul_lo_u32 v10, v7, s{S_TMP}")
        A(f"v_lshl_add_u32 v{VG[0]}, v9, 4, v10")
        A("v_xor_b32 v9, 4, v9")
        A(f"v_lshl_add_u32 v{VG[1]}, v9, 4, v10")
        A(f"s_mul_i32 s{S_GOFF}, s{S_M}, {64*a_rb}")
        A(f"s_mul_i32 s{S_TMP}, s{S_WAVE}, {KW*128 if frag else KW*2}")
        if frag: A(f"v_lshlrev_b32 v{VG[0]}, 4, v{L}")
        A(f"s_add_u32 s{S_GOFF}, s{S_GOFF}, s{S_TMP}")
        if epi == "res":
            A(f"s_lshl_b32 s{S_TMP}, s{S_WAVE}, 2")
            A(f"s_lshr_b32 s{S_TMP+1}, 0x4031, s{S_TMP}")
            A(f"s_and_b32 s{S_TMP+1}, s{S_TMP+1}, 15")
            A(f"s_lshl_b32 s{S_TMP+1}, s{S_TMP+1}, 10")
            A(f"s_add_u32 s{S_GOFF}, s{S_GOFF}, s{S_TMP+1}")
        make_srd(A, S_G, P_WS, a_off, a_size)
        A(f"v_lshrrev_b32 v7, 5, v{L}")
        A(f"v_bfe_u32 v8, v{L}, 4, 1")
        A(f"v_bfe_u32 v9, v{L}, 2, 2")
        A(f"v_and_b32 v10, 1, v{L}")
        A(f"v_bfe_u32 v11, v{L}, 1, 1")
        A("v_lshl_or_b32 v10, v10, 1, v11")
        A("v_lshlrev_b32 v10, 3, v10")
        A("v_lshl_add_u32 v10, v8, 5, v10")
        A("v_lshl_add_u32 v11, v7, 3, v9")
        A("v_lshrrev_b32 v12, 1, v9")
        for nb in range(2):
            A(f"v_xor_b32 v13, {nb}, v12")
            A("v_lshl_add_u32 v13, v13, 6, v10")
            A("v_lshl_add_u32 v13, v11, 7, v13")
            A(f"v_add_u32 v{AA+nb}, s{S_RB}, v13")
        A(f"v_and_b32 v8, 31, v{L}")
        A("v_bfe_u32 v9, v8, 1, 3")
        for ks in range(4):
            A(f"v_or_b32 v10, {2*ks}, v7")
            A("v_xor_b32 v10, v10, v9")
            A("v_lshlrev_b32 v10, 4, v10")
            A("v_lshl_add_u32 v10, v8, 7, v10")
            A(f"v_add_u32 v{BA+ks}, s{S_RB}, v10")
        A(f"v_mul_u32_u24 v{V_PW}, {RS}, v8")
        A(f"v_lshl_add_u32 v{V_PW}, v7, 5, v{V_PW}")
        A(f"v_add_u32 v{V_PW}, s{S_RB}, v{V_PW}")
        tail_setup()
        if frag:
            if FGR: NBG = FGR + 1
            def readsw(step):
                buf = FR + (step % NBG) * 8
                for nb in range(2):
                    for q in range(2):
                        A(f"ds_read_b64_tr_b16 v[{buf+nb*4+q*2}:{buf+nb*4+q*2+1}], v{AA+nb} offset:{fg_slot(step) + q * 512}")
                        lg.issue(("f", step))
            if FGR:
                for s0 in range(3): readsw(s0)
            self.pf_fg(11 + FGE, FGP, tag="w")
            for s0 in range(FGR):
                lg.wait(("f", s0))
                if s0 + 3 < FGR: readsw(s0 + 3)
                if s0 + FGP < NS: self.dmaW(s0 + FGP, fg_slot(s0))
        A("s_barrier")
        self.stamp(1 + 4 * stage + 3)
        def dmaG(ch):
            base = (ch % DG) * 8192
            for i in range(8):
                A(f"s_add_u32 m0, s{S_RB}, {base + i * 1024}")
                A(f"s_add_u32 s{S_TMP}, s{S_GOFF}, {i * 8 * a_rb + ch * 128}")
                A(f"buffer_load_dwordx4 v{VG[i & 1]}, s[{S_G}:{S_G+3}], s{S_TMP} offen lds")
                vm.issue(("g", ch))
        if half:
            HB = 32 * RS
            def dmaGh(h, ch):
                for i in range(4):
                    A(f"s_add_u32 m0, s{S_RB}, {h * HB + ch * 4096 + i * 1024}")
                    A(f"s_add_u32 s{S_TMP}, s{S_GOFF}, {(4 * h + i) * 8 * a_rb + ch * 128}")
                    A(f"buffer_load_dwordx4 v{VG[i & 1]}, s[{S_G}:{S_G+3}], s{S_TMP} offen lds")
                    vm.issue(("g", h, ch))
            WF = 128; BFR = 192
            def readsh(h, step):
                ch, ks = step // 4, step % 4
                if h == 0:
                    for nb in range(2):
                        for q in range(2):
                            d = WF + step * 8 + nb * 4 + q * 2
                            A(f"ds_read_b64_tr_b16 v[{d}:{d+1}], v{AA+nb} offset:{WB + step * 2048 + q * 512}")
                            lg.issue(("f", step))
                d = BFR + step * 4
                A(f"ds_read_b128 v[{d}:{d+3}], v{BA+ks} offset:{h * HB + ch * 4096}")
                lg.issue(("f", step))
            dmaGh(0, 0); dmaGh(0, 1)
            if not split: dmaGh(1, 0); dmaGh(1, 1)
            for h in range(2):
                if h == 1 and split:
                    self.lds_spin(f".L{lab}_rb", 12, 1, False, V_CT)
                    dmaGh(1, 0); dmaGh(1, 1)
                PD = 2 if h == 0 else 4
                for s0 in range(PD):
                    vm.wait(("g", h, 0)); readsh(h, s0)
                for st in range(8):
                    lg.wait(("f", st))
                    with Cap(A) as cp:
                        if st + PD < 8:
                            vm.wait(("g", h, (st + PD) // 4)); readsh(h, st + PD)
                        if h == HPH and nsched and st in nsched: next_pf(*nsched[st])
                    mf = []
                    for nb in range(2):
                        acc = ACC + (nb * 2 + h) * 16
                        c = "0" if st == 0 else f"v[{acc}:{acc+15}]"
                        mf.append(f"v_mfma_f32_32x32x16_bf16 v[{acc}:{acc+15}], v[{WF+st*8+nb*4}:{WF+st*8+nb*4+3}], v[{BFR+st*4}:{BFR+st*4+3}], {c}")
                    interleave(A, mf, cp.out)
                A("s_nop 7")
                A("s_nop 3")
                for nb in range(2):
                    tl = nb * 2 + h
                    for r4 in range(4):
                        A(f"ds_write_b128 v{V_PW}, v[{ACC+tl*16+r4*4}:{ACC+tl*16+r4*4+3}] offset:{h*HB + (nb*8 + (r4 >> 1)*4 + (r4 & 1))*16}")
                A("s_waitcnt lgkmcnt(0)")
                self.lds_inc(CO + 4 * h, V_CT)
                if h == 0 and HPH == 2 and nsched:
                    for st in range(8): next_pf(*nsched[st])
            vm.wait("e")
            self.lds_spin(f".L{lab}_sb", CO + 4, 4, False, V_CT)
            A(f"s_branch .L{lab}_join")
        elif frag:
            AR = 256 - 8 * FGD
            def aload(st):
                d = AR + (st % FGD) * 8
                for rb in range(2):
                    A(f"buffer_load_dwordx4 v[{d+4*rb}:{d+4*rb+3}], v{VG[0]}, s[{S_G}:{S_G+3}], s{S_GOFF} offen offset:{(st & 1) * 2048 + rb * 1024}")
                    vm.issue(("g", st))
                if st & 1: A(f"s_add_u32 s{S_GOFF}, s{S_GOFF}, 4096")
            reads = readsw
            assert FR + NBG * 8 <= AR
            for st in range(FGD): aload(st)
            if not FGR:
                for s0 in range(NBG - 1): reads(s0)
            for st in range(NS):
                lg.wait(("f", st))
                if FGR: lg.wait(("f", st + NBG - 4))
                vm.wait(("g", st))
                with Cap(A) as cp:
                    if st >= 1 and st - 1 + FGD < NS: aload(st - 1 + FGD)
                    if FGR:
                        s_ = st + NBG - 4
                        if s_ >= FGR and s_ + FGP < NS: self.dmaW(s_ + FGP, fg_slot(s_))
                    elif st + FGP < NS: self.dmaW(st + FGP, fg_slot(st))
                    if st + NBG - 1 < NS:
                        vm.wait(("w", st + NBG - 1)); reads(st + NBG - 1)
                buf = FR + (st % NBG) * 8; ab = AR + (st % FGD) * 8
                mf = []
                for nb in range(2):
                    for rb in range(2):
                        acc = ACC + (nb * 2 + rb) * 16
                        c = "0" if st == 0 else f"v[{acc}:{acc+15}]"
                        mf.append(f"v_mfma_f32_32x32x16_bf16 v[{acc}:{acc+15}], v[{buf+nb*4}:{buf+nb*4+3}], v[{ab+rb*4}:{ab+rb*4+3}], {c}")
                interleave(A, mf, cp.out)
            vm.wait("e")
            self.stamp(27)
            A("s_nop 7")
            A("s_nop 1")
            for tl in range(4):
                nb, rb = tl >> 1, tl & 1
                for r4 in range(4):
                    A(f"ds_write_b128 v{V_PW}, v[{ACC+tl*16+r4*4}:{ACC+tl*16+r4*4+3}] offset:{rb*32*RS + (nb*8 + (r4 >> 1)*4 + (r4 & 1))*16}")
                if tl == 1: A("s_waitcnt lgkmcnt(0)")
            A("s_waitcnt lgkmcnt(0)")
            A(f"s_branch .L{lab}_join")
        else:
            for ch in range(min(DG, NCH)): dmaG(ch)
            def reads(step):
                ch, ks = step // 4, step % 4
                buf = FR + (step % NBG) * 16
                for nb in range(2):
                    for q in range(2):
                        A(f"ds_read_b64_tr_b16 v[{buf+nb*4+q*2}:{buf+nb*4+q*2+1}], v{AA+nb} offset:{WB + ((step + rot) % DW) * 2048 + q * 512}")
                        lg.issue(("f", step))
                for rb in range(2):
                    A(f"ds_read_b128 v[{buf+8+rb*4}:{buf+8+rb*4+3}], v{BA+ks} offset:{(ch % DG) * 8192 + rb * 4096}")
                    lg.issue(("f", step))
            def need(step):
                vm.wait(("w", step)); vm.wait(("g", step // 4))
            for s0 in range(NBG - 1):
                need(s0); reads(s0)
            for st in range(NS):
                lg.wait(("f", st))
                with Cap(A) as cp:
                    if st + DW < NS: self.dmaW(st + DW, WB + ((st + rot) % DW) * 2048)
                    if st % 4 == 3 and st // 4 + DG < NCH: dmaG(st // 4 + DG)
                    if st + NBG - 1 < NS:
                        need(st + NBG - 1); reads(st + NBG - 1)
                    if st + DW >= NS and PFE == 3 and nsched and st in nsched: next_pf(*nsched[st])
                buf = FR + (st % NBG) * 16
                mf = []
                for nb in range(2):
                    for rb in range(2):
                        acc = ACC + (nb * 2 + rb) * 16
                        c = "0" if st == 0 else f"v[{acc}:{acc+15}]"
                        mf.append(f"v_mfma_f32_32x32x16_bf16 v[{acc}:{acc+15}], v[{buf+nb*4}:{buf+nb*4+3}], v[{buf+8+rb*4}:{buf+8+rb*4+3}], {c}")
                interleave(A, mf, cp.out)
            vm.wait("e")
            if not int(os.environ.get("KRX", "0")): self.stamp({1: 25, 2: 26, 4: 27}[stage])
            A("s_nop 7")
            A("s_nop 1")
            for tl in range(4):
                nb, rb = tl >> 1, tl & 1
                for r4 in range(4):
                    A(f"ds_write_b128 v{V_PW}, v[{ACC+tl*16+r4*4}:{ACC+tl*16+r4*4+3}] offset:{rb*32*RS + (nb*8 + (r4 >> 1)*4 + (r4 & 1))*16}")
                if tl == 1: A("s_waitcnt lgkmcnt(0)")
            if next_pf and PFE == 1: next_pf()
            A("s_waitcnt lgkmcnt(0)")
            A(f"s_branch .L{lab}_join")
        if dyn: A.lines = svl; vm.ops = svv; lg.ops = svg
        A.label(f".L{lab}_help")
        if dyn:
            A("s_waitcnt vmcnt(0)")
            A("s_barrier")
        sv = list(vm.ops)
        tail_setup()
        vm.ops = sv
        if frag and FGL:
            nl = (28 - FGL) * 2
            A(f"s_mul_i32 s{S_GOFF}, s{S_M}, {64*a_rb}")
            A(f"s_sub_u32 s{S_TMP}, s{S_WAVE}, 4")
            A(f"s_mul_i32 s{S_TMP}, s{S_TMP}, {KW*128}")
            A(f"s_add_u32 s{S_GOFF}, s{S_GOFF}, s{S_TMP}")
            A(f"s_lshl_b32 s{S_TMP}, s{S_J}, 7")
            A(f"s_add_u32 s{S_GOFF}, s{S_GOFF}, s{S_TMP}")
            A(f"s_add_u32 s{S_GOFF}, s{S_GOFF}, {FGL * 2048}")
            A(f"v_min_u32 v4, {nl - 1}, v{L}")
            A("v_lshlrev_b32 v4, 10, v4")
        if not dyn:
            self.poll(stage, nbr)
            if frag and FGL: make_srd(A, S_G, P_WS, a_off, a_size)
            A("s_barrier")
            self.stamp(1 + 4 * stage + 3)
        n = sum(self.l2pf(*x) for x in l2) if l2 else 0
        if frag and FGL:
            A(f"buffer_load_dword v5, v4, s[{S_G}:{S_G+3}], s{S_GOFF} offen")
            n += 1
        A(f"s_waitcnt vmcnt({n})")
        if half: self.lds_spin(f".L{lab}_sa", CO, 4, True, V_CT)
        A.label(f".L{lab}_join")
        if not half: A("s_barrier")
        for p in range(4):
            for h in range(2):
                d = ACC + p * 16 + h * 4
                A(f"ds_read_b128 v[{d}:{d+3}], v{V_PR + (p >> 1)} offset:{(p & 1)*RG + h*16}")
        xs = list(range(ACC, ACC + 8)); tp = list(range(72, 80)); t8 = list(range(88, 96))
        b = ACC
        def unpack(src, dst):
            for k in range(4):
                A(f"v_lshlrev_b32 v{dst[2*k]}, 16, v{src+k}")
                A(f"v_and_b32 v{dst[2*k+1]}, {SM}, v{src+k}")
        if epi != "gelu": unpack(X1, tp)
        if epi == "final":
            unpack(X2, list(range(104, 112)))
            if V2:
                for k in range(0, 8, 2): pk(A, "v_pk_add_f32", GB + k, GB + k, GB2[k >> 2] + (k & 3))
                round_multi(A, list(range(GB, GB + 8)), t8, SM)
        A("s_waitcnt lgkmcnt(4)")
        for e in range(0, 8, 2): pk(A, "v_pk_add_f32", b + e, b + e, b + 16 + e)
        A("s_waitcnt lgkmcnt(0)")
        for e in range(0, 8, 2): pk(A, "v_pk_add_f32", b + 32 + e, b + 32 + e, b + 48 + e)
        for e in range(0, 8, 2): pk(A, "v_pk_add_f32", b + e, b + e, b + 32 + e)
        round_multi(A, xs, t8, SM)
        def store():
            for k in range(4): A(f"v_cvt_pk_bf16_f32 v{56+k}, v{xs[2*k]}, v{xs[2*k+1]}")
            A(f"buffer_store_dwordx4 v[56:59], v{V_GA}, s[{S_O}:{S_O+3}], s{S_TMP+2} offen sc1")
        if epi == "gelu":
            X = xs; T = tp
            for e in range(0, 8, 2): pk(A, "v_pk_mul_f32", T[e], X[e], X[e])
            for e in range(0, 8, 2): pk(A, "v_pk_fma_f32", T[e], T[e], VC[0], VC[1], "op_sel_hi:[1,0,0]")
            for e in range(0, 8, 2): pk(A, "v_pk_mul_f32", T[e], T[e], X[e])
            for e in range(8): A(f"v_exp_f32 v{T[e]}, v{T[e]}")
            for e in range(0, 8, 2): pk(A, "v_pk_add_f32", T[e], T[e], VC[2], None, "op_sel_hi:[1,0]")
            for e in range(8): A(f"v_rcp_f32 v{T[e]}, v{T[e]}")
            A("s_nop 0")
            for e in range(0, 8, 2): pk(A, "v_pk_mul_f32", X[e], X[e], T[e])
            store()
        elif epi == "res":
            for k in range(0, 8, 2): pk(A, "v_pk_add_f32", xs[k], xs[k], tp[k])
            store()
            unpack(56, xs)
            X = xs
            pk(A, "v_pk_mul_f32", tp[0], X[0], X[0])
            pk(A, "v_pk_add_f32", tp[2], X[0], X[2])
            for e in range(2, 8, 2):
                pk(A, "v_pk_fma_f32", tp[0], X[e], X[e], tp[0])
                if e >= 4: pk(A, "v_pk_add_f32", tp[2], tp[2], X[e])
            A(f"v_add_f32 v20, v{tp[2]}, v{tp[3]}")
            A(f"v_add_f32 v21, v{tp[0]}, v{tp[1]}")
            A("s_nop 1")
            for dpp in ("quad_perm:[1,0,3,2]", "quad_perm:[2,3,0,1]", "row_half_mirror"):
                for v in (20, 21):
                    A(f"v_add_f32_dpp v{v}, v{v}, v{v} {dpp} row_mask:0xf bank_mask:0xf")
                A("s_nop 1")
            A("v_and_b32 v10, 7, v1")
            A("v_cmp_eq_u32 vcc, 0, v10")
            A("s_and_saveexec_b64 s[78:79], vcc")
            A(f"buffer_store_dwordx2 v[20:21], v{V_SA}, s[{S_ST}:{S_ST+3}], s{S_TMP+6} offen sc1")
            A("s_mov_b64 exec, s[78:79]")
        else:
            for k in range(0, 8, 2): pk(A, "v_pk_add_f32", xs[k], xs[k], tp[k])
            round_multi(A, xs, t8, SM)
            for k in range(0, 8, 2): pk(A, "v_pk_mul_f32", xs[k], xs[k], GB + k)
            round_multi(A, xs, t8, SM)
            for k in range(0, 8, 2): pk(A, "v_pk_add_f32", xs[k], xs[k], 104 + k)
            store()
    def k6d(self, tail_setup, a_off, a_size, S_G, AA, V_PW, ACC, lab):
        A = self.A; vm = self.vm
        SJ7 = 64; RDY = 65; DONE = 66; ELIG = 67; TBL = 36; ISS = 37; VALID = 38; PEND = 39; SP = [46, 47, 56]
        AS = [160, 192, 224]; WB = 128; VA = [(18, 19), (20, 21)]; VL = 4; VF = 5
        def areg(n, q, rb): return AS[n % 3] + ((q >> 1) * 4 + rb * 2 + (q & 1)) * 4
        def wreads(va, q, base=0):
            for nb in range(2):
                for h in range(2):
                    d = WB + 8 * q + nb * 4 + h * 2
                    A(f"ds_read_b64_tr_b16 v[{d}:{d+1}], v{va[nb]} offset:{base + q * 2048 + h * 512}")
        def mf(n, q, first=False):
            for nb in range(2):
                for rb in range(2):
                    acc = ACC + (nb * 2 + rb) * 16; a = areg(n, q, rb); w = WB + 8 * q + nb * 4
                    c = "0" if first else f"v[{acc}:{acc+15}]"
                    A(f"v_mfma_f32_32x32x16_bf16 v[{acc}:{acc+15}], v[{w}:{w+3}], v[{a}:{a+3}], {c}")
        def setva(va, sp):
            for nb in range(2): A(f"v_add_u32 v{va[nb]}, s{sp}, v{AA+nb}")
        def rot():
            A("s_lshl_b32 s53, s52, 7")
            A("s_or_b32 s53, s53, s52")
            A(f"s_lshr_b32 s53, s53, s{SJ7}")
            A("s_and_b32 s53, s53, 0x7f")
            A(f"s_or_b32 s{RDY}, s{RDY}, s53")
        def consume():
            A("s_mov_b32 s52, 0")
            for jj in range(6, -1, -1):
                A(f"s_cmp_eq_u64 s[{12+2*jj}:{13+2*jj}], s[100:101]")
                A("s_addc_u32 s52, s52, s52")
            rot()
        def avail(n):
            A(f"s_and_b32 s52, s{RDY}, {hex((0x1f, 0x0f, 0x3f, 0x3f, 0x3f, 0x7f, 0x7f)[n])}")
            A(f"s_andn2_b32 s52, s52, s{DONE}")
        def issue(n, blocking, fast=False):
            l = A.newlabel("d6")
            if not fast:
                A(f"s_cmp_lg_u32 s{ISS}, {n}")
                A(f"s_cbranch_scc1 {l}e")
            avail(n)
            if fast: pass
            elif not blocking: A(f"s_cbranch_scc0 {l}e")
            else:
                A(f"s_cbranch_scc1 {l}g")
                A("s_mov_b32 s99, 0")
                A.label(f"{l}p")
                A("s_buffer_load_dwordx16 s[12:27], s[92:95], s96 glc")
                A("s_add_u32 s99, s99, 1")
                A("s_waitcnt lgkmcnt(0)")
                consume(); avail(n)
                A(f"s_cbranch_scc1 {l}g")
                A("s_and_b32 s98, s99, 3")
                A(f"s_cbranch_scc1 {l}p")
                A(f"buffer_load_dwordx2 v[2:3], v{VF}, s[92:95], s96 offen sc1")
                A("s_waitcnt vmcnt(0)")
                A("v_xor_b32 v2, s100, v2")
                A("v_xor_b32 v3, s101, v3")
                A("v_or_b32 v2, v2, v3")
                A("v_cmp_eq_u32 vcc, 0, v2")
                A("s_nop 0")
                A("s_and_b32 s52, vcc_lo, 0x7f")
                A("s_cmp_lt_u32 s99, 0x80000")
                A("s_cselect_b32 s52, s52, 0x7f")
                rot(); avail(n)
                A(f"s_cbranch_scc0 {l}p")
                A.label(f"{l}g")
                A(f"s_mov_b32 s{VALID}, 0")
            A("s_ff1_i32_b32 s52, s52")
            A(f"s_bitset1_b32 s{DONE}, s52")
            A(f"s_add_u32 s53, s52, s{SJ7}")
            A("s_sub_u32 s54, s53, 7")
            A("s_cselect_b32 s53, s53, s54")
            A("s_lshl_b32 s53, s53, 15")
            A(f"s_add_u32 s53, s53, s{S_GOFF}")
            A("s_add_u32 s54, s53, 4096")
            for q in range(4):
                for rb in range(2):
                    a = areg(n, q, rb)
                    A(f"buffer_load_dwordx4 v[{a}:{a+3}], v{VL}, s[{S_G}:{S_G+3}], s{53 + (q >> 1)} offen offset:{(q & 1) * 2048 + rb * 1024}")
            A("s_lshl_b32 s52, s52, 2")
            A(f"s_lshr_b32 s52, s{TBL}, s52")
            A("s_and_b32 s52, s52, 15")
            A(f"s_lshl_b32 s{SP[n % 3]}, s52, 13")
            A(f"s_mov_b32 s{ISS}, {n + 1}")
            A.label(f"{l}e")
        def regroup(k, sp):
            self.d6_woffs([k], S_WAVE, 55)
            A(f"s_add_u32 s54, s{sp}, s{S_RB}")
            for q in range(4): self.d6_dma(55, q, (54, q * 2048))
            A(f"s_lshl_b32 s52, s{sp}, {4 * k - 13}")
            A(f"s_or_b32 s{TBL}, s{TBL}, s52")
        A(f"v_lshrrev_b32 v7, 5, v{L}")
        A(f"v_bfe_u32 v8, v{L}, 4, 1")
        A(f"v_bfe_u32 v9, v{L}, 2, 2")
        A(f"v_and_b32 v10, 1, v{L}")
        A(f"v_bfe_u32 v11, v{L}, 1, 1")
        A("v_lshl_or_b32 v10, v10, 1, v11")
        A("v_lshlrev_b32 v10, 3, v10")
        A("v_lshl_add_u32 v10, v8, 5, v10")
        A("v_lshl_add_u32 v11, v7, 3, v9")
        A("v_lshrrev_b32 v12, 1, v9")
        A("v_lshl_add_u32 v13, v12, 6, v10")
        A("v_lshl_add_u32 v13, v11, 7, v13")
        A(f"v_add_u32 v{AA}, s{S_RB}, v13")
        A(f"v_xor_b32 v{AA+1}, 64, v{AA}")
        def rest():
            A(f"v_and_b32 v8, 31, v{L}")
            A(f"v_mul_u32_u24 v{V_PW}, {RS}, v8")
            A(f"v_lshl_add_u32 v{V_PW}, v7, 5, v{V_PW}")
            A(f"v_add_u32 v{V_PW}, s{S_RB}, v{V_PW}")
            A(f"v_lshlrev_b32 v{VL}, 4, v{L}")
            A(f"v_and_b32 v{VF}, 7, v{L}")
            A(f"v_lshlrev_b32 v{VF}, 3, v{VF}")
            make_srd(A, S_G, P_WS, a_off, a_size)
            make_srd(A, 92, P_WS, FL6, 128 * 128)
            A(f"s_lshl_b32 s96, s{S_M}, 2")
            A(f"s_add_u32 s96, s96, s{S_WAVE}")
            A("s_lshl_b32 s96, s96, 7")
            A(f"s_mul_i32 s{S_GOFF}, s{S_M}, {64 * 3584}")
            A(f"s_lshl_b32 s52, s{S_WAVE}, 13")
            A(f"s_add_u32 s{S_GOFF}, s{S_GOFF}, s52")
            A(f"s_mov_b32 s{TBL}, {hex(sum(p << (4 * k) for k, p in enumerate(D6POS)))}")
            A(f"s_mov_b32 s{PEND}, 0")
            A(f"s_mov_b32 s{VALID}, 0")
            for x in SP: A(f"s_mov_b32 s{x}, {D6POS[0] * 8192}")
        A(f"s_cmp_eq_u32 s{S_J}, 7")
        A("s_cbranch_scc1 .Ld6_j7")
        A("s_waitcnt vmcnt(8)" if (not MT or SPAN) else "s_waitcnt vmcnt(0)")
        for q in range(3): wreads((AA, AA + 1), q, D6POS[0] * 8192)
        rest()
        A(f"s_mov_b32 s{RDY}, 1")
        A(f"s_mov_b32 s{DONE}, 1")
        A(f"s_mov_b32 s{ISS}, 1")
        A(f"s_lshl_b32 s97, s{S_J}, 3")
        A("v_mov_b32 v2, s100")
        A("v_mov_b32 v3, s101")
        A("v_mov_b32 v22, s97")
        A("s_waitcnt lgkmcnt(8)")
        wreads((AA, AA + 1), 3, D6POS[0] * 8192)
        mf(0, 0, True)
        A("s_waitcnt lgkmcnt(8)")
        mf(0, 1)
        A("s_waitcnt vmcnt(0)")
        A("s_mov_b64 exec, 1")
        A("buffer_store_dwordx2 v[2:3], v22, s[92:95], s96 offen sc1")
        A("s_mov_b64 exec, -1")
        self.stamp(19)
        A("s_waitcnt lgkmcnt(0)")
        mf(0, 2); mf(0, 3)
        A("s_barrier")
        self.d6_woffs([4], S_WAVE, 55)
        self.d6_dma(55, 0, 8 * 2048)
        regroup(5, SP[0])
        tail_setup()
        with Cap(A) as j7c:
            A.label(".Ld6_j7")
            rest()
            tail_setup()
            A(f"s_mov_b32 s{SJ7}, 0")
            A(f"s_mov_b32 s{RDY}, 0")
            A(f"s_mov_b32 s{DONE}, 0")
            A(f"s_mov_b32 s{ISS}, 0")
            A("s_waitcnt vmcnt(0)")
            A("s_barrier")
            issue(0, True)
            setva(VA[0], SP[0])
            for q in range(3): wreads(VA[0], q)
            A("s_waitcnt lgkmcnt(8)")
            wreads(VA[0], 3)
            A("s_waitcnt lgkmcnt(0)")
            regroup(5, SP[0])
            A("s_mov_b32 s99, 0")
            A.label(".Ld6_j7x")
            issue(1, False); issue(2, False)
            A(f"s_cmp_eq_u32 s{ISS}, 3")
            A("s_cbranch_scc1 .Ld6_j7y")
            A("s_cmp_ge_u32 s99, 2")
            A("s_cbranch_scc1 .Ld6_j7y")
            A("s_buffer_load_dwordx16 s[12:27], s[92:95], s96 glc")
            A("s_add_u32 s99, s99, 1")
            A("s_waitcnt lgkmcnt(0)")
            consume()
            A("s_branch .Ld6_j7x")
            A.label(".Ld6_j7y")
            for ah in (2, 1, 0):
                A(f"s_waitcnt vmcnt({8 * ah + 8})")
                if ah:
                    A(f"s_cmp_eq_u32 s{ISS}, {1 + ah}")
                    A("s_cbranch_scc1 .Ld6_j7w")
            A.label(".Ld6_j7w")
            mf(0, 0, True); mf(0, 1); mf(0, 2); mf(0, 3)
            A("s_branch .Ld6_com")
        A.label(".Ld6_com")
        if int(os.environ.get("D6SL", "0")): A("s_sleep 127")
        self.stamp(20)
        FAST = ELIG
        def body(i, vb):
            mf(i, 0)
            A("s_waitcnt lgkmcnt(4)")
            if i < 6: wreads(vb, 0)
            mf(i, 1)
            if i < 6: wreads(vb, 1)
            mf(i, 2)
            A(f"s_waitcnt lgkmcnt({8 if i < 6 else 0})")
            mf(i, 3)
            if i == 1: regroup(6, SP[1])
        def generic(i):
            l = f".Ld6i{i}"
            va = VA[i & 1]; vb = VA[(i + 1) & 1]
            A("s_waitcnt lgkmcnt(0)")
            if i > 1:
                A(f"s_cmp_eq_u32 s{PEND}, 0")
                A(f"s_cbranch_scc1 {l}a")
                consume()
                A.label(f"{l}a")
            issue(i, True)
            if i == 1:
                A("s_mov_b32 s99, 0")
                A.label(f"{l}x")
            for n in (i + 1, i + 2):
                if n < 7: issue(n, False)
            if i == 1:
                A(f"s_cmp_eq_u32 s{RDY}, 0x7f")
                A(f"s_cbranch_scc1 {l}y")
                A(f"s_cmp_ge_u32 s99, {int(os.environ.get('D6X', '2'))}")
                A(f"s_cbranch_scc1 {l}y")
                A("s_buffer_load_dwordx16 s[12:27], s[92:95], s96 glc")
                A("s_add_u32 s99, s99, 1")
                A("s_waitcnt lgkmcnt(0)")
                consume()
                A(f"s_branch {l}x")
                A.label(f"{l}y")
            if i > 1:
                A(f"s_cmp_lg_u32 s{VALID}, 0")
                A(f"s_cbranch_scc1 {l}v")
            setva(va, SP[i % 3])
            wreads(va, 0); wreads(va, 1)
            A("s_waitcnt lgkmcnt(0)")
            A.label(f"{l}v")
            wreads(va, 2); wreads(va, 3)
            if i < 6:
                A(f"s_mov_b32 s{PEND}, 0")
                A(f"s_cmp_eq_u32 s{ISS}, {min(i + 3, 7)}")
                A(f"s_cselect_b32 s{FAST}, 1, 0")
                A(f"s_cmp_eq_u32 s{ISS}, 7")
                A(f"s_cselect_b32 s{RDY}, 0x7f, s{RDY}")
                A(f"s_cmp_eq_u32 s{RDY}, 0x7f")
                A(f"s_cbranch_scc1 {l}n")
                A("s_buffer_load_dwordx16 s[12:27], s[92:95], s96 glc")
                A(f"s_mov_b32 s{PEND}, 1")
                A(f"s_mov_b32 s{FAST}, 0")
                A.label(f"{l}n")
                setva(vb, SP[(i + 1) % 3])
                A(f"s_cmp_gt_u32 s{ISS}, {i + 1}")
                A(f"s_cselect_b32 s{VALID}, 1, 0")
            for ah in (2, 1, 0):
                if i + ah > 6: continue
                A(f"s_waitcnt vmcnt({8 * ah})")
                if ah:
                    A(f"s_cmp_eq_u32 s{ISS}, {i + 1 + ah}")
                    A(f"s_cbranch_scc1 {l}w")
            A.label(f"{l}w")
            body(i, vb)
        generic(1)
        for i in range(2, 7):
            va = VA[i & 1]; vb = VA[(i + 1) & 1]
            A.label(f".Ld6f{i}")
            A(f"s_cmp_eq_u32 s{FAST}, 0")
            A(f"s_cbranch_scc1 .Ld6g{i}")
            with Cap(A) as ci:
                if i + 2 < 7: issue(i + 2, False, True)
            il = [x for x in ci.out if not x.endswith(":")]
            ah = min(1, 6 - i)
            def mfl(q):
                with Cap(A) as cm: mf(i, q)
                return [x.strip() for x in cm.out]
            def rd(v_, q):
                with Cap(A) as cr: wreads(v_, q)
                return cr.out
            def spread(m, fill):
                for t, x in enumerate(m):
                    A(x); A.lines.extend(fill[len(fill) * t // 4: len(fill) * (t + 1) // 4])
            A(f"s_waitcnt vmcnt({8 * ah + 4}) lgkmcnt(4)")
            with Cap(A) as cs:
                if i < 6: setva(vb, SP[(i + 1) % 3])
            spread(mfl(0), rd(va, 2) + il[:10])
            A("s_waitcnt lgkmcnt(4)")
            spread(mfl(1), rd(va, 3) + il[10:18] + cs.out)
            A(f"s_waitcnt vmcnt({8 * ah + (8 if il else 0)}) lgkmcnt(4)")
            spread(mfl(2), (rd(vb, 0) + rd(vb, 1) if i < 6 else []) + il[18:])
            A(f"s_waitcnt lgkmcnt({8 if i < 6 else 0})")
            spread(mfl(3), [])
        A.label(".Ld6f7")
        with Cap(A) as ool:
            for i in range(2, 7):
                A.label(f".Ld6g{i}")
                generic(i)
                A(f"s_branch .Ld6f{i+1}")
        self.ool = j7c.out + ool.out
        self.stamp(27)
        A("s_nop 7")
        A("s_nop 1")
        for tl in range(4):
            nb, rb = tl >> 1, tl & 1
            for r4 in range(4):
                A(f"ds_write_b128 v{V_PW}, v[{ACC+tl*16+r4*4}:{ACC+tl*16+r4*4+3}] offset:{rb*32*RS + (nb*8 + (r4 >> 1)*4 + (r4 & 1))*16}")
            if tl == 1: A("s_waitcnt lgkmcnt(0)")
        A("s_waitcnt lgkmcnt(0)")
        A(f"s_branch .L{lab}_join")
        vm.ops = []; self.lg.ops = []
    def k5(self, stage, next_pf, own_pf=None):
        A = self.A; vm = self.vm; lg = self.lg
        S_A = 8; S_O = 20; S_ST = 24; S_CS = 28
        VB = [16, 28]; AA = 24; ACC = 64; FQ = 128
        D = K5D
        NB5 = int(os.environ.get('NB5', '3'))
        A(f"s_cmp_lt_u32 s{S_WAVE}, 4")
        A("s_cbranch_scc1 .Lk5_main")
        A(f"s_cmp_eq_u32 s{S_J}, 7")
        A("s_cbranch_scc1 .Lk5_h7")
        if CS6:
            A(f"s_cmp_ge_u32 s{S_WAVE}, 6")
            A("s_cbranch_scc1 .Lk5_cse")
            make_srd(A, 8, P_WS, WS_CS2, 8 * 1792 * 8)
            A(f"s_sub_u32 s48, s{S_WAVE}, 4")
            A(f"s_lshl_b32 s49, s{S_J}, 11")
            A("s_lshl_b32 s50, s48, 10")
            A("s_add_u32 s49, s49, s50")
            A("v_lshlrev_b32 v4, 4, v1")
            A(f"s_mul_i32 s50, s48, {2 * RG}")
            A("s_add_u32 s50, s50, 16384")
            A("v_lshrrev_b32 v5, 5, v1")
            A(f"v_mul_u32_u24 v5, {RG}, v5")
            A("v_and_b32 v6, 31, v1")
            A("v_lshl_add_u32 v5, v6, 3, v5")
            A("v_add_u32 v5, s50, v5")
            A("s_mov_b32 s52, 0")
            A.label(".Lk5_csl")
            A("s_mov_b32 s51, s49")
            for r in range(8):
                A(f"buffer_load_dwordx4 v[{64+4*r}:{67+4*r}], v4, s[8:11], s51 offen sc1")
                if r < 7: A(f"s_add_u32 s51, s51, {1792 * 8}")
            A("s_add_u32 s52, s52, 1")
            A("v_mov_b32 v6, 0")
            A("s_waitcnt vmcnt(0)")
            for r in range(8):
                A(f"v_xor_b32 v{65+4*r}, s100, v{65+4*r}")
                A(f"v_xor_b32 v{67+4*r}, s100, v{67+4*r}")
                A(f"v_or3_b32 v6, v6, v{65+4*r}, v{67+4*r}")
            A("v_cmp_ne_u32 vcc, 0, v6")
            A("s_cmp_lt_u32 s52, 0x40000")
            A("s_cbranch_scc0 .Lk5_csd")
            A("s_cbranch_vccnz .Lk5_csl")
            A.label(".Lk5_csd")
            for st in (4, 8, 16):
                for r in range(0, 32, 2 * st):
                    A(f"v_add_f32 v{64+r}, v{64+r}, v{64+r+st}")
                    A(f"v_add_f32 v{66+r}, v{66+r}, v{66+r+st}")
            A("v_mov_b32 v65, v66")
            A("ds_write_b64 v5, v[64:65]")
            A("s_waitcnt lgkmcnt(0)")
            A.label(".Lk5_cse")
        self.poll(stage)
        A("s_barrier")
        A("s_barrier")
        if FG and FGE and FGH:
            def woff():
                A(f"s_sub_u32 s{S_TMP}, s{S_WAVE}, 4")
                A(f"s_mul_i32 s{S_WOFF}, s{S_TMP}, {448 * 1024}")
                A(f"s_lshl_b32 s{S_TMP+11}, s{S_J}, 7")
                A(f"s_add_u32 s{S_WOFF}, s{S_WOFF}, s{S_TMP+11}")
                A(f"s_add_u32 s{S_WOFF}, s{S_WOFF}, {11 * 16384}")
                A(f"s_mul_i32 s{S_RB}, s{S_TMP}, {RG}")
            sv_ = list(vm.ops); wrb_ = self.wrb
            def woff6():
                A(f"s_sub_u32 s{S_TMP}, s{S_WAVE}, 4")
                A(f"s_mul_i32 s{S_RB}, s{S_TMP}, {RG}")
                self.d6_woffs([2, 3], S_TMP, 12)
            self.w_setup(3, 1792, 1024, woff6 if K6D else woff)
            A("v_and_b32 v37, 3, v1")
            A(f"v_mul_u32_u24 v37, {RG}, v37")
            A("s_sleep 60")
            A.label(".Lk5_tgh")
            A("s_sleep 2")
            A(f"ds_read_b64 v[38:39], v37 offset:{16384 + 1024}")
            A("s_waitcnt lgkmcnt(0)")
            A("v_xor_b32 v38, s100, v38")
            A("v_xor_b32 v39, s101, v39")
            A("v_or_b32 v38, v38, v39")
            A("v_cmp_ne_u32 vcc, 0, v38")
            A("s_nop 0")
            A("s_cbranch_vccnz .Lk5_tgh")
            if K6D:
                for s_ in range(8): self.d6_dma(12 + (s_ >> 2), s_ & 3, s_ * 2048)
            else:
                for st in range(11, 11 + FGE): self.dmaW(st, fg_slot(st), "wn")
            A(f"s_mul_i32 s{S_RB}, s{S_WAVE}, {RG}")
            vm.ops = sv_; self.wrb = wrb_
        A.label(".Lk5_h7")
        if L2PF & 4: self.l2pf(3, 1792 * 1024)
        A("s_branch .Lk5_end")
        A.label(".Lk5_main")
        A(f"s_cmp_eq_u32 s{S_J}, 7")
        A("s_cbranch_scc1 .Lk5_pf")
        if own_pf and PFE == 2: own_pf(NE, 99)
        make_srd(A, S_A, P_WS, WS_X1, 2 * MB)
        make_srd(A, S_ST, P_WS, WS_STAT, 2048 * 128)
        if CS6: pass
        elif not CS5: make_srd(A, S_CS, P_WS, WS_CS, 2 * CSP)
        else: A(f"s_mov_b32 s{S_CS}, 0x3f803f80")
        make_srd(A, S_O, P_WS, WS_G, 2048 * 3584)
        A(f"v_lshlrev_b32 v4, 4, v{L}")
        A(f"s_lshl_b32 s{S_TMP}, s{S_M}, 16")
        A(f"s_lshl_b32 s{S_TMP+1}, s{S_WAVE}, 14")
        A(f"s_add_u32 s{S_TMP}, s{S_TMP}, s{S_TMP+1}")
        A(f"s_lshl_b32 s{S_TMP+6}, s{S_J}, 9")
        A(f"s_lshl_b32 s{S_TMP+2}, s{S_WAVE}, 7")
        A(f"s_add_u32 s{S_TMP+6}, s{S_TMP+6}, s{S_TMP+2}")
        A(f"v_lshrrev_b32 v5, 5, v{L}")
        A(f"v_bfe_u32 v7, v{L}, 4, 1")
        A(f"v_bfe_u32 v8, v{L}, 2, 2")
        A(f"v_and_b32 v9, 1, v{L}")
        A(f"v_bfe_u32 v10, v{L}, 1, 1")
        A("v_lshl_or_b32 v9, v9, 1, v10")
        A("v_lshlrev_b32 v9, 3, v9")
        A("v_lshl_add_u32 v9, v7, 5, v9")
        A("v_lshl_add_u32 v10, v5, 3, v8")
        A("v_lshrrev_b32 v11, 1, v8")
        for nb in range(2):
            A(f"v_xor_b32 v12, {nb}, v11")
            A("v_lshl_add_u32 v12, v12, 6, v9")
            A("v_lshl_add_u32 v12, v10, 7, v12")
            A(f"v_add_u32 v{AA+nb}, s{S_RB}, v12")
        A(f"v_and_b32 v13, 31, v{L}")
        A("v_lshrrev_b32 v7, 4, v13")
        A(f"v_mul_u32_u24 v7, {RG // 1024}, v7")
        A("v_and_b32 v8, 15, v13")
        A("v_add_u32 v7, v7, v8")
        for j in range(8):
            A(f"v_or_b32 v8, {2*j}, v5")
            A("v_xor_b32 v8, v8, v13")
            A("v_and_b32 v8, 15, v8")
            A("v_lshlrev_b32 v8, 4, v8")
            A(f"v_lshl_add_u32 v{VB[0]+j}, v7, 10, v8")
            A(f"v_add_u32 v{VB[1]+j}, {2*RG}, v{VB[0]+j}")
        ST = 192; CS = 224
        A("v_lshlrev_b32 v42, 5, v5")
        if CS6:
            A(f"s_add_u32 s{S_TMP+3}, s{S_RB}, 16384")
            A(f"v_add_u32 v42, s{S_TMP+3}, v42")
        if CS5:
            A(f"s_add_u32 s{S_TMP+3}, s{S_RB}, 16384")
            A(f"v_add_u32 v42, s{S_TMP+3}, v42")
            A("v_and_b32 v7, 0x13, v13")
            A("v_bfe_u32 v8, v13, 2, 1")
            A("v_lshl_or_b32 v7, v8, 3, v7")
            A("v_bfe_u32 v8, v13, 3, 1")
            A("v_lshl_or_b32 v7, v8, 2, v7")
            A("v_lshlrev_b32 v7, 2, v7")
            A(f"v_add_u32 v43, s{S_TMP+3}, v7")
        C2 = [176, 184, 200, 216]
        def csloads():
            A(f"s_lshl_b32 s{S_TMP+2}, s{S_TMP+6}, 1")
            for part in range(2 if V2 else 1):
                for q in range(4):
                    for h4 in range(2):
                        d = (CS + q * 8 if part == 0 else C2[q]) + 4 * h4
                        A(f"buffer_load_dwordx4 v[{d}:{d+3}], v42, s[{S_CS}:{S_CS+3}], s{S_TMP+2} offen offset:{(16*q+4*h4)*4}"); vm.issue("st")
                A(f"s_add_u32 s{S_TMP+2}, s{S_TMP+2}, {CSP}")
        VS = 36
        A("v_and_b32 v7, 7, v13")
        A(f"s_add_u32 s{S_TMP+3}, s{S_RB}, {K5RB}")
        for j in range(4):
            A(f"v_or_b32 v14, {2*j}, v5")
            A("v_xor_b32 v14, v14, v7")
            A("v_lshlrev_b32 v14, 4, v14")
            A("v_lshl_add_u32 v14, v13, 7, v14")
            A(f"v_add_u32 v{VS+j}, s{S_TMP+3}, v14")
        A(f"v_lshrrev_b32 v7, 3, v{L}")
        A(f"v_and_b32 v14, 7, v{L}")
        A(f"v_xor_b32 v{VS+4}, v14, v7")
        A(f"v_lshlrev_b32 v{VS+4}, 4, v{VS+4}")
        A(f"v_lshl_add_u32 v{VS+4}, v7, 7, v{VS+4}")
        A(f"v_add_u32 v{VS+4}, s{S_TMP+3}, v{VS+4}")
        A(f"s_movk_i32 s{S_TMP+2}, 3584")
        A(f"v_mul_lo_u32 v7, v7, s{S_TMP+2}")
        A(f"v_lshl_add_u32 v{VS+5}, v14, 4, v7")
        A(f"s_mul_i32 s{S_TMP+4}, s{S_M}, {64*3584}")
        if FG:
            A(f"s_lshl_b32 s{S_TMP+5}, s{S_TMP+6}, 6")
            A(f"s_add_u32 s{S_TMP+4}, s{S_TMP+4}, s{S_TMP+5}")
            A(f"s_add_u32 s{S_TMP+5}, s{S_TMP+4}, 4096")
        else:
            A(f"s_add_u32 s{S_TMP+4}, s{S_TMP+4}, s{S_TMP+6}")
            A(f"s_add_u32 s{S_TMP+5}, s{S_TMP+4}, {32*3584}")
        A("v_lshlrev_b32 v7, 3, v13")
        A("v_lshl_add_u32 v7, v5, 16, v7")
        A(f"s_lshl_b32 s{S_TMP+7}, s{S_M}, 9")
        A("s_barrier")
        self.stamp(1 + 4 * stage + 3)
        for i in range(16):
            t = 8 + (i & 1)
            A(f"v_xor_b32 v{t}, {i << 4}, v4")
            A(f"s_add_u32 m0, s{S_RB}, {i * 1024}")
            A(f"s_add_u32 s{S_TMP+2}, s{S_TMP}, {i * 1024}")
            A(f"buffer_load_dwordx4 v{t}, s[{S_A}:{S_A+3}], s{S_TMP+2} offen lds")
            vm.issue("act")
        for q in range(4):
            A(f"s_add_u32 s{S_TMP+3}, s{S_TMP+7}, {q*16384}")
            for rb in range(2):
                A(f"buffer_load_dwordx2 v[{ST+16*rb+2*q}:{ST+16*rb+2*q+1}], v7, s[{S_ST}:{S_ST+3}], s{S_TMP+3} offen offset:{rb*256}"); vm.issue("st")
        def csreads():
            for q in range(4):
                for h4 in range(2):
                    d = CS + q * 8 + 4 * h4
                    A(f"ds_read_b128 v[{d}:{d+3}], v42 offset:{(16*q+4*h4)*4}")
        WR = [152, 160, 168, 176, 184, 200, 216, 224, 232, 240, 248][:K5R + 1]
        def wr5(step):
            buf = WR[step % len(WR)]
            for nb in range(2):
                for q in range(2):
                    A(f"ds_read_b64_tr_b16 v[{buf+nb*4+q*2}:{buf+nb*4+q*2+1}], v{AA+nb} offset:{K5RB + (step % D) * 2048 + q * 512}")
                    lg.issue(("w5", step))
        if K5R:
            assert CS6 and FG
            for s0 in range(K5R + 2):
                if s0 < K5R: wr5(s0)
                if 2 <= s0 <= K5R:
                    lg.wait(("w5", s0 - 2)); self.dmaW(s0 - 2 + D, K5RB + ((s0 - 2) % D) * 2048)
        elif CS6: csreads()
        vm.wait("act")
        if CS6 and not K5R: A("s_waitcnt lgkmcnt(0)")
        A("s_barrier")
        self.stamp(29)
        def reads(step):
            buf = FQ + (step % NB5) * 16
            for nb in range(2):
                for q in range(2):
                    A(f"ds_read_b64_tr_b16 v[{buf+nb*4+q*2}:{buf+nb*4+q*2+1}], v{AA+nb} offset:{K5RB + (step % D) * 2048 + q * 512}")
                    lg.issue(("f", step))
            for rb in range(2):
                A(f"ds_read_b128 v[{buf+8+rb*4}:{buf+8+rb*4+3}], v{VB[rb] + (step & 7)} offset:{(step >> 3) * 256}")
                lg.issue(("f", step))
        PKC = [[44, 46, 48, 50], [52, 54, 56, 58]]
        E = []
        for stg in range(17):
            for rb in range(2):
                b = ST + 16 * rb; c = PKC[rb]
                E.append([f"v_add_f32 v{b}, v{b}, v{b+2}", f"v_add_f32 v{b+1}, v{b+1}, v{b+3}",
                          f"v_add_f32 v{b+4}, v{b+4}, v{b+6}", f"v_add_f32 v{b+5}, v{b+5}, v{b+7}",
                          f"v_add_f32 v{b}, v{b}, v{b+4}", f"v_add_f32 v{b+1}, v{b+1}, v{b+5}",
                          f"v_mov_b32 v{b+2}, v{b}", f"v_mov_b32 v{b+3}, v{b+1}", "s_nop 1",
                          f"v_permlane32_swap_b32 v{b}, v{b+2}", f"v_permlane32_swap_b32 v{b+1}, v{b+3}", "s_nop 1",
                          f"v_add_f32 v{b}, v{b}, v{b+2}", f"v_add_f32 v{b+1}, v{b+1}, v{b+3}",
                          f"v_mul_f32 v{c[0]}, {fhex(-1/512)}, v{b}", f"v_mul_f32 v{b+1}, {fhex(1/512)}, v{b+1}",
                          f"v_fma_f32 v{b+1}, -v{c[0]}, v{c[0]}, v{b+1}"][stg])
        for stg in range(9):
            for rb in range(2):
                b = ST + 16 * rb; c = PKC[rb]
                E.append([f"v_max_f32 v{b+1}, 0, v{b+1}", f"v_add_f32 v{b+1}, {fhex(1e-5)}, v{b+1}",
                          f"v_rsq_f32 v{b+2}, v{b+1}", f"v_sqrt_f32 v{c[3]}, v{b+1}", "s_nop 0",
                          f"v_mul_f32 v{c[2]}, {fhex(GK0)}, v{b+2}", f"v_mul_f32 v{c[1]}, v{b+2}, v{b+2}",
                          f"v_mul_f32 v{c[1]}, v{c[1]}, v{b+2}", f"v_mul_f32 v{c[1]}, {fhex(GK1)}, v{c[1]}"][stg])
        if V2 and not CS5 and not CS6:
            for q in range(4):
                for e in range(8): E.append(f"v_add_f32 v{CS+8*q+e}, v{CS+8*q+e}, v{C2[q]+e}")
        if K5R:
            def br5(step):
                buf = FQ + (step % 3) * 8
                for rb in range(2):
                    A(f"ds_read_b128 v[{buf+rb*4}:{buf+rb*4+3}], v{VB[rb] + (step & 7)} offset:{(step >> 3) * 256}")
                    lg.issue(("f", step))
            br5(0); br5(1)
            k = 0
            for ks in range(32):
                lg.wait(("f", ks))
                r = ks + K5R
                with Cap(A) as cp:
                    f_ = r - 1
                    if ks + 2 < 32: br5(ks + 2)
                    if f_ < 32:
                        lg.wait(("w5", f_))
                        if f_ + D < 32: self.dmaW(f_ + D, K5RB + (f_ % D) * 2048)
                        else: next_pf(f_ - 21, f_ - 20)
                    if r < 32:
                        vm.wait(("w", r)); wr5(r)
                    if 8 <= ks < 28:
                        if ks == 8: vm.wait("st")
                        upto = len(E) * (ks - 7) // 20
                        while k < upto: A(E[k]); k += 1
                buf = FQ + (ks % 3) * 8; w = WR[ks % len(WR)]
                mf = []
                for nb in range(2):
                    for rb in range(2):
                        acc = ACC + (nb * 2 + rb) * 16
                        c = "0" if ks == 0 else f"v[{acc}:{acc+15}]"
                        mf.append(f"v_mfma_f32_32x32x16_bf16 v[{acc}:{acc+15}], v[{w+nb*4}:{w+nb*4+3}], v[{buf+rb*4}:{buf+rb*4+3}], {c}")
                interleave(A, mf, cp.out)
            csreads()
            A("s_waitcnt lgkmcnt(0)")
            lg.ops = []
        for s0 in range(NB5 - 1 if not K5R else 0):
            vm.wait(("w", s0)); reads(s0)
        k = 0
        for ks in range(32 if not K5R else 0):
            lg.wait(("f", ks))
            with Cap(A) as cp:
                if ks + NB5 - 1 < 32:
                    vm.wait(("w", ks + NB5 - 1)); reads(ks + NB5 - 1)
                if ks + D < 32: self.dmaW(ks + D, K5RB + (ks % D) * 2048)
                elif FG: next_pf(ks - 21, ks - 20)
                elif PFE == 3 and ks == 21: next_pf(0, 1)
                elif PFE == 3 and ks >= 26: next_pf(ks - 25, ks - 24)
                if ks == 1 and not CS5 and not CS6: csloads()
                if CS5:
                    bf_ = FQ + (ks % NB5) * 16
                    dl = [f"v_dot2_f32_bf16 v{176+nb}, v{bf_+nb*4+j}, s{S_CS}, " + ("0" if ks == 0 and j == 0 else f"v{176+nb}") for j in range(4) for nb in range(2)]
                    if ks < 31:
                        for d_ in dl: A(d_)
                    else:
                        A("v_mov_b32 v178, v176")
                        A("v_mov_b32 v179, v177")
                        A("s_nop 1")
                        A("v_permlane32_swap_b32 v176, v178")
                        A("v_permlane32_swap_b32 v177, v179")
                        A("s_nop 1")
                        A("v_add_f32 v176, v176, v178")
                        A("v_add_f32 v177, v177, v179")
                        A("ds_write_b32 v43, v176")
                        A("ds_write_b32 v43, v177 offset:128")
                        A("s_waitcnt lgkmcnt(0)")
                        for q in range(4):
                            for h4 in range(2):
                                d = CS + q * 8 + 4 * h4
                                A(f"ds_read_b128 v[{d}:{d+3}], v42 offset:{(16*q+4*h4)*4}")
                if 14 <= ks < 28:
                    if ks == 14: vm.wait("st")
                    upto = len(E) * (ks - 13) // 14
                    while k < upto: A(E[k]); k += 1
            buf = FQ + (ks % NB5) * 16
            mf = []
            for nb in range(2):
                for rb in range(2):
                    acc = ACC + (nb * 2 + rb) * 16
                    c = "0" if ks == 0 else f"v[{acc}:{acc+15}]"
                    mf.append(f"v_mfma_f32_32x32x16_bf16 v[{acc}:{acc+15}], v[{buf+nb*4}:{buf+nb*4+3}], v[{buf+8+rb*4}:{buf+8+rb*4+3}], {c}")
            if CS5 and ks == 31:
                for d_ in dl: A(d_)
                A("s_nop 1")
            interleave(A, mf, cp.out)
        if CS5: A("s_waitcnt lgkmcnt(0)")
        if FG and FGE:
            A(f"s_add_u32 s{S_TMP+3}, s{S_RB}, {16384 + 1024}")
            A(f"v_mov_b32 v36, s{S_TMP+3}")
            A("v_mov_b32 v38, s100")
            A("v_mov_b32 v39, s101")
            A("ds_write_b64 v36, v[38:39]")
            A("v_and_b32 v37, 3, v1")
            A(f"v_mul_u32_u24 v37, {RG}, v37")
        self.stamp(28)
        if PFE == 1: next_pf()
        else:
            A("s_nop 7"); A("s_nop 3")
        def flush5(rb):
            A("s_waitcnt lgkmcnt(0)")
            for i in range(4):
                A(f"ds_read_b128 v[{192+16*rb+4*i}:{192+16*rb+4*i+3}], v{VS+4} offset:{rb*4096 + i*1024}")
        def store5(rb):
            for i in range(4):
                if rb == 1: A(f"s_waitcnt lgkmcnt({3-i})")
                A(f"s_add_u32 s{S_TMP+3}, s{S_TMP+4+rb}, {i*8*3584}")
                A(f"buffer_store_dwordx4 v[{192+16*rb+4*i}:{192+16*rb+4*i+3}], v{VS+5}, s[{S_O}:{S_O+3}], s{S_TMP+3} offen sc1")
        for rb in range(2):
            for nb in range(2):
                acc = ACC + (nb * 2 + rb) * 16
                if rb == 1 and nb == 1 and not FG:
                    A("s_waitcnt lgkmcnt(2)")
                    store5(0)
                for mp in range(2):
                    d = 160 + (nb * 4 + rb * 2 + mp) * 4
                    xs = [acc + 8 * mp + e for e in range(8)]
                    ts = list(range(128, 136)); cs = CS + (nb * 2 + mp) * 8; c = PKC[rb]
                    for e in range(0, 8, 2): pk(A, "v_pk_fma_f32", xs[e], cs + e, c[0], xs[e], "op_sel_hi:[1,0,1]")
                    for e in range(0, 8, 2): pk(A, "v_pk_mul_f32", ts[e], xs[e], xs[e])
                    for e in range(0, 8, 2): pk(A, "v_pk_fma_f32", ts[e], ts[e], c[1], c[2], "op_sel_hi:[1,0,0]")
                    for e in range(0, 8, 2): pk(A, "v_pk_mul_f32", ts[e], ts[e], xs[e])
                    for t in ts: A(f"v_exp_f32 v{t}, v{t}")
                    for e in range(0, 8, 2): pk(A, "v_pk_fma_f32", ts[e], ts[e], c[3], c[3], "op_sel_hi:[1,0,0]")
                    for t in ts: A(f"v_rcp_f32 v{t}, v{t}")
                    A("s_nop 0")
                    for e in range(0, 8, 2): pk(A, "v_pk_mul_f32", xs[e], xs[e], ts[e])
                    for e in range(0, 8, 2): A(f"v_cvt_pk_bf16_f32 v{d+e//2}, v{xs[e]}, v{xs[e+1]}")
                    if FG: A(f"buffer_store_dwordx4 v[{d}:{d+3}], v4, s[{S_O}:{S_O+3}], s{S_TMP+4+nb} offen offset:{mp*2048 + rb*1024} sc1")
                    else: A(f"ds_write_b128 v{VS+2*nb+mp}, v[{d}:{d+3}] offset:{rb*4096}")
                    if FG and FGE and not FGH:
                        gi = rb * 4 + nb * 2 + mp
                        G0 = int(os.environ.get("FGG", "0")); NG = int(os.environ.get("FGN", "4"))
                        if gi == G0:
                            A.label(".Lk5_tg")
                            A(f"ds_read_b64 v[38:39], v37 offset:{16384 + 1024}")
                            A("s_waitcnt lgkmcnt(0)")
                            A("v_xor_b32 v38, s100, v38")
                            A("v_xor_b32 v39, s101, v39")
                            A("v_or_b32 v38, v38, v39")
                            A("v_cmp_ne_u32 vcc, 0, v38")
                            A("s_nop 0")
                            A("s_cbranch_vccnz .Lk5_tg")
                        if G0 <= gi < G0 + NG:
                            next_pf(11 + FGE * (gi - G0) // NG, 11 + FGE * (gi - G0 + 1) // NG)
            if not FG: flush5(rb)
        if not FG: store5(1)
        if FG and FGE and FGH and not K6D: A(f"s_add_u32 s{S_WOFF}, s{S_WOFF}, {FGE * 16384}")
        A("s_branch .Lk5_end")
        A.label(".Lk5_pf")
        if PFE in (1, 3): next_pf(alt=True)
        A.label(".Lk5_end")
        if J7P >= 0:
            A(f"s_cmp_lg_u32 s{S_J}, 7")
            A("s_cbranch_scc1 .Lk5_j7e")
            make_srd(A, 80, P_W + 6, 0, 1792 * 1024)
            A(f"s_lshr_b32 s78, s{S_M}, 3")
            A(f"s_mul_i32 s78, s78, {448 * 1024}")
            A(f"s_add_u32 s78, s78, {J7P * 16384}")
            A("v_lshlrev_b32 v2, 7, v0")
            for i in range((28 - J7P) // 4):
                A("buffer_load_dword v3, v2, s[80:83], s78 offen")
                A("s_add_u32 s78, s78, 65536")
            A.label(".Lk5_j7e")

def gen_km(A):
    name = "k1_kernel"
    M = Mega(A)
    def pre():
        if MT or HD:
            M.persist(); M.stamp(0); M.vm.ops = []
        if ONE: M.pro_pre()
    if V4: K1.gen_k1(A, emb=True, pre=pre, hookA=M.p4_a, hookB=M.p4_b, v2=True, hookC=M.p2_c, hookD=lambda: (M.persist(), M.jobs0()))
    elif V3: K1.gen_k1(A, emb=True, pre=pre, hookA=M.p3_a, hookB=M.p3_b, v2=True, hookC=M.p2_c)
    elif V2: K1.gen_k1(A, emb=True, pre=pre, hookA=M.p2_a, hookB=M.p2_b, v2=True, hookC=M.p2_c)
    elif ONE: K1.gen_k1(A, emb=True, pre=pre, hookA=M.pro_a, hookB=M.pro_b)
    else: K1.gen_k1(A, emb=True, pre=pre)
    if KMAP != 1:
        A(f"s_lshl_b32 s39, s{K1.S_M}, 8")
        A(f"s_lshl_b32 s38, s{K1.S_G}, 3")
        A("s_add_u32 s39, s39, s38")
    M.persist()
    M.transition(0)
    M.kr()
    M.transition(1)
    pf4 = lambda lo=0, hi=99: M.pf_g64(1, 512, 24576, 8, lo, hi)
    pf6 = lambda lo=0, hi=99, alt=False: M.pf_g64(3, 1792, 26624, 7, lo, hi, 6)
    if FG: pf6 = M.pf_d6 if K6D else M.pf_fg
    M.g64("k3", 1, 512, WS_HN, 2 * MB, 1024, "gelu", 24576, 8, False, pf4, None, 0, {st: (st, st + 1) for st in range(8)}, [(2, 1792 * 1024)] if L2PF & 1 else None)
    M.transition(2, pf4)
    M.g64("k4", 2, 512, WS_H1, 2052 * 1024, 1024, "res", 24576, 8, True, M.pf_k5, pf4, 0, {st: ((0, 4) if st == 0 else (st + 3, st + 4)) for st in range(8)}, [(3, 1792 * 1024)] if L2PF & 2 else None)
    M.transition(3, M.pf_k5)
    M.k5(3, pf6, M.pf_k5)
    if K6D: M.stamp(17); M.vm.ops = []; M.lg.ops = []
    else: M.transition(4, pf6)
    M.g64("k6", 4, 1792, WS_G, 2048 * 3584, 3584, "final", 26624, 7, False, None, pf6, 6)
    M.stamp(21)
    if MT or HD: A("s_waitcnt vmcnt(0)")
    M.stamp(22)
    A("s_endpgm")
    if getattr(M, "ool", None):
        A.lines.extend(M.ool)
        A("s_endpgm")
    A.raw(kernel_desc(name, 256, 102, 256))
    return (name, (256, 1, 1), (512, 1, 1), 163840)
```

```python
import sys, os
from asmlib import *
from gen_k0 import *
import importlib

HEADER = open("adaLN_cond__sliding_block_cached__mixer_s_mlp__prompt.s.ref").read().split("; Override launch geometry")[0]

def build(kernels, out, plain=False):
    A = Asm()
    launches = []
    for k in kernels:
        launches.append(k(A))
    txt = HEADER
    for (name, g, b, lds) in launches:
        txt += f"; @launch kernel={name} grid=({g[0]},{g[1]},{g[2]}) block=({b[0]},{b[1]},{b[2]}) lds={lds}\n"
    txt += '.amdgcn_target "amdgcn-amd-amdhsa--gfx950"\n.text\n'
    txt += A.text()
    txt += '.Lcode_end:\n'
    if plain:
        assert len(launches) == 1
        import re
        txt = txt.replace("; @launch kernel=k1_kernel ", "; @launch ")
        txt = re.sub(r"\bk1_kernel\b", "adaLN_cond__sliding_block_cached__mixer_s_mlp__prompt_kernel", txt)
    open(out, "w").write(txt)

if __name__ == "__main__":
    ks = [gen_k0]
    if int(os.environ.get('K0N','0')):
        import gen_k0n
        ks = [gen_k0n.gen_k0]
    for mod, fn in (("gen_k1x" if int(os.environ.get("K1X","0")) else "gen_k1", "gen_k1"), *((("gen_kq", "gen_kq"),) if int(os.environ.get("USEKQ","0")) else (("gen_kr", "gen_kr"), ("gen_g64", "gen_k3"))), ("gen_g64", "gen_k4"), *((("gen_k56", "gen_k56"), ("gen_k56", "gen_kf")) if int(os.environ.get("USE56","0")) else (("gen_k5n" if int(os.environ.get("K5N","0")) else "gen_k5", "gen_k5"), ("gen_g64", "gen_k6")))):
        try:
            m = importlib.import_module(mod)
        except ModuleNotFoundError:
            continue
        ks.append(getattr(m, fn))
    MG = int(os.environ.get("MEGA", "7"))
    if MG:
        import gen_mega
        import gen_mega2
        ks = ks[:2 if MG == 1 else (0 if MG >= 4 else 1)] + [gen_mega2.gen_km if MG >= 3 else gen_mega.gen_km]
    out = sys.argv[1] if len(sys.argv) > 1 else "adaLN_cond__sliding_block_cached__mixer_s_mlp__prompt.s"
    build(ks, out, len(sys.argv) <= 1 or int(os.environ.get('PLAIN', '0')))
    print("wrote", out)
```

```python
from asmlib import *
from gen_k0 import *
import gen_k1 as K1
from gen_k1 import Cnt
from gen_ka import ln_rows, round_multi, pack8, GK0, GK1
from gen_g64 import WS_STAT, WS_CS
import os
SPAN = int(os.environ.get("SPAN", "0"))
MT = int(os.environ.get("MT", "0")) or SPAN
HD = int(os.environ.get("HD", "0"))
PT = int(os.environ.get("PT", "0"))
TLW = int(os.environ.get("TLW", "0"))
MP = int(os.environ.get("MP", "1"))
RM = int(os.environ.get("RM", "1"))
XS = int(os.environ.get("XS", "1"))
HP = int(os.environ.get("HP", "0"))
SPOLL = int(os.environ.get("SPOLL", "1"))
HPH = int(os.environ.get("HPH", "0"))
CNT = 17408
S_R8 = 46; V_CT = 53
PRG = int(os.environ.get("PRG", "0"))
MSK = 83968
WQF = int(os.environ.get("WQF", "0"))
W0M = int(os.environ.get("MEGA", "7")) >= 5 and int(os.environ.get("W0M", "1"))
EB = int(os.environ.get("EB", "0"))
DLY = int(os.environ.get("DLY", "1"))
WQE = int(os.environ.get("WQE", "0"))
ONE = int(os.environ.get("MEGA", "7")) >= 4
V2 = int(os.environ.get("MEGA", "7")) >= 5
V3 = int(os.environ.get("MEGA", "7")) >= 6
V4 = int(os.environ.get("MEGA", "7")) == 7
LDP = int(os.environ.get("LDP", "1"))
WQP = int(os.environ.get("WQP", "2"))
CX = int(os.environ.get("CX", "0"))
NW = int(os.environ.get("NW", "2"))
XRT = int(os.environ.get("XRT", "1"))
XH = int(os.environ.get("XH", "1"))
KFB = int(os.environ.get("KFB", "6"))
XL = int(os.environ.get("XL", "4"))
XLT = int(os.environ.get("XLT", "2"))
DPP_ = int(os.environ.get("DPP_", "1"))
LT = int(os.environ.get("LT", "3" if V4 else "0"))
CSM = int(os.environ.get("CSM", "2"))
HA = int(os.environ.get("HA", "0"))
KMAP = int(os.environ.get("K1MAP", "4"))
FG = int(os.environ.get("FG", "1" if V4 else "0"))
FGP = int(os.environ.get("FGP", "19"))
FGD = int(os.environ.get("FGD", "8"))
K5R = int(os.environ.get("K5R", "0"))
K6D = int(os.environ.get("K6D", "0"))
PRI = int(os.environ.get("PRI", "1")) and not K6D
FL6 = WS_FLAG + 0x10000
CPL = 38 if K6D else 36
D6POS = [3, 4, 0, 1, 2]
J7P = int(os.environ.get("J7P", "-1"))
FGR = int(os.environ.get("FGR", "0"))
FGL = int(os.environ.get("FGL", "0"))
FGH = int(os.environ.get("FGH", "1"))
FGE = int(os.environ.get("FGE", "8"))
def fg_slot(st):
    st %= FGP
    return 18432 + ((21 + st) % 11) * 2048 if st < 11 else (st - 11) * 2048
CS5 = LT == 3 and CSM == 1
CS6 = LT == 3 and CSM == 2
WS_CS2 = WS_FLAG + 0x100000
NREP = int(os.environ.get("NREP", "8"))
WS_LL = WS_FLAG + 0x40000
MODP = 12288; CSP = 8192
FP = WS_FLAG + 0x20000; FQ_ = WS_FLAG + 0x30000
S_WAVE = 40; S_M = 41; S_J = 42; S_MASK = 43; S_RB = 44; S_GOFF = 45; S_TMP = 48; S_WOFF = 58
S_W = 32; V_W = 6
P_X = 60; P_OUT = 62; P_WS = 68; P_W = 84
SM = f"s{S_MASK}"
L = 1
RG = 40960; RS = 272
K5RB = 18432; K5D = 11
L2PF = int(os.environ.get('L2PF', '0'))
PFE = int(os.environ.get('PFE', '3'))
NE = int(os.environ.get('NE', '3')) if PFE == 2 else 0

def pk(A, op, d, a, b, c=None, sel=""):
    ops = ", ".join(f"v[{x}:{x+1}]" for x in ((d, a, b) if c is None else (d, a, b, c)))
    A(f"{op} {ops} {sel}".rstrip())

RC1 = int(os.environ.get("RC1", "1" if V4 else "0"))
KRF = int(os.environ.get("KRF", "1" if V4 else "0"))
_round_multi = round_multi
def round_multi(A, xs, ts, smask):
    if not RC1: return _round_multi(A, xs, ts, smask)
    for x in xs: A(f"v_cvt_pk_bf16_f32 v{x}, 0, v{x}")
def ln_pk(A, P, X, m, q, K10, K01, s1, smu, sr, smask):
    for j in range(4):
        A(f"v_dot2_f32_bf16 v{m}, v{P+j}, s{s1}, " + ("0" if j == 0 else f"v{m}"))
        A(f"v_dot2_f32_bf16 v{q}, v{P+j}, v{P+j}, " + ("0" if j == 0 else f"v{q}"))
    A("s_nop 1")
    for d in ("quad_perm:[1,0,3,2] row_mask:0xf", "quad_perm:[2,3,0,1] row_mask:0xf", "row_half_mirror row_mask:0xf", "row_mirror row_mask:0xf",
              "row_bcast:15 row_mask:0xa", "row_bcast:31 row_mask:0xc"):
        for v in (m, q): A(f"v_add_f32_dpp v{v}, v{v}, v{v} {d} bank_mask:0xf")
        if "31" not in d: A("s_nop 0")
    A(f"v_mul_f32 v{m}, {fhex(1/512)}, v{m}")
    A(f"v_mul_f32 v{q}, {fhex(1/512)}, v{q}")
    A(f"v_fma_f32 v{q}, -v{m}, v{m}, v{q}")
    A(f"v_cvt_pk_bf16_f32 v{m}, 0, -v{m}")
    A(f"v_max_f32 v{q}, 0, v{q}")
    A(f"v_readlane_b32 s{smu}, v{m}, 63")
    A(f"v_cvt_pk_bf16_f32 v{q}, 0, v{q}")
    A(f"v_add_f32 v{q}, {fhex(1e-5)}, v{q}")
    A(f"v_cvt_pk_bf16_f32 v{q}, 0, v{q}")
    A(f"v_sqrt_f32 v{q}, v{q}")
    for j in range(4): A(f"v_dot2_f32_bf16 v{X[j]}, v{P+j//2}, v{(K10, K01)[j & 1]}, s{smu}")
    A(f"v_cvt_pk_bf16_f32 v{q}, 0, v{q}")
    A(f"v_rcp_f32 v{q}, v{q}")
    for j in range(4, 8): A(f"v_dot2_f32_bf16 v{X[j]}, v{P+j//2}, v{(K10, K01)[j & 1]}, s{smu}")
    A(f"v_readlane_b32 s{sr}, v{q}, 63")
    for j in range(8): A(f"v_cvt_pk_bf16_f32 v{X[j]}, 0, v{X[j]}")
    for j in range(0, 8, 2): A(f"v_pk_mul_f32 v[{X[j]}:{X[j]+1}], v[{X[j]}:{X[j]+1}], s[{sr}:{sr+1}] op_sel_hi:[1,0]")
FLN = int(os.environ.get("FLN", "2"))
_ln_slow = ln_rows
def ln_fast(A, R, smask, final_round=True):
    for X, T in R:
        assert X[0] % 2 == 0 and T[0] % 2 == 0
        pk(A, "v_pk_add_f32", T[0], X[0], X[2]); pk(A, "v_pk_mul_f32", T[2], X[0], X[0])
        pk(A, "v_pk_add_f32", T[4], X[4], X[6]); pk(A, "v_pk_mul_f32", T[6], X[2], X[2])
    for X, T in R:
        pk(A, "v_pk_fma_f32", T[2], X[4], X[4], T[2]); pk(A, "v_pk_fma_f32", T[6], X[6], X[6], T[6])
        pk(A, "v_pk_add_f32", T[0], T[0], T[4])
    for X, T in R:
        pk(A, "v_pk_add_f32", T[2], T[2], T[6])
        A(f"v_add_f32 v{T[0]}, v{T[0]}, v{T[1]}")
    for X, T in R:
        A(f"v_add_f32 v{T[1]}, v{T[2]}, v{T[3]}")
    wave_allreduce(A, "v_add_f32", [t for X, T in R for t in (T[0], T[1])], [t for X, T in R for t in (T[2], T[3])], [t for X, T in R for t in (T[4], T[5])])
    for X, T in R:
        A(f"v_mul_f32 v{T[0]}, {fhex(1/512)}, v{T[0]}")
        A(f"v_mul_f32 v{T[1]}, {fhex(1/512)}, v{T[1]}")
    for X, T in R:
        A(f"v_fma_f32 v{T[1]}, -v{T[0]}, v{T[0]}, v{T[1]}")
    for X, T in R:
        A(f"v_max_f32 v{T[1]}, 0, v{T[1]}")
    for X, T in R:
        A(f"v_cvt_pk_bf16_f32 v{T[3]}, v{T[0]}, v{T[1]}")
    for X, T in R:
        A(f"v_and_b32 v{T[1]}, {smask}, v{T[3]}")
        A(f"v_lshlrev_b32 v{T[2]}, 16, v{T[3]}")
    for X, T in R:
        A(f"v_add_f32 v{T[1]}, {fhex(1e-5)}, v{T[1]}")
        for j in range(0, 4, 2): pk(A, "v_pk_add_f32", X[j], X[j], T[2], None, "op_sel_hi:[1,0] neg_lo:[0,1] neg_hi:[0,1]")
    for X, T in R:
        A(f"v_cvt_pk_bf16_f32 v{T[1]}, v{T[1]}, v{T[1]}")
        for j in range(4, 8, 2): pk(A, "v_pk_add_f32", X[j], X[j], T[2], None, "op_sel_hi:[1,0] neg_lo:[0,1] neg_hi:[0,1]")
    for X, T in R:
        A(f"v_lshlrev_b32 v{T[1]}, 16, v{T[1]}")
    for X, T in R:
        A(f"v_sqrt_f32 v{T[0]}, v{T[1]}")
        round_multi(A, X[:4], T[4:6], smask)
    for X, T in R:
        A(f"v_cvt_pk_bf16_f32 v{T[0]}, v{T[0]}, v{T[0]}")
    for X, T in R:
        A(f"v_lshlrev_b32 v{T[0]}, 16, v{T[0]}")
    for X, T in R:
        A(f"v_rcp_f32 v{T[2]}, v{T[0]}")
        round_multi(A, X[4:], T[4:6], smask)
    if FLN == 2:
        for X, T in R:
            for j in range(0, 8, 2): pk(A, "v_pk_mul_f32", X[j], X[j], T[2], None, "op_sel_hi:[1,0]")
    else:
        for X, T in R:
            for h in range(2):
                js = (4 * h, 4 * h + 2)
                for k, j in enumerate(js): pk(A, "v_pk_mul_f32", T[4+2*k], X[j], T[2], None, "op_sel_hi:[1,0]")
                for k, j in enumerate(js): pk(A, "v_pk_fma_f32", X[j], T[4+2*k], T[0], X[j], "op_sel_hi:[1,0,1] neg_lo:[1,0,0] neg_hi:[1,0,0]")
                for k, j in enumerate(js): pk(A, "v_pk_fma_f32", X[j], X[j], T[2], T[4+2*k], "op_sel_hi:[1,0,1]")
    if final_round:
        for X, T in R: round_multi(A, X, T[4:8], smask)
def ln_rows(A, R, smask, final_round=True):
    return ln_fast(A, R, smask, final_round) if FLN else _ln_slow(A, R, smask)

class Cap:
    def __init__(self, A): self.A = A
    def __enter__(self):
        self.sv = self.A.lines; self.A.lines = []; return self
    def __exit__(self, *a):
        self.out = self.A.lines; self.A.lines = self.sv

def interleave(A, mf, fill):
    n = len(mf); k = 0
    for i, m in enumerate(mf):
        A(m)
        upto = (len(fill) * (i + 1) + n - 1) // n
        while upto < len(fill) and upto > 0 and not (fill[upto - 1].lstrip().startswith(("buffer_", "ds_", "v_", "s_waitcnt")) or (not PRI and fill[upto - 1].lstrip().startswith(f"s_add_u32 s{S_WOFF}, s{S_WOFF}"))): upto += 1
        A.lines.extend(fill[k:upto]); k = max(k, upto)

class Mega:
    def __init__(self, A):
        self.A = A
        self.vm = Cnt(A, "vmcnt", 63); self.lg = Cnt(A, "lgkmcnt", 15)
    def stamp(self, idx):
        if SPAN and idx not in (0, 3, 22): return
        if HD:
            hmap = {0: 2, 3: 3, 4: 4, 7: 5, 8: 6, 11: 7, 12: 8, 15: 9, 16: 10, 19: 11, 20: 12, 21: 13, 22: 14}
            if int(os.environ.get('HK', '0')): hmap = {0: 2, 22: 14}
            if idx not in hmap: return
            A = self.A
            lab = A.newlabel("hd")
            A("s_waitcnt lgkmcnt(0)")
            A("s_load_dwordx2 s[76:77], s[0:1], 104")
            A("s_memrealtime s[70:71]")
            A("s_waitcnt lgkmcnt(0)")
            A("s_mov_b32 s72, s76")
            A("s_mov_b32 s73, s77")
            A("s_mov_b32 s74, 256")
            A("s_mov_b32 s75, 0x00020000")
            A(f"s_lshl_b32 s76, s{S_WAVE}, 8")
            A("s_or_b32 s76, s76, s2")
            A(f"s_cmp_lg_u32 s76, {HD}")
            A(f"s_cbranch_scc1 {lab}")
            A("v_mov_b32 v2, s70")
            A("v_mov_b32 v3, 0")
            A(f"buffer_store_dword v2, v3, s[72:75], 0 offen offset:{4*hmap[idx]}")
            A.label(lab)
            self.lg.ops = []
            return
        if not MT: return
        A = self.A
        A("s_waitcnt lgkmcnt(0)")
        A("s_memrealtime s[70:71]")
        make_srd(A, 72, P_WS, WS_DBG, 32 * MB)
        A("s_lshl_b32 s76, s2, 3")
        A(f"s_add_u32 s76, s76, s{S_WAVE}")
        A("s_lshl_b32 s76, s76, 7")
        A("s_waitcnt lgkmcnt(0)")
        A("v_mov_b32 v2, s70")
        A("v_mov_b32 v3, 0")
        A(f"buffer_store_dword v2, v3, s[72:75], s76 offen offset:{4*idx}")
        self.vm.issue("stamp"); self.lg.ops = []
    def flag_srd(self, stage):
        make_srd(self.A, 92, P_WS, WS_FLAG + stage * 32 * 256, 32 * 256)
    def jobs0(self):
        A = self.A
        make_srd(A, 80, P_WS, FQ_, 32 * 1024)
        make_srd(A, 12, P_WS, WS_MOD, 4 * MODP)
        A(f"s_cmp_lg_u32 s{S_WAVE}, {0 if W0M else 7}")
        A("s_cbranch_scc1 .Lw0m_end")
        A(f"s_lshl_b32 s98, s{S_M}, 10")
        A("v_add_u32 v2, 64, v1")
        A(f"v_min_u32 v2, {63 if LT == 3 else 119}, v2")
        A("v_lshlrev_b32 v2, 3, v2")
        A("v_lshlrev_b32 v3, 3, v1")
        if V4 and XH:
            assert LT == 3
            A("s_mov_b32 s99, 0")
            A("v_lshlrev_b32 v4, 3, v1")
            A.label(".Lplq_poll")
            A("buffer_load_dwordx2 v[248:249], v4, s[80:83], s98 offen sc1")
            A("s_add_u32 s99, s99, 1")
            A("s_waitcnt vmcnt(0)")
            A("v_xor_b32 v248, s100, v248")
            A("v_xor_b32 v249, s101, v249")
            A("v_or_b32 v248, v248, v249")
            A("v_cmp_ne_u32 vcc, 0, v248")
            A("s_cmp_lt_u32 s99, 0x40000")
            A("s_cbranch_scc0 .Lplq_done")
            A("s_cbranch_vccz .Lplq_done")
            A(f"s_cmp_lg_u32 s99, {KFB}")
            A("s_cbranch_scc1 .Lplq_poll")
            A("s_bitcmp1_b32 s2, 1")
            A("s_cbranch_scc0 .Lplq_poll")
            A("s_and_b32 s52, s2, 1")
            A("s_lshl_b32 s52, s52, 5")
            A("s_lshr_b32 s53, s2, 3")
            A("s_add_u32 s52, s52, s53")
            A("s_bitcmp1_b64 vcc, s52")
            A("s_cbranch_scc0 .Lplq_poll")
            A("s_and_b32 s53, s52, 1")
            A("s_lshr_b32 s54, s52, 1")
            A("s_add_u32 s54, s54, 16")
            A("s_lshl_b32 s55, s54, 7")
            self.p4_slow("l", 55, 53, 16, 20, 48, SM)
            A(f"s_mul_i32 s53, s53, {MODP}")
            A("s_lshl_b32 s54, s54, 8")
            A("s_add_u32 s53, s53, s54")
            A("v_lshlrev_b32 v2, 2, v2")
            A("buffer_store_dword v114, v2, s[12:15], s53 offen sc1")
            A("v_mov_b32 v70, s100")
            A("v_mov_b32 v71, s101")
            A("v_lshlrev_b32 v3, 10, v1")
            A("s_lshl_b32 s52, s52, 3")
            A("s_waitcnt vmcnt(0)")
            A("s_mov_b32 exec_hi, 0")
            A("buffer_store_dwordx2 v[70:71], v3, s[80:83], s52 offen sc1")
            A("s_mov_b64 exec, -1")
            A("s_branch .Lplq_poll")
            A.label(".Lplq_done")
        else: self.poll64(".Lplq", [(3, 80, "s98"), (2, 80, "s98")])
        if W0M:
            A("v_lshlrev_b32 v10, 5, v1")
            for part in range(2):
                for q, idx in enumerate((2, 4, 3)):
                    d = 24 + 8 * q + 88 * part
                    A(f"s_movk_i32 s{S_TMP}, {idx*2048 + part*MODP}")
                    A(f"buffer_load_dwordx4 v[{d}:{d+3}], v10, s[12:15], s{S_TMP} offen")
                    A(f"buffer_load_dwordx4 v[{d+4}:{d+7}], v10, s[12:15], s{S_TMP} offen offset:16")
            A("v_add_u32 v10, 81920, v10")
            A("s_waitcnt vmcnt(0)")
            for j in range(0, 24, 2): pk(A, "v_pk_add_f32", 24 + j, 24 + j, 112 + j)
            for q in range(3): round_multi(A, list(range(24 + 8*q, 32 + 8*q)), [56, 57, 58, 59], SM)
            for j in range(8): A(f"v_add_f32 v{32+j}, 1.0, v{32+j}")
            round_multi(A, list(range(32, 40)), [56, 57, 58, 59], SM)
            for q, off in enumerate((0, 16384, 49152)):
                A(f"ds_write_b128 v10, v[{24+8*q}:{27+8*q}] offset:{off}")
                A(f"ds_write_b128 v10, v[{28+8*q}:{31+8*q}] offset:{off+16}")
        A.label(".Lw0m_end")
        if CS6:
            A(f"s_cmp_lg_u32 s{S_WAVE}, 1")
            A("s_cbranch_scc1 .Lcs_end")
            A("s_cmp_ge_u32 s2, 224")
            A("s_cbranch_scc1 .Lcs_end")
            make_srd(A, 16, P_W + 4, 0, 512 * 3584)
            make_srd(A, 20, P_WS, WS_CS2, 8 * 1792 * 8)
            A("s_lshr_b32 s48, s2, 3")
            A("s_and_b32 s49, s2, 7")
            A(f"s_mul_i32 s50, s49, {64 * 3584}")
            A("s_lshl_b32 s51, s48, 7")
            A("s_add_u32 s50, s50, s51")
            A("v_and_b32 v2, 7, v1")
            A("v_lshrrev_b32 v3, 3, v1")
            A(f"v_mul_u32_u24 v4, {8 * 3584}, v3")
            A("v_lshl_add_u32 v4, v2, 4, v4")
            for i in range(8):
                A(f"buffer_load_dwordx4 v[{128+4*i}:{131+4*i}], v4, s[16:19], s50 offen")
                if i < 7: A("s_add_u32 s50, s50, 3584")
            A("v_lshl_add_u32 v2, v2, 3, v3")
            A("v_lshlrev_b32 v2, 3, v2")
            A(f"s_mul_i32 s49, s49, {1792 * 8}")
            A("s_lshl_b32 s48, s48, 9")
            A("s_add_u32 s48, s48, s49")
            AC = list(range(64, 72))
            for i in range(8):
                A(f"s_waitcnt vmcnt({7 - i})")
                U = 64 if i == 0 else 72 + 8 * (i & 1)
                for j in range(4):
                    A(f"v_lshlrev_b32 v{U+2*j}, 16, v{128+4*i+j}")
                    A(f"v_and_b32 v{U+2*j+1}, {SM}, v{128+4*i+j}")
                if i:
                    for j in range(8): A(f"v_add_f32 v{64+j}, v{64+j}, v{U+j}")
            A("s_nop 1")
            self.p4_red8([AC], [])
            A("v_mov_b32 v67, s100")
            A("buffer_store_dwordx2 v[66:67], v2, s[20:23], s48 offen sc1")
            A.label(".Lcs_end")
    def transition(self, stage, early=None):
        A = self.A
        self.stamp(1 + 4 * stage)
        self.vm.ops = []
        if HA and stage == 0:
            TG = K1.STG + 5 * 16384
            make_srd(A, 92, P_WS, WS_FLAG, 6 * 32 * 256)
            A(f"s_lshl_b32 s96, s{S_M}, 8")
            A(f"s_lshl_b32 s97, s{S_J}, 3")
            A("s_add_u32 s97, s97, s96")
            A(f"s_add_u32 s98, s97, {5 * 8192}")
            A(f"s_cmp_lt_u32 s{S_WAVE}, 4")
            A("s_cselect_b32 s97, s98, s97")
            A(f"s_lshl_b32 s98, s{S_WAVE}, 11")
            A(f"s_add_u32 s98, s98, {TG}")
            A("v_mov_b32 v2, s98")
            A(f"s_and_b32 s98, s98, {hex(0xffffffff & ~0x1fff)}")
            A("v_and_b32 v3, 3, v1")
            A("v_lshlrev_b32 v3, 11, v3")
            A("v_add_u32 v3, s98, v3")
            A("v_mov_b32 v246, s100")
            A("v_mov_b32 v247, s101")
            A("v_mov_b32 v4, s97")
            A("s_waitcnt vmcnt(0)")
            A("ds_write_b64 v2, v[246:247]")
            A("ds_read_b64 v[6:7], v3")
            A("s_waitcnt lgkmcnt(0)")
            A("v_xor_b32 v6, s100, v6")
            A("v_xor_b32 v7, s101, v7")
            A("v_or_b32 v6, v6, v7")
            A("v_cmp_ne_u32 vcc, 0, v6")
            A("s_nop 0")
            A("s_cbranch_vccnz .Lha_np")
            A("s_mov_b64 exec, 1")
            A("buffer_store_dwordx2 v[246:247], v4, s[92:95], 0 offen sc1")
            A("s_mov_b64 exec, -1")
            A.label(".Lha_np")
            A(f"s_sub_u32 s48, s{S_WAVE}, 2")
            A("s_cmp_ge_u32 s48, 2")
            A("s_cbranch_scc1 .Lha_end")
            make_srd(A, 72, P_WS, WS_PART, 8 * 2048 * 512 * 2)
            make_srd(A, 76, P_WS, WS_FLAG + 5 * 8192, 8192)
            A("v_and_b32 v60, 7, v1")
            A("v_lshlrev_b32 v60, 3, v60")
            A(f"s_lshl_b32 s64, s{S_M}, 19")
            A(f"s_lshl_b32 s50, s{S_J}, 13")
            A("s_add_u32 s64, s64, s50")
            A("s_lshl_b32 s50, s48, 12")
            A("s_add_u32 s64, s64, s50")
            A("v_lshrrev_b32 v61, 5, v1")
            A("v_and_b32 v5, 31, v1")
            A("v_lshlrev_b32 v61, 10, v61")
            A("v_lshl_add_u32 v61, v5, 4, v61")
            A("s_lshl_b32 s50, s48, 11")
            A(f"s_add_u32 s50, s50, {81920 + 4096}")
            A("v_lshlrev_b32 v62, 5, v1")
            A("v_add_u32 v62, s50, v62")
            A("v_add_u32 v3, 8192, v3")
            A("s_mov_b32 s65, 0")
            A.label(".Lha_pl")
            A("buffer_load_dwordx2 v[248:249], v60, s[76:79], s96 offen sc1")
            A("s_waitcnt vmcnt(0)")
            A("ds_read_b64 v[6:7], v3")
            A("v_xor_b32 v248, s100, v248")
            A("v_xor_b32 v249, s101, v249")
            A("v_or_b32 v248, v248, v249")
            A("v_cmp_ne_u32 vcc, 0, v248")
            A("s_waitcnt lgkmcnt(0)")
            A("s_cbranch_vccz .Lha_go")
            A("v_xor_b32 v6, s100, v6")
            A("v_xor_b32 v7, s101, v7")
            A("v_or_b32 v6, v6, v7")
            A("v_cmp_ne_u32 vcc, 0, v6")
            A("s_nop 0")
            A("s_cbranch_vccz .Lha_end")
            A(f"s_sleep {int(os.environ.get('HASL', '2'))}")
            A("s_branch .Lha_pl")
            A.label(".Lha_go")
            self.ha_loads()
            A.label(".Lha_end")
        if ONE and stage == 0:
            if K1.HB3 is None: self.jobs0()
            if PRG:
                A(f"s_cmp_lg_u32 s{S_WAVE}, 1")
                A("s_cbranch_scc1 .Lw1m_end")
                A(f"s_lshl_b32 s{S_TMP}, 1, s{S_J}")
                A(f"v_mov_b32 v2, {MSK}")
                A(f"v_mov_b32 v3, s{S_TMP}")
                A("ds_write_b32 v2, v3")
                A.label(".Lw1m_end")
        if early and NE:
            A(f"s_cmp_ge_u32 s{S_WAVE}, 4")
            A(f"s_cbranch_scc1 .Ltr{stage}_h")
            early(0, NE)
            A(f"s_waitcnt vmcnt({len(self.vm.ops)})")
            A(f"s_branch .Ltr{stage}_j")
            A.label(f".Ltr{stage}_h")
            A("s_waitcnt vmcnt(0)")
            A.label(f".Ltr{stage}_j")
        elif not (HA and stage == 0):
            A("s_waitcnt vmcnt(0)")
        self.flag_srd(stage)
        A(f"s_lshl_b32 s96, s{S_M}, 8")
        A(f"s_lshl_b32 s97, s{S_J}, {3 if ONE else 2}")
        A("s_add_u32 s97, s97, s96")
        if stage == 0 and KMAP != 1: A("s_mov_b32 s97, s39")
        if ONE:
            A("v_mov_b32 v246, s100")
            A("v_mov_b32 v247, s101")
        A("v_mov_b32 v2, 1")
        A("v_mov_b32 v3, s97")
        A("s_waitcnt lgkmcnt(0)")
        self.lg.ops = []
        A("s_barrier")
        if not (HA and stage == 0):
            A(f"s_cmp_lg_u32 s{S_WAVE}, 7")
            A(f"s_cbranch_scc1 .Lpub{stage}")
            A("s_mov_b64 exec, 1")
            A("buffer_store_dwordx2 v[246:247], v3, s[92:95], 0 offen sc1" if ONE else "buffer_store_dword v2, v3, s[92:95], 0 offen sc1")
            A("s_mov_b64 exec, -1")
            A.label(f".Lpub{stage}")
        self.stamp(1 + 4 * stage + 2)
    def ha_loads(self):
        A = self.A
        for g in range(8):
            for p in range(2):
                d = 128 + 8 * g + 4 * p
                A(f"buffer_load_dwordx4 v[{d}:{d+3}], v61, s[72:75], s64 offen offset:{p*2048}")
            if g < 7: A("s_add_u32 s64, s64, 65536")
        A("s_mov_b32 s65, 1")
    def poll(self, stage, nbr=False, check=True, after=None):
        A = self.A
        lab = f".Lpl{stage}"
        if check:
            A(f"s_cmp_lg_u32 s{S_WAVE}, 7")
            A(f"s_cbranch_scc1 {lab}_done")
        A("v_and_b32 v3, 7, v1")
        A(f"v_lshlrev_b32 v3, {3 if ONE else 2}, v3")
        if nbr:
            A("v_bfe_u32 v2, v1, 3, 2")
            A("v_min_u32 v2, 2, v2")
            A(f"v_add_u32 v2, s{S_M}, v2")
            A("v_max_u32 v2, 1, v2")
            A("v_min_u32 v2, 32, v2")
            A("v_subrev_u32 v2, 1, v2")
            A("v_lshl_add_u32 v3, v2, 8, v3")
        else:
            A("v_add_u32 v3, s96, v3")
        A("s_mov_b32 s98, 0")
        NP = int(os.environ.get("NPOLL", "1")); PSL = int(os.environ.get("PSL", "1"))
        if ONE and SPOLL and not nbr and not (stage == 0 and KMAP != 1):
            A("s_mov_b32 s99, 0")
            A.label(f"{lab}_sp")
            A("s_buffer_load_dwordx16 s[8:23], s[92:95], s96 glc")
            A("s_add_u32 s99, s99, 1")
            A("s_waitcnt lgkmcnt(0)")
            for i in range(8): A(f"s_xor_b64 s[{8+2*i}:{9+2*i}], s[{8+2*i}:{9+2*i}], s[100:101]")
            for i in range(1, 8): A(f"s_or_b64 s[8:9], s[8:9], s[{8+2*i}:{9+2*i}]")
            A(f"s_cbranch_scc0 {lab}_sd")
            A(f"s_and_b32 s98, s99, {SPOLL * 4 - 1}")
            A(f"s_cbranch_scc1 {lab}_sp")
            A("buffer_load_dwordx2 v[248:249], v3, s[92:95], 0 offen sc1")
            A("s_waitcnt vmcnt(0)")
            A("v_xor_b32 v248, s100, v248")
            A("v_xor_b32 v249, s101, v249")
            A("v_or_b32 v248, v248, v249")
            A("v_cmp_ne_u32 vcc, 0, v248")
            A("s_cmp_lt_u32 s99, 0x80000")
            A(f"s_cbranch_scc0 {lab}_sd")
            A(f"s_cbranch_vccnz {lab}_sp")
            A.label(f"{lab}_sd")
            if after: after()
        elif ONE:
            self.poll64(lab + "x", [(3, 92, "0")])
        elif NP == 1:
            A.label(f"{lab}_poll")
            A("buffer_load_dword v2, v3, s[92:95], 0 offen sc1")
            A("s_add_u32 s98, s98, 1")
            A("s_waitcnt vmcnt(0)")
            A("v_cmp_ne_u32 vcc, 1, v2")
            A("s_cmp_lt_u32 s98, 0x40000")
            A(f"s_cbranch_scc0 {lab}_done")
            A(f"s_cbranch_vccnz {lab}_poll")
        else:
            for i in range(NP):
                A(f"buffer_load_dword v{248+i}, v3, s[92:95], 0 offen sc1")
                if PSL and i < NP - 1: A(f"s_sleep {PSL}")
            A.label(f"{lab}_poll")
            for i in range(NP):
                A(f"s_waitcnt vmcnt({NP-1})")
                A(f"v_cmp_ne_u32 vcc, 1, v{248+i}")
                A(f"s_cbranch_vccz {lab}_done")
                A(f"buffer_load_dword v{248+i}, v3, s[92:95], 0 offen sc1")
            A("s_add_u32 s98, s98, 1")
            A("s_cmp_lt_u32 s98, 0x40000")
            A(f"s_cbranch_scc1 {lab}_poll")
        A.label(f"{lab}_done")
    def poll64(self, lab, srcs, cnt=99, slp=0):
        A = self.A
        A(f"s_mov_b32 s{cnt}, 0")
        A.label(f"{lab}_poll")
        if slp: A(f"s_sleep {slp}")
        for i, (va, srd, so) in enumerate(srcs):
            A(f"buffer_load_dwordx2 v[{248+2*i}:{249+2*i}], v{va}, s[{srd}:{srd+3}], {so} offen sc1")
        A(f"s_add_u32 s{cnt}, s{cnt}, 1")
        A("s_waitcnt vmcnt(0)")
        for i in range(len(srcs)):
            A(f"v_xor_b32 v{248+2*i}, s100, v{248+2*i}")
            A(f"v_xor_b32 v{249+2*i}, s101, v{249+2*i}")
        A("v_or_b32 v248, v248, v249")
        for i in range(1, len(srcs)):
            A(f"v_or3_b32 v248, v248, v{248+2*i}, v{249+2*i}")
        A("v_cmp_ne_u32 vcc, 0, v248")
        A(f"s_cmp_lt_u32 s{cnt}, 0x40000")
        A(f"s_cbranch_scc0 {lab}_done")
        A(f"s_cbranch_vccnz {lab}_poll")
        A.label(f"{lab}_done")
    def pst(self, idx):
        if not PT: return
        A = self.A
        A("s_waitcnt lgkmcnt(0)")
        A("s_memrealtime s[38:39]")
        A("s_waitcnt lgkmcnt(0)")
        A(f"v_writelane_b32 v59, s38, {idx}")
    def pst_flush(self):
        if not PT: return
        A = self.A
        make_srd(A, 36, 68, WS_DBG + 16 * MB, 1 * MB)
        A("s_lshl_b32 s57, s2, 3")
        A("s_add_u32 s57, s57, s40")
        A("s_lshl_b32 s57, s57, 6")
        A("v_lshlrev_b32 v2, 2, v1")
        A("s_mov_b64 exec, 0xffff")
        A("buffer_store_dword v59, v2, s[36:39], s57 offen")
        A("s_mov_b64 exec, -1")
    def pro_pre(self):
        A = self.A
        self.pst(0)
        A("s_load_dwordx2 s[4:5], s[0:1], 0")
        A("s_load_dwordx4 s[72:75], s[0:1], 80")
        A("s_load_dwordx2 s[6:7], s[0:1], 104")
        A("s_memrealtime s[70:71]")
        if int(os.environ.get("CPF", "1")):
            A("s_getpc_b64 s[76:77]")
            A.label(".Lpc0")
            A("s_mov_b32 s78, .Lcode_end-.Lpc0")
            A("s_mov_b32 s79, 0x00020000")
            A("s_lshr_b32 s3, s2, 3")
            A(f"s_mul_i32 s3, s3, {64 * CPL}")
            A("v_lshlrev_b32 v2, 6, v0")
            A(f"v_cmp_gt_u32 vcc, {CPL}, v0")
            A("s_and_b64 exec, exec, vcc")
            A("buffer_load_dword v62, v2, s[76:79], s3 offen")
            A("s_mov_b64 exec, -1")
    def pro_a(self):
        A = self.A
        W = K1.S_WAVE; M_ = K1.S_M; G_ = K1.S_G
        self.pst(1)
        make_srd(A, 76, 72, 0, 1024)
        make_srd(A, 80, 74, 0, 512 * 6144)
        make_srd(A, 84, 68, WS_MOD, 3072 * 4)
        A("s_movk_i32 s3, 6144")
        A("s_mov_b32 s59, s2")
        A("s_cmp_lt_u32 s2, 96")
        A("s_cbranch_scc1 .Lpa_mod")
        make_srd(A, 80, 96, 0, 512 * 3584)
        make_srd(A, 84, 68, WS_CS, 1792 * 4)
        A("s_movk_i32 s3, 3584")
        A("s_sub_u32 s59, s2, 96")
        A.label(".Lpa_mod")
        A("s_cmp_ge_u32 s2, 152")
        A("s_cbranch_scc1 .Lpa_nob")
        A("v_and_b32 v2, 3, v0")
        A("v_lshrrev_b32 v3, 2, v0")
        A("v_mul_lo_u32 v4, v3, s3")
        A("v_lshl_add_u32 v4, v2, 4, v4")
        A("v_lshlrev_b32 v5, 1, v3")
        A("s_lshl_b32 s58, s59, 6")
        A("s_lshl_b32 s3, s3, 7")
        for i in range(4):
            A(f"buffer_load_dwordx4 v[{72+4*i}:{75+4*i}], v4, s[80:83], s58 offen")
            if i < 3: A("s_add_u32 s58, s58, s3")
        for i in range(4):
            A(f"buffer_load_ushort v{64+i}, v5, s[76:79], 0 offen offset:{i*256}")
        A.label(".Lpa_nob")
        make_srd(A, 88, 4, 0, 2 * MB)
        A(f"s_lshl_b32 s3, s{M_}, 3")
        A(f"s_add_u32 s3, s3, s{G_}")
        A("s_lshl_b32 s3, s3, 3")
        A(f"s_add_u32 s3, s3, s{W}")
        A("s_lshl_b32 s3, s3, 10")
        A("buffer_load_dwordx4 v[68:71], v12, s[88:91], s3 offen")
        make_srd(A, 76, 6, 0, 256)
        A(f"s_or_b32 s58, s2, s{W}")
        A("s_cmp_lg_u32 s58, 0")
        A("s_cbranch_scc1 .Lpa_non")
        A("s_or_b32 s70, s70, 1")
        A("v_mov_b32 v2, s70")
        A("v_mov_b32 v3, s71")
        A("v_mov_b32 v4, 0")
        A("s_mov_b64 exec, 1")
        A("buffer_store_dwordx2 v[2:3], v4, s[76:79], 0 offen sc1")
        A("s_mov_b64 exec, -1")
        A.label(".Lpa_non")
        if WQE: self.wqpf()
    def wqpf(self):
        A = self.A; W = K1.S_WAVE
        SQ = 88 if WQE else K1.S_WQ
        if WQE: make_srd(A, 88, 64, 0, 4 * MB)
        A("v_lshrrev_b32 v2, 4, v0")
        A("v_and_b32 v3, 15, v0")
        A("v_lshlrev_b32 v3, 6, v3")
        A("v_lshl_add_u32 v2, v2, 13, v3")
        A("s_lshr_b32 s58, s2, 3")
        A("s_lshl_b32 s58, s58, 17")
        A("s_and_b32 s57, s2, 7")
        A("s_lshl_b32 s57, s57, 10")
        A("s_add_u32 s58, s58, s57")
        A(f"s_cmp_ge_u32 s{W}, 4")
        A("s_cbranch_scc1 .Lpa_nopf")
        A(f"buffer_load_dword v255, v2, s[{SQ}:{SQ+3}], s58 offen")
        A.label(".Lpa_nopf")
    def pro_b(self, nyoung, early, w7):
        A = self.A
        W = K1.S_WAVE; M_ = K1.S_M; G_ = K1.S_G; KM = f"s{K1.S_MASK}"
        NY = nyoung
        ACC = list(range(96, 104)); T = list(range(104, 112)); U = list(range(112, 120)); C = [64, 65, 66, 67]
        make_srd(A, 88, 68, WS_XN, 2 * MB)
        self.pst(2)
        A("s_waitcnt vmcnt(0)")
        self.pst(3)
        if not WQE: self.wqpf()
        A("s_cmp_ge_u32 s2, 152")
        A("s_cbranch_scc1 .Lpb_ln")
        A("s_cmp_lt_u32 s2, 96")
        A("s_cbranch_scc1 .Lpb_silu")
        for c in C: A(f"v_mov_b32 v{c}, 1.0")
        A("s_branch .Lpb_fma")
        A.label(".Lpb_silu")
        for i, c in enumerate(C): A(f"v_lshlrev_b32 v{c}, 16, v{c}")
        for i, c in enumerate(C): A(f"v_mul_f32 v{T[i]}, {fhex(-LOG2E)}, v{c}")
        for i, c in enumerate(C): A(f"v_exp_f32 v{T[i]}, v{T[i]}")
        for i, c in enumerate(C): A(f"v_add_f32 v{T[i]}, 1.0, v{T[i]}")
        for i, c in enumerate(C): A(f"v_rcp_f32 v{U[i]}, v{T[i]}")
        for i, c in enumerate(C): A(f"v_mul_f32 v{U[4+i]}, v{c}, v{U[i]}")
        for i, c in enumerate(C): A(f"v_fma_f32 v{T[i]}, -v{U[4+i]}, v{T[i]}, v{c}")
        for i, c in enumerate(C): A(f"v_fma_f32 v{c}, v{T[i]}, v{U[i]}, v{U[4+i]}")
        for i, c in enumerate(C): A(f"v_cvt_pk_bf16_f32 v{T[i]}, v{c}, v{c}")
        for i, c in enumerate(C): A(f"v_lshlrev_b32 v{c}, 16, v{T[i]}")
        A.label(".Lpb_fma")
        for i in range(4):
            for j in range(4):
                w = 72 + 4 * i + j
                A(f"v_lshlrev_b32 v{T[2*j]}, 16, v{w}")
                A(f"v_and_b32 v{T[2*j+1]}, {KM}, v{w}")
            for j in range(8):
                A(f"v_mul_f32 v{ACC[j]}, v{T[j]}, v{C[i]}" if i == 0 else f"v_fmac_f32 v{ACC[j]}, v{T[j]}, v{C[i]}")
        A("s_nop 1")
        for dpp in ("row_ror:8", "row_ror:4"):
            for v in ACC: A(f"v_add_f32_dpp v{v}, v{v}, v{v} {dpp} row_mask:0xf bank_mask:0xf")
        A("v_and_b32 v2, 3, v1")
        A("v_lshrrev_b32 v3, 4, v0")
        A("v_lshlrev_b32 v3, 7, v3")
        A("v_lshl_add_u32 v3, v2, 5, v3")
        A("v_and_b32 v2, 12, v1")
        A("v_cmp_eq_u32 vcc, 0, v2")
        A("s_and_saveexec_b64 s[58:59], vcc") if False else None
        A("s_mov_b64 s[4:5], exec")
        A("s_and_b64 exec, exec, vcc")
        A(f"ds_write_b128 v3, v[{ACC[0]}:{ACC[3]}]")
        A(f"ds_write_b128 v3, v[{ACC[4]}:{ACC[7]}] offset:16")
        A("s_mov_b64 exec, -1")
        A("s_waitcnt lgkmcnt(0)")
        A("s_barrier")
        self.pst(4)
        A(f"s_cmp_lg_u32 s{W}, 7")
        A("s_cbranch_scc1 .Lpb_ln")
        A("v_and_b32 v2, 31, v1")
        A("v_lshlrev_b32 v2, 2, v2")
        A("v_lshrrev_b32 v3, 5, v1")
        A("v_lshl_add_u32 v3, v3, 11, v2")
        for k in range(16): A(f"ds_read_b32 v{120+k}, v3 offset:{k*128}")
        for k in range(8):
            A(f"s_waitcnt lgkmcnt({14-2*k})")
            A(f"v_add_f32 v{120+2*k}, v{120+2*k}, v{121+2*k}")
        for k in range(4): A(f"v_add_f32 v{120+4*k}, v{120+4*k}, v{122+4*k}")
        A("v_add_f32 v120, v120, v124")
        A("v_add_f32 v128, v128, v132")
        A("v_add_f32 v120, v120, v128")
        A("v_mov_b32 v121, v120")
        A("s_nop 1")
        A("v_permlane32_swap_b32 v120, v121")
        A("s_nop 1")
        A("v_add_f32 v120, v120, v121")
        A("s_cmp_ge_u32 s2, 96")
        A("s_cbranch_scc1 .Lpb_nornd")
        round_bf16_1(A, 120, 121)
        A.label(".Lpb_nornd")
        A("s_lshl_b32 s58, s59, 7")
        A("s_mov_b32 exec_hi, 0")
        A("buffer_store_dword v120, v2, s[84:87], s58 offen sc1")
        A("s_mov_b64 exec, -1")
        A.label(".Lpb_ln")
        A("v_mov_b32 v2, 0")
        A(f"s_cmp_lg_u32 s{W}, 7")
        A("s_cbranch_scc1 .Lpb_ln2")
        A("s_mov_b64 exec, 1")
        A("buffer_load_dwordx2 v[136:137], v2, s[76:79], 0 offen sc1")
        A("s_mov_b64 exec, -1")
        A.label(".Lpb_ln2")
        self.pst(5)
        X = list(range(96, 104)); TT = list(range(104, 116))
        for j in range(4):
            A(f"v_lshlrev_b32 v{X[2*j]}, 16, v{68+j}")
            A(f"v_and_b32 v{X[2*j+1]}, {KM}, v{68+j}")
        ln_rows(A, [(X, TT)], KM)
        pack8(A, X, 68)
        A("buffer_store_dwordx4 v[68:71], v12, s[88:91], s3 offen sc1")
        make_srd(A, 80, 68, FP, 32 * 512)
        self.pst(6)
        A(f"s_cmp_lg_u32 s{W}, 7")
        A("s_cbranch_scc1 .Lpb_w")
        A("s_waitcnt vmcnt(1)")
        A("s_mov_b32 s57, 0")
        A.label(".Lpb_nl")
        A("v_readfirstlane_b32 s100, v136")
        A("v_readfirstlane_b32 s101, v137")
        A("s_add_u32 s57, s57, 1")
        A("s_cmp_lg_u32 s100, 0")
        A("s_cbranch_scc1 .Lpb_nd")
        A("s_cmp_lt_u32 s57, 0x40000")
        A("s_cbranch_scc0 .Lpb_nd")
        A("s_mov_b64 exec, 1")
        A("buffer_load_dwordx2 v[136:137], v2, s[76:79], 0 offen sc1")
        A("s_mov_b64 exec, -1")
        A("s_waitcnt vmcnt(0)")
        A("s_branch .Lpb_nl")
        A.label(".Lpb_nd")
        A("v_mov_b32 v136, s100")
        A("v_mov_b32 v137, s101")
        self.pst(7)
        A("s_cmp_ge_u32 s2, 152")
        A("s_cbranch_scc1 .Lpb_w")
        A("v_lshlrev_b32 v3, 9, v1")
        A("s_lshl_b32 s58, s2, 3")
        A("s_cmp_lt_u32 s2, 32")
        A("s_cbranch_scc1 .Lpb_crit")
        make_srd(A, 80, 68, FQ_, 32 * 1024)
        A("v_lshlrev_b32 v3, 10, v1")
        A("s_sub_u32 s58, s58, 256")
        A.label(".Lpb_crit")
        A("s_mov_b32 exec_hi, 0")
        A("buffer_store_dwordx2 v[136:137], v3, s[80:83], s58 offen sc1")
        A("s_mov_b64 exec, -1")
        make_srd(A, 80, 68, FP, 32 * 512)
        A.label(".Lpb_w")
        A("s_waitcnt vmcnt(1)") if False else None
        A("s_waitcnt vmcnt(0)")
        self.pst(8)
        A("s_barrier")
        self.pst(9)
        A(f"s_cmp_lg_u32 s{W}, 7")
        A("s_cbranch_scc1 .Lpb_early")
        A(f"s_lshl_b32 s58, s{M_}, 9")
        A(f"s_lshl_b32 s57, s{G_}, 3")
        A("s_add_u32 s57, s57, 256")
        A("v_mov_b32 v3, s57")
        A("s_mov_b64 exec, 1")
        A("buffer_store_dwordx2 v[136:137], v3, s[80:83], s58 offen sc1")
        A("s_mov_b64 exec, -1")
        A("v_min_u32 v3, 39, v1")
        A("v_lshlrev_b32 v3, 3, v3")
        sv99 = None
        w7()
        self.poll64(".Lplp", [(3, 80, "s58")], cnt=57)
        A("s_branch .Lpb_done")
        A.label(".Lpb_early")
        early()
        A.label(".Lpb_done")
        A("s_barrier")
        self.pst(10)
        self.pst_flush()
    def p2_a(self):
        A = self.A
        W = K1.S_WAVE; M_ = K1.S_M; G_ = K1.S_G
        SCR = K1.STG + 16384
        A("s_waitcnt lgkmcnt(0)")
        self.pst(1)
        make_srd(A, 76, 72, 0, 1024)
        make_srd(A, 80, 74, 0, 512 * 6144)
        make_srd(A, 84, 68, WS_MOD, 4 * MODP)
        make_srd(A, 88, 4, 0, 2 * MB)
        A("s_movk_i32 s3, 6144")
        A("s_and_b32 s4, s2, 15")
        A("s_lshr_b32 s5, s2, 4")
        A("s_lshl_b32 s57, s5, 8")
        A("s_cmp_lt_u32 s2, 64")
        A("s_cbranch_scc1 .Lp2a_dec")
        A("s_sub_u32 s4, s2, 64")
        A("s_and_b32 s5, s4, 1")
        A("s_lshr_b32 s4, s4, 1")
        A("s_lshl_b32 s57, s5, 9")
        A("s_add_u32 s4, s4, 16")
        A("s_cmp_lt_u32 s4, 48")
        A("s_cbranch_scc1 .Lp2a_dec")
        A("s_sub_u32 s4, s4, 48")
        make_srd(A, 80, 96, 0, 512 * 3584)
        make_srd(A, 84, 68, WS_CS, 2 * CSP)
        A("s_movk_i32 s3, 3584")
        A.label(".Lp2a_dec")
        A("s_lshr_b32 s58, s57, 1")
        A("s_mul_i32 s58, s58, s3")
        A("s_lshl_b32 s59, s4, 7")
        A("s_add_u32 s58, s58, s59")
        A("s_lshl_b32 s59, s4, 8")
        A(f"s_movk_i32 s4, {MODP}")
        A("s_cmp_eq_u32 s3, 3584")
        A(f"s_cselect_b32 s4, {CSP}, s4")
        A("s_mul_i32 s4, s4, s5")
        A("s_add_u32 s59, s59, s4")
        A("v_and_b32 v2, 7, v0")
        A("v_bfe_u32 v3, v0, 3, 5")
        A("v_mul_lo_u32 v60, v3, s3")
        A("v_lshl_add_u32 v60, v2, 4, v60")
        A("v_lshlrev_b32 v61, 1, v3")
        A("s_lshl_b32 s70, s3, 5") if False else None
        A("s_lshl_b32 s5, s3, 5")
        A(f"s_cmp_ge_u32 s{W}, 4")
        A("s_cbranch_scc1 .Lp2a_end")
        A("s_cmp_ge_u32 s2, 64")
        A("s_cbranch_scc1 .Lp2a_x")
        self.p2_tload(0)
        A.label(".Lp2a_x")
        A(f"s_lshl_b32 s3, s{M_}, 3")
        A(f"s_add_u32 s3, s3, s{G_}")
        A("s_lshl_b32 s3, s3, 2")
        A(f"s_add_u32 s3, s3, s{W}")
        A("s_lshl_b32 s3, s3, 11")
        A("buffer_load_dwordx4 v[88:91], v12, s[88:91], s3 offen")
        A("buffer_load_dwordx4 v[92:95], v12, s[88:91], s3 offen offset:1024")
        make_srd(A, 88, 6, 0, 256)
        A(f"s_or_b32 s4, s2, s{W}")
        A("s_cmp_lg_u32 s4, 0")
        A("s_cbranch_scc1 .Lp2a_non")
        A("s_or_b32 s70, s70, 1")
        A("v_mov_b32 v2, s70")
        A("v_mov_b32 v3, s71")
        A("v_mov_b32 v4, 0")
        A("s_mov_b64 exec, 1")
        A("buffer_store_dwordx2 v[2:3], v4, s[88:91], 0 offen sc1")
        A("s_mov_b64 exec, -1")
        A.label(".Lp2a_non")
        A(f"v_mov_b32 v2, {SCR + 8192}")
        A("v_mov_b32 v4, 0")
        A("v_mov_b32 v5, 0")
        A("ds_write_b64 v2, v[4:5]")
        A("s_branch .Lp2a_e2")
        A.label(".Lp2a_end")
        if WQF == 1: self.p2_wq()
        if WQF == 2:
            A("s_cmp_lt_u32 s2, 64")
            A("s_cbranch_scc1 .Lp2a_e2") if False else None
            A("s_sleep 4")
            self.p2_wq()
        if TLW:
            A("v_lshlrev_b32 v2, 21, v1")
            A(f"v_add_u32 v2, {(2 << 20) - 128}, v2")
            make_srd(A, 88, 68, 0, 48 * MB if TLW >= 2 else 4 * MB)
            A(f"s_cmp_lg_u32 s{W}, 4")
            A("s_cbranch_scc1 .Lp2a_e2")
            A("buffer_load_dword v252, v2, s[88:91], 0 offen sc1")
            if TLW == 1:
                A(f"s_mov_b32 s4, {WS_FLAG}")
                make_srd(A, 88, 68, 0, WS_FLAG + 2 * MB)
                A("buffer_load_dword v252, v2, s[88:91], s4 offen sc1")
        A.label(".Lp2a_e2")
        if EB:
            A("s_waitcnt lgkmcnt(0)")
            A("s_barrier")
            A(f"s_cmp_lt_u32 s{W}, 4")
            A("s_cbranch_scc1 .Lp2a_e3")
            self.p2_bulk1()
            A.label(".Lp2a_e3")
        A("s_mov_b32 s70, s57")
        A("s_mov_b32 s71, s58")
    def p2_bulk1(self):
        A = self.A; W = K1.S_WAVE
        A("s_sub_u32 s4, s2, 64")
        A("s_cmp_ge_u32 s4, 120")
        A("s_cbranch_scc1 .Lp2_l1")
        self.p2_tload(0); self.p2_tload(1)
        A.label(".Lp2_l1")
        if EB: make_srd(A, K1.S_WQ, 64, 0, 4 * MB)
        if DLY == 1 and not EB:
            A("s_cmp_ge_u32 s2, 64")
            A("s_cbranch_scc1 .Lp2_l3")
        if DLY and not EB:
            self.lds_spin(".Lp2_sd", 4, 4, True)
            A.label(".Lp2_l3")
        if not WQF: self.p2_wq()
    def p2_wq(self):
        A = self.A; W = K1.S_WAVE
        if WQF: make_srd(A, K1.S_WQ, 64, 0, 4 * MB)
        W128 = int(os.environ.get("W128", "0"))
        A("v_and_b32 v4, 255, v0")
        A(f"v_lshrrev_b32 v2, {3 if W128 else 4}, v4")
        A(f"v_and_b32 v3, {7 if W128 else 15}, v4")
        A(f"v_lshlrev_b32 v3, {7 if W128 else 6}, v3")
        A("v_lshl_add_u32 v2, v2, 13, v3")
        A("s_lshr_b32 s36, s2, 3")
        A("s_lshl_b32 s36, s36, 17")
        A("s_and_b32 s37, s2, 7")
        A("s_lshl_b32 s37, s37, 10")
        A("s_add_u32 s36, s36, s37")
        if W128:
            A(f"s_cmp_ge_u32 s{W}, 6")
            A("s_cbranch_scc1 .Lp2_l2")
        A(f"buffer_load_dword v63, v2, s[{K1.S_WQ}:{K1.S_WQ+3}], s36 offen")
        if W128: A.label(".Lp2_l2")
    def p2_tload(self, b):
        A = self.A
        wd = (72, 140)[b]; cd = (64, 156)[b]
        for i in range(4):
            A(f"buffer_load_dwordx4 v[{wd+4*i}:{wd+4*i+3}], v60, s[80:83], s58 offen")
            A("s_add_u32 s58, s58, s5")
        for i in range(4):
            A(f"buffer_load_ushort v{cd+i}, v61, s[76:79], s57 offen offset:{b*256 + i*64}")
    def lds_spin(self, lab, off, target, sleep=False, va=9):
        A = self.A
        A.label(lab)
        if sleep: A("s_sleep 2")
        A(f"ds_read_b32 v3, v{va} offset:{off}")
        A("s_waitcnt lgkmcnt(0)")
        A("v_readfirstlane_b32 s4, v3")
        A(f"s_cmp_lt_u32 s4, {target}")
        A(f"s_cbranch_scc1 {lab}")
    def lds_inc(self, off, va=9):
        A = self.A
        A("v_mov_b32 v3, 1")
        A("s_mov_b64 exec, 1")
        A(f"ds_add_u32 v{va}, v3 offset:{off}")
        A("s_mov_b64 exec, -1")
    def p2_gemv(self, sfx, nb, maybe_ones, col=3):
        A = self.A
        W = K1.S_WAVE; KM = f"s{K1.S_MASK}"; SCR = K1.STG + 16384
        ACC = list(range(96, 104)); T = list(range(104, 112)); U = list(range(112, 128))
        C = [64, 65, 66, 67] + ([156, 157, 158, 159] if nb == 2 else [])
        n = len(C)
        if maybe_ones:
            A("s_cmp_lt_u32 s2, 128")
            A(f"s_cbranch_scc1 .Lp2_silu{sfx}")
            for c in C: A(f"v_mov_b32 v{c}, 1.0")
            A(f"s_branch .Lp2_fma{sfx}")
            A.label(f".Lp2_silu{sfx}")
        for i, c in enumerate(C): A(f"v_lshlrev_b32 v{c}, 16, v{c}")
        for i, c in enumerate(C): A(f"v_mul_f32 v{T[i]}, {fhex(-LOG2E)}, v{c}")
        for i, c in enumerate(C): A(f"v_exp_f32 v{T[i]}, v{T[i]}")
        for i, c in enumerate(C): A(f"v_add_f32 v{T[i]}, 1.0, v{T[i]}")
        for i, c in enumerate(C): A(f"v_rcp_f32 v{U[i]}, v{T[i]}")
        for i, c in enumerate(C): A(f"v_mul_f32 v{U[8+i]}, v{c}, v{U[i]}")
        for i, c in enumerate(C): A(f"v_fma_f32 v{T[i]}, -v{U[8+i]}, v{T[i]}, v{c}")
        for i, c in enumerate(C): A(f"v_fma_f32 v{c}, v{T[i]}, v{U[i]}, v{U[8+i]}")
        for i, c in enumerate(C): A(f"v_cvt_pk_bf16_f32 v{T[i]}, v{c}, v{c}")
        for i, c in enumerate(C): A(f"v_lshlrev_b32 v{c}, 16, v{T[i]}")
        if maybe_ones: A.label(f".Lp2_fma{sfx}")
        for i in range(n):
            for j in range(4):
                w = (72, 140)[i >> 2] + 4 * (i & 3) + j
                A(f"v_lshlrev_b32 v{T[2*j]}, 16, v{w}")
                A(f"v_and_b32 v{T[2*j+1]}, {KM}, v{w}")
            for j in range(8):
                A(f"v_mul_f32 v{ACC[j]}, v{T[j]}, v{C[i]}" if i == 0 else f"v_fmac_f32 v{ACC[j]}, v{T[j]}, v{C[i]}")
        A("v_and_b32 v2, 7, v1")
        A("v_bfe_u32 v3, v0, 4, 4")
        for v in ACC: A(f"v_add_f32_dpp v{v}, v{v}, v{v} row_ror:8 row_mask:0xf bank_mask:0xf")
        A("v_lshlrev_b32 v3, 8, v3")
        A("v_lshl_add_u32 v3, v2, 5, v3")
        A(f"v_add_u32 v3, {SCR}, v3")
        A("v_and_b32 v2, 8, v1")
        A("v_cmp_eq_u32 vcc, 0, v2")
        A("s_and_b64 exec, exec, vcc")
        A(f"ds_write_b128 v3, v[{ACC[0]}:{ACC[3]}]")
        A(f"ds_write_b128 v3, v[{ACC[4]}:{ACC[7]}] offset:16")
        A("s_mov_b64 exec, -1")
        A("s_waitcnt lgkmcnt(0)")
        self.lds_inc(0)
        A(f"s_cmp_lg_u32 s{W}, {col}")
        A(f"s_cbranch_scc1 .Lp2_gd{sfx}")
        self.lds_spin(f".Lp2_sp{sfx}", 0, 4)
        A("v_lshlrev_b32 v2, 2, v1")
        A(f"v_add_u32 v3, {SCR}, v2")
        for k in range(16): A(f"ds_read_b32 v{104+k}, v3 offset:{k*256}")
        for k in range(8):
            A(f"s_waitcnt lgkmcnt({14-2*k})")
            A(f"v_add_f32 v{104+2*k}, v{104+2*k}, v{105+2*k}")
        for k in range(4): A(f"v_add_f32 v{104+4*k}, v{104+4*k}, v{106+4*k}")
        A("v_add_f32 v104, v104, v108")
        A("v_add_f32 v112, v112, v116")
        A("v_add_f32 v68, v104, v112")
        A("buffer_store_dword v68, v2, s[84:87], s59 offen sc1")
        A.label(f".Lp2_gd{sfx}")
    def p2_ln(self):
        A = self.A; KM = f"s{K1.S_MASK}"
        X0 = list(range(96, 104)); X1 = list(range(120, 128)); T0 = list(range(104, 116)); T1 = list(range(128, 140))
        for r, X in enumerate((X0, X1)):
            for j in range(4):
                A(f"v_lshlrev_b32 v{X[2*j]}, 16, v{88+4*r+j}")
                A(f"v_and_b32 v{X[2*j+1]}, {KM}, v{88+4*r+j}")
        ln_rows(A, [(X0, T0), (X1, T1)], KM, False)
        pack8(A, X0, 88); pack8(A, X1, 92)
        A(f"buffer_store_dwordx4 v[88:91], v12, s[{K1.S_XN}:{K1.S_XN+3}], s3 offen sc1")
        A(f"buffer_store_dwordx4 v[92:95], v12, s[{K1.S_XN}:{K1.S_XN+3}], s3 offen offset:1024 sc1")
    def p2_nonce(self, sfx):
        A = self.A
        A("s_mov_b32 s4, 0")
        A.label(f".Lp2_nl{sfx}")
        A("v_readfirstlane_b32 s100, v70")
        A("v_readfirstlane_b32 s101, v71")
        A("s_add_u32 s4, s4, 1")
        A("s_cmp_lg_u32 s100, 0")
        A(f"s_cbranch_scc1 .Lp2_nd{sfx}")
        A("s_cmp_lt_u32 s4, 0x40000")
        A(f"s_cbranch_scc0 .Lp2_nd{sfx}")
        self.p2_nload()
        A("s_waitcnt vmcnt(0)")
        A(f"s_branch .Lp2_nl{sfx}")
        A.label(f".Lp2_nd{sfx}")
        A("v_mov_b32 v70, s100")
        A("v_mov_b32 v71, s101")
    def p2_nload(self):
        A = self.A
        A("v_mov_b32 v2, 0")
        A("s_mov_b64 exec, 1")
        A("buffer_load_dwordx2 v[70:71], v2, s[88:91], 0 offen sc1")
        A("s_mov_b64 exec, -1")
    def p2_pubtask(self, region, base):
        A = self.A
        make_srd(A, 76, 68, region, 32 * 1024)
        A("v_lshlrev_b32 v3, 10, v1")
        A("s_mov_b32 s4, s73" if V3 else f"s_sub_u32 s4, s2, {base}")
        A("s_lshl_b32 s4, s4, 3")
        A("s_mov_b32 exec_hi, 0")
        A("buffer_store_dwordx2 v[70:71], v3, s[76:79], s4 offen sc1")
        A("s_mov_b64 exec, -1")
    def p2_pubxn(self, sfx):
        A = self.A
        self.lds_spin(f".Lp2_sx{sfx}", 4, 3)
        make_srd(A, 76, 68, FP, 32 * 1024)
        A(f"s_lshl_b32 s4, s{K1.S_M}, 10")
        A(f"s_lshl_b32 s5, s{K1.S_G}, 3")
        A("s_add_u32 s5, s5, 512")
        A("v_mov_b32 v3, s5")
        A("s_mov_b64 exec, 1")
        A("buffer_store_dwordx2 v[70:71], v3, s[76:79], s4 offen sc1")
        A("s_mov_b64 exec, -1")
    def p2_b(self, loader, cfix, xn_loads):
        A = self.A
        W = K1.S_WAVE; M_ = K1.S_M; KM = f"s{K1.S_MASK}"; SCR = K1.STG + 16384
        A(f"v_mov_b32 v9, {SCR + 8192}")
        if not EB:
            A("s_waitcnt lgkmcnt(0)")
            A("s_barrier")
        self.pst(2)
        A(f"s_cmp_lt_u32 s{W}, 4")
        A("s_cbranch_scc1 .Lp2_c")
        if not EB:
            A("s_mov_b32 s57, s70")
            A("s_mov_b32 s58, s71")
            self.p2_bulk1()
        elif DLY == 1:
            A("s_cmp_ge_u32 s2, 64")
            A("s_cbranch_scc1 .Lp2_l4")
            self.lds_spin(".Lp2_sd2", 4, 4, True)
            A.label(".Lp2_l4")
        loader()
        A("s_sub_u32 s4, s2, 64")
        A("s_cmp_ge_u32 s4, 120")
        A("s_cbranch_scc1 .Lp2_X")
        A(f"s_waitcnt vmcnt({4 * int(os.environ.get('LDE', '2'))})")
        self.p2_gemv("b", 2, True, 7)
        A("s_branch .Lp2_X")
        A.label(".Lp2_c")
        cfix()
        A("s_waitcnt vmcnt(0)")
        self.pst(3)
        A("s_cmp_ge_u32 s2, 64")
        A("s_cbranch_scc1 .Lp2_a0")
        self.p2_gemv("a", 1, False)
        A.label(".Lp2_a0")
        self.pst(4)
        A(f"s_cmp_lg_u32 s{W}, 3")
        A("s_cbranch_scc1 .Lp2_a1")
        self.p2_nload()
        A.label(".Lp2_a1")
        self.p2_ln()
        self.pst(6)
        A(f"s_cmp_lg_u32 s{W}, 3")
        A("s_cbranch_scc1 .Lp2_ack")
        A("s_waitcnt vmcnt(2)")
        self.p2_nonce("a")
        A("s_cmp_ge_u32 s2, 64")
        A("s_cbranch_scc1 .Lp2_a2")
        self.p2_pubtask(FP, 0)
        self.pst(7)
        A("s_waitcnt vmcnt(1)")
        A("s_branch .Lp2_a3")
        A.label(".Lp2_a2")
        A("s_waitcnt vmcnt(0)")
        A.label(".Lp2_a3")
        self.p2_pubxn("a")
        self.lds_inc(4)
        A("s_branch .Lp2_col")
        A.label(".Lp2_ack")
        A("s_waitcnt vmcnt(0)")
        self.lds_inc(4)
        A("s_branch .Lp2_X")
        A.label(".Lp2_col")
        make_srd(A, 76, 68, FP, 32 * 1024)
        A(f"s_lshl_b32 s5, s{M_}, 10")
        A("v_and_b32 v3, 7, v1")
        A("v_lshlrev_b32 v3, 3, v3")
        A("v_add_u32 v3, 512, v3")
        A("ds_write_b64 v9, v[70:71] offset:16")
        def parts():
            make_srd(A, 84, 68, WS_MOD, 4 * MODP)
            for i in range(4):
                for p in range(4):
                    A(f"s_movk_i32 s4, {p * MODP}") if p * MODP < 32768 else A(f"s_mov_b32 s4, {p * MODP}")
                    A(f"buffer_load_dwordx4 v[{72+16*i+4*p}:{75+16*i+4*p}], v12, s[84:87], s4 offen offset:{i*1024}")
        if MP:
            A("v_lshlrev_b32 v4, 3, v1")
            self.poll64(".Lplx", [(3, 76, "s5"), (4, 76, "s5")], cnt=4)
            parts()
        else:
            self.poll64(".Lplx", [(3, 76, "s5")], cnt=4)
        A.label(".Lp2_X")
        self.pst(8)
        A("s_waitcnt lgkmcnt(0)")
        A("s_barrier")
        self.pst(9)
        xn_loads()
        A(f"s_cmp_lg_u32 s{W}, 3")
        A("s_cbranch_scc1 .Lp2_Y")
        if not MP:
            make_srd(A, 76, 68, FP, 32 * 1024)
            A(f"s_lshl_b32 s5, s{M_}, 10")
            A("v_lshlrev_b32 v3, 3, v1")
            self.poll64(".Lplm", [(3, 76, "s5")], cnt=4)
            parts()
        A(f"v_add_u32 v3, {SCR + 4096}, v12")
        for i in range(4):
            b = 72 + 16 * i
            A(f"s_waitcnt vmcnt({12 - 4*i + (8 if MP else 0)})")
            pk(A, "v_pk_add_f32", b, b, b + 4); pk(A, "v_pk_add_f32", b + 2, b + 2, b + 6)
            pk(A, "v_pk_add_f32", b + 8, b + 8, b + 12); pk(A, "v_pk_add_f32", b + 10, b + 10, b + 14)
            pk(A, "v_pk_add_f32", b, b, b + 8); pk(A, "v_pk_add_f32", b + 2, b + 2, b + 10)
            round_multi(A, [b, b + 1, b + 2, b + 3], [b + 4, b + 5], KM)
            if i >= 2:
                for e in range(4): A(f"v_add_f32 v{b+e}, 1.0, v{b+e}")
                round_multi(A, [b, b + 1, b + 2, b + 3], [b + 4, b + 5], KM)
            A(f"ds_write_b128 v3, v[{b}:{b+3}] offset:{i*1024}")
        A("s_waitcnt lgkmcnt(0)")
        A.label(".Lp2_Y")
        A("s_barrier")
        self.pst(10)
        self.pst_flush()
        A("ds_read_b64 v[2:3], v9 offset:16")
        A("s_waitcnt lgkmcnt(0)")
        A("v_readfirstlane_b32 s100, v2")
        A("v_readfirstlane_b32 s101, v3")
    def p2_c(self):
        A = self.A
        if V4 and WQP == 3: self.p4_wq()
        if not V4:
            A(f"s_cmp_lg_u32 s{K1.S_WAVE}, {1 if V3 else 7}")
            A("s_cbranch_scc1 .Lp2c_end")
        A("s_mov_b32 s4, s73" if V3 else "s_sub_u32 s4, s2, 64")
        A("s_cmp_ge_u32 s4, 120")
        A("s_cbranch_scc1 .Lp2c_end")
        A("v_mov_b32 v70, s100")
        A("v_mov_b32 v71, s101")
        A("s_waitcnt vmcnt(0)")
        self.p2_pubtask(FQ_, 64)
        A.label(".Lp2c_end")
    def p3_tload(self, n):
        A = self.A
        for i in range(n):
            A(f"buffer_load_dwordx4 v[{128+4*i}:{131+4*i}], v60, s[80:83], s58 offen")
            A("s_add_u32 s58, s58, s5")
        for i in range(n):
            A(f"buffer_load_ushort v{224+i}, v61, s[76:79], s57 offen offset:{i*64}")
    def p3_wq(self, sfx):
        A = self.A; W = K1.S_WAVE
        make_srd(A, K1.S_WQ, 64, 0, 4 * MB)
        A("v_and_b32 v4, 255, v0")
        A("v_lshrrev_b32 v2, 4, v4")
        A("v_and_b32 v3, 15, v4")
        A("v_lshlrev_b32 v3, 6, v3")
        A("v_lshl_add_u32 v2, v2, 13, v3")
        A("s_lshr_b32 s36, s70, 3")
        A("s_lshl_b32 s36, s36, 17")
        A("s_and_b32 s37, s70, 7")
        A("s_lshl_b32 s37, s37, 10")
        A("s_add_u32 s36, s36, s37")
        A(f"s_cmp_lt_u32 s{W}, 4")
        A(f"s_cbranch_scc1 .Lp3_wq{sfx}")
        A(f"buffer_load_dword v63, v2, s[{K1.S_WQ}:{K1.S_WQ+3}], s36 offen")
        A.label(f".Lp3_wq{sfx}")
    def p3_dec(self, crit):
        A = self.A
        A("s_movk_i32 s71, 6144")
        if crit:
            A("s_and_b32 s4, s72, 15")
            A("s_bfe_u32 s5, s72, 0x20004")
            A("s_lshl_b32 s57, s5, 8")
        else:
            make_srd(A, 80, 74, 0, 512 * 6144)
            make_srd(A, 84, 68, WS_MOD, 4 * MODP)
            A("s_and_b32 s5, s73, 1")
            A("s_lshr_b32 s4, s73, 1")
            A("s_lshl_b32 s57, s5, 9")
            A("s_add_u32 s4, s4, 16")
            A("s_cmp_lt_u32 s4, 48")
            A("s_cbranch_scc1 .Lp3a_dec")
            A("s_sub_u32 s4, s4, 48")
            make_srd(A, 80, 96, 0, 512 * 3584)
            make_srd(A, 84, 68, WS_CS, 2 * CSP)
            A("s_movk_i32 s71, 3584")
            A.label(".Lp3a_dec")
        A("s_lshr_b32 s58, s57, 1")
        A("s_mul_i32 s58, s58, s71")
        A("s_lshl_b32 s59, s4, 7")
        A("s_add_u32 s58, s58, s59")
        A("s_lshl_b32 s59, s4, 8")
        A(f"s_movk_i32 s4, {MODP}")
        A("s_cmp_eq_u32 s71, 3584")
        A(f"s_cselect_b32 s4, {CSP}, s4")
        A("s_mul_i32 s4, s4, s5")
        A("s_add_u32 s59, s59, s4")
        A("v_and_b32 v2, 7, v0")
        A("v_bfe_u32 v3, v0, 3, 5")
        A("v_mul_lo_u32 v60, v3, s71")
        A("v_lshl_add_u32 v60, v2, 4, v60")
        A("v_lshlrev_b32 v61, 1, v3")
        A("s_lshl_b32 s5, s71, 5")
    def p3_a(self):
        A = self.A
        W = K1.S_WAVE; M_ = K1.S_M; XR = K1.V_S
        A("s_waitcnt lgkmcnt(0)")
        self.pst(1)
        make_srd(A, 88, 6, 0, 256)
        A(f"s_or_b32 s3, s2, s{W}")
        A("s_cmp_lg_u32 s3, 0")
        A("s_cbranch_scc1 .Lp3a_non")
        A("s_or_b32 s70, s70, 1")
        A("v_mov_b32 v2, s70")
        A("v_mov_b32 v3, s71")
        A("v_mov_b32 v5, 0")
        A("s_mov_b64 exec, 1")
        A("buffer_store_dwordx2 v[2:3], v5, s[88:91], 0 offen sc1")
        A("s_mov_b64 exec, -1")
        A.label(".Lp3a_non")
        make_srd(A, 76, 72, 0, 1024)
        make_srd(A, 80, 74, 0, 512 * 6144)
        make_srd(A, 84, 68, WS_MOD, 4 * MODP)
        make_srd(A, 88, 4, 0, 2 * MB)
        if RM:
            A("s_add_u32 s70, s2, 6")
            A("s_and_b32 s70, s70, 7")
            A("s_lshl_b32 s70, s70, 5")
            A("s_lshr_b32 s71, s2, 3")
            A("s_add_u32 s70, s70, s71")
            A("s_sub_u32 s72, s70, 192")
            if RM == 1:
                A("s_add_u32 s73, s72, 64")
                A("s_cmp_lt_u32 s70, 192")
                A("s_cselect_b32 s73, 255, s73")
                A("s_cmp_lt_u32 s70, 64")
                A("s_cselect_b32 s73, s70, s73")
            else:
                A("s_mov_b32 s73, s70")
        else:
            A("s_mov_b32 s72, s2")
            A("s_sub_u32 s73, s2, 64")
            A("s_sub_u32 s70, 255, s2")
            A("s_xor_b32 s70, s70, 7")
        self.p3_dec(True)
        A(f"v_mov_b32 v58, {K1.STG + 16384}")
        A("v_mov_b32 v3, 0")
        A("ds_write_b32 v58, v3 offset:16")
        A("ds_write_b32 v58, v3 offset:20")
        A("s_cmp_ge_u32 s72, 64")
        A("s_cbranch_scc1 .Lp3a_x")
        A(f"s_cmp_ge_u32 s{W}, 4")
        A("s_cbranch_scc1 .Lp3a_x")
        self.p3_tload(4)
        A.label(".Lp3a_x")
        A("s_waitcnt lgkmcnt(0)")
        A("s_barrier")
        A(f"s_lshl_b32 s3, s{M_}, 16")
        A(f"s_lshl_b32 s4, s{W}, 13")
        A("s_add_u32 s3, s3, s4")
        A("s_add_u32 s4, s3, 4096")
        for i in range(4 if XS else 8):
            A(f"buffer_load_dwordx4 v[{XR+4*i}:{XR+4*i+3}], v12, s[88:91], s{3 + (i >> 2)} offen offset:{(i & 3) * 1024}")
        if not XS: make_srd(A, 88, 6, 0, 256)
        if not XS:
            A("s_cmp_lt_u32 s72, 64")
            A("s_cbranch_scc1 .Lp3a_end")
            self.p3_wq("a")
            A.label(".Lp3a_end")
    def p3_gemv(self, sfx, n, maybe_ones, col):
        A = self.A
        W = K1.S_WAVE; KM = f"s{K1.S_MASK}"; SCR = K1.STG + 16384
        ACC = list(range(64, 72)); T = list(range(72, 80)); U = list(range(80, 96))
        C = list(range(224, 224 + n))
        GO = 8192 if sfx == 'a' else 12288; CT_ = 16 if sfx == 'a' else 20
        if maybe_ones:
            A("s_cmp_lt_u32 s73, 64")
            A(f"s_cbranch_scc1 .Lp3_silu{sfx}")
            for c in C: A(f"v_mov_b32 v{c}, 1.0")
            A(f"s_branch .Lp3_fma{sfx}")
            A.label(f".Lp3_silu{sfx}")
        seq = [lambda i, c: f"v_lshlrev_b32 v{c}, 16, v{c}", lambda i, c: f"v_mul_f32 v{T[i]}, {fhex(-LOG2E)}, v{c}",
               lambda i, c: f"v_exp_f32 v{T[i]}, v{T[i]}", None, lambda i, c: f"v_add_f32 v{T[i]}, 1.0, v{T[i]}",
               lambda i, c: f"v_rcp_f32 v{U[i]}, v{T[i]}", None, lambda i, c: f"v_mul_f32 v{U[8+i]}, v{c}, v{U[i]}",
               lambda i, c: f"v_fma_f32 v{T[i]}, -v{U[8+i]}, v{T[i]}, v{c}", lambda i, c: f"v_fma_f32 v{c}, v{T[i]}, v{U[i]}, v{U[8+i]}",
               lambda i, c: f"v_cvt_pk_bf16_f32 v{T[i]}, v{c}, v{c}", lambda i, c: f"v_lshlrev_b32 v{c}, 16, v{T[i]}"]
        for f in seq:
            if f is None: A("s_nop 0"); continue
            for i, c in enumerate(C): A(f(i, c))
        if maybe_ones: A.label(f".Lp3_fma{sfx}")
        for i in range(n):
            for j in range(4):
                w = 128 + 4 * i + j
                A(f"v_lshlrev_b32 v{T[2*j]}, 16, v{w}")
                A(f"v_and_b32 v{T[2*j+1]}, {KM}, v{w}")
            for j in range(8):
                A(f"v_mul_f32 v{ACC[j]}, v{T[j]}, v{C[i]}" if i == 0 else f"v_fmac_f32 v{ACC[j]}, v{T[j]}, v{C[i]}")
        A("v_and_b32 v2, 7, v1")
        A("v_lshrrev_b32 v3, 4, v0")
        for v in ACC: A(f"v_add_f32_dpp v{v}, v{v}, v{v} row_ror:8 row_mask:0xf bank_mask:0xf")
        A("v_lshlrev_b32 v3, 8, v3")
        A("v_lshl_add_u32 v3, v2, 5, v3")
        A(f"v_add_u32 v3, {SCR + GO}, v3")
        A("v_and_b32 v2, 8, v1")
        A("v_cmp_eq_u32 vcc, 0, v2")
        A("s_and_b64 exec, exec, vcc")
        A(f"ds_write_b128 v3, v[{ACC[0]}:{ACC[3]}]")
        A(f"ds_write_b128 v3, v[{ACC[4]}:{ACC[7]}] offset:16")
        A("s_mov_b64 exec, -1")
        A("s_waitcnt lgkmcnt(0)")
        self.lds_inc(CT_, 58)
        A(f"s_cmp_lg_u32 s{W}, {col}")
        A(f"s_cbranch_scc1 .Lp3_gd{sfx}")
        self.lds_spin(f".Lp3_sp{sfx}", CT_, 4, False, 58)
        A("v_lshlrev_b32 v2, 2, v1")
        A(f"v_add_u32 v3, {SCR + GO}, v2")
        for k in range(16): A(f"ds_read_b32 v{64+k}, v3 offset:{k*256}")
        for k in range(8):
            A(f"s_waitcnt lgkmcnt({14-2*k})")
            A(f"v_add_f32 v{64+2*k}, v{64+2*k}, v{65+2*k}")
        for k in range(4): A(f"v_add_f32 v{64+4*k}, v{64+4*k}, v{66+4*k}")
        A("v_add_f32 v64, v64, v68")
        A("v_add_f32 v72, v72, v76")
        A("v_add_f32 v234, v64, v72")
        A("buffer_store_dword v234, v2, s[84:87], s59 offen sc1")
        A.label(f".Lp3_gd{sfx}")
    def p3_ln(self, b):
        A = self.A; KM = f"s{K1.S_MASK}"; XR = K1.V_S
        R = [(list(range(64 + 8 * r, 72 + 8 * r)), list(range(96 + 8 * r, 104 + 8 * r))) for r in range(4)]
        for r, (X, T) in enumerate(R):
            for j in range(4):
                A(f"v_lshlrev_b32 v{X[2*j]}, 16, v{XR+16*b+4*r+j}")
                A(f"v_and_b32 v{X[2*j+1]}, {KM}, v{XR+16*b+4*r+j}")
        ln_fast(A, R, KM, False)
        for r, (X, T) in enumerate(R): pack8(A, X, XR + 16 * b + 4 * r)
    def p3_nload(self):
        A = self.A
        A("v_mov_b32 v2, 0")
        A("s_mov_b64 exec, 1")
        A("buffer_load_dwordx2 v[232:233], v2, s[88:91], 0 offen sc1")
        A("s_mov_b64 exec, -1")
    def p3_xwait(self, sfx, n):
        A = self.A
        A("s_sub_u32 s4, s2, 64")
        A("s_cmp_lt_u32 s4, 120")
        A(f"s_cbranch_scc1 .Lp3_xw{sfx}")
        A(f"s_waitcnt vmcnt({n})")
        A.label(f".Lp3_xw{sfx}")
        A(f"s_waitcnt vmcnt({n + 8})")
    def p3_b(self, loader, cfix, xn_loads):
        A = self.A
        W = K1.S_WAVE; M_ = K1.S_M; KM = f"s{K1.S_MASK}"; SCR = K1.STG + 16384
        CW = 0; PW = 1
        WQL = int(os.environ.get('WQL', '0'))
        def nonce(sfx):
            A("s_mov_b32 s4, 0")
            A.label(f".Lp3_nl{sfx}")
            A("v_readfirstlane_b32 s100, v232")
            A("v_readfirstlane_b32 s101, v233")
            A("s_add_u32 s4, s4, 1")
            A("s_cmp_lg_u32 s100, 0")
            A(f"s_cbranch_scc1 .Lp3_nd{sfx}")
            A("s_cmp_lt_u32 s4, 0x40000")
            A(f"s_cbranch_scc0 .Lp3_nd{sfx}")
            self.p3_nload()
            A("s_waitcnt vmcnt(0)")
            A(f"s_branch .Lp3_nl{sfx}")
            A.label(f".Lp3_nd{sfx}")
            A("v_mov_b32 v232, s100")
            A("v_mov_b32 v233, s101")
            A(f"v_mov_b32 v2, {SCR}")
            A("ds_write_b64 v2, v[232:233]")
        if XS:
            A("s_add_u32 s4, s3, 4096")
            for i in range(4, 8):
                A(f"buffer_load_dwordx4 v[{K1.V_S+4*i}:{K1.V_S+4*i+3}], v12, s[88:91], s4 offen offset:{(i & 3) * 1024}")
            make_srd(A, 88, 6, 0, 256)
            A("s_mov_b32 s6, 0")
            A("s_mov_b32 s7, 0")
            A(f"s_cmp_gt_u32 s{W}, 1")
            A("s_cbranch_scc1 .Lp3_e1")
            self.p3_nload()
            A("s_mov_b32 s6, 1")
            A.label(".Lp3_e1")
            A("s_cmp_lt_u32 s72, 64")
            A("s_cbranch_scc1 .Lp3a_end")
            self.p3_wq("a")
            A(f"s_lshr_b32 s7, s{W}, 2")
            A("s_or_b32 s6, s6, s7")
            A.label(".Lp3a_end")
        self.pst(2)
        A("s_cmp_ge_u32 s72, 64")
        A("s_cbranch_scc1 .Lp3_nc")
        A(f"s_cmp_ge_u32 s{W}, 4")
        A("s_cbranch_scc1 .Lp3_ln0")
        A("s_waitcnt vmcnt(8)")
        self.pst(3)
        self.p3_gemv("a", 4, False, PW)
        self.pst(4)
        A.label(".Lp3_nc")
        A.label(".Lp3_ln0")
        assert XS
        A("s_cmp_lg_u32 s6, 0")
        A("s_cbranch_scc1 .Lp3_ln0a")
        A("s_waitcnt vmcnt(4)")
        A.label(".Lp3_ln0a")
        A("s_waitcnt vmcnt(5)")
        self.pst(5)
        self.p3_ln(0)
        self.pst(6)
        make_srd(A, 36, 68, FP, 32 * 1024)
        A("s_cmp_lg_u32 s7, 0")
        A("s_cbranch_scc1 .Lp3_ln1a")
        A("s_waitcnt vmcnt(0)")
        A.label(".Lp3_ln1a")
        A("s_waitcnt vmcnt(1)")
        A(f"s_cmp_gt_u32 s{W}, 1")
        A("s_cbranch_scc1 .Lp3_n1")
        nonce("a")
        A.label(".Lp3_n1")
        A("s_cmp_ge_u32 s72, 64")
        A("s_cbranch_scc1 .Lp3_n3")
        A(f"s_cmp_lg_u32 s{W}, {PW}")
        A("s_cbranch_scc1 .Lp3_n2")
        A("v_lshlrev_b32 v3, 10, v1")
        A("s_lshl_b32 s4, s72, 3")
        A("s_mov_b32 exec_hi, 0")
        A("buffer_store_dwordx2 v[232:233], v3, s[36:39], s4 offen sc1")
        A("s_mov_b64 exec, -1")
        self.pst(7)
        A.label(".Lp3_n2")
        if WQL == 0: self.p3_wq("b")
        A.label(".Lp3_n3")
        A("s_cmp_ge_u32 s73, 120")
        A("s_cbranch_scc1 .Lp3_n4")
        A(f"s_cmp_ge_u32 s{W}, 4")
        A("s_cbranch_scc1 .Lp3_n4")
        self.p3_dec(False)
        A("s_cmp_ge_u32 s72, 64")
        A("s_cbranch_scc1 .Lp3_n3b")
        A("s_sleep 6")
        A.label(".Lp3_n3b")
        self.p3_tload(8)
        A.label(".Lp3_n4")
        make_srd(A, 76, 68, FP, 32 * 1024)
        self.p3_ln(1)
        self.pst(8)
        if WQL:
            A("s_cmp_ge_u32 s72, 64")
            A("s_cbranch_scc1 .Lp3_n9")
            A(f"s_cmp_eq_u32 s{W}, {CW}")
            A("s_cbranch_scc1 .Lp3_n9")
            self.p3_wq("b")
            A.label(".Lp3_n9")
        A("s_cmp_ge_u32 s73, 120")
        A("s_cbranch_scc1 .Lp3_n6")
        A(f"s_cmp_ge_u32 s{W}, 4")
        A("s_cbranch_scc1 .Lp3_n6")
        A("s_waitcnt vmcnt(0)")
        self.p3_gemv("b", 8, True, 1)
        A.label(".Lp3_n6")
        A(f"s_cmp_lg_u32 s{W}, {CW}")
        A("s_cbranch_scc1 .Lp3_n5")
        A(f"s_lshl_b32 s5, s{M_}, 10")
        A("v_lshlrev_b32 v3, 3, v1")
        self.poll64(".Lplm", [(3, 76, "s5")], cnt=4, slp=int(os.environ.get("PSLP", "0")))
        make_srd(A, 76, 68, WS_MOD, 4 * MODP)
        for i in range(4):
            for p in range(4):
                A(f"s_movk_i32 s4, {p * MODP}") if p * MODP < 32768 else A(f"s_mov_b32 s4, {p * MODP}")
                A(f"buffer_load_dwordx4 v[{64+16*i+4*p}:{67+16*i+4*p}], v12, s[76:79], s4 offen offset:{i*1024}")
        A.label(".Lp3_n5")
        self.pst(9)
        A(f"s_cmp_lg_u32 s{W}, {CW}")
        A("s_cbranch_scc1 .Lp3_n8")
        A(f"v_add_u32 v3, {SCR + 4096}, v12")
        for i in range(4):
            b = 64 + 16 * i
            A(f"s_waitcnt vmcnt({12 - 4*i})")
            pk(A, "v_pk_add_f32", b, b, b + 4); pk(A, "v_pk_add_f32", b + 2, b + 2, b + 6)
            pk(A, "v_pk_add_f32", b + 8, b + 8, b + 12); pk(A, "v_pk_add_f32", b + 10, b + 10, b + 14)
            pk(A, "v_pk_add_f32", b, b, b + 8); pk(A, "v_pk_add_f32", b + 2, b + 2, b + 10)
            round_multi(A, [b, b + 1, b + 2, b + 3], [b + 4, b + 5], KM)
            if i >= 2:
                for e in range(4): A(f"v_add_f32 v{b+e}, 1.0, v{b+e}")
                round_multi(A, [b, b + 1, b + 2, b + 3], [b + 4, b + 5], KM)
            A(f"ds_write_b128 v3, v[{b}:{b+3}] offset:{i*1024}")
        A("s_waitcnt lgkmcnt(0)")
        A.label(".Lp3_n8")
        A.label(".Lp3_Y")
        loader()
        A("s_barrier")
        self.pst(10)
        self.pst_flush()
        A(f"v_mov_b32 v2, {SCR}")
        A("ds_read_b64 v[2:3], v2")
        A("s_waitcnt lgkmcnt(0)")
        A("v_readfirstlane_b32 s100, v2")
        A("v_readfirstlane_b32 s101, v3")
    def p4_silu(self, C, T, U):
        A = self.A; n = len(C)
        seq = [lambda i, c: f"v_mul_f32 v{T[i]}, {fhex(-LOG2E)}, v{c}",
               lambda i, c: f"v_exp_f32 v{T[i]}, v{T[i]}", None, lambda i, c: f"v_add_f32 v{T[i]}, 1.0, v{T[i]}",
               lambda i, c: f"v_rcp_f32 v{U[i]}, v{T[i]}", None, lambda i, c: f"v_mul_f32 v{U[n+i]}, v{c}, v{U[i]}",
               lambda i, c: f"v_fma_f32 v{T[i]}, -v{U[n+i]}, v{T[i]}, v{c}", lambda i, c: f"v_fma_f32 v{c}, v{T[i]}, v{U[i]}, v{U[n+i]}"]
        for f in seq:
            if f is None: A("s_nop 0"); continue
            for i, c in enumerate(C): A(f(i, c))
    def p4_red8(self, sets, last):
        A = self.A
        DP = "row_mask:0xf bank_mask:"
        for S in sets:
            for k in range(4): A(f"v_permlane32_swap_b32 v{S[k]}, v{S[k+4]}")
        if len(sets) == 1: A("s_nop 0")
        for S in sets:
            for k in range(4): A(f"v_add_f32 v{S[k]}, v{S[k]}, v{S[k+4]}")
        A("s_nop 1" if len(sets) == 1 else "s_nop 0")
        for S in sets:
            for k in range(2): A(f"v_permlane16_swap_b32 v{S[k]}, v{S[k+2]}")
        A("s_nop 1")
        for S in sets:
            for k in range(2): A(f"v_add_f32 v{S[k]}, v{S[k]}, v{S[k+2]}")
        A("s_nop 1")
        for S in sets:
            A(f"v_add_f32_dpp v{S[2]}, v{S[0]}, v{S[0]} row_ror:8 {DP}0x3")
            A(f"v_add_f32_dpp v{S[2]}, v{S[1]}, v{S[1]} row_ror:8 {DP}0xc")
        src = 2
        for i, d in enumerate(last):
            A("s_nop 1" if len(sets) == 1 else "s_nop 0")
            for S in sets: A(f"v_add_f32_dpp v{S[0]}, v{S[src]}, v{S[src]} {d} {DP}0xf")
            src = 0
    def p4_xl(self):
        A = self.A; XR = K1.V_S
        A("s_add_u32 s4, s3, 4096")
        for i in range(8):
            A(f"buffer_load_dwordx4 v[{XR+4*i}:{XR+4*i+3}], v12, s[84:87], s{3 + (i >> 2)} offen offset:{(i & 3) * 1024}")
    def p4_a(self):
        A = self.A
        W = K1.S_WAVE; M_ = K1.S_M; XR = K1.V_S; SCR = K1.STG + K1.SCRO
        NLT = 64 if LT == 3 else 120
        A(f"v_mov_b32 v58, {SCR}")
        for i in range(4): A(f"v_mov_b32 v{4+i}, 0")
        A("ds_write_b128 v58, v[4:7]")
        A("ds_write_b128 v58, v[4:7] offset:16")
        if XH:
            A("s_getreg_b32 s57, hwreg(HW_REG_XCC_ID)")
            A("s_and_b32 s3, s2, 1")
            A("s_lshl_b32 s3, s3, 5")
            A("s_lshr_b32 s56, s2, 3")
            A("s_add_u32 s3, s3, s56")
            A("s_bitcmp1_b32 s2, 1")
            A("s_cselect_b32 s56, 0, 192")
            A("s_cselect_b32 s58, 64, 128")
            A("s_bitcmp1_b32 s57, 2" if XH == 1 else ("s_cmp_eq_u32 s57, s57" if XH == 2 else "s_cmp_lg_u32 s57, s57"))
            A("s_cselect_b32 s56, s58, s56")
            A("s_add_u32 s3, s3, s56")
        elif RM:
            A("s_add_u32 s3, s2, 6")
            A("s_and_b32 s3, s3, 7")
            A("s_lshl_b32 s3, s3, 5")
            A("s_lshr_b32 s57, s2, 3")
            A("s_add_u32 s3, s3, s57")
        else:
            A("s_sub_u32 s3, 255, s2")
        A(f"s_cmp_lt_u32 s{W}, 4")
        A("s_cselect_b32 s36, s3, 128")
        A("v_lshrrev_b32 v3, 3, v0")
        A("s_cmp_lt_u32 s36, 192")
        A("s_cbranch_scc1 .Lp4a_l")
        A("v_and_b32 v2, 1, v1")
        A("v_lshl_or_b32 v2, v3, 1, v2")
        A("v_lshlrev_b32 v61, 3, v2")
        A("v_mul_u32_u24 v60, 24576, v2")
        A("v_bfe_u32 v3, v1, 1, 2")
        A("v_lshl_add_u32 v60, v3, 4, v60")
        A("s_bfe_u32 s59, s3, 0x10005")
        A("s_and_b32 s58, s3, 31")
        A("s_lshl_b32 s58, s58, 6")
        A(f"s_mul_i32 s57, s59, {256 * 6144}")
        A("s_add_u32 s58, s58, s57")
        A("s_lshl_b32 s59, s59, 9")
        A("s_waitcnt lgkmcnt(0)")
        self.pst(1)
        make_srd(A, 76, 72, 0, 1024)
        make_srd(A, 80, 74, 0, 512 * 6144)
        A("buffer_load_dwordx2 v[224:225], v61, s[76:79], s59 offen")
        for i in range(4):
            A(f"buffer_load_dwordx4 v[{128+4*i}:{131+4*i}], v60, s[80:83], s58 offen")
            if i < 3: A("s_add_u32 s58, s58, 6144")
        A("s_branch .Lp4a_x")
        A.label(".Lp4a_l")
        A(f"s_cmp_ge_u32 s36, {NLT}")
        A("s_cbranch_scc1 .Lp4a_w")
        A("s_and_b32 s37, s3, 1")
        A("s_lshr_b32 s56, s3, 1")
        A("s_add_u32 s57, s56, 16")
        A("s_sub_u32 s56, s56, 32")
        A("s_cmp_lt_u32 s3, 64")
        A("s_cselect_b32 s56, s57, s56")
        A(f"s_movk_i32 s57, {CSP}")
        A(f"s_cselect_b32 s59, {MODP}, s57")
        A("s_movk_i32 s57, 3584")
        A("s_cselect_b32 s46, 6144, s57")
        A(f"s_cselect_b32 s47, {WS_MOD}, {WS_CS}")
        A("s_mul_i32 s59, s59, s37")
        A("s_add_u32 s59, s59, s47")
        A("s_lshl_b32 s57, s56, 8")
        A("s_add_u32 s59, s59, s57")
        A("s_lshl_b32 s58, s37, 8")
        A("s_mul_i32 s58, s58, s46")
        A("s_lshl_b32 s56, s56, 7")
        A("s_add_u32 s58, s58, s56")
        A("s_lshl_b32 s57, s37, 9")
        A("s_lshl_b32 s56, s46, 3")
        A("v_and_b32 v2, 7, v1")
        A("v_mul_lo_u32 v60, v3, s56")
        A("v_lshl_add_u32 v60, v2, 4, v60")
        A("v_lshlrev_b32 v61, 4, v3")
        A("s_cmp_lt_u32 s3, 64")
        A("s_waitcnt lgkmcnt(0)")
        make_srd(A, 76, 72, 0, 1024)
        A("s_cselect_b32 s80, s74, s96")
        A("s_cselect_b32 s81, s75, s97")
        A("s_lshl_b32 s82, s46, 9")
        A("s_mov_b32 s83, 0x00020000")
        A("buffer_load_dwordx4 v[224:227], v61, s[76:79], s57 offen")
        for i in range(8):
            A(f"buffer_load_dwordx4 v[{128+4*i}:{131+4*i}], v60, s[80:83], s58 offen")
            if i < 7: A("s_add_u32 s58, s58, s46")
        A.label(".Lp4a_w")
        A("s_waitcnt lgkmcnt(0)")
        self.pst(1)
        A.label(".Lp4a_x")
        make_srd(A, 88, 6, 0, 256)
        A(f"s_xor_b32 s57, s{W}, 4")
        if XH:
            A("s_lshr_b32 s56, s2, 3")
            A("s_or_b32 s57, s56, s57")
        else: A("s_or_b32 s57, s2, s57")
        A("s_cmp_lg_u32 s57, 0")
        A("s_cbranch_scc1 .Lp4a_non")
        A("s_or_b32 s70, s70, 1")
        A("v_mov_b32 v2, s70")
        A("v_mov_b32 v3, s71")
        A("s_mov_b64 exec, 1")
        if XH: A("buffer_atomic_cmpswap_x2 v[2:5], v6, s[88:91], 0 offen sc1")
        else: A("buffer_store_dwordx2 v[2:3], v5, s[88:91], 0 offen sc1")
        A("s_mov_b64 exec, -1")
        A.label(".Lp4a_non")
        if int(os.environ.get("HX", "0")):
            A(f"s_cmp_lg_u32 s{W}, 5")
            A("s_cbranch_scc1 .Lp4a_hx")
            A("s_cmp_ge_u32 s2, 14")
            A("s_cbranch_scc1 .Lp4a_hx")
            A("s_getreg_b32 s57, hwreg(HW_REG_XCC_ID)")
            A("s_and_b32 s57, s57, 15")
            A("s_mul_i32 s57, s57, 100000000")
            A("s_and_b32 s56, s70, 0xffff")
            A("s_add_u32 s57, s57, s56")
            A("v_mov_b32 v2, s57")
            A("s_lshl_b32 s57, s2, 2")
            A("s_mov_b64 exec, 1")
            A("buffer_store_dword v2, v5, s[88:91], s57 offen offset:8")
            A("s_mov_b64 exec, -1")
            A.label(".Lp4a_hx")
        make_srd(A, 84, 4, 0, 2 * MB)
        A("s_mov_b32 s70, s3")
        A("s_sub_u32 s72, s36, 192")
        A(f"s_cmp_lt_u32 s36, {NLT}")
        A("s_cselect_b32 s73, s36, 255")
        if XRT == 2:
            A(f"s_lshl_b32 s71, s{K1.S_G}, 2")
            A(f"s_lshr_b32 s4, s{K1.S_G}, 1")
            A("s_add_u32 s71, s71, s4")
            A(f"s_add_u32 s71, s71, s{W}")
            A("s_and_b32 s71, s71, 7")
            A("s_lshl_b32 s71, s71, 3")
        elif XRT:
            A(f"s_add_u32 s71, s{W}, s{K1.S_G}")
            A("s_and_b32 s71, s71, 7")
            A("s_lshl_b32 s71, s71, 3")
        else: A(f"s_lshl_b32 s71, s{W}, 3")
        A(f"s_lshl_b32 s3, s{M_}, 16")
        A("s_lshl_b32 s4, s71, 10")
        A("s_add_u32 s3, s3, s4")
        A("s_barrier")
        if XL and XLT:
            A(f"s_sub_u32 s37, s70, {64 if XLT == 1 else 0}")
            A(f"s_cmp_lt_u32 s37, {128 if XLT == 1 else 192}")
            A(f"s_cselect_b32 s37, s{W}, 0")
            A(f"s_cmp_ge_u32 s37, {XL}")
            A("s_cbranch_scc1 .Lp4a_nx")
        elif XL:
            A(f"s_cmp_ge_u32 s{W}, {XL}")
            A("s_cbranch_scc1 .Lp4a_nx")
        A("s_cmp_lt_u32 s73, 120")
        A("s_cbranch_scc1 .Lp4a_nx")
        if CX:
            A("s_sub_u32 s4, s70, s36")
            A("s_cmp_ge_i32 s4, 64")
        else:
            A("s_cmp_lt_u32 s72, 64")
        A("s_cbranch_scc1 .Lp4a_nx")
        self.p4_xl()
        if NW:
            A(f"s_cmp_lg_u32 s{W}, 0")
            A("s_cbranch_scc1 .Lp4a_nx")
            A("s_cmp_ge_u32 s70, 192")
            A("s_cbranch_scc1 .Lp4a_nx")
            self.p3_nload()
        A.label(".Lp4a_nx")
    def p4_arrive(self, lab):
        A = self.A
        A("v_mov_b32 v3, 1")
        A("s_waitcnt lgkmcnt(0)")
        A("s_mov_b64 exec, 1")
        A("ds_add_rtn_u32 v3, v58, v3 offset:16")
        A("s_mov_b64 exec, -1")
        A("s_waitcnt lgkmcnt(0)")
        A("v_readfirstlane_b32 s4, v3")
        A("s_cmp_lg_u32 s4, 3")
        A(f"s_cbranch_scc1 {lab}")
    def p4_slow(self, sfx, scol, spart, sA, sB, sT, KM):
        A = self.A
        ACC = list(range(112, 120)); F = list(range(96, 112)); C = list(range(64, 72))
        A(f"s_load_dwordx4 s[{sT}:{sT+3}], s[0:1], 80")
        A("v_and_b32 v2, 7, v1")
        A("v_lshrrev_b32 v3, 3, v1")
        A("v_mul_u32_u24 v60, 49152, v3")
        A("v_lshl_add_u32 v60, v2, 4, v60")
        A("v_lshlrev_b32 v61, 4, v3")
        A("v_lshl_add_u32 v2, v2, 3, v3")
        for a in ACC: A(f"v_mov_b32 v{a}, 0")
        A("s_waitcnt lgkmcnt(0)")
        make_srd(A, sA, sT, 0, 1024)
        make_srd(A, sB, sT + 2, 0, 512 * 6144)
        A(f"s_mul_i32 s{sT}, s{spart}, {256 * 6144}")
        A(f"s_add_u32 s{sT}, s{sT}, s{scol}")
        A(f"s_lshl_b32 s{sT+1}, s{spart}, 9")
        A(f"s_mov_b32 s{sT+2}, 4")
        A.label(f".Lp4s_{sfx}")
        A(f"buffer_load_dwordx4 v[224:227], v61, s[{sA}:{sA+3}], s{sT+1} offen")
        for i in range(8):
            A(f"buffer_load_dwordx4 v[{128+4*i}:{131+4*i}], v60, s[{sB}:{sB+3}], s{sT} offen")
            A(f"s_add_u32 s{sT}, s{sT}, {6144 if i < 7 else 57 * 6144}")
        A(f"s_add_u32 s{sT+1}, s{sT+1}, 128")
        A("s_waitcnt vmcnt(8)")
        for i in range(4):
            A(f"v_lshlrev_b32 v{C[2*i]}, 16, v{224+i}")
            A(f"v_and_b32 v{C[2*i+1]}, {KM}, v{224+i}")
        self.p4_silu(C, list(range(72, 80)), list(range(80, 96)))
        for i in range(4): A(f"v_cvt_pk_bf16_f32 v{72+i}, v{C[2*i]}, v{C[2*i+1]}")
        self.p4_forms([72, 73, 74, 75], F, KM)
        A("s_waitcnt vmcnt(0)")
        for i in range(8):
            for k in range(8):
                A(f"v_dot2_f32_bf16 v{ACC[k]}, v{128+4*i+k//2}, v{F[2*i+(k&1)]}, v{ACC[k]}")
        A(f"s_sub_u32 s{sT+2}, s{sT+2}, 1")
        A(f"s_cmp_lg_u32 s{sT+2}, 0")
        A(f"s_cbranch_scc1 .Lp4s_{sfx}")
        self.p4_red8([ACC], [])
    def p4_forms(self, P, F, KM=None):
        A = self.A; KM = KM or f"s{K1.S_MASK}"
        for i, p in enumerate(P):
            A(f"v_and_b32 v{F[4*i]}, 0xffff, v{p}")
            A(f"v_lshlrev_b32 v{F[4*i+1]}, 16, v{p}")
            A(f"v_lshrrev_b32 v{F[4*i+2]}, 16, v{p}")
            A(f"v_and_b32 v{F[4*i+3]}, {KM}, v{p}")
    def p4_wq(self):
        A = self.A; W = K1.S_WAVE
        A("v_and_b32 v4, 255, v0")
        A("v_lshrrev_b32 v2, 4, v4")
        A("v_and_b32 v3, 15, v4")
        A("v_lshlrev_b32 v3, 6, v3")
        A("v_lshl_add_u32 v2, v2, 13, v3")
        if int(os.environ.get("WQS", "0")):
            A(f"s_cmp_lt_u32 s{W}, 4")
            A("s_cbranch_scc1 .Lp4_wq")
            A(f"s_lshl_b32 s36, s{K1.S_M}, 17")
            A(f"s_lshl_b32 s37, s{K1.S_G}, 10")
            A("s_add_u32 s36, s36, s37")
            A(f"buffer_load_dword v63, v2, s[{K1.S_WQ}:{K1.S_WQ+3}], s36 offen")
            A.label(".Lp4_wq")
            return
        A("s_add_u32 s36, s70, 64")
        A("s_cmp_lt_u32 s70, 128")
        A("s_cselect_b32 s36, 256, s36")
        A("s_cmp_lt_u32 s70, 192")
        A("s_cselect_b32 s37, s70, 256")
        A(f"s_cmp_lt_u32 s{W}, 4")
        A("s_cselect_b32 s36, s36, s37")
        A("s_cmp_ge_u32 s36, 256")
        A("s_cbranch_scc1 .Lp4_wq")
        A("s_and_b32 s37, s36, 7")
        A("s_lshr_b32 s36, s36, 3")
        A("s_lshl_b32 s36, s36, 17")
        A("s_lshl_b32 s37, s37, 10")
        A("s_add_u32 s36, s36, s37")
        A(f"buffer_load_dword v63, v2, s[{K1.S_WQ}:{K1.S_WQ+3}], s36 offen")
        A.label(".Lp4_wq")
    def p4_nonce(self, sfx):
        A = self.A
        A("s_mov_b32 s4, 0")
        A.label(f".Lp4_nl{sfx}")
        A("v_readfirstlane_b32 s100, v232")
        A("v_readfirstlane_b32 s101, v233")
        A("s_add_u32 s4, s4, 1")
        A("s_cmp_lg_u32 s100, 0")
        A(f"s_cbranch_scc1 .Lp4_nd{sfx}")
        A("s_cmp_lt_u32 s4, 0x40000")
        A(f"s_cbranch_scc0 .Lp4_nd{sfx}")
        self.p3_nload()
        A("s_waitcnt vmcnt(0)")
        A(f"s_branch .Lp4_nl{sfx}")
        A.label(f".Lp4_nd{sfx}")
        A("s_or_b32 s100, s100, 1")
        A("v_mov_b32 v232, s100")
        A("v_mov_b32 v233, s101")
        A("ds_write_b64 v58, v[232:233]")
    def p4_nget(self, lab):
        A = self.A
        A.label(lab)
        A("ds_read_b64 v[2:3], v58")
        A("s_waitcnt lgkmcnt(0)")
        A("v_readfirstlane_b32 s100, v2")
        A("v_readfirstlane_b32 s101, v3")
        A("s_cmp_eq_u32 s100, 0")
        A(f"s_cbranch_scc1 {lab}")
    def p4_b(self, loader, cfix, xn_loads):
        A = self.A
        W = K1.S_WAVE; M_ = K1.S_M; KM = f"s{K1.S_MASK}"; SCR = K1.STG + K1.SCRO; XR = K1.V_S
        K10 = K1.V_K10; K01 = K1.V_K01
        ACC = list(range(72, 80))
        A("s_mov_b32 s6, 0")
        if XL:
            assert not CX and XL >= 4
            A(f"s_cmp_lt_u32 s{37 if XLT else W}, {XL}")
            A("s_cbranch_scc1 .Lp4_xl0")
            self.p4_xl()
            A.label(".Lp4_xl0")
        if CX:
            A("s_cmp_lt_u32 s70, 192")
            A("s_cbranch_scc1 .Lp4_cx0")
            A(f"s_cmp_lt_u32 s{W}, 4")
            A("s_cbranch_scc1 .Lp4_cx0")
            self.p4_xl()
            A.label(".Lp4_cx0")
        XN_ = 8 if CX else 0
        self.pst(2)
        A("s_cmp_ge_u32 s72, 64")
        A("s_cbranch_scc1 .Lp4_nc")
        self.p3_nload()
        make_srd(A, 76, 68, WS_LL, NREP * 16384)
        A("v_and_b32 v2, 15, v1")
        A("v_lshrrev_b32 v4, 4, v1")
        A("v_lshlrev_b32 v4, 14, v4")
        A("v_lshl_add_u32 v4, v2, 4, v4")
        A("v_lshlrev_b32 v2, 5, v2")
        A(f"v_add_u32 v5, {SCR + 256}, v2")
        A("s_lshl_b32 s57, s72, 8")
        A("v_lshrrev_b32 v2, 3, v1")
        A("v_bfe_u32 v3, v1, 1, 2")
        A("v_lshl_add_u32 v2, v3, 3, v2")
        A(f"s_lshl_b32 s4, s{W}, 2")
        A(f"s_add_u32 s4, s4, {SCR + 256}")
        A("v_lshlrev_b32 v2, 4, v2")
        A("v_add_u32 v6, s4, v2")
        A(f"s_waitcnt vmcnt({5 + XN_})")
        C = [64, 65, 66, 67]
        for i in range(2):
            A(f"v_lshlrev_b32 v{C[2*i]}, 16, v{224+i}")
            A(f"v_and_b32 v{C[2*i+1]}, {KM}, v{224+i}")
        self.p4_silu(C, [68, 69, 70, 71], list(range(80, 88)))
        A("v_cvt_pk_bf16_f32 v64, v64, v65")
        A("v_cvt_pk_bf16_f32 v65, v66, v67")
        self.p4_forms([64, 65], list(range(80, 88)))
        for r in range(4):
            A(f"s_waitcnt vmcnt({4 - r + XN_})")
            if r == 3: self.pst(3)
            for k in range(8):
                A(f"v_dot2_f32_bf16 v{ACC[k]}, v{128+4*r+k//2}, v{80+2*r+(k&1)}, {'0' if r == 0 else 'v%d' % ACC[k]}")
        A("s_nop 0")
        self.p4_red8([ACC], ["quad_perm:[1,0,3,2]"])
        A(f"ds_write_b32 v6, v{ACC[0]}")
        self.pst(4)
        self.p4_arrive(".Lp4_cw")
        for i in range(2): A(f"ds_read_b128 v[{64+4*i}:{67+4*i}], v5 offset:{16*i}")
        A("s_waitcnt vmcnt(0)")
        self.p4_nonce("a")
        A("s_waitcnt lgkmcnt(0)")
        for b in (64, 68): pk(A, "v_pk_add_f32", b, b, b + 2)
        A("v_add_f32 v64, v64, v65")
        A("v_add_f32 v66, v68, v69")
        A("v_mov_b32 v65, s100")
        A("v_mov_b32 v67, s100")
        for i in range(NREP // 4):
            A("buffer_store_dwordx4 v[64:67], v4, s[76:79], s57 offen sc1")
            if i < NREP // 4 - 1: A("s_add_u32 s57, s57, 65536")
        if CX:
            self.pst(7)
            A("s_branch .Lp4_xd")
            A.label(".Lp4_cw")
            A("s_waitcnt vmcnt(1)")
            A("s_branch .Lp4_xd")
        else:
            self.lds_inc(16, 58)
            self.pst(7)
            A("s_branch .Lp4_cx")
            A.label(".Lp4_cw")
            self.lds_spin(".Lp4_spc", 16, 5, True, 58)
            A("s_branch .Lp4_cx")
        A.label(".Lp4_nc")
        A("s_cmp_ge_u32 s73, 120")
        A("s_cbranch_scc1 .Lp4_nl")
        F = list(range(96, 112)); C = list(range(64, 72))
        make_srd(A, 76, 68, 0, 128 * 1024)
        A("v_and_b32 v2, 7, v1")
        A("v_lshrrev_b32 v3, 3, v1")
        A("v_lshl_add_u32 v2, v2, 3, v3")
        A(f"s_lshl_b32 s4, s{W}, 8")
        A(f"s_add_u32 s4, s4, {SCR + 256}")
        A("v_lshlrev_b32 v2, 2, v2")
        A("v_add_u32 v6, s4, v2")
        A("v_lshlrev_b32 v4, 2, v1")
        A(f"v_add_u32 v5, {SCR + 256}, v4")
        A("s_cmp_lt_u32 s73, 64")
        A("s_cbranch_scc1 .Lp4_silu")
        for i in range(8):
            A(f"v_mov_b32 v{F[2*i]}, v{K10}")
            A(f"v_mov_b32 v{F[2*i+1]}, v{K01}")
        A("s_branch .Lp4_fma")
        A.label(".Lp4_silu")
        A("s_waitcnt vmcnt(8)")
        for i in range(4):
            A(f"v_lshlrev_b32 v{C[2*i]}, 16, v{224+i}")
            A(f"v_and_b32 v{C[2*i+1]}, {KM}, v{224+i}")
        self.p4_silu(C, list(range(72, 80)), list(range(80, 96)))
        for i in range(4): A(f"v_cvt_pk_bf16_f32 v{72+i}, v{C[2*i]}, v{C[2*i+1]}")
        self.p4_forms([72, 73, 74, 75], F)
        A.label(".Lp4_fma")
        for i in range(8):
            A(f"s_waitcnt vmcnt({7 - i})")
            if i == 7: self.pst(3)
            for k in range(8):
                A(f"v_dot2_f32_bf16 v{ACC[k]}, v{128+4*i+k//2}, v{F[2*i+(k&1)]}, {'0' if i == 0 else 'v%d' % ACC[k]}")
        self.p4_xl()
        self.p4_red8([ACC], [])
        A(f"ds_write_b32 v6, v{ACC[2]}")
        self.pst(4)
        A("s_mov_b32 s5, s73")
        A("s_movk_i32 s73, 255")
        self.p4_arrive(".Lp4_nl")
        A("s_mov_b32 s73, s5")
        for k in range(4): A(f"ds_read_b32 v{64+k}, v5 offset:{k*256}")
        A("s_waitcnt lgkmcnt(0)")
        A("v_add_f32 v64, v64, v65")
        A("v_add_f32 v66, v66, v67")
        A("v_add_f32 v64, v64, v66")
        A("buffer_store_dword v64, v4, s[76:79], s59 offen sc1")
        A("s_waitcnt vmcnt(1)")
        A("s_branch .Lp4_xd")
        if not CX:
            A.label(".Lp4_cx")
            self.p4_xl()
        A.label(".Lp4_nl")
        A("s_cmp_ge_u32 s70, 192")
        A("s_cbranch_scc1 .Lp4_e1")
        if NW:
            A(f"s_cmp_lt_u32 s70, {64 if LT == 3 else 120}")
            A("s_cbranch_scc1 .Lp4_e0")
            A(f"s_cmp_lg_u32 s{W}, 0")
            A("s_cbranch_scc1 .Lp4_e1")
            A("s_branch .Lp4_e2")
            A.label(".Lp4_e0")
        A(f"s_cmp_lg_u32 s{W}, 4")
        A("s_cbranch_scc1 .Lp4_e1")
        self.p3_nload()
        A.label(".Lp4_e2")
        if NW == 2:
            A("s_mov_b32 s6, 1")
            A("s_waitcnt vmcnt(1)")
            A("s_branch .Lp4_xd")
        else:
            A("s_waitcnt vmcnt(0)")
            self.p4_nonce("b")
        A.label(".Lp4_e1")
        A("s_waitcnt vmcnt(0)")
        A.label(".Lp4_xd")
        A("s_mov_b32 s7, 0x3f803f80")
        self.pst(5)
        if WQP == 0 and NW != 2: self.p4_wq()
        S = list(range(80, 88)); Q = list(range(88, 96))
        for r in range(8):
            for j in range(4):
                x = XR + 4 * r + j
                A(f"v_dot2_f32_bf16 v{S[r]}, v{x}, s7, {'0' if j == 0 else 'v%d' % S[r]}")
                A(f"v_dot2_f32_bf16 v{Q[r]}, v{x}, v{x}, {'0' if j == 0 else 'v%d' % Q[r]}")
        make_srd(A, 76, 68, WS_LL, NREP * 16384)
        A(f"s_and_b32 s57, s{M_}, {NREP - 1}")
        A("s_lshl_b32 s57, s57, 14")
        A(f"s_lshl_b32 s4, s{W}, 10")
        A("s_add_u32 s57, s57, s4")
        A("s_add_u32 s58, s57, 8192")
        self.p4_red8([S, Q], ["row_half_mirror", "quad_perm:[1,0,3,2]", "quad_perm:[2,3,0,1]"])
        m = S[0]; q = Q[0]
        A(f"v_mul_f32 v{m}, {fhex(1/512)}, v{m}")
        A(f"v_mul_f32 v{q}, {fhex(1/512)}, v{q}")
        A(f"v_fma_f32 v{q}, -v{m}, v{m}, v{q}")
        A(f"v_cvt_pk_bf16_f32 v{m}, 0, -v{m}")
        A(f"v_max_f32 v{q}, 0, v{q}")
        A(f"v_cvt_pk_bf16_f32 v{q}, 0, v{q}")
        A(f"v_add_f32 v{q}, {fhex(1e-5)}, v{q}")
        A(f"v_cvt_pk_bf16_f32 v{q}, 0, v{q}")
        A(f"v_sqrt_f32 v{q}, v{q}")
        for r in range(4): A(f"v_readlane_b32 s{8+r}, v{m}, {8*r}")
        A(f"v_cvt_pk_bf16_f32 v{q}, 0, v{q}")
        A(f"v_rcp_f32 v{q}, v{q}")
        for r in range(4, 8): A(f"v_readlane_b32 s{8+r}, v{m}, {8*r}")
        for r in range(8): A(f"v_readlane_b32 s{48+r}, v{q}, {8*r}")
        self.pst(6)
        if NW == 2:
            A("s_cmp_eq_u32 s6, 0")
            A("s_cbranch_scc1 .Lp4_e3")
            A("s_waitcnt vmcnt(0)")
            self.p4_nonce("b")
            A.label(".Lp4_e3")
            if WQP == 0: self.p4_wq()
        PPOS = int(os.environ.get("PPOS", "8"))
        if XH:
            A("s_sub_u32 s72, s70, 128")
            A(f"s_cmp_eq_u32 s{W}, 0")
            A("s_cselect_b32 s72, s72, 255")
            A("s_lshl_b32 s59, s72, 8")
            A(f"s_and_b32 s4, s{M_}, {NREP - 1}")
            A("s_lshl_b32 s4, s4, 14")
            A("s_add_u32 s59, s59, s4")
            A("v_and_b32 v7, 31, v1")
            A("v_lshlrev_b32 v7, 3, v7")
        with Cap(A) as cpl:
            if XH:
                lb = ".Lp4_g%d_"
                A("s_cmp_ge_u32 s72, 64")
                A(f"s_cbranch_scc1 {lb}")
                A("buffer_load_dwordx2 v[244:245], v7, s[76:79], s59 offen sc1")
                A.label(lb)
            A("buffer_load_dwordx4 v[236:239], v12, s[76:79], s57 offen sc1")
            A("buffer_load_dwordx4 v[240:243], v12, s[76:79], s58 offen sc1")
            if LDP == 1: loader()
        pn = [0]
        def poll1():
            pn[0] += 1
            A.lines.extend([l.replace("%d", str(pn[0])) for l in cpl.out])
        if DPP_:
            A("s_sub_u32 s6, s70, 64")
            A("s_cmp_ge_u32 s6, 128")
            A("s_cbranch_scc1 .Lp4_p0")
            poll1()
            A.label(".Lp4_p0")
        for r in range(8):
            if r == PPOS and not DPP_: poll1()
            T = 96 + 16 * (r & 1); x = XR + 4 * r
            for j in range(8): A(f"v_dot2_f32_bf16 v{T+j}, v{x+j//2}, v{(K10, K01)[j & 1]}, s{8+r}")
            for j in range(8): A(f"v_cvt_pk_bf16_f32 v{T+j}, 0, v{T+j}")
            sp = 48 + (r & ~1)
            for j in range(4): A(f"v_pk_mul_f32 v[{T+2*j}:{T+2*j+1}], v[{T+2*j}:{T+2*j+1}], s[{sp}:{sp+1}] " + ("op_sel:[0,1]" if r & 1 else "op_sel_hi:[1,0]"))
            for j in range(4): A(f"v_cvt_pk_bf16_f32 v{x+j}, v{T+2*j}, v{T+2*j+1}")
        if DPP_:
            A("s_cmp_lt_u32 s6, 128")
            A("s_cbranch_scc1 .Lp4_p1")
            poll1()
            A.label(".Lp4_p1")
        elif PPOS >= 8: poll1()
        self.pst(8)
        ND = 2 * int(os.environ.get('LDE', '2')) if LDP == 1 else 0
        A(f"s_waitcnt vmcnt({ND})")
        self.p4_nget(".Lp4_ng1")
        if XH:
            A("s_cmp_ge_u32 s72, 64")
            A("s_cbranch_scc1 .Lp4_gd")
            A("s_mov_b32 s4, 0")
            A.label(".Lp4_gl")
            A("v_cmp_ne_u32 vcc, s100, v245")
            A("s_add_u32 s4, s4, 1")
            A("s_cbranch_vccz .Lp4_gd")
            A(f"s_cmp_ge_u32 s4, {KFB}")
            A("s_cbranch_scc1 .Lp4_gf")
            A("buffer_load_dwordx2 v[244:245], v7, s[76:79], s59 offen sc1")
            A("s_waitcnt vmcnt(0)")
            A("s_branch .Lp4_gl")
            A.label(".Lp4_gf")
            A("s_lshr_b32 s5, s72, 5")
            A("s_bfe_u32 s6, s72, 0x40001")
            A("s_lshl_b32 s7, s6, 7")
            self.p4_slow("c", 7, 5, 80, 84, 48, KM)
            A("s_lshl_b32 s5, s5, 13")
            A("s_lshl_b32 s6, s6, 9")
            A("s_add_u32 s5, s5, s6")
            A("v_lshlrev_b32 v2, 3, v2")
            A("v_mov_b32 v115, s100")
            for i in range(NREP):
                A("buffer_store_dwordx2 v[114:115], v2, s[76:79], s5 offen sc1")
                if i < NREP - 1: A("s_add_u32 s5, s5, 16384")
            A.label(".Lp4_gd")
        A("s_mov_b32 s4, 0")
        A(f"s_cmp_ge_u32 s{W}, 4")
        A("s_cselect_b32 s71, 1.0, 0")
        A("s_cselect_b32 s7, 0, 16")
        A(f"s_lshl_b32 s6, s{W}, 9")
        A(f"s_add_u32 s6, s6, {SCR + 4096}")
        A("v_lshlrev_b32 v6, 3, v1")
        A("v_add_u32 v6, s6, v6")
        A.label(".Lp4_chk")
        A("v_xor_b32 v2, s100, v237")
        A("v_xor_b32 v3, s100, v239")
        A("v_xor_b32 v4, s100, v241")
        A("v_xor_b32 v5, s100, v243")
        A("v_or_b32 v2, v2, v3")
        A("v_or_b32 v4, v4, v5")
        A("v_cmp_ne_u32 s[12:13], 0, v2")
        A("v_cmp_ne_u32 vcc, 0, v4")
        A("s_add_u32 s4, s4, 1")
        A("s_or_b64 s[14:15], s[12:13], vcc")
        A("s_cbranch_scc0 .Lp4_ok")
        A("s_cmp_lt_u32 s4, 0x40000")
        A("s_cbranch_scc0 .Lp4_ok")
        if int(os.environ.get("PSL", "0")): A(f"s_sleep {int(os.environ.get('PSL', '0'))}")
        MRL = int(os.environ.get("MRL", "1"))
        if MRL: A("s_mov_b64 exec, s[12:13]")
        A("buffer_load_dwordx4 v[236:239], v12, s[76:79], s57 offen sc1")
        if MRL: A("s_mov_b64 exec, vcc")
        A("buffer_load_dwordx4 v[240:243], v12, s[76:79], s58 offen sc1")
        if MRL: A("s_mov_b64 exec, -1")
        A("s_waitcnt vmcnt(0)")
        A("s_branch .Lp4_chk")
        A.label(".Lp4_ok")
        self.pst(9)
        A("v_add_f32 v236, v236, v240")
        A("v_add_f32 v238, v238, v242")
        A("v_cvt_pk_bf16_f32 v236, 0, v236")
        A("v_cvt_pk_bf16_f32 v238, 0, v238")
        A("v_add_f32 v236, s71, v236")
        A("v_add_f32 v238, s71, v238")
        A("v_cvt_pk_bf16_f32 v2, v236, v238")
        A("v_and_b32 v236, 0xffff, v2")
        A(f"v_and_b32 v237, {KM}, v2")
        A("v_lshlrev_b32 v236, s7, v236")
        A("ds_write_b64 v6, v[236:237]")
        if LDP == 2: loader()
        if K1.R7: cfix()
        if WQP == 2: self.p4_wq()
        if int(os.environ.get("YSL", "0")): A(f"s_sleep {int(os.environ.get('YSL', '0'))}")
        A("s_waitcnt lgkmcnt(0)")
        A("s_barrier")
        self.pst(10)
        self.pst_flush()
    def w_setup(self, widx, K, rowbytes, woff_code):
        A = self.A
        make_srd(A, S_W, P_W + 2 * widx, 0, K * rowbytes)
        A(f"v_lshrrev_b32 v2, 3, v{L}")
        A(f"v_and_b32 v3, 7, v{L}")
        A(f"v_lshlrev_b32 v{V_W}, 1, v2")
        A(f"v_and_b32 v{V_W}, 4, v{V_W}")
        A(f"v_xor_b32 v3, v3, v{V_W}")
        A("v_lshlrev_b32 v3, 4, v3")
        A(f"v_mul_u32_u24 v2, {rowbytes}, v2") if rowbytes < 64 else None
        A(f"s_movk_i32 s{S_WOFF}, {rowbytes}")
        A(f"v_mul_lo_u32 v2, v2, s{S_WOFF}")
        A(f"v_add_u32 v{V_W}, v2, v3")
        woff_code()
        if PRI: A(f"s_sub_u32 s{S_WOFF}, s{S_WOFF}, {8 * rowbytes}")
        self.wrb = rowbytes
    def dmaW(self, st, ldsoff, tag="w"):
        A = self.A
        for i in range(2):
            A(f"s_add_u32 m0, s{S_RB}, {ldsoff + i * 1024}")
            A(f"s_add_u32 s{S_WOFF}, s{S_WOFF}, {8 * self.wrb}" if PRI else "s_nop 0")
            A(f"buffer_load_dwordx4 v{V_W}, s[{S_W}:{S_W+3}], s{S_WOFF} offen lds")
            self.vm.issue((tag, st))
            if not PRI: A(f"s_add_u32 s{S_WOFF}, s{S_WOFF}, {8 * self.wrb}")
    def pf_g64(self, widx, K, WB, DW, lo=0, hi=99, rot=0):
        A = self.A
        def woff():
            A(f"s_mul_i32 s{S_WOFF}, s{S_WAVE}, {(K // 4) * 1024}")
            A(f"s_lshl_b32 s{S_TMP+11}, s{S_J}, 7")
            A(f"s_add_u32 s{S_WOFF}, s{S_WOFF}, s{S_TMP+11}")
        if lo == 0: self.w_setup(widx, K, 1024, woff)
        self.wrb = 1024
        for st in range(lo, min(DW, hi)): self.dmaW(st, WB + ((st + rot) % DW) * 2048, "wn" if PFE == 3 else "w")
    def pf_fg(self, lo=0, hi=11 + FGE, alt=False, tag="wn"):
        A = self.A
        def woff():
            A(f"s_mul_i32 s{S_WOFF}, s{S_WAVE}, {448 * 1024}")
            A(f"s_lshl_b32 s{S_TMP+11}, s{S_J}, 7")
            A(f"s_add_u32 s{S_WOFF}, s{S_WOFF}, s{S_TMP+11}")
        if lo == 0: self.w_setup(3, 1792, 1024, woff)
        self.wrb = 1024
        for st in range(lo, hi): self.dmaW(st, fg_slot(st), tag)
    def d6_woffs(self, ks_, swv, dst):
        A = self.A
        A(f"s_cmp_eq_u32 s{S_J}, 7")
        A(f"s_cselect_b32 s64, 0, s{S_J}")
        A(f"s_lshl_b32 s57, s{swv}, 16")
        A(f"s_lshl_b32 s{S_TMP+11}, s{S_J}, 7")
        A(f"s_add_u32 s57, s57, s{S_TMP+11}")
        for i, k in enumerate(ks_):
            d = dst + i
            A(f"s_add_u32 s{d}, s64, {k}")
            A(f"s_sub_u32 s{S_TMP+11}, s{d}, 7")
            A(f"s_cselect_b32 s{d}, s{d}, s{S_TMP+11}")
            A(f"s_lshl_b32 s{d}, s{d}, 18")
            A(f"s_add_u32 s{d}, s{d}, s57")
    def d6_dma(self, sw, q, lds, tag="wn"):
        A = self.A
        for i in range(2):
            if isinstance(lds, int): A(f"s_add_u32 m0, s{S_RB}, {lds + i * 1024}")
            else: A(f"s_add_u32 m0, s{lds[0]}, {lds[1] + i * 1024}")
            A(f"s_add_u32 s{S_WOFF}, s{sw}, {q * 16384 + i * 8192}")
            A(f"buffer_load_dwordx4 v{V_W}, s[{S_W}:{S_W+3}], s{S_WOFF} offen lds")
            self.vm.issue((tag, q))
    def pf_d6(self, lo=0, hi=11, alt=False):
        if lo == 0: self.w_setup(3, 1792, 1024, lambda: self.d6_woffs(range(5), S_WAVE, 12))
        sl = [9 + (21 + i) % 11 for i in range(lo, hi)] + (list(range(9)) if alt else [])
        for s_ in sl:
            k = D6POS.index(s_ >> 2)
            self.d6_dma(12 + k, s_ & 3, s_ * 2048)
    def pf_k5(self, lo=0, hi=99):
        A = self.A
        def woff():
            A(f"s_min_u32 s{S_WOFF}, s{S_J}, 6")
            A(f"s_lshl_b32 s{S_WOFF}, s{S_WOFF}, 9")
            A(f"s_lshl_b32 s{S_TMP+11}, s{S_WAVE}, 7")
            A(f"s_add_u32 s{S_WOFF}, s{S_WOFF}, s{S_TMP+11}")
        if lo == 0: self.w_setup(2, 512, 3584, woff)
        self.wrb = 3584
        for st in range(lo, min(K5D, hi)): self.dmaW(st, K5RB + st * 2048, "wn" if PFE == 3 else "w")
    def l2pf(self, widx, size):
        A = self.A
        per = size // 32
        A("s_lshr_b32 s78, s2, 3")
        A(f"s_mul_i32 s78, s78, {per}")
        make_srd(A, 80, P_W + 2 * widx, "s78", per)
        A("v_and_b32 v2, 255, v0")
        A("v_lshlrev_b32 v2, 7, v2")
        n = (per + 32767) // 32768
        for i in range(n):
            A(f"s_mov_b32 s78, {i * 32768}")
            A("buffer_load_dword v3, v2, s[80:83], s78 offen")
        return n
    def persist(self):
        A = self.A
        A(f"s_load_dwordx2 s[{P_X}:{P_X+1}], s[0:1], 0")
        A(f"s_load_dwordx2 s[{P_OUT}:{P_OUT+1}], s[0:1], 96")
        A(f"s_load_dwordx2 s[{P_WS}:{P_WS+1}], s[0:1], 112")
        A(f"s_load_dwordx8 s[{P_W}:{P_W+7}], s[0:1], 48")
        A("v_and_b32 v1, 63, v0")
        A("v_lshrrev_b32 v2, 6, v0")
        A("s_nop 0")
        A(f"v_readfirstlane_b32 s{S_WAVE}, v2")
        A(f"s_and_b32 s{S_M}, s2, 31")
        A(f"s_lshr_b32 s{S_J}, s2, 5")
        A(f"s_mov_b32 s{S_MASK}, 0xffff0000")
        A(f"s_mul_i32 s{S_RB}, s{S_WAVE}, {RG}")
        A("s_waitcnt lgkmcnt(0)")
    def kr(self):
        A = self.A; vm = self.vm
        S_X = 8; S_MOD = 12; S_PT = 16; S_X2 = 20; S_H = 24; S_HN = 28; S_H1 = 36
        PR = 64; XR = 16; GA = 24; CB = 32; SB = 40
        A("v_lshlrev_b32 v9, 4, v1")
        A("v_lshlrev_b32 v10, 5, v1")
        A(f"s_lshl_b32 s3, s{S_M}, 3")
        A(f"s_add_u32 s3, s3, s{S_J}")
        A("s_lshl_b32 s3, s3, 3")
        A(f"s_add_u32 s3, s3, s{S_WAVE}")
        A("s_lshl_b32 s3, s3, 10")
        make_srd(A, S_X, P_X, 0, 2 * MB)
        make_srd(A, S_MOD, P_WS, WS_MOD, 4 * MODP)
        if HA:
            assert KRF and W0M and not PRG
            A("v_lshlrev_b32 v11, 3, v1")
            for h in range(2):
                A(f"buffer_load_dwordx2 v[{XR+2*h}:{XR+2*h+1}], v11, s[{S_X}:{S_X+3}], s3 offen offset:{512*h}"); vm.issue("x")
        else:
            A(f"buffer_load_dwordx4 v[{XR}:{XR+3}], v9, s[{S_X}:{S_X+3}], s3 offen"); vm.issue("x")
        def rowst(r, srd):
            if HA:
                for h in range(2): A(f"buffer_store_dwordx2 v[{r+2*h}:{r+2*h+1}], v11, s[{srd}:{srd+3}], s3 offen offset:{512*h} sc1")
            else: A(f"buffer_store_dwordx4 v[{r}:{r+3}], v9, s[{srd}:{srd+3}], s3 offen sc1")
        def modloads():
            for part in range(2 if V2 else 1):
                for (dst, idx) in ((CB, 4), (GA, 2), (SB, 3)):
                    d = dst + 88 * part
                    A(f"s_movk_i32 s{S_TMP}, {idx*2048 + part*MODP}")
                    A(f"buffer_load_dwordx4 v[{d}:{d+3}], v10, s[{S_MOD}:{S_MOD+3}], s{S_TMP} offen"); vm.issue("x")
                    A(f"buffer_load_dwordx4 v[{d+4}:{d+7}], v10, s[{S_MOD}:{S_MOD+3}], s{S_TMP} offen offset:16"); vm.issue("x")
        if HA:
            A("v_add_u32 v2, 81920, v9")
            for q, off in enumerate((0, 16384, 49152)):
                A(f"ds_read_b128 v[{24+8*q}:{27+8*q}], v2 offset:{off}")
                A(f"ds_read_b128 v[{28+8*q}:{31+8*q}], v2 offset:{off+1024}")
            A(f"s_and_b32 s48, s{S_WAVE}, 2")
            A("s_lshl_b32 s48, s48, 13")
            A(f"s_lshr_b32 s49, s{S_WAVE}, 2")
            A("s_lshl_b32 s49, s49, 11")
            A("s_add_u32 s48, s48, s49")
            A(f"s_and_b32 s49, s{S_WAVE}, 1")
            A("s_lshl_b32 s49, s49, 10")
            A("s_add_u32 s48, s48, s49")
            A("v_add_u32 v63, s48, v2")
            A("v_mov_b32 v56, 0x3f80")
            A("v_mov_b32 v57, 1.0")
            A(f"s_sub_u32 s48, s{S_WAVE}, 2")
            A("s_cmp_ge_u32 s48, 2")
            A("s_cbranch_scc1 .Lha_k1")
            A("s_cmp_lg_u32 s65, 0")
            A("s_cbranch_scc1 .Lha_k1")
            make_srd(A, 72, P_WS, WS_PART, 8 * 2048 * 512 * 2)
            make_srd(A, 76, P_WS, WS_FLAG + 5 * 8192, 8192)
            self.poll64(".Lpla", [(60, 76, "s96")])
            self.ha_loads()
            A.label(".Lha_k1")
            A("s_waitcnt lgkmcnt(0)")
        elif W0M:
            A("v_add_u32 v2, 81920, v10")
            for q, off in enumerate((0, 16384, 49152)):
                A(f"ds_read_b128 v[{24+8*q}:{27+8*q}], v2 offset:{off}")
                A(f"ds_read_b128 v[{28+8*q}:{31+8*q}], v2 offset:{off+16}")
            A("s_waitcnt lgkmcnt(0)")
        else: modloads()
        make_srd(A, S_PT, P_WS, WS_PART, 8 * 2048 * 512 * 2)
        make_srd(A, S_X2, P_WS, WS_X2, 2 * MB)
        make_srd(A, S_H, P_WS, WS_H, 2 * MB)
        make_srd(A, S_HN, P_WS, WS_HN, 2 * MB)
        make_srd(A, S_H1, P_WS, WS_H1, 2052 * 1024)
        if HP:
            A(f"v_lshlrev_b32 v2, 2, v1")
            A(f"v_add_u32 v2, {CNT}, v2")
            A("v_mov_b32 v3, 0")
            A("ds_write_b32 v2, v3")
            A("s_waitcnt lgkmcnt(0)")
        A(f"s_cmp_ge_u32 s{S_WAVE}, 4")
        A("s_cbranch_scc1 .Lkr_nz2")
        A(f"s_lshr_b32 s{S_TMP}, s{S_WAVE}, 1")
        A(f"s_mul_i32 s{S_TMP}, s{S_TMP}, 31")
        A(f"s_cmp_lg_u32 s2, s{S_TMP}")
        A("s_cbranch_scc1 .Lkr_nz")
        A(f"s_lshl_b32 s{S_TMP}, s{S_WAVE}, 10")
        A(f"s_add_u32 s{S_TMP+1}, s{S_TMP}, {2048*1024}")
        A(f"s_cmp_lt_u32 s{S_WAVE}, 2")
        A(f"s_cselect_b32 s{S_TMP}, s{S_TMP}, s{S_TMP+1}")
        for j in range(4): A(f"v_mov_b32 v{12+j}, 0")
        A(f"buffer_store_dwordx4 v[12:15], v9, s[{S_H1}:{S_H1+3}], s{S_TMP} offen sc1")
        A.label(".Lkr_nz")
        PFW1 = int(os.environ.get("PFW1", "1"))
        if PRG:
            PFP = int(os.environ.get("PFP", "1"))
            if PFP == 0: self.pf_g64(0, 512, 24576, 8)
            PFW1 = 0
            A.label(".Lkr_nz2")
            A(f"s_mul_i32 s{S_TMP}, s{S_M}, {7 * 65536}")
            A(f"s_add_u32 s{S_TMP}, s{S_TMP}, s3")
            A(f"v_mov_b32 v4, {MSK}")
            A(f"s_mov_b32 s{S_TMP+1}, 0")
            A(f"s_cmp_lg_u32 s{S_WAVE}, 7")
            A("s_cbranch_scc1 .Lkr_lp")
            A("v_and_b32 v3, 7, v1")
            A("v_lshlrev_b32 v3, 3, v3")
            A("v_add_u32 v3, s96, v3")
            A("s_mov_b32 s99, 0")
            A.label(".Lkr_pp")
            A("buffer_load_dwordx2 v[248:249], v3, s[92:95], 0 offen sc1")
            A("s_add_u32 s99, s99, 1")
            A("s_waitcnt vmcnt(0)")
            A("v_xor_b32 v248, s100, v248")
            A("v_xor_b32 v249, s101, v249")
            A("v_or_b32 v248, v248, v249")
            A("v_cmp_eq_u32 vcc, 0, v248")
            A(f"s_and_b32 s{S_TMP+2}, vcc_lo, 0xff")
            A("s_cmp_lt_u32 s99, 0x40000")
            A(f"s_cselect_b32 s{S_TMP+2}, s{S_TMP+2}, 0xff")
            A(f"v_mov_b32 v5, s{S_TMP+2}")
            A("s_mov_b64 exec, 1")
            A("ds_or_b32 v4, v5")
            A("s_mov_b64 exec, -1")
            A(f"s_cmp_lg_u32 s{S_TMP+2}, 0xff")
            A("s_cbranch_scc1 .Lkr_pp")
            self.stamp(4)
            A.label(".Lkr_lp")
            A("ds_read_b32 v5, v4")
            A("s_waitcnt lgkmcnt(0)")
            A(f"v_readfirstlane_b32 s{S_TMP+2}, v5")
            A(f"s_andn2_b32 s{S_TMP+3}, s{S_TMP+2}, s{S_TMP+1}")
            A("s_cbranch_scc1 .Lkr_new")
            A("s_sleep 1")
            A("s_branch .Lkr_lp")
            A.label(".Lkr_new")
            for g in range(8):
                A(f"s_bitcmp1_b32 s{S_TMP+3}, {g}")
                A(f"s_cbranch_scc0 .Lkr_n{g}")
                A(f"s_add_u32 s{S_TMP+4}, s{S_TMP}, {g * 65536}")
                A(f"buffer_load_dwordx4 v[{PR+4*g}:{PR+4*g+3}], v9, s[{S_PT}:{S_PT+3}], s{S_TMP+4} offen")
                A.label(f".Lkr_n{g}")
            A(f"s_mov_b32 s{S_TMP+1}, s{S_TMP+2}")
            A(f"s_cmp_lg_u32 s{S_TMP+1}, 0xff")
            A("s_cbranch_scc1 .Lkr_lp")
            if PFP == 1:
                A(f"s_cmp_ge_u32 s{S_WAVE}, 4")
                A("s_cbranch_scc1 .Lkr_w0")
                self.pf_g64(0, 512, 24576, 8)
                A("s_waitcnt vmcnt(16)")
                A("s_branch .Lkr_w1")
                A.label(".Lkr_w0")
            A("s_waitcnt vmcnt(0)")
            if PFP == 1: A.label(".Lkr_w1")
            if PFP == 2: PFW1 = 2
            vm.ops = []
        else:
            sv = list(vm.ops)
            if PFW1 == 1: self.pf_g64(0, 512, 24576, 8)
            vm.ops = sv
            if HA:
                assert PFW1 == 1
                A(f"s_cmp_lt_u32 s{S_WAVE}, 2")
                A("s_cbranch_scc1 .Lkr_nz2")
                A("s_waitcnt vmcnt(16)")
                for g in range(8):
                    for p in range(2):
                        for j in range(8):
                            A(f"v_dot2_f32_bf16 v{96+8*p+j}, v{128+8*g+4*p+j//2}, v{56 + (j & 1)}, " + ("0" if g == 0 else f"v{96+8*p+j}"))
                A("s_nop 1")
                for p in range(2):
                    A(f"ds_write_b128 v62, v[{96+8*p}:{99+8*p}] offset:{p*16384}")
                    A(f"ds_write_b128 v62, v[{100+8*p}:{103+8*p}] offset:{p*16384+16}")
                A("s_waitcnt lgkmcnt(0)")
            A.label(".Lkr_nz2")
            def rebuild():
                make_srd(A, S_PT, P_WS, WS_PART, 8 * 2048 * 512 * 2)
                make_srd(A, S_X2, P_WS, WS_X2, 2 * MB)
                make_srd(A, S_X, P_X, 0, 2 * MB)
                make_srd(A, S_MOD, P_WS, WS_MOD, 4 * MODP)
            self.poll(0, after=rebuild)
            A("s_barrier")
            self.stamp(4)
            PL = int(os.environ.get("PL", "1"))
            if PL:
                A(f"s_mul_i32 s{S_TMP}, s{S_M}, {7 * 65536}")
                A(f"s_add_u32 s{S_TMP}, s{S_TMP}, s3")
            else: A(f"s_mov_b32 s{S_TMP}, s3")
            for g in range(8):
                if HA: A(f"buffer_load_dwordx2 v[{PR+4*g+2}:{PR+4*g+3}], v11, s[{S_PT}:{S_PT+3}], s{S_TMP} offen offset:512")
                else: A(f"buffer_load_dwordx4 v[{PR+4*g}:{PR+4*g+3}], v9, s[{S_PT}:{S_PT+3}], s{S_TMP} offen {os.environ.get('PLF', '')}")
                vm.issue(("p", g))
                if g < 7: A(f"s_add_u32 s{S_TMP}, s{S_TMP}, {65536 if PL else 2048*512*2}")
        X = list(range(48, 56)); T = list(range(PR, PR + 12)); XU = list(range(96, 104))
        if HA: A("ds_read_b128 v[48:51], v63 offset:4096")
        if PFW1 == 3:
            def woff():
                A(f"s_and_b32 s{S_TMP+9}, s{S_WAVE}, 3")
                A(f"s_lshr_b32 s{S_TMP+8}, s{S_WAVE}, 2")
                A(f"s_lshl_b32 s{S_WOFF}, s{S_TMP+9}, 17")
                A(f"s_lshl_b32 s{S_TMP+11}, s{S_TMP+8}, 16")
                A(f"s_add_u32 s{S_WOFF}, s{S_WOFF}, s{S_TMP+11}")
                A(f"s_lshl_b32 s{S_TMP+11}, s{S_J}, 7")
                A(f"s_add_u32 s{S_WOFF}, s{S_WOFF}, s{S_TMP+11}")
                A(f"s_mov_b32 s{S_TMP+7}, s{S_RB}")
                A(f"s_mul_i32 s{S_RB}, s{S_TMP+9}, {RG}")
                A(f"s_lshl_b32 s{S_TMP+8}, s{S_TMP+8}, 13")
                A(f"s_add_u32 s{S_RB}, s{S_RB}, s{S_TMP+8}")
            self.w_setup(0, 512, 1024, woff)
            for st in range(4): self.dmaW(st, 24576 + st * 2048, "wn")
            A(f"s_mov_b32 s{S_RB}, s{S_TMP+7}")
        if int(os.environ.get("KRX", "0")):
            vm.wait(("p", 0)); self.stamp(25)
            vm.wait(("p", 7)); self.stamp(26)
        vm.wait("x")
        if V2 and not W0M:
            for j in range(0, 24, 2): pk(A, "v_pk_add_f32", GA + j, GA + j, GA + 88 + j)
            for q in range(3): round_multi(A, list(range(GA + 8*q, GA + 8*q + 8)), [56, 57, 58, 59], SM)
        if not W0M:
            for j in range(8): A(f"v_add_f32 v{CB+j}, 1.0, v{CB+j}")
            round_multi(A, list(range(CB, CB + 8)), [56, 57, 58, 59], SM)
        for j in range(4):
            A(f"v_lshlrev_b32 v{XU[2*j]}, 16, v{XR+j}")
            A(f"v_and_b32 v{XU[2*j+1]}, {SM}, v{XR+j}")
        if KRF:
            A("v_mov_b32 v56, 0x3f80")
            A("v_mov_b32 v57, 1.0")
            A("s_mov_b32 s50, 0x3f803f80")
        for g in range(8):
            vm.wait(("p", g))
            if KRF:
                for j in range(4 if HA else 0, 8): A(f"v_dot2_f32_bf16 v{X[j]}, v{PR+4*g+j//2}, v{56 + (j & 1)}, " + ("0" if g == 0 else f"v{X[j]}"))
            elif g == 0:
                for j in range(4):
                    A(f"v_lshlrev_b32 v{X[2*j]}, 16, v{PR+j}")
                    A(f"v_and_b32 v{X[2*j+1]}, {SM}, v{PR+j}")
            else:
                U = 136 + 8 * (g & 1)
                for j in range(4):
                    p = PR + 4 * g + j
                    A(f"v_lshlrev_b32 v{U+2*j}, 16, v{p}")
                    A(f"v_and_b32 v{U+2*j+1}, {SM}, v{p}")
                for j in range(0, 8, 2): pk(A, "v_pk_add_f32", X[j], X[j], U + j)
        if HA: A("s_waitcnt lgkmcnt(0)")
        self.stamp(23)
        if PFW1 == 2:
            A(f"s_cmp_ge_u32 s{S_WAVE}, 4")
            A("s_cbranch_scc1 .Lkr_nz3")
            self.pf_g64(0, 512, 24576, 8)
            A.label(".Lkr_nz3")
        round_multi(A, X, T[5:9], SM)
        for j in range(0, 8, 2): pk(A, "v_pk_mul_f32", X[j], X[j], GA + j)
        round_multi(A, X, T[5:9], SM)
        for j in range(0, 8, 2): pk(A, "v_pk_add_f32", X[j], X[j], XU[j])
        pack8(A, X, XR)
        rowst(XR, S_X2)
        if KRF:
            ln_pk(A, XR, X, 58, 59, 56, 57, 50, 52, 54, SM)
            round_multi(A, X, T[5:9], SM)
        else:
            for j in range(4):
                A(f"v_lshlrev_b32 v{X[2*j]}, 16, v{XR+j}")
                A(f"v_and_b32 v{X[2*j+1]}, {SM}, v{XR+j}")
            ln_rows(A, [(X, T)], SM)
        for j in range(0, 8, 2): pk(A, "v_pk_mul_f32", X[j], X[j], CB + j)
        round_multi(A, X, T[5:9], SM)
        for j in range(0, 8, 2): pk(A, "v_pk_add_f32", X[j], X[j], SB + j)
        pack8(A, X, 80)
        rowst(80, S_H)
        self.stamp(24)
        if KRF: ln_pk(A, 80, X, 58, 59, 56, 57, 50, 52, 54, SM)
        else:
            for j in range(4):
                A(f"v_lshlrev_b32 v{X[2*j]}, 16, v{80+j}")
                A(f"v_and_b32 v{X[2*j+1]}, {SM}, v{80+j}")
            ln_rows(A, [(X, T)], SM, False)
        pack8(A, X, 84)
        rowst(84, S_HN)
    def g64(self, lab, stage, K, a_off, a_size, a_rb, epi, WB, DW, nbr, next_pf, own_pf=None, rot=0, nsched=None, l2=None, split=False):
        A = self.A; vm = self.vm; lg = self.lg
        S_G = 8; S_X1 = 16; S_X2 = 20; S_MOD = 24; S_O = 28; S_ST = 36
        KW = K // 4; NCH = KW // 64; NS = NCH * 4; DG = 3
        VG = [4, 5]; AA = 16; BA = 18
        X1 = 24; X2 = 32; GB = 40
        V_PW = 48; V_PR = 49; V_GA = 51; V_SA = 52; VC = (12, 14, 54)
        ACC = 64; FR = 128
        NBG = int(os.environ.get('NBG', '3'))
        half = HP and K == 512
        frag = FG and epi == "final"
        GB2 = [28, 36] if frag else [180, 184]
        SW = S_R8 if half else S_WAVE
        CO = 16 * stage
        def tail_setup():
            if half:
                A(f"s_add_u32 s{S_R8}, s{S_WAVE}, 4")
                A(f"s_and_b32 s{S_R8}, s{S_R8}, 7")
                A(f"v_mov_b32 v{V_CT}, {CNT}")
            A(f"v_lshrrev_b32 v10, 3, v{L}")
            A(f"v_and_b32 v11, 7, v{L}")
            A(f"v_mul_u32_u24 v{V_PR}, {RS}, v10")
            A(f"v_lshl_add_u32 v{V_PR}, v11, 5, v{V_PR}")
            A(f"s_mul_i32 s{S_TMP+3}, s{SW}, {8*RS}")
            A(f"v_add_u32 v{V_PR}, s{S_TMP+3}, v{V_PR}")
            A(f"v_add_u32 v{V_PR+1}, {2*RG}, v{V_PR}")
            A(f"v_lshlrev_b32 v{V_GA}, 4, v11")
            A(f"v_lshl_add_u32 v{V_GA}, v10, 10, v{V_GA}")
            A(f"s_lshl_b32 s{S_TMP+2}, s{S_M}, 16")
            A(f"s_lshl_b32 s{S_TMP+3}, s{SW}, 13")
            A(f"s_add_u32 s{S_TMP+2}, s{S_TMP+2}, s{S_TMP+3}")
            A(f"s_lshl_b32 s{S_TMP+3}, s{S_J}, 7")
            A(f"s_add_u32 s{S_TMP+2}, s{S_TMP+2}, s{S_TMP+3}")
            if epi == "final":
                A(f"v_lshlrev_b32 v{V_SA}, 5, v11")
                make_srd(A, S_X1, P_WS, WS_X1, 2 * MB)
                make_srd(A, S_X2, P_WS, WS_X2, 2 * MB)
                make_srd(A, S_MOD, P_WS, WS_MOD, 4 * MODP)
                make_srd(A, S_O, P_OUT, 0, 2 * MB)
                A(f"buffer_load_dwordx4 v[{X1}:{X1+3}], v{V_GA}, s[{S_X1}:{S_X1+3}], s{S_TMP+2} offen"); vm.issue("e")
                A(f"buffer_load_dwordx4 v[{X2}:{X2+3}], v{V_GA}, s[{S_X2}:{S_X2+3}], s{S_TMP+2} offen"); vm.issue("e")
                A(f"s_lshl_b32 s{S_TMP+3}, s{S_J}, 8")
                A(f"s_add_u32 s{S_TMP+3}, s{S_TMP+3}, {5*2048}")
                for h4 in range(2):
                    A(f"buffer_load_dwordx4 v[{GB+4*h4}:{GB+4*h4+3}], v{V_SA}, s[{S_MOD}:{S_MOD+3}], s{S_TMP+3} offen offset:{h4*16}"); vm.issue("e")
                if V2:
                    A(f"s_add_u32 s{S_TMP+3}, s{S_TMP+3}, {MODP}")
                    for h4 in range(2):
                        A(f"buffer_load_dwordx4 v[{GB2[h4]}:{GB2[h4]+3}], v{V_SA}, s[{S_MOD}:{S_MOD+3}], s{S_TMP+3} offen offset:{h4*16}"); vm.issue("e")
            elif epi == "res":
                A(f"v_lshlrev_b32 v{V_SA}, 3, v10")
                A(f"s_lshl_b32 s{S_TMP+6}, s{S_M}, 9")
                A(f"s_lshl_b32 s{S_TMP+3}, s{SW}, 6")
                A(f"s_add_u32 s{S_TMP+6}, s{S_TMP+6}, s{S_TMP+3}")
                A(f"s_lshl_b32 s{S_TMP+3}, s{S_J}, 14")
                A(f"s_add_u32 s{S_TMP+6}, s{S_TMP+6}, s{S_TMP+3}")
                make_srd(A, S_X1, P_WS, WS_H, 2 * MB)
                make_srd(A, S_O, P_WS, WS_X1, 2 * MB)
                make_srd(A, S_ST, P_WS, WS_STAT, 2048 * 128)
                A(f"buffer_load_dwordx4 v[{X1}:{X1+3}], v{V_GA}, s[{S_X1}:{S_X1+3}], s{S_TMP+2} offen"); vm.issue("e")
            else:
                A(f"v_mov_b32 v{VC[0]}, {fhex(GK1)}")
                A(f"v_mov_b32 v{VC[1]}, {fhex(GK0)}")
                A(f"v_mov_b32 v{VC[2]}, 1.0")
                make_srd(A, S_O, P_WS, WS_H1 + 2048, 2 * MB)
        A(f"s_cmp_ge_u32 s{S_WAVE}, 4")
        A(f"s_cbranch_scc1 .L{lab}_help")
        dyn = frag and K6D
        if dyn:
            self.k6d(tail_setup, a_off, a_size, S_G, AA, V_PW, ACC, lab)
            svl = A.lines; A.lines = []; svv = list(vm.ops); svg = list(lg.ops)
        if own_pf and PFE == 2: own_pf(NE, 99)
        A(f"v_lshrrev_b32 v7, 3, v{L}")
        A(f"v_and_b32 v8, 7, v{L}")
        A("v_lshrrev_b32 v9, 1, v7")
        A("v_xor_b32 v9, v8, v9")
        A(f"s_movk_i32 s{S_TMP}, {a_rb}")
        A(f"v_mul_lo_u32 v10, v7, s{S_TMP}")
        A(f"v_lshl_add_u32 v{VG[0]}, v9, 4, v10")
        A("v_xor_b32 v9, 4, v9")
        A(f"v_lshl_add_u32 v{VG[1]}, v9, 4, v10")
        A(f"s_mul_i32 s{S_GOFF}, s{S_M}, {64*a_rb}")
        A(f"s_mul_i32 s{S_TMP}, s{S_WAVE}, {KW*128 if frag else KW*2}")
        if frag: A(f"v_lshlrev_b32 v{VG[0]}, 4, v{L}")
        A(f"s_add_u32 s{S_GOFF}, s{S_GOFF}, s{S_TMP}")
        if epi == "res":
            A(f"s_lshl_b32 s{S_TMP}, s{S_WAVE}, 2")
            A(f"s_lshr_b32 s{S_TMP+1}, 0x4031, s{S_TMP}")
            A(f"s_and_b32 s{S_TMP+1}, s{S_TMP+1}, 15")
            A(f"s_lshl_b32 s{S_TMP+1}, s{S_TMP+1}, 10")
            A(f"s_add_u32 s{S_GOFF}, s{S_GOFF}, s{S_TMP+1}")
        make_srd(A, S_G, P_WS, a_off, a_size)
        A(f"v_lshrrev_b32 v7, 5, v{L}")
        A(f"v_bfe_u32 v8, v{L}, 4, 1")
        A(f"v_bfe_u32 v9, v{L}, 2, 2")
        A(f"v_and_b32 v10, 1, v{L}")
        A(f"v_bfe_u32 v11, v{L}, 1, 1")
        A("v_lshl_or_b32 v10, v10, 1, v11")
        A("v_lshlrev_b32 v10, 3, v10")
        A("v_lshl_add_u32 v10, v8, 5, v10")
        A("v_lshl_add_u32 v11, v7, 3, v9")
        A("v_lshrrev_b32 v12, 1, v9")
        for nb in range(2):
            A(f"v_xor_b32 v13, {nb}, v12")
            A("v_lshl_add_u32 v13, v13, 6, v10")
            A("v_lshl_add_u32 v13, v11, 7, v13")
            A(f"v_add_u32 v{AA+nb}, s{S_RB}, v13")
        A(f"v_and_b32 v8, 31, v{L}")
        A("v_bfe_u32 v9, v8, 1, 3")
        for ks in range(4):
            A(f"v_or_b32 v10, {2*ks}, v7")
            A("v_xor_b32 v10, v10, v9")
            A("v_lshlrev_b32 v10, 4, v10")
            A("v_lshl_add_u32 v10, v8, 7, v10")
            A(f"v_add_u32 v{BA+ks}, s{S_RB}, v10")
        A(f"v_mul_u32_u24 v{V_PW}, {RS}, v8")
        A(f"v_lshl_add_u32 v{V_PW}, v7, 5, v{V_PW}")
        A(f"v_add_u32 v{V_PW}, s{S_RB}, v{V_PW}")
        tail_setup()
        if frag:
            if FGR: NBG = FGR + 1
            def readsw(step):
                buf = FR + (step % NBG) * 8
                for nb in range(2):
                    for q in range(2):
                        A(f"ds_read_b64_tr_b16 v[{buf+nb*4+q*2}:{buf+nb*4+q*2+1}], v{AA+nb} offset:{fg_slot(step) + q * 512}")
                        lg.issue(("f", step))
            if FGR:
                for s0 in range(3): readsw(s0)
            self.pf_fg(11 + FGE, FGP, tag="w")
            for s0 in range(FGR):
                lg.wait(("f", s0))
                if s0 + 3 < FGR: readsw(s0 + 3)
                if s0 + FGP < NS: self.dmaW(s0 + FGP, fg_slot(s0))
        A("s_barrier")
        self.stamp(1 + 4 * stage + 3)
        def dmaG(ch):
            base = (ch % DG) * 8192
            for i in range(8):
                A(f"s_add_u32 m0, s{S_RB}, {base + i * 1024}")
                A(f"s_add_u32 s{S_TMP}, s{S_GOFF}, {i * 8 * a_rb + ch * 128}")
                A(f"buffer_load_dwordx4 v{VG[i & 1]}, s[{S_G}:{S_G+3}], s{S_TMP} offen lds")
                vm.issue(("g", ch))
        if half:
            HB = 32 * RS
            def dmaGh(h, ch):
                for i in range(4):
                    A(f"s_add_u32 m0, s{S_RB}, {h * HB + ch * 4096 + i * 1024}")
                    A(f"s_add_u32 s{S_TMP}, s{S_GOFF}, {(4 * h + i) * 8 * a_rb + ch * 128}")
                    A(f"buffer_load_dwordx4 v{VG[i & 1]}, s[{S_G}:{S_G+3}], s{S_TMP} offen lds")
                    vm.issue(("g", h, ch))
            WF = 128; BFR = 192
            def readsh(h, step):
                ch, ks = step // 4, step % 4
                if h == 0:
                    for nb in range(2):
                        for q in range(2):
                            d = WF + step * 8 + nb * 4 + q * 2
                            A(f"ds_read_b64_tr_b16 v[{d}:{d+1}], v{AA+nb} offset:{WB + step * 2048 + q * 512}")
                            lg.issue(("f", step))
                d = BFR + step * 4
                A(f"ds_read_b128 v[{d}:{d+3}], v{BA+ks} offset:{h * HB + ch * 4096}")
                lg.issue(("f", step))
            dmaGh(0, 0); dmaGh(0, 1)
            if not split: dmaGh(1, 0); dmaGh(1, 1)
            for h in range(2):
                if h == 1 and split:
                    self.lds_spin(f".L{lab}_rb", 12, 1, False, V_CT)
                    dmaGh(1, 0); dmaGh(1, 1)
                PD = 2 if h == 0 else 4
                for s0 in range(PD):
                    vm.wait(("g", h, 0)); readsh(h, s0)
                for st in range(8):
                    lg.wait(("f", st))
                    with Cap(A) as cp:
                        if st + PD < 8:
                            vm.wait(("g", h, (st + PD) // 4)); readsh(h, st + PD)
                        if h == HPH and nsched and st in nsched: next_pf(*nsched[st])
                    mf = []
                    for nb in range(2):
                        acc = ACC + (nb * 2 + h) * 16
                        c = "0" if st == 0 else f"v[{acc}:{acc+15}]"
                        mf.append(f"v_mfma_f32_32x32x16_bf16 v[{acc}:{acc+15}], v[{WF+st*8+nb*4}:{WF+st*8+nb*4+3}], v[{BFR+st*4}:{BFR+st*4+3}], {c}")
                    interleave(A, mf, cp.out)
                A("s_nop 7")
                A("s_nop 3")
                for nb in range(2):
                    tl = nb * 2 + h
                    for r4 in range(4):
                        A(f"ds_write_b128 v{V_PW}, v[{ACC+tl*16+r4*4}:{ACC+tl*16+r4*4+3}] offset:{h*HB + (nb*8 + (r4 >> 1)*4 + (r4 & 1))*16}")
                A("s_waitcnt lgkmcnt(0)")
                self.lds_inc(CO + 4 * h, V_CT)
                if h == 0 and HPH == 2 and nsched:
                    for st in range(8): next_pf(*nsched[st])
            vm.wait("e")
            self.lds_spin(f".L{lab}_sb", CO + 4, 4, False, V_CT)
            A(f"s_branch .L{lab}_join")
        elif frag:
            AR = 256 - 8 * FGD
            def aload(st):
                d = AR + (st % FGD) * 8
                for rb in range(2):
                    A(f"buffer_load_dwordx4 v[{d+4*rb}:{d+4*rb+3}], v{VG[0]}, s[{S_G}:{S_G+3}], s{S_GOFF} offen offset:{(st & 1) * 2048 + rb * 1024}")
                    vm.issue(("g", st))
                if st & 1: A(f"s_add_u32 s{S_GOFF}, s{S_GOFF}, 4096")
            reads = readsw
            assert FR + NBG * 8 <= AR
            for st in range(FGD): aload(st)
            if not FGR:
                for s0 in range(NBG - 1): reads(s0)
            for st in range(NS):
                lg.wait(("f", st))
                if FGR: lg.wait(("f", st + NBG - 4))
                vm.wait(("g", st))
                with Cap(A) as cp:
                    if st >= 1 and st - 1 + FGD < NS: aload(st - 1 + FGD)
                    if FGR:
                        s_ = st + NBG - 4
                        if s_ >= FGR and s_ + FGP < NS: self.dmaW(s_ + FGP, fg_slot(s_))
                    elif st + FGP < NS: self.dmaW(st + FGP, fg_slot(st))
                    if st + NBG - 1 < NS:
                        vm.wait(("w", st + NBG - 1)); reads(st + NBG - 1)
                buf = FR + (st % NBG) * 8; ab = AR + (st % FGD) * 8
                mf = []
                for nb in range(2):
                    for rb in range(2):
                        acc = ACC + (nb * 2 + rb) * 16
                        c = "0" if st == 0 else f"v[{acc}:{acc+15}]"
                        mf.append(f"v_mfma_f32_32x32x16_bf16 v[{acc}:{acc+15}], v[{buf+nb*4}:{buf+nb*4+3}], v[{ab+rb*4}:{ab+rb*4+3}], {c}")
                interleave(A, mf, cp.out)
            vm.wait("e")
            self.stamp(27)
            A("s_nop 7")
            A("s_nop 1")
            for tl in range(4):
                nb, rb = tl >> 1, tl & 1
                for r4 in range(4):
                    A(f"ds_write_b128 v{V_PW}, v[{ACC+tl*16+r4*4}:{ACC+tl*16+r4*4+3}] offset:{rb*32*RS + (nb*8 + (r4 >> 1)*4 + (r4 & 1))*16}")
                if tl == 1: A("s_waitcnt lgkmcnt(0)")
            A("s_waitcnt lgkmcnt(0)")
            A(f"s_branch .L{lab}_join")
        else:
            for ch in range(min(DG, NCH)): dmaG(ch)
            def reads(step):
                ch, ks = step // 4, step % 4
                buf = FR + (step % NBG) * 16
                for nb in range(2):
                    for q in range(2):
                        A(f"ds_read_b64_tr_b16 v[{buf+nb*4+q*2}:{buf+nb*4+q*2+1}], v{AA+nb} offset:{WB + ((step + rot) % DW) * 2048 + q * 512}")
                        lg.issue(("f", step))
                for rb in range(2):
                    A(f"ds_read_b128 v[{buf+8+rb*4}:{buf+8+rb*4+3}], v{BA+ks} offset:{(ch % DG) * 8192 + rb * 4096}")
                    lg.issue(("f", step))
            def need(step):
                vm.wait(("w", step)); vm.wait(("g", step // 4))
            for s0 in range(NBG - 1):
                need(s0); reads(s0)
            for st in range(NS):
                lg.wait(("f", st))
                with Cap(A) as cp:
                    if st + DW < NS: self.dmaW(st + DW, WB + ((st + rot) % DW) * 2048)
                    if st % 4 == 3 and st // 4 + DG < NCH: dmaG(st // 4 + DG)
                    if st + NBG - 1 < NS:
                        need(st + NBG - 1); reads(st + NBG - 1)
                    if st + DW >= NS and PFE == 3 and nsched and st in nsched: next_pf(*nsched[st])
                buf = FR + (st % NBG) * 16
                mf = []
                for nb in range(2):
                    for rb in range(2):
                        acc = ACC + (nb * 2 + rb) * 16
                        c = "0" if st == 0 else f"v[{acc}:{acc+15}]"
                        mf.append(f"v_mfma_f32_32x32x16_bf16 v[{acc}:{acc+15}], v[{buf+nb*4}:{buf+nb*4+3}], v[{buf+8+rb*4}:{buf+8+rb*4+3}], {c}")
                interleave(A, mf, cp.out)
            vm.wait("e")
            if not int(os.environ.get("KRX", "0")): self.stamp({1: 25, 2: 26, 4: 27}[stage])
            A("s_nop 7")
            A("s_nop 1")
            for tl in range(4):
                nb, rb = tl >> 1, tl & 1
                for r4 in range(4):
                    A(f"ds_write_b128 v{V_PW}, v[{ACC+tl*16+r4*4}:{ACC+tl*16+r4*4+3}] offset:{rb*32*RS + (nb*8 + (r4 >> 1)*4 + (r4 & 1))*16}")
                if tl == 1: A("s_waitcnt lgkmcnt(0)")
            if next_pf and PFE == 1: next_pf()
            A("s_waitcnt lgkmcnt(0)")
            A(f"s_branch .L{lab}_join")
        if dyn: A.lines = svl; vm.ops = svv; lg.ops = svg
        A.label(f".L{lab}_help")
        if dyn:
            A("s_waitcnt vmcnt(0)")
            A("s_barrier")
        sv = list(vm.ops)
        tail_setup()
        vm.ops = sv
        if frag and FGL:
            nl = (28 - FGL) * 2
            A(f"s_mul_i32 s{S_GOFF}, s{S_M}, {64*a_rb}")
            A(f"s_sub_u32 s{S_TMP}, s{S_WAVE}, 4")
            A(f"s_mul_i32 s{S_TMP}, s{S_TMP}, {KW*128}")
            A(f"s_add_u32 s{S_GOFF}, s{S_GOFF}, s{S_TMP}")
            A(f"s_lshl_b32 s{S_TMP}, s{S_J}, 7")
            A(f"s_add_u32 s{S_GOFF}, s{S_GOFF}, s{S_TMP}")
            A(f"s_add_u32 s{S_GOFF}, s{S_GOFF}, {FGL * 2048}")
            A(f"v_min_u32 v4, {nl - 1}, v{L}")
            A("v_lshlrev_b32 v4, 10, v4")
        if not dyn:
            self.poll(stage, nbr)
            if frag and FGL: make_srd(A, S_G, P_WS, a_off, a_size)
            A("s_barrier")
            self.stamp(1 + 4 * stage + 3)
        n = sum(self.l2pf(*x) for x in l2) if l2 else 0
        if frag and FGL:
            A(f"buffer_load_dword v5, v4, s[{S_G}:{S_G+3}], s{S_GOFF} offen")
            n += 1
        A(f"s_waitcnt vmcnt({n})")
        if half: self.lds_spin(f".L{lab}_sa", CO, 4, True, V_CT)
        A.label(f".L{lab}_join")
        if not half: A("s_barrier")
        for p in range(4):
            for h in range(2):
                d = ACC + p * 16 + h * 4
                A(f"ds_read_b128 v[{d}:{d+3}], v{V_PR + (p >> 1)} offset:{(p & 1)*RG + h*16}")
        xs = list(range(ACC, ACC + 8)); tp = list(range(72, 80)); t8 = list(range(88, 96))
        b = ACC
        def unpack(src, dst):
            for k in range(4):
                A(f"v_lshlrev_b32 v{dst[2*k]}, 16, v{src+k}")
                A(f"v_and_b32 v{dst[2*k+1]}, {SM}, v{src+k}")
        if epi != "gelu": unpack(X1, tp)
        if epi == "final":
            unpack(X2, list(range(104, 112)))
            if V2:
                for k in range(0, 8, 2): pk(A, "v_pk_add_f32", GB + k, GB + k, GB2[k >> 2] + (k & 3))
                round_multi(A, list(range(GB, GB + 8)), t8, SM)
        A("s_waitcnt lgkmcnt(4)")
        for e in range(0, 8, 2): pk(A, "v_pk_add_f32", b + e, b + e, b + 16 + e)
        A("s_waitcnt lgkmcnt(0)")
        for e in range(0, 8, 2): pk(A, "v_pk_add_f32", b + 32 + e, b + 32 + e, b + 48 + e)
        for e in range(0, 8, 2): pk(A, "v_pk_add_f32", b + e, b + e, b + 32 + e)
        round_multi(A, xs, t8, SM)
        def store():
            for k in range(4): A(f"v_cvt_pk_bf16_f32 v{56+k}, v{xs[2*k]}, v{xs[2*k+1]}")
            A(f"buffer_store_dwordx4 v[56:59], v{V_GA}, s[{S_O}:{S_O+3}], s{S_TMP+2} offen sc1")
        if epi == "gelu":
            X = xs; T = tp
            for e in range(0, 8, 2): pk(A, "v_pk_mul_f32", T[e], X[e], X[e])
            for e in range(0, 8, 2): pk(A, "v_pk_fma_f32", T[e], T[e], VC[0], VC[1], "op_sel_hi:[1,0,0]")
            for e in range(0, 8, 2): pk(A, "v_pk_mul_f32", T[e], T[e], X[e])
            for e in range(8): A(f"v_exp_f32 v{T[e]}, v{T[e]}")
            for e in range(0, 8, 2): pk(A, "v_pk_add_f32", T[e], T[e], VC[2], None, "op_sel_hi:[1,0]")
            for e in range(8): A(f"v_rcp_f32 v{T[e]}, v{T[e]}")
            A("s_nop 0")
            for e in range(0, 8, 2): pk(A, "v_pk_mul_f32", X[e], X[e], T[e])
            store()
        elif epi == "res":
            for k in range(0, 8, 2): pk(A, "v_pk_add_f32", xs[k], xs[k], tp[k])
            store()
            unpack(56, xs)
            X = xs
            pk(A, "v_pk_mul_f32", tp[0], X[0], X[0])
            pk(A, "v_pk_add_f32", tp[2], X[0], X[2])
            for e in range(2, 8, 2):
                pk(A, "v_pk_fma_f32", tp[0], X[e], X[e], tp[0])
                if e >= 4: pk(A, "v_pk_add_f32", tp[2], tp[2], X[e])
            A(f"v_add_f32 v20, v{tp[2]}, v{tp[3]}")
            A(f"v_add_f32 v21, v{tp[0]}, v{tp[1]}")
            A("s_nop 1")
            for dpp in ("quad_perm:[1,0,3,2]", "quad_perm:[2,3,0,1]", "row_half_mirror"):
                for v in (20, 21):
                    A(f"v_add_f32_dpp v{v}, v{v}, v{v} {dpp} row_mask:0xf bank_mask:0xf")
                A("s_nop 1")
            A("v_and_b32 v10, 7, v1")
            A("v_cmp_eq_u32 vcc, 0, v10")
            A("s_and_saveexec_b64 s[78:79], vcc")
            A(f"buffer_store_dwordx2 v[20:21], v{V_SA}, s[{S_ST}:{S_ST+3}], s{S_TMP+6} offen sc1")
            A("s_mov_b64 exec, s[78:79]")
        else:
            for k in range(0, 8, 2): pk(A, "v_pk_add_f32", xs[k], xs[k], tp[k])
            round_multi(A, xs, t8, SM)
            for k in range(0, 8, 2): pk(A, "v_pk_mul_f32", xs[k], xs[k], GB + k)
            round_multi(A, xs, t8, SM)
            for k in range(0, 8, 2): pk(A, "v_pk_add_f32", xs[k], xs[k], 104 + k)
            store()
    def k6d(self, tail_setup, a_off, a_size, S_G, AA, V_PW, ACC, lab):
        A = self.A; vm = self.vm
        SJ7 = 64; RDY = 65; DONE = 66; ELIG = 67; TBL = 36; ISS = 37; VALID = 38; PEND = 39; SP = [46, 47, 56]
        AS = [160, 192, 224]; WB = 128; VA = [(18, 19), (20, 21)]; VL = 4; VF = 5
        def areg(n, q, rb): return AS[n % 3] + ((q >> 1) * 4 + rb * 2 + (q & 1)) * 4
        def wreads(va, q, base=0):
            for nb in range(2):
                for h in range(2):
                    d = WB + 8 * q + nb * 4 + h * 2
                    A(f"ds_read_b64_tr_b16 v[{d}:{d+1}], v{va[nb]} offset:{base + q * 2048 + h * 512}")
        def mf(n, q, first=False):
            for nb in range(2):
                for rb in range(2):
                    acc = ACC + (nb * 2 + rb) * 16; a = areg(n, q, rb); w = WB + 8 * q + nb * 4
                    c = "0" if first else f"v[{acc}:{acc+15}]"
                    A(f"v_mfma_f32_32x32x16_bf16 v[{acc}:{acc+15}], v[{w}:{w+3}], v[{a}:{a+3}], {c}")
        def setva(va, sp):
            for nb in range(2): A(f"v_add_u32 v{va[nb]}, s{sp}, v{AA+nb}")
        def rot():
            A("s_lshl_b32 s53, s52, 7")
            A("s_or_b32 s53, s53, s52")
            A(f"s_lshr_b32 s53, s53, s{SJ7}")
            A("s_and_b32 s53, s53, 0x7f")
            A(f"s_or_b32 s{RDY}, s{RDY}, s53")
        def consume():
            A("s_mov_b32 s52, 0")
            for jj in range(6, -1, -1):
                A(f"s_cmp_eq_u64 s[{12+2*jj}:{13+2*jj}], s[100:101]")
                A("s_addc_u32 s52, s52, s52")
            rot()
        def avail(n):
            A(f"s_and_b32 s52, s{RDY}, {hex((0x1f, 0x0f, 0x3f, 0x3f, 0x3f, 0x7f, 0x7f)[n])}")
            A(f"s_andn2_b32 s52, s52, s{DONE}")
        def issue(n, blocking, fast=False):
            l = A.newlabel("d6")
            if not fast:
                A(f"s_cmp_lg_u32 s{ISS}, {n}")
                A(f"s_cbranch_scc1 {l}e")
            avail(n)
            if fast: pass
            elif not blocking: A(f"s_cbranch_scc0 {l}e")
            else:
                A(f"s_cbranch_scc1 {l}g")
                A("s_mov_b32 s99, 0")
                A.label(f"{l}p")
                A("s_buffer_load_dwordx16 s[12:27], s[92:95], s96 glc")
                A("s_add_u32 s99, s99, 1")
                A("s_waitcnt lgkmcnt(0)")
                consume(); avail(n)
                A(f"s_cbranch_scc1 {l}g")
                A("s_and_b32 s98, s99, 3")
                A(f"s_cbranch_scc1 {l}p")
                A(f"buffer_load_dwordx2 v[2:3], v{VF}, s[92:95], s96 offen sc1")
                A("s_waitcnt vmcnt(0)")
                A("v_xor_b32 v2, s100, v2")
                A("v_xor_b32 v3, s101, v3")
                A("v_or_b32 v2, v2, v3")
                A("v_cmp_eq_u32 vcc, 0, v2")
                A("s_nop 0")
                A("s_and_b32 s52, vcc_lo, 0x7f")
                A("s_cmp_lt_u32 s99, 0x80000")
                A("s_cselect_b32 s52, s52, 0x7f")
                rot(); avail(n)
                A(f"s_cbranch_scc0 {l}p")
                A.label(f"{l}g")
                A(f"s_mov_b32 s{VALID}, 0")
            A("s_ff1_i32_b32 s52, s52")
            A(f"s_bitset1_b32 s{DONE}, s52")
            A(f"s_add_u32 s53, s52, s{SJ7}")
            A("s_sub_u32 s54, s53, 7")
            A("s_cselect_b32 s53, s53, s54")
            A("s_lshl_b32 s53, s53, 15")
            A(f"s_add_u32 s53, s53, s{S_GOFF}")
            A("s_add_u32 s54, s53, 4096")
            for q in range(4):
                for rb in range(2):
                    a = areg(n, q, rb)
                    A(f"buffer_load_dwordx4 v[{a}:{a+3}], v{VL}, s[{S_G}:{S_G+3}], s{53 + (q >> 1)} offen offset:{(q & 1) * 2048 + rb * 1024}")
            A("s_lshl_b32 s52, s52, 2")
            A(f"s_lshr_b32 s52, s{TBL}, s52")
            A("s_and_b32 s52, s52, 15")
            A(f"s_lshl_b32 s{SP[n % 3]}, s52, 13")
            A(f"s_mov_b32 s{ISS}, {n + 1}")
            A.label(f"{l}e")
        def regroup(k, sp):
            self.d6_woffs([k], S_WAVE, 55)
            A(f"s_add_u32 s54, s{sp}, s{S_RB}")
            for q in range(4): self.d6_dma(55, q, (54, q * 2048))
            A(f"s_lshl_b32 s52, s{sp}, {4 * k - 13}")
            A(f"s_or_b32 s{TBL}, s{TBL}, s52")
        A(f"v_lshrrev_b32 v7, 5, v{L}")
        A(f"v_bfe_u32 v8, v{L}, 4, 1")
        A(f"v_bfe_u32 v9, v{L}, 2, 2")
        A(f"v_and_b32 v10, 1, v{L}")
        A(f"v_bfe_u32 v11, v{L}, 1, 1")
        A("v_lshl_or_b32 v10, v10, 1, v11")
        A("v_lshlrev_b32 v10, 3, v10")
        A("v_lshl_add_u32 v10, v8, 5, v10")
        A("v_lshl_add_u32 v11, v7, 3, v9")
        A("v_lshrrev_b32 v12, 1, v9")
        A("v_lshl_add_u32 v13, v12, 6, v10")
        A("v_lshl_add_u32 v13, v11, 7, v13")
        A(f"v_add_u32 v{AA}, s{S_RB}, v13")
        A(f"v_xor_b32 v{AA+1}, 64, v{AA}")
        def rest():
            A(f"v_and_b32 v8, 31, v{L}")
            A(f"v_mul_u32_u24 v{V_PW}, {RS}, v8")
            A(f"v_lshl_add_u32 v{V_PW}, v7, 5, v{V_PW}")
            A(f"v_add_u32 v{V_PW}, s{S_RB}, v{V_PW}")
            A(f"v_lshlrev_b32 v{VL}, 4, v{L}")
            A(f"v_and_b32 v{VF}, 7, v{L}")
            A(f"v_lshlrev_b32 v{VF}, 3, v{VF}")
            make_srd(A, S_G, P_WS, a_off, a_size)
            make_srd(A, 92, P_WS, FL6, 128 * 128)
            A(f"s_lshl_b32 s96, s{S_M}, 2")
            A(f"s_add_u32 s96, s96, s{S_WAVE}")
            A("s_lshl_b32 s96, s96, 7")
            A(f"s_mul_i32 s{S_GOFF}, s{S_M}, {64 * 3584}")
            A(f"s_lshl_b32 s52, s{S_WAVE}, 13")
            A(f"s_add_u32 s{S_GOFF}, s{S_GOFF}, s52")
            A(f"s_mov_b32 s{TBL}, {hex(sum(p << (4 * k) for k, p in enumerate(D6POS)))}")
            A(f"s_mov_b32 s{PEND}, 0")
            A(f"s_mov_b32 s{VALID}, 0")
            for x in SP: A(f"s_mov_b32 s{x}, {D6POS[0] * 8192}")
        A(f"s_cmp_eq_u32 s{S_J}, 7")
        A("s_cbranch_scc1 .Ld6_j7")
        A("s_waitcnt vmcnt(8)" if (not MT or SPAN) else "s_waitcnt vmcnt(0)")
        for q in range(3): wreads((AA, AA + 1), q, D6POS[0] * 8192)
        rest()
        A(f"s_mov_b32 s{RDY}, 1")
        A(f"s_mov_b32 s{DONE}, 1")
        A(f"s_mov_b32 s{ISS}, 1")
        A(f"s_lshl_b32 s97, s{S_J}, 3")
        A("v_mov_b32 v2, s100")
        A("v_mov_b32 v3, s101")
        A("v_mov_b32 v22, s97")
        A("s_waitcnt lgkmcnt(8)")
        wreads((AA, AA + 1), 3, D6POS[0] * 8192)
        mf(0, 0, True)
        A("s_waitcnt lgkmcnt(8)")
        mf(0, 1)
        A("s_waitcnt vmcnt(0)")
        A("s_mov_b64 exec, 1")
        A("buffer_store_dwordx2 v[2:3], v22, s[92:95], s96 offen sc1")
        A("s_mov_b64 exec, -1")
        self.stamp(19)
        A("s_waitcnt lgkmcnt(0)")
        mf(0, 2); mf(0, 3)
        A("s_barrier")
        self.d6_woffs([4], S_WAVE, 55)
        self.d6_dma(55, 0, 8 * 2048)
        regroup(5, SP[0])
        tail_setup()
        with Cap(A) as j7c:
            A.label(".Ld6_j7")
            rest()
            tail_setup()
            A(f"s_mov_b32 s{SJ7}, 0")
            A(f"s_mov_b32 s{RDY}, 0")
            A(f"s_mov_b32 s{DONE}, 0")
            A(f"s_mov_b32 s{ISS}, 0")
            A("s_waitcnt vmcnt(0)")
            A("s_barrier")
            issue(0, True)
            setva(VA[0], SP[0])
            for q in range(3): wreads(VA[0], q)
            A("s_waitcnt lgkmcnt(8)")
            wreads(VA[0], 3)
            A("s_waitcnt lgkmcnt(0)")
            regroup(5, SP[0])
            A("s_mov_b32 s99, 0")
            A.label(".Ld6_j7x")
            issue(1, False); issue(2, False)
            A(f"s_cmp_eq_u32 s{ISS}, 3")
            A("s_cbranch_scc1 .Ld6_j7y")
            A("s_cmp_ge_u32 s99, 2")
            A("s_cbranch_scc1 .Ld6_j7y")
            A("s_buffer_load_dwordx16 s[12:27], s[92:95], s96 glc")
            A("s_add_u32 s99, s99, 1")
            A("s_waitcnt lgkmcnt(0)")
            consume()
            A("s_branch .Ld6_j7x")
            A.label(".Ld6_j7y")
            for ah in (2, 1, 0):
                A(f"s_waitcnt vmcnt({8 * ah + 8})")
                if ah:
                    A(f"s_cmp_eq_u32 s{ISS}, {1 + ah}")
                    A("s_cbranch_scc1 .Ld6_j7w")
            A.label(".Ld6_j7w")
            mf(0, 0, True); mf(0, 1); mf(0, 2); mf(0, 3)
            A("s_branch .Ld6_com")
        A.label(".Ld6_com")
        if int(os.environ.get("D6SL", "0")): A("s_sleep 127")
        self.stamp(20)
        FAST = ELIG
        def body(i, vb):
            mf(i, 0)
            A("s_waitcnt lgkmcnt(4)")
            if i < 6: wreads(vb, 0)
            mf(i, 1)
            if i < 6: wreads(vb, 1)
            mf(i, 2)
            A(f"s_waitcnt lgkmcnt({8 if i < 6 else 0})")
            mf(i, 3)
            if i == 1: regroup(6, SP[1])
        def generic(i):
            l = f".Ld6i{i}"
            va = VA[i & 1]; vb = VA[(i + 1) & 1]
            A("s_waitcnt lgkmcnt(0)")
            if i > 1:
                A(f"s_cmp_eq_u32 s{PEND}, 0")
                A(f"s_cbranch_scc1 {l}a")
                consume()
                A.label(f"{l}a")
            issue(i, True)
            if i == 1:
                A("s_mov_b32 s99, 0")
                A.label(f"{l}x")
            for n in (i + 1, i + 2):
                if n < 7: issue(n, False)
            if i == 1:
                A(f"s_cmp_eq_u32 s{RDY}, 0x7f")
                A(f"s_cbranch_scc1 {l}y")
                A(f"s_cmp_ge_u32 s99, {int(os.environ.get('D6X', '2'))}")
                A(f"s_cbranch_scc1 {l}y")
                A("s_buffer_load_dwordx16 s[12:27], s[92:95], s96 glc")
                A("s_add_u32 s99, s99, 1")
                A("s_waitcnt lgkmcnt(0)")
                consume()
                A(f"s_branch {l}x")
                A.label(f"{l}y")
            if i > 1:
                A(f"s_cmp_lg_u32 s{VALID}, 0")
                A(f"s_cbranch_scc1 {l}v")
            setva(va, SP[i % 3])
            wreads(va, 0); wreads(va, 1)
            A("s_waitcnt lgkmcnt(0)")
            A.label(f"{l}v")
            wreads(va, 2); wreads(va, 3)
            if i < 6:
                A(f"s_mov_b32 s{PEND}, 0")
                A(f"s_cmp_eq_u32 s{ISS}, {min(i + 3, 7)}")
                A(f"s_cselect_b32 s{FAST}, 1, 0")
                A(f"s_cmp_eq_u32 s{ISS}, 7")
                A(f"s_cselect_b32 s{RDY}, 0x7f, s{RDY}")
                A(f"s_cmp_eq_u32 s{RDY}, 0x7f")
                A(f"s_cbranch_scc1 {l}n")
                A("s_buffer_load_dwordx16 s[12:27], s[92:95], s96 glc")
                A(f"s_mov_b32 s{PEND}, 1")
                A(f"s_mov_b32 s{FAST}, 0")
                A.label(f"{l}n")
                setva(vb, SP[(i + 1) % 3])
                A(f"s_cmp_gt_u32 s{ISS}, {i + 1}")
                A(f"s_cselect_b32 s{VALID}, 1, 0")
            for ah in (2, 1, 0):
                if i + ah > 6: continue
                A(f"s_waitcnt vmcnt({8 * ah})")
                if ah:
                    A(f"s_cmp_eq_u32 s{ISS}, {i + 1 + ah}")
                    A(f"s_cbranch_scc1 {l}w")
            A.label(f"{l}w")
            body(i, vb)
        generic(1)
        for i in range(2, 7):
            va = VA[i & 1]; vb = VA[(i + 1) & 1]
            A.label(f".Ld6f{i}")
            A(f"s_cmp_eq_u32 s{FAST}, 0")
            A(f"s_cbranch_scc1 .Ld6g{i}")
            with Cap(A) as ci:
                if i + 2 < 7: issue(i + 2, False, True)
            il = [x for x in ci.out if not x.endswith(":")]
            ah = min(1, 6 - i)
            def mfl(q):
                with Cap(A) as cm: mf(i, q)
                return [x.strip() for x in cm.out]
            def rd(v_, q):
                with Cap(A) as cr: wreads(v_, q)
                return cr.out
            def spread(m, fill):
                for t, x in enumerate(m):
                    A(x); A.lines.extend(fill[len(fill) * t // 4: len(fill) * (t + 1) // 4])
            A(f"s_waitcnt vmcnt({8 * ah + 4}) lgkmcnt(4)")
            with Cap(A) as cs:
                if i < 6: setva(vb, SP[(i + 1) % 3])
            spread(mfl(0), rd(va, 2) + il[:10])
            A("s_waitcnt lgkmcnt(4)")
            spread(mfl(1), rd(va, 3) + il[10:18] + cs.out)
            A(f"s_waitcnt vmcnt({8 * ah + (8 if il else 0)}) lgkmcnt(4)")
            spread(mfl(2), (rd(vb, 0) + rd(vb, 1) if i < 6 else []) + il[18:])
            A(f"s_waitcnt lgkmcnt({8 if i < 6 else 0})")
            spread(mfl(3), [])
        A.label(".Ld6f7")
        with Cap(A) as ool:
            for i in range(2, 7):
                A.label(f".Ld6g{i}")
                generic(i)
                A(f"s_branch .Ld6f{i+1}")
        self.ool = j7c.out + ool.out
        self.stamp(27)
        A("s_nop 7")
        A("s_nop 1")
        for tl in range(4):
            nb, rb = tl >> 1, tl & 1
            for r4 in range(4):
                A(f"ds_write_b128 v{V_PW}, v[{ACC+tl*16+r4*4}:{ACC+tl*16+r4*4+3}] offset:{rb*32*RS + (nb*8 + (r4 >> 1)*4 + (r4 & 1))*16}")
            if tl == 1: A("s_waitcnt lgkmcnt(0)")
        A("s_waitcnt lgkmcnt(0)")
        A(f"s_branch .L{lab}_join")
        vm.ops = []; self.lg.ops = []
    def k5(self, stage, next_pf, own_pf=None):
        A = self.A; vm = self.vm; lg = self.lg
        S_A = 8; S_O = 20; S_ST = 24; S_CS = 28
        VB = [16, 28]; AA = 24; ACC = 64; FQ = 128
        D = K5D
        NB5 = int(os.environ.get('NB5', '3'))
        A(f"s_cmp_lt_u32 s{S_WAVE}, 4")
        A("s_cbranch_scc1 .Lk5_main")
        A(f"s_cmp_eq_u32 s{S_J}, 7")
        A("s_cbranch_scc1 .Lk5_h7")
        if CS6:
            A(f"s_cmp_ge_u32 s{S_WAVE}, 6")
            A("s_cbranch_scc1 .Lk5_cse")
            make_srd(A, 8, P_WS, WS_CS2, 8 * 1792 * 8)
            A(f"s_sub_u32 s48, s{S_WAVE}, 4")
            A(f"s_lshl_b32 s49, s{S_J}, 11")
            A("s_lshl_b32 s50, s48, 10")
            A("s_add_u32 s49, s49, s50")
            A("v_lshlrev_b32 v4, 4, v1")
            A(f"s_mul_i32 s50, s48, {2 * RG}")
            A("s_add_u32 s50, s50, 16384")
            A("v_lshrrev_b32 v5, 5, v1")
            A(f"v_mul_u32_u24 v5, {RG}, v5")
            A("v_and_b32 v6, 31, v1")
            A("v_lshl_add_u32 v5, v6, 3, v5")
            A("v_add_u32 v5, s50, v5")
            A("s_mov_b32 s52, 0")
            A.label(".Lk5_csl")
            A("s_mov_b32 s51, s49")
            for r in range(8):
                A(f"buffer_load_dwordx4 v[{64+4*r}:{67+4*r}], v4, s[8:11], s51 offen sc1")
                if r < 7: A(f"s_add_u32 s51, s51, {1792 * 8}")
            A("s_add_u32 s52, s52, 1")
            A("v_mov_b32 v6, 0")
            A("s_waitcnt vmcnt(0)")
            for r in range(8):
                A(f"v_xor_b32 v{65+4*r}, s100, v{65+4*r}")
                A(f"v_xor_b32 v{67+4*r}, s100, v{67+4*r}")
                A(f"v_or3_b32 v6, v6, v{65+4*r}, v{67+4*r}")
            A("v_cmp_ne_u32 vcc, 0, v6")
            A("s_cmp_lt_u32 s52, 0x40000")
            A("s_cbranch_scc0 .Lk5_csd")
            A("s_cbranch_vccnz .Lk5_csl")
            A.label(".Lk5_csd")
            for st in (4, 8, 16):
                for r in range(0, 32, 2 * st):
                    A(f"v_add_f32 v{64+r}, v{64+r}, v{64+r+st}")
                    A(f"v_add_f32 v{66+r}, v{66+r}, v{66+r+st}")
            A("v_mov_b32 v65, v66")
            A("ds_write_b64 v5, v[64:65]")
            A("s_waitcnt lgkmcnt(0)")
            A.label(".Lk5_cse")
        self.poll(stage)
        A("s_barrier")
        A("s_barrier")
        if FG and FGE and FGH:
            def woff():
                A(f"s_sub_u32 s{S_TMP}, s{S_WAVE}, 4")
                A(f"s_mul_i32 s{S_WOFF}, s{S_TMP}, {448 * 1024}")
                A(f"s_lshl_b32 s{S_TMP+11}, s{S_J}, 7")
                A(f"s_add_u32 s{S_WOFF}, s{S_WOFF}, s{S_TMP+11}")
                A(f"s_add_u32 s{S_WOFF}, s{S_WOFF}, {11 * 16384}")
                A(f"s_mul_i32 s{S_RB}, s{S_TMP}, {RG}")
            sv_ = list(vm.ops); wrb_ = self.wrb
            def woff6():
                A(f"s_sub_u32 s{S_TMP}, s{S_WAVE}, 4")
                A(f"s_mul_i32 s{S_RB}, s{S_TMP}, {RG}")
                self.d6_woffs([2, 3], S_TMP, 12)
            self.w_setup(3, 1792, 1024, woff6 if K6D else woff)
            A("v_and_b32 v37, 3, v1")
            A(f"v_mul_u32_u24 v37, {RG}, v37")
            A("s_sleep 60")
            A.label(".Lk5_tgh")
            A("s_sleep 2")
            A(f"ds_read_b64 v[38:39], v37 offset:{16384 + 1024}")
            A("s_waitcnt lgkmcnt(0)")
            A("v_xor_b32 v38, s100, v38")
            A("v_xor_b32 v39, s101, v39")
            A("v_or_b32 v38, v38, v39")
            A("v_cmp_ne_u32 vcc, 0, v38")
            A("s_nop 0")
            A("s_cbranch_vccnz .Lk5_tgh")
            if K6D:
                for s_ in range(8): self.d6_dma(12 + (s_ >> 2), s_ & 3, s_ * 2048)
            else:
                for st in range(11, 11 + FGE): self.dmaW(st, fg_slot(st), "wn")
            A(f"s_mul_i32 s{S_RB}, s{S_WAVE}, {RG}")
            vm.ops = sv_; self.wrb = wrb_
        A.label(".Lk5_h7")
        if L2PF & 4: self.l2pf(3, 1792 * 1024)
        A("s_branch .Lk5_end")
        A.label(".Lk5_main")
        A(f"s_cmp_eq_u32 s{S_J}, 7")
        A("s_cbranch_scc1 .Lk5_pf")
        if own_pf and PFE == 2: own_pf(NE, 99)
        make_srd(A, S_A, P_WS, WS_X1, 2 * MB)
        make_srd(A, S_ST, P_WS, WS_STAT, 2048 * 128)
        if CS6: pass
        elif not CS5: make_srd(A, S_CS, P_WS, WS_CS, 2 * CSP)
        else: A(f"s_mov_b32 s{S_CS}, 0x3f803f80")
        make_srd(A, S_O, P_WS, WS_G, 2048 * 3584)
        A(f"v_lshlrev_b32 v4, 4, v{L}")
        A(f"s_lshl_b32 s{S_TMP}, s{S_M}, 16")
        A(f"s_lshl_b32 s{S_TMP+1}, s{S_WAVE}, 14")
        A(f"s_add_u32 s{S_TMP}, s{S_TMP}, s{S_TMP+1}")
        A(f"s_lshl_b32 s{S_TMP+6}, s{S_J}, 9")
        A(f"s_lshl_b32 s{S_TMP+2}, s{S_WAVE}, 7")
        A(f"s_add_u32 s{S_TMP+6}, s{S_TMP+6}, s{S_TMP+2}")
        A(f"v_lshrrev_b32 v5, 5, v{L}")
        A(f"v_bfe_u32 v7, v{L}, 4, 1")
        A(f"v_bfe_u32 v8, v{L}, 2, 2")
        A(f"v_and_b32 v9, 1, v{L}")
        A(f"v_bfe_u32 v10, v{L}, 1, 1")
        A("v_lshl_or_b32 v9, v9, 1, v10")
        A("v_lshlrev_b32 v9, 3, v9")
        A("v_lshl_add_u32 v9, v7, 5, v9")
        A("v_lshl_add_u32 v10, v5, 3, v8")
        A("v_lshrrev_b32 v11, 1, v8")
        for nb in range(2):
            A(f"v_xor_b32 v12, {nb}, v11")
            A("v_lshl_add_u32 v12, v12, 6, v9")
            A("v_lshl_add_u32 v12, v10, 7, v12")
            A(f"v_add_u32 v{AA+nb}, s{S_RB}, v12")
        A(f"v_and_b32 v13, 31, v{L}")
        A("v_lshrrev_b32 v7, 4, v13")
        A(f"v_mul_u32_u24 v7, {RG // 1024}, v7")
        A("v_and_b32 v8, 15, v13")
        A("v_add_u32 v7, v7, v8")
        for j in range(8):
            A(f"v_or_b32 v8, {2*j}, v5")
            A("v_xor_b32 v8, v8, v13")
            A("v_and_b32 v8, 15, v8")
            A("v_lshlrev_b32 v8, 4, v8")
            A(f"v_lshl_add_u32 v{VB[0]+j}, v7, 10, v8")
            A(f"v_add_u32 v{VB[1]+j}, {2*RG}, v{VB[0]+j}")
        ST = 192; CS = 224
        A("v_lshlrev_b32 v42, 5, v5")
        if CS6:
            A(f"s_add_u32 s{S_TMP+3}, s{S_RB}, 16384")
            A(f"v_add_u32 v42, s{S_TMP+3}, v42")
        if CS5:
            A(f"s_add_u32 s{S_TMP+3}, s{S_RB}, 16384")
            A(f"v_add_u32 v42, s{S_TMP+3}, v42")
            A("v_and_b32 v7, 0x13, v13")
            A("v_bfe_u32 v8, v13, 2, 1")
            A("v_lshl_or_b32 v7, v8, 3, v7")
            A("v_bfe_u32 v8, v13, 3, 1")
            A("v_lshl_or_b32 v7, v8, 2, v7")
            A("v_lshlrev_b32 v7, 2, v7")
            A(f"v_add_u32 v43, s{S_TMP+3}, v7")
        C2 = [176, 184, 200, 216]
        def csloads():
            A(f"s_lshl_b32 s{S_TMP+2}, s{S_TMP+6}, 1")
            for part in range(2 if V2 else 1):
                for q in range(4):
                    for h4 in range(2):
                        d = (CS + q * 8 if part == 0 else C2[q]) + 4 * h4
                        A(f"buffer_load_dwordx4 v[{d}:{d+3}], v42, s[{S_CS}:{S_CS+3}], s{S_TMP+2} offen offset:{(16*q+4*h4)*4}"); vm.issue("st")
                A(f"s_add_u32 s{S_TMP+2}, s{S_TMP+2}, {CSP}")
        VS = 36
        A("v_and_b32 v7, 7, v13")
        A(f"s_add_u32 s{S_TMP+3}, s{S_RB}, {K5RB}")
        for j in range(4):
            A(f"v_or_b32 v14, {2*j}, v5")
            A("v_xor_b32 v14, v14, v7")
            A("v_lshlrev_b32 v14, 4, v14")
            A("v_lshl_add_u32 v14, v13, 7, v14")
            A(f"v_add_u32 v{VS+j}, s{S_TMP+3}, v14")
        A(f"v_lshrrev_b32 v7, 3, v{L}")
        A(f"v_and_b32 v14, 7, v{L}")
        A(f"v_xor_b32 v{VS+4}, v14, v7")
        A(f"v_lshlrev_b32 v{VS+4}, 4, v{VS+4}")
        A(f"v_lshl_add_u32 v{VS+4}, v7, 7, v{VS+4}")
        A(f"v_add_u32 v{VS+4}, s{S_TMP+3}, v{VS+4}")
        A(f"s_movk_i32 s{S_TMP+2}, 3584")
        A(f"v_mul_lo_u32 v7, v7, s{S_TMP+2}")
        A(f"v_lshl_add_u32 v{VS+5}, v14, 4, v7")
        A(f"s_mul_i32 s{S_TMP+4}, s{S_M}, {64*3584}")
        if FG:
            A(f"s_lshl_b32 s{S_TMP+5}, s{S_TMP+6}, 6")
            A(f"s_add_u32 s{S_TMP+4}, s{S_TMP+4}, s{S_TMP+5}")
            A(f"s_add_u32 s{S_TMP+5}, s{S_TMP+4}, 4096")
        else:
            A(f"s_add_u32 s{S_TMP+4}, s{S_TMP+4}, s{S_TMP+6}")
            A(f"s_add_u32 s{S_TMP+5}, s{S_TMP+4}, {32*3584}")
        A("v_lshlrev_b32 v7, 3, v13")
        A("v_lshl_add_u32 v7, v5, 16, v7")
        A(f"s_lshl_b32 s{S_TMP+7}, s{S_M}, 9")
        A("s_barrier")
        self.stamp(1 + 4 * stage + 3)
        for i in range(16):
            t = 8 + (i & 1)
            A(f"v_xor_b32 v{t}, {i << 4}, v4")
            A(f"s_add_u32 m0, s{S_RB}, {i * 1024}")
            A(f"s_add_u32 s{S_TMP+2}, s{S_TMP}, {i * 1024}")
            A(f"buffer_load_dwordx4 v{t}, s[{S_A}:{S_A+3}], s{S_TMP+2} offen lds")
            vm.issue("act")
        for q in range(4):
            A(f"s_add_u32 s{S_TMP+3}, s{S_TMP+7}, {q*16384}")
            for rb in range(2):
                A(f"buffer_load_dwordx2 v[{ST+16*rb+2*q}:{ST+16*rb+2*q+1}], v7, s[{S_ST}:{S_ST+3}], s{S_TMP+3} offen offset:{rb*256}"); vm.issue("st")
        def csreads():
            for q in range(4):
                for h4 in range(2):
                    d = CS + q * 8 + 4 * h4
                    A(f"ds_read_b128 v[{d}:{d+3}], v42 offset:{(16*q+4*h4)*4}")
        WR = [152, 160, 168, 176, 184, 200, 216, 224, 232, 240, 248][:K5R + 1]
        def wr5(step):
            buf = WR[step % len(WR)]
            for nb in range(2):
                for q in range(2):
                    A(f"ds_read_b64_tr_b16 v[{buf+nb*4+q*2}:{buf+nb*4+q*2+1}], v{AA+nb} offset:{K5RB + (step % D) * 2048 + q * 512}")
                    lg.issue(("w5", step))
        if K5R:
            assert CS6 and FG
            for s0 in range(K5R + 2):
                if s0 < K5R: wr5(s0)
                if 2 <= s0 <= K5R:
                    lg.wait(("w5", s0 - 2)); self.dmaW(s0 - 2 + D, K5RB + ((s0 - 2) % D) * 2048)
        elif CS6: csreads()
        vm.wait("act")
        if CS6 and not K5R: A("s_waitcnt lgkmcnt(0)")
        A("s_barrier")
        self.stamp(29)
        def reads(step):
            buf = FQ + (step % NB5) * 16
            for nb in range(2):
                for q in range(2):
                    A(f"ds_read_b64_tr_b16 v[{buf+nb*4+q*2}:{buf+nb*4+q*2+1}], v{AA+nb} offset:{K5RB + (step % D) * 2048 + q * 512}")
                    lg.issue(("f", step))
            for rb in range(2):
                A(f"ds_read_b128 v[{buf+8+rb*4}:{buf+8+rb*4+3}], v{VB[rb] + (step & 7)} offset:{(step >> 3) * 256}")
                lg.issue(("f", step))
        PKC = [[44, 46, 48, 50], [52, 54, 56, 58]]
        E = []
        for stg in range(17):
            for rb in range(2):
                b = ST + 16 * rb; c = PKC[rb]
                E.append([f"v_add_f32 v{b}, v{b}, v{b+2}", f"v_add_f32 v{b+1}, v{b+1}, v{b+3}",
                          f"v_add_f32 v{b+4}, v{b+4}, v{b+6}", f"v_add_f32 v{b+5}, v{b+5}, v{b+7}",
                          f"v_add_f32 v{b}, v{b}, v{b+4}", f"v_add_f32 v{b+1}, v{b+1}, v{b+5}",
                          f"v_mov_b32 v{b+2}, v{b}", f"v_mov_b32 v{b+3}, v{b+1}", "s_nop 1",
                          f"v_permlane32_swap_b32 v{b}, v{b+2}", f"v_permlane32_swap_b32 v{b+1}, v{b+3}", "s_nop 1",
                          f"v_add_f32 v{b}, v{b}, v{b+2}", f"v_add_f32 v{b+1}, v{b+1}, v{b+3}",
                          f"v_mul_f32 v{c[0]}, {fhex(-1/512)}, v{b}", f"v_mul_f32 v{b+1}, {fhex(1/512)}, v{b+1}",
                          f"v_fma_f32 v{b+1}, -v{c[0]}, v{c[0]}, v{b+1}"][stg])
        for stg in range(9):
            for rb in range(2):
                b = ST + 16 * rb; c = PKC[rb]
                E.append([f"v_max_f32 v{b+1}, 0, v{b+1}", f"v_add_f32 v{b+1}, {fhex(1e-5)}, v{b+1}",
                          f"v_rsq_f32 v{b+2}, v{b+1}", f"v_sqrt_f32 v{c[3]}, v{b+1}", "s_nop 0",
                          f"v_mul_f32 v{c[2]}, {fhex(GK0)}, v{b+2}", f"v_mul_f32 v{c[1]}, v{b+2}, v{b+2}",
                          f"v_mul_f32 v{c[1]}, v{c[1]}, v{b+2}", f"v_mul_f32 v{c[1]}, {fhex(GK1)}, v{c[1]}"][stg])
        if V2 and not CS5 and not CS6:
            for q in range(4):
                for e in range(8): E.append(f"v_add_f32 v{CS+8*q+e}, v{CS+8*q+e}, v{C2[q]+e}")
        if K5R:
            def br5(step):
                buf = FQ + (step % 3) * 8
                for rb in range(2):
                    A(f"ds_read_b128 v[{buf+rb*4}:{buf+rb*4+3}], v{VB[rb] + (step & 7)} offset:{(step >> 3) * 256}")
                    lg.issue(("f", step))
            br5(0); br5(1)
            k = 0
            for ks in range(32):
                lg.wait(("f", ks))
                r = ks + K5R
                with Cap(A) as cp:
                    f_ = r - 1
                    if ks + 2 < 32: br5(ks + 2)
                    if f_ < 32:
                        lg.wait(("w5", f_))
                        if f_ + D < 32: self.dmaW(f_ + D, K5RB + (f_ % D) * 2048)
                        else: next_pf(f_ - 21, f_ - 20)
                    if r < 32:
                        vm.wait(("w", r)); wr5(r)
                    if 8 <= ks < 28:
                        if ks == 8: vm.wait("st")
                        upto = len(E) * (ks - 7) // 20
                        while k < upto: A(E[k]); k += 1
                buf = FQ + (ks % 3) * 8; w = WR[ks % len(WR)]
                mf = []
                for nb in range(2):
                    for rb in range(2):
                        acc = ACC + (nb * 2 + rb) * 16
                        c = "0" if ks == 0 else f"v[{acc}:{acc+15}]"
                        mf.append(f"v_mfma_f32_32x32x16_bf16 v[{acc}:{acc+15}], v[{w+nb*4}:{w+nb*4+3}], v[{buf+rb*4}:{buf+rb*4+3}], {c}")
                interleave(A, mf, cp.out)
            csreads()
            A("s_waitcnt lgkmcnt(0)")
            lg.ops = []
        for s0 in range(NB5 - 1 if not K5R else 0):
            vm.wait(("w", s0)); reads(s0)
        k = 0
        for ks in range(32 if not K5R else 0):
            lg.wait(("f", ks))
            with Cap(A) as cp:
                if ks + NB5 - 1 < 32:
                    vm.wait(("w", ks + NB5 - 1)); reads(ks + NB5 - 1)
                if ks + D < 32: self.dmaW(ks + D, K5RB + (ks % D) * 2048)
                elif FG: next_pf(ks - 21, ks - 20)
                elif PFE == 3 and ks == 21: next_pf(0, 1)
                elif PFE == 3 and ks >= 26: next_pf(ks - 25, ks - 24)
                if ks == 1 and not CS5 and not CS6: csloads()
                if CS5:
                    bf_ = FQ + (ks % NB5) * 16
                    dl = [f"v_dot2_f32_bf16 v{176+nb}, v{bf_+nb*4+j}, s{S_CS}, " + ("0" if ks == 0 and j == 0 else f"v{176+nb}") for j in range(4) for nb in range(2)]
                    if ks < 31:
                        for d_ in dl: A(d_)
                    else:
                        A("v_mov_b32 v178, v176")
                        A("v_mov_b32 v179, v177")
                        A("s_nop 1")
                        A("v_permlane32_swap_b32 v176, v178")
                        A("v_permlane32_swap_b32 v177, v179")
                        A("s_nop 1")
                        A("v_add_f32 v176, v176, v178")
                        A("v_add_f32 v177, v177, v179")
                        A("ds_write_b32 v43, v176")
                        A("ds_write_b32 v43, v177 offset:128")
                        A("s_waitcnt lgkmcnt(0)")
                        for q in range(4):
                            for h4 in range(2):
                                d = CS + q * 8 + 4 * h4
                                A(f"ds_read_b128 v[{d}:{d+3}], v42 offset:{(16*q+4*h4)*4}")
                if 14 <= ks < 28:
                    if ks == 14: vm.wait("st")
                    upto = len(E) * (ks - 13) // 14
                    while k < upto: A(E[k]); k += 1
            buf = FQ + (ks % NB5) * 16
            mf = []
            for nb in range(2):
                for rb in range(2):
                    acc = ACC + (nb * 2 + rb) * 16
                    c = "0" if ks == 0 else f"v[{acc}:{acc+15}]"
                    mf.append(f"v_mfma_f32_32x32x16_bf16 v[{acc}:{acc+15}], v[{buf+nb*4}:{buf+nb*4+3}], v[{buf+8+rb*4}:{buf+8+rb*4+3}], {c}")
            if CS5 and ks == 31:
                for d_ in dl: A(d_)
                A("s_nop 1")
            interleave(A, mf, cp.out)
        if CS5: A("s_waitcnt lgkmcnt(0)")
        if FG and FGE:
            A(f"s_add_u32 s{S_TMP+3}, s{S_RB}, {16384 + 1024}")
            A(f"v_mov_b32 v36, s{S_TMP+3}")
            A("v_mov_b32 v38, s100")
            A("v_mov_b32 v39, s101")
            A("ds_write_b64 v36, v[38:39]")
            A("v_and_b32 v37, 3, v1")
            A(f"v_mul_u32_u24 v37, {RG}, v37")
        self.stamp(28)
        if PFE == 1: next_pf()
        else:
            A("s_nop 7"); A("s_nop 3")
        def flush5(rb):
            A("s_waitcnt lgkmcnt(0)")
            for i in range(4):
                A(f"ds_read_b128 v[{192+16*rb+4*i}:{192+16*rb+4*i+3}], v{VS+4} offset:{rb*4096 + i*1024}")
        def store5(rb):
            for i in range(4):
                if rb == 1: A(f"s_waitcnt lgkmcnt({3-i})")
                A(f"s_add_u32 s{S_TMP+3}, s{S_TMP+4+rb}, {i*8*3584}")
                A(f"buffer_store_dwordx4 v[{192+16*rb+4*i}:{192+16*rb+4*i+3}], v{VS+5}, s[{S_O}:{S_O+3}], s{S_TMP+3} offen sc1")
        for rb in range(2):
            for nb in range(2):
                acc = ACC + (nb * 2 + rb) * 16
                if rb == 1 and nb == 1 and not FG:
                    A("s_waitcnt lgkmcnt(2)")
                    store5(0)
                for mp in range(2):
                    d = 160 + (nb * 4 + rb * 2 + mp) * 4
                    xs = [acc + 8 * mp + e for e in range(8)]
                    ts = list(range(128, 136)); cs = CS + (nb * 2 + mp) * 8; c = PKC[rb]
                    for e in range(0, 8, 2): pk(A, "v_pk_fma_f32", xs[e], cs + e, c[0], xs[e], "op_sel_hi:[1,0,1]")
                    for e in range(0, 8, 2): pk(A, "v_pk_mul_f32", ts[e], xs[e], xs[e])
                    for e in range(0, 8, 2): pk(A, "v_pk_fma_f32", ts[e], ts[e], c[1], c[2], "op_sel_hi:[1,0,0]")
                    for e in range(0, 8, 2): pk(A, "v_pk_mul_f32", ts[e], ts[e], xs[e])
                    for t in ts: A(f"v_exp_f32 v{t}, v{t}")
                    for e in range(0, 8, 2): pk(A, "v_pk_fma_f32", ts[e], ts[e], c[3], c[3], "op_sel_hi:[1,0,0]")
                    for t in ts: A(f"v_rcp_f32 v{t}, v{t}")
                    A("s_nop 0")
                    for e in range(0, 8, 2): pk(A, "v_pk_mul_f32", xs[e], xs[e], ts[e])
                    for e in range(0, 8, 2): A(f"v_cvt_pk_bf16_f32 v{d+e//2}, v{xs[e]}, v{xs[e+1]}")
                    if FG: A(f"buffer_store_dwordx4 v[{d}:{d+3}], v4, s[{S_O}:{S_O+3}], s{S_TMP+4+nb} offen offset:{mp*2048 + rb*1024} sc1")
                    else: A(f"ds_write_b128 v{VS+2*nb+mp}, v[{d}:{d+3}] offset:{rb*4096}")
                    if FG and FGE and not FGH:
                        gi = rb * 4 + nb * 2 + mp
                        G0 = int(os.environ.get("FGG", "0")); NG = int(os.environ.get("FGN", "4"))
                        if gi == G0:
                            A.label(".Lk5_tg")
                            A(f"ds_read_b64 v[38:39], v37 offset:{16384 + 1024}")
                            A("s_waitcnt lgkmcnt(0)")
                            A("v_xor_b32 v38, s100, v38")
                            A("v_xor_b32 v39, s101, v39")
                            A("v_or_b32 v38, v38, v39")
                            A("v_cmp_ne_u32 vcc, 0, v38")
                            A("s_nop 0")
                            A("s_cbranch_vccnz .Lk5_tg")
                        if G0 <= gi < G0 + NG:
                            next_pf(11 + FGE * (gi - G0) // NG, 11 + FGE * (gi - G0 + 1) // NG)
            if not FG: flush5(rb)
        if not FG: store5(1)
        if FG and FGE and FGH and not K6D: A(f"s_add_u32 s{S_WOFF}, s{S_WOFF}, {FGE * 16384}")
        A("s_branch .Lk5_end")
        A.label(".Lk5_pf")
        if PFE in (1, 3): next_pf(alt=True)
        A.label(".Lk5_end")
        if J7P >= 0:
            A(f"s_cmp_lg_u32 s{S_J}, 7")
            A("s_cbranch_scc1 .Lk5_j7e")
            make_srd(A, 80, P_W + 6, 0, 1792 * 1024)
            A(f"s_lshr_b32 s78, s{S_M}, 3")
            A(f"s_mul_i32 s78, s78, {448 * 1024}")
            A(f"s_add_u32 s78, s78, {J7P * 16384}")
            A("v_lshlrev_b32 v2, 7, v0")
            for i in range((28 - J7P) // 4):
                A("buffer_load_dword v3, v2, s[80:83], s78 offen")
                A("s_add_u32 s78, s78, 65536")
            A.label(".Lk5_j7e")

def gen_km(A):
    name = "k1_kernel"
    M = Mega(A)
    def pre():
        if MT or HD:
            M.persist(); M.stamp(0); M.vm.ops = []
        if ONE: M.pro_pre()
    if V4: K1.gen_k1(A, emb=True, pre=pre, hookA=M.p4_a, hookB=M.p4_b, v2=True, hookC=M.p2_c, hookD=lambda: (M.persist(), M.jobs0()))
    elif V3: K1.gen_k1(A, emb=True, pre=pre, hookA=M.p3_a, hookB=M.p3_b, v2=True, hookC=M.p2_c)
    elif V2: K1.gen_k1(A, emb=True, pre=pre, hookA=M.p2_a, hookB=M.p2_b, v2=True, hookC=M.p2_c)
    elif ONE: K1.gen_k1(A, emb=True, pre=pre, hookA=M.pro_a, hookB=M.pro_b)
    else: K1.gen_k1(A, emb=True, pre=pre)
    if KMAP != 1:
        A(f"s_lshl_b32 s39, s{K1.S_M}, 8")
        A(f"s_lshl_b32 s38, s{K1.S_G}, 3")
        A("s_add_u32 s39, s39, s38")
    M.persist()
    M.transition(0)
    M.kr()
    M.transition(1)
    pf4 = lambda lo=0, hi=99: M.pf_g64(1, 512, 24576, 8, lo, hi)
    pf6 = lambda lo=0, hi=99, alt=False: M.pf_g64(3, 1792, 26624, 7, lo, hi, 6)
    if FG: pf6 = M.pf_d6 if K6D else M.pf_fg
    M.g64("k3", 1, 512, WS_HN, 2 * MB, 1024, "gelu", 24576, 8, False, pf4, None, 0, {st: (st, st + 1) for st in range(8)}, [(2, 1792 * 1024)] if L2PF & 1 else None)
    M.transition(2, pf4)
    M.g64("k4", 2, 512, WS_H1, 2052 * 1024, 1024, "res", 24576, 8, True, M.pf_k5, pf4, 0, {st: ((0, 4) if st == 0 else (st + 3, st + 4)) for st in range(8)}, [(3, 1792 * 1024)] if L2PF & 2 else None)
    M.transition(3, M.pf_k5)
    M.k5(3, pf6, M.pf_k5)
    if K6D: M.stamp(17); M.vm.ops = []; M.lg.ops = []
    else: M.transition(4, pf6)
    M.g64("k6", 4, 1792, WS_G, 2048 * 3584, 3584, "final", 26624, 7, False, None, pf6, 6)
    M.stamp(21)
    if MT or HD: A("s_waitcnt vmcnt(0)")
    M.stamp(22)
    A("s_endpgm")
    if getattr(M, "ool", None):
        A.lines.extend(M.ool)
        A("s_endpgm")
    A.raw(kernel_desc(name, 256, 102, 256))
    return (name, (256, 1, 1), (512, 1, 1), 163840)
```
